```python
import torch

def _softmax(x, axis=-1):
    return torch.softmax(x, dim=axis)
def _gelu(x):
    return torch.nn.functional.gelu(x, approximate="tanh")
def _silu(x):
    return torch.nn.functional.silu(x)
def _sigmoid(x):
    return torch.sigmoid(x)
def _layernorm(x, axis=-1, eps=1e-5):
    m = x.mean(dim=axis, keepdim=True)
    v = x.var(dim=axis, keepdim=True, unbiased=False)
    return (x - m) / torch.sqrt(v + eps)
def _scatter_add(tgt, idx, src, axis=0):
    return tgt.clone().index_add_(axis, idx, src)
def _segment_sum(src, seg, n):
    out = torch.zeros((n,) + src.shape[1:], dtype=src.dtype)
    return out.index_add_(0, seg, src)
def _pad(x, pw):
    flat = tuple(v for pair in reversed(pw) for v in pair)
    return torch.nn.functional.pad(x, flat)

kernel_name = 'gated_mix__grouped_kv_mqa__sliding_block__prompt'

def setup_inputs():

    _w = (lambda a: (lambda t: t.to(torch.bfloat16) if t.is_floating_point() else t)(torch.as_tensor(a)))
    def _A_setup():
        B, S, D, H = 1, 2048, 512, 32
        Dh = D // H
        return {
            "x": _w((lambda *s: torch.randn(*s, dtype=torch.bfloat16) * 0.05)(B, S, D)),
            "wq": _w((lambda *s: torch.randn(*s, dtype=torch.bfloat16) * 1.6)(D, H * Dh)),
            "wk": _w((lambda *s: torch.randn(*s, dtype=torch.bfloat16) * 1.6)(D, Dh)),
            "wv": _w((lambda *s: torch.randn(*s, dtype=torch.bfloat16) * 0.2)(D, Dh)),
            "wo": _w((lambda *s: torch.randn(*s, dtype=torch.bfloat16) * 0.2)(H * Dh, D)),
        }
    _A_in = _A_setup()

    def _B_setup():
        B, S, D = 1, 2048, 512
        return {
            "x": _w((lambda *s: torch.randn(*s, dtype=torch.bfloat16) * 0.05)(B, S, D)),
            "wqkv": _w((lambda *s: torch.randn(*s, dtype=torch.bfloat16) * 1.6)(D, 3 * D)),
            "wo": _w((lambda *s: torch.randn(*s, dtype=torch.bfloat16) * 0.05)(D, D)),
        }
    _B_in = _B_setup()

    return {
        "A_x": _A_in["x"],
        "A_wq": _A_in["wq"],
        "A_wk": _A_in["wk"],
        "A_wv": _A_in["wv"],
        "A_wo": _A_in["wo"],
        "B_x": _B_in["x"],
        "B_wqkv": _B_in["wqkv"],
        "B_wo": _B_in["wo"],
        "gate_w": _w((lambda *s: torch.randn(*s, dtype=torch.bfloat16) * 0.05)(512) * 16.0),
    }

def reference(A_x, A_wq, A_wk, A_wv, A_wo, B_x, B_wqkv, B_wo, gate_w):
    def _A_ref(x, wq, wk, wv, wo):
        B, S, D = x.shape
        H = 32
        Dh = D // H
        q = (lambda x, *d: x.permute(*d))((x @ wq).reshape(B, S, H, Dh), 0, 2, 1, 3)
        k = x @ wk
        v = x @ wv
        scores = torch.einsum("bhqd,bkd->bhqk", q, k) * (Dh ** -0.5)
        p = _softmax(scores, axis=-1)
        o = torch.einsum("bhqk,bkd->bhqd", p, v)
        return (lambda x, *d: x.permute(*d))(o, 0, 2, 1, 3).reshape(B, S, H * Dh) @ wo

    def _B_ref(x, wqkv, wo):
        B, S, D = x.shape
        H = 32; Dh = D // H; W = 256
        qkv = (lambda x, *d: x.permute(*d))((x @ wqkv).reshape(B, S, 3, H, Dh), 2, 0, 3, 1, 4)
        q, k, v = qkv[0], qkv[1], qkv[2]
        scores = torch.einsum("bhqd,bhkd->bhqk", q, k) * (Dh ** -0.5)
        idx = torch.arange(S)
        mask = (idx[:, None] - idx[None, :] >= 0) & (idx[:, None] - idx[None, :] < W)
        scores = torch.where(mask[None, None], scores, -1e9)
        p = _softmax(scores, axis=-1)
        o = torch.einsum("bhqk,bhkd->bhqd", p, v)
        return (lambda x, *d: x.permute(*d))(o, 0, 2, 1, 3).reshape(B, S, D) @ wo

    x = A_x
    g = _sigmoid((x * gate_w).sum(-1, keepdims=True))
    a = _A_ref(x, A_wq, A_wk, A_wv, A_wo)
    b = _B_ref(x, B_wqkv, B_wo)
    return g * a + (1 - g) * b
```

```python
import sys, math, struct
NAME='gated_mix__grouped_kv_mqa__sliding_block__prompt'
DIAG = '--diag' in sys.argv
OUT = [a for a in sys.argv[1:] if not a.startswith('--')]
OUT = OUT[0] if OUT else 'cdna_kernels/%s.s'%NAME
def f2u(f): return struct.unpack('<I',struct.pack('<f',f))[0]

WS_EPOCH=0x0
WS_FKVA=0x1000
WS_FKVB=0x4000
WS_FOB =0xC000
WS_FOA =0x14000
WS_KVA =0x20000
WS_QB  =0x40000
WS_KVB =0x240000
WS_OA  =0x640000
WS_OB  =0x840000
WS_STAMP=0xA40000
NSTAMP=16
L_WQ=0; L_X=65536; L_ST=131072; L_CTL=L_ST+30720
L_GW=L_CTL; L_G=L_CTL+1024; L_C=L_CTL+1024+256
C_X=L_C+0
C_Q=L_C+4
C_K0=L_C+8; C_K1=L_C+12; C_K2=L_C+16; C_BP=L_C+20; C_MID=L_C+24; C_P4=L_C+28
L_EX=65536
LDS_TOTAL=163840
SPIN_LIMIT=50000
CSCALE=f2u(0.25*math.log2(math.e))
NEGBIG=f2u(-1e9)
L_LO=f2u(2.0**-24); L_HI=f2u(2.0**60)

sX=28; sWQ=32; sWKV=36; sWB=40; sWOA=44; sWOB=48; sG=52; sOUT=56; sWS=60; sDBG=64
sWave=68; sPb=69; sHg=70; sTag=71
sT=72
sCnt=84; sB=85
sVM=86
sST=88
L=[]
def E(s):
    for ln in s.split('\n'):
        if ln.strip(): L.append('    '+ln.strip())
def LBL(s): L.append(s+':')
def C(s): L.append('    ; '+s)
_uid=[0]
def uid(p):
    _uid[0]+=1; return f'{p}_{_uid[0]}'
def vr(a,n): return f'v[{a}:{a+n-1}]'
def sr(a,n=4): return f's[{a}:{a+n-1}]'
def srd(dst,ptr,nbytes):
    E(f's_mov_b32 s{dst}, s{ptr}\n s_mov_b32 s{dst+1}, s{ptr+1}\n s_mov_b32 s{dst+2}, {hex(nbytes)}\n s_mov_b32 s{dst+3}, 0x20000')
STN=[]
def stamp(role,i,name):
    if not DIAG: return
    STN.append((role,i,name))
    E(f's_memrealtime s[100:101]\n s_waitcnt lgkmcnt(0)\n s_mov_b32 s{sST+i}, s100')
def stamp_flush(nmax):
    if not DIAG: return
    E('v_mov_b32 v2, 0')
    for i in range(nmax): E(f'v_writelane_b32 v2, s{sST+i}, {i}')
    E(f's_mul_i32 s{sT}, s2, 12\n s_add_u32 s{sT}, s{sT}, s{sWave}\n s_lshl_b32 s{sT}, s{sT}, 6\n s_add_u32 s{sT}, s{sT}, {hex(WS_STAMP)}')
    E(f'v_lshlrev_b32 v3, 2, v0\n s_mov_b64 exec, 0xffff\n buffer_store_dword v2, v3, {sr(sWS)}, s{sT} offen\n s_mov_b64 exec, -1')

def lds_add(off,val,vz,vt):
    E(f'v_mov_b32 v{vt}, {val}\n s_mov_b64 exec, 1\n ds_add_u32 v{vz}, v{vt} offset:{off-L_ST}\n s_mov_b64 exec, -1')
def lds_spin(off,mask,val,vz,vt,sleep=1):
    a=uid('spin'); d=uid('spind')
    E(f's_mov_b32 s{sCnt}, {SPIN_LIMIT}')
    LBL(a)
    E(f'ds_read_b32 v{vt}, v{vz} offset:{off-L_ST}\n s_waitcnt lgkmcnt(0)\n v_readfirstlane_b32 s{sT}, v{vt}')
    if mask is not None: E(f's_and_b32 s{sT}, s{sT}, {hex(mask)}')
    E(f's_cmp_eq_u32 s{sT}, {hex(val)}\n s_cbranch_scc1 {d}\n s_sub_u32 s{sCnt}, s{sCnt}, 1\n s_cbranch_scc1 {d}')
    if sleep: E(f's_sleep {sleep}')
    E(f's_branch {a}')
    LBL(d)
def poll(vaddr,n,vt,sleep=1):
    a=uid('poll'); d=uid('polld')
    E(f's_mov_b32 s{sCnt}, {SPIN_LIMIT}')
    LBL(a)
    op={1:'buffer_load_dword',3:'buffer_load_dwordx3',4:'buffer_load_dwordx4'}[n]
    E(f'{op} {vr(vt,n) if n>1 else "v%d"%vt}, v{vaddr}, {sr(sWS)}, 0 offen sc1\n s_waitcnt vmcnt(0)')
    for i in range(n): E(f'v_xor_b32 v{vt+i}, s{sTag}, v{vt+i}')
    if n>=3: E(f'v_or3_b32 v{vt}, v{vt}, v{vt+1}, v{vt+2}')
    if n==4: E(f'v_or_b32 v{vt}, v{vt}, v{vt+3}')
    E(f'v_cmp_ne_u32 vcc, 0, v{vt}\n s_cbranch_vccz {d}\n s_sub_u32 s{sCnt}, s{sCnt}, 1\n s_cbranch_scc1 {d}')
    if sleep: E(f's_sleep {sleep}')
    E(f's_branch {a}')
    LBL(d)
def flag_store(soff_reg,vt):
    E(f'v_mov_b32 v{vt}, s{sTag}\n s_mov_b64 exec, 1\n buffer_store_dword v{vt}, off, {sr(sWS)}, s{soff_reg} sc1\n s_mov_b64 exec, -1')
def mfma(d,a,b,c=None):
    cc = vr(d,16) if c is None else (c if isinstance(c,str) else vr(c,16))
    E(f'v_mfma_f32_32x32x16_bf16 {vr(d,16)}, {vr(a,4)}, {vr(b,4)}, {cc}')
def smf(o,v,s,idx): E(f'v_smfmac_f32_32x32x32_bf16 {vr(o,16)}, {vr(v,4)}, {vr(s,8)}, v{idx}')
def vexp(r): E(f'v_exp_f32 v{r}, v{r}')
def cvt(d,a,b): E(f'v_cvt_pk_bf16_f32 v{d}, v{a}, v{b}')
def set_vpad(regs,vt):
    E(f'v_and_b32 v{vt}, 27, v0\n v_cmp_eq_u32 vcc, 16, v{vt}\n v_mov_b32 v{vt}, 0x3f803f80\n s_nop 0\n v_cndmask_b32 v{regs[0]}, 0, v{vt}, vcc')
    for r in regs[1:]: E(f'v_mov_b32 v{r}, v{regs[0]}')
def xaddr(base,t_imm,vt):
    E(f'v_and_b32 v{vt}, 15, v0\n v_lshrrev_b32 v{base}, 5, v0\n v_xor_b32 v{base}, v{base}, v{vt}\n v_lshlrev_b32 v{base}, 4, v{base}')
    E(f'v_and_b32 v{vt}, 31, v0\n v_lshl_add_u32 v{base}, v{vt}, 10, v{base}\n v_add_u32 v{base}, {t_imm}, v{base}')
    for b in range(1,8): E(f'v_xor_b32 v{base+b}, {b<<5}, v{base}')
def traddr128(dst,vt,vt2,rowsel,colbase):
    E(f'v_lshrrev_b32 v{vt}, 5, v0\n v_lshlrev_b32 v{vt}, {rowsel}, v{vt}\n v_bfe_u32 v{vt2}, v0, 2, 2\n v_add_u32 v{vt}, v{vt}, v{vt2}\n v_lshlrev_b32 v{dst}, 7, v{vt}')
    E(f'v_bfe_u32 v{vt}, v0, 4, 1\n v_lshlrev_b32 v{vt}, 1, v{vt}\n v_bfe_u32 v{vt2}, v0, 1, 1\n v_add3_u32 v{vt}, v{vt}, v{vt2}, {colbase}')
    E(f'v_bfe_u32 v{vt2}, v0, 3, 1\n v_lshlrev_b32 v{vt2}, 2, v{vt2}\n v_xor_b32 v{vt}, v{vt}, v{vt2}\n v_lshl_add_u32 v{dst}, v{vt}, 4, v{dst}')
    E(f'v_and_b32 v{vt}, 1, v0\n v_lshl_add_u32 v{dst}, v{vt}, 3, v{dst}')
def dma128_voff(dst,vt,vt2,rowstride_sreg_or_shift,colbytes):
    E(f'v_lshrrev_b32 v{vt}, 3, v0')
    if isinstance(rowstride_sreg_or_shift,int): E(f'v_lshlrev_b32 v{dst}, {rowstride_sreg_or_shift}, v{vt}')
    else: E(f'v_mul_u32_u24 v{dst}, {rowstride_sreg_or_shift}, v{vt}')
    E(f'v_bfe_u32 v{vt}, v0, 4, 1\n v_lshlrev_b32 v{vt}, 2, v{vt}\n v_and_b32 v{vt2}, 7, v0\n v_xor_b32 v{vt}, v{vt}, v{vt2}\n v_lshl_add_u32 v{dst}, v{vt}, 4, v{dst}\n v_add_u32 v{dst}, {colbytes}, v{dst}')
def finalize(O,dst,vt,lbl_fb,lbl_back):
    E(f'v_add_f32 v{vt}, |v{O}|, |v{O+1}|')
    for r in range(2,8): E(f'v_add_f32 v{vt}, v{vt}, |v{O+r}|')
    E(f'v_mov_b32 v{vt+1}, 0x7f800000\n v_cmp_nlt_f32 {sr(sT,2)}, v{vt}, v{vt+1}')
    E(f'v_cmp_nle_f32 vcc, {hex(L_LO)}, v{O+8}\n s_or_b64 {sr(sT,2)}, {sr(sT,2)}, vcc')
    E(f'v_cmp_nge_f32 vcc, {hex(L_HI)}, v{O+8}\n s_or_b64 {sr(sT,2)}, {sr(sT,2)}, vcc\n s_cbranch_scc1 {lbl_fb}')
    LBL(lbl_back)
    E(f'v_rcp_f32 v{vt}, v{O+8}\n s_nop 0')
    for r in range(8): E(f'v_mul_f32 v{O+r}, v{O+r}, v{vt}')
    for r in range(4): cvt(dst+r,O+2*r,O+2*r+1)

TAIL=[]
def fallback(lbl,back,Q,O,S,K,V,IDX,vM,vK,vV,ntile,soff_setup,first_mask=None,last_mask=None,first_cond=None):
    global L
    save=L; L=[]
    LBL(lbl)
    soff_setup()
    E(f'v_mov_b32 v{vM}, 0xff800000')
    for p in (0,1):
        lp=uid('fbl')
        if p==1:
            E(f'v_mov_b32 v{S}, v{vM}\n s_nop 1\n v_permlane32_swap_b32 v{S}, v{vM}\n s_nop 1\n v_max_f32 v{vM}, v{vM}, v{S}')
            for r in range(16): E(f'v_mov_b32 v{O+r}, 0')
        E(f's_mov_b32 s{sT+5}, s{sT+2}\n s_mov_b32 s{sT+6}, 0')
        LBL(lp)
        E(f'buffer_load_dwordx4 {vr(K,4)}, v{vK}, {sr(sWS)}, s{sT+5} offen sc1')
        if p==1:
            E(f's_mov_b64 exec, {sr(sVM,2)}\n buffer_load_dwordx4 {vr(V,4)}, v{vV}, {sr(sWS)}, s{sT+5} offen offset:1024 sc1\n buffer_load_dwordx4 {vr(V+4,4)}, v{vV}, {sr(sWS)}, s{sT+5} offen offset:1536 sc1\n s_mov_b64 exec, -1')
        E('s_waitcnt vmcnt(0)')
        if first_mask is None:
            mfma(S,K,Q,'0')
        else:
            a=uid('fbm'); b=uid('fbm'); j=uid('fbm')
            E(f's_add_u32 s{sT+7}, s{sT+6}, 1\n s_cmp_eq_u32 s{sT+7}, s{sT+3}\n s_cbranch_scc1 {a}')
            E(f's_cmp_lt_u32 s{sT+6}, s{sT+4}\n s_cbranch_scc1 {b}')
            mfma(S,K,Q,'0'); E(f's_branch {j}')
            LBL(a); mfma(S,K,Q,last_mask); E(f's_branch {j}')
            LBL(b); mfma(S,K,Q,first_mask)
            LBL(j)
        E('s_nop 15')
        if p==0:
            for r in range(0,16,2): E(f'v_max3_f32 v{vM}, v{S+r}, v{S+r+1}, v{vM}')
        else:
            for r in range(16): E(f'v_sub_f32 v{S+r}, v{S+r}, v{vM}')
            for r in range(16): vexp(S+r)
            E('s_nop 1'); smf(O,V,S,IDX); smf(O,V+4,S+8,IDX)
        E(f's_add_u32 s{sT+5}, s{sT+5}, 2048\n s_add_u32 s{sT+6}, s{sT+6}, 1\n s_cmp_lt_u32 s{sT+6}, s{sT+3}\n s_cbranch_scc1 {lp}')
    E(f's_nop 15\n s_branch {back}')
    TAIL.extend(L); L=save

E('s_cmp_ge_u32 s2, 256\n s_cbranch_scc1 L_END')
E('s_load_dwordx16 s[4:19], s[0:1], 0\n s_load_dwordx8 s[20:27], s[0:1], 64')
E(f'v_lshrrev_b32 v1, 6, v0\n v_and_b32 v0, 63, v0\n v_readfirstlane_b32 s{sWave}, v1')
E(f's_and_b32 s{sT}, s2, 7\n s_lshr_b32 s{sT+1}, s2, 3\n s_and_b32 s{sT+2}, s{sT+1}, 3\n s_lshl_b32 s{sPb}, s{sT}, 2\n s_or_b32 s{sPb}, s{sPb}, s{sT+2}\n s_lshr_b32 s{sHg}, s{sT+1}, 2')
E(f's_mov_b32 s{sVM}, 0xffff\n s_mov_b32 s{sVM+1}, 0xffff')
if DIAG:
    for i in range(12): E(f's_mov_b32 s{sST+i}, 0')
E('s_waitcnt lgkmcnt(0)')
stamp('A',0,'start'); stamp('B',0,'start')
E(f's_load_dword s{sTag}, s[26:27], {WS_EPOCH}')
srd(sX,4,2048*1024); srd(sWS,26,0x10000000)
E(f's_cmp_lt_u32 s{sWave}, 8\n s_cbranch_scc1 L_A')

vZ=1
E(f's_setprio 3\n s_sub_u32 s{sB}, s{sWave}, 8\n v_mov_b32 v{vZ}, {L_ST}')
E(f's_cmp_ge_u32 s{sHg}, 2\n s_cbranch_scc1 L_B_NOPROD')
C('---- kvA producer: 16 positions x 16 dims (hg 0: K, hg 1: V)')
E(f's_cmp_eq_u32 s{sHg}, 0\n s_cselect_b32 s{sWKV}, s8, s10\n s_cselect_b32 s{sWKV+1}, s9, s11\n s_mov_b32 s{sWKV+2}, 16384\n s_mov_b32 s{sWKV+3}, 0x20000')
E(f's_lshl_b32 s{sT}, s{sB}, 12\n s_add_u32 m0, s{sT}, {L_ST}\n v_lshlrev_b32 v2, 4, v0')
for i in range(4): E(f'buffer_load_dwordx4 v2, {sr(sWKV)}, s{sT} offen offset:{1024*i} lds')
E(f's_lshl_b32 s{sT+1}, s{sPb}, 16\n s_lshl_b32 s{sT+2}, s{sB}, 14\n s_add_u32 s{sT+1}, s{sT+1}, s{sT+2}')
E('v_and_b32 v3, 15, v0\n v_lshlrev_b32 v3, 10, v3\n v_and_b32 v4, 48, v0\n v_add_u32 v3, v3, v4')
for s in range(16): E(f'buffer_load_dwordx4 {vr(32+4*s,4)}, v3, {sr(sX)}, s{sT+1} offen offset:{64*s}')
E(f'v_lshrrev_b32 v4, 4, v0\n v_lshlrev_b32 v4, 8, v4\n v_and_b32 v5, 15, v0\n v_lshl_add_u32 v4, v5, 3, v4\n v_add_u32 v4, {L_ST}, v4')
E(f's_lshl_b32 s{sT+2}, s{sPb}, 1\n s_lshr_b32 s{sT+3}, s{sB}, 1\n s_add_u32 s{sT+2}, s{sT+2}, s{sT+3}\n s_lshl_b32 s{sT+2}, s{sT+2}, 11\n s_add_u32 s{sT+2}, s{sT+2}, {hex(WS_KVA)}\n s_and_b32 s{sT+3}, s{sB}, 1')
E('v_bfe_u32 v6, v0, 4, 1\n v_lshrrev_b32 v7, 5, v0\n v_lshlrev_b32 v5, 4, v5')
E('s_waitcnt vmcnt(16) lgkmcnt(0)\n s_barrier')
for s in range(16):
    E(f'ds_read_b64_tr_b16 {vr(96+4*(s%8),2)}, v4 offset:{1024*s}\n ds_read_b64_tr_b16 {vr(98+4*(s%8),2)}, v4 offset:{1024*s+128}')
    if s==5: break
kvj=uid('kvj')
E(f's_cmp_eq_u32 s{sHg}, 0\n s_cbranch_scc0 L_B_VJOB')
for job in (0,1):
    if job==1: LBL('L_B_VJOB')
    for s in range(16):
        if s+6<16: E(f'ds_read_b64_tr_b16 {vr(96+4*((s+6)%8),2)}, v4 offset:{1024*(s+6)}\n ds_read_b64_tr_b16 {vr(98+4*((s+6)%8),2)}, v4 offset:{1024*(s+6)+128}')
        out_l=min(12,2*(15-s))
        E(f's_waitcnt vmcnt({15-s}) lgkmcnt({out_l})')
        w=vr(96+4*(s%8),4); xx=vr(32+4*s,4)
        a,b=(w,xx) if job==0 else (xx,w)
        E(f'v_mfma_f32_16x16x32_bf16 v[8:11], {a}, {b}, {"0" if s==0 else "v[8:11]"}')
    if job==0:
        E(f'v_lshl_add_u32 v5, v6, 9, v5\n v_lshl_add_u32 v5, v7, 3, v5\n s_lshl_b32 s{sT+3}, s{sT+3}, 8\n s_add_u32 s{sT+2}, s{sT+2}, s{sT+3}\n s_branch {kvj}')
    else:
        E(f'v_lshl_add_u32 v5, v7, 8, v5\n v_lshl_add_u32 v5, v6, 3, v5\n s_lshl_b32 s{sT+3}, s{sT+3}, 9\n s_add_u32 s{sT+2}, s{sT+2}, s{sT+3}\n s_add_u32 s{sT+2}, s{sT+2}, 1024')
LBL(kvj)
E('s_nop 4'); cvt(8,8,9); cvt(9,10,11)
E(f'buffer_store_dwordx2 v[8:9], v5, {sr(sWS)}, s{sT+2} offen sc1')
E(f's_mul_i32 s{sTag}, s{sTag}, 0x9E3779B1\n s_add_u32 s{sTag}, s{sTag}, 0x7F4A7C15')
E(f's_lshl_b32 s{sT}, s{sPb}, 1\n s_add_u32 s{sT}, s{sT}, s{sHg}\n s_lshl_b32 s{sT}, s{sT}, 7\n s_lshl_b32 s{sT+1}, s{sB}, 2\n s_add_u32 s{sT}, s{sT}, s{sT+1}\n s_add_u32 s{sT}, s{sT}, {hex(WS_FKVA)}')
stamp('B',1,'kvA stored')
E('s_waitcnt vmcnt(0)')
flag_store(sT,2)
stamp('B',2,'kvA flag sent')
E('s_branch L_B_PROJ')
LBL('L_B_NOPROD')
E('s_waitcnt lgkmcnt(0)\n s_barrier')
E(f's_mul_i32 s{sTag}, s{sTag}, 0x9E3779B1\n s_add_u32 s{sTag}, s{sTag}, 0x7F4A7C15')
LBL('L_B_PROJ')
lds_add(C_X,0x100,vZ,2)
xaddr(8,L_X,2)
E(f's_cmp_eq_u32 s{sB}, 3\n s_cbranch_scc1 L_B_GATE')
C('---- B projection: wave 0 Q, wave 1 K, wave 2 V  (64 positions x 64 columns each)')
srd(sWB,16,512*3072)
E(f's_lshl_b32 s{sT+1}, s{sB}, 10\n s_lshl_b32 s{sT+2}, s{sHg}, 7\n s_add_u32 s{sT+1}, s{sT+1}, s{sT+2}\n s_movk_i32 s{sT+2}, 3072')
dma128_voff(16,2,3,f's{sT+2}',f's{sT+1}')
E(f's_mul_i32 s{sT+8}, s{sB}, 10240\n s_add_u32 s{sT+8}, s{sT+8}, {L_ST}')
traddr128(17,2,3,3,'0'); E(f'v_add_u32 v17, s{sT+8}, v17')
lds_spin(C_X,None,0x408,vZ,2)
stamp('B',3,'x landed')
def bdma(step):
    for i in range(2):
        E(f's_add_u32 m0, s{sT+8}, {(step%5)*2048+i*1024}\n s_mov_b32 s{sT+9}, {(2*step+i)*24576}\n buffer_load_dwordx4 v16, {sr(sWB)}, s{sT+9} offen lds')
ACC=32; FR=96
def breads(step):
    f=FR+16*(step&1); so=(step%5)*2048
    for i in range(2):
        E(f'ds_read_b64_tr_b16 {vr(f+4*i,2)}, v17 offset:{so+64*i}\n ds_read_b64_tr_b16 {vr(f+4*i+2,2)}, v17 offset:{so+64*i+512}') if i==0 else None
    E(f'ds_read_b64_tr_b16 {vr(f+4,2)}, v18 offset:{so}\n ds_read_b64_tr_b16 {vr(f+6,2)}, v18 offset:{so+512}')
    for t in range(2): E(f'ds_read_b128 {vr(f+8+4*t,4)}, v{8+(step&7)} offset:{(step>>3)*256+32768*t}')
E('v_xor_b32 v18, 64, v17')
for s in range(5): bdma(s)
E('s_waitcnt vmcnt(8)'); breads(0)
E(f's_cmp_eq_u32 s{sB}, 2\n s_cbranch_scc1 L_B_PROJV')
for var in (0,1):
    if var==1: LBL('L_B_PROJV')
    for s in range(32):
        if s<31:
            later=min(4+s,31)-(s+1)
            E(f's_waitcnt vmcnt({2*later}) lgkmcnt(0)'); breads(s+1)
        else: E('s_waitcnt lgkmcnt(0)')
        if s+5<32: bdma(s+5)
        f=FR+16*(s&1)
        for i in range(2):
            for t in range(2):
                d=ACC+16*(2*i+t)
                if var==0: mfma(d,f+4*i,f+8+4*t,'0' if s==0 else None)
                else: mfma(d,f+8+4*t,f+4*i,'0' if s==0 else None)
    if var==0:
        E(f's_cmp_eq_u32 s{sB}, 0\n s_cselect_b32 s{sT+1}, {hex(CSCALE)}, 1.0\n s_cselect_b32 s{sT+2}, 10, 11\n s_mov_b32 s{sT+3}, {hex(WS_KVB)}\n s_cselect_b32 s{sT+3}, {hex(WS_QB)}, s{sT+3}')
        E(f's_lshl_b32 s{sT+4}, s{sHg}, 8\n s_lshl_b32 s{sT+5}, s{sPb}, 1\n s_add_u32 s{sT+4}, s{sT+4}, s{sT+5}\n s_lshl_b32 s{sT+4}, s{sT+4}, s{sT+2}\n s_add_u32 s{sT+4}, s{sT+4}, s{sT+3}')
        E(f's_lshl_b32 s{sT+5}, 1, s{sT+2}\n s_lshl_b32 s{sT+6}, 64, s{sT+2}\n v_lshlrev_b32 v2, 4, v0\n s_nop 7')
        for i in range(2):
            for t in range(2):
                d=ACC+16*(2*i+t)
                for r in range(16): E(f'v_mul_f32 v{d+r}, s{sT+1}, v{d+r}')
                for r in range(8): cvt(d+r,d+2*r,d+2*r+1)
                for hh in range(2):
                    E(f's_mul_i32 s{sT+7}, s{sT+6}, {2*i+hh}\n s_add_u32 s{sT+7}, s{sT+7}, s{sT+4}')
                    if t: E(f's_add_u32 s{sT+7}, s{sT+7}, s{sT+5}')
                    E(f'buffer_store_dwordx4 {vr(d+4*hh,4)}, v2, {sr(sWS)}, s{sT+7} offen sc1')
        E('s_branch L_B_PUB')
    else:
        E(f's_lshl_b32 s{sT+4}, s{sHg}, 8\n s_lshl_b32 s{sT+5}, s{sPb}, 1\n s_add_u32 s{sT+4}, s{sT+4}, s{sT+5}\n s_lshl_b32 s{sT+4}, s{sT+4}, 11\n s_add_u32 s{sT+4}, s{sT+4}, {hex(WS_KVB+1024)}')
        E('v_bfe_u32 v2, v0, 4, 1\n v_lshlrev_b32 v2, 17, v2\n v_lshrrev_b32 v3, 5, v0\n v_lshl_add_u32 v2, v3, 8, v2\n v_and_b32 v3, 15, v0\n v_lshl_add_u32 v2, v3, 4, v2\n s_nop 7')
        for i in range(2):
            for t in range(2):
                d=ACC+16*(2*i+t)
                for r in range(8): cvt(d+r,d+2*r,d+2*r+1)
                E('s_nop 1')
                for gq in range(2):
                    E(f'v_permlane32_swap_b32 v{d+4*gq}, v{d+4*gq+2}\n v_permlane32_swap_b32 v{d+4*gq+1}, v{d+4*gq+3}')
                E(f's_add_u32 s{sT+7}, s{sT+4}, {i*2*64*2048+t*2048}')
                for gq in range(2): E(f'buffer_store_dwordx4 {vr(d+4*gq,4)}, v2, {sr(sWS)}, s{sT+7} offen offset:{512*gq} sc1')
LBL('L_B_PUB')
lds_add(C_BP,1,vZ,2)
E(f's_lshl_b32 s{sT}, s{sHg}, 5\n s_add_u32 s{sT}, s{sT}, s{sPb}\n s_lshl_b32 s{sT}, s{sT}, 7\n s_lshl_b32 s{sT+1}, s{sB}, 2\n s_add_u32 s{sT}, s{sT}, s{sT+1}\n s_add_u32 s{sT}, s{sT}, {hex(WS_FKVB)}')
E('s_waitcnt vmcnt(0)')
flag_store(sT,2)
E('s_branch L_B_P3')
C('---- wave 3: kvA flag poll, epoch bookkeeping, gate')
LBL('L_B_GATE')
srd(sG,20,1024); srd(sDBG,24,256)
E(f's_mov_b32 m0, {L_GW}\n v_lshlrev_b32 v2, 4, v0\n buffer_load_dwordx4 v2, {sr(sG)}, 0 offen lds')
E(f'v_lshlrev_b32 v16, 7, v0\n v_add_u32 v16, {hex(WS_FKVA)}, v16')
poll(16,4,4,sleep=1)
lds_add(C_Q,0x100,vZ,2)
stamp('B',4,'kvA flags seen')
E(f'v_mov_b32 v20, 1\n s_mov_b64 exec, 1\n buffer_atomic_add v20, off, {sr(sDBG)}, 0 sc0 sc1\n s_mov_b64 exec, -1')
lds_spin(C_X,0xff,8,vZ,2)
E(f'v_lshrrev_b32 v17, 5, v0\n v_lshlrev_b32 v17, 4, v17\n v_add_u32 v17, {L_GW}, v17')
def greads(s):
    f=FR+16*(s&1)
    E(f'ds_read_b128 {vr(f,4)}, v17 offset:{32*s}')
    for t in range(2): E(f'ds_read_b128 {vr(f+8+4*t,4)}, v{8+(s&7)} offset:{(s>>3)*256+32768*t}')
greads(0)
for s in range(32):
    E('s_waitcnt lgkmcnt(0)')
    if s<31: greads(s+1)
    f=FR+16*(s&1)
    for t in range(2): mfma(ACC+16*t,f,f+8+4*t,'0' if s==0 else None)
E(f's_waitcnt vmcnt(0)\n v_readfirstlane_b32 s{sT}, v20\n s_cmp_eq_u32 s{sT}, 255\n s_cbranch_scc0 L_B_NOBUMP')
E(f's_mov_b32 s{sT}, {WS_EPOCH}'); flag_store(sT,2)
LBL('L_B_NOBUMP')
E(f'v_and_b32 v2, 31, v0\n v_lshlrev_b32 v2, 2, v2\n v_add_u32 v2, {L_G}, v2\n s_mov_b32 s{sT}, {hex(f2u(-math.log2(math.e)))}\n s_nop 7')
for t in range(2):
    a=ACC+16*t
    E(f'v_mul_f32 v{a}, s{sT}, v{a}\n v_exp_f32 v{a}, v{a}\n s_nop 0\n v_add_f32 v{a}, 1.0, v{a}\n v_rcp_f32 v{a}, v{a}\n s_nop 0\n ds_write_b32 v2, v{a} offset:{128*t}')
E('s_waitcnt lgkmcnt(0)')
lds_add(C_BP,1,vZ,2)
LBL('L_B_P3')
stamp('B',5,'B proj published')
C('---- masks + addresses for the window attention')
MU=128; MD=144; BQ=16; BK=24; BV=36; BS=64; BO=96; BIDX=60
E(f'v_and_b32 v2, 31, v0\n v_lshrrev_b32 v3, 5, v0\n v_lshlrev_b32 v3, 2, v3\n v_sub_u32 v2, v2, v3\n v_mov_b32 v3, {hex(NEGBIG)}')
for r in range(16):
    E(f'v_cmp_le_i32 vcc, {8*(r//4)+r%4}, v2\n s_nop 1\n v_cndmask_b32 v{MD+r}, v3, 0, vcc\n v_cndmask_b32 v{MU+r}, 0, v3, vcc')
set_vpad(list(range(BV,BV+24)),2)
E(f'v_mov_b32 v{BIDX}, 0xdddddddd')
for r in range(32): E(f'v_mov_b32 v{BO+r}, 0')
E('v_lshlrev_b32 v160, 4, v0\n v_lshrrev_b32 v161, 5, v0\n v_lshlrev_b32 v161, 8, v161\n v_and_b32 v2, 15, v0\n v_lshl_add_u32 v161, v2, 4, v161')
lds_spin(C_BP,None,4,vZ,2,sleep=2)
lds_spin(C_Q,None,0x108,vZ,2,sleep=2)
C('---- keys 1024..2047 of the shared K/V into the x region')
E(f's_lshl_b32 s{sT}, s{sB}, 14\n s_add_u32 s{sT+1}, s{sT}, {hex(WS_KVA+65536)}\n s_add_u32 s{sT}, s{sT}, {L_X}')
for q in range(4):
    E(f's_add_u32 m0, s{sT}, {4096*q}\n s_add_u32 s{sT+2}, s{sT+1}, {4096*q}')
    for i in range(4): E(f'buffer_load_dwordx4 v160, {sr(sWS)}, s{sT+2} offen offset:{1024*i} sc1 lds')
E(f'v_min_u32 v2, 4, v0\n s_sub_i32 s{sT}, s{sPb}, 4\n v_add_u32 v2, s{sT}, v2\n v_max_i32 v2, 0, v2\n s_lshl_b32 s{sT}, s{sHg}, 5\n v_add_u32 v2, s{sT}, v2\n v_lshlrev_b32 v2, 7, v2\n v_add_u32 v162, {hex(WS_FKVB)}, v2')
poll(162,3,4,sleep=2)
lds_add(C_K2,1,vZ,2)
stamp('B',6,'kvB flags seen')
C('---- window attention, head 4hg+b, two query tiles')
E(f's_lshl_b32 s{sT+8}, s{sHg}, 2\n s_add_u32 s{sT+8}, s{sT+8}, s{sB}\n s_lshl_b32 s{sT+8}, s{sT+8}, 6\n s_lshl_b32 s{sT+9}, s{sPb}, 1')
E(f's_add_u32 s{sT}, s{sT+8}, s{sT+9}\n s_lshl_b32 s{sT}, s{sT}, 10\n s_add_u32 s{sT}, s{sT}, {hex(WS_QB)}\n s_sub_i32 s{sT+9}, s{sT+9}, 8')
for t in range(2): E(f'buffer_load_dwordx4 {vr(BQ+4*t,4)}, v160, {sr(sWS)}, s{sT} offen offset:{1024*t} sc1')
def bload(j):
    k=BK+4*(j%3); v=BV+8*(j%3)
    E(f's_add_i32 s{sT}, s{sT+9}, {j}\n s_max_i32 s{sT}, s{sT}, 0\n s_add_u32 s{sT}, s{sT}, s{sT+8}\n s_lshl_b32 s{sT}, s{sT}, 11\n s_add_u32 s{sT}, s{sT}, {hex(WS_KVB)}')
    E(f'buffer_load_dwordx4 {vr(k,4)}, v160, {sr(sWS)}, s{sT} offen sc1\n s_mov_b64 exec, {sr(sVM,2)}')
    E(f'buffer_load_dwordx4 {vr(v,4)}, v161, {sr(sWS)}, s{sT} offen offset:1024 sc1\n buffer_load_dwordx4 {vr(v+4,4)}, v161, {sr(sWS)}, s{sT} offen offset:1536 sc1\n s_mov_b64 exec, -1')
bload(0); bload(1)
for j in range(10):
    k=BK+4*(j%3); v=BV+8*(j%3)
    if j+2<10: bload(j+2)
    E(f's_waitcnt vmcnt({3*min(2,9-j)})')
    sk=uid('bskip')
    if j<8: E(f's_cmp_lt_i32 s{sT+9}, {-j}\n s_cbranch_scc1 {sk}')
    qs=[q for q in (0,1) if 0<=j-q<=8]
    for q in qs: mfma(BS+16*q,k,BQ+4*q,{0:MU,8:MD}.get(j-q,'0'))
    E('s_nop 10' if len(qs)==2 else 's_nop 11')
    for q in qs:
        S=BS+16*q; O=BO+16*q
        for r in range(10): vexp(S+r)
        smf(O,v,S,BIDX)
        for r in range(10,16): vexp(S+r)
        E('s_nop 1'); smf(O,v+4,S+8,BIDX)
    if j<8: LBL(sk)
E(f's_lshl_b32 s{sT+10}, s{sPb}, 6\n s_lshl_b32 s{sT+11}, s{sHg}, 2\n s_add_u32 s{sT+10}, s{sT+10}, s{sT+11}\n s_add_u32 s{sT+10}, s{sT+10}, s{sB}\n s_lshl_b32 s{sT+10}, s{sT+10}, 10\n s_add_u32 s{sT+10}, s{sT+10}, {hex(WS_OB)}\n s_nop 10')
for q in range(2):
    fb=f'L_FB_B{q}'; bk=f'L_FB_B{q}_BACK'
    finalize(BO+16*q,4,2,fb,bk)
    E(f'buffer_store_dwordx4 v[4:7], v160, {sr(sWS)}, s{sT+10} offen sc1')
    if q==0: E(f's_add_u32 s{sT+10}, s{sT+10}, 32768\n s_nop 0')
    def setup(q=q):
        E(f's_add_i32 s{sT+2}, s{sT+9}, {q}\n s_cmp_ge_i32 s{sT+2}, 0\n s_cselect_b32 s{sT+4}, 1, 0\n s_max_i32 s{sT+2}, s{sT+2}, 0')
        E(f's_add_i32 s{sT+3}, s{sT+9}, {q+9}\n s_sub_u32 s{sT+3}, s{sT+3}, s{sT+2}\n s_add_u32 s{sT+2}, s{sT+2}, s{sT+8}\n s_lshl_b32 s{sT+2}, s{sT+2}, 11\n s_add_u32 s{sT+2}, s{sT+2}, {hex(WS_KVB)}')
    fallback(fb,bk,BQ+4*q,BO+16*q,BS,BK,BV,BIDX,3,160,161,None,setup,MU,MD)
E(f's_lshl_b32 s{sT}, s{sPb}, 3\n s_add_u32 s{sT}, s{sT}, s{sHg}\n s_lshl_b32 s{sT}, s{sT}, 7\n s_lshl_b32 s{sT+1}, s{sB}, 2\n s_add_u32 s{sT}, s{sT}, s{sT+1}\n s_add_u32 s{sT}, s{sT}, {hex(WS_FOB)}')
E('s_waitcnt vmcnt(0)')
flag_store(sT,2)
stamp('B',7,'oB published')
C('---- output projection: wave (t=b&1, u=b>>1) -> out^T tile [32 cols][32 pos]')
srd(sWOA,12,512*1024); srd(sWOB,18,512*1024)
PB_=16; PA_=32; PW=48; PO=64
E(f's_lshr_b32 s{sT+9}, s{sB}, 1\n s_and_b32 s{sT+10}, s{sB}, 1\n s_mul_i32 s{sT+8}, s{sB}, 7680\n s_add_u32 s{sT+8}, s{sT+8}, {L_ST}')
E(f's_lshl_b32 s{sT}, s{sHg}, 7\n s_lshl_b32 s{sT+1}, s{sT+9}, 6\n s_add_u32 s{sT+1}, s{sT+1}, s{sT}')
E(f'v_lshrrev_b32 v8, 2, v0\n v_lshlrev_b32 v8, 10, v8\n v_and_b32 v2, 3, v0\n v_lshl_add_u32 v8, v2, 4, v8\n v_add_u32 v8, s{sT+1}, v8')
E(f'v_lshrrev_b32 v9, 5, v0\n v_lshlrev_b32 v9, 2, v9\n v_bfe_u32 v3, v0, 2, 2\n v_add_u32 v9, v9, v3\n v_lshlrev_b32 v9, 6, v9\n v_bfe_u32 v3, v0, 4, 1\n v_lshl_add_u32 v9, v3, 5, v9\n v_lshl_add_u32 v9, v2, 3, v9\n v_add_u32 v9, s{sT+8}, v9')
def odma(s): E(f's_add_u32 m0, s{sT+8}, {(s%7)*1024}\n s_mov_b32 s{sT+2}, {s*16384}\n buffer_load_dwordx4 v8, {sr(sWOB)}, s{sT+2} offen lds')
for s in range(6): odma(s)
dma128_voff(10,2,3,10,f's{sT}')
E(f's_lshl_b32 s{sT+1}, s{sT+9}, 2'); traddr128(11,2,3,2,f's{sT+1}')
lds_spin(C_MID,None,8,vZ,2,sleep=4)
E(f's_lshl_b32 s{sT}, s{sB}, 14\n s_lshl_b32 s{sT+1}, s{sB}, 17')
for n in range(16): E(f's_add_u32 m0, s{sT}, {1024*n}\n s_add_u32 s{sT+2}, s{sT+1}, {8192*n}\n buffer_load_dwordx4 v10, {sr(sWOA)}, s{sT+2} offen lds')
E(f'v_bfe_u32 v12, v0, 2, 3\n s_lshl_b32 s{sT}, s{sPb}, 3\n v_add_u32 v12, s{sT}, v12\n v_lshlrev_b32 v12, 7, v12\n v_and_b32 v2, 3, v0\n v_lshl_add_u32 v13, v2, 2, v12\n v_add_u32 v13, {hex(WS_FOB)}, v13')
E(f'v_and_b32 v3, 1, v0\n v_and_b32 v2, 2, v0\n v_lshl_add_u32 v3, v2, 1, v3\n s_lshl_b32 s{sT}, s{sT+10}, 1\n v_add_u32 v3, s{sT}, v3\n v_lshl_add_u32 v12, v3, 2, v12\n v_add_u32 v12, {hex(WS_FOA)}, v12')
poll(13,1,4,sleep=2)
stamp('B',8,'oB flags seen')
E(f's_lshl_b32 s{sT+11}, s{sPb}, 1\n s_add_u32 s{sT+11}, s{sT+11}, s{sT+10}\n s_lshl_b32 s{sT+11}, s{sT+11}, 15')
E(f's_add_u32 s{sT+3}, s{sT+11}, {hex(WS_OB)}')
def oload(s,ring,base):
    if s%4==0 and s>0: E(f's_add_u32 s{base}, s{base}, 4096')
    E(f'buffer_load_dwordx4 {vr(PO+4*(s%ring),4)}, v160, {sr(sWS)}, s{base} offen offset:{1024*(s%4)} sc1')
def wreadB(s): E(f'ds_read_b64_tr_b16 {vr(PW+4*(s&1),2)}, v9 offset:{(s%7)*1024}\n ds_read_b64_tr_b16 {vr(PW+4*(s&1)+2,2)}, v9 offset:{(s%7)*1024+512}')
for s in range(8): oload(s,8,sT+3)
wreadB(0)
q=[('o',s) for s in range(8)]
for s in range(32):
    need=[i for i,x in enumerate(q) if x==('o',s) or x==('d',s+1)]
    if need: q=q[max(need)+1:]
    n=len(q)
    E(f's_waitcnt vmcnt({n}) lgkmcnt(0)')
    if s<31: wreadB(s+1)
    mfma(PB_,PW+4*(s&1),PO+4*(s%8),'0' if s==0 else None)
    if s+6<32: odma(s+6); q.append(('d',s+6))
    if s+8<32: oload(s+8,8,sT+3); q.append(('o',s+8))
E(f'v_and_b32 v2, 31, v0\n v_lshlrev_b32 v2, 2, v2\n s_lshl_b32 s{sT}, s{sT+10}, 7\n s_add_u32 s{sT}, s{sT}, {L_G}\n v_add_u32 v2, s{sT}, v2\n ds_read_b32 v14, v2')
srd(sOUT,22,2048*1024)
E(f's_lshl_b32 s{sT+4}, s{sHg}, 7\n s_lshl_b32 s{sT+5}, s{sT+9}, 6\n s_add_u32 s{sT+4}, s{sT+4}, s{sT+5}\n s_add_u32 s{sT+4}, s{sT+4}, s{sT+11}')
E('v_and_b32 v2, 31, v0\n v_lshlrev_b32 v15, 10, v2\n v_lshrrev_b32 v2, 5, v0\n v_lshl_add_u32 v15, v2, 4, v15')
E(f's_add_u32 s{sT+3}, s{sT+11}, {hex(WS_OA)}\n s_waitcnt vmcnt(0) lgkmcnt(0)\n v_sub_f32 v3, 1.0, v14\n s_nop 7')
for r in range(16): E(f'v_mul_f32 v{PB_+r}, v{PB_+r}, v3')
stamp('B',9,'out-proj B done')
E('s_barrier')
def wreadA(s): E(f'ds_read_b64_tr_b16 {vr(PW+4*(s%4),2)}, v11 offset:{s*2048}\n ds_read_b64_tr_b16 {vr(PW+4*(s%4)+2,2)}, v11 offset:{s*2048+1024}')
for s in range(3): wreadA(s)
poll(12,1,4,sleep=0)
stamp('B',10,'oA flags seen')
for s in range(24): oload(s,24,sT+3)
for s in range(32):
    if s+3<32: wreadA(s+3)
    issued=min(32,24+s)
    E(f's_waitcnt vmcnt({issued-1-s}) lgkmcnt({2*min(3,31-s)})')
    mfma(PA_,PW+4*(s%4),PO+4*(s%24),'0' if s==0 else None)
    if s+24<32: oload(s+24,24,sT+3)
E('s_nop 11')
for r in range(16): E(f'v_fma_f32 v{PA_+r}, v{PA_+r}, v14, v{PB_+r}')
for r in range(8): cvt(PA_+r,PA_+2*r,PA_+2*r+1)
E('s_nop 1')
for gq in range(2): E(f'v_permlane32_swap_b32 v{PA_+4*gq}, v{PA_+4*gq+2}\n v_permlane32_swap_b32 v{PA_+4*gq+1}, v{PA_+4*gq+3}')
for gq in range(2): E(f'buffer_store_dwordx4 {vr(PA_+4*gq,4)}, v15, {sr(sOUT)}, s{sT+4} offen offset:{32*gq}')
if DIAG: E('s_waitcnt vmcnt(0)')
stamp('B',11,'out stored')
stamp_flush(12)
E('s_endpgm')

LBL('L_A')
srd(sWQ,6,512*1024)
AIDX=8; AKA=9; AVA=10; AQ0=12; AQ1=16; AK=20; AV=28; SA=44; SB=60; OA=76; OB=92; XA=108; WA=116; AF=120
C('---- x rows 8w..8w+7 -> LDS (16B chunks xor row&15)')
E(f's_and_b32 s{sT}, s{sWave}, 1\n s_lshl_b32 s{sT}, s{sT}, 3\n v_xor_b32 v2, s{sT}, v0\n v_lshlrev_b32 v2, 4, v2')
E(f's_lshl_b32 s{sT+1}, s{sWave}, 13\n s_lshl_b32 s{sT+2}, s{sPb}, 16\n s_add_u32 s{sT+2}, s{sT+2}, s{sT+1}\n s_add_u32 m0, s{sT+1}, {L_X}')
for i in range(8):
    if i==4: E(f's_add_u32 s{sT+2}, s{sT+2}, 4096\n s_add_u32 m0, s{sT+1}, {L_X+4096}')
    if i: E(f'v_xor_b32 v{3+(i&1)}, {i<<4}, v2')
    E(f'buffer_load_dwordx4 v{2 if i==0 else 3+(i&1)}, {sr(sX)}, s{sT+2} offen offset:{1024*(i&3)} lds')
E(f's_lshl_b32 s{sT}, s{sHg}, 7'); dma128_voff(5,3,4,10,f's{sT}')
E(f's_lshl_b32 s{sT+2}, s{sWave}, 16')
for n in range(8): E(f's_add_u32 m0, s{sT+1}, {L_WQ+1024*n}\n s_add_u32 s{sT+3}, s{sT+2}, {8192*n}\n buffer_load_dwordx4 v5, {sr(sWQ)}, s{sT+3} offen lds')
E(f'v_mov_b32 v{vZ}, {L_ST}\n v_mov_b32 v2, 0\n v_lshlrev_b32 v3, 2, v0\n v_add_u32 v3, {L_C}, v3')
E(f's_cmp_eq_u32 s{sWave}, 0\n s_cbranch_scc0 L_A_NOZ\n ds_write_b32 v3, v2')
LBL('L_A_NOZ')
E('s_waitcnt lgkmcnt(0)\n s_barrier')
E(f's_mul_i32 s{sTag}, s{sTag}, 0x9E3779B1\n s_add_u32 s{sTag}, s{sTag}, 0x7F4A7C15')
E(f's_bfe_u32 s{sT+1}, s{sWave}, 0x10001\n s_lshl_b32 s{sT+1}, s{sT+1}, 15\n s_add_u32 s{sT+1}, s{sT+1}, {L_X}')
xaddr(XA,f's{sT+1}',2)
E(f's_and_b32 s{sT+1}, s{sWave}, 4'); traddr128(WA,2,3,3,f's{sT+1}')
set_vpad(list(range(AV,AV+16)),2)
E(f'v_mov_b32 v{AIDX}, 0xdddddddd')
for r in range(32): E(f'v_mov_b32 v{OA+r}, 0')
E(f's_and_b32 s{sT+1}, s{sWave}, 1\n s_lshl_b32 s{sT+1}, s{sT+1}, 11\n v_lshlrev_b32 v6, 4, v0\n v_add_u32 v{AKA}, s{sT+1}, v6')
E(f'v_lshrrev_b32 v7, 5, v0\n v_lshlrev_b32 v7, 8, v7\n v_and_b32 v2, 15, v0\n v_lshl_add_u32 v7, v2, 4, v7\n v_add_u32 v{AVA}, s{sT+1}, v7')
E('s_waitcnt vmcnt(0)')
lds_add(C_X,1,vZ,2)
lds_spin(C_X,0xff,8,vZ,2,sleep=0)
stamp('A',1,'x,wq landed')
def areads(s):
    f=AF+8*(s%4)
    E(f'ds_read_b64_tr_b16 {vr(f,2)}, v{WA} offset:{s*2048}\n ds_read_b64_tr_b16 {vr(f+2,2)}, v{WA} offset:{s*2048+512}\n ds_read_b128 {vr(f+4,4)}, v{XA+(s&7)} offset:{(s>>3)*256}')
for s in range(3): areads(s)
for s in range(32):
    if s+3<32: areads(s+3)
    E(f's_waitcnt lgkmcnt({3*min(3,31-s)})')
    f=AF+8*(s%4); mfma(SA,f,f+4,'0' if s==0 else None)
lds_add(C_Q,1,vZ,2)
E(f's_mov_b32 s{sT+1}, {hex(CSCALE)}\n s_nop 7')
for r in range(16): E(f'v_mul_f32 v{SA+r}, s{sT+1}, v{SA+r}')
E(f's_bitcmp1_b32 s{sWave}, 0\n s_cbranch_scc1 L_A_SWQ')
for r in range(8): cvt(AQ0+r,SA+2*r,SA+2*r+1)
E('s_branch L_A_SWQD')
LBL('L_A_SWQ')
for r in range(8): cvt(AQ0+(r^4),SA+2*r,SA+2*r+1)
LBL('L_A_SWQD')
stamp('A',2,'q proj done')
lds_spin(C_Q,None,0x108,vZ,2,sleep=0)
stamp('A',3,'kvA go')
C('---- keys 0..1023 of the shared K/V : wave w loads 2KB of each 16KB chunk')
E(f's_lshl_b32 s{sT+1}, s{sWave}, 11\n s_add_u32 s{sT+2}, s{sT+1}, {hex(WS_KVA)}')
for ch in range(4):
    E(f's_add_u32 m0, s{sT+1}, {16384*ch}\n s_add_u32 s{sT+3}, s{sT+2}, {16384*ch}')
    for i in range(2): E(f'buffer_load_dwordx4 v6, {sr(sWS)}, s{sT+3} offen offset:{1024*i} sc1 lds')
E('s_waitcnt vmcnt(6)')
lds_add(C_K0,1,vZ,2)
lds_spin(C_K0,None,8,vZ,2,sleep=0)
stamp('A',4,'chunk0 landed')
def ldk(j): E(f'ds_read_b128 {vr(AK+4*(j&1),4)}, v{AKA} offset:{(j%16)*4096}')
def ldv(j): E(f's_mov_b64 exec, {sr(sVM,2)}\n ds_read_b128 {vr(AV+8*(j&1),4)}, v{AVA} offset:{(j%16)*4096+1024}\n ds_read_b128 {vr(AV+8*(j&1)+4,4)}, v{AVA} offset:{(j%16)*4096+1536}\n s_mov_b64 exec, -1')
ldk(0); ldv(0); ldk(1)
E('s_waitcnt lgkmcnt(3)'); mfma(SA,AK,AQ0,'0'); E('s_nop 11')
for j in range(32):
    kc=AK+4*(j&1); kn=AK+4*((j+1)&1); vc=AV+8*(j&1); vp=AV+8*((j+1)&1)
    if j==1: E('s_waitcnt vmcnt(0)'); lds_add(C_K1,1,vZ,2)
    if j==2: E('s_waitcnt lgkmcnt(0)'); lds_spin(C_K1,None,8,vZ,2,sleep=0)
    if j==14: E('s_waitcnt lgkmcnt(0)'); lds_spin(C_K2,None,4,vZ,2,sleep=1)
    if j==17: lds_add(C_MID,1,vZ,2)
    if j==25: lds_add(C_P4,1,vZ,2)
    if j==30: E('s_waitcnt lgkmcnt(0)'); lds_spin(C_P4,None,8,vZ,2,sleep=1)
    extra = 1 if j in (1,17,25) else 0
    vexp(SA); vexp(SA+1)
    if j>0: smf(OB,vp+4,SB+8,AIDX)
    for r in range(2,5): vexp(SA+r)
    mfma(SB,kc,AQ1,'0')
    for r in range(5,10): vexp(SA+r)
    E(f's_waitcnt lgkmcnt({(1 if j<31 else 0)+extra})')
    vexp(SA+10); smf(OA,vc,SA,AIDX)
    for r in range(11,16): vexp(SA+r)
    vexp(SB); vexp(SB+1); smf(OA,vc+4,SA+8,AIDX)
    if j==15: E(f'v_add_u32 v{AVA}, 0x10000, v{AVA}')
    if j<31: ldv(j+1)
    for r in range(2,5): vexp(SB+r)
    if j<31:
        E('s_waitcnt lgkmcnt(2)'); mfma(SA,kn,AQ0,'0')
    if j==14: E(f'v_add_u32 v{AKA}, 0x10000, v{AKA}')
    if j<30: ldk(j+2)
    for r in range(5,11): vexp(SB+r)
    smf(OB,vc,SB,AIDX)
    for r in range(11,16): vexp(SB+r)
E('s_nop 1'); smf(OB,AV+8+4,SB+8,AIDX)
stamp('A',5,'A loop done')
C('---- pair exchange: send slot B, finish slot A')
E(f's_mul_i32 s{sT+1}, s{sWave}, 2304\n s_add_u32 s{sT+1}, s{sT+1}, {L_EX}\n v_add_u32 v2, s{sT+1}, v6\n v_lshlrev_b32 v3, 2, v0\n v_add_u32 v3, s{sT+1}, v3')
E(f's_xor_b32 s{sT+2}, s{sWave}, 1\n s_mul_i32 s{sT+2}, s{sT+2}, 2304\n s_add_u32 s{sT+2}, s{sT+2}, {L_EX}\n v_add_u32 v4, s{sT+2}, v6\n v_lshlrev_b32 v5, 2, v0\n v_add_u32 v5, s{sT+2}, v5\n s_nop 4')
E(f'ds_write_b128 v2, {vr(OB,4)}\n ds_write_b128 v2, {vr(OB+4,4)} offset:1024\n ds_write_b32 v3, v{OB+8} offset:2048\n s_waitcnt lgkmcnt(0)\n s_barrier')
E(f'ds_read_b128 {vr(SA,4)}, v4\n ds_read_b128 {vr(SA+4,4)}, v4 offset:1024\n ds_read_b32 v{SA+8}, v5 offset:2048')
E(f's_bfe_u32 s{sT+8}, s{sWave}, 0x10001\n s_lshl_b32 s{sT+9}, s{sPb}, 1\n s_add_u32 s{sT+8}, s{sT+8}, s{sT+9}\n s_lshl_b32 s{sT+8}, s{sT+8}, 5')
E(f's_lshl_b32 s{sT+9}, s{sHg}, 2\n s_add_u32 s{sT+8}, s{sT+8}, s{sT+9}\n s_lshr_b32 s{sT+9}, s{sWave}, 2\n s_lshl_b32 s{sT+9}, s{sT+9}, 1\n s_add_u32 s{sT+8}, s{sT+8}, s{sT+9}\n s_and_b32 s{sT+9}, s{sWave}, 1\n s_add_u32 s{sT+8}, s{sT+8}, s{sT+9}\n s_lshl_b32 s{sT+8}, s{sT+8}, 10\n s_add_u32 s{sT+8}, s{sT+8}, {hex(WS_OA)}')
E(f's_lshl_b32 s{sT+9}, s{sPb}, 3\n s_add_u32 s{sT+9}, s{sT+9}, s{sHg}\n s_lshl_b32 s{sT+9}, s{sT+9}, 7\n s_lshl_b32 s{sT+10}, s{sWave}, 2\n s_add_u32 s{sT+9}, s{sT+9}, s{sT+10}\n s_add_u32 s{sT+9}, s{sT+9}, {hex(WS_FOA)}')
E('s_waitcnt lgkmcnt(0)')
for r in range(9): E(f'v_add_f32 v{OA+r}, v{OA+r}, v{SA+r}')
finalize(OA,AK,2,'L_FB_A','L_FB_A_BACK')
E(f'buffer_store_dwordx4 {vr(AK,4)}, v6, {sr(sWS)}, s{sT+8} offen sc1\n s_waitcnt vmcnt(0)')
flag_store(sT+9,2)
def setupA(): E(f's_mov_b32 s{sT+2}, {hex(WS_KVA)}\n s_mov_b32 s{sT+3}, 64')
fallback('L_FB_A','L_FB_A_BACK',AQ0,OA,SA,AK,AV,AIDX,3,6,7,None,setupA)
stamp('A',6,'oA published')
stamp_flush(12)
LBL('L_END')
E('s_endpgm')
L.extend(TAIL)

hdr=open('cdna_kernels/%s.s.ref'%NAME).read().split('; Override launch')[0]
txt=hdr
txt+=f'; @launch grid=(256,1,1) block=(768,1,1) lds={LDS_TOTAL}\n'
for n in ('WS_KVA','WS_QB','WS_KVB','WS_OA','WS_OB','WS_STAMP','NSTAMP'): txt+=f'; CONST {n} = {hex(globals()[n])}\n'
for r,i,n in STN: txt+=f'; STAMPNAME {r} {i} {n}\n'
txt+=f'''.amdgcn_target "amdgcn-amd-amdhsa--gfx950"
.text
.globl {NAME}_kernel
.p2align 8
.type {NAME}_kernel,@function
{NAME}_kernel:
'''+'\n'.join(L)+f'''
.section .rodata,"a"
.p2align 6
.amdhsa_kernel {NAME}_kernel
  .amdhsa_next_free_vgpr 168
  .amdhsa_next_free_sgpr 102
  .amdhsa_accum_offset 168
  .amdhsa_group_segment_fixed_size 0
  .amdhsa_kernarg_size 96
  .amdhsa_user_sgpr_count 2
  .amdhsa_user_sgpr_kernarg_segment_ptr 1
  .amdhsa_system_sgpr_workgroup_id_x 1
.end_amdhsa_kernel
'''
open(OUT,'w').write(txt)
print('wrote',OUT,len(L),'lines')
```

```python
import sys, math, struct
NAME='gated_mix__grouped_kv_mqa__sliding_block__prompt'
DIAG = '--diag' in sys.argv
OUT = [a for a in sys.argv[1:] if not a.startswith('--')]
OUT = OUT[0] if OUT else 'cdna_kernels/%s.s'%NAME
OPT=dict(a.lstrip('-').split('=') for a in sys.argv[1:] if a.startswith('--') and '=' in a)
MAP=OPT.get('map','b'); ROT=OPT.get('rot','full'); PRIO=OPT.get('prio','none')
def f2u(f): return struct.unpack('<I',struct.pack('<f',f))[0]

WS_EPOCH=0x0
WS_FKVA=0x1000
WS_FKVB=0x4000
WS_FOB =0xC000
WS_FOA =0x14000
WS_KVA =0x20000
WS_QB  =0x40000
WS_KVB =0x240000
WS_OA  =0x640000
WS_OB  =0x840000
WS_STAMP=0xA40000
NSTAMP=16
L_WQ=0; L_X=65536; L_ST=131072; L_CTL=L_ST+30720
L_GW=L_CTL; L_G=L_CTL+1024; L_C=L_CTL+1024+256
C_X=L_C+0
C_Q=L_C+4
C_K0=L_C+8; C_K1=L_C+12; C_K2=L_C+16; C_BP=L_C+20; C_MID=L_C+24; C_WO=L_C+28; C_WD=L_C+32
L_EX=L_ST
LDS_TOTAL=163840
SPIN_LIMIT=50000
CSCALE=f2u(0.25*math.log2(math.e))
NEGBIG=f2u(-1e9)
L_LO=f2u(2.0**-24); L_HI=f2u(2.0**60)

sX=28; sWQ=32; sWKV=36; sWB=40; sWOA=44; sWOB=48; sG=52; sOUT=56; sWS=60; sDBG=64
sWave=68; sPb=69; sHg=70; sTag=71
sT=72
sCnt=84; sB=85
sVM=86
sST=88
L=[]
def E(s):
    for ln in s.split('\n'):
        if ln.strip(): L.append('    '+ln.strip())
def LBL(s): L.append(s+':')
def C(s): L.append('    ; '+s)
_uid=[0]
def uid(p):
    _uid[0]+=1; return f'{p}_{_uid[0]}'
def vr(a,n): return f'v[{a}:{a+n-1}]'
def sr(a,n=4): return f's[{a}:{a+n-1}]'
def srd(dst,ptr,nbytes):
    E(f's_mov_b32 s{dst}, s{ptr}\n s_mov_b32 s{dst+1}, s{ptr+1}\n s_mov_b32 s{dst+2}, {hex(nbytes)}\n s_mov_b32 s{dst+3}, 0x20000')
STN=[]
def stamp(role,i,name):
    if not DIAG: return
    STN.append((role,i,name))
    E(f's_memrealtime s[100:101]\n s_waitcnt lgkmcnt(0)\n s_mov_b32 s{sST+i}, s100')
def cstamp(role,i,name):
    if not DIAG: return
    STN.append((role,i,'CYC '+name))
    E(f's_memtime s[100:101]\n s_waitcnt lgkmcnt(0)\n s_mov_b32 s{sST+i}, s100')
def stamp_flush(nmax):
    if not DIAG: return
    E('v_mov_b32 v2, 0')
    for i in range(nmax): E(f'v_writelane_b32 v2, s{sST+i}, {i}')
    E(f's_mul_i32 s{sT}, s2, 12\n s_add_u32 s{sT}, s{sT}, s{sWave}\n s_lshl_b32 s{sT}, s{sT}, 6\n s_add_u32 s{sT}, s{sT}, {hex(WS_STAMP)}')
    E(f'v_lshlrev_b32 v3, 2, v0\n s_mov_b64 exec, 0xffff\n buffer_store_dword v2, v3, {sr(sWS)}, s{sT} offen\n s_mov_b64 exec, -1')

def lds_add(off,val,vz,vt):
    E(f'v_mov_b32 v{vt}, {val}\n s_mov_b64 exec, 1\n ds_add_u32 v{vz}, v{vt} offset:{off-L_ST}\n s_mov_b64 exec, -1')
def lds_spin(off,mask,val,vz,vt,sleep=1):
    a=uid('spin'); d=uid('spind')
    E(f's_mov_b32 s{sCnt}, {SPIN_LIMIT}')
    LBL(a)
    E(f'ds_read_b32 v{vt}, v{vz} offset:{off-L_ST}\n s_waitcnt lgkmcnt(0)\n v_readfirstlane_b32 s{sT}, v{vt}')
    if mask is not None: E(f's_and_b32 s{sT}, s{sT}, {hex(mask)}')
    E(f's_cmp_eq_u32 s{sT}, {hex(val)}\n s_cbranch_scc1 {d}\n s_sub_u32 s{sCnt}, s{sCnt}, 1\n s_cbranch_scc1 {d}')
    if sleep: E(f's_sleep {sleep}')
    E(f's_branch {a}')
    LBL(d)
def poll(vaddr,n,vt,sleep=1):
    a=uid('poll'); d=uid('polld')
    E(f's_mov_b32 s{sCnt}, {SPIN_LIMIT}')
    LBL(a)
    op={1:'buffer_load_dword',3:'buffer_load_dwordx3',4:'buffer_load_dwordx4'}[n]
    E(f'{op} {vr(vt,n) if n>1 else "v%d"%vt}, v{vaddr}, {sr(sWS)}, 0 offen sc1\n s_waitcnt vmcnt(0)')
    for i in range(n): E(f'v_xor_b32 v{vt+i}, s{sTag}, v{vt+i}')
    if n>=3: E(f'v_or3_b32 v{vt}, v{vt}, v{vt+1}, v{vt+2}')
    if n==4: E(f'v_or_b32 v{vt}, v{vt}, v{vt+3}')
    E(f'v_cmp_ne_u32 vcc, 0, v{vt}\n s_cbranch_vccz {d}\n s_sub_u32 s{sCnt}, s{sCnt}, 1\n s_cbranch_scc1 {d}')
    if sleep: E(f's_sleep {sleep}')
    E(f's_branch {a}')
    LBL(d)
def flag_store(soff_reg,vt):
    E(f'v_mov_b32 v{vt}, s{sTag}\n s_mov_b64 exec, 1\n buffer_store_dword v{vt}, off, {sr(sWS)}, s{soff_reg} sc1\n s_mov_b64 exec, -1')
def mfma(d,a,b,c=None):
    cc = vr(d,16) if c is None else (c if isinstance(c,str) else vr(c,16))
    E(f'v_mfma_f32_32x32x16_bf16 {vr(d,16)}, {vr(a,4)}, {vr(b,4)}, {cc}')
def smf(o,v,s,idx): E(f'v_smfmac_f32_32x32x32_bf16 {vr(o,16)}, {vr(v,4)}, {vr(s,8)}, v{idx}')
def vexp(r): E(f'v_exp_f32 v{r}, v{r}')
def cvt(d,a,b): E(f'v_cvt_pk_bf16_f32 v{d}, v{a}, v{b}')
def set_vpad(regs,vt):
    E(f'v_and_b32 v{vt}, 27, v0\n v_cmp_eq_u32 vcc, 16, v{vt}\n v_mov_b32 v{vt}, 0x3f803f80\n s_nop 0\n v_cndmask_b32 v{regs[0]}, 0, v{vt}, vcc')
    for r in regs[1:]: E(f'v_mov_b32 v{r}, v{regs[0]}')
def xaddr(base,t_imm,vt):
    E(f'v_and_b32 v{vt}, 15, v0\n v_lshrrev_b32 v{base}, 5, v0\n v_xor_b32 v{base}, v{base}, v{vt}\n v_lshlrev_b32 v{base}, 4, v{base}')
    E(f'v_and_b32 v{vt}, 31, v0\n v_lshl_add_u32 v{base}, v{vt}, 10, v{base}\n v_add_u32 v{base}, {t_imm}, v{base}')
    for b in range(1,8): E(f'v_xor_b32 v{base+b}, {b<<5}, v{base}')
def traddr128(dst,vt,vt2,rowsel,colbase):
    E(f'v_lshrrev_b32 v{vt}, 5, v0\n v_lshlrev_b32 v{vt}, {rowsel}, v{vt}\n v_bfe_u32 v{vt2}, v0, 2, 2\n v_add_u32 v{vt}, v{vt}, v{vt2}\n v_lshlrev_b32 v{dst}, 7, v{vt}')
    E(f'v_bfe_u32 v{vt}, v0, 4, 1\n v_lshlrev_b32 v{vt}, 1, v{vt}\n v_bfe_u32 v{vt2}, v0, 1, 1\n v_add3_u32 v{vt}, v{vt}, v{vt2}, {colbase}')
    E(f'v_bfe_u32 v{vt2}, v0, 3, 1\n v_lshlrev_b32 v{vt2}, 2, v{vt2}\n v_xor_b32 v{vt}, v{vt}, v{vt2}\n v_lshl_add_u32 v{dst}, v{vt}, 4, v{dst}')
    E(f'v_and_b32 v{vt}, 1, v0\n v_lshl_add_u32 v{dst}, v{vt}, 3, v{dst}')
def dma128_voff(dst,vt,vt2,rowstride_sreg_or_shift,colbytes):
    E(f'v_lshrrev_b32 v{vt}, 3, v0')
    if isinstance(rowstride_sreg_or_shift,int): E(f'v_lshlrev_b32 v{dst}, {rowstride_sreg_or_shift}, v{vt}')
    else: E(f'v_mul_u32_u24 v{dst}, {rowstride_sreg_or_shift}, v{vt}')
    E(f'v_bfe_u32 v{vt}, v0, 4, 1\n v_lshlrev_b32 v{vt}, 2, v{vt}\n v_and_b32 v{vt2}, 7, v0\n v_xor_b32 v{vt}, v{vt}, v{vt2}\n v_lshl_add_u32 v{dst}, v{vt}, 4, v{dst}\n v_add_u32 v{dst}, {colbytes}, v{dst}')
def finalize(O,dst,vt,lbl_fb,lbl_back):
    E(f'v_add_f32 v{vt}, |v{O}|, |v{O+1}|')
    for r in range(2,8): E(f'v_add_f32 v{vt}, v{vt}, |v{O+r}|')
    E(f'v_mov_b32 v{vt+1}, 0x7f800000\n v_cmp_nlt_f32 {sr(sT,2)}, v{vt}, v{vt+1}')
    E(f'v_cmp_nle_f32 vcc, {hex(L_LO)}, v{O+8}\n s_or_b64 {sr(sT,2)}, {sr(sT,2)}, vcc')
    E(f'v_cmp_nge_f32 vcc, {hex(L_HI)}, v{O+8}\n s_or_b64 {sr(sT,2)}, {sr(sT,2)}, vcc\n s_cbranch_scc1 {lbl_fb}')
    LBL(lbl_back)
    E(f'v_rcp_f32 v{vt}, v{O+8}\n s_nop 0')
    for r in range(8): E(f'v_mul_f32 v{O+r}, v{O+r}, v{vt}')
    for r in range(4): cvt(dst+r,O+2*r,O+2*r+1)

TAIL=[]
def fallback(lbl,back,Q,O,S,K,V,IDX,vM,vK,vV,ntile,soff_setup,first_mask=None,last_mask=None,first_cond=None):
    global L
    save=L; L=[]
    LBL(lbl)
    soff_setup()
    E(f'v_mov_b32 v{vM}, 0xff800000')
    for p in (0,1):
        lp=uid('fbl')
        if p==1:
            E(f'v_mov_b32 v{S}, v{vM}\n s_nop 1\n v_permlane32_swap_b32 v{S}, v{vM}\n s_nop 1\n v_max_f32 v{vM}, v{vM}, v{S}')
            for r in range(16): E(f'v_mov_b32 v{O+r}, 0')
        E(f's_mov_b32 s{sT+5}, s{sT+2}\n s_mov_b32 s{sT+6}, 0')
        LBL(lp)
        E(f'buffer_load_dwordx4 {vr(K,4)}, v{vK}, {sr(sWS)}, s{sT+5} offen sc1')
        if p==1:
            E(f's_mov_b64 exec, {sr(sVM,2)}\n buffer_load_dwordx4 {vr(V,4)}, v{vV}, {sr(sWS)}, s{sT+5} offen offset:1024 sc1\n buffer_load_dwordx4 {vr(V+4,4)}, v{vV}, {sr(sWS)}, s{sT+5} offen offset:1536 sc1\n s_mov_b64 exec, -1')
        E('s_waitcnt vmcnt(0)')
        if first_mask is None:
            mfma(S,K,Q,'0')
        else:
            a=uid('fbm'); b=uid('fbm'); j=uid('fbm')
            E(f's_add_u32 s{sT+7}, s{sT+6}, 1\n s_cmp_eq_u32 s{sT+7}, s{sT+3}\n s_cbranch_scc1 {a}')
            E(f's_cmp_lt_u32 s{sT+6}, s{sT+4}\n s_cbranch_scc1 {b}')
            mfma(S,K,Q,'0'); E(f's_branch {j}')
            LBL(a); mfma(S,K,Q,last_mask); E(f's_branch {j}')
            LBL(b); mfma(S,K,Q,first_mask)
            LBL(j)
        E('s_nop 15')
        if p==0:
            for r in range(0,16,2): E(f'v_max3_f32 v{vM}, v{S+r}, v{S+r+1}, v{vM}')
        else:
            for r in range(16): E(f'v_sub_f32 v{S+r}, v{S+r}, v{vM}')
            for r in range(16): vexp(S+r)
            E('s_nop 1'); smf(O,V,S,IDX); smf(O,V+4,S+8,IDX)
        E(f's_add_u32 s{sT+5}, s{sT+5}, 2048\n s_add_u32 s{sT+6}, s{sT+6}, 1\n s_cmp_lt_u32 s{sT+6}, s{sT+3}\n s_cbranch_scc1 {lp}')
    E(f's_nop 15\n s_branch {back}')
    TAIL.extend(L); L=save

E('s_cmp_ge_u32 s2, 256\n s_cbranch_scc1 L_END')
E('s_load_dwordx16 s[4:19], s[0:1], 0\n s_load_dwordx8 s[20:27], s[0:1], 64')
E(f'v_lshrrev_b32 v1, 6, v0\n v_and_b32 v0, 63, v0\n v_readfirstlane_b32 s{sWave}, v1')
if MAP=='b':
    E(f's_and_b32 s{sT}, s2, 7\n s_lshr_b32 s{sT+1}, s2, 3\n s_and_b32 s{sT+2}, s{sT+1}, 3\n s_lshl_b32 s{sPb}, s{sT}, 2\n s_or_b32 s{sPb}, s{sPb}, s{sT+2}\n s_lshr_b32 s{sHg}, s{sT+1}, 2')
else:
    E(f's_bfe_u32 s{sPb}, s2, 0x20001\n s_lshl_b32 s{sPb}, s{sPb}, 3\n s_bfe_u32 s{sT}, s2, 0x30003\n s_or_b32 s{sPb}, s{sPb}, s{sT}\n s_and_b32 s{sHg}, s2, 1\n s_lshl_b32 s{sHg}, s{sHg}, 2\n s_lshr_b32 s{sT}, s2, 6\n s_or_b32 s{sHg}, s{sHg}, s{sT}')
E(f's_mov_b32 s{sVM}, 0xffff\n s_mov_b32 s{sVM+1}, 0xffff')
if DIAG:
    for i in range(12): E(f's_mov_b32 s{sST+i}, 0')
E('s_waitcnt lgkmcnt(0)')
stamp('A',0,'start'); stamp('B',0,'start')
E(f's_load_dword s{sTag}, s[26:27], {WS_EPOCH}')
srd(sX,4,2048*1024); srd(sWS,26,0x10000000)
E(f's_cmp_lt_u32 s{sWave}, 8\n s_cbranch_scc1 L_A')


vZ=1
SLOT=[0,40960,81920]
KVPOS=[81920,98304,114688,65536,0,16384,32768,49152]
L_PART=L_ST+16384
L_QA=L_ST; L_QB=L_ST+18432; L_WO=65536
sRot=sT+11; sStr=sT+10; sJ3=sT+9
def mktag(): E(f's_mul_i32 s{sTag}, s{sTag}, 0x9E3779B1\n s_add_u32 s{sTag}, s{sTag}, 0x7F4A7C15')
def touch(srd_,soff,n,vaddr,vd,sc1=False):
    for i in range(n):
        if i: E(f's_add_u32 s{soff}, s{soff}, 8192')
        E(f'buffer_load_dword v{vd}, v{vaddr}, {sr(srd_)}, s{soff} offen'+(' sc1' if sc1 else ''))
E(f's_setprio 3\n s_sub_u32 s{sB}, s{sWave}, 8')
C('---- kvA: this WG makes 16 positions (hg&3) of K (hg<4) or V ; wave b sums k in [128b,128b+128)')
E(f's_cmp_lt_u32 s{sHg}, 4\n s_cselect_b32 s{sWKV}, s8, s10\n s_cselect_b32 s{sWKV+1}, s9, s11\n s_mov_b32 s{sWKV+2}, 16384\n s_mov_b32 s{sWKV+3}, 0x20000')
E(f's_lshl_b32 s{sT}, s{sB}, 12\n s_add_u32 m0, s{sT}, {L_ST}\n v_lshlrev_b32 v160, 4, v0')
for i in range(4): E(f'buffer_load_dwordx4 v160, {sr(sWKV)}, s{sT} offen offset:{1024*i} lds')
E(f's_and_b32 s{sJ3}, s{sHg}, 3\n s_lshl_b32 s{sT+1}, s{sPb}, 16\n s_lshl_b32 s{sT+2}, s{sJ3}, 14\n s_add_u32 s{sT+1}, s{sT+1}, s{sT+2}\n s_lshl_b32 s{sT+2}, s{sB}, 8\n s_add_u32 s{sT+1}, s{sT+1}, s{sT+2}')
E('v_and_b32 v5, 15, v0\n v_lshlrev_b32 v3, 10, v5\n v_and_b32 v4, 48, v0\n v_add_u32 v3, v3, v4')
for s_ in range(4): E(f'buffer_load_dwordx4 {vr(32+4*s_,4)}, v3, {sr(sX)}, s{sT+1} offen offset:{64*s_}')
srd(sG,20,1024)
E(f's_mov_b32 m0, {L_GW}\n s_nop 0\n buffer_load_dwordx4 v160, {sr(sG)}, 0 offen lds')
C('---- loader set-up: wave b streams matrix b (wq | B q | B k | B v : 64 columns) and x rows 16b..16b+15, 64 k per chunk')
E(f's_cmp_eq_u32 s{sB}, 0\n s_cselect_b32 s{sWB}, s6, s16\n s_cselect_b32 s{sWB+1}, s7, s17\n s_mov_b32 s{sWB+2}, {512*3072}\n s_cselect_b32 s{sWB+2}, {512*1024}, s{sWB+2}\n s_mov_b32 s{sWB+3}, 0x20000')
E(f's_movk_i32 s{sStr}, 3072\n s_cselect_b32 s{sStr}, 0x400, s{sStr}\n s_max_u32 s{sT+1}, s{sB}, 1\n s_sub_u32 s{sT+1}, s{sT+1}, 1\n s_lshl_b32 s{sT+1}, s{sT+1}, 10\n s_lshl_b32 s{sT+2}, s{sHg}, 7\n s_add_u32 s{sT+1}, s{sT+1}, s{sT+2}')
dma128_voff(16,2,3,f's{sStr}',f's{sT+1}')
E('v_lshrrev_b32 v17, 3, v0\n v_lshlrev_b32 v17, 10, v17\n v_lshrrev_b32 v2, 4, v0\n v_and_b32 v3, 7, v0\n v_xor_b32 v2, v2, v3\n v_lshl_add_u32 v17, v2, 4, v17\n v_xor_b32 v18, 64, v17')
if ROT=='full' and MAP=='b': E(f's_and_b32 s{sRot}, s{sPb}, 3\n s_lshl_b32 s{sRot}, s{sRot}, 1\n s_add_u32 s{sRot}, s{sRot}, s{sHg}')
elif ROT=='full': E(f's_lshl_b32 s{sRot}, s{sHg}, 1\n s_add_u32 s{sRot}, s{sRot}, s{sPb}')
elif ROT=='two': E(f's_xor_b32 s{sRot}, s{sPb}, s{sHg}\n s_and_b32 s{sRot}, s{sRot}, 1\n s_lshl_b32 s{sRot}, s{sRot}, 2')
else: E(f's_mov_b32 s{sRot}, 0')
E(f's_lshl_b32 s{sStr}, s{sStr}, 3')
E(f's_lshl_b32 s{sT+7}, s{sPb}, 2\n s_add_u32 s{sT+7}, s{sT+7}, s{sB}\n s_lshl_b32 s{sT+7}, s{sT+7}, 14\n s_lshl_b32 s{sT+8}, s{sB}, 13\n s_lshl_b32 s{sT+6}, s{sB}, 11')
def cdma(j):
    sl=SLOT[j%3]
    E(f's_add_u32 s{sT+1}, s{sRot}, {j}\n s_and_b32 s{sT+1}, s{sT+1}, 7\n s_lshl_b32 s{sT+2}, s{sT+1}, 7\n s_add_u32 s{sT+2}, s{sT+2}, s{sT+7}\n s_lshl_b32 s{sT+1}, s{sT+1}, 3\n s_mul_i32 s{sT+1}, s{sT+1}, s{sStr}')
    for n in range(2):
        E(f's_add_u32 m0, s{sT+6}, {sl+32768+1024*n}')
        if n: E(f's_add_u32 s{sT+2}, s{sT+2}, 8192')
        else: E('s_nop 0')
        E(f'buffer_load_dwordx4 v{17+n}, {sr(sX)}, s{sT+2} offen lds')
    for n in range(8):
        E(f's_add_u32 m0, s{sT+8}, {sl+1024*n}')
        if n: E(f's_add_u32 s{sT+1}, s{sT+1}, s{sStr}')
        else: E('s_nop 0')
        E(f'buffer_load_dwordx4 v16, {sr(sWB)}, s{sT+1} offen lds')
for j in range(3): cdma(j)
E(f'v_mov_b32 v{vZ}, {L_ST}\n v_lshrrev_b32 v4, 4, v0\n v_lshlrev_b32 v4, 8, v4\n v_lshl_add_u32 v4, v5, 3, v4\n s_add_u32 s{sT}, s{sT}, {L_ST}\n v_add_u32 v4, s{sT}, v4')
E(f's_lshl_b32 s{sT+2}, s{sB}, 10\n s_add_u32 s{sT+2}, s{sT+2}, {L_PART}\n v_add_u32 v6, s{sT+2}, v160')
E('s_waitcnt vmcnt(35)')
for s_ in range(4): E(f'ds_read_b64_tr_b16 {vr(48+4*s_,2)}, v4 offset:{1024*s_}\n ds_read_b64_tr_b16 {vr(50+4*s_,2)}, v4 offset:{1024*s_+128}')
E(f's_cmp_lt_u32 s{sHg}, 4\n s_waitcnt vmcnt(31) lgkmcnt(0)\n s_cbranch_scc0 L_B_VJOB')
for s_ in range(4): E(f'v_mfma_f32_16x16x32_bf16 v[8:11], {vr(48+4*s_,4)}, {vr(32+4*s_,4)}, {"0" if s_==0 else "v[8:11]"}')
E('s_branch L_B_KVJ')
LBL('L_B_VJOB')
for s_ in range(4): E(f'v_mfma_f32_16x16x32_bf16 v[8:11], {vr(32+4*s_,4)}, {vr(48+4*s_,4)}, {"0" if s_==0 else "v[8:11]"}')
LBL('L_B_KVJ')
mktag()
E('s_nop 6\n ds_write_b128 v6, v[8:11]')
stamp('B',1,'kvA partials')
MU=128; MD=144; BQ=16; BK=24; BV=36; BS=64; BO=96; BIDX=60
C('---- constants (idle time): gate addresses, window masks')
E(f'v_and_b32 v2, 31, v0\n v_bfe_u32 v3, v0, 1, 3\n v_lshrrev_b32 v24, 5, v0\n v_xor_b32 v3, v3, v24\n v_lshlrev_b32 v20, 7, v2\n v_lshl_add_u32 v20, v3, 4, v20\n s_and_b32 s{sT}, s{sB}, 1\n s_lshl_b32 s{sT}, s{sT}, 12\n v_add_u32 v20, s{sT}, v20')
for s_ in range(1,4): E(f'v_xor_b32 v{20+s_}, {s_<<5}, v20')
E(f'v_lshlrev_b32 v24, 4, v24\n v_add_u32 v24, {L_GW}, v24\n v_mov_b32 v25, 0')
E(f'v_lshrrev_b32 v3, 5, v0\n v_lshlrev_b32 v3, 2, v3\n v_sub_u32 v2, v2, v3\n s_mov_b32 s{sT}, {hex(NEGBIG)}')
for r in range(16):
    E(f'v_subrev_u32 v3, {8*(r//4)+r%4}, v2\n v_ashrrev_i32 v3, 31, v3\n v_and_b32 v{MD+r}, s{sT}, v3\n v_xor_b32 v{MU+r}, s{sT}, v{MD+r}')
E('v_lshrrev_b32 v161, 5, v0\n v_lshlrev_b32 v161, 8, v161\n v_and_b32 v2, 15, v0\n v_lshl_add_u32 v161, v2, 4, v161\n v_lshlrev_b32 v163, 7, v0')
E(f'v_add_u32 v19, {hex(WS_FKVA)}, v163')
srd(sWOA,12,512*1024); srd(sWOB,18,512*1024)
E('s_waitcnt vmcnt(20) lgkmcnt(0)\n s_barrier')
stamp('B',2,'B0')
E(f's_cmp_eq_u32 s{sB}, 3\n s_cbranch_scc0 L_B_NORED')
C('---- wave 3: reduce + store this WG\'s kvA piece')
E(f'v_add_u32 v6, {L_PART}, v160')
for i in range(4): E(f'ds_read_b128 {vr(32+4*i,4)}, v6 offset:{1024*i}')
E(f's_lshl_b32 s{sT+2}, s{sPb}, 1\n s_lshr_b32 s{sT+4}, s{sJ3}, 1\n s_add_u32 s{sT+2}, s{sT+2}, s{sT+4}\n s_lshl_b32 s{sT+2}, s{sT+2}, 11\n s_add_u32 s{sT+2}, s{sT+2}, {hex(WS_KVA)}\n s_and_b32 s{sT+4}, s{sJ3}, 1')
E(f's_cmp_lt_u32 s{sHg}, 4\n s_cselect_b32 s{sT+5}, 9, 3\n s_cselect_b32 s{sT+3}, 3, 8\n s_cselect_b32 s{sT+1}, 8, 9\n s_cselect_b32 s{sT}, 0, 0x400')
E(f's_lshl_b32 s{sT+4}, s{sT+4}, s{sT+1}\n s_add_u32 s{sT+2}, s{sT+2}, s{sT+4}\n s_add_u32 s{sT+2}, s{sT+2}, s{sT}')
E(f'v_bfe_u32 v6, v0, 4, 1\n v_lshrrev_b32 v7, 5, v0\n v_lshlrev_b32 v5, 4, v5\n v_lshl_add_u32 v5, v6, s{sT+5}, v5\n v_lshl_add_u32 v5, v7, s{sT+3}, v5')
E('s_waitcnt lgkmcnt(0)')
for r in range(4): E(f'v_add_f32 v{32+r}, v{32+r}, v{36+r}\n v_add_f32 v{40+r}, v{40+r}, v{44+r}')
for r in range(4): E(f'v_add_f32 v{32+r}, v{32+r}, v{40+r}')
cvt(32,32,33); cvt(33,34,35)
E(f'buffer_store_dwordx2 v[32:33], v5, {sr(sWS)}, s{sT+2} offen sc1')
LBL('L_B_NORED')
def gate(k):
    sk=uid('ng'); sl=SLOT[k%3]
    E(f's_cmp_lt_u32 s{sB}, 2\n s_cbranch_scc0 {sk}')
    E(f's_add_u32 s{sT+1}, s{sRot}, {k}\n s_and_b32 s{sT+1}, s{sT+1}, 7\n s_lshl_b32 s{sT+1}, s{sT+1}, 7\n v_add_u32 v26, s{sT+1}, v24')
    for s_ in range(4):
        E(f'v_add_u32 v27, {sl+32768}, v{20+s_}\n ds_read_b128 {vr(32+8*s_,4)}, v27\n ds_read_b128 {vr(36+8*s_,4)}, v26 offset:{32*s_}')
    for s_ in range(4):
        E(f's_waitcnt lgkmcnt({6-2*s_})')
        for r in range(4): E(f'v_dot2c_f32_bf16 v25, v{32+8*s_+r}, v{36+8*s_+r}')
    LBL(sk)
def kvdma(c):
    E(f's_lshr_b32 s{sT+1}, s2, 3\n s_add_u32 s{sT+1}, s{sT+1}, {c}\n s_and_b32 s{sT+1}, s{sT+1}, 3\n s_lshl_b32 s{sT+1}, s{sT+1}, 2\n s_add_u32 s{sT+1}, s{sT+1}, s{sB}\n s_lshl_b32 s{sT+1}, s{sT+1}, 12')
    E(f's_lshl_b32 s{sT+2}, s{sB}, 12\n s_add_u32 m0, s{sT+2}, {KVPOS[c]}\n s_add_u32 s{sT+1}, s{sT+1}, {hex(WS_KVA+(65536 if c>=4 else 0))}')
    for i in range(4): E(f'buffer_load_dwordx4 v160, {sr(sWS)}, s{sT+1} offen offset:{1024*i} sc1 lds')
gate(0)
for k in range(1,8):
    E('s_waitcnt vmcnt(10)' if k<7 else 's_waitcnt vmcnt(12)')
    if k==2:
        E(f's_cmp_eq_u32 s{sB}, 3\n s_cbranch_scc0 L_B_NOFL')
        E(f's_lshl_b32 s{sT}, s{sPb}, 1\n s_lshr_b32 s{sT+1}, s{sHg}, 2\n s_add_u32 s{sT}, s{sT}, s{sT+1}\n s_lshl_b32 s{sT}, s{sT}, 7\n s_lshl_b32 s{sT+1}, s{sJ3}, 2\n s_add_u32 s{sT}, s{sT}, s{sT+1}\n s_add_u32 s{sT}, s{sT}, {hex(WS_FKVA)}')
        flag_store(sT,2)
        stamp('B',3,'kvA flag sent')
        LBL('L_B_NOFL')
    E('s_barrier')
    if k==5: E(f'buffer_load_dwordx4 v[12:15], v19, {sr(sWS)}, 0 offen sc1')
    if k+2<=7: cdma(k+2)
    if k==6:
        for i in range(4): E(f'v_xor_b32 v{12+i}, s{sTag}, v{12+i}')
        E('v_or3_b32 v12, v12, v13, v14\n v_or_b32 v12, v12, v15\n v_cmp_ne_u32 vcc, 0, v12\n s_cbranch_vccz L_B_SEEN')
        poll(19,4,12,sleep=1)
        LBL('L_B_SEEN')
        stamp('B',4,'kvA flags seen')
        E(f's_lshl_b32 s{sT}, s2, 2\n s_add_u32 s{sT}, s{sT}, s{sB}\n s_cmp_eq_u32 s{sT}, 0\n s_cbranch_scc0 L_B_NOBUMP')
        flag_store(sT,2)
        LBL('L_B_NOBUMP')
        for c in range(3): kvdma(c)
    gate(k)
E('s_waitcnt vmcnt(8)\n s_barrier')
stamp('B',5,'B8')
for c in range(3,8): kvdma(c)
C('---- gate -> LDS ; epoch')
E(f's_cmp_lt_u32 s{sB}, 2\n s_cbranch_scc0 L_B_NOG')
E(f'v_mov_b32 v26, v25\n s_mov_b32 s{sT}, {hex(f2u(-math.log2(math.e)))}\n s_nop 0\n v_permlane32_swap_b32 v25, v26\n s_nop 1\n v_add_f32 v25, v25, v26')
E(f'v_mul_f32 v25, s{sT}, v25\n v_exp_f32 v25, v25\n v_and_b32 v2, 31, v0\n v_add_f32 v25, 1.0, v25\n v_rcp_f32 v25, v25\n s_lshl_b32 s{sT}, s{sB}, 7\n s_add_u32 s{sT}, s{sT}, {L_G}\n v_lshl_add_u32 v2, v2, 2, s{sT}\n ds_write_b32 v2, v25')
LBL('L_B_NOG')
E(f's_lshl_b32 s{sT}, s{sB}, 11\n s_add_u32 s{sT}, s{sT}, {L_QB}\n v_add_u32 v2, s{sT}, v160')
for t in range(2): E(f'ds_read_b128 {vr(BQ+4*t,4)}, v2 offset:{1024*t}')
set_vpad(list(range(BV,BV+24)),2)
E(f'v_mov_b32 v{BIDX}, 0xdddddddd')
for r in range(32): E(f'v_mov_b32 v{BO+r}, 0')
E(f'v_min_u32 v2, 4, v0\n s_sub_i32 s{sT}, s{sPb}, 4\n v_add_u32 v2, s{sT}, v2\n v_max_i32 v2, 0, v2\n s_lshl_b32 s{sT}, s{sHg}, 5\n v_add_u32 v2, s{sT}, v2\n v_lshlrev_b32 v2, 7, v2\n v_add_u32 v162, {hex(WS_FKVB)}, v2')
E('s_waitcnt vmcnt(20)')
lds_add(C_K1,1,vZ,2)
E('s_waitcnt vmcnt(0)')
lds_add(C_K2,1,vZ,2)
if MAP=='b':
    E(f's_cmp_ge_u32 s{sB}, 2\n s_cbranch_scc0 L_B_NOT\n s_lshr_b32 s{sT+1}, s2, 3\n s_lshl_b32 s{sT+1}, s{sT+1}, 14\n s_and_b32 s{sT+2}, s{sB}, 1\n s_lshl_b32 s{sT+2}, s{sT+2}, 13\n s_add_u32 s{sT+1}, s{sT+1}, s{sT+2}')
    touch(sWOB,sT+1,1,163,3); touch(sWOA,sT+1,1,163,3)
else:
    E(f's_cmp_eq_u32 s{sB}, 2\n s_cbranch_scc0 L_B_NOT\n s_lshr_b32 s{sT+1}, s2, 3\n s_lshl_b32 s{sT+1}, s{sT+1}, 14\n s_and_b32 s{sT+2}, s2, 1\n s_lshl_b32 s{sT+2}, s{sT+2}, 9\n s_add_u32 s{sT+1}, s{sT+1}, s{sT+2}')
    E('v_lshrrev_b32 v2, 2, v0\n v_lshlrev_b32 v2, 10, v2\n v_and_b32 v3, 3, v0\n v_lshl_add_u32 v2, v3, 7, v2')
    touch(sWOB,sT+1,1,2,3); touch(sWOA,sT+1,1,2,4)
LBL('L_B_NOT')
poll(162,4,4,sleep=3)
stamp('B',6,'kvB flags seen')
C('---- window attention, head 4hg+b, two query tiles')
E(f's_lshl_b32 s{sT+8}, s{sHg}, 2\n s_add_u32 s{sT+8}, s{sT+8}, s{sB}\n s_lshl_b32 s{sT+8}, s{sT+8}, 6\n s_lshl_b32 s{sT+9}, s{sPb}, 1\n s_sub_i32 s{sT+9}, s{sT+9}, 8')
def btile(j): E(f's_add_i32 s{sT}, s{sT+9}, {j}\n s_max_i32 s{sT}, s{sT}, 0\n s_add_u32 s{sT}, s{sT}, s{sT+8}\n s_lshl_b32 s{sT}, s{sT}, 11\n s_add_u32 s{sT}, s{sT}, {hex(WS_KVB)}')
def bload(j):
    k=BK+4*(j%3); v=BV+8*(j%3)
    btile(j)
    E(f'buffer_load_dwordx4 {vr(k,4)}, v160, {sr(sWS)}, s{sT} offen sc1\n s_mov_b64 exec, {sr(sVM,2)}')
    E(f'buffer_load_dwordx4 {vr(v,4)}, v161, {sr(sWS)}, s{sT} offen offset:1024 sc1\n buffer_load_dwordx4 {vr(v+4,4)}, v161, {sr(sWS)}, s{sT} offen offset:1536 sc1\n s_mov_b64 exec, -1')
bload(0); bload(1)
for j in (2,6):
    E(f's_add_i32 s{sT}, s{sT+9}, {j}\n s_max_i32 s{sT}, s{sT}, 0\n s_add_i32 s{sT+1}, s{sT+9}, 6\n s_min_i32 s{sT}, s{sT}, s{sT+1}\n s_cmp_lt_i32 s{sT}, 0')
    sk=uid('tk'); E(f's_cbranch_scc1 {sk}\n s_add_u32 s{sT}, s{sT}, s{sT+8}\n s_lshl_b32 s{sT}, s{sT}, 11\n s_add_u32 s{sT}, s{sT}, {hex(WS_KVB)}')
    E(f'buffer_load_dword v3, v163, {sr(sWS)}, s{sT} offen sc1'); LBL(sk)
E('s_waitcnt lgkmcnt(0)')
for j in range(10):
    k=BK+4*(j%3); v=BV+8*(j%3)
    if j+2<10: bload(j+2)
    E(f's_waitcnt vmcnt({3*min(2,9-j)})')
    sk=uid('bskip')
    if j<8: E(f's_cmp_lt_i32 s{sT+9}, {-j}\n s_cbranch_scc1 {sk}')
    qs=[q for q in (0,1) if 0<=j-q<=8]
    for q in qs: mfma(BS+16*q,k,BQ+4*q,{0:MU,8:MD}.get(j-q,'0'))
    E('s_nop 10' if len(qs)==2 else 's_nop 11')
    for q in qs:
        S=BS+16*q; O=BO+16*q
        for r in range(10): vexp(S+r)
        smf(O,v,S,BIDX)
        for r in range(10,16): vexp(S+r)
        E('s_nop 1'); smf(O,v+4,S+8,BIDX)
    if j<8: LBL(sk)
E(f's_lshl_b32 s{sT+10}, s{sPb}, 6\n s_lshl_b32 s{sT+11}, s{sHg}, 2\n s_add_u32 s{sT+10}, s{sT+10}, s{sT+11}\n s_add_u32 s{sT+10}, s{sT+10}, s{sB}\n s_lshl_b32 s{sT+10}, s{sT+10}, 10\n s_add_u32 s{sT+10}, s{sT+10}, {hex(WS_OB)}\n s_nop 10')
for q in range(2):
    fb=f'L_FB_B{q}'; bk=f'L_FB_B{q}_BACK'
    finalize(BO+16*q,4,2,fb,bk)
    E(f'buffer_store_dwordx4 v[4:7], v160, {sr(sWS)}, s{sT+10} offen sc1')
    if q==0: E(f's_add_u32 s{sT+10}, s{sT+10}, 32768\n s_nop 0')
    def setup(q=q):
        E(f's_add_i32 s{sT+2}, s{sT+9}, {q}\n s_cmp_ge_i32 s{sT+2}, 0\n s_cselect_b32 s{sT+4}, 1, 0\n s_max_i32 s{sT+2}, s{sT+2}, 0')
        E(f's_add_i32 s{sT+3}, s{sT+9}, {q+9}\n s_sub_u32 s{sT+3}, s{sT+3}, s{sT+2}\n s_add_u32 s{sT+2}, s{sT+2}, s{sT+8}\n s_lshl_b32 s{sT+2}, s{sT+2}, 11\n s_add_u32 s{sT+2}, s{sT+2}, {hex(WS_KVB)}')
    fallback(fb,bk,BQ+4*q,BO+16*q,BS,BK,BV,BIDX,3,160,161,None,setup,MU,MD)
E(f's_lshl_b32 s{sT}, s{sPb}, 3\n s_add_u32 s{sT}, s{sT}, s{sHg}\n s_lshl_b32 s{sT}, s{sT}, 7\n s_lshl_b32 s{sT+1}, s{sB}, 2\n s_add_u32 s{sT}, s{sT}, s{sT+1}\n s_add_u32 s{sT}, s{sT}, {hex(WS_FOB)}')
C('---- output projection: wave (t=b&1, kh=b>>1): both 32-column tiles over heads 16kh..16kh+15 ; slot 0 = tile kh')
PB_=16; PA_=48; PW=80; PO=96
sTt=sT+10; sKh=sT+9; sOb=sT+11; sPass=sT+8
E(f's_lshr_b32 s{sKh}, s{sB}, 1\n s_and_b32 s{sTt}, s{sB}, 1\n s_lshl_b32 s{sT+2}, s{sHg}, 7')
dma128_voff(10,2,3,10,f's{sT+2}')
E(f's_lshl_b32 s{sT+1}, s{sKh}, 2'); traddr128(11,2,3,2,f's{sT+1}')
E(f's_lshl_b32 s{sT+1}, s{sKh}, 15\n s_add_u32 s{sT+1}, s{sT+1}, {L_WO}\n v_add_u32 v11, s{sT+1}, v11\n v_xor_b32 v9, 64, v11')
E('s_waitcnt vmcnt(0)')
flag_store(sT,2)
stamp('B',7,'oB published')
E(f'v_bfe_u32 v12, v0, 2, 2\n s_lshl_b32 s{sT}, s{sPb}, 1\n s_add_u32 s{sT}, s{sT}, s{sKh}\n s_lshl_b32 s{sT}, s{sT}, 2\n v_add_u32 v12, s{sT}, v12\n v_lshlrev_b32 v12, 7, v12\n v_and_b32 v2, 3, v0\n v_lshl_add_u32 v13, v2, 2, v12\n v_add_u32 v13, {hex(WS_FOB)}, v13')
E(f'v_and_b32 v3, 1, v0\n v_and_b32 v2, 2, v0\n v_lshl_add_u32 v3, v2, 1, v3\n s_lshl_b32 s{sT}, s{sTt}, 1\n v_add_u32 v3, s{sT}, v3\n v_lshl_add_u32 v12, v3, 2, v12\n v_add_u32 v12, {hex(WS_FOA)}, v12')
E(f's_lshl_b32 s{sT+4}, s{sPb}, 1\n s_add_u32 s{sT+4}, s{sT+4}, s{sTt}\n s_lshl_b32 s{sT+4}, s{sT+4}, 15\n s_lshl_b32 s{sT}, s{sKh}, 14\n s_add_u32 s{sOb}, s{sT+4}, s{sT}\n s_add_u32 s{sOb}, s{sOb}, {hex(WS_OB)}')
E(f's_lshl_b32 s{sT}, s{sHg}, 7\n s_add_u32 s{sT+4}, s{sT+4}, s{sT}\n s_lshl_b32 s{sT}, s{sKh}, 6\n s_add_u32 s{sT+4}, s{sT+4}, s{sT}')
E('v_and_b32 v2, 31, v0\n v_lshlrev_b32 v15, 10, v2\n v_lshrrev_b32 v3, 5, v0\n v_lshl_add_u32 v15, v3, 4, v15')
E(f'v_lshlrev_b32 v8, 2, v2\n s_lshl_b32 s{sT}, s{sTt}, 7\n s_add_u32 s{sT}, s{sT}, {L_G}\n v_add_u32 v8, s{sT}, v8')
srd(sOUT,22,2048*1024)
E(f's_lshl_b32 s{sT}, s{sB}, 12\n v_add_u32 v164, s{sT}, v160\n v_xor_b32 v165, 0x2000, v164\n s_mov_b32 s{sPass}, 0')
lds_spin(C_MID,None,8,vZ,2,sleep=6)
def wodma(sr_):
    E(f's_lshl_b32 s{sT}, s{sB}, 14\n s_lshl_b32 s{sT+1}, s{sB}, 17')
    for n in range(16): E(f's_add_u32 m0, s{sT}, {L_WO+1024*n}\n s_add_u32 s{sT+2}, s{sT+1}, {8192*n}\n buffer_load_dwordx4 v10, {sr(sr_)}, s{sT+2} offen lds')
wodma(sWOB)
E('s_waitcnt vmcnt(0)')
lds_add(C_WO,1,vZ,2)
lds_spin(C_WO,None,4,vZ,2,sleep=2)
E('ds_read_b32 v14, v8')
stamp('B',8,'woB landed')
LBL('L_B_GEMM')
def wread(s):
    f=PW+8*(s&1)
    for u,va in ((0,11),(1,9)): E(f'ds_read_b64_tr_b16 {vr(f+4*u,2)}, v{va} offset:{s*2048}\n ds_read_b64_tr_b16 {vr(f+4*u+2,2)}, v{va} offset:{s*2048+1024}')
wread(0)
poll(13,1,4,sleep=1)
if DIAG:
    E(f's_cmp_eq_u32 s{sPass}, 0\n s_cbranch_scc1 L_B_NST'); stamp('B',10,'oA flags seen'); LBL('L_B_NST')
for s in range(16):
    if s%4==0 and s>0: E(f's_add_u32 s{sOb}, s{sOb}, 4096')
    E(f'buffer_load_dwordx4 {vr(PO+4*s,4)}, v160, {sr(sWS)}, s{sOb} offen offset:{1024*(s%4)} sc1')
for s in range(16):
    if s<15: wread(s+1)
    E(f's_waitcnt vmcnt({15-s}) lgkmcnt({4 if s<15 else 0})')
    f=PW+8*(s&1)
    for u in range(2): mfma(PA_+16*u,f+4*u,PO+4*s,'0' if s==0 else None)
E(f's_cmp_eq_u32 s{sPass}, 0\n s_cbranch_scc0 L_B_FIN')
lds_add(C_WD,1,vZ,2)
E(f'v_sub_f32 v3, 1.0, v14\n v_mov_b32 v13, v12\n s_add_u32 s{sOb}, s{sOb}, {hex((WS_OA-WS_OB-3*4096)&0xffffffff)}\n s_mov_b32 s{sPass}, 1\n s_nop 7')
for r in range(32): E(f'v_mul_f32 v{PB_+r}, v{PA_+r}, v3')
lds_spin(C_WD,None,4,vZ,2,sleep=2)
wodma(sWOA)
E('s_waitcnt vmcnt(0)')
stamp('B',9,'out-proj B done, woA in')
E('s_barrier\n s_branch L_B_GEMM')
LBL('L_B_FIN')
E('s_nop 9')
for r in range(16): E(f'v_fma_f32 v{PA_+16+r}, v{PA_+16+r}, v14, v{PB_+16+r}')
for q in range(4): E(f'ds_write_b128 v164, {vr(PA_+16+4*q,4)} offset:{1024*q}')
for r in range(16): E(f'v_fma_f32 v{PA_+r}, v{PA_+r}, v14, v{PB_+r}')
E('s_waitcnt lgkmcnt(0)\n s_barrier')
for q in range(4): E(f'ds_read_b128 {vr(PB_+4*q,4)}, v165 offset:{1024*q}')
for q in range(4):
    E(f's_waitcnt lgkmcnt({3-q})')
    for r in range(4): E(f'v_add_f32 v{PA_+4*q+r}, v{PA_+4*q+r}, v{PB_+4*q+r}')
for r in range(8): cvt(PA_+r,PA_+2*r,PA_+2*r+1)
E('s_nop 1')
for gq in range(2): E(f'v_permlane32_swap_b32 v{PA_+4*gq}, v{PA_+4*gq+2}\n v_permlane32_swap_b32 v{PA_+4*gq+1}, v{PA_+4*gq+3}')
for gq in range(2): E(f'buffer_store_dwordx4 {vr(PA_+4*gq,4)}, v15, {sr(sOUT)}, s{sT+4} offen offset:{32*gq}')
if DIAG: E('s_waitcnt vmcnt(0)')
stamp('B',11,'out stored')
stamp_flush(12)
E('s_endpgm')

LBL('L_A')
AIDX=8; AKA=9; AVA=10; AQ0=12; AQ1=16; AK=20; AV=28; SA=44; SB=60; OA=76; OB=92; XA=108; WA=112; AF=116
E(f'v_mov_b32 v{vZ}, {L_ST}\n v_mov_b32 v2, 0\n v_lshlrev_b32 v3, 2, v0\n v_add_u32 v3, {L_C}, v3')
E(f's_cmp_eq_u32 s{sWave}, 0\n s_cbranch_scc0 L_A_NOZ\n ds_write_b32 v3, v2')
LBL('L_A_NOZ')
E(f's_and_b32 s{sT+1}, s{sWave}, 1\n s_lshl_b32 s{sT+1}, s{sT+1}, 2'); traddr128(WA,2,3,3,f's{sT+1}')
E(f's_lshr_b32 s{sT+1}, s{sWave}, 1\n s_lshl_b32 s{sT+1}, s{sT+1}, 13\n v_add_u32 v{WA}, s{sT+1}, v{WA}')
E(f'v_and_b32 v2, 31, v0\n v_bfe_u32 v3, v0, 1, 3\n v_lshrrev_b32 v4, 5, v0\n v_xor_b32 v3, v3, v4\n v_lshlrev_b32 v{XA}, 7, v2\n v_lshl_add_u32 v{XA}, v3, 4, v{XA}')
for s_ in range(1,4): E(f'v_xor_b32 v{XA+s_}, {s_<<5}, v{XA}')
set_vpad(list(range(AV,AV+16)),2)
E(f'v_mov_b32 v{AIDX}, 0xdddddddd')
for r in range(64): E(f'v_mov_b32 v{SA+r}, 0')
E(f's_and_b32 s{sT+1}, s{sWave}, 1\n s_lshl_b32 s{sT+1}, s{sT+1}, 11\n s_add_u32 s{sT+1}, s{sT+1}, 0x10000\n v_lshlrev_b32 v6, 4, v0\n v_add_u32 v{AKA}, s{sT+1}, v6')
E(f'v_lshrrev_b32 v7, 5, v0\n v_lshlrev_b32 v7, 8, v7\n v_and_b32 v2, 15, v0\n v_lshl_add_u32 v7, v2, 4, v7\n v_add_u32 v{AVA}, s{sT+1}, v7')
E(f's_mov_b32 s{sT+2}, 0\n s_waitcnt lgkmcnt(0)')
mktag()
E(f's_cmp_ge_u32 s{sWave}, 6\n s_cbranch_scc1 L_A_GV')
def areads(s):
    f=AF+12*s
    E(f'ds_read_b64_tr_b16 {vr(f,2)}, v{WA} offset:{s*2048}\n ds_read_b64_tr_b16 {vr(f+2,2)}, v{WA} offset:{s*2048+512}')
    for t in range(2): E(f'ds_read_b128 {vr(f+4+4*t,4)}, v{XA+s} offset:{32768+4096*t}')
for var in (0,1):
    lp='L_A_GV' if var else 'L_A_GQ'
    LBL(lp)
    E('s_barrier')
    for s in range(3): areads(s)
    E(f's_add_u32 s{sT+2}, s{sT+2}, 1')
    E(f's_movk_i32 s{sT+3}, 0x48\n s_bitcmp1_b32 s{sT+3}, s{sT+2}\n s_mov_b32 s{sT+3}, 40960\n s_cselect_b32 s{sT+3}, {hex((-81920)&0xffffffff)}, s{sT+3}')
    for s in range(4):
        E(f's_waitcnt lgkmcnt({8 if s<2 else (4 if s==2 else 0)})')
        if s==0: areads(3)
        if s==1:
            for r in range(4): E(f'v_add_u32 v{XA+r}, s{sT+3}, v{XA+r}')
            E(f'v_add_u32 v{WA}, s{sT+3}, v{WA}')
        f=AF+12*s
        for t in range(2):
            if var==0: mfma(SA+16*t,f,f+4+4*t)
            else: mfma(SA+16*t,f+4+4*t,f)
    E(f's_cmp_lt_u32 s{sT+2}, 8\n s_cbranch_scc1 {lp}')
    if var==0:
        stamp('A',1,'proj loop done')
        E(f's_cmp_ge_u32 s{sWave}, 4\n s_cbranch_scc1 L_A_EK')
        C('---- q (A / B): scale, pack, hand over through LDS')
        E(f's_cmp_lt_u32 s{sWave}, 2\n s_mov_b32 s{sT+1}, {L_QB}\n s_cselect_b32 s{sT+1}, {L_QA}, s{sT+1}\n s_and_b32 s{sT+2}, s{sWave}, 1\n s_lshl_b32 s{sT+2}, s{sT+2}, 12\n s_add_u32 s{sT+1}, s{sT+1}, s{sT+2}\n v_add_u32 v2, s{sT+1}, v6\n s_mov_b32 s{sT+1}, {hex(CSCALE)}\n s_nop 3')
        for t in range(2):
            d=SA+16*t
            for r in range(16): E(f'v_mul_f32 v{d+r}, s{sT+1}, v{d+r}')
            for r in range(8): cvt(d+r,d+2*r,d+2*r+1)
            for hh in range(2): E(f'ds_write_b128 v2, {vr(d+4*hh,4)} offset:{2048*hh+1024*t}')
        E('s_branch L_A_B8')
        LBL('L_A_EK')
        E(f's_lshl_b32 s{sT+4}, s{sHg}, 2\n s_and_b32 s{sT+5}, s{sWave}, 1\n s_lshl_b32 s{sT+5}, s{sT+5}, 1\n s_add_u32 s{sT+4}, s{sT+4}, s{sT+5}\n s_lshl_b32 s{sT+4}, s{sT+4}, 6\n s_lshl_b32 s{sT+5}, s{sPb}, 1\n s_add_u32 s{sT+4}, s{sT+4}, s{sT+5}\n s_lshl_b32 s{sT+4}, s{sT+4}, 11\n s_add_u32 s{sT+4}, s{sT+4}, {hex(WS_KVB)}\n s_add_u32 s{sT+5}, s{sT+4}, 0x20000\n s_nop 1')
        for t in range(2):
            d=SA+16*t
            for r in range(8): cvt(d+r,d+2*r,d+2*r+1)
            for hh in range(2): E(f'buffer_store_dwordx4 {vr(d+4*hh,4)}, v6, {sr(sWS)}, s{sT+4+hh} offen offset:{2048*t} sc1')
        E('s_branch L_A_B8')
    else:
        E(f's_lshl_b32 s{sT+4}, s{sHg}, 2\n s_and_b32 s{sT+5}, s{sWave}, 1\n s_lshl_b32 s{sT+5}, s{sT+5}, 1\n s_add_u32 s{sT+4}, s{sT+4}, s{sT+5}\n s_lshl_b32 s{sT+4}, s{sT+4}, 6\n s_lshl_b32 s{sT+5}, s{sPb}, 1\n s_add_u32 s{sT+4}, s{sT+4}, s{sT+5}\n s_lshl_b32 s{sT+4}, s{sT+4}, 11\n s_add_u32 s{sT+4}, s{sT+4}, {hex(WS_KVB+1024)}')
        E('v_bfe_u32 v2, v0, 4, 1\n v_lshl_add_u32 v2, v2, 17, v7\n s_nop 1')
        for t in range(2):
            d=SA+16*t
            for r in range(8): cvt(d+r,d+2*r,d+2*r+1)
            E('s_nop 1')
            for gq in range(2): E(f'v_permlane32_swap_b32 v{d+4*gq}, v{d+4*gq+2}\n v_permlane32_swap_b32 v{d+4*gq+1}, v{d+4*gq+3}')
            for gq in range(2): E(f'buffer_store_dwordx4 {vr(d+4*gq,4)}, v2, {sr(sWS)}, s{sT+4} offen offset:{2048*t+512*gq} sc1')
LBL('L_A_B8')
E(f's_lshr_b32 s{sT+1}, s{sWave}, 2\n s_lshl_b32 s{sT+1}, s{sT+1}, 1\n s_and_b32 s{sT+2}, s{sWave}, 1\n s_add_u32 s{sT+1}, s{sT+1}, s{sT+2}\n s_lshl_b32 s{sT+1}, s{sT+1}, 11\n s_bfe_u32 s{sT+2}, s{sWave}, 0x10001\n s_lshl_b32 s{sT+2}, s{sT+2}, 10\n s_add_u32 s{sT+1}, s{sT+1}, s{sT+2}\n s_add_u32 s{sT+1}, s{sT+1}, {L_QA}\n v_add_u32 v2, s{sT+1}, v6\n v_xor_b32 v3, 0x800, v2')
E(f's_lshl_b32 s{sT+6}, s{sHg}, 5\n s_add_u32 s{sT+6}, s{sT+6}, s{sPb}\n s_lshl_b32 s{sT+6}, s{sT+6}, 7\n s_lshl_b32 s{sT+1}, s{sWave}, 2\n s_add_u32 s{sT+6}, s{sT+6}, s{sT+1}\n s_add_u32 s{sT+6}, s{sT+6}, {hex(WS_FKVB-16)}')
E('s_waitcnt lgkmcnt(0)\n s_barrier')
stamp('A',4,'B8'); cstamp('A',8,'B8')
def kvoff(j): return (KVPOS[j//4]-(65536 if j<16 else 0))+(j%4)*4096
def ldk(j): E(f'ds_read_b128 {vr(AK+4*(j&1),4)}, v{AKA} offset:{kvoff(j)}')
def ldv(j): E(f's_mov_b64 exec, {sr(sVM,2)}\n ds_read_b128 {vr(AV+8*(j&1),4)}, v{AVA} offset:{kvoff(j)+1024}\n ds_read_b128 {vr(AV+8*(j&1)+4,4)}, v{AVA} offset:{kvoff(j)+1536}\n s_mov_b64 exec, -1')
E(f'ds_read_b128 {vr(AQ0,4)}, v2\n ds_read_b128 {vr(AQ1,4)}, v3')
if PRIO=='half':
    E(f's_cmp_ge_u32 s{sWave}, 4\n s_cbranch_scc0 L_A_NP\n s_setprio 1'); LBL('L_A_NP')
ldk(0); ldv(0); ldk(1)
E('s_waitcnt lgkmcnt(3)'); mfma(SA,AK,AQ0,'0'); E('s_nop 11')
for j in range(32):
    kc=AK+4*(j&1); kn=AK+4*((j+1)&1); vc=AV+8*(j&1); vp=AV+8*((j+1)&1)
    if j==2:
        E(f's_cmp_ge_u32 s{sWave}, 4\n s_cbranch_scc0 L_A_NOFL\n s_waitcnt vmcnt(0)'); flag_store(sT+6,2); LBL('L_A_NOFL')
        E('s_waitcnt lgkmcnt(0)'); lds_spin(C_K1,None,4,vZ,2,sleep=0)
    if j==10: E('s_waitcnt lgkmcnt(0)'); lds_spin(C_K2,None,4,vZ,2,sleep=1)
    if PRIO=='half' and j==16: E('s_setprio 0')
    if PRIO=='alt': E(f's_setprio {j&1}' if False else f's_bitcmp{j&1}_b32 s{sWave}, 2\n s_cbranch_scc1 L_A_P{j}\n s_setprio 1\n s_branch L_A_Q{j}\nL_A_P{j}:\n s_setprio 0\nL_A_Q{j}:')
    if j==16: lds_add(C_MID,1,vZ,2)
    if j==28: E('s_waitcnt lgkmcnt(0)'); lds_spin(C_MID,None,8,vZ,2,sleep=1)
    extra = 1 if j==16 else 0
    vexp(SA); vexp(SA+1)
    if j>0: smf(OB,vp+4,SB+8,AIDX)
    for r in range(2,5): vexp(SA+r)
    mfma(SB,kc,AQ1,'0')
    for r in range(5,10): vexp(SA+r)
    E(f's_waitcnt lgkmcnt({(1 if j<31 else 0)+extra})')
    vexp(SA+10); smf(OA,vc,SA,AIDX)
    for r in range(11,16): vexp(SA+r)
    vexp(SB); vexp(SB+1); smf(OA,vc+4,SA+8,AIDX)
    if j==15: E(f'v_subrev_u32 v{AVA}, 0x10000, v{AVA}')
    if j<31: ldv(j+1)
    for r in range(2,5): vexp(SB+r)
    if j<31:
        E('s_waitcnt lgkmcnt(2)'); mfma(SA,kn,AQ0,'0')
    if j==14: E(f'v_subrev_u32 v{AKA}, 0x10000, v{AKA}')
    if j<30: ldk(j+2)
    for r in range(5,11): vexp(SB+r)
    smf(OB,vc,SB,AIDX)
    for r in range(11,16): vexp(SB+r)
E('s_nop 1'); smf(OB,AV+8+4,SB+8,AIDX)
stamp('A',5,'A loop done'); cstamp('A',9,'loop done')
C('---- pair exchange: send slot B, finish slot A')
E(f's_mul_i32 s{sT+1}, s{sWave}, 2304\n s_add_u32 s{sT+1}, s{sT+1}, {L_EX}\n v_add_u32 v2, s{sT+1}, v6\n v_lshlrev_b32 v3, 2, v0\n v_add_u32 v3, s{sT+1}, v3')
E(f's_xor_b32 s{sT+2}, s{sWave}, 1\n s_mul_i32 s{sT+2}, s{sT+2}, 2304\n s_add_u32 s{sT+2}, s{sT+2}, {L_EX}\n v_add_u32 v4, s{sT+2}, v6\n v_lshlrev_b32 v5, 2, v0\n v_add_u32 v5, s{sT+2}, v5\n s_nop 4')
E(f'ds_write_b128 v2, {vr(OB,4)}\n ds_write_b128 v2, {vr(OB+4,4)} offset:1024\n ds_write_b32 v3, v{OB+8} offset:2048')
E(f's_bfe_u32 s{sT+8}, s{sWave}, 0x10001\n s_lshl_b32 s{sT+9}, s{sPb}, 1\n s_add_u32 s{sT+8}, s{sT+8}, s{sT+9}\n s_lshl_b32 s{sT+8}, s{sT+8}, 5')
E(f's_lshl_b32 s{sT+9}, s{sHg}, 2\n s_add_u32 s{sT+8}, s{sT+8}, s{sT+9}\n s_lshr_b32 s{sT+9}, s{sWave}, 2\n s_lshl_b32 s{sT+9}, s{sT+9}, 1\n s_add_u32 s{sT+8}, s{sT+8}, s{sT+9}\n s_and_b32 s{sT+9}, s{sWave}, 1\n s_add_u32 s{sT+8}, s{sT+8}, s{sT+9}\n s_lshl_b32 s{sT+8}, s{sT+8}, 10\n s_add_u32 s{sT+8}, s{sT+8}, {hex(WS_OA)}')
E(f's_lshl_b32 s{sT+9}, s{sPb}, 3\n s_add_u32 s{sT+9}, s{sT+9}, s{sHg}\n s_lshl_b32 s{sT+9}, s{sT+9}, 7\n s_lshl_b32 s{sT+10}, s{sWave}, 2\n s_add_u32 s{sT+9}, s{sT+9}, s{sT+10}\n s_add_u32 s{sT+9}, s{sT+9}, {hex(WS_FOA)}')
E('s_waitcnt lgkmcnt(0)\n s_barrier')
E(f'ds_read_b128 {vr(SA,4)}, v4\n ds_read_b128 {vr(SA+4,4)}, v4 offset:1024\n ds_read_b32 v{SA+8}, v5 offset:2048\n s_waitcnt lgkmcnt(0)')
for r in range(9): E(f'v_add_f32 v{OA+r}, v{OA+r}, v{SA+r}')
finalize(OA,AK,2,'L_FB_A','L_FB_A_BACK')
E(f'buffer_store_dwordx4 {vr(AK,4)}, v6, {sr(sWS)}, s{sT+8} offen sc1\n s_waitcnt vmcnt(0)')
flag_store(sT+9,2)
def setupA(): E(f's_mov_b32 s{sT+2}, {hex(WS_KVA)}\n s_mov_b32 s{sT+3}, 64')
fallback('L_FB_A','L_FB_A_BACK',AQ0,OA,SA,AK,AV,AIDX,3,6,7,None,setupA)
stamp('A',6,'oA published')
stamp_flush(12)
LBL('L_END')
E('s_endpgm')
L.extend(TAIL)

hdr=open('cdna_kernels/%s.s.ref'%NAME).read().split('; Override launch')[0]
txt=hdr
txt+=f'; @launch grid=(256,1,1) block=(768,1,1) lds={LDS_TOTAL}\n'
for n in ('WS_KVA','WS_KVB','WS_OA','WS_OB','WS_STAMP','NSTAMP'): txt+=f'; CONST {n} = {hex(globals()[n])}\n'
for r,i,n in STN: txt+=f'; STAMPNAME {r} {i} {n}\n'
txt+=f'''.amdgcn_target "amdgcn-amd-amdhsa--gfx950"
.text
.globl {NAME}_kernel
.p2align 8
.type {NAME}_kernel,@function
{NAME}_kernel:
'''+'\n'.join(L)+f'''
.section .rodata,"a"
.p2align 6
.amdhsa_kernel {NAME}_kernel
  .amdhsa_next_free_vgpr 168
  .amdhsa_next_free_sgpr 102
  .amdhsa_accum_offset 168
  .amdhsa_group_segment_fixed_size 0
  .amdhsa_kernarg_size 96
  .amdhsa_user_sgpr_count 2
  .amdhsa_user_sgpr_kernarg_segment_ptr 1
  .amdhsa_system_sgpr_workgroup_id_x 1
.end_amdhsa_kernel
'''
open(OUT,'w').write(txt)
print('wrote',OUT,len(L),'lines')
```

```python
import sys, math, struct
NAME='gated_mix__grouped_kv_mqa__sliding_block__prompt'
DIAG = '--diag' in sys.argv
OUT = [a for a in sys.argv[1:] if not a.startswith('--')]
OUT = OUT[0] if OUT else 'cdna_kernels/%s.s'%NAME
OPT=dict(a.lstrip('-').split('=') for a in sys.argv[1:] if a.startswith('--') and '=' in a)
MAP=OPT.get('map','c'); ROT=OPT.get('rot','full'); PRIO=OPT.get('prio','step'); FLAG_IT=int(OPT.get('flagit','1')); PK=int(OPT.get('pk','8')); FORCE_K=int(OPT.get('forcek','6')); SENTK=int(OPT.get('sentk','14')); DENSE=OPT.get('dense','0')=='1'; ROLL=OPT.get('roll','0')=='1'; WT=OPT.get('wtouch','0')=='1'; KVK=int(OPT.get('kvk','13'))
def f2u(f): return struct.unpack('<I',struct.pack('<f',f))[0]

WS_EPOCH=0x0
WS_FKVA=0x1000
WS_FKVB=0x4000
WS_FOB =0xC000
WS_FOA =0x14000
WS_G   =0x1C000
WS_KVA =0x20000
WS_QB  =0x40000
WS_KVB =0x240000
WS_OA  =0x640000
WS_OB  =0x840000
WS_STAMP=0xA40000
NSTAMP=16
L_WQ=0; L_X=65536; L_ST=131072; L_CTL=L_ST+30720
L_GW=L_CTL; L_G=L_CTL+1024; L_C=L_CTL+1024+256
C_X=L_C+0
C_Q=L_C+4
C_K0=L_C+8; C_K1=L_C+12; C_K2=L_C+16; C_BP=L_C+20; C_MID=L_C+24; C_WO=L_C+28; C_WD=L_C+32; C_FL=L_C+36
L_EX=L_ST
LDS_TOTAL=163840
SPIN_LIMIT=50000
CSCALE=f2u(0.25*math.log2(math.e))
NEGBIG=f2u(-1e9)
L_LO=f2u(2.0**-24); L_HI=f2u(2.0**60)

sX=28; sWQ=32; sWKV=36; sWB=40; sWOA=44; sWOB=48; sG=52; sOUT=56; sWS=60; sDBG=64
sWave=68; sPb=69; sHg=70; sTag=71
sT=72
sCnt=84; sB=85
sVM=86
sST=88
L=[]
def E(s):
    for ln in s.split('\n'):
        if ln.strip(): L.append('    '+ln.strip())
def LBL(s): L.append(s+':')
def C(s): L.append('    ; '+s)
_uid=[0]
def uid(p):
    _uid[0]+=1; return f'{p}_{_uid[0]}'
def vr(a,n): return f'v[{a}:{a+n-1}]'
def sr(a,n=4): return f's[{a}:{a+n-1}]'
def srd(dst,ptr,nbytes):
    E(f's_mov_b32 s{dst}, s{ptr}\n s_mov_b32 s{dst+1}, s{ptr+1}\n s_mov_b32 s{dst+2}, {hex(nbytes)}\n s_mov_b32 s{dst+3}, 0x20000')
STN=[]
def stamp(role,i,name):
    if OPT.get('jst') and role=='A' and i in (1,2,3,7): return
    if OPT.get('bst') and role=='B' and i in (6,7,8,9) and not (name.startswith('arrive') or name=='Bp'): return
    if not DIAG: return
    STN.append((role,i,name))
    E(f's_memrealtime s[100:101]\n s_waitcnt lgkmcnt(0)\n s_mov_b32 s{sST+i}, s100')
def cstamp(role,i,name):
    if OPT.get('jst') and i in (10,11) and not name.startswith('J'): return
    if not DIAG: return
    STN.append((role,i,'CYC '+name))
    E(f's_memtime s[100:101]\n s_waitcnt lgkmcnt(0)\n s_mov_b32 s{sST+i}, s100')
def tacc(role,i,name,code):
    if not (DIAG and OPT.get('acc')): E(code); return
    if (role,i,'ACC '+name) not in STN: STN.append((role,i,'ACC '+name))
    E(f's_memtime s[100:101]\n s_waitcnt lgkmcnt(0)\n s_sub_u32 s{sST+i}, s{sST+i}, s100')
    E(code)
    E(f's_memtime s[100:101]\n s_waitcnt lgkmcnt(0)\n s_add_u32 s{sST+i}, s{sST+i}, s100')
def stamp_flush(nmax):
    if not DIAG: return
    if OPT.get('hwid'): E(f's_getreg_b32 s{sST+11}, hwreg(HW_REG_HW_ID)\n s_getreg_b32 s{sST+10}, hwreg(HW_REG_XCC_ID)')
    E('v_mov_b32 v2, 0')
    for i in range(nmax): E(f'v_writelane_b32 v2, s{sST+i}, {i}')
    E(f's_mul_i32 s{sT}, s2, 12\n s_add_u32 s{sT}, s{sT}, s{sWave}\n s_lshl_b32 s{sT}, s{sT}, 6\n s_add_u32 s{sT}, s{sT}, {hex(WS_STAMP)}')
    E(f'v_lshlrev_b32 v3, 2, v0\n s_mov_b64 exec, 0xffff\n buffer_store_dword v2, v3, {sr(sWS)}, s{sT} offen\n s_mov_b64 exec, -1')

def lds_add(off,val,vz,vt):
    E(f'v_mov_b32 v{vt}, {val}\n s_mov_b64 exec, 1\n ds_add_u32 v{vz}, v{vt} offset:{off-L_ST}\n s_mov_b64 exec, -1')
def lds_spin(off,mask,val,vz,vt,sleep=1):
    a=uid('spin'); d=uid('spind')
    E(f's_mov_b32 s{sCnt}, {SPIN_LIMIT}')
    LBL(a)
    E(f'ds_read_b32 v{vt}, v{vz} offset:{off-L_ST}\n s_waitcnt lgkmcnt(0)\n v_readfirstlane_b32 s{sT}, v{vt}')
    if mask is not None: E(f's_and_b32 s{sT}, s{sT}, {hex(mask)}')
    E(f's_cmp_eq_u32 s{sT}, {hex(val)}\n s_cbranch_scc1 {d}\n s_sub_u32 s{sCnt}, s{sCnt}, 1\n s_cbranch_scc1 {d}')
    if sleep: E(f's_sleep {sleep}')
    E(f's_branch {a}')
    LBL(d)
def poll(vaddr,n,vt,sleep=1):
    a=uid('poll'); d=uid('polld')
    E(f's_mov_b32 s{sCnt}, {SPIN_LIMIT}')
    LBL(a)
    op={1:'buffer_load_dword',3:'buffer_load_dwordx3',4:'buffer_load_dwordx4'}[n]
    E(f'{op} {vr(vt,n) if n>1 else "v%d"%vt}, v{vaddr}, {sr(sWS)}, 0 offen sc1\n s_waitcnt vmcnt(0)')
    for i in range(n): E(f'v_xor_b32 v{vt+i}, s{sTag}, v{vt+i}')
    if n>=3: E(f'v_or3_b32 v{vt}, v{vt}, v{vt+1}, v{vt+2}')
    if n==4: E(f'v_or_b32 v{vt}, v{vt}, v{vt+3}')
    E(f'v_cmp_ne_u32 vcc, 0, v{vt}\n s_cbranch_vccz {d}\n s_sub_u32 s{sCnt}, s{sCnt}, 1\n s_cbranch_scc1 {d}')
    if sleep: E(f's_sleep {sleep}')
    E(f's_branch {a}')
    LBL(d)
def flag_store(soff_reg,vt):
    E(f'v_mov_b32 v{vt}, s{sTag}\n s_mov_b64 exec, 1\n buffer_store_dword v{vt}, off, {sr(sWS)}, s{soff_reg} sc1\n s_mov_b64 exec, -1')
def mfma(d,a,b,c=None):
    cc = vr(d,16) if c is None else (c if isinstance(c,str) else vr(c,16))
    E(f'v_mfma_f32_32x32x16_bf16 {vr(d,16)}, {vr(a,4)}, {vr(b,4)}, {cc}')
def smf(o,v,s,idx): E(f'v_smfmac_f32_32x32x32_bf16 {vr(o,16)}, {vr(v,4)}, {vr(s,8)}, v{idx}')
def vexp(r): E(f'v_exp_f32 v{r}, v{r}')
def cvt(d,a,b): E(f'v_cvt_pk_bf16_f32 v{d}, v{a}, v{b}')
def set_vpad(regs,vt):
    E(f'v_and_b32 v{vt}, 27, v0\n v_cmp_eq_u32 vcc, 16, v{vt}\n v_mov_b32 v{vt}, 0x3f803f80\n s_nop 0\n v_cndmask_b32 v{regs[0]}, 0, v{vt}, vcc')
    for r in regs[1:]: E(f'v_mov_b32 v{r}, v{regs[0]}')
def xaddr(base,t_imm,vt):
    E(f'v_and_b32 v{vt}, 15, v0\n v_lshrrev_b32 v{base}, 5, v0\n v_xor_b32 v{base}, v{base}, v{vt}\n v_lshlrev_b32 v{base}, 4, v{base}')
    E(f'v_and_b32 v{vt}, 31, v0\n v_lshl_add_u32 v{base}, v{vt}, 10, v{base}\n v_add_u32 v{base}, {t_imm}, v{base}')
    for b in range(1,8): E(f'v_xor_b32 v{base+b}, {b<<5}, v{base}')
def traddr128(dst,vt,vt2,rowsel,colbase):
    E(f'v_lshrrev_b32 v{vt}, 5, v0\n v_lshlrev_b32 v{vt}, {rowsel}, v{vt}\n v_bfe_u32 v{vt2}, v0, 2, 2\n v_add_u32 v{vt}, v{vt}, v{vt2}\n v_lshlrev_b32 v{dst}, 7, v{vt}')
    E(f'v_bfe_u32 v{vt}, v0, 4, 1\n v_lshlrev_b32 v{vt}, 1, v{vt}\n v_bfe_u32 v{vt2}, v0, 1, 1\n v_add3_u32 v{vt}, v{vt}, v{vt2}, {colbase}')
    E(f'v_bfe_u32 v{vt2}, v0, 3, 1\n v_lshlrev_b32 v{vt2}, 2, v{vt2}\n v_xor_b32 v{vt}, v{vt}, v{vt2}\n v_lshl_add_u32 v{dst}, v{vt}, 4, v{dst}')
    E(f'v_and_b32 v{vt}, 1, v0\n v_lshl_add_u32 v{dst}, v{vt}, 3, v{dst}')
def dma128_voff(dst,vt,vt2,rowstride_sreg_or_shift,colbytes):
    E(f'v_lshrrev_b32 v{vt}, 3, v0')
    if isinstance(rowstride_sreg_or_shift,int): E(f'v_lshlrev_b32 v{dst}, {rowstride_sreg_or_shift}, v{vt}')
    else: E(f'v_mul_u32_u24 v{dst}, {rowstride_sreg_or_shift}, v{vt}')
    E(f'v_bfe_u32 v{vt}, v0, 4, 1\n v_lshlrev_b32 v{vt}, 2, v{vt}\n v_and_b32 v{vt2}, 7, v0\n v_xor_b32 v{vt}, v{vt}, v{vt2}\n v_lshl_add_u32 v{dst}, v{vt}, 4, v{dst}\n v_add_u32 v{dst}, {colbytes}, v{dst}')
def finalize(O,dst,vt,lbl_fb,lbl_back):
    E(f'v_add_f32 v{vt}, |v{O}|, |v{O+1}|')
    for r in range(2,8): E(f'v_add_f32 v{vt}, v{vt}, |v{O+r}|')
    E(f'v_mov_b32 v{vt+1}, 0x7f800000\n v_cmp_nlt_f32 {sr(sT,2)}, v{vt}, v{vt+1}')
    E(f'v_cmp_nle_f32 vcc, {hex(L_LO)}, v{O+8}\n s_or_b64 {sr(sT,2)}, {sr(sT,2)}, vcc')
    E(f'v_cmp_nge_f32 vcc, {hex(L_HI)}, v{O+8}\n s_or_b64 {sr(sT,2)}, {sr(sT,2)}, vcc\n s_cbranch_scc1 {lbl_fb}')
    LBL(lbl_back)
    E(f'v_rcp_f32 v{vt}, v{O+8}\n s_nop 0')
    for r in range(8): E(f'v_mul_f32 v{O+r}, v{O+r}, v{vt}')
    for r in range(4): cvt(dst+r,O+2*r,O+2*r+1)
    E(f'v_min_u32 v{dst}, -2, v{dst}')

TAIL=[]
RETRY=[]
def fallback(lbl,back,Q,O,S,K,V,IDX,vM,vK,vV,ntile,soff_setup,first_mask=None,last_mask=None,first_cond=None):
    global L
    save=L; L=[]
    LBL(lbl)
    soff_setup()
    E(f'v_mov_b32 v{vM}, 0xff800000')
    for p in (0,1):
        lp=uid('fbl')
        if p==1:
            E(f'v_mov_b32 v{S}, v{vM}\n s_nop 1\n v_permlane32_swap_b32 v{S}, v{vM}\n s_nop 1\n v_max_f32 v{vM}, v{vM}, v{S}')
            for r in range(16): E(f'v_mov_b32 v{O+r}, 0')
        E(f's_mov_b32 s{sT+5}, s{sT+2}\n s_mov_b32 s{sT+6}, 0')
        LBL(lp)
        E(f'buffer_load_dwordx4 {vr(K,4)}, v{vK}, {sr(sWS)}, s{sT+5} offen sc1')
        if p==1:
            E(f's_mov_b64 exec, {sr(sVM,2)}\n buffer_load_dwordx4 {vr(V,4)}, v{vV}, {sr(sWS)}, s{sT+5} offen offset:1024 sc1\n buffer_load_dwordx4 {vr(V+4,4)}, v{vV}, {sr(sWS)}, s{sT+5} offen offset:1536 sc1\n s_mov_b64 exec, -1')
        E('s_waitcnt vmcnt(0)')
        if first_mask is None:
            mfma(S,K,Q,'0')
        else:
            a=uid('fbm'); b=uid('fbm'); j=uid('fbm')
            E(f's_add_u32 s{sT+7}, s{sT+6}, 1\n s_cmp_eq_u32 s{sT+7}, s{sT+3}\n s_cbranch_scc1 {a}')
            E(f's_cmp_lt_u32 s{sT+6}, s{sT+4}\n s_cbranch_scc1 {b}')
            mfma(S,K,Q,'0'); E(f's_branch {j}')
            LBL(a); mfma(S,K,Q,last_mask); E(f's_branch {j}')
            LBL(b); mfma(S,K,Q,first_mask)
            LBL(j)
        E('s_nop 15')
        if p==0:
            for r in range(0,16,2): E(f'v_max3_f32 v{vM}, v{S+r}, v{S+r+1}, v{vM}')
        else:
            for r in range(16): E(f'v_sub_f32 v{S+r}, v{S+r}, v{vM}')
            for r in range(16): vexp(S+r)
            E('s_nop 1'); smf(O,V,S,IDX); smf(O,V+4,S+8,IDX)
        E(f's_add_u32 s{sT+5}, s{sT+5}, 2048\n s_add_u32 s{sT+6}, s{sT+6}, 1\n s_cmp_lt_u32 s{sT+6}, s{sT+3}\n s_cbranch_scc1 {lp}')
    E(f's_nop 15\n s_branch {back}')
    TAIL.extend(L); L=save

E('s_cmp_ge_u32 s2, 256\n s_cbranch_scc1 L_END')
E('s_load_dwordx16 s[4:19], s[0:1], 0\n s_load_dwordx8 s[20:27], s[0:1], 64')
E(f'v_lshrrev_b32 v1, 6, v0\n v_and_b32 v0, 63, v0\n v_readfirstlane_b32 s{sWave}, v1')
if MAP=='b':
    E(f's_and_b32 s{sT}, s2, 7\n s_lshr_b32 s{sT+1}, s2, 3\n s_and_b32 s{sT+2}, s{sT+1}, 3\n s_lshl_b32 s{sPb}, s{sT}, 2\n s_or_b32 s{sPb}, s{sPb}, s{sT+2}\n s_lshr_b32 s{sHg}, s{sT+1}, 2')
else:
    E(f's_bfe_u32 s{sPb}, s2, 0x20001\n s_lshl_b32 s{sPb}, s{sPb}, 3\n s_bfe_u32 s{sT}, s2, 0x30003\n s_or_b32 s{sPb}, s{sPb}, s{sT}\n s_and_b32 s{sHg}, s2, 1\n s_lshl_b32 s{sHg}, s{sHg}, 2\n s_lshr_b32 s{sT}, s2, 6\n s_or_b32 s{sHg}, s{sHg}, s{sT}')
E(f's_mov_b32 s{sVM}, 0xffff\n s_mov_b32 s{sVM+1}, 0xffff')
if DIAG:
    for i in range(12): E(f's_mov_b32 s{sST+i}, 0')
E('s_waitcnt lgkmcnt(0)')
stamp('A',0,'start'); stamp('B',0,'start')
E(f's_load_dword s{sTag}, s[26:27], {WS_EPOCH}')
srd(sX,4,2048*1024); srd(sWS,26,0x10000000)
E(f's_cmp_lt_u32 s{sWave}, 8\n s_cbranch_scc1 L_A')


vZ=1
SLOTB=20480; NSL=6
KVPOS=[81920,98304,114688,65536,0,16384,32768,49152]
L_PART=L_ST+16384
L_QA=L_ST; L_QB=L_ST+18432; L_WO=65536
sRot=sT+11; sStr=sT+10; sJ3=sT+9
def mktag(): E(f's_mul_i32 s{sTag}, s{sTag}, 0x9E3779B1\n s_add_u32 s{sTag}, s{sTag}, 0x7F4A7C15')
def touch(srd_,soff,n,vaddr,vd,sc1=False):
    for i in range(n):
        if i: E(f's_add_u32 s{soff}, s{soff}, 8192')
        E(f'buffer_load_dword v{vd}, v{vaddr}, {sr(srd_)}, s{soff} offen'+(' sc1' if sc1 else ''))
E(f's_setprio 3\n s_sub_u32 s{sB}, s{sWave}, 8')
C('---- loader set-up: wave b streams matrix b (wq | B q | B k | B v : 64 columns) and x rows 16b..16b+15, 32 k per chunk')
E(f's_cmp_eq_u32 s{sB}, 0\n s_cselect_b32 s{sWB}, s6, s16\n s_cselect_b32 s{sWB+1}, s7, s17\n s_mov_b32 s{sWB+2}, {512*3072}\n s_cselect_b32 s{sWB+2}, {512*1024}, s{sWB+2}\n s_mov_b32 s{sWB+3}, 0x20000')
E(f's_movk_i32 s{sStr}, 3072\n s_cselect_b32 s{sStr}, 0x400, s{sStr}\n s_max_u32 s{sT+1}, s{sB}, 1\n s_sub_u32 s{sT+1}, s{sT+1}, 1\n s_lshl_b32 s{sT+1}, s{sT+1}, 10\n s_lshl_b32 s{sT+2}, s{sHg}, 7\n s_add_u32 s{sT+1}, s{sT+1}, s{sT+2}')
dma128_voff(16,2,3,f's{sStr}',f's{sT+1}')
E('v_lshrrev_b32 v17, 3, v0\n v_lshlrev_b32 v17, 10, v17\n v_lshrrev_b32 v2, 4, v0\n v_and_b32 v3, 7, v0\n v_xor_b32 v2, v2, v3\n v_lshl_add_u32 v17, v2, 4, v17\n v_xor_b32 v18, 64, v17')
FIX0 = ROT=='r7'
if ROT=='r7':
    if MAP=='b': E(f's_and_b32 s{sRot}, s{sPb}, 3\n s_lshl_b32 s{sRot}, s{sRot}, 1\n s_add_u32 s{sRot}, s{sRot}, s{sHg}')
    else: E(f's_and_b32 s{sRot}, s{sHg}, 3\n s_lshl_b32 s{sRot}, s{sRot}, 1\n s_and_b32 s{sT+1}, s{sPb}, 7\n s_add_u32 s{sRot}, s{sRot}, s{sT+1}')
    E(f's_cmp_ge_u32 s{sRot}, 7\n s_cselect_b32 s{sT+1}, 7, 0\n s_sub_u32 s{sRot}, s{sRot}, s{sT+1}')
elif ROT=='full' and MAP=='b': E(f's_and_b32 s{sRot}, s{sPb}, 3\n s_lshl_b32 s{sRot}, s{sRot}, 1\n s_add_u32 s{sRot}, s{sRot}, s{sHg}\n s_lshl_b32 s{sRot}, s{sRot}, 1')
elif ROT=='full': E(f's_lshl_b32 s{sRot}, s{sHg}, 1\n s_add_u32 s{sRot}, s{sRot}, s{sPb}\n s_lshl_b32 s{sRot}, s{sRot}, 1')
elif ROT=='two': E(f's_xor_b32 s{sRot}, s{sPb}, s{sHg}\n s_and_b32 s{sRot}, s{sRot}, 1\n s_lshl_b32 s{sRot}, s{sRot}, 3')
else: E(f's_mov_b32 s{sRot}, 0')
E(f's_lshl_b32 s{sStr}, s{sStr}, 3')
E(f's_lshl_b32 s{sT+7}, s{sPb}, 2\n s_add_u32 s{sT+7}, s{sT+7}, s{sB}\n s_lshl_b32 s{sT+7}, s{sT+7}, 14\n s_lshl_b32 s{sT+8}, s{sB}, 12\n s_lshl_b32 s{sT+6}, s{sB}, 11')
VQ=[]
def vwait(tag,extra=''):
    if tag not in VQ: return
    i=max(n for n,t in enumerate(VQ) if t==tag)
    n=len(VQ)-1-i; del VQ[:i+1]
    E(f's_waitcnt vmcnt({n})'+extra)
def cdma(j):
    pb_=40960*((j//2)%3)
    if FIX0 and j<2: E(f's_mov_b32 s{sT+1}, {j}')
    elif FIX0: E(f's_add_u32 s{sT+1}, s{sRot}, {j//2}\n s_cmp_ge_u32 s{sT+1}, 8\n s_cselect_b32 s{sT+2}, 7, 0\n s_sub_u32 s{sT+1}, s{sT+1}, s{sT+2}\n s_lshl_b32 s{sT+1}, s{sT+1}, 1\n s_add_u32 s{sT+1}, s{sT+1}, {j&1}')
    else: E(f's_add_u32 s{sT+1}, s{sRot}, {j}\n s_and_b32 s{sT+1}, s{sT+1}, 15')
    if j&1:
        E(f's_lshr_b32 s{sT+2}, s{sT+1}, 1\n s_lshl_b32 s{sT+2}, s{sT+2}, 7\n s_add_u32 m0, s{sT+6}, {pb_+32768}\n s_add_u32 s{sT+2}, s{sT+2}, s{sT+7}')
        E(f'buffer_load_dwordx4 v17, {sr(sX)}, s{sT+2} offen lds\n s_add_u32 m0, s{sT+6}, {pb_+32768+1024}\n s_add_u32 s{sT+2}, s{sT+2}, 8192\n buffer_load_dwordx4 v18, {sr(sX)}, s{sT+2} offen lds')
        VQ.extend([f'c{j-1}']*2)
    E(f's_lshl_b32 s{sT+1}, s{sT+1}, 2\n s_mul_i32 s{sT+1}, s{sT+1}, s{sStr}')
    for n in range(4):
        E(f's_add_u32 m0, s{sT+8}, {pb_+16384*(j&1)+1024*n}')
        if n: E(f's_add_u32 s{sT+1}, s{sT+1}, s{sStr}')
        else: E('s_nop 0')
        E(f'buffer_load_dwordx4 v16, {sr(sWB)}, s{sT+1} offen lds')
    VQ.extend([f'c{j}']*4)
NINIT=int(OPT.get('ninit','3' if WT else '2'))
if WT: E('s_barrier'); stamp('B',9,'Bp') if OPT.get('bst') else None
for j in range(NINIT): cdma(j)
MU=128; MD=144; BQ=16; BK=24; BV=36; BS=64; BO=96; BIDX=60
E(f'v_mov_b32 v{vZ}, {L_ST}\n v_lshlrev_b32 v160, 4, v0\n v_lshlrev_b32 v163, 7, v0\n v_add_u32 v19, {hex(WS_FKVA)}, v{160 if DENSE else 163}\n s_waitcnt lgkmcnt(0)')
mktag()
vwait('c1'); E('s_barrier')
for j in range(NINIT,6): cdma(j)
def bconst(k):
    if k==0:
        E('v_lshrrev_b32 v161, 5, v0\n v_lshlrev_b32 v161, 8, v161\n v_and_b32 v2, 15, v0\n v_lshl_add_u32 v161, v2, 4, v161')
        srd(sWOA,12,512*1024); srd(sWOB,18,512*1024)
        E(f'v_and_b32 v4, 31, v0\n v_lshrrev_b32 v3, 5, v0\n v_lshlrev_b32 v3, 2, v3\n v_sub_u32 v4, v4, v3')
    if 1<=k<=4:
        E(f's_mov_b32 s{sT}, {hex(NEGBIG)}')
        for r in range(4*k-4,4*k):
            E(f'v_subrev_u32 v3, {8*(r//4)+r%4}, v4\n v_ashrrev_i32 v3, 31, v3\n v_and_b32 v{MD+r}, s{sT}, v3\n v_xor_b32 v{MU+r}, s{sT}, v{MD+r}')
    if k==5:
        set_vpad(list(range(BV,BV+24)),2); E(f'v_mov_b32 v{BIDX}, 0xdddddddd')
    if k==6:
        for r in range(32): E(f'v_mov_b32 v{BO+r}, 0')
    if k==8:
        E(f'v_and_b32 v2, 7, v0\n v_lshlrev_b32 v2, 5, v2\n v_add_u32 v2, s{sPb}, v2\n v_lshlrev_b32 v2, 7, v2\n v_and_b32 v3, 8, v0\n v_lshl_add_u32 v2, v3, 1, v2\n v_add_u32 v166, {hex(WS_FKVB)}, v2')
    if k==7:
        E(f'v_min_u32 v2, 4, v0\n s_sub_i32 s{sT}, s{sPb}, 4\n v_add_u32 v2, s{sT}, v2\n v_max_i32 v2, 0, v2\n s_lshl_b32 s{sT}, s{sHg}, 5\n v_add_u32 v2, s{sT}, v2\n v_lshlrev_b32 v2, 7, v2\n v_add_u32 v162, {hex(WS_FKVB+16)}, v2')
def kvdma(c):
    E(f's_lshr_b32 s{sT+1}, s2, 3\n s_add_u32 s{sT+1}, s{sT+1}, {c}\n s_and_b32 s{sT+1}, s{sT+1}, 3\n s_lshl_b32 s{sT+1}, s{sT+1}, 2\n s_add_u32 s{sT+1}, s{sT+1}, s{sB}\n s_lshl_b32 s{sT+1}, s{sT+1}, 12')
    E(f's_lshl_b32 s{sT+2}, s{sB}, 12\n s_add_u32 m0, s{sT+2}, {KVPOS[c]}\n s_add_u32 s{sT+1}, s{sT+1}, {hex(WS_KVA+(65536 if c>=4 else 0))}')
    for i in range(4): E(f'buffer_load_dwordx4 v160, {sr(sWS)}, s{sT+1} offen offset:{1024*i} sc1 lds')
    VQ.extend([f'kv{c}']*4)
for k in range(KVK+1):
    n0=len(L); vwait(f'c{k+2}' if k<KVK else 'c15')
    if len(L)>n0: w_=L.pop(); tacc('B',3,'B vm wait',w_)
    if OPT.get('bst') and k in (0,2,5,8,KVK): stamp('B',{0:1,2:3,5:6,8:7,KVK:8}[k],f'arrive B{k}')
    tacc('B',1,'B barrier wait','s_barrier')
    if k+6<=15: cdma(k+6)
    bconst(k)
    if k==KVK:
        E(f'ds_read_b32 v2, v{vZ} offset:{C_FL-L_ST}\n s_waitcnt lgkmcnt(0)\n v_readfirstlane_b32 s{sT}, v2\n s_cmp_lg_u32 s{sT}, 0\n s_cbranch_scc1 L_B_SEEN')
        poll(19,4,12,sleep=1)
        LBL('L_B_SEEN')
        stamp('B',4,'kvA flags seen')
        E(f's_lshl_b32 s{sT}, s2, 2\n s_add_u32 s{sT}, s{sT}, s{sB}\n s_cmp_eq_u32 s{sT}, 0\n s_cbranch_scc0 L_B_NOBUMP')
        flag_store(sT,2)
        LBL('L_B_NOBUMP')
        for c in range(3): kvdma(c)
stamp('B',1,'kv issued'); vwait('kv0'); stamp('B',3,'kv0 landed'); E('s_barrier')
stamp('B',5,'BQ')
vwait('kv2')
lds_add(C_K1,1,vZ,2)
stamp('B',2,'kv2 landed')
for c in range(3,8):
    kvdma(c)
    if c<7: vwait(f'kv{c}')
E(f's_lshl_b32 s{sT}, s{sB}, 11\n s_add_u32 s{sT}, s{sT}, {L_QB}\n v_add_u32 v2, s{sT}, v160')
for t in range(2): E(f'ds_read_b128 {vr(BQ+4*t,4)}, v2 offset:{1024*t}')
E('s_waitcnt vmcnt(0)')
lds_add(C_K2,1,vZ,2)
if OPT.get('nob'): stamp_flush(12); E('s_endpgm')
if MAP=='b':
    E(f's_cmp_ge_u32 s{sB}, 2\n s_cbranch_scc0 L_B_NOT\n s_lshr_b32 s{sT+1}, s2, 3\n s_lshl_b32 s{sT+1}, s{sT+1}, 14\n s_and_b32 s{sT+2}, s{sB}, 1\n s_lshl_b32 s{sT+2}, s{sT+2}, 13\n s_add_u32 s{sT+1}, s{sT+1}, s{sT+2}')
    touch(sWOB,sT+1,1,163,3); touch(sWOA,sT+1,1,163,3)
else:
    E(f's_cmp_eq_u32 s{sB}, 2\n s_cbranch_scc0 L_B_NOT\n s_lshr_b32 s{sT+1}, s2, 3\n s_lshl_b32 s{sT+1}, s{sT+1}, 14\n s_and_b32 s{sT+2}, s2, 1\n s_lshl_b32 s{sT+2}, s{sT+2}, 9\n s_add_u32 s{sT+1}, s{sT+1}, s{sT+2}')
    E('v_lshrrev_b32 v2, 2, v0\n v_lshlrev_b32 v2, 10, v2\n v_and_b32 v3, 3, v0\n v_lshl_add_u32 v2, v3, 7, v2')
    touch(sWOB,sT+1,1,2,3); touch(sWOA,sT+1,1,2,4)
LBL('L_B_NOT')
poll(166,4,4,sleep=3)
poll(162,4,4,sleep=3)
stamp('B',6,'kvB flags seen')
C('---- window attention, head 4hg+b, two query tiles')
E(f's_lshl_b32 s{sT+8}, s{sHg}, 2\n s_add_u32 s{sT+8}, s{sT+8}, s{sB}\n s_lshl_b32 s{sT+8}, s{sT+8}, 6\n s_lshl_b32 s{sT+9}, s{sPb}, 1\n s_sub_i32 s{sT+9}, s{sT+9}, 8')
def btile(j): E(f's_add_i32 s{sT}, s{sT+9}, {j}\n s_max_i32 s{sT}, s{sT}, 0\n s_add_u32 s{sT}, s{sT}, s{sT+8}\n s_lshl_b32 s{sT}, s{sT}, 11\n s_add_u32 s{sT}, s{sT}, {hex(WS_KVB)}')
def bload(j):
    k=BK+4*(j%3); v=BV+8*(j%3)
    btile(j)
    E(f'buffer_load_dwordx4 {vr(k,4)}, v160, {sr(sWS)}, s{sT} offen sc1\n s_mov_b64 exec, {sr(sVM,2)}')
    E(f'buffer_load_dwordx4 {vr(v,4)}, v161, {sr(sWS)}, s{sT} offen offset:1024 sc1\n buffer_load_dwordx4 {vr(v+4,4)}, v161, {sr(sWS)}, s{sT} offen offset:1536 sc1\n s_mov_b64 exec, -1')
bload(0); bload(1)
for j in (2,6):
    E(f's_add_i32 s{sT}, s{sT+9}, {j}\n s_max_i32 s{sT}, s{sT}, 0\n s_add_i32 s{sT+1}, s{sT+9}, 6\n s_min_i32 s{sT}, s{sT}, s{sT+1}\n s_cmp_lt_i32 s{sT}, 0')
    sk=uid('tk'); E(f's_cbranch_scc1 {sk}\n s_add_u32 s{sT}, s{sT}, s{sT+8}\n s_lshl_b32 s{sT}, s{sT}, 11\n s_add_u32 s{sT}, s{sT}, {hex(WS_KVB)}')
    E(f'buffer_load_dword v3, v163, {sr(sWS)}, s{sT} offen sc1'); LBL(sk)
E('s_waitcnt lgkmcnt(0)')
for j in range(10):
    k=BK+4*(j%3); v=BV+8*(j%3)
    if j+2<10: bload(j+2)
    E(f's_waitcnt vmcnt({3*min(2,9-j)})')
    sk=uid('bskip')
    if j<8: E(f's_cmp_lt_i32 s{sT+9}, {-j}\n s_cbranch_scc1 {sk}')
    qs=[q for q in (0,1) if 0<=j-q<=8]
    for q in qs: mfma(BS+16*q,k,BQ+4*q,{0:MU,8:MD}.get(j-q,'0'))
    E('s_nop 10' if len(qs)==2 else 's_nop 11')
    for q in qs:
        S=BS+16*q; O=BO+16*q
        for r in range(10): vexp(S+r)
        smf(O,v,S,BIDX)
        for r in range(10,16): vexp(S+r)
        E('s_nop 1'); smf(O,v+4,S+8,BIDX)
    if j<8: LBL(sk)
E(f's_lshl_b32 s{sT+10}, s{sPb}, 6\n s_lshl_b32 s{sT+11}, s{sHg}, 2\n s_add_u32 s{sT+10}, s{sT+10}, s{sT+11}\n s_add_u32 s{sT+10}, s{sT+10}, s{sB}\n s_lshl_b32 s{sT+10}, s{sT+10}, 10\n s_add_u32 s{sT+10}, s{sT+10}, {hex(WS_OB)}\n s_nop 10')
for q in range(2):
    fb=f'L_FB_B{q}'; bk=f'L_FB_B{q}_BACK'
    finalize(BO+16*q,4,2,fb,bk)
    E(f'buffer_store_dwordx4 v[4:7], v160, {sr(sWS)}, s{sT+10} offen sc1')
    if q==0: E(f's_add_u32 s{sT+10}, s{sT+10}, 32768\n s_nop 0')
    def setup(q=q):
        E(f's_add_i32 s{sT+2}, s{sT+9}, {q}\n s_cmp_ge_i32 s{sT+2}, 0\n s_cselect_b32 s{sT+4}, 1, 0\n s_max_i32 s{sT+2}, s{sT+2}, 0')
        E(f's_add_i32 s{sT+3}, s{sT+9}, {q+9}\n s_sub_u32 s{sT+3}, s{sT+3}, s{sT+2}\n s_add_u32 s{sT+2}, s{sT+2}, s{sT+8}\n s_lshl_b32 s{sT+2}, s{sT+2}, 11\n s_add_u32 s{sT+2}, s{sT+2}, {hex(WS_KVB)}')
    fallback(fb,bk,BQ+4*q,BO+16*q,BS,BK,BV,BIDX,3,160,161,None,setup,MU,MD)
C('---- output projection: wave (t=b&1, kh=b>>1): both 32-column tiles over heads 16kh..16kh+15 ; slot 0 = tile kh')
PB_=16; PA_=48; PW=80; PO=96
sTt=sT+10; sKh=sT+9; sOb=sT+11; sPass=sT+8
E(f's_lshr_b32 s{sKh}, s{sB}, 1\n s_and_b32 s{sTt}, s{sB}, 1\n s_lshl_b32 s{sT+2}, s{sHg}, 7')
dma128_voff(10,2,3,10,f's{sT+2}')
E(f's_lshl_b32 s{sT+1}, s{sKh}, 2'); traddr128(11,2,3,2,f's{sT+1}')
E(f's_lshl_b32 s{sT+1}, s{sKh}, 15\n s_add_u32 s{sT+1}, s{sT+1}, {L_WO}\n v_add_u32 v11, s{sT+1}, v11\n v_xor_b32 v9, 64, v11')
stamp('B',7,'oB published')
E(f's_lshl_b32 s{sT+4}, s{sPb}, 1\n s_add_u32 s{sT+4}, s{sT+4}, s{sTt}\n s_lshl_b32 s{sT+4}, s{sT+4}, 15\n s_lshl_b32 s{sT}, s{sKh}, 14\n s_add_u32 s{sOb}, s{sT+4}, s{sT}\n s_add_u32 s{sOb}, s{sOb}, {hex(WS_OB)}')
E(f's_lshl_b32 s{sT}, s{sHg}, 7\n s_add_u32 s{sT+4}, s{sT+4}, s{sT}\n s_lshl_b32 s{sT}, s{sKh}, 6\n s_add_u32 s{sT+4}, s{sT+4}, s{sT}')
E('v_and_b32 v2, 31, v0\n v_lshlrev_b32 v15, 10, v2\n v_lshrrev_b32 v3, 5, v0\n v_lshl_add_u32 v15, v3, 4, v15')
E(f'v_lshlrev_b32 v8, 2, v2\n s_lshl_b32 s{sT}, s{sPb}, 1\n s_add_u32 s{sT}, s{sT}, s{sTt}\n s_lshl_b32 s{sT}, s{sT}, 7\n s_add_u32 s{sT}, s{sT}, {hex(WS_G)}\n buffer_load_dword v14, v8, {sr(sWS)}, s{sT} offen sc1')
srd(sOUT,22,2048*1024)
E(f's_lshl_b32 s{sT}, s{sB}, 12\n v_add_u32 v164, s{sT}, v160\n v_xor_b32 v165, 0x2000, v164\n s_mov_b32 s{sPass}, 0')
lds_spin(C_MID,None,8,vZ,2,sleep=6)
def wodma(sr_):
    E(f's_lshl_b32 s{sT}, s{sB}, 14\n s_lshl_b32 s{sT+1}, s{sB}, 17')
    for n in range(16): E(f's_add_u32 m0, s{sT}, {L_WO+1024*n}\n s_add_u32 s{sT+2}, s{sT+1}, {8192*n}\n buffer_load_dwordx4 v10, {sr(sr_)}, s{sT+2} offen lds')
wodma(sWOB)
E('s_waitcnt vmcnt(0)')
lds_add(C_WO,1,vZ,2)
lds_spin(C_WO,None,4,vZ,2,sleep=2)
stamp('B',8,'woB landed')
LBL('L_B_GEMM')
def wread(s):
    f=PW+8*(s&1)
    for u,va in ((0,11),(1,9)): E(f'ds_read_b64_tr_b16 {vr(f+4*u,2)}, v{va} offset:{s*2048}\n ds_read_b64_tr_b16 {vr(f+4*u+2,2)}, v{va} offset:{s*2048+1024}')
wread(0)
def oloads(g0):
    for s in range(4*g0,16):
        if s%4==0: E(f's_add_u32 s{sT}, s{sOb}, {1024*s}')
        E(f'buffer_load_dwordx4 {vr(PO+4*s,4)}, v160, {sr(sWS)}, s{sT} offen offset:{1024*(s%4)} sc1')
E(f's_mov_b32 s{sCnt}, {SPIN_LIMIT}')
oloads(0)
for g in range(4):
    LBL(f'L_B_G{g}')
    E(f's_waitcnt vmcnt({12-4*g})')
    p=PO+16*g
    E(f'v_max_u32 v2, v{p}, v{p+4}\n v_max3_u32 v2, v{p+8}, v{p+12}, v2\n v_cmp_eq_u32 vcc, -1, v2\n s_cbranch_vccnz L_B_R{g}')
    LBL(f'L_B_K{g}')
    if DIAG and g==3:
        E(f's_cmp_eq_u32 s{sPass}, 0\n s_cbranch_scc1 L_B_NST'); stamp('B',10,'oA all seen'); LBL('L_B_NST')
    for s in range(4*g,4*g+4):
        if s<15: wread(s+1)
        E(f's_waitcnt lgkmcnt({4 if s<15 else 0})')
        f=PW+8*(s&1)
        for u in range(2): mfma(PA_+16*u,f+4*u,PO+4*s,'0' if s==0 else None)
    save=L; L=[]
    LBL(f'L_B_R{g}')
    E(f's_sub_u32 s{sCnt}, s{sCnt}, 1\n s_cbranch_scc1 L_B_K{g}\n s_cmp_eq_u32 s{sPass}, 0\n s_cbranch_scc0 L_B_RR{g}\n s_sleep 16')
    LBL(f'L_B_RR{g}')
    E('s_waitcnt vmcnt(0)')
    oloads(g)
    E(f's_branch L_B_G{g}')
    RETRY.extend(L); L=save
E(f's_cmp_eq_u32 s{sPass}, 0\n s_cbranch_scc0 L_B_FIN')
lds_add(C_WD,1,vZ,2)
E(f'v_sub_f32 v3, 1.0, v14\n s_add_u32 s{sOb}, s{sOb}, {hex((WS_OA-WS_OB)&0xffffffff)}\n s_mov_b32 s{sPass}, 1\n s_nop 7')
for r in range(32): E(f'v_mul_f32 v{PB_+r}, v{PA_+r}, v3')
lds_spin(C_WD,None,4,vZ,2,sleep=2)
wodma(sWOA)
E('s_waitcnt vmcnt(0)')
stamp('B',9,'out-proj B done, woA in')
E('s_barrier\n s_branch L_B_GEMM')
LBL('L_B_FIN')
E('s_nop 9')
for r in range(16): E(f'v_fma_f32 v{PA_+16+r}, v{PA_+16+r}, v14, v{PB_+16+r}')
for q in range(4): E(f'ds_write_b128 v164, {vr(PA_+16+4*q,4)} offset:{1024*q}')
for r in range(16): E(f'v_fma_f32 v{PA_+r}, v{PA_+r}, v14, v{PB_+r}')
E('s_waitcnt lgkmcnt(0)\n s_barrier')
for q in range(4): E(f'ds_read_b128 {vr(PB_+4*q,4)}, v165 offset:{1024*q}')
for q in range(4):
    E(f's_waitcnt lgkmcnt({3-q})')
    for r in range(4): E(f'v_add_f32 v{PA_+4*q+r}, v{PA_+4*q+r}, v{PB_+4*q+r}')
for r in range(8): cvt(PA_+r,PA_+2*r,PA_+2*r+1)
E('s_nop 1')
for gq in range(2): E(f'v_permlane32_swap_b32 v{PA_+4*gq}, v{PA_+4*gq+2}\n v_permlane32_swap_b32 v{PA_+4*gq+1}, v{PA_+4*gq+3}')
for gq in range(2): E(f'buffer_store_dwordx4 {vr(PA_+4*gq,4)}, v15, {sr(sOUT)}, s{sT+4} offen offset:{32*gq}')
if DIAG: E('s_waitcnt vmcnt(0)')
stamp('B',11,'out stored')
stamp_flush(12)
E('s_endpgm')
L.extend(RETRY)

LBL('L_A')
AIDX=8; AKA=9; AVA=10; AQ0=12; AQ1=16; AK=20; AV=28; SA=44; SB=60; OA=76; OB=92; XA=108; WA=112; AF=116
C('---- kvA: this WG makes 16 positions (hg&3) of K (hg<4) or V, and their gate ; wave w sums k in [64w,64w+64)')
L_PG=L_PART+8192; L_PT=L_PG+2048
E(f's_cmp_lt_u32 s{sHg}, 4\n s_cselect_b32 s{sWKV}, s8, s10\n s_cselect_b32 s{sWKV+1}, s9, s11\n s_mov_b32 s{sWKV+2}, 16384\n s_mov_b32 s{sWKV+3}, 0x20000')
E(f's_and_b32 s{sT+9}, s{sHg}, 3\n s_lshl_b32 s{sT+1}, s{sPb}, 16\n s_lshl_b32 s{sT+2}, s{sT+9}, 14\n s_add_u32 s{sT+1}, s{sT+1}, s{sT+2}\n s_lshl_b32 s{sT+2}, s{sWave}, 7\n s_add_u32 s{sT+1}, s{sT+1}, s{sT+2}')
E('v_and_b32 v5, 15, v0\n v_lshlrev_b32 v3, 10, v5\n v_and_b32 v4, 48, v0\n v_add_u32 v3, v3, v4')
for s_ in range(2): E(f'buffer_load_dwordx4 {vr(116+4*s_,4)}, v3, {sr(sX)}, s{sT+1} offen offset:{64*s_}')
C('---- pull this WG\'s share of the projection weights into L2 (one dword per line)')
if MAP=='c':
    E(f's_cmp_eq_u32 s{sWave}, 0\n s_cselect_b32 s{sWB}, s6, s16\n s_cselect_b32 s{sWB+1}, s7, s17\n s_mov_b32 s{sWB+2}, {512*3072}\n s_cselect_b32 s{sWB+2}, {512*1024}, s{sWB+2}\n s_mov_b32 s{sWB+3}, 0x20000')
    E(f's_movk_i32 s{sT+3}, 3072\n s_cselect_b32 s{sT+3}, 0x400, s{sT+3}\n s_cmp_lt_u32 s{sWave}, {4 if WT else 0}\n s_cbranch_scc0 L_A_NT')
    E(f's_max_u32 s{sT+1}, s{sWave}, 1\n s_sub_u32 s{sT+1}, s{sT+1}, 1\n s_lshl_b32 s{sT+1}, s{sT+1}, 10\n s_and_b32 s{sT+4}, s2, 1\n s_lshl_b32 s{sT+4}, s{sT+4}, 9\n s_add_u32 s{sT+1}, s{sT+1}, s{sT+4}')
    E(f's_lshr_b32 s{sT+4}, s2, 3\n s_lshl_b32 s{sT+4}, s{sT+4}, 4\n s_mul_i32 s{sT+4}, s{sT+4}, s{sT+3}\n s_add_u32 s{sT+1}, s{sT+1}, s{sT+4}')
    E(f'v_lshrrev_b32 v2, 2, v0\n v_mul_u32_u24 v2, s{sT+3}, v2\n v_and_b32 v3, 3, v0\n v_lshl_add_u32 v2, v3, 7, v2\n buffer_load_dword v164, v2, {sr(sWB)}, s{sT+1} offen')
    E('s_branch L_A_NT2')
    LBL('L_A_NT')
    E(f's_cmp_eq_u32 s{sWave}, 4\n s_cbranch_scc0 L_A_NT2\n s_lshr_b32 s{sT+4}, s2, 3\n s_lshl_b32 s{sT+4}, s{sT+4}, 9\n v_lshlrev_b32 v2, 7, v0\n s_mov_b64 exec, 15\n buffer_load_dword v164, v2, {sr(sWKV)}, s{sT+4} offen\n s_mov_b64 exec, -1')
    LBL('L_A_NT2')
elif WT:
    E(f's_cmp_lt_u32 s{sWave}, 2\n s_cselect_b32 s{sWB}, s6, s16\n s_cselect_b32 s{sWB+1}, s7, s17\n s_mov_b32 s{sWB+2}, {512*3072}\n s_cselect_b32 s{sWB+2}, {512*1024}, s{sWB+2}\n s_mov_b32 s{sWB+3}, 0x20000')
    E(f's_movk_i32 s{sT+3}, 3072\n s_cselect_b32 s{sT+3}, 0x400, s{sT+3}\n s_lshr_b32 s{sT+1}, s{sWave}, 1')
    E(f's_max_u32 s{sT+1}, s{sT+1}, 1\n s_sub_u32 s{sT+1}, s{sT+1}, 1\n s_lshl_b32 s{sT+1}, s{sT+1}, 10')
    E(f's_lshr_b32 s{sT+4}, s2, 3\n s_lshl_b32 s{sT+4}, s{sT+4}, 1\n s_and_b32 s{sT+5}, s{sWave}, 1\n s_add_u32 s{sT+4}, s{sT+4}, s{sT+5}\n s_lshl_b32 s{sT+4}, s{sT+4}, 3\n s_mul_i32 s{sT+4}, s{sT+4}, s{sT+3}\n s_add_u32 s{sT+1}, s{sT+1}, s{sT+4}')
    E(f'v_lshrrev_b32 v2, 3, v0\n v_mul_u32_u24 v2, s{sT+3}, v2\n v_and_b32 v3, 7, v0\n v_lshl_add_u32 v2, v3, 7, v2\n buffer_load_dword v164, v2, {sr(sWB)}, s{sT+1} offen')
srd(sG,20,1024)
for s_ in range(2): E(f'buffer_load_dwordx4 {vr(124+4*s_,4)}, v4, {sr(sG)}, s{sT+2} offen offset:{64*s_}')
E(f's_lshl_b32 s{sT}, s{sWave}, 11\n s_add_u32 m0, s{sT}, {L_ST}\n v_lshlrev_b32 v6, 4, v0')
for i in range(2): E(f'buffer_load_dwordx4 v6, {sr(sWKV)}, s{sT} offen offset:{1024*i} lds')
C('---- address of this wave\'s o slot')
sOA=sT+8
E(f's_bfe_u32 s{sOA}, s{sWave}, 0x10001\n s_lshl_b32 s{sT+1}, s{sPb}, 1\n s_add_u32 s{sOA}, s{sOA}, s{sT+1}\n s_lshl_b32 s{sOA}, s{sOA}, 5')
E(f's_lshl_b32 s{sT+1}, s{sHg}, 2\n s_add_u32 s{sOA}, s{sOA}, s{sT+1}\n s_lshr_b32 s{sT+1}, s{sWave}, 2\n s_lshl_b32 s{sT+1}, s{sT+1}, 1\n s_add_u32 s{sOA}, s{sOA}, s{sT+1}\n s_and_b32 s{sT+1}, s{sWave}, 1\n s_add_u32 s{sOA}, s{sOA}, s{sT+1}\n s_lshl_b32 s{sOA}, s{sOA}, 10\n s_add_u32 s{sOA}, s{sOA}, {hex(WS_OA)}')
E(f'v_mov_b32 v{vZ}, {L_ST}\n v_mov_b32 v2, 0\n v_lshlrev_b32 v11, 2, v0\n v_add_u32 v3, {L_C}, v11')
E(f's_cmp_eq_u32 s{sWave}, 0\n s_cbranch_scc0 L_A_NOZ\n ds_write_b32 v3, v2')
LBL('L_A_NOZ')
E(f'v_lshrrev_b32 v4, 4, v0\n v_lshlrev_b32 v4, 8, v4\n v_lshl_add_u32 v4, v5, 3, v4\n s_add_u32 s{sT}, s{sT}, {L_ST}\n v_add_u32 v4, s{sT}, v4')
E(f's_and_b32 s{sT+1}, s{sWave}, 1\n s_lshl_b32 s{sT+1}, s{sT+1}, 2'); traddr128(WA,2,3,3,f's{sT+1}')
E(f's_lshr_b32 s{sT+1}, s{sWave}, 1\n s_lshl_b32 s{sT+1}, s{sT+1}, 12\n v_add_u32 v{WA}, s{sT+1}, v{WA}')
E(f'v_and_b32 v2, 31, v0\n v_bfe_u32 v3, v0, 1, 3\n v_lshrrev_b32 v7, 5, v0\n v_xor_b32 v3, v3, v7\n v_lshlrev_b32 v{XA}, 7, v2\n v_lshl_add_u32 v{XA}, v3, 4, v{XA}')
for s_ in range(1,4): E(f'v_xor_b32 v{XA+s_}, {s_<<5}, v{XA}')
set_vpad(list(range(AV,AV+16)),2)
E(f'v_mov_b32 v{AIDX}, 0xdddddddd')
E(f's_and_b32 s{sT+1}, s{sWave}, 1\n s_lshl_b32 s{sT+1}, s{sT+1}, 11\n s_add_u32 s{sT+1}, s{sT+1}, 0x10000\n v_add_u32 v{AKA}, s{sT+1}, v6')
E(f'v_lshlrev_b32 v7, 8, v7\n v_lshl_add_u32 v7, v5, 4, v7\n v_add_u32 v{AVA}, s{sT+1}, v7')
E(f's_lshl_b32 s{sT+1}, s{sWave}, 10\n s_add_u32 s{sT+1}, s{sT+1}, {L_PART}\n v_add_u32 v2, s{sT+1}, v6\n s_lshl_b32 s{sT+1}, s{sWave}, 8\n s_add_u32 s{sT+1}, s{sT+1}, {L_PG}\n v_add_u32 v3, s{sT+1}, v11')
E('s_waitcnt vmcnt(0) lgkmcnt(0)')
for s_ in range(2): E(f'ds_read_b64_tr_b16 {vr(132+4*s_,2)}, v4 offset:{1024*s_}\n ds_read_b64_tr_b16 {vr(134+4*s_,2)}, v4 offset:{1024*s_+128}')
mktag()
E(f's_cmp_lt_u32 s{sHg}, 4\n s_waitcnt lgkmcnt(0)')
for s_ in range(2): E(f'v_mfma_f32_16x16x32_bf16 v[144:147], {vr(124+4*s_,4)}, {vr(116+4*s_,4)}, {"0" if s_==0 else "v[144:147]"}')
E('s_cbranch_scc0 L_A_VJOB')
for s_ in range(2): E(f'v_mfma_f32_16x16x32_bf16 v[140:143], {vr(132+4*s_,4)}, {vr(116+4*s_,4)}, {"0" if s_==0 else "v[140:143]"}')
E('s_branch L_A_KVJ')
LBL('L_A_VJOB')
for s_ in range(2): E(f'v_mfma_f32_16x16x32_bf16 v[140:143], {vr(116+4*s_,4)}, {vr(132+4*s_,4)}, {"0" if s_==0 else "v[140:143]"}')
LBL('L_A_KVJ')
E('s_nop 7\n ds_write_b32 v3, v144\n ds_write_b128 v2, v[140:143]')
stamp('A',2,'kvA partial') if not OPT.get('acc') else None
E('s_waitcnt vmcnt(0) lgkmcnt(0)\n s_barrier')
E(f's_cmp_eq_u32 s{sWave}, 7\n s_cbranch_scc0 L_A_BS')
C('---- wave 7: reduce the eight partial tiles, store')
E(f'v_add_u32 v3, {L_PART}, v6\n v_add_u32 v4, {L_PG}, v11')
for i in range(8): E(f'ds_read_b128 {vr(116+4*i,4)}, v3 offset:{1024*i}')
for i in range(4): E(f'ds_read2st64_b32 {vr(148+2*i,2)}, v4 offset0:{2*i} offset1:{2*i+1}')
E(f's_lshl_b32 s{sT+3}, s{sPb}, 1\n s_lshr_b32 s{sT+4}, s{sT+9}, 1\n s_add_u32 s{sT+3}, s{sT+3}, s{sT+4}\n s_lshl_b32 s{sT+3}, s{sT+3}, 11\n s_add_u32 s{sT+3}, s{sT+3}, {hex(WS_KVA)}\n s_and_b32 s{sT+4}, s{sT+9}, 1')
E(f's_cmp_lt_u32 s{sHg}, 4\n s_cselect_b32 s{sT+5}, 9, 3\n s_cselect_b32 s{sT+6}, 3, 8\n s_cselect_b32 s{sT+1}, 8, 9\n s_cselect_b32 s{sT}, 0, 0x400')
E(f's_lshl_b32 s{sT+4}, s{sT+4}, s{sT+1}\n s_add_u32 s{sT+3}, s{sT+3}, s{sT+4}\n s_add_u32 s{sT+3}, s{sT+3}, s{sT}')
E(f'v_bfe_u32 v3, v0, 4, 1\n v_lshrrev_b32 v4, 5, v0\n v_lshlrev_b32 v5, 4, v5\n v_lshl_add_u32 v5, v3, s{sT+5}, v5\n v_lshl_add_u32 v5, v4, s{sT+6}, v5')
if DENSE: E(f's_lshl_b32 s{sT+7}, s{sPb}, 3\n s_add_u32 s{sT+7}, s{sT+7}, s{sHg}\n s_lshl_b32 s{sT+7}, s{sT+7}, 2\n s_add_u32 s{sT+7}, s{sT+7}, {hex(WS_FKVA)}')
else: E(f's_lshl_b32 s{sT+7}, s{sPb}, 1\n s_lshr_b32 s{sT+1}, s{sHg}, 2\n s_add_u32 s{sT+7}, s{sT+7}, s{sT+1}\n s_lshl_b32 s{sT+7}, s{sT+7}, 7\n s_lshl_b32 s{sT+1}, s{sT+9}, 2\n s_add_u32 s{sT+7}, s{sT+7}, s{sT+1}\n s_add_u32 s{sT+7}, s{sT+7}, {hex(WS_FKVA)}')
E('s_waitcnt lgkmcnt(4)')
for st_ in (16,8,4):
    for r in range(st_): E(f'v_add_f32 v{116+r}, v{116+r}, v{116+st_+r}')
cvt(116,116,117); cvt(117,118,119)
E(f'buffer_store_dwordx2 v[116:117], v5, {sr(sWS)}, s{sT+3} offen sc1')
E(f's_cmp_lt_u32 s{sHg}, 4\n s_waitcnt lgkmcnt(0)\n s_cbranch_scc0 L_A_BS')
for st_ in (4,2,1):
    for r in range(st_): E(f'v_add_f32 v{148+r}, v{148+r}, v{148+st_+r}')
E(f's_mov_b32 s{sT}, {hex(f2u(-math.log2(math.e)))}\n v_mul_f32 v148, s{sT}, v148\n v_exp_f32 v148, v148')
E(f's_lshl_b32 s{sT}, s{sPb}, 2\n s_add_u32 s{sT}, s{sT}, s{sT+9}\n v_add_f32 v148, 1.0, v148\n v_rcp_f32 v148, v148\n s_lshl_b32 s{sT}, s{sT}, 6\n s_add_u32 s{sT}, s{sT}, {hex(WS_G)}')
E(f's_mov_b64 exec, 0xffff\n buffer_store_dword v148, v11, {sr(sWS)}, s{sT} offen sc1\n s_mov_b64 exec, -1')
LBL('L_A_BS')
if WT: E('s_barrier')
stamp('A',7,'Bs'); cstamp('A',10,'Bs')
AFB=[116,140,76]
def aread(k,i):
    s=i//4; f=AFB[k%3]+12*s; h=k&1; j=i%4
    if j<2: E(f'ds_read_b64_tr_b16 {vr(f+2*j,2)}, v{WA} offset:{16384*h+s*2048+512*j}')
    else: E(f'ds_read_b128 {vr(f+4+4*(j-2),4)}, v{XA+2*h+s} offset:{32768+4096*(j-2)}')
def bump(k):
    d=40960 if (k//2)%3 else -81920
    for r in (XA,XA+1,XA+2,XA+3,WA): E(f'v_add_u32 v{r}, {hex(d&0xffffffff)}, v{r}')
for i in range(8): aread(0,i)
E('s_waitcnt lgkmcnt(7)')
for i in range(8): aread(1,i)
E(f's_cmp_ge_u32 s{sWave}, 6\n s_cbranch_scc1 L_A_GV')
sSt=sT+6
save=L; L=[]
LBL('L_A_DUTY')
C('waves 6 and 7, once per chunk, never blocking the projection: s{sT+4} = chunk, s{sSt} = state')
E(f's_getreg_b32 s{sT}, hwreg(HW_REG_IB_STS, 0, 4)\n s_cmp_eq_u32 s{sWave}, 7\n s_cbranch_scc0 L_A_D6')
E(f's_cmp_ge_u32 s{sT+4}, {FORCE_K}\n s_cselect_b32 s{sT}, 0, s{sT}\n s_cmp_eq_u32 s{sT}, 0\n s_cbranch_scc0 L_A_DRET\n s_waitcnt vmcnt(0)')
flag_store(sT+7,2)
stamp('A',3,'kvA flag sent')
E(f's_mov_b32 s{sSt}, 2\n s_setpc_b64 s[82:83]')
LBL('L_A_D6')
E(f's_cmp_lt_u32 s{sT+4}, {PK}\n s_cbranch_scc1 L_A_DRET\n s_cmp_eq_u32 s{sSt}, 0\n s_cbranch_scc1 L_A_DISS\n s_cmp_eq_u32 s{sT}, 0\n s_cbranch_scc0 L_A_DRET\n s_waitcnt vmcnt(0)')
for i in range(4): E(f'v_xor_b32 v{12+i}, s{sTag}, v{12+i}')
E('v_or3_b32 v12, v12, v13, v14\n v_or_b32 v12, v12, v15\n v_cmp_ne_u32 vcc, 0, v12\n s_cbranch_vccnz L_A_DISS')
C('all K/V pieces are out: fetch this WG\'s 4KB share into L2 and tell the loaders')
E(f's_lshr_b32 s{sT+5}, s2, 3\n s_lshl_b32 s{sT+5}, s{sT+5}, 12\n s_add_u32 s{sT+5}, s{sT+5}, {hex(WS_KVA)}\n v_mov_b32 v13, 1\n s_mov_b32 s{sSt}, 2')
E(f's_mov_b32 exec_hi, 0\n buffer_load_dword v14, v16, {sr(sWS)}, s{sT+5} offen sc1\n ds_write_b32 v{vZ}, v13 offset:{C_FL-L_ST}\n s_mov_b64 exec, -1\n s_waitcnt lgkmcnt(0)')
stamp('A',3,'kvA flag sent')
E('s_setpc_b64 s[82:83]')
LBL('L_A_DISS')
E(f's_mov_b32 s{sT+5}, {hex(WS_FKVA)}\n s_mov_b32 s{sSt}, 1\n buffer_load_dwordx4 v[12:15], v{6 if DENSE else 16}, {sr(sWS)}, s{sT+5} offen sc1')
LBL('L_A_DRET')
E('s_setpc_b64 s[82:83]')
DUTY=L; L=save
E(f's_branch L_A_GQ')
L.extend(DUTY)
for var in (0,1):
    if var: LBL('L_A_GV'); E(f's_mov_b32 s{sSt}, 0\n v_lshlrev_b32 v16, 7, v0')
    else: LBL('L_A_GQ')
    for k in range(16):
        f=AFB[k%3]
        def mm(s,t):
            g=f+12*s; c='0' if (k==0 and s==0) else None
            if var==0: mfma(SA+16*t,g,g+4+4*t,c)
            else: mfma(SA+16*t,g+4+4*t,g,c)
        E(f's_waitcnt lgkmcnt({8 if k<15 else 0})')
        mm(0,0); mm(0,1)
        if var==1 and k<=KVK:
            sk=uid('dn')
            E(f's_cmp_eq_u32 s{sSt}, 2\n s_cbranch_scc1 {sk}\n s_mov_b32 s{sT+4}, {k}\n s_call_b64 s[82:83], L_A_DUTY')
            LBL(sk)
        if k<=KVK: tacc('A',2,'A barrier wait','s_barrier')
        if k+2<16:
            if (k&1)==0: bump(k+2)
            for i in range(4): aread(k+2,i)
            mm(1,0)
            for i in range(4,7): aread(k+2,i)
            E('s_waitcnt lgkmcnt(14)'); aread(k+2,7)
            mm(1,1)
        else:
            mm(1,0); mm(1,1)
        if k==SENTK:
            C('mark this WG\'s o slots as not yet written (acknowledged before this wave\'s flag)')
            E(f'v_mov_b32 v164, -1\n v_mov_b32 v165, -1\n v_mov_b32 v166, -1\n v_mov_b32 v167, -1\n s_add_u32 s{sT+1}, s{sOA}, {hex(WS_OB-WS_OA)}')
            E(f'buffer_store_dwordx4 v[164:167], v6, {sr(sWS)}, s{sOA} offen sc1\n buffer_store_dwordx4 v[164:167], v6, {sr(sWS)}, s{sT+1} offen sc1')
        if k==15:
            for r in range(32): E(f'v_mov_b32 v{OA+r}, 0')
    if var==0:
        stamp('A',1,'proj loop done'); cstamp('A',11,'pl')
        E(f's_cmp_ge_u32 s{sWave}, 4\n s_cbranch_scc1 L_A_EK')
        C('---- q (A / B): scale, pack, hand over through LDS')
        E(f's_cmp_lt_u32 s{sWave}, 2\n s_mov_b32 s{sT+1}, {L_QB}\n s_cselect_b32 s{sT+1}, {L_QA}, s{sT+1}\n s_and_b32 s{sT+2}, s{sWave}, 1\n s_lshl_b32 s{sT+2}, s{sT+2}, 12\n s_add_u32 s{sT+1}, s{sT+1}, s{sT+2}\n v_add_u32 v2, s{sT+1}, v6\n s_mov_b32 s{sT+1}, {hex(CSCALE)}\n s_nop 3')
        for t in range(2):
            d=SA+16*t
            for r in range(16): E(f'v_mul_f32 v{d+r}, s{sT+1}, v{d+r}')
            for r in range(8): cvt(d+r,d+2*r,d+2*r+1)
            for hh in range(2): E(f'ds_write_b128 v2, {vr(d+4*hh,4)} offset:{2048*hh+1024*t}')
        E('s_branch L_A_B8')
        LBL('L_A_EK')
        E(f's_lshl_b32 s{sT+4}, s{sHg}, 2\n s_and_b32 s{sT+5}, s{sWave}, 1\n s_lshl_b32 s{sT+5}, s{sT+5}, 1\n s_add_u32 s{sT+4}, s{sT+4}, s{sT+5}\n s_lshl_b32 s{sT+4}, s{sT+4}, 6\n s_lshl_b32 s{sT+5}, s{sPb}, 1\n s_add_u32 s{sT+4}, s{sT+4}, s{sT+5}\n s_lshl_b32 s{sT+4}, s{sT+4}, 11\n s_add_u32 s{sT+4}, s{sT+4}, {hex(WS_KVB)}\n s_add_u32 s{sT+5}, s{sT+4}, 0x20000\n s_nop 1')
        for t in range(2):
            d=SA+16*t
            for r in range(8): cvt(d+r,d+2*r,d+2*r+1)
            for hh in range(2): E(f'buffer_store_dwordx4 {vr(d+4*hh,4)}, v6, {sr(sWS)}, s{sT+4+hh} offen offset:{2048*t} sc1')
        E('s_branch L_A_B8')
    else:
        E(f's_lshl_b32 s{sT+4}, s{sHg}, 2\n s_and_b32 s{sT+5}, s{sWave}, 1\n s_lshl_b32 s{sT+5}, s{sT+5}, 1\n s_add_u32 s{sT+4}, s{sT+4}, s{sT+5}\n s_lshl_b32 s{sT+4}, s{sT+4}, 6\n s_lshl_b32 s{sT+5}, s{sPb}, 1\n s_add_u32 s{sT+4}, s{sT+4}, s{sT+5}\n s_lshl_b32 s{sT+4}, s{sT+4}, 11\n s_add_u32 s{sT+4}, s{sT+4}, {hex(WS_KVB+1024)}')
        E('v_bfe_u32 v2, v0, 4, 1\n v_lshl_add_u32 v2, v2, 17, v7\n s_nop 1')
        for t in range(2):
            d=SA+16*t
            for r in range(8): cvt(d+r,d+2*r,d+2*r+1)
            E('s_nop 1')
            for gq in range(2): E(f'v_permlane32_swap_b32 v{d+4*gq}, v{d+4*gq+2}\n v_permlane32_swap_b32 v{d+4*gq+1}, v{d+4*gq+3}')
            for gq in range(2): E(f'buffer_store_dwordx4 {vr(d+4*gq,4)}, v2, {sr(sWS)}, s{sT+4} offen offset:{2048*t+512*gq} sc1')
LBL('L_A_B8')
E(f's_lshr_b32 s{sT+1}, s{sWave}, 2\n s_lshl_b32 s{sT+1}, s{sT+1}, 1\n s_and_b32 s{sT+2}, s{sWave}, 1\n s_add_u32 s{sT+1}, s{sT+1}, s{sT+2}\n s_lshl_b32 s{sT+1}, s{sT+1}, 11\n s_bfe_u32 s{sT+2}, s{sWave}, 0x10001\n s_lshl_b32 s{sT+2}, s{sT+2}, 10\n s_add_u32 s{sT+1}, s{sT+1}, s{sT+2}\n s_add_u32 s{sT+1}, s{sT+1}, {L_QA}\n v_add_u32 v2, s{sT+1}, v6\n v_xor_b32 v3, 0x800, v2')
E(f's_lshl_b32 s{sT+6}, s{sHg}, 5\n s_add_u32 s{sT+6}, s{sT+6}, s{sPb}\n s_lshl_b32 s{sT+6}, s{sT+6}, 7\n s_lshl_b32 s{sT+1}, s{sWave}, 2\n s_add_u32 s{sT+6}, s{sT+6}, s{sT+1}\n s_add_u32 s{sT+6}, s{sT+6}, {hex(WS_FKVB)}')
E('s_waitcnt lgkmcnt(0)\n s_barrier')
stamp('A',4,'BQ'); cstamp('A',8,'BQ')
def kvoff(j): return (KVPOS[j//4]-(65536 if j<16 else 0))+(j%4)*4096
def ldk(j): E(f'ds_read_b128 {vr(AK+4*(j&1),4)}, v{AKA} offset:{kvoff(j)}')
def ldv(j): E(f's_mov_b64 exec, {sr(sVM,2)}\n ds_read_b128 {vr(AV+8*(j&1),4)}, v{AVA} offset:{kvoff(j)+1024}\n ds_read_b128 {vr(AV+8*(j&1)+4,4)}, v{AVA} offset:{kvoff(j)+1536}\n s_mov_b64 exec, -1')
E(f'ds_read_b128 {vr(AQ0,4)}, v2\n ds_read_b128 {vr(AQ1,4)}, v3')
if PRIO in ('step','step4'): E('s_setprio 2')
if PRIO=='half':
    E(f's_cmp_ge_u32 s{sWave}, 4\n s_cbranch_scc0 L_A_NP\n s_setprio 1'); LBL('L_A_NP')
ldk(0); ldv(0); ldk(1)
E('s_waitcnt lgkmcnt(3)'); mfma(SA,AK,AQ0,'0'); E('s_nop 11')
def pair_iter(j,ldk_,ldv_,first=False,last=0,extra=0):
    kc=AK+4*(j&1); kn=AK+4*((j+1)&1); vc=AV+8*(j&1); vp=AV+8*((j+1)&1)
    vexp(SA); vexp(SA+1)
    if not first: smf(OB,vp+4,SB+8,AIDX)
    for r in range(2,5): vexp(SA+r)
    mfma(SB,kc,AQ1,'0')
    for r in range(5,10): vexp(SA+r)
    E(f's_waitcnt lgkmcnt({(1 if last<2 else 0)+extra})')
    vexp(SA+10); smf(OA,vc,SA,AIDX)
    for r in range(11,16): vexp(SA+r)
    vexp(SB); vexp(SB+1); smf(OA,vc+4,SA+8,AIDX)
    if last<2: ldv_()
    for r in range(2,5): vexp(SB+r)
    if last<2:
        E('s_waitcnt lgkmcnt(2)'); mfma(SA,kn,AQ0,'0')
    if last<1: ldk_()
    for r in range(5,11): vexp(SB+r)
    smf(OB,vc,SB,AIDX)
    for r in range(11,16): vexp(SB+r)
def aflag(force,init=False):
    sk=uid('fl')
    E(f's_cmp_eq_u32 s{sT+5}, 0\n s_cbranch_scc0 {sk}')
    if not force: E(f's_getreg_b32 s{sT}, hwreg(HW_REG_IB_STS, 0, 4)\n s_cmp_eq_u32 s{sT}, 0\n s_cbranch_scc0 {sk}')
    E(f's_waitcnt vmcnt(0)\n s_mov_b32 s{sT+5}, 1'); flag_store(sT+6,2); LBL(sk)
if ROLL:
    AKN=120; AVN=121; sC=sT+4
    def rk(j):
        a_=AKA if j<4 else AKN
        return lambda: E(f'ds_read_b128 {vr(AK+4*(j&1),4)}, v{a_} offset:{(j%4)*4096}')
    def rv(j):
        a_=AVA if j<4 else AVN
        return lambda: E(f's_mov_b64 exec, {sr(sVM,2)}\n ds_read_b128 {vr(AV+8*(j&1),4)}, v{a_} offset:{(j%4)*4096+1024}\n ds_read_b128 {vr(AV+8*(j&1)+4,4)}, v{a_} offset:{(j%4)*4096+1536}\n s_mov_b64 exec, -1')
    for r in range(8,16): E(f'v_mov_b32 v{SB+r}, 0')
    E(f'v_add_u32 v{AKN}, 0x8000, v{AKA}\n v_add_u32 v{AVN}, 0x8000, v{AVA}\n v_add_u32 v{AKA}, 0x4000, v{AKA}\n v_add_u32 v{AVA}, 0x4000, v{AVA}\n s_mov_b32 s{sC}, 0\n s_mov_b32 s{sT+5}, 0')
    L.append('.p2align 6')
    LBL('L_A_LOOP')
    pair_iter(0,rk(2),rv(1)); pair_iter(1,rk(3),rv(2))
    E(f's_cmp_gt_u32 s{sC}, 6\n s_cbranch_scc1 L_A_LAST\n s_bitcmp1_b32 0x5f, s{sC}\n s_cbranch_scc1 L_A_RARE')
    LBL('L_A_RBACK')
    pair_iter(2,rk(4),rv(3)); pair_iter(3,rk(5),rv(4))
    E(f's_add_u32 s{sC}, s{sC}, 1\n s_mov_b32 s{sT+1}, 0x4000\n s_cmp_eq_u32 s{sC}, 2\n s_cselect_b32 s{sT+1}, {hex((-49152)&0xffffffff)}, s{sT+1}\n s_cmp_eq_u32 s{sC}, 3\n s_cselect_b32 s{sT+1}, {hex((-65536)&0xffffffff)}, s{sT+1}')
    E(f'v_mov_b32 v{AKA}, v{AKN}\n v_mov_b32 v{AVA}, v{AVN}\n v_add_u32 v{AKN}, s{sT+1}, v{AKN}\n v_add_u32 v{AVN}, s{sT+1}, v{AVN}\n s_branch L_A_LOOP')
    LBL('L_A_RARE')
    E(f's_waitcnt lgkmcnt(0)\n s_cmp_gt_u32 s{sC}, 3\n s_cbranch_scc1 L_A_R4')
    E(f's_cmp_eq_u32 s{sC}, 0\n s_cbranch_scc0 L_A_R1'); lds_spin(C_K1,None,4,vZ,2,sleep=0)
    LBL('L_A_R1')
    E(f's_cmp_eq_u32 s{sC}, 2\n s_cbranch_scc0 L_A_R2'); lds_spin(C_K2,None,4,vZ,2,sleep=1)
    LBL('L_A_R2')
    E(f's_cmp_eq_u32 s{sC}, 3\n s_cbranch_scc1 L_A_R3'); aflag(False); E('s_branch L_A_RBACK')
    LBL('L_A_R3'); aflag(True); E('s_branch L_A_RBACK')
    LBL('L_A_R4')
    E(f's_cmp_eq_u32 s{sC}, 4\n s_cbranch_scc0 L_A_R6'); lds_add(C_MID,1,vZ,2); E('s_waitcnt lgkmcnt(0)\n s_branch L_A_RBACK')
    LBL('L_A_R6'); lds_spin(C_MID,None,8,vZ,2,sleep=1); E('s_branch L_A_RBACK')
    LBL('L_A_LAST')
    pair_iter(2,None,rv(3),last=1); pair_iter(3,None,None,last=2)
else:
    E(f's_mov_b32 s{sT+5}, 0')
    for j in range(32):
        if j==2: E('s_waitcnt lgkmcnt(0)'); lds_spin(C_K1,None,4,vZ,2,sleep=0)
        if j in (1,2,3,5): aflag(j==5)
        if PRIO=='step' and j in (11,22): E(f's_setprio {1 if j==11 else 0}')
        if PRIO=='step4' and j in (6,16): E(f's_setprio {1 if j==6 else 0}')
        if OPT.get('jst') and j in (2,4,8,16,24): E('s_waitcnt lgkmcnt(0)'); cstamp('A',{2:1,4:2,8:3,16:7,24:10}[j],f'J{j}')
        if j==10: E('s_waitcnt lgkmcnt(0)'); lds_spin(C_K2,None,4,vZ,2,sleep=1)
        if j==16: lds_add(C_MID,1,vZ,2)
        if j==28: E('s_waitcnt lgkmcnt(0)'); lds_spin(C_MID,None,8,vZ,2,sleep=1)
        def lv(j=j):
            if j==15: E(f'v_subrev_u32 v{AVA}, 0x10000, v{AVA}')
            ldv(j+1)
        def lk(j=j):
            if j==14: E(f'v_subrev_u32 v{AKA}, 0x10000, v{AKA}')
            ldk(j+2)
        pair_iter(j,lk,lv,first=(j==0),last=(2 if j==31 else 1 if j==30 else 0),extra=(1 if j==16 else 0))
E('s_nop 1'); smf(OB,AV+8+4,SB+8,AIDX)
stamp('A',5,'A loop done'); cstamp('A',9,'loop done')
C('---- pair exchange: send slot B, finish slot A')
E(f's_mul_i32 s{sT+1}, s{sWave}, 2304\n s_add_u32 s{sT+1}, s{sT+1}, {L_EX}\n v_add_u32 v2, s{sT+1}, v6\n v_lshlrev_b32 v3, 2, v0\n v_add_u32 v3, s{sT+1}, v3')
E(f's_xor_b32 s{sT+2}, s{sWave}, 1\n s_mul_i32 s{sT+2}, s{sT+2}, 2304\n s_add_u32 s{sT+2}, s{sT+2}, {L_EX}\n v_add_u32 v4, s{sT+2}, v6\n v_lshlrev_b32 v5, 2, v0\n v_add_u32 v5, s{sT+2}, v5\n s_nop 4')
E(f'ds_write_b128 v2, {vr(OB,4)}\n ds_write_b128 v2, {vr(OB+4,4)} offset:1024\n ds_write_b32 v3, v{OB+8} offset:2048')
E('s_waitcnt lgkmcnt(0)\n s_barrier')
E(f'ds_read_b128 {vr(SA,4)}, v4\n ds_read_b128 {vr(SA+4,4)}, v4 offset:1024\n ds_read_b32 v{SA+8}, v5 offset:2048\n s_waitcnt lgkmcnt(0)')
for r in range(9): E(f'v_add_f32 v{OA+r}, v{OA+r}, v{SA+r}')
finalize(OA,AK,2,'L_FB_A','L_FB_A_BACK')
E(f'buffer_store_dwordx4 {vr(AK,4)}, v6, {sr(sWS)}, s{sOA} offen sc1')
def setupA(): E(f's_mov_b32 s{sT+2}, {hex(WS_KVA)}\n s_mov_b32 s{sT+3}, 64')
fallback('L_FB_A','L_FB_A_BACK',AQ0,OA,SA,AK,AV,AIDX,3,6,7,None,setupA)
stamp('A',6,'oA published')
stamp_flush(12)
LBL('L_END')
E('s_endpgm')
L.extend(TAIL)

hdr=open('cdna_kernels/%s.s.ref'%NAME).read().split('; Override launch')[0]
txt=hdr
txt+=f'; @launch grid=(256,1,1) block=(768,1,1) lds={LDS_TOTAL}\n'
for n in ('WS_KVA','WS_KVB','WS_OA','WS_OB','WS_STAMP','NSTAMP'): txt+=f'; CONST {n} = {hex(globals()[n])}\n'
for r,i,n in STN: txt+=f'; STAMPNAME {r} {i} {n}\n'
txt+=f'''.amdgcn_target "amdgcn-amd-amdhsa--gfx950"
.text
.globl {NAME}_kernel
.p2align 8
.type {NAME}_kernel,@function
{NAME}_kernel:
'''+'\n'.join(L)+f'''
.section .rodata,"a"
.p2align 6
.amdhsa_kernel {NAME}_kernel
  .amdhsa_next_free_vgpr 168
  .amdhsa_next_free_sgpr 102
  .amdhsa_accum_offset 168
  .amdhsa_group_segment_fixed_size 0
  .amdhsa_kernarg_size 96
  .amdhsa_user_sgpr_count 2
  .amdhsa_user_sgpr_kernarg_segment_ptr 1
  .amdhsa_system_sgpr_workgroup_id_x 1
.end_amdhsa_kernel
'''
open(OUT,'w').write(txt)
print('wrote',OUT,len(L),'lines')
```

```python
import sys, math, struct
NAME='gated_mix__grouped_kv_mqa__sliding_block__prompt'
DIAG = '--diag' in sys.argv
OUT = [a for a in sys.argv[1:] if not a.startswith('--')]
OUT = OUT[0] if OUT else 'cdna_kernels/%s.s'%NAME
OPT=dict(a.lstrip('-').split('=') for a in sys.argv[1:] if a.startswith('--') and '=' in a)
MAP=OPT.get('map','c'); ROT=OPT.get('rot','full'); PRIO=OPT.get('prio','step'); FLAG_IT=int(OPT.get('flagit','1')); PK=int(OPT.get('pk','6')); FORCE_K=int(OPT.get('forcek','6')); SENTK=int(OPT.get('sentk','14')); DENSE=OPT.get('dense','0')=='1'; ROLL=OPT.get('roll','0')=='1'; WT=OPT.get('wtouch','0')=='1'; KVK=int(OPT.get('kvk','13'))
def f2u(f): return struct.unpack('<I',struct.pack('<f',f))[0]

WS_EPOCH=0x0
WS_FKVA=0x1000
WS_FKVB=0x4000
WS_FOB =0xC000
WS_FOA =0x14000
WS_G   =0x1C000
WS_KVA =0x20000
WS_QB  =0x40000
WS_KVB =0x240000
WS_OA  =0x640000
WS_OB  =0x840000
WS_STAMP=0xA40000
NSTAMP=16
L_WQ=0; L_X=65536; L_ST=131072; L_CTL=L_ST+30720
L_GW=L_CTL; L_G=L_CTL+1024; L_C=L_CTL+1024+256
C_X=L_C+0
C_Q=L_C+4
C_K0=L_C+8; C_K1=L_C+12; C_K2=L_C+16; C_BP=L_C+20; C_MID=L_C+24; C_WO=L_C+28; C_WD=L_C+32; C_FL=L_C+36
L_EX=L_ST
LDS_TOTAL=163840
SPIN_LIMIT=50000
CSCALE=f2u(0.25*math.log2(math.e))
NEGBIG=f2u(-1e9)
L_LO=f2u(2.0**-24); L_HI=f2u(2.0**60)

sX=28; sWQ=32; sWKV=36; sWB=40; sWOA=44; sWOB=48; sG=52; sOUT=56; sWS=60; sDBG=64
sWave=68; sPb=69; sHg=70; sTag=71
sT=72
sCnt=84; sB=85
sVM=86
sST=88
L=[]
def E(s):
    for ln in s.split('\n'):
        if ln.strip(): L.append('    '+ln.strip())
def LBL(s): L.append(s+':')
def C(s): L.append('    ; '+s)
_uid=[0]
def uid(p):
    _uid[0]+=1; return f'{p}_{_uid[0]}'
def vr(a,n): return f'v[{a}:{a+n-1}]'
def sr(a,n=4): return f's[{a}:{a+n-1}]'
def srd(dst,ptr,nbytes):
    E(f's_mov_b32 s{dst}, s{ptr}\n s_mov_b32 s{dst+1}, s{ptr+1}\n s_mov_b32 s{dst+2}, {hex(nbytes)}\n s_mov_b32 s{dst+3}, 0x20000')
STN=[]
def stamp(role,i,name):
    if OPT.get('jst') and role=='A' and i in (1,2,3,7): return
    if OPT.get('bst') and role=='B' and i in (6,7,8,9) and not (name.startswith('arrive') or name=='Bp'): return
    if not DIAG: return
    STN.append((role,i,name))
    E(f's_memrealtime s[100:101]\n s_waitcnt lgkmcnt(0)\n s_mov_b32 s{sST+i}, s100')
def cstamp(role,i,name):
    if OPT.get('jst') and i in (10,11) and not name.startswith('J'): return
    if not DIAG: return
    STN.append((role,i,'CYC '+name))
    E(f's_memtime s[100:101]\n s_waitcnt lgkmcnt(0)\n s_mov_b32 s{sST+i}, s100')
def tacc(role,i,name,code):
    if not (DIAG and OPT.get('acc')): E(code); return
    if (role,i,'ACC '+name) not in STN: STN.append((role,i,'ACC '+name))
    E(f's_memtime s[100:101]\n s_waitcnt lgkmcnt(0)\n s_sub_u32 s{sST+i}, s{sST+i}, s100')
    E(code)
    E(f's_memtime s[100:101]\n s_waitcnt lgkmcnt(0)\n s_add_u32 s{sST+i}, s{sST+i}, s100')
def stamp_flush(nmax,role='B'):
    if not DIAG: return
    if OPT.get('dbg'):
        m={'A':[(0,1),(2,2),(7,3),(3,4),(1,5),(4,6),(5,7),(6,8)],'B':[(4,9),(6,10),(7,11),(9,12),(10,13),(11,14)]}[role]
        sk=uid('nd')
        srd(sDBG,24,256)
        E(f's_bfe_u32 s{sT}, s2, 0x30003\n s_cmp_eq_u32 s{sT}, 0\n s_cbranch_scc0 {sk}\n v_mov_b32 v2, 0\n s_not_b32 s{sT}, s{sST}\n v_writelane_b32 v2, s{sT}, 0')
        for i,sl in m: E(f'v_writelane_b32 v2, s{sST+i}, {sl}')
        E(f'v_lshlrev_b32 v3, 2, v0\n s_mov_b64 exec, 0xffff\n buffer_atomic_umax v2, v3, {sr(sDBG)}, 0 offen sc1\n s_mov_b64 exec, -1')
        LBL(sk)
        return
    if OPT.get('hwid'): E(f's_getreg_b32 s{sST+11}, hwreg(HW_REG_HW_ID)\n s_getreg_b32 s{sST+10}, hwreg(HW_REG_XCC_ID)')
    E('v_mov_b32 v2, 0')
    for i in range(nmax): E(f'v_writelane_b32 v2, s{sST+i}, {i}')
    E(f's_mul_i32 s{sT}, s2, 12\n s_add_u32 s{sT}, s{sT}, s{sWave}\n s_lshl_b32 s{sT}, s{sT}, 6\n s_add_u32 s{sT}, s{sT}, {hex(WS_STAMP)}')
    E(f'v_lshlrev_b32 v3, 2, v0\n s_mov_b64 exec, 0xffff\n buffer_store_dword v2, v3, {sr(sWS)}, s{sT} offen\n s_mov_b64 exec, -1')

def lds_add(off,val,vz,vt):
    E(f'v_mov_b32 v{vt}, {val}\n s_mov_b64 exec, 1\n ds_add_u32 v{vz}, v{vt} offset:{off-L_ST}\n s_mov_b64 exec, -1')
def lds_spin(off,mask,val,vz,vt,sleep=1):
    a=uid('spin'); d=uid('spind')
    E(f's_mov_b32 s{sCnt}, {SPIN_LIMIT}')
    LBL(a)
    E(f'ds_read_b32 v{vt}, v{vz} offset:{off-L_ST}\n s_waitcnt lgkmcnt(0)\n v_readfirstlane_b32 s{sT}, v{vt}')
    if mask is not None: E(f's_and_b32 s{sT}, s{sT}, {hex(mask)}')
    E(f's_cmp_eq_u32 s{sT}, {hex(val)}\n s_cbranch_scc1 {d}\n s_sub_u32 s{sCnt}, s{sCnt}, 1\n s_cbranch_scc1 {d}')
    if sleep: E(f's_sleep {sleep}')
    E(f's_branch {a}')
    LBL(d)
def poll(vaddr,n,vt,sleep=1):
    a=uid('poll'); d=uid('polld')
    E(f's_mov_b32 s{sCnt}, {SPIN_LIMIT}')
    LBL(a)
    op={1:'buffer_load_dword',3:'buffer_load_dwordx3',4:'buffer_load_dwordx4'}[n]
    E(f'{op} {vr(vt,n) if n>1 else "v%d"%vt}, v{vaddr}, {sr(sWS)}, 0 offen sc1\n s_waitcnt vmcnt(0)')
    for i in range(n): E(f'v_xor_b32 v{vt+i}, s{sTag}, v{vt+i}')
    if n>=3: E(f'v_or3_b32 v{vt}, v{vt}, v{vt+1}, v{vt+2}')
    if n==4: E(f'v_or_b32 v{vt}, v{vt}, v{vt+3}')
    E(f'v_cmp_ne_u32 vcc, 0, v{vt}\n s_cbranch_vccz {d}\n s_sub_u32 s{sCnt}, s{sCnt}, 1\n s_cbranch_scc1 {d}')
    if sleep: E(f's_sleep {sleep}')
    E(f's_branch {a}')
    LBL(d)
def flag_store(soff_reg,vt):
    E(f'v_mov_b32 v{vt}, s{sTag}\n s_mov_b64 exec, 1\n buffer_store_dword v{vt}, off, {sr(sWS)}, s{soff_reg} sc1\n s_mov_b64 exec, -1')
def mfma(d,a,b,c=None):
    cc = vr(d,16) if c is None else (c if isinstance(c,str) else vr(c,16))
    E(f'v_mfma_f32_32x32x16_bf16 {vr(d,16)}, {vr(a,4)}, {vr(b,4)}, {cc}')
def smf(o,v,s,idx): E(f'v_smfmac_f32_32x32x32_bf16 {vr(o,16)}, {vr(v,4)}, {vr(s,8)}, v{idx}')
def vexp(r): E(f'v_exp_f32 v{r}, v{r}')
def cvt(d,a,b): E(f'v_cvt_pk_bf16_f32 v{d}, v{a}, v{b}')
def set_vpad(regs,vt):
    E(f'v_and_b32 v{vt}, 27, v0\n v_cmp_eq_u32 vcc, 16, v{vt}\n v_mov_b32 v{vt}, 0x3f803f80\n s_nop 0\n v_cndmask_b32 v{regs[0]}, 0, v{vt}, vcc')
    for r in regs[1:]: E(f'v_mov_b32 v{r}, v{regs[0]}')
def xaddr(base,t_imm,vt):
    E(f'v_and_b32 v{vt}, 15, v0\n v_lshrrev_b32 v{base}, 5, v0\n v_xor_b32 v{base}, v{base}, v{vt}\n v_lshlrev_b32 v{base}, 4, v{base}')
    E(f'v_and_b32 v{vt}, 31, v0\n v_lshl_add_u32 v{base}, v{vt}, 10, v{base}\n v_add_u32 v{base}, {t_imm}, v{base}')
    for b in range(1,8): E(f'v_xor_b32 v{base+b}, {b<<5}, v{base}')
def traddr128(dst,vt,vt2,rowsel,colbase):
    E(f'v_lshrrev_b32 v{vt}, 5, v0\n v_lshlrev_b32 v{vt}, {rowsel}, v{vt}\n v_bfe_u32 v{vt2}, v0, 2, 2\n v_add_u32 v{vt}, v{vt}, v{vt2}\n v_lshlrev_b32 v{dst}, 7, v{vt}')
    E(f'v_bfe_u32 v{vt}, v0, 4, 1\n v_lshlrev_b32 v{vt}, 1, v{vt}\n v_bfe_u32 v{vt2}, v0, 1, 1\n v_add3_u32 v{vt}, v{vt}, v{vt2}, {colbase}')
    E(f'v_bfe_u32 v{vt2}, v0, 3, 1\n v_lshlrev_b32 v{vt2}, 2, v{vt2}\n v_xor_b32 v{vt}, v{vt}, v{vt2}\n v_lshl_add_u32 v{dst}, v{vt}, 4, v{dst}')
    E(f'v_and_b32 v{vt}, 1, v0\n v_lshl_add_u32 v{dst}, v{vt}, 3, v{dst}')
def dma128_voff(dst,vt,vt2,rowstride_sreg_or_shift,colbytes):
    E(f'v_lshrrev_b32 v{vt}, 3, v0')
    if isinstance(rowstride_sreg_or_shift,int): E(f'v_lshlrev_b32 v{dst}, {rowstride_sreg_or_shift}, v{vt}')
    else: E(f'v_mul_u32_u24 v{dst}, {rowstride_sreg_or_shift}, v{vt}')
    E(f'v_bfe_u32 v{vt}, v0, 4, 1\n v_lshlrev_b32 v{vt}, 2, v{vt}\n v_and_b32 v{vt2}, 7, v0\n v_xor_b32 v{vt}, v{vt}, v{vt2}\n v_lshl_add_u32 v{dst}, v{vt}, 4, v{dst}\n v_add_u32 v{dst}, {colbytes}, v{dst}')
def finalize(O,dst,vt,lbl_fb,lbl_back):
    E(f'v_add_f32 v{vt}, |v{O}|, |v{O+1}|')
    for r in range(2,8): E(f'v_add_f32 v{vt}, v{vt}, |v{O+r}|')
    E(f'v_mov_b32 v{vt+1}, 0x7f800000\n v_cmp_nlt_f32 {sr(sT,2)}, v{vt}, v{vt+1}')
    E(f'v_cmp_nle_f32 vcc, {hex(L_LO)}, v{O+8}\n s_or_b64 {sr(sT,2)}, {sr(sT,2)}, vcc')
    E(f'v_cmp_nge_f32 vcc, {hex(L_HI)}, v{O+8}\n s_or_b64 {sr(sT,2)}, {sr(sT,2)}, vcc\n s_cbranch_scc1 {lbl_fb}')
    LBL(lbl_back)
    E(f'v_rcp_f32 v{vt}, v{O+8}\n s_nop 0')
    for r in range(8): E(f'v_mul_f32 v{O+r}, v{O+r}, v{vt}')
    for r in range(4): cvt(dst+r,O+2*r,O+2*r+1)
    E(f'v_min_u32 v{dst}, -2, v{dst}')

TAIL=[]
RETRY=[]
def fallback(lbl,back,Q,O,S,K,V,IDX,vM,vK,vV,ntile,soff_setup,first_mask=None,last_mask=None,first_cond=None):
    global L
    save=L; L=[]
    LBL(lbl)
    soff_setup()
    E(f'v_mov_b32 v{vM}, 0xff800000')
    for p in (0,1):
        lp=uid('fbl')
        if p==1:
            E(f'v_mov_b32 v{S}, v{vM}\n s_nop 1\n v_permlane32_swap_b32 v{S}, v{vM}\n s_nop 1\n v_max_f32 v{vM}, v{vM}, v{S}')
            for r in range(16): E(f'v_mov_b32 v{O+r}, 0')
        E(f's_mov_b32 s{sT+5}, s{sT+2}\n s_mov_b32 s{sT+6}, 0')
        LBL(lp)
        E(f'buffer_load_dwordx4 {vr(K,4)}, v{vK}, {sr(sWS)}, s{sT+5} offen sc1')
        if p==1:
            E(f's_mov_b64 exec, {sr(sVM,2)}\n buffer_load_dwordx4 {vr(V,4)}, v{vV}, {sr(sWS)}, s{sT+5} offen offset:1024 sc1\n buffer_load_dwordx4 {vr(V+4,4)}, v{vV}, {sr(sWS)}, s{sT+5} offen offset:1536 sc1\n s_mov_b64 exec, -1')
        E('s_waitcnt vmcnt(0)')
        if first_mask is None:
            mfma(S,K,Q,'0')
        else:
            a=uid('fbm'); b=uid('fbm'); j=uid('fbm')
            E(f's_add_u32 s{sT+7}, s{sT+6}, 1\n s_cmp_eq_u32 s{sT+7}, s{sT+3}\n s_cbranch_scc1 {a}')
            E(f's_cmp_lt_u32 s{sT+6}, s{sT+4}\n s_cbranch_scc1 {b}')
            mfma(S,K,Q,'0'); E(f's_branch {j}')
            LBL(a); mfma(S,K,Q,last_mask); E(f's_branch {j}')
            LBL(b); mfma(S,K,Q,first_mask)
            LBL(j)
        E('s_nop 15')
        if p==0:
            for r in range(0,16,2): E(f'v_max3_f32 v{vM}, v{S+r}, v{S+r+1}, v{vM}')
        else:
            for r in range(16): E(f'v_sub_f32 v{S+r}, v{S+r}, v{vM}')
            for r in range(16): vexp(S+r)
            E('s_nop 1'); smf(O,V,S,IDX); smf(O,V+4,S+8,IDX)
        E(f's_add_u32 s{sT+5}, s{sT+5}, 2048\n s_add_u32 s{sT+6}, s{sT+6}, 1\n s_cmp_lt_u32 s{sT+6}, s{sT+3}\n s_cbranch_scc1 {lp}')
    E(f's_nop 15\n s_branch {back}')
    TAIL.extend(L); L=save

E('s_cmp_ge_u32 s2, 256\n s_cbranch_scc1 L_END')
E('s_load_dwordx16 s[4:19], s[0:1], 0\n s_load_dwordx8 s[20:27], s[0:1], 64')
E(f'v_lshrrev_b32 v1, 6, v0\n v_and_b32 v0, 63, v0\n v_readfirstlane_b32 s{sWave}, v1')
if MAP=='b':
    E(f's_and_b32 s{sT}, s2, 7\n s_lshr_b32 s{sT+1}, s2, 3\n s_and_b32 s{sT+2}, s{sT+1}, 3\n s_lshl_b32 s{sPb}, s{sT}, 2\n s_or_b32 s{sPb}, s{sPb}, s{sT+2}\n s_lshr_b32 s{sHg}, s{sT+1}, 2')
else:
    E(f's_bfe_u32 s{sPb}, s2, 0x20001\n s_lshl_b32 s{sPb}, s{sPb}, 3\n s_bfe_u32 s{sT}, s2, 0x30003\n s_or_b32 s{sPb}, s{sPb}, s{sT}\n s_and_b32 s{sHg}, s2, 1\n s_lshl_b32 s{sHg}, s{sHg}, 2\n s_lshr_b32 s{sT}, s2, 6\n s_or_b32 s{sHg}, s{sHg}, s{sT}')
E(f's_mov_b32 s{sVM}, 0xffff\n s_mov_b32 s{sVM+1}, 0xffff')
if DIAG:
    for i in range(12): E(f's_mov_b32 s{sST+i}, 0')
E('s_waitcnt lgkmcnt(0)')
stamp('A',0,'start'); stamp('B',0,'start')
E(f's_load_dword s{sTag}, s[26:27], {WS_EPOCH}')
srd(sX,4,2048*1024); srd(sWS,26,0x10000000)
E(f's_cmp_lt_u32 s{sWave}, 8\n s_cbranch_scc1 L_A')


vZ=1
SLOTB=20480; NSL=6
KVPOS=[81920,98304,114688,65536,0,16384,32768,49152]
L_PART=L_ST+16384
L_QA=L_ST; L_QB=L_ST+18432; L_WO=65536
sRot=sT+11; sStr=sT+10; sJ3=sT+9
def mktag(): E(f's_mul_i32 s{sTag}, s{sTag}, 0x9E3779B1\n s_add_u32 s{sTag}, s{sTag}, 0x7F4A7C15')
def touch(srd_,soff,n,vaddr,vd,sc1=False):
    for i in range(n):
        if i: E(f's_add_u32 s{soff}, s{soff}, 8192')
        E(f'buffer_load_dword v{vd}, v{vaddr}, {sr(srd_)}, s{soff} offen'+(' sc1' if sc1 else ''))
E(f's_setprio 3\n s_sub_u32 s{sB}, s{sWave}, 8')
C('---- loader set-up: wave b streams matrix b (wq | B q | B k | B v : 64 columns) and x rows 16b..16b+15, 32 k per chunk')
E(f's_cmp_eq_u32 s{sB}, 0\n s_cselect_b32 s{sWB}, s6, s16\n s_cselect_b32 s{sWB+1}, s7, s17\n s_mov_b32 s{sWB+2}, {512*3072}\n s_cselect_b32 s{sWB+2}, {512*1024}, s{sWB+2}\n s_mov_b32 s{sWB+3}, 0x20000')
E(f's_movk_i32 s{sStr}, 3072\n s_cselect_b32 s{sStr}, 0x400, s{sStr}\n s_max_u32 s{sT+1}, s{sB}, 1\n s_sub_u32 s{sT+1}, s{sT+1}, 1\n s_lshl_b32 s{sT+1}, s{sT+1}, 10\n s_lshl_b32 s{sT+2}, s{sHg}, 7\n s_add_u32 s{sT+1}, s{sT+1}, s{sT+2}')
dma128_voff(16,2,3,f's{sStr}',f's{sT+1}')
E('v_lshrrev_b32 v17, 3, v0\n v_lshlrev_b32 v17, 10, v17\n v_lshrrev_b32 v2, 4, v0\n v_and_b32 v3, 7, v0\n v_xor_b32 v2, v2, v3\n v_lshl_add_u32 v17, v2, 4, v17\n v_xor_b32 v18, 64, v17')
FIX0 = ROT=='r7'
if ROT=='r7':
    if MAP=='b': E(f's_and_b32 s{sRot}, s{sPb}, 3\n s_lshl_b32 s{sRot}, s{sRot}, 1\n s_add_u32 s{sRot}, s{sRot}, s{sHg}')
    else: E(f's_and_b32 s{sRot}, s{sHg}, 3\n s_lshl_b32 s{sRot}, s{sRot}, 1\n s_and_b32 s{sT+1}, s{sPb}, 7\n s_add_u32 s{sRot}, s{sRot}, s{sT+1}')
    E(f's_cmp_ge_u32 s{sRot}, 7\n s_cselect_b32 s{sT+1}, 7, 0\n s_sub_u32 s{sRot}, s{sRot}, s{sT+1}')
elif ROT=='full' and MAP=='b': E(f's_and_b32 s{sRot}, s{sPb}, 3\n s_lshl_b32 s{sRot}, s{sRot}, 1\n s_add_u32 s{sRot}, s{sRot}, s{sHg}\n s_lshl_b32 s{sRot}, s{sRot}, 1')
elif ROT=='full': E(f's_lshl_b32 s{sRot}, s{sHg}, 1\n s_add_u32 s{sRot}, s{sRot}, s{sPb}\n s_lshl_b32 s{sRot}, s{sRot}, 1')
elif ROT=='two': E(f's_xor_b32 s{sRot}, s{sPb}, s{sHg}\n s_and_b32 s{sRot}, s{sRot}, 1\n s_lshl_b32 s{sRot}, s{sRot}, 3')
else: E(f's_mov_b32 s{sRot}, 0')
E(f's_lshl_b32 s{sStr}, s{sStr}, 3')
E(f's_lshl_b32 s{sT+7}, s{sPb}, 2\n s_add_u32 s{sT+7}, s{sT+7}, s{sB}\n s_lshl_b32 s{sT+7}, s{sT+7}, 14\n s_lshl_b32 s{sT+8}, s{sB}, 12\n s_lshl_b32 s{sT+6}, s{sB}, 11')
VQ=[]
def vwait(tag,extra=''):
    if tag not in VQ: return
    i=max(n for n,t in enumerate(VQ) if t==tag)
    n=len(VQ)-1-i; del VQ[:i+1]
    E(f's_waitcnt vmcnt({n})'+extra)
def cdma(j):
    pb_=40960*((j//2)%3)
    if FIX0 and j<2: E(f's_mov_b32 s{sT+1}, {j}')
    elif FIX0: E(f's_add_u32 s{sT+1}, s{sRot}, {j//2}\n s_cmp_ge_u32 s{sT+1}, 8\n s_cselect_b32 s{sT+2}, 7, 0\n s_sub_u32 s{sT+1}, s{sT+1}, s{sT+2}\n s_lshl_b32 s{sT+1}, s{sT+1}, 1\n s_add_u32 s{sT+1}, s{sT+1}, {j&1}')
    else: E(f's_add_u32 s{sT+1}, s{sRot}, {j}\n s_and_b32 s{sT+1}, s{sT+1}, 15')
    if j&1:
        E(f's_lshr_b32 s{sT+2}, s{sT+1}, 1\n s_lshl_b32 s{sT+2}, s{sT+2}, 7\n s_add_u32 m0, s{sT+6}, {pb_+32768}\n s_add_u32 s{sT+2}, s{sT+2}, s{sT+7}')
        E(f'buffer_load_dwordx4 v17, {sr(sX)}, s{sT+2} offen lds\n s_add_u32 m0, s{sT+6}, {pb_+32768+1024}\n s_add_u32 s{sT+2}, s{sT+2}, 8192\n buffer_load_dwordx4 v18, {sr(sX)}, s{sT+2} offen lds')
        VQ.extend([f'c{j-1}']*2)
    E(f's_lshl_b32 s{sT+1}, s{sT+1}, 2\n s_mul_i32 s{sT+1}, s{sT+1}, s{sStr}')
    for n in range(4):
        E(f's_add_u32 m0, s{sT+8}, {pb_+16384*(j&1)+1024*n}')
        if n: E(f's_add_u32 s{sT+1}, s{sT+1}, s{sStr}')
        else: E('s_nop 0')
        E(f'buffer_load_dwordx4 v16, {sr(sWB)}, s{sT+1} offen lds')
    VQ.extend([f'c{j}']*4)
NINIT=int(OPT.get('ninit','3' if WT else '2'))
if WT: E('s_barrier'); stamp('B',9,'Bp') if OPT.get('bst') else None
for j in range(NINIT): cdma(j)
MU=128; MD=144; BQ=16; BK=24; BV=36; BS=64; BO=96; BIDX=60
E(f'v_mov_b32 v{vZ}, {L_ST}\n v_lshlrev_b32 v160, 4, v0\n v_lshlrev_b32 v163, 7, v0\n v_add_u32 v19, {hex(WS_FKVA)}, v{160 if DENSE else 163}\n s_waitcnt lgkmcnt(0)')
mktag()
vwait('c1'); E('s_barrier')
for j in range(NINIT,6): cdma(j)
def bconst(k):
    if k==0:
        E('v_lshrrev_b32 v161, 5, v0\n v_lshlrev_b32 v161, 8, v161\n v_and_b32 v2, 15, v0\n v_lshl_add_u32 v161, v2, 4, v161')
        srd(sWOA,12,512*1024); srd(sWOB,18,512*1024)
        E(f'v_and_b32 v4, 31, v0\n v_lshrrev_b32 v3, 5, v0\n v_lshlrev_b32 v3, 2, v3\n v_sub_u32 v4, v4, v3')
    if 1<=k<=4:
        E(f's_mov_b32 s{sT}, {hex(NEGBIG)}')
        for r in range(4*k-4,4*k):
            E(f'v_subrev_u32 v3, {8*(r//4)+r%4}, v4\n v_ashrrev_i32 v3, 31, v3\n v_and_b32 v{MD+r}, s{sT}, v3\n v_xor_b32 v{MU+r}, s{sT}, v{MD+r}')
    if k==5:
        set_vpad(list(range(BV,BV+24)),2); E(f'v_mov_b32 v{BIDX}, 0xdddddddd')
    if k==6:
        for r in range(32): E(f'v_mov_b32 v{BO+r}, 0')
    if k==8:
        E(f'v_and_b32 v2, 7, v0\n v_lshlrev_b32 v2, 5, v2\n v_add_u32 v2, s{sPb}, v2\n v_lshlrev_b32 v2, 7, v2\n v_and_b32 v3, 8, v0\n v_lshl_add_u32 v2, v3, 1, v2\n v_add_u32 v166, {hex(WS_FKVB)}, v2')
    if k==7:
        E(f'v_min_u32 v2, 4, v0\n s_sub_i32 s{sT}, s{sPb}, 4\n v_add_u32 v2, s{sT}, v2\n v_max_i32 v2, 0, v2\n s_lshl_b32 s{sT}, s{sHg}, 5\n v_add_u32 v2, s{sT}, v2\n v_lshlrev_b32 v2, 7, v2\n v_add_u32 v162, {hex(WS_FKVB+16)}, v2')
def kvdma(c):
    E(f's_lshr_b32 s{sT+1}, s2, 3\n s_add_u32 s{sT+1}, s{sT+1}, {c}\n s_and_b32 s{sT+1}, s{sT+1}, 3\n s_lshl_b32 s{sT+1}, s{sT+1}, 2\n s_add_u32 s{sT+1}, s{sT+1}, s{sB}\n s_lshl_b32 s{sT+1}, s{sT+1}, 12')
    E(f's_lshl_b32 s{sT+2}, s{sB}, 12\n s_add_u32 m0, s{sT+2}, {KVPOS[c]}\n s_add_u32 s{sT+1}, s{sT+1}, {hex(WS_KVA+(65536 if c>=4 else 0))}')
    for i in range(4): E(f'buffer_load_dwordx4 v160, {sr(sWS)}, s{sT+1} offen offset:{1024*i} sc1 lds')
    VQ.extend([f'kv{c}']*4)
for k in range(KVK+1):
    n0=len(L); vwait(f'c{k+2}' if k<KVK else 'c15')
    if len(L)>n0: w_=L.pop(); tacc('B',3,'B vm wait',w_)
    if OPT.get('bst') and k in (0,2,5,8,KVK): stamp('B',{0:1,2:3,5:6,8:7,KVK:8}[k],f'arrive B{k}')
    tacc('B',1,'B barrier wait','s_barrier')
    if k+6<=15: cdma(k+6)
    bconst(k)
    if k==KVK:
        E(f'ds_read_b32 v2, v{vZ} offset:{C_FL-L_ST}\n s_waitcnt lgkmcnt(0)\n v_readfirstlane_b32 s{sT}, v2\n s_cmp_lg_u32 s{sT}, 0\n s_cbranch_scc1 L_B_SEEN')
        poll(19,4,12,sleep=1)
        LBL('L_B_SEEN')
        stamp('B',4,'kvA flags seen')
        E(f's_lshl_b32 s{sT}, s2, 2\n s_add_u32 s{sT}, s{sT}, s{sB}\n s_cmp_eq_u32 s{sT}, 0\n s_cbranch_scc0 L_B_NOBUMP')
        flag_store(sT,2)
        LBL('L_B_NOBUMP')
        for c in range(3): kvdma(c)
stamp('B',1,'kv issued'); vwait('kv0'); stamp('B',3,'kv0 landed'); E('s_barrier')
stamp('B',5,'BQ')
vwait('kv2')
lds_add(C_K1,1,vZ,2)
stamp('B',2,'kv2 landed')
for c in range(3,8):
    kvdma(c)
    if c<7: vwait(f'kv{c}')
E(f's_lshl_b32 s{sT}, s{sB}, 11\n s_add_u32 s{sT}, s{sT}, {L_QB}\n v_add_u32 v2, s{sT}, v160')
for t in range(2): E(f'ds_read_b128 {vr(BQ+4*t,4)}, v2 offset:{1024*t}')
E('s_waitcnt vmcnt(0)')
lds_add(C_K2,1,vZ,2)
if OPT.get('nob'): stamp_flush(12); E('s_endpgm')
if MAP=='b':
    E(f's_cmp_ge_u32 s{sB}, 2\n s_cbranch_scc0 L_B_NOT\n s_lshr_b32 s{sT+1}, s2, 3\n s_lshl_b32 s{sT+1}, s{sT+1}, 14\n s_and_b32 s{sT+2}, s{sB}, 1\n s_lshl_b32 s{sT+2}, s{sT+2}, 13\n s_add_u32 s{sT+1}, s{sT+1}, s{sT+2}')
    touch(sWOB,sT+1,1,163,3); touch(sWOA,sT+1,1,163,3)
else:
    E(f's_cmp_eq_u32 s{sB}, 2\n s_cbranch_scc0 L_B_NOT\n s_lshr_b32 s{sT+1}, s2, 3\n s_lshl_b32 s{sT+1}, s{sT+1}, 14\n s_and_b32 s{sT+2}, s2, 1\n s_lshl_b32 s{sT+2}, s{sT+2}, 9\n s_add_u32 s{sT+1}, s{sT+1}, s{sT+2}')
    E('v_lshrrev_b32 v2, 2, v0\n v_lshlrev_b32 v2, 10, v2\n v_and_b32 v3, 3, v0\n v_lshl_add_u32 v2, v3, 7, v2')
    touch(sWOB,sT+1,1,2,3); touch(sWOA,sT+1,1,2,4)
LBL('L_B_NOT')
poll(166,4,4,sleep=3)
poll(162,4,4,sleep=3)
stamp('B',6,'kvB flags seen')
C('---- window attention, head 4hg+b, two query tiles')
E(f's_lshl_b32 s{sT+8}, s{sHg}, 2\n s_add_u32 s{sT+8}, s{sT+8}, s{sB}\n s_lshl_b32 s{sT+8}, s{sT+8}, 6\n s_lshl_b32 s{sT+9}, s{sPb}, 1\n s_sub_i32 s{sT+9}, s{sT+9}, 8')
def btile(j): E(f's_add_i32 s{sT}, s{sT+9}, {j}\n s_max_i32 s{sT}, s{sT}, 0\n s_add_u32 s{sT}, s{sT}, s{sT+8}\n s_lshl_b32 s{sT}, s{sT}, 11\n s_add_u32 s{sT}, s{sT}, {hex(WS_KVB)}')
def bload(j):
    k=BK+4*(j%3); v=BV+8*(j%3)
    btile(j)
    E(f'buffer_load_dwordx4 {vr(k,4)}, v160, {sr(sWS)}, s{sT} offen sc1\n s_mov_b64 exec, {sr(sVM,2)}')
    E(f'buffer_load_dwordx4 {vr(v,4)}, v161, {sr(sWS)}, s{sT} offen offset:1024 sc1\n buffer_load_dwordx4 {vr(v+4,4)}, v161, {sr(sWS)}, s{sT} offen offset:1536 sc1\n s_mov_b64 exec, -1')
bload(0); bload(1)
for j in (2,6):
    E(f's_add_i32 s{sT}, s{sT+9}, {j}\n s_max_i32 s{sT}, s{sT}, 0\n s_add_i32 s{sT+1}, s{sT+9}, 6\n s_min_i32 s{sT}, s{sT}, s{sT+1}\n s_cmp_lt_i32 s{sT}, 0')
    sk=uid('tk'); E(f's_cbranch_scc1 {sk}\n s_add_u32 s{sT}, s{sT}, s{sT+8}\n s_lshl_b32 s{sT}, s{sT}, 11\n s_add_u32 s{sT}, s{sT}, {hex(WS_KVB)}')
    E(f'buffer_load_dword v3, v163, {sr(sWS)}, s{sT} offen sc1'); LBL(sk)
E('s_waitcnt lgkmcnt(0)')
for j in range(10):
    k=BK+4*(j%3); v=BV+8*(j%3)
    if j+2<10: bload(j+2)
    E(f's_waitcnt vmcnt({3*min(2,9-j)})')
    sk=uid('bskip')
    if j<8: E(f's_cmp_lt_i32 s{sT+9}, {-j}\n s_cbranch_scc1 {sk}')
    qs=[q for q in (0,1) if 0<=j-q<=8]
    for q in qs: mfma(BS+16*q,k,BQ+4*q,{0:MU,8:MD}.get(j-q,'0'))
    E('s_nop 10' if len(qs)==2 else 's_nop 11')
    for q in qs:
        S=BS+16*q; O=BO+16*q
        for r in range(10): vexp(S+r)
        smf(O,v,S,BIDX)
        for r in range(10,16): vexp(S+r)
        E('s_nop 1'); smf(O,v+4,S+8,BIDX)
    if j<8: LBL(sk)
E(f's_lshl_b32 s{sT+10}, s{sPb}, 6\n s_lshl_b32 s{sT+11}, s{sHg}, 2\n s_add_u32 s{sT+10}, s{sT+10}, s{sT+11}\n s_add_u32 s{sT+10}, s{sT+10}, s{sB}\n s_lshl_b32 s{sT+10}, s{sT+10}, 10\n s_add_u32 s{sT+10}, s{sT+10}, {hex(WS_OB)}\n s_nop 10')
for q in range(2):
    fb=f'L_FB_B{q}'; bk=f'L_FB_B{q}_BACK'
    finalize(BO+16*q,4,2,fb,bk)
    E(f'buffer_store_dwordx4 v[4:7], v160, {sr(sWS)}, s{sT+10} offen sc1')
    if q==0: E(f's_add_u32 s{sT+10}, s{sT+10}, 32768\n s_nop 0')
    def setup(q=q):
        E(f's_add_i32 s{sT+2}, s{sT+9}, {q}\n s_cmp_ge_i32 s{sT+2}, 0\n s_cselect_b32 s{sT+4}, 1, 0\n s_max_i32 s{sT+2}, s{sT+2}, 0')
        E(f's_add_i32 s{sT+3}, s{sT+9}, {q+9}\n s_sub_u32 s{sT+3}, s{sT+3}, s{sT+2}\n s_add_u32 s{sT+2}, s{sT+2}, s{sT+8}\n s_lshl_b32 s{sT+2}, s{sT+2}, 11\n s_add_u32 s{sT+2}, s{sT+2}, {hex(WS_KVB)}')
    fallback(fb,bk,BQ+4*q,BO+16*q,BS,BK,BV,BIDX,3,160,161,None,setup,MU,MD)
C('---- output projection: wave (t=b&1, kh=b>>1): both 32-column tiles over heads 16kh..16kh+15 ; slot 0 = tile kh')
PB_=16; PA_=48; PW=80; PO=96
sTt=sT+10; sKh=sT+9; sOb=sT+11; sPass=sT+8
E(f's_lshr_b32 s{sKh}, s{sB}, 1\n s_and_b32 s{sTt}, s{sB}, 1\n s_lshl_b32 s{sT+2}, s{sHg}, 7')
dma128_voff(10,2,3,10,f's{sT+2}')
E(f's_lshl_b32 s{sT+1}, s{sKh}, 2'); traddr128(11,2,3,2,f's{sT+1}')
E(f's_lshl_b32 s{sT+1}, s{sKh}, 15\n s_add_u32 s{sT+1}, s{sT+1}, {L_WO}\n v_add_u32 v11, s{sT+1}, v11\n v_xor_b32 v9, 64, v11')
stamp('B',7,'oB published')
E(f's_lshl_b32 s{sT+4}, s{sPb}, 1\n s_add_u32 s{sT+4}, s{sT+4}, s{sTt}\n s_lshl_b32 s{sT+4}, s{sT+4}, 15\n s_lshl_b32 s{sT}, s{sKh}, 14\n s_add_u32 s{sOb}, s{sT+4}, s{sT}\n s_add_u32 s{sOb}, s{sOb}, {hex(WS_OB)}')
E(f's_lshl_b32 s{sT}, s{sHg}, 7\n s_add_u32 s{sT+4}, s{sT+4}, s{sT}\n s_lshl_b32 s{sT}, s{sKh}, 6\n s_add_u32 s{sT+4}, s{sT+4}, s{sT}')
E('v_and_b32 v2, 31, v0\n v_lshlrev_b32 v15, 10, v2\n v_lshrrev_b32 v3, 5, v0\n v_lshl_add_u32 v15, v3, 4, v15')
E(f'v_lshlrev_b32 v8, 2, v2\n s_lshl_b32 s{sT}, s{sPb}, 1\n s_add_u32 s{sT}, s{sT}, s{sTt}\n s_lshl_b32 s{sT}, s{sT}, 7\n s_add_u32 s{sT}, s{sT}, {hex(WS_G)}\n buffer_load_dword v14, v8, {sr(sWS)}, s{sT} offen sc1')
srd(sOUT,22,2048*1024)
E(f's_lshl_b32 s{sT}, s{sB}, 12\n v_add_u32 v164, s{sT}, v160\n v_xor_b32 v165, 0x2000, v164\n s_mov_b32 s{sPass}, 0')
lds_spin(C_MID,None,8,vZ,2,sleep=6)
def wodma(sr_):
    E(f's_lshl_b32 s{sT}, s{sB}, 14\n s_lshl_b32 s{sT+1}, s{sB}, 17')
    for n in range(16): E(f's_add_u32 m0, s{sT}, {L_WO+1024*n}\n s_add_u32 s{sT+2}, s{sT+1}, {8192*n}\n buffer_load_dwordx4 v10, {sr(sr_)}, s{sT+2} offen lds')
wodma(sWOB)
E('s_waitcnt vmcnt(0)')
lds_add(C_WO,1,vZ,2)
lds_spin(C_WO,None,4,vZ,2,sleep=2)
stamp('B',8,'woB landed')
LBL('L_B_GEMM')
def wread(s):
    f=PW+8*(s&1)
    for u,va in ((0,11),(1,9)): E(f'ds_read_b64_tr_b16 {vr(f+4*u,2)}, v{va} offset:{s*2048}\n ds_read_b64_tr_b16 {vr(f+4*u+2,2)}, v{va} offset:{s*2048+1024}')
wread(0)
def oloads(g0):
    for s in range(4*g0,16):
        if s%4==0: E(f's_add_u32 s{sT}, s{sOb}, {1024*s}')
        E(f'buffer_load_dwordx4 {vr(PO+4*s,4)}, v160, {sr(sWS)}, s{sT} offen offset:{1024*(s%4)} sc1')
E(f's_mov_b32 s{sCnt}, {SPIN_LIMIT}')
oloads(0)
for g in range(4):
    LBL(f'L_B_G{g}')
    E(f's_waitcnt vmcnt({12-4*g})')
    p=PO+16*g
    E(f'v_max_u32 v2, v{p}, v{p+4}\n v_max3_u32 v2, v{p+8}, v{p+12}, v2\n v_cmp_eq_u32 vcc, -1, v2\n s_cbranch_vccnz L_B_R{g}')
    LBL(f'L_B_K{g}')
    if DIAG and g==3:
        E(f's_cmp_eq_u32 s{sPass}, 0\n s_cbranch_scc1 L_B_NST'); stamp('B',10,'oA all seen'); LBL('L_B_NST')
    for s in range(4*g,4*g+4):
        if s<15: wread(s+1)
        E(f's_waitcnt lgkmcnt({4 if s<15 else 0})')
        f=PW+8*(s&1)
        for u in range(2): mfma(PA_+16*u,f+4*u,PO+4*s,'0' if s==0 else None)
    save=L; L=[]
    LBL(f'L_B_R{g}')
    E(f's_sub_u32 s{sCnt}, s{sCnt}, 1\n s_cbranch_scc1 L_B_K{g}\n s_cmp_eq_u32 s{sPass}, 0\n s_cbranch_scc0 L_B_RR{g}\n s_sleep 16')
    LBL(f'L_B_RR{g}')
    E('s_waitcnt vmcnt(0)')
    oloads(g)
    E(f's_branch L_B_G{g}')
    RETRY.extend(L); L=save
E(f's_cmp_eq_u32 s{sPass}, 0\n s_cbranch_scc0 L_B_FIN')
lds_add(C_WD,1,vZ,2)
E(f'v_sub_f32 v3, 1.0, v14\n s_add_u32 s{sOb}, s{sOb}, {hex((WS_OA-WS_OB)&0xffffffff)}\n s_mov_b32 s{sPass}, 1\n s_nop 7')
for r in range(32): E(f'v_mul_f32 v{PB_+r}, v{PA_+r}, v3')
lds_spin(C_WD,None,4,vZ,2,sleep=2)
wodma(sWOA)
E('s_waitcnt vmcnt(0)')
stamp('B',9,'out-proj B done, woA in')
E('s_barrier\n s_branch L_B_GEMM')
LBL('L_B_FIN')
E('s_nop 9')
for r in range(16): E(f'v_fma_f32 v{PA_+16+r}, v{PA_+16+r}, v14, v{PB_+16+r}')
for q in range(4): E(f'ds_write_b128 v164, {vr(PA_+16+4*q,4)} offset:{1024*q}')
for r in range(16): E(f'v_fma_f32 v{PA_+r}, v{PA_+r}, v14, v{PB_+r}')
E('s_waitcnt lgkmcnt(0)\n s_barrier')
for q in range(4): E(f'ds_read_b128 {vr(PB_+4*q,4)}, v165 offset:{1024*q}')
for q in range(4):
    E(f's_waitcnt lgkmcnt({3-q})')
    for r in range(4): E(f'v_add_f32 v{PA_+4*q+r}, v{PA_+4*q+r}, v{PB_+4*q+r}')
for r in range(8): cvt(PA_+r,PA_+2*r,PA_+2*r+1)
E('s_nop 1')
for gq in range(2): E(f'v_permlane32_swap_b32 v{PA_+4*gq}, v{PA_+4*gq+2}\n v_permlane32_swap_b32 v{PA_+4*gq+1}, v{PA_+4*gq+3}')
for gq in range(2): E(f'buffer_store_dwordx4 {vr(PA_+4*gq,4)}, v15, {sr(sOUT)}, s{sT+4} offen offset:{32*gq}')
if DIAG: E('s_waitcnt vmcnt(0)')
stamp('B',11,'out stored')
stamp_flush(12)
E('s_endpgm')
L.extend(RETRY)

LBL('L_A')
AIDX=8; AKA=9; AVA=10; AQ0=12; AQ1=16; AK=20; AV=28; SA=44; SB=60; OA=76; OB=92; XA=108; WA=112; AF=116
C('---- kvA: this WG makes 16 positions (hg&3) of K (hg<4) or V, and their gate ; wave w sums k in [64w,64w+64)')
L_PG=L_PART+8192; L_PT=L_PG+2048
E(f's_cmp_lt_u32 s{sHg}, 4\n s_cselect_b32 s{sWKV}, s8, s10\n s_cselect_b32 s{sWKV+1}, s9, s11\n s_mov_b32 s{sWKV+2}, 16384\n s_mov_b32 s{sWKV+3}, 0x20000')
E(f's_and_b32 s{sT+9}, s{sHg}, 3\n s_lshl_b32 s{sT+1}, s{sPb}, 16\n s_lshl_b32 s{sT+2}, s{sT+9}, 14\n s_add_u32 s{sT+1}, s{sT+1}, s{sT+2}\n s_lshl_b32 s{sT+2}, s{sWave}, 7\n s_add_u32 s{sT+1}, s{sT+1}, s{sT+2}')
E('v_and_b32 v5, 15, v0\n v_lshlrev_b32 v3, 10, v5\n v_and_b32 v4, 48, v0\n v_add_u32 v3, v3, v4')
for s_ in range(2): E(f'buffer_load_dwordx4 {vr(116+4*s_,4)}, v3, {sr(sX)}, s{sT+1} offen offset:{64*s_}')
C('---- pull this WG\'s share of the projection weights into L2 (one dword per line)')
if MAP=='c':
    E(f's_cmp_eq_u32 s{sWave}, 0\n s_cselect_b32 s{sWB}, s6, s16\n s_cselect_b32 s{sWB+1}, s7, s17\n s_mov_b32 s{sWB+2}, {512*3072}\n s_cselect_b32 s{sWB+2}, {512*1024}, s{sWB+2}\n s_mov_b32 s{sWB+3}, 0x20000')
    E(f's_movk_i32 s{sT+3}, 3072\n s_cselect_b32 s{sT+3}, 0x400, s{sT+3}\n s_cmp_lt_u32 s{sWave}, {4 if WT else 0}\n s_cbranch_scc0 L_A_NT')
    E(f's_max_u32 s{sT+1}, s{sWave}, 1\n s_sub_u32 s{sT+1}, s{sT+1}, 1\n s_lshl_b32 s{sT+1}, s{sT+1}, 10\n s_and_b32 s{sT+4}, s2, 1\n s_lshl_b32 s{sT+4}, s{sT+4}, 9\n s_add_u32 s{sT+1}, s{sT+1}, s{sT+4}')
    E(f's_lshr_b32 s{sT+4}, s2, 3\n s_lshl_b32 s{sT+4}, s{sT+4}, 4\n s_mul_i32 s{sT+4}, s{sT+4}, s{sT+3}\n s_add_u32 s{sT+1}, s{sT+1}, s{sT+4}')
    E(f'v_lshrrev_b32 v2, 2, v0\n v_mul_u32_u24 v2, s{sT+3}, v2\n v_and_b32 v3, 3, v0\n v_lshl_add_u32 v2, v3, 7, v2\n buffer_load_dword v164, v2, {sr(sWB)}, s{sT+1} offen')
    E('s_branch L_A_NT2')
    LBL('L_A_NT')
    E(f's_cmp_eq_u32 s{sWave}, 4\n s_cbranch_scc0 L_A_NT2\n s_lshr_b32 s{sT+4}, s2, 3\n s_lshl_b32 s{sT+4}, s{sT+4}, 9\n v_lshlrev_b32 v2, 7, v0\n s_mov_b64 exec, 15\n buffer_load_dword v164, v2, {sr(sWKV)}, s{sT+4} offen\n s_mov_b64 exec, -1')
    LBL('L_A_NT2')
elif WT:
    E(f's_cmp_lt_u32 s{sWave}, 2\n s_cselect_b32 s{sWB}, s6, s16\n s_cselect_b32 s{sWB+1}, s7, s17\n s_mov_b32 s{sWB+2}, {512*3072}\n s_cselect_b32 s{sWB+2}, {512*1024}, s{sWB+2}\n s_mov_b32 s{sWB+3}, 0x20000')
    E(f's_movk_i32 s{sT+3}, 3072\n s_cselect_b32 s{sT+3}, 0x400, s{sT+3}\n s_lshr_b32 s{sT+1}, s{sWave}, 1')
    E(f's_max_u32 s{sT+1}, s{sT+1}, 1\n s_sub_u32 s{sT+1}, s{sT+1}, 1\n s_lshl_b32 s{sT+1}, s{sT+1}, 10')
    E(f's_lshr_b32 s{sT+4}, s2, 3\n s_lshl_b32 s{sT+4}, s{sT+4}, 1\n s_and_b32 s{sT+5}, s{sWave}, 1\n s_add_u32 s{sT+4}, s{sT+4}, s{sT+5}\n s_lshl_b32 s{sT+4}, s{sT+4}, 3\n s_mul_i32 s{sT+4}, s{sT+4}, s{sT+3}\n s_add_u32 s{sT+1}, s{sT+1}, s{sT+4}')
    E(f'v_lshrrev_b32 v2, 3, v0\n v_mul_u32_u24 v2, s{sT+3}, v2\n v_and_b32 v3, 7, v0\n v_lshl_add_u32 v2, v3, 7, v2\n buffer_load_dword v164, v2, {sr(sWB)}, s{sT+1} offen')
srd(sG,20,1024)
for s_ in range(2): E(f'buffer_load_dwordx4 {vr(124+4*s_,4)}, v4, {sr(sG)}, s{sT+2} offen offset:{64*s_}')
E(f's_lshl_b32 s{sT}, s{sWave}, 11\n s_add_u32 m0, s{sT}, {L_ST}\n v_lshlrev_b32 v6, 4, v0')
for i in range(2): E(f'buffer_load_dwordx4 v6, {sr(sWKV)}, s{sT} offen offset:{1024*i} lds')
C('---- address of this wave\'s o slot')
sOA=sT+8
E(f's_bfe_u32 s{sOA}, s{sWave}, 0x10001\n s_lshl_b32 s{sT+1}, s{sPb}, 1\n s_add_u32 s{sOA}, s{sOA}, s{sT+1}\n s_lshl_b32 s{sOA}, s{sOA}, 5')
E(f's_lshl_b32 s{sT+1}, s{sHg}, 2\n s_add_u32 s{sOA}, s{sOA}, s{sT+1}\n s_lshr_b32 s{sT+1}, s{sWave}, 2\n s_lshl_b32 s{sT+1}, s{sT+1}, 1\n s_add_u32 s{sOA}, s{sOA}, s{sT+1}\n s_and_b32 s{sT+1}, s{sWave}, 1\n s_add_u32 s{sOA}, s{sOA}, s{sT+1}\n s_lshl_b32 s{sOA}, s{sOA}, 10\n s_add_u32 s{sOA}, s{sOA}, {hex(WS_OA)}')
E(f'v_mov_b32 v{vZ}, {L_ST}\n v_mov_b32 v2, 0\n v_lshlrev_b32 v11, 2, v0\n v_add_u32 v3, {L_C}, v11')
E(f's_cmp_eq_u32 s{sWave}, 0\n s_cbranch_scc0 L_A_NOZ\n ds_write_b32 v3, v2')
LBL('L_A_NOZ')
E(f'v_lshrrev_b32 v4, 4, v0\n v_lshlrev_b32 v4, 8, v4\n v_lshl_add_u32 v4, v5, 3, v4\n s_add_u32 s{sT}, s{sT}, {L_ST}\n v_add_u32 v4, s{sT}, v4')
E(f's_and_b32 s{sT+1}, s{sWave}, 1\n s_lshl_b32 s{sT+1}, s{sT+1}, 2'); traddr128(WA,2,3,3,f's{sT+1}')
E(f's_lshr_b32 s{sT+1}, s{sWave}, 1\n s_lshl_b32 s{sT+1}, s{sT+1}, 12\n v_add_u32 v{WA}, s{sT+1}, v{WA}')
E(f'v_and_b32 v2, 31, v0\n v_bfe_u32 v3, v0, 1, 3\n v_lshrrev_b32 v7, 5, v0\n v_xor_b32 v3, v3, v7\n v_lshlrev_b32 v{XA}, 7, v2\n v_lshl_add_u32 v{XA}, v3, 4, v{XA}')
for s_ in range(1,4): E(f'v_xor_b32 v{XA+s_}, {s_<<5}, v{XA}')
set_vpad(list(range(AV,AV+16)),2)
E(f'v_mov_b32 v{AIDX}, 0xdddddddd')
E(f's_and_b32 s{sT+1}, s{sWave}, 1\n s_lshl_b32 s{sT+1}, s{sT+1}, 11\n s_add_u32 s{sT+1}, s{sT+1}, 0x10000\n v_add_u32 v{AKA}, s{sT+1}, v6')
E(f'v_lshlrev_b32 v7, 8, v7\n v_lshl_add_u32 v7, v5, 4, v7\n v_add_u32 v{AVA}, s{sT+1}, v7')
E(f's_lshl_b32 s{sT+1}, s{sWave}, 10\n s_add_u32 s{sT+1}, s{sT+1}, {L_PART}\n v_add_u32 v2, s{sT+1}, v6\n s_lshl_b32 s{sT+1}, s{sWave}, 8\n s_add_u32 s{sT+1}, s{sT+1}, {L_PG}\n v_add_u32 v3, s{sT+1}, v11')
E('s_waitcnt vmcnt(0) lgkmcnt(0)')
for s_ in range(2): E(f'ds_read_b64_tr_b16 {vr(132+4*s_,2)}, v4 offset:{1024*s_}\n ds_read_b64_tr_b16 {vr(134+4*s_,2)}, v4 offset:{1024*s_+128}')
mktag()
E(f's_cmp_lt_u32 s{sHg}, 4\n s_waitcnt lgkmcnt(0)')
for s_ in range(2): E(f'v_mfma_f32_16x16x32_bf16 v[144:147], {vr(124+4*s_,4)}, {vr(116+4*s_,4)}, {"0" if s_==0 else "v[144:147]"}')
E('s_cbranch_scc0 L_A_VJOB')
for s_ in range(2): E(f'v_mfma_f32_16x16x32_bf16 v[140:143], {vr(132+4*s_,4)}, {vr(116+4*s_,4)}, {"0" if s_==0 else "v[140:143]"}')
E('s_branch L_A_KVJ')
LBL('L_A_VJOB')
for s_ in range(2): E(f'v_mfma_f32_16x16x32_bf16 v[140:143], {vr(116+4*s_,4)}, {vr(132+4*s_,4)}, {"0" if s_==0 else "v[140:143]"}')
LBL('L_A_KVJ')
E('s_nop 7\n ds_write_b32 v3, v144\n ds_write_b128 v2, v[140:143]')
stamp('A',2,'kvA partial') if not OPT.get('acc') else None
E('s_waitcnt vmcnt(0) lgkmcnt(0)\n s_barrier')
E(f's_cmp_eq_u32 s{sWave}, 7\n s_cbranch_scc0 L_A_BS')
C('---- wave 7: reduce the eight partial tiles, store')
E(f'v_add_u32 v3, {L_PART}, v6\n v_add_u32 v4, {L_PG}, v11')
for i in range(8): E(f'ds_read_b128 {vr(116+4*i,4)}, v3 offset:{1024*i}')
for i in range(4): E(f'ds_read2st64_b32 {vr(148+2*i,2)}, v4 offset0:{2*i} offset1:{2*i+1}')
E(f's_lshl_b32 s{sT+3}, s{sPb}, 1\n s_lshr_b32 s{sT+4}, s{sT+9}, 1\n s_add_u32 s{sT+3}, s{sT+3}, s{sT+4}\n s_lshl_b32 s{sT+3}, s{sT+3}, 11\n s_add_u32 s{sT+3}, s{sT+3}, {hex(WS_KVA)}\n s_and_b32 s{sT+4}, s{sT+9}, 1')
E(f's_cmp_lt_u32 s{sHg}, 4\n s_cselect_b32 s{sT+5}, 9, 3\n s_cselect_b32 s{sT+6}, 3, 8\n s_cselect_b32 s{sT+1}, 8, 9\n s_cselect_b32 s{sT}, 0, 0x400')
E(f's_lshl_b32 s{sT+4}, s{sT+4}, s{sT+1}\n s_add_u32 s{sT+3}, s{sT+3}, s{sT+4}\n s_add_u32 s{sT+3}, s{sT+3}, s{sT}')
E(f'v_bfe_u32 v3, v0, 4, 1\n v_lshrrev_b32 v4, 5, v0\n v_lshlrev_b32 v5, 4, v5\n v_lshl_add_u32 v5, v3, s{sT+5}, v5\n v_lshl_add_u32 v5, v4, s{sT+6}, v5')
if DENSE: E(f's_lshl_b32 s{sT+7}, s{sPb}, 3\n s_add_u32 s{sT+7}, s{sT+7}, s{sHg}\n s_lshl_b32 s{sT+7}, s{sT+7}, 2\n s_add_u32 s{sT+7}, s{sT+7}, {hex(WS_FKVA)}')
else: E(f's_lshl_b32 s{sT+7}, s{sPb}, 1\n s_lshr_b32 s{sT+1}, s{sHg}, 2\n s_add_u32 s{sT+7}, s{sT+7}, s{sT+1}\n s_lshl_b32 s{sT+7}, s{sT+7}, 7\n s_lshl_b32 s{sT+1}, s{sT+9}, 2\n s_add_u32 s{sT+7}, s{sT+7}, s{sT+1}\n s_add_u32 s{sT+7}, s{sT+7}, {hex(WS_FKVA)}')
E('s_waitcnt lgkmcnt(4)')
for st_ in (16,8,4):
    for r in range(st_): E(f'v_add_f32 v{116+r}, v{116+r}, v{116+st_+r}')
cvt(116,116,117); cvt(117,118,119)
E(f'buffer_store_dwordx2 v[116:117], v5, {sr(sWS)}, s{sT+3} offen sc1')
E(f's_cmp_lt_u32 s{sHg}, 4\n s_waitcnt lgkmcnt(0)\n s_cbranch_scc0 L_A_BS')
for st_ in (4,2,1):
    for r in range(st_): E(f'v_add_f32 v{148+r}, v{148+r}, v{148+st_+r}')
E(f's_mov_b32 s{sT}, {hex(f2u(-math.log2(math.e)))}\n v_mul_f32 v148, s{sT}, v148\n v_exp_f32 v148, v148')
E(f's_lshl_b32 s{sT}, s{sPb}, 2\n s_add_u32 s{sT}, s{sT}, s{sT+9}\n v_add_f32 v148, 1.0, v148\n v_rcp_f32 v148, v148\n s_lshl_b32 s{sT}, s{sT}, 6\n s_add_u32 s{sT}, s{sT}, {hex(WS_G)}')
E(f's_mov_b64 exec, 0xffff\n buffer_store_dword v148, v11, {sr(sWS)}, s{sT} offen sc1\n s_mov_b64 exec, -1')
LBL('L_A_BS')
if WT: E('s_barrier')
stamp('A',7,'Bs'); cstamp('A',10,'Bs')
AFB=[116,140,76]
def aread(k,i):
    s=i//4; f=AFB[k%3]+12*s; h=k&1; j=i%4
    if j<2: E(f'ds_read_b64_tr_b16 {vr(f+2*j,2)}, v{WA} offset:{16384*h+s*2048+512*j}')
    else: E(f'ds_read_b128 {vr(f+4+4*(j-2),4)}, v{XA+2*h+s} offset:{32768+4096*(j-2)}')
def bump(k):
    d=40960 if (k//2)%3 else -81920
    for r in (XA,XA+1,XA+2,XA+3,WA): E(f'v_add_u32 v{r}, {hex(d&0xffffffff)}, v{r}')
for i in range(8): aread(0,i)
E('s_waitcnt lgkmcnt(7)')
for i in range(8): aread(1,i)
E(f's_cmp_ge_u32 s{sWave}, 6\n s_cbranch_scc1 L_A_GV')
sSt=sT+6
save=L; L=[]
LBL('L_A_DUTY')
C('waves 6 and 7, once per chunk, never blocking the projection: s{sT+4} = chunk, s{sSt} = state')
E(f's_getreg_b32 s{sT}, hwreg(HW_REG_IB_STS, 0, 4)\n s_cmp_eq_u32 s{sWave}, 7\n s_cbranch_scc0 L_A_D6')
E(f's_cmp_ge_u32 s{sT+4}, {FORCE_K}\n s_cselect_b32 s{sT}, 0, s{sT}\n s_cmp_eq_u32 s{sT}, 0\n s_cbranch_scc0 L_A_DRET\n s_waitcnt vmcnt(0)')
flag_store(sT+7,2)
stamp('A',3,'kvA flag sent')
E(f's_mov_b32 s{sSt}, 2\n s_setpc_b64 s[82:83]')
LBL('L_A_D6')
E(f's_cmp_lt_u32 s{sT+4}, {PK}\n s_cbranch_scc1 L_A_DRET\n s_cmp_eq_u32 s{sSt}, 0\n s_cbranch_scc1 L_A_DISS\n s_cmp_eq_u32 s{sT}, 0\n s_cbranch_scc0 L_A_DRET\n s_waitcnt vmcnt(0)')
for i in range(4): E(f'v_xor_b32 v{12+i}, s{sTag}, v{12+i}')
E('v_or3_b32 v12, v12, v13, v14\n v_or_b32 v12, v12, v15\n v_cmp_ne_u32 vcc, 0, v12\n s_cbranch_vccnz L_A_DISS')
C('all K/V pieces are out: fetch this WG\'s 4KB share into L2 and tell the loaders')
E(f's_lshr_b32 s{sT+5}, s2, 3\n s_lshl_b32 s{sT+5}, s{sT+5}, 12\n s_add_u32 s{sT+5}, s{sT+5}, {hex(WS_KVA)}\n v_mov_b32 v13, 1\n s_mov_b32 s{sSt}, 2')
E(f's_mov_b32 exec_hi, 0\n buffer_load_dword v14, v16, {sr(sWS)}, s{sT+5} offen sc1\n ds_write_b32 v{vZ}, v13 offset:{C_FL-L_ST}\n s_mov_b64 exec, -1\n s_waitcnt lgkmcnt(0)')
stamp('A',3,'kvA flag sent')
E('s_setpc_b64 s[82:83]')
LBL('L_A_DISS')
E(f's_mov_b32 s{sT+5}, {hex(WS_FKVA)}\n s_mov_b32 s{sSt}, 1\n buffer_load_dwordx4 v[12:15], v{6 if DENSE else 16}, {sr(sWS)}, s{sT+5} offen sc1')
LBL('L_A_DRET')
E('s_setpc_b64 s[82:83]')
DUTY=L; L=save
E(f's_branch L_A_GQ')
L.extend(DUTY)
for var in (0,1):
    if var: LBL('L_A_GV'); E(f's_mov_b32 s{sSt}, 0\n v_lshlrev_b32 v16, 7, v0')
    else: LBL('L_A_GQ')
    for k in range(16):
        f=AFB[k%3]
        def mm(s,t):
            g=f+12*s; c='0' if (k==0 and s==0) else None
            if var==0: mfma(SA+16*t,g,g+4+4*t,c)
            else: mfma(SA+16*t,g+4+4*t,g,c)
        E(f's_waitcnt lgkmcnt({8 if k<15 else 0})')
        mm(0,0); mm(0,1)
        if var==1 and k<=KVK:
            sk=uid('dn')
            E(f's_cmp_eq_u32 s{sSt}, 2\n s_cbranch_scc1 {sk}\n s_mov_b32 s{sT+4}, {k}\n s_call_b64 s[82:83], L_A_DUTY')
            LBL(sk)
        if k<=KVK: tacc('A',2,'A barrier wait','s_barrier')
        if k+2<16:
            if (k&1)==0: bump(k+2)
            for i in range(4): aread(k+2,i)
            mm(1,0)
            for i in range(4,7): aread(k+2,i)
            E('s_waitcnt lgkmcnt(14)'); aread(k+2,7)
            mm(1,1)
        else:
            mm(1,0); mm(1,1)
        if k==SENTK:
            C('mark this WG\'s o slots as not yet written (acknowledged before this wave\'s flag)')
            E(f'v_mov_b32 v164, -1\n v_mov_b32 v165, -1\n v_mov_b32 v166, -1\n v_mov_b32 v167, -1\n s_add_u32 s{sT+1}, s{sOA}, {hex(WS_OB-WS_OA)}')
            E(f'buffer_store_dwordx4 v[164:167], v6, {sr(sWS)}, s{sOA} offen sc1\n buffer_store_dwordx4 v[164:167], v6, {sr(sWS)}, s{sT+1} offen sc1')
        if k==15:
            for r in range(32): E(f'v_mov_b32 v{OA+r}, 0')
    if var==0:
        stamp('A',1,'proj loop done'); cstamp('A',11,'pl')
        E(f's_cmp_ge_u32 s{sWave}, 4\n s_cbranch_scc1 L_A_EK')
        C('---- q (A / B): scale, pack, hand over through LDS')
        E(f's_cmp_lt_u32 s{sWave}, 2\n s_mov_b32 s{sT+1}, {L_QB}\n s_cselect_b32 s{sT+1}, {L_QA}, s{sT+1}\n s_and_b32 s{sT+2}, s{sWave}, 1\n s_lshl_b32 s{sT+2}, s{sT+2}, 12\n s_add_u32 s{sT+1}, s{sT+1}, s{sT+2}\n v_add_u32 v2, s{sT+1}, v6\n s_mov_b32 s{sT+1}, {hex(CSCALE)}\n s_nop 3')
        for t in range(2):
            d=SA+16*t
            for r in range(16): E(f'v_mul_f32 v{d+r}, s{sT+1}, v{d+r}')
            for r in range(8): cvt(d+r,d+2*r,d+2*r+1)
            for hh in range(2): E(f'ds_write_b128 v2, {vr(d+4*hh,4)} offset:{2048*hh+1024*t}')
        E('s_branch L_A_B8')
        LBL('L_A_EK')
        E(f's_lshl_b32 s{sT+4}, s{sHg}, 2\n s_and_b32 s{sT+5}, s{sWave}, 1\n s_lshl_b32 s{sT+5}, s{sT+5}, 1\n s_add_u32 s{sT+4}, s{sT+4}, s{sT+5}\n s_lshl_b32 s{sT+4}, s{sT+4}, 6\n s_lshl_b32 s{sT+5}, s{sPb}, 1\n s_add_u32 s{sT+4}, s{sT+4}, s{sT+5}\n s_lshl_b32 s{sT+4}, s{sT+4}, 11\n s_add_u32 s{sT+4}, s{sT+4}, {hex(WS_KVB)}\n s_add_u32 s{sT+5}, s{sT+4}, 0x20000\n s_nop 1')
        for t in range(2):
            d=SA+16*t
            for r in range(8): cvt(d+r,d+2*r,d+2*r+1)
            for hh in range(2): E(f'buffer_store_dwordx4 {vr(d+4*hh,4)}, v6, {sr(sWS)}, s{sT+4+hh} offen offset:{2048*t} sc1')
        E('s_branch L_A_B8')
    else:
        E(f's_lshl_b32 s{sT+4}, s{sHg}, 2\n s_and_b32 s{sT+5}, s{sWave}, 1\n s_lshl_b32 s{sT+5}, s{sT+5}, 1\n s_add_u32 s{sT+4}, s{sT+4}, s{sT+5}\n s_lshl_b32 s{sT+4}, s{sT+4}, 6\n s_lshl_b32 s{sT+5}, s{sPb}, 1\n s_add_u32 s{sT+4}, s{sT+4}, s{sT+5}\n s_lshl_b32 s{sT+4}, s{sT+4}, 11\n s_add_u32 s{sT+4}, s{sT+4}, {hex(WS_KVB+1024)}')
        E('v_bfe_u32 v2, v0, 4, 1\n v_lshl_add_u32 v2, v2, 17, v7\n s_nop 1')
        for t in range(2):
            d=SA+16*t
            for r in range(8): cvt(d+r,d+2*r,d+2*r+1)
            E('s_nop 1')
            for gq in range(2): E(f'v_permlane32_swap_b32 v{d+4*gq}, v{d+4*gq+2}\n v_permlane32_swap_b32 v{d+4*gq+1}, v{d+4*gq+3}')
            for gq in range(2): E(f'buffer_store_dwordx4 {vr(d+4*gq,4)}, v2, {sr(sWS)}, s{sT+4} offen offset:{2048*t+512*gq} sc1')
LBL('L_A_B8')
E(f's_lshr_b32 s{sT+1}, s{sWave}, 2\n s_lshl_b32 s{sT+1}, s{sT+1}, 1\n s_and_b32 s{sT+2}, s{sWave}, 1\n s_add_u32 s{sT+1}, s{sT+1}, s{sT+2}\n s_lshl_b32 s{sT+1}, s{sT+1}, 11\n s_bfe_u32 s{sT+2}, s{sWave}, 0x10001\n s_lshl_b32 s{sT+2}, s{sT+2}, 10\n s_add_u32 s{sT+1}, s{sT+1}, s{sT+2}\n s_add_u32 s{sT+1}, s{sT+1}, {L_QA}\n v_add_u32 v2, s{sT+1}, v6\n v_xor_b32 v3, 0x800, v2')
E(f's_lshl_b32 s{sT+6}, s{sHg}, 5\n s_add_u32 s{sT+6}, s{sT+6}, s{sPb}\n s_lshl_b32 s{sT+6}, s{sT+6}, 7\n s_lshl_b32 s{sT+1}, s{sWave}, 2\n s_add_u32 s{sT+6}, s{sT+6}, s{sT+1}\n s_add_u32 s{sT+6}, s{sT+6}, {hex(WS_FKVB)}')
E('s_waitcnt lgkmcnt(0)\n s_barrier')
stamp('A',4,'BQ'); cstamp('A',8,'BQ')
def kvoff(j): return (KVPOS[j//4]-(65536 if j<16 else 0))+(j%4)*4096
def ldk(j): E(f'ds_read_b128 {vr(AK+4*(j&1),4)}, v{AKA} offset:{kvoff(j)}')
def ldv(j): E(f's_mov_b64 exec, {sr(sVM,2)}\n ds_read_b128 {vr(AV+8*(j&1),4)}, v{AVA} offset:{kvoff(j)+1024}\n ds_read_b128 {vr(AV+8*(j&1)+4,4)}, v{AVA} offset:{kvoff(j)+1536}\n s_mov_b64 exec, -1')
E(f'ds_read_b128 {vr(AQ0,4)}, v2\n ds_read_b128 {vr(AQ1,4)}, v3')
if PRIO in ('step','step4'): E('s_setprio 2')
if PRIO=='half':
    E(f's_cmp_ge_u32 s{sWave}, 4\n s_cbranch_scc0 L_A_NP\n s_setprio 1'); LBL('L_A_NP')
ldk(0); ldv(0); ldk(1)
E('s_waitcnt lgkmcnt(3)'); mfma(SA,AK,AQ0,'0'); E('s_nop 11')
def pair_iter(j,ldk_,ldv_,first=False,last=0,extra=0):
    kc=AK+4*(j&1); kn=AK+4*((j+1)&1); vc=AV+8*(j&1); vp=AV+8*((j+1)&1)
    vexp(SA); vexp(SA+1)
    if not first: smf(OB,vp+4,SB+8,AIDX)
    for r in range(2,5): vexp(SA+r)
    mfma(SB,kc,AQ1,'0')
    for r in range(5,10): vexp(SA+r)
    E(f's_waitcnt lgkmcnt({(1 if last<2 else 0)+extra})')
    vexp(SA+10); smf(OA,vc,SA,AIDX)
    for r in range(11,16): vexp(SA+r)
    vexp(SB); vexp(SB+1); smf(OA,vc+4,SA+8,AIDX)
    if last<2: ldv_()
    for r in range(2,5): vexp(SB+r)
    if last<2:
        E('s_waitcnt lgkmcnt(2)'); mfma(SA,kn,AQ0,'0')
    if last<1: ldk_()
    for r in range(5,11): vexp(SB+r)
    smf(OB,vc,SB,AIDX)
    for r in range(11,16): vexp(SB+r)
def aflag(force,init=False):
    sk=uid('fl')
    E(f's_cmp_eq_u32 s{sT+5}, 0\n s_cbranch_scc0 {sk}')
    if not force: E(f's_getreg_b32 s{sT}, hwreg(HW_REG_IB_STS, 0, 4)\n s_cmp_eq_u32 s{sT}, 0\n s_cbranch_scc0 {sk}')
    E(f's_waitcnt vmcnt(0)\n s_mov_b32 s{sT+5}, 1'); flag_store(sT+6,2); LBL(sk)
if ROLL:
    AKN=120; AVN=121; sC=sT+4
    def rk(j):
        a_=AKA if j<4 else AKN
        return lambda: E(f'ds_read_b128 {vr(AK+4*(j&1),4)}, v{a_} offset:{(j%4)*4096}')
    def rv(j):
        a_=AVA if j<4 else AVN
        return lambda: E(f's_mov_b64 exec, {sr(sVM,2)}\n ds_read_b128 {vr(AV+8*(j&1),4)}, v{a_} offset:{(j%4)*4096+1024}\n ds_read_b128 {vr(AV+8*(j&1)+4,4)}, v{a_} offset:{(j%4)*4096+1536}\n s_mov_b64 exec, -1')
    for r in range(8,16): E(f'v_mov_b32 v{SB+r}, 0')
    E(f'v_add_u32 v{AKN}, 0x8000, v{AKA}\n v_add_u32 v{AVN}, 0x8000, v{AVA}\n v_add_u32 v{AKA}, 0x4000, v{AKA}\n v_add_u32 v{AVA}, 0x4000, v{AVA}\n s_mov_b32 s{sC}, 0\n s_mov_b32 s{sT+5}, 0')
    L.append('.p2align 6')
    LBL('L_A_LOOP')
    pair_iter(0,rk(2),rv(1)); pair_iter(1,rk(3),rv(2))
    E(f's_cmp_gt_u32 s{sC}, 6\n s_cbranch_scc1 L_A_LAST\n s_bitcmp1_b32 0x5f, s{sC}\n s_cbranch_scc1 L_A_RARE')
    LBL('L_A_RBACK')
    pair_iter(2,rk(4),rv(3)); pair_iter(3,rk(5),rv(4))
    E(f's_add_u32 s{sC}, s{sC}, 1\n s_mov_b32 s{sT+1}, 0x4000\n s_cmp_eq_u32 s{sC}, 2\n s_cselect_b32 s{sT+1}, {hex((-49152)&0xffffffff)}, s{sT+1}\n s_cmp_eq_u32 s{sC}, 3\n s_cselect_b32 s{sT+1}, {hex((-65536)&0xffffffff)}, s{sT+1}')
    E(f'v_mov_b32 v{AKA}, v{AKN}\n v_mov_b32 v{AVA}, v{AVN}\n v_add_u32 v{AKN}, s{sT+1}, v{AKN}\n v_add_u32 v{AVN}, s{sT+1}, v{AVN}\n s_branch L_A_LOOP')
    LBL('L_A_RARE')
    E(f's_waitcnt lgkmcnt(0)\n s_cmp_gt_u32 s{sC}, 3\n s_cbranch_scc1 L_A_R4')
    E(f's_cmp_eq_u32 s{sC}, 0\n s_cbranch_scc0 L_A_R1'); lds_spin(C_K1,None,4,vZ,2,sleep=0)
    LBL('L_A_R1')
    E(f's_cmp_eq_u32 s{sC}, 2\n s_cbranch_scc0 L_A_R2'); lds_spin(C_K2,None,4,vZ,2,sleep=1)
    LBL('L_A_R2')
    E(f's_cmp_eq_u32 s{sC}, 3\n s_cbranch_scc1 L_A_R3'); aflag(False); E('s_branch L_A_RBACK')
    LBL('L_A_R3'); aflag(True); E('s_branch L_A_RBACK')
    LBL('L_A_R4')
    E(f's_cmp_eq_u32 s{sC}, 4\n s_cbranch_scc0 L_A_R6'); lds_add(C_MID,1,vZ,2); E('s_waitcnt lgkmcnt(0)\n s_branch L_A_RBACK')
    LBL('L_A_R6'); lds_spin(C_MID,None,8,vZ,2,sleep=1); E('s_branch L_A_RBACK')
    LBL('L_A_LAST')
    pair_iter(2,None,rv(3),last=1); pair_iter(3,None,None,last=2)
else:
    E(f's_mov_b32 s{sT+5}, 0')
    for j in range(32):
        if j==2: E('s_waitcnt lgkmcnt(0)'); lds_spin(C_K1,None,4,vZ,2,sleep=0)
        if j in (1,2,3,5): aflag(j==5)
        if PRIO=='step' and j in (11,22): E(f's_setprio {1 if j==11 else 0}')
        if PRIO=='step4' and j in (6,16): E(f's_setprio {1 if j==6 else 0}')
        if OPT.get('jst') and j in (2,4,8,16,24): E('s_waitcnt lgkmcnt(0)'); cstamp('A',{2:1,4:2,8:3,16:7,24:10}[j],f'J{j}')
        if j==10: E('s_waitcnt lgkmcnt(0)'); lds_spin(C_K2,None,4,vZ,2,sleep=1)
        if j==16: lds_add(C_MID,1,vZ,2)
        if j==28: E('s_waitcnt lgkmcnt(0)'); lds_spin(C_MID,None,8,vZ,2,sleep=1)
        def lv(j=j):
            if j==15: E(f'v_subrev_u32 v{AVA}, 0x10000, v{AVA}')
            ldv(j+1)
        def lk(j=j):
            if j==14: E(f'v_subrev_u32 v{AKA}, 0x10000, v{AKA}')
            ldk(j+2)
        pair_iter(j,lk,lv,first=(j==0),last=(2 if j==31 else 1 if j==30 else 0),extra=(1 if j==16 else 0))
E('s_nop 1'); smf(OB,AV+8+4,SB+8,AIDX)
stamp('A',5,'A loop done'); cstamp('A',9,'loop done')
C('---- pair exchange: send slot B, finish slot A')
E(f's_mul_i32 s{sT+1}, s{sWave}, 2304\n s_add_u32 s{sT+1}, s{sT+1}, {L_EX}\n v_add_u32 v2, s{sT+1}, v6\n v_lshlrev_b32 v3, 2, v0\n v_add_u32 v3, s{sT+1}, v3')
E(f's_xor_b32 s{sT+2}, s{sWave}, 1\n s_mul_i32 s{sT+2}, s{sT+2}, 2304\n s_add_u32 s{sT+2}, s{sT+2}, {L_EX}\n v_add_u32 v4, s{sT+2}, v6\n v_lshlrev_b32 v5, 2, v0\n v_add_u32 v5, s{sT+2}, v5\n s_nop 4')
E(f'ds_write_b128 v2, {vr(OB,4)}\n ds_write_b128 v2, {vr(OB+4,4)} offset:1024\n ds_write_b32 v3, v{OB+8} offset:2048')
E('s_waitcnt lgkmcnt(0)\n s_barrier')
E(f'ds_read_b128 {vr(SA,4)}, v4\n ds_read_b128 {vr(SA+4,4)}, v4 offset:1024\n ds_read_b32 v{SA+8}, v5 offset:2048\n s_waitcnt lgkmcnt(0)')
for r in range(9): E(f'v_add_f32 v{OA+r}, v{OA+r}, v{SA+r}')
finalize(OA,AK,2,'L_FB_A','L_FB_A_BACK')
E(f'buffer_store_dwordx4 {vr(AK,4)}, v6, {sr(sWS)}, s{sOA} offen sc1')
def setupA(): E(f's_mov_b32 s{sT+2}, {hex(WS_KVA)}\n s_mov_b32 s{sT+3}, 64')
fallback('L_FB_A','L_FB_A_BACK',AQ0,OA,SA,AK,AV,AIDX,3,6,7,None,setupA)
stamp('A',6,'oA published')
stamp_flush(12,'A')
LBL('L_END')
E('s_endpgm')
L.extend(TAIL)

hdr=open('cdna_kernels/%s.s.ref'%NAME).read().split('; Override launch')[0]
txt=hdr
txt+=f'; @launch grid=(256,1,1) block=(768,1,1) lds={LDS_TOTAL}\n'
for n in ('WS_KVA','WS_KVB','WS_OA','WS_OB','WS_STAMP','NSTAMP'): txt+=f'; CONST {n} = {hex(globals()[n])}\n'
for r,i,n in STN: txt+=f'; STAMPNAME {r} {i} {n}\n'
txt+=f'''.amdgcn_target "amdgcn-amd-amdhsa--gfx950"
.text
.globl {NAME}_kernel
.p2align 8
.type {NAME}_kernel,@function
{NAME}_kernel:
'''+'\n'.join(L)+f'''
.section .rodata,"a"
.p2align 6
.amdhsa_kernel {NAME}_kernel
  .amdhsa_next_free_vgpr 168
  .amdhsa_next_free_sgpr 102
  .amdhsa_accum_offset 168
  .amdhsa_group_segment_fixed_size 0
  .amdhsa_kernarg_size 96
  .amdhsa_user_sgpr_count 2
  .amdhsa_user_sgpr_kernarg_segment_ptr 1
  .amdhsa_system_sgpr_workgroup_id_x 1
.end_amdhsa_kernel
'''
open(OUT,'w').write(txt)
print('wrote',OUT,len(L),'lines')
```

```python
import sys, math, struct
NAME='gated_mix__grouped_kv_mqa__sliding_block__prompt'
DIAG = '--diag' in sys.argv
OUT = [a for a in sys.argv[1:] if not a.startswith('--')]
OUT = OUT[0] if OUT else 'cdna_kernels/%s.s'%NAME
OPT=dict(a.lstrip('-').split('=') for a in sys.argv[1:] if a.startswith('--') and '=' in a)
MAP=OPT.get('map','b'); ROT=OPT.get('rot','full'); PRIO=OPT.get('prio','step'); FLAG_IT=int(OPT.get('flagit','1')); PK=int(OPT.get('pk','7')); FORCE_K=int(OPT.get('forcek','7')); SENTK=int(OPT.get('sentk','14')); DENSE=OPT.get('dense','0')=='1'; ROLL=OPT.get('roll','0')=='1'; WT=OPT.get('wtouch','0')=='1'; KVK=int(OPT.get('kvk','13'))
def f2u(f): return struct.unpack('<I',struct.pack('<f',f))[0]

WS_EPOCH=0x0
WS_FKVA=0x1000
WS_FKVB=0x4000
WS_FOB =0xC000
WS_FOA =0x14000
WS_G   =0x1C000
WS_KVA =0x20000
WS_QB  =0x40000
WS_KVB =0x240000
WS_OA  =0x640000
WS_OB  =0x840000
WS_STAMP=0xA40000
NSTAMP=16
L_WQ=0; L_X=65536; L_ST=131072; L_CTL=L_ST+30720
L_GW=L_CTL; L_G=L_CTL+1024; L_C=L_CTL+1024+256
C_X=L_C+0
C_Q=L_C+4
C_K0=L_C+8; C_K1=L_C+12; C_K2=L_C+16; C_BP=L_C+20; C_MID=L_C+24; C_WO=L_C+28; C_WD=L_C+32; C_QR=L_C+36; C_SN=L_C+40; C_LOC=L_C+44; T_PT=L_C+256; T_X=L_C+272; T_PL=L_C+304; T_FL=L_C+308; T_G=L_C+320
L_EX=L_ST
LDS_TOTAL=163840
SPIN_LIMIT=50000
CSCALE=f2u(0.25*math.log2(math.e))
NEGBIG=f2u(-1e9)
L_LO=f2u(2.0**-24); L_HI=f2u(2.0**60)

sX=28; sWQ=32; sWKV=36; sWB=40; sWOA=44; sWOB=48; sG=52; sOUT=56; sWS=60; sDBG=64
sWave=68; sPb=69; sHg=70; sTag=71
sT=72
sCnt=84; sB=85
sXcc=65
sVM=86
sST=88
L=[]
def E(s):
    for ln in s.split('\n'):
        if ln.strip(): L.append('    '+ln.strip())
def LBL(s): L.append(s+':')
def C(s): L.append('    ; '+s)
_uid=[0]
def uid(p):
    _uid[0]+=1; return f'{p}_{_uid[0]}'
def vr(a,n): return f'v[{a}:{a+n-1}]'
def sr(a,n=4): return f's[{a}:{a+n-1}]'
def srd(dst,ptr,nbytes):
    E(f's_mov_b32 s{dst}, s{ptr}\n s_mov_b32 s{dst+1}, s{ptr+1}\n s_mov_b32 s{dst+2}, {hex(nbytes)}\n s_mov_b32 s{dst+3}, 0x20000')
STN=[]
def stamp(role,i,name):
    if OPT.get('acc') and role=='B' and i==10: return
    if OPT.get('jst') and role=='A' and i in (1,2,3,7): return
    if OPT.get('bst') and role=='B' and i in (6,7,8,9) and not name.startswith('arrive'): return
    if not DIAG: return
    STN.append((role,i,name))
    E(f's_memrealtime s[100:101]\n s_waitcnt lgkmcnt(0)\n s_mov_b32 s{sST+i}, s100')
def cstamp(role,i,name):
    if OPT.get('jst') and i in (10,11) and not name.startswith('J'): return
    if not DIAG: return
    STN.append((role,i,'CYC '+name))
    E(f's_memtime s[100:101]\n s_waitcnt lgkmcnt(0)\n s_mov_b32 s{sST+i}, s100')
def tacc(role,i,name,code):
    if not (DIAG and OPT.get('acc')): E(code); return
    if (role,i,'ACC '+name) not in STN: STN.append((role,i,'ACC '+name))
    E(f's_memtime s[100:101]\n s_waitcnt lgkmcnt(0)\n s_sub_u32 s{sST+i}, s{sST+i}, s100')
    E(code)
    E(f's_memtime s[100:101]\n s_waitcnt lgkmcnt(0)\n s_add_u32 s{sST+i}, s{sST+i}, s100')
def stamp_flush(nmax,role='B'):
    if not DIAG: return
    if OPT.get('dbg'):
        m={'A':[(0,1),(2,2),(7,3),(3,4),(1,5),(4,6),(5,7),(6,8)],'B':[(4,9),(6,10),(7,11),(9,12),(10,13),(11,14)]}[role]
        sk=uid('nd')
        srd(sDBG,24,256)
        E(f's_bfe_u32 s{sT}, s2, 0x30003\n s_cmp_eq_u32 s{sT}, 0\n s_cbranch_scc0 {sk}\n v_mov_b32 v2, 0\n s_not_b32 s{sT}, s{sST}\n v_writelane_b32 v2, s{sT}, 0')
        for i,sl in m: E(f'v_writelane_b32 v2, s{sST+i}, {sl}')
        E(f'v_lshlrev_b32 v3, 2, v0\n s_mov_b64 exec, 0xffff\n buffer_atomic_umax v2, v3, {sr(sDBG)}, 0 offen sc1\n s_mov_b64 exec, -1')
        LBL(sk)
        return
    if OPT.get('hwid'): E(f's_getreg_b32 s{sST+11}, hwreg(HW_REG_HW_ID)\n s_getreg_b32 s{sST+10}, hwreg(HW_REG_XCC_ID)')
    E('v_mov_b32 v2, 0')
    for i in range(nmax): E(f'v_writelane_b32 v2, s{sST+i}, {i}')
    E(f's_mul_i32 s{sT}, s2, 12\n s_add_u32 s{sT}, s{sT}, s{sWave}\n s_lshl_b32 s{sT}, s{sT}, 6\n s_add_u32 s{sT}, s{sT}, {hex(WS_STAMP)}')
    E(f'v_lshlrev_b32 v3, 2, v0\n s_mov_b64 exec, 0xffff\n buffer_store_dword v2, v3, {sr(sWS)}, s{sT} offen\n s_mov_b64 exec, -1')

def lds_add(off,val,vz,vt):
    E(f'v_mov_b32 v{vt}, {val}\n s_mov_b64 exec, 1\n ds_add_u32 v{vz}, v{vt} offset:{off-L_ST}\n s_mov_b64 exec, -1')
def lds_spin(off,mask,val,vz,vt,sleep=1):
    a=uid('spin'); d=uid('spind')
    E(f's_mov_b32 s{sCnt}, {SPIN_LIMIT}')
    LBL(a)
    E(f'ds_read_b32 v{vt}, v{vz} offset:{off-L_ST}\n s_waitcnt lgkmcnt(0)\n v_readfirstlane_b32 s{sT}, v{vt}')
    if mask is not None: E(f's_and_b32 s{sT}, s{sT}, {hex(mask)}')
    E(f's_cmp_eq_u32 s{sT}, {hex(val)}\n s_cbranch_scc1 {d}\n s_sub_u32 s{sCnt}, s{sCnt}, 1\n s_cbranch_scc1 {d}')
    if sleep: E(f's_sleep {sleep}')
    E(f's_branch {a}')
    LBL(d)
def tag_set(off,sidx,vt):
    if sidx is None: E(f'v_mov_b32 v{vt}, {off}')
    else: E(f's_lshl_b32 s{sT}, s{sidx}, 2\n s_add_u32 s{sT}, s{sT}, {off}\n v_mov_b32 v{vt}, s{sT}')
    E(f'v_mov_b32 v{vt+1}, 1\n s_mov_b64 exec, 1\n ds_write_b32 v{vt}, v{vt+1}\n s_mov_b64 exec, -1')
def tag_wait(off,n,vt,sleep=0,once=None):
    a=uid('tw'); d=uid('twd')
    E(f'v_and_b32 v{vt}, {n-1}, v0\n v_lshlrev_b32 v{vt}, 2, v{vt}\n v_add_u32 v{vt}, {off}, v{vt}')
    if once:
        E(f'ds_read_b32 v{vt+1}, v{vt}\n s_waitcnt lgkmcnt(0)\n v_cmp_ne_u32 vcc, 1, v{vt+1}\n s_cbranch_vccz {once}')
        return
    E(f's_mov_b32 s{sCnt}, {SPIN_LIMIT}')
    LBL(a)
    E(f'ds_read_b32 v{vt+1}, v{vt}\n s_waitcnt lgkmcnt(0)\n v_cmp_ne_u32 vcc, 1, v{vt+1}\n s_cbranch_vccz {d}\n s_sub_u32 s{sCnt}, s{sCnt}, 1\n s_cbranch_scc1 {d}')
    if sleep: E(f's_sleep {sleep}')
    E(f's_branch {a}')
    LBL(d)
def poll(vaddr,n,vt,sleep=1):
    a=uid('poll'); d=uid('polld')
    E(f's_mov_b32 s{sCnt}, {SPIN_LIMIT}')
    LBL(a)
    op={1:'buffer_load_dword',2:'buffer_load_dwordx2',3:'buffer_load_dwordx3',4:'buffer_load_dwordx4'}[n]
    E(f'{op} {vr(vt,n) if n>1 else "v%d"%vt}, v{vaddr}, {sr(sWS)}, 0 offen sc1\n s_waitcnt vmcnt(0)')
    for i in range(n): E(f'v_xor_b32 v{vt+i}, s{sTag}, v{vt+i}')
    if n==2: E(f'v_or_b32 v{vt}, v{vt}, v{vt+1}')
    if n>=3: E(f'v_or3_b32 v{vt}, v{vt}, v{vt+1}, v{vt+2}')
    if n==4: E(f'v_or_b32 v{vt}, v{vt}, v{vt+3}')
    E(f'v_cmp_ne_u32 vcc, 0, v{vt}\n s_cbranch_vccz {d}\n s_sub_u32 s{sCnt}, s{sCnt}, 1\n s_cbranch_scc1 {d}')
    if sleep: E(f's_sleep {sleep}')
    E(f's_branch {a}')
    LBL(d)
def flag_store(soff_reg,vt):
    E(f'v_mov_b32 v{vt}, s{sTag}\n s_mov_b64 exec, 1\n buffer_store_dword v{vt}, off, {sr(sWS)}, s{soff_reg} sc1\n s_mov_b64 exec, -1')
def mfma(d,a,b,c=None):
    cc = vr(d,16) if c is None else (c if isinstance(c,str) else vr(c,16))
    E(f'v_mfma_f32_32x32x16_bf16 {vr(d,16)}, {vr(a,4)}, {vr(b,4)}, {cc}')
def smf(o,v,s,idx): E(f'v_smfmac_f32_32x32x32_bf16 {vr(o,16)}, {vr(v,4)}, {vr(s,8)}, v{idx}')
def vexp(r): E(f'v_exp_f32 v{r}, v{r}')
def cvt(d,a,b): E(f'v_cvt_pk_bf16_f32 v{d}, v{a}, v{b}')
def set_vpad(regs,vt):
    E(f'v_and_b32 v{vt}, 27, v0\n v_cmp_eq_u32 vcc, 16, v{vt}\n v_mov_b32 v{vt}, 0x3f803f80\n s_nop 0\n v_cndmask_b32 v{regs[0]}, 0, v{vt}, vcc')
    for r in regs[1:]: E(f'v_mov_b32 v{r}, v{regs[0]}')
def xaddr(base,t_imm,vt):
    E(f'v_and_b32 v{vt}, 15, v0\n v_lshrrev_b32 v{base}, 5, v0\n v_xor_b32 v{base}, v{base}, v{vt}\n v_lshlrev_b32 v{base}, 4, v{base}')
    E(f'v_and_b32 v{vt}, 31, v0\n v_lshl_add_u32 v{base}, v{vt}, 10, v{base}\n v_add_u32 v{base}, {t_imm}, v{base}')
    for b in range(1,8): E(f'v_xor_b32 v{base+b}, {b<<5}, v{base}')
def traddr128(dst,vt,vt2,rowsel,colbase):
    E(f'v_lshrrev_b32 v{vt}, 5, v0\n v_lshlrev_b32 v{vt}, {rowsel}, v{vt}\n v_bfe_u32 v{vt2}, v0, 2, 2\n v_add_u32 v{vt}, v{vt}, v{vt2}\n v_lshlrev_b32 v{dst}, 7, v{vt}')
    E(f'v_bfe_u32 v{vt}, v0, 4, 1\n v_lshlrev_b32 v{vt}, 1, v{vt}\n v_bfe_u32 v{vt2}, v0, 1, 1\n v_add3_u32 v{vt}, v{vt}, v{vt2}, {colbase}')
    E(f'v_bfe_u32 v{vt2}, v0, 3, 1\n v_lshlrev_b32 v{vt2}, 2, v{vt2}\n v_xor_b32 v{vt}, v{vt}, v{vt2}\n v_lshl_add_u32 v{dst}, v{vt}, 4, v{dst}')
    E(f'v_and_b32 v{vt}, 1, v0\n v_lshl_add_u32 v{dst}, v{vt}, 3, v{dst}')
def dma128_voff(dst,vt,vt2,rowstride_sreg_or_shift,colbytes):
    E(f'v_lshrrev_b32 v{vt}, 3, v0')
    if isinstance(rowstride_sreg_or_shift,int): E(f'v_lshlrev_b32 v{dst}, {rowstride_sreg_or_shift}, v{vt}')
    else: E(f'v_mul_u32_u24 v{dst}, {rowstride_sreg_or_shift}, v{vt}')
    E(f'v_bfe_u32 v{vt}, v0, 4, 1\n v_lshlrev_b32 v{vt}, 2, v{vt}\n v_and_b32 v{vt2}, 7, v0\n v_xor_b32 v{vt}, v{vt}, v{vt2}\n v_lshl_add_u32 v{dst}, v{vt}, 4, v{dst}\n v_add_u32 v{dst}, {colbytes}, v{dst}')
def finalize(O,dst,vt,lbl_fb,lbl_back):
    E(f'v_add_f32 v{vt}, |v{O}|, |v{O+1}|')
    for r in range(2,8): E(f'v_add_f32 v{vt}, v{vt}, |v{O+r}|')
    E(f'v_mov_b32 v{vt+1}, 0x7f800000\n v_cmp_nlt_f32 {sr(sT,2)}, v{vt}, v{vt+1}')
    E(f'v_cmp_nle_f32 vcc, {hex(L_LO)}, v{O+8}\n s_or_b64 {sr(sT,2)}, {sr(sT,2)}, vcc')
    E(f'v_cmp_nge_f32 vcc, {hex(L_HI)}, v{O+8}\n s_or_b64 {sr(sT,2)}, {sr(sT,2)}, vcc\n s_cbranch_scc1 {lbl_fb}')
    LBL(lbl_back)
    E(f'v_rcp_f32 v{vt}, v{O+8}\n s_nop 0')
    for r in range(8): E(f'v_mul_f32 v{O+r}, v{O+r}, v{vt}')
    for r in range(4): cvt(dst+r,O+2*r,O+2*r+1)
    E(f'v_min_u32 v{dst}, -2, v{dst}')

TAIL=[]
RETRY=[]
def fallback(lbl,back,Q,O,S,K,V,IDX,vM,vK,vV,ntile,soff_setup,first_mask=None,last_mask=None,first_cond=None):
    global L
    save=L; L=[]
    LBL(lbl)
    soff_setup()
    E(f'v_mov_b32 v{vM}, 0xff800000')
    for p in (0,1):
        lp=uid('fbl')
        if p==1:
            E(f'v_mov_b32 v{S}, v{vM}\n s_nop 1\n v_permlane32_swap_b32 v{S}, v{vM}\n s_nop 1\n v_max_f32 v{vM}, v{vM}, v{S}')
            for r in range(16): E(f'v_mov_b32 v{O+r}, 0')
        E(f's_mov_b32 s{sT+5}, s{sT+2}\n s_mov_b32 s{sT+6}, 0')
        LBL(lp)
        E(f'buffer_load_dwordx4 {vr(K,4)}, v{vK}, {sr(sWS)}, s{sT+5} offen sc1')
        if p==1:
            E(f's_mov_b64 exec, {sr(sVM,2)}\n buffer_load_dwordx4 {vr(V,4)}, v{vV}, {sr(sWS)}, s{sT+5} offen offset:1024 sc1\n buffer_load_dwordx4 {vr(V+4,4)}, v{vV}, {sr(sWS)}, s{sT+5} offen offset:1536 sc1\n s_mov_b64 exec, -1')
        E('s_waitcnt vmcnt(0)')
        if first_mask is None:
            mfma(S,K,Q,'0')
        else:
            a=uid('fbm'); b=uid('fbm'); j=uid('fbm')
            E(f's_add_u32 s{sT+7}, s{sT+6}, 1\n s_cmp_eq_u32 s{sT+7}, s{sT+3}\n s_cbranch_scc1 {a}')
            E(f's_cmp_lt_u32 s{sT+6}, s{sT+4}\n s_cbranch_scc1 {b}')
            mfma(S,K,Q,'0'); E(f's_branch {j}')
            LBL(a); mfma(S,K,Q,last_mask); E(f's_branch {j}')
            LBL(b); mfma(S,K,Q,first_mask)
            LBL(j)
        E('s_nop 15')
        if p==0:
            for r in range(0,16,2): E(f'v_max3_f32 v{vM}, v{S+r}, v{S+r+1}, v{vM}')
        else:
            for r in range(16): E(f'v_sub_f32 v{S+r}, v{S+r}, v{vM}')
            for r in range(16): vexp(S+r)
            E('s_nop 1'); smf(O,V,S,IDX); smf(O,V+4,S+8,IDX)
        E(f's_add_u32 s{sT+5}, s{sT+5}, 2048\n s_add_u32 s{sT+6}, s{sT+6}, 1\n s_cmp_lt_u32 s{sT+6}, s{sT+3}\n s_cbranch_scc1 {lp}')
    E(f's_nop 15\n s_branch {back}')
    TAIL.extend(L); L=save

E('s_cmp_ge_u32 s2, 256\n s_cbranch_scc1 L_END')
E('s_load_dwordx16 s[4:19], s[0:1], 0\n s_load_dwordx8 s[20:27], s[0:1], 64')
E(f'v_lshrrev_b32 v1, 6, v0\n v_and_b32 v0, 63, v0\n v_readfirstlane_b32 s{sWave}, v1')
if MAP=='b':
    E(f's_and_b32 s{sT}, s2, 7\n s_lshr_b32 s{sT+1}, s2, 3\n s_and_b32 s{sT+2}, s{sT+1}, 3\n s_lshl_b32 s{sPb}, s{sT}, 2\n s_or_b32 s{sPb}, s{sPb}, s{sT+2}\n s_lshr_b32 s{sHg}, s{sT+1}, 2')
else:
    E(f's_bfe_u32 s{sPb}, s2, 0x20001\n s_lshl_b32 s{sPb}, s{sPb}, 3\n s_bfe_u32 s{sT}, s2, 0x30003\n s_or_b32 s{sPb}, s{sPb}, s{sT}\n s_and_b32 s{sHg}, s2, 1\n s_lshl_b32 s{sHg}, s{sHg}, 2\n s_lshr_b32 s{sT}, s2, 6\n s_or_b32 s{sHg}, s{sHg}, s{sT}')
E(f's_mov_b32 s{sVM}, 0xffff\n s_mov_b32 s{sVM+1}, 0xffff')
if DIAG:
    for i in range(12): E(f's_mov_b32 s{sST+i}, 0')
C('clear the LDS counters and flags while the kernel arguments arrive')
E(f'v_lshlrev_b32 v2, 3, v0\n v_add_u32 v2, {L_C}, v2\n v_mov_b32 v4, 0\n v_mov_b32 v5, 0\n ds_write_b64 v2, v[4:5]')
E('s_waitcnt lgkmcnt(0)\n s_barrier')
stamp('A',0,'start'); stamp('B',0,'start')
E(f's_load_dword s{sTag}, s[26:27], {WS_EPOCH}')
srd(sX,4,2048*1024); srd(sWS,26,0x10000000)
E(f's_cmp_lt_u32 s{sWave}, 8\n s_cbranch_scc1 L_A')


vZ=1
KVPOS=[16384*c for c in range(8)]
L_PART=L_ST+24576
L_QA=L_ST; L_QB=L_ST+8192; L_WO=0; L_FX=65536
sRot=sT+11
def mktag(): E(f's_mul_i32 s{sTag}, s{sTag}, 0x9E3779B1\n s_add_u32 s{sTag}, s{sTag}, 0x7F4A7C15')
def mkrot():
    if MAP=='b': E(f's_and_b32 s{sRot}, s{sPb}, 3\n s_lshl_b32 s{sRot}, s{sRot}, 1\n s_add_u32 s{sRot}, s{sRot}, s{sHg}')
    else: E(f's_lshl_b32 s{sRot}, s{sHg}, 1\n s_add_u32 s{sRot}, s{sRot}, s{sPb}')
def touch(srd_,soff,n,vaddr,vd,sc1=False):
    for i in range(n):
        if i: E(f's_add_u32 s{soff}, s{soff}, 8192')
        E(f'buffer_load_dword v{vd}, v{vaddr}, {sr(srd_)}, s{soff} offen'+(' sc1' if sc1 else ''))
E(f's_setprio {2 if OPT.get("bp2") else 3}\n s_sub_u32 s{sB}, s{sWave}, 8')
C('---- x tile -> LDS as 8 blocks of [64 rows][64 k], block order rotated per WG ; wave b brings blocks b and b+4')
E('v_lshrrev_b32 v17, 3, v0\n v_lshlrev_b32 v17, 10, v17\n v_lshrrev_b32 v2, 4, v0\n v_and_b32 v3, 7, v0\n v_xor_b32 v2, v2, v3\n v_lshl_add_u32 v17, v2, 4, v17\n v_xor_b32 v18, 64, v17')
mkrot()
E(f's_lshl_b32 s{sT+7}, s{sPb}, 16\n s_lshl_b32 s{sT+6}, s{sB}, 13')
VQ=[]
def vwait(tag,extra=''):
    if tag not in VQ:
        if extra: E('s_waitcnt'+extra)
        return
    i=max(n for n,t in enumerate(VQ) if t==tag)
    n=len(VQ)-1-i; del VQ[:i+1]
    E(f's_waitcnt vmcnt({n})'+extra)
for hb in range(2):
    E(f's_add_u32 s{sT+1}, s{sRot}, s{sB}\n s_add_u32 s{sT+1}, s{sT+1}, {4*hb}\n s_and_b32 s{sT+1}, s{sT+1}, 7\n s_lshl_b32 s{sT+1}, s{sT+1}, 7\n s_add_u32 s{sT+1}, s{sT+1}, s{sT+7}')
    for n in range(8):
        E(f's_add_u32 m0, s{sT+6}, {65536+32768*hb+1024*n}')
        E(f's_add_u32 s{sT+1}, s{sT+1}, 8192' if n else 's_nop 0')
        E(f'buffer_load_dwordx4 v{17+(n&1)}, {sr(sX)}, s{sT+1} offen lds')
MU=128; MD=144; BQ=16; BK=24; BV=36; BS=64; BO=96; BIDX=60
C('---- constants for the later phases (idle time)')
E(f'v_mov_b32 v{vZ}, {L_ST}\n v_lshlrev_b32 v160, 4, v0\n v_lshlrev_b32 v163, 7, v0')
E('v_lshrrev_b32 v161, 5, v0\n v_lshlrev_b32 v161, 8, v161\n v_and_b32 v2, 15, v0\n v_lshl_add_u32 v161, v2, 4, v161')
srd(sWOA,12,512*1024); srd(sWOB,18,512*1024)
E(f'v_and_b32 v4, 31, v0\n v_lshrrev_b32 v5, 5, v0\n v_lshlrev_b32 v5, 2, v5\n v_sub_u32 v4, v4, v5\n s_mov_b32 s{sT}, {hex(NEGBIG)}')
for r in range(16):
    E(f'v_subrev_u32 v5, {8*(r//4)+r%4}, v4\n v_ashrrev_i32 v5, 31, v5\n v_and_b32 v{MD+r}, s{sT}, v5\n v_xor_b32 v{MU+r}, s{sT}, v{MD+r}')
set_vpad(list(range(BV,BV+24)),2); E(f'v_mov_b32 v{BIDX}, 0xdddddddd')
for r in range(32): E(f'v_mov_b32 v{BO+r}, 0')
E(f'v_min_u32 v2, 4, v0\n s_sub_i32 s{sT}, s{sPb}, 4\n v_add_u32 v2, s{sT}, v2\n v_max_i32 v2, 0, v2\n s_lshl_b32 s{sT}, s{sHg}, 5\n v_add_u32 v2, s{sT}, v2\n v_lshlrev_b32 v2, 7, v2\n v_add_u32 v162, {hex(WS_FKVB+8)}, v2')
E(f'v_and_b32 v2, 7, v0\n v_lshlrev_b32 v2, 5, v2\n v_add_u32 v2, s{sPb}, v2\n v_lshlrev_b32 v2, 7, v2\n v_add_u32 v166, {hex(WS_FKVB+16)}, v2')
E('s_waitcnt lgkmcnt(0)')
mktag()
E('s_waitcnt vmcnt(8)')
tag_set(T_X,sB,2)
stamp('B',1,'x landed')
E('s_waitcnt vmcnt(0)')
tag_set(T_X+16,sB,2)
tag_wait(T_G,4,2,sleep=4)
stamp('B',5,'BQ')
E('s_setprio 3')
def kvdma(c):
    E(f's_lshr_b32 s{sT+1}, s2, 3\n s_add_u32 s{sT+1}, s{sT+1}, {c}\n s_and_b32 s{sT+1}, s{sT+1}, 3\n s_lshl_b32 s{sT+1}, s{sT+1}, 2\n s_add_u32 s{sT+1}, s{sT+1}, s{sB}\n s_lshl_b32 s{sT+1}, s{sT+1}, 12')
    E(f's_lshl_b32 s{sT+2}, s{sB}, 12\n s_add_u32 m0, s{sT+2}, {KVPOS[c]}\n s_add_u32 s{sT+1}, s{sT+1}, {hex(WS_KVA+(65536 if c>=4 else 0))}')
    for i in range(4): E(f'buffer_load_dwordx4 v160, {sr(sWS)}, s{sT+1} offen offset:{1024*i} sc1 lds')
    VQ.extend([f'kv{c}']*4)
E(f's_lshl_b32 s{sT}, s{sB}, 11\n s_add_u32 s{sT}, s{sT}, {L_QB}\n v_add_u32 v3, s{sT}, v160')
for t in range(2): E(f'ds_read_b128 {vr(BQ+4*t,4)}, v3 offset:{1024*t}')
C('---- second half of the shared K/V (throttled) ; o slots marked as not yet written')
for c in (4,5,6,7):
    kvdma(c)
    if c<7: vwait(f'kv{c}')
E(f's_lshl_b32 s{sT+10}, s{sPb}, 6\n s_lshl_b32 s{sT+1}, s{sHg}, 2\n s_add_u32 s{sT+10}, s{sT+10}, s{sT+1}\n s_add_u32 s{sT+10}, s{sT+10}, s{sB}\n s_lshl_b32 s{sT+10}, s{sT+10}, 10')
E('v_mov_b32 v12, -1\n v_mov_b32 v13, -1\n v_mov_b32 v14, -1\n v_mov_b32 v15, -1')
for base in (WS_OA,WS_OA+32768,WS_OB,WS_OB+32768):
    E(f's_add_u32 s{sT+1}, s{sT+10}, {hex(base)}\n buffer_store_dwordx4 v[12:15], v160, {sr(sWS)}, s{sT+1} offen sc1'); VQ.append('s')
vwait('kv7')
lds_add(C_K2,1,vZ,2)
stamp('B',2,'K/V all in')
if OPT.get('nob'): stamp_flush(12); E('s_endpgm')
E(f's_lshl_b32 s{sT+3}, s{sHg}, 5\n s_add_u32 s{sT+3}, s{sT+3}, s{sPb}\n s_lshl_b32 s{sT+3}, s{sT+3}, 7\n s_lshl_b32 s{sT+1}, s{sB}, 2\n s_add_u32 s{sT+3}, s{sT+3}, s{sT+1}\n s_add_u32 s{sT+3}, s{sT+3}, {hex(WS_FKVB+16)}')
if MAP=='b':
    E(f's_cmp_ge_u32 s{sB}, 2\n s_cbranch_scc0 L_B_NOT\n s_lshr_b32 s{sT+1}, s2, 3\n s_lshl_b32 s{sT+1}, s{sT+1}, 14\n s_and_b32 s{sT+2}, s{sB}, 1\n s_lshl_b32 s{sT+2}, s{sT+2}, 13\n s_add_u32 s{sT+1}, s{sT+1}, s{sT+2}')
    touch(sWOB,sT+1,1,163,3); touch(sWOA,sT+1,1,163,3)
else:
    E(f's_cmp_eq_u32 s{sB}, 3\n s_cbranch_scc0 L_B_NOT\n s_lshr_b32 s{sT+1}, s2, 3\n s_lshl_b32 s{sT+1}, s{sT+1}, 14\n s_and_b32 s{sT+2}, s2, 1\n s_lshl_b32 s{sT+2}, s{sT+2}, 9\n s_add_u32 s{sT+1}, s{sT+1}, s{sT+2}')
    E('v_lshrrev_b32 v2, 2, v0\n v_lshlrev_b32 v2, 10, v2\n v_and_b32 v3, 3, v0\n v_lshl_add_u32 v2, v3, 7, v2')
    touch(sWOB,sT+1,1,2,3); touch(sWOA,sT+1,1,2,4)
LBL('L_B_NOT')
poll(162,2,4,sleep=3)
E(f's_getreg_b32 s{sXcc}, hwreg(HW_REG_XCC_ID, 0, 4)\n s_add_u32 s{sT}, s{sTag}, s{sXcc}\n v_mov_b32 v2, s{sT}\n s_mov_b64 exec, 1\n buffer_store_dword v2, off, {sr(sWS)}, s{sT+3} sc1\n s_mov_b64 exec, -1')
lds_add(C_SN,1,vZ,2)
stamp('B',6,'kvB flags seen')
C('---- window attention, head 4hg+b, two query tiles')
E(f's_lshl_b32 s{sT+8}, s{sHg}, 2\n s_add_u32 s{sT+8}, s{sT+8}, s{sB}\n s_lshl_b32 s{sT+8}, s{sT+8}, 6\n s_lshl_b32 s{sT+9}, s{sPb}, 1\n s_sub_i32 s{sT+9}, s{sT+9}, 8')
def btile(j): E(f's_add_i32 s{sT}, s{sT+9}, {j}\n s_max_i32 s{sT}, s{sT}, 0\n s_add_u32 s{sT}, s{sT}, s{sT+8}\n s_lshl_b32 s{sT}, s{sT}, 11\n s_add_u32 s{sT}, s{sT}, {hex(WS_KVB)}')
def bload(j):
    k=BK+4*(j%3); v=BV+8*(j%3)
    btile(j)
    E(f'buffer_load_dwordx4 {vr(k,4)}, v160, {sr(sWS)}, s{sT} offen sc1\n s_mov_b64 exec, {sr(sVM,2)}')
    E(f'buffer_load_dwordx4 {vr(v,4)}, v161, {sr(sWS)}, s{sT} offen offset:1024 sc1\n buffer_load_dwordx4 {vr(v+4,4)}, v161, {sr(sWS)}, s{sT} offen offset:1536 sc1\n s_mov_b64 exec, -1')
bload(0); bload(1)
for j in (2,6):
    E(f's_add_i32 s{sT}, s{sT+9}, {j}\n s_max_i32 s{sT}, s{sT}, 0\n s_add_i32 s{sT+1}, s{sT+9}, 6\n s_min_i32 s{sT}, s{sT}, s{sT+1}\n s_cmp_lt_i32 s{sT}, 0')
    sk=uid('tk'); E(f's_cbranch_scc1 {sk}\n s_add_u32 s{sT}, s{sT}, s{sT+8}\n s_lshl_b32 s{sT}, s{sT}, 11\n s_add_u32 s{sT}, s{sT}, {hex(WS_KVB)}')
    E(f'buffer_load_dword v3, v163, {sr(sWS)}, s{sT} offen sc1'); LBL(sk)
E('s_waitcnt lgkmcnt(0)')
for j in range(10):
    k=BK+4*(j%3); v=BV+8*(j%3)
    if j+2<10: bload(j+2)
    E(f's_waitcnt vmcnt({3*min(2,9-j)})')
    sk=uid('bskip')
    if j<8: E(f's_cmp_lt_i32 s{sT+9}, {-j}\n s_cbranch_scc1 {sk}')
    qs=[q for q in (0,1) if 0<=j-q<=8]
    for q in qs: mfma(BS+16*q,k,BQ+4*q,{0:MU,8:MD}.get(j-q,'0'))
    E('s_nop 10' if len(qs)==2 else 's_nop 11')
    for q in qs:
        S=BS+16*q; O=BO+16*q
        for r in range(10): vexp(S+r)
        smf(O,v,S,BIDX)
        for r in range(10,16): vexp(S+r)
        E('s_nop 1'); smf(O,v+4,S+8,BIDX)
    if j<8: LBL(sk)
E(f's_add_u32 s{sT+10}, s{sT+10}, {hex(WS_OB)}\n s_nop 14')
for q in range(2):
    fb=f'L_FB_B{q}'; bk=f'L_FB_B{q}_BACK'
    finalize(BO+16*q,4,2,fb,bk)
    E(f'buffer_store_dwordx4 v[4:7], v160, {sr(sWS)}, s{sT+10} offen sc1')
    if q==0: E(f's_add_u32 s{sT+10}, s{sT+10}, 32768\n s_nop 0')
    def setup(q=q):
        E(f's_add_i32 s{sT+2}, s{sT+9}, {q}\n s_cmp_ge_i32 s{sT+2}, 0\n s_cselect_b32 s{sT+4}, 1, 0\n s_max_i32 s{sT+2}, s{sT+2}, 0')
        E(f's_add_i32 s{sT+3}, s{sT+9}, {q+9}\n s_sub_u32 s{sT+3}, s{sT+3}, s{sT+2}\n s_add_u32 s{sT+2}, s{sT+2}, s{sT+8}\n s_lshl_b32 s{sT+2}, s{sT+2}, 11\n s_add_u32 s{sT+2}, s{sT+2}, {hex(WS_KVB)}')
    fallback(fb,bk,BQ+4*q,BO+16*q,BS,BK,BV,BIDX,3,160,161,None,setup,MU,MD)
C('---- output projection: wave (t=b&1, kh=b>>1): both 32-column tiles over heads 16kh..16kh+15 ; slot 0 = tile kh')
PB_=16; PA_=48; PW=80; PO=96
sTt=sT+10; sKh=sT+9; sOb=sT+11; sPass=sT+8
E(f's_lshr_b32 s{sKh}, s{sB}, 1\n s_and_b32 s{sTt}, s{sB}, 1\n s_lshl_b32 s{sT+2}, s{sHg}, 7')
dma128_voff(10,2,3,10,f's{sT+2}')
E(f's_lshl_b32 s{sT+1}, s{sKh}, 2'); traddr128(11,2,3,2,f's{sT+1}')
E(f's_lshl_b32 s{sT+1}, s{sKh}, 15\n s_add_u32 s{sT+1}, s{sT+1}, {L_WO}\n v_add_u32 v11, s{sT+1}, v11\n v_xor_b32 v9, 64, v11')
stamp('B',7,'oB published')
E(f's_lshl_b32 s{sT+4}, s{sPb}, 1\n s_add_u32 s{sT+4}, s{sT+4}, s{sTt}\n s_lshl_b32 s{sT+4}, s{sT+4}, 15\n s_lshl_b32 s{sT}, s{sKh}, 14\n s_add_u32 s{sOb}, s{sT+4}, s{sT}\n s_add_u32 s{sOb}, s{sOb}, {hex(WS_OB)}')
E(f's_lshl_b32 s{sT}, s{sHg}, 7\n s_add_u32 s{sT+4}, s{sT+4}, s{sT}\n s_lshl_b32 s{sT}, s{sKh}, 6\n s_add_u32 s{sT+4}, s{sT+4}, s{sT}')
E('v_and_b32 v2, 31, v0\n v_lshlrev_b32 v15, 10, v2\n v_lshrrev_b32 v3, 5, v0\n v_lshl_add_u32 v15, v3, 4, v15')
E(f'v_lshlrev_b32 v8, 2, v2\n s_lshl_b32 s{sT}, s{sPb}, 1\n s_add_u32 s{sT}, s{sT}, s{sTt}\n s_lshl_b32 s{sT}, s{sT}, 7\n s_add_u32 s{sT}, s{sT}, {hex(WS_G)}\n buffer_load_dword v14, v8, {sr(sWS)}, s{sT} offen sc1')
srd(sOUT,22,2048*1024)
E(f's_lshl_b32 s{sT}, s{sB}, 12\n s_add_u32 s{sT}, s{sT}, {L_FX}\n v_add_u32 v164, s{sT}, v160\n v_xor_b32 v165, 0x2000, v164\n s_mov_b32 s{sPass}, 0')
C('the eight WGs of this position block: marks in place ?  all on this die ?')
E(f's_mov_b32 s{sCnt}, {SPIN_LIMIT}')
LBL('L_B_PP')
E(f'buffer_load_dwordx4 v[4:7], v166, {sr(sWS)}, 0 offen sc1\n s_waitcnt vmcnt(0)')
for i in range(4): E(f'v_subrev_u32 v{4+i}, s{sTag}, v{4+i}')
E(f'v_or3_b32 v2, v4, v5, v6\n v_or_b32 v2, v2, v7\n v_cmp_lt_u32 vcc, 15, v2\n s_cbranch_vccz L_B_PPD\n s_sub_u32 s{sCnt}, s{sCnt}, 1\n s_cbranch_scc1 L_B_PPD\n s_sleep 3\n s_branch L_B_PP')
LBL('L_B_PPD')
if OPT.get('loc','1')=='1':
    E(f'v_cmp_ne_u32 vcc, s{sXcc}, v4\n s_cbranch_vccnz L_B_NLOC')
    lds_add(C_LOC,1,vZ,2)
    LBL('L_B_NLOC')
lds_spin(C_MID,None,8,vZ,2,sleep=6)
def wodma(sr_):
    E(f's_lshl_b32 s{sT}, s{sB}, 14\n s_lshl_b32 s{sT+1}, s{sB}, 17')
    for n in range(16): E(f's_add_u32 m0, s{sT}, {L_WO+1024*n}\n s_add_u32 s{sT+2}, s{sT+1}, {8192*n}\n buffer_load_dwordx4 v10, {sr(sr_)}, s{sT+2} offen lds')
wodma(sWOB)
E('s_waitcnt vmcnt(0)')
lds_add(C_WO,1,vZ,2)
lds_spin(C_WO,None,4,vZ,2,sleep=2)
stamp('B',8,'woB landed')
LBL('L_B_GEMM')
def wread(s):
    f=PW+8*(s&1)
    for u,va in ((0,11),(1,9)): E(f'ds_read_b64_tr_b16 {vr(f+4*u,2)}, v{va} offset:{s*2048}\n ds_read_b64_tr_b16 {vr(f+4*u+2,2)}, v{va} offset:{s*2048+1024}')
wread(0)
def oloads(g0):
    for s in range(4*g0,16):
        if s%4==0: E(f's_add_u32 s{sT}, s{sOb}, {1024*s}')
        E(f'buffer_load_dwordx4 {vr(PO+4*s,4)}, v160, {sr(sWS)}, s{sT} offen offset:{1024*(s%4)} sc1')
E(f's_mov_b32 s{sCnt}, {SPIN_LIMIT}')
oloads(0)
for g in range(4):
    LBL(f'L_B_G{g}')
    E(f's_waitcnt vmcnt({12-4*g})')
    p=PO+16*g
    E(f'v_max_u32 v2, v{p}, v{p+4}\n v_max3_u32 v2, v{p+8}, v{p+12}, v2\n v_cmp_eq_u32 vcc, -1, v2\n s_cbranch_vccnz L_B_R{g}')
    LBL(f'L_B_K{g}')
    if DIAG and g==3:
        E(f's_cmp_eq_u32 s{sPass}, 0\n s_cbranch_scc1 L_B_NST'); stamp('B',10,'oA all seen'); LBL('L_B_NST')
    for s in range(4*g,4*g+4):
        if s<15: wread(s+1)
        E(f's_waitcnt lgkmcnt({4 if s<15 else 0})')
        f=PW+8*(s&1)
        for u in range(2): mfma(PA_+16*u,f+4*u,PO+4*s,'0' if s==0 else None)
    save=L; L=[]
    LBL(f'L_B_R{g}')
    E(f's_sub_u32 s{sCnt}, s{sCnt}, 1\n s_cbranch_scc1 L_B_K{g}\n s_cmp_eq_u32 s{sPass}, 0\n s_cbranch_scc0 L_B_RR{g}\n s_sleep 16')
    LBL(f'L_B_RR{g}')
    E('s_waitcnt vmcnt(0)')
    oloads(g)
    E(f's_branch L_B_G{g}')
    RETRY.extend(L); L=save
E(f's_cmp_eq_u32 s{sPass}, 0\n s_cbranch_scc0 L_B_FIN')
lds_add(C_WD,1,vZ,2)
E(f'v_sub_f32 v3, 1.0, v14\n s_add_u32 s{sOb}, s{sOb}, {hex((WS_OA-WS_OB)&0xffffffff)}\n s_mov_b32 s{sPass}, 1\n s_nop 7')
for r in range(32): E(f'v_mul_f32 v{PB_+r}, v{PA_+r}, v3')
lds_spin(C_WD,None,4,vZ,2,sleep=2)
wodma(sWOA)
E('s_waitcnt vmcnt(0)')
stamp('B',9,'out-proj B done, woA in')
E('s_barrier\n s_branch L_B_GEMM')
LBL('L_B_FIN')
E('s_nop 9')
for r in range(16): E(f'v_fma_f32 v{PA_+16+r}, v{PA_+16+r}, v14, v{PB_+16+r}')
for q in range(4): E(f'ds_write_b128 v164, {vr(PA_+16+4*q,4)} offset:{1024*q}')
for r in range(16): E(f'v_fma_f32 v{PA_+r}, v{PA_+r}, v14, v{PB_+r}')
E('s_waitcnt lgkmcnt(0)\n s_barrier')
for q in range(4): E(f'ds_read_b128 {vr(PB_+4*q,4)}, v165 offset:{1024*q}')
for q in range(4):
    E(f's_waitcnt lgkmcnt({3-q})')
    for r in range(4): E(f'v_add_f32 v{PA_+4*q+r}, v{PA_+4*q+r}, v{PB_+4*q+r}')
for r in range(8): cvt(PA_+r,PA_+2*r,PA_+2*r+1)
E('s_nop 1')
for gq in range(2): E(f'v_permlane32_swap_b32 v{PA_+4*gq}, v{PA_+4*gq+2}\n v_permlane32_swap_b32 v{PA_+4*gq+1}, v{PA_+4*gq+3}')
for gq in range(2): E(f'buffer_store_dwordx4 {vr(PA_+4*gq,4)}, v15, {sr(sOUT)}, s{sT+4} offen offset:{32*gq}')
if DIAG: E('s_waitcnt vmcnt(0)')
stamp('B',11,'out stored')
stamp_flush(12)
E('s_endpgm')
L.extend(RETRY)

LBL('L_A')
AIDX=8; AKA=9; AVA=10; AQ0=12; AQ1=16; AK=20; AV=28; SA=44; SB=60; OA=76; OB=92; XA=108; WA=160; AF=112
L_PG=L_PART+4096
sStr=sT+10; sRing=sT+7
E(f'v_and_b32 v5, 15, v0\n v_lshlrev_b32 v6, 4, v0\n s_and_b32 s{sT+9}, s{sHg}, 3\n s_cmp_lt_u32 s{sWave}, 4\n s_cbranch_scc0 L_A_KV')
C('---- waves 0..3 : wave m streams 64 columns of matrix m (wq | B q | B k | B v) through its own 8 x 2KB ring')
E(f's_cmp_eq_u32 s{sWave}, 0\n s_cselect_b32 s{sWB}, s6, s16\n s_cselect_b32 s{sWB+1}, s7, s17\n s_mov_b32 s{sWB+2}, {512*3072}\n s_cselect_b32 s{sWB+2}, {512*1024}, s{sWB+2}\n s_mov_b32 s{sWB+3}, 0x20000')
E(f's_movk_i32 s{sStr}, 3072\n s_cselect_b32 s{sStr}, 0x400, s{sStr}\n s_max_u32 s{sT+1}, s{sWave}, 1\n s_sub_u32 s{sT+1}, s{sT+1}, 1\n s_lshl_b32 s{sT+1}, s{sT+1}, 10\n s_lshl_b32 s{sT+2}, s{sHg}, 7\n s_add_u32 s{sT+1}, s{sT+1}, s{sT+2}')
dma128_voff(162,2,3,f's{sStr}',f's{sT+1}')
mkrot()
E(f's_lshl_b32 s{sStr}, s{sStr}, 3\n s_lshl_b32 s{sRing}, s{sWave}, 14')
E(f's_sub_u32 s{sT+1}, s{sStr}, 1024\n v_add_u32 v163, s{sT+1}, v162\n s_lshl_b32 s{sStr}, s{sStr}, 1')
def wdma_parts(st):
    p0=f's_add_u32 m0, s{sRing}, {(st%8)*2048}\n'
    if st%4==0: p0+=f's_add_u32 s{sT+3}, s{sRot}, {st//4}\n s_and_b32 s{sT+3}, s{sT+3}, 7\n s_lshl_b32 s{sT+3}, s{sT+3}, 2\n s_mul_i32 s{sT+3}, s{sT+3}, s{sStr}'
    else: p0+=f's_add_u32 s{sT+3}, s{sT+3}, s{sStr}'
    VQ.extend([f'w{st}']*2)
    return [p0, f'buffer_load_dwordx4 v162, {sr(sWB)}, s{sT+3} offen lds', f'buffer_load_dwordx4 v163, {sr(sWB)}, s{sT+3} offen offset:1024 lds']
def wdma(st):
    for p in wdma_parts(st): E(p)
NW0=int(OPT.get('nw0','4'))
VQ.clear()
for st in range(NW0): wdma(st)
E('s_branch L_A_NOKV')
LBL('L_A_KV')
E('s_setprio 3')
C('---- kvA: this WG makes 16 positions (hg&3) of K (hg<4) or V, and their gate ; wave 4+u sums k in [128u,128u+128)')
E(f's_cmp_lt_u32 s{sHg}, 4\n s_cselect_b32 s{sWKV}, s8, s10\n s_cselect_b32 s{sWKV+1}, s9, s11\n s_mov_b32 s{sWKV+2}, 16384\n s_mov_b32 s{sWKV+3}, 0x20000\n s_and_b32 s{sT+3}, s{sWave}, 3')
E(f's_lshl_b32 s{sT+1}, s{sPb}, 16\n s_lshl_b32 s{sT+2}, s{sT+9}, 14\n s_add_u32 s{sT+1}, s{sT+1}, s{sT+2}\n s_lshl_b32 s{sT+2}, s{sT+3}, 8\n s_add_u32 s{sT+1}, s{sT+1}, s{sT+2}')
E('v_lshlrev_b32 v3, 10, v5\n v_and_b32 v4, 48, v0\n v_add_u32 v3, v3, v4')
for s_ in range(4): E(f'buffer_load_dwordx4 {vr(116+4*s_,4)}, v3, {sr(sX)}, s{sT+1} offen offset:{64*s_}')
if MAP=='c' and OPT.get('wkt','1')=='1':
    E(f's_cmp_eq_u32 s{sWave}, 4\n s_cbranch_scc0 L_A_NT2\n s_lshr_b32 s{sT+4}, s2, 3\n s_lshl_b32 s{sT+4}, s{sT+4}, 9\n v_lshlrev_b32 v2, 7, v0\n s_mov_b64 exec, 15\n buffer_load_dword v167, v2, {sr(sWKV)}, s{sT+4} offen\n s_mov_b64 exec, -1')
    LBL('L_A_NT2')
srd(sG,20,1024)
for s_ in range(4): E(f'buffer_load_dwordx4 {vr(132+4*s_,4)}, v4, {sr(sG)}, s{sT+2} offen offset:{64*s_}')
E(f's_lshl_b32 s{sT}, s{sT+3}, 12\n s_add_u32 m0, s{sT}, {L_ST}\n s_nop 0')
for i in range(4): E(f'buffer_load_dwordx4 v6, {sr(sWKV)}, s{sT} offen offset:{1024*i} lds')
LBL('L_A_NOKV')
C('---- address of this wave\'s o slot, constants')
sOA=sT+8
E(f's_bfe_u32 s{sOA}, s{sWave}, 0x10001\n s_lshl_b32 s{sT+1}, s{sPb}, 1\n s_add_u32 s{sOA}, s{sOA}, s{sT+1}\n s_lshl_b32 s{sOA}, s{sOA}, 5')
E(f's_lshl_b32 s{sT+1}, s{sHg}, 2\n s_add_u32 s{sOA}, s{sOA}, s{sT+1}\n s_lshr_b32 s{sT+1}, s{sWave}, 2\n s_lshl_b32 s{sT+1}, s{sT+1}, 1\n s_add_u32 s{sOA}, s{sOA}, s{sT+1}\n s_and_b32 s{sT+1}, s{sWave}, 1\n s_add_u32 s{sOA}, s{sOA}, s{sT+1}\n s_lshl_b32 s{sOA}, s{sOA}, 10\n s_add_u32 s{sOA}, s{sOA}, {hex(WS_OA)}')
E(f'v_mov_b32 v{vZ}, {L_ST}\n v_lshlrev_b32 v11, 2, v0')
traddr128(WA,2,3,3,'0'); E(f's_lshl_b32 s{sT+1}, s{sWave}, 14\n v_add_u32 v{WA}, s{sT+1}, v{WA}\n v_xor_b32 v{WA+1}, 64, v{WA}')
E(f'v_and_b32 v2, 31, v0\n v_bfe_u32 v3, v0, 1, 3\n v_lshrrev_b32 v7, 5, v0\n v_xor_b32 v3, v3, v7\n v_lshlrev_b32 v{XA}, 7, v2\n v_lshl_add_u32 v{XA}, v3, 4, v{XA}\n v_add_u32 v{XA}, 0x10000, v{XA}')
for s_ in range(1,4): E(f'v_xor_b32 v{XA+s_}, {s_<<5}, v{XA}')
for r in range(32): E(f'v_mov_b32 v{OA+r}, 0')
set_vpad(list(range(AV,AV+16)),2)
E(f'v_mov_b32 v{AIDX}, 0xdddddddd')
E(f's_and_b32 s{sT+1}, s{sWave}, 1\n s_lshl_b32 s{sT+1}, s{sT+1}, 11\n v_add_u32 v{AKA}, s{sT+1}, v6')
E(f'v_lshlrev_b32 v7, 8, v7\n v_lshl_add_u32 v7, v5, 4, v7\n v_add_u32 v{AVA}, s{sT+1}, v7')
E(f's_lshl_b32 s{sT+6}, s{sHg}, 5\n s_add_u32 s{sT+6}, s{sT+6}, s{sPb}\n s_lshl_b32 s{sT+6}, s{sT+6}, 7\n s_lshl_b32 s{sT+1}, s{sWave}, 2\n s_add_u32 s{sT+6}, s{sT+6}, s{sT+1}\n s_add_u32 s{sT+6}, s{sT+6}, {hex(WS_FKVB)}')
E('s_waitcnt lgkmcnt(0)')
mktag()
E(f's_cmp_lt_u32 s{sWave}, 4\n s_cbranch_scc1 L_A_GQ')
E(f'v_lshrrev_b32 v4, 4, v0\n v_lshlrev_b32 v4, 8, v4\n v_lshl_add_u32 v4, v5, 3, v4\n s_add_u32 s{sT}, s{sT}, {L_ST}\n v_add_u32 v4, s{sT}, v4')
E(f's_lshl_b32 s{sT+1}, s{sT+3}, 10\n s_add_u32 s{sT+1}, s{sT+1}, {L_PART}\n v_add_u32 v2, s{sT+1}, v6\n s_lshl_b32 s{sT+1}, s{sT+3}, 8\n s_add_u32 s{sT+1}, s{sT+1}, {L_PG}\n v_add_u32 v3, s{sT+1}, v11')
E('s_waitcnt vmcnt(0)')
for s_ in range(4): E(f'ds_read_b64_tr_b16 {vr(44+4*s_,2)}, v4 offset:{1024*s_}\n ds_read_b64_tr_b16 {vr(46+4*s_,2)}, v4 offset:{1024*s_+128}')
for s_ in range(4): E(f'v_mfma_f32_16x16x32_bf16 v[64:67], {vr(132+4*s_,4)}, {vr(116+4*s_,4)}, {"0" if s_==0 else "v[64:67]"}')
E(f's_cmp_lt_u32 s{sHg}, 4\n s_waitcnt lgkmcnt(0)\n s_cbranch_scc0 L_A_VJOB')
for s_ in range(4): E(f'v_mfma_f32_16x16x32_bf16 v[60:63], {vr(44+4*s_,4)}, {vr(116+4*s_,4)}, {"0" if s_==0 else "v[60:63]"}')
E('s_branch L_A_KVJ')
LBL('L_A_VJOB')
for s_ in range(4): E(f'v_mfma_f32_16x16x32_bf16 v[60:63], {vr(116+4*s_,4)}, {vr(44+4*s_,4)}, {"0" if s_==0 else "v[60:63]"}')
LBL('L_A_KVJ')
E('s_nop 0\n ds_write_b32 v3, v64\n s_nop 5\n ds_write_b128 v2, v[60:63]')
stamp('A',2,'kvA partial')
E('s_waitcnt lgkmcnt(0)')
tag_set(T_PT,sT+3,2)
E(f's_cmp_eq_u32 s{sWave}, 7\n s_cbranch_scc0 L_A_BS')
C('---- wave 7: reduce the four partial tiles, store, flag')
tag_wait(T_PT,4,2)
E(f'v_add_u32 v3, {L_PART}, v6\n v_add_u32 v4, {L_PG}, v11')
for i in range(4): E(f'ds_read_b128 {vr(116+4*i,4)}, v3 offset:{1024*i}')
for i in range(2): E(f'ds_read2st64_b32 {vr(148+2*i,2)}, v4 offset0:{2*i} offset1:{2*i+1}')
E(f's_lshl_b32 s{sT+3}, s{sPb}, 1\n s_lshr_b32 s{sT+4}, s{sT+9}, 1\n s_add_u32 s{sT+3}, s{sT+3}, s{sT+4}\n s_lshl_b32 s{sT+3}, s{sT+3}, 11\n s_add_u32 s{sT+3}, s{sT+3}, {hex(WS_KVA)}\n s_and_b32 s{sT+4}, s{sT+9}, 1')
E(f's_cmp_lt_u32 s{sHg}, 4\n s_cselect_b32 s{sT+5}, 9, 3\n s_cselect_b32 s{sT+7}, 3, 8\n s_cselect_b32 s{sT+1}, 8, 9\n s_cselect_b32 s{sT}, 0, 0x400')
E(f's_lshl_b32 s{sT+4}, s{sT+4}, s{sT+1}\n s_add_u32 s{sT+3}, s{sT+3}, s{sT+4}\n s_add_u32 s{sT+3}, s{sT+3}, s{sT}')
E(f'v_bfe_u32 v3, v0, 4, 1\n v_lshrrev_b32 v4, 5, v0\n v_lshlrev_b32 v5, 4, v5\n v_lshl_add_u32 v5, v3, s{sT+5}, v5\n v_lshl_add_u32 v5, v4, s{sT+7}, v5')
E(f's_lshl_b32 s{sT+7}, s{sPb}, 1\n s_lshr_b32 s{sT+1}, s{sHg}, 2\n s_add_u32 s{sT+7}, s{sT+7}, s{sT+1}\n s_lshl_b32 s{sT+7}, s{sT+7}, 7\n s_lshl_b32 s{sT+1}, s{sT+9}, 2\n s_add_u32 s{sT+7}, s{sT+7}, s{sT+1}\n s_add_u32 s{sT+7}, s{sT+7}, {hex(WS_FKVA)}')
E('s_waitcnt lgkmcnt(2)')
for st_ in (8,4):
    for r in range(st_): E(f'v_add_f32 v{116+r}, v{116+r}, v{116+st_+r}')
cvt(116,116,117); cvt(117,118,119)
E(f'buffer_store_dwordx2 v[116:117], v5, {sr(sWS)}, s{sT+3} offen sc1')
E(f's_cmp_lt_u32 s{sHg}, 4\n s_waitcnt lgkmcnt(0)\n s_cbranch_scc0 L_A_SF')
for st_ in (2,1):
    for r in range(st_): E(f'v_add_f32 v{148+r}, v{148+r}, v{148+st_+r}')
E(f's_mov_b32 s{sT}, {hex(f2u(-math.log2(math.e)))}\n v_mul_f32 v148, s{sT}, v148\n v_exp_f32 v148, v148')
E(f's_lshl_b32 s{sT}, s{sPb}, 2\n s_add_u32 s{sT}, s{sT}, s{sT+9}\n v_add_f32 v148, 1.0, v148\n v_rcp_f32 v148, v148\n s_lshl_b32 s{sT}, s{sT}, 6\n s_add_u32 s{sT}, s{sT}, {hex(WS_G)}')
E(f's_mov_b64 exec, 0xffff\n buffer_store_dword v148, v11, {sr(sWS)}, s{sT} offen sc1\n s_mov_b64 exec, -1')
LBL('L_A_SF')
E('s_waitcnt vmcnt(0)')
flag_store(sT+7,2)
stamp('A',3,'kvA flag sent')
LBL('L_A_BS')
E(f's_cmp_eq_u32 s{sWave}, 6\n s_cbranch_scc0 L_A_B8')
C('---- wave 6: wait for every K/V piece, fetch this WG\'s share into L2, tell the projection waves')
tag_wait(T_PL,1,2,sleep=4)
E(f'v_lshlrev_b32 v16, 7, v0\n v_add_u32 v17, {hex(WS_FKVA)}, v16')
poll(17,4,12,sleep=int(OPT.get('psl','4')))
E(f's_lshr_b32 s{sT+5}, s2, 3\n s_lshl_b32 s{sT+5}, s{sT+5}, 12\n s_add_u32 s{sT+5}, s{sT+5}, {hex(WS_KVA)}')
E(f's_mov_b32 exec_hi, 0\n buffer_load_dword v117, v16, {sr(sWS)}, s{sT+5} offen sc1\n s_mov_b64 exec, -1')
tag_set(T_FL,None,2)
stamp('A',3,'kvA flag sent')
E(f's_cmp_eq_u32 s2, 0\n s_cbranch_scc0 L_A_B8\n s_mov_b32 s{sT}, 0')
flag_store(sT,2)
E('s_branch L_A_B8')
LBL('L_A_GQ')
PAC=[44,60,128,144]; PFR=[12,112,92]
def areads_l(st):
    f=PFR[st%3]; so=(st%8)*2048; o=[]
    for i in range(2): o+= [f'ds_read_b64_tr_b16 {vr(f+4*i,2)}, v{WA+i} offset:{so}', f'ds_read_b64_tr_b16 {vr(f+4*i+2,2)}, v{WA+i} offset:{so+512}']
    for t in range(2): o.append(f'ds_read_b128 {vr(f+8+4*t,4)}, v{XA+st%4} offset:{(st//4)*8192+4096*t}')
    return o
def areads(st):
    for p in areads_l(st): E(p)
def kv_parts(p):
    VQ.extend(['kv']*2)
    return [f's_add_u32 m0, s{sRing}, {p*2048}\n s_add_u32 s{sT+4}, s{sT+5}, {p*2048}']+[f'buffer_load_dwordx4 v6, {sr(sWS)}, s{sT+4} offen offset:{1024*n} sc1 lds' for n in range(2)]
def kvpiece(p):
    for q in kv_parts(p): E(q)
for st in range(NW0,8): wdma(st)
E(f's_lshr_b32 s{sT+5}, s2, 3\n s_add_u32 s{sT+5}, s{sT+5}, s{sWave}\n s_and_b32 s{sT+5}, s{sT+5}, 3\n s_lshl_b32 s{sT+5}, s{sT+5}, 14\n s_add_u32 s{sT+5}, s{sT+5}, {hex(WS_KVA)}')
tag_wait(T_X,1,2)
stamp('A',7,'G1'); cstamp('A',10,'G1')
vwait('w0'); areads(0); vwait('w1'); areads(1)
VQ0=list(VQ)
PLK=int(OPT.get('plk','8'))
E(f's_cmp_eq_u32 s{sWave}, 3\n s_cbranch_scc1 L_A_GV')
def gstep(var,st,kv):
    f=PFR[st%3]
    def mm(i,t):
        d=PAC[2*i+t]; c='0' if st==0 else None
        if var==0: mfma(d,f+4*i,f+8+4*t,c)
        else: mfma(d,f+8+4*t,f+4*i,c)
    vwait(f'w{st+2}',f' lgkmcnt({6 if st<31 else 0})')
    rd=areads_l(st+2) if st+2<32 else []
    dm=wdma_parts(st+8) if st+8<32 else (kv_parts(st%8) if kv else [])
    gaps=[rd[0:2]+dm[0:1], rd[2:4]+dm[1:2], rd[4:6], dm[2:3]]
    if st>=30: gaps=[[f'v_mov_b32 v{OB+8*(st-30)+2*q+r}, 0' for r in range(2)]+gaps[q] for q in range(4)]
    for q,(i,t) in enumerate(((0,0),(0,1),(1,0),(1,1))):
        mm(i,t)
        for p in gaps[q]: E(p)
for var in (0,1):
    if var: LBL('L_A_GV')
    VQ[:]=VQ0
    for st in range(24):
        if st==2: E('s_waitcnt lgkmcnt(0)'); tag_wait(T_X,4,2)
        if st==14: E('s_waitcnt lgkmcnt(0)'); tag_wait(T_X+16,4,2)
        if st==PLK and var==1: tag_set(T_PL,None,2); E('s_waitcnt lgkmcnt(0)')
        gstep(var,st,False)
    stamp('A',2,'step 24')
    tag_wait(T_FL,1,2,once=f'L_A_GK{var}')
    V1=list(VQ)
    for st in range(24,32): gstep(var,st,False)
    tag_wait(T_FL,1,2)
    for p in range(8): kvpiece(p)
    E(f's_branch L_A_GE{var}')
    LBL(f'L_A_GK{var}')
    VQ[:]=V1
    for st in range(24,32): gstep(var,st,True)
    LBL(f'L_A_GE{var}')
    stamp('A',1,'proj loop done'); cstamp('A',11,'pl')
    E(f's_lshl_b32 s{sT+4}, s{sHg}, 8\n s_lshl_b32 s{sT+5}, s{sPb}, 1\n s_add_u32 s{sT+4}, s{sT+4}, s{sT+5}\n s_lshl_b32 s{sT+4}, s{sT+4}, 11\n s_add_u32 s{sT+4}, s{sT+4}, {hex(WS_KVB)}')
    if var==0:
        E(f's_cmp_eq_u32 s{sWave}, 2\n s_cbranch_scc1 L_A_EK')
        C('q (A / B): scale, pack, hand over through LDS')
        tag_wait(T_PT,4,2)
        E(f's_lshl_b32 s{sT+1}, s{sWave}, 13\n s_add_u32 s{sT+1}, s{sT+1}, {L_QA}\n v_add_u32 v3, s{sT+1}, v6\n s_mov_b32 s{sT+2}, {hex(CSCALE)}\n s_mov_b32 s{sT+3}, {hex(CSCALE)}')
        for i in range(2):
            for t in range(2):
                d=PAC[2*i+t]
                for r in range(0,16,2): E(f'v_pk_mul_f32 {vr(d+r,2)}, {vr(d+r,2)}, {sr(sT+2,2)}')
                for r in range(8): cvt(d+r,d+2*r,d+2*r+1)
                for hh in range(2): E(f'ds_write_b128 v3, {vr(d+4*hh,4)} offset:{(2*i+hh)*2048+1024*t}')
        E('s_waitcnt vmcnt(0) lgkmcnt(0)')
        tag_set(T_G,sWave,2)
        E('s_branch L_A_B8')
        LBL('L_A_EK')
        E('s_waitcnt vmcnt(0)')
        tag_set(T_G,sWave,2)
        for i in range(2):
            for t in range(2):
                d=PAC[2*i+t]
                for r in range(8): cvt(d+r,d+2*r,d+2*r+1)
                for hh in range(2): E(f's_add_u32 s{sT+5}, s{sT+4}, {(2*i+hh)*131072}\n buffer_store_dwordx4 {vr(d+4*hh,4)}, v6, {sr(sWS)}, s{sT+5} offen offset:{2048*t} sc1')
        E('s_branch L_A_B8')
    else:
        E('s_waitcnt vmcnt(0)')
        tag_set(T_G,sWave,2)
        E('v_bfe_u32 v3, v0, 4, 1\n v_lshl_add_u32 v3, v3, 17, v7')
        for i in range(2):
            for t in range(2):
                d=PAC[2*i+t]
                for r in range(8): cvt(d+r,d+2*r,d+2*r+1)
                E('s_nop 1')
                for gq in range(2): E(f'v_permlane32_swap_b32 v{d+4*gq}, v{d+4*gq+2}\n v_permlane32_swap_b32 v{d+4*gq+1}, v{d+4*gq+3}')
                E(f's_add_u32 s{sT+5}, s{sT+4}, {i*2*131072}')
                for gq in range(2): E(f'buffer_store_dwordx4 {vr(d+4*gq,4)}, v3, {sr(sWS)}, s{sT+5} offen offset:{2048*t+1024+512*gq} sc1')
LBL('L_A_B8')
E(f's_lshr_b32 s{sT+1}, s{sWave}, 2\n s_lshl_b32 s{sT+1}, s{sT+1}, 1\n s_and_b32 s{sT+2}, s{sWave}, 1\n s_add_u32 s{sT+1}, s{sT+1}, s{sT+2}\n s_lshl_b32 s{sT+1}, s{sT+1}, 11\n s_bfe_u32 s{sT+2}, s{sWave}, 0x10001\n s_lshl_b32 s{sT+2}, s{sT+2}, 10\n s_add_u32 s{sT+1}, s{sT+1}, s{sT+2}\n s_add_u32 s{sT+1}, s{sT+1}, {L_QA}\n v_add_u32 v2, s{sT+1}, v6\n v_xor_b32 v3, 0x800, v2')

def kvoff(j): return (j%16)*4096
def ldk(j): E(f'ds_read_b128 {vr(AK+4*(j&1),4)}, v{AKA} offset:{kvoff(j)}')
def ldv(j): E(f's_mov_b64 exec, {sr(sVM,2)}\n ds_read_b128 {vr(AV+8*(j&1),4)}, v{AVA} offset:{kvoff(j)+1024}\n ds_read_b128 {vr(AV+8*(j&1)+4,4)}, v{AVA} offset:{kvoff(j)+1536}\n s_mov_b64 exec, -1')
tag_wait(T_G,1,4)
stamp('A',4,'BQ'); cstamp('A',8,'BQ')
E(f'ds_read_b128 {vr(AQ0,4)}, v2\n ds_read_b128 {vr(AQ1,4)}, v3')
if PRIO in ('step','step4'): E('s_setprio 2')
if PRIO=='half':
    E(f's_cmp_ge_u32 s{sWave}, 4\n s_cbranch_scc0 L_A_NP\n s_setprio 1'); LBL('L_A_NP')
ldk(0); ldv(0); ldk(1)
E('s_waitcnt lgkmcnt(3)'); mfma(SA,AK,AQ0,'0'); E('s_nop 11')
def pair_iter(j,ldk_,ldv_,first=False,last=0,extra=0):
    kc=AK+4*(j&1); kn=AK+4*((j+1)&1); vc=AV+8*(j&1); vp=AV+8*((j+1)&1)
    vexp(SA); vexp(SA+1)
    if not first: smf(OB,vp+4,SB+8,AIDX)
    for r in range(2,5): vexp(SA+r)
    mfma(SB,kc,AQ1,'0')
    for r in range(5,10): vexp(SA+r)
    E(f's_waitcnt lgkmcnt({(1 if last<2 else 0)+extra})')
    vexp(SA+10); smf(OA,vc,SA,AIDX)
    for r in range(11,16): vexp(SA+r)
    vexp(SB); vexp(SB+1); smf(OA,vc+4,SA+8,AIDX)
    if last<2: ldv_()
    for r in range(2,5): vexp(SB+r)
    if last<2:
        E('s_waitcnt lgkmcnt(2)'); mfma(SA,kn,AQ0,'0')
    if last<1: ldk_()
    for r in range(5,11): vexp(SB+r)
    smf(OB,vc,SB,AIDX)
    for r in range(11,16): vexp(SB+r)
def aflag(force,init=False):
    sk=uid('fl')
    E(f's_cmp_eq_u32 s{sT+5}, 0\n s_cbranch_scc0 {sk}')
    if not force: E(f's_getreg_b32 s{sT}, hwreg(HW_REG_IB_STS, 0, 4)\n s_cmp_eq_u32 s{sT}, 0\n s_cbranch_scc0 {sk}')
    E(f's_waitcnt vmcnt(0)\n s_mov_b32 s{sT+5}, 1'); flag_store(sT+6,2); LBL(sk)
if ROLL:
    AKN=120; AVN=121; sC=sT+4
    def rk(j):
        a_=AKA if j<4 else AKN
        return lambda: E(f'ds_read_b128 {vr(AK+4*(j&1),4)}, v{a_} offset:{(j%4)*4096}')
    def rv(j):
        a_=AVA if j<4 else AVN
        return lambda: E(f's_mov_b64 exec, {sr(sVM,2)}\n ds_read_b128 {vr(AV+8*(j&1),4)}, v{a_} offset:{(j%4)*4096+1024}\n ds_read_b128 {vr(AV+8*(j&1)+4,4)}, v{a_} offset:{(j%4)*4096+1536}\n s_mov_b64 exec, -1')
    for r in range(8,16): E(f'v_mov_b32 v{SB+r}, 0')
    E(f'v_add_u32 v{AKN}, 0x8000, v{AKA}\n v_add_u32 v{AVN}, 0x8000, v{AVA}\n v_add_u32 v{AKA}, 0x4000, v{AKA}\n v_add_u32 v{AVA}, 0x4000, v{AVA}\n s_mov_b32 s{sC}, 0\n s_mov_b32 s{sT+5}, 0')
    L.append('.p2align 6')
    LBL('L_A_LOOP')
    pair_iter(0,rk(2),rv(1)); pair_iter(1,rk(3),rv(2))
    E(f's_cmp_gt_u32 s{sC}, 6\n s_cbranch_scc1 L_A_LAST\n s_bitcmp1_b32 0x5f, s{sC}\n s_cbranch_scc1 L_A_RARE')
    LBL('L_A_RBACK')
    pair_iter(2,rk(4),rv(3)); pair_iter(3,rk(5),rv(4))
    E(f's_add_u32 s{sC}, s{sC}, 1\n s_mov_b32 s{sT+1}, 0x4000\n s_cmp_eq_u32 s{sC}, 2\n s_cselect_b32 s{sT+1}, {hex((-49152)&0xffffffff)}, s{sT+1}\n s_cmp_eq_u32 s{sC}, 3\n s_cselect_b32 s{sT+1}, {hex((-65536)&0xffffffff)}, s{sT+1}')
    E(f'v_mov_b32 v{AKA}, v{AKN}\n v_mov_b32 v{AVA}, v{AVN}\n v_add_u32 v{AKN}, s{sT+1}, v{AKN}\n v_add_u32 v{AVN}, s{sT+1}, v{AVN}\n s_branch L_A_LOOP')
    LBL('L_A_RARE')
    E(f's_waitcnt lgkmcnt(0)\n s_cmp_gt_u32 s{sC}, 3\n s_cbranch_scc1 L_A_R4')
    E(f's_cmp_eq_u32 s{sC}, 0\n s_cbranch_scc0 L_A_R1'); lds_spin(C_K1,None,4,vZ,2,sleep=0)
    LBL('L_A_R1')
    E(f's_cmp_eq_u32 s{sC}, 2\n s_cbranch_scc0 L_A_R2'); lds_spin(C_K2,None,4,vZ,2,sleep=1)
    LBL('L_A_R2')
    E(f's_cmp_eq_u32 s{sC}, 3\n s_cbranch_scc1 L_A_R3'); aflag(False); E('s_branch L_A_RBACK')
    LBL('L_A_R3'); aflag(True); E('s_branch L_A_RBACK')
    LBL('L_A_R4')
    E(f's_cmp_eq_u32 s{sC}, 4\n s_cbranch_scc0 L_A_R6'); lds_add(C_MID,1,vZ,2); E('s_waitcnt lgkmcnt(0)\n s_branch L_A_RBACK')
    LBL('L_A_R6'); lds_spin(C_MID,None,8,vZ,2,sleep=1); E('s_branch L_A_RBACK')
    LBL('L_A_LAST')
    pair_iter(2,None,rv(3),last=1); pair_iter(3,None,None,last=2)
else:
    E(f's_and_b32 s{sT+5}, s{sWave}, 6\n s_cmp_eq_u32 s{sT+5}, 2\n s_cselect_b32 s{sT+5}, 0, 1')
    for j in range(32):
        if j==2: E('s_waitcnt lgkmcnt(0)'); tag_wait(T_G,4,2)
        if j in (1,2,3,5): aflag(j==5)
        if PRIO=='step' and j in (11,22): E(f's_setprio {1 if j==11 else 0}')
        if PRIO=='step4' and j in (6,16): E(f's_setprio {1 if j==6 else 0}')
        if OPT.get('jst') and j in (2,4,8,16,24): E('s_waitcnt lgkmcnt(0)'); cstamp('A',{2:1,4:2,8:3,16:7,24:10}[j],f'J{j}')
        if j==14: E('s_waitcnt lgkmcnt(0)'); lds_spin(C_K2,None,4,vZ,2,sleep=1)
        if j==16: lds_add(C_MID,1,vZ,2)
        if j==28: E('s_waitcnt lgkmcnt(0)'); lds_spin(C_SN,None,4,vZ,2,sleep=1); lds_spin(C_MID,None,8,vZ,2,sleep=1)
        def lv(j=j):
            if j==15: E(f'v_add_u32 v{AVA}, 0x10000, v{AVA}')
            ldv(j+1)
        def lk(j=j):
            if j==14: E(f'v_add_u32 v{AKA}, 0x10000, v{AKA}')
            ldk(j+2)
        pair_iter(j,lk,lv,first=(j==0),last=(2 if j==31 else 1 if j==30 else 0),extra=(1 if j==16 else 0))
E('s_nop 1'); smf(OB,AV+8+4,SB+8,AIDX)
stamp('A',5,'A loop done'); cstamp('A',9,'loop done')
C('---- pair exchange: send slot B, finish slot A')
E(f's_mul_i32 s{sT+1}, s{sWave}, 2304\n s_add_u32 s{sT+1}, s{sT+1}, {L_EX}\n v_add_u32 v2, s{sT+1}, v6\n v_lshlrev_b32 v3, 2, v0\n v_add_u32 v3, s{sT+1}, v3')
E(f's_xor_b32 s{sT+2}, s{sWave}, 1\n s_mul_i32 s{sT+2}, s{sT+2}, 2304\n s_add_u32 s{sT+2}, s{sT+2}, {L_EX}\n v_add_u32 v4, s{sT+2}, v6\n v_lshlrev_b32 v5, 2, v0\n v_add_u32 v5, s{sT+2}, v5\n s_nop 4')
E(f'ds_write_b128 v2, {vr(OB,4)}\n ds_write_b128 v2, {vr(OB+4,4)} offset:1024\n ds_write_b32 v3, v{OB+8} offset:2048')
E('s_waitcnt lgkmcnt(0)\n s_barrier')
E(f'ds_read_b128 {vr(SA,4)}, v4\n ds_read_b128 {vr(SA+4,4)}, v4 offset:1024\n ds_read_b32 v{SA+8}, v5 offset:2048\n ds_read_b32 v{SA+9}, v{vZ} offset:{C_LOC-L_ST}\n s_waitcnt lgkmcnt(0)\n v_readfirstlane_b32 s{sT+9}, v{SA+9}')
for r in range(9): E(f'v_add_f32 v{OA+r}, v{OA+r}, v{SA+r}')
finalize(OA,AK,2,'L_FB_A','L_FB_A_BACK')
E(f's_cmp_eq_u32 s{sT+9}, 0\n s_cbranch_scc1 L_A_FAR\n buffer_store_dwordx4 {vr(AK,4)}, v6, {sr(sWS)}, s{sOA} offen\n s_branch L_A_STD')
LBL('L_A_FAR')
E(f'buffer_store_dwordx4 {vr(AK,4)}, v6, {sr(sWS)}, s{sOA} offen sc1')
LBL('L_A_STD')
def setupA(): E(f's_mov_b32 s{sT+2}, {hex(WS_KVA)}\n s_mov_b32 s{sT+3}, 64')
fallback('L_FB_A','L_FB_A_BACK',AQ0,OA,SA,AK,AV,AIDX,3,6,7,None,setupA)
stamp('A',6,'oA published')
stamp_flush(12,'A')
LBL('L_END')
E('s_endpgm')
L.extend(TAIL)

hdr=open('cdna_kernels/%s.s.ref'%NAME).read().split('; Override launch')[0]
txt=hdr
txt+=f'; @launch grid=(256,1,1) block=(768,1,1) lds={LDS_TOTAL}\n'
for n in ('WS_KVA','WS_KVB','WS_OA','WS_OB','WS_STAMP','NSTAMP'): txt+=f'; CONST {n} = {hex(globals()[n])}\n'
for r,i,n in STN: txt+=f'; STAMPNAME {r} {i} {n}\n'
txt+=f'''.amdgcn_target "amdgcn-amd-amdhsa--gfx950"
.text
.globl {NAME}_kernel
.p2align 8
.type {NAME}_kernel,@function
{NAME}_kernel:
'''+'\n'.join(L)+f'''
.section .rodata,"a"
.p2align 6
.amdhsa_kernel {NAME}_kernel
  .amdhsa_next_free_vgpr 168
  .amdhsa_next_free_sgpr 102
  .amdhsa_accum_offset 168
  .amdhsa_group_segment_fixed_size 0
  .amdhsa_kernarg_size 96
  .amdhsa_user_sgpr_count 2
  .amdhsa_user_sgpr_kernarg_segment_ptr 1
  .amdhsa_system_sgpr_workgroup_id_x 1
.end_amdhsa_kernel
'''
open(OUT,'w').write(txt)
print('wrote',OUT,len(L),'lines')
```

```python
import sys, math, struct
NAME='gated_mix__grouped_kv_mqa__sliding_block__prompt'
DIAG = '--diag' in sys.argv
OUT = [a for a in sys.argv[1:] if not a.startswith('--')]
OUT = OUT[0] if OUT else 'cdna_kernels/%s.s'%NAME
OPT=dict(a.lstrip('-').split('=') for a in sys.argv[1:] if a.startswith('--') and '=' in a)
MAP=OPT.get('map','b'); ROT=OPT.get('rot','full'); PRIO=OPT.get('prio','step'); FLAG_IT=int(OPT.get('flagit','1')); PK=int(OPT.get('pk','7')); FORCE_K=int(OPT.get('forcek','7')); SENTK=int(OPT.get('sentk','14')); DENSE=OPT.get('dense','0')=='1'; ROLL=OPT.get('roll','0')=='1'; WT=OPT.get('wtouch','0')=='1'; KVK=int(OPT.get('kvk','13'))
def f2u(f): return struct.unpack('<I',struct.pack('<f',f))[0]

WS_EPOCH=0x0
WS_FKVA=0x1000
WS_FKVB=0x4000
WS_FOB =0xC000
WS_FOA =0x14000
WS_G   =0x1C000
WS_KVA =0x20000
WS_QB  =0x40000
WS_KVB =0x240000
WS_OA  =0x640000
WS_OB  =0x840000
WS_STAMP=0xA40000
NSTAMP=16
L_WQ=0; L_X=65536; L_ST=131072; L_CTL=L_ST+30720
L_GW=L_CTL; L_G=L_CTL+1024; L_C=L_CTL+1024+256
C_X=L_C+0
C_Q=L_C+4
C_K0=L_C+8; C_K1=L_C+12; C_K2=L_C+16; C_BP=L_C+20; C_MID=L_C+24; C_WO=L_C+28; C_WD=L_C+32; C_QR=L_C+36; C_SN=L_C+40; C_LOC=L_C+44; T_PT=L_C+256; T_X=L_C+272; T_PL=L_C+304; T_FL=L_C+308; T_G=L_C+320; T_X0=L_C+336; T_K0=L_C+352; T_Q1=L_C+356
L_EX=L_ST
LDS_TOTAL=163840
SPIN_LIMIT=50000
CSCALE=f2u(0.25*math.log2(math.e))
NEGBIG=f2u(-1e9)
L_LO=f2u(2.0**-24); L_HI=f2u(2.0**60)

sX=28; sWQ=32; sWKV=36; sWB=40; sWOA=44; sWOB=48; sG=52; sOUT=56; sWS=60; sDBG=64
sWave=68; sPb=69; sHg=70; sTag=71
sT=72
sCnt=84; sB=85
sXcc=65
sVM=86
sST=88
L=[]
def E(s):
    for ln in s.split('\n'):
        if ln.strip(): L.append('    '+ln.strip())
def LBL(s): L.append(s+':')
def C(s): L.append('    ; '+s)
_uid=[0]
def uid(p):
    _uid[0]+=1; return f'{p}_{_uid[0]}'
def vr(a,n): return f'v[{a}:{a+n-1}]'
def sr(a,n=4): return f's[{a}:{a+n-1}]'
def srd(dst,ptr,nbytes):
    E(f's_mov_b32 s{dst}, s{ptr}\n s_mov_b32 s{dst+1}, s{ptr+1}\n s_mov_b32 s{dst+2}, {hex(nbytes)}\n s_mov_b32 s{dst+3}, 0x20000')
STN=[]
def stamp(role,i,name):
    if OPT.get('acc') and role=='B' and i==10: return
    if OPT.get('jst') and role=='A' and i in (1,2,3,7): return
    if OPT.get('bst') and role=='B' and i in (6,7,8,9) and not name.startswith('arrive'): return
    if not DIAG: return
    STN.append((role,i,name))
    E(f's_memrealtime s[100:101]\n s_waitcnt lgkmcnt(0)\n s_mov_b32 s{sST+i}, s100')
def cstamp(role,i,name):
    if OPT.get('jst') and i in (10,11) and not name.startswith('J'): return
    if not DIAG: return
    STN.append((role,i,'CYC '+name))
    E(f's_memtime s[100:101]\n s_waitcnt lgkmcnt(0)\n s_mov_b32 s{sST+i}, s100')
def tacc(role,i,name,code):
    if not (DIAG and OPT.get('acc')): E(code); return
    if (role,i,'ACC '+name) not in STN: STN.append((role,i,'ACC '+name))
    E(f's_memtime s[100:101]\n s_waitcnt lgkmcnt(0)\n s_sub_u32 s{sST+i}, s{sST+i}, s100')
    E(code)
    E(f's_memtime s[100:101]\n s_waitcnt lgkmcnt(0)\n s_add_u32 s{sST+i}, s{sST+i}, s100')
def stamp_flush(nmax,role='B'):
    if not DIAG: return
    if OPT.get('dbg'):
        m={'A':[(0,1),(2,2),(7,3),(3,4),(1,5),(4,6),(5,7),(6,8)],'B':[(4,9),(6,10),(7,11),(9,12),(10,13),(11,14)]}[role]
        sk=uid('nd')
        srd(sDBG,24,256)
        E(f's_bfe_u32 s{sT}, s2, 0x30003\n s_cmp_eq_u32 s{sT}, 0\n s_cbranch_scc0 {sk}\n v_mov_b32 v2, 0\n s_not_b32 s{sT}, s{sST}\n v_writelane_b32 v2, s{sT}, 0')
        for i,sl in m: E(f'v_writelane_b32 v2, s{sST+i}, {sl}')
        E(f'v_lshlrev_b32 v3, 2, v0\n s_mov_b64 exec, 0xffff\n buffer_atomic_umax v2, v3, {sr(sDBG)}, 0 offen sc1\n s_mov_b64 exec, -1')
        LBL(sk)
        return
    if OPT.get('hwid'): E(f's_getreg_b32 s{sST+11}, hwreg(HW_REG_HW_ID)\n s_getreg_b32 s{sST+10}, hwreg(HW_REG_XCC_ID)')
    E('v_mov_b32 v2, 0')
    for i in range(nmax): E(f'v_writelane_b32 v2, s{sST+i}, {i}')
    E(f's_mul_i32 s{sT}, s2, 12\n s_add_u32 s{sT}, s{sT}, s{sWave}\n s_lshl_b32 s{sT}, s{sT}, 6\n s_add_u32 s{sT}, s{sT}, {hex(WS_STAMP)}')
    E(f'v_lshlrev_b32 v3, 2, v0\n s_mov_b64 exec, 0xffff\n buffer_store_dword v2, v3, {sr(sWS)}, s{sT} offen\n s_mov_b64 exec, -1')

def lds_add(off,val,vz,vt):
    E(f'v_mov_b32 v{vt}, {val}\n s_mov_b64 exec, 1\n ds_add_u32 v{vz}, v{vt} offset:{off-L_ST}\n s_mov_b64 exec, -1')
def lds_spin(off,mask,val,vz,vt,sleep=1):
    a=uid('spin'); d=uid('spind')
    E(f's_mov_b32 s{sCnt}, {SPIN_LIMIT}')
    LBL(a)
    E(f'ds_read_b32 v{vt}, v{vz} offset:{off-L_ST}\n s_waitcnt lgkmcnt(0)\n v_readfirstlane_b32 s{sT}, v{vt}')
    if mask is not None: E(f's_and_b32 s{sT}, s{sT}, {hex(mask)}')
    E(f's_cmp_eq_u32 s{sT}, {hex(val)}\n s_cbranch_scc1 {d}\n s_sub_u32 s{sCnt}, s{sCnt}, 1\n s_cbranch_scc1 {d}')
    if sleep: E(f's_sleep {sleep}')
    E(f's_branch {a}')
    LBL(d)
def tag_set(off,sidx,vt):
    if sidx is None: E(f'v_mov_b32 v{vt}, {off}')
    else: E(f's_lshl_b32 s{sT}, s{sidx}, 2\n s_add_u32 s{sT}, s{sT}, {off}\n v_mov_b32 v{vt}, s{sT}')
    E(f'v_mov_b32 v{vt+1}, 1\n s_mov_b64 exec, 1\n ds_write_b32 v{vt}, v{vt+1}\n s_mov_b64 exec, -1')
def tag_wait(off,n,vt,sleep=0,once=None):
    a=uid('tw'); d=uid('twd')
    E(f'v_and_b32 v{vt}, {n-1}, v0\n v_lshlrev_b32 v{vt}, 2, v{vt}\n v_add_u32 v{vt}, {off}, v{vt}')
    if once:
        E(f'ds_read_b32 v{vt+1}, v{vt}\n s_waitcnt lgkmcnt(0)\n v_cmp_ne_u32 vcc, 1, v{vt+1}\n s_cbranch_vccz {once}')
        return
    E(f's_mov_b32 s{sCnt}, {SPIN_LIMIT}')
    LBL(a)
    E(f'ds_read_b32 v{vt+1}, v{vt}\n s_waitcnt lgkmcnt(0)\n v_cmp_ne_u32 vcc, 1, v{vt+1}\n s_cbranch_vccz {d}\n s_sub_u32 s{sCnt}, s{sCnt}, 1\n s_cbranch_scc1 {d}')
    if sleep: E(f's_sleep {sleep}')
    E(f's_branch {a}')
    LBL(d)
def poll(vaddr,n,vt,sleep=1):
    a=uid('poll'); d=uid('polld')
    E(f's_mov_b32 s{sCnt}, {SPIN_LIMIT}')
    LBL(a)
    op={1:'buffer_load_dword',2:'buffer_load_dwordx2',3:'buffer_load_dwordx3',4:'buffer_load_dwordx4'}[n]
    E(f'{op} {vr(vt,n) if n>1 else "v%d"%vt}, v{vaddr}, {sr(sWS)}, 0 offen sc1\n s_waitcnt vmcnt(0)')
    for i in range(n): E(f'v_xor_b32 v{vt+i}, s{sTag}, v{vt+i}')
    if n==2: E(f'v_or_b32 v{vt}, v{vt}, v{vt+1}')
    if n>=3: E(f'v_or3_b32 v{vt}, v{vt}, v{vt+1}, v{vt+2}')
    if n==4: E(f'v_or_b32 v{vt}, v{vt}, v{vt+3}')
    E(f'v_cmp_ne_u32 vcc, 0, v{vt}\n s_cbranch_vccz {d}\n s_sub_u32 s{sCnt}, s{sCnt}, 1\n s_cbranch_scc1 {d}')
    if sleep: E(f's_sleep {sleep}')
    E(f's_branch {a}')
    LBL(d)
def flag_store(soff_reg,vt):
    E(f'v_mov_b32 v{vt}, s{sTag}\n s_mov_b64 exec, 1\n buffer_store_dword v{vt}, off, {sr(sWS)}, s{soff_reg} sc1\n s_mov_b64 exec, -1')
def mfma(d,a,b,c=None):
    cc = vr(d,16) if c is None else (c if isinstance(c,str) else vr(c,16))
    E(f'v_mfma_f32_32x32x16_bf16 {vr(d,16)}, {vr(a,4)}, {vr(b,4)}, {cc}')
def smf(o,v,s,idx): E(f'v_smfmac_f32_32x32x32_bf16 {vr(o,16)}, {vr(v,4)}, {vr(s,8)}, v{idx}')
def vexp(r): E(f'v_exp_f32 v{r}, v{r}')
def cvt(d,a,b): E(f'v_cvt_pk_bf16_f32 v{d}, v{a}, v{b}')
def set_vpad(regs,vt):
    E(f'v_and_b32 v{vt}, 27, v0\n v_cmp_eq_u32 vcc, 16, v{vt}\n v_mov_b32 v{vt}, 0x3f803f80\n s_nop 0\n v_cndmask_b32 v{regs[0]}, 0, v{vt}, vcc')
    for r in regs[1:]: E(f'v_mov_b32 v{r}, v{regs[0]}')
def xaddr(base,t_imm,vt):
    E(f'v_and_b32 v{vt}, 15, v0\n v_lshrrev_b32 v{base}, 5, v0\n v_xor_b32 v{base}, v{base}, v{vt}\n v_lshlrev_b32 v{base}, 4, v{base}')
    E(f'v_and_b32 v{vt}, 31, v0\n v_lshl_add_u32 v{base}, v{vt}, 10, v{base}\n v_add_u32 v{base}, {t_imm}, v{base}')
    for b in range(1,8): E(f'v_xor_b32 v{base+b}, {b<<5}, v{base}')
def traddr128(dst,vt,vt2,rowsel,colbase):
    E(f'v_lshrrev_b32 v{vt}, 5, v0\n v_lshlrev_b32 v{vt}, {rowsel}, v{vt}\n v_bfe_u32 v{vt2}, v0, 2, 2\n v_add_u32 v{vt}, v{vt}, v{vt2}\n v_lshlrev_b32 v{dst}, 7, v{vt}')
    E(f'v_bfe_u32 v{vt}, v0, 4, 1\n v_lshlrev_b32 v{vt}, 1, v{vt}\n v_bfe_u32 v{vt2}, v0, 1, 1\n v_add3_u32 v{vt}, v{vt}, v{vt2}, {colbase}')
    E(f'v_bfe_u32 v{vt2}, v0, 3, 1\n v_lshlrev_b32 v{vt2}, 2, v{vt2}\n v_xor_b32 v{vt}, v{vt}, v{vt2}\n v_lshl_add_u32 v{dst}, v{vt}, 4, v{dst}')
    E(f'v_and_b32 v{vt}, 1, v0\n v_lshl_add_u32 v{dst}, v{vt}, 3, v{dst}')
def dma128_voff(dst,vt,vt2,rowstride_sreg_or_shift,colbytes):
    E(f'v_lshrrev_b32 v{vt}, 3, v0')
    if isinstance(rowstride_sreg_or_shift,int): E(f'v_lshlrev_b32 v{dst}, {rowstride_sreg_or_shift}, v{vt}')
    else: E(f'v_mul_u32_u24 v{dst}, {rowstride_sreg_or_shift}, v{vt}')
    E(f'v_bfe_u32 v{vt}, v0, 4, 1\n v_lshlrev_b32 v{vt}, 2, v{vt}\n v_and_b32 v{vt2}, 7, v0\n v_xor_b32 v{vt}, v{vt}, v{vt2}\n v_lshl_add_u32 v{dst}, v{vt}, 4, v{dst}\n v_add_u32 v{dst}, {colbytes}, v{dst}')
def finalize(O,dst,vt,lbl_fb,lbl_back,vg):
    E(f'v_add_f32 v{vt}, |v{O}|, |v{O+1}|')
    for r in range(2,8): E(f'v_add_f32 v{vt}, v{vt}, |v{O+r}|')
    E(f'v_mov_b32 v{vt+1}, 0x7f800000\n v_cmp_nlt_f32 {sr(sT,2)}, v{vt}, v{vt+1}')
    E(f'v_cmp_nle_f32 vcc, {hex(L_LO)}, v{O+8}\n s_or_b64 {sr(sT,2)}, {sr(sT,2)}, vcc')
    E(f'v_cmp_nge_f32 vcc, {hex(L_HI)}, v{O+8}\n s_or_b64 {sr(sT,2)}, {sr(sT,2)}, vcc\n s_cbranch_scc1 {lbl_fb}')
    LBL(lbl_back)
    E(f'v_rcp_f32 v{vt}, v{O+8}\n s_nop 0\n v_mul_f32 v{vt}, v{vt}, v{vg}')
    for r in range(0,8,2): E(f'v_pk_mul_f32 {vr(O+r,2)}, {vr(O+r,2)}, {vr(vt,2)} op_sel_hi:[1,0]')
    for r in range(4): cvt(dst+r,O+2*r,O+2*r+1)
    E(f'v_min_u32 v{dst}, -2, v{dst}')

TAIL=[]
RETRY=[]
def fallback(lbl,back,Q,O,S,K,V,IDX,vM,vK,vV,ntile,soff_setup,first_mask=None,last_mask=None,first_cond=None):
    global L
    save=L; L=[]
    LBL(lbl)
    soff_setup()
    E(f'v_mov_b32 v{vM}, 0xff800000')
    for p in (0,1):
        lp=uid('fbl')
        if p==1:
            E(f'v_mov_b32 v{S}, v{vM}\n s_nop 1\n v_permlane32_swap_b32 v{S}, v{vM}\n s_nop 1\n v_max_f32 v{vM}, v{vM}, v{S}')
            for r in range(16): E(f'v_mov_b32 v{O+r}, 0')
        E(f's_mov_b32 s{sT+5}, s{sT+2}\n s_mov_b32 s{sT+6}, 0')
        LBL(lp)
        E(f'buffer_load_dwordx4 {vr(K,4)}, v{vK}, {sr(sWS)}, s{sT+5} offen sc1')
        if p==1:
            E(f's_mov_b64 exec, {sr(sVM,2)}\n buffer_load_dwordx4 {vr(V,4)}, v{vV}, {sr(sWS)}, s{sT+5} offen offset:1024 sc1\n buffer_load_dwordx4 {vr(V+4,4)}, v{vV}, {sr(sWS)}, s{sT+5} offen offset:1536 sc1\n s_mov_b64 exec, -1')
        E('s_waitcnt vmcnt(0)')
        if first_mask is None:
            mfma(S,K,Q,'0')
        else:
            a=uid('fbm'); b=uid('fbm'); j=uid('fbm')
            E(f's_add_u32 s{sT+7}, s{sT+6}, 1\n s_cmp_eq_u32 s{sT+7}, s{sT+3}\n s_cbranch_scc1 {a}')
            E(f's_cmp_lt_u32 s{sT+6}, s{sT+4}\n s_cbranch_scc1 {b}')
            mfma(S,K,Q,'0'); E(f's_branch {j}')
            LBL(a); mfma(S,K,Q,last_mask); E(f's_branch {j}')
            LBL(b); mfma(S,K,Q,first_mask)
            LBL(j)
        E('s_nop 15')
        if p==0:
            for r in range(0,16,2): E(f'v_max3_f32 v{vM}, v{S+r}, v{S+r+1}, v{vM}')
        else:
            for r in range(16): E(f'v_sub_f32 v{S+r}, v{S+r}, v{vM}')
            for r in range(16): vexp(S+r)
            E('s_nop 1'); smf(O,V,S,IDX); smf(O,V+4,S+8,IDX)
        E(f's_add_u32 s{sT+5}, s{sT+5}, 2048\n s_add_u32 s{sT+6}, s{sT+6}, 1\n s_cmp_lt_u32 s{sT+6}, s{sT+3}\n s_cbranch_scc1 {lp}')
    E(f's_nop 15\n s_branch {back}')
    TAIL.extend(L); L=save

E('s_cmp_ge_u32 s2, 256\n s_cbranch_scc1 L_END')
E('s_load_dwordx16 s[4:19], s[0:1], 0\n s_load_dwordx8 s[20:27], s[0:1], 64')
E(f'v_lshrrev_b32 v1, 6, v0\n v_and_b32 v0, 63, v0\n v_readfirstlane_b32 s{sWave}, v1')
if MAP=='b':
    E(f's_and_b32 s{sT}, s2, 7\n s_lshr_b32 s{sT+1}, s2, 3\n s_and_b32 s{sT+2}, s{sT+1}, 3\n s_lshl_b32 s{sPb}, s{sT}, 2\n s_or_b32 s{sPb}, s{sPb}, s{sT+2}\n s_lshr_b32 s{sHg}, s{sT+1}, 2')
else:
    E(f's_bfe_u32 s{sPb}, s2, 0x20001\n s_lshl_b32 s{sPb}, s{sPb}, 3\n s_bfe_u32 s{sT}, s2, 0x30003\n s_or_b32 s{sPb}, s{sPb}, s{sT}\n s_and_b32 s{sHg}, s2, 1\n s_lshl_b32 s{sHg}, s{sHg}, 2\n s_lshr_b32 s{sT}, s2, 6\n s_or_b32 s{sHg}, s{sHg}, s{sT}')
E(f's_mov_b32 s{sVM}, 0xffff\n s_mov_b32 s{sVM+1}, 0xffff')
if DIAG:
    for i in range(12): E(f's_mov_b32 s{sST+i}, 0')
C('clear the LDS counters and flags while the kernel arguments arrive')
E(f'v_lshlrev_b32 v2, 3, v0\n v_add_u32 v2, {L_C}, v2\n v_mov_b32 v4, 0\n v_mov_b32 v5, 0\n ds_write_b64 v2, v[4:5]')
E('s_waitcnt lgkmcnt(0)\n s_barrier')
stamp('A',0,'start'); stamp('B',0,'start')
E(f's_load_dword s{sTag}, s[26:27], {WS_EPOCH}')
srd(sX,4,2048*1024); srd(sWS,26,0x10000000)
E(f's_cmp_lt_u32 s{sWave}, 8\n s_cbranch_scc1 L_A')


vZ=1
KVPOS=[L_ST,16384,32768,49152,0,65536,81920,98304]
L_PART=L_ST+24576
L_QA=0; L_QB=8192; L_WO=0; L_FX=65536
sOut=66; sOb=67; sPass=64
sRot=sT+11
def mktag(): E(f's_mul_i32 s{sTag}, s{sTag}, 0x9E3779B1\n s_add_u32 s{sTag}, s{sTag}, 0x7F4A7C15')
def mkrot():
    if MAP=='b': E(f's_and_b32 s{sRot}, s{sPb}, 3\n s_lshl_b32 s{sRot}, s{sRot}, 1\n s_add_u32 s{sRot}, s{sRot}, s{sHg}')
    else: E(f's_lshl_b32 s{sRot}, s{sHg}, 1\n s_add_u32 s{sRot}, s{sRot}, s{sPb}')
def touch(srd_,soff,n,vaddr,vd,sc1=False):
    for i in range(n):
        if i: E(f's_add_u32 s{soff}, s{soff}, 8192')
        E(f'buffer_load_dword v{vd}, v{vaddr}, {sr(srd_)}, s{soff} offen'+(' sc1' if sc1 else ''))
E(f's_setprio {2 if OPT.get("bp2") else 3}\n s_sub_u32 s{sB}, s{sWave}, 8')
if OPT.get('cpf','1')=='1':
    C('---- pull this WG\'s share of the kernel\'s own instructions into L2 (later instruction fetches then miss only the I-cache)')
    E(f's_cmp_eq_u32 s{sB}, 3\n s_cbranch_scc0 L_B_NCP\n s_getpc_b64 s[{sT}:{sT+1}]')
    LBL('L_B_PC')
    E(f's_lshr_b32 s{sT+2}, s2, 3\n s_mul_i32 s{sT+2}, s{sT+2}, (L_CODE_END-L_B_PC+4095)/4096*128\n s_add_u32 s{sT}, s{sT}, s{sT+2}\n s_addc_u32 s{sT+1}, s{sT+1}, 0')
    E(f'v_lshlrev_b32 v2, 7, v0\n v_mov_b32 v3, s{sT+1}\n v_add_co_u32 v2, vcc, s{sT}, v2\n s_nop 1\n v_addc_co_u32 v3, vcc, 0, v3, vcc\n s_lshl_b64 exec, 1, (L_CODE_END-L_B_PC+4095)/4096\n s_sub_u32 exec_lo, exec_lo, 1\n global_load_dword v19, v[2:3], off\n s_mov_b64 exec, -1')
    LBL('L_B_NCP')
C('---- x tile -> LDS as 8 blocks of [64 rows][64 k], block order rotated per WG ; wave b brings blocks b and b+4')
E('v_lshrrev_b32 v17, 3, v0\n v_lshlrev_b32 v17, 10, v17\n v_lshrrev_b32 v2, 4, v0\n v_and_b32 v3, 7, v0\n v_xor_b32 v2, v2, v3\n v_lshl_add_u32 v17, v2, 4, v17\n v_xor_b32 v18, 64, v17')
mkrot()
E(f's_lshl_b32 s{sT+7}, s{sPb}, 16\n s_lshl_b32 s{sT+6}, s{sB}, 13')
VQ=[]
def vwait(tag,extra=''):
    if tag not in VQ:
        if extra: E('s_waitcnt'+extra)
        return
    i=max(n for n,t in enumerate(VQ) if t==tag)
    n=len(VQ)-1-i; del VQ[:i+1]
    E(f's_waitcnt vmcnt({n})'+extra)
XD=OPT.get('xd','1')=='1'
def xblock(expr_add,ldsoff,rows):
    E(f's_add_u32 s{sT+1}, s{sRot}, {expr_add}\n s_and_b32 s{sT+1}, s{sT+1}, 7\n s_lshl_b32 s{sT+1}, s{sT+1}, 7\n s_add_u32 s{sT+1}, s{sT+1}, s{sT+7}')
if XD:
    E(f's_and_b32 s{sT+1}, s{sRot}, 7\n s_lshl_b32 s{sT+1}, s{sT+1}, 7\n s_add_u32 s{sT+1}, s{sT+1}, s{sT+7}\n s_lshl_b32 s{sT+2}, s{sB}, 14\n s_add_u32 s{sT+1}, s{sT+1}, s{sT+2}\n s_lshl_b32 s{sT+2}, s{sB}, 11\n s_add_u32 m0, s{sT+2}, 65536\n s_nop 0')
    E(f'buffer_load_dwordx4 v17, {sr(sX)}, s{sT+1} offen lds\n s_add_u32 m0, s{sT+2}, {65536+1024}\n s_add_u32 s{sT+1}, s{sT+1}, 8192\n buffer_load_dwordx4 v18, {sr(sX)}, s{sT+1} offen lds')
def xrest():
  for hb in range(2):
    sk=uid('xs')
    if XD and hb==0: E(f's_cmp_eq_u32 s{sB}, 0\n s_cbranch_scc1 {sk}')
    E(f's_add_u32 s{sT+1}, s{sRot}, s{sB}\n s_add_u32 s{sT+1}, s{sT+1}, {4*hb}\n s_and_b32 s{sT+1}, s{sT+1}, 7\n s_lshl_b32 s{sT+1}, s{sT+1}, 7\n s_add_u32 s{sT+1}, s{sT+1}, s{sT+7}')
    for n in range(8):
        E(f's_add_u32 m0, s{sT+6}, {65536+32768*hb+1024*n}')
        E(f's_add_u32 s{sT+1}, s{sT+1}, 8192' if n else 's_nop 0')
        E(f'buffer_load_dwordx4 v{17+(n&1)}, {sr(sX)}, s{sT+1} offen lds')
    if XD and hb==0: LBL(sk)
if not XD: xrest()
MU=128; MD=144; BQ=16; BK=24; BV=36; BS=64; BO=96; BIDX=60
C('---- constants for the later phases (idle time)')
E(f'v_mov_b32 v{vZ}, {L_ST}\n v_lshlrev_b32 v160, 4, v0\n v_lshlrev_b32 v163, 7, v0')
E('v_lshrrev_b32 v161, 5, v0\n v_lshlrev_b32 v161, 8, v161\n v_and_b32 v2, 15, v0\n v_lshl_add_u32 v161, v2, 4, v161')
srd(sWOA,12,512*1024); srd(sWOB,18,512*1024)
E(f'v_and_b32 v4, 31, v0\n v_lshrrev_b32 v5, 5, v0\n v_lshlrev_b32 v5, 2, v5\n v_sub_u32 v4, v4, v5\n s_mov_b32 s{sT}, {hex(NEGBIG)}')
for r in range(16):
    E(f'v_subrev_u32 v5, {8*(r//4)+r%4}, v4\n v_ashrrev_i32 v5, 31, v5\n v_and_b32 v{MD+r}, s{sT}, v5\n v_xor_b32 v{MU+r}, s{sT}, v{MD+r}')
set_vpad(list(range(BV,BV+24)),2); E(f'v_mov_b32 v{BIDX}, 0xdddddddd')
for r in range(32): E(f'v_mov_b32 v{BO+r}, 0')
E(f'v_min_u32 v2, 4, v0\n s_sub_i32 s{sT}, s{sPb}, 4\n v_add_u32 v2, s{sT}, v2\n v_max_i32 v2, 0, v2\n s_lshl_b32 s{sT}, s{sHg}, 5\n v_add_u32 v2, s{sT}, v2\n v_lshlrev_b32 v2, 7, v2\n v_add_u32 v162, {hex(WS_FKVB+8)}, v2')
E(f'v_and_b32 v2, 7, v0\n v_lshlrev_b32 v2, 5, v2\n v_add_u32 v2, s{sPb}, v2\n v_lshlrev_b32 v2, 7, v2\n v_add_u32 v166, {hex(WS_FKVB+16)}, v2')
sKh=sT+9; sTt=sT+10
E(f's_lshr_b32 s{sKh}, s{sB}, 1\n s_and_b32 s{sTt}, s{sB}, 1\n s_lshl_b32 s{sT+2}, s{sHg}, 7')
dma128_voff(10,2,3,10,f's{sT+2}')
E(f's_lshl_b32 s{sT+1}, s{sKh}, 2'); traddr128(11,2,3,2,f's{sT+1}')
E(f's_lshl_b32 s{sT+1}, s{sKh}, 15\n s_add_u32 s{sT+1}, s{sT+1}, {L_WO}\n v_add_u32 v11, s{sT+1}, v11\n v_xor_b32 v9, 64, v11')
E(f's_lshl_b32 s{sOut}, s{sPb}, 1\n s_add_u32 s{sOut}, s{sOut}, s{sTt}\n s_lshl_b32 s{sOut}, s{sOut}, 15\n s_lshl_b32 s{sT}, s{sKh}, 14\n s_add_u32 s{sOb}, s{sOut}, s{sT}\n s_add_u32 s{sOb}, s{sOb}, {hex(WS_OB)}')
E(f's_lshl_b32 s{sT}, s{sHg}, 7\n s_add_u32 s{sOut}, s{sOut}, s{sT}\n s_lshl_b32 s{sT}, s{sKh}, 6\n s_add_u32 s{sOut}, s{sOut}, s{sT}')
E('v_and_b32 v8, 31, v0\n v_lshlrev_b32 v167, 10, v8\n v_lshrrev_b32 v3, 5, v0\n v_lshl_add_u32 v167, v3, 4, v167\n v_lshlrev_b32 v8, 2, v8')
srd(sOUT,22,2048*1024)
E(f's_lshl_b32 s{sT}, s{sB}, 12\n s_add_u32 s{sT}, s{sT}, {L_FX}\n v_add_u32 v164, s{sT}, v160\n v_xor_b32 v165, 0x2000, v164\n s_mov_b32 s{sPass}, 0')
E('s_waitcnt lgkmcnt(0)')
mktag()
if XD:
    E('s_waitcnt vmcnt(0)'); tag_set(T_X0,sB,2); xrest()
E('s_waitcnt vmcnt(8)')
tag_set(T_X,sB,2)
stamp('B',1,'x landed')
E('s_waitcnt vmcnt(0)')
tag_set(T_X+16,sB,2)
tag_wait(T_G,4,2,sleep=4)
stamp('B',5,'BQ')
E('s_setprio 3')
def kvdma(c):
    E(f's_lshr_b32 s{sT+1}, s2, 3\n s_add_u32 s{sT+1}, s{sT+1}, {c}\n s_and_b32 s{sT+1}, s{sT+1}, 3\n s_lshl_b32 s{sT+1}, s{sT+1}, 2\n s_add_u32 s{sT+1}, s{sT+1}, s{sB}\n s_lshl_b32 s{sT+1}, s{sT+1}, 12')
    E(f's_lshl_b32 s{sT+2}, s{sB}, 12\n s_add_u32 m0, s{sT+2}, {KVPOS[c]}\n s_add_u32 s{sT+1}, s{sT+1}, {hex(WS_KVA+(65536 if c>=4 else 0))}')
    for i in range(4): E(f'buffer_load_dwordx4 v160, {sr(sWS)}, s{sT+1} offen offset:{1024*i} sc1 lds')
    VQ.extend([f'kv{c}']*4)
E(f's_lshl_b32 s{sT}, s{sB}, 11\n s_add_u32 s{sT}, s{sT}, {L_QB}\n v_add_u32 v3, s{sT}, v160')
for t in range(2): E(f'ds_read_b128 {vr(BQ+4*t,4)}, v3 offset:{1024*t}')
E(f's_lshl_b32 s{sT}, s{sPb}, 8\n s_add_u32 s{sT}, s{sT}, {hex(WS_G)}\n buffer_load_dword v61, v8, {sr(sWS)}, s{sT} offen sc1\n buffer_load_dword v62, v8, {sr(sWS)}, s{sT} offen offset:128 sc1\n s_waitcnt lgkmcnt(0)')
lds_add(C_QR,1,vZ,2)
C('---- second half of the shared K/V (throttled) ; o slots marked as not yet written')
for c in (5,6,7):
    kvdma(c); vwait(f'kv{c}')
E('v_sub_f32 v61, 1.0, v61\n v_sub_f32 v62, 1.0, v62')
lds_spin(C_QR,None,12,vZ,2,sleep=2)
kvdma(4)
E(f's_lshl_b32 s{sT+10}, s{sPb}, 6\n s_lshl_b32 s{sT+1}, s{sHg}, 2\n s_add_u32 s{sT+10}, s{sT+10}, s{sT+1}\n s_add_u32 s{sT+10}, s{sT+10}, s{sB}\n s_lshl_b32 s{sT+10}, s{sT+10}, 10')
E('v_mov_b32 v12, -1\n v_mov_b32 v13, -1\n v_mov_b32 v14, -1\n v_mov_b32 v15, -1')
for base in (WS_OA,WS_OA+32768,WS_OB,WS_OB+32768):
    E(f's_add_u32 s{sT+1}, s{sT+10}, {hex(base)}\n buffer_store_dwordx4 v[12:15], v160, {sr(sWS)}, s{sT+1} offen sc1'); VQ.append('s')
vwait('kv4')
lds_add(C_K2,1,vZ,2)
stamp('B',2,'K/V all in')
if OPT.get('nob'): stamp_flush(12); E('s_endpgm')
E(f's_lshl_b32 s{sT+3}, s{sHg}, 5\n s_add_u32 s{sT+3}, s{sT+3}, s{sPb}\n s_lshl_b32 s{sT+3}, s{sT+3}, 7\n s_lshl_b32 s{sT+1}, s{sB}, 2\n s_add_u32 s{sT+3}, s{sT+3}, s{sT+1}\n s_add_u32 s{sT+3}, s{sT+3}, {hex(WS_FKVB+16)}')
if MAP=='b':
    E(f's_cmp_ge_u32 s{sB}, 2\n s_cbranch_scc0 L_B_NOT\n s_lshr_b32 s{sT+1}, s2, 3\n s_lshl_b32 s{sT+1}, s{sT+1}, 14\n s_and_b32 s{sT+2}, s{sB}, 1\n s_lshl_b32 s{sT+2}, s{sT+2}, 13\n s_add_u32 s{sT+1}, s{sT+1}, s{sT+2}')
    touch(sWOB,sT+1,1,163,3); touch(sWOA,sT+1,1,163,3)
else:
    E(f's_cmp_eq_u32 s{sB}, 3\n s_cbranch_scc0 L_B_NOT\n s_lshr_b32 s{sT+1}, s2, 3\n s_lshl_b32 s{sT+1}, s{sT+1}, 14\n s_and_b32 s{sT+2}, s2, 1\n s_lshl_b32 s{sT+2}, s{sT+2}, 9\n s_add_u32 s{sT+1}, s{sT+1}, s{sT+2}')
    E('v_lshrrev_b32 v2, 2, v0\n v_lshlrev_b32 v2, 10, v2\n v_and_b32 v3, 3, v0\n v_lshl_add_u32 v2, v3, 7, v2')
    touch(sWOB,sT+1,1,2,3); touch(sWOA,sT+1,1,2,4)
LBL('L_B_NOT')
poll(162,2,4,sleep=3)
E(f's_getreg_b32 s{sXcc}, hwreg(HW_REG_XCC_ID, 0, 4)\n s_add_u32 s{sT}, s{sTag}, s{sXcc}\n v_mov_b32 v2, s{sT}\n s_mov_b64 exec, 1\n buffer_store_dword v2, off, {sr(sWS)}, s{sT+3} sc1\n s_mov_b64 exec, -1')
lds_add(C_SN,1,vZ,2)
stamp('B',6,'kvB flags seen')
C('---- window attention, head 4hg+b, two query tiles')
E(f's_lshl_b32 s{sT+8}, s{sHg}, 2\n s_add_u32 s{sT+8}, s{sT+8}, s{sB}\n s_lshl_b32 s{sT+8}, s{sT+8}, 6\n s_lshl_b32 s{sT+9}, s{sPb}, 1\n s_sub_i32 s{sT+9}, s{sT+9}, 8')
def btile(j): E(f's_add_i32 s{sT}, s{sT+9}, {j}\n s_max_i32 s{sT}, s{sT}, 0\n s_add_u32 s{sT}, s{sT}, s{sT+8}\n s_lshl_b32 s{sT}, s{sT}, 11\n s_add_u32 s{sT}, s{sT}, {hex(WS_KVB)}')
def bload(j):
    k=BK+4*(j%3); v=BV+8*(j%3)
    btile(j)
    E(f'buffer_load_dwordx4 {vr(k,4)}, v160, {sr(sWS)}, s{sT} offen sc1\n s_mov_b64 exec, {sr(sVM,2)}')
    E(f'buffer_load_dwordx4 {vr(v,4)}, v161, {sr(sWS)}, s{sT} offen offset:1024 sc1\n buffer_load_dwordx4 {vr(v+4,4)}, v161, {sr(sWS)}, s{sT} offen offset:1536 sc1\n s_mov_b64 exec, -1')
bload(0); bload(1)
for j in (2,6):
    E(f's_add_i32 s{sT}, s{sT+9}, {j}\n s_max_i32 s{sT}, s{sT}, 0\n s_add_i32 s{sT+1}, s{sT+9}, 6\n s_min_i32 s{sT}, s{sT}, s{sT+1}\n s_cmp_lt_i32 s{sT}, 0')
    sk=uid('tk'); E(f's_cbranch_scc1 {sk}\n s_add_u32 s{sT}, s{sT}, s{sT+8}\n s_lshl_b32 s{sT}, s{sT}, 11\n s_add_u32 s{sT}, s{sT}, {hex(WS_KVB)}')
    E(f'buffer_load_dword v3, v163, {sr(sWS)}, s{sT} offen sc1'); LBL(sk)
E('s_waitcnt lgkmcnt(0)')
for j in range(10):
    k=BK+4*(j%3); v=BV+8*(j%3)
    if j+2<10: bload(j+2)
    E(f's_waitcnt vmcnt({3*min(2,9-j)})')
    sk=uid('bskip')
    if j<8: E(f's_cmp_lt_i32 s{sT+9}, {-j}\n s_cbranch_scc1 {sk}')
    qs=[q for q in (0,1) if 0<=j-q<=8]
    for q in qs: mfma(BS+16*q,k,BQ+4*q,{0:MU,8:MD}.get(j-q,'0'))
    E('s_nop 10' if len(qs)==2 else 's_nop 11')
    for q in qs:
        S=BS+16*q; O=BO+16*q
        for r in range(10): vexp(S+r)
        smf(O,v,S,BIDX)
        for r in range(10,16): vexp(S+r)
        E('s_nop 1'); smf(O,v+4,S+8,BIDX)
    if j<8: LBL(sk)
E(f's_add_u32 s{sT+10}, s{sT+10}, {hex(WS_OB)}\n s_nop 14')
for q in range(2):
    fb=f'L_FB_B{q}'; bk=f'L_FB_B{q}_BACK'
    finalize(BO+16*q,4,2,fb,bk,61+q)
    E(f'buffer_store_dwordx4 v[4:7], v160, {sr(sWS)}, s{sT+10} offen sc1')
    if q==0: E(f's_add_u32 s{sT+10}, s{sT+10}, 32768\n s_nop 0')
    def setup(q=q):
        E(f's_add_i32 s{sT+2}, s{sT+9}, {q}\n s_cmp_ge_i32 s{sT+2}, 0\n s_cselect_b32 s{sT+4}, 1, 0\n s_max_i32 s{sT+2}, s{sT+2}, 0')
        E(f's_add_i32 s{sT+3}, s{sT+9}, {q+9}\n s_sub_u32 s{sT+3}, s{sT+3}, s{sT+2}\n s_add_u32 s{sT+2}, s{sT+2}, s{sT+8}\n s_lshl_b32 s{sT+2}, s{sT+2}, 11\n s_add_u32 s{sT+2}, s{sT+2}, {hex(WS_KVB)}')
    fallback(fb,bk,BQ+4*q,BO+16*q,BS,BK,BV,BIDX,3,160,161,None,setup,MU,MD)
C('---- output projection: wave (t=b&1, kh=b>>1): both 32-column tiles over heads 16kh..16kh+15 ; slot 0 = tile kh')
PA_=48; PW=80; PO=96; PB_=16
stamp('B',7,'oB published')
C('the eight WGs of this position block: marks in place ?  all on this die ?')
E(f's_mov_b32 s{sCnt}, {SPIN_LIMIT}')
LBL('L_B_PP')
E(f'buffer_load_dwordx4 v[4:7], v166, {sr(sWS)}, 0 offen sc1\n s_waitcnt vmcnt(0)')
for i in range(4): E(f'v_subrev_u32 v{4+i}, s{sTag}, v{4+i}')
E(f'v_or3_b32 v2, v4, v5, v6\n v_or_b32 v2, v2, v7\n v_cmp_lt_u32 vcc, 15, v2\n s_cbranch_vccz L_B_PPD\n s_sub_u32 s{sCnt}, s{sCnt}, 1\n s_cbranch_scc1 L_B_PPD\n s_sleep 3\n s_branch L_B_PP')
LBL('L_B_PPD')
if OPT.get('loc','1')=='1':
    E(f'v_cmp_ne_u32 vcc, s{sXcc}, v4\n s_cbranch_vccnz L_B_NLOC')
    lds_add(C_LOC,1,vZ,2)
    LBL('L_B_NLOC')
lds_spin(C_MID,None,8,vZ,2,sleep=6)
def wodma(sr_):
    E(f's_lshl_b32 s{sT}, s{sB}, 14\n s_lshl_b32 s{sT+1}, s{sB}, 17')
    for n in range(16): E(f's_add_u32 m0, s{sT}, {L_WO+1024*n}\n s_add_u32 s{sT+2}, s{sT+1}, {8192*n}\n buffer_load_dwordx4 v10, {sr(sr_)}, s{sT+2} offen lds')
wodma(sWOB)
E('s_waitcnt vmcnt(0)')
lds_add(C_WO,1,vZ,2)
lds_spin(C_WO,None,4,vZ,2,sleep=2)
stamp('B',8,'woB landed')
LBL('L_B_GEMM')
def wread(s):
    f=PW+8*(s&1)
    for u,va in ((0,11),(1,9)): E(f'ds_read_b64_tr_b16 {vr(f+4*u,2)}, v{va} offset:{s*2048}\n ds_read_b64_tr_b16 {vr(f+4*u+2,2)}, v{va} offset:{s*2048+1024}')
wread(0)
def oloads(g0):
    for s in range(4*g0,16):
        if s%4==0: E(f's_add_u32 s{sT}, s{sOb}, {1024*s}')
        E(f'buffer_load_dwordx4 {vr(PO+4*s,4)}, v160, {sr(sWS)}, s{sT} offen offset:{1024*(s%4)} sc1')
E(f's_mov_b32 s{sCnt}, {SPIN_LIMIT}')
oloads(0)
for g in range(4):
    LBL(f'L_B_G{g}')
    E(f's_waitcnt vmcnt({12-4*g})')
    p=PO+16*g
    E(f'v_max_u32 v2, v{p}, v{p+4}\n v_max3_u32 v2, v{p+8}, v{p+12}, v2\n v_cmp_eq_u32 vcc, -1, v2\n s_cbranch_vccnz L_B_R{g}')
    LBL(f'L_B_K{g}')
    if DIAG and g==3:
        E(f's_cmp_eq_u32 s{sPass}, 0\n s_cbranch_scc1 L_B_NST'); stamp('B',10,'oA all seen'); LBL('L_B_NST')
    for s in range(4*g,4*g+4):
        if s<15: wread(s+1)
        E(f's_waitcnt lgkmcnt({4 if s<15 else 0})')
        f=PW+8*(s&1)
        if s==0:
            E(f's_cmp_eq_u32 s{sPass}, 0\n s_cbranch_scc0 L_B_M1')
            for u in range(2): mfma(PA_+16*u,f+4*u,PO+4*s,'0')
            E('s_branch L_B_M2'); LBL('L_B_M1')
            for u in range(2): mfma(PA_+16*u,f+4*u,PO+4*s)
            LBL('L_B_M2')
        else:
            for u in range(2): mfma(PA_+16*u,f+4*u,PO+4*s)
    save=L; L=[]
    LBL(f'L_B_R{g}')
    E(f's_sub_u32 s{sCnt}, s{sCnt}, 1\n s_cbranch_scc1 L_B_K{g}\n s_cmp_eq_u32 s{sPass}, 0\n s_cbranch_scc0 L_B_RR{g}\n s_sleep 16')
    LBL(f'L_B_RR{g}')
    E('s_waitcnt vmcnt(0)')
    oloads(g)
    E(f's_branch L_B_G{g}')
    RETRY.extend(L); L=save
E(f's_cmp_eq_u32 s{sPass}, 0\n s_cbranch_scc0 L_B_FIN')
lds_add(C_WD,1,vZ,2)
E(f's_add_u32 s{sOb}, s{sOb}, {hex((WS_OA-WS_OB)&0xffffffff)}\n s_mov_b32 s{sPass}, 1')
lds_spin(C_WD,None,4,vZ,2,sleep=2)
wodma(sWOA)
E('s_waitcnt vmcnt(0)')
stamp('B',9,'out-proj B done, woA in')
E('s_barrier\n s_branch L_B_GEMM')
LBL('L_B_FIN')
E('s_nop 9')
for q in range(4): E(f'ds_write_b128 v164, {vr(PA_+16+4*q,4)} offset:{1024*q}')
E('s_waitcnt lgkmcnt(0)\n s_barrier')
for q in range(4): E(f'ds_read_b128 {vr(PB_+4*q,4)}, v165 offset:{1024*q}')
for q in range(4):
    E(f's_waitcnt lgkmcnt({3-q})')
    for r in range(4): E(f'v_add_f32 v{PA_+4*q+r}, v{PA_+4*q+r}, v{PB_+4*q+r}')
for r in range(8): cvt(PA_+r,PA_+2*r,PA_+2*r+1)
E('s_nop 1')
for gq in range(2): E(f'v_permlane32_swap_b32 v{PA_+4*gq}, v{PA_+4*gq+2}\n v_permlane32_swap_b32 v{PA_+4*gq+1}, v{PA_+4*gq+3}')
for gq in range(2): E(f'buffer_store_dwordx4 {vr(PA_+4*gq,4)}, v167, {sr(sOUT)}, s{sOut} offen offset:{32*gq} '+OPT.get('ost','').replace('+',' '))
if DIAG: E('s_waitcnt vmcnt(0)')
stamp('B',11,'out stored')
stamp_flush(12)
E('s_endpgm')
L.extend(RETRY)

LBL('L_A')
AIDX=8; AKA=9; AVA=10; AQ0=12; AQ1=16; AK=20; AV=28; SA=44; SB=60; OA=76; OB=92; XA=108; WA=160; AF=112
L_PG=L_PART+4096
sStr=sT+10; sRing=sT+7
E(f'v_and_b32 v5, 15, v0\n v_lshlrev_b32 v6, 4, v0\n s_and_b32 s{sT+9}, s{sHg}, 3\n s_cmp_lt_u32 s{sWave}, 4\n s_cbranch_scc0 L_A_KV')
C('---- waves 0..3 : wave m streams 64 columns of matrix m (wq | B q | B k | B v) through its own 8 x 2KB ring')
E(f's_cmp_eq_u32 s{sWave}, 0\n s_cselect_b32 s{sWB}, s6, s16\n s_cselect_b32 s{sWB+1}, s7, s17\n s_mov_b32 s{sWB+2}, {512*3072}\n s_cselect_b32 s{sWB+2}, {512*1024}, s{sWB+2}\n s_mov_b32 s{sWB+3}, 0x20000')
E(f's_movk_i32 s{sStr}, 3072\n s_cselect_b32 s{sStr}, 0x400, s{sStr}\n s_max_u32 s{sT+1}, s{sWave}, 1\n s_sub_u32 s{sT+1}, s{sT+1}, 1\n s_lshl_b32 s{sT+1}, s{sT+1}, 10\n s_lshl_b32 s{sT+2}, s{sHg}, 7\n s_add_u32 s{sT+1}, s{sT+1}, s{sT+2}')
dma128_voff(162,2,3,f's{sStr}',f's{sT+1}')
mkrot()
E(f's_lshl_b32 s{sStr}, s{sStr}, 3\n s_lshl_b32 s{sRing}, s{sWave}, 14')
E(f's_sub_u32 s{sT+1}, s{sStr}, 1024\n v_add_u32 v163, s{sT+1}, v162\n s_lshl_b32 s{sStr}, s{sStr}, 1')
def wdma_parts(st):
    p0=f's_add_u32 m0, s{sRing}, {(st%8)*2048}\n'
    if st%4==0: p0+=f's_add_u32 s{sT+3}, s{sRot}, {st//4}\n s_and_b32 s{sT+3}, s{sT+3}, 7\n s_lshl_b32 s{sT+3}, s{sT+3}, 2\n s_mul_i32 s{sT+3}, s{sT+3}, s{sStr}'
    else: p0+=f's_add_u32 s{sT+3}, s{sT+3}, s{sStr}'
    VQ.extend([f'w{st}']*2)
    return [p0, f'buffer_load_dwordx4 v162, {sr(sWB)}, s{sT+3} offen lds', f'buffer_load_dwordx4 v163, {sr(sWB)}, s{sT+3} offen offset:1024 lds']
def wdma(st):
    for p in wdma_parts(st): E(p)
if OPT.get('p0','2')!='0': E(f's_cmp_eq_u32 s{sWave}, 0\n s_cbranch_scc0 L_A_NP0\n s_setprio {OPT.get("p0","2")}\nL_A_NP0:')
NW0=int(OPT.get('nw0','8'))
VQ.clear()
for st in range(NW0): wdma(st)
E('s_branch L_A_NOKV')
LBL('L_A_KV')
E('s_setprio 3')
C('---- kvA: this WG makes 16 positions (hg&3) of K (hg<4) or V, and their gate ; wave 4+u sums k in [128u,128u+128)')
E(f's_cmp_lt_u32 s{sHg}, 4\n s_cselect_b32 s{sWKV}, s8, s10\n s_cselect_b32 s{sWKV+1}, s9, s11\n s_mov_b32 s{sWKV+2}, 16384\n s_mov_b32 s{sWKV+3}, 0x20000\n s_and_b32 s{sT+3}, s{sWave}, 3')
E(f's_lshl_b32 s{sT+1}, s{sPb}, 16\n s_lshl_b32 s{sT+2}, s{sT+9}, 14\n s_add_u32 s{sT+1}, s{sT+1}, s{sT+2}\n s_lshl_b32 s{sT+2}, s{sT+3}, 8\n s_add_u32 s{sT+1}, s{sT+1}, s{sT+2}')
E('v_lshlrev_b32 v3, 10, v5\n v_and_b32 v4, 48, v0\n v_add_u32 v3, v3, v4')
for s_ in range(4): E(f'buffer_load_dwordx4 {vr(116+4*s_,4)}, v3, {sr(sX)}, s{sT+1} offen offset:{64*s_}')
if MAP=='c' and OPT.get('wkt','1')=='1':
    E(f's_cmp_eq_u32 s{sWave}, 4\n s_cbranch_scc0 L_A_NT2\n s_lshr_b32 s{sT+4}, s2, 3\n s_lshl_b32 s{sT+4}, s{sT+4}, 9\n v_lshlrev_b32 v2, 7, v0\n s_mov_b64 exec, 15\n buffer_load_dword v167, v2, {sr(sWKV)}, s{sT+4} offen\n s_mov_b64 exec, -1')
    LBL('L_A_NT2')
srd(sG,20,1024)
for s_ in range(4): E(f'buffer_load_dwordx4 {vr(132+4*s_,4)}, v4, {sr(sG)}, s{sT+2} offen offset:{64*s_}')
E(f's_lshl_b32 s{sT}, s{sT+3}, 12\n s_add_u32 m0, s{sT}, {L_ST}\n s_nop 0')
for i in range(4): E(f'buffer_load_dwordx4 v6, {sr(sWKV)}, s{sT} offen offset:{1024*i} lds')
LBL('L_A_NOKV')
C('---- address of this wave\'s o slot, constants')
sOA=sT+8
E(f's_bfe_u32 s{sOA}, s{sWave}, 0x10001\n s_lshl_b32 s{sT+1}, s{sPb}, 1\n s_add_u32 s{sOA}, s{sOA}, s{sT+1}\n s_lshl_b32 s{sOA}, s{sOA}, 5')
E(f's_lshl_b32 s{sT+1}, s{sHg}, 2\n s_add_u32 s{sOA}, s{sOA}, s{sT+1}\n s_lshr_b32 s{sT+1}, s{sWave}, 2\n s_lshl_b32 s{sT+1}, s{sT+1}, 1\n s_add_u32 s{sOA}, s{sOA}, s{sT+1}\n s_and_b32 s{sT+1}, s{sWave}, 1\n s_add_u32 s{sOA}, s{sOA}, s{sT+1}\n s_lshl_b32 s{sOA}, s{sOA}, 10\n s_add_u32 s{sOA}, s{sOA}, {hex(WS_OA)}')
E(f'v_mov_b32 v{vZ}, {L_ST}\n v_lshlrev_b32 v11, 2, v0')
traddr128(WA,2,3,3,'0'); E(f's_lshl_b32 s{sT+1}, s{sWave}, 14\n v_add_u32 v{WA}, s{sT+1}, v{WA}\n v_xor_b32 v{WA+1}, 64, v{WA}')
E(f'v_and_b32 v2, 31, v0\n v_bfe_u32 v3, v0, 1, 3\n v_lshrrev_b32 v7, 5, v0\n v_xor_b32 v3, v3, v7\n v_lshlrev_b32 v{XA}, 7, v2\n v_lshl_add_u32 v{XA}, v3, 4, v{XA}\n v_add_u32 v{XA}, 0x10000, v{XA}')
for s_ in range(1,4): E(f'v_xor_b32 v{XA+s_}, {s_<<5}, v{XA}')
for r in range(32): E(f'v_mov_b32 v{OA+r}, 0')
set_vpad(list(range(AV,AV+16)),2)
E(f'v_mov_b32 v{AIDX}, 0xdddddddd')
E(f's_and_b32 s{sT+1}, s{sWave}, 1\n s_lshl_b32 s{sT+1}, s{sT+1}, 11\n v_add_u32 v{AKA}, s{sT+1}, v6')
E(f'v_lshlrev_b32 v7, 8, v7\n v_lshl_add_u32 v7, v5, 4, v7\n v_add_u32 v{AVA}, s{sT+1}, v7')
E(f's_lshl_b32 s{sT+6}, s{sHg}, 5\n s_add_u32 s{sT+6}, s{sT+6}, s{sPb}\n s_lshl_b32 s{sT+6}, s{sT+6}, 7\n s_lshl_b32 s{sT+1}, s{sWave}, 2\n s_add_u32 s{sT+6}, s{sT+6}, s{sT+1}\n s_add_u32 s{sT+6}, s{sT+6}, {hex(WS_FKVB)}')
E('s_waitcnt lgkmcnt(0)')
mktag()
E(f's_cmp_lt_u32 s{sWave}, 4\n s_cbranch_scc1 L_A_GQ')
E(f'v_lshrrev_b32 v4, 4, v0\n v_lshlrev_b32 v4, 8, v4\n v_lshl_add_u32 v4, v5, 3, v4\n s_add_u32 s{sT}, s{sT}, {L_ST}\n v_add_u32 v4, s{sT}, v4')
E(f's_lshl_b32 s{sT+1}, s{sT+3}, 10\n s_add_u32 s{sT+1}, s{sT+1}, {L_PART}\n v_add_u32 v2, s{sT+1}, v6\n s_lshl_b32 s{sT+1}, s{sT+3}, 8\n s_add_u32 s{sT+1}, s{sT+1}, {L_PG}\n v_add_u32 v3, s{sT+1}, v11')
E('s_waitcnt vmcnt(0)')
for s_ in range(4): E(f'ds_read_b64_tr_b16 {vr(44+4*s_,2)}, v4 offset:{1024*s_}\n ds_read_b64_tr_b16 {vr(46+4*s_,2)}, v4 offset:{1024*s_+128}')
for s_ in range(4): E(f'v_mfma_f32_16x16x32_bf16 v[64:67], {vr(132+4*s_,4)}, {vr(116+4*s_,4)}, {"0" if s_==0 else "v[64:67]"}')
E(f's_cmp_lt_u32 s{sHg}, 4\n s_waitcnt lgkmcnt(0)\n s_cbranch_scc0 L_A_VJOB')
for s_ in range(4): E(f'v_mfma_f32_16x16x32_bf16 v[60:63], {vr(44+4*s_,4)}, {vr(116+4*s_,4)}, {"0" if s_==0 else "v[60:63]"}')
E('s_branch L_A_KVJ')
LBL('L_A_VJOB')
for s_ in range(4): E(f'v_mfma_f32_16x16x32_bf16 v[60:63], {vr(116+4*s_,4)}, {vr(44+4*s_,4)}, {"0" if s_==0 else "v[60:63]"}')
LBL('L_A_KVJ')
E('s_nop 0\n ds_write_b32 v3, v64\n s_nop 5\n ds_write_b128 v2, v[60:63]')
stamp('A',2,'kvA partial')
E('s_waitcnt lgkmcnt(0)')
tag_set(T_PT,sT+3,2)
E(f's_cmp_eq_u32 s{sWave}, 7\n s_cbranch_scc0 L_A_BS')
C('---- wave 7: reduce the four partial tiles, store, flag')
tag_wait(T_PT,4,2)
E(f'v_add_u32 v3, {L_PART}, v6\n v_add_u32 v4, {L_PG}, v11')
for i in range(4): E(f'ds_read_b128 {vr(116+4*i,4)}, v3 offset:{1024*i}')
for i in range(2): E(f'ds_read2st64_b32 {vr(148+2*i,2)}, v4 offset0:{2*i} offset1:{2*i+1}')
E(f's_lshl_b32 s{sT+3}, s{sPb}, 1\n s_lshr_b32 s{sT+4}, s{sT+9}, 1\n s_add_u32 s{sT+3}, s{sT+3}, s{sT+4}\n s_lshl_b32 s{sT+3}, s{sT+3}, 11\n s_add_u32 s{sT+3}, s{sT+3}, {hex(WS_KVA)}\n s_and_b32 s{sT+4}, s{sT+9}, 1')
E(f's_cmp_lt_u32 s{sHg}, 4\n s_cselect_b32 s{sT+5}, 9, 3\n s_cselect_b32 s{sT+7}, 3, 8\n s_cselect_b32 s{sT+1}, 8, 9\n s_cselect_b32 s{sT}, 0, 0x400')
E(f's_lshl_b32 s{sT+4}, s{sT+4}, s{sT+1}\n s_add_u32 s{sT+3}, s{sT+3}, s{sT+4}\n s_add_u32 s{sT+3}, s{sT+3}, s{sT}')
E(f'v_bfe_u32 v3, v0, 4, 1\n v_lshrrev_b32 v4, 5, v0\n v_lshlrev_b32 v5, 4, v5\n v_lshl_add_u32 v5, v3, s{sT+5}, v5\n v_lshl_add_u32 v5, v4, s{sT+7}, v5')
FPLS=int(OPT.get('fpl','4'))
E(f's_lshl_b32 s{sT+7}, s{sPb}, 3\n s_add_u32 s{sT+7}, s{sT+7}, s{sHg}\n s_and_b32 s{sT+1}, s{sT+7}, {(1<<FPLS)-1}\n s_lshr_b32 s{sT+7}, s{sT+7}, {FPLS}\n s_lshl_b32 s{sT+7}, s{sT+7}, 7\n s_lshl_b32 s{sT+1}, s{sT+1}, 2\n s_add_u32 s{sT+7}, s{sT+7}, s{sT+1}\n s_add_u32 s{sT+7}, s{sT+7}, {hex(WS_FKVA)}')
E('s_waitcnt lgkmcnt(2)')
for st_ in (8,4):
    for r in range(st_): E(f'v_add_f32 v{116+r}, v{116+r}, v{116+st_+r}')
cvt(116,116,117); cvt(117,118,119)
E(f'buffer_store_dwordx2 v[116:117], v5, {sr(sWS)}, s{sT+3} offen sc1')
E(f's_cmp_lt_u32 s{sHg}, 4\n s_waitcnt lgkmcnt(0)\n s_cbranch_scc0 L_A_SF')
for st_ in (2,1):
    for r in range(st_): E(f'v_add_f32 v{148+r}, v{148+r}, v{148+st_+r}')
E(f's_mov_b32 s{sT}, {hex(f2u(-math.log2(math.e)))}\n v_mul_f32 v148, s{sT}, v148\n v_exp_f32 v148, v148')
E(f's_lshl_b32 s{sT}, s{sPb}, 2\n s_add_u32 s{sT}, s{sT}, s{sT+9}\n v_add_f32 v148, 1.0, v148\n v_rcp_f32 v148, v148\n s_lshl_b32 s{sT}, s{sT}, 6\n s_add_u32 s{sT}, s{sT}, {hex(WS_G)}')
E(f's_mov_b64 exec, 0xffff\n buffer_store_dword v148, v11, {sr(sWS)}, s{sT} offen sc1\n s_mov_b64 exec, -1')
LBL('L_A_SF')
E('s_waitcnt vmcnt(0)')
flag_store(sT+7,2)
stamp('A',3,'kvA flag sent')
LBL('L_A_BS')
E(f's_cmp_eq_u32 s{sWave}, 6\n s_cbranch_scc0 L_A_B8')
C('---- wave 6: wait for every K/V piece, fetch this WG\'s share into L2, tell the projection waves')
E(f'v_lshlrev_b32 v16, 7, v0\n v_lshrrev_b32 v17, {FPLS-2}, v0\n v_lshlrev_b32 v17, 7, v17\n v_and_b32 v18, {(1<<(FPLS-2))-1}, v0\n v_lshl_add_u32 v17, v18, 4, v17\n v_add_u32 v17, {hex(WS_FKVA)}, v17')
tag_wait(T_PT,4,2)
tag_wait(T_PL,1,2,sleep=2)
poll(17,4,12,sleep=int(OPT.get('psl','1')))
E(f's_lshr_b32 s{sT+5}, s2, 3\n s_lshl_b32 s{sT+5}, s{sT+5}, 12\n s_add_u32 s{sT+5}, s{sT+5}, {hex(WS_KVA)}')
E(f's_mov_b32 exec_hi, 0\n buffer_load_dword v117, v16, {sr(sWS)}, s{sT+5} offen sc1\n s_mov_b64 exec, -1')
tag_set(T_FL,None,2)
stamp('A',3,'kvA flag sent')
E(f's_lshr_b32 s{sT+5}, s2, 3\n s_and_b32 s{sT+5}, s{sT+5}, 3\n s_lshl_b32 s{sT+5}, s{sT+5}, 14\n s_add_u32 s{sT+5}, s{sT+5}, {hex(WS_KVA)}')
for q in range(4):
    E(f's_mov_b32 m0, {L_ST+4096*q}\n s_add_u32 s{sT+4}, s{sT+5}, {4096*q}')
    for i in range(4): E(f'buffer_load_dwordx4 v6, {sr(sWS)}, s{sT+4} offen offset:{1024*i} sc1 lds')
E('s_waitcnt vmcnt(0)')
tag_set(T_K0,None,2)
stamp('A',7,'G1')
E(f's_cmp_eq_u32 s2, 0\n s_cbranch_scc0 L_A_B8\n s_mov_b32 s{sT}, 0')
flag_store(sT,2)
E('s_branch L_A_B8')
LBL('L_A_GQ')
PAC=[44,60,128,144]; PFR=[12,112,92]
def areads_l(st):
    f=PFR[st%3]; so=(st%8)*2048; o=[]
    for i in range(2): o+= [f'ds_read_b64_tr_b16 {vr(f+4*i,2)}, v{WA+i} offset:{so}', f'ds_read_b64_tr_b16 {vr(f+4*i+2,2)}, v{WA+i} offset:{so+512}']
    for t in range(2): o.append(f'ds_read_b128 {vr(f+8+4*t,4)}, v{XA+st%4} offset:{(st//4)*8192+4096*t}')
    return o
def areads(st):
    for p in areads_l(st): E(p)
def kv_parts(p):
    VQ.extend(['kv']*2)
    return [f's_add_u32 m0, s{sRing}, {p*2048}\n s_add_u32 s{sT+4}, s{sT+5}, {p*2048}']+[f'buffer_load_dwordx4 v6, {sr(sWS)}, s{sT+4} offen offset:{1024*n} sc1 lds' for n in range(2)]
def kvpiece(p):
    for q in kv_parts(p): E(q)
for st in range(NW0,8): wdma(st)
E(f's_lshr_b32 s{sT+5}, s2, 3\n s_add_u32 s{sT+5}, s{sT+5}, s{sWave}\n s_and_b32 s{sT+5}, s{sT+5}, 3\n s_lshl_b32 s{sT+5}, s{sT+5}, 14\n s_add_u32 s{sT+5}, s{sT+5}, {hex(WS_KVA)}')
tag_wait(T_X0,4,2) if XD else tag_wait(T_X,1,2)
stamp('A',7,'G1'); cstamp('A',10,'G1')
vwait('w0'); areads(0); vwait('w1'); areads(1)
VQ0=list(VQ)
PLK=int(OPT.get('plk','15'))
E(f's_cmp_eq_u32 s{sWave}, 3\n s_cbranch_scc1 L_A_GV')
def gstep(var,st,kv):
    f=PFR[st%3]
    def mm(i,t):
        d=PAC[2*i+t]; c='0' if st==0 else None
        if var==0: mfma(d,f+4*i,f+8+4*t,c)
        else: mfma(d,f+8+4*t,f+4*i,c)
    vwait(f'w{st+2}',f' lgkmcnt({6 if st<31 else 0})')
    rd=areads_l(st+2) if st+2<32 else []
    dm=wdma_parts(st+8) if st+8<32 else (kv_parts(st%8) if kv else [])
    gaps=[rd[0:2]+dm[0:1], rd[2:4]+dm[1:2], rd[4:6], dm[2:3]]
    if st>=30: gaps=[[f'v_mov_b32 v{OB+8*(st-30)+2*q+r}, 0' for r in range(2)]+gaps[q] for q in range(4)]
    for q,(i,t) in enumerate(((0,0),(0,1),(1,0),(1,1)) if st<31 else ((1,0),(1,1),(0,0),(0,1))):
        mm(i,t)
        for p in gaps[q]: E(p)
for var in (0,1):
    if var: LBL('L_A_GV')
    VQ[:]=VQ0
    for st in range(24):
        if st==2: E('s_waitcnt lgkmcnt(0)'); tag_wait(T_X,4,2)
        if st==14: E('s_waitcnt lgkmcnt(0)'); tag_wait(T_X+16,4,2)
        if st==PLK and var==1: tag_set(T_PL,None,2); E('s_waitcnt lgkmcnt(0)')
        gstep(var,st,False)
    stamp('A',2,'step 24')
    if var==0: E(f's_cmp_eq_u32 s{sWave}, 0\n s_cbranch_scc1 L_A_G0')
    tag_wait(T_FL,1,2,once=f'L_A_GK{var}')
    if var==0: LBL('L_A_G0')
    V1=list(VQ)
    for st in range(24,32): gstep(var,st,False)
    if var==0: E(f's_cmp_eq_u32 s{sWave}, 0\n s_cbranch_scc1 L_A_GE0')
    tag_wait(T_FL,1,2)
    for p in range(8): kvpiece(p)
    E(f's_branch L_A_GE{var}')
    LBL(f'L_A_GK{var}')
    VQ[:]=V1
    for st in range(24,32): gstep(var,st,True)
    LBL(f'L_A_GE{var}')
    stamp('A',1,'proj loop done'); cstamp('A',11,'pl')
    E(f's_lshl_b32 s{sT+4}, s{sHg}, 8\n s_lshl_b32 s{sT+5}, s{sPb}, 1\n s_add_u32 s{sT+4}, s{sT+4}, s{sT+5}\n s_lshl_b32 s{sT+4}, s{sT+4}, 11\n s_add_u32 s{sT+4}, s{sT+4}, {hex(WS_KVB)}')
    if var==0:
        E(f's_cmp_eq_u32 s{sWave}, 2\n s_cbranch_scc1 L_A_EK')
        C('q (A / B): scale, pack, hand over through LDS')
        E(f's_cmp_eq_u32 s{sWave}, 0\n s_cbranch_scc1 L_A_Q0')
        tag_wait(T_G,1,2)
        LBL('L_A_Q0')
        E(f's_lshl_b32 s{sT+1}, s{sWave}, 13\n s_add_u32 s{sT+1}, s{sT+1}, {L_QA}\n v_add_u32 v3, s{sT+1}, v6\n s_mov_b32 s{sT+2}, {hex(CSCALE)}\n s_mov_b32 s{sT+3}, {hex(CSCALE)}\n s_lshl_b32 s{sT+1}, s{sWave}, 2\n s_add_u32 s{sT+1}, s{sT+1}, {T_Q1}\n v_mov_b32 v4, s{sT+1}\n v_mov_b32 v5, 1')
        for i in (1,0):
            for t in range(2):
                d=PAC[2*i+t]
                for r in range(0,16,2): E(f'v_pk_mul_f32 {vr(d+r,2)}, {vr(d+r,2)}, {sr(sT+2,2)}')
                for r in range(8): cvt(d+r,d+2*r,d+2*r+1)
                for hh in range(2): E(f'ds_write_b128 v3, {vr(d+4*hh,4)} offset:{(2*i+hh)*2048+1024*t}')
            if i==1: E(f's_mov_b64 exec, 1\n ds_write_b32 v4, v5\n s_mov_b64 exec, -1')
        E('s_waitcnt vmcnt(0) lgkmcnt(0)')
        tag_set(T_G,sWave,2)
        E('s_branch L_A_B8')
        LBL('L_A_EK')
        E('s_waitcnt vmcnt(0)')
        tag_set(T_G,sWave,2)
        for i in range(2):
            for t in range(2):
                d=PAC[2*i+t]
                for r in range(8): cvt(d+r,d+2*r,d+2*r+1)
                for hh in range(2): E(f's_add_u32 s{sT+5}, s{sT+4}, {(2*i+hh)*131072}\n buffer_store_dwordx4 {vr(d+4*hh,4)}, v6, {sr(sWS)}, s{sT+5} offen offset:{2048*t} sc1')
        E('s_branch L_A_B8')
    else:
        E('s_waitcnt vmcnt(0)')
        tag_set(T_G,sWave,2)
        E('v_bfe_u32 v3, v0, 4, 1\n v_lshl_add_u32 v3, v3, 17, v7')
        for i in range(2):
            for t in range(2):
                d=PAC[2*i+t]
                for r in range(8): cvt(d+r,d+2*r,d+2*r+1)
                E('s_nop 1')
                for gq in range(2): E(f'v_permlane32_swap_b32 v{d+4*gq}, v{d+4*gq+2}\n v_permlane32_swap_b32 v{d+4*gq+1}, v{d+4*gq+3}')
                E(f's_add_u32 s{sT+5}, s{sT+4}, {i*2*131072}')
                for gq in range(2): E(f'buffer_store_dwordx4 {vr(d+4*gq,4)}, v3, {sr(sWS)}, s{sT+5} offen offset:{2048*t+1024+512*gq} sc1')
LBL('L_A_B8')
E('s_setprio 0')
E(f's_lshr_b32 s{sT+1}, s{sWave}, 2\n s_lshl_b32 s{sT+1}, s{sT+1}, 1\n s_and_b32 s{sT+2}, s{sWave}, 1\n s_add_u32 s{sT+1}, s{sT+1}, s{sT+2}\n s_lshl_b32 s{sT+1}, s{sT+1}, 11\n s_bfe_u32 s{sT+2}, s{sWave}, 0x10001\n s_lshl_b32 s{sT+2}, s{sT+2}, 10\n s_add_u32 s{sT+1}, s{sT+1}, s{sT+2}\n s_add_u32 s{sT+1}, s{sT+1}, {L_QA}\n v_add_u32 v2, s{sT+1}, v6\n v_xor_b32 v3, 0x800, v2')

def kvoff(j): return (j%16)*4096
def ldk(j): E(f'ds_read_b128 {vr(AK+4*(j&1),4)}, v{AKA} offset:{kvoff(j)}')
def ldv(j): E(f's_mov_b64 exec, {sr(sVM,2)}\n ds_read_b128 {vr(AV+8*(j&1),4)}, v{AVA} offset:{kvoff(j)+1024}\n ds_read_b128 {vr(AV+8*(j&1)+4,4)}, v{AVA} offset:{kvoff(j)+1536}\n s_mov_b64 exec, -1')
AK0=120; AV0=121; AEX=122; AG=126
E(f'v_add_u32 v{AK0}, {L_ST}, v{AKA}\n v_add_u32 v{AV0}, {L_ST}, v{AVA}')
E(f's_mul_i32 s{sT+1}, s{sWave}, 2304\n s_add_u32 s{sT+1}, s{sT+1}, {L_EX}\n v_add_u32 v{AEX}, s{sT+1}, v6\n v_add_u32 v{AEX+1}, s{sT+1}, v11')
E(f's_xor_b32 s{sT+2}, s{sWave}, 1\n s_mul_i32 s{sT+2}, s{sT+2}, 2304\n s_add_u32 s{sT+2}, s{sT+2}, {L_EX}\n v_add_u32 v{AEX+2}, s{sT+2}, v6\n v_add_u32 v{AEX+3}, s{sT+2}, v11')
E(f's_bfe_u32 s{sT+1}, s{sWave}, 0x10001\n s_lshl_b32 s{sT+2}, s{sPb}, 1\n s_add_u32 s{sT+1}, s{sT+1}, s{sT+2}\n s_lshl_b32 s{sT+1}, s{sT+1}, 7\n s_add_u32 s{sT+1}, s{sT+1}, {hex(WS_G)}\n v_and_b32 v127, 0x7c, v11')
tag_wait(T_K0,1,4,sleep=int(OPT.get('asl','2')))
E(f'buffer_load_dword v{AG}, v127, {sr(sWS)}, s{sT+1} offen sc1')
def kvoff(j):
    return (j%4)*4096+(0 if j<4 else KVPOS[j//4]-(65536 if j>=20 else 0))
def ldk(j): E(f'ds_read_b128 {vr(AK+4*(j&1),4)}, v{AK0 if j<4 else AKA} offset:{kvoff(j)}')
def ldv(j): E(f's_mov_b64 exec, {sr(sVM,2)}\n ds_read_b128 {vr(AV+8*(j&1),4)}, v{AV0 if j<4 else AVA} offset:{kvoff(j)+1024}\n ds_read_b128 {vr(AV+8*(j&1)+4,4)}, v{AV0 if j<4 else AVA} offset:{kvoff(j)+1536}\n s_mov_b64 exec, -1')
ldk(0); ldv(0); ldk(1)
E(f's_cmp_lt_u32 s{sWave}, 4\n s_cbranch_scc1 L_A_WL')
tag_wait(T_Q1,1,4,sleep=int(OPT.get('asl2','1')))
E('s_branch L_A_WD')
LBL('L_A_WL')
tag_wait(T_G,1,4)
LBL('L_A_WD')
stamp('A',4,'BQ'); cstamp('A',8,'BQ')
E(f'ds_read_b128 {vr(AQ0,4)}, v2\n ds_read_b128 {vr(AQ1,4)}, v3')
if PRIO in ('step','step4'): E('s_setprio 2')
E('s_waitcnt lgkmcnt(0)'); mfma(SA,AK,AQ0,'0')
lds_add(C_QR,1,vZ,2)
E('s_nop 7')
def pair_iter(j,ldk_,ldv_,first=False,last=0,extra=0):
    kc=AK+4*(j&1); kn=AK+4*((j+1)&1); vc=AV+8*(j&1); vp=AV+8*((j+1)&1)
    vexp(SA); vexp(SA+1)
    if not first: smf(OB,vp+4,SB+8,AIDX)
    for r in range(2,5): vexp(SA+r)
    mfma(SB,kc,AQ1,'0')
    for r in range(5,10): vexp(SA+r)
    E(f's_waitcnt lgkmcnt({(1 if last<2 else 0)+extra})')
    vexp(SA+10); smf(OA,vc,SA,AIDX)
    for r in range(11,16): vexp(SA+r)
    vexp(SB); vexp(SB+1); smf(OA,vc+4,SA+8,AIDX)
    if last<2: ldv_()
    for r in range(2,5): vexp(SB+r)
    if last<2:
        E('s_waitcnt lgkmcnt(2)'); mfma(SA,kn,AQ0,'0')
    if last<1: ldk_()
    for r in range(5,11): vexp(SB+r)
    smf(OB,vc,SB,AIDX)
    for r in range(11,16): vexp(SB+r)
def aflag(force,init=False):
    sk=uid('fl')
    E(f's_cmp_eq_u32 s{sT+5}, 0\n s_cbranch_scc0 {sk}')
    if not force: E(f's_getreg_b32 s{sT}, hwreg(HW_REG_IB_STS, 0, 4)\n s_cmp_eq_u32 s{sT}, 0\n s_cbranch_scc0 {sk}')
    E(f's_waitcnt vmcnt(0)\n s_mov_b32 s{sT+5}, 1'); flag_store(sT+6,2); LBL(sk)
if ROLL:
    AKN=120; AVN=121; sC=sT+4
    def rk(j):
        a_=AKA if j<4 else AKN
        return lambda: E(f'ds_read_b128 {vr(AK+4*(j&1),4)}, v{a_} offset:{(j%4)*4096}')
    def rv(j):
        a_=AVA if j<4 else AVN
        return lambda: E(f's_mov_b64 exec, {sr(sVM,2)}\n ds_read_b128 {vr(AV+8*(j&1),4)}, v{a_} offset:{(j%4)*4096+1024}\n ds_read_b128 {vr(AV+8*(j&1)+4,4)}, v{a_} offset:{(j%4)*4096+1536}\n s_mov_b64 exec, -1')
    for r in range(8,16): E(f'v_mov_b32 v{SB+r}, 0')
    E(f'v_add_u32 v{AKN}, 0x8000, v{AKA}\n v_add_u32 v{AVN}, 0x8000, v{AVA}\n v_add_u32 v{AKA}, 0x4000, v{AKA}\n v_add_u32 v{AVA}, 0x4000, v{AVA}\n s_mov_b32 s{sC}, 0\n s_mov_b32 s{sT+5}, 0')
    L.append('.p2align 6')
    LBL('L_A_LOOP')
    pair_iter(0,rk(2),rv(1)); pair_iter(1,rk(3),rv(2))
    E(f's_cmp_gt_u32 s{sC}, 6\n s_cbranch_scc1 L_A_LAST\n s_bitcmp1_b32 0x5f, s{sC}\n s_cbranch_scc1 L_A_RARE')
    LBL('L_A_RBACK')
    pair_iter(2,rk(4),rv(3)); pair_iter(3,rk(5),rv(4))
    E(f's_add_u32 s{sC}, s{sC}, 1\n s_mov_b32 s{sT+1}, 0x4000\n s_cmp_eq_u32 s{sC}, 2\n s_cselect_b32 s{sT+1}, {hex((-49152)&0xffffffff)}, s{sT+1}\n s_cmp_eq_u32 s{sC}, 3\n s_cselect_b32 s{sT+1}, {hex((-65536)&0xffffffff)}, s{sT+1}')
    E(f'v_mov_b32 v{AKA}, v{AKN}\n v_mov_b32 v{AVA}, v{AVN}\n v_add_u32 v{AKN}, s{sT+1}, v{AKN}\n v_add_u32 v{AVN}, s{sT+1}, v{AVN}\n s_branch L_A_LOOP')
    LBL('L_A_RARE')
    E(f's_waitcnt lgkmcnt(0)\n s_cmp_gt_u32 s{sC}, 3\n s_cbranch_scc1 L_A_R4')
    E(f's_cmp_eq_u32 s{sC}, 0\n s_cbranch_scc0 L_A_R1'); lds_spin(C_K1,None,4,vZ,2,sleep=0)
    LBL('L_A_R1')
    E(f's_cmp_eq_u32 s{sC}, 2\n s_cbranch_scc0 L_A_R2'); lds_spin(C_K2,None,4,vZ,2,sleep=1)
    LBL('L_A_R2')
    E(f's_cmp_eq_u32 s{sC}, 3\n s_cbranch_scc1 L_A_R3'); aflag(False); E('s_branch L_A_RBACK')
    LBL('L_A_R3'); aflag(True); E('s_branch L_A_RBACK')
    LBL('L_A_R4')
    E(f's_cmp_eq_u32 s{sC}, 4\n s_cbranch_scc0 L_A_R6'); lds_add(C_MID,1,vZ,2); E('s_waitcnt lgkmcnt(0)\n s_branch L_A_RBACK')
    LBL('L_A_R6'); lds_spin(C_MID,None,8,vZ,2,sleep=1); E('s_branch L_A_RBACK')
    LBL('L_A_LAST')
    pair_iter(2,None,rv(3),last=1); pair_iter(3,None,None,last=2)
else:
    E(f's_and_b32 s{sT+5}, s{sWave}, 6\n s_cmp_eq_u32 s{sT+5}, 2\n s_cselect_b32 s{sT+5}, 0, 1')
    for j in range(32):
        if j==2: E('s_waitcnt lgkmcnt(0)'); tag_wait(T_G,4,2)
        if j in (1,2,3,5): aflag(j==5)
        if PRIO=='step' and j in (11,22): E(f's_setprio {1 if j==11 else 0}')
        if PRIO=='step4' and j in (6,16): E(f's_setprio {1 if j==6 else 0}')
        if OPT.get('jst') and j in (2,4,8,16,24): E('s_waitcnt lgkmcnt(0)'); cstamp('A',{2:1,4:2,8:3,16:7,24:10}[j],f'J{j}')
        if j==14: E('s_waitcnt lgkmcnt(0)'); lds_spin(C_K2,None,4,vZ,2,sleep=1)
        if j==20: lds_add(C_MID,1,vZ,2)
        if j==28: E('s_waitcnt lgkmcnt(0)'); lds_spin(C_SN,None,4,vZ,2,sleep=1); lds_spin(C_MID,None,8,vZ,2,sleep=1)
        def lv(j=j):
            if j==19: E(f'v_add_u32 v{AVA}, 0x10000, v{AVA}')
            ldv(j+1)
        def lk(j=j):
            if j==18: E(f'v_add_u32 v{AKA}, 0x10000, v{AKA}')
            ldk(j+2)
        pair_iter(j,lk,lv,first=(j==0),last=(2 if j==31 else 1 if j==30 else 0),extra=(1 if j in (0,20) else 0))
E('s_nop 1'); smf(OB,AV+8+4,SB+8,AIDX)
stamp('A',5,'A loop done'); cstamp('A',9,'loop done')
C('---- pair exchange: send slot B, finish slot A')
E(f's_nop 12\n ds_write_b128 v{AEX}, {vr(OB,4)}\n ds_write_b128 v{AEX}, {vr(OB+4,4)} offset:1024\n ds_write_b32 v{AEX+1}, v{OB+8} offset:2048')
E('s_waitcnt lgkmcnt(0)\n s_barrier')
E(f'ds_read_b128 {vr(SA,4)}, v{AEX+2}\n ds_read_b128 {vr(SA+4,4)}, v{AEX+2} offset:1024\n ds_read_b32 v{SA+8}, v{AEX+3} offset:2048\n ds_read_b32 v{SA+9}, v{vZ} offset:{C_LOC-L_ST}\n s_waitcnt lgkmcnt(0)\n v_readfirstlane_b32 s{sT+9}, v{SA+9}')
for r in range(9): E(f'v_add_f32 v{OA+r}, v{OA+r}, v{SA+r}')
E('s_waitcnt vmcnt(0)')
finalize(OA,AK,2,'L_FB_A','L_FB_A_BACK',126)
E(f's_cmp_eq_u32 s{sT+9}, 0\n s_cbranch_scc1 L_A_FAR\n buffer_store_dwordx4 {vr(AK,4)}, v6, {sr(sWS)}, s{sOA} offen\n s_branch L_A_STD')
LBL('L_A_FAR')
E(f'buffer_store_dwordx4 {vr(AK,4)}, v6, {sr(sWS)}, s{sOA} offen sc1')
LBL('L_A_STD')
def setupA(): E(f's_mov_b32 s{sT+2}, {hex(WS_KVA)}\n s_mov_b32 s{sT+3}, 64')
fallback('L_FB_A','L_FB_A_BACK',AQ0,OA,SA,AK,AV,AIDX,3,6,7,None,setupA)
stamp('A',6,'oA published')
stamp_flush(12,'A')
LBL('L_END')
E('s_endpgm')
L.append('L_CODE_END:')
L.extend(TAIL)
L.append('    s_endpgm\n.fill 1200, 4, 0xbf810000')

hdr=open('cdna_kernels/%s.s.ref'%NAME).read().split('; Override launch')[0]
txt=hdr
txt+=f'; @launch grid=(256,1,1) block=(768,1,1) lds={LDS_TOTAL}\n'
for n in ('WS_KVA','WS_KVB','WS_OA','WS_OB','WS_STAMP','NSTAMP'): txt+=f'; CONST {n} = {hex(globals()[n])}\n'
for r,i,n in STN: txt+=f'; STAMPNAME {r} {i} {n}\n'
txt+=f'''.amdgcn_target "amdgcn-amd-amdhsa--gfx950"
.text
.globl {NAME}_kernel
.p2align 8
.type {NAME}_kernel,@function
{NAME}_kernel:
'''+'\n'.join(L)+f'''
.section .rodata,"a"
.p2align 6
.amdhsa_kernel {NAME}_kernel
  .amdhsa_next_free_vgpr 168
  .amdhsa_next_free_sgpr 102
  .amdhsa_accum_offset 168
  .amdhsa_group_segment_fixed_size 0
  .amdhsa_kernarg_size 96
  .amdhsa_user_sgpr_count 2
  .amdhsa_user_sgpr_kernarg_segment_ptr 1
  .amdhsa_system_sgpr_workgroup_id_x 1
.end_amdhsa_kernel
'''
open(OUT,'w').write(txt)
print('wrote',OUT,len(L),'lines')
```

```python
import sys, math, struct
NAME='gated_mix__grouped_kv_mqa__sliding_block__prompt'
DIAG = '--diag' in sys.argv
OUT = [a for a in sys.argv[1:] if not a.startswith('--')]
OUT = OUT[0] if OUT else 'cdna_kernels/%s.s'%NAME
OPT=dict(a.lstrip('-').split('=') for a in sys.argv[1:] if a.startswith('--') and '=' in a)
MAP=OPT.get('map','b'); ROT=OPT.get('rot','full'); PRIO=OPT.get('prio','step'); FLAG_IT=int(OPT.get('flagit','1')); PK=int(OPT.get('pk','7')); FORCE_K=int(OPT.get('forcek','7')); SENTK=int(OPT.get('sentk','14')); DENSE=OPT.get('dense','0')=='1'; ROLL=OPT.get('roll','0')=='1'; WT=OPT.get('wtouch','0')=='1'; KVK=int(OPT.get('kvk','13'))
def f2u(f): return struct.unpack('<I',struct.pack('<f',f))[0]

WS_EPOCH=0x0
WS_FKVA=0x1000
WS_FKVB=0x4000
WS_FOB =0xC000
WS_FOA =0x14000
WS_G   =0x1C000
WS_KVA =0x20000
WS_QB  =0x40000
WS_KVB =0x240000
WS_OA  =0x640000
WS_OB  =0x840000
WS_STAMP=0xA40000
NSTAMP=16
L_WQ=0; L_X=65536; L_ST=131072; L_CTL=L_ST+30720
L_GW=L_CTL; L_G=L_CTL+1024; L_C=L_CTL+1024+256
C_X=L_C+0
C_Q=L_C+4
C_K0=L_C+8; C_K1=L_C+12; C_K2=L_C+16; C_BP=L_C+20; C_MID=L_C+24; C_WO=L_C+28; C_WD=L_C+32; C_QR=L_C+36; C_SN=L_C+40; C_LOC=L_C+44; T_PT=L_C+256; T_X=L_C+272; T_PL=L_C+304; T_FL=L_C+308; T_G=L_C+320; T_X0=L_C+336; T_K0=L_C+352; T_Q1=L_C+356; T_H=L_C+368; T_TAG=L_C+372
L_EX=L_ST
LDS_TOTAL=163840
SPIN_LIMIT=400000
CSCALE=f2u(0.25*math.log2(math.e))
NEGBIG=f2u(-1e9)
L_LO=f2u(2.0**-24); L_HI=f2u(2.0**60)

sX=28; sWQ=32; sWKV=36; sWB=40; sWOA=44; sWOB=48; sG=52; sOUT=56; sWS=60; sDBG=64
sWave=68; sPb=69; sHg=70; sTag=71
sT=72
sCnt=84; sB=85
sXcc=65
sVM=86
sST=88
vZ=1
L=[]
def E(s):
    for ln in s.split('\n'):
        if ln.strip(): L.append('    '+ln.strip())
def LBL(s): L.append(s+':')
def C(s): L.append('    ; '+s)
_uid=[0]
def uid(p):
    _uid[0]+=1; return f'{p}_{_uid[0]}'
def vr(a,n): return f'v[{a}:{a+n-1}]'
def sr(a,n=4): return f's[{a}:{a+n-1}]'
def srd(dst,ptr,nbytes):
    E(f's_mov_b32 s{dst}, s{ptr}\n s_mov_b32 s{dst+1}, s{ptr+1}\n s_mov_b32 s{dst+2}, {hex(nbytes)}\n s_mov_b32 s{dst+3}, 0x20000')
STN=[]
def stamp(role,i,name):
    if OPT.get('acc') and role=='B' and i==10: return
    if OPT.get('jst') and role=='A' and i in (1,2,3,7): return
    if OPT.get('bst') and role=='B' and i in (6,7,8,9) and not name.startswith('arrive'): return
    if not DIAG: return
    STN.append((role,i,name))
    E(f's_memrealtime s[100:101]\n s_waitcnt lgkmcnt(0)\n s_mov_b32 s{sST+i}, s100')
ECHO=OPT.get('echo')
def echo_mark(name):
    if ECHO==name or name=='start' and ECHO:
        r=98 if name=='start' else 99
        E(f's_memrealtime s[100:101]\n s_waitcnt lgkmcnt(0)\n s_mov_b32 s{r}, s100')
def echo_end():
    if not ECHO: return
    E('s_waitcnt vmcnt(0)'); echo_mark('end')
    E('s_memrealtime s[100:101]\n s_waitcnt lgkmcnt(0)\n s_sub_u32 s99, s99, s98\n s_add_u32 s99, s99, s100')
    LBL('L_ECHO')
    E('s_memrealtime s[100:101]\n s_waitcnt lgkmcnt(0)\n s_sub_u32 s100, s100, s99\n s_cmp_lt_i32 s100, 0\n s_cbranch_scc1 L_ECHO')
def cstamp(role,i,name):
    if OPT.get('jst') and i in (10,11) and not name.startswith('J'): return
    if not DIAG: return
    STN.append((role,i,'CYC '+name))
    E(f's_memtime s[100:101]\n s_waitcnt lgkmcnt(0)\n s_mov_b32 s{sST+i}, s100')
def tacc(role,i,name,code):
    if not (DIAG and OPT.get('acc')): E(code); return
    if (role,i,'ACC '+name) not in STN: STN.append((role,i,'ACC '+name))
    E(f's_memtime s[100:101]\n s_waitcnt lgkmcnt(0)\n s_sub_u32 s{sST+i}, s{sST+i}, s100')
    E(code)
    E(f's_memtime s[100:101]\n s_waitcnt lgkmcnt(0)\n s_add_u32 s{sST+i}, s{sST+i}, s100')
def stamp_flush(nmax,role='B'):
    if not DIAG: return
    if OPT.get('dbg'):
        m={'A':[(0,1),(2,2),(7,3),(3,4),(1,5),(4,6),(5,7),(6,8)],'B':[(4,9),(6,10),(7,11),(9,12),(10,13),(11,14)]}[role]
        sk=uid('nd')
        srd(sDBG,24,256)
        E(f's_bfe_u32 s{sT}, s2, 0x30003\n s_cmp_eq_u32 s{sT}, 0\n s_cbranch_scc0 {sk}\n v_mov_b32 v2, 0\n s_not_b32 s{sT}, s{sST}\n v_writelane_b32 v2, s{sT}, 0')
        for i,sl in m: E(f'v_writelane_b32 v2, s{sST+i}, {sl}')
        E(f'v_lshlrev_b32 v3, 2, v0\n s_mov_b64 exec, 0xffff\n buffer_atomic_umax v2, v3, {sr(sDBG)}, 0 offen sc1\n s_mov_b64 exec, -1')
        LBL(sk)
        return
    if OPT.get('hwid'): E(f's_getreg_b32 s{sST+11}, hwreg(HW_REG_HW_ID)\n s_getreg_b32 s{sST+10}, hwreg(HW_REG_XCC_ID)')
    E('v_mov_b32 v2, 0')
    for i in range(nmax): E(f'v_writelane_b32 v2, s{sST+i}, {i}')
    E(f's_mul_i32 s{sT}, s2, 12\n s_add_u32 s{sT}, s{sT}, s{sWave}\n s_lshl_b32 s{sT}, s{sT}, 6\n s_add_u32 s{sT}, s{sT}, {hex(WS_STAMP)}')
    E(f'v_lshlrev_b32 v3, 2, v0\n s_mov_b64 exec, 0xffff\n buffer_store_dword v2, v3, {sr(sWS)}, s{sT} offen\n s_mov_b64 exec, -1')

def lds_add(off,val,vz,vt):
    E(f'v_mov_b32 v{vt}, {val}\n s_mov_b64 exec, 1\n ds_add_u32 v{vz}, v{vt} offset:{off-L_ST}\n s_mov_b64 exec, -1')
def lds_spin(off,mask,val,vz,vt,sleep=1):
    a=uid('spin'); d=uid('spind')
    E(f's_mov_b32 s{sCnt}, {SPIN_LIMIT}')
    LBL(a)
    E(f'ds_read_b32 v{vt}, v{vz} offset:{off-L_ST}\n s_waitcnt lgkmcnt(0)\n v_readfirstlane_b32 s{sT}, v{vt}')
    if mask is not None: E(f's_and_b32 s{sT}, s{sT}, {hex(mask)}')
    E(f's_cmp_eq_u32 s{sT}, {hex(val)}\n s_cbranch_scc1 {d}\n s_sub_u32 s{sCnt}, s{sCnt}, 1\n s_cbranch_scc1 {d}')
    if sleep: E(f's_sleep {sleep}')
    E(f's_branch {a}')
    LBL(d)
def tag_set(off,sidx,vt):
    if sidx is None: E(f'v_mov_b32 v{vt}, {off}')
    else: E(f's_lshl_b32 s{sT}, s{sidx}, 2\n s_add_u32 s{sT}, s{sT}, {off}\n v_mov_b32 v{vt}, s{sT}')
    E(f'v_mov_b32 v{vt+1}, 1\n s_mov_b64 exec, 1\n ds_write_b32 v{vt}, v{vt+1}\n s_mov_b64 exec, -1')
def tag_wait(off,n,vt,sleep=0,once=None):
    a=uid('tw'); d=uid('twd')
    E(f'v_and_b32 v{vt}, {n-1}, v0\n v_lshlrev_b32 v{vt}, 2, v{vt}\n v_add_u32 v{vt}, {off}, v{vt}')
    if once:
        E(f'ds_read_b32 v{vt+1}, v{vt}\n s_waitcnt lgkmcnt(0)\n v_cmp_ne_u32 vcc, 1, v{vt+1}\n s_cbranch_vccz {once}')
        return
    E(f's_mov_b32 s{sCnt}, {SPIN_LIMIT}')
    LBL(a)
    E(f'ds_read_b32 v{vt+1}, v{vt}\n s_waitcnt lgkmcnt(0)\n v_cmp_ne_u32 vcc, 1, v{vt+1}\n s_cbranch_vccz {d}\n s_sub_u32 s{sCnt}, s{sCnt}, 1\n s_cbranch_scc1 {d}')
    if sleep: E(f's_sleep {sleep}')
    E(f's_branch {a}')
    LBL(d)
def tag_get(vt):
    E(f'ds_read_b32 v{vt}, v{vZ} offset:{T_TAG-L_ST}\n s_waitcnt lgkmcnt(0)\n v_readfirstlane_b32 s{sTag}, v{vt}')
def poll(vaddr,n,vt,sleep=1):
    a=uid('poll'); d=uid('polld')
    E(f's_mov_b32 s{sCnt}, {SPIN_LIMIT}')
    LBL(a)
    op={1:'buffer_load_dword',2:'buffer_load_dwordx2',3:'buffer_load_dwordx3',4:'buffer_load_dwordx4'}[n]
    E(f'{op} {vr(vt,n) if n>1 else "v%d"%vt}, v{vaddr}, {sr(sWS)}, 0 offen sc1\n s_waitcnt vmcnt(0)')
    for i in range(n): E(f'v_xor_b32 v{vt+i}, s{sTag}, v{vt+i}')
    if n==2: E(f'v_or_b32 v{vt}, v{vt}, v{vt+1}')
    if n>=3: E(f'v_or3_b32 v{vt}, v{vt}, v{vt+1}, v{vt+2}')
    if n==4: E(f'v_or_b32 v{vt}, v{vt}, v{vt+3}')
    E(f'v_cmp_ne_u32 vcc, 0, v{vt}\n s_cbranch_vccz {d}\n s_sub_u32 s{sCnt}, s{sCnt}, 1\n s_cbranch_scc1 {d}')
    if sleep: E(f's_sleep {sleep}')
    E(f's_branch {a}')
    LBL(d)
def flag_store(soff_reg,vt):
    E(f'v_mov_b32 v{vt}, s{sTag}\n s_mov_b64 exec, 1\n buffer_store_dword v{vt}, off, {sr(sWS)}, s{soff_reg} sc1\n s_mov_b64 exec, -1')
def mfma(d,a,b,c=None):
    cc = vr(d,16) if c is None else (c if isinstance(c,str) else vr(c,16))
    E(f'v_mfma_f32_32x32x16_bf16 {vr(d,16)}, {vr(a,4)}, {vr(b,4)}, {cc}')
def smf(o,v,s,idx): E(f'v_smfmac_f32_32x32x32_bf16 {vr(o,16)}, {vr(v,4)}, {vr(s,8)}, v{idx}')
def vexp(r): E(f'v_exp_f32 v{r}, v{r}')
def cvt(d,a,b): E(f'v_cvt_pk_bf16_f32 v{d}, v{a}, v{b}')
def set_vpad(regs,vt):
    E(f'v_and_b32 v{vt}, 27, v0\n v_cmp_eq_u32 vcc, 16, v{vt}\n v_mov_b32 v{vt}, 0x3f803f80\n s_nop 0\n v_cndmask_b32 v{regs[0]}, 0, v{vt}, vcc')
    for r in regs[1:]: E(f'v_mov_b32 v{r}, v{regs[0]}')
def xaddr(base,t_imm,vt):
    E(f'v_and_b32 v{vt}, 15, v0\n v_lshrrev_b32 v{base}, 5, v0\n v_xor_b32 v{base}, v{base}, v{vt}\n v_lshlrev_b32 v{base}, 4, v{base}')
    E(f'v_and_b32 v{vt}, 31, v0\n v_lshl_add_u32 v{base}, v{vt}, 10, v{base}\n v_add_u32 v{base}, {t_imm}, v{base}')
    for b in range(1,8): E(f'v_xor_b32 v{base+b}, {b<<5}, v{base}')
def traddr128(dst,vt,vt2,rowsel,colbase):
    E(f'v_lshrrev_b32 v{vt}, 5, v0\n v_lshlrev_b32 v{vt}, {rowsel}, v{vt}\n v_bfe_u32 v{vt2}, v0, 2, 2\n v_add_u32 v{vt}, v{vt}, v{vt2}\n v_lshlrev_b32 v{dst}, 7, v{vt}')
    E(f'v_bfe_u32 v{vt}, v0, 4, 1\n v_lshlrev_b32 v{vt}, 1, v{vt}\n v_bfe_u32 v{vt2}, v0, 1, 1\n v_add3_u32 v{vt}, v{vt}, v{vt2}, {colbase}')
    E(f'v_bfe_u32 v{vt2}, v0, 3, 1\n v_lshlrev_b32 v{vt2}, 2, v{vt2}\n v_xor_b32 v{vt}, v{vt}, v{vt2}\n v_lshl_add_u32 v{dst}, v{vt}, 4, v{dst}')
    E(f'v_and_b32 v{vt}, 1, v0\n v_lshl_add_u32 v{dst}, v{vt}, 3, v{dst}')
def dma128_voff(dst,vt,vt2,rowstride_sreg_or_shift,colbytes):
    E(f'v_lshrrev_b32 v{vt}, 3, v0')
    if isinstance(rowstride_sreg_or_shift,int): E(f'v_lshlrev_b32 v{dst}, {rowstride_sreg_or_shift}, v{vt}')
    else: E(f'v_mul_u32_u24 v{dst}, {rowstride_sreg_or_shift}, v{vt}')
    E(f'v_bfe_u32 v{vt}, v0, 4, 1\n v_lshlrev_b32 v{vt}, 2, v{vt}\n v_and_b32 v{vt2}, 7, v0\n v_xor_b32 v{vt}, v{vt}, v{vt2}\n v_lshl_add_u32 v{dst}, v{vt}, 4, v{dst}\n v_add_u32 v{dst}, {colbytes}, v{dst}')
def finalize(O,dst,vt,lbl_fb,lbl_back,vg):
    E(f'v_add_f32 v{vt}, |v{O}|, |v{O+1}|')
    for r in range(2,8): E(f'v_add_f32 v{vt}, v{vt}, |v{O+r}|')
    E(f'v_mov_b32 v{vt+1}, 0x7f800000\n v_cmp_nlt_f32 {sr(sT,2)}, v{vt}, v{vt+1}')
    E(f'v_cmp_nle_f32 vcc, {hex(L_LO)}, v{O+8}\n s_or_b64 {sr(sT,2)}, {sr(sT,2)}, vcc')
    E(f'v_cmp_nge_f32 vcc, {hex(L_HI)}, v{O+8}\n s_or_b64 {sr(sT,2)}, {sr(sT,2)}, vcc\n s_cbranch_scc1 {lbl_fb}')
    LBL(lbl_back)
    E(f'v_rcp_f32 v{vt}, v{O+8}\n s_nop 0\n v_mul_f32 v{vt}, v{vt}, v{vg}')
    for r in range(0,8,2): E(f'v_pk_mul_f32 {vr(O+r,2)}, {vr(O+r,2)}, {vr(vt,2)} op_sel_hi:[1,0]')
    for r in range(4): cvt(dst+r,O+2*r,O+2*r+1)
    E(f'v_min_u32 v{dst}, -2, v{dst}')

TAIL=[]
RETRY=[]
def fallback(lbl,back,Q,O,S,K,V,IDX,vM,vK,vV,ntile,soff_setup,first_mask=None,last_mask=None,first_cond=None):
    global L
    save=L; L=[]
    LBL(lbl)
    soff_setup()
    E(f'v_mov_b32 v{vM}, 0xff800000')
    for p in (0,1):
        lp=uid('fbl')
        if p==1:
            E(f'v_mov_b32 v{S}, v{vM}\n s_nop 1\n v_permlane32_swap_b32 v{S}, v{vM}\n s_nop 1\n v_max_f32 v{vM}, v{vM}, v{S}')
            for r in range(16): E(f'v_mov_b32 v{O+r}, 0')
        E(f's_mov_b32 s{sT+5}, s{sT+2}\n s_mov_b32 s{sT+6}, 0')
        LBL(lp)
        E(f'buffer_load_dwordx4 {vr(K,4)}, v{vK}, {sr(sWS)}, s{sT+5} offen sc1')
        if p==1:
            E(f's_mov_b64 exec, {sr(sVM,2)}\n buffer_load_dwordx4 {vr(V,4)}, v{vV}, {sr(sWS)}, s{sT+5} offen offset:1024 sc1\n buffer_load_dwordx4 {vr(V+4,4)}, v{vV}, {sr(sWS)}, s{sT+5} offen offset:1536 sc1\n s_mov_b64 exec, -1')
        E('s_waitcnt vmcnt(0)')
        if first_mask is None:
            mfma(S,K,Q,'0')
        else:
            a=uid('fbm'); b=uid('fbm'); j=uid('fbm')
            E(f's_add_u32 s{sT+7}, s{sT+6}, 1\n s_cmp_eq_u32 s{sT+7}, s{sT+3}\n s_cbranch_scc1 {a}')
            E(f's_cmp_lt_u32 s{sT+6}, s{sT+4}\n s_cbranch_scc1 {b}')
            mfma(S,K,Q,'0'); E(f's_branch {j}')
            LBL(a); mfma(S,K,Q,last_mask); E(f's_branch {j}')
            LBL(b); mfma(S,K,Q,first_mask)
            LBL(j)
        E('s_nop 15')
        if p==0:
            for r in range(0,16,2): E(f'v_max3_f32 v{vM}, v{S+r}, v{S+r+1}, v{vM}')
        else:
            for r in range(16): E(f'v_sub_f32 v{S+r}, v{S+r}, v{vM}')
            for r in range(16): vexp(S+r)
            E('s_nop 1'); smf(O,V,S,IDX); smf(O,V+4,S+8,IDX)
        E(f's_add_u32 s{sT+5}, s{sT+5}, 2048\n s_add_u32 s{sT+6}, s{sT+6}, 1\n s_cmp_lt_u32 s{sT+6}, s{sT+3}\n s_cbranch_scc1 {lp}')
    E(f's_nop 15\n s_branch {back}')
    TAIL.extend(L); L=save

E('s_cmp_ge_u32 s2, 256\n s_cbranch_scc1 L_END')
if ECHO=='karg': E('s_memrealtime s[100:101]\n s_waitcnt lgkmcnt(0)\n s_mov_b32 s97, s100')
E('s_load_dwordx16 s[4:19], s[0:1], 0\n s_load_dwordx8 s[20:27], s[0:1], 64')
E(f'v_lshrrev_b32 v1, 6, v0\n v_and_b32 v0, 63, v0\n v_readfirstlane_b32 s{sWave}, v1')
if MAP=='b':
    E(f's_and_b32 s{sT}, s2, 7\n s_lshr_b32 s{sT+1}, s2, 3\n s_and_b32 s{sT+2}, s{sT+1}, 3\n s_lshl_b32 s{sPb}, s{sT}, 2\n s_or_b32 s{sPb}, s{sPb}, s{sT+2}\n s_lshr_b32 s{sHg}, s{sT+1}, 2')
else:
    E(f's_bfe_u32 s{sPb}, s2, 0x20001\n s_lshl_b32 s{sPb}, s{sPb}, 3\n s_bfe_u32 s{sT}, s2, 0x30003\n s_or_b32 s{sPb}, s{sPb}, s{sT}\n s_and_b32 s{sHg}, s2, 1\n s_lshl_b32 s{sHg}, s{sHg}, 2\n s_lshr_b32 s{sT}, s2, 6\n s_or_b32 s{sHg}, s{sHg}, s{sT}')
E(f's_mov_b32 s{sVM}, 0xffff\n s_mov_b32 s{sVM+1}, 0xffff')
if DIAG:
    for i in range(12): E(f's_mov_b32 s{sST+i}, 0')
C('clear the LDS counters and flags while the kernel arguments arrive')
E(f'v_lshlrev_b32 v2, 3, v0\n v_add_u32 v2, {L_C}, v2\n v_mov_b32 v4, 0\n v_mov_b32 v5, 0\n ds_write_b64 v2, v[4:5]')
E('s_waitcnt lgkmcnt(0)\n s_barrier')
stamp('A',0,'start'); stamp('B',0,'start'); echo_mark('start')
if ECHO=='karg': E('s_sub_u32 s99, s98, s97\n s_mul_i32 s99, s99, 10\n s_add_u32 s99, s99, s98')
srd(sX,4,2048*1024); srd(sWS,26,0x10000000)
E(f's_cmp_lt_u32 s{sWave}, 8\n s_cbranch_scc1 L_A')


KVPOS=[L_ST,32768,49152,16384,0,65536,81920,98304]
L_PART=L_ST+24576
L_QA=0; L_QB=8192; L_WO=0; L_FX=65536
sOut=66; sOb=67; sPass=64
sRot=sT+11
def mktag(): E(f's_mul_i32 s{sTag}, s{sTag}, 0x9E3779B1\n s_add_u32 s{sTag}, s{sTag}, 0x7F4A7C15')
def mkrot():
    if MAP=='b': E(f's_and_b32 s{sRot}, s{sPb}, 3\n s_lshl_b32 s{sRot}, s{sRot}, 1\n s_add_u32 s{sRot}, s{sRot}, s{sHg}')
    else: E(f's_lshl_b32 s{sRot}, s{sHg}, 1\n s_add_u32 s{sRot}, s{sRot}, s{sPb}')
def touch(srd_,soff,n,vaddr,vd,sc1=False):
    for i in range(n):
        if i: E(f's_add_u32 s{soff}, s{soff}, 8192')
        E(f'buffer_load_dword v{vd}, v{vaddr}, {sr(srd_)}, s{soff} offen'+(' sc1' if sc1 else ''))
E(f's_setprio {2 if OPT.get("bp2") else 3}\n s_sub_u32 s{sB}, s{sWave}, 8')
if OPT.get('cpf','1')=='1':
    C('---- pull this WG\'s share of the kernel\'s own instructions into L2 (later instruction fetches then miss only the I-cache)')
    E(f's_cmp_eq_u32 s{sB}, 3\n s_cbranch_scc0 L_B_NCP\n s_getpc_b64 s[{sT}:{sT+1}]')
    LBL('L_B_PC')
    E(f's_lshr_b32 s{sT+2}, s2, 3\n s_mul_i32 s{sT+2}, s{sT+2}, (L_CODE_END-L_B_PC+4095)/4096*128\n s_add_u32 s{sT}, s{sT}, s{sT+2}\n s_addc_u32 s{sT+1}, s{sT+1}, 0')
    E(f'v_lshlrev_b32 v2, 7, v0\n v_mov_b32 v3, s{sT+1}\n v_add_co_u32 v2, vcc, s{sT}, v2\n s_nop 1\n v_addc_co_u32 v3, vcc, 0, v3, vcc\n s_lshl_b64 exec, 1, (L_CODE_END-L_B_PC+4095)/4096\n s_sub_u32 exec_lo, exec_lo, 1\n global_load_dword v19, v[2:3], off\n s_mov_b64 exec, -1')
    LBL('L_B_NCP')
C('---- x tile -> LDS as 8 blocks of [64 rows][64 k], block order rotated per WG ; wave b brings blocks b and b+4')
E('v_lshrrev_b32 v17, 3, v0\n v_lshlrev_b32 v17, 10, v17\n v_lshrrev_b32 v2, 4, v0\n v_and_b32 v3, 7, v0\n v_xor_b32 v2, v2, v3\n v_lshl_add_u32 v17, v2, 4, v17\n v_xor_b32 v18, 64, v17')
mkrot()
E(f's_lshl_b32 s{sT+7}, s{sPb}, 16\n s_lshl_b32 s{sT+6}, s{sB}, 13')
VQ=[]
def vwait(tag,extra=''):
    if tag not in VQ:
        if extra: E('s_waitcnt'+extra)
        return
    i=max(n for n,t in enumerate(VQ) if t==tag)
    n=len(VQ)-1-i; del VQ[:i+1]
    E(f's_waitcnt vmcnt({n})'+extra)
XD=OPT.get('xd','1')=='1'
def xblock(expr_add,ldsoff,rows):
    E(f's_add_u32 s{sT+1}, s{sRot}, {expr_add}\n s_and_b32 s{sT+1}, s{sT+1}, 7\n s_lshl_b32 s{sT+1}, s{sT+1}, 7\n s_add_u32 s{sT+1}, s{sT+1}, s{sT+7}')
if XD:
    E(f's_and_b32 s{sT+1}, s{sRot}, 7\n s_lshl_b32 s{sT+1}, s{sT+1}, 7\n s_add_u32 s{sT+1}, s{sT+1}, s{sT+7}\n s_lshl_b32 s{sT+2}, s{sB}, 14\n s_add_u32 s{sT+1}, s{sT+1}, s{sT+2}\n s_lshl_b32 s{sT+2}, s{sB}, 11\n s_add_u32 m0, s{sT+2}, 65536\n s_nop 0')
    E(f'buffer_load_dwordx4 v17, {sr(sX)}, s{sT+1} offen lds\n s_add_u32 m0, s{sT+2}, {65536+1024}\n s_add_u32 s{sT+1}, s{sT+1}, 8192\n buffer_load_dwordx4 v18, {sr(sX)}, s{sT+1} offen lds')
def xrest():
  for hb in range(2):
    sk=uid('xs')
    if XD and hb==0: E(f's_cmp_eq_u32 s{sB}, 0\n s_cbranch_scc1 {sk}')
    E(f's_add_u32 s{sT+1}, s{sRot}, s{sB}\n s_add_u32 s{sT+1}, s{sT+1}, {4*hb}\n s_and_b32 s{sT+1}, s{sT+1}, 7\n s_lshl_b32 s{sT+1}, s{sT+1}, 7\n s_add_u32 s{sT+1}, s{sT+1}, s{sT+7}')
    for n in range(8):
        E(f's_add_u32 m0, s{sT+6}, {65536+32768*hb+1024*n}')
        E(f's_add_u32 s{sT+1}, s{sT+1}, 8192' if n else 's_nop 0')
        E(f'buffer_load_dwordx4 v{17+(n&1)}, {sr(sX)}, s{sT+1} offen lds')
    if XD and hb==0: LBL(sk)
if not XD: xrest()
MU=128; MD=144; BQ=16; BK=24; BV=36; BS=64; BO=96; BIDX=60
C('---- constants for the later phases (idle time)')
E(f'v_mov_b32 v{vZ}, {L_ST}\n v_lshlrev_b32 v160, 4, v0\n v_lshlrev_b32 v163, 7, v0')
E('v_lshrrev_b32 v161, 5, v0\n v_lshlrev_b32 v161, 8, v161\n v_and_b32 v2, 15, v0\n v_lshl_add_u32 v161, v2, 4, v161')
srd(sWOA,12,512*1024); srd(sWOB,18,512*1024)
E(f'v_and_b32 v4, 31, v0\n v_lshrrev_b32 v5, 5, v0\n v_lshlrev_b32 v5, 2, v5\n v_sub_u32 v4, v4, v5\n s_mov_b32 s{sT}, {hex(NEGBIG)}')
for r in range(16):
    E(f'v_subrev_u32 v5, {8*(r//4)+r%4}, v4\n v_ashrrev_i32 v5, 31, v5\n v_and_b32 v{MD+r}, s{sT}, v5\n v_xor_b32 v{MU+r}, s{sT}, v{MD+r}')
set_vpad(list(range(BV,BV+24)),2); E(f'v_mov_b32 v{BIDX}, 0xdddddddd')
for r in range(32): E(f'v_mov_b32 v{BO+r}, 0')
E(f'v_min_u32 v2, 4, v0\n s_sub_i32 s{sT}, s{sPb}, 4\n v_add_u32 v2, s{sT}, v2\n v_max_i32 v2, 0, v2\n s_lshl_b32 s{sT}, s{sHg}, 5\n v_add_u32 v2, s{sT}, v2\n v_lshlrev_b32 v2, 7, v2\n v_add_u32 v162, {hex(WS_FKVB+8)}, v2')
E(f'v_and_b32 v2, 7, v0\n v_lshlrev_b32 v2, 5, v2\n v_add_u32 v2, s{sPb}, v2\n v_lshlrev_b32 v2, 7, v2\n v_add_u32 v166, {hex(WS_FKVB+16)}, v2')
sKh=sT+9; sTt=sT+10
E(f's_lshr_b32 s{sKh}, s{sB}, 1\n s_and_b32 s{sTt}, s{sB}, 1\n s_lshl_b32 s{sT+2}, s{sHg}, 7')
dma128_voff(10,2,3,10,f's{sT+2}')
E(f's_lshl_b32 s{sT+1}, s{sKh}, 2'); traddr128(11,2,3,2,f's{sT+1}')
E(f's_lshl_b32 s{sT+1}, s{sKh}, 15\n s_add_u32 s{sT+1}, s{sT+1}, {L_WO}\n v_add_u32 v11, s{sT+1}, v11\n v_xor_b32 v9, 64, v11')
E(f's_lshl_b32 s{sOut}, s{sPb}, 1\n s_add_u32 s{sOut}, s{sOut}, s{sTt}\n s_lshl_b32 s{sOut}, s{sOut}, 15\n s_lshl_b32 s{sT}, s{sKh}, 14\n s_add_u32 s{sOb}, s{sOut}, s{sT}\n s_add_u32 s{sOb}, s{sOb}, {hex(WS_OB)}')
E(f's_lshl_b32 s{sT}, s{sHg}, 7\n s_add_u32 s{sOut}, s{sOut}, s{sT}\n s_lshl_b32 s{sT}, s{sKh}, 6\n s_add_u32 s{sOut}, s{sOut}, s{sT}')
E('v_and_b32 v8, 31, v0\n v_lshlrev_b32 v167, 10, v8\n v_lshrrev_b32 v3, 5, v0\n v_lshl_add_u32 v167, v3, 4, v167\n v_lshlrev_b32 v8, 2, v8')
srd(sOUT,22,2048*1024)
E(f's_lshl_b32 s{sT}, s{sB}, 12\n s_add_u32 s{sT}, s{sT}, {L_FX}\n v_add_u32 v164, s{sT}, v160\n v_xor_b32 v165, 0x2000, v164\n s_mov_b32 s{sPass}, 0')
if XD:
    E('s_waitcnt vmcnt(0)'); tag_set(T_X0,sB,2); xrest()
E('s_waitcnt vmcnt(8)')
tag_set(T_X,sB,2)
stamp('B',1,'x landed'); echo_mark('xl')
E('s_waitcnt vmcnt(0)')
tag_set(T_X+16,sB,2)
tag_wait(T_G,4,2,sleep=4)
tag_get(2)
stamp('B',5,'BQ'); echo_mark('bq')
E('s_setprio 3')
def kvdma(c):
    E(f's_lshr_b32 s{sT+1}, s2, 3\n s_add_u32 s{sT+1}, s{sT+1}, {c}\n s_and_b32 s{sT+1}, s{sT+1}, 3\n s_lshl_b32 s{sT+1}, s{sT+1}, 2\n s_add_u32 s{sT+1}, s{sT+1}, s{sB}\n s_lshl_b32 s{sT+1}, s{sT+1}, 12')
    E(f's_lshl_b32 s{sT+2}, s{sB}, 12\n s_add_u32 m0, s{sT+2}, {KVPOS[c]}\n s_add_u32 s{sT+1}, s{sT+1}, {hex(WS_KVA+(65536 if c>=4 else 0))}')
    for i in range(4): E(f'buffer_load_dwordx4 v160, {sr(sWS)}, s{sT+1} offen offset:{1024*i} sc1 lds')
    VQ.extend([f'kv{c}']*4)
E(f's_lshl_b32 s{sT}, s{sB}, 11\n s_add_u32 s{sT}, s{sT}, {L_QB}\n v_add_u32 v3, s{sT}, v160')
for t in range(2): E(f'ds_read_b128 {vr(BQ+4*t,4)}, v3 offset:{1024*t}')
E(f's_lshl_b32 s{sT}, s{sPb}, 8\n s_add_u32 s{sT}, s{sT}, {hex(WS_G)}\n buffer_load_dword v61, v8, {sr(sWS)}, s{sT} offen sc1\n buffer_load_dword v62, v8, {sr(sWS)}, s{sT} offen offset:128 sc1\n s_waitcnt lgkmcnt(0)')
lds_add(C_QR,1,vZ,2)
C('---- second half of the shared K/V (throttled) ; o slots marked as not yet written')
for c in (5,6,7):
    kvdma(c); vwait(f'kv{c}')
E('v_sub_f32 v61, 1.0, v61\n v_sub_f32 v62, 1.0, v62')
lds_spin(C_QR,None,12,vZ,2,sleep=2)
kvdma(4)
E(f's_lshl_b32 s{sT+10}, s{sPb}, 6\n s_lshl_b32 s{sT+1}, s{sHg}, 2\n s_add_u32 s{sT+10}, s{sT+10}, s{sT+1}\n s_add_u32 s{sT+10}, s{sT+10}, s{sB}\n s_lshl_b32 s{sT+10}, s{sT+10}, 10')
E('v_mov_b32 v12, -1\n v_mov_b32 v13, -1\n v_mov_b32 v14, -1\n v_mov_b32 v15, -1')
for base in (WS_OA,WS_OA+32768,WS_OB,WS_OB+32768):
    E(f's_add_u32 s{sT+1}, s{sT+10}, {hex(base)}\n buffer_store_dwordx4 v[12:15], v160, {sr(sWS)}, s{sT+1} offen sc1'); VQ.append('s')
vwait('kv4')
lds_add(C_K2,1,vZ,2)
stamp('B',2,'K/V all in')
if OPT.get('nob'): stamp_flush(12); E('s_endpgm')
E(f's_lshl_b32 s{sT+3}, s{sHg}, 5\n s_add_u32 s{sT+3}, s{sT+3}, s{sPb}\n s_lshl_b32 s{sT+3}, s{sT+3}, 7\n s_lshl_b32 s{sT+1}, s{sB}, 2\n s_add_u32 s{sT+3}, s{sT+3}, s{sT+1}\n s_add_u32 s{sT+3}, s{sT+3}, {hex(WS_FKVB+16)}')
if MAP=='b':
    E(f's_cmp_ge_u32 s{sB}, 2\n s_cbranch_scc0 L_B_NOT\n s_lshr_b32 s{sT+1}, s2, 3\n s_lshl_b32 s{sT+1}, s{sT+1}, 14\n s_and_b32 s{sT+2}, s{sB}, 1\n s_lshl_b32 s{sT+2}, s{sT+2}, 13\n s_add_u32 s{sT+1}, s{sT+1}, s{sT+2}')
    touch(sWOB,sT+1,1,163,3); touch(sWOA,sT+1,1,163,3)
else:
    E(f's_cmp_eq_u32 s{sB}, 3\n s_cbranch_scc0 L_B_NOT\n s_lshr_b32 s{sT+1}, s2, 3\n s_lshl_b32 s{sT+1}, s{sT+1}, 14\n s_and_b32 s{sT+2}, s2, 1\n s_lshl_b32 s{sT+2}, s{sT+2}, 9\n s_add_u32 s{sT+1}, s{sT+1}, s{sT+2}')
    E('v_lshrrev_b32 v2, 2, v0\n v_lshlrev_b32 v2, 10, v2\n v_and_b32 v3, 3, v0\n v_lshl_add_u32 v2, v3, 7, v2')
    touch(sWOB,sT+1,1,2,3); touch(sWOA,sT+1,1,2,4)
LBL('L_B_NOT')
poll(162,2,4,sleep=3)
E(f's_getreg_b32 s{sXcc}, hwreg(HW_REG_XCC_ID, 0, 4)\n s_add_u32 s{sT}, s{sTag}, s{sXcc}\n v_mov_b32 v2, s{sT}\n s_mov_b64 exec, 1\n buffer_store_dword v2, off, {sr(sWS)}, s{sT+3} sc1\n s_mov_b64 exec, -1')
lds_add(C_SN,1,vZ,2)
stamp('B',6,'kvB flags seen')
C('---- window attention, head 4hg+b, two query tiles')
E(f's_lshl_b32 s{sT+8}, s{sHg}, 2\n s_add_u32 s{sT+8}, s{sT+8}, s{sB}\n s_lshl_b32 s{sT+8}, s{sT+8}, 6\n s_lshl_b32 s{sT+9}, s{sPb}, 1\n s_sub_i32 s{sT+9}, s{sT+9}, 8')
def btile(j): E(f's_add_i32 s{sT}, s{sT+9}, {j}\n s_max_i32 s{sT}, s{sT}, 0\n s_add_u32 s{sT}, s{sT}, s{sT+8}\n s_lshl_b32 s{sT}, s{sT}, 11\n s_add_u32 s{sT}, s{sT}, {hex(WS_KVB)}')
def bload(j):
    k=BK+4*(j%3); v=BV+8*(j%3)
    btile(j)
    E(f'buffer_load_dwordx4 {vr(k,4)}, v160, {sr(sWS)}, s{sT} offen sc1\n s_mov_b64 exec, {sr(sVM,2)}')
    E(f'buffer_load_dwordx4 {vr(v,4)}, v161, {sr(sWS)}, s{sT} offen offset:1024 sc1\n buffer_load_dwordx4 {vr(v+4,4)}, v161, {sr(sWS)}, s{sT} offen offset:1536 sc1\n s_mov_b64 exec, -1')
bload(0); bload(1)
for j in (2,6):
    E(f's_add_i32 s{sT}, s{sT+9}, {j}\n s_max_i32 s{sT}, s{sT}, 0\n s_add_i32 s{sT+1}, s{sT+9}, 6\n s_min_i32 s{sT}, s{sT}, s{sT+1}\n s_cmp_lt_i32 s{sT}, 0')
    sk=uid('tk'); E(f's_cbranch_scc1 {sk}\n s_add_u32 s{sT}, s{sT}, s{sT+8}\n s_lshl_b32 s{sT}, s{sT}, 11\n s_add_u32 s{sT}, s{sT}, {hex(WS_KVB)}')
    E(f'buffer_load_dword v3, v163, {sr(sWS)}, s{sT} offen sc1'); LBL(sk)
E('s_waitcnt lgkmcnt(0)')
for j in range(10):
    k=BK+4*(j%3); v=BV+8*(j%3)
    if j+2<10: bload(j+2)
    E(f's_waitcnt vmcnt({3*min(2,9-j)})')
    sk=uid('bskip')
    if j<8: E(f's_cmp_lt_i32 s{sT+9}, {-j}\n s_cbranch_scc1 {sk}')
    qs=[q for q in (0,1) if 0<=j-q<=8]
    for q in qs: mfma(BS+16*q,k,BQ+4*q,{0:MU,8:MD}.get(j-q,'0'))
    E('s_nop 10' if len(qs)==2 else 's_nop 11')
    for q in qs:
        S=BS+16*q; O=BO+16*q
        for r in range(10): vexp(S+r)
        smf(O,v,S,BIDX)
        for r in range(10,16): vexp(S+r)
        E('s_nop 1'); smf(O,v+4,S+8,BIDX)
    if j<8: LBL(sk)
E(f's_add_u32 s{sT+10}, s{sT+10}, {hex(WS_OB)}\n s_nop 14')
for q in range(2):
    fb=f'L_FB_B{q}'; bk=f'L_FB_B{q}_BACK'
    finalize(BO+16*q,4,2,fb,bk,61+q)
    E(f'buffer_store_dwordx4 v[4:7], v160, {sr(sWS)}, s{sT+10} offen sc1')
    if q==0: E(f's_add_u32 s{sT+10}, s{sT+10}, 32768\n s_nop 0')
    def setup(q=q):
        E(f's_add_i32 s{sT+2}, s{sT+9}, {q}\n s_cmp_ge_i32 s{sT+2}, 0\n s_cselect_b32 s{sT+4}, 1, 0\n s_max_i32 s{sT+2}, s{sT+2}, 0')
        E(f's_add_i32 s{sT+3}, s{sT+9}, {q+9}\n s_sub_u32 s{sT+3}, s{sT+3}, s{sT+2}\n s_add_u32 s{sT+2}, s{sT+2}, s{sT+8}\n s_lshl_b32 s{sT+2}, s{sT+2}, 11\n s_add_u32 s{sT+2}, s{sT+2}, {hex(WS_KVB)}')
    fallback(fb,bk,BQ+4*q,BO+16*q,BS,BK,BV,BIDX,3,160,161,None,setup,MU,MD)
C('---- output projection: wave (t=b&1, kh=b>>1): both 32-column tiles over heads 16kh..16kh+15 ; slot 0 = tile kh')
PA_=48; PW=80; PO=96; PB_=16
stamp('B',7,'oB published')
C('the eight WGs of this position block: marks in place ?  all on this die ?')
E(f's_mov_b32 s{sCnt}, {SPIN_LIMIT}')
LBL('L_B_PP')
E(f'buffer_load_dwordx4 v[4:7], v166, {sr(sWS)}, 0 offen sc1\n s_waitcnt vmcnt(0)')
for i in range(4): E(f'v_subrev_u32 v{4+i}, s{sTag}, v{4+i}')
E(f'v_or3_b32 v2, v4, v5, v6\n v_or_b32 v2, v2, v7\n v_cmp_lt_u32 vcc, 15, v2\n s_cbranch_vccz L_B_PPD\n s_sub_u32 s{sCnt}, s{sCnt}, 1\n s_cbranch_scc1 L_B_PPD\n s_sleep 3\n s_branch L_B_PP')
LBL('L_B_PPD')
if OPT.get('loc','1')=='1':
    E(f'v_cmp_ne_u32 vcc, s{sXcc}, v4\n s_cbranch_vccnz L_B_NLOC')
    lds_add(C_LOC,1,vZ,2)
    if OPT.get('probe'):
        E('s_branch L_B_PRB')
        LBL('L_B_NLOC')
        for i in range(8): E('s_sleep 127')
        LBL('L_B_PRB')
    else: LBL('L_B_NLOC')
lds_spin(C_MID,None,8,vZ,2,sleep=6)
def wodma(sr_):
    E(f's_lshl_b32 s{sT}, s{sB}, 14\n s_lshl_b32 s{sT+1}, s{sB}, 17')
    for n in range(16): E(f's_add_u32 m0, s{sT}, {L_WO+1024*n}\n s_add_u32 s{sT+2}, s{sT+1}, {8192*n}\n buffer_load_dwordx4 v10, {sr(sr_)}, s{sT+2} offen lds')
wodma(sWOB)
E('s_waitcnt vmcnt(0)')
lds_add(C_WO,1,vZ,2)
lds_spin(C_WO,None,4,vZ,2,sleep=2)
stamp('B',8,'woB landed')
LBL('L_B_GEMM')
def wread(s):
    f=PW+8*(s&1)
    for u,va in ((0,11),(1,9)): E(f'ds_read_b64_tr_b16 {vr(f+4*u,2)}, v{va} offset:{s*2048}\n ds_read_b64_tr_b16 {vr(f+4*u+2,2)}, v{va} offset:{s*2048+1024}')
wread(0)
def oloads(g0):
    for s in range(4*g0,16):
        if s%4==0: E(f's_add_u32 s{sT}, s{sOb}, {1024*s}')
        E(f'buffer_load_dwordx4 {vr(PO+4*s,4)}, v160, {sr(sWS)}, s{sT} offen offset:{1024*(s%4)} sc1')
E(f's_mov_b32 s{sCnt}, {SPIN_LIMIT}')
oloads(0)
for g in range(4):
    LBL(f'L_B_G{g}')
    E(f's_waitcnt vmcnt({12-4*g})')
    p=PO+16*g
    E(f'v_max_u32 v2, v{p}, v{p+4}\n v_max3_u32 v2, v{p+8}, v{p+12}, v2\n v_cmp_eq_u32 vcc, -1, v2\n s_cbranch_vccnz L_B_R{g}')
    LBL(f'L_B_K{g}')
    if DIAG and g==3:
        E(f's_cmp_eq_u32 s{sPass}, 0\n s_cbranch_scc1 L_B_NST'); stamp('B',10,'oA all seen'); LBL('L_B_NST')
    for s in range(4*g,4*g+4):
        if s<15: wread(s+1)
        E(f's_waitcnt lgkmcnt({4 if s<15 else 0})')
        f=PW+8*(s&1)
        if s==0:
            E(f's_cmp_eq_u32 s{sPass}, 0\n s_cbranch_scc0 L_B_M1')
            for u in range(2): mfma(PA_+16*u,f+4*u,PO+4*s,'0')
            E('s_branch L_B_M2'); LBL('L_B_M1')
            for u in range(2): mfma(PA_+16*u,f+4*u,PO+4*s)
            LBL('L_B_M2')
        else:
            for u in range(2): mfma(PA_+16*u,f+4*u,PO+4*s)
    save=L; L=[]
    LBL(f'L_B_R{g}')
    E(f's_sub_u32 s{sCnt}, s{sCnt}, 1\n s_cbranch_scc1 L_B_K{g}\n s_cmp_eq_u32 s{sPass}, 0\n s_cbranch_scc0 L_B_RR{g}\n s_sleep 16')
    LBL(f'L_B_RR{g}')
    E('s_waitcnt vmcnt(0)')
    oloads(g)
    E(f's_branch L_B_G{g}')
    RETRY.extend(L); L=save
E(f's_cmp_eq_u32 s{sPass}, 0\n s_cbranch_scc0 L_B_FIN')
lds_add(C_WD,1,vZ,2)
E(f's_add_u32 s{sOb}, s{sOb}, {hex((WS_OA-WS_OB)&0xffffffff)}\n s_mov_b32 s{sPass}, 1')
lds_spin(C_WD,None,4,vZ,2,sleep=2)
wodma(sWOA)
E('s_waitcnt vmcnt(0)')
stamp('B',9,'out-proj B done, woA in')
E('s_barrier'); echo_mark('aend'); E('s_branch L_B_GEMM')
LBL('L_B_FIN')
E('s_nop 9')
for q in range(4): E(f'ds_write_b128 v164, {vr(PA_+16+4*q,4)} offset:{1024*q}')
E('s_waitcnt lgkmcnt(0)\n s_barrier')
for q in range(4): E(f'ds_read_b128 {vr(PB_+4*q,4)}, v165 offset:{1024*q}')
for q in range(4):
    E(f's_waitcnt lgkmcnt({3-q})')
    for r in range(4): E(f'v_add_f32 v{PA_+4*q+r}, v{PA_+4*q+r}, v{PB_+4*q+r}')
for r in range(8): cvt(PA_+r,PA_+2*r,PA_+2*r+1)
E('s_nop 1')
for gq in range(2): E(f'v_permlane32_swap_b32 v{PA_+4*gq}, v{PA_+4*gq+2}\n v_permlane32_swap_b32 v{PA_+4*gq+1}, v{PA_+4*gq+3}')
for gq in range(2): E(f'buffer_store_dwordx4 {vr(PA_+4*gq,4)}, v167, {sr(sOUT)}, s{sOut} offen offset:{32*gq} '+OPT.get('ost','').replace('+',' '))
if DIAG: E('s_waitcnt vmcnt(0)')
stamp('B',11,'out stored'); echo_end()
stamp_flush(12)
E('s_endpgm')
L.extend(RETRY)

LBL('L_A')
AIDX=8; AKA=9; AVA=10; AQ0=12; AQ1=16; AK=20; AV=28; SA=44; SB=60; OA=76; OB=92; XA=108; WA=160; AF=112
L_PG=L_PART+4096
sStr=sT+10; sRing=sT+7
E(f'v_and_b32 v5, 15, v0\n v_lshlrev_b32 v6, 4, v0\n s_and_b32 s{sT+9}, s{sHg}, 3\n s_cmp_lt_u32 s{sWave}, 4\n s_cbranch_scc0 L_A_KV')
C('---- waves 0..3 : wave m streams 64 columns of matrix m (wq | B q | B k | B v) through its own 8 x 2KB ring')
E(f's_cmp_eq_u32 s{sWave}, 0\n s_cselect_b32 s{sWB}, s6, s16\n s_cselect_b32 s{sWB+1}, s7, s17\n s_mov_b32 s{sWB+2}, {512*3072}\n s_cselect_b32 s{sWB+2}, {512*1024}, s{sWB+2}\n s_mov_b32 s{sWB+3}, 0x20000')
E(f's_movk_i32 s{sStr}, 3072\n s_cselect_b32 s{sStr}, 0x400, s{sStr}\n s_max_u32 s{sT+1}, s{sWave}, 1\n s_sub_u32 s{sT+1}, s{sT+1}, 1\n s_lshl_b32 s{sT+1}, s{sT+1}, 10\n s_lshl_b32 s{sT+2}, s{sHg}, 7\n s_add_u32 s{sT+1}, s{sT+1}, s{sT+2}')
dma128_voff(162,2,3,f's{sStr}',f's{sT+1}')
mkrot()
E(f's_lshl_b32 s{sStr}, s{sStr}, 3\n s_lshl_b32 s{sRing}, s{sWave}, 14')
E(f's_sub_u32 s{sT+1}, s{sStr}, 1024\n v_add_u32 v163, s{sT+1}, v162\n s_lshl_b32 s{sStr}, s{sStr}, 1')
def wdma_parts(st):
    p0=f's_add_u32 m0, s{sRing}, {(st%8)*2048}\n'
    if st%4==0: p0+=f's_add_u32 s{sT+3}, s{sRot}, {st//4}\n s_and_b32 s{sT+3}, s{sT+3}, 7\n s_lshl_b32 s{sT+3}, s{sT+3}, 2\n s_mul_i32 s{sT+3}, s{sT+3}, s{sStr}'
    else: p0+=f's_add_u32 s{sT+3}, s{sT+3}, s{sStr}'
    VQ.extend([f'w{st}']*2)
    return [p0, f'buffer_load_dwordx4 v162, {sr(sWB)}, s{sT+3} offen lds', f'buffer_load_dwordx4 v163, {sr(sWB)}, s{sT+3} offen offset:1024 lds']
def wdma(st):
    for p in wdma_parts(st): E(p)
if OPT.get('p0','2')!='0': E(f's_cmp_eq_u32 s{sWave}, 0\n s_cbranch_scc0 L_A_NP0\n s_setprio {OPT.get("p0","3")}\nL_A_NP0:')
NW0=int(OPT.get('nw0','8'))
VQ.clear()
for st in range(NW0): wdma(st)
E('s_branch L_A_NOKV')
LBL('L_A_KV')
E(f's_setprio 3\n s_load_dword s{sTag}, s[26:27], {WS_EPOCH}')
C('---- kvA: this WG makes 16 positions (hg&3) of K (hg<4) or V, and their gate ; wave 4+u sums k in [128u,128u+128)')
E(f's_cmp_lt_u32 s{sHg}, 4\n s_cselect_b32 s{sWKV}, s8, s10\n s_cselect_b32 s{sWKV+1}, s9, s11\n s_mov_b32 s{sWKV+2}, 16384\n s_mov_b32 s{sWKV+3}, 0x20000\n s_and_b32 s{sT+3}, s{sWave}, 3')
E(f's_lshl_b32 s{sT+1}, s{sPb}, 16\n s_lshl_b32 s{sT+2}, s{sT+9}, 14\n s_add_u32 s{sT+1}, s{sT+1}, s{sT+2}\n s_lshl_b32 s{sT+2}, s{sT+3}, 8\n s_add_u32 s{sT+1}, s{sT+1}, s{sT+2}')
E('v_lshlrev_b32 v3, 10, v5\n v_and_b32 v4, 48, v0\n v_add_u32 v3, v3, v4')
for s_ in range(4): E(f'buffer_load_dwordx4 {vr(116+4*s_,4)}, v3, {sr(sX)}, s{sT+1} offen offset:{64*s_}')
if MAP=='c' and OPT.get('wkt','1')=='1':
    E(f's_cmp_eq_u32 s{sWave}, 4\n s_cbranch_scc0 L_A_NT2\n s_lshr_b32 s{sT+4}, s2, 3\n s_lshl_b32 s{sT+4}, s{sT+4}, 9\n v_lshlrev_b32 v2, 7, v0\n s_mov_b64 exec, 15\n buffer_load_dword v167, v2, {sr(sWKV)}, s{sT+4} offen\n s_mov_b64 exec, -1')
    LBL('L_A_NT2')
srd(sG,20,1024)
for s_ in range(4): E(f'buffer_load_dwordx4 {vr(132+4*s_,4)}, v4, {sr(sG)}, s{sT+2} offen offset:{64*s_}')
E(f's_lshl_b32 s{sT}, s{sT+3}, 12\n s_add_u32 m0, s{sT}, {L_ST}\n s_nop 0')
for i in range(4): E(f'buffer_load_dwordx4 v6, {sr(sWKV)}, s{sT} offen offset:{1024*i} lds')
LBL('L_A_NOKV')
C('---- address of this wave\'s o slot, constants')
sOA=sT+8
E(f's_bfe_u32 s{sOA}, s{sWave}, 0x10001\n s_lshl_b32 s{sT+1}, s{sPb}, 1\n s_add_u32 s{sOA}, s{sOA}, s{sT+1}\n s_lshl_b32 s{sOA}, s{sOA}, 5')
E(f's_lshl_b32 s{sT+1}, s{sHg}, 2\n s_add_u32 s{sOA}, s{sOA}, s{sT+1}\n s_lshr_b32 s{sT+1}, s{sWave}, 2\n s_lshl_b32 s{sT+1}, s{sT+1}, 1\n s_add_u32 s{sOA}, s{sOA}, s{sT+1}\n s_and_b32 s{sT+1}, s{sWave}, 1\n s_add_u32 s{sOA}, s{sOA}, s{sT+1}\n s_lshl_b32 s{sOA}, s{sOA}, 10\n s_add_u32 s{sOA}, s{sOA}, {hex(WS_OA)}')
E(f'v_mov_b32 v{vZ}, {L_ST}\n v_lshlrev_b32 v11, 2, v0')
traddr128(WA,2,3,3,'0'); E(f's_lshl_b32 s{sT+1}, s{sWave}, 14\n v_add_u32 v{WA}, s{sT+1}, v{WA}\n v_xor_b32 v{WA+1}, 64, v{WA}')
E(f'v_and_b32 v2, 31, v0\n v_bfe_u32 v3, v0, 1, 3\n v_lshrrev_b32 v7, 5, v0\n v_xor_b32 v3, v3, v7\n v_lshlrev_b32 v{XA}, 7, v2\n v_lshl_add_u32 v{XA}, v3, 4, v{XA}\n v_add_u32 v{XA}, 0x10000, v{XA}')
for s_ in range(1,4): E(f'v_xor_b32 v{XA+s_}, {s_<<5}, v{XA}')
for r in range(32): E(f'v_mov_b32 v{OA+r}, 0')
set_vpad(list(range(AV,AV+16)),2)
E(f'v_mov_b32 v{AIDX}, 0xdddddddd')
E(f's_and_b32 s{sT+1}, s{sWave}, 1\n s_lshl_b32 s{sT+1}, s{sT+1}, 11\n v_add_u32 v{AKA}, s{sT+1}, v6')
E(f'v_lshlrev_b32 v7, 8, v7\n v_lshl_add_u32 v7, v5, 4, v7\n v_add_u32 v{AVA}, s{sT+1}, v7')
E(f's_lshl_b32 s{sT+6}, s{sHg}, 5\n s_add_u32 s{sT+6}, s{sT+6}, s{sPb}\n s_lshl_b32 s{sT+6}, s{sT+6}, 7\n s_lshl_b32 s{sT+1}, s{sWave}, 2\n s_add_u32 s{sT+6}, s{sT+6}, s{sT+1}\n s_add_u32 s{sT+6}, s{sT+6}, {hex(WS_FKVB)}')
E(f's_cmp_lt_u32 s{sWave}, 4\n s_cbranch_scc1 L_A_GQ\n s_waitcnt lgkmcnt(0)')
mktag()
E(f'v_lshrrev_b32 v4, 4, v0\n v_lshlrev_b32 v4, 8, v4\n v_lshl_add_u32 v4, v5, 3, v4\n s_add_u32 s{sT}, s{sT}, {L_ST}\n v_add_u32 v4, s{sT}, v4')
E(f's_lshl_b32 s{sT+1}, s{sT+3}, 10\n s_add_u32 s{sT+1}, s{sT+1}, {L_PART}\n v_add_u32 v2, s{sT+1}, v6\n s_lshl_b32 s{sT+1}, s{sT+3}, 8\n s_add_u32 s{sT+1}, s{sT+1}, {L_PG}\n v_add_u32 v3, s{sT+1}, v11')
E('s_waitcnt vmcnt(0)')
for s_ in range(4): E(f'ds_read_b64_tr_b16 {vr(44+4*s_,2)}, v4 offset:{1024*s_}\n ds_read_b64_tr_b16 {vr(46+4*s_,2)}, v4 offset:{1024*s_+128}')
for s_ in range(4): E(f'v_mfma_f32_16x16x32_bf16 v[64:67], {vr(132+4*s_,4)}, {vr(116+4*s_,4)}, {"0" if s_==0 else "v[64:67]"}')
E(f's_cmp_lt_u32 s{sHg}, 4\n s_waitcnt lgkmcnt(0)\n s_cbranch_scc0 L_A_VJOB')
for s_ in range(4): E(f'v_mfma_f32_16x16x32_bf16 v[60:63], {vr(44+4*s_,4)}, {vr(116+4*s_,4)}, {"0" if s_==0 else "v[60:63]"}')
E('s_branch L_A_KVJ')
LBL('L_A_VJOB')
for s_ in range(4): E(f'v_mfma_f32_16x16x32_bf16 v[60:63], {vr(116+4*s_,4)}, {vr(44+4*s_,4)}, {"0" if s_==0 else "v[60:63]"}')
LBL('L_A_KVJ')
E('s_nop 0\n ds_write_b32 v3, v64\n s_nop 5\n ds_write_b128 v2, v[60:63]')
stamp('A',2,'kvA partial')
E('s_waitcnt lgkmcnt(0)')
tag_set(T_PT,sT+3,2)
E(f's_cmp_eq_u32 s{sWave}, 7\n s_cbranch_scc0 L_A_BS')
C('---- wave 7: reduce the four partial tiles, store, flag')
tag_wait(T_PT,4,2)
E(f'v_add_u32 v3, {L_PART}, v6\n v_add_u32 v4, {L_PG}, v11')
for i in range(4): E(f'ds_read_b128 {vr(116+4*i,4)}, v3 offset:{1024*i}')
for i in range(2): E(f'ds_read2st64_b32 {vr(148+2*i,2)}, v4 offset0:{2*i} offset1:{2*i+1}')
E(f's_lshl_b32 s{sT+3}, s{sPb}, 1\n s_lshr_b32 s{sT+4}, s{sT+9}, 1\n s_add_u32 s{sT+3}, s{sT+3}, s{sT+4}\n s_lshl_b32 s{sT+3}, s{sT+3}, 11\n s_add_u32 s{sT+3}, s{sT+3}, {hex(WS_KVA)}\n s_and_b32 s{sT+4}, s{sT+9}, 1')
E(f's_cmp_lt_u32 s{sHg}, 4\n s_cselect_b32 s{sT+5}, 9, 3\n s_cselect_b32 s{sT+7}, 3, 8\n s_cselect_b32 s{sT+1}, 8, 9\n s_cselect_b32 s{sT}, 0, 0x400')
E(f's_lshl_b32 s{sT+4}, s{sT+4}, s{sT+1}\n s_add_u32 s{sT+3}, s{sT+3}, s{sT+4}\n s_add_u32 s{sT+3}, s{sT+3}, s{sT}')
E(f'v_bfe_u32 v3, v0, 4, 1\n v_lshrrev_b32 v4, 5, v0\n v_lshlrev_b32 v5, 4, v5\n v_lshl_add_u32 v5, v3, s{sT+5}, v5\n v_lshl_add_u32 v5, v4, s{sT+7}, v5')
FPLS=int(OPT.get('fpl','4'))
E(f's_lshl_b32 s{sT+7}, s{sPb}, 3\n s_add_u32 s{sT+7}, s{sT+7}, s{sHg}\n s_and_b32 s{sT+1}, s{sT+7}, {(1<<FPLS)-1}\n s_lshr_b32 s{sT+7}, s{sT+7}, {FPLS}\n s_lshl_b32 s{sT+7}, s{sT+7}, 7\n s_lshl_b32 s{sT+1}, s{sT+1}, 2\n s_add_u32 s{sT+7}, s{sT+7}, s{sT+1}\n s_add_u32 s{sT+7}, s{sT+7}, {hex(WS_FKVA)}')
E('s_waitcnt lgkmcnt(2)')
for st_ in (8,4):
    for r in range(st_): E(f'v_add_f32 v{116+r}, v{116+r}, v{116+st_+r}')
cvt(116,116,117); cvt(117,118,119)
E(f'buffer_store_dwordx2 v[116:117], v5, {sr(sWS)}, s{sT+3} offen sc1')
E(f's_cmp_lt_u32 s{sHg}, 4\n s_waitcnt lgkmcnt(0)\n s_cbranch_scc0 L_A_SF')
for st_ in (2,1):
    for r in range(st_): E(f'v_add_f32 v{148+r}, v{148+r}, v{148+st_+r}')
E(f's_mov_b32 s{sT}, {hex(f2u(-math.log2(math.e)))}\n v_mul_f32 v148, s{sT}, v148\n v_exp_f32 v148, v148')
E(f's_lshl_b32 s{sT}, s{sPb}, 2\n s_add_u32 s{sT}, s{sT}, s{sT+9}\n v_add_f32 v148, 1.0, v148\n v_rcp_f32 v148, v148\n s_lshl_b32 s{sT}, s{sT}, 6\n s_add_u32 s{sT}, s{sT}, {hex(WS_G)}')
E(f's_mov_b64 exec, 0xffff\n buffer_store_dword v148, v11, {sr(sWS)}, s{sT} offen sc1\n s_mov_b64 exec, -1')
LBL('L_A_SF')
E('s_waitcnt vmcnt(0)')
flag_store(sT+7,2)
stamp('A',3,'kvA flag sent')
LBL('L_A_BS')
E(f's_cmp_eq_u32 s{sWave}, 6\n s_cbranch_scc0 L_A_B8')
C('---- wave 6: wait for every K/V piece, fetch this WG\'s share into L2, tell the projection waves')
E(f'v_lshlrev_b32 v16, 7, v0\n v_lshrrev_b32 v17, {FPLS-2}, v0\n v_lshlrev_b32 v17, 7, v17\n v_and_b32 v18, {(1<<(FPLS-2))-1}, v0\n v_lshl_add_u32 v17, v18, 4, v17\n v_add_u32 v17, {hex(WS_FKVA)}, v17')
E(f'v_mov_b32 v2, s{sTag}\n ds_write_b32 v{vZ}, v2 offset:{T_TAG-L_ST}')
tag_wait(T_PT,4,2)
tag_wait(T_PL,1,2,sleep=2)
poll(17,4,12,sleep=int(OPT.get('psl','1')))
E(f's_lshr_b32 s{sT+5}, s2, 3\n s_lshl_b32 s{sT+5}, s{sT+5}, 12\n s_add_u32 s{sT+5}, s{sT+5}, {hex(WS_KVA)}')
E(f's_mov_b32 exec_hi, 0\n buffer_load_dword v117, v16, {sr(sWS)}, s{sT+5} offen sc1\n s_mov_b64 exec, -1')
tag_set(T_FL,None,2)
stamp('A',3,'kvA flag sent')
E(f's_lshr_b32 s{sT+5}, s2, 3\n s_and_b32 s{sT+5}, s{sT+5}, 3\n s_lshl_b32 s{sT+5}, s{sT+5}, 14\n s_add_u32 s{sT+5}, s{sT+5}, {hex(WS_KVA)}')
for q in range(4):
    E(f's_mov_b32 m0, {L_ST+4096*q}\n s_add_u32 s{sT+4}, s{sT+5}, {4096*q}')
    for i in range(4): E(f'buffer_load_dwordx4 v6, {sr(sWS)}, s{sT+4} offen offset:{1024*i} sc1 lds')
E('s_waitcnt vmcnt(0)')
tag_set(T_K0,None,2)
stamp('A',7,'G1')
E(f's_cmp_eq_u32 s2, 0\n s_cbranch_scc0 L_A_B8\n s_mov_b32 s{sT}, 0')
flag_store(sT,2)
E('s_branch L_A_B8')
LBL('L_A_GQ')
PAC=[44,60,128,144]; PFR=[12,112,92]
def areads_l(st):
    f=PFR[st%3]; so=(st%8)*2048; o=[]
    for i in range(2): o+= [f'ds_read_b64_tr_b16 {vr(f+4*i,2)}, v{WA+i} offset:{so}', f'ds_read_b64_tr_b16 {vr(f+4*i+2,2)}, v{WA+i} offset:{so+512}']
    for t in range(2): o.append(f'ds_read_b128 {vr(f+8+4*t,4)}, v{XA+st%4} offset:{(st//4)*8192+4096*t}')
    return o
def areads(st):
    for p in areads_l(st): E(p)
def kv_parts(p):
    VQ.extend(['kv']*2)
    return [f's_add_u32 m0, s{sRing}, {p*2048}\n s_add_u32 s{sT+4}, s{sT+5}, {p*2048}']+[f'buffer_load_dwordx4 v6, {sr(sWS)}, s{sT+4} offen offset:{1024*n} sc1 lds' for n in range(2)]
def kvpiece(p):
    for q in kv_parts(p): E(q)
for st in range(NW0,8): wdma(st)
E(f's_sub_u32 s{sT+4}, s{sWave}, 1\n s_cmp_eq_u32 s{sWave}, 1\n s_cselect_b32 s{sT+4}, 3, s{sT+4}\n s_lshr_b32 s{sT+5}, s2, 3\n s_add_u32 s{sT+5}, s{sT+5}, s{sT+4}\n s_and_b32 s{sT+5}, s{sT+5}, 3\n s_lshl_b32 s{sT+5}, s{sT+5}, 14\n s_add_u32 s{sT+5}, s{sT+5}, {hex(WS_KVA)}')
tag_wait(T_X0,4,2) if XD else tag_wait(T_X,1,2)
stamp('A',7,'G1'); cstamp('A',10,'G1')
vwait('w0'); areads(0); vwait('w1'); areads(1)
VQ0=list(VQ)
PLK=int(OPT.get('plk','15'))
E(f's_cmp_eq_u32 s{sWave}, 3\n s_cbranch_scc1 L_A_GV')
def gstep(var,st,kv):
    f=PFR[st%3]
    def mm(i,t):
        d=PAC[2*i+t]; c='0' if st==0 else None
        if var==0: mfma(d,f+4*i,f+8+4*t,c)
        else: mfma(d,f+8+4*t,f+4*i,c)
    vwait(f'w{st+2}',f' lgkmcnt({6 if st<31 else 0})')
    rd=areads_l(st+2) if st+2<32 else []
    dm=wdma_parts(st+8) if st+8<32 else (kv_parts(st%8) if kv else [])
    gaps=[rd[0:2]+dm[0:1], rd[2:4]+dm[1:2], rd[4:6], dm[2:3]]
    if st>=30: gaps=[[f'v_mov_b32 v{OB+8*(st-30)+2*q+r}, 0' for r in range(2)]+gaps[q] for q in range(4)]
    for q,(i,t) in enumerate(((0,0),(0,1),(1,0),(1,1)) if st<31 else ((1,0),(1,1),(0,0),(0,1))):
        mm(i,t)
        for p in gaps[q]: E(p)
for var in (0,1):
    if var: LBL('L_A_GV')
    VQ[:]=VQ0
    for st in range(24):
        if OPT.get('hold') and st==0:
            E(f's_cmp_eq_u32 s{sWave}, 0\n s_cbranch_scc1 L_A_NH{var}'); tag_wait(T_H,1,2,sleep=2); LBL(f'L_A_NH{var}')
        if OPT.get('hold') and var==0 and st==int(OPT.get('hold')):
            E(f's_cmp_eq_u32 s{sWave}, 0\n s_cbranch_scc0 L_A_NH2'); tag_set(T_H,None,2); E('s_waitcnt lgkmcnt(0)'); LBL('L_A_NH2')
        if st==2: E('s_waitcnt lgkmcnt(0)'); tag_wait(T_X,4,2)
        if st==14: E('s_waitcnt lgkmcnt(0)'); tag_wait(T_X+16,4,2)
        if st==PLK and var==1: tag_set(T_PL,None,2); E('s_waitcnt lgkmcnt(0)')
        gstep(var,st,False)
    stamp('A',2,'step 24')
    if var==0: E(f's_cmp_eq_u32 s{sWave}, 0\n s_cbranch_scc1 L_A_G0')
    tag_wait(T_FL,1,2,once=f'L_A_GK{var}')
    if var==0: LBL('L_A_G0')
    V1=list(VQ)
    for st in range(24,32): gstep(var,st,False)
    if var==0: E(f's_cmp_eq_u32 s{sWave}, 0\n s_cbranch_scc1 L_A_GE0')
    tag_wait(T_FL,1,2)
    for p in range(8): kvpiece(p)
    E(f's_branch L_A_GE{var}')
    LBL(f'L_A_GK{var}')
    VQ[:]=V1
    for st in range(24,32): gstep(var,st,True)
    LBL(f'L_A_GE{var}')
    stamp('A',1,'proj loop done'); cstamp('A',11,'pl')
    E(f's_lshl_b32 s{sT+4}, s{sHg}, 8\n s_lshl_b32 s{sT+5}, s{sPb}, 1\n s_add_u32 s{sT+4}, s{sT+4}, s{sT+5}\n s_lshl_b32 s{sT+4}, s{sT+4}, 11\n s_add_u32 s{sT+4}, s{sT+4}, {hex(WS_KVB)}')
    if var==0:
        E(f's_cmp_eq_u32 s{sWave}, 2\n s_cbranch_scc1 L_A_EK')
        C('q (A / B): scale, pack, hand over through LDS')
        E(f's_cmp_eq_u32 s{sWave}, 0\n s_cbranch_scc1 L_A_Q0')
        tag_wait(T_G,1,2)
        LBL('L_A_Q0')
        E(f's_lshl_b32 s{sT+1}, s{sWave}, 13\n s_add_u32 s{sT+1}, s{sT+1}, {L_QA}\n v_add_u32 v3, s{sT+1}, v6\n s_mov_b32 s{sT+2}, {hex(CSCALE)}\n s_mov_b32 s{sT+3}, {hex(CSCALE)}\n s_lshl_b32 s{sT+1}, s{sWave}, 2\n s_add_u32 s{sT+1}, s{sT+1}, {T_Q1}\n v_mov_b32 v4, s{sT+1}\n v_mov_b32 v5, 1')
        for i in (1,0):
            for t in range(2):
                d=PAC[2*i+t]
                for r in range(0,16,2): E(f'v_pk_mul_f32 {vr(d+r,2)}, {vr(d+r,2)}, {sr(sT+2,2)}')
                for r in range(8): cvt(d+r,d+2*r,d+2*r+1)
                for hh in range(2): E(f'ds_write_b128 v3, {vr(d+4*hh,4)} offset:{(2*i+hh)*2048+1024*t}')
            if i==1: E(f's_mov_b64 exec, 1\n ds_write_b32 v4, v5\n s_mov_b64 exec, -1')
        E('s_waitcnt vmcnt(0) lgkmcnt(0)')
        tag_set(T_G,sWave,2)
        E('s_branch L_A_B8')
        LBL('L_A_EK')
        E('s_waitcnt vmcnt(0)')
        tag_set(T_G,sWave,2)
        for i in range(2):
            for t in range(2):
                d=PAC[2*i+t]
                for r in range(8): cvt(d+r,d+2*r,d+2*r+1)
                for hh in range(2): E(f's_add_u32 s{sT+5}, s{sT+4}, {(2*i+hh)*131072}\n buffer_store_dwordx4 {vr(d+4*hh,4)}, v6, {sr(sWS)}, s{sT+5} offen offset:{2048*t} sc1')
        E('s_branch L_A_B8')
    else:
        E('s_waitcnt vmcnt(0)')
        tag_set(T_G,sWave,2)
        E('v_bfe_u32 v3, v0, 4, 1\n v_lshl_add_u32 v3, v3, 17, v7')
        for i in range(2):
            for t in range(2):
                d=PAC[2*i+t]
                for r in range(8): cvt(d+r,d+2*r,d+2*r+1)
                E('s_nop 1')
                for gq in range(2): E(f'v_permlane32_swap_b32 v{d+4*gq}, v{d+4*gq+2}\n v_permlane32_swap_b32 v{d+4*gq+1}, v{d+4*gq+3}')
                E(f's_add_u32 s{sT+5}, s{sT+4}, {i*2*131072}')
                for gq in range(2): E(f'buffer_store_dwordx4 {vr(d+4*gq,4)}, v3, {sr(sWS)}, s{sT+5} offen offset:{2048*t+1024+512*gq} sc1')
LBL('L_A_B8')
E('s_setprio 0')
E(f's_lshr_b32 s{sT+1}, s{sWave}, 2\n s_lshl_b32 s{sT+1}, s{sT+1}, 1\n s_and_b32 s{sT+2}, s{sWave}, 1\n s_add_u32 s{sT+1}, s{sT+1}, s{sT+2}\n s_lshl_b32 s{sT+1}, s{sT+1}, 11\n s_bfe_u32 s{sT+2}, s{sWave}, 0x10001\n s_lshl_b32 s{sT+2}, s{sT+2}, 10\n s_add_u32 s{sT+1}, s{sT+1}, s{sT+2}\n s_add_u32 s{sT+1}, s{sT+1}, {L_QA}\n v_add_u32 v2, s{sT+1}, v6\n v_xor_b32 v3, 0x800, v2')

def kvoff(j): return (j%16)*4096
def ldk(j): E(f'ds_read_b128 {vr(AK+4*(j&1),4)}, v{AKA} offset:{kvoff(j)}')
def ldv(j): E(f's_mov_b64 exec, {sr(sVM,2)}\n ds_read_b128 {vr(AV+8*(j&1),4)}, v{AVA} offset:{kvoff(j)+1024}\n ds_read_b128 {vr(AV+8*(j&1)+4,4)}, v{AVA} offset:{kvoff(j)+1536}\n s_mov_b64 exec, -1')
AK0=120; AV0=121; AEX=122; AG=126
E(f'v_add_u32 v{AK0}, {L_ST}, v{AKA}\n v_add_u32 v{AV0}, {L_ST}, v{AVA}')
E(f's_mul_i32 s{sT+1}, s{sWave}, 2304\n s_add_u32 s{sT+1}, s{sT+1}, {L_EX}\n v_add_u32 v{AEX}, s{sT+1}, v6\n v_add_u32 v{AEX+1}, s{sT+1}, v11')
E(f's_xor_b32 s{sT+2}, s{sWave}, 1\n s_mul_i32 s{sT+2}, s{sT+2}, 2304\n s_add_u32 s{sT+2}, s{sT+2}, {L_EX}\n v_add_u32 v{AEX+2}, s{sT+2}, v6\n v_add_u32 v{AEX+3}, s{sT+2}, v11')
E(f's_bfe_u32 s{sT+1}, s{sWave}, 0x10001\n s_lshl_b32 s{sT+2}, s{sPb}, 1\n s_add_u32 s{sT+1}, s{sT+1}, s{sT+2}\n s_lshl_b32 s{sT+1}, s{sT+1}, 7\n s_add_u32 s{sT+1}, s{sT+1}, {hex(WS_G)}\n v_and_b32 v127, 0x7c, v11')
tag_wait(T_K0,1,4,sleep=int(OPT.get('asl','2')))
E(f'buffer_load_dword v{AG}, v127, {sr(sWS)}, s{sT+1} offen sc1')
tag_get(4)
def kvoff(j):
    return (j%4)*4096+(0 if j<4 else KVPOS[j//4]-(65536 if j>=20 else 0))
def ldk(j): E(f'ds_read_b128 {vr(AK+4*(j&1),4)}, v{AK0 if j<4 else AKA} offset:{kvoff(j)}')
def ldv(j): E(f's_mov_b64 exec, {sr(sVM,2)}\n ds_read_b128 {vr(AV+8*(j&1),4)}, v{AV0 if j<4 else AVA} offset:{kvoff(j)+1024}\n ds_read_b128 {vr(AV+8*(j&1)+4,4)}, v{AV0 if j<4 else AVA} offset:{kvoff(j)+1536}\n s_mov_b64 exec, -1')
ldk(0); ldv(0); ldk(1)
E(f's_cmp_lt_u32 s{sWave}, 4\n s_cbranch_scc1 L_A_WL')
tag_wait(T_Q1,1,4,sleep=int(OPT.get('asl2','1')))
E('s_branch L_A_WD')
LBL('L_A_WL')
tag_wait(T_G,1,4)
LBL('L_A_WD')
stamp('A',4,'BQ'); cstamp('A',8,'BQ')
E(f'ds_read_b128 {vr(AQ0,4)}, v2\n ds_read_b128 {vr(AQ1,4)}, v3')
if PRIO in ('step','step4'): E('s_setprio 2')
E('s_waitcnt lgkmcnt(0)'); mfma(SA,AK,AQ0,'0')
lds_add(C_QR,1,vZ,2)
E('s_nop 7')
def pair_iter(j,ldk_,ldv_,first=False,last=0,extra=0):
    kc=AK+4*(j&1); kn=AK+4*((j+1)&1); vc=AV+8*(j&1); vp=AV+8*((j+1)&1)
    vexp(SA); vexp(SA+1)
    if not first: smf(OB,vp+4,SB+8,AIDX)
    for r in range(2,5): vexp(SA+r)
    mfma(SB,kc,AQ1,'0')
    for r in range(5,10): vexp(SA+r)
    E(f's_waitcnt lgkmcnt({(1 if last<2 else 0)+extra})')
    vexp(SA+10); smf(OA,vc,SA,AIDX)
    for r in range(11,16): vexp(SA+r)
    vexp(SB); vexp(SB+1); smf(OA,vc+4,SA+8,AIDX)
    if last<2: ldv_()
    for r in range(2,5): vexp(SB+r)
    if last<2:
        E('s_waitcnt lgkmcnt(2)'); mfma(SA,kn,AQ0,'0')
    if last<1: ldk_()
    for r in range(5,11): vexp(SB+r)
    smf(OB,vc,SB,AIDX)
    for r in range(11,16): vexp(SB+r)
def aflag(force,init=False):
    sk=uid('fl')
    E(f's_cmp_eq_u32 s{sT+5}, 0\n s_cbranch_scc0 {sk}')
    if not force: E(f's_getreg_b32 s{sT}, hwreg(HW_REG_IB_STS, 0, 4)\n s_cmp_eq_u32 s{sT}, 0\n s_cbranch_scc0 {sk}')
    E(f's_waitcnt vmcnt(0)\n s_mov_b32 s{sT+5}, 1'); flag_store(sT+6,2); LBL(sk)
if ROLL:
    AKN=120; AVN=121; sC=sT+4
    def rk(j):
        a_=AKA if j<4 else AKN
        return lambda: E(f'ds_read_b128 {vr(AK+4*(j&1),4)}, v{a_} offset:{(j%4)*4096}')
    def rv(j):
        a_=AVA if j<4 else AVN
        return lambda: E(f's_mov_b64 exec, {sr(sVM,2)}\n ds_read_b128 {vr(AV+8*(j&1),4)}, v{a_} offset:{(j%4)*4096+1024}\n ds_read_b128 {vr(AV+8*(j&1)+4,4)}, v{a_} offset:{(j%4)*4096+1536}\n s_mov_b64 exec, -1')
    for r in range(8,16): E(f'v_mov_b32 v{SB+r}, 0')
    E(f'v_add_u32 v{AKN}, 0x8000, v{AKA}\n v_add_u32 v{AVN}, 0x8000, v{AVA}\n v_add_u32 v{AKA}, 0x4000, v{AKA}\n v_add_u32 v{AVA}, 0x4000, v{AVA}\n s_mov_b32 s{sC}, 0\n s_mov_b32 s{sT+5}, 0')
    L.append('.p2align 6')
    LBL('L_A_LOOP')
    pair_iter(0,rk(2),rv(1)); pair_iter(1,rk(3),rv(2))
    E(f's_cmp_gt_u32 s{sC}, 6\n s_cbranch_scc1 L_A_LAST\n s_bitcmp1_b32 0x5f, s{sC}\n s_cbranch_scc1 L_A_RARE')
    LBL('L_A_RBACK')
    pair_iter(2,rk(4),rv(3)); pair_iter(3,rk(5),rv(4))
    E(f's_add_u32 s{sC}, s{sC}, 1\n s_mov_b32 s{sT+1}, 0x4000\n s_cmp_eq_u32 s{sC}, 2\n s_cselect_b32 s{sT+1}, {hex((-49152)&0xffffffff)}, s{sT+1}\n s_cmp_eq_u32 s{sC}, 3\n s_cselect_b32 s{sT+1}, {hex((-65536)&0xffffffff)}, s{sT+1}')
    E(f'v_mov_b32 v{AKA}, v{AKN}\n v_mov_b32 v{AVA}, v{AVN}\n v_add_u32 v{AKN}, s{sT+1}, v{AKN}\n v_add_u32 v{AVN}, s{sT+1}, v{AVN}\n s_branch L_A_LOOP')
    LBL('L_A_RARE')
    E(f's_waitcnt lgkmcnt(0)\n s_cmp_gt_u32 s{sC}, 3\n s_cbranch_scc1 L_A_R4')
    E(f's_cmp_eq_u32 s{sC}, 0\n s_cbranch_scc0 L_A_R1'); lds_spin(C_K1,None,4,vZ,2,sleep=0)
    LBL('L_A_R1')
    E(f's_cmp_eq_u32 s{sC}, 2\n s_cbranch_scc0 L_A_R2'); lds_spin(C_K2,None,4,vZ,2,sleep=1)
    LBL('L_A_R2')
    E(f's_cmp_eq_u32 s{sC}, 3\n s_cbranch_scc1 L_A_R3'); aflag(False); E('s_branch L_A_RBACK')
    LBL('L_A_R3'); aflag(True); E('s_branch L_A_RBACK')
    LBL('L_A_R4')
    E(f's_cmp_eq_u32 s{sC}, 4\n s_cbranch_scc0 L_A_R6'); lds_add(C_MID,1,vZ,2); E('s_waitcnt lgkmcnt(0)\n s_branch L_A_RBACK')
    LBL('L_A_R6'); lds_spin(C_MID,None,8,vZ,2,sleep=1); E('s_branch L_A_RBACK')
    LBL('L_A_LAST')
    pair_iter(2,None,rv(3),last=1); pair_iter(3,None,None,last=2)
else:
    E(f's_and_b32 s{sT+5}, s{sWave}, 6\n s_cmp_eq_u32 s{sT+5}, 2\n s_cselect_b32 s{sT+5}, 0, 1')
    for j in range(32):
        if j in (2,6,10): E('s_waitcnt lgkmcnt(0)'); tag_wait(T_G+4*{2:2,6:3,10:1}[j],1,2)
        if j in (1,2,3,5): aflag(j==5)
        if PRIO=='step' and j in (11,22): E(f's_setprio {1 if j==11 else 0}')
        if PRIO=='step4' and j in (6,16): E(f's_setprio {1 if j==6 else 0}')
        if OPT.get('jst') and j in (2,4,8,16,24): E('s_waitcnt lgkmcnt(0)'); cstamp('A',{2:1,4:2,8:3,16:7,24:10}[j],f'J{j}')
        if j==14: E('s_waitcnt lgkmcnt(0)'); lds_spin(C_K2,None,4,vZ,2,sleep=1)
        if j==20: lds_add(C_MID,1,vZ,2)
        if j==28: E('s_waitcnt lgkmcnt(0)'); lds_spin(C_SN,None,4,vZ,2,sleep=1); lds_spin(C_MID,None,8,vZ,2,sleep=1)
        def lv(j=j):
            if j==19: E(f'v_add_u32 v{AVA}, 0x10000, v{AVA}')
            ldv(j+1)
        def lk(j=j):
            if j==18: E(f'v_add_u32 v{AKA}, 0x10000, v{AKA}')
            ldk(j+2)
        pair_iter(j,lk,lv,first=(j==0),last=(2 if j==31 else 1 if j==30 else 0),extra=(1 if j in (0,20) else 0))
E('s_nop 1'); smf(OB,AV+8+4,SB+8,AIDX)
stamp('A',5,'A loop done'); cstamp('A',9,'loop done')
C('---- pair exchange: send slot B, finish slot A')
E(f's_nop 12\n ds_write_b128 v{AEX}, {vr(OB,4)}\n ds_write_b128 v{AEX}, {vr(OB+4,4)} offset:1024\n ds_write_b32 v{AEX+1}, v{OB+8} offset:2048')
E('s_waitcnt lgkmcnt(0)\n s_barrier')
E(f'ds_read_b128 {vr(SA,4)}, v{AEX+2}\n ds_read_b128 {vr(SA+4,4)}, v{AEX+2} offset:1024\n ds_read_b32 v{SA+8}, v{AEX+3} offset:2048\n ds_read_b32 v{SA+9}, v{vZ} offset:{C_LOC-L_ST}\n s_waitcnt lgkmcnt(0)\n v_readfirstlane_b32 s{sT+9}, v{SA+9}')
for r in range(9): E(f'v_add_f32 v{OA+r}, v{OA+r}, v{SA+r}')
E('s_waitcnt vmcnt(0)')
finalize(OA,AK,2,'L_FB_A','L_FB_A_BACK',126)
E(f's_cmp_eq_u32 s{sT+9}, 0\n s_cbranch_scc1 L_A_FAR\n buffer_store_dwordx4 {vr(AK,4)}, v6, {sr(sWS)}, s{sOA} offen\n s_branch L_A_STD')
LBL('L_A_FAR')
E(f'buffer_store_dwordx4 {vr(AK,4)}, v6, {sr(sWS)}, s{sOA} offen sc1')
LBL('L_A_STD')
def setupA(): E(f's_mov_b32 s{sT+2}, {hex(WS_KVA)}\n s_mov_b32 s{sT+3}, 64')
fallback('L_FB_A','L_FB_A_BACK',AQ0,OA,SA,AK,AV,AIDX,3,6,7,None,setupA)
stamp('A',6,'oA published')
stamp_flush(12,'A')
LBL('L_END')
E('s_endpgm')
L.append('L_CODE_END:')
L.extend(TAIL)
L.append('    s_endpgm\n.fill 1200, 4, 0xbf810000')

hdr=open('cdna_kernels/%s.s.ref'%NAME).read().split('; Override launch')[0]
txt=hdr
txt+=f'; @launch grid=(256,1,1) block=(768,1,1) lds={LDS_TOTAL}\n'
for n in ('WS_KVA','WS_KVB','WS_OA','WS_OB','WS_STAMP','NSTAMP'): txt+=f'; CONST {n} = {hex(globals()[n])}\n'
for r,i,n in STN: txt+=f'; STAMPNAME {r} {i} {n}\n'
txt+=f'''.amdgcn_target "amdgcn-amd-amdhsa--gfx950"
.text
.globl {NAME}_kernel
.p2align 8
.type {NAME}_kernel,@function
{NAME}_kernel:
'''+'\n'.join(L)+f'''
.section .rodata,"a"
.p2align 6
.amdhsa_kernel {NAME}_kernel
  .amdhsa_next_free_vgpr 168
  .amdhsa_next_free_sgpr 102
  .amdhsa_accum_offset 168
  .amdhsa_group_segment_fixed_size 0
  .amdhsa_kernarg_size 96
  .amdhsa_user_sgpr_count 2
  .amdhsa_user_sgpr_kernarg_segment_ptr 1
  .amdhsa_system_sgpr_workgroup_id_x 1
.end_amdhsa_kernel
'''
open(OUT,'w').write(txt)
print('wrote',OUT,len(L),'lines')
```

```python
import sys, math, struct
NAME='gated_mix__grouped_kv_mqa__sliding_block__prompt'
DIAG = '--diag' in sys.argv
OUT = [a for a in sys.argv[1:] if not a.startswith('--')]
OUT = OUT[0] if OUT else 'cdna_kernels/%s.s'%NAME
OPT=dict(a.lstrip('-').split('=') for a in sys.argv[1:] if a.startswith('--') and '=' in a)
MAP=OPT.get('map','b'); ROT=OPT.get('rot','full'); PRIO=OPT.get('prio','step'); FLAG_IT=int(OPT.get('flagit','1')); PK=int(OPT.get('pk','7')); FORCE_K=int(OPT.get('forcek','7')); SENTK=int(OPT.get('sentk','14')); DENSE=OPT.get('dense','0')=='1'; ROLL=OPT.get('roll','0')=='1'; WT=OPT.get('wtouch','0')=='1'; KVK=int(OPT.get('kvk','13'))
def f2u(f): return struct.unpack('<I',struct.pack('<f',f))[0]

WS_EPOCH=0x0
WS_FKVA=0x1000
WS_FKVB=0x4000
WS_FOB =0xC000
WS_FOA =0x14000
WS_G   =0x1C000
WS_KVA =0x20000
WS_QB  =0x40000
WS_KVB =0x240000
WS_OA  =0x640000
WS_OB  =0x840000
WS_STAMP=0xA40000
NSTAMP=16
L_WQ=0; L_X=65536; L_ST=131072; L_CTL=L_ST+30720
L_GW=L_CTL; L_G=L_CTL+1024; L_C=L_CTL+1024+256
C_X=L_C+0
C_Q=L_C+4
C_K0=L_C+8; C_K1=L_C+12; C_K2=L_C+16; C_BP=L_C+20; C_MID=L_C+24; C_WO=L_C+28; C_WD=L_C+32; C_QR=L_C+36; C_SN=L_C+40; C_LOC=L_C+44; T_PT=L_C+256; T_X=L_C+272; T_PL=L_C+304; T_FL=L_C+308; T_G=L_C+320; T_X0=L_C+336; T_K0=L_C+352; T_Q1=L_C+356; T_H=L_C+368; T_TAG=L_C+372; C_PR=L_C+384; T_PR=L_C+400
L_EX=L_ST
LDS_TOTAL=163840
SPIN_LIMIT=400000
CSCALE=f2u(0.25*math.log2(math.e))
NEGBIG=f2u(-1e9)
L_LO=f2u(2.0**-24); L_HI=f2u(2.0**60)

sX=28; sWQ=32; sWKV=36; sWB=40; sWOA=44; sWOB=48; sG=52; sOUT=56; sWS=60; sDBG=64
sWave=68; sPb=69; sHg=70; sTag=71
sT=72
sCnt=84; sB=85
sXcc=65
sVM=86
sST=88
vZ=1
L=[]
def E(s):
    for ln in s.split('\n'):
        if ln.strip(): L.append('    '+ln.strip())
def LBL(s): L.append(s+':')
def C(s): L.append('    ; '+s)
_uid=[0]
def uid(p):
    _uid[0]+=1; return f'{p}_{_uid[0]}'
def vr(a,n): return f'v[{a}:{a+n-1}]'
def sr(a,n=4): return f's[{a}:{a+n-1}]'
def srd(dst,ptr,nbytes):
    E(f's_mov_b32 s{dst}, s{ptr}\n s_mov_b32 s{dst+1}, s{ptr+1}\n s_mov_b32 s{dst+2}, {hex(nbytes)}\n s_mov_b32 s{dst+3}, 0x20000')
STN=[]
def stamp(role,i,name):
    if OPT.get('acc') and role=='B' and i==10: return
    if OPT.get('jst') and role=='A' and i in (1,2,3,7): return
    if OPT.get('bst') and role=='B' and i in (6,7,8,9) and not name.startswith('arrive'): return
    if not DIAG: return
    STN.append((role,i,name))
    E(f's_memrealtime s[100:101]\n s_waitcnt lgkmcnt(0)\n s_mov_b32 s{sST+i}, s100')
ECHO=OPT.get('echo')
def echo_mark(name):
    if ECHO==name or name=='start' and ECHO:
        r=98 if name=='start' else 99
        E(f's_memrealtime s[100:101]\n s_waitcnt lgkmcnt(0)\n s_mov_b32 s{r}, s100')
def echo_end():
    if not ECHO: return
    E('s_waitcnt vmcnt(0)'); echo_mark('end')
    E('s_memrealtime s[100:101]\n s_waitcnt lgkmcnt(0)\n s_sub_u32 s99, s99, s98\n s_add_u32 s99, s99, s100')
    LBL('L_ECHO')
    E('s_memrealtime s[100:101]\n s_waitcnt lgkmcnt(0)\n s_sub_u32 s100, s100, s99\n s_cmp_lt_i32 s100, 0\n s_cbranch_scc1 L_ECHO')
def cstamp(role,i,name):
    if OPT.get('jst') and i in (10,11) and not name.startswith('J'): return
    if not DIAG: return
    STN.append((role,i,'CYC '+name))
    E(f's_memtime s[100:101]\n s_waitcnt lgkmcnt(0)\n s_mov_b32 s{sST+i}, s100')
def tacc(role,i,name,code):
    if not (DIAG and OPT.get('acc')): E(code); return
    if (role,i,'ACC '+name) not in STN: STN.append((role,i,'ACC '+name))
    E(f's_memtime s[100:101]\n s_waitcnt lgkmcnt(0)\n s_sub_u32 s{sST+i}, s{sST+i}, s100')
    E(code)
    E(f's_memtime s[100:101]\n s_waitcnt lgkmcnt(0)\n s_add_u32 s{sST+i}, s{sST+i}, s100')
def stamp_flush(nmax,role='B'):
    if not DIAG: return
    if OPT.get('dbg'):
        m={'A':[(0,1),(2,2),(7,3),(3,4),(1,5),(4,6),(5,7),(6,8)],'B':[(4,9),(6,10),(7,11),(9,12),(10,13),(11,14)]}[role]
        sk=uid('nd')
        srd(sDBG,24,256)
        E(f's_bfe_u32 s{sT}, s2, 0x30003\n s_cmp_eq_u32 s{sT}, 0\n s_cbranch_scc0 {sk}\n v_mov_b32 v2, 0\n s_not_b32 s{sT}, s{sST}\n v_writelane_b32 v2, s{sT}, 0')
        for i,sl in m: E(f'v_writelane_b32 v2, s{sST+i}, {sl}')
        E(f'v_lshlrev_b32 v3, 2, v0\n s_mov_b64 exec, 0xffff\n buffer_atomic_umax v2, v3, {sr(sDBG)}, 0 offen sc1\n s_mov_b64 exec, -1')
        LBL(sk)
        return
    if OPT.get('hwid'): E(f's_getreg_b32 s{sST+11}, hwreg(HW_REG_HW_ID)\n s_getreg_b32 s{sST+10}, hwreg(HW_REG_XCC_ID)')
    E('v_mov_b32 v2, 0')
    for i in range(nmax): E(f'v_writelane_b32 v2, s{sST+i}, {i}')
    E(f's_mul_i32 s{sT}, s2, 12\n s_add_u32 s{sT}, s{sT}, s{sWave}\n s_lshl_b32 s{sT}, s{sT}, 6\n s_add_u32 s{sT}, s{sT}, {hex(WS_STAMP)}')
    E(f'v_lshlrev_b32 v3, 2, v0\n s_mov_b64 exec, 0xffff\n buffer_store_dword v2, v3, {sr(sWS)}, s{sT} offen\n s_mov_b64 exec, -1')

def lds_add(off,val,vz,vt):
    E(f'v_mov_b32 v{vt}, {val}\n s_mov_b64 exec, 1\n ds_add_u32 v{vz}, v{vt} offset:{off-L_ST}\n s_mov_b64 exec, -1')
def lds_spin(off,mask,val,vz,vt,sleep=1):
    a=uid('spin'); d=uid('spind')
    E(f's_mov_b32 s{sCnt}, {SPIN_LIMIT}')
    LBL(a)
    E(f'ds_read_b32 v{vt}, v{vz} offset:{off-L_ST}\n s_waitcnt lgkmcnt(0)\n v_readfirstlane_b32 s{sT}, v{vt}')
    if mask is not None: E(f's_and_b32 s{sT}, s{sT}, {hex(mask)}')
    E(f's_cmp_eq_u32 s{sT}, {hex(val)}\n s_cbranch_scc1 {d}\n s_sub_u32 s{sCnt}, s{sCnt}, 1\n s_cbranch_scc1 {d}')
    if sleep: E(f's_sleep {sleep}')
    E(f's_branch {a}')
    LBL(d)
def tag_set(off,sidx,vt):
    if sidx is None: E(f'v_mov_b32 v{vt}, {off}')
    else: E(f's_lshl_b32 s{sT}, s{sidx}, 2\n s_add_u32 s{sT}, s{sT}, {off}\n v_mov_b32 v{vt}, s{sT}')
    E(f'v_mov_b32 v{vt+1}, 1\n s_mov_b64 exec, 1\n ds_write_b32 v{vt}, v{vt+1}\n s_mov_b64 exec, -1')
def tag_wait(off,n,vt,sleep=0,once=None):
    a=uid('tw'); d=uid('twd')
    E(f'v_and_b32 v{vt}, {n-1}, v0\n v_lshlrev_b32 v{vt}, 2, v{vt}\n v_add_u32 v{vt}, {off}, v{vt}')
    if once:
        E(f'ds_read_b32 v{vt+1}, v{vt}\n s_waitcnt lgkmcnt(0)\n v_cmp_ne_u32 vcc, 1, v{vt+1}\n s_cbranch_vccz {once}')
        return
    E(f's_mov_b32 s{sCnt}, {SPIN_LIMIT}')
    LBL(a)
    E(f'ds_read_b32 v{vt+1}, v{vt}\n s_waitcnt lgkmcnt(0)\n v_cmp_ne_u32 vcc, 1, v{vt+1}\n s_cbranch_vccz {d}\n s_sub_u32 s{sCnt}, s{sCnt}, 1\n s_cbranch_scc1 {d}')
    if sleep: E(f's_sleep {sleep}')
    E(f's_branch {a}')
    LBL(d)
def tag_get(vt):
    E(f'ds_read_b32 v{vt}, v{vZ} offset:{T_TAG-L_ST}\n s_waitcnt lgkmcnt(0)\n v_readfirstlane_b32 s{sTag}, v{vt}')
def poll(vaddr,n,vt,sleep=1):
    a=uid('poll'); d=uid('polld')
    E(f's_mov_b32 s{sCnt}, {SPIN_LIMIT}')
    LBL(a)
    op={1:'buffer_load_dword',2:'buffer_load_dwordx2',3:'buffer_load_dwordx3',4:'buffer_load_dwordx4'}[n]
    E(f'{op} {vr(vt,n) if n>1 else "v%d"%vt}, v{vaddr}, {sr(sWS)}, 0 offen sc1\n s_waitcnt vmcnt(0)')
    for i in range(n): E(f'v_xor_b32 v{vt+i}, s{sTag}, v{vt+i}')
    if n==2: E(f'v_or_b32 v{vt}, v{vt}, v{vt+1}')
    if n>=3: E(f'v_or3_b32 v{vt}, v{vt}, v{vt+1}, v{vt+2}')
    if n==4: E(f'v_or_b32 v{vt}, v{vt}, v{vt+3}')
    E(f'v_cmp_ne_u32 vcc, 0, v{vt}\n s_cbranch_vccz {d}\n s_sub_u32 s{sCnt}, s{sCnt}, 1\n s_cbranch_scc1 {d}')
    if sleep: E(f's_sleep {sleep}')
    E(f's_branch {a}')
    LBL(d)
def flag_store(soff_reg,vt):
    E(f'v_mov_b32 v{vt}, s{sTag}\n s_mov_b64 exec, 1\n buffer_store_dword v{vt}, off, {sr(sWS)}, s{soff_reg} sc1\n s_mov_b64 exec, -1')
def mfma(d,a,b,c=None):
    cc = vr(d,16) if c is None else (c if isinstance(c,str) else vr(c,16))
    E(f'v_mfma_f32_32x32x16_bf16 {vr(d,16)}, {vr(a,4)}, {vr(b,4)}, {cc}')
def smf(o,v,s,idx): E(f'v_smfmac_f32_32x32x32_bf16 {vr(o,16)}, {vr(v,4)}, {vr(s,8)}, v{idx}')
def vexp(r): E(f'v_exp_f32 v{r}, v{r}')
def cvt(d,a,b): E(f'v_cvt_pk_bf16_f32 v{d}, v{a}, v{b}')
def set_vpad(regs,vt):
    E(f'v_and_b32 v{vt}, 27, v0\n v_cmp_eq_u32 vcc, 16, v{vt}\n v_mov_b32 v{vt}, 0x3f803f80\n s_nop 0\n v_cndmask_b32 v{regs[0]}, 0, v{vt}, vcc')
    for r in regs[1:]: E(f'v_mov_b32 v{r}, v{regs[0]}')
def xaddr(base,t_imm,vt):
    E(f'v_and_b32 v{vt}, 15, v0\n v_lshrrev_b32 v{base}, 5, v0\n v_xor_b32 v{base}, v{base}, v{vt}\n v_lshlrev_b32 v{base}, 4, v{base}')
    E(f'v_and_b32 v{vt}, 31, v0\n v_lshl_add_u32 v{base}, v{vt}, 10, v{base}\n v_add_u32 v{base}, {t_imm}, v{base}')
    for b in range(1,8): E(f'v_xor_b32 v{base+b}, {b<<5}, v{base}')
def traddr128(dst,vt,vt2,rowsel,colbase):
    E(f'v_lshrrev_b32 v{vt}, 5, v0\n v_lshlrev_b32 v{vt}, {rowsel}, v{vt}\n v_bfe_u32 v{vt2}, v0, 2, 2\n v_add_u32 v{vt}, v{vt}, v{vt2}\n v_lshlrev_b32 v{dst}, 7, v{vt}')
    E(f'v_bfe_u32 v{vt}, v0, 4, 1\n v_lshlrev_b32 v{vt}, 1, v{vt}\n v_bfe_u32 v{vt2}, v0, 1, 1\n v_add3_u32 v{vt}, v{vt}, v{vt2}, {colbase}')
    E(f'v_bfe_u32 v{vt2}, v0, 3, 1\n v_lshlrev_b32 v{vt2}, 2, v{vt2}\n v_xor_b32 v{vt}, v{vt}, v{vt2}\n v_lshl_add_u32 v{dst}, v{vt}, 4, v{dst}')
    E(f'v_and_b32 v{vt}, 1, v0\n v_lshl_add_u32 v{dst}, v{vt}, 3, v{dst}')
def dma128_voff(dst,vt,vt2,rowstride_sreg_or_shift,colbytes):
    E(f'v_lshrrev_b32 v{vt}, 3, v0')
    if isinstance(rowstride_sreg_or_shift,int): E(f'v_lshlrev_b32 v{dst}, {rowstride_sreg_or_shift}, v{vt}')
    else: E(f'v_mul_u32_u24 v{dst}, {rowstride_sreg_or_shift}, v{vt}')
    E(f'v_bfe_u32 v{vt}, v0, 4, 1\n v_lshlrev_b32 v{vt}, 2, v{vt}\n v_and_b32 v{vt2}, 7, v0\n v_xor_b32 v{vt}, v{vt}, v{vt2}\n v_lshl_add_u32 v{dst}, v{vt}, 4, v{dst}\n v_add_u32 v{dst}, {colbytes}, v{dst}')
def finalize(O,dst,vt,lbl_fb,lbl_back,vg):
    E(f'v_add_f32 v{vt}, |v{O}|, |v{O+1}|')
    for r in range(2,8): E(f'v_add_f32 v{vt}, v{vt}, |v{O+r}|')
    E(f'v_mov_b32 v{vt+1}, 0x7f800000\n v_cmp_nlt_f32 {sr(sT,2)}, v{vt}, v{vt+1}')
    E(f'v_cmp_nle_f32 vcc, {hex(L_LO)}, v{O+8}\n s_or_b64 {sr(sT,2)}, {sr(sT,2)}, vcc')
    E(f'v_cmp_nge_f32 vcc, {hex(L_HI)}, v{O+8}\n s_or_b64 {sr(sT,2)}, {sr(sT,2)}, vcc\n s_cbranch_scc1 {lbl_fb}')
    LBL(lbl_back)
    E(f'v_rcp_f32 v{vt}, v{O+8}\n s_nop 0\n v_mul_f32 v{vt}, v{vt}, v{vg}')
    for r in range(0,8,2): E(f'v_pk_mul_f32 {vr(O+r,2)}, {vr(O+r,2)}, {vr(vt,2)} op_sel_hi:[1,0]')
    for r in range(4): cvt(dst+r,O+2*r,O+2*r+1)
    E(f'v_min_u32 v{dst}, -2, v{dst}')

TAIL=[]
RETRY=[]
def fallback(lbl,back,Q,O,S,K,V,IDX,vM,vK,vV,ntile,soff_setup,first_mask=None,last_mask=None,first_cond=None):
    global L
    save=L; L=[]
    LBL(lbl)
    soff_setup()
    E(f'v_mov_b32 v{vM}, 0xff800000')
    for p in (0,1):
        lp=uid('fbl')
        if p==1:
            E(f'v_mov_b32 v{S}, v{vM}\n s_nop 1\n v_permlane32_swap_b32 v{S}, v{vM}\n s_nop 1\n v_max_f32 v{vM}, v{vM}, v{S}')
            for r in range(16): E(f'v_mov_b32 v{O+r}, 0')
        E(f's_mov_b32 s{sT+5}, s{sT+2}\n s_mov_b32 s{sT+6}, 0')
        LBL(lp)
        E(f'buffer_load_dwordx4 {vr(K,4)}, v{vK}, {sr(sWS)}, s{sT+5} offen sc1')
        if p==1:
            E(f's_mov_b64 exec, {sr(sVM,2)}\n buffer_load_dwordx4 {vr(V,4)}, v{vV}, {sr(sWS)}, s{sT+5} offen offset:1024 sc1\n buffer_load_dwordx4 {vr(V+4,4)}, v{vV}, {sr(sWS)}, s{sT+5} offen offset:1536 sc1\n s_mov_b64 exec, -1')
        E('s_waitcnt vmcnt(0)')
        if first_mask is None:
            mfma(S,K,Q,'0')
        else:
            a=uid('fbm'); b=uid('fbm'); j=uid('fbm')
            E(f's_add_u32 s{sT+7}, s{sT+6}, 1\n s_cmp_eq_u32 s{sT+7}, s{sT+3}\n s_cbranch_scc1 {a}')
            E(f's_cmp_lt_u32 s{sT+6}, s{sT+4}\n s_cbranch_scc1 {b}')
            mfma(S,K,Q,'0'); E(f's_branch {j}')
            LBL(a); mfma(S,K,Q,last_mask); E(f's_branch {j}')
            LBL(b); mfma(S,K,Q,first_mask)
            LBL(j)
        E('s_nop 15')
        if p==0:
            for r in range(0,16,2): E(f'v_max3_f32 v{vM}, v{S+r}, v{S+r+1}, v{vM}')
        else:
            for r in range(16): E(f'v_sub_f32 v{S+r}, v{S+r}, v{vM}')
            for r in range(16): vexp(S+r)
            E('s_nop 1'); smf(O,V,S,IDX); smf(O,V+4,S+8,IDX)
        E(f's_add_u32 s{sT+5}, s{sT+5}, 2048\n s_add_u32 s{sT+6}, s{sT+6}, 1\n s_cmp_lt_u32 s{sT+6}, s{sT+3}\n s_cbranch_scc1 {lp}')
    E(f's_nop 15\n s_branch {back}')
    TAIL.extend(L); L=save

E('s_cmp_ge_u32 s2, 256\n s_cbranch_scc1 L_END')
if ECHO=='karg': E('s_memrealtime s[100:101]\n s_waitcnt lgkmcnt(0)\n s_mov_b32 s97, s100')
E('s_load_dwordx16 s[4:19], s[0:1], 0\n s_load_dwordx8 s[20:27], s[0:1], 64')
E(f'v_lshrrev_b32 v1, 6, v0\n v_and_b32 v0, 63, v0\n v_readfirstlane_b32 s{sWave}, v1')
if MAP=='b':
    E(f's_and_b32 s{sT}, s2, 7\n s_lshr_b32 s{sT+1}, s2, 3\n s_and_b32 s{sT+2}, s{sT+1}, 3\n s_lshl_b32 s{sPb}, s{sT}, 2\n s_or_b32 s{sPb}, s{sPb}, s{sT+2}\n s_lshr_b32 s{sHg}, s{sT+1}, 2')
else:
    E(f's_bfe_u32 s{sPb}, s2, 0x20001\n s_lshl_b32 s{sPb}, s{sPb}, 3\n s_bfe_u32 s{sT}, s2, 0x30003\n s_or_b32 s{sPb}, s{sPb}, s{sT}\n s_and_b32 s{sHg}, s2, 1\n s_lshl_b32 s{sHg}, s{sHg}, 2\n s_lshr_b32 s{sT}, s2, 6\n s_or_b32 s{sHg}, s{sHg}, s{sT}')
E(f's_mov_b32 s{sVM}, 0xffff\n s_mov_b32 s{sVM+1}, 0xffff')
if DIAG:
    for i in range(12): E(f's_mov_b32 s{sST+i}, 0')
C('clear the LDS counters and flags while the kernel arguments arrive')
E(f'v_lshlrev_b32 v2, 3, v0\n v_add_u32 v2, {L_C}, v2\n v_mov_b32 v4, 0\n v_mov_b32 v5, 0\n ds_write_b64 v2, v[4:5]')
E('s_waitcnt lgkmcnt(0)\n s_barrier')
stamp('A',0,'start'); stamp('B',0,'start'); echo_mark('start')
if ECHO=='karg': E('s_sub_u32 s99, s98, s97\n s_mul_i32 s99, s99, 10\n s_add_u32 s99, s99, s98')
srd(sX,4,2048*1024); srd(sWS,26,0x10000000)
E(f's_cmp_lt_u32 s{sWave}, 8\n s_cbranch_scc1 L_A')


KVPOS=[L_ST,32768,49152,16384,0,65536,81920,98304]
L_PART=L_ST+24576
L_QA=0; L_QB=8192; L_WO=0; L_FX=65536
sOut=66; sOb=67; sPass=64
sRot=sT+11
def mktag(): E(f's_mul_i32 s{sTag}, s{sTag}, 0x9E3779B1\n s_add_u32 s{sTag}, s{sTag}, 0x7F4A7C15')
def mkrot():
    if MAP=='b': E(f's_and_b32 s{sRot}, s{sPb}, 3\n s_lshl_b32 s{sRot}, s{sRot}, 1\n s_add_u32 s{sRot}, s{sRot}, s{sHg}')
    else: E(f's_lshl_b32 s{sRot}, s{sHg}, 1\n s_add_u32 s{sRot}, s{sRot}, s{sPb}')
def touch(srd_,soff,n,vaddr,vd,sc1=False):
    for i in range(n):
        if i: E(f's_add_u32 s{soff}, s{soff}, 8192')
        E(f'buffer_load_dword v{vd}, v{vaddr}, {sr(srd_)}, s{soff} offen'+(' sc1' if sc1 else ''))
E(f's_setprio {2 if OPT.get("bp2") else 3}\n s_sub_u32 s{sB}, s{sWave}, 8')
if OPT.get('cpf','1')=='1':
    C('---- pull this WG\'s share of the kernel\'s own instructions into L2 (later instruction fetches then miss only the I-cache)')
    E(f's_cmp_eq_u32 s{sB}, 3\n s_cbranch_scc0 L_B_NCP\n s_getpc_b64 s[{sT}:{sT+1}]')
    LBL('L_B_PC')
    E(f's_lshr_b32 s{sT+2}, s2, 3\n s_mul_i32 s{sT+2}, s{sT+2}, (L_CODE_END-L_B_PC+4095)/4096*128\n s_add_u32 s{sT}, s{sT}, s{sT+2}\n s_addc_u32 s{sT+1}, s{sT+1}, 0')
    E(f'v_lshlrev_b32 v2, 7, v0\n v_mov_b32 v3, s{sT+1}\n v_add_co_u32 v2, vcc, s{sT}, v2\n s_nop 1\n v_addc_co_u32 v3, vcc, 0, v3, vcc\n s_lshl_b64 exec, 1, (L_CODE_END-L_B_PC+4095)/4096\n s_sub_u32 exec_lo, exec_lo, 1\n global_load_dword v19, v[2:3], off\n s_mov_b64 exec, -1')
    LBL('L_B_NCP')
C('---- x tile -> LDS as 8 blocks of [64 rows][64 k], block order rotated per WG ; wave b brings blocks b and b+4')
E('v_lshrrev_b32 v17, 3, v0\n v_lshlrev_b32 v17, 10, v17\n v_lshrrev_b32 v2, 4, v0\n v_and_b32 v3, 7, v0\n v_xor_b32 v2, v2, v3\n v_lshl_add_u32 v17, v2, 4, v17\n v_xor_b32 v18, 64, v17')
mkrot()
E(f's_lshl_b32 s{sT+7}, s{sPb}, 16\n s_lshl_b32 s{sT+6}, s{sB}, 13')
VQ=[]
def vwait(tag,extra=''):
    if tag not in VQ:
        if extra: E('s_waitcnt'+extra)
        return
    i=max(n for n,t in enumerate(VQ) if t==tag)
    n=len(VQ)-1-i; del VQ[:i+1]
    E(f's_waitcnt vmcnt({n})'+extra)
XD=OPT.get('xd','1')=='1'
def xblock(expr_add,ldsoff,rows):
    E(f's_add_u32 s{sT+1}, s{sRot}, {expr_add}\n s_and_b32 s{sT+1}, s{sT+1}, 7\n s_lshl_b32 s{sT+1}, s{sT+1}, 7\n s_add_u32 s{sT+1}, s{sT+1}, s{sT+7}')
if XD:
    E(f's_and_b32 s{sT+1}, s{sRot}, 7\n s_lshl_b32 s{sT+1}, s{sT+1}, 7\n s_add_u32 s{sT+1}, s{sT+1}, s{sT+7}\n s_lshl_b32 s{sT+2}, s{sB}, 14\n s_add_u32 s{sT+1}, s{sT+1}, s{sT+2}\n s_lshl_b32 s{sT+2}, s{sB}, 11\n s_add_u32 m0, s{sT+2}, 65536\n s_nop 0')
    E(f'buffer_load_dwordx4 v17, {sr(sX)}, s{sT+1} offen lds\n s_add_u32 m0, s{sT+2}, {65536+1024}\n s_add_u32 s{sT+1}, s{sT+1}, 8192\n buffer_load_dwordx4 v18, {sr(sX)}, s{sT+1} offen lds')
def xrest():
  for hb in range(2):
    sk=uid('xs')
    if XD and hb==0: E(f's_cmp_eq_u32 s{sB}, 0\n s_cbranch_scc1 {sk}')
    E(f's_add_u32 s{sT+1}, s{sRot}, s{sB}\n s_add_u32 s{sT+1}, s{sT+1}, {4*hb}\n s_and_b32 s{sT+1}, s{sT+1}, 7\n s_lshl_b32 s{sT+1}, s{sT+1}, 7\n s_add_u32 s{sT+1}, s{sT+1}, s{sT+7}')
    for n in range(8):
        E(f's_add_u32 m0, s{sT+6}, {65536+32768*hb+1024*n}')
        E(f's_add_u32 s{sT+1}, s{sT+1}, 8192' if n else 's_nop 0')
        E(f'buffer_load_dwordx4 v{17+(n&1)}, {sr(sX)}, s{sT+1} offen lds')
    if XD and hb==0: LBL(sk)
if not XD: xrest()
MU=128; MD=144; BQ=16; BK=24; BV=36; BS=64; BO=96; BIDX=60
C('---- constants for the later phases (idle time)')
E(f'v_mov_b32 v{vZ}, {L_ST}\n v_lshlrev_b32 v160, 4, v0\n v_lshlrev_b32 v163, 7, v0')
E('v_lshrrev_b32 v161, 5, v0\n v_lshlrev_b32 v161, 8, v161\n v_and_b32 v2, 15, v0\n v_lshl_add_u32 v161, v2, 4, v161')
srd(sWOA,12,512*1024); srd(sWOB,18,512*1024)
E(f'v_and_b32 v4, 31, v0\n v_lshrrev_b32 v5, 5, v0\n v_lshlrev_b32 v5, 2, v5\n v_sub_u32 v4, v4, v5\n s_mov_b32 s{sT}, {hex(NEGBIG)}')
for r in range(16):
    E(f'v_subrev_u32 v5, {8*(r//4)+r%4}, v4\n v_ashrrev_i32 v5, 31, v5\n v_and_b32 v{MD+r}, s{sT}, v5\n v_xor_b32 v{MU+r}, s{sT}, v{MD+r}')
set_vpad(list(range(BV,BV+24)),2); E(f'v_mov_b32 v{BIDX}, 0xdddddddd')
for r in range(32): E(f'v_mov_b32 v{BO+r}, 0')
E(f'v_min_u32 v2, 4, v0\n s_sub_i32 s{sT}, s{sPb}, 4\n v_add_u32 v2, s{sT}, v2\n v_max_i32 v2, 0, v2\n s_lshl_b32 s{sT}, s{sHg}, 5\n v_add_u32 v2, s{sT}, v2\n v_lshlrev_b32 v2, 7, v2\n v_add_u32 v162, {hex(WS_FKVB+8)}, v2')
E(f'v_and_b32 v2, 7, v0\n v_lshlrev_b32 v2, 5, v2\n v_add_u32 v2, s{sPb}, v2\n v_lshlrev_b32 v2, 7, v2\n v_add_u32 v166, {hex(WS_FKVB+16)}, v2')
sKh=sT+9; sTt=sT+10
E(f's_lshr_b32 s{sKh}, s{sB}, 1\n s_and_b32 s{sTt}, s{sB}, 1\n s_lshl_b32 s{sT+2}, s{sHg}, 7')
dma128_voff(10,2,3,10,f's{sT+2}')
E(f's_lshl_b32 s{sT+1}, s{sKh}, 2'); traddr128(11,2,3,2,f's{sT+1}')
E(f's_lshl_b32 s{sT+1}, s{sKh}, 15\n s_add_u32 s{sT+1}, s{sT+1}, {L_WO}\n v_add_u32 v11, s{sT+1}, v11\n v_xor_b32 v9, 64, v11')
E(f's_lshl_b32 s{sOut}, s{sPb}, 1\n s_add_u32 s{sOut}, s{sOut}, s{sTt}\n s_lshl_b32 s{sOut}, s{sOut}, 15\n s_lshl_b32 s{sT}, s{sKh}, 14\n s_add_u32 s{sOb}, s{sOut}, s{sT}\n s_add_u32 s{sOb}, s{sOb}, {hex(WS_OB)}')
E(f's_lshl_b32 s{sT}, s{sHg}, 7\n s_add_u32 s{sOut}, s{sOut}, s{sT}\n s_lshl_b32 s{sT}, s{sKh}, 6\n s_add_u32 s{sOut}, s{sOut}, s{sT}')
E('v_and_b32 v8, 31, v0\n v_lshlrev_b32 v167, 10, v8\n v_lshrrev_b32 v3, 5, v0\n v_lshl_add_u32 v167, v3, 4, v167\n v_lshlrev_b32 v8, 2, v8')
srd(sOUT,22,2048*1024)
E(f's_lshl_b32 s{sT}, s{sB}, 12\n s_add_u32 s{sT}, s{sT}, {L_FX}\n v_add_u32 v164, s{sT}, v160\n v_xor_b32 v165, 0x2000, v164\n s_mov_b32 s{sPass}, 0')
if XD:
    E('s_waitcnt vmcnt(0)'); tag_set(T_X0,sB,2); xrest()
E('s_waitcnt vmcnt(8)')
tag_set(T_X,sB,2)
stamp('B',1,'x landed'); echo_mark('xl')
E('s_waitcnt vmcnt(0)')
tag_set(T_X+16,sB,2)
tag_wait(T_G,4,2,sleep=4)
tag_get(2)
stamp('B',5,'BQ'); echo_mark('bq')
E('s_setprio 3')
def kvdma(c):
    E(f's_lshr_b32 s{sT+1}, s2, 3\n s_add_u32 s{sT+1}, s{sT+1}, {c}\n s_and_b32 s{sT+1}, s{sT+1}, 3\n s_lshl_b32 s{sT+1}, s{sT+1}, 2\n s_add_u32 s{sT+1}, s{sT+1}, s{sB}\n s_lshl_b32 s{sT+1}, s{sT+1}, 12')
    E(f's_lshl_b32 s{sT+2}, s{sB}, 12\n s_add_u32 m0, s{sT+2}, {KVPOS[c]}\n s_add_u32 s{sT+1}, s{sT+1}, {hex(WS_KVA+(65536 if c>=4 else 0))}')
    for i in range(4): E(f'buffer_load_dwordx4 v160, {sr(sWS)}, s{sT+1} offen offset:{1024*i} sc1 lds')
    VQ.extend([f'kv{c}']*4)
E(f's_lshl_b32 s{sT}, s{sB}, 11\n s_add_u32 s{sT}, s{sT}, {L_QB}\n v_add_u32 v3, s{sT}, v160')
for t in range(2): E(f'ds_read_b128 {vr(BQ+4*t,4)}, v3 offset:{1024*t}')
E(f's_lshl_b32 s{sT}, s{sPb}, 8\n s_add_u32 s{sT}, s{sT}, {hex(WS_G)}\n buffer_load_dword v61, v8, {sr(sWS)}, s{sT} offen sc1\n buffer_load_dword v62, v8, {sr(sWS)}, s{sT} offen offset:128 sc1\n s_waitcnt lgkmcnt(0)')
lds_add(C_QR,1,vZ,2)
C('---- second half of the shared K/V (throttled) ; o slots marked as not yet written')
for c in (5,6,7):
    kvdma(c); vwait(f'kv{c}')
E('v_sub_f32 v61, 1.0, v61\n v_sub_f32 v62, 1.0, v62')
lds_spin(C_QR,None,12,vZ,2,sleep=2)
kvdma(4)
E(f's_lshl_b32 s{sT+10}, s{sPb}, 6\n s_lshl_b32 s{sT+1}, s{sHg}, 2\n s_add_u32 s{sT+10}, s{sT+10}, s{sT+1}\n s_add_u32 s{sT+10}, s{sT+10}, s{sB}\n s_lshl_b32 s{sT+10}, s{sT+10}, 10')
E('v_mov_b32 v12, -1\n v_mov_b32 v13, -1\n v_mov_b32 v14, -1\n v_mov_b32 v15, -1')
for base in (WS_OA,WS_OA+32768,WS_OB,WS_OB+32768):
    E(f's_add_u32 s{sT+1}, s{sT+10}, {hex(base)}\n buffer_store_dwordx4 v[12:15], v160, {sr(sWS)}, s{sT+1} offen sc1'); VQ.append('s')
vwait('kv4')
lds_add(C_K2,1,vZ,2)
stamp('B',2,'K/V all in')
if OPT.get('nob'): stamp_flush(12); E('s_endpgm')
E(f's_lshl_b32 s{sT+3}, s{sHg}, 5\n s_add_u32 s{sT+3}, s{sT+3}, s{sPb}\n s_lshl_b32 s{sT+3}, s{sT+3}, 7\n s_lshl_b32 s{sT+1}, s{sB}, 2\n s_add_u32 s{sT+3}, s{sT+3}, s{sT+1}\n s_add_u32 s{sT+3}, s{sT+3}, {hex(WS_FKVB+16)}')
if MAP=='b':
    E(f's_cmp_ge_u32 s{sB}, 2\n s_cbranch_scc0 L_B_NOT\n s_lshr_b32 s{sT+1}, s2, 3\n s_lshl_b32 s{sT+1}, s{sT+1}, 14\n s_and_b32 s{sT+2}, s{sB}, 1\n s_lshl_b32 s{sT+2}, s{sT+2}, 13\n s_add_u32 s{sT+1}, s{sT+1}, s{sT+2}')
    touch(sWOB,sT+1,1,163,3); touch(sWOA,sT+1,1,163,3)
else:
    E(f's_cmp_eq_u32 s{sB}, 3\n s_cbranch_scc0 L_B_NOT\n s_lshr_b32 s{sT+1}, s2, 3\n s_lshl_b32 s{sT+1}, s{sT+1}, 14\n s_and_b32 s{sT+2}, s2, 1\n s_lshl_b32 s{sT+2}, s{sT+2}, 9\n s_add_u32 s{sT+1}, s{sT+1}, s{sT+2}')
    E('v_lshrrev_b32 v2, 2, v0\n v_lshlrev_b32 v2, 10, v2\n v_and_b32 v3, 3, v0\n v_lshl_add_u32 v2, v3, 7, v2')
    touch(sWOB,sT+1,1,2,3); touch(sWOA,sT+1,1,2,4)
LBL('L_B_NOT')
poll(162,2,4,sleep=3)
E(f's_getreg_b32 s{sXcc}, hwreg(HW_REG_XCC_ID, 0, 4)\n s_add_u32 s{sT}, s{sTag}, s{sXcc}\n v_mov_b32 v2, s{sT}\n s_mov_b64 exec, 1\n buffer_store_dword v2, off, {sr(sWS)}, s{sT+3} sc1\n s_mov_b64 exec, -1')
lds_add(C_SN,1,vZ,2)
stamp('B',6,'kvB flags seen')
C('---- window attention, head 4hg+b, two query tiles')
E(f's_lshl_b32 s{sT+8}, s{sHg}, 2\n s_add_u32 s{sT+8}, s{sT+8}, s{sB}\n s_lshl_b32 s{sT+8}, s{sT+8}, 6\n s_lshl_b32 s{sT+9}, s{sPb}, 1\n s_sub_i32 s{sT+9}, s{sT+9}, 8')
def btile(j): E(f's_add_i32 s{sT}, s{sT+9}, {j}\n s_max_i32 s{sT}, s{sT}, 0\n s_add_u32 s{sT}, s{sT}, s{sT+8}\n s_lshl_b32 s{sT}, s{sT}, 11\n s_add_u32 s{sT}, s{sT}, {hex(WS_KVB)}')
def bload(j):
    k=BK+4*(j%3); v=BV+8*(j%3)
    btile(j)
    E(f'buffer_load_dwordx4 {vr(k,4)}, v160, {sr(sWS)}, s{sT} offen sc1\n s_mov_b64 exec, {sr(sVM,2)}')
    E(f'buffer_load_dwordx4 {vr(v,4)}, v161, {sr(sWS)}, s{sT} offen offset:1024 sc1\n buffer_load_dwordx4 {vr(v+4,4)}, v161, {sr(sWS)}, s{sT} offen offset:1536 sc1\n s_mov_b64 exec, -1')
bload(0); bload(1)
for j in (2,6):
    E(f's_add_i32 s{sT}, s{sT+9}, {j}\n s_max_i32 s{sT}, s{sT}, 0\n s_add_i32 s{sT+1}, s{sT+9}, 6\n s_min_i32 s{sT}, s{sT}, s{sT+1}\n s_cmp_lt_i32 s{sT}, 0')
    sk=uid('tk'); E(f's_cbranch_scc1 {sk}\n s_add_u32 s{sT}, s{sT}, s{sT+8}\n s_lshl_b32 s{sT}, s{sT}, 11\n s_add_u32 s{sT}, s{sT}, {hex(WS_KVB)}')
    E(f'buffer_load_dword v3, v163, {sr(sWS)}, s{sT} offen sc1'); LBL(sk)
E('s_waitcnt lgkmcnt(0)')
for j in range(10):
    k=BK+4*(j%3); v=BV+8*(j%3)
    if j+2<10: bload(j+2)
    E(f's_waitcnt vmcnt({3*min(2,9-j)})')
    sk=uid('bskip')
    if j<8: E(f's_cmp_lt_i32 s{sT+9}, {-j}\n s_cbranch_scc1 {sk}')
    qs=[q for q in (0,1) if 0<=j-q<=8]
    for q in qs: mfma(BS+16*q,k,BQ+4*q,{0:MU,8:MD}.get(j-q,'0'))
    E('s_nop 10' if len(qs)==2 else 's_nop 11')
    for q in qs:
        S=BS+16*q; O=BO+16*q
        for r in range(10): vexp(S+r)
        smf(O,v,S,BIDX)
        for r in range(10,16): vexp(S+r)
        E('s_nop 1'); smf(O,v+4,S+8,BIDX)
    if j<8: LBL(sk)
E(f's_add_u32 s{sT+10}, s{sT+10}, {hex(WS_OB)}\n s_nop 14')
for q in range(2):
    fb=f'L_FB_B{q}'; bk=f'L_FB_B{q}_BACK'
    finalize(BO+16*q,4,2,fb,bk,61+q)
    E(f'buffer_store_dwordx4 v[4:7], v160, {sr(sWS)}, s{sT+10} offen sc1')
    if q==0: E(f's_add_u32 s{sT+10}, s{sT+10}, 32768\n s_nop 0')
    def setup(q=q):
        E(f's_add_i32 s{sT+2}, s{sT+9}, {q}\n s_cmp_ge_i32 s{sT+2}, 0\n s_cselect_b32 s{sT+4}, 1, 0\n s_max_i32 s{sT+2}, s{sT+2}, 0')
        E(f's_add_i32 s{sT+3}, s{sT+9}, {q+9}\n s_sub_u32 s{sT+3}, s{sT+3}, s{sT+2}\n s_add_u32 s{sT+2}, s{sT+2}, s{sT+8}\n s_lshl_b32 s{sT+2}, s{sT+2}, 11\n s_add_u32 s{sT+2}, s{sT+2}, {hex(WS_KVB)}')
    fallback(fb,bk,BQ+4*q,BO+16*q,BS,BK,BV,BIDX,3,160,161,None,setup,MU,MD)
C('---- output projection: wave (t=b&1, kh=b>>1): both 32-column tiles over heads 16kh..16kh+15 ; slot 0 = tile kh')
PA_=48; PW=80; PO=96; PB_=16
stamp('B',7,'oB published')
C('the eight WGs of this position block: marks in place ?  all on this die ?')
E(f's_mov_b32 s{sCnt}, {SPIN_LIMIT}')
LBL('L_B_PP')
E(f'buffer_load_dwordx4 v[4:7], v166, {sr(sWS)}, 0 offen sc1\n s_waitcnt vmcnt(0)')
for i in range(4): E(f'v_subrev_u32 v{4+i}, s{sTag}, v{4+i}')
E(f'v_or3_b32 v2, v4, v5, v6\n v_or_b32 v2, v2, v7\n v_cmp_lt_u32 vcc, 15, v2\n s_cbranch_vccz L_B_PPD\n s_sub_u32 s{sCnt}, s{sCnt}, 1\n s_cbranch_scc1 L_B_PPD\n s_sleep 3\n s_branch L_B_PP')
LBL('L_B_PPD')
if OPT.get('loc','1')=='1':
    E(f'v_cmp_ne_u32 vcc, s{sXcc}, v4\n s_cbranch_vccnz L_B_NLOC')
    lds_add(C_LOC,1,vZ,2)
    if OPT.get('probe'):
        E('s_branch L_B_PRB')
        LBL('L_B_NLOC')
        for i in range(8): E('s_sleep 127')
        LBL('L_B_PRB')
    else: LBL('L_B_NLOC')
lds_spin(C_MID,None,8,vZ,2,sleep=6)
def wodma(sr_):
    E(f's_lshl_b32 s{sT}, s{sB}, 14\n s_lshl_b32 s{sT+1}, s{sB}, 17')
    for n in range(16): E(f's_add_u32 m0, s{sT}, {L_WO+1024*n}\n s_add_u32 s{sT+2}, s{sT+1}, {8192*n}\n buffer_load_dwordx4 v10, {sr(sr_)}, s{sT+2} offen lds')
wodma(sWOB)
E('s_waitcnt vmcnt(0)')
lds_add(C_WO,1,vZ,2)
lds_spin(C_WO,None,4,vZ,2,sleep=2)
stamp('B',8,'woB landed')
LBL('L_B_GEMM')
def wread(s):
    f=PW+8*(s&1)
    for u,va in ((0,11),(1,9)): E(f'ds_read_b64_tr_b16 {vr(f+4*u,2)}, v{va} offset:{s*2048}\n ds_read_b64_tr_b16 {vr(f+4*u+2,2)}, v{va} offset:{s*2048+1024}')
wread(0)
def oloads(g0):
    for s in range(4*g0,16):
        if s%4==0: E(f's_add_u32 s{sT}, s{sOb}, {1024*s}')
        E(f'buffer_load_dwordx4 {vr(PO+4*s,4)}, v160, {sr(sWS)}, s{sT} offen offset:{1024*(s%4)} sc1')
E(f's_mov_b32 s{sCnt}, {SPIN_LIMIT}')
oloads(0)
for g in range(4):
    LBL(f'L_B_G{g}')
    E(f's_waitcnt vmcnt({12-4*g})')
    p=PO+16*g
    E(f'v_max_u32 v2, v{p}, v{p+4}\n v_max3_u32 v2, v{p+8}, v{p+12}, v2\n v_cmp_eq_u32 vcc, -1, v2\n s_cbranch_vccnz L_B_R{g}')
    LBL(f'L_B_K{g}')
    if DIAG and g==3:
        E(f's_cmp_eq_u32 s{sPass}, 0\n s_cbranch_scc1 L_B_NST'); stamp('B',10,'oA all seen'); LBL('L_B_NST')
    for s in range(4*g,4*g+4):
        if s<15: wread(s+1)
        E(f's_waitcnt lgkmcnt({4 if s<15 else 0})')
        f=PW+8*(s&1)
        if s==0:
            E(f's_cmp_eq_u32 s{sPass}, 0\n s_cbranch_scc0 L_B_M1')
            for u in range(2): mfma(PA_+16*u,f+4*u,PO+4*s,'0')
            E('s_branch L_B_M2'); LBL('L_B_M1')
            for u in range(2): mfma(PA_+16*u,f+4*u,PO+4*s)
            LBL('L_B_M2')
        else:
            for u in range(2): mfma(PA_+16*u,f+4*u,PO+4*s)
    save=L; L=[]
    LBL(f'L_B_R{g}')
    E(f's_sub_u32 s{sCnt}, s{sCnt}, 1\n s_cbranch_scc1 L_B_K{g}\n s_cmp_eq_u32 s{sPass}, 0\n s_cbranch_scc0 L_B_RR{g}\n s_sleep 16')
    LBL(f'L_B_RR{g}')
    E('s_waitcnt vmcnt(0)')
    oloads(g)
    E(f's_branch L_B_G{g}')
    RETRY.extend(L); L=save
E(f's_cmp_eq_u32 s{sPass}, 0\n s_cbranch_scc0 L_B_FIN')
lds_add(C_WD,1,vZ,2)
E(f's_add_u32 s{sOb}, s{sOb}, {hex((WS_OA-WS_OB)&0xffffffff)}\n s_mov_b32 s{sPass}, 1')
lds_spin(C_WD,None,4,vZ,2,sleep=2)
wodma(sWOA)
E('s_waitcnt vmcnt(0)')
stamp('B',9,'out-proj B done, woA in')
E('s_barrier'); echo_mark('aend'); E('s_branch L_B_GEMM')
LBL('L_B_FIN')
E('s_nop 9')
for q in range(4): E(f'ds_write_b128 v164, {vr(PA_+16+4*q,4)} offset:{1024*q}')
E('s_waitcnt lgkmcnt(0)\n s_barrier')
for q in range(4): E(f'ds_read_b128 {vr(PB_+4*q,4)}, v165 offset:{1024*q}')
for q in range(4):
    E(f's_waitcnt lgkmcnt({3-q})')
    for r in range(4): E(f'v_add_f32 v{PA_+4*q+r}, v{PA_+4*q+r}, v{PB_+4*q+r}')
for r in range(8): cvt(PA_+r,PA_+2*r,PA_+2*r+1)
E('s_nop 1')
for gq in range(2): E(f'v_permlane32_swap_b32 v{PA_+4*gq}, v{PA_+4*gq+2}\n v_permlane32_swap_b32 v{PA_+4*gq+1}, v{PA_+4*gq+3}')
for gq in range(2): E(f'buffer_store_dwordx4 {vr(PA_+4*gq,4)}, v167, {sr(sOUT)}, s{sOut} offen offset:{32*gq} '+OPT.get('ost','').replace('+',' '))
if DIAG: E('s_waitcnt vmcnt(0)')
stamp('B',11,'out stored'); echo_end()
stamp_flush(12)
E('s_endpgm')
L.extend(RETRY)

LBL('L_A')
AIDX=8; AKA=9; AVA=10; AQ0=12; AQ1=16; AK=20; AV=28; SA=44; SB=60; OA=76; OB=92; XA=108; WA=160; AF=112
L_PG=L_PART+4096
sStr=sT+10; sRing=sT+7
E(f'v_and_b32 v5, 15, v0\n v_lshlrev_b32 v6, 4, v0\n s_and_b32 s{sT+9}, s{sHg}, 3\n s_cmp_lt_u32 s{sWave}, 4\n s_cbranch_scc0 L_A_KV')
C('---- waves 0..3 : wave m streams 64 columns of matrix m (wq | B q | B k | B v) through its own 8 x 2KB ring')
E(f's_cmp_eq_u32 s{sWave}, 0\n s_cselect_b32 s{sWB}, s6, s16\n s_cselect_b32 s{sWB+1}, s7, s17\n s_mov_b32 s{sWB+2}, {512*3072}\n s_cselect_b32 s{sWB+2}, {512*1024}, s{sWB+2}\n s_mov_b32 s{sWB+3}, 0x20000')
E(f's_movk_i32 s{sStr}, 3072\n s_cselect_b32 s{sStr}, 0x400, s{sStr}\n s_max_u32 s{sT+1}, s{sWave}, 1\n s_sub_u32 s{sT+1}, s{sT+1}, 1\n s_lshl_b32 s{sT+1}, s{sT+1}, 10\n s_lshl_b32 s{sT+2}, s{sHg}, 7\n s_add_u32 s{sT+1}, s{sT+1}, s{sT+2}')
dma128_voff(162,2,3,f's{sStr}',f's{sT+1}')
mkrot()
E(f's_lshl_b32 s{sStr}, s{sStr}, 3\n s_lshl_b32 s{sRing}, s{sWave}, 14')
E(f's_sub_u32 s{sT+1}, s{sStr}, 1024\n v_add_u32 v163, s{sT+1}, v162\n s_lshl_b32 s{sStr}, s{sStr}, 1')
def wdma_parts(st):
    p0=f's_add_u32 m0, s{sRing}, {(st%8)*2048}\n'
    if st%4==0: p0+=f's_add_u32 s{sT+3}, s{sRot}, {st//4}\n s_and_b32 s{sT+3}, s{sT+3}, 7\n s_lshl_b32 s{sT+3}, s{sT+3}, 2\n s_mul_i32 s{sT+3}, s{sT+3}, s{sStr}'
    else: p0+=f's_add_u32 s{sT+3}, s{sT+3}, s{sStr}'
    VQ.extend([f'w{st}']*2)
    return [p0, f'buffer_load_dwordx4 v162, {sr(sWB)}, s{sT+3} offen lds', f'buffer_load_dwordx4 v163, {sr(sWB)}, s{sT+3} offen offset:1024 lds']
def wdma(st):
    for p in wdma_parts(st): E(p)
if OPT.get('p0','2')!='0': E(f's_cmp_eq_u32 s{sWave}, 0\n s_cbranch_scc0 L_A_NP0\n s_setprio {OPT.get("p0","3")}\nL_A_NP0:')
NW0=int(OPT.get('nw0','8'))
VQ.clear()
for st in range(NW0): wdma(st)
E('s_branch L_A_NOKV')
LBL('L_A_KV')
E(f's_setprio 3\n s_load_dword s{sTag}, s[26:27], {WS_EPOCH}')
C('---- kvA: this WG makes 16 positions (hg&3) of K (hg<4) or V, and their gate ; wave 4+u sums k in [128u,128u+128)')
E(f's_cmp_lt_u32 s{sHg}, 4\n s_cselect_b32 s{sWKV}, s8, s10\n s_cselect_b32 s{sWKV+1}, s9, s11\n s_mov_b32 s{sWKV+2}, 16384\n s_mov_b32 s{sWKV+3}, 0x20000\n s_and_b32 s{sT+3}, s{sWave}, 3')
E(f's_lshl_b32 s{sT+1}, s{sPb}, 16\n s_lshl_b32 s{sT+2}, s{sT+9}, 14\n s_add_u32 s{sT+1}, s{sT+1}, s{sT+2}\n s_lshl_b32 s{sT+2}, s{sT+3}, 8\n s_add_u32 s{sT+1}, s{sT+1}, s{sT+2}')
E('v_lshlrev_b32 v3, 10, v5\n v_and_b32 v4, 48, v0\n v_add_u32 v3, v3, v4')
for s_ in range(4): E(f'buffer_load_dwordx4 {vr(116+4*s_,4)}, v3, {sr(sX)}, s{sT+1} offen offset:{64*s_}')
if MAP=='c' and OPT.get('wkt','1')=='1':
    E(f's_cmp_eq_u32 s{sWave}, 4\n s_cbranch_scc0 L_A_NT2\n s_lshr_b32 s{sT+4}, s2, 3\n s_lshl_b32 s{sT+4}, s{sT+4}, 9\n v_lshlrev_b32 v2, 7, v0\n s_mov_b64 exec, 15\n buffer_load_dword v167, v2, {sr(sWKV)}, s{sT+4} offen\n s_mov_b64 exec, -1')
    LBL('L_A_NT2')
srd(sG,20,1024)
for s_ in range(4): E(f'buffer_load_dwordx4 {vr(132+4*s_,4)}, v4, {sr(sG)}, s{sT+2} offen offset:{64*s_}')
E(f's_lshl_b32 s{sT}, s{sT+3}, 12\n s_add_u32 m0, s{sT}, {L_ST}\n s_nop 0')
for i in range(4): E(f'buffer_load_dwordx4 v6, {sr(sWKV)}, s{sT} offen offset:{1024*i} lds')
LBL('L_A_NOKV')
C('---- address of this wave\'s o slot, constants')
sOA=sT+8
E(f's_and_b32 s{sOA}, s{sWave}, 1\n s_lshl_b32 s{sT+1}, s{sPb}, 1\n s_add_u32 s{sOA}, s{sOA}, s{sT+1}\n s_lshl_b32 s{sOA}, s{sOA}, 5')
E(f's_lshl_b32 s{sT+1}, s{sHg}, 2\n s_add_u32 s{sOA}, s{sOA}, s{sT+1}\n s_and_b32 s{sT+1}, s{sWave}, 2\n s_add_u32 s{sOA}, s{sOA}, s{sT+1}\n s_lshr_b32 s{sT+1}, s{sWave}, 2\n s_add_u32 s{sOA}, s{sOA}, s{sT+1}\n s_lshl_b32 s{sOA}, s{sOA}, 10\n s_add_u32 s{sOA}, s{sOA}, {hex(WS_OA)}')
E(f'v_mov_b32 v{vZ}, {L_ST}\n v_lshlrev_b32 v11, 2, v0')
traddr128(WA,2,3,3,'0'); E(f's_lshl_b32 s{sT+1}, s{sWave}, 14\n v_add_u32 v{WA}, s{sT+1}, v{WA}\n v_xor_b32 v{WA+1}, 64, v{WA}')
E(f'v_and_b32 v2, 31, v0\n v_bfe_u32 v3, v0, 1, 3\n v_lshrrev_b32 v7, 5, v0\n v_xor_b32 v3, v3, v7\n v_lshlrev_b32 v{XA}, 7, v2\n v_lshl_add_u32 v{XA}, v3, 4, v{XA}\n v_add_u32 v{XA}, 0x10000, v{XA}')
for s_ in range(1,4): E(f'v_xor_b32 v{XA+s_}, {s_<<5}, v{XA}')
for r in range(32): E(f'v_mov_b32 v{OA+r}, 0')
set_vpad(list(range(AV,AV+16)),2)
E(f'v_mov_b32 v{AIDX}, 0xdddddddd')
E(f's_lshr_b32 s{sT+1}, s{sWave}, 2\n s_lshl_b32 s{sT+1}, s{sT+1}, 11\n v_add_u32 v{AKA}, s{sT+1}, v6')
E(f'v_lshlrev_b32 v7, 8, v7\n v_lshl_add_u32 v7, v5, 4, v7\n v_add_u32 v{AVA}, s{sT+1}, v7')
E(f's_lshl_b32 s{sT+6}, s{sHg}, 5\n s_add_u32 s{sT+6}, s{sT+6}, s{sPb}\n s_lshl_b32 s{sT+6}, s{sT+6}, 7\n s_lshl_b32 s{sT+1}, s{sWave}, 2\n s_add_u32 s{sT+6}, s{sT+6}, s{sT+1}\n s_add_u32 s{sT+6}, s{sT+6}, {hex(WS_FKVB)}')
E(f's_cmp_lt_u32 s{sWave}, 4\n s_cbranch_scc1 L_A_GQ\n s_waitcnt lgkmcnt(0)')
mktag()
E(f'v_lshrrev_b32 v4, 4, v0\n v_lshlrev_b32 v4, 8, v4\n v_lshl_add_u32 v4, v5, 3, v4\n s_add_u32 s{sT}, s{sT}, {L_ST}\n v_add_u32 v4, s{sT}, v4')
E(f's_lshl_b32 s{sT+1}, s{sT+3}, 10\n s_add_u32 s{sT+1}, s{sT+1}, {L_PART}\n v_add_u32 v2, s{sT+1}, v6\n s_lshl_b32 s{sT+1}, s{sT+3}, 8\n s_add_u32 s{sT+1}, s{sT+1}, {L_PG}\n v_add_u32 v3, s{sT+1}, v11')
E('s_waitcnt vmcnt(0)')
for s_ in range(4): E(f'ds_read_b64_tr_b16 {vr(44+4*s_,2)}, v4 offset:{1024*s_}\n ds_read_b64_tr_b16 {vr(46+4*s_,2)}, v4 offset:{1024*s_+128}')
for s_ in range(4): E(f'v_mfma_f32_16x16x32_bf16 v[64:67], {vr(132+4*s_,4)}, {vr(116+4*s_,4)}, {"0" if s_==0 else "v[64:67]"}')
E(f's_cmp_lt_u32 s{sHg}, 4\n s_waitcnt lgkmcnt(0)\n s_cbranch_scc0 L_A_VJOB')
for s_ in range(4): E(f'v_mfma_f32_16x16x32_bf16 v[60:63], {vr(44+4*s_,4)}, {vr(116+4*s_,4)}, {"0" if s_==0 else "v[60:63]"}')
E('s_branch L_A_KVJ')
LBL('L_A_VJOB')
for s_ in range(4): E(f'v_mfma_f32_16x16x32_bf16 v[60:63], {vr(116+4*s_,4)}, {vr(44+4*s_,4)}, {"0" if s_==0 else "v[60:63]"}')
LBL('L_A_KVJ')
E('s_nop 0\n ds_write_b32 v3, v64\n s_nop 5\n ds_write_b128 v2, v[60:63]')
stamp('A',2,'kvA partial')
E('s_waitcnt lgkmcnt(0)')
tag_set(T_PT,sT+3,2)
E(f's_cmp_eq_u32 s{sWave}, 7\n s_cbranch_scc0 L_A_BS')
C('---- wave 7: reduce the four partial tiles, store, flag')
tag_wait(T_PT,4,2)
E(f'v_add_u32 v3, {L_PART}, v6\n v_add_u32 v4, {L_PG}, v11')
for i in range(4): E(f'ds_read_b128 {vr(116+4*i,4)}, v3 offset:{1024*i}')
for i in range(2): E(f'ds_read2st64_b32 {vr(148+2*i,2)}, v4 offset0:{2*i} offset1:{2*i+1}')
E(f's_lshl_b32 s{sT+3}, s{sPb}, 1\n s_lshr_b32 s{sT+4}, s{sT+9}, 1\n s_add_u32 s{sT+3}, s{sT+3}, s{sT+4}\n s_lshl_b32 s{sT+3}, s{sT+3}, 11\n s_add_u32 s{sT+3}, s{sT+3}, {hex(WS_KVA)}\n s_and_b32 s{sT+4}, s{sT+9}, 1')
E(f's_cmp_lt_u32 s{sHg}, 4\n s_cselect_b32 s{sT+5}, 9, 3\n s_cselect_b32 s{sT+7}, 3, 8\n s_cselect_b32 s{sT+1}, 8, 9\n s_cselect_b32 s{sT}, 0, 0x400')
E(f's_lshl_b32 s{sT+4}, s{sT+4}, s{sT+1}\n s_add_u32 s{sT+3}, s{sT+3}, s{sT+4}\n s_add_u32 s{sT+3}, s{sT+3}, s{sT}')
E(f'v_bfe_u32 v3, v0, 4, 1\n v_lshrrev_b32 v4, 5, v0\n v_lshlrev_b32 v5, 4, v5\n v_lshl_add_u32 v5, v3, s{sT+5}, v5\n v_lshl_add_u32 v5, v4, s{sT+7}, v5')
FPLS=int(OPT.get('fpl','4'))
E(f's_lshl_b32 s{sT+7}, s{sPb}, 3\n s_add_u32 s{sT+7}, s{sT+7}, s{sHg}\n s_and_b32 s{sT+1}, s{sT+7}, {(1<<FPLS)-1}\n s_lshr_b32 s{sT+7}, s{sT+7}, {FPLS}\n s_lshl_b32 s{sT+7}, s{sT+7}, 7\n s_lshl_b32 s{sT+1}, s{sT+1}, 2\n s_add_u32 s{sT+7}, s{sT+7}, s{sT+1}\n s_add_u32 s{sT+7}, s{sT+7}, {hex(WS_FKVA)}')
E('s_waitcnt lgkmcnt(2)')
for st_ in (8,4):
    for r in range(st_): E(f'v_add_f32 v{116+r}, v{116+r}, v{116+st_+r}')
cvt(116,116,117); cvt(117,118,119)
E(f'buffer_store_dwordx2 v[116:117], v5, {sr(sWS)}, s{sT+3} offen sc1')
E(f's_cmp_lt_u32 s{sHg}, 4\n s_waitcnt lgkmcnt(0)\n s_cbranch_scc0 L_A_SF')
for st_ in (2,1):
    for r in range(st_): E(f'v_add_f32 v{148+r}, v{148+r}, v{148+st_+r}')
E(f's_mov_b32 s{sT}, {hex(f2u(-math.log2(math.e)))}\n v_mul_f32 v148, s{sT}, v148\n v_exp_f32 v148, v148')
E(f's_lshl_b32 s{sT}, s{sPb}, 2\n s_add_u32 s{sT}, s{sT}, s{sT+9}\n v_add_f32 v148, 1.0, v148\n v_rcp_f32 v148, v148\n s_lshl_b32 s{sT}, s{sT}, 6\n s_add_u32 s{sT}, s{sT}, {hex(WS_G)}')
E(f's_mov_b64 exec, 0xffff\n buffer_store_dword v148, v11, {sr(sWS)}, s{sT} offen sc1\n s_mov_b64 exec, -1')
LBL('L_A_SF')
E('s_waitcnt vmcnt(0)')
flag_store(sT+7,2)
stamp('A',3,'kvA flag sent')
LBL('L_A_BS')
E(f's_cmp_eq_u32 s{sWave}, 6\n s_cbranch_scc0 L_A_B8')
C('---- wave 6: wait for every K/V piece, fetch this WG\'s share into L2, tell the projection waves')
E(f'v_lshlrev_b32 v16, 7, v0\n v_lshrrev_b32 v17, {FPLS-2}, v0\n v_lshlrev_b32 v17, 7, v17\n v_and_b32 v18, {(1<<(FPLS-2))-1}, v0\n v_lshl_add_u32 v17, v18, 4, v17\n v_add_u32 v17, {hex(WS_FKVA)}, v17')
E(f'v_mov_b32 v2, s{sTag}\n ds_write_b32 v{vZ}, v2 offset:{T_TAG-L_ST}')
tag_wait(T_PT,4,2)
tag_wait(T_PL,1,2,sleep=2)
poll(17,4,12,sleep=int(OPT.get('psl','1')))
E(f's_lshr_b32 s{sT+5}, s2, 3\n s_lshl_b32 s{sT+5}, s{sT+5}, 12\n s_add_u32 s{sT+5}, s{sT+5}, {hex(WS_KVA)}')
E(f's_mov_b32 exec_hi, 0\n buffer_load_dword v117, v16, {sr(sWS)}, s{sT+5} offen sc1\n s_mov_b64 exec, -1')
tag_set(T_FL,None,2)
stamp('A',3,'kvA flag sent')
E(f's_lshr_b32 s{sT+5}, s2, 3\n s_and_b32 s{sT+5}, s{sT+5}, 3\n s_lshl_b32 s{sT+5}, s{sT+5}, 14\n s_add_u32 s{sT+5}, s{sT+5}, {hex(WS_KVA)}')
for q in range(4):
    E(f's_mov_b32 m0, {L_ST+4096*q}\n s_add_u32 s{sT+4}, s{sT+5}, {4096*q}')
    for i in range(4): E(f'buffer_load_dwordx4 v6, {sr(sWS)}, s{sT+4} offen offset:{1024*i} sc1 lds')
E('s_waitcnt vmcnt(0)')
tag_set(T_K0,None,2)
stamp('A',7,'G1')
E(f's_cmp_eq_u32 s2, 0\n s_cbranch_scc0 L_A_B8\n s_mov_b32 s{sT}, 0')
flag_store(sT,2)
E('s_branch L_A_B8')
LBL('L_A_GQ')
PAC=[44,60,128,144]; PFR=[12,112,92]
def areads_l(st):
    f=PFR[st%3]; so=(st%8)*2048; o=[]
    for i in range(2): o+= [f'ds_read_b64_tr_b16 {vr(f+4*i,2)}, v{WA+i} offset:{so}', f'ds_read_b64_tr_b16 {vr(f+4*i+2,2)}, v{WA+i} offset:{so+512}']
    for t in range(2): o.append(f'ds_read_b128 {vr(f+8+4*t,4)}, v{XA+st%4} offset:{(st//4)*8192+4096*t}')
    return o
def areads(st):
    for p in areads_l(st): E(p)
def kv_parts(p):
    VQ.extend(['kv']*2)
    return [f's_add_u32 m0, s{sRing}, {p*2048}\n s_add_u32 s{sT+4}, s{sT+5}, {p*2048}']+[f'buffer_load_dwordx4 v6, {sr(sWS)}, s{sT+4} offen offset:{1024*n} sc1 lds' for n in range(2)]
def kvpiece(p):
    for q in kv_parts(p): E(q)
for st in range(NW0,8): wdma(st)
E(f's_sub_u32 s{sT+4}, s{sWave}, 1\n s_cmp_eq_u32 s{sWave}, 1\n s_cselect_b32 s{sT+4}, 3, s{sT+4}\n s_lshr_b32 s{sT+5}, s2, 3\n s_add_u32 s{sT+5}, s{sT+5}, s{sT+4}\n s_and_b32 s{sT+5}, s{sT+5}, 3\n s_lshl_b32 s{sT+5}, s{sT+5}, 14\n s_add_u32 s{sT+5}, s{sT+5}, {hex(WS_KVA)}')
tag_wait(T_X0,4,2) if XD else tag_wait(T_X,1,2)
stamp('A',7,'G1'); cstamp('A',10,'G1')
vwait('w0'); areads(0); vwait('w1'); areads(1)
VQ0=list(VQ)
PLK=int(OPT.get('plk','15'))
E(f's_cmp_eq_u32 s{sWave}, 3\n s_cbranch_scc1 L_A_GV')
def gstep(var,st,kv):
    f=PFR[st%3]
    def mm(i,t):
        d=PAC[2*i+t]; c='0' if st==0 else None
        if var==0: mfma(d,f+4*i,f+8+4*t,c)
        else: mfma(d,f+8+4*t,f+4*i,c)
    vwait(f'w{st+2}',f' lgkmcnt({6 if st<31 else 0})')
    rd=areads_l(st+2) if st+2<32 else []
    dm=wdma_parts(st+8) if st+8<32 else (kv_parts(st%8) if kv else [])
    gaps=[rd[0:2]+dm[0:1], rd[2:4]+dm[1:2], rd[4:6], dm[2:3]]
    if st>=30: gaps=[[f'v_mov_b32 v{OB+8*(st-30)+2*q+r}, 0' for r in range(2)]+gaps[q] for q in range(4)]
    for q,(i,t) in enumerate(((0,0),(0,1),(1,0),(1,1)) if st<31 else ((1,0),(1,1),(0,0),(0,1))):
        mm(i,t)
        for p in gaps[q]: E(p)
for var in (0,1):
    if var: LBL('L_A_GV')
    VQ[:]=VQ0
    for st in range(24):
        if OPT.get('hold') and st==0:
            E(f's_cmp_eq_u32 s{sWave}, 0\n s_cbranch_scc1 L_A_NH{var}'); tag_wait(T_H,1,2,sleep=2); LBL(f'L_A_NH{var}')
        if OPT.get('hold') and var==0 and st==int(OPT.get('hold')):
            E(f's_cmp_eq_u32 s{sWave}, 0\n s_cbranch_scc0 L_A_NH2'); tag_set(T_H,None,2); E('s_waitcnt lgkmcnt(0)'); LBL('L_A_NH2')
        if st==2: E('s_waitcnt lgkmcnt(0)'); tag_wait(T_X,4,2)
        if st==14: E('s_waitcnt lgkmcnt(0)'); tag_wait(T_X+16,4,2)
        if st==PLK and var==1: tag_set(T_PL,None,2); E('s_waitcnt lgkmcnt(0)')
        gstep(var,st,False)
    stamp('A',2,'step 24')
    if var==0: E(f's_cmp_eq_u32 s{sWave}, 0\n s_cbranch_scc1 L_A_G0')
    tag_wait(T_FL,1,2,once=f'L_A_GK{var}')
    if var==0: LBL('L_A_G0')
    V1=list(VQ)
    for st in range(24,32): gstep(var,st,False)
    if var==0: E(f's_cmp_eq_u32 s{sWave}, 0\n s_cbranch_scc1 L_A_GE0')
    tag_wait(T_FL,1,2)
    for p in range(8): kvpiece(p)
    E(f's_branch L_A_GE{var}')
    LBL(f'L_A_GK{var}')
    VQ[:]=V1
    for st in range(24,32): gstep(var,st,True)
    LBL(f'L_A_GE{var}')
    stamp('A',1,'proj loop done'); cstamp('A',11,'pl')
    E(f's_lshl_b32 s{sT+4}, s{sHg}, 8\n s_lshl_b32 s{sT+5}, s{sPb}, 1\n s_add_u32 s{sT+4}, s{sT+4}, s{sT+5}\n s_lshl_b32 s{sT+4}, s{sT+4}, 11\n s_add_u32 s{sT+4}, s{sT+4}, {hex(WS_KVB)}')
    if var==0:
        E(f's_cmp_eq_u32 s{sWave}, 2\n s_cbranch_scc1 L_A_EK')
        C('q (A / B): scale, pack, hand over through LDS')
        E(f's_cmp_eq_u32 s{sWave}, 0\n s_cbranch_scc1 L_A_Q0')
        tag_wait(T_G,1,2)
        LBL('L_A_Q0')
        E(f's_lshl_b32 s{sT+1}, s{sWave}, 13\n s_add_u32 s{sT+1}, s{sT+1}, {L_QA}\n v_add_u32 v3, s{sT+1}, v6\n s_mov_b32 s{sT+2}, {hex(CSCALE)}\n s_mov_b32 s{sT+3}, {hex(CSCALE)}\n s_lshl_b32 s{sT+1}, s{sWave}, 2\n s_add_u32 s{sT+1}, s{sT+1}, {T_Q1}\n v_mov_b32 v4, s{sT+1}\n v_mov_b32 v5, 1')
        for i in (1,0):
            for t in range(2):
                d=PAC[2*i+t]
                for r in range(0,16,2): E(f'v_pk_mul_f32 {vr(d+r,2)}, {vr(d+r,2)}, {sr(sT+2,2)}')
                for r in range(8): cvt(d+r,d+2*r,d+2*r+1)
                for hh in range(2): E(f'ds_write_b128 v3, {vr(d+4*hh,4)} offset:{(2*i+hh)*2048+1024*t}')
            if i==1: E(f's_mov_b64 exec, 1\n ds_write_b32 v4, v5\n s_mov_b64 exec, -1')
        E('s_waitcnt vmcnt(0) lgkmcnt(0)')
        tag_set(T_G,sWave,2)
        E('s_branch L_A_B8')
        LBL('L_A_EK')
        E('s_waitcnt vmcnt(0)')
        tag_set(T_G,sWave,2)
        for i in range(2):
            for t in range(2):
                d=PAC[2*i+t]
                for r in range(8): cvt(d+r,d+2*r,d+2*r+1)
                for hh in range(2): E(f's_add_u32 s{sT+5}, s{sT+4}, {(2*i+hh)*131072}\n buffer_store_dwordx4 {vr(d+4*hh,4)}, v6, {sr(sWS)}, s{sT+5} offen offset:{2048*t} sc1')
        E('s_branch L_A_B8')
    else:
        E('s_waitcnt vmcnt(0)')
        tag_set(T_G,sWave,2)
        E('v_bfe_u32 v3, v0, 4, 1\n v_lshl_add_u32 v3, v3, 17, v7')
        for i in range(2):
            for t in range(2):
                d=PAC[2*i+t]
                for r in range(8): cvt(d+r,d+2*r,d+2*r+1)
                E('s_nop 1')
                for gq in range(2): E(f'v_permlane32_swap_b32 v{d+4*gq}, v{d+4*gq+2}\n v_permlane32_swap_b32 v{d+4*gq+1}, v{d+4*gq+3}')
                E(f's_add_u32 s{sT+5}, s{sT+4}, {i*2*131072}')
                for gq in range(2): E(f'buffer_store_dwordx4 {vr(d+4*gq,4)}, v3, {sr(sWS)}, s{sT+5} offen offset:{2048*t+1024+512*gq} sc1')
LBL('L_A_B8')
E('s_setprio 0')
E(f's_and_b32 s{sT+1}, s{sWave}, 2\n s_lshr_b32 s{sT+2}, s{sWave}, 2\n s_add_u32 s{sT+1}, s{sT+1}, s{sT+2}\n s_lshl_b32 s{sT+1}, s{sT+1}, 11\n s_and_b32 s{sT+2}, s{sWave}, 1\n s_lshl_b32 s{sT+2}, s{sT+2}, 10\n s_add_u32 s{sT+1}, s{sT+1}, s{sT+2}\n s_add_u32 s{sT+1}, s{sT+1}, {L_QA}\n v_add_u32 v2, s{sT+1}, v6\n v_xor_b32 v3, 0x800, v2')
AK0=120; AV0=121; AEX=122; AG=126
E(f'v_add_u32 v{AK0}, {L_ST}, v{AKA}\n v_add_u32 v{AV0}, {L_ST}, v{AVA}')
E(f's_and_b32 s{sT+2}, s{sWave}, 3\n s_mul_i32 s{sT+1}, s{sT+2}, 4608\n s_add_u32 s{sT+1}, s{sT+1}, {L_EX}\n v_add_u32 v{AEX}, s{sT+1}, v6\n v_add_u32 v{AEX+1}, s{sT+1}, v11')
E(f's_lshl_b32 s{sT+2}, s{sT+2}, 2\n s_add_u32 s{sT+2}, s{sT+2}, {C_PR}\n v_mov_b32 v{AEX+2}, s{sT+2}')
E(f's_and_b32 s{sT+1}, s{sWave}, 1\n s_lshl_b32 s{sT+2}, s{sPb}, 1\n s_add_u32 s{sT+1}, s{sT+1}, s{sT+2}\n s_lshl_b32 s{sT+1}, s{sT+1}, 7\n s_add_u32 s{sT+1}, s{sT+1}, {hex(WS_G)}\n v_and_b32 v127, 0x7c, v11')
tag_wait(T_K0,1,4,sleep=int(OPT.get('asl','2')))
E(f'buffer_load_dword v{AG}, v127, {sr(sWS)}, s{sT+1} offen sc1')
tag_get(4)
def kvoff(j):
    return (j%4)*4096+(0 if j<4 else KVPOS[j//4]-(65536 if j>=20 else 0))
def ldk(j): E(f'ds_read_b128 {vr(AK+4*(j&1),4)}, v{AK0 if j<4 else AKA} offset:{kvoff(j)}')
def ldv(j): E(f's_mov_b64 exec, {sr(sVM,2)}\n ds_read_b128 {vr(AV+8*(j&1),4)}, v{AV0 if j<4 else AVA} offset:{kvoff(j)+1024}\n ds_read_b128 {vr(AV+8*(j&1)+4,4)}, v{AV0 if j<4 else AVA} offset:{kvoff(j)+1536}\n s_mov_b64 exec, -1')
ldk(0); ldv(0); ldk(1)
E(f's_bitcmp1_b32 s{sWave}, 1\n s_cbranch_scc0 L_A_WL')
tag_wait(T_Q1,1,4,sleep=int(OPT.get('asl2','1')))
E('s_branch L_A_WD')
LBL('L_A_WL')
tag_wait(T_G,1,4,sleep=int(OPT.get('asl2','1')))
LBL('L_A_WD')
stamp('A',4,'BQ'); cstamp('A',8,'BQ')
E(f'ds_read_b128 {vr(AQ0,4)}, v2\n ds_read_b128 {vr(AQ1,4)}, v3')
if PRIO in ('step','step4'): E('s_setprio 2')
E('s_waitcnt lgkmcnt(0)'); mfma(SA,AK,AQ0,'0')
lds_add(C_QR,1,vZ,2)
E('s_nop 7')
def pair_iter(j,ldk_,ldv_,first=False,last=0,extra=0):
    kc=AK+4*(j&1); kn=AK+4*((j+1)&1); vc=AV+8*(j&1); vp=AV+8*((j+1)&1)
    vexp(SA); vexp(SA+1)
    if not first: smf(OB,vp+4,SB+8,AIDX)
    for r in range(2,5): vexp(SA+r)
    mfma(SB,kc,AQ1,'0')
    for r in range(5,10): vexp(SA+r)
    E(f's_waitcnt lgkmcnt({(1 if last<2 else 0)+extra})')
    vexp(SA+10); smf(OA,vc,SA,AIDX)
    for r in range(11,16): vexp(SA+r)
    vexp(SB); vexp(SB+1); smf(OA,vc+4,SA+8,AIDX)
    if last<2: ldv_()
    for r in range(2,5): vexp(SB+r)
    if last<2:
        E('s_waitcnt lgkmcnt(2)'); mfma(SA,kn,AQ0,'0')
    if last<1: ldk_()
    for r in range(5,11): vexp(SB+r)
    smf(OB,vc,SB,AIDX)
    for r in range(11,16): vexp(SB+r)
def aflag(force,init=False):
    sk=uid('fl')
    E(f's_cmp_eq_u32 s{sT+5}, 0\n s_cbranch_scc0 {sk}')
    if not force: E(f's_getreg_b32 s{sT}, hwreg(HW_REG_IB_STS, 0, 4)\n s_cmp_eq_u32 s{sT}, 0\n s_cbranch_scc0 {sk}')
    E(f's_waitcnt vmcnt(0)\n s_mov_b32 s{sT+5}, 1'); flag_store(sT+6,2); LBL(sk)
if ROLL:
    AKN=120; AVN=121; sC=sT+4
    def rk(j):
        a_=AKA if j<4 else AKN
        return lambda: E(f'ds_read_b128 {vr(AK+4*(j&1),4)}, v{a_} offset:{(j%4)*4096}')
    def rv(j):
        a_=AVA if j<4 else AVN
        return lambda: E(f's_mov_b64 exec, {sr(sVM,2)}\n ds_read_b128 {vr(AV+8*(j&1),4)}, v{a_} offset:{(j%4)*4096+1024}\n ds_read_b128 {vr(AV+8*(j&1)+4,4)}, v{a_} offset:{(j%4)*4096+1536}\n s_mov_b64 exec, -1')
    for r in range(8,16): E(f'v_mov_b32 v{SB+r}, 0')
    E(f'v_add_u32 v{AKN}, 0x8000, v{AKA}\n v_add_u32 v{AVN}, 0x8000, v{AVA}\n v_add_u32 v{AKA}, 0x4000, v{AKA}\n v_add_u32 v{AVA}, 0x4000, v{AVA}\n s_mov_b32 s{sC}, 0\n s_mov_b32 s{sT+5}, 0')
    L.append('.p2align 6')
    LBL('L_A_LOOP')
    pair_iter(0,rk(2),rv(1)); pair_iter(1,rk(3),rv(2))
    E(f's_cmp_gt_u32 s{sC}, 6\n s_cbranch_scc1 L_A_LAST\n s_bitcmp1_b32 0x5f, s{sC}\n s_cbranch_scc1 L_A_RARE')
    LBL('L_A_RBACK')
    pair_iter(2,rk(4),rv(3)); pair_iter(3,rk(5),rv(4))
    E(f's_add_u32 s{sC}, s{sC}, 1\n s_mov_b32 s{sT+1}, 0x4000\n s_cmp_eq_u32 s{sC}, 2\n s_cselect_b32 s{sT+1}, {hex((-49152)&0xffffffff)}, s{sT+1}\n s_cmp_eq_u32 s{sC}, 3\n s_cselect_b32 s{sT+1}, {hex((-65536)&0xffffffff)}, s{sT+1}')
    E(f'v_mov_b32 v{AKA}, v{AKN}\n v_mov_b32 v{AVA}, v{AVN}\n v_add_u32 v{AKN}, s{sT+1}, v{AKN}\n v_add_u32 v{AVN}, s{sT+1}, v{AVN}\n s_branch L_A_LOOP')
    LBL('L_A_RARE')
    E(f's_waitcnt lgkmcnt(0)\n s_cmp_gt_u32 s{sC}, 3\n s_cbranch_scc1 L_A_R4')
    E(f's_cmp_eq_u32 s{sC}, 0\n s_cbranch_scc0 L_A_R1'); lds_spin(C_K1,None,4,vZ,2,sleep=0)
    LBL('L_A_R1')
    E(f's_cmp_eq_u32 s{sC}, 2\n s_cbranch_scc0 L_A_R2'); lds_spin(C_K2,None,4,vZ,2,sleep=1)
    LBL('L_A_R2')
    E(f's_cmp_eq_u32 s{sC}, 3\n s_cbranch_scc1 L_A_R3'); aflag(False); E('s_branch L_A_RBACK')
    LBL('L_A_R3'); aflag(True); E('s_branch L_A_RBACK')
    LBL('L_A_R4')
    E(f's_cmp_eq_u32 s{sC}, 4\n s_cbranch_scc0 L_A_R6'); lds_add(C_MID,1,vZ,2); E('s_waitcnt lgkmcnt(0)\n s_branch L_A_RBACK')
    LBL('L_A_R6'); lds_spin(C_MID,None,8,vZ,2,sleep=1); E('s_branch L_A_RBACK')
    LBL('L_A_LAST')
    pair_iter(2,None,rv(3),last=1); pair_iter(3,None,None,last=2)
else:
    E(f's_and_b32 s{sT+5}, s{sWave}, 6\n s_cmp_eq_u32 s{sT+5}, 2\n s_cselect_b32 s{sT+5}, 0, 1')
    for j in range(32):
        if j in (2,6,10): E('s_waitcnt lgkmcnt(0)'); tag_wait(T_G+4*{2:2,6:3,10:1}[j],1,2)
        if j in (1,2,3,5): aflag(j==5)
        if PRIO=='step' and j in (11,22): E(f's_setprio {1 if j==11 else 0}')
        if PRIO=='step4' and j in (6,16): E(f's_setprio {1 if j==6 else 0}')
        if OPT.get('jst') and j in (2,4,8,16,24): E('s_waitcnt lgkmcnt(0)'); cstamp('A',{2:1,4:2,8:3,16:7,24:10}[j],f'J{j}')
        if j==14: E('s_waitcnt lgkmcnt(0)'); lds_spin(C_K2,None,4,vZ,2,sleep=1)
        if j==20: lds_add(C_MID,1,vZ,2)
        if j==28: E('s_waitcnt lgkmcnt(0)'); lds_spin(C_SN,None,4,vZ,2,sleep=1); lds_spin(C_MID,None,8,vZ,2,sleep=1)
        def lv(j=j):
            if j==19: E(f'v_add_u32 v{AVA}, 0x10000, v{AVA}')
            ldv(j+1)
        def lk(j=j):
            if j==18: E(f'v_add_u32 v{AKA}, 0x10000, v{AKA}')
            ldk(j+2)
        if j==31:
            C('has the partner of this wave (same queries, other keys) already left its sums ?  if so they arrive during the last tile')
            E(f'ds_read_b32 v127, v{AEX+2} offset:16\n ds_read_b32 v125, v{vZ} offset:{C_LOC-L_ST}')
            for q in range(2): E(f'ds_read_b128 {vr(128+12*q,4)}, v{AEX} offset:{2304*q}\n ds_read_b128 {vr(132+12*q,4)}, v{AEX} offset:{2304*q+1024}\n ds_read_b32 v{136+12*q}, v{AEX+1} offset:{2304*q+2048}')
        pair_iter(j,lk,lv,first=(j==0),last=(2 if j==31 else 1 if j==30 else 0),extra=(1 if j in (0,20) else 0))
E('s_nop 1'); smf(OB,AV+8+4,SB+8,AIDX)
stamp('A',5,'A loop done'); cstamp('A',9,'loop done')
C('---- the first wave of a pair to finish leaves both partial sums in LDS and ends ; the second one finishes both heads')
E(f'v_readfirstlane_b32 s{sT+1}, v127\n v_readfirstlane_b32 s{sT+9}, v125\n s_cmp_eq_u32 s{sT+1}, 1\n s_cbranch_scc1 L_A_LATE')
E(f'v_mov_b32 v2, 1\n s_mov_b64 exec, 1\n ds_add_rtn_u32 v3, v{AEX+2}, v2\n s_mov_b64 exec, -1\n s_waitcnt lgkmcnt(0)\n v_readfirstlane_b32 s{sT+1}, v3\n s_cmp_eq_u32 s{sT+1}, 0\n s_cbranch_scc0 L_A_TIE\n s_nop 3')
for q,O in enumerate((OA,OB)): E(f'ds_write_b128 v{AEX}, {vr(O,4)} offset:{2304*q}\n ds_write_b128 v{AEX}, {vr(O+4,4)} offset:{2304*q+1024}\n ds_write_b32 v{AEX+1}, v{O+8} offset:{2304*q+2048}')
E(f's_mov_b64 exec, 1\n ds_write_b32 v{AEX+2}, v2 offset:16\n s_mov_b64 exec, -1\n s_waitcnt lgkmcnt(0)\n s_branch L_A_STD')
LBL('L_A_TIE')
E(f's_mov_b32 s{sCnt}, {SPIN_LIMIT}')
LBL('L_A_TI2')
E(f'ds_read_b32 v127, v{AEX+2} offset:16')
for q in range(2): E(f'ds_read_b128 {vr(128+12*q,4)}, v{AEX} offset:{2304*q}\n ds_read_b128 {vr(132+12*q,4)}, v{AEX} offset:{2304*q+1024}\n ds_read_b32 v{136+12*q}, v{AEX+1} offset:{2304*q+2048}')
E(f's_waitcnt lgkmcnt(0)\n v_readfirstlane_b32 s{sT+1}, v127\n s_cmp_eq_u32 s{sT+1}, 1\n s_cbranch_scc1 L_A_LATE\n s_sub_u32 s{sCnt}, s{sCnt}, 1\n s_cbranch_scc0 L_A_TI2')
LBL('L_A_LATE')
for r in range(9): E(f'v_add_f32 v{OA+r}, v{OA+r}, v{140+r}')
E('s_waitcnt vmcnt(0)')
def setupA(): E(f's_mov_b32 s{sT+2}, {hex(WS_KVA)}\n s_mov_b32 s{sT+3}, 64')
for q,(O,Q_) in enumerate(((OA,AQ0),(OB,AQ1))):
    if q==1:
        for r in range(9): E(f'v_add_f32 v{OB+r}, v{OB+r}, v{128+r}')
    dst=152+4*q
    finalize(O,dst,2,f'L_FB_A{q}',f'L_FB_A{q}_BACK',126)
    if q==1: E(f's_xor_b32 s{sOA}, s{sOA}, 0x400')
    E(f's_cmp_eq_u32 s{sT+9}, 0\n s_cbranch_scc1 L_A_FAR{q}\n buffer_store_dwordx4 {vr(dst,4)}, v6, {sr(sWS)}, s{sOA} offen\n s_branch L_A_ST{q}')
    LBL(f'L_A_FAR{q}')
    E(f'buffer_store_dwordx4 {vr(dst,4)}, v6, {sr(sWS)}, s{sOA} offen sc1')
    LBL(f'L_A_ST{q}')
    fallback(f'L_FB_A{q}',f'L_FB_A{q}_BACK',Q_,O,SA,AK,AV,AIDX,3,6,7,None,setupA)
LBL('L_A_STD')
stamp('A',6,'oA published')
stamp_flush(12,'A')
LBL('L_END')
E('s_endpgm')
L.append('L_CODE_END:')
L.extend(TAIL)
L.append('    s_endpgm\n.fill 1200, 4, 0xbf810000')

hdr=open('cdna_kernels/%s.s.ref'%NAME).read().split('; Override launch')[0]
txt=hdr
txt+=f'; @launch grid=(256,1,1) block=(768,1,1) lds={LDS_TOTAL}\n'
for n in ('WS_KVA','WS_KVB','WS_OA','WS_OB','WS_STAMP','NSTAMP'): txt+=f'; CONST {n} = {hex(globals()[n])}\n'
for r,i,n in STN: txt+=f'; STAMPNAME {r} {i} {n}\n'
txt+=f'''.amdgcn_target "amdgcn-amd-amdhsa--gfx950"
.text
.globl {NAME}_kernel
.p2align 8
.type {NAME}_kernel,@function
{NAME}_kernel:
'''+'\n'.join(L)+f'''
.section .rodata,"a"
.p2align 6
.amdhsa_kernel {NAME}_kernel
  .amdhsa_next_free_vgpr 168
  .amdhsa_next_free_sgpr 102
  .amdhsa_accum_offset 168
  .amdhsa_group_segment_fixed_size 0
  .amdhsa_kernarg_size 96
  .amdhsa_user_sgpr_count 2
  .amdhsa_user_sgpr_kernarg_segment_ptr 1
  .amdhsa_system_sgpr_workgroup_id_x 1
.end_amdhsa_kernel
'''
open(OUT,'w').write(txt)
print('wrote',OUT,len(L),'lines')
```

```python
import sys, math, struct
NAME='gated_mix__grouped_kv_mqa__sliding_block__prompt'
DIAG = '--diag' in sys.argv
OUT = [a for a in sys.argv[1:] if not a.startswith('--')]
OUT = OUT[0] if OUT else 'cdna_kernels/%s.s'%NAME
OPT=dict(a.lstrip('-').split('=') for a in sys.argv[1:] if a.startswith('--') and '=' in a)
MAP=OPT.get('map','b'); ROT=OPT.get('rot','full'); PRIO=OPT.get('prio','step'); FLAG_IT=int(OPT.get('flagit','1')); PK=int(OPT.get('pk','7')); FORCE_K=int(OPT.get('forcek','7')); SENTK=int(OPT.get('sentk','14')); DENSE=OPT.get('dense','0')=='1'; ROLL=OPT.get('roll','0')=='1'; WT=OPT.get('wtouch','0')=='1'; KVK=int(OPT.get('kvk','13'))
def f2u(f): return struct.unpack('<I',struct.pack('<f',f))[0]

WS_EPOCH=0x0
WS_FKVA=0x1000
WS_FKVB=0x4000
WS_FOB =0xC000
WS_FOA =0x14000
WS_G   =0x1C000
WS_KVA =0x20000
WS_QB  =0x40000
WS_KVB =0x240000
WS_OA  =0x640000
WS_OB  =0x840000
WS_STAMP=0xA40000
NSTAMP=16
L_WQ=0; L_X=65536; L_ST=131072; L_CTL=L_ST+30720
L_GW=L_CTL; L_G=L_CTL+1024; L_C=L_CTL+1024+256
C_X=L_C+0
C_Q=L_C+4
C_K0=L_C+8; C_K1=L_C+12; C_K2=L_C+16; C_BP=L_C+20; C_MID=L_C+24; C_WO=L_C+28; C_WD=L_C+32; C_QR=L_C+36; C_SN=L_C+40; C_LOC=L_C+44; T_PT=L_C+256; T_X=L_C+272; T_PL=L_C+304; T_FL=L_C+308; T_G=L_C+320; T_X0=L_C+336; T_K0=L_C+352; T_Q1=L_C+356; T_H=L_C+368; T_TAG=L_C+372; C_PR=L_C+384; T_PR=L_C+400
L_EX=L_ST
LDS_TOTAL=163840
SPIN_LIMIT=400000
CSCALE=f2u(0.25*math.log2(math.e))
NEGBIG=f2u(-1e9)
L_LO=f2u(2.0**-24); L_HI=f2u(2.0**60)

sX=28; sWQ=32; sWKV=36; sWB=40; sWOA=44; sWOB=48; sG=52; sOUT=56; sWS=60; sDBG=64
sWave=68; sPb=69; sHg=70; sTag=71
sT=72
sCnt=84; sB=85
sXcc=65
sVM=86
sST=88
vZ=1
L=[]
def E(s):
    for ln in s.split('\n'):
        if ln.strip(): L.append('    '+ln.strip())
def LBL(s): L.append(s+':')
def C(s): L.append('    ; '+s)
_uid=[0]
def uid(p):
    _uid[0]+=1; return f'{p}_{_uid[0]}'
def vr(a,n): return f'v[{a}:{a+n-1}]'
def sr(a,n=4): return f's[{a}:{a+n-1}]'
def srd(dst,ptr,nbytes):
    E(f's_mov_b32 s{dst}, s{ptr}\n s_mov_b32 s{dst+1}, s{ptr+1}\n s_mov_b32 s{dst+2}, {hex(nbytes)}\n s_mov_b32 s{dst+3}, 0x20000')
STN=[]
def stamp(role,i,name):
    if OPT.get('acc') and role=='B' and i==10: return
    if OPT.get('jst') and role=='A' and i in (1,2,3,7): return
    if OPT.get('bst') and role=='B' and i in (6,7,8,9) and not name.startswith('arrive'): return
    if not DIAG: return
    STN.append((role,i,name))
    E(f's_memrealtime s[100:101]\n s_waitcnt lgkmcnt(0)\n s_mov_b32 s{sST+i}, s100')
ECHO=OPT.get('echo')
def echo_mark(name):
    if ECHO==name or name=='start' and ECHO:
        r=98 if name=='start' else 99
        E(f's_memrealtime s[100:101]\n s_waitcnt lgkmcnt(0)\n s_mov_b32 s{r}, s100')
def echo_end():
    if not ECHO: return
    E('s_waitcnt vmcnt(0)'); echo_mark('end')
    E('s_memrealtime s[100:101]\n s_waitcnt lgkmcnt(0)\n s_sub_u32 s99, s99, s98\n s_add_u32 s99, s99, s100')
    LBL('L_ECHO')
    E('s_memrealtime s[100:101]\n s_waitcnt lgkmcnt(0)\n s_sub_u32 s100, s100, s99\n s_cmp_lt_i32 s100, 0\n s_cbranch_scc1 L_ECHO')
def cstamp(role,i,name):
    if OPT.get('jst') and i in (10,11) and not name.startswith('J'): return
    if not DIAG: return
    STN.append((role,i,'CYC '+name))
    E(f's_memtime s[100:101]\n s_waitcnt lgkmcnt(0)\n s_mov_b32 s{sST+i}, s100')
def tacc(role,i,name,code):
    if not (DIAG and OPT.get('acc')): E(code); return
    if (role,i,'ACC '+name) not in STN: STN.append((role,i,'ACC '+name))
    E(f's_memtime s[100:101]\n s_waitcnt lgkmcnt(0)\n s_sub_u32 s{sST+i}, s{sST+i}, s100')
    E(code)
    E(f's_memtime s[100:101]\n s_waitcnt lgkmcnt(0)\n s_add_u32 s{sST+i}, s{sST+i}, s100')
def stamp_flush(nmax,role='B'):
    if not DIAG: return
    if OPT.get('dbg'):
        m={'A':[(0,1),(2,2),(7,3),(3,4),(1,5),(4,6),(5,7),(6,8)],'B':[(4,9),(6,10),(7,11),(9,12),(10,13),(11,14)]}[role]
        sk=uid('nd')
        srd(sDBG,24,256)
        E(f's_bfe_u32 s{sT}, s2, 0x30003\n s_cmp_eq_u32 s{sT}, 0\n s_cbranch_scc0 {sk}\n v_mov_b32 v2, 0\n s_not_b32 s{sT}, s{sST}\n v_writelane_b32 v2, s{sT}, 0')
        for i,sl in m: E(f'v_writelane_b32 v2, s{sST+i}, {sl}')
        E(f'v_lshlrev_b32 v3, 2, v0\n s_mov_b64 exec, 0xffff\n buffer_atomic_umax v2, v3, {sr(sDBG)}, 0 offen sc1\n s_mov_b64 exec, -1')
        LBL(sk)
        return
    if OPT.get('hwid'): E(f's_getreg_b32 s{sST+11}, hwreg(HW_REG_HW_ID)\n s_getreg_b32 s{sST+10}, hwreg(HW_REG_XCC_ID)')
    E('v_mov_b32 v2, 0')
    for i in range(nmax): E(f'v_writelane_b32 v2, s{sST+i}, {i}')
    E(f's_mul_i32 s{sT}, s2, 12\n s_add_u32 s{sT}, s{sT}, s{sWave}\n s_lshl_b32 s{sT}, s{sT}, 6\n s_add_u32 s{sT}, s{sT}, {hex(WS_STAMP)}')
    E(f'v_lshlrev_b32 v3, 2, v0\n s_mov_b64 exec, 0xffff\n buffer_store_dword v2, v3, {sr(sWS)}, s{sT} offen\n s_mov_b64 exec, -1')

def lds_add(off,val,vz,vt):
    E(f'v_mov_b32 v{vt}, {val}\n s_mov_b64 exec, 1\n ds_add_u32 v{vz}, v{vt} offset:{off-L_ST}\n s_mov_b64 exec, -1')
def lds_spin(off,mask,val,vz,vt,sleep=1):
    a=uid('spin'); d=uid('spind')
    E(f's_mov_b32 s{sCnt}, {SPIN_LIMIT}')
    LBL(a)
    E(f'ds_read_b32 v{vt}, v{vz} offset:{off-L_ST}\n s_waitcnt lgkmcnt(0)\n v_readfirstlane_b32 s{sT}, v{vt}')
    if mask is not None: E(f's_and_b32 s{sT}, s{sT}, {hex(mask)}')
    E(f's_cmp_eq_u32 s{sT}, {hex(val)}\n s_cbranch_scc1 {d}\n s_sub_u32 s{sCnt}, s{sCnt}, 1\n s_cbranch_scc1 {d}')
    if sleep: E(f's_sleep {sleep}')
    E(f's_branch {a}')
    LBL(d)
def tag_set(off,sidx,vt):
    if sidx is None: E(f'v_mov_b32 v{vt}, {off}')
    else: E(f's_lshl_b32 s{sT}, s{sidx}, 2\n s_add_u32 s{sT}, s{sT}, {off}\n v_mov_b32 v{vt}, s{sT}')
    E(f'v_mov_b32 v{vt+1}, 1\n s_mov_b64 exec, 1\n ds_write_b32 v{vt}, v{vt+1}\n s_mov_b64 exec, -1')
def tag_wait(off,n,vt,sleep=0,once=None):
    a=uid('tw'); d=uid('twd')
    E(f'v_and_b32 v{vt}, {n-1}, v0\n v_lshlrev_b32 v{vt}, 2, v{vt}\n v_add_u32 v{vt}, {off}, v{vt}')
    if once:
        E(f'ds_read_b32 v{vt+1}, v{vt}\n s_waitcnt lgkmcnt(0)\n v_cmp_ne_u32 vcc, 1, v{vt+1}\n s_cbranch_vccz {once}')
        return
    E(f's_mov_b32 s{sCnt}, {SPIN_LIMIT}')
    LBL(a)
    E(f'ds_read_b32 v{vt+1}, v{vt}\n s_waitcnt lgkmcnt(0)\n v_cmp_ne_u32 vcc, 1, v{vt+1}\n s_cbranch_vccz {d}\n s_sub_u32 s{sCnt}, s{sCnt}, 1\n s_cbranch_scc1 {d}')
    if sleep: E(f's_sleep {sleep}')
    E(f's_branch {a}')
    LBL(d)
def tag_get(vt):
    E(f'ds_read_b32 v{vt}, v{vZ} offset:{T_TAG-L_ST}\n s_waitcnt lgkmcnt(0)\n v_readfirstlane_b32 s{sTag}, v{vt}')
def poll(vaddr,n,vt,sleep=1):
    a=uid('poll'); d=uid('polld')
    E(f's_mov_b32 s{sCnt}, {SPIN_LIMIT}')
    LBL(a)
    op={1:'buffer_load_dword',2:'buffer_load_dwordx2',3:'buffer_load_dwordx3',4:'buffer_load_dwordx4'}[n]
    E(f'{op} {vr(vt,n) if n>1 else "v%d"%vt}, v{vaddr}, {sr(sWS)}, 0 offen sc1\n s_waitcnt vmcnt(0)')
    for i in range(n): E(f'v_xor_b32 v{vt+i}, s{sTag}, v{vt+i}')
    if n==2: E(f'v_or_b32 v{vt}, v{vt}, v{vt+1}')
    if n>=3: E(f'v_or3_b32 v{vt}, v{vt}, v{vt+1}, v{vt+2}')
    if n==4: E(f'v_or_b32 v{vt}, v{vt}, v{vt+3}')
    E(f'v_cmp_ne_u32 vcc, 0, v{vt}\n s_cbranch_vccz {d}\n s_sub_u32 s{sCnt}, s{sCnt}, 1\n s_cbranch_scc1 {d}')
    if sleep: E(f's_sleep {sleep}')
    E(f's_branch {a}')
    LBL(d)
def flag_store(soff_reg,vt):
    E(f'v_mov_b32 v{vt}, s{sTag}\n s_mov_b64 exec, 1\n buffer_store_dword v{vt}, off, {sr(sWS)}, s{soff_reg} sc1\n s_mov_b64 exec, -1')
def mfma(d,a,b,c=None):
    cc = vr(d,16) if c is None else (c if isinstance(c,str) else vr(c,16))
    E(f'v_mfma_f32_32x32x16_bf16 {vr(d,16)}, {vr(a,4)}, {vr(b,4)}, {cc}')
def smf(o,v,s,idx): E(f'v_smfmac_f32_32x32x32_bf16 {vr(o,16)}, {vr(v,4)}, {vr(s,8)}, v{idx}')
def vexp(r): E(f'v_exp_f32 v{r}, v{r}')
def cvt(d,a,b): E(f'v_cvt_pk_bf16_f32 v{d}, v{a}, v{b}')
def set_vpad(regs,vt):
    E(f'v_and_b32 v{vt}, 27, v0\n v_cmp_eq_u32 vcc, 16, v{vt}\n v_mov_b32 v{vt}, 0x3f803f80\n s_nop 0\n v_cndmask_b32 v{regs[0]}, 0, v{vt}, vcc')
    for r in regs[1:]: E(f'v_mov_b32 v{r}, v{regs[0]}')
def xaddr(base,t_imm,vt):
    E(f'v_and_b32 v{vt}, 15, v0\n v_lshrrev_b32 v{base}, 5, v0\n v_xor_b32 v{base}, v{base}, v{vt}\n v_lshlrev_b32 v{base}, 4, v{base}')
    E(f'v_and_b32 v{vt}, 31, v0\n v_lshl_add_u32 v{base}, v{vt}, 10, v{base}\n v_add_u32 v{base}, {t_imm}, v{base}')
    for b in range(1,8): E(f'v_xor_b32 v{base+b}, {b<<5}, v{base}')
def traddr128(dst,vt,vt2,rowsel,colbase):
    E(f'v_lshrrev_b32 v{vt}, 5, v0\n v_lshlrev_b32 v{vt}, {rowsel}, v{vt}\n v_bfe_u32 v{vt2}, v0, 2, 2\n v_add_u32 v{vt}, v{vt}, v{vt2}\n v_lshlrev_b32 v{dst}, 7, v{vt}')
    E(f'v_bfe_u32 v{vt}, v0, 4, 1\n v_lshlrev_b32 v{vt}, 1, v{vt}\n v_bfe_u32 v{vt2}, v0, 1, 1\n v_add3_u32 v{vt}, v{vt}, v{vt2}, {colbase}')
    E(f'v_bfe_u32 v{vt2}, v0, 3, 1\n v_lshlrev_b32 v{vt2}, 2, v{vt2}\n v_xor_b32 v{vt}, v{vt}, v{vt2}\n v_lshl_add_u32 v{dst}, v{vt}, 4, v{dst}')
    E(f'v_and_b32 v{vt}, 1, v0\n v_lshl_add_u32 v{dst}, v{vt}, 3, v{dst}')
def dma128_voff(dst,vt,vt2,rowstride_sreg_or_shift,colbytes):
    E(f'v_lshrrev_b32 v{vt}, 3, v0')
    if isinstance(rowstride_sreg_or_shift,int): E(f'v_lshlrev_b32 v{dst}, {rowstride_sreg_or_shift}, v{vt}')
    else: E(f'v_mul_u32_u24 v{dst}, {rowstride_sreg_or_shift}, v{vt}')
    E(f'v_bfe_u32 v{vt}, v0, 4, 1\n v_lshlrev_b32 v{vt}, 2, v{vt}\n v_and_b32 v{vt2}, 7, v0\n v_xor_b32 v{vt}, v{vt}, v{vt2}\n v_lshl_add_u32 v{dst}, v{vt}, 4, v{dst}\n v_add_u32 v{dst}, {colbytes}, v{dst}')
def finalize(O,dst,vt,lbl_fb,lbl_back,vg):
    E(f'v_add_f32 v{vt}, |v{O}|, |v{O+1}|')
    for r in range(2,8): E(f'v_add_f32 v{vt}, v{vt}, |v{O+r}|')
    E(f'v_mov_b32 v{vt+1}, 0x7f800000\n v_cmp_nlt_f32 {sr(sT,2)}, v{vt}, v{vt+1}')
    E(f'v_cmp_nle_f32 vcc, {hex(L_LO)}, v{O+8}\n s_or_b64 {sr(sT,2)}, {sr(sT,2)}, vcc')
    E(f'v_cmp_nge_f32 vcc, {hex(L_HI)}, v{O+8}\n s_or_b64 {sr(sT,2)}, {sr(sT,2)}, vcc\n s_cbranch_scc1 {lbl_fb}')
    LBL(lbl_back)
    E(f'v_rcp_f32 v{vt}, v{O+8}\n s_nop 0\n v_mul_f32 v{vt}, v{vt}, v{vg}')
    for r in range(0,8,2): E(f'v_pk_mul_f32 {vr(O+r,2)}, {vr(O+r,2)}, {vr(vt,2)} op_sel_hi:[1,0]')
    for r in range(4): cvt(dst+r,O+2*r,O+2*r+1)
    E(f'v_min_u32 v{dst}, -2, v{dst}')

TAIL=[]
RETRY=[]
def fallback(lbl,back,Q,O,S,K,V,IDX,vM,vK,vV,ntile,soff_setup,first_mask=None,last_mask=None,first_cond=None):
    global L
    save=L; L=[]
    LBL(lbl)
    soff_setup()
    E(f'v_mov_b32 v{vM}, 0xff800000')
    for p in (0,1):
        lp=uid('fbl')
        if p==1:
            E(f'v_mov_b32 v{S}, v{vM}\n s_nop 1\n v_permlane32_swap_b32 v{S}, v{vM}\n s_nop 1\n v_max_f32 v{vM}, v{vM}, v{S}')
            for r in range(16): E(f'v_mov_b32 v{O+r}, 0')
        E(f's_mov_b32 s{sT+5}, s{sT+2}\n s_mov_b32 s{sT+6}, 0')
        LBL(lp)
        E(f'buffer_load_dwordx4 {vr(K,4)}, v{vK}, {sr(sWS)}, s{sT+5} offen sc1')
        if p==1:
            E(f's_mov_b64 exec, {sr(sVM,2)}\n buffer_load_dwordx4 {vr(V,4)}, v{vV}, {sr(sWS)}, s{sT+5} offen offset:1024 sc1\n buffer_load_dwordx4 {vr(V+4,4)}, v{vV}, {sr(sWS)}, s{sT+5} offen offset:1536 sc1\n s_mov_b64 exec, -1')
        E('s_waitcnt vmcnt(0)')
        if first_mask is None:
            mfma(S,K,Q,'0')
        else:
            a=uid('fbm'); b=uid('fbm'); j=uid('fbm')
            E(f's_add_u32 s{sT+7}, s{sT+6}, 1\n s_cmp_eq_u32 s{sT+7}, s{sT+3}\n s_cbranch_scc1 {a}')
            E(f's_cmp_lt_u32 s{sT+6}, s{sT+4}\n s_cbranch_scc1 {b}')
            mfma(S,K,Q,'0'); E(f's_branch {j}')
            LBL(a); mfma(S,K,Q,last_mask); E(f's_branch {j}')
            LBL(b); mfma(S,K,Q,first_mask)
            LBL(j)
        E('s_nop 15')
        if p==0:
            for r in range(0,16,2): E(f'v_max3_f32 v{vM}, v{S+r}, v{S+r+1}, v{vM}')
        else:
            for r in range(16): E(f'v_sub_f32 v{S+r}, v{S+r}, v{vM}')
            for r in range(16): vexp(S+r)
            E('s_nop 1'); smf(O,V,S,IDX); smf(O,V+4,S+8,IDX)
        E(f's_add_u32 s{sT+5}, s{sT+5}, 2048\n s_add_u32 s{sT+6}, s{sT+6}, 1\n s_cmp_lt_u32 s{sT+6}, s{sT+3}\n s_cbranch_scc1 {lp}')
    E(f's_nop 15\n s_branch {back}')
    TAIL.extend(L); L=save

E('s_cmp_ge_u32 s2, 256\n s_cbranch_scc1 L_END')
if ECHO=='karg': E('s_memrealtime s[100:101]\n s_waitcnt lgkmcnt(0)\n s_mov_b32 s97, s100')
E('s_load_dwordx16 s[4:19], s[0:1], 0\n s_load_dwordx8 s[20:27], s[0:1], 64')
E(f'v_lshrrev_b32 v1, 6, v0\n v_and_b32 v0, 63, v0\n v_readfirstlane_b32 s{sWave}, v1')
if MAP=='b':
    E(f's_and_b32 s{sT}, s2, 7\n s_lshr_b32 s{sT+1}, s2, 3\n s_and_b32 s{sT+2}, s{sT+1}, 3\n s_lshl_b32 s{sPb}, s{sT}, 2\n s_or_b32 s{sPb}, s{sPb}, s{sT+2}\n s_lshr_b32 s{sHg}, s{sT+1}, 2')
else:
    E(f's_bfe_u32 s{sPb}, s2, 0x20001\n s_lshl_b32 s{sPb}, s{sPb}, 3\n s_bfe_u32 s{sT}, s2, 0x30003\n s_or_b32 s{sPb}, s{sPb}, s{sT}\n s_and_b32 s{sHg}, s2, 1\n s_lshl_b32 s{sHg}, s{sHg}, 2\n s_lshr_b32 s{sT}, s2, 6\n s_or_b32 s{sHg}, s{sHg}, s{sT}')
E(f's_mov_b32 s{sVM}, 0xffff\n s_mov_b32 s{sVM+1}, 0xffff')
if DIAG:
    for i in range(12): E(f's_mov_b32 s{sST+i}, 0')
C('clear the LDS counters and flags while the kernel arguments arrive')
E(f'v_lshlrev_b32 v2, 3, v0\n v_add_u32 v2, {L_C}, v2\n v_mov_b32 v4, 0\n v_mov_b32 v5, 0\n ds_write_b64 v2, v[4:5]')
E('s_waitcnt lgkmcnt(0)\n s_barrier')
stamp('A',0,'start'); stamp('B',0,'start'); echo_mark('start')
if ECHO=='karg': E('s_sub_u32 s99, s98, s97\n s_mul_i32 s99, s99, 10\n s_add_u32 s99, s99, s98')
srd(sX,4,2048*1024); srd(sWS,26,0x10000000)
E(f's_cmp_lt_u32 s{sWave}, 8\n s_cbranch_scc1 L_A')


KVPOS=[L_ST,32768,49152,16384,0,65536,81920,98304]
L_PART=L_ST+24576
L_QA=0; L_QB=8192; L_WO=0; L_FX=65536
sOut=66; sOb=67; sPass=64
sRot=sT+11
def mktag(): E(f's_mul_i32 s{sTag}, s{sTag}, 0x9E3779B1\n s_add_u32 s{sTag}, s{sTag}, 0x7F4A7C15')
def mkrot():
    if MAP=='b': E(f's_and_b32 s{sRot}, s{sPb}, 3\n s_lshl_b32 s{sRot}, s{sRot}, 1\n s_add_u32 s{sRot}, s{sRot}, s{sHg}')
    else: E(f's_lshl_b32 s{sRot}, s{sHg}, 1\n s_add_u32 s{sRot}, s{sRot}, s{sPb}')
def touch(srd_,soff,n,vaddr,vd,sc1=False):
    for i in range(n):
        if i: E(f's_add_u32 s{soff}, s{soff}, 8192')
        E(f'buffer_load_dword v{vd}, v{vaddr}, {sr(srd_)}, s{soff} offen'+(' sc1' if sc1 else ''))
E(f's_setprio {2 if OPT.get("bp2") else 3}\n s_sub_u32 s{sB}, s{sWave}, 8')
if OPT.get('cpf','1')=='1':
    C('---- pull this WG\'s share of the kernel\'s own instructions into L2 (later instruction fetches then miss only the I-cache)')
    E(f's_cmp_eq_u32 s{sB}, 3\n s_cbranch_scc0 L_B_NCP\n s_getpc_b64 s[{sT}:{sT+1}]')
    LBL('L_B_PC')
    E(f's_lshr_b32 s{sT+2}, s2, 3\n s_mul_i32 s{sT+2}, s{sT+2}, (L_CODE_END-L_B_PC+4095)/4096*128\n s_add_u32 s{sT}, s{sT}, s{sT+2}\n s_addc_u32 s{sT+1}, s{sT+1}, 0')
    E(f'v_lshlrev_b32 v2, 7, v0\n v_mov_b32 v3, s{sT+1}\n v_add_co_u32 v2, vcc, s{sT}, v2\n s_nop 1\n v_addc_co_u32 v3, vcc, 0, v3, vcc\n s_lshl_b64 exec, 1, (L_CODE_END-L_B_PC+4095)/4096\n s_sub_u32 exec_lo, exec_lo, 1\n global_load_dword v19, v[2:3], off\n s_mov_b64 exec, -1')
    LBL('L_B_NCP')
C('---- x tile -> LDS as 8 blocks of [64 rows][64 k], block order rotated per WG ; wave b brings blocks b and b+4')
E('v_lshrrev_b32 v17, 3, v0\n v_lshlrev_b32 v17, 10, v17\n v_lshrrev_b32 v2, 4, v0\n v_and_b32 v3, 7, v0\n v_xor_b32 v2, v2, v3\n v_lshl_add_u32 v17, v2, 4, v17\n v_xor_b32 v18, 64, v17')
mkrot()
E(f's_lshl_b32 s{sT+7}, s{sPb}, 16\n s_lshl_b32 s{sT+6}, s{sB}, 13')
VQ=[]
def vwait(tag,extra=''):
    if tag not in VQ:
        if extra: E('s_waitcnt'+extra)
        return
    i=max(n for n,t in enumerate(VQ) if t==tag)
    n=len(VQ)-1-i; del VQ[:i+1]
    E(f's_waitcnt vmcnt({n})'+extra)
XD=OPT.get('xd','0')=='1'
def xblock(expr_add,ldsoff,rows):
    E(f's_add_u32 s{sT+1}, s{sRot}, {expr_add}\n s_and_b32 s{sT+1}, s{sT+1}, 7\n s_lshl_b32 s{sT+1}, s{sT+1}, 7\n s_add_u32 s{sT+1}, s{sT+1}, s{sT+7}')
if XD:
    E(f's_and_b32 s{sT+1}, s{sRot}, 7\n s_lshl_b32 s{sT+1}, s{sT+1}, 7\n s_add_u32 s{sT+1}, s{sT+1}, s{sT+7}\n s_lshl_b32 s{sT+2}, s{sB}, 14\n s_add_u32 s{sT+1}, s{sT+1}, s{sT+2}\n s_lshl_b32 s{sT+2}, s{sB}, 11\n s_add_u32 m0, s{sT+2}, 65536\n s_nop 0')
    E(f'buffer_load_dwordx4 v17, {sr(sX)}, s{sT+1} offen lds\n s_add_u32 m0, s{sT+2}, {65536+1024}\n s_add_u32 s{sT+1}, s{sT+1}, 8192\n buffer_load_dwordx4 v18, {sr(sX)}, s{sT+1} offen lds')
def xrest():
  for hb in range(2):
    sk=uid('xs')
    if XD and hb==0: E(f's_cmp_eq_u32 s{sB}, 0\n s_cbranch_scc1 {sk}')
    E(f's_add_u32 s{sT+1}, s{sRot}, s{sB}\n s_add_u32 s{sT+1}, s{sT+1}, {4*hb}\n s_and_b32 s{sT+1}, s{sT+1}, 7\n s_lshl_b32 s{sT+1}, s{sT+1}, 7\n s_add_u32 s{sT+1}, s{sT+1}, s{sT+7}')
    for n in range(8):
        E(f's_add_u32 m0, s{sT+6}, {65536+32768*hb+1024*n}')
        E(f's_add_u32 s{sT+1}, s{sT+1}, 8192' if n else 's_nop 0')
        E(f'buffer_load_dwordx4 v{17+(n&1)}, {sr(sX)}, s{sT+1} offen lds')
    if XD and hb==0: LBL(sk)
if not XD: xrest()
MU=128; MD=144; BQ=16; BK=24; BV=36; BS=64; BO=96; BIDX=60
C('---- constants for the later phases (idle time)')
E(f'v_mov_b32 v{vZ}, {L_ST}\n v_lshlrev_b32 v160, 4, v0\n v_lshlrev_b32 v163, 7, v0')
E('v_lshrrev_b32 v161, 5, v0\n v_lshlrev_b32 v161, 8, v161\n v_and_b32 v2, 15, v0\n v_lshl_add_u32 v161, v2, 4, v161')
srd(sWOA,12,512*1024); srd(sWOB,18,512*1024)
E(f'v_and_b32 v4, 31, v0\n v_lshrrev_b32 v5, 5, v0\n v_lshlrev_b32 v5, 2, v5\n v_sub_u32 v4, v4, v5\n s_mov_b32 s{sT}, {hex(NEGBIG)}')
for r in range(16):
    E(f'v_subrev_u32 v5, {8*(r//4)+r%4}, v4\n v_ashrrev_i32 v5, 31, v5\n v_and_b32 v{MD+r}, s{sT}, v5\n v_xor_b32 v{MU+r}, s{sT}, v{MD+r}')
set_vpad(list(range(BV,BV+24)),2); E(f'v_mov_b32 v{BIDX}, 0xdddddddd')
for r in range(32): E(f'v_mov_b32 v{BO+r}, 0')
E(f'v_min_u32 v2, 4, v0\n s_sub_i32 s{sT}, s{sPb}, 4\n v_add_u32 v2, s{sT}, v2\n v_max_i32 v2, 0, v2\n s_lshl_b32 s{sT}, s{sHg}, 5\n v_add_u32 v2, s{sT}, v2\n v_lshlrev_b32 v2, 7, v2\n v_add_u32 v162, {hex(WS_FKVB+8)}, v2')
E(f'v_and_b32 v2, 7, v0\n v_lshlrev_b32 v2, 5, v2\n v_add_u32 v2, s{sPb}, v2\n v_lshlrev_b32 v2, 7, v2\n v_add_u32 v166, {hex(WS_FKVB+16)}, v2')
sKh=sT+9; sTt=sT+10
E(f's_lshr_b32 s{sKh}, s{sB}, 1\n s_and_b32 s{sTt}, s{sB}, 1\n s_lshl_b32 s{sT+2}, s{sHg}, 7')
dma128_voff(10,2,3,10,f's{sT+2}')
E(f's_lshl_b32 s{sT+1}, s{sKh}, 2'); traddr128(11,2,3,2,f's{sT+1}')
E(f's_lshl_b32 s{sT+1}, s{sKh}, 15\n s_add_u32 s{sT+1}, s{sT+1}, {L_WO}\n v_add_u32 v11, s{sT+1}, v11\n v_xor_b32 v9, 64, v11')
E(f's_lshl_b32 s{sOut}, s{sPb}, 1\n s_add_u32 s{sOut}, s{sOut}, s{sTt}\n s_lshl_b32 s{sOut}, s{sOut}, 15\n s_lshl_b32 s{sT}, s{sKh}, 14\n s_add_u32 s{sOb}, s{sOut}, s{sT}\n s_add_u32 s{sOb}, s{sOb}, {hex(WS_OB)}')
E(f's_lshl_b32 s{sT}, s{sHg}, 7\n s_add_u32 s{sOut}, s{sOut}, s{sT}\n s_lshl_b32 s{sT}, s{sKh}, 6\n s_add_u32 s{sOut}, s{sOut}, s{sT}')
E('v_and_b32 v8, 31, v0\n v_lshlrev_b32 v167, 10, v8\n v_lshrrev_b32 v3, 5, v0\n v_lshl_add_u32 v167, v3, 4, v167\n v_lshlrev_b32 v8, 2, v8')
srd(sOUT,22,2048*1024)
E(f's_lshl_b32 s{sT}, s{sB}, 12\n s_add_u32 s{sT}, s{sT}, {L_FX}\n v_add_u32 v164, s{sT}, v160\n v_xor_b32 v165, 0x2000, v164\n s_mov_b32 s{sPass}, 0')
if XD:
    E('s_waitcnt vmcnt(0)'); tag_set(T_X0,sB,2); xrest()
E('s_waitcnt vmcnt(8)')
tag_set(T_X,sB,2)
stamp('B',1,'x landed'); echo_mark('xl')
E('s_waitcnt vmcnt(0)')
tag_set(T_X+16,sB,2)
tag_wait(T_G,4,2,sleep=4)
tag_get(2)
stamp('B',5,'BQ'); echo_mark('bq')
E('s_setprio 3')
def kvdma(c):
    E(f's_lshr_b32 s{sT+1}, s2, 3\n s_add_u32 s{sT+1}, s{sT+1}, {c}\n s_and_b32 s{sT+1}, s{sT+1}, 3\n s_lshl_b32 s{sT+1}, s{sT+1}, 2\n s_add_u32 s{sT+1}, s{sT+1}, s{sB}\n s_lshl_b32 s{sT+1}, s{sT+1}, 12')
    E(f's_lshl_b32 s{sT+2}, s{sB}, 12\n s_add_u32 m0, s{sT+2}, {KVPOS[c]}\n s_add_u32 s{sT+1}, s{sT+1}, {hex(WS_KVA+(65536 if c>=4 else 0))}')
    for i in range(4): E(f'buffer_load_dwordx4 v160, {sr(sWS)}, s{sT+1} offen offset:{1024*i} sc1 lds')
    VQ.extend([f'kv{c}']*4)
E(f's_lshl_b32 s{sT}, s{sB}, 11\n s_add_u32 s{sT}, s{sT}, {L_QB}\n v_add_u32 v3, s{sT}, v160')
for t in range(2): E(f'ds_read_b128 {vr(BQ+4*t,4)}, v3 offset:{1024*t}')
E(f's_lshl_b32 s{sT}, s{sPb}, 8\n s_add_u32 s{sT}, s{sT}, {hex(WS_G)}\n buffer_load_dword v61, v8, {sr(sWS)}, s{sT} offen sc1\n buffer_load_dword v62, v8, {sr(sWS)}, s{sT} offen offset:128 sc1\n s_waitcnt lgkmcnt(0)')
lds_add(C_QR,1,vZ,2)
C('---- second half of the shared K/V (throttled) ; o slots marked as not yet written')
for c in (5,6,7):
    kvdma(c); vwait(f'kv{c}')
E('v_sub_f32 v61, 1.0, v61\n v_sub_f32 v62, 1.0, v62')
lds_spin(C_QR,None,12,vZ,2,sleep=2)
kvdma(4)
E(f's_lshl_b32 s{sT+10}, s{sPb}, 6\n s_lshl_b32 s{sT+1}, s{sHg}, 2\n s_add_u32 s{sT+10}, s{sT+10}, s{sT+1}\n s_add_u32 s{sT+10}, s{sT+10}, s{sB}\n s_lshl_b32 s{sT+10}, s{sT+10}, 10')
E('v_mov_b32 v12, -1\n v_mov_b32 v13, -1\n v_mov_b32 v14, -1\n v_mov_b32 v15, -1')
for base in (WS_OA,WS_OA+32768,WS_OB,WS_OB+32768):
    E(f's_add_u32 s{sT+1}, s{sT+10}, {hex(base)}\n buffer_store_dwordx4 v[12:15], v160, {sr(sWS)}, s{sT+1} offen sc1'); VQ.append('s')
vwait('kv4')
lds_add(C_K2,1,vZ,2)
stamp('B',2,'K/V all in')
if OPT.get('nob'): stamp_flush(12); E('s_endpgm')
E(f's_lshl_b32 s{sT+3}, s{sHg}, 5\n s_add_u32 s{sT+3}, s{sT+3}, s{sPb}\n s_lshl_b32 s{sT+3}, s{sT+3}, 7\n s_lshl_b32 s{sT+1}, s{sB}, 2\n s_add_u32 s{sT+3}, s{sT+3}, s{sT+1}\n s_add_u32 s{sT+3}, s{sT+3}, {hex(WS_FKVB+16)}')
if MAP=='b':
    E(f's_cmp_ge_u32 s{sB}, 2\n s_cbranch_scc0 L_B_NOT\n s_lshr_b32 s{sT+1}, s2, 3\n s_lshl_b32 s{sT+1}, s{sT+1}, 14\n s_and_b32 s{sT+2}, s{sB}, 1\n s_lshl_b32 s{sT+2}, s{sT+2}, 13\n s_add_u32 s{sT+1}, s{sT+1}, s{sT+2}')
    touch(sWOB,sT+1,1,163,3); touch(sWOA,sT+1,1,163,3)
else:
    E(f's_cmp_eq_u32 s{sB}, 3\n s_cbranch_scc0 L_B_NOT\n s_lshr_b32 s{sT+1}, s2, 3\n s_lshl_b32 s{sT+1}, s{sT+1}, 14\n s_and_b32 s{sT+2}, s2, 1\n s_lshl_b32 s{sT+2}, s{sT+2}, 9\n s_add_u32 s{sT+1}, s{sT+1}, s{sT+2}')
    E('v_lshrrev_b32 v2, 2, v0\n v_lshlrev_b32 v2, 10, v2\n v_and_b32 v3, 3, v0\n v_lshl_add_u32 v2, v3, 7, v2')
    touch(sWOB,sT+1,1,2,3); touch(sWOA,sT+1,1,2,4)
LBL('L_B_NOT')
poll(162,2,4,sleep=3)
E(f's_getreg_b32 s{sXcc}, hwreg(HW_REG_XCC_ID, 0, 4)\n s_add_u32 s{sT}, s{sTag}, s{sXcc}\n v_mov_b32 v2, s{sT}\n s_mov_b64 exec, 1\n buffer_store_dword v2, off, {sr(sWS)}, s{sT+3} sc1\n s_mov_b64 exec, -1')
lds_add(C_SN,1,vZ,2)
stamp('B',6,'kvB flags seen')
C('---- window attention, head 4hg+b, two query tiles')
E(f's_lshl_b32 s{sT+8}, s{sHg}, 2\n s_add_u32 s{sT+8}, s{sT+8}, s{sB}\n s_lshl_b32 s{sT+8}, s{sT+8}, 6\n s_lshl_b32 s{sT+9}, s{sPb}, 1\n s_sub_i32 s{sT+9}, s{sT+9}, 8')
def btile(j): E(f's_add_i32 s{sT}, s{sT+9}, {j}\n s_max_i32 s{sT}, s{sT}, 0\n s_add_u32 s{sT}, s{sT}, s{sT+8}\n s_lshl_b32 s{sT}, s{sT}, 11\n s_add_u32 s{sT}, s{sT}, {hex(WS_KVB)}')
def bload(j):
    k=BK+4*(j%3); v=BV+8*(j%3)
    btile(j)
    E(f'buffer_load_dwordx4 {vr(k,4)}, v160, {sr(sWS)}, s{sT} offen sc1\n s_mov_b64 exec, {sr(sVM,2)}')
    E(f'buffer_load_dwordx4 {vr(v,4)}, v161, {sr(sWS)}, s{sT} offen offset:1024 sc1\n buffer_load_dwordx4 {vr(v+4,4)}, v161, {sr(sWS)}, s{sT} offen offset:1536 sc1\n s_mov_b64 exec, -1')
bload(0); bload(1)
for j in (2,6):
    E(f's_add_i32 s{sT}, s{sT+9}, {j}\n s_max_i32 s{sT}, s{sT}, 0\n s_add_i32 s{sT+1}, s{sT+9}, 6\n s_min_i32 s{sT}, s{sT}, s{sT+1}\n s_cmp_lt_i32 s{sT}, 0')
    sk=uid('tk'); E(f's_cbranch_scc1 {sk}\n s_add_u32 s{sT}, s{sT}, s{sT+8}\n s_lshl_b32 s{sT}, s{sT}, 11\n s_add_u32 s{sT}, s{sT}, {hex(WS_KVB)}')
    E(f'buffer_load_dword v3, v163, {sr(sWS)}, s{sT} offen sc1'); LBL(sk)
E('s_waitcnt lgkmcnt(0)')
for j in range(10):
    k=BK+4*(j%3); v=BV+8*(j%3)
    if j+2<10: bload(j+2)
    E(f's_waitcnt vmcnt({3*min(2,9-j)})')
    sk=uid('bskip')
    if j<8: E(f's_cmp_lt_i32 s{sT+9}, {-j}\n s_cbranch_scc1 {sk}')
    qs=[q for q in (0,1) if 0<=j-q<=8]
    for q in qs: mfma(BS+16*q,k,BQ+4*q,{0:MU,8:MD}.get(j-q,'0'))
    E('s_nop 10' if len(qs)==2 else 's_nop 11')
    for q in qs:
        S=BS+16*q; O=BO+16*q
        for r in range(10): vexp(S+r)
        smf(O,v,S,BIDX)
        for r in range(10,16): vexp(S+r)
        E('s_nop 1'); smf(O,v+4,S+8,BIDX)
    if j<8: LBL(sk)
E(f's_add_u32 s{sT+10}, s{sT+10}, {hex(WS_OB)}\n s_nop 14')
for q in range(2):
    fb=f'L_FB_B{q}'; bk=f'L_FB_B{q}_BACK'
    finalize(BO+16*q,4,2,fb,bk,61+q)
    E(f'buffer_store_dwordx4 v[4:7], v160, {sr(sWS)}, s{sT+10} offen sc1')
    if q==0: E(f's_add_u32 s{sT+10}, s{sT+10}, 32768\n s_nop 0')
    def setup(q=q):
        E(f's_add_i32 s{sT+2}, s{sT+9}, {q}\n s_cmp_ge_i32 s{sT+2}, 0\n s_cselect_b32 s{sT+4}, 1, 0\n s_max_i32 s{sT+2}, s{sT+2}, 0')
        E(f's_add_i32 s{sT+3}, s{sT+9}, {q+9}\n s_sub_u32 s{sT+3}, s{sT+3}, s{sT+2}\n s_add_u32 s{sT+2}, s{sT+2}, s{sT+8}\n s_lshl_b32 s{sT+2}, s{sT+2}, 11\n s_add_u32 s{sT+2}, s{sT+2}, {hex(WS_KVB)}')
    fallback(fb,bk,BQ+4*q,BO+16*q,BS,BK,BV,BIDX,3,160,161,None,setup,MU,MD)
C('---- output projection: wave (t=b&1, kh=b>>1): both 32-column tiles over heads 16kh..16kh+15 ; slot 0 = tile kh')
PA_=48; PW=80; PO=96; PB_=16
stamp('B',7,'oB published')
C('the eight WGs of this position block: marks in place ?  all on this die ?')
E(f's_mov_b32 s{sCnt}, {SPIN_LIMIT}')
LBL('L_B_PP')
E(f'buffer_load_dwordx4 v[4:7], v166, {sr(sWS)}, 0 offen sc1\n s_waitcnt vmcnt(0)')
for i in range(4): E(f'v_subrev_u32 v{4+i}, s{sTag}, v{4+i}')
E(f'v_or3_b32 v2, v4, v5, v6\n v_or_b32 v2, v2, v7\n v_cmp_lt_u32 vcc, 15, v2\n s_cbranch_vccz L_B_PPD\n s_sub_u32 s{sCnt}, s{sCnt}, 1\n s_cbranch_scc1 L_B_PPD\n s_sleep 3\n s_branch L_B_PP')
LBL('L_B_PPD')
if OPT.get('loc','1')=='1':
    E(f'v_cmp_ne_u32 vcc, s{sXcc}, v4\n s_cbranch_vccnz L_B_NLOC')
    lds_add(C_LOC,1,vZ,2)
    if OPT.get('probe'):
        E('s_branch L_B_PRB')
        LBL('L_B_NLOC')
        for i in range(8): E('s_sleep 127')
        LBL('L_B_PRB')
    else: LBL('L_B_NLOC')
lds_spin(C_MID,None,8,vZ,2,sleep=6)
def wodma(sr_):
    E(f's_lshl_b32 s{sT}, s{sB}, 14\n s_lshl_b32 s{sT+1}, s{sB}, 17')
    for n in range(16): E(f's_add_u32 m0, s{sT}, {L_WO+1024*n}\n s_add_u32 s{sT+2}, s{sT+1}, {8192*n}\n buffer_load_dwordx4 v10, {sr(sr_)}, s{sT+2} offen lds')
wodma(sWOB)
E('s_waitcnt vmcnt(0)')
lds_add(C_WO,1,vZ,2)
lds_spin(C_WO,None,4,vZ,2,sleep=2)
stamp('B',8,'woB landed')
LBL('L_B_GEMM')
def wread(s):
    f=PW+8*(s&1)
    for u,va in ((0,11),(1,9)): E(f'ds_read_b64_tr_b16 {vr(f+4*u,2)}, v{va} offset:{s*2048}\n ds_read_b64_tr_b16 {vr(f+4*u+2,2)}, v{va} offset:{s*2048+1024}')
wread(0)
def oloads(g0):
    for s in range(4*g0,16):
        if s%4==0: E(f's_add_u32 s{sT}, s{sOb}, {1024*s}')
        E(f'buffer_load_dwordx4 {vr(PO+4*s,4)}, v160, {sr(sWS)}, s{sT} offen offset:{1024*(s%4)} sc1')
E(f's_mov_b32 s{sCnt}, {SPIN_LIMIT}')
oloads(0)
for g in range(4):
    LBL(f'L_B_G{g}')
    E(f's_waitcnt vmcnt({12-4*g})')
    p=PO+16*g
    E(f'v_max_u32 v2, v{p}, v{p+4}\n v_max3_u32 v2, v{p+8}, v{p+12}, v2\n v_cmp_eq_u32 vcc, -1, v2\n s_cbranch_vccnz L_B_R{g}')
    LBL(f'L_B_K{g}')
    if DIAG and g==3:
        E(f's_cmp_eq_u32 s{sPass}, 0\n s_cbranch_scc1 L_B_NST'); stamp('B',10,'oA all seen'); LBL('L_B_NST')
    for s in range(4*g,4*g+4):
        if s<15: wread(s+1)
        E(f's_waitcnt lgkmcnt({4 if s<15 else 0})')
        f=PW+8*(s&1)
        if s==0:
            E(f's_cmp_eq_u32 s{sPass}, 0\n s_cbranch_scc0 L_B_M1')
            for u in range(2): mfma(PA_+16*u,f+4*u,PO+4*s,'0')
            E('s_branch L_B_M2'); LBL('L_B_M1')
            for u in range(2): mfma(PA_+16*u,f+4*u,PO+4*s)
            LBL('L_B_M2')
        else:
            for u in range(2): mfma(PA_+16*u,f+4*u,PO+4*s)
    save=L; L=[]
    LBL(f'L_B_R{g}')
    E(f's_sub_u32 s{sCnt}, s{sCnt}, 1\n s_cbranch_scc1 L_B_K{g}\n s_cmp_eq_u32 s{sPass}, 0\n s_cbranch_scc0 L_B_RR{g}\n s_sleep 16')
    LBL(f'L_B_RR{g}')
    E('s_waitcnt vmcnt(0)')
    oloads(g)
    E(f's_branch L_B_G{g}')
    RETRY.extend(L); L=save
E(f's_cmp_eq_u32 s{sPass}, 0\n s_cbranch_scc0 L_B_FIN')
lds_add(C_WD,1,vZ,2)
E(f's_add_u32 s{sOb}, s{sOb}, {hex((WS_OA-WS_OB)&0xffffffff)}\n s_mov_b32 s{sPass}, 1')
lds_spin(C_WD,None,4,vZ,2,sleep=2)
wodma(sWOA)
E('s_waitcnt vmcnt(0)')
stamp('B',9,'out-proj B done, woA in')
E('s_barrier'); echo_mark('aend'); E('s_branch L_B_GEMM')
LBL('L_B_FIN')
E('s_nop 9')
for q in range(4): E(f'ds_write_b128 v164, {vr(PA_+16+4*q,4)} offset:{1024*q}')
E('s_waitcnt lgkmcnt(0)\n s_barrier')
for q in range(4): E(f'ds_read_b128 {vr(PB_+4*q,4)}, v165 offset:{1024*q}')
for q in range(4):
    E(f's_waitcnt lgkmcnt({3-q})')
    for r in range(4): E(f'v_add_f32 v{PA_+4*q+r}, v{PA_+4*q+r}, v{PB_+4*q+r}')
for r in range(8): cvt(PA_+r,PA_+2*r,PA_+2*r+1)
E('s_nop 1')
for gq in range(2): E(f'v_permlane32_swap_b32 v{PA_+4*gq}, v{PA_+4*gq+2}\n v_permlane32_swap_b32 v{PA_+4*gq+1}, v{PA_+4*gq+3}')
for gq in range(2): E(f'buffer_store_dwordx4 {vr(PA_+4*gq,4)}, v167, {sr(sOUT)}, s{sOut} offen offset:{32*gq} '+OPT.get('ost','').replace('+',' '))
if DIAG: E('s_waitcnt vmcnt(0)')
stamp('B',11,'out stored'); echo_end()
stamp_flush(12)
E('s_endpgm')
L.extend(RETRY)

LBL('L_A')
AIDX=8; AKA=9; AVA=10; AQ0=12; AQ1=16; AK=20; AV=28; SA=44; SB=60; OA=76; OB=92; XA=108; WA=160; AF=112
L_PG=L_PART+4096
sStr=sT+10; sRing=sT+7
E(f'v_and_b32 v5, 15, v0\n v_lshlrev_b32 v6, 4, v0\n s_and_b32 s{sT+9}, s{sHg}, 3\n s_cmp_lt_u32 s{sWave}, 4\n s_cbranch_scc0 L_A_KV')
C('---- waves 0..3 : wave m streams 64 columns of matrix m (wq | B q | B k | B v) through its own 8 x 2KB ring')
E(f's_cmp_eq_u32 s{sWave}, 0\n s_cselect_b32 s{sWB}, s6, s16\n s_cselect_b32 s{sWB+1}, s7, s17\n s_mov_b32 s{sWB+2}, {512*3072}\n s_cselect_b32 s{sWB+2}, {512*1024}, s{sWB+2}\n s_mov_b32 s{sWB+3}, 0x20000')
E(f's_movk_i32 s{sStr}, 3072\n s_cselect_b32 s{sStr}, 0x400, s{sStr}\n s_max_u32 s{sT+1}, s{sWave}, 1\n s_sub_u32 s{sT+1}, s{sT+1}, 1\n s_lshl_b32 s{sT+1}, s{sT+1}, 10\n s_lshl_b32 s{sT+2}, s{sHg}, 7\n s_add_u32 s{sT+1}, s{sT+1}, s{sT+2}')
dma128_voff(162,2,3,f's{sStr}',f's{sT+1}')
mkrot()
E(f's_lshl_b32 s{sStr}, s{sStr}, 3\n s_lshl_b32 s{sRing}, s{sWave}, 14')
E(f's_sub_u32 s{sT+1}, s{sStr}, 1024\n v_add_u32 v163, s{sT+1}, v162\n s_lshl_b32 s{sStr}, s{sStr}, 1')
def wdma_parts(st):
    p0=f's_add_u32 m0, s{sRing}, {(st%8)*2048}\n'
    if st%4==0: p0+=f's_add_u32 s{sT+3}, s{sRot}, {st//4}\n s_and_b32 s{sT+3}, s{sT+3}, 7\n s_lshl_b32 s{sT+3}, s{sT+3}, 2\n s_mul_i32 s{sT+3}, s{sT+3}, s{sStr}'
    else: p0+=f's_add_u32 s{sT+3}, s{sT+3}, s{sStr}'
    VQ.extend([f'w{st}']*2)
    return [p0, f'buffer_load_dwordx4 v162, {sr(sWB)}, s{sT+3} offen lds', f'buffer_load_dwordx4 v163, {sr(sWB)}, s{sT+3} offen offset:1024 lds']
def wdma(st):
    for p in wdma_parts(st): E(p)
if OPT.get('p0','2')!='0': E(f's_cmp_eq_u32 s{sWave}, 0\n s_cbranch_scc0 L_A_NP0\n s_setprio {OPT.get("p0","3")}\nL_A_NP0:')
NW0=int(OPT.get('nw0','8'))
VQ.clear()
for st in range(NW0): wdma(st)
E('s_branch L_A_NOKV')
LBL('L_A_KV')
E(f's_setprio 3\n s_load_dword s{sTag}, s[26:27], {WS_EPOCH}')
C('---- kvA: this WG makes 16 positions (hg&3) of K (hg<4) or V, and their gate ; wave 4+u sums k in [128u,128u+128)')
E(f's_cmp_lt_u32 s{sHg}, 4\n s_cselect_b32 s{sWKV}, s8, s10\n s_cselect_b32 s{sWKV+1}, s9, s11\n s_mov_b32 s{sWKV+2}, 16384\n s_mov_b32 s{sWKV+3}, 0x20000\n s_and_b32 s{sT+3}, s{sWave}, 3')
E(f's_lshl_b32 s{sT+1}, s{sPb}, 16\n s_lshl_b32 s{sT+2}, s{sT+9}, 14\n s_add_u32 s{sT+1}, s{sT+1}, s{sT+2}\n s_lshl_b32 s{sT+2}, s{sT+3}, 8\n s_add_u32 s{sT+1}, s{sT+1}, s{sT+2}')
E('v_lshlrev_b32 v3, 10, v5\n v_and_b32 v4, 48, v0\n v_add_u32 v3, v3, v4')
for s_ in range(4): E(f'buffer_load_dwordx4 {vr(116+4*s_,4)}, v3, {sr(sX)}, s{sT+1} offen offset:{64*s_}')
if MAP=='c' and OPT.get('wkt','1')=='1':
    E(f's_cmp_eq_u32 s{sWave}, 4\n s_cbranch_scc0 L_A_NT2\n s_lshr_b32 s{sT+4}, s2, 3\n s_lshl_b32 s{sT+4}, s{sT+4}, 9\n v_lshlrev_b32 v2, 7, v0\n s_mov_b64 exec, 15\n buffer_load_dword v167, v2, {sr(sWKV)}, s{sT+4} offen\n s_mov_b64 exec, -1')
    LBL('L_A_NT2')
srd(sG,20,1024)
for s_ in range(4): E(f'buffer_load_dwordx4 {vr(132+4*s_,4)}, v4, {sr(sG)}, s{sT+2} offen offset:{64*s_}')
E(f's_lshl_b32 s{sT}, s{sT+3}, 12\n s_add_u32 m0, s{sT}, {L_ST}\n s_nop 0')
for i in range(4): E(f'buffer_load_dwordx4 v6, {sr(sWKV)}, s{sT} offen offset:{1024*i} lds')
LBL('L_A_NOKV')
C('---- address of this wave\'s o slot, constants')
sOA=sT+8
E(f's_and_b32 s{sOA}, s{sWave}, 1\n s_lshl_b32 s{sT+1}, s{sPb}, 1\n s_add_u32 s{sOA}, s{sOA}, s{sT+1}\n s_lshl_b32 s{sOA}, s{sOA}, 5')
E(f's_lshl_b32 s{sT+1}, s{sHg}, 2\n s_add_u32 s{sOA}, s{sOA}, s{sT+1}\n s_and_b32 s{sT+1}, s{sWave}, 2\n s_add_u32 s{sOA}, s{sOA}, s{sT+1}\n s_lshr_b32 s{sT+1}, s{sWave}, 2\n s_add_u32 s{sOA}, s{sOA}, s{sT+1}\n s_lshl_b32 s{sOA}, s{sOA}, 10\n s_add_u32 s{sOA}, s{sOA}, {hex(WS_OA)}')
E(f'v_mov_b32 v{vZ}, {L_ST}\n v_lshlrev_b32 v11, 2, v0')
traddr128(WA,2,3,3,'0'); E(f's_lshl_b32 s{sT+1}, s{sWave}, 14\n v_add_u32 v{WA}, s{sT+1}, v{WA}\n v_xor_b32 v{WA+1}, 64, v{WA}')
E(f'v_and_b32 v2, 31, v0\n v_bfe_u32 v3, v0, 1, 3\n v_lshrrev_b32 v7, 5, v0\n v_xor_b32 v3, v3, v7\n v_lshlrev_b32 v{XA}, 7, v2\n v_lshl_add_u32 v{XA}, v3, 4, v{XA}\n v_add_u32 v{XA}, 0x10000, v{XA}')
for s_ in range(1,4): E(f'v_xor_b32 v{XA+s_}, {s_<<5}, v{XA}')
for r in range(32): E(f'v_mov_b32 v{OA+r}, 0')
set_vpad(list(range(AV,AV+16)),2)
E(f'v_mov_b32 v{AIDX}, 0xdddddddd')
E(f's_lshr_b32 s{sT+1}, s{sWave}, 2\n s_lshl_b32 s{sT+1}, s{sT+1}, 11\n v_add_u32 v{AKA}, s{sT+1}, v6')
E(f'v_lshlrev_b32 v7, 8, v7\n v_lshl_add_u32 v7, v5, 4, v7\n v_add_u32 v{AVA}, s{sT+1}, v7')
E(f's_lshl_b32 s{sT+6}, s{sHg}, 5\n s_add_u32 s{sT+6}, s{sT+6}, s{sPb}\n s_lshl_b32 s{sT+6}, s{sT+6}, 7\n s_lshl_b32 s{sT+1}, s{sWave}, 2\n s_add_u32 s{sT+6}, s{sT+6}, s{sT+1}\n s_add_u32 s{sT+6}, s{sT+6}, {hex(WS_FKVB)}')
E(f's_cmp_lt_u32 s{sWave}, 4\n s_cbranch_scc1 L_A_GQ\n s_waitcnt lgkmcnt(0)')
mktag()
E(f'v_lshrrev_b32 v4, 4, v0\n v_lshlrev_b32 v4, 8, v4\n v_lshl_add_u32 v4, v5, 3, v4\n s_add_u32 s{sT}, s{sT}, {L_ST}\n v_add_u32 v4, s{sT}, v4')
E(f's_lshl_b32 s{sT+1}, s{sT+3}, 10\n s_add_u32 s{sT+1}, s{sT+1}, {L_PART}\n v_add_u32 v2, s{sT+1}, v6\n s_lshl_b32 s{sT+1}, s{sT+3}, 8\n s_add_u32 s{sT+1}, s{sT+1}, {L_PG}\n v_add_u32 v3, s{sT+1}, v11')
E('s_waitcnt vmcnt(0)')
for s_ in range(4): E(f'ds_read_b64_tr_b16 {vr(44+4*s_,2)}, v4 offset:{1024*s_}\n ds_read_b64_tr_b16 {vr(46+4*s_,2)}, v4 offset:{1024*s_+128}')
for s_ in range(4): E(f'v_mfma_f32_16x16x32_bf16 v[64:67], {vr(132+4*s_,4)}, {vr(116+4*s_,4)}, {"0" if s_==0 else "v[64:67]"}')
E(f's_cmp_lt_u32 s{sHg}, 4\n s_waitcnt lgkmcnt(0)\n s_cbranch_scc0 L_A_VJOB')
for s_ in range(4): E(f'v_mfma_f32_16x16x32_bf16 v[60:63], {vr(44+4*s_,4)}, {vr(116+4*s_,4)}, {"0" if s_==0 else "v[60:63]"}')
E('s_branch L_A_KVJ')
LBL('L_A_VJOB')
for s_ in range(4): E(f'v_mfma_f32_16x16x32_bf16 v[60:63], {vr(116+4*s_,4)}, {vr(44+4*s_,4)}, {"0" if s_==0 else "v[60:63]"}')
LBL('L_A_KVJ')
E('s_nop 0\n ds_write_b32 v3, v64\n s_nop 5\n ds_write_b128 v2, v[60:63]')
stamp('A',2,'kvA partial')
E('s_waitcnt lgkmcnt(0)')
tag_set(T_PT,sT+3,2)
E(f's_cmp_eq_u32 s{sWave}, 7\n s_cbranch_scc0 L_A_BS')
C('---- wave 7: reduce the four partial tiles, store, flag')
tag_wait(T_PT,4,2)
E(f'v_add_u32 v3, {L_PART}, v6\n v_add_u32 v4, {L_PG}, v11')
for i in range(4): E(f'ds_read_b128 {vr(116+4*i,4)}, v3 offset:{1024*i}')
for i in range(2): E(f'ds_read2st64_b32 {vr(148+2*i,2)}, v4 offset0:{2*i} offset1:{2*i+1}')
E(f's_lshl_b32 s{sT+3}, s{sPb}, 1\n s_lshr_b32 s{sT+4}, s{sT+9}, 1\n s_add_u32 s{sT+3}, s{sT+3}, s{sT+4}\n s_lshl_b32 s{sT+3}, s{sT+3}, 11\n s_add_u32 s{sT+3}, s{sT+3}, {hex(WS_KVA)}\n s_and_b32 s{sT+4}, s{sT+9}, 1')
E(f's_cmp_lt_u32 s{sHg}, 4\n s_cselect_b32 s{sT+5}, 9, 3\n s_cselect_b32 s{sT+7}, 3, 8\n s_cselect_b32 s{sT+1}, 8, 9\n s_cselect_b32 s{sT}, 0, 0x400')
E(f's_lshl_b32 s{sT+4}, s{sT+4}, s{sT+1}\n s_add_u32 s{sT+3}, s{sT+3}, s{sT+4}\n s_add_u32 s{sT+3}, s{sT+3}, s{sT}')
E(f'v_bfe_u32 v3, v0, 4, 1\n v_lshrrev_b32 v4, 5, v0\n v_lshlrev_b32 v5, 4, v5\n v_lshl_add_u32 v5, v3, s{sT+5}, v5\n v_lshl_add_u32 v5, v4, s{sT+7}, v5')
FPLS=int(OPT.get('fpl','2'))
E(f's_lshl_b32 s{sT+7}, s{sPb}, 3\n s_add_u32 s{sT+7}, s{sT+7}, s{sHg}\n s_and_b32 s{sT+1}, s{sT+7}, {(1<<FPLS)-1}\n s_lshr_b32 s{sT+7}, s{sT+7}, {FPLS}\n s_lshl_b32 s{sT+7}, s{sT+7}, 7\n s_lshl_b32 s{sT+1}, s{sT+1}, 2\n s_add_u32 s{sT+7}, s{sT+7}, s{sT+1}\n s_add_u32 s{sT+7}, s{sT+7}, {hex(WS_FKVA)}')
E('s_waitcnt lgkmcnt(2)')
for st_ in (8,4):
    for r in range(st_): E(f'v_add_f32 v{116+r}, v{116+r}, v{116+st_+r}')
cvt(116,116,117); cvt(117,118,119)
E(f'buffer_store_dwordx2 v[116:117], v5, {sr(sWS)}, s{sT+3} offen sc1')
E(f's_cmp_lt_u32 s{sHg}, 4\n s_waitcnt lgkmcnt(0)\n s_cbranch_scc0 L_A_SF')
for st_ in (2,1):
    for r in range(st_): E(f'v_add_f32 v{148+r}, v{148+r}, v{148+st_+r}')
E(f's_mov_b32 s{sT}, {hex(f2u(-math.log2(math.e)))}\n v_mul_f32 v148, s{sT}, v148\n v_exp_f32 v148, v148')
E(f's_lshl_b32 s{sT}, s{sPb}, 2\n s_add_u32 s{sT}, s{sT}, s{sT+9}\n v_add_f32 v148, 1.0, v148\n v_rcp_f32 v148, v148\n s_lshl_b32 s{sT}, s{sT}, 6\n s_add_u32 s{sT}, s{sT}, {hex(WS_G)}')
E(f's_mov_b64 exec, 0xffff\n buffer_store_dword v148, v11, {sr(sWS)}, s{sT} offen sc1\n s_mov_b64 exec, -1')
LBL('L_A_SF')
E('s_waitcnt vmcnt(0)')
flag_store(sT+7,2)
stamp('A',3,'kvA flag sent')
LBL('L_A_BS')
E(f's_cmp_eq_u32 s{sWave}, 6\n s_cbranch_scc0 L_A_B8')
C('---- wave 6: wait for every K/V piece, fetch this WG\'s share into L2, tell the projection waves')
E(f'v_lshlrev_b32 v16, 7, v0\n v_lshrrev_b32 v17, {FPLS-2}, v0\n v_lshlrev_b32 v17, 7, v17\n v_and_b32 v18, {(1<<(FPLS-2))-1}, v0\n v_lshl_add_u32 v17, v18, 4, v17\n v_add_u32 v17, {hex(WS_FKVA)}, v17')
E(f'v_mov_b32 v2, s{sTag}\n ds_write_b32 v{vZ}, v2 offset:{T_TAG-L_ST}')
tag_wait(T_PT,4,2)
tag_wait(T_PL,1,2,sleep=2)
C('lanes whose four flags are in drop out of the next look')
E(f's_mov_b32 s{sCnt}, {SPIN_LIMIT}')
LBL('L_A_PL')
E(f'buffer_load_dwordx4 v[12:15], v17, {sr(sWS)}, 0 offen sc1\n s_waitcnt vmcnt(0)')
for i in range(4): E(f'v_xor_b32 v{12+i}, s{sTag}, v{12+i}')
E(f'v_or3_b32 v12, v12, v13, v14\n v_or_b32 v12, v12, v15\n v_cmp_ne_u32 vcc, 0, v12\n s_cbranch_vccz L_A_PLD\n s_sub_u32 s{sCnt}, s{sCnt}, 1\n s_cbranch_scc1 L_A_PLD\n s_mov_b64 exec, vcc\n s_sleep {OPT.get("psl","16")}\n s_branch L_A_PL')
LBL('L_A_PLD')
E('s_mov_b64 exec, -1')
E(f's_lshr_b32 s{sT+5}, s2, 3\n s_lshl_b32 s{sT+5}, s{sT+5}, 12\n s_add_u32 s{sT+5}, s{sT+5}, {hex(WS_KVA)}')
E(f's_mov_b32 exec_hi, 0\n buffer_load_dword v117, v16, {sr(sWS)}, s{sT+5} offen sc1\n s_mov_b64 exec, -1')
tag_set(T_FL,None,2)
stamp('A',3,'kvA flag sent')
E(f's_lshr_b32 s{sT+5}, s2, 3\n s_and_b32 s{sT+5}, s{sT+5}, 3\n s_lshl_b32 s{sT+5}, s{sT+5}, 14\n s_add_u32 s{sT+5}, s{sT+5}, {hex(WS_KVA)}')
for q in range(4):
    E(f's_mov_b32 m0, {L_ST+4096*q}\n s_add_u32 s{sT+4}, s{sT+5}, {4096*q}')
    for i in range(4): E(f'buffer_load_dwordx4 v6, {sr(sWS)}, s{sT+4} offen offset:{1024*i} sc1 lds')
E('s_waitcnt vmcnt(0)')
tag_set(T_K0,None,2)
stamp('A',7,'G1')
E(f's_cmp_eq_u32 s2, 0\n s_cbranch_scc0 L_A_B8\n s_mov_b32 s{sT}, 0')
flag_store(sT,2)
E('s_branch L_A_B8')
LBL('L_A_GQ')
PAC=[44,60,128,144]; PFR=[12,112,92]
def areads_l(st):
    f=PFR[st%3]; so=(st%8)*2048; o=[]
    for i in range(2): o+= [f'ds_read_b64_tr_b16 {vr(f+4*i,2)}, v{WA+i} offset:{so}', f'ds_read_b64_tr_b16 {vr(f+4*i+2,2)}, v{WA+i} offset:{so+512}']
    for t in range(2): o.append(f'ds_read_b128 {vr(f+8+4*t,4)}, v{XA+st%4} offset:{(st//4)*8192+4096*t}')
    return o
def areads(st):
    for p in areads_l(st): E(p)
def kv_parts(p):
    VQ.extend(['kv']*2)
    return [f's_add_u32 m0, s{sRing}, {p*2048}\n s_add_u32 s{sT+4}, s{sT+5}, {p*2048}']+[f'buffer_load_dwordx4 v6, {sr(sWS)}, s{sT+4} offen offset:{1024*n} sc1 lds' for n in range(2)]
def kvpiece(p):
    for q in kv_parts(p): E(q)
for st in range(NW0,8): wdma(st)
E(f's_sub_u32 s{sT+4}, s{sWave}, 1\n s_cmp_eq_u32 s{sWave}, 1\n s_cselect_b32 s{sT+4}, 3, s{sT+4}\n s_lshr_b32 s{sT+5}, s2, 3\n s_add_u32 s{sT+5}, s{sT+5}, s{sT+4}\n s_and_b32 s{sT+5}, s{sT+5}, 3\n s_lshl_b32 s{sT+5}, s{sT+5}, 14\n s_add_u32 s{sT+5}, s{sT+5}, {hex(WS_KVA)}')
tag_wait(T_X0,4,2) if XD else tag_wait(T_X,1,2)
stamp('A',7,'G1'); cstamp('A',10,'G1')
vwait('w0'); areads(0); vwait('w1'); areads(1)
VQ0=list(VQ)
PLK=int(OPT.get('plk','15'))
E(f's_cmp_eq_u32 s{sWave}, 3\n s_cbranch_scc1 L_A_GV')
def gstep(var,st,kv):
    f=PFR[st%3]
    def mm(i,t):
        d=PAC[2*i+t]; c='0' if st==0 else None
        if var==0: mfma(d,f+4*i,f+8+4*t,c)
        else: mfma(d,f+8+4*t,f+4*i,c)
    vwait(f'w{st+2}',f' lgkmcnt({6 if st<31 else 0})')
    rd=areads_l(st+2) if st+2<32 else []
    dm=wdma_parts(st+8) if st+8<32 else (kv_parts(st%8) if kv else [])
    gaps=[rd[0:2]+dm[0:1], rd[2:4]+dm[1:2], rd[4:6], dm[2:3]]
    if st>=30: gaps=[[f'v_mov_b32 v{OB+8*(st-30)+2*q+r}, 0' for r in range(2)]+gaps[q] for q in range(4)]
    for q,(i,t) in enumerate(((0,0),(0,1),(1,0),(1,1)) if st<31 else ((1,0),(1,1),(0,0),(0,1))):
        mm(i,t)
        for p in gaps[q]: E(p)
for var in (0,1):
    if var: LBL('L_A_GV')
    VQ[:]=VQ0
    for st in range(24):
        if OPT.get('hold') and st==0:
            E(f's_cmp_eq_u32 s{sWave}, 0\n s_cbranch_scc1 L_A_NH{var}'); tag_wait(T_H,1,2,sleep=2); LBL(f'L_A_NH{var}')
        if OPT.get('hold') and var==0 and st==int(OPT.get('hold')):
            E(f's_cmp_eq_u32 s{sWave}, 0\n s_cbranch_scc0 L_A_NH2'); tag_set(T_H,None,2); E('s_waitcnt lgkmcnt(0)'); LBL('L_A_NH2')
        if st==2: E('s_waitcnt lgkmcnt(0)'); tag_wait(T_X,4,2)
        if st==14: E('s_waitcnt lgkmcnt(0)'); tag_wait(T_X+16,4,2)
        if st==PLK and var==1: tag_set(T_PL,None,2); E('s_waitcnt lgkmcnt(0)')
        gstep(var,st,False)
    stamp('A',2,'step 24')
    if var==0: E(f's_cmp_eq_u32 s{sWave}, 0\n s_cbranch_scc1 L_A_G0')
    tag_wait(T_FL,1,2,once=f'L_A_GK{var}')
    if var==0: LBL('L_A_G0')
    V1=list(VQ)
    for st in range(24,32): gstep(var,st,False)
    if var==0: E(f's_cmp_eq_u32 s{sWave}, 0\n s_cbranch_scc1 L_A_GE0')
    tag_wait(T_FL,1,2)
    for p in range(8): kvpiece(p)
    E(f's_branch L_A_GE{var}')
    LBL(f'L_A_GK{var}')
    VQ[:]=V1
    for st in range(24,32): gstep(var,st,True)
    LBL(f'L_A_GE{var}')
    stamp('A',1,'proj loop done'); cstamp('A',11,'pl')
    E(f's_lshl_b32 s{sT+4}, s{sHg}, 8\n s_lshl_b32 s{sT+5}, s{sPb}, 1\n s_add_u32 s{sT+4}, s{sT+4}, s{sT+5}\n s_lshl_b32 s{sT+4}, s{sT+4}, 11\n s_add_u32 s{sT+4}, s{sT+4}, {hex(WS_KVB)}')
    if var==0:
        E(f's_cmp_eq_u32 s{sWave}, 2\n s_cbranch_scc1 L_A_EK')
        C('q (A / B): scale, pack, hand over through LDS')
        E(f's_cmp_eq_u32 s{sWave}, 0\n s_cbranch_scc1 L_A_Q0')
        tag_wait(T_G,1,2)
        LBL('L_A_Q0')
        E(f's_lshl_b32 s{sT+1}, s{sWave}, 13\n s_add_u32 s{sT+1}, s{sT+1}, {L_QA}\n v_add_u32 v3, s{sT+1}, v6\n s_mov_b32 s{sT+2}, {hex(CSCALE)}\n s_mov_b32 s{sT+3}, {hex(CSCALE)}\n s_lshl_b32 s{sT+1}, s{sWave}, 2\n s_add_u32 s{sT+1}, s{sT+1}, {T_Q1}\n v_mov_b32 v4, s{sT+1}\n v_mov_b32 v5, 1')
        for i in (1,0):
            for t in range(2):
                d=PAC[2*i+t]
                for r in range(0,16,2): E(f'v_pk_mul_f32 {vr(d+r,2)}, {vr(d+r,2)}, {sr(sT+2,2)}')
                for r in range(8): cvt(d+r,d+2*r,d+2*r+1)
                for hh in range(2): E(f'ds_write_b128 v3, {vr(d+4*hh,4)} offset:{(2*i+hh)*2048+1024*t}')
            if i==1: E(f's_mov_b64 exec, 1\n ds_write_b32 v4, v5\n s_mov_b64 exec, -1')
        E('s_waitcnt vmcnt(0) lgkmcnt(0)')
        tag_set(T_G,sWave,2)
        E('s_branch L_A_B8')
        LBL('L_A_EK')
        E('s_waitcnt vmcnt(0)')
        tag_set(T_G,sWave,2)
        for i in range(2):
            for t in range(2):
                d=PAC[2*i+t]
                for r in range(8): cvt(d+r,d+2*r,d+2*r+1)
                for hh in range(2): E(f's_add_u32 s{sT+5}, s{sT+4}, {(2*i+hh)*131072}\n buffer_store_dwordx4 {vr(d+4*hh,4)}, v6, {sr(sWS)}, s{sT+5} offen offset:{2048*t} sc1')
        E('s_branch L_A_B8')
    else:
        E('s_waitcnt vmcnt(0)')
        tag_set(T_G,sWave,2)
        E('v_bfe_u32 v3, v0, 4, 1\n v_lshl_add_u32 v3, v3, 17, v7')
        for i in range(2):
            for t in range(2):
                d=PAC[2*i+t]
                for r in range(8): cvt(d+r,d+2*r,d+2*r+1)
                E('s_nop 1')
                for gq in range(2): E(f'v_permlane32_swap_b32 v{d+4*gq}, v{d+4*gq+2}\n v_permlane32_swap_b32 v{d+4*gq+1}, v{d+4*gq+3}')
                E(f's_add_u32 s{sT+5}, s{sT+4}, {i*2*131072}')
                for gq in range(2): E(f'buffer_store_dwordx4 {vr(d+4*gq,4)}, v3, {sr(sWS)}, s{sT+5} offen offset:{2048*t+1024+512*gq} sc1')
LBL('L_A_B8')
E('s_setprio 0')
E(f's_and_b32 s{sT+1}, s{sWave}, 2\n s_lshr_b32 s{sT+2}, s{sWave}, 2\n s_add_u32 s{sT+1}, s{sT+1}, s{sT+2}\n s_lshl_b32 s{sT+1}, s{sT+1}, 11\n s_and_b32 s{sT+2}, s{sWave}, 1\n s_lshl_b32 s{sT+2}, s{sT+2}, 10\n s_add_u32 s{sT+1}, s{sT+1}, s{sT+2}\n s_add_u32 s{sT+1}, s{sT+1}, {L_QA}\n v_add_u32 v2, s{sT+1}, v6\n v_xor_b32 v3, 0x800, v2')
AK0=120; AV0=121; AEX=122; AG=126
E(f'v_add_u32 v{AK0}, {L_ST}, v{AKA}\n v_add_u32 v{AV0}, {L_ST}, v{AVA}')
E(f's_and_b32 s{sT+2}, s{sWave}, 3\n s_mul_i32 s{sT+1}, s{sT+2}, 4608\n s_add_u32 s{sT+1}, s{sT+1}, {L_EX}\n v_add_u32 v{AEX}, s{sT+1}, v6\n v_add_u32 v{AEX+1}, s{sT+1}, v11')
E(f's_lshl_b32 s{sT+2}, s{sT+2}, 2\n s_add_u32 s{sT+2}, s{sT+2}, {C_PR}\n v_mov_b32 v{AEX+2}, s{sT+2}')
E(f's_and_b32 s{sT+1}, s{sWave}, 1\n s_lshl_b32 s{sT+2}, s{sPb}, 1\n s_add_u32 s{sT+1}, s{sT+1}, s{sT+2}\n s_lshl_b32 s{sT+1}, s{sT+1}, 7\n s_add_u32 s{sT+1}, s{sT+1}, {hex(WS_G)}\n v_and_b32 v127, 0x7c, v11')
tag_wait(T_K0,1,4,sleep=int(OPT.get('asl','2')))
E(f'buffer_load_dword v{AG}, v127, {sr(sWS)}, s{sT+1} offen sc1')
tag_get(4)
def kvoff(j):
    return (j%4)*4096+(0 if j<4 else KVPOS[j//4]-(65536 if j>=20 else 0))
def ldk(j): E(f'ds_read_b128 {vr(AK+4*(j&1),4)}, v{AK0 if j<4 else AKA} offset:{kvoff(j)}')
def ldv(j): E(f's_mov_b64 exec, {sr(sVM,2)}\n ds_read_b128 {vr(AV+8*(j&1),4)}, v{AV0 if j<4 else AVA} offset:{kvoff(j)+1024}\n ds_read_b128 {vr(AV+8*(j&1)+4,4)}, v{AV0 if j<4 else AVA} offset:{kvoff(j)+1536}\n s_mov_b64 exec, -1')
ldk(0); ldv(0); ldk(1)
E(f's_bitcmp1_b32 s{sWave}, 1\n s_cbranch_scc0 L_A_WL')
tag_wait(T_Q1,1,4,sleep=int(OPT.get('asl2','1')))
E('s_branch L_A_WD')
LBL('L_A_WL')
tag_wait(T_G,1,4,sleep=int(OPT.get('asl2','1')))
LBL('L_A_WD')
stamp('A',4,'BQ'); cstamp('A',8,'BQ')
E(f'ds_read_b128 {vr(AQ0,4)}, v2\n ds_read_b128 {vr(AQ1,4)}, v3')
if PRIO in ('step','step4'): E('s_setprio 2')
E('s_waitcnt lgkmcnt(0)'); mfma(SA,AK,AQ0,'0')
lds_add(C_QR,1,vZ,2)
E('s_nop 7')
def pair_iter(j,ldk_,ldv_,first=False,last=0,extra=0):
    kc=AK+4*(j&1); kn=AK+4*((j+1)&1); vc=AV+8*(j&1); vp=AV+8*((j+1)&1)
    vexp(SA); vexp(SA+1)
    if not first: smf(OB,vp+4,SB+8,AIDX)
    for r in range(2,5): vexp(SA+r)
    mfma(SB,kc,AQ1,'0')
    for r in range(5,10): vexp(SA+r)
    E(f's_waitcnt lgkmcnt({(1 if last<2 else 0)+extra})')
    vexp(SA+10); smf(OA,vc,SA,AIDX)
    for r in range(11,16): vexp(SA+r)
    vexp(SB); vexp(SB+1); smf(OA,vc+4,SA+8,AIDX)
    if last<2: ldv_()
    for r in range(2,5): vexp(SB+r)
    if last<2:
        E('s_waitcnt lgkmcnt(2)'); mfma(SA,kn,AQ0,'0')
    if last<1: ldk_()
    for r in range(5,11): vexp(SB+r)
    smf(OB,vc,SB,AIDX)
    for r in range(11,16): vexp(SB+r)
def aflag(force,init=False):
    sk=uid('fl')
    E(f's_cmp_eq_u32 s{sT+5}, 0\n s_cbranch_scc0 {sk}')
    if not force: E(f's_getreg_b32 s{sT}, hwreg(HW_REG_IB_STS, 0, 4)\n s_cmp_eq_u32 s{sT}, 0\n s_cbranch_scc0 {sk}')
    E(f's_waitcnt vmcnt(0)\n s_mov_b32 s{sT+5}, 1'); flag_store(sT+6,2); LBL(sk)
if ROLL:
    AKN=120; AVN=121; sC=sT+4
    def rk(j):
        a_=AKA if j<4 else AKN
        return lambda: E(f'ds_read_b128 {vr(AK+4*(j&1),4)}, v{a_} offset:{(j%4)*4096}')
    def rv(j):
        a_=AVA if j<4 else AVN
        return lambda: E(f's_mov_b64 exec, {sr(sVM,2)}\n ds_read_b128 {vr(AV+8*(j&1),4)}, v{a_} offset:{(j%4)*4096+1024}\n ds_read_b128 {vr(AV+8*(j&1)+4,4)}, v{a_} offset:{(j%4)*4096+1536}\n s_mov_b64 exec, -1')
    for r in range(8,16): E(f'v_mov_b32 v{SB+r}, 0')
    E(f'v_add_u32 v{AKN}, 0x8000, v{AKA}\n v_add_u32 v{AVN}, 0x8000, v{AVA}\n v_add_u32 v{AKA}, 0x4000, v{AKA}\n v_add_u32 v{AVA}, 0x4000, v{AVA}\n s_mov_b32 s{sC}, 0\n s_mov_b32 s{sT+5}, 0')
    L.append('.p2align 6')
    LBL('L_A_LOOP')
    pair_iter(0,rk(2),rv(1)); pair_iter(1,rk(3),rv(2))
    E(f's_cmp_gt_u32 s{sC}, 6\n s_cbranch_scc1 L_A_LAST\n s_bitcmp1_b32 0x5f, s{sC}\n s_cbranch_scc1 L_A_RARE')
    LBL('L_A_RBACK')
    pair_iter(2,rk(4),rv(3)); pair_iter(3,rk(5),rv(4))
    E(f's_add_u32 s{sC}, s{sC}, 1\n s_mov_b32 s{sT+1}, 0x4000\n s_cmp_eq_u32 s{sC}, 2\n s_cselect_b32 s{sT+1}, {hex((-49152)&0xffffffff)}, s{sT+1}\n s_cmp_eq_u32 s{sC}, 3\n s_cselect_b32 s{sT+1}, {hex((-65536)&0xffffffff)}, s{sT+1}')
    E(f'v_mov_b32 v{AKA}, v{AKN}\n v_mov_b32 v{AVA}, v{AVN}\n v_add_u32 v{AKN}, s{sT+1}, v{AKN}\n v_add_u32 v{AVN}, s{sT+1}, v{AVN}\n s_branch L_A_LOOP')
    LBL('L_A_RARE')
    E(f's_waitcnt lgkmcnt(0)\n s_cmp_gt_u32 s{sC}, 3\n s_cbranch_scc1 L_A_R4')
    E(f's_cmp_eq_u32 s{sC}, 0\n s_cbranch_scc0 L_A_R1'); lds_spin(C_K1,None,4,vZ,2,sleep=0)
    LBL('L_A_R1')
    E(f's_cmp_eq_u32 s{sC}, 2\n s_cbranch_scc0 L_A_R2'); lds_spin(C_K2,None,4,vZ,2,sleep=1)
    LBL('L_A_R2')
    E(f's_cmp_eq_u32 s{sC}, 3\n s_cbranch_scc1 L_A_R3'); aflag(False); E('s_branch L_A_RBACK')
    LBL('L_A_R3'); aflag(True); E('s_branch L_A_RBACK')
    LBL('L_A_R4')
    E(f's_cmp_eq_u32 s{sC}, 4\n s_cbranch_scc0 L_A_R6'); lds_add(C_MID,1,vZ,2); E('s_waitcnt lgkmcnt(0)\n s_branch L_A_RBACK')
    LBL('L_A_R6'); lds_spin(C_MID,None,8,vZ,2,sleep=1); E('s_branch L_A_RBACK')
    LBL('L_A_LAST')
    pair_iter(2,None,rv(3),last=1); pair_iter(3,None,None,last=2)
else:
    E(f's_and_b32 s{sT+5}, s{sWave}, 6\n s_cmp_eq_u32 s{sT+5}, 2\n s_cselect_b32 s{sT+5}, 0, 1')
    for j in range(32):
        if j in (2,6,10): E('s_waitcnt lgkmcnt(0)'); tag_wait(T_G+4*{2:2,6:3,10:1}[j],1,2)
        if j in (1,2,3,5): aflag(j==5)
        if PRIO=='step' and j in (11,22): E(f's_setprio {1 if j==11 else 0}')
        if PRIO=='step4' and j in (6,16): E(f's_setprio {1 if j==6 else 0}')
        if OPT.get('jst') and j in (2,4,8,16,24): E('s_waitcnt lgkmcnt(0)'); cstamp('A',{2:1,4:2,8:3,16:7,24:10}[j],f'J{j}')
        if j==14: E('s_waitcnt lgkmcnt(0)'); lds_spin(C_K2,None,4,vZ,2,sleep=1)
        if j==20: lds_add(C_MID,1,vZ,2)
        if j==28: E('s_waitcnt lgkmcnt(0)'); lds_spin(C_SN,None,4,vZ,2,sleep=1); lds_spin(C_MID,None,8,vZ,2,sleep=1)
        def lv(j=j):
            if j==19: E(f'v_add_u32 v{AVA}, 0x10000, v{AVA}')
            ldv(j+1)
        def lk(j=j):
            if j==18: E(f'v_add_u32 v{AKA}, 0x10000, v{AKA}')
            ldk(j+2)
        if j==31:
            C('has the partner of this wave (same queries, other keys) already left its sums ?  if so they arrive during the last tile')
            E(f'ds_read_b32 v127, v{AEX+2} offset:16\n ds_read_b32 v125, v{vZ} offset:{C_LOC-L_ST}')
            for q in range(2): E(f'ds_read_b128 {vr(128+12*q,4)}, v{AEX} offset:{2304*q}\n ds_read_b128 {vr(132+12*q,4)}, v{AEX} offset:{2304*q+1024}\n ds_read_b32 v{136+12*q}, v{AEX+1} offset:{2304*q+2048}')
        pair_iter(j,lk,lv,first=(j==0),last=(2 if j==31 else 1 if j==30 else 0),extra=(1 if j in (0,20) else 0))
E('s_nop 1'); smf(OB,AV+8+4,SB+8,AIDX)
stamp('A',5,'A loop done'); cstamp('A',9,'loop done')
C('---- the first wave of a pair to finish leaves both partial sums in LDS and ends ; the second one finishes both heads')
E(f'v_readfirstlane_b32 s{sT+1}, v127\n v_readfirstlane_b32 s{sT+9}, v125\n s_cmp_eq_u32 s{sT+1}, 1\n s_cbranch_scc1 L_A_LATE')
E(f'v_mov_b32 v2, 1\n s_mov_b64 exec, 1\n ds_add_rtn_u32 v3, v{AEX+2}, v2\n s_mov_b64 exec, -1\n s_waitcnt lgkmcnt(0)\n v_readfirstlane_b32 s{sT+1}, v3\n s_cmp_eq_u32 s{sT+1}, 0\n s_cbranch_scc0 L_A_TIE\n s_nop 3')
for q,O in enumerate((OA,OB)): E(f'ds_write_b128 v{AEX}, {vr(O,4)} offset:{2304*q}\n ds_write_b128 v{AEX}, {vr(O+4,4)} offset:{2304*q+1024}\n ds_write_b32 v{AEX+1}, v{O+8} offset:{2304*q+2048}')
E(f's_mov_b64 exec, 1\n ds_write_b32 v{AEX+2}, v2 offset:16\n s_mov_b64 exec, -1\n s_waitcnt lgkmcnt(0)\n s_branch L_A_STD')
LBL('L_A_TIE')
E(f's_mov_b32 s{sCnt}, {SPIN_LIMIT}')
LBL('L_A_TI2')
E(f'ds_read_b32 v127, v{AEX+2} offset:16')
for q in range(2): E(f'ds_read_b128 {vr(128+12*q,4)}, v{AEX} offset:{2304*q}\n ds_read_b128 {vr(132+12*q,4)}, v{AEX} offset:{2304*q+1024}\n ds_read_b32 v{136+12*q}, v{AEX+1} offset:{2304*q+2048}')
E(f's_waitcnt lgkmcnt(0)\n v_readfirstlane_b32 s{sT+1}, v127\n s_cmp_eq_u32 s{sT+1}, 1\n s_cbranch_scc1 L_A_LATE\n s_sub_u32 s{sCnt}, s{sCnt}, 1\n s_cbranch_scc0 L_A_TI2')
LBL('L_A_LATE')
for r in range(9): E(f'v_add_f32 v{OA+r}, v{OA+r}, v{140+r}')
E('s_waitcnt vmcnt(0)')
def setupA(): E(f's_mov_b32 s{sT+2}, {hex(WS_KVA)}\n s_mov_b32 s{sT+3}, 64')
for q,(O,Q_) in enumerate(((OA,AQ0),(OB,AQ1))):
    if q==1:
        for r in range(9): E(f'v_add_f32 v{OB+r}, v{OB+r}, v{128+r}')
    dst=152+4*q
    finalize(O,dst,2,f'L_FB_A{q}',f'L_FB_A{q}_BACK',126)
    if q==1: E(f's_xor_b32 s{sOA}, s{sOA}, 0x400')
    E(f's_cmp_eq_u32 s{sT+9}, 0\n s_cbranch_scc1 L_A_FAR{q}\n buffer_store_dwordx4 {vr(dst,4)}, v6, {sr(sWS)}, s{sOA} offen\n s_branch L_A_ST{q}')
    LBL(f'L_A_FAR{q}')
    E(f'buffer_store_dwordx4 {vr(dst,4)}, v6, {sr(sWS)}, s{sOA} offen sc1')
    LBL(f'L_A_ST{q}')
    fallback(f'L_FB_A{q}',f'L_FB_A{q}_BACK',Q_,O,SA,AK,AV,AIDX,3,6,7,None,setupA)
LBL('L_A_STD')
stamp('A',6,'oA published')
stamp_flush(12,'A')
LBL('L_END')
E('s_endpgm')
L.append('L_CODE_END:')
L.extend(TAIL)
L.append('    s_endpgm\n.fill 1200, 4, 0xbf810000')

hdr=open('cdna_kernels/%s.s.ref'%NAME).read().split('; Override launch')[0]
txt=hdr
txt+=f'; @launch grid=(256,1,1) block=(768,1,1) lds={LDS_TOTAL}\n'
for n in ('WS_KVA','WS_KVB','WS_OA','WS_OB','WS_STAMP','NSTAMP'): txt+=f'; CONST {n} = {hex(globals()[n])}\n'
for r,i,n in STN: txt+=f'; STAMPNAME {r} {i} {n}\n'
txt+=f'''.amdgcn_target "amdgcn-amd-amdhsa--gfx950"
.text
.globl {NAME}_kernel
.p2align 8
.type {NAME}_kernel,@function
{NAME}_kernel:
'''+'\n'.join(L)+f'''
.section .rodata,"a"
.p2align 6
.amdhsa_kernel {NAME}_kernel
  .amdhsa_next_free_vgpr 168
  .amdhsa_next_free_sgpr 102
  .amdhsa_accum_offset 168
  .amdhsa_group_segment_fixed_size 0
  .amdhsa_kernarg_size 96
  .amdhsa_user_sgpr_count 2
  .amdhsa_user_sgpr_kernarg_segment_ptr 1
  .amdhsa_system_sgpr_workgroup_id_x 1
.end_amdhsa_kernel
'''
open(OUT,'w').write(txt)
print('wrote',OUT,len(L),'lines')
```

```python
import sys, math, struct
NAME='gated_mix__grouped_kv_mqa__sliding_block__prompt'
DIAG = '--diag' in sys.argv
OUT = [a for a in sys.argv[1:] if not a.startswith('--')]
OUT = OUT[0] if OUT else 'cdna_kernels/%s.s'%NAME
OPT=dict(a.lstrip('-').split('=') for a in sys.argv[1:] if a.startswith('--') and '=' in a)
MAP=OPT.get('map','b'); ROT=OPT.get('rot','full'); PRIO=OPT.get('prio','step'); FLAG_IT=int(OPT.get('flagit','1')); PK=int(OPT.get('pk','7')); FORCE_K=int(OPT.get('forcek','7')); SENTK=int(OPT.get('sentk','14')); DENSE=OPT.get('dense','0')=='1'; ROLL=OPT.get('roll','0')=='1'; WT=OPT.get('wtouch','0')=='1'; KVK=int(OPT.get('kvk','13'))
def f2u(f): return struct.unpack('<I',struct.pack('<f',f))[0]

WS_EPOCH=0x0
WS_FKVA=0x1000
WS_FKVB=0x4000
WS_FOB =0xC000
WS_FOA =0x14000
WS_G   =0x1C000
WS_KVA =0x20000
WS_QB  =0x40000
WS_KVB =0x240000
WS_OA  =0x640000
WS_OB  =0x840000
WS_STAMP=0xA40000
NSTAMP=16
L_WQ=0; L_X=65536; L_ST=131072; L_CTL=L_ST+30720
L_GW=L_CTL; L_G=L_CTL+1024; L_C=L_CTL+1024+256
C_X=L_C+0
C_Q=L_C+4
C_K0=L_C+8; C_K1=L_C+12; C_K2=L_C+16; C_BP=L_C+20; C_MID=L_C+24; C_WO=L_C+28; C_WD=L_C+32; C_QR=L_C+36; C_SN=L_C+40; C_LOC=L_C+44; T_PT=L_C+256; T_X=L_C+272; T_PL=L_C+304; T_FL=L_C+308; T_G=L_C+320; T_X0=L_C+336; T_K0=L_C+352; T_Q1=L_C+356; T_H=L_C+368; T_TAG=L_C+372; C_PR=L_C+384; T_PR=L_C+400
L_EX=L_ST
LDS_TOTAL=163840
SPIN_LIMIT=400000
CSCALE=f2u(0.25*math.log2(math.e))
NEGBIG=f2u(-1e9)
L_LO=f2u(2.0**-24); L_HI=f2u(2.0**60)

sX=28; sWQ=32; sWKV=36; sWB=40; sWOA=44; sWOB=48; sG=52; sOUT=56; sWS=60; sDBG=64
sWave=68; sPb=69; sHg=70; sTag=71
sT=72
sCnt=84; sB=85
sXcc=65
sVM=86
sST=88
vZ=1
L=[]
def E(s):
    for ln in s.split('\n'):
        if ln.strip(): L.append('    '+ln.strip())
def LBL(s): L.append(s+':')
def C(s): L.append('    ; '+s)
_uid=[0]
def uid(p):
    _uid[0]+=1; return f'{p}_{_uid[0]}'
def vr(a,n): return f'v[{a}:{a+n-1}]'
def sr(a,n=4): return f's[{a}:{a+n-1}]'
def srd(dst,ptr,nbytes):
    E(f's_mov_b32 s{dst}, s{ptr}\n s_mov_b32 s{dst+1}, s{ptr+1}\n s_mov_b32 s{dst+2}, {hex(nbytes)}\n s_mov_b32 s{dst+3}, 0x20000')
STN=[]
def stamp(role,i,name):
    if OPT.get('acc') and role=='B' and i==10: return
    if OPT.get('jst') and role=='A' and i in (1,2,3,7): return
    if OPT.get('bst') and role=='B' and i in (6,7,8,9) and not name.startswith('arrive'): return
    if not DIAG: return
    STN.append((role,i,name))
    E(f's_memrealtime s[100:101]\n s_waitcnt lgkmcnt(0)\n s_mov_b32 s{sST+i}, s100')
ECHO=OPT.get('echo')
def echo_mark(name):
    if ECHO==name or name=='start' and ECHO:
        r=98 if name=='start' else 99
        E(f's_memrealtime s[100:101]\n s_waitcnt lgkmcnt(0)\n s_mov_b32 s{r}, s100')
def echo_end():
    if not ECHO: return
    E('s_waitcnt vmcnt(0)'); echo_mark('end')
    E('s_memrealtime s[100:101]\n s_waitcnt lgkmcnt(0)\n s_sub_u32 s99, s99, s98\n s_add_u32 s99, s99, s100')
    LBL('L_ECHO')
    E('s_memrealtime s[100:101]\n s_waitcnt lgkmcnt(0)\n s_sub_u32 s100, s100, s99\n s_cmp_lt_i32 s100, 0\n s_cbranch_scc1 L_ECHO')
def cstamp(role,i,name):
    if OPT.get('jst') and i in (10,11) and not name.startswith('J'): return
    if not DIAG: return
    STN.append((role,i,'CYC '+name))
    E(f's_memtime s[100:101]\n s_waitcnt lgkmcnt(0)\n s_mov_b32 s{sST+i}, s100')
def tacc(role,i,name,code):
    if not (DIAG and OPT.get('acc')): E(code); return
    if (role,i,'ACC '+name) not in STN: STN.append((role,i,'ACC '+name))
    E(f's_memtime s[100:101]\n s_waitcnt lgkmcnt(0)\n s_sub_u32 s{sST+i}, s{sST+i}, s100')
    E(code)
    E(f's_memtime s[100:101]\n s_waitcnt lgkmcnt(0)\n s_add_u32 s{sST+i}, s{sST+i}, s100')
def stamp_flush(nmax,role='B'):
    if not DIAG: return
    if OPT.get('dbg'):
        m={'A':[(0,1),(2,2),(7,3),(3,4),(1,5),(4,6),(5,7),(6,8)],'B':[(4,9),(6,10),(7,11),(9,12),(10,13),(11,14)]}[role]
        sk=uid('nd')
        srd(sDBG,24,256)
        E(f's_bfe_u32 s{sT}, s2, 0x30003\n s_cmp_eq_u32 s{sT}, 0\n s_cbranch_scc0 {sk}\n v_mov_b32 v2, 0\n s_not_b32 s{sT}, s{sST}\n v_writelane_b32 v2, s{sT}, 0')
        for i,sl in m: E(f'v_writelane_b32 v2, s{sST+i}, {sl}')
        E(f'v_lshlrev_b32 v3, 2, v0\n s_mov_b64 exec, 0xffff\n buffer_atomic_umax v2, v3, {sr(sDBG)}, 0 offen sc1\n s_mov_b64 exec, -1')
        LBL(sk)
        return
    if OPT.get('hwid'): E(f's_getreg_b32 s{sST+11}, hwreg(HW_REG_HW_ID)\n s_getreg_b32 s{sST+10}, hwreg(HW_REG_XCC_ID)')
    E('v_mov_b32 v2, 0')
    for i in range(nmax): E(f'v_writelane_b32 v2, s{sST+i}, {i}')
    E(f's_mul_i32 s{sT}, s2, 12\n s_add_u32 s{sT}, s{sT}, s{sWave}\n s_lshl_b32 s{sT}, s{sT}, 6\n s_add_u32 s{sT}, s{sT}, {hex(WS_STAMP)}')
    E(f'v_lshlrev_b32 v3, 2, v0\n s_mov_b64 exec, 0xffff\n buffer_store_dword v2, v3, {sr(sWS)}, s{sT} offen\n s_mov_b64 exec, -1')

def lds_add(off,val,vz,vt):
    E(f'v_mov_b32 v{vt}, {val}\n s_mov_b64 exec, 1\n ds_add_u32 v{vz}, v{vt} offset:{off-L_ST}\n s_mov_b64 exec, -1')
def lds_spin(off,mask,val,vz,vt,sleep=1):
    a=uid('spin'); d=uid('spind')
    E(f's_mov_b32 s{sCnt}, {SPIN_LIMIT}')
    LBL(a)
    E(f'ds_read_b32 v{vt}, v{vz} offset:{off-L_ST}\n s_waitcnt lgkmcnt(0)\n v_readfirstlane_b32 s{sT}, v{vt}')
    if mask is not None: E(f's_and_b32 s{sT}, s{sT}, {hex(mask)}')
    E(f's_cmp_eq_u32 s{sT}, {hex(val)}\n s_cbranch_scc1 {d}\n s_sub_u32 s{sCnt}, s{sCnt}, 1\n s_cbranch_scc1 {d}')
    if sleep: E(f's_sleep {sleep}')
    E(f's_branch {a}')
    LBL(d)
def tag_set(off,sidx,vt):
    if sidx is None: E(f'v_mov_b32 v{vt}, {off}')
    else: E(f's_lshl_b32 s{sT}, s{sidx}, 2\n s_add_u32 s{sT}, s{sT}, {off}\n v_mov_b32 v{vt}, s{sT}')
    E(f'v_mov_b32 v{vt+1}, 1\n s_mov_b64 exec, 1\n ds_write_b32 v{vt}, v{vt+1}\n s_mov_b64 exec, -1')
def tag_wait(off,n,vt,sleep=0,once=None):
    a=uid('tw'); d=uid('twd')
    E(f'v_and_b32 v{vt}, {n-1}, v0\n v_lshlrev_b32 v{vt}, 2, v{vt}\n v_add_u32 v{vt}, {off}, v{vt}')
    if once:
        E(f'ds_read_b32 v{vt+1}, v{vt}\n s_waitcnt lgkmcnt(0)\n v_cmp_ne_u32 vcc, 1, v{vt+1}\n s_cbranch_vccz {once}')
        return
    E(f's_mov_b32 s{sCnt}, {SPIN_LIMIT}')
    LBL(a)
    E(f'ds_read_b32 v{vt+1}, v{vt}\n s_waitcnt lgkmcnt(0)\n v_cmp_ne_u32 vcc, 1, v{vt+1}\n s_cbranch_vccz {d}\n s_sub_u32 s{sCnt}, s{sCnt}, 1\n s_cbranch_scc1 {d}')
    if sleep: E(f's_sleep {sleep}')
    E(f's_branch {a}')
    LBL(d)
def tag_get(vt):
    E(f'ds_read_b32 v{vt}, v{vZ} offset:{T_TAG-L_ST}\n s_waitcnt lgkmcnt(0)\n v_readfirstlane_b32 s{sTag}, v{vt}')
def poll(vaddr,n,vt,sleep=1):
    a=uid('poll'); d=uid('polld')
    E(f's_mov_b32 s{sCnt}, {SPIN_LIMIT}')
    LBL(a)
    op={1:'buffer_load_dword',2:'buffer_load_dwordx2',3:'buffer_load_dwordx3',4:'buffer_load_dwordx4'}[n]
    E(f'{op} {vr(vt,n) if n>1 else "v%d"%vt}, v{vaddr}, {sr(sWS)}, 0 offen sc1\n s_waitcnt vmcnt(0)')
    for i in range(n): E(f'v_xor_b32 v{vt+i}, s{sTag}, v{vt+i}')
    if n==2: E(f'v_or_b32 v{vt}, v{vt}, v{vt+1}')
    if n>=3: E(f'v_or3_b32 v{vt}, v{vt}, v{vt+1}, v{vt+2}')
    if n==4: E(f'v_or_b32 v{vt}, v{vt}, v{vt+3}')
    E(f'v_cmp_ne_u32 vcc, 0, v{vt}\n s_cbranch_vccz {d}\n s_sub_u32 s{sCnt}, s{sCnt}, 1\n s_cbranch_scc1 {d}')
    if sleep: E(f's_sleep {sleep}')
    E(f's_branch {a}')
    LBL(d)
def flag_store(soff_reg,vt):
    E(f'v_mov_b32 v{vt}, s{sTag}\n s_mov_b64 exec, 1\n buffer_store_dword v{vt}, off, {sr(sWS)}, s{soff_reg} sc1\n s_mov_b64 exec, -1')
def mfma(d,a,b,c=None):
    cc = vr(d,16) if c is None else (c if isinstance(c,str) else vr(c,16))
    E(f'v_mfma_f32_32x32x16_bf16 {vr(d,16)}, {vr(a,4)}, {vr(b,4)}, {cc}')
def smf(o,v,s,idx): E(f'v_smfmac_f32_32x32x32_bf16 {vr(o,16)}, {vr(v,4)}, {vr(s,8)}, v{idx}')
def vexp(r): E(f'v_exp_f32 v{r}, v{r}')
def cvt(d,a,b): E(f'v_cvt_pk_bf16_f32 v{d}, v{a}, v{b}')
def set_vpad(regs,vt):
    E(f'v_and_b32 v{vt}, 27, v0\n v_cmp_eq_u32 vcc, 16, v{vt}\n v_mov_b32 v{vt}, 0x3f803f80\n s_nop 0\n v_cndmask_b32 v{regs[0]}, 0, v{vt}, vcc')
    for r in regs[1:]: E(f'v_mov_b32 v{r}, v{regs[0]}')
def xaddr(base,t_imm,vt):
    E(f'v_and_b32 v{vt}, 15, v0\n v_lshrrev_b32 v{base}, 5, v0\n v_xor_b32 v{base}, v{base}, v{vt}\n v_lshlrev_b32 v{base}, 4, v{base}')
    E(f'v_and_b32 v{vt}, 31, v0\n v_lshl_add_u32 v{base}, v{vt}, 10, v{base}\n v_add_u32 v{base}, {t_imm}, v{base}')
    for b in range(1,8): E(f'v_xor_b32 v{base+b}, {b<<5}, v{base}')
def traddr128(dst,vt,vt2,rowsel,colbase):
    E(f'v_lshrrev_b32 v{vt}, 5, v0\n v_lshlrev_b32 v{vt}, {rowsel}, v{vt}\n v_bfe_u32 v{vt2}, v0, 2, 2\n v_add_u32 v{vt}, v{vt}, v{vt2}\n v_lshlrev_b32 v{dst}, 7, v{vt}')
    E(f'v_bfe_u32 v{vt}, v0, 4, 1\n v_lshlrev_b32 v{vt}, 1, v{vt}\n v_bfe_u32 v{vt2}, v0, 1, 1\n v_add3_u32 v{vt}, v{vt}, v{vt2}, {colbase}')
    E(f'v_bfe_u32 v{vt2}, v0, 3, 1\n v_lshlrev_b32 v{vt2}, 2, v{vt2}\n v_xor_b32 v{vt}, v{vt}, v{vt2}\n v_lshl_add_u32 v{dst}, v{vt}, 4, v{dst}')
    E(f'v_and_b32 v{vt}, 1, v0\n v_lshl_add_u32 v{dst}, v{vt}, 3, v{dst}')
def dma128_voff(dst,vt,vt2,rowstride_sreg_or_shift,colbytes):
    E(f'v_lshrrev_b32 v{vt}, 3, v0')
    if isinstance(rowstride_sreg_or_shift,int): E(f'v_lshlrev_b32 v{dst}, {rowstride_sreg_or_shift}, v{vt}')
    else: E(f'v_mul_u32_u24 v{dst}, {rowstride_sreg_or_shift}, v{vt}')
    E(f'v_bfe_u32 v{vt}, v0, 4, 1\n v_lshlrev_b32 v{vt}, 2, v{vt}\n v_and_b32 v{vt2}, 7, v0\n v_xor_b32 v{vt}, v{vt}, v{vt2}\n v_lshl_add_u32 v{dst}, v{vt}, 4, v{dst}\n v_add_u32 v{dst}, {colbytes}, v{dst}')
def finalize(O,dst,vt,lbl_fb,lbl_back,vg):
    E(f'v_add_f32 v{vt}, |v{O}|, |v{O+1}|')
    for r in range(2,8): E(f'v_add_f32 v{vt}, v{vt}, |v{O+r}|')
    E(f'v_mov_b32 v{vt+1}, 0x7f800000\n v_cmp_nlt_f32 {sr(sT,2)}, v{vt}, v{vt+1}')
    E(f'v_cmp_nle_f32 vcc, {hex(L_LO)}, v{O+8}\n s_or_b64 {sr(sT,2)}, {sr(sT,2)}, vcc')
    E(f'v_cmp_nge_f32 vcc, {hex(L_HI)}, v{O+8}\n s_or_b64 {sr(sT,2)}, {sr(sT,2)}, vcc\n s_cbranch_scc1 {lbl_fb}')
    LBL(lbl_back)
    E(f'v_rcp_f32 v{vt}, v{O+8}\n s_nop 0\n v_mul_f32 v{vt}, v{vt}, v{vg}')
    for r in range(0,8,2): E(f'v_pk_mul_f32 {vr(O+r,2)}, {vr(O+r,2)}, {vr(vt,2)} op_sel_hi:[1,0]')
    for r in range(4): cvt(dst+r,O+2*r,O+2*r+1)
    E(f'v_min_u32 v{dst}, -2, v{dst}')

TAIL=[]
RETRY=[]
def fallback(lbl,back,Q,O,S,K,V,IDX,vM,vK,vV,ntile,soff_setup,first_mask=None,last_mask=None,first_cond=None):
    global L
    save=L; L=[]
    LBL(lbl)
    soff_setup()
    E(f'v_mov_b32 v{vM}, 0xff800000')
    for p in (0,1):
        lp=uid('fbl')
        if p==1:
            E(f'v_mov_b32 v{S}, v{vM}\n s_nop 1\n v_permlane32_swap_b32 v{S}, v{vM}\n s_nop 1\n v_max_f32 v{vM}, v{vM}, v{S}')
            for r in range(16): E(f'v_mov_b32 v{O+r}, 0')
        E(f's_mov_b32 s{sT+5}, s{sT+2}\n s_mov_b32 s{sT+6}, 0')
        LBL(lp)
        E(f'buffer_load_dwordx4 {vr(K,4)}, v{vK}, {sr(sWS)}, s{sT+5} offen sc1')
        if p==1:
            E(f's_mov_b64 exec, {sr(sVM,2)}\n buffer_load_dwordx4 {vr(V,4)}, v{vV}, {sr(sWS)}, s{sT+5} offen offset:1024 sc1\n buffer_load_dwordx4 {vr(V+4,4)}, v{vV}, {sr(sWS)}, s{sT+5} offen offset:1536 sc1\n s_mov_b64 exec, -1')
        E('s_waitcnt vmcnt(0)')
        if first_mask is None:
            mfma(S,K,Q,'0')
        else:
            a=uid('fbm'); b=uid('fbm'); j=uid('fbm')
            E(f's_add_u32 s{sT+7}, s{sT+6}, 1\n s_cmp_eq_u32 s{sT+7}, s{sT+3}\n s_cbranch_scc1 {a}')
            E(f's_cmp_lt_u32 s{sT+6}, s{sT+4}\n s_cbranch_scc1 {b}')
            mfma(S,K,Q,'0'); E(f's_branch {j}')
            LBL(a); mfma(S,K,Q,last_mask); E(f's_branch {j}')
            LBL(b); mfma(S,K,Q,first_mask)
            LBL(j)
        E('s_nop 15')
        if p==0:
            for r in range(0,16,2): E(f'v_max3_f32 v{vM}, v{S+r}, v{S+r+1}, v{vM}')
        else:
            for r in range(16): E(f'v_sub_f32 v{S+r}, v{S+r}, v{vM}')
            for r in range(16): vexp(S+r)
            E('s_nop 1'); smf(O,V,S,IDX); smf(O,V+4,S+8,IDX)
        E(f's_add_u32 s{sT+5}, s{sT+5}, 2048\n s_add_u32 s{sT+6}, s{sT+6}, 1\n s_cmp_lt_u32 s{sT+6}, s{sT+3}\n s_cbranch_scc1 {lp}')
    E(f's_nop 15\n s_branch {back}')
    TAIL.extend(L); L=save

E('s_cmp_ge_u32 s2, 256\n s_cbranch_scc1 L_END')
if ECHO=='karg': E('s_memrealtime s[100:101]\n s_waitcnt lgkmcnt(0)\n s_mov_b32 s97, s100')
E('s_load_dwordx16 s[4:19], s[0:1], 0\n s_load_dwordx8 s[20:27], s[0:1], 64')
E(f'v_lshrrev_b32 v1, 6, v0\n v_and_b32 v0, 63, v0\n v_readfirstlane_b32 s{sWave}, v1')
if MAP=='b':
    E(f's_and_b32 s{sT}, s2, 7\n s_lshr_b32 s{sT+1}, s2, 3\n s_and_b32 s{sT+2}, s{sT+1}, 3\n s_lshl_b32 s{sPb}, s{sT}, 2\n s_or_b32 s{sPb}, s{sPb}, s{sT+2}\n s_lshr_b32 s{sHg}, s{sT+1}, 2')
else:
    E(f's_bfe_u32 s{sPb}, s2, 0x20001\n s_lshl_b32 s{sPb}, s{sPb}, 3\n s_bfe_u32 s{sT}, s2, 0x30003\n s_or_b32 s{sPb}, s{sPb}, s{sT}\n s_and_b32 s{sHg}, s2, 1\n s_lshl_b32 s{sHg}, s{sHg}, 2\n s_lshr_b32 s{sT}, s2, 6\n s_or_b32 s{sHg}, s{sHg}, s{sT}')
E(f's_mov_b32 s{sVM}, 0xffff\n s_mov_b32 s{sVM+1}, 0xffff')
if DIAG:
    for i in range(12): E(f's_mov_b32 s{sST+i}, 0')
C('clear the LDS counters and flags while the kernel arguments arrive')
E(f'v_lshlrev_b32 v2, 3, v0\n v_add_u32 v2, {L_C}, v2\n v_mov_b32 v4, 0\n v_mov_b32 v5, 0\n ds_write_b64 v2, v[4:5]')
E('s_waitcnt lgkmcnt(0)\n s_barrier')
stamp('A',0,'start'); stamp('B',0,'start'); echo_mark('start')
if ECHO=='karg': E('s_sub_u32 s99, s98, s97\n s_mul_i32 s99, s99, 10\n s_add_u32 s99, s99, s98')
srd(sX,4,2048*1024); srd(sWS,26,0x10000000)
E(f's_cmp_lt_u32 s{sWave}, 8\n s_cbranch_scc1 L_A')


KVPOS=[L_ST,32768,49152,16384,0,65536,81920,98304]
L_PART=L_ST+24576
L_QA=0; L_QB=8192; L_WO=0; L_FX=65536
sOut=66; sOb=67; sPass=64
sRot=sT+11
def mktag(): E(f's_mul_i32 s{sTag}, s{sTag}, 0x9E3779B1\n s_add_u32 s{sTag}, s{sTag}, 0x7F4A7C15')
def mkrot():
    if MAP=='b': E(f's_and_b32 s{sRot}, s{sPb}, 3\n s_lshl_b32 s{sRot}, s{sRot}, 1\n s_add_u32 s{sRot}, s{sRot}, s{sHg}')
    else: E(f's_lshl_b32 s{sRot}, s{sHg}, 1\n s_add_u32 s{sRot}, s{sRot}, s{sPb}')
def touch(srd_,soff,n,vaddr,vd,sc1=False):
    for i in range(n):
        if i: E(f's_add_u32 s{soff}, s{soff}, 8192')
        E(f'buffer_load_dword v{vd}, v{vaddr}, {sr(srd_)}, s{soff} offen'+(' sc1' if sc1 else ''))
E(f's_setprio {2 if OPT.get("bp2") else 3}\n s_sub_u32 s{sB}, s{sWave}, 8')
if OPT.get('cpf','1')=='1':
    C('---- pull this WG\'s share of the kernel\'s own instructions into L2 (later instruction fetches then miss only the I-cache)')
    E(f's_cmp_eq_u32 s{sB}, 3\n s_cbranch_scc0 L_B_NCP\n s_getpc_b64 s[{sT}:{sT+1}]')
    LBL('L_B_PC')
    E(f's_lshr_b32 s{sT+2}, s2, 3\n s_mul_i32 s{sT+2}, s{sT+2}, (L_CODE_END-L_B_PC+4095)/4096*128\n s_add_u32 s{sT}, s{sT}, s{sT+2}\n s_addc_u32 s{sT+1}, s{sT+1}, 0')
    E(f'v_lshlrev_b32 v2, 7, v0\n v_mov_b32 v3, s{sT+1}\n v_add_co_u32 v2, vcc, s{sT}, v2\n s_nop 1\n v_addc_co_u32 v3, vcc, 0, v3, vcc\n s_lshl_b64 exec, 1, (L_CODE_END-L_B_PC+4095)/4096\n s_sub_u32 exec_lo, exec_lo, 1\n global_load_dword v19, v[2:3], off\n s_mov_b64 exec, -1')
    LBL('L_B_NCP')
C('---- x tile -> LDS as 8 blocks of [64 rows][64 k], block order rotated per WG ; wave b brings blocks b and b+4')
E('v_lshrrev_b32 v17, 3, v0\n v_lshlrev_b32 v17, 10, v17\n v_lshrrev_b32 v2, 4, v0\n v_and_b32 v3, 7, v0\n v_xor_b32 v2, v2, v3\n v_lshl_add_u32 v17, v2, 4, v17\n v_xor_b32 v18, 64, v17')
mkrot()
E(f's_lshl_b32 s{sT+7}, s{sPb}, 16\n s_lshl_b32 s{sT+6}, s{sB}, 13')
VQ=[]
def vwait(tag,extra=''):
    if tag not in VQ:
        if extra: E('s_waitcnt'+extra)
        return
    i=max(n for n,t in enumerate(VQ) if t==tag)
    n=len(VQ)-1-i; del VQ[:i+1]
    E(f's_waitcnt vmcnt({n})'+extra)
XD=OPT.get('xd','0')=='1'
def xblock(expr_add,ldsoff,rows):
    E(f's_add_u32 s{sT+1}, s{sRot}, {expr_add}\n s_and_b32 s{sT+1}, s{sT+1}, 7\n s_lshl_b32 s{sT+1}, s{sT+1}, 7\n s_add_u32 s{sT+1}, s{sT+1}, s{sT+7}')
if XD:
    E(f's_and_b32 s{sT+1}, s{sRot}, 7\n s_lshl_b32 s{sT+1}, s{sT+1}, 7\n s_add_u32 s{sT+1}, s{sT+1}, s{sT+7}\n s_lshl_b32 s{sT+2}, s{sB}, 14\n s_add_u32 s{sT+1}, s{sT+1}, s{sT+2}\n s_lshl_b32 s{sT+2}, s{sB}, 11\n s_add_u32 m0, s{sT+2}, 65536\n s_nop 0')
    E(f'buffer_load_dwordx4 v17, {sr(sX)}, s{sT+1} offen lds\n s_add_u32 m0, s{sT+2}, {65536+1024}\n s_add_u32 s{sT+1}, s{sT+1}, 8192\n buffer_load_dwordx4 v18, {sr(sX)}, s{sT+1} offen lds')
def xrest():
  for hb in range(2):
    sk=uid('xs')
    if XD and hb==0: E(f's_cmp_eq_u32 s{sB}, 0\n s_cbranch_scc1 {sk}')
    E(f's_add_u32 s{sT+1}, s{sRot}, s{sB}\n s_add_u32 s{sT+1}, s{sT+1}, {4*hb}\n s_and_b32 s{sT+1}, s{sT+1}, 7\n s_lshl_b32 s{sT+1}, s{sT+1}, 7\n s_add_u32 s{sT+1}, s{sT+1}, s{sT+7}')
    for n in range(8):
        E(f's_add_u32 m0, s{sT+6}, {65536+32768*hb+1024*n}')
        E(f's_add_u32 s{sT+1}, s{sT+1}, 8192' if n else 's_nop 0')
        E(f'buffer_load_dwordx4 v{17+(n&1)}, {sr(sX)}, s{sT+1} offen lds')
    if XD and hb==0: LBL(sk)
if not XD: xrest()
MU=128; MD=144; BQ=16; BK=24; BV=36; BS=64; BO=96; BIDX=60
C('---- constants for the later phases (idle time)')
E(f'v_mov_b32 v{vZ}, {L_ST}\n v_lshlrev_b32 v160, 4, v0\n v_lshlrev_b32 v163, 7, v0')
E('v_lshrrev_b32 v161, 5, v0\n v_lshlrev_b32 v161, 8, v161\n v_and_b32 v2, 15, v0\n v_lshl_add_u32 v161, v2, 4, v161')
srd(sWOA,12,512*1024); srd(sWOB,18,512*1024)
E(f'v_and_b32 v4, 31, v0\n v_lshrrev_b32 v5, 5, v0\n v_lshlrev_b32 v5, 2, v5\n v_sub_u32 v4, v4, v5\n s_mov_b32 s{sT}, {hex(NEGBIG)}')
for r in range(16):
    E(f'v_subrev_u32 v5, {8*(r//4)+r%4}, v4\n v_ashrrev_i32 v5, 31, v5\n v_and_b32 v{MD+r}, s{sT}, v5\n v_xor_b32 v{MU+r}, s{sT}, v{MD+r}')
set_vpad(list(range(BV,BV+24)),2); E(f'v_mov_b32 v{BIDX}, 0xdddddddd')
for r in range(32): E(f'v_mov_b32 v{BO+r}, 0')
E(f'v_min_u32 v2, 4, v0\n s_sub_i32 s{sT}, s{sPb}, 4\n v_add_u32 v2, s{sT}, v2\n v_max_i32 v2, 0, v2\n s_lshl_b32 s{sT}, s{sHg}, 5\n v_add_u32 v2, s{sT}, v2\n v_lshlrev_b32 v2, 7, v2\n v_add_u32 v162, {hex(WS_FKVB+8)}, v2')
E(f'v_and_b32 v2, 7, v0\n v_lshlrev_b32 v2, 5, v2\n v_add_u32 v2, s{sPb}, v2\n v_lshlrev_b32 v2, 7, v2\n v_add_u32 v166, {hex(WS_FKVB+16)}, v2')
sKh=sT+9; sTt=sT+10
E(f's_lshr_b32 s{sKh}, s{sB}, 1\n s_and_b32 s{sTt}, s{sB}, 1\n s_lshl_b32 s{sT+2}, s{sHg}, 7')
dma128_voff(10,2,3,10,f's{sT+2}')
E(f's_lshl_b32 s{sT+1}, s{sKh}, 2'); traddr128(11,2,3,2,f's{sT+1}')
E(f's_lshl_b32 s{sT+1}, s{sKh}, 15\n s_add_u32 s{sT+1}, s{sT+1}, {L_WO}\n v_add_u32 v11, s{sT+1}, v11\n v_xor_b32 v9, 64, v11')
E(f's_lshl_b32 s{sOut}, s{sPb}, 1\n s_add_u32 s{sOut}, s{sOut}, s{sTt}\n s_lshl_b32 s{sOut}, s{sOut}, 15\n s_lshl_b32 s{sT}, s{sKh}, 14\n s_add_u32 s{sOb}, s{sOut}, s{sT}\n s_add_u32 s{sOb}, s{sOb}, {hex(WS_OB)}')
E(f's_lshl_b32 s{sT}, s{sHg}, 7\n s_add_u32 s{sOut}, s{sOut}, s{sT}\n s_lshl_b32 s{sT}, s{sKh}, 6\n s_add_u32 s{sOut}, s{sOut}, s{sT}')
E('v_and_b32 v8, 31, v0\n v_lshlrev_b32 v167, 10, v8\n v_lshrrev_b32 v3, 5, v0\n v_lshl_add_u32 v167, v3, 4, v167\n v_lshlrev_b32 v8, 2, v8')
srd(sOUT,22,2048*1024)
E(f's_lshl_b32 s{sT}, s{sB}, 12\n s_add_u32 s{sT}, s{sT}, {L_FX}\n v_add_u32 v164, s{sT}, v160\n v_xor_b32 v165, 0x2000, v164\n s_mov_b32 s{sPass}, 0')
if XD:
    E('s_waitcnt vmcnt(0)'); tag_set(T_X0,sB,2); xrest()
E('s_waitcnt vmcnt(8)')
tag_set(T_X,sB,2)
stamp('B',1,'x landed'); echo_mark('xl')
E('s_waitcnt vmcnt(0)')
tag_set(T_X+16,sB,2)
tag_wait(T_G,4,2,sleep=4)
tag_get(2)
stamp('B',5,'BQ'); echo_mark('bq')
E(f's_setprio {OPT.get("bpr","1")}')
def kvdma(c):
    E(f's_lshr_b32 s{sT+1}, s2, 3\n s_add_u32 s{sT+1}, s{sT+1}, {c}\n s_and_b32 s{sT+1}, s{sT+1}, 3\n s_lshl_b32 s{sT+1}, s{sT+1}, 2\n s_add_u32 s{sT+1}, s{sT+1}, s{sB}\n s_lshl_b32 s{sT+1}, s{sT+1}, 12')
    E(f's_lshl_b32 s{sT+2}, s{sB}, 12\n s_add_u32 m0, s{sT+2}, {KVPOS[c]}\n s_add_u32 s{sT+1}, s{sT+1}, {hex(WS_KVA+(65536 if c>=4 else 0))}')
    for i in range(4): E(f'buffer_load_dwordx4 v160, {sr(sWS)}, s{sT+1} offen offset:{1024*i} sc1 lds')
    VQ.extend([f'kv{c}']*4)
E(f's_lshl_b32 s{sT}, s{sB}, 11\n s_add_u32 s{sT}, s{sT}, {L_QB}\n v_add_u32 v3, s{sT}, v160')
for t in range(2): E(f'ds_read_b128 {vr(BQ+4*t,4)}, v3 offset:{1024*t}')
E(f's_lshl_b32 s{sT}, s{sPb}, 8\n s_add_u32 s{sT}, s{sT}, {hex(WS_G)}\n buffer_load_dword v61, v8, {sr(sWS)}, s{sT} offen sc1\n buffer_load_dword v62, v8, {sr(sWS)}, s{sT} offen offset:128 sc1\n s_waitcnt lgkmcnt(0)')
lds_add(C_QR,1,vZ,2)
C('---- second half of the shared K/V ; o slots marked as not yet written')
for c in (5,6,7): kvdma(c)
E(f's_lshl_b32 s{sT+10}, s{sPb}, 6\n s_lshl_b32 s{sT+1}, s{sHg}, 2\n s_add_u32 s{sT+10}, s{sT+10}, s{sT+1}\n s_add_u32 s{sT+10}, s{sT+10}, s{sB}\n s_lshl_b32 s{sT+10}, s{sT+10}, 10')
E('v_mov_b32 v12, -1\n v_mov_b32 v13, -1\n v_mov_b32 v14, -1\n v_mov_b32 v15, -1')
for base in (WS_OA,WS_OA+32768,WS_OB,WS_OB+32768):
    E(f's_add_u32 s{sT+1}, s{sT+10}, {hex(base)}\n buffer_store_dwordx4 v[12:15], v160, {sr(sWS)}, s{sT+1} offen sc1')
E(f's_lshl_b32 s{sT+3}, s{sHg}, 5\n s_add_u32 s{sT+3}, s{sT+3}, s{sPb}\n s_lshl_b32 s{sT+3}, s{sT+3}, 7\n s_lshl_b32 s{sT+1}, s{sB}, 2\n s_add_u32 s{sT+3}, s{sT+3}, s{sT+1}\n s_add_u32 s{sT+3}, s{sT+3}, {hex(WS_FKVB+16)}')
lds_spin(C_QR,None,12,vZ,2,sleep=2)
kvdma(4)
E(f's_getreg_b32 s{sXcc}, hwreg(HW_REG_XCC_ID, 0, 4)\n s_add_u32 s{sT}, s{sTag}, s{sXcc}\n v_mov_b32 v3, s{sT}\n s_waitcnt vmcnt(0)')
E(f's_mov_b64 exec, 1\n buffer_store_dword v3, off, {sr(sWS)}, s{sT+3} sc1\n s_mov_b64 exec, -1')
lds_add(C_K2,0x101,vZ,2)
stamp('B',2,'K/V all in')
if OPT.get('nob'): stamp_flush(12); E('s_endpgm')
E('v_sub_f32 v61, 1.0, v61\n v_sub_f32 v62, 1.0, v62')
poll(162,2,4,sleep=3)
stamp('B',6,'kvB flags seen')
def wotouch():
    if MAP=='b':
        E(f's_cmp_ge_u32 s{sB}, 2\n s_cbranch_scc0 L_B_NOT\n s_lshr_b32 s{sT+1}, s2, 3\n s_lshl_b32 s{sT+1}, s{sT+1}, 14\n s_and_b32 s{sT+2}, s{sB}, 1\n s_lshl_b32 s{sT+2}, s{sT+2}, 13\n s_add_u32 s{sT+1}, s{sT+1}, s{sT+2}')
        touch(sWOB,sT+1,1,163,3); touch(sWOA,sT+1,1,163,3)
    else:
        E(f's_cmp_eq_u32 s{sB}, 3\n s_cbranch_scc0 L_B_NOT\n s_lshr_b32 s{sT+1}, s2, 3\n s_lshl_b32 s{sT+1}, s{sT+1}, 14\n s_and_b32 s{sT+2}, s2, 1\n s_lshl_b32 s{sT+2}, s{sT+2}, 9\n s_add_u32 s{sT+1}, s{sT+1}, s{sT+2}')
        E('v_lshrrev_b32 v2, 2, v0\n v_lshlrev_b32 v2, 10, v2\n v_and_b32 v3, 3, v0\n v_lshl_add_u32 v2, v3, 7, v2')
        touch(sWOB,sT+1,1,2,3); touch(sWOA,sT+1,1,2,4)
    LBL('L_B_NOT')
C('---- window attention, head 4hg+b, two query tiles')
E(f's_lshl_b32 s{sT+8}, s{sHg}, 2\n s_add_u32 s{sT+8}, s{sT+8}, s{sB}\n s_lshl_b32 s{sT+8}, s{sT+8}, 6\n s_lshl_b32 s{sT+9}, s{sPb}, 1\n s_sub_i32 s{sT+9}, s{sT+9}, 8')
def btile(j): E(f's_add_i32 s{sT}, s{sT+9}, {j}\n s_max_i32 s{sT}, s{sT}, 0\n s_add_u32 s{sT}, s{sT}, s{sT+8}\n s_lshl_b32 s{sT}, s{sT}, 11\n s_add_u32 s{sT}, s{sT}, {hex(WS_KVB)}')
def bload(j):
    k=BK+4*(j%3); v=BV+8*(j%3)
    btile(j)
    E(f'buffer_load_dwordx4 {vr(k,4)}, v160, {sr(sWS)}, s{sT} offen sc1\n s_mov_b64 exec, {sr(sVM,2)}')
    E(f'buffer_load_dwordx4 {vr(v,4)}, v161, {sr(sWS)}, s{sT} offen offset:1024 sc1\n buffer_load_dwordx4 {vr(v+4,4)}, v161, {sr(sWS)}, s{sT} offen offset:1536 sc1\n s_mov_b64 exec, -1')
bload(0); bload(1)
for j in (2,6):
    E(f's_add_i32 s{sT}, s{sT+9}, {j}\n s_max_i32 s{sT}, s{sT}, 0\n s_add_i32 s{sT+1}, s{sT+9}, 6\n s_min_i32 s{sT}, s{sT}, s{sT+1}\n s_cmp_lt_i32 s{sT}, 0')
    sk=uid('tk'); E(f's_cbranch_scc1 {sk}\n s_add_u32 s{sT}, s{sT}, s{sT+8}\n s_lshl_b32 s{sT}, s{sT}, 11\n s_add_u32 s{sT}, s{sT}, {hex(WS_KVB)}')
    E(f'buffer_load_dword v3, v163, {sr(sWS)}, s{sT} offen sc1'); LBL(sk)
E('s_waitcnt lgkmcnt(0)')
for j in range(10):
    k=BK+4*(j%3); v=BV+8*(j%3)
    if j==3: wotouch()
    if j==7: E(f'buffer_load_dwordx4 v[12:15], v166, {sr(sWS)}, 0 offen sc1')
    if j+2<10: bload(j+2)
    E(f's_waitcnt vmcnt({3*min(2,9-j)})')
    sk=uid('bskip')
    if j<8: E(f's_cmp_lt_i32 s{sT+9}, {-j}\n s_cbranch_scc1 {sk}')
    qs=[q for q in (0,1) if 0<=j-q<=8]
    for q in qs: mfma(BS+16*q,k,BQ+4*q,{0:MU,8:MD}.get(j-q,'0'))
    E('s_nop 10' if len(qs)==2 else 's_nop 11')
    for q in qs:
        S=BS+16*q; O=BO+16*q
        for r in range(10): vexp(S+r)
        smf(O,v,S,BIDX)
        for r in range(10,16): vexp(S+r)
        E('s_nop 1'); smf(O,v+4,S+8,BIDX)
    if j<8: LBL(sk)
E(f's_add_u32 s{sT+10}, s{sT+10}, {hex(WS_OB)}\n s_nop 14')
for q in range(2):
    fb=f'L_FB_B{q}'; bk=f'L_FB_B{q}_BACK'
    finalize(BO+16*q,4,2,fb,bk,61+q)
    E(f'buffer_store_dwordx4 v[4:7], v160, {sr(sWS)}, s{sT+10} offen sc1')
    if q==0: E(f's_add_u32 s{sT+10}, s{sT+10}, 32768\n s_nop 0')
    def setup(q=q):
        E(f's_add_i32 s{sT+2}, s{sT+9}, {q}\n s_cmp_ge_i32 s{sT+2}, 0\n s_cselect_b32 s{sT+4}, 1, 0\n s_max_i32 s{sT+2}, s{sT+2}, 0')
        E(f's_add_i32 s{sT+3}, s{sT+9}, {q+9}\n s_sub_u32 s{sT+3}, s{sT+3}, s{sT+2}\n s_add_u32 s{sT+2}, s{sT+2}, s{sT+8}\n s_lshl_b32 s{sT+2}, s{sT+2}, 11\n s_add_u32 s{sT+2}, s{sT+2}, {hex(WS_KVB)}')
    fallback(fb,bk,BQ+4*q,BO+16*q,BS,BK,BV,BIDX,3,160,161,None,setup,MU,MD)
C('---- output projection: wave (t=b&1, kh=b>>1): both 32-column tiles over heads 16kh..16kh+15 ; slot 0 = tile kh')
PA_=48; PW=80; PO=96; PB_=16
stamp('B',7,'oB published')
E(f's_setprio {OPT.get("bpr2","3")}')
C('the eight WGs of this position block: marks in place ?  all on this die ?')
E(f's_mov_b32 s{sCnt}, {SPIN_LIMIT}\n s_branch L_B_PP1')
LBL('L_B_PP')
E(f'buffer_load_dwordx4 v[12:15], v166, {sr(sWS)}, 0 offen sc1\n s_waitcnt vmcnt(0)')
LBL('L_B_PP1')
for i in range(4): E(f'v_subrev_u32 v{12+i}, s{sTag}, v{12+i}')
E(f'v_or3_b32 v2, v12, v13, v14\n v_or_b32 v2, v2, v15\n v_cmp_lt_u32 vcc, 15, v2\n s_cbranch_vccz L_B_PPD\n s_sub_u32 s{sCnt}, s{sCnt}, 1\n s_cbranch_scc1 L_B_PPD\n s_sleep 3\n s_branch L_B_PP')
LBL('L_B_PPD')
if OPT.get('loc','1')=='1':
    E(f'v_cmp_ne_u32 vcc, s{sXcc}, v12\n s_cbranch_vccnz L_B_NLOC')
    lds_add(C_LOC,1,vZ,2)
    if OPT.get('probe'):
        E('s_branch L_B_PRB')
        LBL('L_B_NLOC')
        for i in range(8): E('s_sleep 127')
        LBL('L_B_PRB')
    else: LBL('L_B_NLOC')
lds_spin(C_MID,None,8,vZ,2,sleep=6)
def wodma(sr_):
    E(f's_lshl_b32 s{sT}, s{sB}, 14\n s_lshl_b32 s{sT+1}, s{sB}, 17')
    for n in range(16): E(f's_add_u32 m0, s{sT}, {L_WO+1024*n}\n s_add_u32 s{sT+2}, s{sT+1}, {8192*n}\n buffer_load_dwordx4 v10, {sr(sr_)}, s{sT+2} offen lds')
wodma(sWOB)
E('s_waitcnt vmcnt(0)')
lds_add(C_WO,1,vZ,2)
lds_spin(C_WO,None,4,vZ,2,sleep=2)
stamp('B',8,'woB landed')
LBL('L_B_GEMM')
def wread(s):
    f=PW+8*(s&1)
    for u,va in ((0,11),(1,9)): E(f'ds_read_b64_tr_b16 {vr(f+4*u,2)}, v{va} offset:{s*2048}\n ds_read_b64_tr_b16 {vr(f+4*u+2,2)}, v{va} offset:{s*2048+1024}')
wread(0)
def oloads(g0):
    for s in range(4*g0,16):
        if s%4==0: E(f's_add_u32 s{sT}, s{sOb}, {1024*s}')
        E(f'buffer_load_dwordx4 {vr(PO+4*s,4)}, v160, {sr(sWS)}, s{sT} offen offset:{1024*(s%4)} sc1')
E(f's_mov_b32 s{sCnt}, {SPIN_LIMIT}')
oloads(0)
for g in range(4):
    LBL(f'L_B_G{g}')
    E(f's_waitcnt vmcnt({12-4*g})')
    p=PO+16*g
    E(f'v_max_u32 v2, v{p}, v{p+4}\n v_max3_u32 v2, v{p+8}, v{p+12}, v2\n v_cmp_eq_u32 vcc, -1, v2\n s_cbranch_vccnz L_B_R{g}')
    LBL(f'L_B_K{g}')
    if DIAG and g==3:
        E(f's_cmp_eq_u32 s{sPass}, 0\n s_cbranch_scc1 L_B_NST'); stamp('B',10,'oA all seen'); LBL('L_B_NST')
    for s in range(4*g,4*g+4):
        if s<15: wread(s+1)
        E(f's_waitcnt lgkmcnt({4 if s<15 else 0})')
        f=PW+8*(s&1)
        if s==0:
            E(f's_cmp_eq_u32 s{sPass}, 0\n s_cbranch_scc0 L_B_M1')
            for u in range(2): mfma(PA_+16*u,f+4*u,PO+4*s,'0')
            E('s_branch L_B_M2'); LBL('L_B_M1')
            for u in range(2): mfma(PA_+16*u,f+4*u,PO+4*s)
            LBL('L_B_M2')
        else:
            for u in range(2): mfma(PA_+16*u,f+4*u,PO+4*s)
    save=L; L=[]
    LBL(f'L_B_R{g}')
    E(f's_sub_u32 s{sCnt}, s{sCnt}, 1\n s_cbranch_scc1 L_B_K{g}\n s_cmp_eq_u32 s{sPass}, 0\n s_cbranch_scc0 L_B_RR{g}\n s_sleep 16')
    LBL(f'L_B_RR{g}')
    E('s_waitcnt vmcnt(0)')
    oloads(g)
    E(f's_branch L_B_G{g}')
    RETRY.extend(L); L=save
E(f's_cmp_eq_u32 s{sPass}, 0\n s_cbranch_scc0 L_B_FIN')
lds_add(C_WD,1,vZ,2)
E(f's_add_u32 s{sOb}, s{sOb}, {hex((WS_OA-WS_OB)&0xffffffff)}\n s_mov_b32 s{sPass}, 1')
lds_spin(C_WD,None,4,vZ,2,sleep=2)
wodma(sWOA)
E('s_waitcnt vmcnt(0)')
stamp('B',9,'out-proj B done, woA in')
E('s_barrier'); echo_mark('aend'); E('s_branch L_B_GEMM')
LBL('L_B_FIN')
E('s_nop 9')
for q in range(4): E(f'ds_write_b128 v164, {vr(PA_+16+4*q,4)} offset:{1024*q}')
E('s_waitcnt lgkmcnt(0)\n s_barrier')
for q in range(4): E(f'ds_read_b128 {vr(PB_+4*q,4)}, v165 offset:{1024*q}')
for q in range(4):
    E(f's_waitcnt lgkmcnt({3-q})')
    for r in range(4): E(f'v_add_f32 v{PA_+4*q+r}, v{PA_+4*q+r}, v{PB_+4*q+r}')
for r in range(8): cvt(PA_+r,PA_+2*r,PA_+2*r+1)
E('s_nop 1')
for gq in range(2): E(f'v_permlane32_swap_b32 v{PA_+4*gq}, v{PA_+4*gq+2}\n v_permlane32_swap_b32 v{PA_+4*gq+1}, v{PA_+4*gq+3}')
for gq in range(2): E(f'buffer_store_dwordx4 {vr(PA_+4*gq,4)}, v167, {sr(sOUT)}, s{sOut} offen offset:{32*gq} '+OPT.get('ost','').replace('+',' '))
if DIAG: E('s_waitcnt vmcnt(0)')
stamp('B',11,'out stored'); echo_end()
stamp_flush(12)
E('s_endpgm')
L.extend(RETRY)

LBL('L_A')
AIDX=8; AKA=9; AVA=10; AQ0=12; AQ1=16; AK=20; AV=28; SA=44; SB=60; OA=76; OB=92; XA=108; WA=160; AF=112
L_PG=L_PART+4096
sStr=sT+10; sRing=sT+7
E(f'v_and_b32 v5, 15, v0\n v_lshlrev_b32 v6, 4, v0\n s_and_b32 s{sT+9}, s{sHg}, 3\n s_cmp_lt_u32 s{sWave}, 4\n s_cbranch_scc0 L_A_KV')
C('---- waves 0..3 : wave m streams 64 columns of matrix m (wq | B q | B k | B v) through its own 8 x 2KB ring')
E(f's_cmp_eq_u32 s{sWave}, 0\n s_cselect_b32 s{sWB}, s6, s16\n s_cselect_b32 s{sWB+1}, s7, s17\n s_mov_b32 s{sWB+2}, {512*3072}\n s_cselect_b32 s{sWB+2}, {512*1024}, s{sWB+2}\n s_mov_b32 s{sWB+3}, 0x20000')
E(f's_movk_i32 s{sStr}, 3072\n s_cselect_b32 s{sStr}, 0x400, s{sStr}\n s_max_u32 s{sT+1}, s{sWave}, 1\n s_sub_u32 s{sT+1}, s{sT+1}, 1\n s_lshl_b32 s{sT+1}, s{sT+1}, 10\n s_lshl_b32 s{sT+2}, s{sHg}, 7\n s_add_u32 s{sT+1}, s{sT+1}, s{sT+2}')
dma128_voff(162,2,3,f's{sStr}',f's{sT+1}')
mkrot()
E(f's_lshl_b32 s{sStr}, s{sStr}, 3\n s_lshl_b32 s{sRing}, s{sWave}, 14')
E(f's_sub_u32 s{sT+1}, s{sStr}, 1024\n v_add_u32 v163, s{sT+1}, v162\n s_lshl_b32 s{sStr}, s{sStr}, 1')
def wdma_parts(st):
    p0=f's_add_u32 m0, s{sRing}, {(st%8)*2048}\n'
    if st%4==0: p0+=f's_add_u32 s{sT+3}, s{sRot}, {st//4}\n s_and_b32 s{sT+3}, s{sT+3}, 7\n s_lshl_b32 s{sT+3}, s{sT+3}, 2\n s_mul_i32 s{sT+3}, s{sT+3}, s{sStr}'
    else: p0+=f's_add_u32 s{sT+3}, s{sT+3}, s{sStr}'
    VQ.extend([f'w{st}']*2)
    return [p0, f'buffer_load_dwordx4 v162, {sr(sWB)}, s{sT+3} offen lds', f'buffer_load_dwordx4 v163, {sr(sWB)}, s{sT+3} offen offset:1024 lds']
def wdma(st):
    for p in wdma_parts(st): E(p)
if OPT.get('p0','2')!='0': E(f's_cmp_eq_u32 s{sWave}, 0\n s_cbranch_scc0 L_A_NP0\n s_setprio {OPT.get("p0","3")}\nL_A_NP0:')
NW0=int(OPT.get('nw0','8'))
VQ.clear()
for st in range(NW0): wdma(st)
E('s_branch L_A_NOKV')
LBL('L_A_KV')
E(f's_setprio 3\n s_load_dword s{sTag}, s[26:27], {WS_EPOCH}')
C('---- kvA: this WG makes 16 positions (hg&3) of K (hg<4) or V, and their gate ; wave 4+u sums k in [128u,128u+128)')
E(f's_cmp_lt_u32 s{sHg}, 4\n s_cselect_b32 s{sWKV}, s8, s10\n s_cselect_b32 s{sWKV+1}, s9, s11\n s_mov_b32 s{sWKV+2}, 16384\n s_mov_b32 s{sWKV+3}, 0x20000\n s_and_b32 s{sT+3}, s{sWave}, 3')
E(f's_lshl_b32 s{sT+1}, s{sPb}, 16\n s_lshl_b32 s{sT+2}, s{sT+9}, 14\n s_add_u32 s{sT+1}, s{sT+1}, s{sT+2}\n s_lshl_b32 s{sT+2}, s{sT+3}, 8\n s_add_u32 s{sT+1}, s{sT+1}, s{sT+2}')
E('v_lshlrev_b32 v3, 10, v5\n v_and_b32 v4, 48, v0\n v_add_u32 v3, v3, v4')
for s_ in range(4): E(f'buffer_load_dwordx4 {vr(116+4*s_,4)}, v3, {sr(sX)}, s{sT+1} offen offset:{64*s_}')
if MAP=='c' and OPT.get('wkt','1')=='1':
    E(f's_cmp_eq_u32 s{sWave}, 4\n s_cbranch_scc0 L_A_NT2\n s_lshr_b32 s{sT+4}, s2, 3\n s_lshl_b32 s{sT+4}, s{sT+4}, 9\n v_lshlrev_b32 v2, 7, v0\n s_mov_b64 exec, 15\n buffer_load_dword v167, v2, {sr(sWKV)}, s{sT+4} offen\n s_mov_b64 exec, -1')
    LBL('L_A_NT2')
srd(sG,20,1024)
for s_ in range(4): E(f'buffer_load_dwordx4 {vr(132+4*s_,4)}, v4, {sr(sG)}, s{sT+2} offen offset:{64*s_}')
E(f's_lshl_b32 s{sT}, s{sT+3}, 12\n s_add_u32 m0, s{sT}, {L_ST}\n s_nop 0')
for i in range(4): E(f'buffer_load_dwordx4 v6, {sr(sWKV)}, s{sT} offen offset:{1024*i} lds')
LBL('L_A_NOKV')
C('---- address of this wave\'s o slot, constants')
sOA=sT+8
E(f's_and_b32 s{sOA}, s{sWave}, 1\n s_lshl_b32 s{sT+1}, s{sPb}, 1\n s_add_u32 s{sOA}, s{sOA}, s{sT+1}\n s_lshl_b32 s{sOA}, s{sOA}, 5')
E(f's_lshl_b32 s{sT+1}, s{sHg}, 2\n s_add_u32 s{sOA}, s{sOA}, s{sT+1}\n s_and_b32 s{sT+1}, s{sWave}, 2\n s_add_u32 s{sOA}, s{sOA}, s{sT+1}\n s_lshr_b32 s{sT+1}, s{sWave}, 2\n s_add_u32 s{sOA}, s{sOA}, s{sT+1}\n s_lshl_b32 s{sOA}, s{sOA}, 10\n s_add_u32 s{sOA}, s{sOA}, {hex(WS_OA)}')
E(f'v_mov_b32 v{vZ}, {L_ST}\n v_lshlrev_b32 v11, 2, v0')
traddr128(WA,2,3,3,'0'); E(f's_lshl_b32 s{sT+1}, s{sWave}, 14\n v_add_u32 v{WA}, s{sT+1}, v{WA}\n v_xor_b32 v{WA+1}, 64, v{WA}')
E(f'v_and_b32 v2, 31, v0\n v_bfe_u32 v3, v0, 1, 3\n v_lshrrev_b32 v7, 5, v0\n v_xor_b32 v3, v3, v7\n v_lshlrev_b32 v{XA}, 7, v2\n v_lshl_add_u32 v{XA}, v3, 4, v{XA}\n v_add_u32 v{XA}, 0x10000, v{XA}')
for s_ in range(1,4): E(f'v_xor_b32 v{XA+s_}, {s_<<5}, v{XA}')
for r in range(32): E(f'v_mov_b32 v{OA+r}, 0')
set_vpad(list(range(AV,AV+16)),2)
E(f'v_mov_b32 v{AIDX}, 0xdddddddd')
E(f's_lshr_b32 s{sT+1}, s{sWave}, 2\n s_lshl_b32 s{sT+1}, s{sT+1}, 11\n v_add_u32 v{AKA}, s{sT+1}, v6')
E(f'v_lshlrev_b32 v7, 8, v7\n v_lshl_add_u32 v7, v5, 4, v7\n v_add_u32 v{AVA}, s{sT+1}, v7')
E(f's_lshl_b32 s{sT+6}, s{sHg}, 5\n s_add_u32 s{sT+6}, s{sT+6}, s{sPb}\n s_lshl_b32 s{sT+6}, s{sT+6}, 7\n s_lshl_b32 s{sT+1}, s{sWave}, 2\n s_add_u32 s{sT+6}, s{sT+6}, s{sT+1}\n s_add_u32 s{sT+6}, s{sT+6}, {hex(WS_FKVB)}')
E(f's_cmp_lt_u32 s{sWave}, 4\n s_cbranch_scc1 L_A_GQ\n s_waitcnt lgkmcnt(0)')
mktag()
E(f'v_lshrrev_b32 v4, 4, v0\n v_lshlrev_b32 v4, 8, v4\n v_lshl_add_u32 v4, v5, 3, v4\n s_add_u32 s{sT}, s{sT}, {L_ST}\n v_add_u32 v4, s{sT}, v4')
E(f's_lshl_b32 s{sT+1}, s{sT+3}, 10\n s_add_u32 s{sT+1}, s{sT+1}, {L_PART}\n v_add_u32 v2, s{sT+1}, v6\n s_lshl_b32 s{sT+1}, s{sT+3}, 8\n s_add_u32 s{sT+1}, s{sT+1}, {L_PG}\n v_add_u32 v3, s{sT+1}, v11')
E('s_waitcnt vmcnt(0)')
for s_ in range(4): E(f'ds_read_b64_tr_b16 {vr(44+4*s_,2)}, v4 offset:{1024*s_}\n ds_read_b64_tr_b16 {vr(46+4*s_,2)}, v4 offset:{1024*s_+128}')
for s_ in range(4): E(f'v_mfma_f32_16x16x32_bf16 v[64:67], {vr(132+4*s_,4)}, {vr(116+4*s_,4)}, {"0" if s_==0 else "v[64:67]"}')
E(f's_cmp_lt_u32 s{sHg}, 4\n s_waitcnt lgkmcnt(0)\n s_cbranch_scc0 L_A_VJOB')
for s_ in range(4): E(f'v_mfma_f32_16x16x32_bf16 v[60:63], {vr(44+4*s_,4)}, {vr(116+4*s_,4)}, {"0" if s_==0 else "v[60:63]"}')
E('s_branch L_A_KVJ')
LBL('L_A_VJOB')
for s_ in range(4): E(f'v_mfma_f32_16x16x32_bf16 v[60:63], {vr(116+4*s_,4)}, {vr(44+4*s_,4)}, {"0" if s_==0 else "v[60:63]"}')
LBL('L_A_KVJ')
E('s_nop 0\n ds_write_b32 v3, v64\n s_nop 5\n ds_write_b128 v2, v[60:63]')
stamp('A',2,'kvA partial')
E('s_waitcnt lgkmcnt(0)')
tag_set(T_PT,sT+3,2)
E(f's_cmp_eq_u32 s{sWave}, 7\n s_cbranch_scc0 L_A_BS')
C('---- wave 7: reduce the four partial tiles, store, flag')
tag_wait(T_PT,4,2)
E(f'v_add_u32 v3, {L_PART}, v6\n v_add_u32 v4, {L_PG}, v11')
for i in range(4): E(f'ds_read_b128 {vr(116+4*i,4)}, v3 offset:{1024*i}')
for i in range(2): E(f'ds_read2st64_b32 {vr(148+2*i,2)}, v4 offset0:{2*i} offset1:{2*i+1}')
E(f's_lshl_b32 s{sT+3}, s{sPb}, 1\n s_lshr_b32 s{sT+4}, s{sT+9}, 1\n s_add_u32 s{sT+3}, s{sT+3}, s{sT+4}\n s_lshl_b32 s{sT+3}, s{sT+3}, 11\n s_add_u32 s{sT+3}, s{sT+3}, {hex(WS_KVA)}\n s_and_b32 s{sT+4}, s{sT+9}, 1')
E(f's_cmp_lt_u32 s{sHg}, 4\n s_cselect_b32 s{sT+5}, 9, 3\n s_cselect_b32 s{sT+7}, 3, 8\n s_cselect_b32 s{sT+1}, 8, 9\n s_cselect_b32 s{sT}, 0, 0x400')
E(f's_lshl_b32 s{sT+4}, s{sT+4}, s{sT+1}\n s_add_u32 s{sT+3}, s{sT+3}, s{sT+4}\n s_add_u32 s{sT+3}, s{sT+3}, s{sT}')
E(f'v_bfe_u32 v3, v0, 4, 1\n v_lshrrev_b32 v4, 5, v0\n v_lshlrev_b32 v5, 4, v5\n v_lshl_add_u32 v5, v3, s{sT+5}, v5\n v_lshl_add_u32 v5, v4, s{sT+7}, v5')
FPLS=int(OPT.get('fpl','2'))
E(f's_lshl_b32 s{sT+7}, s{sPb}, 3\n s_add_u32 s{sT+7}, s{sT+7}, s{sHg}\n s_and_b32 s{sT+1}, s{sT+7}, {(1<<FPLS)-1}\n s_lshr_b32 s{sT+7}, s{sT+7}, {FPLS}\n s_lshl_b32 s{sT+7}, s{sT+7}, 7\n s_lshl_b32 s{sT+1}, s{sT+1}, 2\n s_add_u32 s{sT+7}, s{sT+7}, s{sT+1}\n s_add_u32 s{sT+7}, s{sT+7}, {hex(WS_FKVA)}')
E('s_waitcnt lgkmcnt(2)')
for st_ in (8,4):
    for r in range(st_): E(f'v_add_f32 v{116+r}, v{116+r}, v{116+st_+r}')
cvt(116,116,117); cvt(117,118,119)
E(f'buffer_store_dwordx2 v[116:117], v5, {sr(sWS)}, s{sT+3} offen sc1')
E(f's_cmp_lt_u32 s{sHg}, 4\n s_waitcnt lgkmcnt(0)\n s_cbranch_scc0 L_A_SF')
for st_ in (2,1):
    for r in range(st_): E(f'v_add_f32 v{148+r}, v{148+r}, v{148+st_+r}')
E(f's_mov_b32 s{sT}, {hex(f2u(-math.log2(math.e)))}\n v_mul_f32 v148, s{sT}, v148\n v_exp_f32 v148, v148')
E(f's_lshl_b32 s{sT}, s{sPb}, 2\n s_add_u32 s{sT}, s{sT}, s{sT+9}\n v_add_f32 v148, 1.0, v148\n v_rcp_f32 v148, v148\n s_lshl_b32 s{sT}, s{sT}, 6\n s_add_u32 s{sT}, s{sT}, {hex(WS_G)}')
E(f's_mov_b64 exec, 0xffff\n buffer_store_dword v148, v11, {sr(sWS)}, s{sT} offen sc1\n s_mov_b64 exec, -1')
LBL('L_A_SF')
E('s_waitcnt vmcnt(0)')
flag_store(sT+7,2)
stamp('A',3,'kvA flag sent')
LBL('L_A_BS')
E(f's_cmp_eq_u32 s{sWave}, 6\n s_cbranch_scc0 L_A_B8')
C('---- wave 6: wait for every K/V piece, fetch this WG\'s share into L2, tell the projection waves')
E(f'v_lshlrev_b32 v16, 7, v0\n v_lshrrev_b32 v17, {FPLS-2}, v0\n v_lshlrev_b32 v17, 7, v17\n v_and_b32 v18, {(1<<(FPLS-2))-1}, v0\n v_lshl_add_u32 v17, v18, 4, v17\n v_add_u32 v17, {hex(WS_FKVA)}, v17')
E(f'v_mov_b32 v2, s{sTag}\n ds_write_b32 v{vZ}, v2 offset:{T_TAG-L_ST}')
tag_wait(T_PT,4,2)
tag_wait(T_PL,1,2,sleep=2)
C('lanes whose four flags are in drop out of the next look')
E(f's_mov_b32 s{sCnt}, {SPIN_LIMIT}')
LBL('L_A_PL')
E(f'buffer_load_dwordx4 v[12:15], v17, {sr(sWS)}, 0 offen sc1\n s_waitcnt vmcnt(0)')
for i in range(4): E(f'v_xor_b32 v{12+i}, s{sTag}, v{12+i}')
E(f'v_or3_b32 v12, v12, v13, v14\n v_or_b32 v12, v12, v15\n v_cmp_ne_u32 vcc, 0, v12\n s_cbranch_vccz L_A_PLD\n s_sub_u32 s{sCnt}, s{sCnt}, 1\n s_cbranch_scc1 L_A_PLD\n s_mov_b64 exec, vcc\n s_sleep {OPT.get("psl","16")}\n s_branch L_A_PL')
LBL('L_A_PLD')
E('s_mov_b64 exec, -1')
E(f's_lshr_b32 s{sT+5}, s2, 3\n s_lshl_b32 s{sT+5}, s{sT+5}, 12\n s_add_u32 s{sT+5}, s{sT+5}, {hex(WS_KVA)}')
E(f's_mov_b32 exec_hi, 0\n buffer_load_dword v117, v16, {sr(sWS)}, s{sT+5} offen sc1\n s_mov_b64 exec, -1')
tag_set(T_FL,None,2)
stamp('A',3,'kvA flag sent')
E(f's_lshr_b32 s{sT+5}, s2, 3\n s_and_b32 s{sT+5}, s{sT+5}, 3\n s_lshl_b32 s{sT+5}, s{sT+5}, 14\n s_add_u32 s{sT+5}, s{sT+5}, {hex(WS_KVA)}')
for q in range(4):
    E(f's_mov_b32 m0, {L_ST+4096*q}\n s_add_u32 s{sT+4}, s{sT+5}, {4096*q}')
    for i in range(4): E(f'buffer_load_dwordx4 v6, {sr(sWS)}, s{sT+4} offen offset:{1024*i} sc1 lds')
E('s_waitcnt vmcnt(0)')
tag_set(T_K0,None,2)
stamp('A',7,'G1')
E(f's_cmp_eq_u32 s2, 0\n s_cbranch_scc0 L_A_B8\n s_mov_b32 s{sT}, 0')
flag_store(sT,2)
E('s_branch L_A_B8')
LBL('L_A_GQ')
PAC=[44,60,128,144]; PFR=[12,112,92]
def areads_l(st):
    f=PFR[st%3]; so=(st%8)*2048; o=[]
    for i in range(2): o+= [f'ds_read_b64_tr_b16 {vr(f+4*i,2)}, v{WA+i} offset:{so}', f'ds_read_b64_tr_b16 {vr(f+4*i+2,2)}, v{WA+i} offset:{so+512}']
    for t in range(2): o.append(f'ds_read_b128 {vr(f+8+4*t,4)}, v{XA+st%4} offset:{(st//4)*8192+4096*t}')
    return o
def areads(st):
    for p in areads_l(st): E(p)
def kv_parts(p):
    VQ.extend(['kv']*2)
    return [f's_add_u32 m0, s{sRing}, {p*2048}\n s_add_u32 s{sT+4}, s{sT+5}, {p*2048}']+[f'buffer_load_dwordx4 v6, {sr(sWS)}, s{sT+4} offen offset:{1024*n} sc1 lds' for n in range(2)]
def kvpiece(p):
    for q in kv_parts(p): E(q)
for st in range(NW0,8): wdma(st)
E(f's_sub_u32 s{sT+4}, s{sWave}, 1\n s_cmp_eq_u32 s{sWave}, 1\n s_cselect_b32 s{sT+4}, 3, s{sT+4}\n s_lshr_b32 s{sT+5}, s2, 3\n s_add_u32 s{sT+5}, s{sT+5}, s{sT+4}\n s_and_b32 s{sT+5}, s{sT+5}, 3\n s_lshl_b32 s{sT+5}, s{sT+5}, 14\n s_add_u32 s{sT+5}, s{sT+5}, {hex(WS_KVA)}')
tag_wait(T_X0,4,2) if XD else tag_wait(T_X,1,2)
stamp('A',7,'G1')
vwait('w0'); areads(0); vwait('w1'); areads(1)
VQ0=list(VQ)
PLK=int(OPT.get('plk','15'))
E(f's_cmp_eq_u32 s{sWave}, 3\n s_cbranch_scc1 L_A_GV')
def gstep(var,st,kv):
    f=PFR[st%3]
    def mm(i,t):
        d=PAC[2*i+t]; c='0' if st==0 else None
        if var==0: mfma(d,f+4*i,f+8+4*t,c)
        else: mfma(d,f+8+4*t,f+4*i,c)
    vwait(f'w{st+2}',f' lgkmcnt({6 if st<31 else 0})')
    rd=areads_l(st+2) if st+2<32 else []
    dm=wdma_parts(st+8) if st+8<32 else (kv_parts(st%8) if kv else [])
    gaps=[rd[0:2]+dm[0:1], rd[2:4]+dm[1:2], rd[4:6], dm[2:3]]
    if st>=30: gaps=[[f'v_mov_b32 v{OB+8*(st-30)+2*q+r}, 0' for r in range(2)]+gaps[q] for q in range(4)]
    for q,(i,t) in enumerate(((0,0),(0,1),(1,0),(1,1)) if st<31 else ((1,0),(1,1),(0,0),(0,1))):
        mm(i,t)
        for p in gaps[q]: E(p)
for var in (0,1):
    if var: LBL('L_A_GV')
    VQ[:]=VQ0
    for st in range(24):
        if OPT.get('hold') and st==0:
            E(f's_cmp_eq_u32 s{sWave}, 0\n s_cbranch_scc1 L_A_NH{var}'); tag_wait(T_H,1,2,sleep=2); LBL(f'L_A_NH{var}')
        if OPT.get('hold') and var==0 and st==int(OPT.get('hold')):
            E(f's_cmp_eq_u32 s{sWave}, 0\n s_cbranch_scc0 L_A_NH2'); tag_set(T_H,None,2); E('s_waitcnt lgkmcnt(0)'); LBL('L_A_NH2')
        if st==2: E('s_waitcnt lgkmcnt(0)'); tag_wait(T_X,4,2)
        if st==14: E('s_waitcnt lgkmcnt(0)'); tag_wait(T_X+16,4,2)
        if st==PLK and var==1: tag_set(T_PL,None,2); E('s_waitcnt lgkmcnt(0)')
        gstep(var,st,False)
    stamp('A',2,'step 24'); cstamp('A',10,'s24')
    if var==0: E(f's_cmp_eq_u32 s{sWave}, 0\n s_cbranch_scc1 L_A_G0')
    tag_wait(T_FL,1,2,once=f'L_A_GK{var}')
    if var==0: LBL('L_A_G0')
    V1=list(VQ)
    for st in range(24,32): gstep(var,st,False)
    if var==0: E(f's_cmp_eq_u32 s{sWave}, 0\n s_cbranch_scc1 L_A_GE0')
    tag_wait(T_FL,1,2)
    for p in range(8): kvpiece(p)
    E(f's_branch L_A_GE{var}')
    LBL(f'L_A_GK{var}')
    VQ[:]=V1
    for st in range(24,32): gstep(var,st,True)
    LBL(f'L_A_GE{var}')
    stamp('A',1,'proj loop done'); cstamp('A',11,'pl')
    E(f's_lshl_b32 s{sT+4}, s{sHg}, 8\n s_lshl_b32 s{sT+5}, s{sPb}, 1\n s_add_u32 s{sT+4}, s{sT+4}, s{sT+5}\n s_lshl_b32 s{sT+4}, s{sT+4}, 11\n s_add_u32 s{sT+4}, s{sT+4}, {hex(WS_KVB)}')
    if var==0:
        E(f's_cmp_eq_u32 s{sWave}, 2\n s_cbranch_scc1 L_A_EK')
        C('q (A / B): scale, pack, hand over through LDS')
        E(f's_cmp_eq_u32 s{sWave}, 0\n s_cbranch_scc1 L_A_Q0')
        tag_wait(T_G,1,2)
        LBL('L_A_Q0')
        E(f's_lshl_b32 s{sT+1}, s{sWave}, 13\n s_add_u32 s{sT+1}, s{sT+1}, {L_QA}\n v_add_u32 v3, s{sT+1}, v6\n s_mov_b32 s{sT+2}, {hex(CSCALE)}\n s_mov_b32 s{sT+3}, {hex(CSCALE)}\n s_lshl_b32 s{sT+1}, s{sWave}, 2\n s_add_u32 s{sT+1}, s{sT+1}, {T_Q1}\n v_mov_b32 v4, s{sT+1}\n v_mov_b32 v5, 1')
        for i in (1,0):
            for t in range(2):
                d=PAC[2*i+t]
                for r in range(0,16,2): E(f'v_pk_mul_f32 {vr(d+r,2)}, {vr(d+r,2)}, {sr(sT+2,2)}')
                for r in range(8): cvt(d+r,d+2*r,d+2*r+1)
                for hh in range(2): E(f'ds_write_b128 v3, {vr(d+4*hh,4)} offset:{(2*i+hh)*2048+1024*t}')
            if i==1: E(f's_mov_b64 exec, 1\n ds_write_b32 v4, v5\n s_mov_b64 exec, -1')
        E('s_waitcnt vmcnt(0) lgkmcnt(0)')
        tag_set(T_G,sWave,2)
        E('s_branch L_A_B8')
        LBL('L_A_EK')
        E('s_waitcnt vmcnt(0)')
        tag_set(T_G,sWave,2)
        for i in range(2):
            for t in range(2):
                d=PAC[2*i+t]
                for r in range(8): cvt(d+r,d+2*r,d+2*r+1)
                for hh in range(2): E(f's_add_u32 s{sT+5}, s{sT+4}, {(2*i+hh)*131072}\n buffer_store_dwordx4 {vr(d+4*hh,4)}, v6, {sr(sWS)}, s{sT+5} offen offset:{2048*t} sc1')
        E('s_branch L_A_B8')
    else:
        E('s_waitcnt vmcnt(0)')
        tag_set(T_G,sWave,2)
        E('v_bfe_u32 v3, v0, 4, 1\n v_lshl_add_u32 v3, v3, 17, v7')
        for i in range(2):
            for t in range(2):
                d=PAC[2*i+t]
                for r in range(8): cvt(d+r,d+2*r,d+2*r+1)
                E('s_nop 1')
                for gq in range(2): E(f'v_permlane32_swap_b32 v{d+4*gq}, v{d+4*gq+2}\n v_permlane32_swap_b32 v{d+4*gq+1}, v{d+4*gq+3}')
                E(f's_add_u32 s{sT+5}, s{sT+4}, {i*2*131072}')
                for gq in range(2): E(f'buffer_store_dwordx4 {vr(d+4*gq,4)}, v3, {sr(sWS)}, s{sT+5} offen offset:{2048*t+1024+512*gq} sc1')
LBL('L_A_B8')
E('s_setprio 0')
E(f's_and_b32 s{sT+1}, s{sWave}, 2\n s_lshr_b32 s{sT+2}, s{sWave}, 2\n s_add_u32 s{sT+1}, s{sT+1}, s{sT+2}\n s_lshl_b32 s{sT+1}, s{sT+1}, 11\n s_and_b32 s{sT+2}, s{sWave}, 1\n s_lshl_b32 s{sT+2}, s{sT+2}, 10\n s_add_u32 s{sT+1}, s{sT+1}, s{sT+2}\n s_add_u32 s{sT+1}, s{sT+1}, {L_QA}\n v_add_u32 v2, s{sT+1}, v6\n v_xor_b32 v3, 0x800, v2')
AK0=120; AV0=121; AEX=122; AG=126
E(f'v_add_u32 v{AK0}, {L_ST}, v{AKA}\n v_add_u32 v{AV0}, {L_ST}, v{AVA}')
E(f's_and_b32 s{sT+2}, s{sWave}, 3\n s_mul_i32 s{sT+1}, s{sT+2}, 4608\n s_add_u32 s{sT+1}, s{sT+1}, {L_EX}\n v_add_u32 v{AEX}, s{sT+1}, v6\n v_add_u32 v{AEX+1}, s{sT+1}, v11')
E(f's_lshl_b32 s{sT+2}, s{sT+2}, 2\n s_add_u32 s{sT+2}, s{sT+2}, {C_PR}\n v_mov_b32 v{AEX+2}, s{sT+2}')
E(f's_and_b32 s{sT+1}, s{sWave}, 1\n s_lshl_b32 s{sT+2}, s{sPb}, 1\n s_add_u32 s{sT+1}, s{sT+1}, s{sT+2}\n s_lshl_b32 s{sT+1}, s{sT+1}, 7\n s_add_u32 s{sT+1}, s{sT+1}, {hex(WS_G)}\n v_and_b32 v127, 0x7c, v11')
tag_wait(T_K0,1,4,sleep=int(OPT.get('asl','2')))
E(f'buffer_load_dword v{AG}, v127, {sr(sWS)}, s{sT+1} offen sc1')
tag_get(4)
def kvoff(j):
    return (j%4)*4096+(0 if j<4 else KVPOS[j//4]-(65536 if j>=20 else 0))
def ldk(j): E(f'ds_read_b128 {vr(AK+4*(j&1),4)}, v{AK0 if j<4 else AKA} offset:{kvoff(j)}')
def ldv(j): E(f's_mov_b64 exec, {sr(sVM,2)}\n ds_read_b128 {vr(AV+8*(j&1),4)}, v{AV0 if j<4 else AVA} offset:{kvoff(j)+1024}\n ds_read_b128 {vr(AV+8*(j&1)+4,4)}, v{AV0 if j<4 else AVA} offset:{kvoff(j)+1536}\n s_mov_b64 exec, -1')
ldk(0); ldv(0); ldk(1)
E(f's_bitcmp1_b32 s{sWave}, 1\n s_cbranch_scc0 L_A_WL')
tag_wait(T_Q1,1,4,sleep=int(OPT.get('asl2','1')))
E('s_branch L_A_WD')
LBL('L_A_WL')
tag_wait(T_G,1,4,sleep=int(OPT.get('asl2','1')))
LBL('L_A_WD')
stamp('A',4,'BQ'); cstamp('A',8,'BQ')
E(f'ds_read_b128 {vr(AQ0,4)}, v2\n ds_read_b128 {vr(AQ1,4)}, v3')
if PRIO in ('step','step4'): E('s_setprio 2')
E('s_waitcnt lgkmcnt(0)'); mfma(SA,AK,AQ0,'0')
lds_add(C_QR,1,vZ,2)
E('s_nop 7')
def pair_iter(j,ldk_,ldv_,first=False,last=0,extra=0):
    kc=AK+4*(j&1); kn=AK+4*((j+1)&1); vc=AV+8*(j&1); vp=AV+8*((j+1)&1)
    vexp(SA); vexp(SA+1)
    if not first: smf(OB,vp+4,SB+8,AIDX)
    for r in range(2,5): vexp(SA+r)
    mfma(SB,kc,AQ1,'0')
    for r in range(5,10): vexp(SA+r)
    E(f's_waitcnt lgkmcnt({(1 if last<2 else 0)+extra})')
    vexp(SA+10); smf(OA,vc,SA,AIDX)
    for r in range(11,16): vexp(SA+r)
    vexp(SB); vexp(SB+1); smf(OA,vc+4,SA+8,AIDX)
    if last<2: ldv_()
    for r in range(2,5): vexp(SB+r)
    if last<2:
        E('s_waitcnt lgkmcnt(2)'); mfma(SA,kn,AQ0,'0')
    if last<1: ldk_()
    for r in range(5,11): vexp(SB+r)
    smf(OB,vc,SB,AIDX)
    for r in range(11,16): vexp(SB+r)
def aflag(force,init=False):
    sk=uid('fl')
    E(f's_cmp_eq_u32 s{sT+5}, 0\n s_cbranch_scc0 {sk}')
    if not force: E(f's_getreg_b32 s{sT}, hwreg(HW_REG_IB_STS, 0, 4)\n s_cmp_eq_u32 s{sT}, 0\n s_cbranch_scc0 {sk}')
    E(f's_waitcnt vmcnt(0)\n s_mov_b32 s{sT+5}, 1'); flag_store(sT+6,2); LBL(sk)
if ROLL:
    AKN=120; AVN=121; sC=sT+4
    def rk(j):
        a_=AKA if j<4 else AKN
        return lambda: E(f'ds_read_b128 {vr(AK+4*(j&1),4)}, v{a_} offset:{(j%4)*4096}')
    def rv(j):
        a_=AVA if j<4 else AVN
        return lambda: E(f's_mov_b64 exec, {sr(sVM,2)}\n ds_read_b128 {vr(AV+8*(j&1),4)}, v{a_} offset:{(j%4)*4096+1024}\n ds_read_b128 {vr(AV+8*(j&1)+4,4)}, v{a_} offset:{(j%4)*4096+1536}\n s_mov_b64 exec, -1')
    for r in range(8,16): E(f'v_mov_b32 v{SB+r}, 0')
    E(f'v_add_u32 v{AKN}, 0x8000, v{AKA}\n v_add_u32 v{AVN}, 0x8000, v{AVA}\n v_add_u32 v{AKA}, 0x4000, v{AKA}\n v_add_u32 v{AVA}, 0x4000, v{AVA}\n s_mov_b32 s{sC}, 0\n s_mov_b32 s{sT+5}, 0')
    L.append('.p2align 6')
    LBL('L_A_LOOP')
    pair_iter(0,rk(2),rv(1)); pair_iter(1,rk(3),rv(2))
    E(f's_cmp_gt_u32 s{sC}, 6\n s_cbranch_scc1 L_A_LAST\n s_bitcmp1_b32 0x5f, s{sC}\n s_cbranch_scc1 L_A_RARE')
    LBL('L_A_RBACK')
    pair_iter(2,rk(4),rv(3)); pair_iter(3,rk(5),rv(4))
    E(f's_add_u32 s{sC}, s{sC}, 1\n s_mov_b32 s{sT+1}, 0x4000\n s_cmp_eq_u32 s{sC}, 2\n s_cselect_b32 s{sT+1}, {hex((-49152)&0xffffffff)}, s{sT+1}\n s_cmp_eq_u32 s{sC}, 3\n s_cselect_b32 s{sT+1}, {hex((-65536)&0xffffffff)}, s{sT+1}')
    E(f'v_mov_b32 v{AKA}, v{AKN}\n v_mov_b32 v{AVA}, v{AVN}\n v_add_u32 v{AKN}, s{sT+1}, v{AKN}\n v_add_u32 v{AVN}, s{sT+1}, v{AVN}\n s_branch L_A_LOOP')
    LBL('L_A_RARE')
    E(f's_waitcnt lgkmcnt(0)\n s_cmp_gt_u32 s{sC}, 3\n s_cbranch_scc1 L_A_R4')
    E(f's_cmp_eq_u32 s{sC}, 0\n s_cbranch_scc0 L_A_R1'); lds_spin(C_K1,None,4,vZ,2,sleep=0)
    LBL('L_A_R1')
    E(f's_cmp_eq_u32 s{sC}, 2\n s_cbranch_scc0 L_A_R2'); lds_spin(C_K2,None,4,vZ,2,sleep=1)
    LBL('L_A_R2')
    E(f's_cmp_eq_u32 s{sC}, 3\n s_cbranch_scc1 L_A_R3'); aflag(False); E('s_branch L_A_RBACK')
    LBL('L_A_R3'); aflag(True); E('s_branch L_A_RBACK')
    LBL('L_A_R4')
    E(f's_cmp_eq_u32 s{sC}, 4\n s_cbranch_scc0 L_A_R6'); lds_add(C_MID,1,vZ,2); E('s_waitcnt lgkmcnt(0)\n s_branch L_A_RBACK')
    LBL('L_A_R6'); lds_spin(C_MID,None,8,vZ,2,sleep=1); E('s_branch L_A_RBACK')
    LBL('L_A_LAST')
    pair_iter(2,None,rv(3),last=1); pair_iter(3,None,None,last=2)
else:
    E(f's_and_b32 s{sT+5}, s{sWave}, 6\n s_cmp_eq_u32 s{sT+5}, 2\n s_cselect_b32 s{sT+5}, 0, 1')
    for j in range(32):
        if j in (2,6,10): E('s_waitcnt lgkmcnt(0)'); tag_wait(T_G+4*{2:2,6:3,10:1}[j],1,2)
        if j in (1,2,3,5): aflag(j==5)
        PJ=[int(x) for x in OPT.get('pj','11,22').split(',')]
        if PRIO=='step' and j in PJ: E(f's_setprio {1 if j==PJ[0] else 0}')
        if PRIO=='step4' and j in (6,16): E(f's_setprio {1 if j==6 else 0}')
        if OPT.get('jst') and j in (2,4,8,16,24): E('s_waitcnt lgkmcnt(0)'); cstamp('A',{2:1,4:2,8:3,16:7,24:10}[j],f'J{j}')
        if j==14: E('s_waitcnt lgkmcnt(0)'); lds_spin(C_K2,None,0x404,vZ,2,sleep=1)
        if j==20: lds_add(C_MID,1,vZ,2)
        if j==28: E('s_waitcnt lgkmcnt(0)'); lds_spin(C_MID,None,8,vZ,2,sleep=1)
        def lv(j=j):
            if j==19: E(f'v_add_u32 v{AVA}, 0x10000, v{AVA}')
            ldv(j+1)
        def lk(j=j):
            if j==18: E(f'v_add_u32 v{AKA}, 0x10000, v{AKA}')
            ldk(j+2)
        if j==31:
            C('has the partner of this wave (same queries, other keys) already left its sums ?  if so they arrive during the last tile')
            E(f'ds_read_b32 v127, v{AEX+2} offset:16\n ds_read_b32 v125, v{vZ} offset:{C_LOC-L_ST}')
            for q in range(2): E(f'ds_read_b128 {vr(128+12*q,4)}, v{AEX} offset:{2304*q}\n ds_read_b128 {vr(132+12*q,4)}, v{AEX} offset:{2304*q+1024}\n ds_read_b32 v{136+12*q}, v{AEX+1} offset:{2304*q+2048}')
        pair_iter(j,lk,lv,first=(j==0),last=(2 if j==31 else 1 if j==30 else 0),extra=(1 if j in (0,20) else 0))
E('s_nop 1'); smf(OB,AV+8+4,SB+8,AIDX)
stamp('A',5,'A loop done'); cstamp('A',9,'loop done')
C('---- the first wave of a pair to finish leaves both partial sums in LDS and ends ; the second one finishes both heads')
E(f'v_readfirstlane_b32 s{sT+1}, v127\n v_readfirstlane_b32 s{sT+9}, v125\n s_cmp_eq_u32 s{sT+1}, 1\n s_cbranch_scc1 L_A_LATE')
E(f'v_mov_b32 v2, 1\n s_mov_b64 exec, 1\n ds_add_rtn_u32 v3, v{AEX+2}, v2\n s_mov_b64 exec, -1\n s_waitcnt lgkmcnt(0)\n v_readfirstlane_b32 s{sT+1}, v3\n s_cmp_eq_u32 s{sT+1}, 0\n s_cbranch_scc0 L_A_TIE\n s_nop 3')
for q,O in enumerate((OA,OB)): E(f'ds_write_b128 v{AEX}, {vr(O,4)} offset:{2304*q}\n ds_write_b128 v{AEX}, {vr(O+4,4)} offset:{2304*q+1024}\n ds_write_b32 v{AEX+1}, v{O+8} offset:{2304*q+2048}')
E(f's_mov_b64 exec, 1\n ds_write_b32 v{AEX+2}, v2 offset:16\n s_mov_b64 exec, -1\n s_waitcnt lgkmcnt(0)\n s_branch L_A_STD')
LBL('L_A_TIE')
E(f's_mov_b32 s{sCnt}, {SPIN_LIMIT}')
LBL('L_A_TI2')
E(f'ds_read_b32 v127, v{AEX+2} offset:16')
for q in range(2): E(f'ds_read_b128 {vr(128+12*q,4)}, v{AEX} offset:{2304*q}\n ds_read_b128 {vr(132+12*q,4)}, v{AEX} offset:{2304*q+1024}\n ds_read_b32 v{136+12*q}, v{AEX+1} offset:{2304*q+2048}')
E(f's_waitcnt lgkmcnt(0)\n v_readfirstlane_b32 s{sT+1}, v127\n s_cmp_eq_u32 s{sT+1}, 1\n s_cbranch_scc1 L_A_LATE\n s_sub_u32 s{sCnt}, s{sCnt}, 1\n s_cbranch_scc0 L_A_TI2')
LBL('L_A_LATE')
for r in range(9): E(f'v_add_f32 v{OA+r}, v{OA+r}, v{140+r}')
E('s_waitcnt vmcnt(0)')
def setupA(): E(f's_mov_b32 s{sT+2}, {hex(WS_KVA)}\n s_mov_b32 s{sT+3}, 64')
for q,(O,Q_) in enumerate(((OA,AQ0),(OB,AQ1))):
    if q==1:
        for r in range(9): E(f'v_add_f32 v{OB+r}, v{OB+r}, v{128+r}')
    dst=152+4*q
    finalize(O,dst,2,f'L_FB_A{q}',f'L_FB_A{q}_BACK',126)
    if q==1: E(f's_xor_b32 s{sOA}, s{sOA}, 0x400')
    E(f's_cmp_eq_u32 s{sT+9}, 0\n s_cbranch_scc1 L_A_FAR{q}\n buffer_store_dwordx4 {vr(dst,4)}, v6, {sr(sWS)}, s{sOA} offen\n s_branch L_A_ST{q}')
    LBL(f'L_A_FAR{q}')
    E(f'buffer_store_dwordx4 {vr(dst,4)}, v6, {sr(sWS)}, s{sOA} offen sc1')
    LBL(f'L_A_ST{q}')
    fallback(f'L_FB_A{q}',f'L_FB_A{q}_BACK',Q_,O,SA,AK,AV,AIDX,3,6,7,None,setupA)
LBL('L_A_STD')
stamp('A',6,'oA published')
stamp_flush(12,'A')
LBL('L_END')
E('s_endpgm')
L.append('L_CODE_END:')
L.extend(TAIL)
L.append('    s_endpgm\n.fill 1200, 4, 0xbf810000')

hdr=open('cdna_kernels/%s.s.ref'%NAME).read().split('; Override launch')[0]
txt=hdr
txt+=f'; @launch grid=(256,1,1) block=(768,1,1) lds={LDS_TOTAL}\n'
for n in ('WS_KVA','WS_KVB','WS_OA','WS_OB','WS_STAMP','NSTAMP'): txt+=f'; CONST {n} = {hex(globals()[n])}\n'
for r,i,n in STN: txt+=f'; STAMPNAME {r} {i} {n}\n'
txt+=f'''.amdgcn_target "amdgcn-amd-amdhsa--gfx950"
.text
.globl {NAME}_kernel
.p2align 8
.type {NAME}_kernel,@function
{NAME}_kernel:
'''+'\n'.join(L)+f'''
.section .rodata,"a"
.p2align 6
.amdhsa_kernel {NAME}_kernel
  .amdhsa_next_free_vgpr 168
  .amdhsa_next_free_sgpr 102
  .amdhsa_accum_offset 168
  .amdhsa_group_segment_fixed_size 0
  .amdhsa_kernarg_size 96
  .amdhsa_user_sgpr_count 2
  .amdhsa_user_sgpr_kernarg_segment_ptr 1
  .amdhsa_system_sgpr_workgroup_id_x 1
.end_amdhsa_kernel
'''
open(OUT,'w').write(txt)
print('wrote',OUT,len(L),'lines')
```

```python
import sys, math, struct
NAME='gated_mix__grouped_kv_mqa__sliding_block__prompt'
DIAG = '--diag' in sys.argv
OUT = [a for a in sys.argv[1:] if not a.startswith('--')]
OUT = OUT[0] if OUT else 'cdna_kernels/%s.s'%NAME
OPT=dict(a.lstrip('-').split('=') for a in sys.argv[1:] if a.startswith('--') and '=' in a)
MAP=OPT.get('map','b'); ROT=OPT.get('rot','full'); PRIO=OPT.get('prio','step'); FLAG_IT=int(OPT.get('flagit','1')); PK=int(OPT.get('pk','7')); FORCE_K=int(OPT.get('forcek','7')); SENTK=int(OPT.get('sentk','14')); DENSE=OPT.get('dense','0')=='1'; ROLL=OPT.get('roll','0')=='1'; WT=OPT.get('wtouch','0')=='1'; KVK=int(OPT.get('kvk','13'))
def f2u(f): return struct.unpack('<I',struct.pack('<f',f))[0]

WS_EPOCH=0x0
WS_FKVA=0x1000
WS_FKVB=0x4000
WS_FOB =0xC000
WS_FOA =0x14000
WS_G   =0x1C000
WS_KVA =0x20000
WS_QB  =0x40000
WS_KVB =0x240000
WS_OA  =0x640000
WS_OB  =0x840000
WS_STAMP=0xA40000
NSTAMP=16
L_WQ=0; L_X=65536; L_ST=131072; L_CTL=L_ST+30720
L_GW=L_CTL; L_G=L_CTL+1024; L_C=L_CTL+1024+256
C_X=L_C+0
C_Q=L_C+4
C_K0=L_C+8; C_K1=L_C+12; C_K2=L_C+16; C_BP=L_C+20; C_MID=L_C+24; C_WO=L_C+28; C_WD=L_C+32; C_QR=L_C+36; C_SN=L_C+40; C_LOC=L_C+44; T_PT=L_C+256; T_X=L_C+272; T_PL=L_C+304; T_FL=L_C+308; T_G=L_C+320; T_X0=L_C+336; T_K0=L_C+352; T_Q1=L_C+356; T_H=L_C+368; T_TAG=L_C+372; C_PR=L_C+384; T_PR=L_C+400
L_EX=L_ST
LDS_TOTAL=163840
SPIN_LIMIT=400000
CSCALE=f2u(0.25*math.log2(math.e))
NEGBIG=f2u(-1e9)
L_LO=f2u(2.0**-24); L_HI=f2u(2.0**60)

sX=28; sWQ=32; sWKV=36; sWB=40; sWOA=44; sWOB=48; sG=52; sOUT=56; sWS=60; sDBG=64
sWave=68; sPb=69; sHg=70; sTag=71
sT=72
sCnt=84; sB=85
sXcc=65
sVM=86
sST=88
vZ=1
L=[]
def E(s):
    for ln in s.split('\n'):
        if ln.strip(): L.append('    '+ln.strip())
def LBL(s): L.append(s+':')
def C(s): L.append('    ; '+s)
_uid=[0]
def uid(p):
    _uid[0]+=1; return f'{p}_{_uid[0]}'
def vr(a,n): return f'v[{a}:{a+n-1}]'
def sr(a,n=4): return f's[{a}:{a+n-1}]'
def srd(dst,ptr,nbytes):
    E(f's_mov_b32 s{dst}, s{ptr}\n s_mov_b32 s{dst+1}, s{ptr+1}\n s_mov_b32 s{dst+2}, {hex(nbytes)}\n s_mov_b32 s{dst+3}, 0x20000')
STN=[]
def stamp(role,i,name):
    if OPT.get('acc') and role=='B' and i==10: return
    if OPT.get('jst') and role=='A' and i in (1,2,3,7): return
    if OPT.get('bst') and role=='B' and i in (6,7,8,9) and not name.startswith('arrive'): return
    if not DIAG: return
    STN.append((role,i,name))
    E(f's_memrealtime s[100:101]\n s_waitcnt lgkmcnt(0)\n s_mov_b32 s{sST+i}, s100')
ECHO=OPT.get('echo')
def echo_mark(name):
    if ECHO==name or name=='start' and ECHO:
        r=98 if name=='start' else 99
        E(f's_memrealtime s[100:101]\n s_waitcnt lgkmcnt(0)\n s_mov_b32 s{r}, s100')
def echo_end():
    if not ECHO: return
    E('s_waitcnt vmcnt(0)'); echo_mark('end')
    E('s_memrealtime s[100:101]\n s_waitcnt lgkmcnt(0)\n s_sub_u32 s99, s99, s98\n s_add_u32 s99, s99, s100')
    LBL('L_ECHO')
    E('s_memrealtime s[100:101]\n s_waitcnt lgkmcnt(0)\n s_sub_u32 s100, s100, s99\n s_cmp_lt_i32 s100, 0\n s_cbranch_scc1 L_ECHO')
def cstamp(role,i,name):
    if OPT.get('jst') and i in (10,11) and not name.startswith('J'): return
    if not DIAG: return
    STN.append((role,i,'CYC '+name))
    E(f's_memtime s[100:101]\n s_waitcnt lgkmcnt(0)\n s_mov_b32 s{sST+i}, s100')
def tacc(role,i,name,code):
    if not (DIAG and OPT.get('acc')): E(code); return
    if (role,i,'ACC '+name) not in STN: STN.append((role,i,'ACC '+name))
    E(f's_memtime s[100:101]\n s_waitcnt lgkmcnt(0)\n s_sub_u32 s{sST+i}, s{sST+i}, s100')
    E(code)
    E(f's_memtime s[100:101]\n s_waitcnt lgkmcnt(0)\n s_add_u32 s{sST+i}, s{sST+i}, s100')
def stamp_flush(nmax,role='B'):
    if not DIAG: return
    if OPT.get('dbg'):
        m={'A':[(0,1),(2,2),(7,3),(3,4),(1,5),(4,6),(5,7),(6,8)],'B':[(4,9),(6,10),(7,11),(9,12),(10,13),(11,14)]}[role]
        sk=uid('nd')
        srd(sDBG,24,256)
        E(f's_bfe_u32 s{sT}, s2, 0x30003\n s_cmp_eq_u32 s{sT}, 0\n s_cbranch_scc0 {sk}\n v_mov_b32 v2, 0\n s_not_b32 s{sT}, s{sST}\n v_writelane_b32 v2, s{sT}, 0')
        for i,sl in m: E(f'v_writelane_b32 v2, s{sST+i}, {sl}')
        E(f'v_lshlrev_b32 v3, 2, v0\n s_mov_b64 exec, 0xffff\n buffer_atomic_umax v2, v3, {sr(sDBG)}, 0 offen sc1\n s_mov_b64 exec, -1')
        LBL(sk)
        return
    if OPT.get('hwid'): E(f's_getreg_b32 s{sST+11}, hwreg(HW_REG_HW_ID)\n s_getreg_b32 s{sST+10}, hwreg(HW_REG_XCC_ID)')
    E('v_mov_b32 v2, 0')
    for i in range(nmax): E(f'v_writelane_b32 v2, s{sST+i}, {i}')
    E(f's_mul_i32 s{sT}, s2, 12\n s_add_u32 s{sT}, s{sT}, s{sWave}\n s_lshl_b32 s{sT}, s{sT}, 6\n s_add_u32 s{sT}, s{sT}, {hex(WS_STAMP)}')
    E(f'v_lshlrev_b32 v3, 2, v0\n s_mov_b64 exec, 0xffff\n buffer_store_dword v2, v3, {sr(sWS)}, s{sT} offen\n s_mov_b64 exec, -1')

def lds_add(off,val,vz,vt):
    E(f'v_mov_b32 v{vt}, {val}\n s_mov_b64 exec, 1\n ds_add_u32 v{vz}, v{vt} offset:{off-L_ST}\n s_mov_b64 exec, -1')
def lds_spin(off,mask,val,vz,vt,sleep=1):
    a=uid('spin'); d=uid('spind')
    E(f's_mov_b32 s{sCnt}, {SPIN_LIMIT}')
    LBL(a)
    E(f'ds_read_b32 v{vt}, v{vz} offset:{off-L_ST}\n s_waitcnt lgkmcnt(0)\n v_readfirstlane_b32 s{sT}, v{vt}')
    if mask is not None: E(f's_and_b32 s{sT}, s{sT}, {hex(mask)}')
    E(f's_cmp_eq_u32 s{sT}, {hex(val)}\n s_cbranch_scc1 {d}\n s_sub_u32 s{sCnt}, s{sCnt}, 1\n s_cbranch_scc1 {d}')
    if sleep: E(f's_sleep {sleep}')
    E(f's_branch {a}')
    LBL(d)
def tag_set(off,sidx,vt):
    if sidx is None: E(f'v_mov_b32 v{vt}, {off}')
    else: E(f's_lshl_b32 s{sT}, s{sidx}, 2\n s_add_u32 s{sT}, s{sT}, {off}\n v_mov_b32 v{vt}, s{sT}')
    E(f'v_mov_b32 v{vt+1}, 1\n s_mov_b64 exec, 1\n ds_write_b32 v{vt}, v{vt+1}\n s_mov_b64 exec, -1')
def tag_wait(off,n,vt,sleep=0,once=None):
    a=uid('tw'); d=uid('twd')
    E(f'v_and_b32 v{vt}, {n-1}, v0\n v_lshlrev_b32 v{vt}, 2, v{vt}\n v_add_u32 v{vt}, {off}, v{vt}')
    if once:
        E(f'ds_read_b32 v{vt+1}, v{vt}\n s_waitcnt lgkmcnt(0)\n v_cmp_ne_u32 vcc, 1, v{vt+1}\n s_cbranch_vccz {once}')
        return
    E(f's_mov_b32 s{sCnt}, {SPIN_LIMIT}')
    LBL(a)
    E(f'ds_read_b32 v{vt+1}, v{vt}\n s_waitcnt lgkmcnt(0)\n v_cmp_ne_u32 vcc, 1, v{vt+1}\n s_cbranch_vccz {d}\n s_sub_u32 s{sCnt}, s{sCnt}, 1\n s_cbranch_scc1 {d}')
    if sleep: E(f's_sleep {sleep}')
    E(f's_branch {a}')
    LBL(d)
def tag_get(vt):
    E(f'ds_read_b32 v{vt}, v{vZ} offset:{T_TAG-L_ST}\n s_waitcnt lgkmcnt(0)\n v_readfirstlane_b32 s{sTag}, v{vt}')
def poll(vaddr,n,vt,sleep=1):
    a=uid('poll'); d=uid('polld')
    E(f's_mov_b32 s{sCnt}, {SPIN_LIMIT}')
    LBL(a)
    op={1:'buffer_load_dword',2:'buffer_load_dwordx2',3:'buffer_load_dwordx3',4:'buffer_load_dwordx4'}[n]
    E(f'{op} {vr(vt,n) if n>1 else "v%d"%vt}, v{vaddr}, {sr(sWS)}, 0 offen sc1\n s_waitcnt vmcnt(0)')
    for i in range(n): E(f'v_xor_b32 v{vt+i}, s{sTag}, v{vt+i}')
    if n==2: E(f'v_or_b32 v{vt}, v{vt}, v{vt+1}')
    if n>=3: E(f'v_or3_b32 v{vt}, v{vt}, v{vt+1}, v{vt+2}')
    if n==4: E(f'v_or_b32 v{vt}, v{vt}, v{vt+3}')
    E(f'v_cmp_ne_u32 vcc, 0, v{vt}\n s_cbranch_vccz {d}\n s_sub_u32 s{sCnt}, s{sCnt}, 1\n s_cbranch_scc1 {d}')
    if sleep: E(f's_sleep {sleep}')
    E(f's_branch {a}')
    LBL(d)
def flag_store(soff_reg,vt):
    E(f'v_mov_b32 v{vt}, s{sTag}\n s_mov_b64 exec, 1\n buffer_store_dword v{vt}, off, {sr(sWS)}, s{soff_reg} sc1\n s_mov_b64 exec, -1')
def mfma(d,a,b,c=None):
    cc = vr(d,16) if c is None else (c if isinstance(c,str) else vr(c,16))
    E(f'v_mfma_f32_32x32x16_bf16 {vr(d,16)}, {vr(a,4)}, {vr(b,4)}, {cc}')
def smf(o,v,s,idx): E(f'v_smfmac_f32_32x32x32_bf16 {vr(o,16)}, {vr(v,4)}, {vr(s,8)}, v{idx}')
def vexp(r): E(f'v_exp_f32 v{r}, v{r}')
def cvt(d,a,b): E(f'v_cvt_pk_bf16_f32 v{d}, v{a}, v{b}')
def set_vpad(regs,vt):
    E(f'v_and_b32 v{vt}, 27, v0\n v_cmp_eq_u32 vcc, 16, v{vt}\n v_mov_b32 v{vt}, 0x3f803f80\n s_nop 0\n v_cndmask_b32 v{regs[0]}, 0, v{vt}, vcc')
    for r in regs[1:]: E(f'v_mov_b32 v{r}, v{regs[0]}')
def xaddr(base,t_imm,vt):
    E(f'v_and_b32 v{vt}, 15, v0\n v_lshrrev_b32 v{base}, 5, v0\n v_xor_b32 v{base}, v{base}, v{vt}\n v_lshlrev_b32 v{base}, 4, v{base}')
    E(f'v_and_b32 v{vt}, 31, v0\n v_lshl_add_u32 v{base}, v{vt}, 10, v{base}\n v_add_u32 v{base}, {t_imm}, v{base}')
    for b in range(1,8): E(f'v_xor_b32 v{base+b}, {b<<5}, v{base}')
def traddr128(dst,vt,vt2,rowsel,colbase):
    E(f'v_lshrrev_b32 v{vt}, 5, v0\n v_lshlrev_b32 v{vt}, {rowsel}, v{vt}\n v_bfe_u32 v{vt2}, v0, 2, 2\n v_add_u32 v{vt}, v{vt}, v{vt2}\n v_lshlrev_b32 v{dst}, 7, v{vt}')
    E(f'v_bfe_u32 v{vt}, v0, 4, 1\n v_lshlrev_b32 v{vt}, 1, v{vt}\n v_bfe_u32 v{vt2}, v0, 1, 1\n v_add3_u32 v{vt}, v{vt}, v{vt2}, {colbase}')
    E(f'v_bfe_u32 v{vt2}, v0, 3, 1\n v_lshlrev_b32 v{vt2}, 2, v{vt2}\n v_xor_b32 v{vt}, v{vt}, v{vt2}\n v_lshl_add_u32 v{dst}, v{vt}, 4, v{dst}')
    E(f'v_and_b32 v{vt}, 1, v0\n v_lshl_add_u32 v{dst}, v{vt}, 3, v{dst}')
def dma128_voff(dst,vt,vt2,rowstride_sreg_or_shift,colbytes):
    E(f'v_lshrrev_b32 v{vt}, 3, v0')
    if isinstance(rowstride_sreg_or_shift,int): E(f'v_lshlrev_b32 v{dst}, {rowstride_sreg_or_shift}, v{vt}')
    else: E(f'v_mul_u32_u24 v{dst}, {rowstride_sreg_or_shift}, v{vt}')
    E(f'v_bfe_u32 v{vt}, v0, 4, 1\n v_lshlrev_b32 v{vt}, 2, v{vt}\n v_and_b32 v{vt2}, 7, v0\n v_xor_b32 v{vt}, v{vt}, v{vt2}\n v_lshl_add_u32 v{dst}, v{vt}, 4, v{dst}\n v_add_u32 v{dst}, {colbytes}, v{dst}')
def finalize(O,dst,vt,lbl_fb,lbl_back,vg):
    E(f'v_add_f32 v{vt}, |v{O}|, |v{O+1}|')
    for r in range(2,8): E(f'v_add_f32 v{vt}, v{vt}, |v{O+r}|')
    E(f'v_mov_b32 v{vt+1}, 0x7f800000\n v_cmp_nlt_f32 {sr(sT,2)}, v{vt}, v{vt+1}')
    E(f'v_cmp_nle_f32 vcc, {hex(L_LO)}, v{O+8}\n s_or_b64 {sr(sT,2)}, {sr(sT,2)}, vcc')
    E(f'v_cmp_nge_f32 vcc, {hex(L_HI)}, v{O+8}\n s_or_b64 {sr(sT,2)}, {sr(sT,2)}, vcc\n s_cbranch_scc1 {lbl_fb}')
    LBL(lbl_back)
    E(f'v_rcp_f32 v{vt}, v{O+8}\n s_nop 0\n v_mul_f32 v{vt}, v{vt}, v{vg}')
    for r in range(0,8,2): E(f'v_pk_mul_f32 {vr(O+r,2)}, {vr(O+r,2)}, {vr(vt,2)} op_sel_hi:[1,0]')
    for r in range(4): cvt(dst+r,O+2*r,O+2*r+1)
    E(f'v_min_u32 v{dst}, -2, v{dst}')

TAIL=[]
RETRY=[]
def fallback(lbl,back,Q,O,S,K,V,IDX,vM,vK,vV,ntile,soff_setup,first_mask=None,last_mask=None,first_cond=None):
    global L
    save=L; L=[]
    LBL(lbl)
    soff_setup()
    E(f'v_mov_b32 v{vM}, 0xff800000')
    for p in (0,1):
        lp=uid('fbl')
        if p==1:
            E(f'v_mov_b32 v{S}, v{vM}\n s_nop 1\n v_permlane32_swap_b32 v{S}, v{vM}\n s_nop 1\n v_max_f32 v{vM}, v{vM}, v{S}')
            for r in range(16): E(f'v_mov_b32 v{O+r}, 0')
        E(f's_mov_b32 s{sT+5}, s{sT+2}\n s_mov_b32 s{sT+6}, 0')
        LBL(lp)
        E(f'buffer_load_dwordx4 {vr(K,4)}, v{vK}, {sr(sWS)}, s{sT+5} offen sc1')
        if p==1:
            E(f's_mov_b64 exec, {sr(sVM,2)}\n buffer_load_dwordx4 {vr(V,4)}, v{vV}, {sr(sWS)}, s{sT+5} offen offset:1024 sc1\n buffer_load_dwordx4 {vr(V+4,4)}, v{vV}, {sr(sWS)}, s{sT+5} offen offset:1536 sc1\n s_mov_b64 exec, -1')
        E('s_waitcnt vmcnt(0)')
        if first_mask is None:
            mfma(S,K,Q,'0')
        else:
            a=uid('fbm'); b=uid('fbm'); j=uid('fbm')
            E(f's_add_u32 s{sT+7}, s{sT+6}, 1\n s_cmp_eq_u32 s{sT+7}, s{sT+3}\n s_cbranch_scc1 {a}')
            E(f's_cmp_lt_u32 s{sT+6}, s{sT+4}\n s_cbranch_scc1 {b}')
            mfma(S,K,Q,'0'); E(f's_branch {j}')
            LBL(a); mfma(S,K,Q,last_mask); E(f's_branch {j}')
            LBL(b); mfma(S,K,Q,first_mask)
            LBL(j)
        E('s_nop 15')
        if p==0:
            for r in range(0,16,2): E(f'v_max3_f32 v{vM}, v{S+r}, v{S+r+1}, v{vM}')
        else:
            for r in range(16): E(f'v_sub_f32 v{S+r}, v{S+r}, v{vM}')
            for r in range(16): vexp(S+r)
            E('s_nop 1'); smf(O,V,S,IDX); smf(O,V+4,S+8,IDX)
        E(f's_add_u32 s{sT+5}, s{sT+5}, 2048\n s_add_u32 s{sT+6}, s{sT+6}, 1\n s_cmp_lt_u32 s{sT+6}, s{sT+3}\n s_cbranch_scc1 {lp}')
    E(f's_nop 15\n s_branch {back}')
    TAIL.extend(L); L=save

E('s_cmp_ge_u32 s2, 256\n s_cbranch_scc1 L_END')
if ECHO=='karg': E('s_memrealtime s[100:101]\n s_waitcnt lgkmcnt(0)\n s_mov_b32 s97, s100')
E('s_load_dwordx16 s[4:19], s[0:1], 0\n s_load_dwordx8 s[20:27], s[0:1], 64')
E(f'v_lshrrev_b32 v1, 6, v0\n v_and_b32 v0, 63, v0\n v_readfirstlane_b32 s{sWave}, v1')
if MAP=='b':
    E(f's_and_b32 s{sT}, s2, 7\n s_lshr_b32 s{sT+1}, s2, 3\n s_and_b32 s{sT+2}, s{sT+1}, 3\n s_lshl_b32 s{sPb}, s{sT}, 2\n s_or_b32 s{sPb}, s{sPb}, s{sT+2}\n s_lshr_b32 s{sHg}, s{sT+1}, 2')
else:
    E(f's_bfe_u32 s{sPb}, s2, 0x20001\n s_lshl_b32 s{sPb}, s{sPb}, 3\n s_bfe_u32 s{sT}, s2, 0x30003\n s_or_b32 s{sPb}, s{sPb}, s{sT}\n s_and_b32 s{sHg}, s2, 1\n s_lshl_b32 s{sHg}, s{sHg}, 2\n s_lshr_b32 s{sT}, s2, 6\n s_or_b32 s{sHg}, s{sHg}, s{sT}')
E(f's_mov_b32 s{sVM}, 0xffff\n s_mov_b32 s{sVM+1}, 0xffff')
if DIAG:
    for i in range(12): E(f's_mov_b32 s{sST+i}, 0')
C('clear the LDS counters and flags while the kernel arguments arrive')
E(f'v_lshlrev_b32 v2, 3, v0\n v_add_u32 v2, {L_C}, v2\n v_mov_b32 v4, 0\n v_mov_b32 v5, 0\n ds_write_b64 v2, v[4:5]')
E('s_waitcnt lgkmcnt(0)\n s_barrier')
stamp('A',0,'start'); stamp('B',0,'start'); echo_mark('start')
if ECHO=='karg': E('s_sub_u32 s99, s98, s97\n s_mul_i32 s99, s99, 10\n s_add_u32 s99, s99, s98')
srd(sX,4,2048*1024); srd(sWS,26,0x10000000)
E(f's_cmp_lt_u32 s{sWave}, 8\n s_cbranch_scc1 L_A')


KVPOS=[L_ST,32768,49152,16384,0,65536,81920,98304]
L_PART=L_ST+24576
L_QA=0; L_QB=8192; L_WO=0; L_FX=65536
sOut=66; sOb=67; sPass=64
sRot=sT+11
def mktag(): E(f's_mul_i32 s{sTag}, s{sTag}, 0x9E3779B1\n s_add_u32 s{sTag}, s{sTag}, 0x7F4A7C15')
def mkrot():
    if MAP=='b': E(f's_and_b32 s{sRot}, s{sPb}, 3\n s_lshl_b32 s{sRot}, s{sRot}, 1\n s_add_u32 s{sRot}, s{sRot}, s{sHg}')
    else: E(f's_lshl_b32 s{sRot}, s{sHg}, 1\n s_add_u32 s{sRot}, s{sRot}, s{sPb}')
def touch(srd_,soff,n,vaddr,vd,sc1=False):
    for i in range(n):
        if i: E(f's_add_u32 s{soff}, s{soff}, 8192')
        E(f'buffer_load_dword v{vd}, v{vaddr}, {sr(srd_)}, s{soff} offen'+(' sc1' if sc1 else ''))
E(f's_setprio {2 if OPT.get("bp2") else 3}\n s_sub_u32 s{sB}, s{sWave}, 8')
if OPT.get('cpf','1')=='1':
    C('---- pull this WG\'s share of the kernel\'s own instructions into L2 (later instruction fetches then miss only the I-cache)')
    E(f's_cmp_eq_u32 s{sB}, 3\n s_cbranch_scc0 L_B_NCP\n s_getpc_b64 s[{sT}:{sT+1}]')
    LBL('L_B_PC')
    E(f's_lshr_b32 s{sT+2}, s2, 3\n s_mul_i32 s{sT+2}, s{sT+2}, (L_CODE_END-L_B_PC+4095)/4096*128\n s_add_u32 s{sT}, s{sT}, s{sT+2}\n s_addc_u32 s{sT+1}, s{sT+1}, 0')
    E(f'v_lshlrev_b32 v2, 7, v0\n v_mov_b32 v3, s{sT+1}\n v_add_co_u32 v2, vcc, s{sT}, v2\n s_nop 1\n v_addc_co_u32 v3, vcc, 0, v3, vcc\n s_lshl_b64 exec, 1, (L_CODE_END-L_B_PC+4095)/4096\n s_sub_u32 exec_lo, exec_lo, 1\n global_load_dword v19, v[2:3], off\n s_mov_b64 exec, -1')
    LBL('L_B_NCP')
C('---- x tile -> LDS as 8 blocks of [64 rows][64 k], block order rotated per WG ; wave b brings blocks b and b+4')
E('v_lshrrev_b32 v17, 3, v0\n v_lshlrev_b32 v17, 10, v17\n v_lshrrev_b32 v2, 4, v0\n v_and_b32 v3, 7, v0\n v_xor_b32 v2, v2, v3\n v_lshl_add_u32 v17, v2, 4, v17\n v_xor_b32 v18, 64, v17')
mkrot()
E(f's_lshl_b32 s{sT+7}, s{sPb}, 16\n s_lshl_b32 s{sT+6}, s{sB}, 13')
VQ=[]
def vwait(tag,extra=''):
    if tag not in VQ:
        if extra: E('s_waitcnt'+extra)
        return
    i=max(n for n,t in enumerate(VQ) if t==tag)
    n=len(VQ)-1-i; del VQ[:i+1]
    E(f's_waitcnt vmcnt({n})'+extra)
XD=OPT.get('xd','1')=='1'
def xblock(expr_add,ldsoff,rows):
    E(f's_add_u32 s{sT+1}, s{sRot}, {expr_add}\n s_and_b32 s{sT+1}, s{sT+1}, 7\n s_lshl_b32 s{sT+1}, s{sT+1}, 7\n s_add_u32 s{sT+1}, s{sT+1}, s{sT+7}')
if XD:
    E(f's_and_b32 s{sT+1}, s{sRot}, 7\n s_lshl_b32 s{sT+1}, s{sT+1}, 7\n s_add_u32 s{sT+1}, s{sT+1}, s{sT+7}\n s_lshl_b32 s{sT+2}, s{sB}, 14\n s_add_u32 s{sT+1}, s{sT+1}, s{sT+2}\n s_lshl_b32 s{sT+2}, s{sB}, 11\n s_add_u32 m0, s{sT+2}, 65536\n s_nop 0')
    E(f'buffer_load_dwordx4 v17, {sr(sX)}, s{sT+1} offen lds\n s_add_u32 m0, s{sT+2}, {65536+1024}\n s_add_u32 s{sT+1}, s{sT+1}, 8192\n buffer_load_dwordx4 v18, {sr(sX)}, s{sT+1} offen lds')
def xrest():
  for hb in range(2):
    sk=uid('xs')
    if XD and hb==0: E(f's_cmp_eq_u32 s{sB}, 0\n s_cbranch_scc1 {sk}')
    E(f's_add_u32 s{sT+1}, s{sRot}, s{sB}\n s_add_u32 s{sT+1}, s{sT+1}, {4*hb}\n s_and_b32 s{sT+1}, s{sT+1}, 7\n s_lshl_b32 s{sT+1}, s{sT+1}, 7\n s_add_u32 s{sT+1}, s{sT+1}, s{sT+7}')
    for n in range(8):
        E(f's_add_u32 m0, s{sT+6}, {65536+32768*hb+1024*n}')
        E(f's_add_u32 s{sT+1}, s{sT+1}, 8192' if n else 's_nop 0')
        E(f'buffer_load_dwordx4 v{17+(n&1)}, {sr(sX)}, s{sT+1} offen lds')
    if XD and hb==0: LBL(sk)
if not XD: xrest()
MU=128; MD=144; BQ=16; BK=24; BV=36; BS=64; BO=96; BIDX=60
C('---- constants for the later phases (idle time)')
E(f'v_mov_b32 v{vZ}, {L_ST}\n v_lshlrev_b32 v160, 4, v0\n v_lshlrev_b32 v163, 7, v0')
E('v_lshrrev_b32 v161, 5, v0\n v_lshlrev_b32 v161, 8, v161\n v_and_b32 v2, 15, v0\n v_lshl_add_u32 v161, v2, 4, v161')
srd(sWOA,12,512*1024); srd(sWOB,18,512*1024)
E(f'v_and_b32 v4, 31, v0\n v_lshrrev_b32 v5, 5, v0\n v_lshlrev_b32 v5, 2, v5\n v_sub_u32 v4, v4, v5\n s_mov_b32 s{sT}, {hex(NEGBIG)}')
for r in range(16):
    E(f'v_subrev_u32 v5, {8*(r//4)+r%4}, v4\n v_ashrrev_i32 v5, 31, v5\n v_and_b32 v{MD+r}, s{sT}, v5\n v_xor_b32 v{MU+r}, s{sT}, v{MD+r}')
set_vpad(list(range(BV,BV+24)),2); E(f'v_mov_b32 v{BIDX}, 0xdddddddd')
for r in range(32): E(f'v_mov_b32 v{BO+r}, 0')
E(f'v_min_u32 v2, 4, v0\n s_sub_i32 s{sT}, s{sPb}, 4\n v_add_u32 v2, s{sT}, v2\n v_max_i32 v2, 0, v2\n s_lshl_b32 s{sT}, s{sHg}, 5\n v_add_u32 v2, s{sT}, v2\n v_lshlrev_b32 v2, 7, v2\n v_add_u32 v162, {hex(WS_FKVB+8)}, v2')
E(f'v_and_b32 v2, 7, v0\n v_lshlrev_b32 v2, 5, v2\n v_add_u32 v2, s{sPb}, v2\n v_lshlrev_b32 v2, 7, v2\n v_add_u32 v166, {hex(WS_FKVB+16)}, v2')
sKh=sT+9; sTt=sT+10
E(f's_lshr_b32 s{sKh}, s{sB}, 1\n s_and_b32 s{sTt}, s{sB}, 1\n s_lshl_b32 s{sT+2}, s{sHg}, 7')
dma128_voff(10,2,3,10,f's{sT+2}')
E(f's_lshl_b32 s{sT+1}, s{sKh}, 2'); traddr128(11,2,3,2,f's{sT+1}')
E(f's_lshl_b32 s{sT+1}, s{sKh}, 15\n s_add_u32 s{sT+1}, s{sT+1}, {L_WO}\n v_add_u32 v11, s{sT+1}, v11\n v_xor_b32 v9, 64, v11')
E(f's_lshl_b32 s{sOut}, s{sPb}, 1\n s_add_u32 s{sOut}, s{sOut}, s{sTt}\n s_lshl_b32 s{sOut}, s{sOut}, 15\n s_lshl_b32 s{sT}, s{sKh}, 14\n s_add_u32 s{sOb}, s{sOut}, s{sT}\n s_add_u32 s{sOb}, s{sOb}, {hex(WS_OB)}')
E(f's_lshl_b32 s{sT}, s{sHg}, 7\n s_add_u32 s{sOut}, s{sOut}, s{sT}\n s_lshl_b32 s{sT}, s{sKh}, 6\n s_add_u32 s{sOut}, s{sOut}, s{sT}')
E('v_and_b32 v8, 31, v0\n v_lshlrev_b32 v167, 10, v8\n v_lshrrev_b32 v3, 5, v0\n v_lshl_add_u32 v167, v3, 4, v167\n v_lshlrev_b32 v8, 2, v8')
srd(sOUT,22,2048*1024)
E(f's_lshl_b32 s{sT}, s{sB}, 12\n s_add_u32 s{sT}, s{sT}, {L_FX}\n v_add_u32 v164, s{sT}, v160\n v_xor_b32 v165, 0x2000, v164\n s_mov_b32 s{sPass}, 0')
if XD:
    E('s_waitcnt vmcnt(0)'); tag_set(T_X0,sB,2); xrest()
E('s_waitcnt vmcnt(8)')
tag_set(T_X,sB,2)
stamp('B',1,'x landed'); echo_mark('xl')
E('s_waitcnt vmcnt(0)')
tag_set(T_X+16,sB,2)
tag_wait(T_G,4,2,sleep=4)
tag_get(2)
stamp('B',5,'BQ'); echo_mark('bq')
E(f's_setprio {OPT.get("bpr","3")}')
def kvdma(c):
    E(f's_lshr_b32 s{sT+1}, s2, 3\n s_add_u32 s{sT+1}, s{sT+1}, {c}\n s_and_b32 s{sT+1}, s{sT+1}, 3\n s_lshl_b32 s{sT+1}, s{sT+1}, 2\n s_add_u32 s{sT+1}, s{sT+1}, s{sB}\n s_lshl_b32 s{sT+1}, s{sT+1}, 12')
    E(f's_lshl_b32 s{sT+2}, s{sB}, 12\n s_add_u32 m0, s{sT+2}, {KVPOS[c]}\n s_add_u32 s{sT+1}, s{sT+1}, {hex(WS_KVA+(65536 if c>=4 else 0))}')
    for i in range(4): E(f'buffer_load_dwordx4 v160, {sr(sWS)}, s{sT+1} offen offset:{1024*i} sc1 lds')
    VQ.extend([f'kv{c}']*4)
E(f's_lshl_b32 s{sT}, s{sB}, 11\n s_add_u32 s{sT}, s{sT}, {L_QB}\n v_add_u32 v3, s{sT}, v160')
for t in range(2): E(f'ds_read_b128 {vr(BQ+4*t,4)}, v3 offset:{1024*t}')
E(f's_lshl_b32 s{sT}, s{sPb}, 8\n s_add_u32 s{sT}, s{sT}, {hex(WS_G)}\n buffer_load_dword v61, v8, {sr(sWS)}, s{sT} offen sc1\n buffer_load_dword v62, v8, {sr(sWS)}, s{sT} offen offset:128 sc1\n s_waitcnt lgkmcnt(0)')
lds_add(C_QR,1,vZ,2)
C('---- second half of the shared K/V ; o slots marked as not yet written')
for c in (5,6,7): kvdma(c)
E(f's_lshl_b32 s{sT+10}, s{sPb}, 6\n s_lshl_b32 s{sT+1}, s{sHg}, 2\n s_add_u32 s{sT+10}, s{sT+10}, s{sT+1}\n s_add_u32 s{sT+10}, s{sT+10}, s{sB}\n s_lshl_b32 s{sT+10}, s{sT+10}, 10')
E('v_mov_b32 v12, -1\n v_mov_b32 v13, -1\n v_mov_b32 v14, -1\n v_mov_b32 v15, -1')
for base in (WS_OA,WS_OA+32768,WS_OB,WS_OB+32768):
    E(f's_add_u32 s{sT+1}, s{sT+10}, {hex(base)}\n buffer_store_dwordx4 v[12:15], v160, {sr(sWS)}, s{sT+1} offen sc1')
E(f's_lshl_b32 s{sT+3}, s{sHg}, 5\n s_add_u32 s{sT+3}, s{sT+3}, s{sPb}\n s_lshl_b32 s{sT+3}, s{sT+3}, 7\n s_lshl_b32 s{sT+1}, s{sB}, 2\n s_add_u32 s{sT+3}, s{sT+3}, s{sT+1}\n s_add_u32 s{sT+3}, s{sT+3}, {hex(WS_FKVB+16)}')
lds_spin(C_QR,None,12,vZ,2,sleep=2)
kvdma(4)
E(f's_getreg_b32 s{sXcc}, hwreg(HW_REG_XCC_ID, 0, 4)\n s_add_u32 s{sT}, s{sTag}, s{sXcc}\n v_mov_b32 v3, s{sT}\n s_waitcnt vmcnt(0)')
E(f's_mov_b64 exec, 1\n buffer_store_dword v3, off, {sr(sWS)}, s{sT+3} sc1\n s_mov_b64 exec, -1')
lds_add(C_K2,0x101,vZ,2)
stamp('B',2,'K/V all in')
if OPT.get('nob'): stamp_flush(12); E('s_endpgm')
E('v_sub_f32 v61, 1.0, v61\n v_sub_f32 v62, 1.0, v62')
poll(162,2,4,sleep=3)
stamp('B',6,'kvB flags seen'); echo_mark('kvb')
def wotouch():
    if MAP=='b':
        E(f's_cmp_ge_u32 s{sB}, 2\n s_cbranch_scc0 L_B_NOT\n s_lshr_b32 s{sT+1}, s2, 3\n s_lshl_b32 s{sT+1}, s{sT+1}, 14\n s_and_b32 s{sT+2}, s{sB}, 1\n s_lshl_b32 s{sT+2}, s{sT+2}, 13\n s_add_u32 s{sT+1}, s{sT+1}, s{sT+2}')
        touch(sWOB,sT+1,1,163,3); touch(sWOA,sT+1,1,163,3)
    else:
        E(f's_cmp_eq_u32 s{sB}, 3\n s_cbranch_scc0 L_B_NOT\n s_lshr_b32 s{sT+1}, s2, 3\n s_lshl_b32 s{sT+1}, s{sT+1}, 14\n s_and_b32 s{sT+2}, s2, 1\n s_lshl_b32 s{sT+2}, s{sT+2}, 9\n s_add_u32 s{sT+1}, s{sT+1}, s{sT+2}')
        E('v_lshrrev_b32 v2, 2, v0\n v_lshlrev_b32 v2, 10, v2\n v_and_b32 v3, 3, v0\n v_lshl_add_u32 v2, v3, 7, v2')
        touch(sWOB,sT+1,1,2,3); touch(sWOA,sT+1,1,2,4)
    LBL('L_B_NOT')
C('---- window attention, head 4hg+b, two query tiles')
E(f's_lshl_b32 s{sT+8}, s{sHg}, 2\n s_add_u32 s{sT+8}, s{sT+8}, s{sB}\n s_lshl_b32 s{sT+8}, s{sT+8}, 6\n s_lshl_b32 s{sT+9}, s{sPb}, 1\n s_sub_i32 s{sT+9}, s{sT+9}, 8')
def btile(j): E(f's_add_i32 s{sT}, s{sT+9}, {j}\n s_max_i32 s{sT}, s{sT}, 0\n s_add_u32 s{sT}, s{sT}, s{sT+8}\n s_lshl_b32 s{sT}, s{sT}, 11\n s_add_u32 s{sT}, s{sT}, {hex(WS_KVB)}')
def bload(j):
    k=BK+4*(j%3); v=BV+8*(j%3)
    btile(j)
    E(f'buffer_load_dwordx4 {vr(k,4)}, v160, {sr(sWS)}, s{sT} offen sc1\n s_mov_b64 exec, {sr(sVM,2)}')
    E(f'buffer_load_dwordx4 {vr(v,4)}, v161, {sr(sWS)}, s{sT} offen offset:1024 sc1\n buffer_load_dwordx4 {vr(v+4,4)}, v161, {sr(sWS)}, s{sT} offen offset:1536 sc1\n s_mov_b64 exec, -1')
bload(0); bload(1)
if OPT.get('bat'): E(f's_setprio {OPT.get("bat")}')
for j in (2,6):
    E(f's_add_i32 s{sT}, s{sT+9}, {j}\n s_max_i32 s{sT}, s{sT}, 0\n s_add_i32 s{sT+1}, s{sT+9}, 6\n s_min_i32 s{sT}, s{sT}, s{sT+1}\n s_cmp_lt_i32 s{sT}, 0')
    sk=uid('tk'); E(f's_cbranch_scc1 {sk}\n s_add_u32 s{sT}, s{sT}, s{sT+8}\n s_lshl_b32 s{sT}, s{sT}, 11\n s_add_u32 s{sT}, s{sT}, {hex(WS_KVB)}')
    E(f'buffer_load_dword v3, v163, {sr(sWS)}, s{sT} offen sc1'); LBL(sk)
E('s_waitcnt lgkmcnt(0)')
for j in range(10):
    k=BK+4*(j%3); v=BV+8*(j%3)
    if j==3: wotouch()
    if j==int(OPT.get('bup','99')): E('s_setprio 3')
    if j==7: E(f'buffer_load_dwordx4 v[12:15], v166, {sr(sWS)}, 0 offen sc1')
    if j+2<10: bload(j+2)
    E(f's_waitcnt vmcnt({3*min(2,9-j)})')
    sk=uid('bskip')
    if j<8: E(f's_cmp_lt_i32 s{sT+9}, {-j}\n s_cbranch_scc1 {sk}')
    qs=[q for q in (0,1) if 0<=j-q<=8]
    for q in qs: mfma(BS+16*q,k,BQ+4*q,{0:MU,8:MD}.get(j-q,'0'))
    E('s_nop 10' if len(qs)==2 else 's_nop 11')
    for q in qs:
        S=BS+16*q; O=BO+16*q
        for r in range(10): vexp(S+r)
        smf(O,v,S,BIDX)
        for r in range(10,16): vexp(S+r)
        E('s_nop 1'); smf(O,v+4,S+8,BIDX)
    if j<8: LBL(sk)
sLoc=sT+11
E(f's_add_u32 s{sT+10}, s{sT+10}, {hex(WS_OB)}\n s_mov_b32 s{sLoc}, 0')
C('the eight WGs of this position block: marks in place ?  all on this die ?')
E(f's_mov_b32 s{sCnt}, {SPIN_LIMIT}\n s_branch L_B_PP1')
LBL('L_B_PP')
E(f'buffer_load_dwordx4 v[12:15], v166, {sr(sWS)}, 0 offen sc1\n s_waitcnt vmcnt(0)')
LBL('L_B_PP1')
for i in range(4): E(f'v_subrev_u32 v{12+i}, s{sTag}, v{12+i}')
E(f'v_or3_b32 v2, v12, v13, v14\n v_or_b32 v2, v2, v15\n v_cmp_lt_u32 vcc, 15, v2\n s_cbranch_vccz L_B_PPD\n s_sub_u32 s{sCnt}, s{sCnt}, 1\n s_cbranch_scc1 L_B_PPD\n s_sleep 3\n s_branch L_B_PP')
LBL('L_B_PPD')
if OPT.get('loc','1')=='1':
    E(f'v_cmp_ne_u32 vcc, s{sXcc}, v12\n s_cbranch_vccnz L_B_NLOC\n s_mov_b32 s{sLoc}, 1')
    lds_add(C_LOC,1,vZ,2)
    if OPT.get('probe'):
        E('s_branch L_B_PRB')
        LBL('L_B_NLOC')
        for i in range(8): E('s_sleep 127')
        LBL('L_B_PRB')
    else: LBL('L_B_NLOC')

for q in range(2):
    fb=f'L_FB_B{q}'; bk=f'L_FB_B{q}_BACK'
    finalize(BO+16*q,4,2,fb,bk,61+q)
    E(f's_cmp_eq_u32 s{sLoc}, 0\n s_cbranch_scc1 L_B_FAR{q}\n buffer_store_dwordx4 v[4:7], v160, {sr(sWS)}, s{sT+10} offen\n s_branch L_B_ST{q}')
    LBL(f'L_B_FAR{q}')
    E(f'buffer_store_dwordx4 v[4:7], v160, {sr(sWS)}, s{sT+10} offen sc1')
    LBL(f'L_B_ST{q}')
    if q==0: E(f's_add_u32 s{sT+10}, s{sT+10}, 32768\n s_nop 0')
    def setup(q=q):
        E(f's_add_i32 s{sT+2}, s{sT+9}, {q}\n s_cmp_ge_i32 s{sT+2}, 0\n s_cselect_b32 s{sT+4}, 1, 0\n s_max_i32 s{sT+2}, s{sT+2}, 0')
        E(f's_add_i32 s{sT+3}, s{sT+9}, {q+9}\n s_sub_u32 s{sT+3}, s{sT+3}, s{sT+2}\n s_add_u32 s{sT+2}, s{sT+2}, s{sT+8}\n s_lshl_b32 s{sT+2}, s{sT+2}, 11\n s_add_u32 s{sT+2}, s{sT+2}, {hex(WS_KVB)}')
    fallback(fb,bk,BQ+4*q,BO+16*q,BS,BK,BV,BIDX,3,160,161,None,setup,MU,MD)
C('---- output projection: wave (t=b&1, kh=b>>1): both 32-column tiles over heads 16kh..16kh+15 ; slot 0 = tile kh')
PA_=48; PW=80; PO=96; PB_=16
stamp('B',7,'oB published'); echo_mark('ob')
E(f's_setprio {OPT.get("bpr2","3")}')
lds_spin(C_MID,None,8,vZ,2,sleep=6)
def wodma(sr_):
    E(f's_lshl_b32 s{sT}, s{sB}, 14\n s_lshl_b32 s{sT+1}, s{sB}, 17')
    for n in range(16): E(f's_add_u32 m0, s{sT}, {L_WO+1024*n}\n s_add_u32 s{sT+2}, s{sT+1}, {8192*n}\n buffer_load_dwordx4 v10, {sr(sr_)}, s{sT+2} offen lds')
def oloads(g0):
    for s in range(4*g0,16):
        if s%4==0: E(f's_add_u32 s{sT}, s{sOb}, {1024*s}')
        E(f'buffer_load_dwordx4 {vr(PO+4*s,4)}, v160, {sr(sWS)}, s{sT} offen offset:{1024*(s%4)} sc1')
wodma(sWOB)
oloads(0)
E('s_waitcnt vmcnt(16)')
lds_add(C_WO,1,vZ,2)
lds_spin(C_WO,None,4,vZ,2,sleep=2)
stamp('B',8,'woB landed')
E('s_branch L_B_GEMM1')
LBL('L_B_GEMM')
oloads(0)
LBL('L_B_GEMM1')
def wread(s):
    f=PW+8*(s&1)
    for u,va in ((0,11),(1,9)): E(f'ds_read_b64_tr_b16 {vr(f+4*u,2)}, v{va} offset:{s*2048}\n ds_read_b64_tr_b16 {vr(f+4*u+2,2)}, v{va} offset:{s*2048+1024}')
wread(0)
E(f's_mov_b32 s{sCnt}, {SPIN_LIMIT}')
for g in range(4):
    LBL(f'L_B_G{g}')
    E(f's_waitcnt vmcnt({12-4*g})')
    p=PO+16*g
    E(f'v_max_u32 v2, v{p}, v{p+4}\n v_max3_u32 v2, v{p+8}, v{p+12}, v2\n v_cmp_eq_u32 vcc, -1, v2\n s_cbranch_vccnz L_B_R{g}')
    LBL(f'L_B_K{g}')
    if DIAG and g==3:
        E(f's_cmp_eq_u32 s{sPass}, 0\n s_cbranch_scc1 L_B_NST'); stamp('B',10,'oA all seen'); LBL('L_B_NST')
    for s in range(4*g,4*g+4):
        if s<15: wread(s+1)
        E(f's_waitcnt lgkmcnt({4 if s<15 else 0})')
        f=PW+8*(s&1)
        if s==0:
            E(f's_cmp_eq_u32 s{sPass}, 0\n s_cbranch_scc0 L_B_M1')
            for u in range(2): mfma(PA_+16*u,f+4*u,PO+4*s,'0')
            E('s_branch L_B_M2'); LBL('L_B_M1')
            for u in range(2): mfma(PA_+16*u,f+4*u,PO+4*s)
            LBL('L_B_M2')
        else:
            for u in range(2): mfma(PA_+16*u,f+4*u,PO+4*s)
    save=L; L=[]
    LBL(f'L_B_R{g}')
    E(f's_sub_u32 s{sCnt}, s{sCnt}, 1\n s_cbranch_scc1 L_B_K{g}\n s_cmp_eq_u32 s{sPass}, 0\n s_cbranch_scc0 L_B_RR{g}\n s_sleep 16')
    LBL(f'L_B_RR{g}')
    E('s_waitcnt vmcnt(0)')
    oloads(g)
    E(f's_branch L_B_G{g}')
    RETRY.extend(L); L=save
E(f's_cmp_eq_u32 s{sPass}, 0\n s_cbranch_scc0 L_B_FIN')
lds_add(C_WD,1,vZ,2)
E(f's_add_u32 s{sOb}, s{sOb}, {hex((WS_OA-WS_OB)&0xffffffff)}\n s_mov_b32 s{sPass}, 1')
lds_spin(C_WD,None,4,vZ,2,sleep=2)
wodma(sWOA)
E('s_waitcnt vmcnt(0)')
stamp('B',9,'out-proj B done, woA in'); echo_mark('b9')
E('s_barrier'); echo_mark('aend'); E('s_branch L_B_GEMM')
LBL('L_B_FIN')
E('s_nop 9')
for q in range(4): E(f'ds_write_b128 v164, {vr(PA_+16+4*q,4)} offset:{1024*q}')
E('s_waitcnt lgkmcnt(0)\n s_barrier')
for q in range(4): E(f'ds_read_b128 {vr(PB_+4*q,4)}, v165 offset:{1024*q}')
for q in range(4):
    E(f's_waitcnt lgkmcnt({3-q})')
    for r in range(4): E(f'v_add_f32 v{PA_+4*q+r}, v{PA_+4*q+r}, v{PB_+4*q+r}')
for r in range(8): cvt(PA_+r,PA_+2*r,PA_+2*r+1)
E('s_nop 1')
for gq in range(2): E(f'v_permlane32_swap_b32 v{PA_+4*gq}, v{PA_+4*gq+2}\n v_permlane32_swap_b32 v{PA_+4*gq+1}, v{PA_+4*gq+3}')
for gq in range(2): E(f'buffer_store_dwordx4 {vr(PA_+4*gq,4)}, v167, {sr(sOUT)}, s{sOut} offen offset:{32*gq} '+OPT.get('ost','').replace('+',' '))
if DIAG: E('s_waitcnt vmcnt(0)')
stamp('B',11,'out stored'); echo_end()
stamp_flush(12)
E('s_endpgm')
L.extend(RETRY)

LBL('L_A')
AIDX=8; AKA=9; AVA=10; AQ0=12; AQ1=16; AK=20; AV=28; SA=44; SB=60; OA=76; OB=92; XA=108; WA=160; AF=112
L_PG=L_PART+4096
sStr=sT+10; sRing=sT+7
E(f'v_and_b32 v5, 15, v0\n v_lshlrev_b32 v6, 4, v0\n s_and_b32 s{sT+9}, s{sHg}, 3\n s_cmp_lt_u32 s{sWave}, 4\n s_cbranch_scc0 L_A_KV')
C('---- waves 0..3 : wave m streams 64 columns of matrix m (wq | B q | B k | B v) through its own 8 x 2KB ring')
E(f's_cmp_eq_u32 s{sWave}, 0\n s_cselect_b32 s{sWB}, s6, s16\n s_cselect_b32 s{sWB+1}, s7, s17\n s_mov_b32 s{sWB+2}, {512*3072}\n s_cselect_b32 s{sWB+2}, {512*1024}, s{sWB+2}\n s_mov_b32 s{sWB+3}, 0x20000')
E(f's_movk_i32 s{sStr}, 3072\n s_cselect_b32 s{sStr}, 0x400, s{sStr}\n s_max_u32 s{sT+1}, s{sWave}, 1\n s_sub_u32 s{sT+1}, s{sT+1}, 1\n s_lshl_b32 s{sT+1}, s{sT+1}, 10\n s_lshl_b32 s{sT+2}, s{sHg}, 7\n s_add_u32 s{sT+1}, s{sT+1}, s{sT+2}')
dma128_voff(162,2,3,f's{sStr}',f's{sT+1}')
mkrot()
E(f's_lshl_b32 s{sStr}, s{sStr}, 3\n s_lshl_b32 s{sRing}, s{sWave}, 14')
E(f's_sub_u32 s{sT+1}, s{sStr}, 1024\n v_add_u32 v163, s{sT+1}, v162\n s_lshl_b32 s{sStr}, s{sStr}, 1')
def wdma_parts(st):
    p0=f's_add_u32 m0, s{sRing}, {(st%8)*2048}\n'
    if st%4==0: p0+=f's_add_u32 s{sT+3}, s{sRot}, {st//4}\n s_and_b32 s{sT+3}, s{sT+3}, 7\n s_lshl_b32 s{sT+3}, s{sT+3}, 2\n s_mul_i32 s{sT+3}, s{sT+3}, s{sStr}'
    else: p0+=f's_add_u32 s{sT+3}, s{sT+3}, s{sStr}'
    VQ.extend([f'w{st}']*2)
    return [p0, f'buffer_load_dwordx4 v162, {sr(sWB)}, s{sT+3} offen lds', f'buffer_load_dwordx4 v163, {sr(sWB)}, s{sT+3} offen offset:1024 lds']
def wdma(st):
    for p in wdma_parts(st): E(p)
if OPT.get('p0','2')!='0': E(f's_cmp_eq_u32 s{sWave}, 0\n s_cbranch_scc0 L_A_NP0\n s_setprio {OPT.get("p0","3")}\nL_A_NP0:')
NW0=int(OPT.get('nw0','8'))
VQ.clear()
for st in range(NW0): wdma(st)
E('s_branch L_A_NOKV')
LBL('L_A_KV')
E(f's_setprio 3\n s_load_dword s{sTag}, s[26:27], {WS_EPOCH}')
C('---- kvA: this WG makes 16 positions (hg&3) of K (hg<4) or V, and their gate ; wave 4+u sums k in [128u,128u+128)')
E(f's_cmp_lt_u32 s{sHg}, 4\n s_cselect_b32 s{sWKV}, s8, s10\n s_cselect_b32 s{sWKV+1}, s9, s11\n s_mov_b32 s{sWKV+2}, 16384\n s_mov_b32 s{sWKV+3}, 0x20000\n s_and_b32 s{sT+3}, s{sWave}, 3')
E(f's_lshl_b32 s{sT+1}, s{sPb}, 16\n s_lshl_b32 s{sT+2}, s{sT+9}, 14\n s_add_u32 s{sT+1}, s{sT+1}, s{sT+2}\n s_lshl_b32 s{sT+2}, s{sT+3}, 8\n s_add_u32 s{sT+1}, s{sT+1}, s{sT+2}')
E('v_lshlrev_b32 v3, 10, v5\n v_and_b32 v4, 48, v0\n v_add_u32 v3, v3, v4')
for s_ in range(4): E(f'buffer_load_dwordx4 {vr(116+4*s_,4)}, v3, {sr(sX)}, s{sT+1} offen offset:{64*s_}')
if MAP=='c' and OPT.get('wkt','1')=='1':
    E(f's_cmp_eq_u32 s{sWave}, 4\n s_cbranch_scc0 L_A_NT2\n s_lshr_b32 s{sT+4}, s2, 3\n s_lshl_b32 s{sT+4}, s{sT+4}, 9\n v_lshlrev_b32 v2, 7, v0\n s_mov_b64 exec, 15\n buffer_load_dword v167, v2, {sr(sWKV)}, s{sT+4} offen\n s_mov_b64 exec, -1')
    LBL('L_A_NT2')
srd(sG,20,1024)
for s_ in range(4): E(f'buffer_load_dwordx4 {vr(132+4*s_,4)}, v4, {sr(sG)}, s{sT+2} offen offset:{64*s_}')
E(f's_lshl_b32 s{sT}, s{sT+3}, 12\n s_add_u32 m0, s{sT}, {L_ST}\n s_nop 0')
for i in range(4): E(f'buffer_load_dwordx4 v6, {sr(sWKV)}, s{sT} offen offset:{1024*i} lds')
LBL('L_A_NOKV')
C('---- address of this wave\'s o slot, constants')
sOA=sT+8
E(f's_and_b32 s{sOA}, s{sWave}, 1\n s_lshl_b32 s{sT+1}, s{sPb}, 1\n s_add_u32 s{sOA}, s{sOA}, s{sT+1}\n s_lshl_b32 s{sOA}, s{sOA}, 5')
E(f's_lshl_b32 s{sT+1}, s{sHg}, 2\n s_add_u32 s{sOA}, s{sOA}, s{sT+1}\n s_and_b32 s{sT+1}, s{sWave}, 2\n s_add_u32 s{sOA}, s{sOA}, s{sT+1}\n s_lshr_b32 s{sT+1}, s{sWave}, 2\n s_add_u32 s{sOA}, s{sOA}, s{sT+1}\n s_lshl_b32 s{sOA}, s{sOA}, 10\n s_add_u32 s{sOA}, s{sOA}, {hex(WS_OA)}')
E(f'v_mov_b32 v{vZ}, {L_ST}\n v_lshlrev_b32 v11, 2, v0')
traddr128(WA,2,3,3,'0'); E(f's_lshl_b32 s{sT+1}, s{sWave}, 14\n v_add_u32 v{WA}, s{sT+1}, v{WA}\n v_xor_b32 v{WA+1}, 64, v{WA}')
E(f'v_and_b32 v2, 31, v0\n v_bfe_u32 v3, v0, 1, 3\n v_lshrrev_b32 v7, 5, v0\n v_xor_b32 v3, v3, v7\n v_lshlrev_b32 v{XA}, 7, v2\n v_lshl_add_u32 v{XA}, v3, 4, v{XA}\n v_add_u32 v{XA}, 0x10000, v{XA}')
for s_ in range(1,4): E(f'v_xor_b32 v{XA+s_}, {s_<<5}, v{XA}')
for r in range(32): E(f'v_mov_b32 v{OA+r}, 0')
set_vpad(list(range(AV,AV+16)),2)
E(f'v_mov_b32 v{AIDX}, 0xdddddddd')
E(f's_lshr_b32 s{sT+1}, s{sWave}, 2\n s_lshl_b32 s{sT+1}, s{sT+1}, 11\n v_add_u32 v{AKA}, s{sT+1}, v6')
E(f'v_lshlrev_b32 v7, 8, v7\n v_lshl_add_u32 v7, v5, 4, v7\n v_add_u32 v{AVA}, s{sT+1}, v7')
E(f's_lshl_b32 s{sT+6}, s{sHg}, 5\n s_add_u32 s{sT+6}, s{sT+6}, s{sPb}\n s_lshl_b32 s{sT+6}, s{sT+6}, 7\n s_lshl_b32 s{sT+1}, s{sWave}, 2\n s_add_u32 s{sT+6}, s{sT+6}, s{sT+1}\n s_add_u32 s{sT+6}, s{sT+6}, {hex(WS_FKVB)}')
E(f's_cmp_lt_u32 s{sWave}, 4\n s_cbranch_scc1 L_A_GQ\n s_waitcnt lgkmcnt(0)')
mktag()
E(f'v_lshrrev_b32 v4, 4, v0\n v_lshlrev_b32 v4, 8, v4\n v_lshl_add_u32 v4, v5, 3, v4\n s_add_u32 s{sT}, s{sT}, {L_ST}\n v_add_u32 v4, s{sT}, v4')
E(f's_lshl_b32 s{sT+1}, s{sT+3}, 10\n s_add_u32 s{sT+1}, s{sT+1}, {L_PART}\n v_add_u32 v2, s{sT+1}, v6\n s_lshl_b32 s{sT+1}, s{sT+3}, 8\n s_add_u32 s{sT+1}, s{sT+1}, {L_PG}\n v_add_u32 v3, s{sT+1}, v11')
E('s_waitcnt vmcnt(0)')
for s_ in range(4): E(f'ds_read_b64_tr_b16 {vr(44+4*s_,2)}, v4 offset:{1024*s_}\n ds_read_b64_tr_b16 {vr(46+4*s_,2)}, v4 offset:{1024*s_+128}')
for s_ in range(4): E(f'v_mfma_f32_16x16x32_bf16 v[64:67], {vr(132+4*s_,4)}, {vr(116+4*s_,4)}, {"0" if s_==0 else "v[64:67]"}')
E(f's_cmp_lt_u32 s{sHg}, 4\n s_waitcnt lgkmcnt(0)\n s_cbranch_scc0 L_A_VJOB')
for s_ in range(4): E(f'v_mfma_f32_16x16x32_bf16 v[60:63], {vr(44+4*s_,4)}, {vr(116+4*s_,4)}, {"0" if s_==0 else "v[60:63]"}')
E('s_branch L_A_KVJ')
LBL('L_A_VJOB')
for s_ in range(4): E(f'v_mfma_f32_16x16x32_bf16 v[60:63], {vr(116+4*s_,4)}, {vr(44+4*s_,4)}, {"0" if s_==0 else "v[60:63]"}')
LBL('L_A_KVJ')
E('s_nop 0\n ds_write_b32 v3, v64\n s_nop 5\n ds_write_b128 v2, v[60:63]')
stamp('A',2,'kvA partial')
E('s_waitcnt lgkmcnt(0)')
tag_set(T_PT,sT+3,2)
E(f's_cmp_eq_u32 s{sWave}, 7\n s_cbranch_scc0 L_A_BS')
C('---- wave 7: reduce the four partial tiles, store, flag')
tag_wait(T_PT,4,2)
E(f'v_add_u32 v3, {L_PART}, v6\n v_add_u32 v4, {L_PG}, v11')
for i in range(4): E(f'ds_read_b128 {vr(116+4*i,4)}, v3 offset:{1024*i}')
for i in range(2): E(f'ds_read2st64_b32 {vr(148+2*i,2)}, v4 offset0:{2*i} offset1:{2*i+1}')
E(f's_lshl_b32 s{sT+3}, s{sPb}, 1\n s_lshr_b32 s{sT+4}, s{sT+9}, 1\n s_add_u32 s{sT+3}, s{sT+3}, s{sT+4}\n s_lshl_b32 s{sT+3}, s{sT+3}, 11\n s_add_u32 s{sT+3}, s{sT+3}, {hex(WS_KVA)}\n s_and_b32 s{sT+4}, s{sT+9}, 1')
E(f's_cmp_lt_u32 s{sHg}, 4\n s_cselect_b32 s{sT+5}, 9, 3\n s_cselect_b32 s{sT+7}, 3, 8\n s_cselect_b32 s{sT+1}, 8, 9\n s_cselect_b32 s{sT}, 0, 0x400')
E(f's_lshl_b32 s{sT+4}, s{sT+4}, s{sT+1}\n s_add_u32 s{sT+3}, s{sT+3}, s{sT+4}\n s_add_u32 s{sT+3}, s{sT+3}, s{sT}')
E(f'v_bfe_u32 v3, v0, 4, 1\n v_lshrrev_b32 v4, 5, v0\n v_lshlrev_b32 v5, 4, v5\n v_lshl_add_u32 v5, v3, s{sT+5}, v5\n v_lshl_add_u32 v5, v4, s{sT+7}, v5')
FPLS=int(OPT.get('fpl','2'))
E(f's_lshl_b32 s{sT+7}, s{sPb}, 3\n s_add_u32 s{sT+7}, s{sT+7}, s{sHg}\n s_and_b32 s{sT+1}, s{sT+7}, {(1<<FPLS)-1}\n s_lshr_b32 s{sT+7}, s{sT+7}, {FPLS}\n s_lshl_b32 s{sT+7}, s{sT+7}, 7\n s_lshl_b32 s{sT+1}, s{sT+1}, 2\n s_add_u32 s{sT+7}, s{sT+7}, s{sT+1}\n s_add_u32 s{sT+7}, s{sT+7}, {hex(WS_FKVA)}')
E('s_waitcnt lgkmcnt(2)')
for st_ in (8,4):
    for r in range(st_): E(f'v_add_f32 v{116+r}, v{116+r}, v{116+st_+r}')
cvt(116,116,117); cvt(117,118,119)
E(f'buffer_store_dwordx2 v[116:117], v5, {sr(sWS)}, s{sT+3} offen sc1')
E(f's_cmp_lt_u32 s{sHg}, 4\n s_waitcnt lgkmcnt(0)\n s_cbranch_scc0 L_A_SF')
for st_ in (2,1):
    for r in range(st_): E(f'v_add_f32 v{148+r}, v{148+r}, v{148+st_+r}')
E(f's_mov_b32 s{sT}, {hex(f2u(-math.log2(math.e)))}\n v_mul_f32 v148, s{sT}, v148\n v_exp_f32 v148, v148')
E(f's_lshl_b32 s{sT}, s{sPb}, 2\n s_add_u32 s{sT}, s{sT}, s{sT+9}\n v_add_f32 v148, 1.0, v148\n v_rcp_f32 v148, v148\n s_lshl_b32 s{sT}, s{sT}, 6\n s_add_u32 s{sT}, s{sT}, {hex(WS_G)}')
E(f's_mov_b64 exec, 0xffff\n buffer_store_dword v148, v11, {sr(sWS)}, s{sT} offen sc1\n s_mov_b64 exec, -1')
LBL('L_A_SF')
E('s_waitcnt vmcnt(0)')
flag_store(sT+7,2)
stamp('A',3,'kvA flag sent')
LBL('L_A_BS')
E(f's_cmp_eq_u32 s{sWave}, 6\n s_cbranch_scc0 L_A_B8')
C('---- wave 6: wait for every K/V piece, fetch this WG\'s share into L2, tell the projection waves')
E(f'v_lshlrev_b32 v16, 7, v0\n v_lshrrev_b32 v17, {FPLS-2}, v0\n v_lshlrev_b32 v17, 7, v17\n v_and_b32 v18, {(1<<(FPLS-2))-1}, v0\n v_lshl_add_u32 v17, v18, 4, v17\n v_add_u32 v17, {hex(WS_FKVA)}, v17')
E(f'v_mov_b32 v2, s{sTag}\n ds_write_b32 v{vZ}, v2 offset:{T_TAG-L_ST}')
tag_wait(T_PT,4,2)
tag_wait(T_PL,1,2,sleep=2)
C('lanes whose four flags are in drop out of the next look')
E(f's_mov_b32 s{sCnt}, {SPIN_LIMIT}')
LBL('L_A_PL')
E(f'buffer_load_dwordx4 v[12:15], v17, {sr(sWS)}, 0 offen sc1\n s_waitcnt vmcnt(0)')
for i in range(4): E(f'v_xor_b32 v{12+i}, s{sTag}, v{12+i}')
E(f'v_or3_b32 v12, v12, v13, v14\n v_or_b32 v12, v12, v15\n v_cmp_ne_u32 vcc, 0, v12\n s_cbranch_vccz L_A_PLD\n s_sub_u32 s{sCnt}, s{sCnt}, 1\n s_cbranch_scc1 L_A_PLD\n s_mov_b64 exec, vcc\n s_sleep {OPT.get("psl","16")}\n s_branch L_A_PL')
LBL('L_A_PLD')
E('s_mov_b64 exec, -1')
E(f's_lshr_b32 s{sT+5}, s2, 3\n s_lshl_b32 s{sT+5}, s{sT+5}, 12\n s_add_u32 s{sT+5}, s{sT+5}, {hex(WS_KVA)}')
E(f's_mov_b32 exec_hi, 0\n buffer_load_dword v117, v16, {sr(sWS)}, s{sT+5} offen sc1\n s_mov_b64 exec, -1')
tag_set(T_FL,None,2)
stamp('A',3,'kvA flag sent')
E(f's_lshr_b32 s{sT+5}, s2, 3\n s_and_b32 s{sT+5}, s{sT+5}, 3\n s_lshl_b32 s{sT+5}, s{sT+5}, 14\n s_add_u32 s{sT+5}, s{sT+5}, {hex(WS_KVA)}')
for q in range(4):
    E(f's_mov_b32 m0, {L_ST+4096*q}\n s_add_u32 s{sT+4}, s{sT+5}, {4096*q}')
    for i in range(4): E(f'buffer_load_dwordx4 v6, {sr(sWS)}, s{sT+4} offen offset:{1024*i} sc1 lds')
E('s_waitcnt vmcnt(0)')
tag_set(T_K0,None,2)
stamp('A',7,'G1')
E(f's_cmp_eq_u32 s2, 0\n s_cbranch_scc0 L_A_B8\n s_mov_b32 s{sT}, 0')
flag_store(sT,2)
E('s_branch L_A_B8')
LBL('L_A_GQ')
PAC=[44,60,128,144]; PFR=[12,112,92]
def areads_l(st):
    f=PFR[st%3]; so=(st%8)*2048; o=[]
    for i in range(2): o+= [f'ds_read_b64_tr_b16 {vr(f+4*i,2)}, v{WA+i} offset:{so}', f'ds_read_b64_tr_b16 {vr(f+4*i+2,2)}, v{WA+i} offset:{so+512}']
    for t in range(2): o.append(f'ds_read_b128 {vr(f+8+4*t,4)}, v{XA+st%4} offset:{(st//4)*8192+4096*t}')
    return o
def areads(st):
    for p in areads_l(st): E(p)
def kv_parts(p):
    VQ.extend(['kv']*2)
    return [f's_add_u32 m0, s{sRing}, {p*2048}\n s_add_u32 s{sT+4}, s{sT+5}, {p*2048}']+[f'buffer_load_dwordx4 v6, {sr(sWS)}, s{sT+4} offen offset:{1024*n} sc1 lds' for n in range(2)]
def kvpiece(p):
    for q in kv_parts(p): E(q)
for st in range(NW0,8): wdma(st)
E(f's_sub_u32 s{sT+4}, s{sWave}, 1\n s_cmp_eq_u32 s{sWave}, 1\n s_cselect_b32 s{sT+4}, 3, s{sT+4}\n s_lshr_b32 s{sT+5}, s2, 3\n s_add_u32 s{sT+5}, s{sT+5}, s{sT+4}\n s_and_b32 s{sT+5}, s{sT+5}, 3\n s_lshl_b32 s{sT+5}, s{sT+5}, 14\n s_add_u32 s{sT+5}, s{sT+5}, {hex(WS_KVA)}')
tag_wait(T_X0,4,2) if XD else tag_wait(T_X,1,2)
stamp('A',7,'G1')
vwait('w0'); areads(0); vwait('w1'); areads(1)
VQ0=list(VQ)
PLK=int(OPT.get('plk','15'))
E(f's_cmp_eq_u32 s{sWave}, 3\n s_cbranch_scc1 L_A_GV')
def gstep(var,st,kv):
    f=PFR[st%3]
    def mm(i,t):
        d=PAC[2*i+t]; c='0' if st==0 else None
        if var==0: mfma(d,f+4*i,f+8+4*t,c)
        else: mfma(d,f+8+4*t,f+4*i,c)
    vwait(f'w{st+2}',f' lgkmcnt({6 if st<31 else 0})')
    rd=areads_l(st+2) if st+2<32 else []
    dm=wdma_parts(st+8) if st+8<32 else (kv_parts(st%8) if kv else [])
    gaps=[rd[0:2]+dm[0:1], rd[2:4]+dm[1:2], rd[4:6], dm[2:3]]
    if st>=30: gaps=[[f'v_mov_b32 v{OB+8*(st-30)+2*q+r}, 0' for r in range(2)]+gaps[q] for q in range(4)]
    for q,(i,t) in enumerate(((0,0),(0,1),(1,0),(1,1)) if st<31 else ((1,0),(1,1),(0,0),(0,1))):
        mm(i,t)
        for p in gaps[q]: E(p)
for var in (0,1):
    if var: LBL('L_A_GV')
    VQ[:]=VQ0
    for st in range(24):
        if OPT.get('hold') and st==0:
            E(f's_cmp_eq_u32 s{sWave}, 0\n s_cbranch_scc1 L_A_NH{var}'); tag_wait(T_H,1,2,sleep=2); LBL(f'L_A_NH{var}')
        if OPT.get('hold') and var==0 and st==int(OPT.get('hold')):
            E(f's_cmp_eq_u32 s{sWave}, 0\n s_cbranch_scc0 L_A_NH2'); tag_set(T_H,None,2); E('s_waitcnt lgkmcnt(0)'); LBL('L_A_NH2')
        if st==2: E('s_waitcnt lgkmcnt(0)'); tag_wait(T_X,4,2)
        if st==14: E('s_waitcnt lgkmcnt(0)'); tag_wait(T_X+16,4,2)
        if st==PLK and var==1: tag_set(T_PL,None,2); E('s_waitcnt lgkmcnt(0)')
        gstep(var,st,False)
    stamp('A',2,'step 24'); cstamp('A',10,'s24')
    if var==0: E(f's_cmp_eq_u32 s{sWave}, 0\n s_cbranch_scc1 L_A_G0')
    tag_wait(T_FL,1,2,once=f'L_A_GK{var}')
    if var==0: LBL('L_A_G0')
    V1=list(VQ)
    for st in range(24,32): gstep(var,st,False)
    if var==0: E(f's_cmp_eq_u32 s{sWave}, 0\n s_cbranch_scc1 L_A_GE0')
    tag_wait(T_FL,1,2)
    for p in range(8): kvpiece(p)
    E(f's_branch L_A_GE{var}')
    LBL(f'L_A_GK{var}')
    VQ[:]=V1
    for st in range(24,32): gstep(var,st,True)
    LBL(f'L_A_GE{var}')
    stamp('A',1,'proj loop done'); cstamp('A',11,'pl')
    E(f's_lshl_b32 s{sT+4}, s{sHg}, 8\n s_lshl_b32 s{sT+5}, s{sPb}, 1\n s_add_u32 s{sT+4}, s{sT+4}, s{sT+5}\n s_lshl_b32 s{sT+4}, s{sT+4}, 11\n s_add_u32 s{sT+4}, s{sT+4}, {hex(WS_KVB)}')
    if var==0:
        E(f's_cmp_eq_u32 s{sWave}, 2\n s_cbranch_scc1 L_A_EK')
        C('q (A / B): scale, pack, hand over through LDS')
        E(f's_cmp_eq_u32 s{sWave}, 0\n s_cbranch_scc1 L_A_Q0')
        tag_wait(T_G,1,2)
        LBL('L_A_Q0')
        E(f's_lshl_b32 s{sT+1}, s{sWave}, 13\n s_add_u32 s{sT+1}, s{sT+1}, {L_QA}\n v_add_u32 v3, s{sT+1}, v6\n s_mov_b32 s{sT+2}, {hex(CSCALE)}\n s_mov_b32 s{sT+3}, {hex(CSCALE)}\n s_lshl_b32 s{sT+1}, s{sWave}, 2\n s_add_u32 s{sT+1}, s{sT+1}, {T_Q1}\n v_mov_b32 v4, s{sT+1}\n v_mov_b32 v5, 1')
        for i in (1,0):
            for t in range(2):
                d=PAC[2*i+t]
                for r in range(0,16,2): E(f'v_pk_mul_f32 {vr(d+r,2)}, {vr(d+r,2)}, {sr(sT+2,2)}')
                for r in range(8): cvt(d+r,d+2*r,d+2*r+1)
                for hh in range(2): E(f'ds_write_b128 v3, {vr(d+4*hh,4)} offset:{(2*i+hh)*2048+1024*t}')
            if i==1: E(f's_mov_b64 exec, 1\n ds_write_b32 v4, v5\n s_mov_b64 exec, -1')
        E('s_waitcnt vmcnt(0) lgkmcnt(0)')
        tag_set(T_G,sWave,2)
        E('s_branch L_A_B8')
        LBL('L_A_EK')
        E('s_waitcnt vmcnt(0)')
        tag_set(T_G,sWave,2)
        for i in range(2):
            for t in range(2):
                d=PAC[2*i+t]
                for r in range(8): cvt(d+r,d+2*r,d+2*r+1)
                for hh in range(2): E(f's_add_u32 s{sT+5}, s{sT+4}, {(2*i+hh)*131072}\n buffer_store_dwordx4 {vr(d+4*hh,4)}, v6, {sr(sWS)}, s{sT+5} offen offset:{2048*t} sc1')
        E('s_branch L_A_B8')
    else:
        E('s_waitcnt vmcnt(0)')
        tag_set(T_G,sWave,2)
        E('v_bfe_u32 v3, v0, 4, 1\n v_lshl_add_u32 v3, v3, 17, v7')
        for i in range(2):
            for t in range(2):
                d=PAC[2*i+t]
                for r in range(8): cvt(d+r,d+2*r,d+2*r+1)
                E('s_nop 1')
                for gq in range(2): E(f'v_permlane32_swap_b32 v{d+4*gq}, v{d+4*gq+2}\n v_permlane32_swap_b32 v{d+4*gq+1}, v{d+4*gq+3}')
                E(f's_add_u32 s{sT+5}, s{sT+4}, {i*2*131072}')
                for gq in range(2): E(f'buffer_store_dwordx4 {vr(d+4*gq,4)}, v3, {sr(sWS)}, s{sT+5} offen offset:{2048*t+1024+512*gq} sc1')
LBL('L_A_B8')
E('s_setprio 0')
E(f's_and_b32 s{sT+1}, s{sWave}, 2\n s_lshr_b32 s{sT+2}, s{sWave}, 2\n s_add_u32 s{sT+1}, s{sT+1}, s{sT+2}\n s_lshl_b32 s{sT+1}, s{sT+1}, 11\n s_and_b32 s{sT+2}, s{sWave}, 1\n s_lshl_b32 s{sT+2}, s{sT+2}, 10\n s_add_u32 s{sT+1}, s{sT+1}, s{sT+2}\n s_add_u32 s{sT+1}, s{sT+1}, {L_QA}\n v_add_u32 v2, s{sT+1}, v6\n v_xor_b32 v3, 0x800, v2')
AK0=120; AV0=121; AEX=122; AG=126
E(f'v_add_u32 v{AK0}, {L_ST}, v{AKA}\n v_add_u32 v{AV0}, {L_ST}, v{AVA}')
E(f's_and_b32 s{sT+2}, s{sWave}, 3\n s_mul_i32 s{sT+1}, s{sT+2}, 4608\n s_add_u32 s{sT+1}, s{sT+1}, {L_EX}\n v_add_u32 v{AEX}, s{sT+1}, v6\n v_add_u32 v{AEX+1}, s{sT+1}, v11')
E(f's_lshl_b32 s{sT+2}, s{sT+2}, 2\n s_add_u32 s{sT+2}, s{sT+2}, {C_PR}\n v_mov_b32 v{AEX+2}, s{sT+2}')
E(f's_and_b32 s{sT+1}, s{sWave}, 1\n s_lshl_b32 s{sT+2}, s{sPb}, 1\n s_add_u32 s{sT+1}, s{sT+1}, s{sT+2}\n s_lshl_b32 s{sT+1}, s{sT+1}, 7\n s_add_u32 s{sT+1}, s{sT+1}, {hex(WS_G)}\n v_and_b32 v127, 0x7c, v11')
tag_wait(T_K0,1,4,sleep=int(OPT.get('asl','2')))
E(f'buffer_load_dword v{AG}, v127, {sr(sWS)}, s{sT+1} offen sc1')
tag_get(4)
def kvoff(j):
    return (j%4)*4096+(0 if j<4 else KVPOS[j//4]-(65536 if j>=20 else 0))
def ldk(j): E(f'ds_read_b128 {vr(AK+4*(j&1),4)}, v{AK0 if j<4 else AKA} offset:{kvoff(j)}')
def ldv(j): E(f's_mov_b64 exec, {sr(sVM,2)}\n ds_read_b128 {vr(AV+8*(j&1),4)}, v{AV0 if j<4 else AVA} offset:{kvoff(j)+1024}\n ds_read_b128 {vr(AV+8*(j&1)+4,4)}, v{AV0 if j<4 else AVA} offset:{kvoff(j)+1536}\n s_mov_b64 exec, -1')
ldk(0); ldv(0); ldk(1)
E(f's_bitcmp1_b32 s{sWave}, 1\n s_cbranch_scc0 L_A_WL')
tag_wait(T_Q1,1,4,sleep=int(OPT.get('asl2','1')))
E('s_branch L_A_WD')
LBL('L_A_WL')
tag_wait(T_G,1,4,sleep=int(OPT.get('asl2','1')))
LBL('L_A_WD')
stamp('A',4,'BQ'); cstamp('A',8,'BQ')
E(f'ds_read_b128 {vr(AQ0,4)}, v2\n ds_read_b128 {vr(AQ1,4)}, v3')
if PRIO in ('step','step4'): E('s_setprio 2')
E('s_waitcnt lgkmcnt(0)'); mfma(SA,AK,AQ0,'0')
lds_add(C_QR,1,vZ,2)
E('s_nop 7')
def pair_iter(j,ldk_,ldv_,first=False,last=0,extra=0):
    kc=AK+4*(j&1); kn=AK+4*((j+1)&1); vc=AV+8*(j&1); vp=AV+8*((j+1)&1)
    vexp(SA); vexp(SA+1)
    if not first: smf(OB,vp+4,SB+8,AIDX)
    for r in range(2,5): vexp(SA+r)
    mfma(SB,kc,AQ1,'0')
    for r in range(5,10): vexp(SA+r)
    E(f's_waitcnt lgkmcnt({(1 if last<2 else 0)+extra})')
    vexp(SA+10); smf(OA,vc,SA,AIDX)
    for r in range(11,16): vexp(SA+r)
    vexp(SB); vexp(SB+1); smf(OA,vc+4,SA+8,AIDX)
    if last<2: ldv_()
    for r in range(2,5): vexp(SB+r)
    if last<2:
        E('s_waitcnt lgkmcnt(2)'); mfma(SA,kn,AQ0,'0')
    if last<1: ldk_()
    for r in range(5,11): vexp(SB+r)
    smf(OB,vc,SB,AIDX)
    for r in range(11,16): vexp(SB+r)
def aflag(force,init=False):
    sk=uid('fl')
    E(f's_cmp_eq_u32 s{sT+5}, 0\n s_cbranch_scc0 {sk}')
    if not force: E(f's_getreg_b32 s{sT}, hwreg(HW_REG_IB_STS, 0, 4)\n s_cmp_eq_u32 s{sT}, 0\n s_cbranch_scc0 {sk}')
    E(f's_waitcnt vmcnt(0)\n s_mov_b32 s{sT+5}, 1'); flag_store(sT+6,2); LBL(sk)
if ROLL:
    AKN=120; AVN=121; sC=sT+4
    def rk(j):
        a_=AKA if j<4 else AKN
        return lambda: E(f'ds_read_b128 {vr(AK+4*(j&1),4)}, v{a_} offset:{(j%4)*4096}')
    def rv(j):
        a_=AVA if j<4 else AVN
        return lambda: E(f's_mov_b64 exec, {sr(sVM,2)}\n ds_read_b128 {vr(AV+8*(j&1),4)}, v{a_} offset:{(j%4)*4096+1024}\n ds_read_b128 {vr(AV+8*(j&1)+4,4)}, v{a_} offset:{(j%4)*4096+1536}\n s_mov_b64 exec, -1')
    for r in range(8,16): E(f'v_mov_b32 v{SB+r}, 0')
    E(f'v_add_u32 v{AKN}, 0x8000, v{AKA}\n v_add_u32 v{AVN}, 0x8000, v{AVA}\n v_add_u32 v{AKA}, 0x4000, v{AKA}\n v_add_u32 v{AVA}, 0x4000, v{AVA}\n s_mov_b32 s{sC}, 0\n s_mov_b32 s{sT+5}, 0')
    L.append('.p2align 6')
    LBL('L_A_LOOP')
    pair_iter(0,rk(2),rv(1)); pair_iter(1,rk(3),rv(2))
    E(f's_cmp_gt_u32 s{sC}, 6\n s_cbranch_scc1 L_A_LAST\n s_bitcmp1_b32 0x5f, s{sC}\n s_cbranch_scc1 L_A_RARE')
    LBL('L_A_RBACK')
    pair_iter(2,rk(4),rv(3)); pair_iter(3,rk(5),rv(4))
    E(f's_add_u32 s{sC}, s{sC}, 1\n s_mov_b32 s{sT+1}, 0x4000\n s_cmp_eq_u32 s{sC}, 2\n s_cselect_b32 s{sT+1}, {hex((-49152)&0xffffffff)}, s{sT+1}\n s_cmp_eq_u32 s{sC}, 3\n s_cselect_b32 s{sT+1}, {hex((-65536)&0xffffffff)}, s{sT+1}')
    E(f'v_mov_b32 v{AKA}, v{AKN}\n v_mov_b32 v{AVA}, v{AVN}\n v_add_u32 v{AKN}, s{sT+1}, v{AKN}\n v_add_u32 v{AVN}, s{sT+1}, v{AVN}\n s_branch L_A_LOOP')
    LBL('L_A_RARE')
    E(f's_waitcnt lgkmcnt(0)\n s_cmp_gt_u32 s{sC}, 3\n s_cbranch_scc1 L_A_R4')
    E(f's_cmp_eq_u32 s{sC}, 0\n s_cbranch_scc0 L_A_R1'); lds_spin(C_K1,None,4,vZ,2,sleep=0)
    LBL('L_A_R1')
    E(f's_cmp_eq_u32 s{sC}, 2\n s_cbranch_scc0 L_A_R2'); lds_spin(C_K2,None,4,vZ,2,sleep=1)
    LBL('L_A_R2')
    E(f's_cmp_eq_u32 s{sC}, 3\n s_cbranch_scc1 L_A_R3'); aflag(False); E('s_branch L_A_RBACK')
    LBL('L_A_R3'); aflag(True); E('s_branch L_A_RBACK')
    LBL('L_A_R4')
    E(f's_cmp_eq_u32 s{sC}, 4\n s_cbranch_scc0 L_A_R6'); lds_add(C_MID,1,vZ,2); E('s_waitcnt lgkmcnt(0)\n s_branch L_A_RBACK')
    LBL('L_A_R6'); lds_spin(C_MID,None,8,vZ,2,sleep=1); E('s_branch L_A_RBACK')
    LBL('L_A_LAST')
    pair_iter(2,None,rv(3),last=1); pair_iter(3,None,None,last=2)
else:
    E(f's_and_b32 s{sT+5}, s{sWave}, 6\n s_cmp_eq_u32 s{sT+5}, 2\n s_cselect_b32 s{sT+5}, 0, 1')
    for j in range(32):
        if j in (2,6,10): E('s_waitcnt lgkmcnt(0)'); tag_wait(T_G+4*{2:2,6:3,10:1}[j],1,2)
        if j in (1,2,3,5): aflag(j==5)
        PJ=[int(x) for x in OPT.get('pj','11,22').split(',')]
        if PRIO=='step' and j in PJ: E(f's_setprio {1 if j==PJ[0] else 0}')
        if PRIO=='step4' and j in (6,16): E(f's_setprio {1 if j==6 else 0}')
        if OPT.get('jst') and j in (2,4,8,16,24): E('s_waitcnt lgkmcnt(0)'); cstamp('A',{2:1,4:2,8:3,16:7,24:10}[j],f'J{j}')
        if j==14: E('s_waitcnt lgkmcnt(0)'); lds_spin(C_K2,None,0x404,vZ,2,sleep=1)
        if j==20: lds_add(C_MID,1,vZ,2)
        if j==28: E('s_waitcnt lgkmcnt(0)'); lds_spin(C_MID,None,8,vZ,2,sleep=1)
        def lv(j=j):
            if j==19: E(f'v_add_u32 v{AVA}, 0x10000, v{AVA}')
            ldv(j+1)
        def lk(j=j):
            if j==18: E(f'v_add_u32 v{AKA}, 0x10000, v{AKA}')
            ldk(j+2)
        if j==31:
            C('has the partner of this wave (same queries, other keys) already left its sums ?  if so they arrive during the last tile')
            E(f'ds_read_b32 v127, v{AEX+2} offset:16\n ds_read_b32 v125, v{vZ} offset:{C_LOC-L_ST}')
            for q in range(2): E(f'ds_read_b128 {vr(128+12*q,4)}, v{AEX} offset:{2304*q}\n ds_read_b128 {vr(132+12*q,4)}, v{AEX} offset:{2304*q+1024}\n ds_read_b32 v{136+12*q}, v{AEX+1} offset:{2304*q+2048}')
        pair_iter(j,lk,lv,first=(j==0),last=(2 if j==31 else 1 if j==30 else 0),extra=(1 if j in (0,20) else 0))
E('s_nop 1'); smf(OB,AV+8+4,SB+8,AIDX)
stamp('A',5,'A loop done'); cstamp('A',9,'loop done')
C('---- the first wave of a pair to finish leaves both partial sums in LDS and ends ; the second one finishes both heads')
E(f'v_readfirstlane_b32 s{sT+1}, v127\n v_readfirstlane_b32 s{sT+9}, v125\n s_cmp_eq_u32 s{sT+1}, 1\n s_cbranch_scc1 L_A_LATE')
E(f'v_mov_b32 v2, 1\n s_mov_b64 exec, 1\n ds_add_rtn_u32 v3, v{AEX+2}, v2\n s_mov_b64 exec, -1\n s_waitcnt lgkmcnt(0)\n v_readfirstlane_b32 s{sT+1}, v3\n s_cmp_eq_u32 s{sT+1}, 0\n s_cbranch_scc0 L_A_TIE\n s_nop 3')
for q,O in enumerate((OA,OB)): E(f'ds_write_b128 v{AEX}, {vr(O,4)} offset:{2304*q}\n ds_write_b128 v{AEX}, {vr(O+4,4)} offset:{2304*q+1024}\n ds_write_b32 v{AEX+1}, v{O+8} offset:{2304*q+2048}')
E(f's_mov_b64 exec, 1\n ds_write_b32 v{AEX+2}, v2 offset:16\n s_mov_b64 exec, -1\n s_waitcnt lgkmcnt(0)\n s_branch L_A_STD')
LBL('L_A_TIE')
E(f's_mov_b32 s{sCnt}, {SPIN_LIMIT}')
LBL('L_A_TI2')
E(f'ds_read_b32 v127, v{AEX+2} offset:16')
for q in range(2): E(f'ds_read_b128 {vr(128+12*q,4)}, v{AEX} offset:{2304*q}\n ds_read_b128 {vr(132+12*q,4)}, v{AEX} offset:{2304*q+1024}\n ds_read_b32 v{136+12*q}, v{AEX+1} offset:{2304*q+2048}')
E(f's_waitcnt lgkmcnt(0)\n v_readfirstlane_b32 s{sT+1}, v127\n s_cmp_eq_u32 s{sT+1}, 1\n s_cbranch_scc1 L_A_LATE\n s_sub_u32 s{sCnt}, s{sCnt}, 1\n s_cbranch_scc0 L_A_TI2')
LBL('L_A_LATE')
for r in range(9): E(f'v_add_f32 v{OA+r}, v{OA+r}, v{140+r}')
E('s_waitcnt vmcnt(0)')
def setupA(): E(f's_mov_b32 s{sT+2}, {hex(WS_KVA)}\n s_mov_b32 s{sT+3}, 64')
for q,(O,Q_) in enumerate(((OA,AQ0),(OB,AQ1))):
    if q==1:
        for r in range(9): E(f'v_add_f32 v{OB+r}, v{OB+r}, v{128+r}')
    dst=152+4*q
    finalize(O,dst,2,f'L_FB_A{q}',f'L_FB_A{q}_BACK',126)
    if q==1: E(f's_xor_b32 s{sOA}, s{sOA}, 0x400')
    E(f's_cmp_eq_u32 s{sT+9}, 0\n s_cbranch_scc1 L_A_FAR{q}\n buffer_store_dwordx4 {vr(dst,4)}, v6, {sr(sWS)}, s{sOA} offen\n s_branch L_A_ST{q}')
    LBL(f'L_A_FAR{q}')
    E(f'buffer_store_dwordx4 {vr(dst,4)}, v6, {sr(sWS)}, s{sOA} offen sc1')
    LBL(f'L_A_ST{q}')
    fallback(f'L_FB_A{q}',f'L_FB_A{q}_BACK',Q_,O,SA,AK,AV,AIDX,3,6,7,None,setupA)
LBL('L_A_STD')
stamp('A',6,'oA published')
stamp_flush(12,'A')
LBL('L_END')
E('s_endpgm')
L.append('L_CODE_END:')
L.extend(TAIL)
L.append('    s_endpgm\n.fill 1200, 4, 0xbf810000')

hdr=open('cdna_kernels/%s.s.ref'%NAME).read().split('; Override launch')[0]
txt=hdr
txt+=f'; @launch grid=(256,1,1) block=(768,1,1) lds={LDS_TOTAL}\n'
for n in ('WS_KVA','WS_KVB','WS_OA','WS_OB','WS_STAMP','NSTAMP'): txt+=f'; CONST {n} = {hex(globals()[n])}\n'
for r,i,n in STN: txt+=f'; STAMPNAME {r} {i} {n}\n'
txt+=f'''.amdgcn_target "amdgcn-amd-amdhsa--gfx950"
.text
.globl {NAME}_kernel
.p2align 8
.type {NAME}_kernel,@function
{NAME}_kernel:
'''+'\n'.join(L)+f'''
.section .rodata,"a"
.p2align 6
.amdhsa_kernel {NAME}_kernel
  .amdhsa_next_free_vgpr 168
  .amdhsa_next_free_sgpr 102
  .amdhsa_accum_offset 168
  .amdhsa_group_segment_fixed_size 0
  .amdhsa_kernarg_size 96
  .amdhsa_user_sgpr_count 2
  .amdhsa_user_sgpr_kernarg_segment_ptr 1
  .amdhsa_system_sgpr_workgroup_id_x 1
.end_amdhsa_kernel
'''
open(OUT,'w').write(txt)
print('wrote',OUT,len(L),'lines')
```

```python
import sys, math, struct
NAME='gated_mix__grouped_kv_mqa__sliding_block__prompt'
DIAG = '--diag' in sys.argv
OUT = [a for a in sys.argv[1:] if not a.startswith('--')]
OUT = OUT[0] if OUT else 'cdna_kernels/%s.s'%NAME
OPT=dict(a.lstrip('-').split('=') for a in sys.argv[1:] if a.startswith('--') and '=' in a)
MAP=OPT.get('map','b'); ROT=OPT.get('rot','full'); PRIO=OPT.get('prio','step'); FLAG_IT=int(OPT.get('flagit','1')); PK=int(OPT.get('pk','7')); FORCE_K=int(OPT.get('forcek','7')); SENTK=int(OPT.get('sentk','14')); DENSE=OPT.get('dense','0')=='1'; ROLL=OPT.get('roll','0')=='1'; WT=OPT.get('wtouch','0')=='1'; KVK=int(OPT.get('kvk','13'))
def f2u(f): return struct.unpack('<I',struct.pack('<f',f))[0]

WS_EPOCH=0x0
WS_FKVA=0x1000
WS_FKVB=0x4000
WS_FOB =0xC000
WS_FOA =0x14000
WS_G   =0x1C000
WS_KVA =0x20000
WS_QB  =0x40000
WS_KVB =0x240000
WS_OA  =0x640000
WS_OB  =0x840000
WS_STAMP=0xA40000
NSTAMP=16
L_WQ=0; L_X=65536; L_ST=131072; L_CTL=L_ST+30720
L_GW=L_CTL; L_G=L_CTL+1024; L_C=L_CTL+1024+256
C_X=L_C+0
C_Q=L_C+4
C_K0=L_C+8; C_K1=L_C+12; C_K2=L_C+16; C_BP=L_C+20; C_MID=L_C+24; C_WO=L_C+28; C_WD=L_C+32; C_QR=L_C+36; C_SN=L_C+40; C_LOC=L_C+44; T_PT=L_C+256; T_X=L_C+272; T_PL=L_C+304; T_FL=L_C+308; T_G=L_C+320; T_X0=L_C+336; T_K0=L_C+352; T_Q1=L_C+356; T_H=L_C+368; T_TAG=L_C+372; C_PR=L_C+384; T_PR=L_C+400
L_EX=L_ST
LDS_TOTAL=163840
SPIN_LIMIT=400000
CSCALE=f2u(0.25*math.log2(math.e))
NEGBIG=f2u(-1e9)
L_LO=f2u(2.0**-24); L_HI=f2u(2.0**60)

sX=28; sWQ=32; sWKV=36; sWB=40; sWOA=44; sWOB=48; sG=52; sOUT=56; sWS=60; sDBG=64
sWave=68; sPb=69; sHg=70; sTag=71
sT=72
sCnt=84; sB=85
sXcc=65
sVM=86
sST=88
vZ=1
L=[]
def E(s):
    for ln in s.split('\n'):
        if ln.strip(): L.append('    '+ln.strip())
def LBL(s): L.append(s+':')
def C(s): L.append('    ; '+s)
_uid=[0]
def uid(p):
    _uid[0]+=1; return f'{p}_{_uid[0]}'
def vr(a,n): return f'v[{a}:{a+n-1}]'
def sr(a,n=4): return f's[{a}:{a+n-1}]'
def srd(dst,ptr,nbytes):
    E(f's_mov_b32 s{dst}, s{ptr}\n s_mov_b32 s{dst+1}, s{ptr+1}\n s_mov_b32 s{dst+2}, {hex(nbytes)}\n s_mov_b32 s{dst+3}, 0x20000')
STN=[]
def stamp(role,i,name):
    if OPT.get('acc') and role=='B' and i==10: return
    if OPT.get('jst') and role=='A' and i in (1,2,3,7): return
    if OPT.get('bst') and role=='B' and i in (6,7,8,9) and not name.startswith('arrive'): return
    if not DIAG: return
    STN.append((role,i,name))
    E(f's_memrealtime s[100:101]\n s_waitcnt lgkmcnt(0)\n s_mov_b32 s{sST+i}, s100')
ECHO=OPT.get('echo')
def echo_mark(name):
    if ECHO==name or name=='start' and ECHO:
        r=98 if name=='start' else 99
        E(f's_memrealtime s[100:101]\n s_waitcnt lgkmcnt(0)\n s_mov_b32 s{r}, s100')
def echo_end():
    if not ECHO: return
    E('s_waitcnt vmcnt(0)'); echo_mark('end')
    E('s_memrealtime s[100:101]\n s_waitcnt lgkmcnt(0)\n s_sub_u32 s99, s99, s98\n s_add_u32 s99, s99, s100')
    LBL('L_ECHO')
    E('s_memrealtime s[100:101]\n s_waitcnt lgkmcnt(0)\n s_sub_u32 s100, s100, s99\n s_cmp_lt_i32 s100, 0\n s_cbranch_scc1 L_ECHO')
def cstamp(role,i,name):
    if OPT.get('jst') and i in (10,11) and not name.startswith('J'): return
    if not DIAG: return
    STN.append((role,i,'CYC '+name))
    E(f's_memtime s[100:101]\n s_waitcnt lgkmcnt(0)\n s_mov_b32 s{sST+i}, s100')
def tacc(role,i,name,code):
    if not (DIAG and OPT.get('acc')): E(code); return
    if (role,i,'ACC '+name) not in STN: STN.append((role,i,'ACC '+name))
    E(f's_memtime s[100:101]\n s_waitcnt lgkmcnt(0)\n s_sub_u32 s{sST+i}, s{sST+i}, s100')
    E(code)
    E(f's_memtime s[100:101]\n s_waitcnt lgkmcnt(0)\n s_add_u32 s{sST+i}, s{sST+i}, s100')
def stamp_flush(nmax,role='B'):
    if not DIAG: return
    if OPT.get('dbg'):
        m={'A':[(0,1),(2,2),(7,3),(3,4),(1,5),(4,6),(5,7),(6,8)],'B':[(4,9),(6,10),(7,11),(9,12),(10,13),(11,14)]}[role]
        sk=uid('nd')
        srd(sDBG,24,256)
        E(f's_bfe_u32 s{sT}, s2, 0x30003\n s_cmp_eq_u32 s{sT}, 0\n s_cbranch_scc0 {sk}\n v_mov_b32 v2, 0\n s_not_b32 s{sT}, s{sST}\n v_writelane_b32 v2, s{sT}, 0')
        for i,sl in m: E(f'v_writelane_b32 v2, s{sST+i}, {sl}')
        E(f'v_lshlrev_b32 v3, 2, v0\n s_mov_b64 exec, 0xffff\n buffer_atomic_umax v2, v3, {sr(sDBG)}, 0 offen sc1\n s_mov_b64 exec, -1')
        LBL(sk)
        return
    if OPT.get('hwid'): E(f's_getreg_b32 s{sST+11}, hwreg(HW_REG_HW_ID)\n s_getreg_b32 s{sST+10}, hwreg(HW_REG_XCC_ID)')
    E('v_mov_b32 v2, 0')
    for i in range(nmax): E(f'v_writelane_b32 v2, s{sST+i}, {i}')
    E(f's_mul_i32 s{sT}, s2, 12\n s_add_u32 s{sT}, s{sT}, s{sWave}\n s_lshl_b32 s{sT}, s{sT}, 6\n s_add_u32 s{sT}, s{sT}, {hex(WS_STAMP)}')
    E(f'v_lshlrev_b32 v3, 2, v0\n s_mov_b64 exec, 0xffff\n buffer_store_dword v2, v3, {sr(sWS)}, s{sT} offen\n s_mov_b64 exec, -1')

def lds_add(off,val,vz,vt):
    E(f'v_mov_b32 v{vt}, {val}\n s_mov_b64 exec, 1\n ds_add_u32 v{vz}, v{vt} offset:{off-L_ST}\n s_mov_b64 exec, -1')
def lds_spin(off,mask,val,vz,vt,sleep=1):
    a=uid('spin'); d=uid('spind')
    E(f's_mov_b32 s{sCnt}, {SPIN_LIMIT}')
    LBL(a)
    E(f'ds_read_b32 v{vt}, v{vz} offset:{off-L_ST}\n s_waitcnt lgkmcnt(0)\n v_readfirstlane_b32 s{sT}, v{vt}')
    if mask is not None: E(f's_and_b32 s{sT}, s{sT}, {hex(mask)}')
    E(f's_cmp_eq_u32 s{sT}, {hex(val)}\n s_cbranch_scc1 {d}\n s_sub_u32 s{sCnt}, s{sCnt}, 1\n s_cbranch_scc1 {d}')
    if sleep: E(f's_sleep {sleep}')
    E(f's_branch {a}')
    LBL(d)
def tag_set(off,sidx,vt):
    if sidx is None: E(f'v_mov_b32 v{vt}, {off}')
    else: E(f's_lshl_b32 s{sT}, s{sidx}, 2\n s_add_u32 s{sT}, s{sT}, {off}\n v_mov_b32 v{vt}, s{sT}')
    E(f'v_mov_b32 v{vt+1}, 1\n s_mov_b64 exec, 1\n ds_write_b32 v{vt}, v{vt+1}\n s_mov_b64 exec, -1')
def tag_wait(off,n,vt,sleep=0,once=None):
    a=uid('tw'); d=uid('twd')
    E(f'v_and_b32 v{vt}, {n-1}, v0\n v_lshlrev_b32 v{vt}, 2, v{vt}\n v_add_u32 v{vt}, {off}, v{vt}')
    if once:
        E(f'ds_read_b32 v{vt+1}, v{vt}\n s_waitcnt lgkmcnt(0)\n v_cmp_ne_u32 vcc, 1, v{vt+1}\n s_cbranch_vccz {once}')
        return
    E(f's_mov_b32 s{sCnt}, {SPIN_LIMIT}')
    LBL(a)
    E(f'ds_read_b32 v{vt+1}, v{vt}\n s_waitcnt lgkmcnt(0)\n v_cmp_ne_u32 vcc, 1, v{vt+1}\n s_cbranch_vccz {d}\n s_sub_u32 s{sCnt}, s{sCnt}, 1\n s_cbranch_scc1 {d}')
    if sleep: E(f's_sleep {sleep}')
    E(f's_branch {a}')
    LBL(d)
def tag_get(vt):
    E(f'ds_read_b32 v{vt}, v{vZ} offset:{T_TAG-L_ST}\n s_waitcnt lgkmcnt(0)\n v_readfirstlane_b32 s{sTag}, v{vt}')
def poll(vaddr,n,vt,sleep=1):
    a=uid('poll'); d=uid('polld')
    E(f's_mov_b32 s{sCnt}, {SPIN_LIMIT}')
    LBL(a)
    op={1:'buffer_load_dword',2:'buffer_load_dwordx2',3:'buffer_load_dwordx3',4:'buffer_load_dwordx4'}[n]
    E(f'{op} {vr(vt,n) if n>1 else "v%d"%vt}, v{vaddr}, {sr(sWS)}, 0 offen sc1\n s_waitcnt vmcnt(0)')
    for i in range(n): E(f'v_xor_b32 v{vt+i}, s{sTag}, v{vt+i}')
    if n==2: E(f'v_or_b32 v{vt}, v{vt}, v{vt+1}')
    if n>=3: E(f'v_or3_b32 v{vt}, v{vt}, v{vt+1}, v{vt+2}')
    if n==4: E(f'v_or_b32 v{vt}, v{vt}, v{vt+3}')
    E(f'v_cmp_ne_u32 vcc, 0, v{vt}\n s_cbranch_vccz {d}\n s_sub_u32 s{sCnt}, s{sCnt}, 1\n s_cbranch_scc1 {d}')
    if sleep: E(f's_sleep {sleep}')
    E(f's_branch {a}')
    LBL(d)
def flag_store(soff_reg,vt):
    E(f'v_mov_b32 v{vt}, s{sTag}\n s_mov_b64 exec, 1\n buffer_store_dword v{vt}, off, {sr(sWS)}, s{soff_reg} sc1\n s_mov_b64 exec, -1')
def mfma(d,a,b,c=None):
    cc = vr(d,16) if c is None else (c if isinstance(c,str) else vr(c,16))
    E(f'v_mfma_f32_32x32x16_bf16 {vr(d,16)}, {vr(a,4)}, {vr(b,4)}, {cc}')
def smf(o,v,s,idx): E(f'v_smfmac_f32_32x32x32_bf16 {vr(o,16)}, {vr(v,4)}, {vr(s,8)}, v{idx}')
def vexp(r): E(f'v_exp_f32 v{r}, v{r}')
def cvt(d,a,b): E(f'v_cvt_pk_bf16_f32 v{d}, v{a}, v{b}')
def set_vpad(regs,vt):
    E(f'v_and_b32 v{vt}, 27, v0\n v_cmp_eq_u32 vcc, 16, v{vt}\n v_mov_b32 v{vt}, 0x3f803f80\n s_nop 0\n v_cndmask_b32 v{regs[0]}, 0, v{vt}, vcc')
    for r in regs[1:]: E(f'v_mov_b32 v{r}, v{regs[0]}')
def xaddr(base,t_imm,vt):
    E(f'v_and_b32 v{vt}, 15, v0\n v_lshrrev_b32 v{base}, 5, v0\n v_xor_b32 v{base}, v{base}, v{vt}\n v_lshlrev_b32 v{base}, 4, v{base}')
    E(f'v_and_b32 v{vt}, 31, v0\n v_lshl_add_u32 v{base}, v{vt}, 10, v{base}\n v_add_u32 v{base}, {t_imm}, v{base}')
    for b in range(1,8): E(f'v_xor_b32 v{base+b}, {b<<5}, v{base}')
def traddr128(dst,vt,vt2,rowsel,colbase):
    E(f'v_lshrrev_b32 v{vt}, 5, v0\n v_lshlrev_b32 v{vt}, {rowsel}, v{vt}\n v_bfe_u32 v{vt2}, v0, 2, 2\n v_add_u32 v{vt}, v{vt}, v{vt2}\n v_lshlrev_b32 v{dst}, 7, v{vt}')
    E(f'v_bfe_u32 v{vt}, v0, 4, 1\n v_lshlrev_b32 v{vt}, 1, v{vt}\n v_bfe_u32 v{vt2}, v0, 1, 1\n v_add3_u32 v{vt}, v{vt}, v{vt2}, {colbase}')
    E(f'v_bfe_u32 v{vt2}, v0, 3, 1\n v_lshlrev_b32 v{vt2}, 2, v{vt2}\n v_xor_b32 v{vt}, v{vt}, v{vt2}\n v_lshl_add_u32 v{dst}, v{vt}, 4, v{dst}')
    E(f'v_and_b32 v{vt}, 1, v0\n v_lshl_add_u32 v{dst}, v{vt}, 3, v{dst}')
def dma128_voff(dst,vt,vt2,rowstride_sreg_or_shift,colbytes):
    E(f'v_lshrrev_b32 v{vt}, 3, v0')
    if isinstance(rowstride_sreg_or_shift,int): E(f'v_lshlrev_b32 v{dst}, {rowstride_sreg_or_shift}, v{vt}')
    else: E(f'v_mul_u32_u24 v{dst}, {rowstride_sreg_or_shift}, v{vt}')
    E(f'v_bfe_u32 v{vt}, v0, 4, 1\n v_lshlrev_b32 v{vt}, 2, v{vt}\n v_and_b32 v{vt2}, 7, v0\n v_xor_b32 v{vt}, v{vt}, v{vt2}\n v_lshl_add_u32 v{dst}, v{vt}, 4, v{dst}\n v_add_u32 v{dst}, {colbytes}, v{dst}')
def finalize(O,dst,vt,lbl_fb,lbl_back,vg):
    E(f'v_add_f32 v{vt}, |v{O}|, |v{O+1}|')
    for r in range(2,8): E(f'v_add_f32 v{vt}, v{vt}, |v{O+r}|')
    E(f'v_mov_b32 v{vt+1}, 0x7f800000\n v_cmp_nlt_f32 {sr(sT,2)}, v{vt}, v{vt+1}')
    E(f'v_cmp_nle_f32 vcc, {hex(L_LO)}, v{O+8}\n s_or_b64 {sr(sT,2)}, {sr(sT,2)}, vcc')
    E(f'v_cmp_nge_f32 vcc, {hex(L_HI)}, v{O+8}\n s_or_b64 {sr(sT,2)}, {sr(sT,2)}, vcc\n s_cbranch_scc1 {lbl_fb}')
    LBL(lbl_back)
    E(f'v_rcp_f32 v{vt}, v{O+8}\n s_nop 0\n v_mul_f32 v{vt}, v{vt}, v{vg}')
    for r in range(0,8,2): E(f'v_pk_mul_f32 {vr(O+r,2)}, {vr(O+r,2)}, {vr(vt,2)} op_sel_hi:[1,0]')
    for r in range(4): cvt(dst+r,O+2*r,O+2*r+1)
    E(f'v_min_u32 v{dst}, -2, v{dst}')

TAIL=[]
RETRY=[]
def fallback(lbl,back,Q,O,S,K,V,IDX,vM,vK,vV,ntile,soff_setup,first_mask=None,last_mask=None,first_cond=None):
    global L
    save=L; L=[]
    LBL(lbl)
    soff_setup()
    E(f'v_mov_b32 v{vM}, 0xff800000')
    for p in (0,1):
        lp=uid('fbl')
        if p==1:
            E(f'v_mov_b32 v{S}, v{vM}\n s_nop 1\n v_permlane32_swap_b32 v{S}, v{vM}\n s_nop 1\n v_max_f32 v{vM}, v{vM}, v{S}')
            for r in range(16): E(f'v_mov_b32 v{O+r}, 0')
        E(f's_mov_b32 s{sT+5}, s{sT+2}\n s_mov_b32 s{sT+6}, 0')
        LBL(lp)
        E(f'buffer_load_dwordx4 {vr(K,4)}, v{vK}, {sr(sWS)}, s{sT+5} offen sc1')
        if p==1:
            E(f's_mov_b64 exec, {sr(sVM,2)}\n buffer_load_dwordx4 {vr(V,4)}, v{vV}, {sr(sWS)}, s{sT+5} offen offset:1024 sc1\n buffer_load_dwordx4 {vr(V+4,4)}, v{vV}, {sr(sWS)}, s{sT+5} offen offset:1536 sc1\n s_mov_b64 exec, -1')
        E('s_waitcnt vmcnt(0)')
        if first_mask is None:
            mfma(S,K,Q,'0')
        else:
            a=uid('fbm'); b=uid('fbm'); j=uid('fbm')
            E(f's_add_u32 s{sT+7}, s{sT+6}, 1\n s_cmp_eq_u32 s{sT+7}, s{sT+3}\n s_cbranch_scc1 {a}')
            E(f's_cmp_lt_u32 s{sT+6}, s{sT+4}\n s_cbranch_scc1 {b}')
            mfma(S,K,Q,'0'); E(f's_branch {j}')
            LBL(a); mfma(S,K,Q,last_mask); E(f's_branch {j}')
            LBL(b); mfma(S,K,Q,first_mask)
            LBL(j)
        E('s_nop 15')
        if p==0:
            for r in range(0,16,2): E(f'v_max3_f32 v{vM}, v{S+r}, v{S+r+1}, v{vM}')
        else:
            for r in range(16): E(f'v_sub_f32 v{S+r}, v{S+r}, v{vM}')
            for r in range(16): vexp(S+r)
            E('s_nop 1'); smf(O,V,S,IDX); smf(O,V+4,S+8,IDX)
        E(f's_add_u32 s{sT+5}, s{sT+5}, 2048\n s_add_u32 s{sT+6}, s{sT+6}, 1\n s_cmp_lt_u32 s{sT+6}, s{sT+3}\n s_cbranch_scc1 {lp}')
    E(f's_nop 15\n s_branch {back}')
    TAIL.extend(L); L=save

E('s_cmp_ge_u32 s2, 256\n s_cbranch_scc1 L_END')
if ECHO=='karg': E('s_memrealtime s[100:101]\n s_waitcnt lgkmcnt(0)\n s_mov_b32 s97, s100')
E('s_load_dwordx16 s[4:19], s[0:1], 0\n s_load_dwordx8 s[20:27], s[0:1], 64')
E(f'v_lshrrev_b32 v1, 6, v0\n v_and_b32 v0, 63, v0\n v_readfirstlane_b32 s{sWave}, v1')
if MAP=='b':
    E(f's_and_b32 s{sT}, s2, 7\n s_lshr_b32 s{sT+1}, s2, 3\n s_and_b32 s{sT+2}, s{sT+1}, 3\n s_lshl_b32 s{sPb}, s{sT}, 2\n s_or_b32 s{sPb}, s{sPb}, s{sT+2}\n s_lshr_b32 s{sHg}, s{sT+1}, 2')
else:
    E(f's_bfe_u32 s{sPb}, s2, 0x20001\n s_lshl_b32 s{sPb}, s{sPb}, 3\n s_bfe_u32 s{sT}, s2, 0x30003\n s_or_b32 s{sPb}, s{sPb}, s{sT}\n s_and_b32 s{sHg}, s2, 1\n s_lshl_b32 s{sHg}, s{sHg}, 2\n s_lshr_b32 s{sT}, s2, 6\n s_or_b32 s{sHg}, s{sHg}, s{sT}')
E(f's_mov_b32 s{sVM}, 0xffff\n s_mov_b32 s{sVM+1}, 0xffff')
if DIAG:
    for i in range(12): E(f's_mov_b32 s{sST+i}, 0')
def codepf():
  if OPT.get('cpf','1')=='1':
      C('---- pull this WG\'s share of the kernel\'s own instructions into L2 (later instruction fetches then miss only the I-cache)')
      E(f's_cmp_eq_u32 s{sWave}, 11\n s_cbranch_scc0 L_B_NCP\n s_getpc_b64 s[{sT}:{sT+1}]')
      LBL('L_B_PC')
      E(f's_lshr_b32 s{sT+2}, s2, 3\n s_mul_i32 s{sT+2}, s{sT+2}, (L_CODE_END-L_B_PC+4095)/4096*128\n s_add_u32 s{sT}, s{sT}, s{sT+2}\n s_addc_u32 s{sT+1}, s{sT+1}, 0')
      E(f'v_lshlrev_b32 v2, 7, v0\n v_mov_b32 v3, s{sT+1}\n v_add_co_u32 v2, vcc, s{sT}, v2\n s_nop 1\n v_addc_co_u32 v3, vcc, 0, v3, vcc\n s_lshl_b64 exec, 1, (L_CODE_END-L_B_PC+4095)/4096\n s_sub_u32 exec_lo, exec_lo, 1\n global_load_dword v63, v[2:3], off\n s_mov_b64 exec, -1')
      LBL('L_B_NCP')
if OPT.get('cpe','0')=='1': codepf()
C('clear the LDS counters and flags while the kernel arguments arrive')
E(f'v_lshlrev_b32 v2, 3, v0\n v_add_u32 v2, {L_C}, v2\n v_mov_b32 v4, 0\n v_mov_b32 v5, 0\n ds_write_b64 v2, v[4:5]')
E('s_waitcnt lgkmcnt(0)\n s_barrier')
stamp('A',0,'start'); stamp('B',0,'start'); echo_mark('start')
if ECHO=='karg': E('s_sub_u32 s99, s98, s97\n s_mul_i32 s99, s99, 10\n s_add_u32 s99, s99, s98')
srd(sX,4,2048*1024); srd(sWS,26,0x10000000)
E(f's_cmp_lt_u32 s{sWave}, 8\n s_cbranch_scc1 L_A')


KVPOS=[L_ST,32768,49152,16384,0,65536,81920,98304]
L_PART=L_ST+24576
L_QA=0; L_QB=8192; L_WO=0; L_FX=65536
sOut=66; sOb=67; sPass=64
sRot=sT+11
def mktag(): E(f's_mul_i32 s{sTag}, s{sTag}, 0x9E3779B1\n s_add_u32 s{sTag}, s{sTag}, 0x7F4A7C15')
def mkrot():
    if MAP=='b': E(f's_and_b32 s{sRot}, s{sPb}, 3\n s_lshl_b32 s{sRot}, s{sRot}, 1\n s_add_u32 s{sRot}, s{sRot}, s{sHg}')
    else: E(f's_lshl_b32 s{sRot}, s{sHg}, 1\n s_add_u32 s{sRot}, s{sRot}, s{sPb}')
def touch(srd_,soff,n,vaddr,vd,sc1=False):
    for i in range(n):
        if i: E(f's_add_u32 s{soff}, s{soff}, 8192')
        E(f'buffer_load_dword v{vd}, v{vaddr}, {sr(srd_)}, s{soff} offen'+(' sc1' if sc1 else ''))
E(f's_setprio {2 if OPT.get("bp2") else 3}\n s_sub_u32 s{sB}, s{sWave}, 8')
if OPT.get('cpe','0')=='0': codepf()
C('---- x tile -> LDS as 8 blocks of [64 rows][64 k], block order rotated per WG ; wave b brings blocks b and b+4')
E('v_lshrrev_b32 v17, 3, v0\n v_lshlrev_b32 v17, 10, v17\n v_lshrrev_b32 v2, 4, v0\n v_and_b32 v3, 7, v0\n v_xor_b32 v2, v2, v3\n v_lshl_add_u32 v17, v2, 4, v17\n v_xor_b32 v18, 64, v17')
mkrot()
E(f's_lshl_b32 s{sT+7}, s{sPb}, 16\n s_lshl_b32 s{sT+6}, s{sB}, 13')
VQ=[]
def vwait(tag,extra=''):
    if tag not in VQ:
        if extra: E('s_waitcnt'+extra)
        return
    i=max(n for n,t in enumerate(VQ) if t==tag)
    n=len(VQ)-1-i; del VQ[:i+1]
    E(f's_waitcnt vmcnt({n})'+extra)
XD=OPT.get('xd','1')=='1'
def xblock(expr_add,ldsoff,rows):
    E(f's_add_u32 s{sT+1}, s{sRot}, {expr_add}\n s_and_b32 s{sT+1}, s{sT+1}, 7\n s_lshl_b32 s{sT+1}, s{sT+1}, 7\n s_add_u32 s{sT+1}, s{sT+1}, s{sT+7}')
if XD:
    E(f's_and_b32 s{sT+1}, s{sRot}, 7\n s_lshl_b32 s{sT+1}, s{sT+1}, 7\n s_add_u32 s{sT+1}, s{sT+1}, s{sT+7}\n s_lshl_b32 s{sT+2}, s{sB}, 14\n s_add_u32 s{sT+1}, s{sT+1}, s{sT+2}\n s_lshl_b32 s{sT+2}, s{sB}, 11\n s_add_u32 m0, s{sT+2}, 65536\n s_nop 0')
    E(f'buffer_load_dwordx4 v17, {sr(sX)}, s{sT+1} offen lds\n s_add_u32 m0, s{sT+2}, {65536+1024}\n s_add_u32 s{sT+1}, s{sT+1}, 8192\n buffer_load_dwordx4 v18, {sr(sX)}, s{sT+1} offen lds')
def xrest():
  for hb in range(2):
    sk=uid('xs')
    if XD and hb==0: E(f's_cmp_eq_u32 s{sB}, 0\n s_cbranch_scc1 {sk}')
    E(f's_add_u32 s{sT+1}, s{sRot}, s{sB}\n s_add_u32 s{sT+1}, s{sT+1}, {4*hb}\n s_and_b32 s{sT+1}, s{sT+1}, 7\n s_lshl_b32 s{sT+1}, s{sT+1}, 7\n s_add_u32 s{sT+1}, s{sT+1}, s{sT+7}')
    for n in range(8):
        E(f's_add_u32 m0, s{sT+6}, {65536+32768*hb+1024*n}')
        E(f's_add_u32 s{sT+1}, s{sT+1}, 8192' if n else 's_nop 0')
        E(f'buffer_load_dwordx4 v{17+(n&1)}, {sr(sX)}, s{sT+1} offen lds')
    if XD and hb==0: LBL(sk)
if not XD: xrest()
MU=128; MD=144; BQ=16; BK=24; BV=36; BS=64; BO=96; BIDX=60
C('---- constants for the later phases (idle time)')
E(f'v_mov_b32 v{vZ}, {L_ST}\n v_lshlrev_b32 v160, 4, v0\n v_lshlrev_b32 v163, 7, v0')
E('v_lshrrev_b32 v161, 5, v0\n v_lshlrev_b32 v161, 8, v161\n v_and_b32 v2, 15, v0\n v_lshl_add_u32 v161, v2, 4, v161')
srd(sWOA,12,512*1024); srd(sWOB,18,512*1024)
E(f'v_and_b32 v4, 31, v0\n v_lshrrev_b32 v5, 5, v0\n v_lshlrev_b32 v5, 2, v5\n v_sub_u32 v4, v4, v5\n s_mov_b32 s{sT}, {hex(NEGBIG)}')
for r in range(16):
    E(f'v_subrev_u32 v5, {8*(r//4)+r%4}, v4\n v_ashrrev_i32 v5, 31, v5\n v_and_b32 v{MD+r}, s{sT}, v5\n v_xor_b32 v{MU+r}, s{sT}, v{MD+r}')
set_vpad(list(range(BV,BV+24)),2); E(f'v_mov_b32 v{BIDX}, 0xdddddddd')
for r in range(32): E(f'v_mov_b32 v{BO+r}, 0')
E(f'v_min_u32 v2, 4, v0\n s_sub_i32 s{sT}, s{sPb}, 4\n v_add_u32 v2, s{sT}, v2\n v_max_i32 v2, 0, v2\n s_lshl_b32 s{sT}, s{sHg}, 5\n v_add_u32 v2, s{sT}, v2\n v_lshlrev_b32 v2, 7, v2\n v_add_u32 v162, {hex(WS_FKVB+8)}, v2')
E(f'v_and_b32 v2, 7, v0\n v_lshlrev_b32 v2, 5, v2\n v_add_u32 v2, s{sPb}, v2\n v_lshlrev_b32 v2, 7, v2\n v_add_u32 v166, {hex(WS_FKVB+16)}, v2')
sKh=sT+9; sTt=sT+10
E(f's_lshr_b32 s{sKh}, s{sB}, 1\n s_and_b32 s{sTt}, s{sB}, 1\n s_lshl_b32 s{sT+2}, s{sHg}, 7')
dma128_voff(10,2,3,10,f's{sT+2}')
E(f's_lshl_b32 s{sT+1}, s{sKh}, 2'); traddr128(11,2,3,2,f's{sT+1}')
E(f's_lshl_b32 s{sT+1}, s{sKh}, 15\n s_add_u32 s{sT+1}, s{sT+1}, {L_WO}\n v_add_u32 v11, s{sT+1}, v11\n v_xor_b32 v9, 64, v11')
E(f's_lshl_b32 s{sOut}, s{sPb}, 1\n s_add_u32 s{sOut}, s{sOut}, s{sTt}\n s_lshl_b32 s{sOut}, s{sOut}, 15\n s_lshl_b32 s{sT}, s{sKh}, 14\n s_add_u32 s{sOb}, s{sOut}, s{sT}\n s_add_u32 s{sOb}, s{sOb}, {hex(WS_OB)}')
E(f's_lshl_b32 s{sT}, s{sHg}, 7\n s_add_u32 s{sOut}, s{sOut}, s{sT}\n s_lshl_b32 s{sT}, s{sKh}, 6\n s_add_u32 s{sOut}, s{sOut}, s{sT}')
E('v_and_b32 v8, 31, v0\n v_lshlrev_b32 v167, 10, v8\n v_lshrrev_b32 v3, 5, v0\n v_lshl_add_u32 v167, v3, 4, v167\n v_lshlrev_b32 v8, 2, v8')
srd(sOUT,22,2048*1024)
E(f's_lshl_b32 s{sT}, s{sB}, 12\n s_add_u32 s{sT}, s{sT}, {L_FX}\n v_add_u32 v164, s{sT}, v160\n v_xor_b32 v165, 0x2000, v164\n s_mov_b32 s{sPass}, 0')
if XD:
    E('s_waitcnt vmcnt(0)'); tag_set(T_X0,sB,2); xrest()
E('s_waitcnt vmcnt(8)')
tag_set(T_X,sB,2)
stamp('B',1,'x landed'); echo_mark('xl')
E('s_waitcnt vmcnt(0)')
tag_set(T_X+16,sB,2)
tag_wait(T_G,4,2,sleep=4)
tag_get(2)
stamp('B',5,'BQ'); echo_mark('bq')
E(f's_setprio {OPT.get("bpr","3")}')
def kvdma(c):
    E(f's_lshr_b32 s{sT+1}, s2, 3\n s_add_u32 s{sT+1}, s{sT+1}, {c}\n s_and_b32 s{sT+1}, s{sT+1}, 3\n s_lshl_b32 s{sT+1}, s{sT+1}, 2\n s_add_u32 s{sT+1}, s{sT+1}, s{sB}\n s_lshl_b32 s{sT+1}, s{sT+1}, 12')
    E(f's_lshl_b32 s{sT+2}, s{sB}, 12\n s_add_u32 m0, s{sT+2}, {KVPOS[c]}\n s_add_u32 s{sT+1}, s{sT+1}, {hex(WS_KVA+(65536 if c>=4 else 0))}')
    for i in range(4): E(f'buffer_load_dwordx4 v160, {sr(sWS)}, s{sT+1} offen offset:{1024*i} sc1 lds')
    VQ.extend([f'kv{c}']*4)
E(f's_lshl_b32 s{sT}, s{sB}, 11\n s_add_u32 s{sT}, s{sT}, {L_QB}\n v_add_u32 v3, s{sT}, v160')
for t in range(2): E(f'ds_read_b128 {vr(BQ+4*t,4)}, v3 offset:{1024*t}')
E(f's_lshl_b32 s{sT}, s{sPb}, 8\n s_add_u32 s{sT}, s{sT}, {hex(WS_G)}\n buffer_load_dword v61, v8, {sr(sWS)}, s{sT} offen sc1\n buffer_load_dword v62, v8, {sr(sWS)}, s{sT} offen offset:128 sc1\n s_waitcnt lgkmcnt(0)')
lds_add(C_QR,1,vZ,2)
C('---- second half of the shared K/V ; o slots marked as not yet written')
for c in (5,6,7): kvdma(c)
E(f's_lshl_b32 s{sT+10}, s{sPb}, 6\n s_lshl_b32 s{sT+1}, s{sHg}, 2\n s_add_u32 s{sT+10}, s{sT+10}, s{sT+1}\n s_add_u32 s{sT+10}, s{sT+10}, s{sB}\n s_lshl_b32 s{sT+10}, s{sT+10}, 10')
E('v_mov_b32 v12, -1\n v_mov_b32 v13, -1\n v_mov_b32 v14, -1\n v_mov_b32 v15, -1')
for base in (WS_OA,WS_OA+32768,WS_OB,WS_OB+32768):
    E(f's_add_u32 s{sT+1}, s{sT+10}, {hex(base)}\n buffer_store_dwordx4 v[12:15], v160, {sr(sWS)}, s{sT+1} offen sc1')
E(f's_lshl_b32 s{sT+3}, s{sHg}, 5\n s_add_u32 s{sT+3}, s{sT+3}, s{sPb}\n s_lshl_b32 s{sT+3}, s{sT+3}, 7\n s_lshl_b32 s{sT+1}, s{sB}, 2\n s_add_u32 s{sT+3}, s{sT+3}, s{sT+1}\n s_add_u32 s{sT+3}, s{sT+3}, {hex(WS_FKVB+16)}')
lds_spin(C_QR,None,12,vZ,2,sleep=2)
kvdma(4)
E(f's_getreg_b32 s{sXcc}, hwreg(HW_REG_XCC_ID, 0, 4)\n s_add_u32 s{sT}, s{sTag}, s{sXcc}\n v_mov_b32 v3, s{sT}\n s_waitcnt vmcnt(0)')
E(f's_mov_b64 exec, 1\n buffer_store_dword v3, off, {sr(sWS)}, s{sT+3} sc1\n s_mov_b64 exec, -1')
lds_add(C_K2,0x101,vZ,2)
stamp('B',2,'K/V all in')
if OPT.get('nob'): stamp_flush(12); E('s_endpgm')
E('v_sub_f32 v61, 1.0, v61\n v_sub_f32 v62, 1.0, v62')
poll(162,2,4,sleep=3)
stamp('B',6,'kvB flags seen'); echo_mark('kvb')
def wotouch():
    if MAP=='b':
        E(f's_cmp_ge_u32 s{sB}, 2\n s_cbranch_scc0 L_B_NOT\n s_lshr_b32 s{sT+1}, s2, 3\n s_lshl_b32 s{sT+1}, s{sT+1}, 14\n s_and_b32 s{sT+2}, s{sB}, 1\n s_lshl_b32 s{sT+2}, s{sT+2}, 13\n s_add_u32 s{sT+1}, s{sT+1}, s{sT+2}')
        touch(sWOB,sT+1,1,163,3); touch(sWOA,sT+1,1,163,3)
    else:
        E(f's_cmp_eq_u32 s{sB}, 3\n s_cbranch_scc0 L_B_NOT\n s_lshr_b32 s{sT+1}, s2, 3\n s_lshl_b32 s{sT+1}, s{sT+1}, 14\n s_and_b32 s{sT+2}, s2, 1\n s_lshl_b32 s{sT+2}, s{sT+2}, 9\n s_add_u32 s{sT+1}, s{sT+1}, s{sT+2}')
        E('v_lshrrev_b32 v2, 2, v0\n v_lshlrev_b32 v2, 10, v2\n v_and_b32 v3, 3, v0\n v_lshl_add_u32 v2, v3, 7, v2')
        touch(sWOB,sT+1,1,2,3); touch(sWOA,sT+1,1,2,4)
    LBL('L_B_NOT')
C('---- window attention, head 4hg+b, two query tiles')
E(f's_lshl_b32 s{sT+8}, s{sHg}, 2\n s_add_u32 s{sT+8}, s{sT+8}, s{sB}\n s_lshl_b32 s{sT+8}, s{sT+8}, 6\n s_lshl_b32 s{sT+9}, s{sPb}, 1\n s_sub_i32 s{sT+9}, s{sT+9}, 8')
def btile(j): E(f's_add_i32 s{sT}, s{sT+9}, {j}\n s_max_i32 s{sT}, s{sT}, 0\n s_add_u32 s{sT}, s{sT}, s{sT+8}\n s_lshl_b32 s{sT}, s{sT}, 11\n s_add_u32 s{sT}, s{sT}, {hex(WS_KVB)}')
def bload(j):
    k=BK+4*(j%3); v=BV+8*(j%3)
    btile(j)
    E(f'buffer_load_dwordx4 {vr(k,4)}, v160, {sr(sWS)}, s{sT} offen sc1\n s_mov_b64 exec, {sr(sVM,2)}')
    E(f'buffer_load_dwordx4 {vr(v,4)}, v161, {sr(sWS)}, s{sT} offen offset:1024 sc1\n buffer_load_dwordx4 {vr(v+4,4)}, v161, {sr(sWS)}, s{sT} offen offset:1536 sc1\n s_mov_b64 exec, -1')
bload(0); bload(1)
E(f's_setprio {OPT.get("bat","1")}')
for j in (2,6):
    E(f's_add_i32 s{sT}, s{sT+9}, {j}\n s_max_i32 s{sT}, s{sT}, 0\n s_add_i32 s{sT+1}, s{sT+9}, 6\n s_min_i32 s{sT}, s{sT}, s{sT+1}\n s_cmp_lt_i32 s{sT}, 0')
    sk=uid('tk'); E(f's_cbranch_scc1 {sk}\n s_add_u32 s{sT}, s{sT}, s{sT+8}\n s_lshl_b32 s{sT}, s{sT}, 11\n s_add_u32 s{sT}, s{sT}, {hex(WS_KVB)}')
    E(f'buffer_load_dword v3, v163, {sr(sWS)}, s{sT} offen sc1'); LBL(sk)
E('s_waitcnt lgkmcnt(0)')
for j in range(10):
    k=BK+4*(j%3); v=BV+8*(j%3)
    if j==3: wotouch()
    if j==int(OPT.get('bup','5')): E('s_setprio 3')
    if j==7: E(f'buffer_load_dwordx4 v[12:15], v166, {sr(sWS)}, 0 offen sc1')
    if j+2<10: bload(j+2)
    E(f's_waitcnt vmcnt({3*min(2,9-j)})')
    sk=uid('bskip')
    if j<8: E(f's_cmp_lt_i32 s{sT+9}, {-j}\n s_cbranch_scc1 {sk}')
    qs=[q for q in (0,1) if 0<=j-q<=8]
    for q in qs: mfma(BS+16*q,k,BQ+4*q,{0:MU,8:MD}.get(j-q,'0'))
    E('s_nop 10' if len(qs)==2 else 's_nop 11')
    for q in qs:
        S=BS+16*q; O=BO+16*q
        for r in range(10): vexp(S+r)
        smf(O,v,S,BIDX)
        for r in range(10,16): vexp(S+r)
        E('s_nop 1'); smf(O,v+4,S+8,BIDX)
    if j<8: LBL(sk)
sLoc=sT+11
E(f's_add_u32 s{sT+10}, s{sT+10}, {hex(WS_OB)}\n s_mov_b32 s{sLoc}, 0')
C('the eight WGs of this position block: marks in place ?  all on this die ?')
E(f's_mov_b32 s{sCnt}, {SPIN_LIMIT}\n s_branch L_B_PP1')
LBL('L_B_PP')
E(f'buffer_load_dwordx4 v[12:15], v166, {sr(sWS)}, 0 offen sc1\n s_waitcnt vmcnt(0)')
LBL('L_B_PP1')
for i in range(4): E(f'v_subrev_u32 v{12+i}, s{sTag}, v{12+i}')
E(f'v_or3_b32 v2, v12, v13, v14\n v_or_b32 v2, v2, v15\n v_cmp_lt_u32 vcc, 15, v2\n s_cbranch_vccz L_B_PPD\n s_sub_u32 s{sCnt}, s{sCnt}, 1\n s_cbranch_scc1 L_B_PPD\n s_sleep 3\n s_branch L_B_PP')
LBL('L_B_PPD')
if OPT.get('loc','1')=='1':
    E(f'v_cmp_ne_u32 vcc, s{sXcc}, v12\n s_cbranch_vccnz L_B_NLOC\n s_mov_b32 s{sLoc}, 1')
    lds_add(C_LOC,1,vZ,2)
    if OPT.get('probe'):
        E('s_branch L_B_PRB')
        LBL('L_B_NLOC')
        for i in range(8): E('s_sleep 127')
        LBL('L_B_PRB')
    else: LBL('L_B_NLOC')

for q in range(2):
    fb=f'L_FB_B{q}'; bk=f'L_FB_B{q}_BACK'
    finalize(BO+16*q,4,2,fb,bk,61+q)
    E(f's_cmp_eq_u32 s{sLoc}, 0\n s_cbranch_scc1 L_B_FAR{q}\n buffer_store_dwordx4 v[4:7], v160, {sr(sWS)}, s{sT+10} offen\n s_branch L_B_ST{q}')
    LBL(f'L_B_FAR{q}')
    E(f'buffer_store_dwordx4 v[4:7], v160, {sr(sWS)}, s{sT+10} offen sc1')
    LBL(f'L_B_ST{q}')
    if q==0: E(f's_add_u32 s{sT+10}, s{sT+10}, 32768\n s_nop 0')
    def setup(q=q):
        E(f's_add_i32 s{sT+2}, s{sT+9}, {q}\n s_cmp_ge_i32 s{sT+2}, 0\n s_cselect_b32 s{sT+4}, 1, 0\n s_max_i32 s{sT+2}, s{sT+2}, 0')
        E(f's_add_i32 s{sT+3}, s{sT+9}, {q+9}\n s_sub_u32 s{sT+3}, s{sT+3}, s{sT+2}\n s_add_u32 s{sT+2}, s{sT+2}, s{sT+8}\n s_lshl_b32 s{sT+2}, s{sT+2}, 11\n s_add_u32 s{sT+2}, s{sT+2}, {hex(WS_KVB)}')
    fallback(fb,bk,BQ+4*q,BO+16*q,BS,BK,BV,BIDX,3,160,161,None,setup,MU,MD)
C('---- output projection: wave (t=b&1, kh=b>>1): both 32-column tiles over heads 16kh..16kh+15 ; slot 0 = tile kh')
PA_=48; PW=80; PO=96; PB_=16
stamp('B',7,'oB published'); echo_mark('ob')
E(f's_setprio {OPT.get("bpr2","3")}')
lds_spin(C_MID,None,8,vZ,2,sleep=6)
def wodma(sr_):
    E(f's_lshl_b32 s{sT}, s{sB}, 14\n s_lshl_b32 s{sT+1}, s{sB}, 17')
    for n in range(16): E(f's_add_u32 m0, s{sT}, {L_WO+1024*n}\n s_add_u32 s{sT+2}, s{sT+1}, {8192*n}\n buffer_load_dwordx4 v10, {sr(sr_)}, s{sT+2} offen lds')
def oloads(g0):
    for s in range(4*g0,16):
        if s%4==0: E(f's_add_u32 s{sT}, s{sOb}, {1024*s}')
        E(f'buffer_load_dwordx4 {vr(PO+4*s,4)}, v160, {sr(sWS)}, s{sT} offen offset:{1024*(s%4)} sc1')
wodma(sWOB)
oloads(0)
E('s_waitcnt vmcnt(16)')
lds_add(C_WO,1,vZ,2)
lds_spin(C_WO,None,4,vZ,2,sleep=2)
stamp('B',8,'woB landed')
E('s_branch L_B_GEMM1')
LBL('L_B_GEMM')
oloads(0)
LBL('L_B_GEMM1')
def wread(s):
    f=PW+8*(s&1)
    for u,va in ((0,11),(1,9)): E(f'ds_read_b64_tr_b16 {vr(f+4*u,2)}, v{va} offset:{s*2048}\n ds_read_b64_tr_b16 {vr(f+4*u+2,2)}, v{va} offset:{s*2048+1024}')
wread(0)
E(f's_mov_b32 s{sCnt}, {SPIN_LIMIT}')
for g in range(4):
    LBL(f'L_B_G{g}')
    E(f's_waitcnt vmcnt({12-4*g})')
    p=PO+16*g
    E(f'v_max_u32 v2, v{p}, v{p+4}\n v_max3_u32 v2, v{p+8}, v{p+12}, v2\n v_cmp_eq_u32 vcc, -1, v2\n s_cbranch_vccnz L_B_R{g}')
    LBL(f'L_B_K{g}')
    if DIAG and g==3:
        E(f's_cmp_eq_u32 s{sPass}, 0\n s_cbranch_scc1 L_B_NST'); stamp('B',10,'oA all seen'); LBL('L_B_NST')
    for s in range(4*g,4*g+4):
        if s<15: wread(s+1)
        E(f's_waitcnt lgkmcnt({4 if s<15 else 0})')
        f=PW+8*(s&1)
        if s==0:
            E(f's_cmp_eq_u32 s{sPass}, 0\n s_cbranch_scc0 L_B_M1')
            for u in range(2): mfma(PA_+16*u,f+4*u,PO+4*s,'0')
            E('s_branch L_B_M2'); LBL('L_B_M1')
            for u in range(2): mfma(PA_+16*u,f+4*u,PO+4*s)
            LBL('L_B_M2')
        else:
            for u in range(2): mfma(PA_+16*u,f+4*u,PO+4*s)
    save=L; L=[]
    LBL(f'L_B_R{g}')
    E(f's_sub_u32 s{sCnt}, s{sCnt}, 1\n s_cbranch_scc1 L_B_K{g}\n s_cmp_eq_u32 s{sPass}, 0\n s_cbranch_scc0 L_B_RR{g}\n s_sleep 16')
    LBL(f'L_B_RR{g}')
    E('s_waitcnt vmcnt(0)')
    oloads(g)
    E(f's_branch L_B_G{g}')
    RETRY.extend(L); L=save
E(f's_cmp_eq_u32 s{sPass}, 0\n s_cbranch_scc0 L_B_FIN')
lds_add(C_WD,1,vZ,2)
E(f's_add_u32 s{sOb}, s{sOb}, {hex((WS_OA-WS_OB)&0xffffffff)}\n s_mov_b32 s{sPass}, 1')
lds_spin(C_WD,None,4,vZ,2,sleep=2)
wodma(sWOA)
E('s_waitcnt vmcnt(0)')
stamp('B',9,'out-proj B done, woA in'); echo_mark('b9')
E('s_barrier'); echo_mark('aend'); E('s_branch L_B_GEMM')
LBL('L_B_FIN')
E('s_nop 9')
for q in range(4): E(f'ds_write_b128 v164, {vr(PA_+16+4*q,4)} offset:{1024*q}')
E('s_waitcnt lgkmcnt(0)\n s_barrier')
for q in range(4): E(f'ds_read_b128 {vr(PB_+4*q,4)}, v165 offset:{1024*q}')
for q in range(4):
    E(f's_waitcnt lgkmcnt({3-q})')
    for r in range(4): E(f'v_add_f32 v{PA_+4*q+r}, v{PA_+4*q+r}, v{PB_+4*q+r}')
for r in range(8): cvt(PA_+r,PA_+2*r,PA_+2*r+1)
E('s_nop 1')
for gq in range(2): E(f'v_permlane32_swap_b32 v{PA_+4*gq}, v{PA_+4*gq+2}\n v_permlane32_swap_b32 v{PA_+4*gq+1}, v{PA_+4*gq+3}')
for gq in range(2): E(f'buffer_store_dwordx4 {vr(PA_+4*gq,4)}, v167, {sr(sOUT)}, s{sOut} offen offset:{32*gq} '+OPT.get('ost','').replace('+',' '))
if DIAG: E('s_waitcnt vmcnt(0)')
stamp('B',11,'out stored'); echo_end()
stamp_flush(12)
E('s_endpgm')
L.extend(RETRY)

LBL('L_A')
AIDX=8; AKA=9; AVA=10; AQ0=12; AQ1=16; AK=20; AV=28; SA=44; SB=60; OA=76; OB=92; XA=108; WA=160; AF=112
L_PG=L_PART+4096
sStr=sT+10; sRing=sT+7
E(f'v_and_b32 v5, 15, v0\n v_lshlrev_b32 v6, 4, v0\n s_and_b32 s{sT+9}, s{sHg}, 3\n s_cmp_lt_u32 s{sWave}, 4\n s_cbranch_scc0 L_A_KV')
C('---- waves 0..3 : wave m streams 64 columns of matrix m (wq | B q | B k | B v) through its own 8 x 2KB ring')
E(f's_cmp_eq_u32 s{sWave}, 0\n s_cselect_b32 s{sWB}, s6, s16\n s_cselect_b32 s{sWB+1}, s7, s17\n s_mov_b32 s{sWB+2}, {512*3072}\n s_cselect_b32 s{sWB+2}, {512*1024}, s{sWB+2}\n s_mov_b32 s{sWB+3}, 0x20000')
E(f's_movk_i32 s{sStr}, 3072\n s_cselect_b32 s{sStr}, 0x400, s{sStr}\n s_max_u32 s{sT+1}, s{sWave}, 1\n s_sub_u32 s{sT+1}, s{sT+1}, 1\n s_lshl_b32 s{sT+1}, s{sT+1}, 10\n s_lshl_b32 s{sT+2}, s{sHg}, 7\n s_add_u32 s{sT+1}, s{sT+1}, s{sT+2}')
dma128_voff(162,2,3,f's{sStr}',f's{sT+1}')
mkrot()
E(f's_lshl_b32 s{sStr}, s{sStr}, 3\n s_lshl_b32 s{sRing}, s{sWave}, 14')
E(f's_sub_u32 s{sT+1}, s{sStr}, 1024\n v_add_u32 v163, s{sT+1}, v162\n s_lshl_b32 s{sStr}, s{sStr}, 1')
def wdma_parts(st):
    p0=f's_add_u32 m0, s{sRing}, {(st%8)*2048}\n'
    if st%4==0: p0+=f's_add_u32 s{sT+3}, s{sRot}, {st//4}\n s_and_b32 s{sT+3}, s{sT+3}, 7\n s_lshl_b32 s{sT+3}, s{sT+3}, 2\n s_mul_i32 s{sT+3}, s{sT+3}, s{sStr}'
    else: p0+=f's_add_u32 s{sT+3}, s{sT+3}, s{sStr}'
    VQ.extend([f'w{st}']*2)
    return [p0, f'buffer_load_dwordx4 v162, {sr(sWB)}, s{sT+3} offen lds', f'buffer_load_dwordx4 v163, {sr(sWB)}, s{sT+3} offen offset:1024 lds']
def wdma(st):
    for p in wdma_parts(st): E(p)
if OPT.get('p0','2')!='0': E(f's_cmp_eq_u32 s{sWave}, 0\n s_cbranch_scc0 L_A_NP0\n s_setprio {OPT.get("p0","3")}\nL_A_NP0:')
NW0=int(OPT.get('nw0','8'))
VQ.clear()
for st in range(NW0): wdma(st)
E('s_branch L_A_NOKV')
LBL('L_A_KV')
E(f's_setprio 3\n s_load_dword s{sTag}, s[26:27], {WS_EPOCH}')
C('---- kvA: this WG makes 16 positions (hg&3) of K (hg<4) or V, and their gate ; wave 4+u sums k in [128u,128u+128)')
E(f's_cmp_lt_u32 s{sHg}, 4\n s_cselect_b32 s{sWKV}, s8, s10\n s_cselect_b32 s{sWKV+1}, s9, s11\n s_mov_b32 s{sWKV+2}, 16384\n s_mov_b32 s{sWKV+3}, 0x20000\n s_and_b32 s{sT+3}, s{sWave}, 3')
E(f's_lshl_b32 s{sT+1}, s{sPb}, 16\n s_lshl_b32 s{sT+2}, s{sT+9}, 14\n s_add_u32 s{sT+1}, s{sT+1}, s{sT+2}\n s_lshl_b32 s{sT+2}, s{sT+3}, 8\n s_add_u32 s{sT+1}, s{sT+1}, s{sT+2}')
E('v_lshlrev_b32 v3, 10, v5\n v_and_b32 v4, 48, v0\n v_add_u32 v3, v3, v4')
for s_ in range(4): E(f'buffer_load_dwordx4 {vr(116+4*s_,4)}, v3, {sr(sX)}, s{sT+1} offen offset:{64*s_}')
if MAP=='c' and OPT.get('wkt','1')=='1':
    E(f's_cmp_eq_u32 s{sWave}, 4\n s_cbranch_scc0 L_A_NT2\n s_lshr_b32 s{sT+4}, s2, 3\n s_lshl_b32 s{sT+4}, s{sT+4}, 9\n v_lshlrev_b32 v2, 7, v0\n s_mov_b64 exec, 15\n buffer_load_dword v167, v2, {sr(sWKV)}, s{sT+4} offen\n s_mov_b64 exec, -1')
    LBL('L_A_NT2')
srd(sG,20,1024)
for s_ in range(4): E(f'buffer_load_dwordx4 {vr(132+4*s_,4)}, v4, {sr(sG)}, s{sT+2} offen offset:{64*s_}')
E(f's_lshl_b32 s{sT}, s{sT+3}, 12\n s_add_u32 m0, s{sT}, {L_ST}\n s_nop 0')
for i in range(4): E(f'buffer_load_dwordx4 v6, {sr(sWKV)}, s{sT} offen offset:{1024*i} lds')
LBL('L_A_NOKV')
C('---- address of this wave\'s o slot, constants')
sOA=sT+8
E(f's_and_b32 s{sOA}, s{sWave}, 1\n s_lshl_b32 s{sT+1}, s{sPb}, 1\n s_add_u32 s{sOA}, s{sOA}, s{sT+1}\n s_lshl_b32 s{sOA}, s{sOA}, 5')
E(f's_lshl_b32 s{sT+1}, s{sHg}, 2\n s_add_u32 s{sOA}, s{sOA}, s{sT+1}\n s_and_b32 s{sT+1}, s{sWave}, 2\n s_add_u32 s{sOA}, s{sOA}, s{sT+1}\n s_lshr_b32 s{sT+1}, s{sWave}, 2\n s_add_u32 s{sOA}, s{sOA}, s{sT+1}\n s_lshl_b32 s{sOA}, s{sOA}, 10\n s_add_u32 s{sOA}, s{sOA}, {hex(WS_OA)}')
E(f'v_mov_b32 v{vZ}, {L_ST}\n v_lshlrev_b32 v11, 2, v0')
traddr128(WA,2,3,3,'0'); E(f's_lshl_b32 s{sT+1}, s{sWave}, 14\n v_add_u32 v{WA}, s{sT+1}, v{WA}\n v_xor_b32 v{WA+1}, 64, v{WA}')
E(f'v_and_b32 v2, 31, v0\n v_bfe_u32 v3, v0, 1, 3\n v_lshrrev_b32 v7, 5, v0\n v_xor_b32 v3, v3, v7\n v_lshlrev_b32 v{XA}, 7, v2\n v_lshl_add_u32 v{XA}, v3, 4, v{XA}\n v_add_u32 v{XA}, 0x10000, v{XA}')
for s_ in range(1,4): E(f'v_xor_b32 v{XA+s_}, {s_<<5}, v{XA}')
for r in range(32): E(f'v_mov_b32 v{OA+r}, 0')
set_vpad(list(range(AV,AV+16)),2)
E(f'v_mov_b32 v{AIDX}, 0xdddddddd')
E(f's_lshr_b32 s{sT+1}, s{sWave}, 2\n s_lshl_b32 s{sT+1}, s{sT+1}, 11\n v_add_u32 v{AKA}, s{sT+1}, v6')
E(f'v_lshlrev_b32 v7, 8, v7\n v_lshl_add_u32 v7, v5, 4, v7\n v_add_u32 v{AVA}, s{sT+1}, v7')
E(f's_lshl_b32 s{sT+6}, s{sHg}, 5\n s_add_u32 s{sT+6}, s{sT+6}, s{sPb}\n s_lshl_b32 s{sT+6}, s{sT+6}, 7\n s_lshl_b32 s{sT+1}, s{sWave}, 2\n s_add_u32 s{sT+6}, s{sT+6}, s{sT+1}\n s_add_u32 s{sT+6}, s{sT+6}, {hex(WS_FKVB)}')
E(f's_cmp_lt_u32 s{sWave}, 4\n s_cbranch_scc1 L_A_GQ\n s_waitcnt lgkmcnt(0)')
mktag()
E(f'v_lshrrev_b32 v4, 4, v0\n v_lshlrev_b32 v4, 8, v4\n v_lshl_add_u32 v4, v5, 3, v4\n s_add_u32 s{sT}, s{sT}, {L_ST}\n v_add_u32 v4, s{sT}, v4')
E(f's_lshl_b32 s{sT+1}, s{sT+3}, 10\n s_add_u32 s{sT+1}, s{sT+1}, {L_PART}\n v_add_u32 v2, s{sT+1}, v6\n s_lshl_b32 s{sT+1}, s{sT+3}, 8\n s_add_u32 s{sT+1}, s{sT+1}, {L_PG}\n v_add_u32 v3, s{sT+1}, v11')
E('s_waitcnt vmcnt(0)')
for s_ in range(4): E(f'ds_read_b64_tr_b16 {vr(44+4*s_,2)}, v4 offset:{1024*s_}\n ds_read_b64_tr_b16 {vr(46+4*s_,2)}, v4 offset:{1024*s_+128}')
for s_ in range(4): E(f'v_mfma_f32_16x16x32_bf16 v[64:67], {vr(132+4*s_,4)}, {vr(116+4*s_,4)}, {"0" if s_==0 else "v[64:67]"}')
E(f's_cmp_lt_u32 s{sHg}, 4\n s_waitcnt lgkmcnt(0)\n s_cbranch_scc0 L_A_VJOB')
for s_ in range(4): E(f'v_mfma_f32_16x16x32_bf16 v[60:63], {vr(44+4*s_,4)}, {vr(116+4*s_,4)}, {"0" if s_==0 else "v[60:63]"}')
E('s_branch L_A_KVJ')
LBL('L_A_VJOB')
for s_ in range(4): E(f'v_mfma_f32_16x16x32_bf16 v[60:63], {vr(116+4*s_,4)}, {vr(44+4*s_,4)}, {"0" if s_==0 else "v[60:63]"}')
LBL('L_A_KVJ')
E('s_nop 0\n ds_write_b32 v3, v64\n s_nop 5\n ds_write_b128 v2, v[60:63]')
stamp('A',2,'kvA partial')
E('s_waitcnt lgkmcnt(0)')
tag_set(T_PT,sT+3,2)
E(f's_cmp_eq_u32 s{sWave}, 7\n s_cbranch_scc0 L_A_BS')
C('---- wave 7: reduce the four partial tiles, store, flag')
tag_wait(T_PT,4,2)
E(f'v_add_u32 v3, {L_PART}, v6\n v_add_u32 v4, {L_PG}, v11')
for i in range(4): E(f'ds_read_b128 {vr(116+4*i,4)}, v3 offset:{1024*i}')
for i in range(2): E(f'ds_read2st64_b32 {vr(148+2*i,2)}, v4 offset0:{2*i} offset1:{2*i+1}')
E(f's_lshl_b32 s{sT+3}, s{sPb}, 1\n s_lshr_b32 s{sT+4}, s{sT+9}, 1\n s_add_u32 s{sT+3}, s{sT+3}, s{sT+4}\n s_lshl_b32 s{sT+3}, s{sT+3}, 11\n s_add_u32 s{sT+3}, s{sT+3}, {hex(WS_KVA)}\n s_and_b32 s{sT+4}, s{sT+9}, 1')
E(f's_cmp_lt_u32 s{sHg}, 4\n s_cselect_b32 s{sT+5}, 9, 3\n s_cselect_b32 s{sT+7}, 3, 8\n s_cselect_b32 s{sT+1}, 8, 9\n s_cselect_b32 s{sT}, 0, 0x400')
E(f's_lshl_b32 s{sT+4}, s{sT+4}, s{sT+1}\n s_add_u32 s{sT+3}, s{sT+3}, s{sT+4}\n s_add_u32 s{sT+3}, s{sT+3}, s{sT}')
E(f'v_bfe_u32 v3, v0, 4, 1\n v_lshrrev_b32 v4, 5, v0\n v_lshlrev_b32 v5, 4, v5\n v_lshl_add_u32 v5, v3, s{sT+5}, v5\n v_lshl_add_u32 v5, v4, s{sT+7}, v5')
FPLS=int(OPT.get('fpl','2'))
E(f's_lshl_b32 s{sT+7}, s{sPb}, 3\n s_add_u32 s{sT+7}, s{sT+7}, s{sHg}\n s_and_b32 s{sT+1}, s{sT+7}, {(1<<FPLS)-1}\n s_lshr_b32 s{sT+7}, s{sT+7}, {FPLS}\n s_lshl_b32 s{sT+7}, s{sT+7}, 7\n s_lshl_b32 s{sT+1}, s{sT+1}, 2\n s_add_u32 s{sT+7}, s{sT+7}, s{sT+1}\n s_add_u32 s{sT+7}, s{sT+7}, {hex(WS_FKVA)}')
E('s_waitcnt lgkmcnt(2)')
for st_ in (8,4):
    for r in range(st_): E(f'v_add_f32 v{116+r}, v{116+r}, v{116+st_+r}')
cvt(116,116,117); cvt(117,118,119)
E(f'buffer_store_dwordx2 v[116:117], v5, {sr(sWS)}, s{sT+3} offen sc1')
E(f's_cmp_lt_u32 s{sHg}, 4\n s_waitcnt lgkmcnt(0)\n s_cbranch_scc0 L_A_SF')
for st_ in (2,1):
    for r in range(st_): E(f'v_add_f32 v{148+r}, v{148+r}, v{148+st_+r}')
E(f's_mov_b32 s{sT}, {hex(f2u(-math.log2(math.e)))}\n v_mul_f32 v148, s{sT}, v148\n v_exp_f32 v148, v148')
E(f's_lshl_b32 s{sT}, s{sPb}, 2\n s_add_u32 s{sT}, s{sT}, s{sT+9}\n v_add_f32 v148, 1.0, v148\n v_rcp_f32 v148, v148\n s_lshl_b32 s{sT}, s{sT}, 6\n s_add_u32 s{sT}, s{sT}, {hex(WS_G)}')
E(f's_mov_b64 exec, 0xffff\n buffer_store_dword v148, v11, {sr(sWS)}, s{sT} offen sc1\n s_mov_b64 exec, -1')
LBL('L_A_SF')
E('s_waitcnt vmcnt(0)')
flag_store(sT+7,2)
stamp('A',3,'kvA flag sent')
LBL('L_A_BS')
E(f's_cmp_eq_u32 s{sWave}, 6\n s_cbranch_scc0 L_A_B8')
C('---- wave 6: wait for every K/V piece, fetch this WG\'s share into L2, tell the projection waves')
E(f'v_lshlrev_b32 v16, 7, v0\n v_lshrrev_b32 v17, {FPLS-2}, v0\n v_lshlrev_b32 v17, 7, v17\n v_and_b32 v18, {(1<<(FPLS-2))-1}, v0\n v_lshl_add_u32 v17, v18, 4, v17\n v_add_u32 v17, {hex(WS_FKVA)}, v17')
E(f'v_mov_b32 v2, s{sTag}\n ds_write_b32 v{vZ}, v2 offset:{T_TAG-L_ST}')
tag_wait(T_PT,4,2)
tag_wait(T_PL,1,2,sleep=2)
C('lanes whose four flags are in drop out of the next look')
E(f's_mov_b32 s{sCnt}, {SPIN_LIMIT}')
LBL('L_A_PL')
E(f'buffer_load_dwordx4 v[12:15], v17, {sr(sWS)}, 0 offen sc1\n s_waitcnt vmcnt(0)')
for i in range(4): E(f'v_xor_b32 v{12+i}, s{sTag}, v{12+i}')
E(f'v_or3_b32 v12, v12, v13, v14\n v_or_b32 v12, v12, v15\n v_cmp_ne_u32 vcc, 0, v12\n s_cbranch_vccz L_A_PLD\n s_sub_u32 s{sCnt}, s{sCnt}, 1\n s_cbranch_scc1 L_A_PLD\n s_mov_b64 exec, vcc\n s_sleep {OPT.get("psl","16")}\n s_branch L_A_PL')
LBL('L_A_PLD')
E('s_mov_b64 exec, -1')
E(f's_lshr_b32 s{sT+5}, s2, 3\n s_lshl_b32 s{sT+5}, s{sT+5}, 12\n s_add_u32 s{sT+5}, s{sT+5}, {hex(WS_KVA)}')
E(f's_mov_b32 exec_hi, 0\n buffer_load_dword v117, v16, {sr(sWS)}, s{sT+5} offen sc1\n s_mov_b64 exec, -1')
tag_set(T_FL,None,2)
stamp('A',3,'kvA flag sent')
E(f's_lshr_b32 s{sT+5}, s2, 3\n s_and_b32 s{sT+5}, s{sT+5}, 3\n s_lshl_b32 s{sT+5}, s{sT+5}, 14\n s_add_u32 s{sT+5}, s{sT+5}, {hex(WS_KVA)}')
for q in range(4):
    E(f's_mov_b32 m0, {L_ST+4096*q}\n s_add_u32 s{sT+4}, s{sT+5}, {4096*q}')
    for i in range(4): E(f'buffer_load_dwordx4 v6, {sr(sWS)}, s{sT+4} offen offset:{1024*i} sc1 lds')
E('s_waitcnt vmcnt(0)')
tag_set(T_K0,None,2)
stamp('A',7,'G1')
E(f's_cmp_eq_u32 s2, 0\n s_cbranch_scc0 L_A_B8\n s_mov_b32 s{sT}, 0')
flag_store(sT,2)
E('s_branch L_A_B8')
LBL('L_A_GQ')
PAC=[44,60,128,144]; PFR=[12,112,92]
def areads_l(st):
    f=PFR[st%3]; so=(st%8)*2048; o=[]
    for i in range(2): o+= [f'ds_read_b64_tr_b16 {vr(f+4*i,2)}, v{WA+i} offset:{so}', f'ds_read_b64_tr_b16 {vr(f+4*i+2,2)}, v{WA+i} offset:{so+512}']
    for t in range(2): o.append(f'ds_read_b128 {vr(f+8+4*t,4)}, v{XA+st%4} offset:{(st//4)*8192+4096*t}')
    return o
def areads(st):
    for p in areads_l(st): E(p)
def kv_parts(p):
    VQ.extend(['kv']*2)
    return [f's_add_u32 m0, s{sRing}, {p*2048}\n s_add_u32 s{sT+4}, s{sT+5}, {p*2048}']+[f'buffer_load_dwordx4 v6, {sr(sWS)}, s{sT+4} offen offset:{1024*n} sc1 lds' for n in range(2)]
def kvpiece(p):
    for q in kv_parts(p): E(q)
for st in range(NW0,8): wdma(st)
E(f's_sub_u32 s{sT+4}, s{sWave}, 1\n s_cmp_eq_u32 s{sWave}, 1\n s_cselect_b32 s{sT+4}, 3, s{sT+4}\n s_lshr_b32 s{sT+5}, s2, 3\n s_add_u32 s{sT+5}, s{sT+5}, s{sT+4}\n s_and_b32 s{sT+5}, s{sT+5}, 3\n s_lshl_b32 s{sT+5}, s{sT+5}, 14\n s_add_u32 s{sT+5}, s{sT+5}, {hex(WS_KVA)}')
tag_wait(T_X0,4,2) if XD else tag_wait(T_X,1,2)
stamp('A',7,'G1')
vwait('w0'); areads(0); vwait('w1'); areads(1)
VQ0=list(VQ)
PLK=int(OPT.get('plk','15'))
E(f's_cmp_eq_u32 s{sWave}, 3\n s_cbranch_scc1 L_A_GV')
def gstep(var,st,kv):
    f=PFR[st%3]
    def mm(i,t):
        d=PAC[2*i+t]; c='0' if st==0 else None
        if var==0: mfma(d,f+4*i,f+8+4*t,c)
        else: mfma(d,f+8+4*t,f+4*i,c)
    vwait(f'w{st+2}',f' lgkmcnt({6 if st<31 else 0})')
    rd=areads_l(st+2) if st+2<32 else []
    dm=wdma_parts(st+8) if st+8<32 else (kv_parts(st%8) if kv else [])
    gaps=[rd[0:2]+dm[0:1], rd[2:4]+dm[1:2], rd[4:6], dm[2:3]]
    if st>=30: gaps=[[f'v_mov_b32 v{OB+8*(st-30)+2*q+r}, 0' for r in range(2)]+gaps[q] for q in range(4)]
    for q,(i,t) in enumerate(((0,0),(0,1),(1,0),(1,1)) if st<31 else ((1,0),(1,1),(0,0),(0,1))):
        mm(i,t)
        for p in gaps[q]: E(p)
for var in (0,1):
    if var: LBL('L_A_GV')
    VQ[:]=VQ0
    for st in range(24):
        if OPT.get('hold') and st==0:
            E(f's_cmp_eq_u32 s{sWave}, 0\n s_cbranch_scc1 L_A_NH{var}'); tag_wait(T_H,1,2,sleep=2); LBL(f'L_A_NH{var}')
        if OPT.get('hold') and var==0 and st==int(OPT.get('hold')):
            E(f's_cmp_eq_u32 s{sWave}, 0\n s_cbranch_scc0 L_A_NH2'); tag_set(T_H,None,2); E('s_waitcnt lgkmcnt(0)'); LBL('L_A_NH2')
        if st==2: E('s_waitcnt lgkmcnt(0)'); tag_wait(T_X,4,2)
        if st==14: E('s_waitcnt lgkmcnt(0)'); tag_wait(T_X+16,4,2)
        if st==PLK and var==1: tag_set(T_PL,None,2); E('s_waitcnt lgkmcnt(0)')
        gstep(var,st,False)
    stamp('A',2,'step 24'); cstamp('A',10,'s24')
    if var==0: E(f's_cmp_eq_u32 s{sWave}, 0\n s_cbranch_scc1 L_A_G0')
    tag_wait(T_FL,1,2,once=f'L_A_GK{var}')
    if var==0: LBL('L_A_G0')
    V1=list(VQ)
    for st in range(24,32): gstep(var,st,False)
    if var==0: E(f's_cmp_eq_u32 s{sWave}, 0\n s_cbranch_scc1 L_A_GE0')
    tag_wait(T_FL,1,2)
    for p in range(8): kvpiece(p)
    E(f's_branch L_A_GE{var}')
    LBL(f'L_A_GK{var}')
    VQ[:]=V1
    for st in range(24,32): gstep(var,st,True)
    LBL(f'L_A_GE{var}')
    stamp('A',1,'proj loop done'); cstamp('A',11,'pl')
    E(f's_lshl_b32 s{sT+4}, s{sHg}, 8\n s_lshl_b32 s{sT+5}, s{sPb}, 1\n s_add_u32 s{sT+4}, s{sT+4}, s{sT+5}\n s_lshl_b32 s{sT+4}, s{sT+4}, 11\n s_add_u32 s{sT+4}, s{sT+4}, {hex(WS_KVB)}')
    if var==0:
        E(f's_cmp_eq_u32 s{sWave}, 2\n s_cbranch_scc1 L_A_EK')
        C('q (A / B): scale, pack, hand over through LDS')
        E(f's_cmp_eq_u32 s{sWave}, 0\n s_cbranch_scc1 L_A_Q0')
        tag_wait(T_G,1,2)
        LBL('L_A_Q0')
        E(f's_lshl_b32 s{sT+1}, s{sWave}, 13\n s_add_u32 s{sT+1}, s{sT+1}, {L_QA}\n v_add_u32 v3, s{sT+1}, v6\n s_mov_b32 s{sT+2}, {hex(CSCALE)}\n s_mov_b32 s{sT+3}, {hex(CSCALE)}\n s_lshl_b32 s{sT+1}, s{sWave}, 2\n s_add_u32 s{sT+1}, s{sT+1}, {T_Q1}\n v_mov_b32 v4, s{sT+1}\n v_mov_b32 v5, 1')
        for i in (1,0):
            for t in range(2):
                d=PAC[2*i+t]
                for r in range(0,16,2): E(f'v_pk_mul_f32 {vr(d+r,2)}, {vr(d+r,2)}, {sr(sT+2,2)}')
                for r in range(8): cvt(d+r,d+2*r,d+2*r+1)
                for hh in range(2): E(f'ds_write_b128 v3, {vr(d+4*hh,4)} offset:{(2*i+hh)*2048+1024*t}')
            if i==1: E(f's_mov_b64 exec, 1\n ds_write_b32 v4, v5\n s_mov_b64 exec, -1')
        E('s_waitcnt vmcnt(0) lgkmcnt(0)')
        tag_set(T_G,sWave,2)
        E('s_branch L_A_B8')
        LBL('L_A_EK')
        E('s_waitcnt vmcnt(0)')
        tag_set(T_G,sWave,2)
        for i in range(2):
            for t in range(2):
                d=PAC[2*i+t]
                for r in range(8): cvt(d+r,d+2*r,d+2*r+1)
                for hh in range(2): E(f's_add_u32 s{sT+5}, s{sT+4}, {(2*i+hh)*131072}\n buffer_store_dwordx4 {vr(d+4*hh,4)}, v6, {sr(sWS)}, s{sT+5} offen offset:{2048*t} sc1')
        E('s_branch L_A_B8')
    else:
        E('s_waitcnt vmcnt(0)')
        tag_set(T_G,sWave,2)
        E('v_bfe_u32 v3, v0, 4, 1\n v_lshl_add_u32 v3, v3, 17, v7')
        for i in range(2):
            for t in range(2):
                d=PAC[2*i+t]
                for r in range(8): cvt(d+r,d+2*r,d+2*r+1)
                E('s_nop 1')
                for gq in range(2): E(f'v_permlane32_swap_b32 v{d+4*gq}, v{d+4*gq+2}\n v_permlane32_swap_b32 v{d+4*gq+1}, v{d+4*gq+3}')
                E(f's_add_u32 s{sT+5}, s{sT+4}, {i*2*131072}')
                for gq in range(2): E(f'buffer_store_dwordx4 {vr(d+4*gq,4)}, v3, {sr(sWS)}, s{sT+5} offen offset:{2048*t+1024+512*gq} sc1')
LBL('L_A_B8')
E('s_setprio 0')
E(f's_and_b32 s{sT+1}, s{sWave}, 2\n s_lshr_b32 s{sT+2}, s{sWave}, 2\n s_add_u32 s{sT+1}, s{sT+1}, s{sT+2}\n s_lshl_b32 s{sT+1}, s{sT+1}, 11\n s_and_b32 s{sT+2}, s{sWave}, 1\n s_lshl_b32 s{sT+2}, s{sT+2}, 10\n s_add_u32 s{sT+1}, s{sT+1}, s{sT+2}\n s_add_u32 s{sT+1}, s{sT+1}, {L_QA}\n v_add_u32 v2, s{sT+1}, v6\n v_xor_b32 v3, 0x800, v2')
AK0=120; AV0=121; AEX=122; AG=126
E(f'v_add_u32 v{AK0}, {L_ST}, v{AKA}\n v_add_u32 v{AV0}, {L_ST}, v{AVA}')
E(f's_and_b32 s{sT+2}, s{sWave}, 3\n s_mul_i32 s{sT+1}, s{sT+2}, 4608\n s_add_u32 s{sT+1}, s{sT+1}, {L_EX}\n v_add_u32 v{AEX}, s{sT+1}, v6\n v_add_u32 v{AEX+1}, s{sT+1}, v11')
E(f's_lshl_b32 s{sT+2}, s{sT+2}, 2\n s_add_u32 s{sT+2}, s{sT+2}, {C_PR}\n v_mov_b32 v{AEX+2}, s{sT+2}')
E(f's_and_b32 s{sT+1}, s{sWave}, 1\n s_lshl_b32 s{sT+2}, s{sPb}, 1\n s_add_u32 s{sT+1}, s{sT+1}, s{sT+2}\n s_lshl_b32 s{sT+1}, s{sT+1}, 7\n s_add_u32 s{sT+1}, s{sT+1}, {hex(WS_G)}\n v_and_b32 v127, 0x7c, v11')
tag_wait(T_K0,1,4,sleep=int(OPT.get('asl','2')))
E(f'buffer_load_dword v{AG}, v127, {sr(sWS)}, s{sT+1} offen sc1')
tag_get(4)
def kvoff(j):
    return (j%4)*4096+(0 if j<4 else KVPOS[j//4]-(65536 if j>=20 else 0))
def ldk(j): E(f'ds_read_b128 {vr(AK+4*(j&1),4)}, v{AK0 if j<4 else AKA} offset:{kvoff(j)}')
def ldv(j): E(f's_mov_b64 exec, {sr(sVM,2)}\n ds_read_b128 {vr(AV+8*(j&1),4)}, v{AV0 if j<4 else AVA} offset:{kvoff(j)+1024}\n ds_read_b128 {vr(AV+8*(j&1)+4,4)}, v{AV0 if j<4 else AVA} offset:{kvoff(j)+1536}\n s_mov_b64 exec, -1')
ldk(0); ldv(0); ldk(1)
E(f's_bitcmp1_b32 s{sWave}, 1\n s_cbranch_scc0 L_A_WL')
tag_wait(T_Q1,1,4,sleep=int(OPT.get('asl2','1')))
E('s_branch L_A_WD')
LBL('L_A_WL')
tag_wait(T_G,1,4,sleep=int(OPT.get('asl2','1')))
LBL('L_A_WD')
stamp('A',4,'BQ'); cstamp('A',8,'BQ')
E(f'ds_read_b128 {vr(AQ0,4)}, v2\n ds_read_b128 {vr(AQ1,4)}, v3')
if PRIO in ('step','step4'): E('s_setprio 2')
E('s_waitcnt lgkmcnt(0)'); mfma(SA,AK,AQ0,'0')
lds_add(C_QR,1,vZ,2)
E('s_nop 7')
def pair_iter(j,ldk_,ldv_,first=False,last=0,extra=0):
    kc=AK+4*(j&1); kn=AK+4*((j+1)&1); vc=AV+8*(j&1); vp=AV+8*((j+1)&1)
    vexp(SA); vexp(SA+1)
    if not first: smf(OB,vp+4,SB+8,AIDX)
    for r in range(2,5): vexp(SA+r)
    mfma(SB,kc,AQ1,'0')
    for r in range(5,10): vexp(SA+r)
    E(f's_waitcnt lgkmcnt({(1 if last<2 else 0)+extra})')
    vexp(SA+10); smf(OA,vc,SA,AIDX)
    for r in range(11,16): vexp(SA+r)
    vexp(SB); vexp(SB+1); smf(OA,vc+4,SA+8,AIDX)
    if last<2: ldv_()
    for r in range(2,5): vexp(SB+r)
    if last<2:
        E('s_waitcnt lgkmcnt(2)'); mfma(SA,kn,AQ0,'0')
    if last<1: ldk_()
    for r in range(5,11): vexp(SB+r)
    smf(OB,vc,SB,AIDX)
    for r in range(11,16): vexp(SB+r)
def aflag(force,init=False):
    sk=uid('fl')
    E(f's_cmp_eq_u32 s{sT+5}, 0\n s_cbranch_scc0 {sk}')
    if not force: E(f's_getreg_b32 s{sT}, hwreg(HW_REG_IB_STS, 0, 4)\n s_cmp_eq_u32 s{sT}, 0\n s_cbranch_scc0 {sk}')
    E(f's_waitcnt vmcnt(0)\n s_mov_b32 s{sT+5}, 1'); flag_store(sT+6,2); LBL(sk)
if ROLL:
    AKN=120; AVN=121; sC=sT+4
    def rk(j):
        a_=AKA if j<4 else AKN
        return lambda: E(f'ds_read_b128 {vr(AK+4*(j&1),4)}, v{a_} offset:{(j%4)*4096}')
    def rv(j):
        a_=AVA if j<4 else AVN
        return lambda: E(f's_mov_b64 exec, {sr(sVM,2)}\n ds_read_b128 {vr(AV+8*(j&1),4)}, v{a_} offset:{(j%4)*4096+1024}\n ds_read_b128 {vr(AV+8*(j&1)+4,4)}, v{a_} offset:{(j%4)*4096+1536}\n s_mov_b64 exec, -1')
    for r in range(8,16): E(f'v_mov_b32 v{SB+r}, 0')
    E(f'v_add_u32 v{AKN}, 0x8000, v{AKA}\n v_add_u32 v{AVN}, 0x8000, v{AVA}\n v_add_u32 v{AKA}, 0x4000, v{AKA}\n v_add_u32 v{AVA}, 0x4000, v{AVA}\n s_mov_b32 s{sC}, 0\n s_mov_b32 s{sT+5}, 0')
    L.append('.p2align 6')
    LBL('L_A_LOOP')
    pair_iter(0,rk(2),rv(1)); pair_iter(1,rk(3),rv(2))
    E(f's_cmp_gt_u32 s{sC}, 6\n s_cbranch_scc1 L_A_LAST\n s_bitcmp1_b32 0x5f, s{sC}\n s_cbranch_scc1 L_A_RARE')
    LBL('L_A_RBACK')
    pair_iter(2,rk(4),rv(3)); pair_iter(3,rk(5),rv(4))
    E(f's_add_u32 s{sC}, s{sC}, 1\n s_mov_b32 s{sT+1}, 0x4000\n s_cmp_eq_u32 s{sC}, 2\n s_cselect_b32 s{sT+1}, {hex((-49152)&0xffffffff)}, s{sT+1}\n s_cmp_eq_u32 s{sC}, 3\n s_cselect_b32 s{sT+1}, {hex((-65536)&0xffffffff)}, s{sT+1}')
    E(f'v_mov_b32 v{AKA}, v{AKN}\n v_mov_b32 v{AVA}, v{AVN}\n v_add_u32 v{AKN}, s{sT+1}, v{AKN}\n v_add_u32 v{AVN}, s{sT+1}, v{AVN}\n s_branch L_A_LOOP')
    LBL('L_A_RARE')
    E(f's_waitcnt lgkmcnt(0)\n s_cmp_gt_u32 s{sC}, 3\n s_cbranch_scc1 L_A_R4')
    E(f's_cmp_eq_u32 s{sC}, 0\n s_cbranch_scc0 L_A_R1'); lds_spin(C_K1,None,4,vZ,2,sleep=0)
    LBL('L_A_R1')
    E(f's_cmp_eq_u32 s{sC}, 2\n s_cbranch_scc0 L_A_R2'); lds_spin(C_K2,None,4,vZ,2,sleep=1)
    LBL('L_A_R2')
    E(f's_cmp_eq_u32 s{sC}, 3\n s_cbranch_scc1 L_A_R3'); aflag(False); E('s_branch L_A_RBACK')
    LBL('L_A_R3'); aflag(True); E('s_branch L_A_RBACK')
    LBL('L_A_R4')
    E(f's_cmp_eq_u32 s{sC}, 4\n s_cbranch_scc0 L_A_R6'); lds_add(C_MID,1,vZ,2); E('s_waitcnt lgkmcnt(0)\n s_branch L_A_RBACK')
    LBL('L_A_R6'); lds_spin(C_MID,None,8,vZ,2,sleep=1); E('s_branch L_A_RBACK')
    LBL('L_A_LAST')
    pair_iter(2,None,rv(3),last=1); pair_iter(3,None,None,last=2)
else:
    E(f's_and_b32 s{sT+5}, s{sWave}, 6\n s_cmp_eq_u32 s{sT+5}, 2\n s_cselect_b32 s{sT+5}, 0, 1')
    for j in range(32):
        if j in (2,6,10): E('s_waitcnt lgkmcnt(0)'); tag_wait(T_G+4*{2:2,6:3,10:1}[j],1,2)
        if j in (1,2,3,5): aflag(j==5)
        PJ=[int(x) for x in OPT.get('pj','11,22').split(',')]
        if PRIO=='step' and j in PJ: E(f's_setprio {1 if j==PJ[0] else 0}')
        if PRIO=='step4' and j in (6,16): E(f's_setprio {1 if j==6 else 0}')
        if OPT.get('jst') and j in (2,4,8,16,24): E('s_waitcnt lgkmcnt(0)'); cstamp('A',{2:1,4:2,8:3,16:7,24:10}[j],f'J{j}')
        if j==14: E('s_waitcnt lgkmcnt(0)'); lds_spin(C_K2,None,0x404,vZ,2,sleep=1)
        if j==20: lds_add(C_MID,1,vZ,2)
        if j==28: E('s_waitcnt lgkmcnt(0)'); lds_spin(C_MID,None,8,vZ,2,sleep=1)
        def lv(j=j):
            if j==19: E(f'v_add_u32 v{AVA}, 0x10000, v{AVA}')
            ldv(j+1)
        def lk(j=j):
            if j==18: E(f'v_add_u32 v{AKA}, 0x10000, v{AKA}')
            ldk(j+2)
        if j==31:
            C('has the partner of this wave (same queries, other keys) already left its sums ?  if so they arrive during the last tile')
            E(f'ds_read_b32 v127, v{AEX+2} offset:16\n ds_read_b32 v125, v{vZ} offset:{C_LOC-L_ST}')
            for q in range(2): E(f'ds_read_b128 {vr(128+12*q,4)}, v{AEX} offset:{2304*q}\n ds_read_b128 {vr(132+12*q,4)}, v{AEX} offset:{2304*q+1024}\n ds_read_b32 v{136+12*q}, v{AEX+1} offset:{2304*q+2048}')
        pair_iter(j,lk,lv,first=(j==0),last=(2 if j==31 else 1 if j==30 else 0),extra=(1 if j in (0,20) else 0))
E('s_nop 1'); smf(OB,AV+8+4,SB+8,AIDX)
stamp('A',5,'A loop done'); cstamp('A',9,'loop done')
C('---- the first wave of a pair to finish leaves both partial sums in LDS and ends ; the second one finishes both heads')
E(f'v_readfirstlane_b32 s{sT+1}, v127\n v_readfirstlane_b32 s{sT+9}, v125\n s_cmp_eq_u32 s{sT+1}, 1\n s_cbranch_scc1 L_A_LATE')
E(f'v_mov_b32 v2, 1\n s_mov_b64 exec, 1\n ds_add_rtn_u32 v3, v{AEX+2}, v2\n s_mov_b64 exec, -1\n s_waitcnt lgkmcnt(0)\n v_readfirstlane_b32 s{sT+1}, v3\n s_cmp_eq_u32 s{sT+1}, 0\n s_cbranch_scc0 L_A_TIE\n s_nop 3')
for q,O in enumerate((OA,OB)): E(f'ds_write_b128 v{AEX}, {vr(O,4)} offset:{2304*q}\n ds_write_b128 v{AEX}, {vr(O+4,4)} offset:{2304*q+1024}\n ds_write_b32 v{AEX+1}, v{O+8} offset:{2304*q+2048}')
E(f's_mov_b64 exec, 1\n ds_write_b32 v{AEX+2}, v2 offset:16\n s_mov_b64 exec, -1\n s_waitcnt lgkmcnt(0)\n s_branch L_A_STD')
LBL('L_A_TIE')
E(f's_mov_b32 s{sCnt}, {SPIN_LIMIT}')
LBL('L_A_TI2')
E(f'ds_read_b32 v127, v{AEX+2} offset:16')
for q in range(2): E(f'ds_read_b128 {vr(128+12*q,4)}, v{AEX} offset:{2304*q}\n ds_read_b128 {vr(132+12*q,4)}, v{AEX} offset:{2304*q+1024}\n ds_read_b32 v{136+12*q}, v{AEX+1} offset:{2304*q+2048}')
E(f's_waitcnt lgkmcnt(0)\n v_readfirstlane_b32 s{sT+1}, v127\n s_cmp_eq_u32 s{sT+1}, 1\n s_cbranch_scc1 L_A_LATE\n s_sub_u32 s{sCnt}, s{sCnt}, 1\n s_cbranch_scc0 L_A_TI2')
LBL('L_A_LATE')
for r in range(9): E(f'v_add_f32 v{OA+r}, v{OA+r}, v{140+r}')
E('s_waitcnt vmcnt(0)')
def setupA(): E(f's_mov_b32 s{sT+2}, {hex(WS_KVA)}\n s_mov_b32 s{sT+3}, 64')
for q,(O,Q_) in enumerate(((OA,AQ0),(OB,AQ1))):
    if q==1:
        for r in range(9): E(f'v_add_f32 v{OB+r}, v{OB+r}, v{128+r}')
    dst=152+4*q
    finalize(O,dst,2,f'L_FB_A{q}',f'L_FB_A{q}_BACK',126)
    if q==1: E(f's_xor_b32 s{sOA}, s{sOA}, 0x400')
    E(f's_cmp_eq_u32 s{sT+9}, 0\n s_cbranch_scc1 L_A_FAR{q}\n buffer_store_dwordx4 {vr(dst,4)}, v6, {sr(sWS)}, s{sOA} offen\n s_branch L_A_ST{q}')
    LBL(f'L_A_FAR{q}')
    E(f'buffer_store_dwordx4 {vr(dst,4)}, v6, {sr(sWS)}, s{sOA} offen sc1')
    LBL(f'L_A_ST{q}')
    fallback(f'L_FB_A{q}',f'L_FB_A{q}_BACK',Q_,O,SA,AK,AV,AIDX,3,6,7,None,setupA)
LBL('L_A_STD')
stamp('A',6,'oA published')
stamp_flush(12,'A')
LBL('L_END')
E('s_endpgm')
L.append('L_CODE_END:')
L.extend(TAIL)
L.append('    s_endpgm\n.fill 1200, 4, 0xbf810000')

hdr=open('cdna_kernels/%s.s.ref'%NAME).read().split('; Override launch')[0]
txt=hdr
txt+=f'; @launch grid=(256,1,1) block=(768,1,1) lds={LDS_TOTAL}\n'
for n in ('WS_KVA','WS_KVB','WS_OA','WS_OB','WS_STAMP','NSTAMP'): txt+=f'; CONST {n} = {hex(globals()[n])}\n'
for r,i,n in STN: txt+=f'; STAMPNAME {r} {i} {n}\n'
txt+=f'''.amdgcn_target "amdgcn-amd-amdhsa--gfx950"
.text
.globl {NAME}_kernel
.p2align 8
.type {NAME}_kernel,@function
{NAME}_kernel:
'''+'\n'.join(L)+f'''
.section .rodata,"a"
.p2align 6
.amdhsa_kernel {NAME}_kernel
  .amdhsa_next_free_vgpr 168
  .amdhsa_next_free_sgpr 102
  .amdhsa_accum_offset 168
  .amdhsa_group_segment_fixed_size 0
  .amdhsa_kernarg_size 96
  .amdhsa_user_sgpr_count 2
  .amdhsa_user_sgpr_kernarg_segment_ptr 1
  .amdhsa_system_sgpr_workgroup_id_x 1
.end_amdhsa_kernel
'''
open(OUT,'w').write(txt)
print('wrote',OUT,len(L),'lines')
```

```python
import sys, math, struct
NAME='gated_mix__grouped_kv_mqa__sliding_block__prompt'
DIAG = '--diag' in sys.argv
OUT = [a for a in sys.argv[1:] if not a.startswith('--')]
OUT = OUT[0] if OUT else 'cdna_kernels/%s.s'%NAME
OPT=dict(a.lstrip('-').split('=') for a in sys.argv[1:] if a.startswith('--') and '=' in a)
MAP=OPT.get('map','b'); ROT=OPT.get('rot','full'); PRIO=OPT.get('prio','step'); FLAG_IT=int(OPT.get('flagit','1')); PK=int(OPT.get('pk','7')); FORCE_K=int(OPT.get('forcek','7')); SENTK=int(OPT.get('sentk','14')); DENSE=OPT.get('dense','0')=='1'; ROLL=OPT.get('roll','0')=='1'; WT=OPT.get('wtouch','0')=='1'; KVK=int(OPT.get('kvk','13'))
def f2u(f): return struct.unpack('<I',struct.pack('<f',f))[0]

WS_EPOCH=0x0
WS_FKVA=0x1000
WS_FKVB=0x4000
WS_FOB =0xC000
WS_FOA =0x14000
WS_G   =0x1C000
WS_KVA =0x20000
WS_QB  =0x40000
WS_KVB =0x240000
WS_OA  =0x640000
WS_OB  =0x840000
WS_STAMP=0xA40000
NSTAMP=16
L_WQ=0; L_X=65536; L_ST=131072; L_CTL=L_ST+30720
L_GW=L_CTL; L_G=L_CTL+1024; L_C=L_CTL+1024+256
C_X=L_C+0
C_Q=L_C+4
C_K0=L_C+8; C_K1=L_C+12; C_K2=L_C+16; C_BP=L_C+20; C_MID=L_C+24; C_WO=L_C+28; C_WD=L_C+32; C_QR=L_C+36; C_SN=L_C+40; C_LOC=L_C+44; T_PT=L_C+256; T_X=L_C+272; T_PL=L_C+304; T_FL=L_C+308; T_G=L_C+320; T_X0=L_C+336; T_K0=L_C+352; T_Q1=L_C+356; T_H=L_C+368; T_TAG=L_C+372; C_PR=L_C+384; T_PR=L_C+400
L_EX=L_ST
LDS_TOTAL=163840
SPIN_LIMIT=400000
CSCALE=f2u(0.25*math.log2(math.e))
NEGBIG=f2u(-1e9)
L_LO=f2u(2.0**-24); L_HI=f2u(2.0**60)

sX=28; sWQ=32; sWKV=36; sWB=40; sWOA=44; sWOB=48; sG=52; sOUT=56; sWS=60; sDBG=64
sWave=68; sPb=69; sHg=70; sTag=71
sT=72
sCnt=84; sB=85
sXcc=65
sVM=86
sST=88
vZ=1
L=[]
def E(s):
    for ln in s.split('\n'):
        if ln.strip(): L.append('    '+ln.strip())
def LBL(s): L.append(s+':')
def C(s): L.append('    ; '+s)
_uid=[0]
def uid(p):
    _uid[0]+=1; return f'{p}_{_uid[0]}'
def vr(a,n): return f'v[{a}:{a+n-1}]'
def sr(a,n=4): return f's[{a}:{a+n-1}]'
def srd(dst,ptr,nbytes):
    E(f's_mov_b32 s{dst}, s{ptr}\n s_mov_b32 s{dst+1}, s{ptr+1}\n s_mov_b32 s{dst+2}, {hex(nbytes)}\n s_mov_b32 s{dst+3}, 0x20000')
STN=[]
def stamp(role,i,name):
    if OPT.get('acc') and role=='B' and i==10: return
    if OPT.get('jst') and role=='A' and i in (1,2,3,7): return
    if OPT.get('bst') and role=='B' and i in (6,7,8,9) and not name.startswith('arrive'): return
    if not DIAG: return
    STN.append((role,i,name))
    E(f's_memrealtime s[100:101]\n s_waitcnt lgkmcnt(0)\n s_mov_b32 s{sST+i}, s100')
ECHO=OPT.get('echo')
def echo_mark(name):
    if ECHO==name or name=='start' and ECHO:
        r=98 if name=='start' else 99
        E(f's_memrealtime s[100:101]\n s_waitcnt lgkmcnt(0)\n s_mov_b32 s{r}, s100')
def echo_end():
    if not ECHO: return
    E('s_waitcnt vmcnt(0)'); echo_mark('end')
    E('s_memrealtime s[100:101]\n s_waitcnt lgkmcnt(0)\n s_sub_u32 s99, s99, s98\n s_add_u32 s99, s99, s100')
    LBL('L_ECHO')
    E('s_memrealtime s[100:101]\n s_waitcnt lgkmcnt(0)\n s_sub_u32 s100, s100, s99\n s_cmp_lt_i32 s100, 0\n s_cbranch_scc1 L_ECHO')
def cstamp(role,i,name):
    if OPT.get('jst') and i in (10,11) and not name.startswith('J'): return
    if not DIAG: return
    STN.append((role,i,'CYC '+name))
    E(f's_memtime s[100:101]\n s_waitcnt lgkmcnt(0)\n s_mov_b32 s{sST+i}, s100')
def tacc(role,i,name,code):
    if not (DIAG and OPT.get('acc')): E(code); return
    if (role,i,'ACC '+name) not in STN: STN.append((role,i,'ACC '+name))
    E(f's_memtime s[100:101]\n s_waitcnt lgkmcnt(0)\n s_sub_u32 s{sST+i}, s{sST+i}, s100')
    E(code)
    E(f's_memtime s[100:101]\n s_waitcnt lgkmcnt(0)\n s_add_u32 s{sST+i}, s{sST+i}, s100')
def stamp_flush(nmax,role='B'):
    if not DIAG: return
    if OPT.get('dbg'):
        m={'A':[(0,1),(2,2),(7,3),(3,4),(1,5),(4,6),(5,7),(6,8)],'B':[(4,9),(6,10),(7,11),(9,12),(10,13),(11,14)]}[role]
        sk=uid('nd')
        srd(sDBG,24,256)
        E(f's_bfe_u32 s{sT}, s2, 0x30003\n s_cmp_eq_u32 s{sT}, 0\n s_cbranch_scc0 {sk}\n v_mov_b32 v2, 0\n s_not_b32 s{sT}, s{sST}\n v_writelane_b32 v2, s{sT}, 0')
        for i,sl in m: E(f'v_writelane_b32 v2, s{sST+i}, {sl}')
        E(f'v_lshlrev_b32 v3, 2, v0\n s_mov_b64 exec, 0xffff\n buffer_atomic_umax v2, v3, {sr(sDBG)}, 0 offen sc1\n s_mov_b64 exec, -1')
        LBL(sk)
        return
    if OPT.get('hwid'): E(f's_getreg_b32 s{sST+11}, hwreg(HW_REG_HW_ID)\n s_getreg_b32 s{sST+10}, hwreg(HW_REG_XCC_ID)')
    E('v_mov_b32 v2, 0')
    for i in range(nmax): E(f'v_writelane_b32 v2, s{sST+i}, {i}')
    E(f's_mul_i32 s{sT}, s2, 12\n s_add_u32 s{sT}, s{sT}, s{sWave}\n s_lshl_b32 s{sT}, s{sT}, 6\n s_add_u32 s{sT}, s{sT}, {hex(WS_STAMP)}')
    E(f'v_lshlrev_b32 v3, 2, v0\n s_mov_b64 exec, 0xffff\n buffer_store_dword v2, v3, {sr(sWS)}, s{sT} offen\n s_mov_b64 exec, -1')

def lds_add(off,val,vz,vt):
    E(f'v_mov_b32 v{vt}, {val}\n s_mov_b64 exec, 1\n ds_add_u32 v{vz}, v{vt} offset:{off-L_ST}\n s_mov_b64 exec, -1')
def lds_spin(off,mask,val,vz,vt,sleep=1):
    a=uid('spin'); d=uid('spind')
    E(f's_mov_b32 s{sCnt}, {SPIN_LIMIT}')
    LBL(a)
    E(f'ds_read_b32 v{vt}, v{vz} offset:{off-L_ST}\n s_waitcnt lgkmcnt(0)\n v_readfirstlane_b32 s{sT}, v{vt}')
    if mask is not None: E(f's_and_b32 s{sT}, s{sT}, {hex(mask)}')
    E(f's_cmp_eq_u32 s{sT}, {hex(val)}\n s_cbranch_scc1 {d}\n s_sub_u32 s{sCnt}, s{sCnt}, 1\n s_cbranch_scc1 {d}')
    if sleep: E(f's_sleep {sleep}')
    E(f's_branch {a}')
    LBL(d)
def tag_set(off,sidx,vt):
    if sidx is None: E(f'v_mov_b32 v{vt}, {off}')
    else: E(f's_lshl_b32 s{sT}, s{sidx}, 2\n s_add_u32 s{sT}, s{sT}, {off}\n v_mov_b32 v{vt}, s{sT}')
    E(f'v_mov_b32 v{vt+1}, 1\n s_mov_b64 exec, 1\n ds_write_b32 v{vt}, v{vt+1}\n s_mov_b64 exec, -1')
def tag_wait(off,n,vt,sleep=0,once=None):
    a=uid('tw'); d=uid('twd')
    E(f'v_and_b32 v{vt}, {n-1}, v0\n v_lshlrev_b32 v{vt}, 2, v{vt}\n v_add_u32 v{vt}, {off}, v{vt}')
    if once:
        E(f'ds_read_b32 v{vt+1}, v{vt}\n s_waitcnt lgkmcnt(0)\n v_cmp_ne_u32 vcc, 1, v{vt+1}\n s_cbranch_vccz {once}')
        return
    E(f's_mov_b32 s{sCnt}, {SPIN_LIMIT}')
    LBL(a)
    E(f'ds_read_b32 v{vt+1}, v{vt}\n s_waitcnt lgkmcnt(0)\n v_cmp_ne_u32 vcc, 1, v{vt+1}\n s_cbranch_vccz {d}\n s_sub_u32 s{sCnt}, s{sCnt}, 1\n s_cbranch_scc1 {d}')
    if sleep: E(f's_sleep {sleep}')
    E(f's_branch {a}')
    LBL(d)
def tag_get(vt):
    E(f'ds_read_b32 v{vt}, v{vZ} offset:{T_TAG-L_ST}\n s_waitcnt lgkmcnt(0)\n v_readfirstlane_b32 s{sTag}, v{vt}')
def poll(vaddr,n,vt,sleep=1):
    a=uid('poll'); d=uid('polld')
    E(f's_mov_b32 s{sCnt}, {SPIN_LIMIT}')
    LBL(a)
    op={1:'buffer_load_dword',2:'buffer_load_dwordx2',3:'buffer_load_dwordx3',4:'buffer_load_dwordx4'}[n]
    E(f'{op} {vr(vt,n) if n>1 else "v%d"%vt}, v{vaddr}, {sr(sWS)}, 0 offen sc1\n s_waitcnt vmcnt(0)')
    for i in range(n): E(f'v_xor_b32 v{vt+i}, s{sTag}, v{vt+i}')
    if n==2: E(f'v_or_b32 v{vt}, v{vt}, v{vt+1}')
    if n>=3: E(f'v_or3_b32 v{vt}, v{vt}, v{vt+1}, v{vt+2}')
    if n==4: E(f'v_or_b32 v{vt}, v{vt}, v{vt+3}')
    E(f'v_cmp_ne_u32 vcc, 0, v{vt}\n s_cbranch_vccz {d}\n s_sub_u32 s{sCnt}, s{sCnt}, 1\n s_cbranch_scc1 {d}')
    if sleep: E(f's_sleep {sleep}')
    E(f's_branch {a}')
    LBL(d)
def flag_store(soff_reg,vt):
    E(f'v_mov_b32 v{vt}, s{sTag}\n s_mov_b64 exec, 1\n buffer_store_dword v{vt}, off, {sr(sWS)}, s{soff_reg} sc1\n s_mov_b64 exec, -1')
def mfma(d,a,b,c=None):
    cc = vr(d,16) if c is None else (c if isinstance(c,str) else vr(c,16))
    E(f'v_mfma_f32_32x32x16_bf16 {vr(d,16)}, {vr(a,4)}, {vr(b,4)}, {cc}')
def smf(o,v,s,idx): E(f'v_smfmac_f32_32x32x32_bf16 {vr(o,16)}, {vr(v,4)}, {vr(s,8)}, v{idx}')
def vexp(r): E(f'v_exp_f32 v{r}, v{r}')
def cvt(d,a,b): E(f'v_cvt_pk_bf16_f32 v{d}, v{a}, v{b}')
def set_vpad(regs,vt):
    E(f'v_and_b32 v{vt}, 27, v0\n v_cmp_eq_u32 vcc, 16, v{vt}\n v_mov_b32 v{vt}, 0x3f803f80\n s_nop 0\n v_cndmask_b32 v{regs[0]}, 0, v{vt}, vcc')
    for r in regs[1:]: E(f'v_mov_b32 v{r}, v{regs[0]}')
def xaddr(base,t_imm,vt):
    E(f'v_and_b32 v{vt}, 15, v0\n v_lshrrev_b32 v{base}, 5, v0\n v_xor_b32 v{base}, v{base}, v{vt}\n v_lshlrev_b32 v{base}, 4, v{base}')
    E(f'v_and_b32 v{vt}, 31, v0\n v_lshl_add_u32 v{base}, v{vt}, 10, v{base}\n v_add_u32 v{base}, {t_imm}, v{base}')
    for b in range(1,8): E(f'v_xor_b32 v{base+b}, {b<<5}, v{base}')
def traddr128(dst,vt,vt2,rowsel,colbase):
    E(f'v_lshrrev_b32 v{vt}, 5, v0\n v_lshlrev_b32 v{vt}, {rowsel}, v{vt}\n v_bfe_u32 v{vt2}, v0, 2, 2\n v_add_u32 v{vt}, v{vt}, v{vt2}\n v_lshlrev_b32 v{dst}, 7, v{vt}')
    E(f'v_bfe_u32 v{vt}, v0, 4, 1\n v_lshlrev_b32 v{vt}, 1, v{vt}\n v_bfe_u32 v{vt2}, v0, 1, 1\n v_add3_u32 v{vt}, v{vt}, v{vt2}, {colbase}')
    E(f'v_bfe_u32 v{vt2}, v0, 3, 1\n v_lshlrev_b32 v{vt2}, 2, v{vt2}\n v_xor_b32 v{vt}, v{vt}, v{vt2}\n v_lshl_add_u32 v{dst}, v{vt}, 4, v{dst}')
    E(f'v_and_b32 v{vt}, 1, v0\n v_lshl_add_u32 v{dst}, v{vt}, 3, v{dst}')
def dma128_voff(dst,vt,vt2,rowstride_sreg_or_shift,colbytes):
    E(f'v_lshrrev_b32 v{vt}, 3, v0')
    if isinstance(rowstride_sreg_or_shift,int): E(f'v_lshlrev_b32 v{dst}, {rowstride_sreg_or_shift}, v{vt}')
    else: E(f'v_mul_u32_u24 v{dst}, {rowstride_sreg_or_shift}, v{vt}')
    E(f'v_bfe_u32 v{vt}, v0, 4, 1\n v_lshlrev_b32 v{vt}, 2, v{vt}\n v_and_b32 v{vt2}, 7, v0\n v_xor_b32 v{vt}, v{vt}, v{vt2}\n v_lshl_add_u32 v{dst}, v{vt}, 4, v{dst}\n v_add_u32 v{dst}, {colbytes}, v{dst}')
def finalize(O,dst,vt,lbl_fb,lbl_back,vg):
    E(f'v_add_f32 v{vt}, |v{O}|, |v{O+1}|')
    for r in range(2,8): E(f'v_add_f32 v{vt}, v{vt}, |v{O+r}|')
    E(f'v_mov_b32 v{vt+1}, 0x7f800000\n v_cmp_nlt_f32 {sr(sT,2)}, v{vt}, v{vt+1}')
    E(f'v_cmp_nle_f32 vcc, {hex(L_LO)}, v{O+8}\n s_or_b64 {sr(sT,2)}, {sr(sT,2)}, vcc')
    E(f'v_cmp_nge_f32 vcc, {hex(L_HI)}, v{O+8}\n s_or_b64 {sr(sT,2)}, {sr(sT,2)}, vcc\n s_cbranch_scc1 {lbl_fb}')
    LBL(lbl_back)
    E(f'v_rcp_f32 v{vt}, v{O+8}\n s_nop 0\n v_mul_f32 v{vt}, v{vt}, v{vg}')
    for r in range(0,8,2): E(f'v_pk_mul_f32 {vr(O+r,2)}, {vr(O+r,2)}, {vr(vt,2)} op_sel_hi:[1,0]')
    for r in range(4): cvt(dst+r,O+2*r,O+2*r+1)
    E(f'v_min_u32 v{dst}, -2, v{dst}')

TAIL=[]
RETRY=[]
def fallback(lbl,back,Q,O,S,K,V,IDX,vM,vK,vV,ntile,soff_setup,first_mask=None,last_mask=None,first_cond=None):
    global L
    save=L; L=[]
    LBL(lbl)
    soff_setup()
    E(f'v_mov_b32 v{vM}, 0xff800000')
    for p in (0,1):
        lp=uid('fbl')
        if p==1:
            E(f'v_mov_b32 v{S}, v{vM}\n s_nop 1\n v_permlane32_swap_b32 v{S}, v{vM}\n s_nop 1\n v_max_f32 v{vM}, v{vM}, v{S}')
            for r in range(16): E(f'v_mov_b32 v{O+r}, 0')
        E(f's_mov_b32 s{sT+5}, s{sT+2}\n s_mov_b32 s{sT+6}, 0')
        LBL(lp)
        E(f'buffer_load_dwordx4 {vr(K,4)}, v{vK}, {sr(sWS)}, s{sT+5} offen sc1')
        if p==1:
            E(f's_mov_b64 exec, {sr(sVM,2)}\n buffer_load_dwordx4 {vr(V,4)}, v{vV}, {sr(sWS)}, s{sT+5} offen offset:1024 sc1\n buffer_load_dwordx4 {vr(V+4,4)}, v{vV}, {sr(sWS)}, s{sT+5} offen offset:1536 sc1\n s_mov_b64 exec, -1')
        E('s_waitcnt vmcnt(0)')
        if first_mask is None:
            mfma(S,K,Q,'0')
        else:
            a=uid('fbm'); b=uid('fbm'); j=uid('fbm')
            E(f's_add_u32 s{sT+7}, s{sT+6}, 1\n s_cmp_eq_u32 s{sT+7}, s{sT+3}\n s_cbranch_scc1 {a}')
            E(f's_cmp_lt_u32 s{sT+6}, s{sT+4}\n s_cbranch_scc1 {b}')
            mfma(S,K,Q,'0'); E(f's_branch {j}')
            LBL(a); mfma(S,K,Q,last_mask); E(f's_branch {j}')
            LBL(b); mfma(S,K,Q,first_mask)
            LBL(j)
        E('s_nop 15')
        if p==0:
            for r in range(0,16,2): E(f'v_max3_f32 v{vM}, v{S+r}, v{S+r+1}, v{vM}')
        else:
            for r in range(16): E(f'v_sub_f32 v{S+r}, v{S+r}, v{vM}')
            for r in range(16): vexp(S+r)
            E('s_nop 1'); smf(O,V,S,IDX); smf(O,V+4,S+8,IDX)
        E(f's_add_u32 s{sT+5}, s{sT+5}, 2048\n s_add_u32 s{sT+6}, s{sT+6}, 1\n s_cmp_lt_u32 s{sT+6}, s{sT+3}\n s_cbranch_scc1 {lp}')
    E(f's_nop 15\n s_branch {back}')
    TAIL.extend(L); L=save

E('s_cmp_ge_u32 s2, 256\n s_cbranch_scc1 L_END')
if ECHO=='karg': E('s_memrealtime s[100:101]\n s_waitcnt lgkmcnt(0)\n s_mov_b32 s97, s100')
E('s_load_dwordx16 s[4:19], s[0:1], 0\n s_load_dwordx8 s[20:27], s[0:1], 64')
E(f'v_lshrrev_b32 v1, 6, v0\n v_and_b32 v0, 63, v0\n v_readfirstlane_b32 s{sWave}, v1')
if MAP=='b':
    E(f's_and_b32 s{sT}, s2, 7\n s_lshr_b32 s{sT+1}, s2, 3\n s_and_b32 s{sT+2}, s{sT+1}, 3\n s_lshl_b32 s{sPb}, s{sT}, 2\n s_or_b32 s{sPb}, s{sPb}, s{sT+2}\n s_lshr_b32 s{sHg}, s{sT+1}, 2')
else:
    E(f's_bfe_u32 s{sPb}, s2, 0x20001\n s_lshl_b32 s{sPb}, s{sPb}, 3\n s_bfe_u32 s{sT}, s2, 0x30003\n s_or_b32 s{sPb}, s{sPb}, s{sT}\n s_and_b32 s{sHg}, s2, 1\n s_lshl_b32 s{sHg}, s{sHg}, 2\n s_lshr_b32 s{sT}, s2, 6\n s_or_b32 s{sHg}, s{sHg}, s{sT}')
E(f's_mov_b32 s{sVM}, 0xffff\n s_mov_b32 s{sVM+1}, 0xffff')
if DIAG:
    for i in range(12): E(f's_mov_b32 s{sST+i}, 0')
def codepf():
  if OPT.get('cpf','1')=='1':
      C('---- pull this WG\'s share of the kernel\'s own instructions into L2 (later instruction fetches then miss only the I-cache)')
      E(f's_cmp_eq_u32 s{sWave}, 11\n s_cbranch_scc0 L_B_NCP\n s_getpc_b64 s[{sT}:{sT+1}]')
      LBL('L_B_PC')
      E(f's_lshr_b32 s{sT+2}, s2, 3\n s_mul_i32 s{sT+2}, s{sT+2}, (L_CODE_END-L_B_PC+4095)/4096*128\n s_add_u32 s{sT}, s{sT}, s{sT+2}\n s_addc_u32 s{sT+1}, s{sT+1}, 0')
      E(f'v_lshlrev_b32 v2, 7, v0\n v_mov_b32 v3, s{sT+1}\n v_add_co_u32 v2, vcc, s{sT}, v2\n s_nop 1\n v_addc_co_u32 v3, vcc, 0, v3, vcc\n s_lshl_b64 exec, 1, (L_CODE_END-L_B_PC+4095)/4096\n s_sub_u32 exec_lo, exec_lo, 1\n global_load_dword v63, v[2:3], off\n s_mov_b64 exec, -1')
      LBL('L_B_NCP')
if OPT.get('cpe','0')=='1': codepf()
C('clear the LDS counters and flags while the kernel arguments arrive')
E(f'v_lshlrev_b32 v2, 3, v0\n v_add_u32 v2, {L_C}, v2\n v_mov_b32 v4, 0\n v_mov_b32 v5, 0\n ds_write_b64 v2, v[4:5]')
E('s_waitcnt lgkmcnt(0)\n s_barrier')
stamp('A',0,'start'); stamp('B',0,'start'); echo_mark('start')
if ECHO=='karg': E('s_sub_u32 s99, s98, s97\n s_mul_i32 s99, s99, 10\n s_add_u32 s99, s99, s98')
srd(sX,4,2048*1024); srd(sWS,26,0x10000000)
E(f's_cmp_lt_u32 s{sWave}, 8\n s_cbranch_scc1 L_A')


KVPOS=[L_ST,32768,49152,16384,0,65536,81920,98304]
L_PART=L_ST+24576
L_QA=0; L_QB=8192; L_WO=0; L_FX=114688
sOut=66; sOb=67; sPass=64
sRot=sT+11
def mktag(): E(f's_mul_i32 s{sTag}, s{sTag}, 0x9E3779B1\n s_add_u32 s{sTag}, s{sTag}, 0x7F4A7C15')
def mkrot():
    if MAP=='b': E(f's_and_b32 s{sRot}, s{sPb}, 3\n s_lshl_b32 s{sRot}, s{sRot}, 1\n s_add_u32 s{sRot}, s{sRot}, s{sHg}')
    else: E(f's_lshl_b32 s{sRot}, s{sHg}, 1\n s_add_u32 s{sRot}, s{sRot}, s{sPb}')
def touch(srd_,soff,n,vaddr,vd,sc1=False):
    for i in range(n):
        if i: E(f's_add_u32 s{soff}, s{soff}, 8192')
        E(f'buffer_load_dword v{vd}, v{vaddr}, {sr(srd_)}, s{soff} offen'+(' sc1' if sc1 else ''))
E(f's_setprio {2 if OPT.get("bp2") else 3}\n s_sub_u32 s{sB}, s{sWave}, 8')
if OPT.get('cpe','0')=='0': codepf()
C('---- x tile -> LDS as 8 blocks of [64 rows][64 k], block order rotated per WG ; wave b brings blocks b and b+4')
E('v_lshrrev_b32 v17, 3, v0\n v_lshlrev_b32 v17, 10, v17\n v_lshrrev_b32 v2, 4, v0\n v_and_b32 v3, 7, v0\n v_xor_b32 v2, v2, v3\n v_lshl_add_u32 v17, v2, 4, v17\n v_xor_b32 v18, 64, v17')
mkrot()
E(f's_lshl_b32 s{sT+7}, s{sPb}, 16\n s_lshl_b32 s{sT+6}, s{sB}, 13')
VQ=[]
def vwait(tag,extra=''):
    if tag not in VQ:
        if extra: E('s_waitcnt'+extra)
        return
    i=max(n for n,t in enumerate(VQ) if t==tag)
    n=len(VQ)-1-i; del VQ[:i+1]
    E(f's_waitcnt vmcnt({n})'+extra)
XD=OPT.get('xd','1')=='1'
def xblock(expr_add,ldsoff,rows):
    E(f's_add_u32 s{sT+1}, s{sRot}, {expr_add}\n s_and_b32 s{sT+1}, s{sT+1}, 7\n s_lshl_b32 s{sT+1}, s{sT+1}, 7\n s_add_u32 s{sT+1}, s{sT+1}, s{sT+7}')
if XD:
    E(f's_and_b32 s{sT+1}, s{sRot}, 7\n s_lshl_b32 s{sT+1}, s{sT+1}, 7\n s_add_u32 s{sT+1}, s{sT+1}, s{sT+7}\n s_lshl_b32 s{sT+2}, s{sB}, 14\n s_add_u32 s{sT+1}, s{sT+1}, s{sT+2}\n s_lshl_b32 s{sT+2}, s{sB}, 11\n s_add_u32 m0, s{sT+2}, 65536\n s_nop 0')
    E(f'buffer_load_dwordx4 v17, {sr(sX)}, s{sT+1} offen lds\n s_add_u32 m0, s{sT+2}, {65536+1024}\n s_add_u32 s{sT+1}, s{sT+1}, 8192\n buffer_load_dwordx4 v18, {sr(sX)}, s{sT+1} offen lds')
def xrest():
  for hb in range(2):
    sk=uid('xs')
    if XD and hb==0: E(f's_cmp_eq_u32 s{sB}, 0\n s_cbranch_scc1 {sk}')
    E(f's_add_u32 s{sT+1}, s{sRot}, s{sB}\n s_add_u32 s{sT+1}, s{sT+1}, {4*hb}\n s_and_b32 s{sT+1}, s{sT+1}, 7\n s_lshl_b32 s{sT+1}, s{sT+1}, 7\n s_add_u32 s{sT+1}, s{sT+1}, s{sT+7}')
    for n in range(8):
        E(f's_add_u32 m0, s{sT+6}, {65536+32768*hb+1024*n}')
        E(f's_add_u32 s{sT+1}, s{sT+1}, 8192' if n else 's_nop 0')
        E(f'buffer_load_dwordx4 v{17+(n&1)}, {sr(sX)}, s{sT+1} offen lds')
    if XD and hb==0: LBL(sk)
if not XD: xrest()
MU=128; MD=144; BQ=16; BK=24; BV=36; BS=64; BO=96; BIDX=60
C('---- constants for the later phases (idle time)')
E(f'v_mov_b32 v{vZ}, {L_ST}\n v_lshlrev_b32 v160, 4, v0\n v_lshlrev_b32 v163, 7, v0')
E('v_lshrrev_b32 v161, 5, v0\n v_lshlrev_b32 v161, 8, v161\n v_and_b32 v2, 15, v0\n v_lshl_add_u32 v161, v2, 4, v161')
srd(sWOA,12,512*1024); srd(sWOB,18,512*1024)
E(f'v_and_b32 v4, 31, v0\n v_lshrrev_b32 v5, 5, v0\n v_lshlrev_b32 v5, 2, v5\n v_sub_u32 v4, v4, v5\n s_mov_b32 s{sT}, {hex(NEGBIG)}')
for r in range(16):
    E(f'v_subrev_u32 v5, {8*(r//4)+r%4}, v4\n v_ashrrev_i32 v5, 31, v5\n v_and_b32 v{MD+r}, s{sT}, v5\n v_xor_b32 v{MU+r}, s{sT}, v{MD+r}')
set_vpad(list(range(BV,BV+24)),2); E(f'v_mov_b32 v{BIDX}, 0xdddddddd')
for r in range(32): E(f'v_mov_b32 v{BO+r}, 0')
E(f'v_min_u32 v2, 4, v0\n s_sub_i32 s{sT}, s{sPb}, 4\n v_add_u32 v2, s{sT}, v2\n v_max_i32 v2, 0, v2\n s_lshl_b32 s{sT}, s{sHg}, 5\n v_add_u32 v2, s{sT}, v2\n v_lshlrev_b32 v2, 7, v2\n v_add_u32 v162, {hex(WS_FKVB+8)}, v2')
E(f'v_and_b32 v2, 7, v0\n v_lshlrev_b32 v2, 5, v2\n v_add_u32 v2, s{sPb}, v2\n v_lshlrev_b32 v2, 7, v2\n v_add_u32 v166, {hex(WS_FKVB+16)}, v2')
sKh=sT+9; sTt=sT+10
E(f's_lshr_b32 s{sKh}, s{sB}, 1\n s_and_b32 s{sTt}, s{sB}, 1\n s_lshl_b32 s{sT+2}, s{sHg}, 7')
dma128_voff(10,2,3,10,f's{sT+2}')
E(f's_lshl_b32 s{sT+1}, s{sKh}, 2'); traddr128(11,2,3,2,f's{sT+1}')
E(f's_lshl_b32 s{sT+1}, s{sKh}, 15\n s_add_u32 s{sT+1}, s{sT+1}, {L_WO}\n v_add_u32 v11, s{sT+1}, v11\n v_xor_b32 v9, 64, v11')
E(f's_lshl_b32 s{sOut}, s{sPb}, 1\n s_add_u32 s{sOut}, s{sOut}, s{sTt}\n s_lshl_b32 s{sOut}, s{sOut}, 15\n s_lshl_b32 s{sT}, s{sKh}, 14\n s_add_u32 s{sOb}, s{sOut}, s{sT}\n s_add_u32 s{sOb}, s{sOb}, {hex(WS_OB)}')
E(f's_lshl_b32 s{sT}, s{sHg}, 7\n s_add_u32 s{sOut}, s{sOut}, s{sT}\n s_lshl_b32 s{sT}, s{sKh}, 6\n s_add_u32 s{sOut}, s{sOut}, s{sT}')
E('v_and_b32 v8, 31, v0\n v_lshlrev_b32 v167, 10, v8\n v_lshrrev_b32 v3, 5, v0\n v_lshl_add_u32 v167, v3, 4, v167\n v_lshlrev_b32 v8, 2, v8')
srd(sOUT,22,2048*1024)
E(f's_lshl_b32 s{sT}, s{sB}, 12\n s_add_u32 s{sT}, s{sT}, {L_FX}\n v_add_u32 v164, s{sT}, v160\n v_xor_b32 v165, 0x2000, v164\n s_mov_b32 s{sPass}, 0')
if XD:
    E('s_waitcnt vmcnt(0)'); tag_set(T_X0,sB,2); xrest()
E('s_waitcnt vmcnt(8)')
tag_set(T_X,sB,2)
stamp('B',1,'x landed'); echo_mark('xl')
E('s_waitcnt vmcnt(0)')
tag_set(T_X+16,sB,2)
tag_wait(T_G,4,2,sleep=4)
tag_get(2)
stamp('B',5,'BQ'); echo_mark('bq')
E(f's_setprio {OPT.get("bpr","3")}')
def kvdma(c):
    E(f's_lshr_b32 s{sT+1}, s2, 3\n s_add_u32 s{sT+1}, s{sT+1}, {c}\n s_and_b32 s{sT+1}, s{sT+1}, 3\n s_lshl_b32 s{sT+1}, s{sT+1}, 2\n s_add_u32 s{sT+1}, s{sT+1}, s{sB}\n s_lshl_b32 s{sT+1}, s{sT+1}, 12')
    E(f's_lshl_b32 s{sT+2}, s{sB}, 12\n s_add_u32 m0, s{sT+2}, {KVPOS[c]}\n s_add_u32 s{sT+1}, s{sT+1}, {hex(WS_KVA+(65536 if c>=4 else 0))}')
    for i in range(4): E(f'buffer_load_dwordx4 v160, {sr(sWS)}, s{sT+1} offen offset:{1024*i} sc1 lds')
    VQ.extend([f'kv{c}']*4)
E(f's_lshl_b32 s{sT}, s{sB}, 11\n s_add_u32 s{sT}, s{sT}, {L_QB}\n v_add_u32 v3, s{sT}, v160')
for t in range(2): E(f'ds_read_b128 {vr(BQ+4*t,4)}, v3 offset:{1024*t}')
E(f's_lshl_b32 s{sT}, s{sPb}, 8\n s_add_u32 s{sT}, s{sT}, {hex(WS_G)}\n buffer_load_dword v61, v8, {sr(sWS)}, s{sT} offen sc1\n buffer_load_dword v62, v8, {sr(sWS)}, s{sT} offen offset:128 sc1\n s_waitcnt lgkmcnt(0)')
lds_add(C_QR,1,vZ,2)
C('---- second half of the shared K/V ; o slots marked as not yet written')
for c in (5,6,7): kvdma(c)
E(f's_lshl_b32 s{sT+10}, s{sPb}, 6\n s_lshl_b32 s{sT+1}, s{sHg}, 2\n s_add_u32 s{sT+10}, s{sT+10}, s{sT+1}\n s_add_u32 s{sT+10}, s{sT+10}, s{sB}\n s_lshl_b32 s{sT+10}, s{sT+10}, 10')
E('v_mov_b32 v12, -1\n v_mov_b32 v13, -1\n v_mov_b32 v14, -1\n v_mov_b32 v15, -1')
for base in (WS_OA,WS_OA+32768,WS_OB,WS_OB+32768):
    E(f's_add_u32 s{sT+1}, s{sT+10}, {hex(base)}\n buffer_store_dwordx4 v[12:15], v160, {sr(sWS)}, s{sT+1} offen sc1')
E(f's_lshl_b32 s{sT+3}, s{sHg}, 5\n s_add_u32 s{sT+3}, s{sT+3}, s{sPb}\n s_lshl_b32 s{sT+3}, s{sT+3}, 7\n s_lshl_b32 s{sT+1}, s{sB}, 2\n s_add_u32 s{sT+3}, s{sT+3}, s{sT+1}\n s_add_u32 s{sT+3}, s{sT+3}, {hex(WS_FKVB+16)}')
lds_spin(C_QR,None,12,vZ,2,sleep=2)
kvdma(4)
E(f's_getreg_b32 s{sXcc}, hwreg(HW_REG_XCC_ID, 0, 4)\n s_add_u32 s{sT}, s{sTag}, s{sXcc}\n v_mov_b32 v3, s{sT}\n s_waitcnt vmcnt(0)')
E(f's_mov_b64 exec, 1\n buffer_store_dword v3, off, {sr(sWS)}, s{sT+3} sc1\n s_mov_b64 exec, -1')
lds_add(C_K2,0x101,vZ,2)
stamp('B',2,'K/V all in')
if OPT.get('nob'): stamp_flush(12); E('s_endpgm')
E('v_sub_f32 v61, 1.0, v61\n v_sub_f32 v62, 1.0, v62')
poll(162,2,4,sleep=3)
stamp('B',6,'kvB flags seen'); echo_mark('kvb')
def wotouch():
    if MAP=='b':
        E(f's_cmp_ge_u32 s{sB}, 2\n s_cbranch_scc0 L_B_NOT\n s_lshr_b32 s{sT+1}, s2, 3\n s_lshl_b32 s{sT+1}, s{sT+1}, 14\n s_and_b32 s{sT+2}, s{sB}, 1\n s_lshl_b32 s{sT+2}, s{sT+2}, 13\n s_add_u32 s{sT+1}, s{sT+1}, s{sT+2}')
        touch(sWOB,sT+1,1,163,3); touch(sWOA,sT+1,1,163,3)
    else:
        E(f's_cmp_eq_u32 s{sB}, 3\n s_cbranch_scc0 L_B_NOT\n s_lshr_b32 s{sT+1}, s2, 3\n s_lshl_b32 s{sT+1}, s{sT+1}, 14\n s_and_b32 s{sT+2}, s2, 1\n s_lshl_b32 s{sT+2}, s{sT+2}, 9\n s_add_u32 s{sT+1}, s{sT+1}, s{sT+2}')
        E('v_lshrrev_b32 v2, 2, v0\n v_lshlrev_b32 v2, 10, v2\n v_and_b32 v3, 3, v0\n v_lshl_add_u32 v2, v3, 7, v2')
        touch(sWOB,sT+1,1,2,3); touch(sWOA,sT+1,1,2,4)
    LBL('L_B_NOT')
C('---- window attention, head 4hg+b, two query tiles')
E(f's_lshl_b32 s{sT+8}, s{sHg}, 2\n s_add_u32 s{sT+8}, s{sT+8}, s{sB}\n s_lshl_b32 s{sT+8}, s{sT+8}, 6\n s_lshl_b32 s{sT+9}, s{sPb}, 1\n s_sub_i32 s{sT+9}, s{sT+9}, 8')
def btile(j): E(f's_add_i32 s{sT}, s{sT+9}, {j}\n s_max_i32 s{sT}, s{sT}, 0\n s_add_u32 s{sT}, s{sT}, s{sT+8}\n s_lshl_b32 s{sT}, s{sT}, 11\n s_add_u32 s{sT}, s{sT}, {hex(WS_KVB)}')
def bload(j):
    k=BK+4*(j%3); v=BV+8*(j%3)
    btile(j)
    E(f'buffer_load_dwordx4 {vr(k,4)}, v160, {sr(sWS)}, s{sT} offen sc1\n s_mov_b64 exec, {sr(sVM,2)}')
    E(f'buffer_load_dwordx4 {vr(v,4)}, v161, {sr(sWS)}, s{sT} offen offset:1024 sc1\n buffer_load_dwordx4 {vr(v+4,4)}, v161, {sr(sWS)}, s{sT} offen offset:1536 sc1\n s_mov_b64 exec, -1')
bload(0); bload(1)
E(f's_setprio {OPT.get("bat","1")}')
for j in (2,6):
    E(f's_add_i32 s{sT}, s{sT+9}, {j}\n s_max_i32 s{sT}, s{sT}, 0\n s_add_i32 s{sT+1}, s{sT+9}, 6\n s_min_i32 s{sT}, s{sT}, s{sT+1}\n s_cmp_lt_i32 s{sT}, 0')
    sk=uid('tk'); E(f's_cbranch_scc1 {sk}\n s_add_u32 s{sT}, s{sT}, s{sT+8}\n s_lshl_b32 s{sT}, s{sT}, 11\n s_add_u32 s{sT}, s{sT}, {hex(WS_KVB)}')
    E(f'buffer_load_dword v3, v163, {sr(sWS)}, s{sT} offen sc1'); LBL(sk)
E('s_waitcnt lgkmcnt(0)')
for j in range(10):
    k=BK+4*(j%3); v=BV+8*(j%3)
    if j==3: wotouch()
    if j==int(OPT.get('bup','5')): E('s_setprio 3')
    if j==7: E(f'buffer_load_dwordx4 v[12:15], v166, {sr(sWS)}, 0 offen sc1')
    if j+2<10: bload(j+2)
    E(f's_waitcnt vmcnt({3*min(2,9-j)})')
    sk=uid('bskip')
    if j<8: E(f's_cmp_lt_i32 s{sT+9}, {-j}\n s_cbranch_scc1 {sk}')
    qs=[q for q in (0,1) if 0<=j-q<=8]
    for q in qs: mfma(BS+16*q,k,BQ+4*q,{0:MU,8:MD}.get(j-q,'0'))
    E('s_nop 10' if len(qs)==2 else 's_nop 11')
    for q in qs:
        S=BS+16*q; O=BO+16*q
        for r in range(10): vexp(S+r)
        smf(O,v,S,BIDX)
        for r in range(10,16): vexp(S+r)
        E('s_nop 1'); smf(O,v+4,S+8,BIDX)
    if j<8: LBL(sk)
sLoc=sT+11
E(f's_add_u32 s{sT+10}, s{sT+10}, {hex(WS_OB)}\n s_mov_b32 s{sLoc}, 0')
C('the eight WGs of this position block: marks in place ?  all on this die ?')
E(f's_mov_b32 s{sCnt}, {SPIN_LIMIT}\n s_branch L_B_PP1')
LBL('L_B_PP')
E(f'buffer_load_dwordx4 v[12:15], v166, {sr(sWS)}, 0 offen sc1\n s_waitcnt vmcnt(0)')
LBL('L_B_PP1')
for i in range(4): E(f'v_subrev_u32 v{12+i}, s{sTag}, v{12+i}')
E(f'v_or3_b32 v2, v12, v13, v14\n v_or_b32 v2, v2, v15\n v_cmp_lt_u32 vcc, 15, v2\n s_cbranch_vccz L_B_PPD\n s_sub_u32 s{sCnt}, s{sCnt}, 1\n s_cbranch_scc1 L_B_PPD\n s_sleep 3\n s_branch L_B_PP')
LBL('L_B_PPD')
if OPT.get('loc','1')=='1':
    E(f'v_cmp_ne_u32 vcc, s{sXcc}, v12\n s_cbranch_vccnz L_B_NLOC\n s_mov_b32 s{sLoc}, 1')
    lds_add(C_LOC,1,vZ,2)
    if OPT.get('probe'):
        E('s_branch L_B_PRB')
        LBL('L_B_NLOC')
        for i in range(8): E('s_sleep 127')
        LBL('L_B_PRB')
    else: LBL('L_B_NLOC')

for q in range(2):
    fb=f'L_FB_B{q}'; bk=f'L_FB_B{q}_BACK'
    finalize(BO+16*q,4,2,fb,bk,61+q)
    E(f's_cmp_eq_u32 s{sLoc}, 0\n s_cbranch_scc1 L_B_FAR{q}\n buffer_store_dwordx4 v[4:7], v160, {sr(sWS)}, s{sT+10} offen\n s_branch L_B_ST{q}')
    LBL(f'L_B_FAR{q}')
    E(f'buffer_store_dwordx4 v[4:7], v160, {sr(sWS)}, s{sT+10} offen sc1')
    LBL(f'L_B_ST{q}')
    if q==0: E(f's_add_u32 s{sT+10}, s{sT+10}, 32768\n s_nop 0')
    def setup(q=q):
        E(f's_add_i32 s{sT+2}, s{sT+9}, {q}\n s_cmp_ge_i32 s{sT+2}, 0\n s_cselect_b32 s{sT+4}, 1, 0\n s_max_i32 s{sT+2}, s{sT+2}, 0')
        E(f's_add_i32 s{sT+3}, s{sT+9}, {q+9}\n s_sub_u32 s{sT+3}, s{sT+3}, s{sT+2}\n s_add_u32 s{sT+2}, s{sT+2}, s{sT+8}\n s_lshl_b32 s{sT+2}, s{sT+2}, 11\n s_add_u32 s{sT+2}, s{sT+2}, {hex(WS_KVB)}')
    fallback(fb,bk,BQ+4*q,BO+16*q,BS,BK,BV,BIDX,3,160,161,None,setup,MU,MD)
C('---- output projection: wave (t=b&1, kh=b>>1): both 32-column tiles over heads 16kh..16kh+15 ; slot 0 = tile kh')
PA_=48; PW=80; PO=96; PB_=16
stamp('B',7,'oB published'); echo_mark('ob')
E(f's_setprio {OPT.get("bpr2","3")}')
lds_spin(C_MID,None,8,vZ,2,sleep=6)
def wodma(sr_):
    E(f's_lshl_b32 s{sT}, s{sB}, 14\n s_lshl_b32 s{sT+1}, s{sB}, 17')
    for n in range(16): E(f's_add_u32 m0, s{sT}, {L_WO+1024*n}\n s_add_u32 s{sT+2}, s{sT+1}, {8192*n}\n buffer_load_dwordx4 v10, {sr(sr_)}, s{sT+2} offen lds')
def oloads(g0):
    for s in range(4*g0,16):
        if s%4==0: E(f's_add_u32 s{sT}, s{sOb}, {1024*s}')
        E(f'buffer_load_dwordx4 {vr(PO+4*s,4)}, v160, {sr(sWS)}, s{sT} offen offset:{1024*(s%4)} sc1')
wodma(sWOB)
oloads(0)
E('s_waitcnt vmcnt(16)')
lds_add(C_WO,1,vZ,2)
lds_spin(C_WO,None,4,vZ,2,sleep=2)
stamp('B',8,'woB landed')
E('s_branch L_B_GEMM1')
LBL('L_B_GEMM')
oloads(0)
LBL('L_B_GEMM1')
def wread(s):
    f=PW+8*(s&1)
    for u,va in ((0,11),(1,9)): E(f'ds_read_b64_tr_b16 {vr(f+4*u,2)}, v{va} offset:{s*2048}\n ds_read_b64_tr_b16 {vr(f+4*u+2,2)}, v{va} offset:{s*2048+1024}')
wread(0)
E(f's_mov_b32 s{sCnt}, {SPIN_LIMIT}')
for g in range(4):
    LBL(f'L_B_G{g}')
    E(f's_waitcnt vmcnt({12-4*g})')
    p=PO+16*g
    E(f'v_max_u32 v2, v{p}, v{p+4}\n v_max3_u32 v2, v{p+8}, v{p+12}, v2\n v_cmp_eq_u32 vcc, -1, v2\n s_cbranch_vccnz L_B_R{g}')
    LBL(f'L_B_K{g}')
    if DIAG and g==3:
        E(f's_cmp_eq_u32 s{sPass}, 0\n s_cbranch_scc1 L_B_NST'); stamp('B',10,'oA all seen'); LBL('L_B_NST')
    for s in range(4*g,4*g+4):
        if s<15: wread(s+1)
        E(f's_waitcnt lgkmcnt({4 if s<15 else 0})')
        f=PW+8*(s&1)
        if s==0:
            E(f's_cmp_eq_u32 s{sPass}, 0\n s_cbranch_scc0 L_B_M1')
            for u in range(2): mfma(PA_+16*u,f+4*u,PO+4*s,'0')
            E('s_branch L_B_M2'); LBL('L_B_M1')
            for u in range(2): mfma(PA_+16*u,f+4*u,PO+4*s)
            LBL('L_B_M2')
        else:
            for u in range(2): mfma(PA_+16*u,f+4*u,PO+4*s)
    save=L; L=[]
    LBL(f'L_B_R{g}')
    E(f's_sub_u32 s{sCnt}, s{sCnt}, 1\n s_cbranch_scc1 L_B_K{g}\n s_cmp_eq_u32 s{sPass}, 0\n s_cbranch_scc0 L_B_RR{g}\n s_sleep 16')
    LBL(f'L_B_RR{g}')
    E('s_waitcnt vmcnt(0)')
    oloads(g)
    E(f's_branch L_B_G{g}')
    RETRY.extend(L); L=save
E(f's_cmp_eq_u32 s{sPass}, 0\n s_cbranch_scc0 L_B_FIN')
lds_add(C_WD,1,vZ,2)
E(f's_add_u32 s{sOb}, s{sOb}, {hex((WS_OA-WS_OB)&0xffffffff)}\n s_mov_b32 s{sPass}, 1')
lds_spin(C_WD,None,4,vZ,2,sleep=2)
wodma(sWOA)
if OPT.get('dry','1')=='1':
    C('walk once through the closing code with no lane active: its instructions are then cached when they matter')
    E('s_mov_b64 exec, 0\n s_branch L_B_FIN')
    LBL('L_B_DRYD')
    E('s_mov_b64 exec, -1')
E('s_waitcnt vmcnt(0)')
stamp('B',9,'out-proj B done, woA in'); echo_mark('b9')
E('s_barrier'); echo_mark('aend'); E('s_branch L_B_GEMM')
LBL('L_B_FIN')
E('s_nop 9')
for q in range(4): E(f'ds_write_b128 v164, {vr(PA_+16+4*q,4)} offset:{1024*q}')
E('s_waitcnt lgkmcnt(0)\n s_cbranch_execz L_B_NBAR\n s_barrier')
LBL('L_B_NBAR')
for q in range(4): E(f'ds_read_b128 {vr(PB_+4*q,4)}, v165 offset:{1024*q}')
for q in range(4):
    E(f's_waitcnt lgkmcnt({3-q})')
    for r in range(4): E(f'v_add_f32 v{PA_+4*q+r}, v{PA_+4*q+r}, v{PB_+4*q+r}')
for r in range(8): cvt(PA_+r,PA_+2*r,PA_+2*r+1)
E('s_nop 1')
for gq in range(2): E(f'v_permlane32_swap_b32 v{PA_+4*gq}, v{PA_+4*gq+2}\n v_permlane32_swap_b32 v{PA_+4*gq+1}, v{PA_+4*gq+3}')
if OPT.get('dry','1')=='1': E('s_cbranch_execz L_B_DRYD')
for gq in range(2): E(f'buffer_store_dwordx4 {vr(PA_+4*gq,4)}, v167, {sr(sOUT)}, s{sOut} offen offset:{32*gq} '+OPT.get('ost','').replace('+',' '))
if DIAG: E('s_waitcnt vmcnt(0)')
stamp('B',11,'out stored'); echo_end()
stamp_flush(12)
E('s_endpgm')
L.extend(RETRY)

LBL('L_A')
AIDX=8; AKA=9; AVA=10; AQ0=12; AQ1=16; AK=20; AV=28; SA=44; SB=60; OA=76; OB=92; XA=108; WA=160; AF=112
L_PG=L_PART+4096
sStr=sT+10; sRing=sT+7
E(f'v_and_b32 v5, 15, v0\n v_lshlrev_b32 v6, 4, v0\n s_and_b32 s{sT+9}, s{sHg}, 3\n s_cmp_lt_u32 s{sWave}, 4\n s_cbranch_scc0 L_A_KV')
C('---- waves 0..3 : wave m streams 64 columns of matrix m (wq | B q | B k | B v) through its own 8 x 2KB ring')
E(f's_cmp_eq_u32 s{sWave}, 0\n s_cselect_b32 s{sWB}, s6, s16\n s_cselect_b32 s{sWB+1}, s7, s17\n s_mov_b32 s{sWB+2}, {512*3072}\n s_cselect_b32 s{sWB+2}, {512*1024}, s{sWB+2}\n s_mov_b32 s{sWB+3}, 0x20000')
E(f's_movk_i32 s{sStr}, 3072\n s_cselect_b32 s{sStr}, 0x400, s{sStr}\n s_max_u32 s{sT+1}, s{sWave}, 1\n s_sub_u32 s{sT+1}, s{sT+1}, 1\n s_lshl_b32 s{sT+1}, s{sT+1}, 10\n s_lshl_b32 s{sT+2}, s{sHg}, 7\n s_add_u32 s{sT+1}, s{sT+1}, s{sT+2}')
dma128_voff(162,2,3,f's{sStr}',f's{sT+1}')
mkrot()
E(f's_lshl_b32 s{sStr}, s{sStr}, 3\n s_lshl_b32 s{sRing}, s{sWave}, 14')
E(f's_sub_u32 s{sT+1}, s{sStr}, 1024\n v_add_u32 v163, s{sT+1}, v162\n s_lshl_b32 s{sStr}, s{sStr}, 1')
def wdma_parts(st):
    p0=f's_add_u32 m0, s{sRing}, {(st%8)*2048}\n'
    if st%4==0: p0+=f's_add_u32 s{sT+3}, s{sRot}, {st//4}\n s_and_b32 s{sT+3}, s{sT+3}, 7\n s_lshl_b32 s{sT+3}, s{sT+3}, 2\n s_mul_i32 s{sT+3}, s{sT+3}, s{sStr}'
    else: p0+=f's_add_u32 s{sT+3}, s{sT+3}, s{sStr}'
    VQ.extend([f'w{st}']*2)
    return [p0, f'buffer_load_dwordx4 v162, {sr(sWB)}, s{sT+3} offen lds', f'buffer_load_dwordx4 v163, {sr(sWB)}, s{sT+3} offen offset:1024 lds']
def wdma(st):
    for p in wdma_parts(st): E(p)
if OPT.get('p0','2')!='0': E(f's_cmp_eq_u32 s{sWave}, 0\n s_cbranch_scc0 L_A_NP0\n s_setprio {OPT.get("p0","3")}\nL_A_NP0:')
NW0=int(OPT.get('nw0','8'))
VQ.clear()
for st in range(NW0): wdma(st)
E('s_branch L_A_NOKV')
LBL('L_A_KV')
E(f's_setprio 3\n s_load_dword s{sTag}, s[26:27], {WS_EPOCH}')
C('---- kvA: this WG makes 16 positions (hg&3) of K (hg<4) or V, and their gate ; wave 4+u sums k in [128u,128u+128)')
E(f's_cmp_lt_u32 s{sHg}, 4\n s_cselect_b32 s{sWKV}, s8, s10\n s_cselect_b32 s{sWKV+1}, s9, s11\n s_mov_b32 s{sWKV+2}, 16384\n s_mov_b32 s{sWKV+3}, 0x20000\n s_and_b32 s{sT+3}, s{sWave}, 3')
E(f's_lshl_b32 s{sT+1}, s{sPb}, 16\n s_lshl_b32 s{sT+2}, s{sT+9}, 14\n s_add_u32 s{sT+1}, s{sT+1}, s{sT+2}\n s_lshl_b32 s{sT+2}, s{sT+3}, 8\n s_add_u32 s{sT+1}, s{sT+1}, s{sT+2}')
E('v_lshlrev_b32 v3, 10, v5\n v_and_b32 v4, 48, v0\n v_add_u32 v3, v3, v4')
for s_ in range(4): E(f'buffer_load_dwordx4 {vr(116+4*s_,4)}, v3, {sr(sX)}, s{sT+1} offen offset:{64*s_}')
if MAP=='c' and OPT.get('wkt','1')=='1':
    E(f's_cmp_eq_u32 s{sWave}, 4\n s_cbranch_scc0 L_A_NT2\n s_lshr_b32 s{sT+4}, s2, 3\n s_lshl_b32 s{sT+4}, s{sT+4}, 9\n v_lshlrev_b32 v2, 7, v0\n s_mov_b64 exec, 15\n buffer_load_dword v167, v2, {sr(sWKV)}, s{sT+4} offen\n s_mov_b64 exec, -1')
    LBL('L_A_NT2')
srd(sG,20,1024)
for s_ in range(4): E(f'buffer_load_dwordx4 {vr(132+4*s_,4)}, v4, {sr(sG)}, s{sT+2} offen offset:{64*s_}')
E(f's_lshl_b32 s{sT}, s{sT+3}, 12\n s_add_u32 m0, s{sT}, {L_ST}\n s_nop 0')
for i in range(4): E(f'buffer_load_dwordx4 v6, {sr(sWKV)}, s{sT} offen offset:{1024*i} lds')
LBL('L_A_NOKV')
C('---- address of this wave\'s o slot, constants')
sOA=sT+8
E(f's_and_b32 s{sOA}, s{sWave}, 1\n s_lshl_b32 s{sT+1}, s{sPb}, 1\n s_add_u32 s{sOA}, s{sOA}, s{sT+1}\n s_lshl_b32 s{sOA}, s{sOA}, 5')
E(f's_lshl_b32 s{sT+1}, s{sHg}, 2\n s_add_u32 s{sOA}, s{sOA}, s{sT+1}\n s_and_b32 s{sT+1}, s{sWave}, 2\n s_add_u32 s{sOA}, s{sOA}, s{sT+1}\n s_lshr_b32 s{sT+1}, s{sWave}, 2\n s_add_u32 s{sOA}, s{sOA}, s{sT+1}\n s_lshl_b32 s{sOA}, s{sOA}, 10\n s_add_u32 s{sOA}, s{sOA}, {hex(WS_OA)}')
E(f'v_mov_b32 v{vZ}, {L_ST}\n v_lshlrev_b32 v11, 2, v0')
traddr128(WA,2,3,3,'0'); E(f's_lshl_b32 s{sT+1}, s{sWave}, 14\n v_add_u32 v{WA}, s{sT+1}, v{WA}\n v_xor_b32 v{WA+1}, 64, v{WA}')
E(f'v_and_b32 v2, 31, v0\n v_bfe_u32 v3, v0, 1, 3\n v_lshrrev_b32 v7, 5, v0\n v_xor_b32 v3, v3, v7\n v_lshlrev_b32 v{XA}, 7, v2\n v_lshl_add_u32 v{XA}, v3, 4, v{XA}\n v_add_u32 v{XA}, 0x10000, v{XA}')
for s_ in range(1,4): E(f'v_xor_b32 v{XA+s_}, {s_<<5}, v{XA}')
for r in range(32): E(f'v_mov_b32 v{OA+r}, 0')
set_vpad(list(range(AV,AV+16)),2)
E(f'v_mov_b32 v{AIDX}, 0xdddddddd')
E(f's_lshr_b32 s{sT+1}, s{sWave}, 2\n s_lshl_b32 s{sT+1}, s{sT+1}, 11\n v_add_u32 v{AKA}, s{sT+1}, v6')
E(f'v_lshlrev_b32 v7, 8, v7\n v_lshl_add_u32 v7, v5, 4, v7\n v_add_u32 v{AVA}, s{sT+1}, v7')
E(f's_lshl_b32 s{sT+6}, s{sHg}, 5\n s_add_u32 s{sT+6}, s{sT+6}, s{sPb}\n s_lshl_b32 s{sT+6}, s{sT+6}, 7\n s_lshl_b32 s{sT+1}, s{sWave}, 2\n s_add_u32 s{sT+6}, s{sT+6}, s{sT+1}\n s_add_u32 s{sT+6}, s{sT+6}, {hex(WS_FKVB)}')
E(f's_cmp_lt_u32 s{sWave}, 4\n s_cbranch_scc1 L_A_GQ\n s_waitcnt lgkmcnt(0)')
mktag()
E(f'v_lshrrev_b32 v4, 4, v0\n v_lshlrev_b32 v4, 8, v4\n v_lshl_add_u32 v4, v5, 3, v4\n s_add_u32 s{sT}, s{sT}, {L_ST}\n v_add_u32 v4, s{sT}, v4')
E(f's_lshl_b32 s{sT+1}, s{sT+3}, 10\n s_add_u32 s{sT+1}, s{sT+1}, {L_PART}\n v_add_u32 v2, s{sT+1}, v6\n s_lshl_b32 s{sT+1}, s{sT+3}, 8\n s_add_u32 s{sT+1}, s{sT+1}, {L_PG}\n v_add_u32 v3, s{sT+1}, v11')
E('s_waitcnt vmcnt(0)')
for s_ in range(4): E(f'ds_read_b64_tr_b16 {vr(44+4*s_,2)}, v4 offset:{1024*s_}\n ds_read_b64_tr_b16 {vr(46+4*s_,2)}, v4 offset:{1024*s_+128}')
for s_ in range(4): E(f'v_mfma_f32_16x16x32_bf16 v[64:67], {vr(132+4*s_,4)}, {vr(116+4*s_,4)}, {"0" if s_==0 else "v[64:67]"}')
E(f's_cmp_lt_u32 s{sHg}, 4\n s_waitcnt lgkmcnt(0)\n s_cbranch_scc0 L_A_VJOB')
for s_ in range(4): E(f'v_mfma_f32_16x16x32_bf16 v[60:63], {vr(44+4*s_,4)}, {vr(116+4*s_,4)}, {"0" if s_==0 else "v[60:63]"}')
E('s_branch L_A_KVJ')
LBL('L_A_VJOB')
for s_ in range(4): E(f'v_mfma_f32_16x16x32_bf16 v[60:63], {vr(116+4*s_,4)}, {vr(44+4*s_,4)}, {"0" if s_==0 else "v[60:63]"}')
LBL('L_A_KVJ')
E('s_nop 0\n ds_write_b32 v3, v64\n s_nop 5\n ds_write_b128 v2, v[60:63]')
stamp('A',2,'kvA partial')
E('s_waitcnt lgkmcnt(0)')
tag_set(T_PT,sT+3,2)
E(f's_cmp_eq_u32 s{sWave}, 7\n s_cbranch_scc0 L_A_BS')
C('---- wave 7: reduce the four partial tiles, store, flag')
tag_wait(T_PT,4,2)
E(f'v_add_u32 v3, {L_PART}, v6\n v_add_u32 v4, {L_PG}, v11')
for i in range(4): E(f'ds_read_b128 {vr(116+4*i,4)}, v3 offset:{1024*i}')
for i in range(2): E(f'ds_read2st64_b32 {vr(148+2*i,2)}, v4 offset0:{2*i} offset1:{2*i+1}')
E(f's_lshl_b32 s{sT+3}, s{sPb}, 1\n s_lshr_b32 s{sT+4}, s{sT+9}, 1\n s_add_u32 s{sT+3}, s{sT+3}, s{sT+4}\n s_lshl_b32 s{sT+3}, s{sT+3}, 11\n s_add_u32 s{sT+3}, s{sT+3}, {hex(WS_KVA)}\n s_and_b32 s{sT+4}, s{sT+9}, 1')
E(f's_cmp_lt_u32 s{sHg}, 4\n s_cselect_b32 s{sT+5}, 9, 3\n s_cselect_b32 s{sT+7}, 3, 8\n s_cselect_b32 s{sT+1}, 8, 9\n s_cselect_b32 s{sT}, 0, 0x400')
E(f's_lshl_b32 s{sT+4}, s{sT+4}, s{sT+1}\n s_add_u32 s{sT+3}, s{sT+3}, s{sT+4}\n s_add_u32 s{sT+3}, s{sT+3}, s{sT}')
E(f'v_bfe_u32 v3, v0, 4, 1\n v_lshrrev_b32 v4, 5, v0\n v_lshlrev_b32 v5, 4, v5\n v_lshl_add_u32 v5, v3, s{sT+5}, v5\n v_lshl_add_u32 v5, v4, s{sT+7}, v5')
FPLS=int(OPT.get('fpl','2'))
E(f's_lshl_b32 s{sT+7}, s{sPb}, 3\n s_add_u32 s{sT+7}, s{sT+7}, s{sHg}\n s_and_b32 s{sT+1}, s{sT+7}, {(1<<FPLS)-1}\n s_lshr_b32 s{sT+7}, s{sT+7}, {FPLS}\n s_lshl_b32 s{sT+7}, s{sT+7}, 7\n s_lshl_b32 s{sT+1}, s{sT+1}, 2\n s_add_u32 s{sT+7}, s{sT+7}, s{sT+1}\n s_add_u32 s{sT+7}, s{sT+7}, {hex(WS_FKVA)}')
E('s_waitcnt lgkmcnt(2)')
for st_ in (8,4):
    for r in range(st_): E(f'v_add_f32 v{116+r}, v{116+r}, v{116+st_+r}')
cvt(116,116,117); cvt(117,118,119)
E(f'buffer_store_dwordx2 v[116:117], v5, {sr(sWS)}, s{sT+3} offen sc1')
E(f's_cmp_lt_u32 s{sHg}, 4\n s_waitcnt lgkmcnt(0)\n s_cbranch_scc0 L_A_SF')
for st_ in (2,1):
    for r in range(st_): E(f'v_add_f32 v{148+r}, v{148+r}, v{148+st_+r}')
E(f's_mov_b32 s{sT}, {hex(f2u(-math.log2(math.e)))}\n v_mul_f32 v148, s{sT}, v148\n v_exp_f32 v148, v148')
E(f's_lshl_b32 s{sT}, s{sPb}, 2\n s_add_u32 s{sT}, s{sT}, s{sT+9}\n v_add_f32 v148, 1.0, v148\n v_rcp_f32 v148, v148\n s_lshl_b32 s{sT}, s{sT}, 6\n s_add_u32 s{sT}, s{sT}, {hex(WS_G)}')
E(f's_mov_b64 exec, 0xffff\n buffer_store_dword v148, v11, {sr(sWS)}, s{sT} offen sc1\n s_mov_b64 exec, -1')
LBL('L_A_SF')
E('s_waitcnt vmcnt(0)')
flag_store(sT+7,2)
stamp('A',3,'kvA flag sent')
LBL('L_A_BS')
E(f's_cmp_eq_u32 s{sWave}, 6\n s_cbranch_scc0 L_A_B8')
C('---- wave 6: wait for every K/V piece, fetch this WG\'s share into L2, tell the projection waves')
E(f'v_lshlrev_b32 v16, 7, v0\n v_lshrrev_b32 v17, {FPLS-2}, v0\n v_lshlrev_b32 v17, 7, v17\n v_and_b32 v18, {(1<<(FPLS-2))-1}, v0\n v_lshl_add_u32 v17, v18, 4, v17\n v_add_u32 v17, {hex(WS_FKVA)}, v17')
E(f'v_mov_b32 v2, s{sTag}\n ds_write_b32 v{vZ}, v2 offset:{T_TAG-L_ST}')
tag_wait(T_PT,4,2)
tag_wait(T_PL,1,2,sleep=2)
C('lanes whose four flags are in drop out of the next look')
E(f's_mov_b32 s{sCnt}, {SPIN_LIMIT}')
LBL('L_A_PL')
E(f'buffer_load_dwordx4 v[12:15], v17, {sr(sWS)}, 0 offen sc1\n s_waitcnt vmcnt(0)')
for i in range(4): E(f'v_xor_b32 v{12+i}, s{sTag}, v{12+i}')
E(f'v_or3_b32 v12, v12, v13, v14\n v_or_b32 v12, v12, v15\n v_cmp_ne_u32 vcc, 0, v12\n s_cbranch_vccz L_A_PLD\n s_sub_u32 s{sCnt}, s{sCnt}, 1\n s_cbranch_scc1 L_A_PLD\n s_mov_b64 exec, vcc\n s_sleep {OPT.get("psl","16")}\n s_branch L_A_PL')
LBL('L_A_PLD')
E('s_mov_b64 exec, -1')
E(f's_lshr_b32 s{sT+5}, s2, 3\n s_lshl_b32 s{sT+5}, s{sT+5}, 12\n s_add_u32 s{sT+5}, s{sT+5}, {hex(WS_KVA)}')
E(f's_mov_b32 exec_hi, 0\n buffer_load_dword v117, v16, {sr(sWS)}, s{sT+5} offen sc1\n s_mov_b64 exec, -1')
tag_set(T_FL,None,2)
stamp('A',3,'kvA flag sent')
E(f's_lshr_b32 s{sT+5}, s2, 3\n s_and_b32 s{sT+5}, s{sT+5}, 3\n s_lshl_b32 s{sT+5}, s{sT+5}, 14\n s_add_u32 s{sT+5}, s{sT+5}, {hex(WS_KVA)}')
for q in range(4):
    E(f's_mov_b32 m0, {L_ST+4096*q}\n s_add_u32 s{sT+4}, s{sT+5}, {4096*q}')
    for i in range(4): E(f'buffer_load_dwordx4 v6, {sr(sWS)}, s{sT+4} offen offset:{1024*i} sc1 lds')
E('s_waitcnt vmcnt(0)')
tag_set(T_K0,None,2)
stamp('A',7,'G1')
E(f's_cmp_eq_u32 s2, 0\n s_cbranch_scc0 L_A_B8\n s_mov_b32 s{sT}, 0')
flag_store(sT,2)
E('s_branch L_A_B8')
LBL('L_A_GQ')
PAC=[44,60,128,144]; PFR=[12,112,92]
def areads_l(st):
    f=PFR[st%3]; so=(st%8)*2048; o=[]
    for i in range(2): o+= [f'ds_read_b64_tr_b16 {vr(f+4*i,2)}, v{WA+i} offset:{so}', f'ds_read_b64_tr_b16 {vr(f+4*i+2,2)}, v{WA+i} offset:{so+512}']
    for t in range(2): o.append(f'ds_read_b128 {vr(f+8+4*t,4)}, v{XA+st%4} offset:{(st//4)*8192+4096*t}')
    return o
def areads(st):
    for p in areads_l(st): E(p)
def kv_parts(p):
    VQ.extend(['kv']*2)
    return [f's_add_u32 m0, s{sRing}, {p*2048}\n s_add_u32 s{sT+4}, s{sT+5}, {p*2048}']+[f'buffer_load_dwordx4 v6, {sr(sWS)}, s{sT+4} offen offset:{1024*n} sc1 lds' for n in range(2)]
def kvpiece(p):
    for q in kv_parts(p): E(q)
for st in range(NW0,8): wdma(st)
E(f's_sub_u32 s{sT+4}, s{sWave}, 1\n s_cmp_eq_u32 s{sWave}, 1\n s_cselect_b32 s{sT+4}, 3, s{sT+4}\n s_lshr_b32 s{sT+5}, s2, 3\n s_add_u32 s{sT+5}, s{sT+5}, s{sT+4}\n s_and_b32 s{sT+5}, s{sT+5}, 3\n s_lshl_b32 s{sT+5}, s{sT+5}, 14\n s_add_u32 s{sT+5}, s{sT+5}, {hex(WS_KVA)}')
tag_wait(T_X0,4,2) if XD else tag_wait(T_X,1,2)
stamp('A',7,'G1')
vwait('w0'); areads(0); vwait('w1'); areads(1)
VQ0=list(VQ)
PLK=int(OPT.get('plk','15'))
E(f's_cmp_eq_u32 s{sWave}, 3\n s_cbranch_scc1 L_A_GV')
def gstep(var,st,kv):
    f=PFR[st%3]
    def mm(i,t):
        d=PAC[2*i+t]; c='0' if st==0 else None
        if var==0: mfma(d,f+4*i,f+8+4*t,c)
        else: mfma(d,f+8+4*t,f+4*i,c)
    vwait(f'w{st+2}',f' lgkmcnt({6 if st<31 else 0})')
    rd=areads_l(st+2) if st+2<32 else []
    dm=wdma_parts(st+8) if st+8<32 else (kv_parts(st%8) if kv else [])
    gaps=[rd[0:2]+dm[0:1], rd[2:4]+dm[1:2], rd[4:6], dm[2:3]]
    if st>=30: gaps=[[f'v_mov_b32 v{OB+8*(st-30)+2*q+r}, 0' for r in range(2)]+gaps[q] for q in range(4)]
    for q,(i,t) in enumerate(((0,0),(0,1),(1,0),(1,1)) if st<31 else ((1,0),(1,1),(0,0),(0,1))):
        mm(i,t)
        for p in gaps[q]: E(p)
for var in (0,1):
    if var: LBL('L_A_GV')
    VQ[:]=VQ0
    for st in range(24):
        if OPT.get('hold') and st==0:
            E(f's_cmp_eq_u32 s{sWave}, 0\n s_cbranch_scc1 L_A_NH{var}'); tag_wait(T_H,1,2,sleep=2); LBL(f'L_A_NH{var}')
        if OPT.get('hold') and var==0 and st==int(OPT.get('hold')):
            E(f's_cmp_eq_u32 s{sWave}, 0\n s_cbranch_scc0 L_A_NH2'); tag_set(T_H,None,2); E('s_waitcnt lgkmcnt(0)'); LBL('L_A_NH2')
        if st==2: E('s_waitcnt lgkmcnt(0)'); tag_wait(T_X,4,2)
        if st==14: E('s_waitcnt lgkmcnt(0)'); tag_wait(T_X+16,4,2)
        if st==PLK and var==1: tag_set(T_PL,None,2); E('s_waitcnt lgkmcnt(0)')
        gstep(var,st,False)
    stamp('A',2,'step 24'); cstamp('A',10,'s24')
    if var==0: E(f's_cmp_eq_u32 s{sWave}, 0\n s_cbranch_scc1 L_A_G0')
    tag_wait(T_FL,1,2,once=f'L_A_GK{var}')
    if var==0: LBL('L_A_G0')
    V1=list(VQ)
    for st in range(24,32): gstep(var,st,False)
    if var==0: E(f's_cmp_eq_u32 s{sWave}, 0\n s_cbranch_scc1 L_A_GE0')
    tag_wait(T_FL,1,2)
    for p in range(8): kvpiece(p)
    E(f's_branch L_A_GE{var}')
    LBL(f'L_A_GK{var}')
    VQ[:]=V1
    for st in range(24,32): gstep(var,st,True)
    LBL(f'L_A_GE{var}')
    stamp('A',1,'proj loop done'); cstamp('A',11,'pl')
    E(f's_lshl_b32 s{sT+4}, s{sHg}, 8\n s_lshl_b32 s{sT+5}, s{sPb}, 1\n s_add_u32 s{sT+4}, s{sT+4}, s{sT+5}\n s_lshl_b32 s{sT+4}, s{sT+4}, 11\n s_add_u32 s{sT+4}, s{sT+4}, {hex(WS_KVB)}')
    if var==0:
        E(f's_cmp_eq_u32 s{sWave}, 2\n s_cbranch_scc1 L_A_EK')
        C('q (A / B): scale, pack, hand over through LDS')
        E(f's_cmp_eq_u32 s{sWave}, 0\n s_cbranch_scc1 L_A_Q0')
        tag_wait(T_G,1,2)
        LBL('L_A_Q0')
        E(f's_lshl_b32 s{sT+1}, s{sWave}, 13\n s_add_u32 s{sT+1}, s{sT+1}, {L_QA}\n v_add_u32 v3, s{sT+1}, v6\n s_mov_b32 s{sT+2}, {hex(CSCALE)}\n s_mov_b32 s{sT+3}, {hex(CSCALE)}\n s_lshl_b32 s{sT+1}, s{sWave}, 2\n s_add_u32 s{sT+1}, s{sT+1}, {T_Q1}\n v_mov_b32 v4, s{sT+1}\n v_mov_b32 v5, 1')
        for i in (1,0):
            for t in range(2):
                d=PAC[2*i+t]
                for r in range(0,16,2): E(f'v_pk_mul_f32 {vr(d+r,2)}, {vr(d+r,2)}, {sr(sT+2,2)}')
                for r in range(8): cvt(d+r,d+2*r,d+2*r+1)
                for hh in range(2): E(f'ds_write_b128 v3, {vr(d+4*hh,4)} offset:{(2*i+hh)*2048+1024*t}')
            if i==1: E(f's_mov_b64 exec, 1\n ds_write_b32 v4, v5\n s_mov_b64 exec, -1')
        E('s_waitcnt vmcnt(0) lgkmcnt(0)')
        tag_set(T_G,sWave,2)
        E('s_branch L_A_B8')
        LBL('L_A_EK')
        E('s_waitcnt vmcnt(0)')
        tag_set(T_G,sWave,2)
        for i in range(2):
            for t in range(2):
                d=PAC[2*i+t]
                for r in range(8): cvt(d+r,d+2*r,d+2*r+1)
                for hh in range(2): E(f's_add_u32 s{sT+5}, s{sT+4}, {(2*i+hh)*131072}\n buffer_store_dwordx4 {vr(d+4*hh,4)}, v6, {sr(sWS)}, s{sT+5} offen offset:{2048*t} sc1')
        E('s_branch L_A_B8')
    else:
        E('s_waitcnt vmcnt(0)')
        tag_set(T_G,sWave,2)
        E('v_bfe_u32 v3, v0, 4, 1\n v_lshl_add_u32 v3, v3, 17, v7')
        for i in range(2):
            for t in range(2):
                d=PAC[2*i+t]
                for r in range(8): cvt(d+r,d+2*r,d+2*r+1)
                E('s_nop 1')
                for gq in range(2): E(f'v_permlane32_swap_b32 v{d+4*gq}, v{d+4*gq+2}\n v_permlane32_swap_b32 v{d+4*gq+1}, v{d+4*gq+3}')
                E(f's_add_u32 s{sT+5}, s{sT+4}, {i*2*131072}')
                for gq in range(2): E(f'buffer_store_dwordx4 {vr(d+4*gq,4)}, v3, {sr(sWS)}, s{sT+5} offen offset:{2048*t+1024+512*gq} sc1')
LBL('L_A_B8')
E('s_setprio 0')
E(f's_and_b32 s{sT+1}, s{sWave}, 2\n s_lshr_b32 s{sT+2}, s{sWave}, 2\n s_add_u32 s{sT+1}, s{sT+1}, s{sT+2}\n s_lshl_b32 s{sT+1}, s{sT+1}, 11\n s_and_b32 s{sT+2}, s{sWave}, 1\n s_lshl_b32 s{sT+2}, s{sT+2}, 10\n s_add_u32 s{sT+1}, s{sT+1}, s{sT+2}\n s_add_u32 s{sT+1}, s{sT+1}, {L_QA}\n v_add_u32 v2, s{sT+1}, v6\n v_xor_b32 v3, 0x800, v2')
AK0=120; AV0=121; AEX=122; AG=126
E(f'v_add_u32 v{AK0}, {L_ST}, v{AKA}\n v_add_u32 v{AV0}, {L_ST}, v{AVA}')
E(f's_and_b32 s{sT+2}, s{sWave}, 3\n s_mul_i32 s{sT+1}, s{sT+2}, 4608\n s_add_u32 s{sT+1}, s{sT+1}, {L_EX}\n v_add_u32 v{AEX}, s{sT+1}, v6\n v_add_u32 v{AEX+1}, s{sT+1}, v11')
E(f's_lshl_b32 s{sT+2}, s{sT+2}, 2\n s_add_u32 s{sT+2}, s{sT+2}, {C_PR}\n v_mov_b32 v{AEX+2}, s{sT+2}')
E(f's_and_b32 s{sT+1}, s{sWave}, 1\n s_lshl_b32 s{sT+2}, s{sPb}, 1\n s_add_u32 s{sT+1}, s{sT+1}, s{sT+2}\n s_lshl_b32 s{sT+1}, s{sT+1}, 7\n s_add_u32 s{sT+1}, s{sT+1}, {hex(WS_G)}\n v_and_b32 v127, 0x7c, v11')
tag_wait(T_K0,1,4,sleep=int(OPT.get('asl','2')))
E(f'buffer_load_dword v{AG}, v127, {sr(sWS)}, s{sT+1} offen sc1')
tag_get(4)
def kvoff(j):
    return (j%4)*4096+(0 if j<4 else KVPOS[j//4]-(65536 if j>=20 else 0))
def ldk(j): E(f'ds_read_b128 {vr(AK+4*(j&1),4)}, v{AK0 if j<4 else AKA} offset:{kvoff(j)}')
def ldv(j): E(f's_mov_b64 exec, {sr(sVM,2)}\n ds_read_b128 {vr(AV+8*(j&1),4)}, v{AV0 if j<4 else AVA} offset:{kvoff(j)+1024}\n ds_read_b128 {vr(AV+8*(j&1)+4,4)}, v{AV0 if j<4 else AVA} offset:{kvoff(j)+1536}\n s_mov_b64 exec, -1')
ldk(0); ldv(0); ldk(1)
E(f's_bitcmp1_b32 s{sWave}, 1\n s_cbranch_scc0 L_A_WL')
tag_wait(T_Q1,1,4,sleep=int(OPT.get('asl2','1')))
E('s_branch L_A_WD')
LBL('L_A_WL')
tag_wait(T_G,1,4,sleep=int(OPT.get('asl2','1')))
LBL('L_A_WD')
stamp('A',4,'BQ'); cstamp('A',8,'BQ')
E(f'ds_read_b128 {vr(AQ0,4)}, v2\n ds_read_b128 {vr(AQ1,4)}, v3')
if PRIO in ('step','step4'): E('s_setprio 2')
E('s_waitcnt lgkmcnt(0)'); mfma(SA,AK,AQ0,'0')
lds_add(C_QR,1,vZ,2)
E('s_nop 7')
def pair_iter(j,ldk_,ldv_,first=False,last=0,extra=0):
    kc=AK+4*(j&1); kn=AK+4*((j+1)&1); vc=AV+8*(j&1); vp=AV+8*((j+1)&1)
    vexp(SA); vexp(SA+1)
    if not first: smf(OB,vp+4,SB+8,AIDX)
    for r in range(2,5): vexp(SA+r)
    mfma(SB,kc,AQ1,'0')
    for r in range(5,10): vexp(SA+r)
    E(f's_waitcnt lgkmcnt({(1 if last<2 else 0)+extra})')
    vexp(SA+10); smf(OA,vc,SA,AIDX)
    for r in range(11,16): vexp(SA+r)
    vexp(SB); vexp(SB+1); smf(OA,vc+4,SA+8,AIDX)
    if last<2: ldv_()
    for r in range(2,5): vexp(SB+r)
    if last<2:
        E('s_waitcnt lgkmcnt(2)'); mfma(SA,kn,AQ0,'0')
    if last<1: ldk_()
    for r in range(5,11): vexp(SB+r)
    smf(OB,vc,SB,AIDX)
    for r in range(11,16): vexp(SB+r)
def aflag(force,init=False):
    sk=uid('fl')
    E(f's_cmp_eq_u32 s{sT+5}, 0\n s_cbranch_scc0 {sk}')
    if not force: E(f's_getreg_b32 s{sT}, hwreg(HW_REG_IB_STS, 0, 4)\n s_cmp_eq_u32 s{sT}, 0\n s_cbranch_scc0 {sk}')
    E(f's_waitcnt vmcnt(0)\n s_mov_b32 s{sT+5}, 1'); flag_store(sT+6,2); LBL(sk)
if ROLL:
    AKN=120; AVN=121; sC=sT+4
    def rk(j):
        a_=AKA if j<4 else AKN
        return lambda: E(f'ds_read_b128 {vr(AK+4*(j&1),4)}, v{a_} offset:{(j%4)*4096}')
    def rv(j):
        a_=AVA if j<4 else AVN
        return lambda: E(f's_mov_b64 exec, {sr(sVM,2)}\n ds_read_b128 {vr(AV+8*(j&1),4)}, v{a_} offset:{(j%4)*4096+1024}\n ds_read_b128 {vr(AV+8*(j&1)+4,4)}, v{a_} offset:{(j%4)*4096+1536}\n s_mov_b64 exec, -1')
    for r in range(8,16): E(f'v_mov_b32 v{SB+r}, 0')
    E(f'v_add_u32 v{AKN}, 0x8000, v{AKA}\n v_add_u32 v{AVN}, 0x8000, v{AVA}\n v_add_u32 v{AKA}, 0x4000, v{AKA}\n v_add_u32 v{AVA}, 0x4000, v{AVA}\n s_mov_b32 s{sC}, 0\n s_mov_b32 s{sT+5}, 0')
    L.append('.p2align 6')
    LBL('L_A_LOOP')
    pair_iter(0,rk(2),rv(1)); pair_iter(1,rk(3),rv(2))
    E(f's_cmp_gt_u32 s{sC}, 6\n s_cbranch_scc1 L_A_LAST\n s_bitcmp1_b32 0x5f, s{sC}\n s_cbranch_scc1 L_A_RARE')
    LBL('L_A_RBACK')
    pair_iter(2,rk(4),rv(3)); pair_iter(3,rk(5),rv(4))
    E(f's_add_u32 s{sC}, s{sC}, 1\n s_mov_b32 s{sT+1}, 0x4000\n s_cmp_eq_u32 s{sC}, 2\n s_cselect_b32 s{sT+1}, {hex((-49152)&0xffffffff)}, s{sT+1}\n s_cmp_eq_u32 s{sC}, 3\n s_cselect_b32 s{sT+1}, {hex((-65536)&0xffffffff)}, s{sT+1}')
    E(f'v_mov_b32 v{AKA}, v{AKN}\n v_mov_b32 v{AVA}, v{AVN}\n v_add_u32 v{AKN}, s{sT+1}, v{AKN}\n v_add_u32 v{AVN}, s{sT+1}, v{AVN}\n s_branch L_A_LOOP')
    LBL('L_A_RARE')
    E(f's_waitcnt lgkmcnt(0)\n s_cmp_gt_u32 s{sC}, 3\n s_cbranch_scc1 L_A_R4')
    E(f's_cmp_eq_u32 s{sC}, 0\n s_cbranch_scc0 L_A_R1'); lds_spin(C_K1,None,4,vZ,2,sleep=0)
    LBL('L_A_R1')
    E(f's_cmp_eq_u32 s{sC}, 2\n s_cbranch_scc0 L_A_R2'); lds_spin(C_K2,None,4,vZ,2,sleep=1)
    LBL('L_A_R2')
    E(f's_cmp_eq_u32 s{sC}, 3\n s_cbranch_scc1 L_A_R3'); aflag(False); E('s_branch L_A_RBACK')
    LBL('L_A_R3'); aflag(True); E('s_branch L_A_RBACK')
    LBL('L_A_R4')
    E(f's_cmp_eq_u32 s{sC}, 4\n s_cbranch_scc0 L_A_R6'); lds_add(C_MID,1,vZ,2); E('s_waitcnt lgkmcnt(0)\n s_branch L_A_RBACK')
    LBL('L_A_R6'); lds_spin(C_MID,None,8,vZ,2,sleep=1); E('s_branch L_A_RBACK')
    LBL('L_A_LAST')
    pair_iter(2,None,rv(3),last=1); pair_iter(3,None,None,last=2)
else:
    E(f's_and_b32 s{sT+5}, s{sWave}, 6\n s_cmp_eq_u32 s{sT+5}, 2\n s_cselect_b32 s{sT+5}, 0, 1')
    for j in range(32):
        if j in (2,6,10): E('s_waitcnt lgkmcnt(0)'); tag_wait(T_G+4*{2:2,6:3,10:1}[j],1,2)
        if j in (1,2,3,5): aflag(j==5)
        PJ=[int(x) for x in OPT.get('pj','11,22').split(',')]
        if PRIO=='step' and j in PJ: E(f's_setprio {1 if j==PJ[0] else 0}')
        if PRIO=='step4' and j in (6,16): E(f's_setprio {1 if j==6 else 0}')
        if OPT.get('jst') and j in (2,4,8,16,24): E('s_waitcnt lgkmcnt(0)'); cstamp('A',{2:1,4:2,8:3,16:7,24:10}[j],f'J{j}')
        if j==14: E('s_waitcnt lgkmcnt(0)'); lds_spin(C_K2,None,0x404,vZ,2,sleep=1)
        if j==20: lds_add(C_MID,1,vZ,2)
        if j==28: E('s_waitcnt lgkmcnt(0)'); lds_spin(C_MID,None,8,vZ,2,sleep=1)
        def lv(j=j):
            if j==19: E(f'v_add_u32 v{AVA}, 0x10000, v{AVA}')
            ldv(j+1)
        def lk(j=j):
            if j==18: E(f'v_add_u32 v{AKA}, 0x10000, v{AKA}')
            ldk(j+2)
        if j==31:
            C('has the partner of this wave (same queries, other keys) already left its sums ?  if so they arrive during the last tile')
            E(f'ds_read_b32 v127, v{AEX+2} offset:16\n ds_read_b32 v125, v{vZ} offset:{C_LOC-L_ST}')
            for q in range(2): E(f'ds_read_b128 {vr(128+12*q,4)}, v{AEX} offset:{2304*q}\n ds_read_b128 {vr(132+12*q,4)}, v{AEX} offset:{2304*q+1024}\n ds_read_b32 v{136+12*q}, v{AEX+1} offset:{2304*q+2048}')
        pair_iter(j,lk,lv,first=(j==0),last=(2 if j==31 else 1 if j==30 else 0),extra=(1 if j in (0,20) else 0))
E('s_nop 1'); smf(OB,AV+8+4,SB+8,AIDX)
stamp('A',5,'A loop done'); cstamp('A',9,'loop done')
C('---- the first wave of a pair to finish leaves both partial sums in LDS and ends ; the second one finishes both heads')
E(f'v_readfirstlane_b32 s{sT+1}, v127\n v_readfirstlane_b32 s{sT+9}, v125\n s_cmp_eq_u32 s{sT+1}, 1\n s_cbranch_scc1 L_A_LATE')
E(f'v_mov_b32 v2, 1\n s_mov_b64 exec, 1\n ds_add_rtn_u32 v3, v{AEX+2}, v2\n s_mov_b64 exec, -1\n s_waitcnt lgkmcnt(0)\n v_readfirstlane_b32 s{sT+1}, v3\n s_cmp_eq_u32 s{sT+1}, 0\n s_cbranch_scc0 L_A_TIE\n s_nop 3')
for q,O in enumerate((OA,OB)): E(f'ds_write_b128 v{AEX}, {vr(O,4)} offset:{2304*q}\n ds_write_b128 v{AEX}, {vr(O+4,4)} offset:{2304*q+1024}\n ds_write_b32 v{AEX+1}, v{O+8} offset:{2304*q+2048}')
E(f's_mov_b64 exec, 1\n ds_write_b32 v{AEX+2}, v2 offset:16\n s_mov_b64 exec, -1\n s_waitcnt lgkmcnt(0)')
if OPT.get('dry','1')=='1': E('s_mov_b64 exec, 0\n s_branch L_A_LATE')
else: E('s_branch L_A_STD')
LBL('L_A_TIE')
E(f's_mov_b32 s{sCnt}, {SPIN_LIMIT}')
LBL('L_A_TI2')
E(f'ds_read_b32 v127, v{AEX+2} offset:16')
for q in range(2): E(f'ds_read_b128 {vr(128+12*q,4)}, v{AEX} offset:{2304*q}\n ds_read_b128 {vr(132+12*q,4)}, v{AEX} offset:{2304*q+1024}\n ds_read_b32 v{136+12*q}, v{AEX+1} offset:{2304*q+2048}')
E(f's_waitcnt lgkmcnt(0)\n v_readfirstlane_b32 s{sT+1}, v127\n s_cmp_eq_u32 s{sT+1}, 1\n s_cbranch_scc1 L_A_LATE\n s_sub_u32 s{sCnt}, s{sCnt}, 1\n s_cbranch_scc0 L_A_TI2')
LBL('L_A_LATE')
for r in range(9): E(f'v_add_f32 v{OA+r}, v{OA+r}, v{140+r}')
E('s_waitcnt vmcnt(0)')
def setupA(): E(f's_mov_b32 s{sT+2}, {hex(WS_KVA)}\n s_mov_b32 s{sT+3}, 64')
for q,(O,Q_) in enumerate(((OA,AQ0),(OB,AQ1))):
    if q==1:
        for r in range(9): E(f'v_add_f32 v{OB+r}, v{OB+r}, v{128+r}')
    dst=152+4*q
    finalize(O,dst,2,f'L_FB_A{q}',f'L_FB_A{q}_BACK',126)
    if q==1: E(f's_xor_b32 s{sOA}, s{sOA}, 0x400')
    E(f's_cbranch_execz L_A_ST{q}\n s_cmp_eq_u32 s{sT+9}, 0\n s_cbranch_scc1 L_A_FAR{q}\n buffer_store_dwordx4 {vr(dst,4)}, v6, {sr(sWS)}, s{sOA} offen\n s_branch L_A_ST{q}')
    LBL(f'L_A_FAR{q}')
    E(f'buffer_store_dwordx4 {vr(dst,4)}, v6, {sr(sWS)}, s{sOA} offen sc1')
    LBL(f'L_A_ST{q}')
    fallback(f'L_FB_A{q}',f'L_FB_A{q}_BACK',Q_,O,SA,AK,AV,AIDX,3,6,7,None,setupA)
LBL('L_A_STD')
if DIAG: E('s_mov_b64 exec, -1')
stamp('A',6,'oA published')
stamp_flush(12,'A')
LBL('L_END')
E('s_endpgm')
L.append('L_CODE_END:')
L.extend(TAIL)
L.append('    s_endpgm\n.fill 1200, 4, 0xbf810000')

hdr=open('cdna_kernels/%s.s.ref'%NAME).read().split('; Override launch')[0]
txt=hdr
txt+=f'; @launch grid=(256,1,1) block=(768,1,1) lds={LDS_TOTAL}\n'
for n in ('WS_KVA','WS_KVB','WS_OA','WS_OB','WS_STAMP','NSTAMP'): txt+=f'; CONST {n} = {hex(globals()[n])}\n'
for r,i,n in STN: txt+=f'; STAMPNAME {r} {i} {n}\n'
txt+=f'''.amdgcn_target "amdgcn-amd-amdhsa--gfx950"
.text
.globl {NAME}_kernel
.p2align 8
.type {NAME}_kernel,@function
{NAME}_kernel:
'''+'\n'.join(L)+f'''
.section .rodata,"a"
.p2align 6
.amdhsa_kernel {NAME}_kernel
  .amdhsa_next_free_vgpr 168
  .amdhsa_next_free_sgpr 102
  .amdhsa_accum_offset 168
  .amdhsa_group_segment_fixed_size 0
  .amdhsa_kernarg_size 96
  .amdhsa_user_sgpr_count 2
  .amdhsa_user_sgpr_kernarg_segment_ptr 1
  .amdhsa_system_sgpr_workgroup_id_x 1
.end_amdhsa_kernel
'''
open(OUT,'w').write(txt)
print('wrote',OUT,len(L),'lines')
```

```python
import sys, math, struct
NAME='gated_mix__grouped_kv_mqa__sliding_block__prompt'
DIAG = '--diag' in sys.argv
OUT = [a for a in sys.argv[1:] if not a.startswith('--')]
OUT = OUT[0] if OUT else 'cdna_kernels/%s.s'%NAME
OPT=dict(a.lstrip('-').split('=') for a in sys.argv[1:] if a.startswith('--') and '=' in a)
MAP=OPT.get('map','b'); ROT=OPT.get('rot','full'); PRIO=OPT.get('prio','step'); FLAG_IT=int(OPT.get('flagit','1')); PK=int(OPT.get('pk','7')); FORCE_K=int(OPT.get('forcek','7')); SENTK=int(OPT.get('sentk','14')); DENSE=OPT.get('dense','0')=='1'; ROLL=OPT.get('roll','0')=='1'; WT=OPT.get('wtouch','0')=='1'; KVK=int(OPT.get('kvk','13'))
def f2u(f): return struct.unpack('<I',struct.pack('<f',f))[0]

WS_EPOCH=0x0
WS_FKVA=0x1000
WS_FKVB=0x4000
WS_FOB =0xC000
WS_FOA =0x14000
WS_G   =0x1C000
WS_KVA =0x20000
WS_QB  =0x40000
WS_KVB =0x240000
WS_OA  =0x640000
WS_OB  =0x840000
WS_STAMP=0xA40000
NSTAMP=16
L_WQ=0; L_X=65536; L_ST=131072; L_CTL=L_ST+30720
L_GW=L_CTL; L_G=L_CTL+1024; L_C=L_CTL+1024+256
C_X=L_C+0
C_Q=L_C+4
C_K0=L_C+8; C_K1=L_C+12; C_K2=L_C+16; C_BP=L_C+20; C_MID=L_C+24; C_WO=L_C+28; C_WD=L_C+32; C_QR=L_C+36; C_SN=L_C+40; C_LOC=L_C+44; T_PT=L_C+256; T_X=L_C+272; T_PL=L_C+304; T_FL=L_C+308; T_G=L_C+320; T_X0=L_C+336; T_K0=L_C+352; T_Q1=L_C+356; T_H=L_C+368; T_TAG=L_C+372; C_PR=L_C+384; T_PR=L_C+400
L_EX=L_ST
LDS_TOTAL=163840
SPIN_LIMIT=400000
CSCALE=f2u(0.25*math.log2(math.e))
NEGBIG=f2u(-1e9)
L_LO=f2u(2.0**-24); L_HI=f2u(2.0**60)

sX=28; sWQ=32; sWKV=36; sWB=40; sWOA=44; sWOB=48; sG=52; sOUT=56; sWS=60; sDBG=64
sWave=68; sPb=69; sHg=70; sTag=71
sT=72
sCnt=84; sB=85
sXcc=65
sVM=86
sST=88
vZ=1
L=[]
def E(s):
    for ln in s.split('\n'):
        if ln.strip(): L.append('    '+ln.strip())
def LBL(s): L.append(s+':')
def C(s): L.append('    ; '+s)
_uid=[0]
def uid(p):
    _uid[0]+=1; return f'{p}_{_uid[0]}'
def vr(a,n): return f'v[{a}:{a+n-1}]'
def sr(a,n=4): return f's[{a}:{a+n-1}]'
def srd(dst,ptr,nbytes):
    E(f's_mov_b32 s{dst}, s{ptr}\n s_mov_b32 s{dst+1}, s{ptr+1}\n s_mov_b32 s{dst+2}, {hex(nbytes)}\n s_mov_b32 s{dst+3}, 0x20000')
STN=[]
def stamp(role,i,name):
    if OPT.get('acc') and role=='B' and i==10: return
    if OPT.get('jst') and role=='A' and i in (1,2,3,7): return
    if OPT.get('bst') and role=='B' and i in (6,7,8,9) and not name.startswith('arrive'): return
    if not DIAG: return
    STN.append((role,i,name))
    E(f's_memrealtime s[100:101]\n s_waitcnt lgkmcnt(0)\n s_mov_b32 s{sST+i}, s100')
ECHO=OPT.get('echo')
def echo_mark(name):
    if ECHO==name or name=='start' and ECHO:
        r=98 if name=='start' else 99
        E(f's_memrealtime s[100:101]\n s_waitcnt lgkmcnt(0)\n s_mov_b32 s{r}, s100')
def echo_end():
    if not ECHO: return
    E('s_waitcnt vmcnt(0)'); echo_mark('end')
    E('s_memrealtime s[100:101]\n s_waitcnt lgkmcnt(0)\n s_sub_u32 s99, s99, s98\n s_add_u32 s99, s99, s100')
    LBL('L_ECHO')
    E('s_memrealtime s[100:101]\n s_waitcnt lgkmcnt(0)\n s_sub_u32 s100, s100, s99\n s_cmp_lt_i32 s100, 0\n s_cbranch_scc1 L_ECHO')
def cstamp(role,i,name):
    if OPT.get('jst') and i in (10,11) and not name.startswith('J'): return
    if not DIAG: return
    STN.append((role,i,'CYC '+name))
    E(f's_memtime s[100:101]\n s_waitcnt lgkmcnt(0)\n s_mov_b32 s{sST+i}, s100')
def tacc(role,i,name,code):
    if not (DIAG and OPT.get('acc')): E(code); return
    if (role,i,'ACC '+name) not in STN: STN.append((role,i,'ACC '+name))
    E(f's_memtime s[100:101]\n s_waitcnt lgkmcnt(0)\n s_sub_u32 s{sST+i}, s{sST+i}, s100')
    E(code)
    E(f's_memtime s[100:101]\n s_waitcnt lgkmcnt(0)\n s_add_u32 s{sST+i}, s{sST+i}, s100')
def stamp_flush(nmax,role='B'):
    if not DIAG: return
    if OPT.get('dbg'):
        m={'A':[(0,1),(2,2),(7,3),(3,4),(1,5),(4,6),(5,7),(6,8)],'B':[(4,9),(6,10),(7,11),(9,12),(10,13),(11,14)]}[role]
        sk=uid('nd')
        srd(sDBG,24,256)
        E(f's_bfe_u32 s{sT}, s2, 0x30003\n s_cmp_eq_u32 s{sT}, 0\n s_cbranch_scc0 {sk}\n v_mov_b32 v2, 0\n s_not_b32 s{sT}, s{sST}\n v_writelane_b32 v2, s{sT}, 0')
        for i,sl in m: E(f'v_writelane_b32 v2, s{sST+i}, {sl}')
        E(f'v_lshlrev_b32 v3, 2, v0\n s_mov_b64 exec, 0xffff\n buffer_atomic_umax v2, v3, {sr(sDBG)}, 0 offen sc1\n s_mov_b64 exec, -1')
        LBL(sk)
        return
    if OPT.get('hwid'): E(f's_getreg_b32 s{sST+11}, hwreg(HW_REG_HW_ID)\n s_getreg_b32 s{sST+10}, hwreg(HW_REG_XCC_ID)')
    E('v_mov_b32 v2, 0')
    for i in range(nmax): E(f'v_writelane_b32 v2, s{sST+i}, {i}')
    E(f's_mul_i32 s{sT}, s2, 12\n s_add_u32 s{sT}, s{sT}, s{sWave}\n s_lshl_b32 s{sT}, s{sT}, 6\n s_add_u32 s{sT}, s{sT}, {hex(WS_STAMP)}')
    E(f'v_lshlrev_b32 v3, 2, v0\n s_mov_b64 exec, 0xffff\n buffer_store_dword v2, v3, {sr(sWS)}, s{sT} offen\n s_mov_b64 exec, -1')

def lds_add(off,val,vz,vt):
    E(f'v_mov_b32 v{vt}, {val}\n s_mov_b64 exec, 1\n ds_add_u32 v{vz}, v{vt} offset:{off-L_ST}\n s_mov_b64 exec, -1')
def lds_spin(off,mask,val,vz,vt,sleep=1):
    a=uid('spin'); d=uid('spind')
    E(f's_mov_b32 s{sCnt}, {SPIN_LIMIT}')
    LBL(a)
    E(f'ds_read_b32 v{vt}, v{vz} offset:{off-L_ST}\n s_waitcnt lgkmcnt(0)\n v_readfirstlane_b32 s{sT}, v{vt}')
    if mask is not None: E(f's_and_b32 s{sT}, s{sT}, {hex(mask)}')
    E(f's_cmp_eq_u32 s{sT}, {hex(val)}\n s_cbranch_scc1 {d}\n s_sub_u32 s{sCnt}, s{sCnt}, 1\n s_cbranch_scc1 {d}')
    if sleep: E(f's_sleep {sleep}')
    E(f's_branch {a}')
    LBL(d)
def tag_set(off,sidx,vt):
    if sidx is None: E(f'v_mov_b32 v{vt}, {off}')
    else: E(f's_lshl_b32 s{sT}, s{sidx}, 2\n s_add_u32 s{sT}, s{sT}, {off}\n v_mov_b32 v{vt}, s{sT}')
    E(f'v_mov_b32 v{vt+1}, 1\n s_mov_b64 exec, 1\n ds_write_b32 v{vt}, v{vt+1}\n s_mov_b64 exec, -1')
def tag_wait(off,n,vt,sleep=0,once=None):
    a=uid('tw'); d=uid('twd')
    E(f'v_and_b32 v{vt}, {n-1}, v0\n v_lshlrev_b32 v{vt}, 2, v{vt}\n v_add_u32 v{vt}, {off}, v{vt}')
    if once:
        E(f'ds_read_b32 v{vt+1}, v{vt}\n s_waitcnt lgkmcnt(0)\n v_cmp_ne_u32 vcc, 1, v{vt+1}\n s_cbranch_vccz {once}')
        return
    E(f's_mov_b32 s{sCnt}, {SPIN_LIMIT}')
    LBL(a)
    E(f'ds_read_b32 v{vt+1}, v{vt}\n s_waitcnt lgkmcnt(0)\n v_cmp_ne_u32 vcc, 1, v{vt+1}\n s_cbranch_vccz {d}\n s_sub_u32 s{sCnt}, s{sCnt}, 1\n s_cbranch_scc1 {d}')
    if sleep: E(f's_sleep {sleep}')
    E(f's_branch {a}')
    LBL(d)
def tag_get(vt):
    E(f'ds_read_b32 v{vt}, v{vZ} offset:{T_TAG-L_ST}\n s_waitcnt lgkmcnt(0)\n v_readfirstlane_b32 s{sTag}, v{vt}')
def poll(vaddr,n,vt,sleep=1):
    a=uid('poll'); d=uid('polld')
    E(f's_mov_b32 s{sCnt}, {SPIN_LIMIT}')
    LBL(a)
    op={1:'buffer_load_dword',2:'buffer_load_dwordx2',3:'buffer_load_dwordx3',4:'buffer_load_dwordx4'}[n]
    E(f'{op} {vr(vt,n) if n>1 else "v%d"%vt}, v{vaddr}, {sr(sWS)}, 0 offen sc1\n s_waitcnt vmcnt(0)')
    for i in range(n): E(f'v_xor_b32 v{vt+i}, s{sTag}, v{vt+i}')
    if n==2: E(f'v_or_b32 v{vt}, v{vt}, v{vt+1}')
    if n>=3: E(f'v_or3_b32 v{vt}, v{vt}, v{vt+1}, v{vt+2}')
    if n==4: E(f'v_or_b32 v{vt}, v{vt}, v{vt+3}')
    E(f'v_cmp_ne_u32 vcc, 0, v{vt}\n s_cbranch_vccz {d}\n s_sub_u32 s{sCnt}, s{sCnt}, 1\n s_cbranch_scc1 {d}')
    if sleep: E(f's_sleep {sleep}')
    E(f's_branch {a}')
    LBL(d)
def flag_store(soff_reg,vt):
    E(f'v_mov_b32 v{vt}, s{sTag}\n s_mov_b64 exec, 1\n buffer_store_dword v{vt}, off, {sr(sWS)}, s{soff_reg} sc1\n s_mov_b64 exec, -1')
def mfma(d,a,b,c=None):
    cc = vr(d,16) if c is None else (c if isinstance(c,str) else vr(c,16))
    E(f'v_mfma_f32_32x32x16_bf16 {vr(d,16)}, {vr(a,4)}, {vr(b,4)}, {cc}')
def smf(o,v,s,idx): E(f'v_smfmac_f32_32x32x32_bf16 {vr(o,16)}, {vr(v,4)}, {vr(s,8)}, v{idx}')
def vexp(r): E(f'v_exp_f32 v{r}, v{r}')
def cvt(d,a,b): E(f'v_cvt_pk_bf16_f32 v{d}, v{a}, v{b}')
def set_vpad(regs,vt):
    E(f'v_and_b32 v{vt}, 27, v0\n v_cmp_eq_u32 vcc, 16, v{vt}\n v_mov_b32 v{vt}, 0x3f803f80\n s_nop 0\n v_cndmask_b32 v{regs[0]}, 0, v{vt}, vcc')
    for r in regs[1:]: E(f'v_mov_b32 v{r}, v{regs[0]}')
def xaddr(base,t_imm,vt):
    E(f'v_and_b32 v{vt}, 15, v0\n v_lshrrev_b32 v{base}, 5, v0\n v_xor_b32 v{base}, v{base}, v{vt}\n v_lshlrev_b32 v{base}, 4, v{base}')
    E(f'v_and_b32 v{vt}, 31, v0\n v_lshl_add_u32 v{base}, v{vt}, 10, v{base}\n v_add_u32 v{base}, {t_imm}, v{base}')
    for b in range(1,8): E(f'v_xor_b32 v{base+b}, {b<<5}, v{base}')
def traddr128(dst,vt,vt2,rowsel,colbase):
    E(f'v_lshrrev_b32 v{vt}, 5, v0\n v_lshlrev_b32 v{vt}, {rowsel}, v{vt}\n v_bfe_u32 v{vt2}, v0, 2, 2\n v_add_u32 v{vt}, v{vt}, v{vt2}\n v_lshlrev_b32 v{dst}, 7, v{vt}')
    E(f'v_bfe_u32 v{vt}, v0, 4, 1\n v_lshlrev_b32 v{vt}, 1, v{vt}\n v_bfe_u32 v{vt2}, v0, 1, 1\n v_add3_u32 v{vt}, v{vt}, v{vt2}, {colbase}')
    E(f'v_bfe_u32 v{vt2}, v0, 3, 1\n v_lshlrev_b32 v{vt2}, 2, v{vt2}\n v_xor_b32 v{vt}, v{vt}, v{vt2}\n v_lshl_add_u32 v{dst}, v{vt}, 4, v{dst}')
    E(f'v_and_b32 v{vt}, 1, v0\n v_lshl_add_u32 v{dst}, v{vt}, 3, v{dst}')
def dma128_voff(dst,vt,vt2,rowstride_sreg_or_shift,colbytes):
    E(f'v_lshrrev_b32 v{vt}, 3, v0')
    if isinstance(rowstride_sreg_or_shift,int): E(f'v_lshlrev_b32 v{dst}, {rowstride_sreg_or_shift}, v{vt}')
    else: E(f'v_mul_u32_u24 v{dst}, {rowstride_sreg_or_shift}, v{vt}')
    E(f'v_bfe_u32 v{vt}, v0, 4, 1\n v_lshlrev_b32 v{vt}, 2, v{vt}\n v_and_b32 v{vt2}, 7, v0\n v_xor_b32 v{vt}, v{vt}, v{vt2}\n v_lshl_add_u32 v{dst}, v{vt}, 4, v{dst}\n v_add_u32 v{dst}, {colbytes}, v{dst}')
def finalize(O,dst,vt,lbl_fb,lbl_back,vg):
    E(f'v_add_f32 v{vt}, |v{O}|, |v{O+1}|')
    for r in range(2,8): E(f'v_add_f32 v{vt}, v{vt}, |v{O+r}|')
    E(f'v_mov_b32 v{vt+1}, 0x7f800000\n v_cmp_nlt_f32 {sr(sT,2)}, v{vt}, v{vt+1}')
    E(f'v_cmp_nle_f32 vcc, {hex(L_LO)}, v{O+8}\n s_or_b64 {sr(sT,2)}, {sr(sT,2)}, vcc')
    E(f'v_cmp_nge_f32 vcc, {hex(L_HI)}, v{O+8}\n s_or_b64 {sr(sT,2)}, {sr(sT,2)}, vcc\n s_cbranch_scc1 {lbl_fb}')
    LBL(lbl_back)
    E(f'v_rcp_f32 v{vt}, v{O+8}\n s_nop 0\n v_mul_f32 v{vt}, v{vt}, v{vg}')
    for r in range(0,8,2): E(f'v_pk_mul_f32 {vr(O+r,2)}, {vr(O+r,2)}, {vr(vt,2)} op_sel_hi:[1,0]')
    for r in range(4): cvt(dst+r,O+2*r,O+2*r+1)
    E(f'v_min_u32 v{dst}, -2, v{dst}')

TAIL=[]
RETRY=[]
def fallback(lbl,back,Q,O,S,K,V,IDX,vM,vK,vV,ntile,soff_setup,first_mask=None,last_mask=None,first_cond=None):
    global L
    save=L; L=[]
    LBL(lbl)
    soff_setup()
    E(f'v_mov_b32 v{vM}, 0xff800000')
    for p in (0,1):
        lp=uid('fbl')
        if p==1:
            E(f'v_mov_b32 v{S}, v{vM}\n s_nop 1\n v_permlane32_swap_b32 v{S}, v{vM}\n s_nop 1\n v_max_f32 v{vM}, v{vM}, v{S}')
            for r in range(16): E(f'v_mov_b32 v{O+r}, 0')
        E(f's_mov_b32 s{sT+5}, s{sT+2}\n s_mov_b32 s{sT+6}, 0')
        LBL(lp)
        E(f'buffer_load_dwordx4 {vr(K,4)}, v{vK}, {sr(sWS)}, s{sT+5} offen sc1')
        if p==1:
            E(f's_mov_b64 exec, {sr(sVM,2)}\n buffer_load_dwordx4 {vr(V,4)}, v{vV}, {sr(sWS)}, s{sT+5} offen offset:1024 sc1\n buffer_load_dwordx4 {vr(V+4,4)}, v{vV}, {sr(sWS)}, s{sT+5} offen offset:1536 sc1\n s_mov_b64 exec, -1')
        E('s_waitcnt vmcnt(0)')
        if first_mask is None:
            mfma(S,K,Q,'0')
        else:
            a=uid('fbm'); b=uid('fbm'); j=uid('fbm')
            E(f's_add_u32 s{sT+7}, s{sT+6}, 1\n s_cmp_eq_u32 s{sT+7}, s{sT+3}\n s_cbranch_scc1 {a}')
            E(f's_cmp_lt_u32 s{sT+6}, s{sT+4}\n s_cbranch_scc1 {b}')
            mfma(S,K,Q,'0'); E(f's_branch {j}')
            LBL(a); mfma(S,K,Q,last_mask); E(f's_branch {j}')
            LBL(b); mfma(S,K,Q,first_mask)
            LBL(j)
        E('s_nop 15')
        if p==0:
            for r in range(0,16,2): E(f'v_max3_f32 v{vM}, v{S+r}, v{S+r+1}, v{vM}')
        else:
            for r in range(16): E(f'v_sub_f32 v{S+r}, v{S+r}, v{vM}')
            for r in range(16): vexp(S+r)
            E('s_nop 1'); smf(O,V,S,IDX); smf(O,V+4,S+8,IDX)
        E(f's_add_u32 s{sT+5}, s{sT+5}, 2048\n s_add_u32 s{sT+6}, s{sT+6}, 1\n s_cmp_lt_u32 s{sT+6}, s{sT+3}\n s_cbranch_scc1 {lp}')
    E(f's_nop 15\n s_branch {back}')
    TAIL.extend(L); L=save

E('s_cmp_ge_u32 s2, 256\n s_cbranch_scc1 L_END')
if ECHO=='karg': E('s_memrealtime s[100:101]\n s_waitcnt lgkmcnt(0)\n s_mov_b32 s97, s100')
E('s_load_dwordx16 s[4:19], s[0:1], 0\n s_load_dwordx8 s[20:27], s[0:1], 64')
E(f'v_lshrrev_b32 v1, 6, v0\n v_and_b32 v0, 63, v0\n v_readfirstlane_b32 s{sWave}, v1')
if MAP=='b':
    E(f's_and_b32 s{sT}, s2, 7\n s_lshr_b32 s{sT+1}, s2, 3\n s_and_b32 s{sT+2}, s{sT+1}, 3\n s_lshl_b32 s{sPb}, s{sT}, 2\n s_or_b32 s{sPb}, s{sPb}, s{sT+2}\n s_lshr_b32 s{sHg}, s{sT+1}, 2')
else:
    E(f's_bfe_u32 s{sPb}, s2, 0x20001\n s_lshl_b32 s{sPb}, s{sPb}, 3\n s_bfe_u32 s{sT}, s2, 0x30003\n s_or_b32 s{sPb}, s{sPb}, s{sT}\n s_and_b32 s{sHg}, s2, 1\n s_lshl_b32 s{sHg}, s{sHg}, 2\n s_lshr_b32 s{sT}, s2, 6\n s_or_b32 s{sHg}, s{sHg}, s{sT}')
E(f's_mov_b32 s{sVM}, 0xffff\n s_mov_b32 s{sVM+1}, 0xffff')
if DIAG:
    for i in range(12): E(f's_mov_b32 s{sST+i}, 0')
def codepf():
  if OPT.get('cpf','1')=='1':
      C('---- pull this WG\'s share of the kernel\'s own instructions into L2 (later instruction fetches then miss only the I-cache)')
      E(f's_cmp_eq_u32 s{sWave}, 11\n s_cbranch_scc0 L_B_NCP\n s_getpc_b64 s[{sT}:{sT+1}]')
      LBL('L_B_PC')
      E(f's_lshr_b32 s{sT+2}, s2, 3\n s_mul_i32 s{sT+2}, s{sT+2}, (L_CODE_END-L_B_PC+4095)/4096*128\n s_add_u32 s{sT}, s{sT}, s{sT+2}\n s_addc_u32 s{sT+1}, s{sT+1}, 0')
      E(f'v_lshlrev_b32 v2, 7, v0\n v_mov_b32 v3, s{sT+1}\n v_add_co_u32 v2, vcc, s{sT}, v2\n s_nop 1\n v_addc_co_u32 v3, vcc, 0, v3, vcc\n s_lshl_b64 exec, 1, (L_CODE_END-L_B_PC+4095)/4096\n s_sub_u32 exec_lo, exec_lo, 1\n global_load_dword v63, v[2:3], off\n s_mov_b64 exec, -1')
      LBL('L_B_NCP')
if OPT.get('cpe','0')=='1': codepf()
C('clear the LDS counters and flags while the kernel arguments arrive')
E(f'v_lshlrev_b32 v2, 3, v0\n v_add_u32 v2, {L_C}, v2\n v_mov_b32 v4, 0\n v_mov_b32 v5, 0\n ds_write_b64 v2, v[4:5]')
E('s_waitcnt lgkmcnt(0)\n s_barrier')
stamp('A',0,'start'); stamp('B',0,'start'); echo_mark('start')
if ECHO=='karg': E('s_sub_u32 s99, s98, s97\n s_mul_i32 s99, s99, 10\n s_add_u32 s99, s99, s98')
srd(sX,4,2048*1024); srd(sWS,26,0x10000000)
E(f's_cmp_lt_u32 s{sWave}, 8\n s_cbranch_scc1 L_A')


KVPOS=[L_ST,32768,49152,16384,65536,81920,98304,114688]
L_PART=L_ST+24576
L_QA=0; L_QB=8192; L_WO=0; L_FX=65536
sOut=66; sOb=67; sPass=64
sRot=sT+11
def mktag(): E(f's_mul_i32 s{sTag}, s{sTag}, 0x9E3779B1\n s_add_u32 s{sTag}, s{sTag}, 0x7F4A7C15')
def mkrot():
    if MAP=='b': E(f's_and_b32 s{sRot}, s{sPb}, 3\n s_lshl_b32 s{sRot}, s{sRot}, 1\n s_add_u32 s{sRot}, s{sRot}, s{sHg}')
    else: E(f's_lshl_b32 s{sRot}, s{sHg}, 1\n s_add_u32 s{sRot}, s{sRot}, s{sPb}')
def touch(srd_,soff,n,vaddr,vd,sc1=False):
    for i in range(n):
        if i: E(f's_add_u32 s{soff}, s{soff}, 8192')
        E(f'buffer_load_dword v{vd}, v{vaddr}, {sr(srd_)}, s{soff} offen'+(' sc1' if sc1 else ''))
E(f's_setprio {2 if OPT.get("bp2") else 3}\n s_sub_u32 s{sB}, s{sWave}, 8')
if OPT.get('cpe','0')=='0': codepf()
C('---- x tile -> LDS as 8 blocks of [64 rows][64 k], block order rotated per WG ; wave b brings blocks b and b+4')
E('v_lshrrev_b32 v17, 3, v0\n v_lshlrev_b32 v17, 10, v17\n v_lshrrev_b32 v2, 4, v0\n v_and_b32 v3, 7, v0\n v_xor_b32 v2, v2, v3\n v_lshl_add_u32 v17, v2, 4, v17\n v_xor_b32 v18, 64, v17')
mkrot()
E(f's_lshl_b32 s{sT+7}, s{sPb}, 16\n s_lshl_b32 s{sT+6}, s{sB}, 13')
VQ=[]
def vwait(tag,extra=''):
    if tag not in VQ:
        if extra: E('s_waitcnt'+extra)
        return
    i=max(n for n,t in enumerate(VQ) if t==tag)
    n=len(VQ)-1-i; del VQ[:i+1]
    E(f's_waitcnt vmcnt({n})'+extra)
XD=OPT.get('xd','1')=='1'
def xblock(expr_add,ldsoff,rows):
    E(f's_add_u32 s{sT+1}, s{sRot}, {expr_add}\n s_and_b32 s{sT+1}, s{sT+1}, 7\n s_lshl_b32 s{sT+1}, s{sT+1}, 7\n s_add_u32 s{sT+1}, s{sT+1}, s{sT+7}')
if XD:
    E(f's_and_b32 s{sT+1}, s{sRot}, 7\n s_lshl_b32 s{sT+1}, s{sT+1}, 7\n s_add_u32 s{sT+1}, s{sT+1}, s{sT+7}\n s_lshl_b32 s{sT+2}, s{sB}, 14\n s_add_u32 s{sT+1}, s{sT+1}, s{sT+2}\n s_lshl_b32 s{sT+2}, s{sB}, 11\n s_add_u32 m0, s{sT+2}, 65536\n s_nop 0')
    E(f'buffer_load_dwordx4 v17, {sr(sX)}, s{sT+1} offen lds\n s_add_u32 m0, s{sT+2}, {65536+1024}\n s_add_u32 s{sT+1}, s{sT+1}, 8192\n buffer_load_dwordx4 v18, {sr(sX)}, s{sT+1} offen lds')
def xrest():
  for hb in range(2):
    sk=uid('xs')
    if XD and hb==0: E(f's_cmp_eq_u32 s{sB}, 0\n s_cbranch_scc1 {sk}')
    E(f's_add_u32 s{sT+1}, s{sRot}, s{sB}\n s_add_u32 s{sT+1}, s{sT+1}, {4*hb}\n s_and_b32 s{sT+1}, s{sT+1}, 7\n s_lshl_b32 s{sT+1}, s{sT+1}, 7\n s_add_u32 s{sT+1}, s{sT+1}, s{sT+7}')
    for n in range(8):
        E(f's_add_u32 m0, s{sT+6}, {65536+32768*hb+1024*n}')
        E(f's_add_u32 s{sT+1}, s{sT+1}, 8192' if n else 's_nop 0')
        E(f'buffer_load_dwordx4 v{17+(n&1)}, {sr(sX)}, s{sT+1} offen lds')
    if XD and hb==0: LBL(sk)
if not XD: xrest()
MU=128; MD=144; BQ=16; BK=24; BV=36; BS=64; BO=96; BIDX=60
C('---- constants for the later phases (idle time)')
E(f'v_mov_b32 v{vZ}, {L_ST}\n v_lshlrev_b32 v160, 4, v0\n v_lshlrev_b32 v163, 7, v0')
E('v_lshrrev_b32 v161, 5, v0\n v_lshlrev_b32 v161, 8, v161\n v_and_b32 v2, 15, v0\n v_lshl_add_u32 v161, v2, 4, v161')
srd(sWOA,12,512*1024); srd(sWOB,18,512*1024)
E(f'v_and_b32 v4, 31, v0\n v_lshrrev_b32 v5, 5, v0\n v_lshlrev_b32 v5, 2, v5\n v_sub_u32 v4, v4, v5\n s_mov_b32 s{sT}, {hex(NEGBIG)}')
for r in range(16):
    E(f'v_subrev_u32 v5, {8*(r//4)+r%4}, v4\n v_ashrrev_i32 v5, 31, v5\n v_and_b32 v{MD+r}, s{sT}, v5\n v_xor_b32 v{MU+r}, s{sT}, v{MD+r}')
set_vpad(list(range(BV,BV+24)),2); E(f'v_mov_b32 v{BIDX}, 0xdddddddd')
for r in range(32): E(f'v_mov_b32 v{BO+r}, 0')
E(f'v_min_u32 v2, 4, v0\n s_sub_i32 s{sT}, s{sPb}, 4\n v_add_u32 v2, s{sT}, v2\n v_max_i32 v2, 0, v2\n s_lshl_b32 s{sT}, s{sHg}, 5\n v_add_u32 v2, s{sT}, v2\n v_lshlrev_b32 v2, 7, v2\n v_add_u32 v162, {hex(WS_FKVB+8)}, v2')
E(f'v_and_b32 v2, 7, v0\n v_lshlrev_b32 v2, 5, v2\n v_add_u32 v2, s{sPb}, v2\n v_lshlrev_b32 v2, 7, v2\n v_add_u32 v166, {hex(WS_FKVB+16)}, v2')
sKh=sT+9; sTt=sT+10
E(f's_lshr_b32 s{sKh}, s{sB}, 1\n s_and_b32 s{sTt}, s{sB}, 1\n s_lshl_b32 s{sT+2}, s{sHg}, 7')
dma128_voff(10,2,3,10,f's{sT+2}')
E(f's_lshl_b32 s{sT+1}, s{sKh}, 2'); traddr128(11,2,3,2,f's{sT+1}')
E(f's_lshl_b32 s{sT+1}, s{sKh}, 15\n s_add_u32 s{sT+1}, s{sT+1}, {L_WO}\n v_add_u32 v11, s{sT+1}, v11\n v_xor_b32 v9, 64, v11')
E(f's_lshl_b32 s{sOut}, s{sPb}, 1\n s_add_u32 s{sOut}, s{sOut}, s{sTt}\n s_lshl_b32 s{sOut}, s{sOut}, 15\n s_lshl_b32 s{sT}, s{sKh}, 14\n s_add_u32 s{sOb}, s{sOut}, s{sT}\n s_add_u32 s{sOb}, s{sOb}, {hex(WS_OB)}')
E(f's_lshl_b32 s{sT}, s{sHg}, 7\n s_add_u32 s{sOut}, s{sOut}, s{sT}\n s_lshl_b32 s{sT}, s{sKh}, 6\n s_add_u32 s{sOut}, s{sOut}, s{sT}')
E('v_and_b32 v8, 31, v0\n v_lshlrev_b32 v167, 10, v8\n v_lshrrev_b32 v3, 5, v0\n v_lshl_add_u32 v167, v3, 4, v167\n v_lshlrev_b32 v8, 2, v8')
srd(sOUT,22,2048*1024)
E(f's_lshl_b32 s{sT}, s{sB}, 12\n s_add_u32 s{sT}, s{sT}, {L_FX}\n v_add_u32 v164, s{sT}, v160\n v_xor_b32 v165, 0x2000, v164\n s_mov_b32 s{sPass}, 0')
if XD:
    E('s_waitcnt vmcnt(0)'); tag_set(T_X0,sB,2); xrest()
E('s_waitcnt vmcnt(8)')
tag_set(T_X,sB,2)
stamp('B',1,'x landed'); echo_mark('xl')
E('s_waitcnt vmcnt(0)')
tag_set(T_X+16,sB,2)
tag_wait(T_G,4,2,sleep=4)
tag_get(2)
stamp('B',5,'BQ'); echo_mark('bq')
E(f's_setprio {OPT.get("bpr","3")}')
def kvdma(c):
    E(f's_lshr_b32 s{sT+1}, s2, 3\n s_add_u32 s{sT+1}, s{sT+1}, {c}\n s_and_b32 s{sT+1}, s{sT+1}, 3\n s_lshl_b32 s{sT+1}, s{sT+1}, 2\n s_add_u32 s{sT+1}, s{sT+1}, s{sB}\n s_lshl_b32 s{sT+1}, s{sT+1}, 12')
    E(f's_lshl_b32 s{sT+2}, s{sB}, 12\n s_add_u32 m0, s{sT+2}, {KVPOS[c]}\n s_add_u32 s{sT+1}, s{sT+1}, {hex(WS_KVA+(65536 if c>=4 else 0))}')
    for i in range(4): E(f'buffer_load_dwordx4 v160, {sr(sWS)}, s{sT+1} offen offset:{1024*i} sc1 lds')
    VQ.extend([f'kv{c}']*4)
E(f's_lshl_b32 s{sT}, s{sB}, 11\n s_add_u32 s{sT}, s{sT}, {L_QB}\n v_add_u32 v3, s{sT}, v160')
for t in range(2): E(f'ds_read_b128 {vr(BQ+4*t,4)}, v3 offset:{1024*t}')
E(f's_lshl_b32 s{sT}, s{sPb}, 8\n s_add_u32 s{sT}, s{sT}, {hex(WS_G)}\n buffer_load_dword v61, v8, {sr(sWS)}, s{sT} offen sc1\n buffer_load_dword v62, v8, {sr(sWS)}, s{sT} offen offset:128 sc1\n s_waitcnt lgkmcnt(0)')
C('---- second half of the shared K/V ; o slots marked as not yet written')
for c in (4,5,6,7): kvdma(c)
E(f's_lshl_b32 s{sT+10}, s{sPb}, 6\n s_lshl_b32 s{sT+1}, s{sHg}, 2\n s_add_u32 s{sT+10}, s{sT+10}, s{sT+1}\n s_add_u32 s{sT+10}, s{sT+10}, s{sB}\n s_lshl_b32 s{sT+10}, s{sT+10}, 10')
E('v_mov_b32 v12, -1\n v_mov_b32 v13, -1\n v_mov_b32 v14, -1\n v_mov_b32 v15, -1')
for base in (WS_OA,WS_OA+32768,WS_OB,WS_OB+32768):
    E(f's_add_u32 s{sT+1}, s{sT+10}, {hex(base)}\n buffer_store_dwordx4 v[12:15], v160, {sr(sWS)}, s{sT+1} offen sc1')
E(f's_lshl_b32 s{sT+3}, s{sHg}, 5\n s_add_u32 s{sT+3}, s{sT+3}, s{sPb}\n s_lshl_b32 s{sT+3}, s{sT+3}, 7\n s_lshl_b32 s{sT+1}, s{sB}, 2\n s_add_u32 s{sT+3}, s{sT+3}, s{sT+1}\n s_add_u32 s{sT+3}, s{sT+3}, {hex(WS_FKVB+16)}')
E(f's_getreg_b32 s{sXcc}, hwreg(HW_REG_XCC_ID, 0, 4)\n s_add_u32 s{sT}, s{sTag}, s{sXcc}\n v_mov_b32 v3, s{sT}\n s_waitcnt vmcnt(0)')
E(f's_mov_b64 exec, 1\n buffer_store_dword v3, off, {sr(sWS)}, s{sT+3} sc1\n s_mov_b64 exec, -1')
lds_add(C_K2,0x101,vZ,2)
stamp('B',2,'K/V all in')
if OPT.get('nob'): stamp_flush(12); E('s_endpgm')
E('v_sub_f32 v61, 1.0, v61\n v_sub_f32 v62, 1.0, v62')
poll(162,2,4,sleep=3)
stamp('B',6,'kvB flags seen'); echo_mark('kvb')
def wotouch():
    if MAP=='b':
        E(f's_cmp_ge_u32 s{sB}, 2\n s_cbranch_scc0 L_B_NOT\n s_lshr_b32 s{sT+1}, s2, 3\n s_lshl_b32 s{sT+1}, s{sT+1}, 14\n s_and_b32 s{sT+2}, s{sB}, 1\n s_lshl_b32 s{sT+2}, s{sT+2}, 13\n s_add_u32 s{sT+1}, s{sT+1}, s{sT+2}')
        touch(sWOB,sT+1,1,163,3); touch(sWOA,sT+1,1,163,3)
    else:
        E(f's_cmp_eq_u32 s{sB}, 3\n s_cbranch_scc0 L_B_NOT\n s_lshr_b32 s{sT+1}, s2, 3\n s_lshl_b32 s{sT+1}, s{sT+1}, 14\n s_and_b32 s{sT+2}, s2, 1\n s_lshl_b32 s{sT+2}, s{sT+2}, 9\n s_add_u32 s{sT+1}, s{sT+1}, s{sT+2}')
        E('v_lshrrev_b32 v2, 2, v0\n v_lshlrev_b32 v2, 10, v2\n v_and_b32 v3, 3, v0\n v_lshl_add_u32 v2, v3, 7, v2')
        touch(sWOB,sT+1,1,2,3); touch(sWOA,sT+1,1,2,4)
    LBL('L_B_NOT')
C('---- window attention, head 4hg+b, two query tiles')
E(f's_lshl_b32 s{sT+8}, s{sHg}, 2\n s_add_u32 s{sT+8}, s{sT+8}, s{sB}\n s_lshl_b32 s{sT+8}, s{sT+8}, 6\n s_lshl_b32 s{sT+9}, s{sPb}, 1\n s_sub_i32 s{sT+9}, s{sT+9}, 8')
def btile(j): E(f's_add_i32 s{sT}, s{sT+9}, {j}\n s_max_i32 s{sT}, s{sT}, 0\n s_add_u32 s{sT}, s{sT}, s{sT+8}\n s_lshl_b32 s{sT}, s{sT}, 11\n s_add_u32 s{sT}, s{sT}, {hex(WS_KVB)}')
def bload(j):
    k=BK+4*(j%3); v=BV+8*(j%3)
    btile(j)
    E(f'buffer_load_dwordx4 {vr(k,4)}, v160, {sr(sWS)}, s{sT} offen sc1\n s_mov_b64 exec, {sr(sVM,2)}')
    E(f'buffer_load_dwordx4 {vr(v,4)}, v161, {sr(sWS)}, s{sT} offen offset:1024 sc1\n buffer_load_dwordx4 {vr(v+4,4)}, v161, {sr(sWS)}, s{sT} offen offset:1536 sc1\n s_mov_b64 exec, -1')
bload(0); bload(1)
E(f's_setprio {OPT.get("bat","1")}')
for j in (2,6):
    E(f's_add_i32 s{sT}, s{sT+9}, {j}\n s_max_i32 s{sT}, s{sT}, 0\n s_add_i32 s{sT+1}, s{sT+9}, 6\n s_min_i32 s{sT}, s{sT}, s{sT+1}\n s_cmp_lt_i32 s{sT}, 0')
    sk=uid('tk'); E(f's_cbranch_scc1 {sk}\n s_add_u32 s{sT}, s{sT}, s{sT+8}\n s_lshl_b32 s{sT}, s{sT}, 11\n s_add_u32 s{sT}, s{sT}, {hex(WS_KVB)}')
    E(f'buffer_load_dword v3, v163, {sr(sWS)}, s{sT} offen sc1'); LBL(sk)
E('s_waitcnt lgkmcnt(0)')
for j in range(10):
    k=BK+4*(j%3); v=BV+8*(j%3)
    if j==3: wotouch()
    if j==int(OPT.get('bup','5')): E('s_setprio 3')
    if j==7: E(f'buffer_load_dwordx4 v[12:15], v166, {sr(sWS)}, 0 offen sc1')
    if j+2<10: bload(j+2)
    E(f's_waitcnt vmcnt({3*min(2,9-j)})')
    sk=uid('bskip')
    if j<8: E(f's_cmp_lt_i32 s{sT+9}, {-j}\n s_cbranch_scc1 {sk}')
    qs=[q for q in (0,1) if 0<=j-q<=8]
    for q in qs: mfma(BS+16*q,k,BQ+4*q,{0:MU,8:MD}.get(j-q,'0'))
    E('s_nop 10' if len(qs)==2 else 's_nop 11')
    for q in qs:
        S=BS+16*q; O=BO+16*q
        for r in range(10): vexp(S+r)
        smf(O,v,S,BIDX)
        for r in range(10,16): vexp(S+r)
        E('s_nop 1'); smf(O,v+4,S+8,BIDX)
    if j<8: LBL(sk)
sLoc=sT+11
E(f's_add_u32 s{sT+10}, s{sT+10}, {hex(WS_OB)}\n s_mov_b32 s{sLoc}, 0')
C('the eight WGs of this position block: marks in place ?  all on this die ?')
E(f's_mov_b32 s{sCnt}, {SPIN_LIMIT}\n s_branch L_B_PP1')
LBL('L_B_PP')
E(f'buffer_load_dwordx4 v[12:15], v166, {sr(sWS)}, 0 offen sc1\n s_waitcnt vmcnt(0)')
LBL('L_B_PP1')
for i in range(4): E(f'v_subrev_u32 v{12+i}, s{sTag}, v{12+i}')
E(f'v_or3_b32 v2, v12, v13, v14\n v_or_b32 v2, v2, v15\n v_cmp_lt_u32 vcc, 15, v2\n s_cbranch_vccz L_B_PPD\n s_sub_u32 s{sCnt}, s{sCnt}, 1\n s_cbranch_scc1 L_B_PPD\n s_sleep 3\n s_branch L_B_PP')
LBL('L_B_PPD')
if OPT.get('loc','1')=='1':
    E(f'v_cmp_ne_u32 vcc, s{sXcc}, v12\n s_cbranch_vccnz L_B_NLOC\n s_mov_b32 s{sLoc}, 1')
    lds_add(C_LOC,1,vZ,2)
    if OPT.get('probe'):
        E('s_branch L_B_PRB')
        LBL('L_B_NLOC')
        for i in range(8): E('s_sleep 127')
        LBL('L_B_PRB')
    else: LBL('L_B_NLOC')

for q in range(2):
    fb=f'L_FB_B{q}'; bk=f'L_FB_B{q}_BACK'
    finalize(BO+16*q,4,2,fb,bk,61+q)
    E(f's_cmp_eq_u32 s{sLoc}, 0\n s_cbranch_scc1 L_B_FAR{q}\n buffer_store_dwordx4 v[4:7], v160, {sr(sWS)}, s{sT+10} offen\n s_branch L_B_ST{q}')
    LBL(f'L_B_FAR{q}')
    E(f'buffer_store_dwordx4 v[4:7], v160, {sr(sWS)}, s{sT+10} offen sc1')
    LBL(f'L_B_ST{q}')
    if q==0: E(f's_add_u32 s{sT+10}, s{sT+10}, 32768\n s_nop 0')
    def setup(q=q):
        E(f's_add_i32 s{sT+2}, s{sT+9}, {q}\n s_cmp_ge_i32 s{sT+2}, 0\n s_cselect_b32 s{sT+4}, 1, 0\n s_max_i32 s{sT+2}, s{sT+2}, 0')
        E(f's_add_i32 s{sT+3}, s{sT+9}, {q+9}\n s_sub_u32 s{sT+3}, s{sT+3}, s{sT+2}\n s_add_u32 s{sT+2}, s{sT+2}, s{sT+8}\n s_lshl_b32 s{sT+2}, s{sT+2}, 11\n s_add_u32 s{sT+2}, s{sT+2}, {hex(WS_KVB)}')
    fallback(fb,bk,BQ+4*q,BO+16*q,BS,BK,BV,BIDX,3,160,161,None,setup,MU,MD)
C('---- output projection: wave (t=b&1, kh=b>>1): both 32-column tiles over heads 16kh..16kh+15 ; slot 0 = tile kh')
PA_=48; PW=80; PO=96; PB_=16
stamp('B',7,'oB published'); echo_mark('ob')
E(f's_setprio {OPT.get("bpr2","3")}')
lds_spin(C_MID,None,8,vZ,2,sleep=6)
def wodma(sr_):
    E(f's_lshl_b32 s{sT}, s{sB}, 14\n s_lshl_b32 s{sT+1}, s{sB}, 17')
    for n in range(16): E(f's_add_u32 m0, s{sT}, {L_WO+1024*n}\n s_add_u32 s{sT+2}, s{sT+1}, {8192*n}\n buffer_load_dwordx4 v10, {sr(sr_)}, s{sT+2} offen lds')
def oloads(g0):
    for s in range(4*g0,16):
        if s%4==0: E(f's_add_u32 s{sT}, s{sOb}, {1024*s}')
        E(f'buffer_load_dwordx4 {vr(PO+4*s,4)}, v160, {sr(sWS)}, s{sT} offen offset:{1024*(s%4)} sc1')
wodma(sWOB)
oloads(0)
E('s_waitcnt vmcnt(16)')
lds_add(C_WO,1,vZ,2)
lds_spin(C_WO,None,4,vZ,2,sleep=2)
stamp('B',8,'woB landed')
E('s_branch L_B_GEMM1')
LBL('L_B_GEMM')
oloads(0)
LBL('L_B_GEMM1')
def wread(s):
    f=PW+8*(s&1)
    for u,va in ((0,11),(1,9)): E(f'ds_read_b64_tr_b16 {vr(f+4*u,2)}, v{va} offset:{s*2048}\n ds_read_b64_tr_b16 {vr(f+4*u+2,2)}, v{va} offset:{s*2048+1024}')
wread(0)
E(f's_mov_b32 s{sCnt}, {SPIN_LIMIT}')
for g in range(4):
    LBL(f'L_B_G{g}')
    E(f's_waitcnt vmcnt({12-4*g})')
    p=PO+16*g
    E(f'v_max_u32 v2, v{p}, v{p+4}\n v_max3_u32 v2, v{p+8}, v{p+12}, v2\n v_cmp_eq_u32 vcc, -1, v2\n s_cbranch_vccnz L_B_R{g}')
    LBL(f'L_B_K{g}')
    if DIAG and g==3:
        E(f's_cmp_eq_u32 s{sPass}, 0\n s_cbranch_scc1 L_B_NST'); stamp('B',10,'oA all seen'); LBL('L_B_NST')
    for s in range(4*g,4*g+4):
        if s<15: wread(s+1)
        E(f's_waitcnt lgkmcnt({4 if s<15 else 0})')
        f=PW+8*(s&1)
        if s==0:
            E(f's_cmp_eq_u32 s{sPass}, 0\n s_cbranch_scc0 L_B_M1')
            for u in range(2): mfma(PA_+16*u,f+4*u,PO+4*s,'0')
            E('s_branch L_B_M2'); LBL('L_B_M1')
            for u in range(2): mfma(PA_+16*u,f+4*u,PO+4*s)
            LBL('L_B_M2')
        else:
            for u in range(2): mfma(PA_+16*u,f+4*u,PO+4*s)
    save=L; L=[]
    LBL(f'L_B_R{g}')
    E(f's_sub_u32 s{sCnt}, s{sCnt}, 1\n s_cbranch_scc1 L_B_K{g}\n s_cmp_eq_u32 s{sPass}, 0\n s_cbranch_scc0 L_B_RR{g}\n s_sleep 16')
    LBL(f'L_B_RR{g}')
    E('s_waitcnt vmcnt(0)')
    oloads(g)
    E(f's_branch L_B_G{g}')
    RETRY.extend(L); L=save
E(f's_cmp_eq_u32 s{sPass}, 0\n s_cbranch_scc0 L_B_FIN')
lds_add(C_WD,1,vZ,2)
E(f's_add_u32 s{sOb}, s{sOb}, {hex((WS_OA-WS_OB)&0xffffffff)}\n s_mov_b32 s{sPass}, 1')
lds_spin(C_WD,None,4,vZ,2,sleep=2)
wodma(sWOA)
if OPT.get('dry','0')=='1':
    C('walk once through the closing code with no lane active: its instructions are then cached when they matter')
    E('s_mov_b64 exec, 0\n s_branch L_B_FIN')
    LBL('L_B_DRYD')
    E('s_mov_b64 exec, -1')
E('s_waitcnt vmcnt(0)')
stamp('B',9,'out-proj B done, woA in'); echo_mark('b9')
E('s_barrier'); echo_mark('aend'); E('s_branch L_B_GEMM')
LBL('L_B_FIN')
E('s_nop 9')
for q in range(4): E(f'ds_write_b128 v164, {vr(PA_+16+4*q,4)} offset:{1024*q}')
E('s_waitcnt lgkmcnt(0)\n s_cbranch_execz L_B_NBAR\n s_barrier')
LBL('L_B_NBAR')
for q in range(4): E(f'ds_read_b128 {vr(PB_+4*q,4)}, v165 offset:{1024*q}')
for q in range(4):
    E(f's_waitcnt lgkmcnt({3-q})')
    for r in range(4): E(f'v_add_f32 v{PA_+4*q+r}, v{PA_+4*q+r}, v{PB_+4*q+r}')
for r in range(8): cvt(PA_+r,PA_+2*r,PA_+2*r+1)
E('s_nop 1')
for gq in range(2): E(f'v_permlane32_swap_b32 v{PA_+4*gq}, v{PA_+4*gq+2}\n v_permlane32_swap_b32 v{PA_+4*gq+1}, v{PA_+4*gq+3}')
if OPT.get('dry','0')=='1': E('s_cbranch_execz L_B_DRYD')
for gq in range(2): E(f'buffer_store_dwordx4 {vr(PA_+4*gq,4)}, v167, {sr(sOUT)}, s{sOut} offen offset:{32*gq} '+OPT.get('ost','').replace('+',' '))
if DIAG: E('s_waitcnt vmcnt(0)')
stamp('B',11,'out stored'); echo_end()
stamp_flush(12)
E('s_endpgm')
L.extend(RETRY)

LBL('L_A')
AIDX=8; AKA=9; AVA=10; AQ0=12; AQ1=16; AK=20; AV=28; SA=44; SB=60; OA=76; OB=92; XA=108; WA=160; AF=112
L_PG=L_PART+4096
sStr=sT+10; sRing=sT+7
E(f'v_and_b32 v5, 15, v0\n v_lshlrev_b32 v6, 4, v0\n s_and_b32 s{sT+9}, s{sHg}, 3\n s_cmp_lt_u32 s{sWave}, 4\n s_cbranch_scc0 L_A_KV')
C('---- waves 0..3 : wave m streams 64 columns of matrix m (wq | B q | B k | B v) through its own 8 x 2KB ring')
E(f's_cmp_eq_u32 s{sWave}, 0\n s_cselect_b32 s{sWB}, s6, s16\n s_cselect_b32 s{sWB+1}, s7, s17\n s_mov_b32 s{sWB+2}, {512*3072}\n s_cselect_b32 s{sWB+2}, {512*1024}, s{sWB+2}\n s_mov_b32 s{sWB+3}, 0x20000')
E(f's_movk_i32 s{sStr}, 3072\n s_cselect_b32 s{sStr}, 0x400, s{sStr}\n s_max_u32 s{sT+1}, s{sWave}, 1\n s_sub_u32 s{sT+1}, s{sT+1}, 1\n s_lshl_b32 s{sT+1}, s{sT+1}, 10\n s_lshl_b32 s{sT+2}, s{sHg}, 7\n s_add_u32 s{sT+1}, s{sT+1}, s{sT+2}')
dma128_voff(162,2,3,f's{sStr}',f's{sT+1}')
mkrot()
E(f's_lshl_b32 s{sStr}, s{sStr}, 3\n s_lshl_b32 s{sRing}, s{sWave}, 14')
E(f's_sub_u32 s{sT+1}, s{sStr}, 1024\n v_add_u32 v163, s{sT+1}, v162\n s_lshl_b32 s{sStr}, s{sStr}, 1')
def wdma_parts(st):
    p0=f's_add_u32 m0, s{sRing}, {(st%8)*2048}\n'
    if st%4==0: p0+=f's_add_u32 s{sT+3}, s{sRot}, {st//4}\n s_and_b32 s{sT+3}, s{sT+3}, 7\n s_lshl_b32 s{sT+3}, s{sT+3}, 2\n s_mul_i32 s{sT+3}, s{sT+3}, s{sStr}'
    else: p0+=f's_add_u32 s{sT+3}, s{sT+3}, s{sStr}'
    VQ.extend([f'w{st}']*2)
    return [p0, f'buffer_load_dwordx4 v162, {sr(sWB)}, s{sT+3} offen lds', f'buffer_load_dwordx4 v163, {sr(sWB)}, s{sT+3} offen offset:1024 lds']
def wdma(st):
    for p in wdma_parts(st): E(p)
if OPT.get('p0','2')!='0': E(f's_cmp_eq_u32 s{sWave}, 0\n s_cbranch_scc0 L_A_NP0\n s_setprio {OPT.get("p0","3")}\nL_A_NP0:')
NW0=int(OPT.get('nw0','8'))
VQ.clear()
for st in range(NW0): wdma(st)
E('s_branch L_A_NOKV')
LBL('L_A_KV')
E(f's_setprio 3\n s_load_dword s{sTag}, s[26:27], {WS_EPOCH}')
C('---- kvA: this WG makes 16 positions (hg&3) of K (hg<4) or V, and their gate ; wave 4+u sums k in [128u,128u+128)')
E(f's_cmp_lt_u32 s{sHg}, 4\n s_cselect_b32 s{sWKV}, s8, s10\n s_cselect_b32 s{sWKV+1}, s9, s11\n s_mov_b32 s{sWKV+2}, 16384\n s_mov_b32 s{sWKV+3}, 0x20000\n s_and_b32 s{sT+3}, s{sWave}, 3')
E(f's_lshl_b32 s{sT+1}, s{sPb}, 16\n s_lshl_b32 s{sT+2}, s{sT+9}, 14\n s_add_u32 s{sT+1}, s{sT+1}, s{sT+2}\n s_lshl_b32 s{sT+2}, s{sT+3}, 8\n s_add_u32 s{sT+1}, s{sT+1}, s{sT+2}')
E('v_lshlrev_b32 v3, 10, v5\n v_and_b32 v4, 48, v0\n v_add_u32 v3, v3, v4')
for s_ in range(4): E(f'buffer_load_dwordx4 {vr(116+4*s_,4)}, v3, {sr(sX)}, s{sT+1} offen offset:{64*s_}')
if MAP=='c' and OPT.get('wkt','1')=='1':
    E(f's_cmp_eq_u32 s{sWave}, 4\n s_cbranch_scc0 L_A_NT2\n s_lshr_b32 s{sT+4}, s2, 3\n s_lshl_b32 s{sT+4}, s{sT+4}, 9\n v_lshlrev_b32 v2, 7, v0\n s_mov_b64 exec, 15\n buffer_load_dword v167, v2, {sr(sWKV)}, s{sT+4} offen\n s_mov_b64 exec, -1')
    LBL('L_A_NT2')
srd(sG,20,1024)
for s_ in range(4): E(f'buffer_load_dwordx4 {vr(132+4*s_,4)}, v4, {sr(sG)}, s{sT+2} offen offset:{64*s_}')
E(f's_lshl_b32 s{sT}, s{sT+3}, 12\n s_add_u32 m0, s{sT}, {L_ST}\n s_nop 0')
for i in range(4): E(f'buffer_load_dwordx4 v6, {sr(sWKV)}, s{sT} offen offset:{1024*i} lds')
LBL('L_A_NOKV')
C('---- address of this wave\'s o slot, constants')
sOA=sT+8
E(f's_and_b32 s{sOA}, s{sWave}, 1\n s_lshl_b32 s{sT+1}, s{sPb}, 1\n s_add_u32 s{sOA}, s{sOA}, s{sT+1}\n s_lshl_b32 s{sOA}, s{sOA}, 5')
E(f's_lshl_b32 s{sT+1}, s{sHg}, 2\n s_add_u32 s{sOA}, s{sOA}, s{sT+1}\n s_and_b32 s{sT+1}, s{sWave}, 2\n s_add_u32 s{sOA}, s{sOA}, s{sT+1}\n s_lshr_b32 s{sT+1}, s{sWave}, 2\n s_add_u32 s{sOA}, s{sOA}, s{sT+1}\n s_lshl_b32 s{sOA}, s{sOA}, 10\n s_add_u32 s{sOA}, s{sOA}, {hex(WS_OA)}')
E(f'v_mov_b32 v{vZ}, {L_ST}\n v_lshlrev_b32 v11, 2, v0')
traddr128(WA,2,3,3,'0'); E(f's_lshl_b32 s{sT+1}, s{sWave}, 14\n v_add_u32 v{WA}, s{sT+1}, v{WA}\n v_xor_b32 v{WA+1}, 64, v{WA}')
E(f'v_and_b32 v2, 31, v0\n v_bfe_u32 v3, v0, 1, 3\n v_lshrrev_b32 v7, 5, v0\n v_xor_b32 v3, v3, v7\n v_lshlrev_b32 v{XA}, 7, v2\n v_lshl_add_u32 v{XA}, v3, 4, v{XA}\n v_add_u32 v{XA}, 0x10000, v{XA}')
for s_ in range(1,4): E(f'v_xor_b32 v{XA+s_}, {s_<<5}, v{XA}')
for r in range(32): E(f'v_mov_b32 v{OA+r}, 0')
set_vpad(list(range(AV,AV+16)),2)
E(f'v_mov_b32 v{AIDX}, 0xdddddddd')
E(f's_lshr_b32 s{sT+1}, s{sWave}, 2\n s_lshl_b32 s{sT+1}, s{sT+1}, 11\n v_add_u32 v{AKA}, s{sT+1}, v6')
E(f'v_lshlrev_b32 v7, 8, v7\n v_lshl_add_u32 v7, v5, 4, v7\n v_add_u32 v{AVA}, s{sT+1}, v7')
E(f's_lshl_b32 s{sT+6}, s{sHg}, 5\n s_add_u32 s{sT+6}, s{sT+6}, s{sPb}\n s_lshl_b32 s{sT+6}, s{sT+6}, 7\n s_lshl_b32 s{sT+1}, s{sWave}, 2\n s_add_u32 s{sT+6}, s{sT+6}, s{sT+1}\n s_add_u32 s{sT+6}, s{sT+6}, {hex(WS_FKVB)}')
E(f's_cmp_lt_u32 s{sWave}, 4\n s_cbranch_scc1 L_A_GQ\n s_waitcnt lgkmcnt(0)')
mktag()
E(f'v_lshrrev_b32 v4, 4, v0\n v_lshlrev_b32 v4, 8, v4\n v_lshl_add_u32 v4, v5, 3, v4\n s_add_u32 s{sT}, s{sT}, {L_ST}\n v_add_u32 v4, s{sT}, v4')
E(f's_lshl_b32 s{sT+1}, s{sT+3}, 10\n s_add_u32 s{sT+1}, s{sT+1}, {L_PART}\n v_add_u32 v2, s{sT+1}, v6\n s_lshl_b32 s{sT+1}, s{sT+3}, 8\n s_add_u32 s{sT+1}, s{sT+1}, {L_PG}\n v_add_u32 v3, s{sT+1}, v11')
E('s_waitcnt vmcnt(0)')
for s_ in range(4): E(f'ds_read_b64_tr_b16 {vr(44+4*s_,2)}, v4 offset:{1024*s_}\n ds_read_b64_tr_b16 {vr(46+4*s_,2)}, v4 offset:{1024*s_+128}')
for s_ in range(4): E(f'v_mfma_f32_16x16x32_bf16 v[64:67], {vr(132+4*s_,4)}, {vr(116+4*s_,4)}, {"0" if s_==0 else "v[64:67]"}')
E(f's_cmp_lt_u32 s{sHg}, 4\n s_waitcnt lgkmcnt(0)\n s_cbranch_scc0 L_A_VJOB')
for s_ in range(4): E(f'v_mfma_f32_16x16x32_bf16 v[60:63], {vr(44+4*s_,4)}, {vr(116+4*s_,4)}, {"0" if s_==0 else "v[60:63]"}')
E('s_branch L_A_KVJ')
LBL('L_A_VJOB')
for s_ in range(4): E(f'v_mfma_f32_16x16x32_bf16 v[60:63], {vr(116+4*s_,4)}, {vr(44+4*s_,4)}, {"0" if s_==0 else "v[60:63]"}')
LBL('L_A_KVJ')
E('s_nop 0\n ds_write_b32 v3, v64\n s_nop 5\n ds_write_b128 v2, v[60:63]')
stamp('A',2,'kvA partial')
E('s_waitcnt lgkmcnt(0)')
tag_set(T_PT,sT+3,2)
E(f's_cmp_eq_u32 s{sWave}, 7\n s_cbranch_scc0 L_A_BS')
C('---- wave 7: reduce the four partial tiles, store, flag')
tag_wait(T_PT,4,2)
E(f'v_add_u32 v3, {L_PART}, v6\n v_add_u32 v4, {L_PG}, v11')
for i in range(4): E(f'ds_read_b128 {vr(116+4*i,4)}, v3 offset:{1024*i}')
for i in range(2): E(f'ds_read2st64_b32 {vr(148+2*i,2)}, v4 offset0:{2*i} offset1:{2*i+1}')
E(f's_lshl_b32 s{sT+3}, s{sPb}, 1\n s_lshr_b32 s{sT+4}, s{sT+9}, 1\n s_add_u32 s{sT+3}, s{sT+3}, s{sT+4}\n s_lshl_b32 s{sT+3}, s{sT+3}, 11\n s_add_u32 s{sT+3}, s{sT+3}, {hex(WS_KVA)}\n s_and_b32 s{sT+4}, s{sT+9}, 1')
E(f's_cmp_lt_u32 s{sHg}, 4\n s_cselect_b32 s{sT+5}, 9, 3\n s_cselect_b32 s{sT+7}, 3, 8\n s_cselect_b32 s{sT+1}, 8, 9\n s_cselect_b32 s{sT}, 0, 0x400')
E(f's_lshl_b32 s{sT+4}, s{sT+4}, s{sT+1}\n s_add_u32 s{sT+3}, s{sT+3}, s{sT+4}\n s_add_u32 s{sT+3}, s{sT+3}, s{sT}')
E(f'v_bfe_u32 v3, v0, 4, 1\n v_lshrrev_b32 v4, 5, v0\n v_lshlrev_b32 v5, 4, v5\n v_lshl_add_u32 v5, v3, s{sT+5}, v5\n v_lshl_add_u32 v5, v4, s{sT+7}, v5')
FPLS=int(OPT.get('fpl','2'))
E(f's_lshl_b32 s{sT+7}, s{sPb}, 3\n s_add_u32 s{sT+7}, s{sT+7}, s{sHg}\n s_and_b32 s{sT+1}, s{sT+7}, {(1<<FPLS)-1}\n s_lshr_b32 s{sT+7}, s{sT+7}, {FPLS}\n s_lshl_b32 s{sT+7}, s{sT+7}, 7\n s_lshl_b32 s{sT+1}, s{sT+1}, 2\n s_add_u32 s{sT+7}, s{sT+7}, s{sT+1}\n s_add_u32 s{sT+7}, s{sT+7}, {hex(WS_FKVA)}')
E('s_waitcnt lgkmcnt(2)')
for st_ in (8,4):
    for r in range(st_): E(f'v_add_f32 v{116+r}, v{116+r}, v{116+st_+r}')
cvt(116,116,117); cvt(117,118,119)
E(f'buffer_store_dwordx2 v[116:117], v5, {sr(sWS)}, s{sT+3} offen sc1')
E(f's_cmp_lt_u32 s{sHg}, 4\n s_waitcnt lgkmcnt(0)\n s_cbranch_scc0 L_A_SF')
for st_ in (2,1):
    for r in range(st_): E(f'v_add_f32 v{148+r}, v{148+r}, v{148+st_+r}')
E(f's_mov_b32 s{sT}, {hex(f2u(-math.log2(math.e)))}\n v_mul_f32 v148, s{sT}, v148\n v_exp_f32 v148, v148')
E(f's_lshl_b32 s{sT}, s{sPb}, 2\n s_add_u32 s{sT}, s{sT}, s{sT+9}\n v_add_f32 v148, 1.0, v148\n v_rcp_f32 v148, v148\n s_lshl_b32 s{sT}, s{sT}, 6\n s_add_u32 s{sT}, s{sT}, {hex(WS_G)}')
E(f's_mov_b64 exec, 0xffff\n buffer_store_dword v148, v11, {sr(sWS)}, s{sT} offen sc1\n s_mov_b64 exec, -1')
LBL('L_A_SF')
E('s_waitcnt vmcnt(0)')
flag_store(sT+7,2)
stamp('A',3,'kvA flag sent')
LBL('L_A_BS')
E(f's_cmp_eq_u32 s{sWave}, 6\n s_cbranch_scc0 L_A_B8')
C('---- wave 6: wait for every K/V piece, fetch this WG\'s share into L2, tell the projection waves')
E(f'v_lshlrev_b32 v16, 7, v0\n v_lshrrev_b32 v17, {FPLS-2}, v0\n v_lshlrev_b32 v17, 7, v17\n v_and_b32 v18, {(1<<(FPLS-2))-1}, v0\n v_lshl_add_u32 v17, v18, 4, v17\n v_add_u32 v17, {hex(WS_FKVA)}, v17')
E(f'v_mov_b32 v2, s{sTag}\n ds_write_b32 v{vZ}, v2 offset:{T_TAG-L_ST}')
tag_wait(T_PT,4,2)
tag_wait(T_PL,1,2,sleep=2)
C('lanes whose four flags are in drop out of the next look')
E(f's_mov_b32 s{sCnt}, {SPIN_LIMIT}')
LBL('L_A_PL')
E(f'buffer_load_dwordx4 v[12:15], v17, {sr(sWS)}, 0 offen sc1\n s_waitcnt vmcnt(0)')
for i in range(4): E(f'v_xor_b32 v{12+i}, s{sTag}, v{12+i}')
E(f'v_or3_b32 v12, v12, v13, v14\n v_or_b32 v12, v12, v15\n v_cmp_ne_u32 vcc, 0, v12\n s_cbranch_vccz L_A_PLD\n s_sub_u32 s{sCnt}, s{sCnt}, 1\n s_cbranch_scc1 L_A_PLD\n s_mov_b64 exec, vcc\n s_sleep {OPT.get("psl","16")}\n s_branch L_A_PL')
LBL('L_A_PLD')
E('s_mov_b64 exec, -1')
E(f's_lshr_b32 s{sT+5}, s2, 3\n s_lshl_b32 s{sT+5}, s{sT+5}, 12\n s_add_u32 s{sT+5}, s{sT+5}, {hex(WS_KVA)}')
E(f's_mov_b32 exec_hi, 0\n buffer_load_dword v117, v16, {sr(sWS)}, s{sT+5} offen sc1\n s_mov_b64 exec, -1')
tag_set(T_FL,None,2)
stamp('A',3,'kvA flag sent')
E(f's_lshr_b32 s{sT+5}, s2, 3\n s_and_b32 s{sT+5}, s{sT+5}, 3\n s_lshl_b32 s{sT+5}, s{sT+5}, 14\n s_add_u32 s{sT+5}, s{sT+5}, {hex(WS_KVA)}')
for q in range(4):
    E(f's_mov_b32 m0, {L_ST+4096*q}\n s_add_u32 s{sT+4}, s{sT+5}, {4096*q}')
    for i in range(4): E(f'buffer_load_dwordx4 v6, {sr(sWS)}, s{sT+4} offen offset:{1024*i} sc1 lds')
E('s_waitcnt vmcnt(0)')
tag_set(T_K0,None,2)
stamp('A',7,'G1')
E(f's_cmp_eq_u32 s2, 0\n s_cbranch_scc0 L_A_B8\n s_mov_b32 s{sT}, 0')
flag_store(sT,2)
E('s_branch L_A_B8')
LBL('L_A_GQ')
PAC=[44,60,128,144]; PFR=[12,112,92]
def areads_l(st):
    f=PFR[st%3]; so=(st%8)*2048; o=[]
    for i in range(2): o+= [f'ds_read_b64_tr_b16 {vr(f+4*i,2)}, v{WA+i} offset:{so}', f'ds_read_b64_tr_b16 {vr(f+4*i+2,2)}, v{WA+i} offset:{so+512}']
    for t in range(2): o.append(f'ds_read_b128 {vr(f+8+4*t,4)}, v{XA+st%4} offset:{(st//4)*8192+4096*t}')
    return o
def areads(st):
    for p in areads_l(st): E(p)
def kv_parts(p):
    VQ.extend(['kv']*2)
    return [f's_add_u32 m0, s{sRing}, {p*2048}\n s_add_u32 s{sT+4}, s{sT+5}, {p*2048}']+[f'buffer_load_dwordx4 v6, {sr(sWS)}, s{sT+4} offen offset:{1024*n} sc1 lds' for n in range(2)]
def kvpiece(p):
    for q in kv_parts(p): E(q)
for st in range(NW0,8): wdma(st)
E(f's_sub_u32 s{sT+4}, s{sWave}, 1\n s_cmp_eq_u32 s{sWave}, 1\n s_cselect_b32 s{sT+4}, 3, s{sT+4}\n s_lshr_b32 s{sT+5}, s2, 3\n s_add_u32 s{sT+5}, s{sT+5}, s{sT+4}\n s_and_b32 s{sT+5}, s{sT+5}, 3\n s_lshl_b32 s{sT+5}, s{sT+5}, 14\n s_add_u32 s{sT+5}, s{sT+5}, {hex(WS_KVA)}')
tag_wait(T_X0,4,2) if XD else tag_wait(T_X,1,2)
stamp('A',7,'G1')
vwait('w0'); areads(0); vwait('w1'); areads(1)
VQ0=list(VQ)
PLK=int(OPT.get('plk','15'))
E(f's_cmp_eq_u32 s{sWave}, 3\n s_cbranch_scc1 L_A_GV')
def gstep(var,st,kv):
    f=PFR[st%3]
    def mm(i,t):
        d=PAC[2*i+t]; c='0' if st==0 else None
        if var==0: mfma(d,f+4*i,f+8+4*t,c)
        else: mfma(d,f+8+4*t,f+4*i,c)
    vwait(f'w{st+2}',f' lgkmcnt({6 if st<31 else 0})')
    rd=areads_l(st+2) if st+2<32 else []
    dm=wdma_parts(st+8) if st+8<32 else (kv_parts(st%8) if kv else [])
    gaps=[rd[0:2]+dm[0:1], rd[2:4]+dm[1:2], rd[4:6], dm[2:3]]
    if st>=30: gaps=[[f'v_mov_b32 v{OB+8*(st-30)+2*q+r}, 0' for r in range(2)]+gaps[q] for q in range(4)]
    for q,(i,t) in enumerate(((0,0),(0,1),(1,0),(1,1)) if st<31 else ((1,0),(1,1),(0,0),(0,1))):
        mm(i,t)
        for p in gaps[q]: E(p)
for var in (0,1):
    if var: LBL('L_A_GV')
    VQ[:]=VQ0
    for st in range(24):
        if OPT.get('hold') and st==0:
            E(f's_cmp_eq_u32 s{sWave}, 0\n s_cbranch_scc1 L_A_NH{var}'); tag_wait(T_H,1,2,sleep=2); LBL(f'L_A_NH{var}')
        if OPT.get('hold') and var==0 and st==int(OPT.get('hold')):
            E(f's_cmp_eq_u32 s{sWave}, 0\n s_cbranch_scc0 L_A_NH2'); tag_set(T_H,None,2); E('s_waitcnt lgkmcnt(0)'); LBL('L_A_NH2')
        if st==2: E('s_waitcnt lgkmcnt(0)'); tag_wait(T_X,4,2)
        if st==14: E('s_waitcnt lgkmcnt(0)'); tag_wait(T_X+16,4,2)
        if st==PLK and var==1: tag_set(T_PL,None,2); E('s_waitcnt lgkmcnt(0)')
        gstep(var,st,False)
    stamp('A',2,'step 24'); cstamp('A',10,'s24')
    if var==0: E(f's_cmp_eq_u32 s{sWave}, 0\n s_cbranch_scc1 L_A_G0')
    tag_wait(T_FL,1,2,once=f'L_A_GK{var}')
    if var==0: LBL('L_A_G0')
    V1=list(VQ)
    for st in range(24,32): gstep(var,st,False)
    if var==0: E(f's_cmp_eq_u32 s{sWave}, 0\n s_cbranch_scc1 L_A_GE0')
    tag_wait(T_FL,1,2)
    for p in range(8): kvpiece(p)
    E(f's_branch L_A_GE{var}')
    LBL(f'L_A_GK{var}')
    VQ[:]=V1
    for st in range(24,32): gstep(var,st,True)
    LBL(f'L_A_GE{var}')
    stamp('A',1,'proj loop done'); cstamp('A',11,'pl')
    E(f's_lshl_b32 s{sT+4}, s{sHg}, 8\n s_lshl_b32 s{sT+5}, s{sPb}, 1\n s_add_u32 s{sT+4}, s{sT+4}, s{sT+5}\n s_lshl_b32 s{sT+4}, s{sT+4}, 11\n s_add_u32 s{sT+4}, s{sT+4}, {hex(WS_KVB)}')
    if var==0:
        E(f's_cmp_eq_u32 s{sWave}, 2\n s_cbranch_scc1 L_A_EK')
        C('q (A / B): scale, pack, hand over through LDS')
        E(f's_cmp_eq_u32 s{sWave}, 0\n s_cbranch_scc1 L_A_Q0')
        tag_wait(T_G,1,2)
        LBL('L_A_Q0')
        E(f's_lshl_b32 s{sT+1}, s{sWave}, 13\n s_add_u32 s{sT+1}, s{sT+1}, {L_QA}\n v_add_u32 v3, s{sT+1}, v6\n s_mov_b32 s{sT+2}, {hex(CSCALE)}\n s_mov_b32 s{sT+3}, {hex(CSCALE)}\n s_lshl_b32 s{sT+1}, s{sWave}, 2\n s_add_u32 s{sT+1}, s{sT+1}, {T_Q1}\n v_mov_b32 v4, s{sT+1}\n v_mov_b32 v5, 1')
        for i in (1,0):
            for t in range(2):
                d=PAC[2*i+t]
                for r in range(0,16,2): E(f'v_pk_mul_f32 {vr(d+r,2)}, {vr(d+r,2)}, {sr(sT+2,2)}')
                for r in range(8): cvt(d+r,d+2*r,d+2*r+1)
                for hh in range(2): E(f'ds_write_b128 v3, {vr(d+4*hh,4)} offset:{(2*i+hh)*2048+1024*t}')
            if i==1: E(f's_mov_b64 exec, 1\n ds_write_b32 v4, v5\n s_mov_b64 exec, -1')
        E('s_waitcnt vmcnt(0) lgkmcnt(0)')
        tag_set(T_G,sWave,2)
        E('s_branch L_A_B8')
        LBL('L_A_EK')
        E('s_waitcnt vmcnt(0)')
        tag_set(T_G,sWave,2)
        for i in range(2):
            for t in range(2):
                d=PAC[2*i+t]
                for r in range(8): cvt(d+r,d+2*r,d+2*r+1)
                for hh in range(2): E(f's_add_u32 s{sT+5}, s{sT+4}, {(2*i+hh)*131072}\n buffer_store_dwordx4 {vr(d+4*hh,4)}, v6, {sr(sWS)}, s{sT+5} offen offset:{2048*t} sc1')
        E('s_branch L_A_B8')
    else:
        E('s_waitcnt vmcnt(0)')
        tag_set(T_G,sWave,2)
        E('v_bfe_u32 v3, v0, 4, 1\n v_lshl_add_u32 v3, v3, 17, v7')
        for i in range(2):
            for t in range(2):
                d=PAC[2*i+t]
                for r in range(8): cvt(d+r,d+2*r,d+2*r+1)
                E('s_nop 1')
                for gq in range(2): E(f'v_permlane32_swap_b32 v{d+4*gq}, v{d+4*gq+2}\n v_permlane32_swap_b32 v{d+4*gq+1}, v{d+4*gq+3}')
                E(f's_add_u32 s{sT+5}, s{sT+4}, {i*2*131072}')
                for gq in range(2): E(f'buffer_store_dwordx4 {vr(d+4*gq,4)}, v3, {sr(sWS)}, s{sT+5} offen offset:{2048*t+1024+512*gq} sc1')
LBL('L_A_B8')
E('s_setprio 0')
E(f's_and_b32 s{sT+1}, s{sWave}, 2\n s_lshr_b32 s{sT+2}, s{sWave}, 2\n s_add_u32 s{sT+1}, s{sT+1}, s{sT+2}\n s_lshl_b32 s{sT+1}, s{sT+1}, 11\n s_and_b32 s{sT+2}, s{sWave}, 1\n s_lshl_b32 s{sT+2}, s{sT+2}, 10\n s_add_u32 s{sT+1}, s{sT+1}, s{sT+2}\n s_add_u32 s{sT+1}, s{sT+1}, {L_QA}\n v_add_u32 v2, s{sT+1}, v6\n v_xor_b32 v3, 0x800, v2')
AK0=120; AV0=121; AEX=122; AG=126
E(f'v_add_u32 v{AK0}, {L_ST}, v{AKA}\n v_add_u32 v{AV0}, {L_ST}, v{AVA}')
E(f's_and_b32 s{sT+2}, s{sWave}, 3\n s_mul_i32 s{sT+1}, s{sT+2}, 4608\n s_add_u32 s{sT+1}, s{sT+1}, {L_EX}\n v_add_u32 v{AEX}, s{sT+1}, v6\n v_add_u32 v{AEX+1}, s{sT+1}, v11')
E(f's_lshl_b32 s{sT+2}, s{sT+2}, 2\n s_add_u32 s{sT+2}, s{sT+2}, {C_PR}\n v_mov_b32 v{AEX+2}, s{sT+2}')
E(f's_and_b32 s{sT+1}, s{sWave}, 1\n s_lshl_b32 s{sT+2}, s{sPb}, 1\n s_add_u32 s{sT+1}, s{sT+1}, s{sT+2}\n s_lshl_b32 s{sT+1}, s{sT+1}, 7\n s_add_u32 s{sT+1}, s{sT+1}, {hex(WS_G)}\n v_and_b32 v127, 0x7c, v11')
tag_wait(T_K0,1,4,sleep=int(OPT.get('asl','2')))
E(f'buffer_load_dword v{AG}, v127, {sr(sWS)}, s{sT+1} offen sc1')
tag_get(4)
def kvoff(j):
    return (j%4)*4096+(0 if j<4 else KVPOS[j//4]-(65536 if j>=16 else 0))
def ldk(j): E(f'ds_read_b128 {vr(AK+4*(j&1),4)}, v{AK0 if j<4 else AKA} offset:{kvoff(j)}')
def ldv(j): E(f's_mov_b64 exec, {sr(sVM,2)}\n ds_read_b128 {vr(AV+8*(j&1),4)}, v{AV0 if j<4 else AVA} offset:{kvoff(j)+1024}\n ds_read_b128 {vr(AV+8*(j&1)+4,4)}, v{AV0 if j<4 else AVA} offset:{kvoff(j)+1536}\n s_mov_b64 exec, -1')
ldk(0); ldv(0); ldk(1)
E(f's_bitcmp1_b32 s{sWave}, 1\n s_cbranch_scc0 L_A_WL')
tag_wait(T_Q1,1,4,sleep=int(OPT.get('asl2','1')))
E('s_branch L_A_WD')
LBL('L_A_WL')
tag_wait(T_G,1,4,sleep=int(OPT.get('asl2','1')))
LBL('L_A_WD')
stamp('A',4,'BQ'); cstamp('A',8,'BQ')
E(f'ds_read_b128 {vr(AQ0,4)}, v2\n ds_read_b128 {vr(AQ1,4)}, v3')
if PRIO in ('step','step4'): E('s_setprio 2')
E('s_waitcnt lgkmcnt(0)'); mfma(SA,AK,AQ0,'0')
E('s_nop 11')
def pair_iter(j,ldk_,ldv_,first=False,last=0,extra=0):
    kc=AK+4*(j&1); kn=AK+4*((j+1)&1); vc=AV+8*(j&1); vp=AV+8*((j+1)&1)
    vexp(SA); vexp(SA+1)
    if not first: smf(OB,vp+4,SB+8,AIDX)
    for r in range(2,5): vexp(SA+r)
    mfma(SB,kc,AQ1,'0')
    for r in range(5,10): vexp(SA+r)
    E(f's_waitcnt lgkmcnt({(1 if last<2 else 0)+extra})')
    vexp(SA+10); smf(OA,vc,SA,AIDX)
    for r in range(11,16): vexp(SA+r)
    vexp(SB); vexp(SB+1); smf(OA,vc+4,SA+8,AIDX)
    if last<2: ldv_()
    for r in range(2,5): vexp(SB+r)
    if last<2:
        E('s_waitcnt lgkmcnt(2)'); mfma(SA,kn,AQ0,'0')
    if last<1: ldk_()
    for r in range(5,11): vexp(SB+r)
    smf(OB,vc,SB,AIDX)
    for r in range(11,16): vexp(SB+r)
def aflag(force,init=False):
    sk=uid('fl')
    E(f's_cmp_eq_u32 s{sT+5}, 0\n s_cbranch_scc0 {sk}')
    if not force: E(f's_getreg_b32 s{sT}, hwreg(HW_REG_IB_STS, 0, 4)\n s_cmp_eq_u32 s{sT}, 0\n s_cbranch_scc0 {sk}')
    E(f's_waitcnt vmcnt(0)\n s_mov_b32 s{sT+5}, 1'); flag_store(sT+6,2); LBL(sk)
if ROLL:
    AKN=120; AVN=121; sC=sT+4
    def rk(j):
        a_=AKA if j<4 else AKN
        return lambda: E(f'ds_read_b128 {vr(AK+4*(j&1),4)}, v{a_} offset:{(j%4)*4096}')
    def rv(j):
        a_=AVA if j<4 else AVN
        return lambda: E(f's_mov_b64 exec, {sr(sVM,2)}\n ds_read_b128 {vr(AV+8*(j&1),4)}, v{a_} offset:{(j%4)*4096+1024}\n ds_read_b128 {vr(AV+8*(j&1)+4,4)}, v{a_} offset:{(j%4)*4096+1536}\n s_mov_b64 exec, -1')
    for r in range(8,16): E(f'v_mov_b32 v{SB+r}, 0')
    E(f'v_add_u32 v{AKN}, 0x8000, v{AKA}\n v_add_u32 v{AVN}, 0x8000, v{AVA}\n v_add_u32 v{AKA}, 0x4000, v{AKA}\n v_add_u32 v{AVA}, 0x4000, v{AVA}\n s_mov_b32 s{sC}, 0\n s_mov_b32 s{sT+5}, 0')
    L.append('.p2align 6')
    LBL('L_A_LOOP')
    pair_iter(0,rk(2),rv(1)); pair_iter(1,rk(3),rv(2))
    E(f's_cmp_gt_u32 s{sC}, 6\n s_cbranch_scc1 L_A_LAST\n s_bitcmp1_b32 0x5f, s{sC}\n s_cbranch_scc1 L_A_RARE')
    LBL('L_A_RBACK')
    pair_iter(2,rk(4),rv(3)); pair_iter(3,rk(5),rv(4))
    E(f's_add_u32 s{sC}, s{sC}, 1\n s_mov_b32 s{sT+1}, 0x4000\n s_cmp_eq_u32 s{sC}, 2\n s_cselect_b32 s{sT+1}, {hex((-49152)&0xffffffff)}, s{sT+1}\n s_cmp_eq_u32 s{sC}, 3\n s_cselect_b32 s{sT+1}, {hex((-65536)&0xffffffff)}, s{sT+1}')
    E(f'v_mov_b32 v{AKA}, v{AKN}\n v_mov_b32 v{AVA}, v{AVN}\n v_add_u32 v{AKN}, s{sT+1}, v{AKN}\n v_add_u32 v{AVN}, s{sT+1}, v{AVN}\n s_branch L_A_LOOP')
    LBL('L_A_RARE')
    E(f's_waitcnt lgkmcnt(0)\n s_cmp_gt_u32 s{sC}, 3\n s_cbranch_scc1 L_A_R4')
    E(f's_cmp_eq_u32 s{sC}, 0\n s_cbranch_scc0 L_A_R1'); lds_spin(C_K1,None,4,vZ,2,sleep=0)
    LBL('L_A_R1')
    E(f's_cmp_eq_u32 s{sC}, 2\n s_cbranch_scc0 L_A_R2'); lds_spin(C_K2,None,4,vZ,2,sleep=1)
    LBL('L_A_R2')
    E(f's_cmp_eq_u32 s{sC}, 3\n s_cbranch_scc1 L_A_R3'); aflag(False); E('s_branch L_A_RBACK')
    LBL('L_A_R3'); aflag(True); E('s_branch L_A_RBACK')
    LBL('L_A_R4')
    E(f's_cmp_eq_u32 s{sC}, 4\n s_cbranch_scc0 L_A_R6'); lds_add(C_MID,1,vZ,2); E('s_waitcnt lgkmcnt(0)\n s_branch L_A_RBACK')
    LBL('L_A_R6'); lds_spin(C_MID,None,8,vZ,2,sleep=1); E('s_branch L_A_RBACK')
    LBL('L_A_LAST')
    pair_iter(2,None,rv(3),last=1); pair_iter(3,None,None,last=2)
else:
    E(f's_and_b32 s{sT+5}, s{sWave}, 6\n s_cmp_eq_u32 s{sT+5}, 2\n s_cselect_b32 s{sT+5}, 0, 1')
    for j in range(32):
        if j in (2,6,10): E('s_waitcnt lgkmcnt(0)'); tag_wait(T_G+4*{2:2,6:3,10:1}[j],1,2)
        if j in (1,2,3,5): aflag(j==5)
        PJ=[int(x) for x in OPT.get('pj','11,22').split(',')]
        if PRIO=='step' and j in PJ: E(f's_setprio {1 if j==PJ[0] else 0}')
        if PRIO=='step4' and j in (6,16): E(f's_setprio {1 if j==6 else 0}')
        if OPT.get('jst') and j in (2,4,8,16,24): E('s_waitcnt lgkmcnt(0)'); cstamp('A',{2:1,4:2,8:3,16:7,24:10}[j],f'J{j}')
        if j==14: E('s_waitcnt lgkmcnt(0)'); lds_spin(C_K2,None,0x404,vZ,2,sleep=1)
        if j==16: lds_add(C_MID,1,vZ,2)
        if j==28: E('s_waitcnt lgkmcnt(0)'); lds_spin(C_MID,None,8,vZ,2,sleep=1)
        def lv(j=j):
            if j==15: E(f'v_add_u32 v{AVA}, 0x10000, v{AVA}')
            ldv(j+1)
        def lk(j=j):
            if j==14: E(f'v_add_u32 v{AKA}, 0x10000, v{AKA}')
            ldk(j+2)
        if j==31:
            C('has the partner of this wave (same queries, other keys) already left its sums ?  if so they arrive during the last tile')
            E(f'ds_read_b32 v127, v{AEX+2} offset:16\n ds_read_b32 v125, v{vZ} offset:{C_LOC-L_ST}')
            for q in range(2): E(f'ds_read_b128 {vr(128+12*q,4)}, v{AEX} offset:{2304*q}\n ds_read_b128 {vr(132+12*q,4)}, v{AEX} offset:{2304*q+1024}\n ds_read_b32 v{136+12*q}, v{AEX+1} offset:{2304*q+2048}')
        pair_iter(j,lk,lv,first=(j==0),last=(2 if j==31 else 1 if j==30 else 0),extra=(1 if j==16 else 0))
E('s_nop 1'); smf(OB,AV+8+4,SB+8,AIDX)
stamp('A',5,'A loop done'); cstamp('A',9,'loop done')
C('---- the first wave of a pair to finish leaves both partial sums in LDS and ends ; the second one finishes both heads')
E(f'v_readfirstlane_b32 s{sT+1}, v127\n v_readfirstlane_b32 s{sT+9}, v125\n s_cmp_eq_u32 s{sT+1}, 1\n s_cbranch_scc1 L_A_LATE')
E(f'v_mov_b32 v2, 1\n s_mov_b64 exec, 1\n ds_add_rtn_u32 v3, v{AEX+2}, v2\n s_mov_b64 exec, -1\n s_waitcnt lgkmcnt(0)\n v_readfirstlane_b32 s{sT+1}, v3\n s_cmp_eq_u32 s{sT+1}, 0\n s_cbranch_scc0 L_A_TIE\n s_nop 3')
for q,O in enumerate((OA,OB)): E(f'ds_write_b128 v{AEX}, {vr(O,4)} offset:{2304*q}\n ds_write_b128 v{AEX}, {vr(O+4,4)} offset:{2304*q+1024}\n ds_write_b32 v{AEX+1}, v{O+8} offset:{2304*q+2048}')
E(f's_mov_b64 exec, 1\n ds_write_b32 v{AEX+2}, v2 offset:16\n s_mov_b64 exec, -1\n s_waitcnt lgkmcnt(0)')
if OPT.get('dry','0')=='1': E('s_mov_b64 exec, 0\n s_branch L_A_LATE')
else: E('s_branch L_A_STD')
LBL('L_A_TIE')
E(f's_mov_b32 s{sCnt}, {SPIN_LIMIT}')
LBL('L_A_TI2')
E(f'ds_read_b32 v127, v{AEX+2} offset:16')
for q in range(2): E(f'ds_read_b128 {vr(128+12*q,4)}, v{AEX} offset:{2304*q}\n ds_read_b128 {vr(132+12*q,4)}, v{AEX} offset:{2304*q+1024}\n ds_read_b32 v{136+12*q}, v{AEX+1} offset:{2304*q+2048}')
E(f's_waitcnt lgkmcnt(0)\n v_readfirstlane_b32 s{sT+1}, v127\n s_cmp_eq_u32 s{sT+1}, 1\n s_cbranch_scc1 L_A_LATE\n s_sub_u32 s{sCnt}, s{sCnt}, 1\n s_cbranch_scc0 L_A_TI2')
LBL('L_A_LATE')
for r in range(9): E(f'v_add_f32 v{OA+r}, v{OA+r}, v{140+r}')
E('s_waitcnt vmcnt(0)')
def setupA(): E(f's_mov_b32 s{sT+2}, {hex(WS_KVA)}\n s_mov_b32 s{sT+3}, 64')
for q,(O,Q_) in enumerate(((OA,AQ0),(OB,AQ1))):
    if q==1:
        for r in range(9): E(f'v_add_f32 v{OB+r}, v{OB+r}, v{128+r}')
    dst=152+4*q
    finalize(O,dst,2,f'L_FB_A{q}',f'L_FB_A{q}_BACK',126)
    if q==1: E(f's_xor_b32 s{sOA}, s{sOA}, 0x400')
    E(f's_cbranch_execz L_A_ST{q}\n s_cmp_eq_u32 s{sT+9}, 0\n s_cbranch_scc1 L_A_FAR{q}\n buffer_store_dwordx4 {vr(dst,4)}, v6, {sr(sWS)}, s{sOA} offen\n s_branch L_A_ST{q}')
    LBL(f'L_A_FAR{q}')
    E(f'buffer_store_dwordx4 {vr(dst,4)}, v6, {sr(sWS)}, s{sOA} offen sc1')
    LBL(f'L_A_ST{q}')
    fallback(f'L_FB_A{q}',f'L_FB_A{q}_BACK',Q_,O,SA,AK,AV,AIDX,3,6,7,None,setupA)
LBL('L_A_STD')
if DIAG: E('s_mov_b64 exec, -1')
stamp('A',6,'oA published')
stamp_flush(12,'A')
LBL('L_END')
E('s_endpgm')
L.append('L_CODE_END:')
L.extend(TAIL)
L.append('    s_endpgm\n.fill 1200, 4, 0xbf810000')

hdr=open('cdna_kernels/%s.s.ref'%NAME).read().split('; Override launch')[0]
txt=hdr
txt+=f'; @launch grid=(256,1,1) block=(768,1,1) lds={LDS_TOTAL}\n'
for n in ('WS_KVA','WS_KVB','WS_OA','WS_OB','WS_STAMP','NSTAMP'): txt+=f'; CONST {n} = {hex(globals()[n])}\n'
for r,i,n in STN: txt+=f'; STAMPNAME {r} {i} {n}\n'
txt+=f'''.amdgcn_target "amdgcn-amd-amdhsa--gfx950"
.text
.globl {NAME}_kernel
.p2align 8
.type {NAME}_kernel,@function
{NAME}_kernel:
'''+'\n'.join(L)+f'''
.section .rodata,"a"
.p2align 6
.amdhsa_kernel {NAME}_kernel
  .amdhsa_next_free_vgpr 168
  .amdhsa_next_free_sgpr 102
  .amdhsa_accum_offset 168
  .amdhsa_group_segment_fixed_size 0
  .amdhsa_kernarg_size 96
  .amdhsa_user_sgpr_count 2
  .amdhsa_user_sgpr_kernarg_segment_ptr 1
  .amdhsa_system_sgpr_workgroup_id_x 1
.end_amdhsa_kernel
'''
open(OUT,'w').write(txt)
print('wrote',OUT,len(L),'lines')
```

```python
import sys, math, struct
NAME='gated_mix__grouped_kv_mqa__sliding_block__prompt'
DIAG = '--diag' in sys.argv
OUT = [a for a in sys.argv[1:] if not a.startswith('--')]
OUT = OUT[0] if OUT else 'cdna_kernels/%s.s'%NAME
OPT=dict(a.lstrip('-').split('=') for a in sys.argv[1:] if a.startswith('--') and '=' in a)
MAP=OPT.get('map','b'); ROT=OPT.get('rot','full'); PRIO=OPT.get('prio','step'); FLAG_IT=int(OPT.get('flagit','1')); PK=int(OPT.get('pk','7')); FORCE_K=int(OPT.get('forcek','7')); SENTK=int(OPT.get('sentk','14')); DENSE=OPT.get('dense','0')=='1'; ROLL=OPT.get('roll','0')=='1'; WT=OPT.get('wtouch','0')=='1'; KVK=int(OPT.get('kvk','13'))
def f2u(f): return struct.unpack('<I',struct.pack('<f',f))[0]

WS_EPOCH=0x0
WS_FKVA=0x1000
WS_FKVB=0x4000
WS_FOB =0xC000
WS_FOA =0x14000
WS_G   =0x1C000
WS_KVA =0x20000
WS_QB  =0x40000
WS_KVB =0x240000
WS_OA  =0x640000
WS_OB  =0x840000
WS_STAMP=0xA40000
NSTAMP=16
L_WQ=0; L_X=65536; L_ST=131072; L_CTL=L_ST+30720
L_GW=L_CTL; L_G=L_CTL+1024; L_C=L_CTL+1024+256
C_X=L_C+0
C_Q=L_C+4
C_K0=L_C+8; C_K1=L_C+12; C_K2=L_C+16; C_BP=L_C+20; C_MID=L_C+24; C_WO=L_C+28; C_WD=L_C+32; C_QR=L_C+36; C_SN=L_C+40; C_LOC=L_C+44; T_PT=L_C+256; T_X=L_C+272; T_PL=L_C+304; T_FL=L_C+308; T_G=L_C+320; T_X0=L_C+336; T_K0=L_C+352; T_Q1=L_C+356; T_H=L_C+368; T_TAG=L_C+372; C_PR=L_C+384; T_PR=L_C+400
L_EX=L_ST
LDS_TOTAL=163840
SPIN_LIMIT=400000
CSCALE=f2u(0.25*math.log2(math.e))
NEGBIG=f2u(-1e9)
L_LO=f2u(2.0**-24); L_HI=f2u(2.0**60)

sX=28; sWQ=32; sWKV=36; sWB=40; sWOA=44; sWOB=48; sG=52; sOUT=56; sWS=60; sDBG=64
sWave=68; sPb=69; sHg=70; sTag=71
sT=72
sCnt=84; sB=85
sXcc=65
sVM=86
sST=88
vZ=1
L=[]
def E(s):
    for ln in s.split('\n'):
        if ln.strip(): L.append('    '+ln.strip())
def LBL(s): L.append(s+':')
def C(s): L.append('    ; '+s)
_uid=[0]
def uid(p):
    _uid[0]+=1; return f'{p}_{_uid[0]}'
def vr(a,n): return f'v[{a}:{a+n-1}]'
def sr(a,n=4): return f's[{a}:{a+n-1}]'
def srd(dst,ptr,nbytes):
    E(f's_mov_b32 s{dst}, s{ptr}\n s_mov_b32 s{dst+1}, s{ptr+1}\n s_mov_b32 s{dst+2}, {hex(nbytes)}\n s_mov_b32 s{dst+3}, 0x20000')
STN=[]
def stamp(role,i,name):
    if OPT.get('acc') and role=='B' and i==10: return
    if OPT.get('jst') and role=='A' and i in (1,2,3,7): return
    if OPT.get('bst') and role=='B' and i in (6,7,8,9) and not name.startswith('arrive'): return
    if not DIAG: return
    STN.append((role,i,name))
    E(f's_memrealtime s[100:101]\n s_waitcnt lgkmcnt(0)\n s_mov_b32 s{sST+i}, s100')
ECHO=OPT.get('echo')
def echo_mark(name):
    if ECHO==name or name=='start' and ECHO:
        r=98 if name=='start' else 99
        E(f's_memrealtime s[100:101]\n s_waitcnt lgkmcnt(0)\n s_mov_b32 s{r}, s100')
def echo_end():
    if not ECHO: return
    E('s_waitcnt vmcnt(0)'); echo_mark('end')
    E('s_memrealtime s[100:101]\n s_waitcnt lgkmcnt(0)\n s_sub_u32 s99, s99, s98\n s_add_u32 s99, s99, s100')
    LBL('L_ECHO')
    E('s_memrealtime s[100:101]\n s_waitcnt lgkmcnt(0)\n s_sub_u32 s100, s100, s99\n s_cmp_lt_i32 s100, 0\n s_cbranch_scc1 L_ECHO')
def cstamp(role,i,name):
    if OPT.get('jst') and i in (10,11) and not name.startswith('J'): return
    if not DIAG: return
    STN.append((role,i,'CYC '+name))
    E(f's_memtime s[100:101]\n s_waitcnt lgkmcnt(0)\n s_mov_b32 s{sST+i}, s100')
def tacc(role,i,name,code):
    if not (DIAG and OPT.get('acc')): E(code); return
    if (role,i,'ACC '+name) not in STN: STN.append((role,i,'ACC '+name))
    E(f's_memtime s[100:101]\n s_waitcnt lgkmcnt(0)\n s_sub_u32 s{sST+i}, s{sST+i}, s100')
    E(code)
    E(f's_memtime s[100:101]\n s_waitcnt lgkmcnt(0)\n s_add_u32 s{sST+i}, s{sST+i}, s100')
def stamp_flush(nmax,role='B'):
    if not DIAG: return
    if OPT.get('dbg'):
        m={'A':[(0,1),(2,2),(7,3),(3,4),(1,5),(4,6),(5,7),(6,8)],'B':[(4,9),(6,10),(7,11),(9,12),(10,13),(11,14)]}[role]
        sk=uid('nd')
        srd(sDBG,24,256)
        E(f's_bfe_u32 s{sT}, s2, 0x30003\n s_cmp_eq_u32 s{sT}, 0\n s_cbranch_scc0 {sk}\n v_mov_b32 v2, 0\n s_not_b32 s{sT}, s{sST}\n v_writelane_b32 v2, s{sT}, 0')
        for i,sl in m: E(f'v_writelane_b32 v2, s{sST+i}, {sl}')
        E(f'v_lshlrev_b32 v3, 2, v0\n s_mov_b64 exec, 0xffff\n buffer_atomic_umax v2, v3, {sr(sDBG)}, 0 offen sc1\n s_mov_b64 exec, -1')
        LBL(sk)
        return
    if OPT.get('hwid'): E(f's_getreg_b32 s{sST+11}, hwreg(HW_REG_HW_ID)\n s_getreg_b32 s{sST+10}, hwreg(HW_REG_XCC_ID)')
    E('v_mov_b32 v2, 0')
    for i in range(nmax): E(f'v_writelane_b32 v2, s{sST+i}, {i}')
    E(f's_mul_i32 s{sT}, s2, 12\n s_add_u32 s{sT}, s{sT}, s{sWave}\n s_lshl_b32 s{sT}, s{sT}, 6\n s_add_u32 s{sT}, s{sT}, {hex(WS_STAMP)}')
    E(f'v_lshlrev_b32 v3, 2, v0\n s_mov_b64 exec, 0xffff\n buffer_store_dword v2, v3, {sr(sWS)}, s{sT} offen\n s_mov_b64 exec, -1')

def lds_add(off,val,vz,vt):
    E(f'v_mov_b32 v{vt}, {val}\n s_mov_b64 exec, 1\n ds_add_u32 v{vz}, v{vt} offset:{off-L_ST}\n s_mov_b64 exec, -1')
def lds_spin(off,mask,val,vz,vt,sleep=1):
    a=uid('spin'); d=uid('spind')
    E(f's_mov_b32 s{sCnt}, {SPIN_LIMIT}')
    LBL(a)
    E(f'ds_read_b32 v{vt}, v{vz} offset:{off-L_ST}\n s_waitcnt lgkmcnt(0)\n v_readfirstlane_b32 s{sT}, v{vt}')
    if mask is not None: E(f's_and_b32 s{sT}, s{sT}, {hex(mask)}')
    E(f's_cmp_eq_u32 s{sT}, {hex(val)}\n s_cbranch_scc1 {d}\n s_sub_u32 s{sCnt}, s{sCnt}, 1\n s_cbranch_scc1 {d}')
    if sleep: E(f's_sleep {sleep}')
    E(f's_branch {a}')
    LBL(d)
def tag_set(off,sidx,vt):
    if sidx is None: E(f'v_mov_b32 v{vt}, {off}')
    else: E(f's_lshl_b32 s{sT}, s{sidx}, 2\n s_add_u32 s{sT}, s{sT}, {off}\n v_mov_b32 v{vt}, s{sT}')
    E(f'v_mov_b32 v{vt+1}, 1\n s_mov_b64 exec, 1\n ds_write_b32 v{vt}, v{vt+1}\n s_mov_b64 exec, -1')
def tag_wait(off,n,vt,sleep=0,once=None):
    a=uid('tw'); d=uid('twd')
    E(f'v_and_b32 v{vt}, {n-1}, v0\n v_lshlrev_b32 v{vt}, 2, v{vt}\n v_add_u32 v{vt}, {off}, v{vt}')
    if once:
        E(f'ds_read_b32 v{vt+1}, v{vt}\n s_waitcnt lgkmcnt(0)\n v_cmp_ne_u32 vcc, 1, v{vt+1}\n s_cbranch_vccz {once}')
        return
    E(f's_mov_b32 s{sCnt}, {SPIN_LIMIT}')
    LBL(a)
    E(f'ds_read_b32 v{vt+1}, v{vt}\n s_waitcnt lgkmcnt(0)\n v_cmp_ne_u32 vcc, 1, v{vt+1}\n s_cbranch_vccz {d}\n s_sub_u32 s{sCnt}, s{sCnt}, 1\n s_cbranch_scc1 {d}')
    if sleep: E(f's_sleep {sleep}')
    E(f's_branch {a}')
    LBL(d)
def tag_get(vt):
    E(f'ds_read_b32 v{vt}, v{vZ} offset:{T_TAG-L_ST}\n s_waitcnt lgkmcnt(0)\n v_readfirstlane_b32 s{sTag}, v{vt}')
def poll(vaddr,n,vt,sleep=1):
    a=uid('poll'); d=uid('polld')
    E(f's_mov_b32 s{sCnt}, {SPIN_LIMIT}')
    LBL(a)
    op={1:'buffer_load_dword',2:'buffer_load_dwordx2',3:'buffer_load_dwordx3',4:'buffer_load_dwordx4'}[n]
    E(f'{op} {vr(vt,n) if n>1 else "v%d"%vt}, v{vaddr}, {sr(sWS)}, 0 offen sc1\n s_waitcnt vmcnt(0)')
    for i in range(n): E(f'v_xor_b32 v{vt+i}, s{sTag}, v{vt+i}')
    if n==2: E(f'v_or_b32 v{vt}, v{vt}, v{vt+1}')
    if n>=3: E(f'v_or3_b32 v{vt}, v{vt}, v{vt+1}, v{vt+2}')
    if n==4: E(f'v_or_b32 v{vt}, v{vt}, v{vt+3}')
    E(f'v_cmp_ne_u32 vcc, 0, v{vt}\n s_cbranch_vccz {d}\n s_sub_u32 s{sCnt}, s{sCnt}, 1\n s_cbranch_scc1 {d}')
    if sleep: E(f's_sleep {sleep}')
    E(f's_branch {a}')
    LBL(d)
def flag_store(soff_reg,vt):
    E(f'v_mov_b32 v{vt}, s{sTag}\n s_mov_b64 exec, 1\n buffer_store_dword v{vt}, off, {sr(sWS)}, s{soff_reg} sc1\n s_mov_b64 exec, -1')
def mfma(d,a,b,c=None):
    cc = vr(d,16) if c is None else (c if isinstance(c,str) else vr(c,16))
    E(f'v_mfma_f32_32x32x16_bf16 {vr(d,16)}, {vr(a,4)}, {vr(b,4)}, {cc}')
def smf(o,v,s,idx): E(f'v_smfmac_f32_32x32x32_bf16 {vr(o,16)}, {vr(v,4)}, {vr(s,8)}, v{idx}')
def vexp(r): E(f'v_exp_f32 v{r}, v{r}')
def cvt(d,a,b): E(f'v_cvt_pk_bf16_f32 v{d}, v{a}, v{b}')
def set_vpad(regs,vt):
    E(f'v_and_b32 v{vt}, 27, v0\n v_cmp_eq_u32 vcc, 16, v{vt}\n v_mov_b32 v{vt}, 0x3f803f80\n s_nop 0\n v_cndmask_b32 v{regs[0]}, 0, v{vt}, vcc')
    for r in regs[1:]: E(f'v_mov_b32 v{r}, v{regs[0]}')
def xaddr(base,t_imm,vt):
    E(f'v_and_b32 v{vt}, 15, v0\n v_lshrrev_b32 v{base}, 5, v0\n v_xor_b32 v{base}, v{base}, v{vt}\n v_lshlrev_b32 v{base}, 4, v{base}')
    E(f'v_and_b32 v{vt}, 31, v0\n v_lshl_add_u32 v{base}, v{vt}, 10, v{base}\n v_add_u32 v{base}, {t_imm}, v{base}')
    for b in range(1,8): E(f'v_xor_b32 v{base+b}, {b<<5}, v{base}')
def traddr128(dst,vt,vt2,rowsel,colbase):
    E(f'v_lshrrev_b32 v{vt}, 5, v0\n v_lshlrev_b32 v{vt}, {rowsel}, v{vt}\n v_bfe_u32 v{vt2}, v0, 2, 2\n v_add_u32 v{vt}, v{vt}, v{vt2}\n v_lshlrev_b32 v{dst}, 7, v{vt}')
    E(f'v_bfe_u32 v{vt}, v0, 4, 1\n v_lshlrev_b32 v{vt}, 1, v{vt}\n v_bfe_u32 v{vt2}, v0, 1, 1\n v_add3_u32 v{vt}, v{vt}, v{vt2}, {colbase}')
    E(f'v_bfe_u32 v{vt2}, v0, 3, 1\n v_lshlrev_b32 v{vt2}, 2, v{vt2}\n v_xor_b32 v{vt}, v{vt}, v{vt2}\n v_lshl_add_u32 v{dst}, v{vt}, 4, v{dst}')
    E(f'v_and_b32 v{vt}, 1, v0\n v_lshl_add_u32 v{dst}, v{vt}, 3, v{dst}')
def dma128_voff(dst,vt,vt2,rowstride_sreg_or_shift,colbytes):
    E(f'v_lshrrev_b32 v{vt}, 3, v0')
    if isinstance(rowstride_sreg_or_shift,int): E(f'v_lshlrev_b32 v{dst}, {rowstride_sreg_or_shift}, v{vt}')
    else: E(f'v_mul_u32_u24 v{dst}, {rowstride_sreg_or_shift}, v{vt}')
    E(f'v_bfe_u32 v{vt}, v0, 4, 1\n v_lshlrev_b32 v{vt}, 2, v{vt}\n v_and_b32 v{vt2}, 7, v0\n v_xor_b32 v{vt}, v{vt}, v{vt2}\n v_lshl_add_u32 v{dst}, v{vt}, 4, v{dst}\n v_add_u32 v{dst}, {colbytes}, v{dst}')
def finalize(O,dst,vt,lbl_fb,lbl_back,vg):
    C('guard: row sum inside [2^-24, 2^60] and finite numerators in every lane, else redo with the true maximum')
    E(f'v_add_f32 v{vt}, |v{O}|, |v{O+1}|')
    for r in range(2,8): E(f'v_add_f32 v{vt}, v{vt}, |v{O+r}|')
    E(f'v_mov_b32 v{vt+1}, 0x7f800000\n v_cmp_nlt_f32 {sr(sT,2)}, v{vt}, v{vt+1}')
    E(f'v_cmp_nle_f32 vcc, {hex(L_LO)}, v{O+8}\n s_or_b64 {sr(sT,2)}, {sr(sT,2)}, vcc')
    E(f'v_cmp_nge_f32 vcc, {hex(L_HI)}, v{O+8}\n s_or_b64 {sr(sT,2)}, {sr(sT,2)}, vcc\n s_cbranch_scc1 {lbl_fb}')
    LBL(lbl_back)
    E(f'v_rcp_f32 v{vt}, v{O+8}\n s_nop 0\n v_mul_f32 v{vt}, v{vt}, v{vg}')
    for r in range(0,8,2): E(f'v_pk_mul_f32 {vr(O+r,2)}, {vr(O+r,2)}, {vr(vt,2)} op_sel_hi:[1,0]')
    for r in range(4): cvt(dst+r,O+2*r,O+2*r+1)
    E(f'v_min_u32 v{dst}, -2, v{dst}')

TAIL=[]
RETRY=[]
def fallback(lbl,back,Q,O,S,K,V,IDX,vM,vK,vV,ntile,soff_setup,first_mask=None,last_mask=None,first_cond=None):
    global L
    save=L; L=[]
    LBL(lbl)
    C('exact softmax for one query tile: pass 1 row maxima, pass 2 exp2(s - max) ; K/V fragments from d_ws')
    soff_setup()
    E(f'v_mov_b32 v{vM}, 0xff800000')
    for p in (0,1):
        lp=uid('fbl')
        if p==1:
            E(f'v_mov_b32 v{S}, v{vM}\n s_nop 1\n v_permlane32_swap_b32 v{S}, v{vM}\n s_nop 1\n v_max_f32 v{vM}, v{vM}, v{S}')
            for r in range(16): E(f'v_mov_b32 v{O+r}, 0')
        E(f's_mov_b32 s{sT+5}, s{sT+2}\n s_mov_b32 s{sT+6}, 0')
        LBL(lp)
        E(f'buffer_load_dwordx4 {vr(K,4)}, v{vK}, {sr(sWS)}, s{sT+5} offen sc1')
        if p==1:
            E(f's_mov_b64 exec, {sr(sVM,2)}\n buffer_load_dwordx4 {vr(V,4)}, v{vV}, {sr(sWS)}, s{sT+5} offen offset:1024 sc1\n buffer_load_dwordx4 {vr(V+4,4)}, v{vV}, {sr(sWS)}, s{sT+5} offen offset:1536 sc1\n s_mov_b64 exec, -1')
        E('s_waitcnt vmcnt(0)')
        if first_mask is None:
            mfma(S,K,Q,'0')
        else:
            a=uid('fbm'); b=uid('fbm'); j=uid('fbm')
            E(f's_add_u32 s{sT+7}, s{sT+6}, 1\n s_cmp_eq_u32 s{sT+7}, s{sT+3}\n s_cbranch_scc1 {a}')
            E(f's_cmp_lt_u32 s{sT+6}, s{sT+4}\n s_cbranch_scc1 {b}')
            mfma(S,K,Q,'0'); E(f's_branch {j}')
            LBL(a); mfma(S,K,Q,last_mask); E(f's_branch {j}')
            LBL(b); mfma(S,K,Q,first_mask)
            LBL(j)
        E('s_nop 15')
        if p==0:
            for r in range(0,16,2): E(f'v_max3_f32 v{vM}, v{S+r}, v{S+r+1}, v{vM}')
        else:
            for r in range(16): E(f'v_sub_f32 v{S+r}, v{S+r}, v{vM}')
            for r in range(16): vexp(S+r)
            E('s_nop 1'); smf(O,V,S,IDX); smf(O,V+4,S+8,IDX)
        E(f's_add_u32 s{sT+5}, s{sT+5}, 2048\n s_add_u32 s{sT+6}, s{sT+6}, 1\n s_cmp_lt_u32 s{sT+6}, s{sT+3}\n s_cbranch_scc1 {lp}')
    E(f's_nop 15\n s_branch {back}')
    TAIL.extend(L); L=save

E('s_cmp_ge_u32 s2, 256\n s_cbranch_scc1 L_END')
if ECHO=='karg': E('s_memrealtime s[100:101]\n s_waitcnt lgkmcnt(0)\n s_mov_b32 s97, s100')
E('s_load_dwordx16 s[4:19], s[0:1], 0\n s_load_dwordx8 s[20:27], s[0:1], 64')
E(f'v_lshrrev_b32 v1, 6, v0\n v_and_b32 v0, 63, v0\n v_readfirstlane_b32 s{sWave}, v1')
if MAP=='b':
    E(f's_and_b32 s{sT}, s2, 7\n s_lshr_b32 s{sT+1}, s2, 3\n s_and_b32 s{sT+2}, s{sT+1}, 3\n s_lshl_b32 s{sPb}, s{sT}, 2\n s_or_b32 s{sPb}, s{sPb}, s{sT+2}\n s_lshr_b32 s{sHg}, s{sT+1}, 2')
else:
    E(f's_bfe_u32 s{sPb}, s2, 0x20001\n s_lshl_b32 s{sPb}, s{sPb}, 3\n s_bfe_u32 s{sT}, s2, 0x30003\n s_or_b32 s{sPb}, s{sPb}, s{sT}\n s_and_b32 s{sHg}, s2, 1\n s_lshl_b32 s{sHg}, s{sHg}, 2\n s_lshr_b32 s{sT}, s2, 6\n s_or_b32 s{sHg}, s{sHg}, s{sT}')
E(f's_mov_b32 s{sVM}, 0xffff\n s_mov_b32 s{sVM+1}, 0xffff')
if DIAG:
    for i in range(12): E(f's_mov_b32 s{sST+i}, 0')
def codepf():
  if OPT.get('cpf','1')=='1':
      C('---- pull this WG\'s share of the kernel\'s own instructions into L2 (later instruction fetches then miss only the I-cache)')
      E(f's_cmp_eq_u32 s{sWave}, 11\n s_cbranch_scc0 L_B_NCP\n s_getpc_b64 s[{sT}:{sT+1}]')
      LBL('L_B_PC')
      E(f's_lshr_b32 s{sT+2}, s2, 3\n s_mul_i32 s{sT+2}, s{sT+2}, (L_CODE_END-L_B_PC+4095)/4096*128\n s_add_u32 s{sT}, s{sT}, s{sT+2}\n s_addc_u32 s{sT+1}, s{sT+1}, 0')
      E(f'v_lshlrev_b32 v2, 7, v0\n v_mov_b32 v3, s{sT+1}\n v_add_co_u32 v2, vcc, s{sT}, v2\n s_nop 1\n v_addc_co_u32 v3, vcc, 0, v3, vcc\n s_lshl_b64 exec, 1, (L_CODE_END-L_B_PC+4095)/4096\n s_sub_u32 exec_lo, exec_lo, 1\n global_load_dword v63, v[2:3], off\n s_mov_b64 exec, -1')
      LBL('L_B_NCP')
if OPT.get('cpe','0')=='1': codepf()
C('clear the LDS counters and flags while the kernel arguments arrive')
E(f'v_lshlrev_b32 v2, 3, v0\n v_add_u32 v2, {L_C}, v2\n v_mov_b32 v4, 0\n v_mov_b32 v5, 0\n ds_write_b64 v2, v[4:5]')
E('s_waitcnt lgkmcnt(0)\n s_barrier')
stamp('A',0,'start'); stamp('B',0,'start'); echo_mark('start')
if ECHO=='karg': E('s_sub_u32 s99, s98, s97\n s_mul_i32 s99, s99, 10\n s_add_u32 s99, s99, s98')
srd(sX,4,2048*1024); srd(sWS,26,0x10000000)
E(f's_cmp_lt_u32 s{sWave}, 8\n s_cbranch_scc1 L_A')


KVPOS=[L_ST,32768,49152,16384,65536,81920,98304,114688]
L_PART=L_ST+24576
L_QA=0; L_QB=8192; L_WO=0; L_FX=65536
sOut=66; sOb=67; sPass=64
sRot=sT+11
def mktag(): E(f's_mul_i32 s{sTag}, s{sTag}, 0x9E3779B1\n s_add_u32 s{sTag}, s{sTag}, 0x7F4A7C15')
def mkrot():
    if MAP=='b': E(f's_and_b32 s{sRot}, s{sPb}, 3\n s_lshl_b32 s{sRot}, s{sRot}, 1\n s_add_u32 s{sRot}, s{sRot}, s{sHg}')
    else: E(f's_lshl_b32 s{sRot}, s{sHg}, 1\n s_add_u32 s{sRot}, s{sRot}, s{sPb}')
def touch(srd_,soff,n,vaddr,vd,sc1=False):
    for i in range(n):
        if i: E(f's_add_u32 s{soff}, s{soff}, 8192')
        E(f'buffer_load_dword v{vd}, v{vaddr}, {sr(srd_)}, s{soff} offen'+(' sc1' if sc1 else ''))
E(f's_setprio {2 if OPT.get("bp2") else 3}\n s_sub_u32 s{sB}, s{sWave}, 8')
if OPT.get('cpe','0')=='0': codepf()
C('---- x tile -> LDS as 8 blocks of [64 rows][64 k], block order rotated per WG ; wave b brings blocks b and b+4')
E('v_lshrrev_b32 v17, 3, v0\n v_lshlrev_b32 v17, 10, v17\n v_lshrrev_b32 v2, 4, v0\n v_and_b32 v3, 7, v0\n v_xor_b32 v2, v2, v3\n v_lshl_add_u32 v17, v2, 4, v17\n v_xor_b32 v18, 64, v17')
mkrot()
E(f's_lshl_b32 s{sT+7}, s{sPb}, 16\n s_lshl_b32 s{sT+6}, s{sB}, 13')
VQ=[]
def vwait(tag,extra=''):
    if tag not in VQ:
        if extra: E('s_waitcnt'+extra)
        return
    i=max(n for n,t in enumerate(VQ) if t==tag)
    n=len(VQ)-1-i; del VQ[:i+1]
    E(f's_waitcnt vmcnt({n})'+extra)
XD=OPT.get('xd','1')=='1'
def xblock(expr_add,ldsoff,rows):
    E(f's_add_u32 s{sT+1}, s{sRot}, {expr_add}\n s_and_b32 s{sT+1}, s{sT+1}, 7\n s_lshl_b32 s{sT+1}, s{sT+1}, 7\n s_add_u32 s{sT+1}, s{sT+1}, s{sT+7}')
if XD:
    E(f's_and_b32 s{sT+1}, s{sRot}, 7\n s_lshl_b32 s{sT+1}, s{sT+1}, 7\n s_add_u32 s{sT+1}, s{sT+1}, s{sT+7}\n s_lshl_b32 s{sT+2}, s{sB}, 14\n s_add_u32 s{sT+1}, s{sT+1}, s{sT+2}\n s_lshl_b32 s{sT+2}, s{sB}, 11\n s_add_u32 m0, s{sT+2}, 65536\n s_nop 0')
    E(f'buffer_load_dwordx4 v17, {sr(sX)}, s{sT+1} offen lds\n s_add_u32 m0, s{sT+2}, {65536+1024}\n s_add_u32 s{sT+1}, s{sT+1}, 8192\n buffer_load_dwordx4 v18, {sr(sX)}, s{sT+1} offen lds')
def xrest():
  for hb in range(2):
    sk=uid('xs')
    if XD and hb==0: E(f's_cmp_eq_u32 s{sB}, 0\n s_cbranch_scc1 {sk}')
    E(f's_add_u32 s{sT+1}, s{sRot}, s{sB}\n s_add_u32 s{sT+1}, s{sT+1}, {4*hb}\n s_and_b32 s{sT+1}, s{sT+1}, 7\n s_lshl_b32 s{sT+1}, s{sT+1}, 7\n s_add_u32 s{sT+1}, s{sT+1}, s{sT+7}')
    for n in range(8):
        E(f's_add_u32 m0, s{sT+6}, {65536+32768*hb+1024*n}')
        E(f's_add_u32 s{sT+1}, s{sT+1}, 8192' if n else 's_nop 0')
        E(f'buffer_load_dwordx4 v{17+(n&1)}, {sr(sX)}, s{sT+1} offen lds')
    if XD and hb==0: LBL(sk)
if not XD: xrest()
MU=128; MD=144; BQ=16; BK=24; BV=36; BS=64; BO=96; BIDX=60
C('---- constants for the later phases (idle time)')
E(f'v_mov_b32 v{vZ}, {L_ST}\n v_lshlrev_b32 v160, 4, v0\n v_lshlrev_b32 v163, 7, v0')
E('v_lshrrev_b32 v161, 5, v0\n v_lshlrev_b32 v161, 8, v161\n v_and_b32 v2, 15, v0\n v_lshl_add_u32 v161, v2, 4, v161')
srd(sWOA,12,512*1024); srd(sWOB,18,512*1024)
E(f'v_and_b32 v4, 31, v0\n v_lshrrev_b32 v5, 5, v0\n v_lshlrev_b32 v5, 2, v5\n v_sub_u32 v4, v4, v5\n s_mov_b32 s{sT}, {hex(NEGBIG)}')
for r in range(16):
    E(f'v_subrev_u32 v5, {8*(r//4)+r%4}, v4\n v_ashrrev_i32 v5, 31, v5\n v_and_b32 v{MD+r}, s{sT}, v5\n v_xor_b32 v{MU+r}, s{sT}, v{MD+r}')
set_vpad(list(range(BV,BV+24)),2); E(f'v_mov_b32 v{BIDX}, 0xdddddddd')
for r in range(32): E(f'v_mov_b32 v{BO+r}, 0')
E(f'v_min_u32 v2, 4, v0\n s_sub_i32 s{sT}, s{sPb}, 4\n v_add_u32 v2, s{sT}, v2\n v_max_i32 v2, 0, v2\n s_lshl_b32 s{sT}, s{sHg}, 5\n v_add_u32 v2, s{sT}, v2\n v_lshlrev_b32 v2, 7, v2\n v_add_u32 v162, {hex(WS_FKVB+8)}, v2')
E(f'v_and_b32 v2, 7, v0\n v_lshlrev_b32 v2, 5, v2\n v_add_u32 v2, s{sPb}, v2\n v_lshlrev_b32 v2, 7, v2\n v_add_u32 v166, {hex(WS_FKVB+16)}, v2')
sKh=sT+9; sTt=sT+10
E(f's_lshr_b32 s{sKh}, s{sB}, 1\n s_and_b32 s{sTt}, s{sB}, 1\n s_lshl_b32 s{sT+2}, s{sHg}, 7')
dma128_voff(10,2,3,10,f's{sT+2}')
E(f's_lshl_b32 s{sT+1}, s{sKh}, 2'); traddr128(11,2,3,2,f's{sT+1}')
E(f's_lshl_b32 s{sT+1}, s{sKh}, 15\n s_add_u32 s{sT+1}, s{sT+1}, {L_WO}\n v_add_u32 v11, s{sT+1}, v11\n v_xor_b32 v9, 64, v11')
E(f's_lshl_b32 s{sOut}, s{sPb}, 1\n s_add_u32 s{sOut}, s{sOut}, s{sTt}\n s_lshl_b32 s{sOut}, s{sOut}, 15\n s_lshl_b32 s{sT}, s{sKh}, 14\n s_add_u32 s{sOb}, s{sOut}, s{sT}\n s_add_u32 s{sOb}, s{sOb}, {hex(WS_OB)}')
E(f's_lshl_b32 s{sT}, s{sHg}, 7\n s_add_u32 s{sOut}, s{sOut}, s{sT}\n s_lshl_b32 s{sT}, s{sKh}, 6\n s_add_u32 s{sOut}, s{sOut}, s{sT}')
E('v_and_b32 v8, 31, v0\n v_lshlrev_b32 v167, 10, v8\n v_lshrrev_b32 v3, 5, v0\n v_lshl_add_u32 v167, v3, 4, v167\n v_lshlrev_b32 v8, 2, v8')
srd(sOUT,22,2048*1024)
E(f's_lshl_b32 s{sT}, s{sB}, 12\n s_add_u32 s{sT}, s{sT}, {L_FX}\n v_add_u32 v164, s{sT}, v160\n v_xor_b32 v165, 0x2000, v164\n s_mov_b32 s{sPass}, 0')
if XD:
    E('s_waitcnt vmcnt(0)'); tag_set(T_X0,sB,2); xrest()
E('s_waitcnt vmcnt(8)')
tag_set(T_X,sB,2)
stamp('B',1,'x landed'); echo_mark('xl')
E('s_waitcnt vmcnt(0)')
tag_set(T_X+16,sB,2)
tag_wait(T_G,4,2,sleep=4)
tag_get(2)
stamp('B',5,'BQ'); echo_mark('bq')
E(f's_setprio {OPT.get("bpr","3")}')
def kvdma(c):
    E(f's_lshr_b32 s{sT+1}, s2, 3\n s_add_u32 s{sT+1}, s{sT+1}, {c}\n s_and_b32 s{sT+1}, s{sT+1}, 3\n s_lshl_b32 s{sT+1}, s{sT+1}, 2\n s_add_u32 s{sT+1}, s{sT+1}, s{sB}\n s_lshl_b32 s{sT+1}, s{sT+1}, 12')
    E(f's_lshl_b32 s{sT+2}, s{sB}, 12\n s_add_u32 m0, s{sT+2}, {KVPOS[c]}\n s_add_u32 s{sT+1}, s{sT+1}, {hex(WS_KVA+(65536 if c>=4 else 0))}')
    for i in range(4): E(f'buffer_load_dwordx4 v160, {sr(sWS)}, s{sT+1} offen offset:{1024*i} sc1 lds')
    VQ.extend([f'kv{c}']*4)
E(f's_lshl_b32 s{sT}, s{sB}, 11\n s_add_u32 s{sT}, s{sT}, {L_QB}\n v_add_u32 v3, s{sT}, v160')
for t in range(2): E(f'ds_read_b128 {vr(BQ+4*t,4)}, v3 offset:{1024*t}')
E(f's_lshl_b32 s{sT}, s{sPb}, 8\n s_add_u32 s{sT}, s{sT}, {hex(WS_G)}\n buffer_load_dword v61, v8, {sr(sWS)}, s{sT} offen sc1\n buffer_load_dword v62, v8, {sr(sWS)}, s{sT} offen offset:128 sc1\n s_waitcnt lgkmcnt(0)')
C('---- second half of the shared K/V ; o slots marked as not yet written')
for c in (4,5,6,7): kvdma(c)
E(f's_lshl_b32 s{sT+10}, s{sPb}, 6\n s_lshl_b32 s{sT+1}, s{sHg}, 2\n s_add_u32 s{sT+10}, s{sT+10}, s{sT+1}\n s_add_u32 s{sT+10}, s{sT+10}, s{sB}\n s_lshl_b32 s{sT+10}, s{sT+10}, 10')
E('v_mov_b32 v12, -1\n v_mov_b32 v13, -1\n v_mov_b32 v14, -1\n v_mov_b32 v15, -1')
for base in (WS_OA,WS_OA+32768,WS_OB,WS_OB+32768):
    E(f's_add_u32 s{sT+1}, s{sT+10}, {hex(base)}\n buffer_store_dwordx4 v[12:15], v160, {sr(sWS)}, s{sT+1} offen sc1')
E(f's_lshl_b32 s{sT+3}, s{sHg}, 5\n s_add_u32 s{sT+3}, s{sT+3}, s{sPb}\n s_lshl_b32 s{sT+3}, s{sT+3}, 7\n s_lshl_b32 s{sT+1}, s{sB}, 2\n s_add_u32 s{sT+3}, s{sT+3}, s{sT+1}\n s_add_u32 s{sT+3}, s{sT+3}, {hex(WS_FKVB+16)}')
E(f's_getreg_b32 s{sXcc}, hwreg(HW_REG_XCC_ID, 0, 4)\n s_add_u32 s{sT}, s{sTag}, s{sXcc}\n v_mov_b32 v3, s{sT}\n s_waitcnt vmcnt(0)')
E(f's_mov_b64 exec, 1\n buffer_store_dword v3, off, {sr(sWS)}, s{sT+3} sc1\n s_mov_b64 exec, -1')
lds_add(C_K2,0x101,vZ,2)
stamp('B',2,'K/V all in')
if OPT.get('nob'): stamp_flush(12); E('s_endpgm')
E('v_sub_f32 v61, 1.0, v61\n v_sub_f32 v62, 1.0, v62')
poll(162,2,4,sleep=3)
stamp('B',6,'kvB flags seen'); echo_mark('kvb')
def wotouch():
    if MAP=='b':
        E(f's_cmp_ge_u32 s{sB}, 2\n s_cbranch_scc0 L_B_NOT\n s_lshr_b32 s{sT+1}, s2, 3\n s_lshl_b32 s{sT+1}, s{sT+1}, 14\n s_and_b32 s{sT+2}, s{sB}, 1\n s_lshl_b32 s{sT+2}, s{sT+2}, 13\n s_add_u32 s{sT+1}, s{sT+1}, s{sT+2}')
        touch(sWOB,sT+1,1,163,3); touch(sWOA,sT+1,1,163,3)
    else:
        E(f's_cmp_eq_u32 s{sB}, 3\n s_cbranch_scc0 L_B_NOT\n s_lshr_b32 s{sT+1}, s2, 3\n s_lshl_b32 s{sT+1}, s{sT+1}, 14\n s_and_b32 s{sT+2}, s2, 1\n s_lshl_b32 s{sT+2}, s{sT+2}, 9\n s_add_u32 s{sT+1}, s{sT+1}, s{sT+2}')
        E('v_lshrrev_b32 v2, 2, v0\n v_lshlrev_b32 v2, 10, v2\n v_and_b32 v3, 3, v0\n v_lshl_add_u32 v2, v3, 7, v2')
        touch(sWOB,sT+1,1,2,3); touch(sWOA,sT+1,1,2,4)
    LBL('L_B_NOT')
C('---- window attention, head 4hg+b, two query tiles')
E(f's_lshl_b32 s{sT+8}, s{sHg}, 2\n s_add_u32 s{sT+8}, s{sT+8}, s{sB}\n s_lshl_b32 s{sT+8}, s{sT+8}, 6\n s_lshl_b32 s{sT+9}, s{sPb}, 1\n s_sub_i32 s{sT+9}, s{sT+9}, 8')
def btile(j): E(f's_add_i32 s{sT}, s{sT+9}, {j}\n s_max_i32 s{sT}, s{sT}, 0\n s_add_u32 s{sT}, s{sT}, s{sT+8}\n s_lshl_b32 s{sT}, s{sT}, 11\n s_add_u32 s{sT}, s{sT}, {hex(WS_KVB)}')
def bload(j):
    k=BK+4*(j%3); v=BV+8*(j%3)
    btile(j)
    E(f'buffer_load_dwordx4 {vr(k,4)}, v160, {sr(sWS)}, s{sT} offen sc1\n s_mov_b64 exec, {sr(sVM,2)}')
    E(f'buffer_load_dwordx4 {vr(v,4)}, v161, {sr(sWS)}, s{sT} offen offset:1024 sc1\n buffer_load_dwordx4 {vr(v+4,4)}, v161, {sr(sWS)}, s{sT} offen offset:1536 sc1\n s_mov_b64 exec, -1')
bload(0); bload(1)
E(f's_setprio {OPT.get("bat","1")}')
for j in (2,6):
    E(f's_add_i32 s{sT}, s{sT+9}, {j}\n s_max_i32 s{sT}, s{sT}, 0\n s_add_i32 s{sT+1}, s{sT+9}, 6\n s_min_i32 s{sT}, s{sT}, s{sT+1}\n s_cmp_lt_i32 s{sT}, 0')
    sk=uid('tk'); E(f's_cbranch_scc1 {sk}\n s_add_u32 s{sT}, s{sT}, s{sT+8}\n s_lshl_b32 s{sT}, s{sT}, 11\n s_add_u32 s{sT}, s{sT}, {hex(WS_KVB)}')
    E(f'buffer_load_dword v3, v163, {sr(sWS)}, s{sT} offen sc1'); LBL(sk)
E('s_waitcnt lgkmcnt(0)')
for j in range(10):
    k=BK+4*(j%3); v=BV+8*(j%3)
    if j==3: wotouch()
    if j==int(OPT.get('bup','4')): E('s_setprio 3')
    if j==7: E(f'buffer_load_dwordx4 v[12:15], v166, {sr(sWS)}, 0 offen sc1')
    if j+2<10: bload(j+2)
    E(f's_waitcnt vmcnt({3*min(2,9-j)})')
    sk=uid('bskip')
    if j<8: E(f's_cmp_lt_i32 s{sT+9}, {-j}\n s_cbranch_scc1 {sk}')
    qs=[q for q in (0,1) if 0<=j-q<=8]
    for q in qs: mfma(BS+16*q,k,BQ+4*q,{0:MU,8:MD}.get(j-q,'0'))
    E('s_nop 10' if len(qs)==2 else 's_nop 11')
    for q in qs:
        S=BS+16*q; O=BO+16*q
        for r in range(10): vexp(S+r)
        smf(O,v,S,BIDX)
        for r in range(10,16): vexp(S+r)
        E('s_nop 1'); smf(O,v+4,S+8,BIDX)
    if j<8: LBL(sk)
sLoc=sT+11
E(f's_add_u32 s{sT+10}, s{sT+10}, {hex(WS_OB)}\n s_mov_b32 s{sLoc}, 0')
C('the eight WGs of this position block: marks in place ?  all on this die ?')
E(f's_mov_b32 s{sCnt}, {SPIN_LIMIT}\n s_branch L_B_PP1')
LBL('L_B_PP')
E(f'buffer_load_dwordx4 v[12:15], v166, {sr(sWS)}, 0 offen sc1\n s_waitcnt vmcnt(0)')
LBL('L_B_PP1')
for i in range(4): E(f'v_subrev_u32 v{12+i}, s{sTag}, v{12+i}')
E(f'v_or3_b32 v2, v12, v13, v14\n v_or_b32 v2, v2, v15\n v_cmp_lt_u32 vcc, 15, v2\n s_cbranch_vccz L_B_PPD\n s_sub_u32 s{sCnt}, s{sCnt}, 1\n s_cbranch_scc1 L_B_PPD\n s_sleep 3\n s_branch L_B_PP')
LBL('L_B_PPD')
if OPT.get('loc','1')=='1':
    E(f'v_cmp_ne_u32 vcc, s{sXcc}, v12\n s_cbranch_vccnz L_B_NLOC\n s_mov_b32 s{sLoc}, 1')
    lds_add(C_LOC,1,vZ,2)
    if OPT.get('probe'):
        E('s_branch L_B_PRB')
        LBL('L_B_NLOC')
        for i in range(8): E('s_sleep 127')
        LBL('L_B_PRB')
    else: LBL('L_B_NLOC')

for q in range(2):
    fb=f'L_FB_B{q}'; bk=f'L_FB_B{q}_BACK'
    finalize(BO+16*q,4,2,fb,bk,61+q)
    E(f's_cmp_eq_u32 s{sLoc}, 0\n s_cbranch_scc1 L_B_FAR{q}\n buffer_store_dwordx4 v[4:7], v160, {sr(sWS)}, s{sT+10} offen\n s_branch L_B_ST{q}')
    LBL(f'L_B_FAR{q}')
    E(f'buffer_store_dwordx4 v[4:7], v160, {sr(sWS)}, s{sT+10} offen sc1')
    LBL(f'L_B_ST{q}')
    if q==0: E(f's_add_u32 s{sT+10}, s{sT+10}, 32768\n s_nop 0')
    def setup(q=q):
        E(f's_add_i32 s{sT+2}, s{sT+9}, {q}\n s_cmp_ge_i32 s{sT+2}, 0\n s_cselect_b32 s{sT+4}, 1, 0\n s_max_i32 s{sT+2}, s{sT+2}, 0')
        E(f's_add_i32 s{sT+3}, s{sT+9}, {q+9}\n s_sub_u32 s{sT+3}, s{sT+3}, s{sT+2}\n s_add_u32 s{sT+2}, s{sT+2}, s{sT+8}\n s_lshl_b32 s{sT+2}, s{sT+2}, 11\n s_add_u32 s{sT+2}, s{sT+2}, {hex(WS_KVB)}')
    fallback(fb,bk,BQ+4*q,BO+16*q,BS,BK,BV,BIDX,3,160,161,None,setup,MU,MD)
C('---- output projection: wave (t=b&1, kh=b>>1): both 32-column tiles over heads 16kh..16kh+15 ; slot 0 = tile kh')
PA_=48; PW=80; PO=96; PB_=16
stamp('B',7,'oB published'); echo_mark('ob')
E(f's_setprio {OPT.get("bpr2","3")}')
lds_spin(C_MID,None,8,vZ,2,sleep=6)
def wodma(sr_):
    E(f's_lshl_b32 s{sT}, s{sB}, 14\n s_lshl_b32 s{sT+1}, s{sB}, 17')
    for n in range(16): E(f's_add_u32 m0, s{sT}, {L_WO+1024*n}\n s_add_u32 s{sT+2}, s{sT+1}, {8192*n}\n buffer_load_dwordx4 v10, {sr(sr_)}, s{sT+2} offen lds')
def oloads(g0):
    for s in range(4*g0,16):
        if s%4==0: E(f's_add_u32 s{sT}, s{sOb}, {1024*s}')
        E(f'buffer_load_dwordx4 {vr(PO+4*s,4)}, v160, {sr(sWS)}, s{sT} offen offset:{1024*(s%4)} sc1')
wodma(sWOB)
oloads(0)
E('s_waitcnt vmcnt(16)')
lds_add(C_WO,1,vZ,2)
lds_spin(C_WO,None,4,vZ,2,sleep=2)
stamp('B',8,'woB landed')
E('s_branch L_B_GEMM1')
LBL('L_B_GEMM')
oloads(0)
LBL('L_B_GEMM1')
def wread(s):
    f=PW+8*(s&1)
    for u,va in ((0,11),(1,9)): E(f'ds_read_b64_tr_b16 {vr(f+4*u,2)}, v{va} offset:{s*2048}\n ds_read_b64_tr_b16 {vr(f+4*u+2,2)}, v{va} offset:{s*2048+1024}')
wread(0)
E(f's_mov_b32 s{sCnt}, {SPIN_LIMIT}')
for g in range(4):
    LBL(f'L_B_G{g}')
    E(f's_waitcnt vmcnt({12-4*g})')
    p=PO+16*g
    E(f'v_max_u32 v2, v{p}, v{p+4}\n v_max3_u32 v2, v{p+8}, v{p+12}, v2\n v_cmp_eq_u32 vcc, -1, v2\n s_cbranch_vccnz L_B_R{g}')
    LBL(f'L_B_K{g}')
    if DIAG and g==3:
        E(f's_cmp_eq_u32 s{sPass}, 0\n s_cbranch_scc1 L_B_NST'); stamp('B',10,'oA all seen'); LBL('L_B_NST')
    for s in range(4*g,4*g+4):
        if s<15: wread(s+1)
        E(f's_waitcnt lgkmcnt({4 if s<15 else 0})')
        f=PW+8*(s&1)
        if s==0:
            E(f's_cmp_eq_u32 s{sPass}, 0\n s_cbranch_scc0 L_B_M1')
            for u in range(2): mfma(PA_+16*u,f+4*u,PO+4*s,'0')
            E('s_branch L_B_M2'); LBL('L_B_M1')
            for u in range(2): mfma(PA_+16*u,f+4*u,PO+4*s)
            LBL('L_B_M2')
        else:
            for u in range(2): mfma(PA_+16*u,f+4*u,PO+4*s)
    save=L; L=[]
    LBL(f'L_B_R{g}')
    E(f's_sub_u32 s{sCnt}, s{sCnt}, 1\n s_cbranch_scc1 L_B_K{g}\n s_cmp_eq_u32 s{sPass}, 0\n s_cbranch_scc0 L_B_RR{g}\n s_sleep 8')
    LBL(f'L_B_RR{g}')
    E('s_waitcnt vmcnt(0)')
    oloads(g)
    E(f's_branch L_B_G{g}')
    RETRY.extend(L); L=save
E(f's_cmp_eq_u32 s{sPass}, 0\n s_cbranch_scc0 L_B_FIN')
lds_add(C_WD,1,vZ,2)
E(f's_add_u32 s{sOb}, s{sOb}, {hex((WS_OA-WS_OB)&0xffffffff)}\n s_mov_b32 s{sPass}, 1')
lds_spin(C_WD,None,4,vZ,2,sleep=2)
wodma(sWOA)
if OPT.get('dry','0')=='1':
    C('walk once through the closing code with no lane active: its instructions are then cached when they matter')
    E('s_mov_b64 exec, 0\n s_branch L_B_FIN')
    LBL('L_B_DRYD')
    E('s_mov_b64 exec, -1')
E('s_waitcnt vmcnt(0)')
stamp('B',9,'out-proj B done, woA in'); echo_mark('b9')
E('s_barrier'); echo_mark('aend'); E('s_branch L_B_GEMM')
LBL('L_B_FIN')
E('s_nop 9')
for q in range(4): E(f'ds_write_b128 v164, {vr(PA_+16+4*q,4)} offset:{1024*q}')
E('s_waitcnt lgkmcnt(0)\n s_cbranch_execz L_B_NBAR\n s_barrier')
LBL('L_B_NBAR')
for q in range(4): E(f'ds_read_b128 {vr(PB_+4*q,4)}, v165 offset:{1024*q}')
for q in range(4):
    E(f's_waitcnt lgkmcnt({3-q})')
    for r in range(4): E(f'v_add_f32 v{PA_+4*q+r}, v{PA_+4*q+r}, v{PB_+4*q+r}')
for r in range(8): cvt(PA_+r,PA_+2*r,PA_+2*r+1)
E('s_nop 1')
for gq in range(2): E(f'v_permlane32_swap_b32 v{PA_+4*gq}, v{PA_+4*gq+2}\n v_permlane32_swap_b32 v{PA_+4*gq+1}, v{PA_+4*gq+3}')
if OPT.get('dry','0')=='1': E('s_cbranch_execz L_B_DRYD')
for gq in range(2): E(f'buffer_store_dwordx4 {vr(PA_+4*gq,4)}, v167, {sr(sOUT)}, s{sOut} offen offset:{32*gq} '+OPT.get('ost','').replace('+',' '))
if DIAG: E('s_waitcnt vmcnt(0)')
stamp('B',11,'out stored'); echo_end()
stamp_flush(12)
E('s_endpgm')
L.extend(RETRY)

LBL('L_A')
AIDX=8; AKA=9; AVA=10; AQ0=12; AQ1=16; AK=20; AV=28; SA=44; SB=60; OA=76; OB=92; XA=108; WA=160; AF=112
L_PG=L_PART+4096
sStr=sT+10; sRing=sT+7
E(f'v_and_b32 v5, 15, v0\n v_lshlrev_b32 v6, 4, v0\n s_and_b32 s{sT+9}, s{sHg}, 3\n s_cmp_lt_u32 s{sWave}, 4\n s_cbranch_scc0 L_A_KV')
C('---- waves 0..3 : wave m streams 64 columns of matrix m (wq | B q | B k | B v) through its own 8 x 2KB ring')
E(f's_cmp_eq_u32 s{sWave}, 0\n s_cselect_b32 s{sWB}, s6, s16\n s_cselect_b32 s{sWB+1}, s7, s17\n s_mov_b32 s{sWB+2}, {512*3072}\n s_cselect_b32 s{sWB+2}, {512*1024}, s{sWB+2}\n s_mov_b32 s{sWB+3}, 0x20000')
E(f's_movk_i32 s{sStr}, 3072\n s_cselect_b32 s{sStr}, 0x400, s{sStr}\n s_max_u32 s{sT+1}, s{sWave}, 1\n s_sub_u32 s{sT+1}, s{sT+1}, 1\n s_lshl_b32 s{sT+1}, s{sT+1}, 10\n s_lshl_b32 s{sT+2}, s{sHg}, 7\n s_add_u32 s{sT+1}, s{sT+1}, s{sT+2}')
dma128_voff(162,2,3,f's{sStr}',f's{sT+1}')
mkrot()
E(f's_lshl_b32 s{sStr}, s{sStr}, 3\n s_lshl_b32 s{sRing}, s{sWave}, 14')
E(f's_sub_u32 s{sT+1}, s{sStr}, 1024\n v_add_u32 v163, s{sT+1}, v162\n s_lshl_b32 s{sStr}, s{sStr}, 1')
def wdma_parts(st):
    p0=f's_add_u32 m0, s{sRing}, {(st%8)*2048}\n'
    if st%4==0: p0+=f's_add_u32 s{sT+3}, s{sRot}, {st//4}\n s_and_b32 s{sT+3}, s{sT+3}, 7\n s_lshl_b32 s{sT+3}, s{sT+3}, 2\n s_mul_i32 s{sT+3}, s{sT+3}, s{sStr}'
    else: p0+=f's_add_u32 s{sT+3}, s{sT+3}, s{sStr}'
    VQ.extend([f'w{st}']*2)
    return [p0, f'buffer_load_dwordx4 v162, {sr(sWB)}, s{sT+3} offen lds', f'buffer_load_dwordx4 v163, {sr(sWB)}, s{sT+3} offen offset:1024 lds']
def wdma(st):
    for p in wdma_parts(st): E(p)
if OPT.get('p0','2')!='0': E(f's_cmp_eq_u32 s{sWave}, 0\n s_cbranch_scc0 L_A_NP0\n s_setprio {OPT.get("p0","3")}\nL_A_NP0:')
NW0=int(OPT.get('nw0','8'))
VQ.clear()
for st in range(NW0): wdma(st)
E('s_branch L_A_NOKV')
LBL('L_A_KV')
E(f's_setprio 3\n s_load_dword s{sTag}, s[26:27], {WS_EPOCH}')
C('---- kvA: this WG makes 16 positions (hg&3) of K (hg<4) or V, and their gate ; wave 4+u sums k in [128u,128u+128)')
E(f's_cmp_lt_u32 s{sHg}, 4\n s_cselect_b32 s{sWKV}, s8, s10\n s_cselect_b32 s{sWKV+1}, s9, s11\n s_mov_b32 s{sWKV+2}, 16384\n s_mov_b32 s{sWKV+3}, 0x20000\n s_and_b32 s{sT+3}, s{sWave}, 3')
E(f's_lshl_b32 s{sT+1}, s{sPb}, 16\n s_lshl_b32 s{sT+2}, s{sT+9}, 14\n s_add_u32 s{sT+1}, s{sT+1}, s{sT+2}\n s_lshl_b32 s{sT+2}, s{sT+3}, 8\n s_add_u32 s{sT+1}, s{sT+1}, s{sT+2}')
E('v_lshlrev_b32 v3, 10, v5\n v_and_b32 v4, 48, v0\n v_add_u32 v3, v3, v4')
for s_ in range(4): E(f'buffer_load_dwordx4 {vr(116+4*s_,4)}, v3, {sr(sX)}, s{sT+1} offen offset:{64*s_}')
if MAP=='c' and OPT.get('wkt','1')=='1':
    E(f's_cmp_eq_u32 s{sWave}, 4\n s_cbranch_scc0 L_A_NT2\n s_lshr_b32 s{sT+4}, s2, 3\n s_lshl_b32 s{sT+4}, s{sT+4}, 9\n v_lshlrev_b32 v2, 7, v0\n s_mov_b64 exec, 15\n buffer_load_dword v167, v2, {sr(sWKV)}, s{sT+4} offen\n s_mov_b64 exec, -1')
    LBL('L_A_NT2')
srd(sG,20,1024)
for s_ in range(4): E(f'buffer_load_dwordx4 {vr(132+4*s_,4)}, v4, {sr(sG)}, s{sT+2} offen offset:{64*s_}')
E(f's_lshl_b32 s{sT}, s{sT+3}, 12\n s_add_u32 m0, s{sT}, {L_ST}\n s_nop 0')
for i in range(4): E(f'buffer_load_dwordx4 v6, {sr(sWKV)}, s{sT} offen offset:{1024*i} lds')
LBL('L_A_NOKV')
C('---- address of this wave\'s o slot, constants')
sOA=sT+8
E(f's_and_b32 s{sOA}, s{sWave}, 1\n s_lshl_b32 s{sT+1}, s{sPb}, 1\n s_add_u32 s{sOA}, s{sOA}, s{sT+1}\n s_lshl_b32 s{sOA}, s{sOA}, 5')
E(f's_lshl_b32 s{sT+1}, s{sHg}, 2\n s_add_u32 s{sOA}, s{sOA}, s{sT+1}\n s_and_b32 s{sT+1}, s{sWave}, 2\n s_add_u32 s{sOA}, s{sOA}, s{sT+1}\n s_lshr_b32 s{sT+1}, s{sWave}, 2\n s_add_u32 s{sOA}, s{sOA}, s{sT+1}\n s_lshl_b32 s{sOA}, s{sOA}, 10\n s_add_u32 s{sOA}, s{sOA}, {hex(WS_OA)}')
E(f'v_mov_b32 v{vZ}, {L_ST}\n v_lshlrev_b32 v11, 2, v0')
traddr128(WA,2,3,3,'0'); E(f's_lshl_b32 s{sT+1}, s{sWave}, 14\n v_add_u32 v{WA}, s{sT+1}, v{WA}\n v_xor_b32 v{WA+1}, 64, v{WA}')
E(f'v_and_b32 v2, 31, v0\n v_bfe_u32 v3, v0, 1, 3\n v_lshrrev_b32 v7, 5, v0\n v_xor_b32 v3, v3, v7\n v_lshlrev_b32 v{XA}, 7, v2\n v_lshl_add_u32 v{XA}, v3, 4, v{XA}\n v_add_u32 v{XA}, 0x10000, v{XA}')
for s_ in range(1,4): E(f'v_xor_b32 v{XA+s_}, {s_<<5}, v{XA}')
for r in range(32): E(f'v_mov_b32 v{OA+r}, 0')
set_vpad(list(range(AV,AV+16)),2)
E(f'v_mov_b32 v{AIDX}, 0xdddddddd')
E(f's_lshr_b32 s{sT+1}, s{sWave}, 2\n s_lshl_b32 s{sT+1}, s{sT+1}, 11\n v_add_u32 v{AKA}, s{sT+1}, v6')
E(f'v_lshlrev_b32 v7, 8, v7\n v_lshl_add_u32 v7, v5, 4, v7\n v_add_u32 v{AVA}, s{sT+1}, v7')
E(f's_lshl_b32 s{sT+6}, s{sHg}, 5\n s_add_u32 s{sT+6}, s{sT+6}, s{sPb}\n s_lshl_b32 s{sT+6}, s{sT+6}, 7\n s_lshl_b32 s{sT+1}, s{sWave}, 2\n s_add_u32 s{sT+6}, s{sT+6}, s{sT+1}\n s_add_u32 s{sT+6}, s{sT+6}, {hex(WS_FKVB)}')
E(f's_cmp_lt_u32 s{sWave}, 4\n s_cbranch_scc1 L_A_GQ\n s_waitcnt lgkmcnt(0)')
mktag()
E(f'v_lshrrev_b32 v4, 4, v0\n v_lshlrev_b32 v4, 8, v4\n v_lshl_add_u32 v4, v5, 3, v4\n s_add_u32 s{sT}, s{sT}, {L_ST}\n v_add_u32 v4, s{sT}, v4')
E(f's_lshl_b32 s{sT+1}, s{sT+3}, 10\n s_add_u32 s{sT+1}, s{sT+1}, {L_PART}\n v_add_u32 v2, s{sT+1}, v6\n s_lshl_b32 s{sT+1}, s{sT+3}, 8\n s_add_u32 s{sT+1}, s{sT+1}, {L_PG}\n v_add_u32 v3, s{sT+1}, v11')
E('s_waitcnt vmcnt(0)')
for s_ in range(4): E(f'ds_read_b64_tr_b16 {vr(44+4*s_,2)}, v4 offset:{1024*s_}\n ds_read_b64_tr_b16 {vr(46+4*s_,2)}, v4 offset:{1024*s_+128}')
for s_ in range(4): E(f'v_mfma_f32_16x16x32_bf16 v[64:67], {vr(132+4*s_,4)}, {vr(116+4*s_,4)}, {"0" if s_==0 else "v[64:67]"}')
E(f's_cmp_lt_u32 s{sHg}, 4\n s_waitcnt lgkmcnt(0)\n s_cbranch_scc0 L_A_VJOB')
for s_ in range(4): E(f'v_mfma_f32_16x16x32_bf16 v[60:63], {vr(44+4*s_,4)}, {vr(116+4*s_,4)}, {"0" if s_==0 else "v[60:63]"}')
E('s_branch L_A_KVJ')
LBL('L_A_VJOB')
for s_ in range(4): E(f'v_mfma_f32_16x16x32_bf16 v[60:63], {vr(116+4*s_,4)}, {vr(44+4*s_,4)}, {"0" if s_==0 else "v[60:63]"}')
LBL('L_A_KVJ')
E('s_nop 0\n ds_write_b32 v3, v64\n s_nop 5\n ds_write_b128 v2, v[60:63]')
stamp('A',2,'kvA partial')
E('s_waitcnt lgkmcnt(0)')
tag_set(T_PT,sT+3,2)
E(f's_cmp_eq_u32 s{sWave}, 7\n s_cbranch_scc0 L_A_BS')
C('---- wave 7: reduce the four partial tiles, store, flag')
tag_wait(T_PT,4,2)
E(f'v_add_u32 v3, {L_PART}, v6\n v_add_u32 v4, {L_PG}, v11')
for i in range(4): E(f'ds_read_b128 {vr(116+4*i,4)}, v3 offset:{1024*i}')
for i in range(2): E(f'ds_read2st64_b32 {vr(148+2*i,2)}, v4 offset0:{2*i} offset1:{2*i+1}')
E(f's_lshl_b32 s{sT+3}, s{sPb}, 1\n s_lshr_b32 s{sT+4}, s{sT+9}, 1\n s_add_u32 s{sT+3}, s{sT+3}, s{sT+4}\n s_lshl_b32 s{sT+3}, s{sT+3}, 11\n s_add_u32 s{sT+3}, s{sT+3}, {hex(WS_KVA)}\n s_and_b32 s{sT+4}, s{sT+9}, 1')
E(f's_cmp_lt_u32 s{sHg}, 4\n s_cselect_b32 s{sT+5}, 9, 3\n s_cselect_b32 s{sT+7}, 3, 8\n s_cselect_b32 s{sT+1}, 8, 9\n s_cselect_b32 s{sT}, 0, 0x400')
E(f's_lshl_b32 s{sT+4}, s{sT+4}, s{sT+1}\n s_add_u32 s{sT+3}, s{sT+3}, s{sT+4}\n s_add_u32 s{sT+3}, s{sT+3}, s{sT}')
E(f'v_bfe_u32 v3, v0, 4, 1\n v_lshrrev_b32 v4, 5, v0\n v_lshlrev_b32 v5, 4, v5\n v_lshl_add_u32 v5, v3, s{sT+5}, v5\n v_lshl_add_u32 v5, v4, s{sT+7}, v5')
FPLS=int(OPT.get('fpl','2'))
E(f's_lshl_b32 s{sT+7}, s{sPb}, 3\n s_add_u32 s{sT+7}, s{sT+7}, s{sHg}\n s_and_b32 s{sT+1}, s{sT+7}, {(1<<FPLS)-1}\n s_lshr_b32 s{sT+7}, s{sT+7}, {FPLS}\n s_lshl_b32 s{sT+7}, s{sT+7}, 7\n s_lshl_b32 s{sT+1}, s{sT+1}, 2\n s_add_u32 s{sT+7}, s{sT+7}, s{sT+1}\n s_add_u32 s{sT+7}, s{sT+7}, {hex(WS_FKVA)}')
E('s_waitcnt lgkmcnt(2)')
for st_ in (8,4):
    for r in range(st_): E(f'v_add_f32 v{116+r}, v{116+r}, v{116+st_+r}')
cvt(116,116,117); cvt(117,118,119)
E(f'buffer_store_dwordx2 v[116:117], v5, {sr(sWS)}, s{sT+3} offen sc1')
E(f's_cmp_lt_u32 s{sHg}, 4\n s_waitcnt lgkmcnt(0)\n s_cbranch_scc0 L_A_SF')
for st_ in (2,1):
    for r in range(st_): E(f'v_add_f32 v{148+r}, v{148+r}, v{148+st_+r}')
E(f's_mov_b32 s{sT}, {hex(f2u(-math.log2(math.e)))}\n v_mul_f32 v148, s{sT}, v148\n v_exp_f32 v148, v148')
E(f's_lshl_b32 s{sT}, s{sPb}, 2\n s_add_u32 s{sT}, s{sT}, s{sT+9}\n v_add_f32 v148, 1.0, v148\n v_rcp_f32 v148, v148\n s_lshl_b32 s{sT}, s{sT}, 6\n s_add_u32 s{sT}, s{sT}, {hex(WS_G)}')
E(f's_mov_b64 exec, 0xffff\n buffer_store_dword v148, v11, {sr(sWS)}, s{sT} offen sc1\n s_mov_b64 exec, -1')
LBL('L_A_SF')
E('s_waitcnt vmcnt(0)')
flag_store(sT+7,2)
stamp('A',3,'kvA flag sent')
LBL('L_A_BS')
E(f's_cmp_eq_u32 s{sWave}, 6\n s_cbranch_scc0 L_A_B8')
C('---- wave 6: wait for every K/V piece, fetch this WG\'s share into L2, tell the projection waves')
E(f'v_lshlrev_b32 v16, 7, v0\n v_lshrrev_b32 v17, {FPLS-2}, v0\n v_lshlrev_b32 v17, 7, v17\n v_and_b32 v18, {(1<<(FPLS-2))-1}, v0\n v_lshl_add_u32 v17, v18, 4, v17\n v_add_u32 v17, {hex(WS_FKVA)}, v17')
E(f'v_mov_b32 v2, s{sTag}\n ds_write_b32 v{vZ}, v2 offset:{T_TAG-L_ST}')
tag_wait(T_PT,4,2)
tag_wait(T_PL,1,2,sleep=2)
C('lanes whose four flags are in drop out of the next look')
E(f's_mov_b32 s{sCnt}, {SPIN_LIMIT}')
LBL('L_A_PL')
E(f'buffer_load_dwordx4 v[12:15], v17, {sr(sWS)}, 0 offen sc1\n s_waitcnt vmcnt(0)')
for i in range(4): E(f'v_xor_b32 v{12+i}, s{sTag}, v{12+i}')
E(f'v_or3_b32 v12, v12, v13, v14\n v_or_b32 v12, v12, v15\n v_cmp_ne_u32 vcc, 0, v12\n s_cbranch_vccz L_A_PLD\n s_sub_u32 s{sCnt}, s{sCnt}, 1\n s_cbranch_scc1 L_A_PLD\n s_mov_b64 exec, vcc\n s_sleep {OPT.get("psl","16")}\n s_branch L_A_PL')
LBL('L_A_PLD')
E('s_mov_b64 exec, -1')
E(f's_lshr_b32 s{sT+5}, s2, 3\n s_lshl_b32 s{sT+5}, s{sT+5}, 12\n s_add_u32 s{sT+5}, s{sT+5}, {hex(WS_KVA)}')
E(f's_mov_b32 exec_hi, 0\n buffer_load_dword v117, v16, {sr(sWS)}, s{sT+5} offen sc1\n s_mov_b64 exec, -1')
tag_set(T_FL,None,2)
stamp('A',3,'kvA flag sent')
E(f's_lshr_b32 s{sT+5}, s2, 3\n s_and_b32 s{sT+5}, s{sT+5}, 3\n s_lshl_b32 s{sT+5}, s{sT+5}, 14\n s_add_u32 s{sT+5}, s{sT+5}, {hex(WS_KVA)}')
for q in range(4):
    E(f's_mov_b32 m0, {L_ST+4096*q}\n s_add_u32 s{sT+4}, s{sT+5}, {4096*q}')
    for i in range(4): E(f'buffer_load_dwordx4 v6, {sr(sWS)}, s{sT+4} offen offset:{1024*i} sc1 lds')
E('s_waitcnt vmcnt(0)')
tag_set(T_K0,None,2)
stamp('A',7,'G1')
E(f's_cmp_eq_u32 s2, 0\n s_cbranch_scc0 L_A_B8\n s_mov_b32 s{sT}, 0')
flag_store(sT,2)
E('s_branch L_A_B8')
LBL('L_A_GQ')
PAC=[44,60,128,144]; PFR=[12,112,92]
def areads_l(st):
    f=PFR[st%3]; so=(st%8)*2048; o=[]
    for i in range(2): o+= [f'ds_read_b64_tr_b16 {vr(f+4*i,2)}, v{WA+i} offset:{so}', f'ds_read_b64_tr_b16 {vr(f+4*i+2,2)}, v{WA+i} offset:{so+512}']
    for t in range(2): o.append(f'ds_read_b128 {vr(f+8+4*t,4)}, v{XA+st%4} offset:{(st//4)*8192+4096*t}')
    return o
def areads(st):
    for p in areads_l(st): E(p)
def kv_parts(p):
    VQ.extend(['kv']*2)
    return [f's_add_u32 m0, s{sRing}, {p*2048}\n s_add_u32 s{sT+4}, s{sT+5}, {p*2048}']+[f'buffer_load_dwordx4 v6, {sr(sWS)}, s{sT+4} offen offset:{1024*n} sc1 lds' for n in range(2)]
def kvpiece(p):
    for q in kv_parts(p): E(q)
for st in range(NW0,8): wdma(st)
E(f's_sub_u32 s{sT+4}, s{sWave}, 1\n s_cmp_eq_u32 s{sWave}, 1\n s_cselect_b32 s{sT+4}, 3, s{sT+4}\n s_lshr_b32 s{sT+5}, s2, 3\n s_add_u32 s{sT+5}, s{sT+5}, s{sT+4}\n s_and_b32 s{sT+5}, s{sT+5}, 3\n s_lshl_b32 s{sT+5}, s{sT+5}, 14\n s_add_u32 s{sT+5}, s{sT+5}, {hex(WS_KVA)}')
tag_wait(T_X0,4,2) if XD else tag_wait(T_X,1,2)
stamp('A',7,'G1')
vwait('w0'); areads(0); vwait('w1'); areads(1)
VQ0=list(VQ)
PLK=int(OPT.get('plk','15'))
E(f's_cmp_eq_u32 s{sWave}, 3\n s_cbranch_scc1 L_A_GV')
def gstep(var,st,kv):
    f=PFR[st%3]
    def mm(i,t):
        d=PAC[2*i+t]; c='0' if st==0 else None
        if var==0: mfma(d,f+4*i,f+8+4*t,c)
        else: mfma(d,f+8+4*t,f+4*i,c)
    vwait(f'w{st+2}',f' lgkmcnt({6 if st<31 else 0})')
    rd=areads_l(st+2) if st+2<32 else []
    dm=wdma_parts(st+8) if st+8<32 else (kv_parts(st%8) if kv else [])
    gaps=[rd[0:2]+dm[0:1], rd[2:4]+dm[1:2], rd[4:6], dm[2:3]]
    if st>=30: gaps=[[f'v_mov_b32 v{OB+8*(st-30)+2*q+r}, 0' for r in range(2)]+gaps[q] for q in range(4)]
    for q,(i,t) in enumerate(((0,0),(0,1),(1,0),(1,1)) if st<31 else ((1,0),(1,1),(0,0),(0,1))):
        mm(i,t)
        for p in gaps[q]: E(p)
for var in (0,1):
    if var: LBL('L_A_GV')
    VQ[:]=VQ0
    for st in range(24):
        if OPT.get('hold') and st==0:
            E(f's_cmp_eq_u32 s{sWave}, 0\n s_cbranch_scc1 L_A_NH{var}'); tag_wait(T_H,1,2,sleep=2); LBL(f'L_A_NH{var}')
        if OPT.get('hold') and var==0 and st==int(OPT.get('hold')):
            E(f's_cmp_eq_u32 s{sWave}, 0\n s_cbranch_scc0 L_A_NH2'); tag_set(T_H,None,2); E('s_waitcnt lgkmcnt(0)'); LBL('L_A_NH2')
        if st==2: E('s_waitcnt lgkmcnt(0)'); tag_wait(T_X,4,2)
        if st==14: E('s_waitcnt lgkmcnt(0)'); tag_wait(T_X+16,4,2)
        if st==PLK and var==1: tag_set(T_PL,None,2); E('s_waitcnt lgkmcnt(0)')
        gstep(var,st,False)
    stamp('A',2,'step 24'); cstamp('A',10,'s24')
    if var==0: E(f's_cmp_eq_u32 s{sWave}, 0\n s_cbranch_scc1 L_A_G0')
    tag_wait(T_FL,1,2,once=f'L_A_GK{var}')
    if var==0: LBL('L_A_G0')
    V1=list(VQ)
    for st in range(24,32): gstep(var,st,False)
    if var==0: E(f's_cmp_eq_u32 s{sWave}, 0\n s_cbranch_scc1 L_A_GE0')
    tag_wait(T_FL,1,2)
    for p in range(8): kvpiece(p)
    E(f's_branch L_A_GE{var}')
    LBL(f'L_A_GK{var}')
    VQ[:]=V1
    for st in range(24,32): gstep(var,st,True)
    LBL(f'L_A_GE{var}')
    stamp('A',1,'proj loop done'); cstamp('A',11,'pl')
    E(f's_lshl_b32 s{sT+4}, s{sHg}, 8\n s_lshl_b32 s{sT+5}, s{sPb}, 1\n s_add_u32 s{sT+4}, s{sT+4}, s{sT+5}\n s_lshl_b32 s{sT+4}, s{sT+4}, 11\n s_add_u32 s{sT+4}, s{sT+4}, {hex(WS_KVB)}')
    if var==0:
        E(f's_cmp_eq_u32 s{sWave}, 2\n s_cbranch_scc1 L_A_EK')
        C('q (A / B): scale, pack, hand over through LDS')
        E(f's_cmp_eq_u32 s{sWave}, 0\n s_cbranch_scc1 L_A_Q0')
        tag_wait(T_G,1,2)
        LBL('L_A_Q0')
        E(f's_lshl_b32 s{sT+1}, s{sWave}, 13\n s_add_u32 s{sT+1}, s{sT+1}, {L_QA}\n v_add_u32 v3, s{sT+1}, v6\n s_mov_b32 s{sT+2}, {hex(CSCALE)}\n s_mov_b32 s{sT+3}, {hex(CSCALE)}\n s_lshl_b32 s{sT+1}, s{sWave}, 2\n s_add_u32 s{sT+1}, s{sT+1}, {T_Q1}\n v_mov_b32 v4, s{sT+1}\n v_mov_b32 v5, 1')
        for i in (1,0):
            for t in range(2):
                d=PAC[2*i+t]
                for r in range(0,16,2): E(f'v_pk_mul_f32 {vr(d+r,2)}, {vr(d+r,2)}, {sr(sT+2,2)}')
                for r in range(8): cvt(d+r,d+2*r,d+2*r+1)
                for hh in range(2): E(f'ds_write_b128 v3, {vr(d+4*hh,4)} offset:{(2*i+hh)*2048+1024*t}')
            if i==1: E(f's_mov_b64 exec, 1\n ds_write_b32 v4, v5\n s_mov_b64 exec, -1')
        E('s_waitcnt vmcnt(0) lgkmcnt(0)')
        tag_set(T_G,sWave,2)
        E('s_branch L_A_B8')
        LBL('L_A_EK')
        E('s_waitcnt vmcnt(0)')
        tag_set(T_G,sWave,2)
        for i in range(2):
            for t in range(2):
                d=PAC[2*i+t]
                for r in range(8): cvt(d+r,d+2*r,d+2*r+1)
                for hh in range(2): E(f's_add_u32 s{sT+5}, s{sT+4}, {(2*i+hh)*131072}\n buffer_store_dwordx4 {vr(d+4*hh,4)}, v6, {sr(sWS)}, s{sT+5} offen offset:{2048*t} sc1')
        E('s_branch L_A_B8')
    else:
        E('s_waitcnt vmcnt(0)')
        tag_set(T_G,sWave,2)
        E('v_bfe_u32 v3, v0, 4, 1\n v_lshl_add_u32 v3, v3, 17, v7')
        for i in range(2):
            for t in range(2):
                d=PAC[2*i+t]
                for r in range(8): cvt(d+r,d+2*r,d+2*r+1)
                E('s_nop 1')
                for gq in range(2): E(f'v_permlane32_swap_b32 v{d+4*gq}, v{d+4*gq+2}\n v_permlane32_swap_b32 v{d+4*gq+1}, v{d+4*gq+3}')
                E(f's_add_u32 s{sT+5}, s{sT+4}, {i*2*131072}')
                for gq in range(2): E(f'buffer_store_dwordx4 {vr(d+4*gq,4)}, v3, {sr(sWS)}, s{sT+5} offen offset:{2048*t+1024+512*gq} sc1')
LBL('L_A_B8')
E('s_setprio 0')
E(f's_and_b32 s{sT+1}, s{sWave}, 2\n s_lshr_b32 s{sT+2}, s{sWave}, 2\n s_add_u32 s{sT+1}, s{sT+1}, s{sT+2}\n s_lshl_b32 s{sT+1}, s{sT+1}, 11\n s_and_b32 s{sT+2}, s{sWave}, 1\n s_lshl_b32 s{sT+2}, s{sT+2}, 10\n s_add_u32 s{sT+1}, s{sT+1}, s{sT+2}\n s_add_u32 s{sT+1}, s{sT+1}, {L_QA}\n v_add_u32 v2, s{sT+1}, v6\n v_xor_b32 v3, 0x800, v2')
AK0=120; AV0=121; AEX=122; AG=126
E(f'v_add_u32 v{AK0}, {L_ST}, v{AKA}\n v_add_u32 v{AV0}, {L_ST}, v{AVA}')
E(f's_and_b32 s{sT+2}, s{sWave}, 3\n s_mul_i32 s{sT+1}, s{sT+2}, 4608\n s_add_u32 s{sT+1}, s{sT+1}, {L_EX}\n v_add_u32 v{AEX}, s{sT+1}, v6\n v_add_u32 v{AEX+1}, s{sT+1}, v11')
E(f's_lshl_b32 s{sT+2}, s{sT+2}, 2\n s_add_u32 s{sT+2}, s{sT+2}, {C_PR}\n v_mov_b32 v{AEX+2}, s{sT+2}')
E(f's_and_b32 s{sT+1}, s{sWave}, 1\n s_lshl_b32 s{sT+2}, s{sPb}, 1\n s_add_u32 s{sT+1}, s{sT+1}, s{sT+2}\n s_lshl_b32 s{sT+1}, s{sT+1}, 7\n s_add_u32 s{sT+1}, s{sT+1}, {hex(WS_G)}\n v_and_b32 v127, 0x7c, v11')
tag_wait(T_K0,1,4,sleep=int(OPT.get('asl','2')))
E(f'buffer_load_dword v{AG}, v127, {sr(sWS)}, s{sT+1} offen sc1')
tag_get(4)
def kvoff(j):
    return (j%4)*4096+(0 if j<4 else KVPOS[j//4]-(65536 if j>=16 else 0))
def ldk(j): E(f'ds_read_b128 {vr(AK+4*(j&1),4)}, v{AK0 if j<4 else AKA} offset:{kvoff(j)}')
def ldv(j): E(f's_mov_b64 exec, {sr(sVM,2)}\n ds_read_b128 {vr(AV+8*(j&1),4)}, v{AV0 if j<4 else AVA} offset:{kvoff(j)+1024}\n ds_read_b128 {vr(AV+8*(j&1)+4,4)}, v{AV0 if j<4 else AVA} offset:{kvoff(j)+1536}\n s_mov_b64 exec, -1')
ldk(0); ldv(0); ldk(1)
E(f's_bitcmp1_b32 s{sWave}, 1\n s_cbranch_scc0 L_A_WL')
tag_wait(T_Q1,1,4,sleep=int(OPT.get('asl2','1')))
E('s_branch L_A_WD')
LBL('L_A_WL')
tag_wait(T_G,1,4,sleep=int(OPT.get('asl2','1')))
LBL('L_A_WD')
stamp('A',4,'BQ'); cstamp('A',8,'BQ')
E(f'ds_read_b128 {vr(AQ0,4)}, v2\n ds_read_b128 {vr(AQ1,4)}, v3')
if PRIO in ('step','step4'): E('s_setprio 2')
E('s_waitcnt lgkmcnt(0)'); mfma(SA,AK,AQ0,'0')
E('s_nop 11')
def pair_iter(j,ldk_,ldv_,first=False,last=0,extra=0):
    kc=AK+4*(j&1); kn=AK+4*((j+1)&1); vc=AV+8*(j&1); vp=AV+8*((j+1)&1)
    vexp(SA); vexp(SA+1)
    if not first: smf(OB,vp+4,SB+8,AIDX)
    for r in range(2,5): vexp(SA+r)
    mfma(SB,kc,AQ1,'0')
    for r in range(5,10): vexp(SA+r)
    E(f's_waitcnt lgkmcnt({(1 if last<2 else 0)+extra})')
    vexp(SA+10); smf(OA,vc,SA,AIDX)
    for r in range(11,16): vexp(SA+r)
    vexp(SB); vexp(SB+1); smf(OA,vc+4,SA+8,AIDX)
    if last<2: ldv_()
    for r in range(2,5): vexp(SB+r)
    if last<2:
        E('s_waitcnt lgkmcnt(2)'); mfma(SA,kn,AQ0,'0')
    if last<1: ldk_()
    for r in range(5,11): vexp(SB+r)
    smf(OB,vc,SB,AIDX)
    for r in range(11,16): vexp(SB+r)
def aflag(force,init=False):
    sk=uid('fl')
    E(f's_cmp_eq_u32 s{sT+5}, 0\n s_cbranch_scc0 {sk}')
    if not force: E(f's_getreg_b32 s{sT}, hwreg(HW_REG_IB_STS, 0, 4)\n s_cmp_eq_u32 s{sT}, 0\n s_cbranch_scc0 {sk}')
    E(f's_waitcnt vmcnt(0)\n s_mov_b32 s{sT+5}, 1'); flag_store(sT+6,2); LBL(sk)
if ROLL:
    AKN=120; AVN=121; sC=sT+4
    def rk(j):
        a_=AKA if j<4 else AKN
        return lambda: E(f'ds_read_b128 {vr(AK+4*(j&1),4)}, v{a_} offset:{(j%4)*4096}')
    def rv(j):
        a_=AVA if j<4 else AVN
        return lambda: E(f's_mov_b64 exec, {sr(sVM,2)}\n ds_read_b128 {vr(AV+8*(j&1),4)}, v{a_} offset:{(j%4)*4096+1024}\n ds_read_b128 {vr(AV+8*(j&1)+4,4)}, v{a_} offset:{(j%4)*4096+1536}\n s_mov_b64 exec, -1')
    for r in range(8,16): E(f'v_mov_b32 v{SB+r}, 0')
    E(f'v_add_u32 v{AKN}, 0x8000, v{AKA}\n v_add_u32 v{AVN}, 0x8000, v{AVA}\n v_add_u32 v{AKA}, 0x4000, v{AKA}\n v_add_u32 v{AVA}, 0x4000, v{AVA}\n s_mov_b32 s{sC}, 0\n s_mov_b32 s{sT+5}, 0')
    L.append('.p2align 6')
    LBL('L_A_LOOP')
    pair_iter(0,rk(2),rv(1)); pair_iter(1,rk(3),rv(2))
    E(f's_cmp_gt_u32 s{sC}, 6\n s_cbranch_scc1 L_A_LAST\n s_bitcmp1_b32 0x5f, s{sC}\n s_cbranch_scc1 L_A_RARE')
    LBL('L_A_RBACK')
    pair_iter(2,rk(4),rv(3)); pair_iter(3,rk(5),rv(4))
    E(f's_add_u32 s{sC}, s{sC}, 1\n s_mov_b32 s{sT+1}, 0x4000\n s_cmp_eq_u32 s{sC}, 2\n s_cselect_b32 s{sT+1}, {hex((-49152)&0xffffffff)}, s{sT+1}\n s_cmp_eq_u32 s{sC}, 3\n s_cselect_b32 s{sT+1}, {hex((-65536)&0xffffffff)}, s{sT+1}')
    E(f'v_mov_b32 v{AKA}, v{AKN}\n v_mov_b32 v{AVA}, v{AVN}\n v_add_u32 v{AKN}, s{sT+1}, v{AKN}\n v_add_u32 v{AVN}, s{sT+1}, v{AVN}\n s_branch L_A_LOOP')
    LBL('L_A_RARE')
    E(f's_waitcnt lgkmcnt(0)\n s_cmp_gt_u32 s{sC}, 3\n s_cbranch_scc1 L_A_R4')
    E(f's_cmp_eq_u32 s{sC}, 0\n s_cbranch_scc0 L_A_R1'); lds_spin(C_K1,None,4,vZ,2,sleep=0)
    LBL('L_A_R1')
    E(f's_cmp_eq_u32 s{sC}, 2\n s_cbranch_scc0 L_A_R2'); lds_spin(C_K2,None,4,vZ,2,sleep=1)
    LBL('L_A_R2')
    E(f's_cmp_eq_u32 s{sC}, 3\n s_cbranch_scc1 L_A_R3'); aflag(False); E('s_branch L_A_RBACK')
    LBL('L_A_R3'); aflag(True); E('s_branch L_A_RBACK')
    LBL('L_A_R4')
    E(f's_cmp_eq_u32 s{sC}, 4\n s_cbranch_scc0 L_A_R6'); lds_add(C_MID,1,vZ,2); E('s_waitcnt lgkmcnt(0)\n s_branch L_A_RBACK')
    LBL('L_A_R6'); lds_spin(C_MID,None,8,vZ,2,sleep=1); E('s_branch L_A_RBACK')
    LBL('L_A_LAST')
    pair_iter(2,None,rv(3),last=1); pair_iter(3,None,None,last=2)
else:
    E(f's_and_b32 s{sT+5}, s{sWave}, 6\n s_cmp_eq_u32 s{sT+5}, 2\n s_cselect_b32 s{sT+5}, 0, 1')
    for j in range(32):
        if j in (2,6,10): E('s_waitcnt lgkmcnt(0)'); tag_wait(T_G+4*{2:2,6:3,10:1}[j],1,2)
        if j in (1,2,3,5): aflag(j==5)
        PJ=[int(x) for x in OPT.get('pj','11,22').split(',')]
        if PRIO=='step' and j in PJ: E(f's_setprio {1 if j==PJ[0] else 0}')
        if PRIO=='step4' and j in (6,16): E(f's_setprio {1 if j==6 else 0}')
        if OPT.get('jst') and j in (2,4,8,16,24): E('s_waitcnt lgkmcnt(0)'); cstamp('A',{2:1,4:2,8:3,16:7,24:10}[j],f'J{j}')
        if j==14: E('s_waitcnt lgkmcnt(0)'); lds_spin(C_K2,None,0x404,vZ,2,sleep=1)
        if j==16: lds_add(C_MID,1,vZ,2)
        if j==28: E('s_waitcnt lgkmcnt(0)'); lds_spin(C_MID,None,8,vZ,2,sleep=1)
        def lv(j=j):
            if j==15: E(f'v_add_u32 v{AVA}, 0x10000, v{AVA}')
            ldv(j+1)
        def lk(j=j):
            if j==14: E(f'v_add_u32 v{AKA}, 0x10000, v{AKA}')
            ldk(j+2)
        if j==31:
            C('has the partner of this wave (same queries, other keys) already left its sums ?  if so they arrive during the last tile')
            E(f'ds_read_b32 v127, v{AEX+2} offset:16\n ds_read_b32 v125, v{vZ} offset:{C_LOC-L_ST}')
            for q in range(2): E(f'ds_read_b128 {vr(128+12*q,4)}, v{AEX} offset:{2304*q}\n ds_read_b128 {vr(132+12*q,4)}, v{AEX} offset:{2304*q+1024}\n ds_read_b32 v{136+12*q}, v{AEX+1} offset:{2304*q+2048}')
        pair_iter(j,lk,lv,first=(j==0),last=(2 if j==31 else 1 if j==30 else 0),extra=(1 if j==16 else 0))
E('s_nop 1'); smf(OB,AV+8+4,SB+8,AIDX)
stamp('A',5,'A loop done'); cstamp('A',9,'loop done')
C('---- the first wave of a pair to finish leaves both partial sums in LDS and ends ; the second one finishes both heads')
E(f'v_readfirstlane_b32 s{sT+1}, v127\n v_readfirstlane_b32 s{sT+9}, v125\n s_cmp_eq_u32 s{sT+1}, 1\n s_cbranch_scc1 L_A_LATE')
E(f'v_mov_b32 v2, 1\n s_mov_b64 exec, 1\n ds_add_rtn_u32 v3, v{AEX+2}, v2\n s_mov_b64 exec, -1\n s_waitcnt lgkmcnt(0)\n v_readfirstlane_b32 s{sT+1}, v3\n s_cmp_eq_u32 s{sT+1}, 0\n s_cbranch_scc0 L_A_TIE\n s_nop 3')
for q,O in enumerate((OA,OB)): E(f'ds_write_b128 v{AEX}, {vr(O,4)} offset:{2304*q}\n ds_write_b128 v{AEX}, {vr(O+4,4)} offset:{2304*q+1024}\n ds_write_b32 v{AEX+1}, v{O+8} offset:{2304*q+2048}')
E(f's_mov_b64 exec, 1\n ds_write_b32 v{AEX+2}, v2 offset:16\n s_mov_b64 exec, -1\n s_waitcnt lgkmcnt(0)')
if OPT.get('dry','0')=='1': E('s_mov_b64 exec, 0\n s_branch L_A_LATE')
else: E('s_branch L_A_STD')
LBL('L_A_TIE')
E(f's_mov_b32 s{sCnt}, {SPIN_LIMIT}')
LBL('L_A_TI2')
E(f'ds_read_b32 v127, v{AEX+2} offset:16')
for q in range(2): E(f'ds_read_b128 {vr(128+12*q,4)}, v{AEX} offset:{2304*q}\n ds_read_b128 {vr(132+12*q,4)}, v{AEX} offset:{2304*q+1024}\n ds_read_b32 v{136+12*q}, v{AEX+1} offset:{2304*q+2048}')
E(f's_waitcnt lgkmcnt(0)\n v_readfirstlane_b32 s{sT+1}, v127\n s_cmp_eq_u32 s{sT+1}, 1\n s_cbranch_scc1 L_A_LATE\n s_sub_u32 s{sCnt}, s{sCnt}, 1\n s_cbranch_scc0 L_A_TI2')
LBL('L_A_LATE')
for r in range(9): E(f'v_add_f32 v{OA+r}, v{OA+r}, v{140+r}')
E('s_waitcnt vmcnt(0)')
def setupA(): E(f's_mov_b32 s{sT+2}, {hex(WS_KVA)}\n s_mov_b32 s{sT+3}, 64')
for q,(O,Q_) in enumerate(((OA,AQ0),(OB,AQ1))):
    if q==1:
        for r in range(9): E(f'v_add_f32 v{OB+r}, v{OB+r}, v{128+r}')
    dst=152+4*q
    finalize(O,dst,2,f'L_FB_A{q}',f'L_FB_A{q}_BACK',126)
    if q==1: E(f's_xor_b32 s{sOA}, s{sOA}, 0x400')
    E(f's_cbranch_execz L_A_ST{q}\n s_cmp_eq_u32 s{sT+9}, 0\n s_cbranch_scc1 L_A_FAR{q}\n buffer_store_dwordx4 {vr(dst,4)}, v6, {sr(sWS)}, s{sOA} offen\n s_branch L_A_ST{q}')
    LBL(f'L_A_FAR{q}')
    E(f'buffer_store_dwordx4 {vr(dst,4)}, v6, {sr(sWS)}, s{sOA} offen sc1')
    LBL(f'L_A_ST{q}')
    fallback(f'L_FB_A{q}',f'L_FB_A{q}_BACK',Q_,O,SA,AK,AV,AIDX,3,6,7,None,setupA)
LBL('L_A_STD')
if DIAG: E('s_mov_b64 exec, -1')
stamp('A',6,'oA published')
stamp_flush(12,'A')
LBL('L_END')
E('s_endpgm')
L.append('L_CODE_END:')
L.extend(TAIL)
L.append('    s_endpgm\n.fill 1200, 4, 0xbf810000')

hdr=open('cdna_kernels/%s.s.ref'%NAME).read().split('; Override launch')[0]
txt=hdr
txt+=f'; @launch grid=(256,1,1) block=(768,1,1) lds={LDS_TOTAL}\n'
DOC="""
One workgroup per CU: WG = (64 positions pb, 4 heads hg); 8 "A" waves + 4 "B" waves, LDS 160 KB.
 head : waves 0-3 project q(A), q/k/v(B) (weights streamed by LDS-DMA through private rings, transposing LDS reads),
        waves 4-7 make this WG's 16-position piece of the shared K/V (and the gate), publish it, wait for all pieces.
 main : A waves - MQA over all 2048 keys (S^T = K Q^T, exp2 in place, P^T fed raw to a 2:4 sparse MFMA that picks the
        high halves = bf16 P; a row of ones in V^T gives the row sums).  B waves - window attention, then B out-projection.
 tail : o (already divided by the row sum and scaled by g or 1-g) is handed to the WGs of the same positions,
        B waves finish out = [g oA | (1-g) oB] [woA ; woB].
 softmax guard: exp2 runs on unshifted scores; every row's sum must lie in [2^-24, 2^60] and its numerators must be finite,
        otherwise that query tile is redone with the true row maximum (L_FB_*: max pass, then exp2(s - max)).
 hand-offs in d_ws carry a tag derived from the epoch word found at ws[0] (advanced once per launch), or overwrite a
        'not yet written' mark; all are write-through + acknowledged, except o between WGs that report the same XCC id.
"""
for l in DOC.strip('\n').split('\n'): txt+='; '+l+'\n'
for n in () if not DIAG and not OPT.get('consts') else ('WS_KVA','WS_KVB','WS_OA','WS_OB','WS_STAMP','NSTAMP'): txt+=f'; CONST {n} = {hex(globals()[n])}\n'
for r,i,n in STN: txt+=f'; STAMPNAME {r} {i} {n}\n'
txt+=f'''.amdgcn_target "amdgcn-amd-amdhsa--gfx950"
.text
.globl {NAME}_kernel
.p2align 8
.type {NAME}_kernel,@function
{NAME}_kernel:
'''+'\n'.join(L)+f'''
.section .rodata,"a"
.p2align 6
.amdhsa_kernel {NAME}_kernel
  .amdhsa_next_free_vgpr 168
  .amdhsa_next_free_sgpr 102
  .amdhsa_accum_offset 168
  .amdhsa_group_segment_fixed_size 0
  .amdhsa_kernarg_size 96
  .amdhsa_user_sgpr_count 2
  .amdhsa_user_sgpr_kernarg_segment_ptr 1
  .amdhsa_system_sgpr_workgroup_id_x 1
.end_amdhsa_kernel
'''
open(OUT,'w').write(txt)
print('wrote',OUT,len(L),'lines')
```

```python
import sys, math, struct
NAME='gated_mix__grouped_kv_mqa__sliding_block__prompt'
DIAG = '--diag' in sys.argv
OUT = [a for a in sys.argv[1:] if not a.startswith('--')]
OUT = OUT[0] if OUT else 'cdna_kernels/%s.s'%NAME
OPT=dict(a.lstrip('-').split('=') for a in sys.argv[1:] if a.startswith('--') and '=' in a)
MAP=OPT.get('map','b'); ROT=OPT.get('rot','full'); PRIO=OPT.get('prio','step'); FLAG_IT=int(OPT.get('flagit','1')); PK=int(OPT.get('pk','7')); FORCE_K=int(OPT.get('forcek','7')); SENTK=int(OPT.get('sentk','14')); DENSE=OPT.get('dense','0')=='1'; ROLL=OPT.get('roll','0')=='1'; WT=OPT.get('wtouch','0')=='1'; KVK=int(OPT.get('kvk','13'))
def f2u(f): return struct.unpack('<I',struct.pack('<f',f))[0]

WS_EPOCH=0x0
WS_FKVA=0x1000
WS_FKVB=0x4000
WS_FOB =0xC000
WS_FOA =0x14000
WS_G   =0x1C000
WS_KVA =0x20000
WS_QB  =0x40000
WS_KVB =0x240000
WS_OA  =0x640000
WS_OB  =0x840000
WS_STAMP=0xA40000
NSTAMP=16
L_WQ=0; L_X=65536; L_ST=131072; L_CTL=L_ST+30720
L_GW=L_CTL; L_G=L_CTL+1024; L_C=L_CTL+1024+256
C_X=L_C+0
C_Q=L_C+4
C_K0=L_C+8; C_K1=L_C+12; C_K2=L_C+16; C_BP=L_C+20; C_MID=L_C+24; C_WO=L_C+28; C_WD=L_C+32; C_QR=L_C+36; C_SN=L_C+40; C_LOC=L_C+44; T_PT=L_C+256; T_X=L_C+272; T_PL=L_C+304; T_FL=L_C+308; T_G=L_C+320; T_X0=L_C+336; T_K0=L_C+352; T_Q1=L_C+356; T_H=L_C+368; T_TAG=L_C+372; C_PR=L_C+384; T_PR=L_C+400
L_EX=L_ST
LDS_TOTAL=163840
SPIN_LIMIT=400000
CSCALE=f2u(0.25*math.log2(math.e))
NEGBIG=f2u(-1e9)
L_LO=f2u(2.0**-24); L_HI=f2u(2.0**60)

sX=28; sWQ=32; sWKV=36; sWB=40; sWOA=44; sWOB=48; sG=52; sOUT=56; sWS=60; sDBG=64
sWave=68; sPb=69; sHg=70; sTag=71
sT=72
sCnt=84; sB=85
sXcc=65
sVM=86
sST=88
vZ=1
L=[]
def E(s):
    for ln in s.split('\n'):
        if ln.strip(): L.append('    '+ln.strip())
def LBL(s): L.append(s+':')
def C(s): L.append('    ; '+s)
_uid=[0]
def uid(p):
    _uid[0]+=1; return f'{p}_{_uid[0]}'
def vr(a,n): return f'v[{a}:{a+n-1}]'
def sr(a,n=4): return f's[{a}:{a+n-1}]'
def srd(dst,ptr,nbytes):
    E(f's_mov_b32 s{dst}, s{ptr}\n s_mov_b32 s{dst+1}, s{ptr+1}\n s_mov_b32 s{dst+2}, {hex(nbytes)}\n s_mov_b32 s{dst+3}, 0x20000')
STN=[]
def stamp(role,i,name):
    if OPT.get('acc') and role=='B' and i==10: return
    if OPT.get('jst') and role=='A' and i in (1,2,3,7): return
    if OPT.get('bst') and role=='B' and i in (6,7,8,9) and not name.startswith('arrive'): return
    if not DIAG: return
    STN.append((role,i,name))
    E(f's_memrealtime s[100:101]\n s_waitcnt lgkmcnt(0)\n s_mov_b32 s{sST+i}, s100')
ECHO=OPT.get('echo')
def echo_mark(name):
    if ECHO==name or name=='start' and ECHO:
        r=98 if name=='start' else 99
        E(f's_memrealtime s[100:101]\n s_waitcnt lgkmcnt(0)\n s_mov_b32 s{r}, s100')
def echo_end():
    if not ECHO: return
    E('s_waitcnt vmcnt(0)'); echo_mark('end')
    E('s_memrealtime s[100:101]\n s_waitcnt lgkmcnt(0)\n s_sub_u32 s99, s99, s98\n s_mul_i32 s99, s99, '+OPT.get('amp','1')+'\n s_add_u32 s99, s99, s100')
    LBL('L_ECHO')
    E('s_memrealtime s[100:101]\n s_waitcnt lgkmcnt(0)\n s_sub_u32 s100, s100, s99\n s_cmp_lt_i32 s100, 0\n s_cbranch_scc1 L_ECHO')
def cstamp(role,i,name):
    if OPT.get('jst') and i in (10,11) and not name.startswith('J'): return
    if not DIAG: return
    STN.append((role,i,'CYC '+name))
    E(f's_memtime s[100:101]\n s_waitcnt lgkmcnt(0)\n s_mov_b32 s{sST+i}, s100')
def tacc(role,i,name,code):
    if not (DIAG and OPT.get('acc')): E(code); return
    if (role,i,'ACC '+name) not in STN: STN.append((role,i,'ACC '+name))
    E(f's_memtime s[100:101]\n s_waitcnt lgkmcnt(0)\n s_sub_u32 s{sST+i}, s{sST+i}, s100')
    E(code)
    E(f's_memtime s[100:101]\n s_waitcnt lgkmcnt(0)\n s_add_u32 s{sST+i}, s{sST+i}, s100')
def stamp_flush(nmax,role='B'):
    if not DIAG: return
    if OPT.get('dbg'):
        m={'A':[(0,1),(2,2),(7,3),(3,4),(1,5),(4,6),(5,7),(6,8)],'B':[(4,9),(6,10),(7,11),(9,12),(10,13),(11,14)]}[role]
        sk=uid('nd')
        srd(sDBG,24,256)
        E(f's_bfe_u32 s{sT}, s2, 0x30003\n s_cmp_eq_u32 s{sT}, 0\n s_cbranch_scc0 {sk}\n v_mov_b32 v2, 0\n s_not_b32 s{sT}, s{sST}\n v_writelane_b32 v2, s{sT}, 0')
        for i,sl in m: E(f'v_writelane_b32 v2, s{sST+i}, {sl}')
        E(f'v_lshlrev_b32 v3, 2, v0\n s_mov_b64 exec, 0xffff\n buffer_atomic_umax v2, v3, {sr(sDBG)}, 0 offen sc1\n s_mov_b64 exec, -1')
        LBL(sk)
        return
    if OPT.get('hwid'): E(f's_getreg_b32 s{sST+11}, hwreg(HW_REG_HW_ID)\n s_getreg_b32 s{sST+10}, hwreg(HW_REG_XCC_ID)')
    E('v_mov_b32 v2, 0')
    for i in range(nmax): E(f'v_writelane_b32 v2, s{sST+i}, {i}')
    E(f's_mul_i32 s{sT}, s2, 12\n s_add_u32 s{sT}, s{sT}, s{sWave}\n s_lshl_b32 s{sT}, s{sT}, 6\n s_add_u32 s{sT}, s{sT}, {hex(WS_STAMP)}')
    E(f'v_lshlrev_b32 v3, 2, v0\n s_mov_b64 exec, 0xffff\n buffer_store_dword v2, v3, {sr(sWS)}, s{sT} offen\n s_mov_b64 exec, -1')

def lds_add(off,val,vz,vt):
    E(f'v_mov_b32 v{vt}, {val}\n s_mov_b64 exec, 1\n ds_add_u32 v{vz}, v{vt} offset:{off-L_ST}\n s_mov_b64 exec, -1')
def lds_spin(off,mask,val,vz,vt,sleep=1):
    a=uid('spin'); d=uid('spind')
    E(f's_mov_b32 s{sCnt}, {SPIN_LIMIT}')
    LBL(a)
    E(f'ds_read_b32 v{vt}, v{vz} offset:{off-L_ST}\n s_waitcnt lgkmcnt(0)\n v_readfirstlane_b32 s{sT}, v{vt}')
    if mask is not None: E(f's_and_b32 s{sT}, s{sT}, {hex(mask)}')
    E(f's_cmp_eq_u32 s{sT}, {hex(val)}\n s_cbranch_scc1 {d}\n s_sub_u32 s{sCnt}, s{sCnt}, 1\n s_cbranch_scc1 {d}')
    if sleep: E(f's_sleep {sleep}')
    E(f's_branch {a}')
    LBL(d)
def tag_set(off,sidx,vt):
    if sidx is None: E(f'v_mov_b32 v{vt}, {off}')
    else: E(f's_lshl_b32 s{sT}, s{sidx}, 2\n s_add_u32 s{sT}, s{sT}, {off}\n v_mov_b32 v{vt}, s{sT}')
    E(f'v_mov_b32 v{vt+1}, 1\n s_mov_b64 exec, 1\n ds_write_b32 v{vt}, v{vt+1}\n s_mov_b64 exec, -1')
def tag_wait(off,n,vt,sleep=0,once=None):
    a=uid('tw'); d=uid('twd')
    E(f'v_and_b32 v{vt}, {n-1}, v0\n v_lshlrev_b32 v{vt}, 2, v{vt}\n v_add_u32 v{vt}, {off}, v{vt}')
    if once:
        E(f'ds_read_b32 v{vt+1}, v{vt}\n s_waitcnt lgkmcnt(0)\n v_cmp_ne_u32 vcc, 1, v{vt+1}\n s_cbranch_vccz {once}')
        return
    E(f's_mov_b32 s{sCnt}, {SPIN_LIMIT}')
    LBL(a)
    E(f'ds_read_b32 v{vt+1}, v{vt}\n s_waitcnt lgkmcnt(0)\n v_cmp_ne_u32 vcc, 1, v{vt+1}\n s_cbranch_vccz {d}\n s_sub_u32 s{sCnt}, s{sCnt}, 1\n s_cbranch_scc1 {d}')
    if sleep: E(f's_sleep {sleep}')
    E(f's_branch {a}')
    LBL(d)
def tag_get(vt):
    E(f'ds_read_b32 v{vt}, v{vZ} offset:{T_TAG-L_ST}\n s_waitcnt lgkmcnt(0)\n v_readfirstlane_b32 s{sTag}, v{vt}')
def poll(vaddr,n,vt,sleep=1):
    a=uid('poll'); d=uid('polld')
    E(f's_mov_b32 s{sCnt}, {SPIN_LIMIT}')
    LBL(a)
    op={1:'buffer_load_dword',2:'buffer_load_dwordx2',3:'buffer_load_dwordx3',4:'buffer_load_dwordx4'}[n]
    E(f'{op} {vr(vt,n) if n>1 else "v%d"%vt}, v{vaddr}, {sr(sWS)}, 0 offen sc1\n s_waitcnt vmcnt(0)')
    for i in range(n): E(f'v_xor_b32 v{vt+i}, s{sTag}, v{vt+i}')
    if n==2: E(f'v_or_b32 v{vt}, v{vt}, v{vt+1}')
    if n>=3: E(f'v_or3_b32 v{vt}, v{vt}, v{vt+1}, v{vt+2}')
    if n==4: E(f'v_or_b32 v{vt}, v{vt}, v{vt+3}')
    E(f'v_cmp_ne_u32 vcc, 0, v{vt}\n s_cbranch_vccz {d}\n s_sub_u32 s{sCnt}, s{sCnt}, 1\n s_cbranch_scc1 {d}')
    if sleep: E(f's_sleep {sleep}')
    E(f's_branch {a}')
    LBL(d)
def flag_store(soff_reg,vt):
    E(f'v_mov_b32 v{vt}, s{sTag}\n s_mov_b64 exec, 1\n buffer_store_dword v{vt}, off, {sr(sWS)}, s{soff_reg} sc1\n s_mov_b64 exec, -1')
def mfma(d,a,b,c=None):
    cc = vr(d,16) if c is None else (c if isinstance(c,str) else vr(c,16))
    E(f'v_mfma_f32_32x32x16_bf16 {vr(d,16)}, {vr(a,4)}, {vr(b,4)}, {cc}')
def smf(o,v,s,idx): E(f'v_smfmac_f32_32x32x32_bf16 {vr(o,16)}, {vr(v,4)}, {vr(s,8)}, v{idx}')
def vexp(r): E(f'v_exp_f32 v{r}, v{r}')
def cvt(d,a,b): E(f'v_cvt_pk_bf16_f32 v{d}, v{a}, v{b}')
def set_vpad(regs,vt):
    E(f'v_and_b32 v{vt}, 27, v0\n v_cmp_eq_u32 vcc, 16, v{vt}\n v_mov_b32 v{vt}, 0x3f803f80\n s_nop 0\n v_cndmask_b32 v{regs[0]}, 0, v{vt}, vcc')
    for r in regs[1:]: E(f'v_mov_b32 v{r}, v{regs[0]}')
def xaddr(base,t_imm,vt):
    E(f'v_and_b32 v{vt}, 15, v0\n v_lshrrev_b32 v{base}, 5, v0\n v_xor_b32 v{base}, v{base}, v{vt}\n v_lshlrev_b32 v{base}, 4, v{base}')
    E(f'v_and_b32 v{vt}, 31, v0\n v_lshl_add_u32 v{base}, v{vt}, 10, v{base}\n v_add_u32 v{base}, {t_imm}, v{base}')
    for b in range(1,8): E(f'v_xor_b32 v{base+b}, {b<<5}, v{base}')
def traddr128(dst,vt,vt2,rowsel,colbase):
    E(f'v_lshrrev_b32 v{vt}, 5, v0\n v_lshlrev_b32 v{vt}, {rowsel}, v{vt}\n v_bfe_u32 v{vt2}, v0, 2, 2\n v_add_u32 v{vt}, v{vt}, v{vt2}\n v_lshlrev_b32 v{dst}, 7, v{vt}')
    E(f'v_bfe_u32 v{vt}, v0, 4, 1\n v_lshlrev_b32 v{vt}, 1, v{vt}\n v_bfe_u32 v{vt2}, v0, 1, 1\n v_add3_u32 v{vt}, v{vt}, v{vt2}, {colbase}')
    E(f'v_bfe_u32 v{vt2}, v0, 3, 1\n v_lshlrev_b32 v{vt2}, 2, v{vt2}\n v_xor_b32 v{vt}, v{vt}, v{vt2}\n v_lshl_add_u32 v{dst}, v{vt}, 4, v{dst}')
    E(f'v_and_b32 v{vt}, 1, v0\n v_lshl_add_u32 v{dst}, v{vt}, 3, v{dst}')
def dma128_voff(dst,vt,vt2,rowstride_sreg_or_shift,colbytes):
    E(f'v_lshrrev_b32 v{vt}, 3, v0')
    if isinstance(rowstride_sreg_or_shift,int): E(f'v_lshlrev_b32 v{dst}, {rowstride_sreg_or_shift}, v{vt}')
    else: E(f'v_mul_u32_u24 v{dst}, {rowstride_sreg_or_shift}, v{vt}')
    E(f'v_bfe_u32 v{vt}, v0, 4, 1\n v_lshlrev_b32 v{vt}, 2, v{vt}\n v_and_b32 v{vt2}, 7, v0\n v_xor_b32 v{vt}, v{vt}, v{vt2}\n v_lshl_add_u32 v{dst}, v{vt}, 4, v{dst}\n v_add_u32 v{dst}, {colbytes}, v{dst}')
def finalize(O,dst,vt,lbl_fb,lbl_back,vg):
    C('guard: row sum inside [2^-24, 2^60] and finite numerators in every lane, else redo with the true maximum')
    E(f'v_add_f32 v{vt}, |v{O}|, |v{O+1}|')
    for r in range(2,8): E(f'v_add_f32 v{vt}, v{vt}, |v{O+r}|')
    E(f'v_mov_b32 v{vt+1}, 0x7f800000\n v_cmp_nlt_f32 {sr(sT,2)}, v{vt}, v{vt+1}')
    E(f'v_cmp_nle_f32 vcc, {hex(L_LO)}, v{O+8}\n s_or_b64 {sr(sT,2)}, {sr(sT,2)}, vcc')
    E(f'v_cmp_nge_f32 vcc, {hex(L_HI)}, v{O+8}\n s_or_b64 {sr(sT,2)}, {sr(sT,2)}, vcc\n s_cbranch_scc1 {lbl_fb}')
    LBL(lbl_back)
    E(f'v_rcp_f32 v{vt}, v{O+8}\n s_nop 0\n v_mul_f32 v{vt}, v{vt}, v{vg}')
    for r in range(0,8,2): E(f'v_pk_mul_f32 {vr(O+r,2)}, {vr(O+r,2)}, {vr(vt,2)} op_sel_hi:[1,0]')
    for r in range(4): cvt(dst+r,O+2*r,O+2*r+1)
    E(f'v_min_u32 v{dst}, -2, v{dst}')

TAIL=[]
RETRY=[]
def fallback(lbl,back,Q,O,S,K,V,IDX,vM,vK,vV,ntile,soff_setup,first_mask=None,last_mask=None,first_cond=None):
    global L
    save=L; L=[]
    LBL(lbl)
    C('exact softmax for one query tile: pass 1 row maxima, pass 2 exp2(s - max) ; K/V fragments from d_ws')
    soff_setup()
    E(f'v_mov_b32 v{vM}, 0xff800000')
    for p in (0,1):
        lp=uid('fbl')
        if p==1:
            E(f'v_mov_b32 v{S}, v{vM}\n s_nop 1\n v_permlane32_swap_b32 v{S}, v{vM}\n s_nop 1\n v_max_f32 v{vM}, v{vM}, v{S}')
            for r in range(16): E(f'v_mov_b32 v{O+r}, 0')
        E(f's_mov_b32 s{sT+5}, s{sT+2}\n s_mov_b32 s{sT+6}, 0')
        LBL(lp)
        E(f'buffer_load_dwordx4 {vr(K,4)}, v{vK}, {sr(sWS)}, s{sT+5} offen sc1')
        if p==1:
            E(f's_mov_b64 exec, {sr(sVM,2)}\n buffer_load_dwordx4 {vr(V,4)}, v{vV}, {sr(sWS)}, s{sT+5} offen offset:1024 sc1\n buffer_load_dwordx4 {vr(V+4,4)}, v{vV}, {sr(sWS)}, s{sT+5} offen offset:1536 sc1\n s_mov_b64 exec, -1')
        E('s_waitcnt vmcnt(0)')
        if first_mask is None:
            mfma(S,K,Q,'0')
        else:
            a=uid('fbm'); b=uid('fbm'); j=uid('fbm')
            E(f's_add_u32 s{sT+7}, s{sT+6}, 1\n s_cmp_eq_u32 s{sT+7}, s{sT+3}\n s_cbranch_scc1 {a}')
            E(f's_cmp_lt_u32 s{sT+6}, s{sT+4}\n s_cbranch_scc1 {b}')
            mfma(S,K,Q,'0'); E(f's_branch {j}')
            LBL(a); mfma(S,K,Q,last_mask); E(f's_branch {j}')
            LBL(b); mfma(S,K,Q,first_mask)
            LBL(j)
        E('s_nop 15')
        if p==0:
            for r in range(0,16,2): E(f'v_max3_f32 v{vM}, v{S+r}, v{S+r+1}, v{vM}')
        else:
            for r in range(16): E(f'v_sub_f32 v{S+r}, v{S+r}, v{vM}')
            for r in range(16): vexp(S+r)
            E('s_nop 1'); smf(O,V,S,IDX); smf(O,V+4,S+8,IDX)
        E(f's_add_u32 s{sT+5}, s{sT+5}, 2048\n s_add_u32 s{sT+6}, s{sT+6}, 1\n s_cmp_lt_u32 s{sT+6}, s{sT+3}\n s_cbranch_scc1 {lp}')
    E(f's_nop 15\n s_branch {back}')
    TAIL.extend(L); L=save

E('s_cmp_ge_u32 s2, 256\n s_cbranch_scc1 L_END')
if ECHO=='karg': E('s_memrealtime s[100:101]\n s_waitcnt lgkmcnt(0)\n s_mov_b32 s97, s100')
E('s_load_dwordx16 s[4:19], s[0:1], 0\n s_load_dwordx8 s[20:27], s[0:1], 64')
E(f'v_lshrrev_b32 v1, 6, v0\n v_and_b32 v0, 63, v0\n v_readfirstlane_b32 s{sWave}, v1')
if MAP=='b' and OPT.get('alt'):
    E(f's_and_b32 s{sT}, s2, 7\n s_lshr_b32 s{sT+2}, s2, 6\n s_lshl_b32 s{sPb}, s{sT}, 2\n s_or_b32 s{sPb}, s{sPb}, s{sT+2}\n s_bfe_u32 s{sHg}, s2, 0x30003')
elif MAP=='b':
    E(f's_and_b32 s{sT}, s2, 7\n s_lshr_b32 s{sT+1}, s2, 3\n s_and_b32 s{sT+2}, s{sT+1}, 3\n s_lshl_b32 s{sPb}, s{sT}, 2\n s_or_b32 s{sPb}, s{sPb}, s{sT+2}\n s_lshr_b32 s{sHg}, s{sT+1}, 2')
else:
    E(f's_bfe_u32 s{sPb}, s2, 0x20001\n s_lshl_b32 s{sPb}, s{sPb}, 3\n s_bfe_u32 s{sT}, s2, 0x30003\n s_or_b32 s{sPb}, s{sPb}, s{sT}\n s_and_b32 s{sHg}, s2, 1\n s_lshl_b32 s{sHg}, s{sHg}, 2\n s_lshr_b32 s{sT}, s2, 6\n s_or_b32 s{sHg}, s{sHg}, s{sT}')
E(f's_mov_b32 s{sVM}, 0xffff\n s_mov_b32 s{sVM+1}, 0xffff')
if DIAG:
    for i in range(12): E(f's_mov_b32 s{sST+i}, 0')
def codepf():
  if OPT.get('cpf','1')=='1':
      C('---- pull this WG\'s share of the kernel\'s own instructions into L2 (later instruction fetches then miss only the I-cache)')
      E(f's_cmp_eq_u32 s{sWave}, 11\n s_cbranch_scc0 L_B_NCP\n s_getpc_b64 s[{sT}:{sT+1}]')
      LBL('L_B_PC')
      E(f's_lshr_b32 s{sT+2}, s2, 3\n s_mul_i32 s{sT+2}, s{sT+2}, (L_CODE_END-L_B_PC+4095)/4096*128\n s_add_u32 s{sT}, s{sT}, s{sT+2}\n s_addc_u32 s{sT+1}, s{sT+1}, 0')
      E(f'v_lshlrev_b32 v2, 7, v0\n v_mov_b32 v3, s{sT+1}\n v_add_co_u32 v2, vcc, s{sT}, v2\n s_nop 1\n v_addc_co_u32 v3, vcc, 0, v3, vcc\n s_lshl_b64 exec, 1, (L_CODE_END-L_B_PC+4095)/4096\n s_sub_u32 exec_lo, exec_lo, 1\n global_load_dword v63, v[2:3], off\n s_mov_b64 exec, -1')
      LBL('L_B_NCP')
if OPT.get('cpe','0')=='1': codepf()
C('clear the LDS counters and flags while the kernel arguments arrive')
E(f'v_lshlrev_b32 v2, 3, v0\n v_add_u32 v2, {L_C}, v2\n v_mov_b32 v4, 0\n v_mov_b32 v5, 0\n ds_write_b64 v2, v[4:5]')
E('s_waitcnt lgkmcnt(0)\n s_barrier')
stamp('A',0,'start'); stamp('B',0,'start'); echo_mark('start')
if ECHO=='karg': E('s_sub_u32 s99, s98, s97\n s_mul_i32 s99, s99, 10\n s_add_u32 s99, s99, s98')
srd(sX,4,2048*1024); srd(sWS,26,0x10000000)
E(f's_cmp_lt_u32 s{sWave}, 8\n s_cbranch_scc1 L_A')


KVPOS=[L_ST,32768,49152,16384,65536,81920,98304,114688]
L_PART=L_ST+24576
L_QA=0; L_QB=8192; L_WO=0; L_FX=65536
sOut=66; sOb=67; sPass=64
sRot=sT+11
def mktag(): E(f's_mul_i32 s{sTag}, s{sTag}, 0x9E3779B1\n s_add_u32 s{sTag}, s{sTag}, 0x7F4A7C15')
def mkrot():
    if MAP=='b': E(f's_and_b32 s{sRot}, s{sPb}, 3\n s_lshl_b32 s{sRot}, s{sRot}, 1\n s_add_u32 s{sRot}, s{sRot}, s{sHg}')
    else: E(f's_lshl_b32 s{sRot}, s{sHg}, 1\n s_add_u32 s{sRot}, s{sRot}, s{sPb}')
def touch(srd_,soff,n,vaddr,vd,sc1=False):
    for i in range(n):
        if i: E(f's_add_u32 s{soff}, s{soff}, 8192')
        E(f'buffer_load_dword v{vd}, v{vaddr}, {sr(srd_)}, s{soff} offen'+(' sc1' if sc1 else ''))
E(f's_setprio {2 if OPT.get("bp2") else 3}\n s_sub_u32 s{sB}, s{sWave}, 8')
if OPT.get('cpe','0')=='0': codepf()
C('---- x tile -> LDS as 8 blocks of [64 rows][64 k], block order rotated per WG ; wave b brings blocks b and b+4')
E('v_lshrrev_b32 v17, 3, v0\n v_lshlrev_b32 v17, 10, v17\n v_lshrrev_b32 v2, 4, v0\n v_and_b32 v3, 7, v0\n v_xor_b32 v2, v2, v3\n v_lshl_add_u32 v17, v2, 4, v17\n v_xor_b32 v18, 64, v17')
mkrot()
E(f's_lshl_b32 s{sT+7}, s{sPb}, 16\n s_lshl_b32 s{sT+6}, s{sB}, 13')
VQ=[]
def vwait(tag,extra=''):
    if tag not in VQ:
        if extra: E('s_waitcnt'+extra)
        return
    i=max(n for n,t in enumerate(VQ) if t==tag)
    n=len(VQ)-1-i; del VQ[:i+1]
    E(f's_waitcnt vmcnt({n})'+extra)
XD=OPT.get('xd','1')=='1'
def xblock(expr_add,ldsoff,rows):
    E(f's_add_u32 s{sT+1}, s{sRot}, {expr_add}\n s_and_b32 s{sT+1}, s{sT+1}, 7\n s_lshl_b32 s{sT+1}, s{sT+1}, 7\n s_add_u32 s{sT+1}, s{sT+1}, s{sT+7}')
if XD:
    E(f's_and_b32 s{sT+1}, s{sRot}, 7\n s_lshl_b32 s{sT+1}, s{sT+1}, 7\n s_add_u32 s{sT+1}, s{sT+1}, s{sT+7}\n s_lshl_b32 s{sT+2}, s{sB}, 14\n s_add_u32 s{sT+1}, s{sT+1}, s{sT+2}\n s_lshl_b32 s{sT+2}, s{sB}, 11\n s_add_u32 m0, s{sT+2}, 65536\n s_nop 0')
    E(f'buffer_load_dwordx4 v17, {sr(sX)}, s{sT+1} offen lds\n s_add_u32 m0, s{sT+2}, {65536+1024}\n s_add_u32 s{sT+1}, s{sT+1}, 8192\n buffer_load_dwordx4 v18, {sr(sX)}, s{sT+1} offen lds')
if OPT.get('c3','1')=='1' and MAP=='b':
    C('lines with address bits 9:7 = 3 miss more slowly: every WG asks early for a share of that weight column block')
    E(f's_cmp_eq_u32 s{sB}, 0\n s_cselect_b32 s{sWB}, s6, s16\n s_cselect_b32 s{sWB+1}, s7, s17\n s_mov_b32 s{sWB+2}, {512*3072}\n s_cselect_b32 s{sWB+2}, {512*1024}, s{sWB+2}\n s_mov_b32 s{sWB+3}, 0x20000')
    E(f's_movk_i32 s{sT+3}, 3072\n s_cselect_b32 s{sT+3}, 0x400, s{sT+3}\n s_max_u32 s{sT+1}, s{sB}, 1\n s_sub_u32 s{sT+1}, s{sT+1}, 1\n s_lshl_b32 s{sT+1}, s{sT+1}, 10\n s_lshr_b32 s{sT+2}, s2, 3\n s_lshl_b32 s{sT+2}, s{sT+2}, 4\n s_mul_i32 s{sT+2}, s{sT+2}, s{sT+3}\n s_add_u32 s{sT+1}, s{sT+1}, s{sT+2}')
    E(f'v_mul_u32_u24 v2, s{sT+3}, v0\n s_mov_b64 exec, 0xffff\n buffer_load_dword v19, v2, {sr(sWB)}, s{sT+1} offen offset:384\n s_mov_b64 exec, -1')
def xrest():
  for hb in range(2):
    sk=uid('xs')
    if XD and hb==0: E(f's_cmp_eq_u32 s{sB}, 0\n s_cbranch_scc1 {sk}')
    E(f's_add_u32 s{sT+1}, s{sRot}, s{sB}\n s_add_u32 s{sT+1}, s{sT+1}, {4*hb}\n s_and_b32 s{sT+1}, s{sT+1}, 7\n s_lshl_b32 s{sT+1}, s{sT+1}, 7\n s_add_u32 s{sT+1}, s{sT+1}, s{sT+7}')
    for n in range(8):
        E(f's_add_u32 m0, s{sT+6}, {65536+32768*hb+1024*n}')
        E(f's_add_u32 s{sT+1}, s{sT+1}, 8192' if n else 's_nop 0')
        E(f'buffer_load_dwordx4 v{17+(n&1)}, {sr(sX)}, s{sT+1} offen lds')
    if XD and hb==0: LBL(sk)
if not XD: xrest()
MU=128; MD=144; BQ=16; BK=24; BV=36; BS=64; BO=96; BIDX=60
C('---- constants for the later phases (idle time)')
E(f'v_mov_b32 v{vZ}, {L_ST}\n v_lshlrev_b32 v160, 4, v0\n v_lshlrev_b32 v163, 7, v0')
E('v_lshrrev_b32 v161, 5, v0\n v_lshlrev_b32 v161, 8, v161\n v_and_b32 v2, 15, v0\n v_lshl_add_u32 v161, v2, 4, v161')
srd(sWOA,12,512*1024); srd(sWOB,18,512*1024)
E(f'v_and_b32 v4, 31, v0\n v_lshrrev_b32 v5, 5, v0\n v_lshlrev_b32 v5, 2, v5\n v_sub_u32 v4, v4, v5\n s_mov_b32 s{sT}, {hex(NEGBIG)}')
for r in range(16):
    E(f'v_subrev_u32 v5, {8*(r//4)+r%4}, v4\n v_ashrrev_i32 v5, 31, v5\n v_and_b32 v{MD+r}, s{sT}, v5\n v_xor_b32 v{MU+r}, s{sT}, v{MD+r}')
set_vpad(list(range(BV,BV+24)),2); E(f'v_mov_b32 v{BIDX}, 0xdddddddd')
for r in range(32): E(f'v_mov_b32 v{BO+r}, 0')
E(f'v_min_u32 v2, 4, v0\n s_sub_i32 s{sT}, s{sPb}, 4\n v_add_u32 v2, s{sT}, v2\n v_max_i32 v2, 0, v2\n s_lshl_b32 s{sT}, s{sHg}, 5\n v_add_u32 v2, s{sT}, v2\n v_lshlrev_b32 v2, 7, v2\n v_add_u32 v162, {hex(WS_FKVB+8)}, v2')
E(f'v_and_b32 v2, 7, v0\n v_lshlrev_b32 v2, 5, v2\n v_add_u32 v2, s{sPb}, v2\n v_lshlrev_b32 v2, 7, v2\n v_add_u32 v166, {hex(WS_FKVB+16)}, v2')
sKh=sT+9; sTt=sT+10
E(f's_lshr_b32 s{sKh}, s{sB}, 1\n s_and_b32 s{sTt}, s{sB}, 1\n s_lshl_b32 s{sT+2}, s{sHg}, 7')
dma128_voff(10,2,3,10,f's{sT+2}')
E(f's_lshl_b32 s{sT+1}, s{sKh}, 2'); traddr128(11,2,3,2,f's{sT+1}')
E(f's_lshl_b32 s{sT+1}, s{sKh}, 15\n s_add_u32 s{sT+1}, s{sT+1}, {L_WO}\n v_add_u32 v11, s{sT+1}, v11\n v_xor_b32 v9, 64, v11')
E(f's_lshl_b32 s{sOut}, s{sPb}, 1\n s_add_u32 s{sOut}, s{sOut}, s{sTt}\n s_lshl_b32 s{sOut}, s{sOut}, 15\n s_lshl_b32 s{sT}, s{sKh}, 14\n s_add_u32 s{sOb}, s{sOut}, s{sT}\n s_add_u32 s{sOb}, s{sOb}, {hex(WS_OB)}')
E(f's_lshl_b32 s{sT}, s{sHg}, 7\n s_add_u32 s{sOut}, s{sOut}, s{sT}\n s_lshl_b32 s{sT}, s{sKh}, 6\n s_add_u32 s{sOut}, s{sOut}, s{sT}')
E('v_and_b32 v8, 31, v0\n v_lshlrev_b32 v167, 10, v8\n v_lshrrev_b32 v3, 5, v0\n v_lshl_add_u32 v167, v3, 4, v167\n v_lshlrev_b32 v8, 2, v8')
srd(sOUT,22,2048*1024)
E(f's_lshl_b32 s{sT}, s{sB}, 12\n s_add_u32 s{sT}, s{sT}, {L_FX}\n v_add_u32 v164, s{sT}, v160\n v_xor_b32 v165, 0x2000, v164\n s_mov_b32 s{sPass}, 0')
if XD:
    E('s_waitcnt vmcnt(1)' if OPT.get('c3','1')=='1' and MAP=='b' else 's_waitcnt vmcnt(0)'); tag_set(T_X0,sB,2); xrest()
E('s_waitcnt vmcnt(8)')
tag_set(T_X,sB,2)
stamp('B',1,'x landed'); echo_mark('xl')
E('s_waitcnt vmcnt(0)')
tag_set(T_X+16,sB,2)
if ECHO in ('k0','q1','fl','pt'):
    tag_wait({'k0':T_K0,'q1':T_Q1,'fl':T_FL,'pt':T_PT}[ECHO],4 if ECHO=='pt' else 1,2,sleep=2); echo_mark(ECHO)
tag_wait(T_G,4,2,sleep=4)
tag_get(2)
stamp('B',5,'BQ'); echo_mark('bq')
E(f's_setprio {OPT.get("bpr","3")}')
def kvdma(c):
    E(f's_lshr_b32 s{sT+1}, s2, 3\n s_add_u32 s{sT+1}, s{sT+1}, {c}\n s_and_b32 s{sT+1}, s{sT+1}, 3\n s_lshl_b32 s{sT+1}, s{sT+1}, 2\n s_add_u32 s{sT+1}, s{sT+1}, s{sB}\n s_lshl_b32 s{sT+1}, s{sT+1}, 12')
    E(f's_lshl_b32 s{sT+2}, s{sB}, 12\n s_add_u32 m0, s{sT+2}, {KVPOS[c]}\n s_add_u32 s{sT+1}, s{sT+1}, {hex(WS_KVA+(65536 if c>=4 else 0))}')
    for i in range(4): E(f'buffer_load_dwordx4 v160, {sr(sWS)}, s{sT+1} offen offset:{1024*i} sc1 lds')
    VQ.extend([f'kv{c}']*4)
E(f's_lshl_b32 s{sT}, s{sB}, 11\n s_add_u32 s{sT}, s{sT}, {L_QB}\n v_add_u32 v3, s{sT}, v160')
for t in range(2): E(f'ds_read_b128 {vr(BQ+4*t,4)}, v3 offset:{1024*t}')
E(f's_lshl_b32 s{sT}, s{sPb}, 8\n s_add_u32 s{sT}, s{sT}, {hex(WS_G)}\n buffer_load_dword v61, v8, {sr(sWS)}, s{sT} offen sc1\n buffer_load_dword v62, v8, {sr(sWS)}, s{sT} offen offset:128 sc1\n s_waitcnt lgkmcnt(0)')
C('---- second half of the shared K/V ; o slots marked as not yet written')
for c in (4,5,6,7): kvdma(c)
E(f's_lshl_b32 s{sT+10}, s{sPb}, 6\n s_lshl_b32 s{sT+1}, s{sHg}, 2\n s_add_u32 s{sT+10}, s{sT+10}, s{sT+1}\n s_add_u32 s{sT+10}, s{sT+10}, s{sB}\n s_lshl_b32 s{sT+10}, s{sT+10}, 10')
E('v_mov_b32 v12, -1\n v_mov_b32 v13, -1\n v_mov_b32 v14, -1\n v_mov_b32 v15, -1')
for base in (WS_OA,WS_OA+32768,WS_OB,WS_OB+32768):
    E(f's_add_u32 s{sT+1}, s{sT+10}, {hex(base)}\n buffer_store_dwordx4 v[12:15], v160, {sr(sWS)}, s{sT+1} offen sc1')
E(f's_lshl_b32 s{sT+3}, s{sHg}, 5\n s_add_u32 s{sT+3}, s{sT+3}, s{sPb}\n s_lshl_b32 s{sT+3}, s{sT+3}, 7\n s_lshl_b32 s{sT+1}, s{sB}, 2\n s_add_u32 s{sT+3}, s{sT+3}, s{sT+1}\n s_add_u32 s{sT+3}, s{sT+3}, {hex(WS_FKVB+16)}')
E(f's_getreg_b32 s{sXcc}, hwreg(HW_REG_XCC_ID, 0, 4)\n s_add_u32 s{sT}, s{sTag}, s{sXcc}\n v_mov_b32 v3, s{sT}\n s_waitcnt vmcnt(0)')
E(f's_mov_b64 exec, 1\n buffer_store_dword v3, off, {sr(sWS)}, s{sT+3} sc1\n s_mov_b64 exec, -1')
lds_add(C_K2,0x101,vZ,2)
stamp('B',2,'K/V all in')
if OPT.get('nob'): stamp_flush(12); E('s_endpgm')
E('v_sub_f32 v61, 1.0, v61\n v_sub_f32 v62, 1.0, v62')
poll(162,2,4,sleep=3)
stamp('B',6,'kvB flags seen'); echo_mark('kvb')
def wotouch():
    if MAP=='b':
        E(f's_cmp_ge_u32 s{sB}, 2\n s_cbranch_scc0 L_B_NOT\n s_lshr_b32 s{sT+1}, s2, 3\n s_lshl_b32 s{sT+1}, s{sT+1}, 14\n s_and_b32 s{sT+2}, s{sB}, 1\n s_lshl_b32 s{sT+2}, s{sT+2}, 13\n s_add_u32 s{sT+1}, s{sT+1}, s{sT+2}')
        touch(sWOB,sT+1,1,163,3); touch(sWOA,sT+1,1,163,3)
    else:
        E(f's_cmp_eq_u32 s{sB}, 3\n s_cbranch_scc0 L_B_NOT\n s_lshr_b32 s{sT+1}, s2, 3\n s_lshl_b32 s{sT+1}, s{sT+1}, 14\n s_and_b32 s{sT+2}, s2, 1\n s_lshl_b32 s{sT+2}, s{sT+2}, 9\n s_add_u32 s{sT+1}, s{sT+1}, s{sT+2}')
        E('v_lshrrev_b32 v2, 2, v0\n v_lshlrev_b32 v2, 10, v2\n v_and_b32 v3, 3, v0\n v_lshl_add_u32 v2, v3, 7, v2')
        touch(sWOB,sT+1,1,2,3); touch(sWOA,sT+1,1,2,4)
    LBL('L_B_NOT')
C('---- window attention, head 4hg+b, two query tiles')
E(f's_lshl_b32 s{sT+8}, s{sHg}, 2\n s_add_u32 s{sT+8}, s{sT+8}, s{sB}\n s_lshl_b32 s{sT+8}, s{sT+8}, 6\n s_lshl_b32 s{sT+9}, s{sPb}, 1\n s_sub_i32 s{sT+9}, s{sT+9}, 8')
def btile(j): E(f's_add_i32 s{sT}, s{sT+9}, {j}\n s_max_i32 s{sT}, s{sT}, 0\n s_add_u32 s{sT}, s{sT}, s{sT+8}\n s_lshl_b32 s{sT}, s{sT}, 11\n s_add_u32 s{sT}, s{sT}, {hex(WS_KVB)}')
def bload(j):
    k=BK+4*(j%3); v=BV+8*(j%3)
    btile(j)
    E(f'buffer_load_dwordx4 {vr(k,4)}, v160, {sr(sWS)}, s{sT} offen sc1\n s_mov_b64 exec, {sr(sVM,2)}')
    E(f'buffer_load_dwordx4 {vr(v,4)}, v161, {sr(sWS)}, s{sT} offen offset:1024 sc1\n buffer_load_dwordx4 {vr(v+4,4)}, v161, {sr(sWS)}, s{sT} offen offset:1536 sc1\n s_mov_b64 exec, -1')
bload(0); bload(1)
E(f's_setprio {OPT.get("bat","3")}')
for j in (2,6):
    E(f's_add_i32 s{sT}, s{sT+9}, {j}\n s_max_i32 s{sT}, s{sT}, 0\n s_add_i32 s{sT+1}, s{sT+9}, 6\n s_min_i32 s{sT}, s{sT}, s{sT+1}\n s_cmp_lt_i32 s{sT}, 0')
    sk=uid('tk'); E(f's_cbranch_scc1 {sk}\n s_add_u32 s{sT}, s{sT}, s{sT+8}\n s_lshl_b32 s{sT}, s{sT}, 11\n s_add_u32 s{sT}, s{sT}, {hex(WS_KVB)}')
    E(f'buffer_load_dword v3, v163, {sr(sWS)}, s{sT} offen sc1'); LBL(sk)
E('s_waitcnt lgkmcnt(0)')
for j in range(10):
    k=BK+4*(j%3); v=BV+8*(j%3)
    if j==3: wotouch()
    if j==int(OPT.get('bup','4')): E('s_setprio 3')
    if j==7: E(f'buffer_load_dwordx4 v[12:15], v166, {sr(sWS)}, 0 offen sc1')
    if j+2<10: bload(j+2)
    E(f's_waitcnt vmcnt({3*min(2,9-j)})')
    sk=uid('bskip')
    if j<8: E(f's_cmp_lt_i32 s{sT+9}, {-j}\n s_cbranch_scc1 {sk}')
    qs=[q for q in (0,1) if 0<=j-q<=8]
    for q in qs: mfma(BS+16*q,k,BQ+4*q,{0:MU,8:MD}.get(j-q,'0'))
    E('s_nop 10' if len(qs)==2 else 's_nop 11')
    for q in qs:
        S=BS+16*q; O=BO+16*q
        for r in range(10): vexp(S+r)
        smf(O,v,S,BIDX)
        for r in range(10,16): vexp(S+r)
        E('s_nop 1'); smf(O,v+4,S+8,BIDX)
    if j<8: LBL(sk)
sLoc=sT+11
E(f's_add_u32 s{sT+10}, s{sT+10}, {hex(WS_OB)}\n s_mov_b32 s{sLoc}, 0')
C('the eight WGs of this position block: marks in place ?  all on this die ?')
E(f's_mov_b32 s{sCnt}, {SPIN_LIMIT}\n s_branch L_B_PP1')
LBL('L_B_PP')
E(f'buffer_load_dwordx4 v[12:15], v166, {sr(sWS)}, 0 offen sc1\n s_waitcnt vmcnt(0)')
LBL('L_B_PP1')
for i in range(4): E(f'v_subrev_u32 v{12+i}, s{sTag}, v{12+i}')
E(f'v_or3_b32 v2, v12, v13, v14\n v_or_b32 v2, v2, v15\n v_cmp_lt_u32 vcc, 15, v2\n s_cbranch_vccz L_B_PPD\n s_sub_u32 s{sCnt}, s{sCnt}, 1\n s_cbranch_scc1 L_B_PPD\n s_sleep 3\n s_branch L_B_PP')
LBL('L_B_PPD')
if OPT.get('loc','1')=='1':
    E(f'v_cmp_ne_u32 vcc, s{sXcc}, v12\n s_cbranch_vccnz L_B_NLOC\n s_mov_b32 s{sLoc}, 1')
    lds_add(C_LOC,1,vZ,2)
    if OPT.get('probe'):
        E('s_branch L_B_PRB')
        LBL('L_B_NLOC')
        for i in range(8): E('s_sleep 127')
        LBL('L_B_PRB')
    else: LBL('L_B_NLOC')

for q in range(2):
    fb=f'L_FB_B{q}'; bk=f'L_FB_B{q}_BACK'
    finalize(BO+16*q,4,2,fb,bk,61+q)
    E(f's_cmp_eq_u32 s{sLoc}, 0\n s_cbranch_scc1 L_B_FAR{q}\n buffer_store_dwordx4 v[4:7], v160, {sr(sWS)}, s{sT+10} offen\n s_branch L_B_ST{q}')
    LBL(f'L_B_FAR{q}')
    E(f'buffer_store_dwordx4 v[4:7], v160, {sr(sWS)}, s{sT+10} offen sc1')
    LBL(f'L_B_ST{q}')
    if q==0: E(f's_add_u32 s{sT+10}, s{sT+10}, 32768\n s_nop 0')
    def setup(q=q):
        E(f's_add_i32 s{sT+2}, s{sT+9}, {q}\n s_cmp_ge_i32 s{sT+2}, 0\n s_cselect_b32 s{sT+4}, 1, 0\n s_max_i32 s{sT+2}, s{sT+2}, 0')
        E(f's_add_i32 s{sT+3}, s{sT+9}, {q+9}\n s_sub_u32 s{sT+3}, s{sT+3}, s{sT+2}\n s_add_u32 s{sT+2}, s{sT+2}, s{sT+8}\n s_lshl_b32 s{sT+2}, s{sT+2}, 11\n s_add_u32 s{sT+2}, s{sT+2}, {hex(WS_KVB)}')
    fallback(fb,bk,BQ+4*q,BO+16*q,BS,BK,BV,BIDX,3,160,161,None,setup,MU,MD)
C('---- output projection: wave (t=b&1, kh=b>>1): both 32-column tiles over heads 16kh..16kh+15 ; slot 0 = tile kh')
PA_=48; PW=80; PO=96; PB_=16
stamp('B',7,'oB published'); echo_mark('ob')
E(f's_setprio {OPT.get("bpr2","3")}')
lds_spin(C_MID,None,8,vZ,2,sleep=6)
def wodma(sr_):
    E(f's_lshl_b32 s{sT}, s{sB}, 14\n s_lshl_b32 s{sT+1}, s{sB}, 17')
    for n in range(16): E(f's_add_u32 m0, s{sT}, {L_WO+1024*n}\n s_add_u32 s{sT+2}, s{sT+1}, {8192*n}\n buffer_load_dwordx4 v10, {sr(sr_)}, s{sT+2} offen lds')
def oloads(g0):
    for s in range(4*g0,16):
        if s%4==0: E(f's_add_u32 s{sT}, s{sOb}, {1024*s}')
        E(f'buffer_load_dwordx4 {vr(PO+4*s,4)}, v160, {sr(sWS)}, s{sT} offen offset:{1024*(s%4)} sc1')
wodma(sWOB)
oloads(0)
E('s_waitcnt vmcnt(16)')
lds_add(C_WO,1,vZ,2)
lds_spin(C_WO,None,4,vZ,2,sleep=2)
stamp('B',8,'woB landed')
E('s_branch L_B_GEMM1')
LBL('L_B_GEMM')
oloads(0)
LBL('L_B_GEMM1')
def wread(s):
    f=PW+8*(s&1)
    for u,va in ((0,11),(1,9)): E(f'ds_read_b64_tr_b16 {vr(f+4*u,2)}, v{va} offset:{s*2048}\n ds_read_b64_tr_b16 {vr(f+4*u+2,2)}, v{va} offset:{s*2048+1024}')
wread(0)
E(f's_mov_b32 s{sCnt}, {SPIN_LIMIT}')
for g in range(4):
    LBL(f'L_B_G{g}')
    E(f's_waitcnt vmcnt({12-4*g})')
    p=PO+16*g
    E(f'v_max_u32 v2, v{p}, v{p+4}\n v_max3_u32 v2, v{p+8}, v{p+12}, v2\n v_cmp_eq_u32 vcc, -1, v2\n s_cbranch_vccnz L_B_R{g}')
    LBL(f'L_B_K{g}')
    if DIAG and g==3:
        E(f's_cmp_eq_u32 s{sPass}, 0\n s_cbranch_scc1 L_B_NST'); stamp('B',10,'oA all seen'); LBL('L_B_NST')
    for s in range(4*g,4*g+4):
        if s<15: wread(s+1)
        E(f's_waitcnt lgkmcnt({4 if s<15 else 0})')
        f=PW+8*(s&1)
        if s==0:
            E(f's_cmp_eq_u32 s{sPass}, 0\n s_cbranch_scc0 L_B_M1')
            for u in range(2): mfma(PA_+16*u,f+4*u,PO+4*s,'0')
            E('s_branch L_B_M2'); LBL('L_B_M1')
            for u in range(2): mfma(PA_+16*u,f+4*u,PO+4*s)
            LBL('L_B_M2')
        else:
            for u in range(2): mfma(PA_+16*u,f+4*u,PO+4*s)
    save=L; L=[]
    LBL(f'L_B_R{g}')
    E(f's_sub_u32 s{sCnt}, s{sCnt}, 1\n s_cbranch_scc1 L_B_K{g}\n s_cmp_eq_u32 s{sPass}, 0\n s_cbranch_scc0 L_B_RR{g}\n s_sleep 8')
    LBL(f'L_B_RR{g}')
    E('s_waitcnt vmcnt(0)')
    oloads(g)
    E(f's_branch L_B_G{g}')
    RETRY.extend(L); L=save
E(f's_cmp_eq_u32 s{sPass}, 0\n s_cbranch_scc0 L_B_FIN')
lds_add(C_WD,1,vZ,2)
E(f's_add_u32 s{sOb}, s{sOb}, {hex((WS_OA-WS_OB)&0xffffffff)}\n s_mov_b32 s{sPass}, 1')
lds_spin(C_WD,None,4,vZ,2,sleep=2)
wodma(sWOA)
if OPT.get('dry','0')=='1':
    C('walk once through the closing code with no lane active: its instructions are then cached when they matter')
    E('s_mov_b64 exec, 0\n s_branch L_B_FIN')
    LBL('L_B_DRYD')
    E('s_mov_b64 exec, -1')
E('s_waitcnt vmcnt(0)')
stamp('B',9,'out-proj B done, woA in'); echo_mark('b9')
E('s_barrier'); echo_mark('aend'); E('s_branch L_B_GEMM')
LBL('L_B_FIN')
E('s_nop 9')
for q in range(4): E(f'ds_write_b128 v164, {vr(PA_+16+4*q,4)} offset:{1024*q}')
E('s_waitcnt lgkmcnt(0)\n s_cbranch_execz L_B_NBAR\n s_barrier')
LBL('L_B_NBAR')
for q in range(4): E(f'ds_read_b128 {vr(PB_+4*q,4)}, v165 offset:{1024*q}')
for q in range(4):
    E(f's_waitcnt lgkmcnt({3-q})')
    for r in range(4): E(f'v_add_f32 v{PA_+4*q+r}, v{PA_+4*q+r}, v{PB_+4*q+r}')
for r in range(8): cvt(PA_+r,PA_+2*r,PA_+2*r+1)
E('s_nop 1')
for gq in range(2): E(f'v_permlane32_swap_b32 v{PA_+4*gq}, v{PA_+4*gq+2}\n v_permlane32_swap_b32 v{PA_+4*gq+1}, v{PA_+4*gq+3}')
if OPT.get('dry','0')=='1': E('s_cbranch_execz L_B_DRYD')
for gq in range(2): E(f'buffer_store_dwordx4 {vr(PA_+4*gq,4)}, v167, {sr(sOUT)}, s{sOut} offen offset:{32*gq} '+OPT.get('ost','').replace('+',' '))
if DIAG: E('s_waitcnt vmcnt(0)')
stamp('B',11,'out stored'); echo_end()
stamp_flush(12)
E('s_endpgm')
L.extend(RETRY)

LBL('L_A')
AIDX=8; AKA=9; AVA=10; AQ0=12; AQ1=16; AK=20; AV=28; SA=44; SB=60; OA=76; OB=92; XA=108; WA=160; AF=112
L_PG=L_PART+4096
sStr=sT+10; sRing=sT+7
E(f'v_and_b32 v5, 15, v0\n v_lshlrev_b32 v6, 4, v0\n s_and_b32 s{sT+9}, s{sHg}, 3\n s_cmp_lt_u32 s{sWave}, 4\n s_cbranch_scc0 L_A_KV')
C('---- waves 0..3 : wave m streams 64 columns of matrix m (wq | B q | B k | B v) through its own 8 x 2KB ring')
E(f's_cmp_eq_u32 s{sWave}, 0\n s_cselect_b32 s{sWB}, s6, s16\n s_cselect_b32 s{sWB+1}, s7, s17\n s_mov_b32 s{sWB+2}, {512*3072}\n s_cselect_b32 s{sWB+2}, {512*1024}, s{sWB+2}\n s_mov_b32 s{sWB+3}, 0x20000')
E(f's_movk_i32 s{sStr}, 3072\n s_cselect_b32 s{sStr}, 0x400, s{sStr}\n s_max_u32 s{sT+1}, s{sWave}, 1\n s_sub_u32 s{sT+1}, s{sT+1}, 1\n s_lshl_b32 s{sT+1}, s{sT+1}, 10\n s_lshl_b32 s{sT+2}, s{sHg}, 7\n s_add_u32 s{sT+1}, s{sT+1}, s{sT+2}')
dma128_voff(162,2,3,f's{sStr}',f's{sT+1}')
mkrot()
E(f's_lshl_b32 s{sStr}, s{sStr}, 3\n s_lshl_b32 s{sRing}, s{sWave}, 14')
E(f's_sub_u32 s{sT+1}, s{sStr}, 1024\n v_add_u32 v163, s{sT+1}, v162\n s_lshl_b32 s{sStr}, s{sStr}, 1')
def wdma_parts(st):
    p0=f's_add_u32 m0, s{sRing}, {(st%8)*2048}\n'
    if st%4==0: p0+=f's_add_u32 s{sT+3}, s{sRot}, {st//4}\n s_and_b32 s{sT+3}, s{sT+3}, 7\n s_lshl_b32 s{sT+3}, s{sT+3}, 2\n s_mul_i32 s{sT+3}, s{sT+3}, s{sStr}'
    else: p0+=f's_add_u32 s{sT+3}, s{sT+3}, s{sStr}'
    VQ.extend([f'w{st}']*2)
    return [p0, f'buffer_load_dwordx4 v162, {sr(sWB)}, s{sT+3} offen lds', f'buffer_load_dwordx4 v163, {sr(sWB)}, s{sT+3} offen offset:1024 lds']
def wdma(st):
    for p in wdma_parts(st): E(p)
if OPT.get('p0','2')!='0': E(f's_cmp_eq_u32 s{sWave}, 0\n s_cbranch_scc0 L_A_NP0\n s_setprio {OPT.get("p0","3")}\nL_A_NP0:')
NW0=int(OPT.get('nw0','8'))
VQ.clear()
for st in range(NW0): wdma(st)
E('s_branch L_A_NOKV')
LBL('L_A_KV')
E(f's_setprio 3\n s_load_dword s{sTag}, s[26:27], {WS_EPOCH}')
C('---- kvA: this WG makes 16 positions (hg&3) of K (hg<4) or V, and their gate ; wave 4+u sums k in [128u,128u+128)')
E(f's_cmp_lt_u32 s{sHg}, 4\n s_cselect_b32 s{sWKV}, s8, s10\n s_cselect_b32 s{sWKV+1}, s9, s11\n s_mov_b32 s{sWKV+2}, 16384\n s_mov_b32 s{sWKV+3}, 0x20000\n s_and_b32 s{sT+3}, s{sWave}, 3')
E(f's_lshl_b32 s{sT+1}, s{sPb}, 16\n s_lshl_b32 s{sT+2}, s{sT+9}, 14\n s_add_u32 s{sT+1}, s{sT+1}, s{sT+2}\n s_lshl_b32 s{sT+2}, s{sT+3}, 8\n s_add_u32 s{sT+1}, s{sT+1}, s{sT+2}')
E('v_lshlrev_b32 v3, 10, v5\n v_and_b32 v4, 48, v0\n v_add_u32 v3, v3, v4')
for s_ in range(4): E(f'buffer_load_dwordx4 {vr(116+4*s_,4)}, v3, {sr(sX)}, s{sT+1} offen offset:{64*s_}')
if MAP=='c' and OPT.get('wkt','1')=='1':
    E(f's_cmp_eq_u32 s{sWave}, 4\n s_cbranch_scc0 L_A_NT2\n s_lshr_b32 s{sT+4}, s2, 3\n s_lshl_b32 s{sT+4}, s{sT+4}, 9\n v_lshlrev_b32 v2, 7, v0\n s_mov_b64 exec, 15\n buffer_load_dword v167, v2, {sr(sWKV)}, s{sT+4} offen\n s_mov_b64 exec, -1')
    LBL('L_A_NT2')
srd(sG,20,1024)
for s_ in range(4): E(f'buffer_load_dwordx4 {vr(132+4*s_,4)}, v4, {sr(sG)}, s{sT+2} offen offset:{64*s_}')
E(f's_lshl_b32 s{sT}, s{sT+3}, 12\n s_add_u32 m0, s{sT}, {L_ST}\n s_nop 0')
for i in range(4): E(f'buffer_load_dwordx4 v6, {sr(sWKV)}, s{sT} offen offset:{1024*i} lds')
LBL('L_A_NOKV')
C('---- address of this wave\'s o slot, constants')
sOA=sT+8
E(f's_and_b32 s{sOA}, s{sWave}, 1\n s_lshl_b32 s{sT+1}, s{sPb}, 1\n s_add_u32 s{sOA}, s{sOA}, s{sT+1}\n s_lshl_b32 s{sOA}, s{sOA}, 5')
E(f's_lshl_b32 s{sT+1}, s{sHg}, 2\n s_add_u32 s{sOA}, s{sOA}, s{sT+1}\n s_and_b32 s{sT+1}, s{sWave}, 2\n s_add_u32 s{sOA}, s{sOA}, s{sT+1}\n s_lshr_b32 s{sT+1}, s{sWave}, 2\n s_add_u32 s{sOA}, s{sOA}, s{sT+1}\n s_lshl_b32 s{sOA}, s{sOA}, 10\n s_add_u32 s{sOA}, s{sOA}, {hex(WS_OA)}')
E(f'v_mov_b32 v{vZ}, {L_ST}\n v_lshlrev_b32 v11, 2, v0')
traddr128(WA,2,3,3,'0'); E(f's_lshl_b32 s{sT+1}, s{sWave}, 14\n v_add_u32 v{WA}, s{sT+1}, v{WA}\n v_xor_b32 v{WA+1}, 64, v{WA}')
E(f'v_and_b32 v2, 31, v0\n v_bfe_u32 v3, v0, 1, 3\n v_lshrrev_b32 v7, 5, v0\n v_xor_b32 v3, v3, v7\n v_lshlrev_b32 v{XA}, 7, v2\n v_lshl_add_u32 v{XA}, v3, 4, v{XA}\n v_add_u32 v{XA}, 0x10000, v{XA}')
for s_ in range(1,4): E(f'v_xor_b32 v{XA+s_}, {s_<<5}, v{XA}')
for r in range(32): E(f'v_mov_b32 v{OA+r}, 0')
set_vpad(list(range(AV,AV+16)),2)
E(f'v_mov_b32 v{AIDX}, 0xdddddddd')
E(f's_lshr_b32 s{sT+1}, s{sWave}, 2\n s_lshl_b32 s{sT+1}, s{sT+1}, 11\n v_add_u32 v{AKA}, s{sT+1}, v6')
E(f'v_lshlrev_b32 v7, 8, v7\n v_lshl_add_u32 v7, v5, 4, v7\n v_add_u32 v{AVA}, s{sT+1}, v7')
E(f's_lshl_b32 s{sT+6}, s{sHg}, 5\n s_add_u32 s{sT+6}, s{sT+6}, s{sPb}\n s_lshl_b32 s{sT+6}, s{sT+6}, 7\n s_lshl_b32 s{sT+1}, s{sWave}, 2\n s_add_u32 s{sT+6}, s{sT+6}, s{sT+1}\n s_add_u32 s{sT+6}, s{sT+6}, {hex(WS_FKVB)}')
E(f's_cmp_lt_u32 s{sWave}, 4\n s_cbranch_scc1 L_A_GQ\n s_waitcnt lgkmcnt(0)')
mktag()
E(f'v_lshrrev_b32 v4, 4, v0\n v_lshlrev_b32 v4, 8, v4\n v_lshl_add_u32 v4, v5, 3, v4\n s_add_u32 s{sT}, s{sT}, {L_ST}\n v_add_u32 v4, s{sT}, v4')
E(f's_lshl_b32 s{sT+1}, s{sT+3}, 10\n s_add_u32 s{sT+1}, s{sT+1}, {L_PART}\n v_add_u32 v2, s{sT+1}, v6\n s_lshl_b32 s{sT+1}, s{sT+3}, 8\n s_add_u32 s{sT+1}, s{sT+1}, {L_PG}\n v_add_u32 v3, s{sT+1}, v11')
E('s_waitcnt vmcnt(0)')
for s_ in range(4): E(f'ds_read_b64_tr_b16 {vr(44+4*s_,2)}, v4 offset:{1024*s_}\n ds_read_b64_tr_b16 {vr(46+4*s_,2)}, v4 offset:{1024*s_+128}')
for s_ in range(4): E(f'v_mfma_f32_16x16x32_bf16 v[64:67], {vr(132+4*s_,4)}, {vr(116+4*s_,4)}, {"0" if s_==0 else "v[64:67]"}')
E(f's_cmp_lt_u32 s{sHg}, 4\n s_waitcnt lgkmcnt(0)\n s_cbranch_scc0 L_A_VJOB')
for s_ in range(4): E(f'v_mfma_f32_16x16x32_bf16 v[60:63], {vr(44+4*s_,4)}, {vr(116+4*s_,4)}, {"0" if s_==0 else "v[60:63]"}')
E('s_branch L_A_KVJ')
LBL('L_A_VJOB')
for s_ in range(4): E(f'v_mfma_f32_16x16x32_bf16 v[60:63], {vr(116+4*s_,4)}, {vr(44+4*s_,4)}, {"0" if s_==0 else "v[60:63]"}')
LBL('L_A_KVJ')
E('s_nop 0\n ds_write_b32 v3, v64\n s_nop 5\n ds_write_b128 v2, v[60:63]')
stamp('A',2,'kvA partial')
E('s_waitcnt lgkmcnt(0)')
tag_set(T_PT,sT+3,2)
E(f's_cmp_eq_u32 s{sWave}, 7\n s_cbranch_scc0 L_A_BS')
C('---- wave 7: reduce the four partial tiles, store, flag')
tag_wait(T_PT,4,2)
E(f'v_add_u32 v3, {L_PART}, v6\n v_add_u32 v4, {L_PG}, v11')
for i in range(4): E(f'ds_read_b128 {vr(116+4*i,4)}, v3 offset:{1024*i}')
for i in range(2): E(f'ds_read2st64_b32 {vr(148+2*i,2)}, v4 offset0:{2*i} offset1:{2*i+1}')
E(f's_lshl_b32 s{sT+3}, s{sPb}, 1\n s_lshr_b32 s{sT+4}, s{sT+9}, 1\n s_add_u32 s{sT+3}, s{sT+3}, s{sT+4}\n s_lshl_b32 s{sT+3}, s{sT+3}, 11\n s_add_u32 s{sT+3}, s{sT+3}, {hex(WS_KVA)}\n s_and_b32 s{sT+4}, s{sT+9}, 1')
E(f's_cmp_lt_u32 s{sHg}, 4\n s_cselect_b32 s{sT+5}, 9, 3\n s_cselect_b32 s{sT+7}, 3, 8\n s_cselect_b32 s{sT+1}, 8, 9\n s_cselect_b32 s{sT}, 0, 0x400')
E(f's_lshl_b32 s{sT+4}, s{sT+4}, s{sT+1}\n s_add_u32 s{sT+3}, s{sT+3}, s{sT+4}\n s_add_u32 s{sT+3}, s{sT+3}, s{sT}')
E(f'v_bfe_u32 v3, v0, 4, 1\n v_lshrrev_b32 v4, 5, v0\n v_lshlrev_b32 v5, 4, v5\n v_lshl_add_u32 v5, v3, s{sT+5}, v5\n v_lshl_add_u32 v5, v4, s{sT+7}, v5')
FPLS=int(OPT.get('fpl','2'))
E(f's_lshl_b32 s{sT+7}, s{sPb}, 3\n s_add_u32 s{sT+7}, s{sT+7}, s{sHg}\n s_and_b32 s{sT+1}, s{sT+7}, {(1<<FPLS)-1}\n s_lshr_b32 s{sT+7}, s{sT+7}, {FPLS}\n s_lshl_b32 s{sT+7}, s{sT+7}, 7\n s_lshl_b32 s{sT+1}, s{sT+1}, 2\n s_add_u32 s{sT+7}, s{sT+7}, s{sT+1}\n s_add_u32 s{sT+7}, s{sT+7}, {hex(WS_FKVA)}')
E('s_waitcnt lgkmcnt(2)')
for st_ in (8,4):
    for r in range(st_): E(f'v_add_f32 v{116+r}, v{116+r}, v{116+st_+r}')
cvt(116,116,117); cvt(117,118,119)
E(f'buffer_store_dwordx2 v[116:117], v5, {sr(sWS)}, s{sT+3} offen sc1')
E(f's_cmp_lt_u32 s{sHg}, 4\n s_waitcnt lgkmcnt(0)\n s_cbranch_scc0 L_A_SF')
for st_ in (2,1):
    for r in range(st_): E(f'v_add_f32 v{148+r}, v{148+r}, v{148+st_+r}')
E(f's_mov_b32 s{sT}, {hex(f2u(-math.log2(math.e)))}\n v_mul_f32 v148, s{sT}, v148\n v_exp_f32 v148, v148')
E(f's_lshl_b32 s{sT}, s{sPb}, 2\n s_add_u32 s{sT}, s{sT}, s{sT+9}\n v_add_f32 v148, 1.0, v148\n v_rcp_f32 v148, v148\n s_lshl_b32 s{sT}, s{sT}, 6\n s_add_u32 s{sT}, s{sT}, {hex(WS_G)}')
E(f's_mov_b64 exec, 0xffff\n buffer_store_dword v148, v11, {sr(sWS)}, s{sT} offen sc1\n s_mov_b64 exec, -1')
LBL('L_A_SF')
E('s_waitcnt vmcnt(0)')
flag_store(sT+7,2)
stamp('A',3,'kvA flag sent')
LBL('L_A_BS')
E(f's_cmp_eq_u32 s{sWave}, 6\n s_cbranch_scc0 L_A_B8')
C('---- wave 6: wait for every K/V piece, fetch this WG\'s share into L2, tell the projection waves')
E(f'v_lshlrev_b32 v16, 7, v0\n v_lshrrev_b32 v17, {FPLS-2}, v0\n v_lshlrev_b32 v17, 7, v17\n v_and_b32 v18, {(1<<(FPLS-2))-1}, v0\n v_lshl_add_u32 v17, v18, 4, v17\n v_add_u32 v17, {hex(WS_FKVA)}, v17')
E(f'v_mov_b32 v2, s{sTag}\n ds_write_b32 v{vZ}, v2 offset:{T_TAG-L_ST}')
tag_wait(T_PT,4,2)
tag_wait(T_PL,1,2,sleep=2)
C('lanes whose four flags are in drop out of the next look')
E(f's_mov_b32 s{sCnt}, {SPIN_LIMIT}')
LBL('L_A_PL')
E(f'buffer_load_dwordx4 v[12:15], v17, {sr(sWS)}, 0 offen sc1\n s_waitcnt vmcnt(0)')
for i in range(4): E(f'v_xor_b32 v{12+i}, s{sTag}, v{12+i}')
E(f'v_or3_b32 v12, v12, v13, v14\n v_or_b32 v12, v12, v15\n v_cmp_ne_u32 vcc, 0, v12\n s_cbranch_vccz L_A_PLD\n s_sub_u32 s{sCnt}, s{sCnt}, 1\n s_cbranch_scc1 L_A_PLD\n s_mov_b64 exec, vcc\n s_sleep {OPT.get("psl","16")}\n s_branch L_A_PL')
LBL('L_A_PLD')
E('s_mov_b64 exec, -1')
E(f's_lshr_b32 s{sT+5}, s2, 3\n s_lshl_b32 s{sT+5}, s{sT+5}, 12\n s_add_u32 s{sT+5}, s{sT+5}, {hex(WS_KVA)}')
E(f's_mov_b32 exec_hi, 0\n buffer_load_dword v117, v16, {sr(sWS)}, s{sT+5} offen sc1\n s_mov_b64 exec, -1')
tag_set(T_FL,None,2)
stamp('A',3,'kvA flag sent')
E(f's_lshr_b32 s{sT+5}, s2, 3\n s_and_b32 s{sT+5}, s{sT+5}, 3\n s_lshl_b32 s{sT+5}, s{sT+5}, 14\n s_add_u32 s{sT+5}, s{sT+5}, {hex(WS_KVA)}')
for q in range(4):
    E(f's_mov_b32 m0, {L_ST+4096*q}\n s_add_u32 s{sT+4}, s{sT+5}, {4096*q}')
    for i in range(4): E(f'buffer_load_dwordx4 v6, {sr(sWS)}, s{sT+4} offen offset:{1024*i} sc1 lds')
E('s_waitcnt vmcnt(0)')
tag_set(T_K0,None,2)
stamp('A',7,'G1')
E(f's_cmp_eq_u32 s2, 0\n s_cbranch_scc0 L_A_B8\n s_mov_b32 s{sT}, 0')
flag_store(sT,2)
E('s_branch L_A_B8')
LBL('L_A_GQ')
PAC=[44,60,128,144]; PFR=[12,112,92]
def areads_l(st):
    f=PFR[st%3]; so=(st%8)*2048; o=[]
    for i in range(2): o+= [f'ds_read_b64_tr_b16 {vr(f+4*i,2)}, v{WA+i} offset:{so}', f'ds_read_b64_tr_b16 {vr(f+4*i+2,2)}, v{WA+i} offset:{so+512}']
    for t in range(2): o.append(f'ds_read_b128 {vr(f+8+4*t,4)}, v{XA+st%4} offset:{(st//4)*8192+4096*t}')
    return o
def areads(st):
    for p in areads_l(st): E(p)
def kv_parts(p):
    VQ.extend(['kv']*2)
    return [f's_add_u32 m0, s{sRing}, {p*2048}\n s_add_u32 s{sT+4}, s{sT+5}, {p*2048}']+[f'buffer_load_dwordx4 v6, {sr(sWS)}, s{sT+4} offen offset:{1024*n} sc1 lds' for n in range(2)]
def kvpiece(p):
    for q in kv_parts(p): E(q)
for st in range(NW0,8): wdma(st)
E(f's_sub_u32 s{sT+4}, s{sWave}, 1\n s_cmp_eq_u32 s{sWave}, 1\n s_cselect_b32 s{sT+4}, 3, s{sT+4}\n s_lshr_b32 s{sT+5}, s2, 3\n s_add_u32 s{sT+5}, s{sT+5}, s{sT+4}\n s_and_b32 s{sT+5}, s{sT+5}, 3\n s_lshl_b32 s{sT+5}, s{sT+5}, 14\n s_add_u32 s{sT+5}, s{sT+5}, {hex(WS_KVA)}')
tag_wait(T_X0,4,2) if XD else tag_wait(T_X,1,2)
stamp('A',7,'G1')
vwait('w0'); areads(0); vwait('w1'); areads(1)
VQ0=list(VQ)
PLK=int(OPT.get('plk','15'))
E(f's_cmp_eq_u32 s{sWave}, 3\n s_cbranch_scc1 L_A_GV')
def gstep(var,st,kv):
    f=PFR[st%3]
    def mm(i,t):
        d=PAC[2*i+t]; c='0' if st==0 else None
        if var==0: mfma(d,f+4*i,f+8+4*t,c)
        else: mfma(d,f+8+4*t,f+4*i,c)
    vwait(f'w{st+2}',f' lgkmcnt({6 if st<31 else 0})')
    rd=areads_l(st+2) if st+2<32 else []
    dm=wdma_parts(st+8) if st+8<32 else (kv_parts(st%8) if kv else [])
    gaps=[rd[0:2]+dm[0:1], rd[2:4]+dm[1:2], rd[4:6], dm[2:3]]
    if st>=30: gaps=[[f'v_mov_b32 v{OB+8*(st-30)+2*q+r}, 0' for r in range(2)]+gaps[q] for q in range(4)]
    for q,(i,t) in enumerate(((0,0),(0,1),(1,0),(1,1)) if st<31 else ((1,0),(1,1),(0,0),(0,1))):
        mm(i,t)
        for p in gaps[q]: E(p)
for var in (0,1):
    if var: LBL('L_A_GV')
    VQ[:]=VQ0
    for st in range(24):
        if OPT.get('hold') and st==0:
            E(f's_cmp_eq_u32 s{sWave}, 0\n s_cbranch_scc1 L_A_NH{var}'); tag_wait(T_H,1,2,sleep=2); LBL(f'L_A_NH{var}')
        if OPT.get('hold') and var==0 and st==int(OPT.get('hold')):
            E(f's_cmp_eq_u32 s{sWave}, 0\n s_cbranch_scc0 L_A_NH2'); tag_set(T_H,None,2); E('s_waitcnt lgkmcnt(0)'); LBL('L_A_NH2')
        if st==2: E('s_waitcnt lgkmcnt(0)'); tag_wait(T_X,4,2)
        if st==14: E('s_waitcnt lgkmcnt(0)'); tag_wait(T_X+16,4,2)
        if st==PLK and var==1: tag_set(T_PL,None,2); E('s_waitcnt lgkmcnt(0)')
        gstep(var,st,False)
    stamp('A',2,'step 24'); cstamp('A',10,'s24')
    if var==0: E(f's_cmp_eq_u32 s{sWave}, 0\n s_cbranch_scc1 L_A_G0')
    tag_wait(T_FL,1,2,once=f'L_A_GK{var}')
    if var==0: LBL('L_A_G0')
    V1=list(VQ)
    for st in range(24,32): gstep(var,st,False)
    if var==0: E(f's_cmp_eq_u32 s{sWave}, 0\n s_cbranch_scc1 L_A_GE0')
    tag_wait(T_FL,1,2)
    for p in range(8): kvpiece(p)
    E(f's_branch L_A_GE{var}')
    LBL(f'L_A_GK{var}')
    VQ[:]=V1
    for st in range(24,32): gstep(var,st,True)
    LBL(f'L_A_GE{var}')
    stamp('A',1,'proj loop done'); cstamp('A',11,'pl')
    E(f's_lshl_b32 s{sT+4}, s{sHg}, 8\n s_lshl_b32 s{sT+5}, s{sPb}, 1\n s_add_u32 s{sT+4}, s{sT+4}, s{sT+5}\n s_lshl_b32 s{sT+4}, s{sT+4}, 11\n s_add_u32 s{sT+4}, s{sT+4}, {hex(WS_KVB)}')
    if var==0:
        E(f's_cmp_eq_u32 s{sWave}, 2\n s_cbranch_scc1 L_A_EK')
        C('q (A / B): scale, pack, hand over through LDS')
        E(f's_cmp_eq_u32 s{sWave}, 0\n s_cbranch_scc1 L_A_Q0')
        tag_wait(T_G,1,2)
        LBL('L_A_Q0')
        E(f's_lshl_b32 s{sT+1}, s{sWave}, 13\n s_add_u32 s{sT+1}, s{sT+1}, {L_QA}\n v_add_u32 v3, s{sT+1}, v6\n s_mov_b32 s{sT+2}, {hex(CSCALE)}\n s_mov_b32 s{sT+3}, {hex(CSCALE)}\n s_lshl_b32 s{sT+1}, s{sWave}, 2\n s_add_u32 s{sT+1}, s{sT+1}, {T_Q1}\n v_mov_b32 v4, s{sT+1}\n v_mov_b32 v5, 1')
        for i in (1,0):
            for t in range(2):
                d=PAC[2*i+t]
                for r in range(0,16,2): E(f'v_pk_mul_f32 {vr(d+r,2)}, {vr(d+r,2)}, {sr(sT+2,2)}')
                for r in range(8): cvt(d+r,d+2*r,d+2*r+1)
                for hh in range(2): E(f'ds_write_b128 v3, {vr(d+4*hh,4)} offset:{(2*i+hh)*2048+1024*t}')
            if i==1: E(f's_mov_b64 exec, 1\n ds_write_b32 v4, v5\n s_mov_b64 exec, -1')
        E('s_waitcnt vmcnt(0) lgkmcnt(0)')
        tag_set(T_G,sWave,2)
        E('s_branch L_A_B8')
        LBL('L_A_EK')
        E('s_waitcnt vmcnt(0)')
        tag_set(T_G,sWave,2)
        for i in range(2):
            for t in range(2):
                d=PAC[2*i+t]
                for r in range(8): cvt(d+r,d+2*r,d+2*r+1)
                for hh in range(2): E(f's_add_u32 s{sT+5}, s{sT+4}, {(2*i+hh)*131072}\n buffer_store_dwordx4 {vr(d+4*hh,4)}, v6, {sr(sWS)}, s{sT+5} offen offset:{2048*t} sc1')
        E('s_branch L_A_B8')
    else:
        E('s_waitcnt vmcnt(0)')
        tag_set(T_G,sWave,2)
        E('v_bfe_u32 v3, v0, 4, 1\n v_lshl_add_u32 v3, v3, 17, v7')
        for i in range(2):
            for t in range(2):
                d=PAC[2*i+t]
                for r in range(8): cvt(d+r,d+2*r,d+2*r+1)
                E('s_nop 1')
                for gq in range(2): E(f'v_permlane32_swap_b32 v{d+4*gq}, v{d+4*gq+2}\n v_permlane32_swap_b32 v{d+4*gq+1}, v{d+4*gq+3}')
                E(f's_add_u32 s{sT+5}, s{sT+4}, {i*2*131072}')
                for gq in range(2): E(f'buffer_store_dwordx4 {vr(d+4*gq,4)}, v3, {sr(sWS)}, s{sT+5} offen offset:{2048*t+1024+512*gq} sc1')
LBL('L_A_B8')
E('s_setprio 0')
E(f's_and_b32 s{sT+1}, s{sWave}, 2\n s_lshr_b32 s{sT+2}, s{sWave}, 2\n s_add_u32 s{sT+1}, s{sT+1}, s{sT+2}\n s_lshl_b32 s{sT+1}, s{sT+1}, 11\n s_and_b32 s{sT+2}, s{sWave}, 1\n s_lshl_b32 s{sT+2}, s{sT+2}, 10\n s_add_u32 s{sT+1}, s{sT+1}, s{sT+2}\n s_add_u32 s{sT+1}, s{sT+1}, {L_QA}\n v_add_u32 v2, s{sT+1}, v6\n v_xor_b32 v3, 0x800, v2')
AK0=120; AV0=121; AEX=122; AG=126
E(f'v_add_u32 v{AK0}, {L_ST}, v{AKA}\n v_add_u32 v{AV0}, {L_ST}, v{AVA}')
E(f's_and_b32 s{sT+2}, s{sWave}, 3\n s_mul_i32 s{sT+1}, s{sT+2}, 4608\n s_add_u32 s{sT+1}, s{sT+1}, {L_EX}\n v_add_u32 v{AEX}, s{sT+1}, v6\n v_add_u32 v{AEX+1}, s{sT+1}, v11')
E(f's_lshl_b32 s{sT+2}, s{sT+2}, 2\n s_add_u32 s{sT+2}, s{sT+2}, {C_PR}\n v_mov_b32 v{AEX+2}, s{sT+2}')
E(f's_and_b32 s{sT+1}, s{sWave}, 1\n s_lshl_b32 s{sT+2}, s{sPb}, 1\n s_add_u32 s{sT+1}, s{sT+1}, s{sT+2}\n s_lshl_b32 s{sT+1}, s{sT+1}, 7\n s_add_u32 s{sT+1}, s{sT+1}, {hex(WS_G)}\n v_and_b32 v127, 0x7c, v11')
tag_wait(T_K0,1,4,sleep=int(OPT.get('asl','2')))
E(f'buffer_load_dword v{AG}, v127, {sr(sWS)}, s{sT+1} offen sc1')
tag_get(4)
def kvoff(j):
    return (j%4)*4096+(0 if j<4 else KVPOS[j//4]-(65536 if j>=16 else 0))
def ldk(j): E(f'ds_read_b128 {vr(AK+4*(j&1),4)}, v{AK0 if j<4 else AKA} offset:{kvoff(j)}')
def ldv(j): E(f's_mov_b64 exec, {sr(sVM,2)}\n ds_read_b128 {vr(AV+8*(j&1),4)}, v{AV0 if j<4 else AVA} offset:{kvoff(j)+1024}\n ds_read_b128 {vr(AV+8*(j&1)+4,4)}, v{AV0 if j<4 else AVA} offset:{kvoff(j)+1536}\n s_mov_b64 exec, -1')
ldk(0); ldv(0); ldk(1)
E(f's_bitcmp1_b32 s{sWave}, 1\n s_cbranch_scc0 L_A_WL')
tag_wait(T_Q1,1,4,sleep=int(OPT.get('asl2','1')))
E('s_branch L_A_WD')
LBL('L_A_WL')
tag_wait(T_G,1,4,sleep=int(OPT.get('asl2','1')))
LBL('L_A_WD')
stamp('A',4,'BQ'); cstamp('A',8,'BQ')
E(f'ds_read_b128 {vr(AQ0,4)}, v2\n ds_read_b128 {vr(AQ1,4)}, v3')
if PRIO in ('step','step4'): E('s_setprio 2')
E('s_waitcnt lgkmcnt(0)'); mfma(SA,AK,AQ0,'0')
E('s_nop 11')
def pair_iter(j,ldk_,ldv_,first=False,last=0,extra=0):
    kc=AK+4*(j&1); kn=AK+4*((j+1)&1); vc=AV+8*(j&1); vp=AV+8*((j+1)&1)
    vexp(SA); vexp(SA+1)
    if not first: smf(OB,vp+4,SB+8,AIDX)
    for r in range(2,5): vexp(SA+r)
    mfma(SB,kc,AQ1,'0')
    for r in range(5,10): vexp(SA+r)
    E(f's_waitcnt lgkmcnt({(1 if last<2 else 0)+extra})')
    vexp(SA+10); smf(OA,vc,SA,AIDX)
    for r in range(11,16): vexp(SA+r)
    vexp(SB); vexp(SB+1); smf(OA,vc+4,SA+8,AIDX)
    if last<2: ldv_()
    for r in range(2,5): vexp(SB+r)
    if last<2:
        E('s_waitcnt lgkmcnt(2)'); mfma(SA,kn,AQ0,'0')
    if last<1: ldk_()
    for r in range(5,11): vexp(SB+r)
    smf(OB,vc,SB,AIDX)
    for r in range(11,16): vexp(SB+r)
def aflag(force,init=False):
    sk=uid('fl')
    E(f's_cmp_eq_u32 s{sT+5}, 0\n s_cbranch_scc0 {sk}')
    if not force: E(f's_getreg_b32 s{sT}, hwreg(HW_REG_IB_STS, 0, 4)\n s_cmp_eq_u32 s{sT}, 0\n s_cbranch_scc0 {sk}')
    E(f's_waitcnt vmcnt(0)\n s_mov_b32 s{sT+5}, 1'); flag_store(sT+6,2); LBL(sk)
if ROLL:
    AKN=120; AVN=121; sC=sT+4
    def rk(j):
        a_=AKA if j<4 else AKN
        return lambda: E(f'ds_read_b128 {vr(AK+4*(j&1),4)}, v{a_} offset:{(j%4)*4096}')
    def rv(j):
        a_=AVA if j<4 else AVN
        return lambda: E(f's_mov_b64 exec, {sr(sVM,2)}\n ds_read_b128 {vr(AV+8*(j&1),4)}, v{a_} offset:{(j%4)*4096+1024}\n ds_read_b128 {vr(AV+8*(j&1)+4,4)}, v{a_} offset:{(j%4)*4096+1536}\n s_mov_b64 exec, -1')
    for r in range(8,16): E(f'v_mov_b32 v{SB+r}, 0')
    E(f'v_add_u32 v{AKN}, 0x8000, v{AKA}\n v_add_u32 v{AVN}, 0x8000, v{AVA}\n v_add_u32 v{AKA}, 0x4000, v{AKA}\n v_add_u32 v{AVA}, 0x4000, v{AVA}\n s_mov_b32 s{sC}, 0\n s_mov_b32 s{sT+5}, 0')
    L.append('.p2align 6')
    LBL('L_A_LOOP')
    pair_iter(0,rk(2),rv(1)); pair_iter(1,rk(3),rv(2))
    E(f's_cmp_gt_u32 s{sC}, 6\n s_cbranch_scc1 L_A_LAST\n s_bitcmp1_b32 0x5f, s{sC}\n s_cbranch_scc1 L_A_RARE')
    LBL('L_A_RBACK')
    pair_iter(2,rk(4),rv(3)); pair_iter(3,rk(5),rv(4))
    E(f's_add_u32 s{sC}, s{sC}, 1\n s_mov_b32 s{sT+1}, 0x4000\n s_cmp_eq_u32 s{sC}, 2\n s_cselect_b32 s{sT+1}, {hex((-49152)&0xffffffff)}, s{sT+1}\n s_cmp_eq_u32 s{sC}, 3\n s_cselect_b32 s{sT+1}, {hex((-65536)&0xffffffff)}, s{sT+1}')
    E(f'v_mov_b32 v{AKA}, v{AKN}\n v_mov_b32 v{AVA}, v{AVN}\n v_add_u32 v{AKN}, s{sT+1}, v{AKN}\n v_add_u32 v{AVN}, s{sT+1}, v{AVN}\n s_branch L_A_LOOP')
    LBL('L_A_RARE')
    E(f's_waitcnt lgkmcnt(0)\n s_cmp_gt_u32 s{sC}, 3\n s_cbranch_scc1 L_A_R4')
    E(f's_cmp_eq_u32 s{sC}, 0\n s_cbranch_scc0 L_A_R1'); lds_spin(C_K1,None,4,vZ,2,sleep=0)
    LBL('L_A_R1')
    E(f's_cmp_eq_u32 s{sC}, 2\n s_cbranch_scc0 L_A_R2'); lds_spin(C_K2,None,4,vZ,2,sleep=1)
    LBL('L_A_R2')
    E(f's_cmp_eq_u32 s{sC}, 3\n s_cbranch_scc1 L_A_R3'); aflag(False); E('s_branch L_A_RBACK')
    LBL('L_A_R3'); aflag(True); E('s_branch L_A_RBACK')
    LBL('L_A_R4')
    E(f's_cmp_eq_u32 s{sC}, 4\n s_cbranch_scc0 L_A_R6'); lds_add(C_MID,1,vZ,2); E('s_waitcnt lgkmcnt(0)\n s_branch L_A_RBACK')
    LBL('L_A_R6'); lds_spin(C_MID,None,8,vZ,2,sleep=1); E('s_branch L_A_RBACK')
    LBL('L_A_LAST')
    pair_iter(2,None,rv(3),last=1); pair_iter(3,None,None,last=2)
else:
    E(f's_and_b32 s{sT+5}, s{sWave}, 6\n s_cmp_eq_u32 s{sT+5}, 2\n s_cselect_b32 s{sT+5}, 0, 1')
    for j in range(32):
        if j in (2,6,10): E('s_waitcnt lgkmcnt(0)'); tag_wait(T_G+4*{2:2,6:3,10:1}[j],1,2)
        if j in (1,2,3,5): aflag(j==5)
        PJ=[int(x) for x in OPT.get('pj','11,22').split(',')]
        if PRIO=='step' and j in PJ: E(f's_setprio {1 if j==PJ[0] else 0}')
        if PRIO=='step4' and j in (6,16): E(f's_setprio {1 if j==6 else 0}')
        if OPT.get('jst') and j in (2,4,8,16,24): E('s_waitcnt lgkmcnt(0)'); cstamp('A',{2:1,4:2,8:3,16:7,24:10}[j],f'J{j}')
        if j==14: E('s_waitcnt lgkmcnt(0)'); lds_spin(C_K2,None,0x404,vZ,2,sleep=1)
        if j==16: lds_add(C_MID,1,vZ,2)
        if j==28: E('s_waitcnt lgkmcnt(0)'); lds_spin(C_MID,None,8,vZ,2,sleep=1)
        def lv(j=j):
            if j==15: E(f'v_add_u32 v{AVA}, 0x10000, v{AVA}')
            ldv(j+1)
        def lk(j=j):
            if j==14: E(f'v_add_u32 v{AKA}, 0x10000, v{AKA}')
            ldk(j+2)
        if j==31:
            C('has the partner of this wave (same queries, other keys) already left its sums ?  if so they arrive during the last tile')
            E(f'ds_read_b32 v127, v{AEX+2} offset:16\n ds_read_b32 v125, v{vZ} offset:{C_LOC-L_ST}')
            for q in range(2): E(f'ds_read_b128 {vr(128+12*q,4)}, v{AEX} offset:{2304*q}\n ds_read_b128 {vr(132+12*q,4)}, v{AEX} offset:{2304*q+1024}\n ds_read_b32 v{136+12*q}, v{AEX+1} offset:{2304*q+2048}')
        pair_iter(j,lk,lv,first=(j==0),last=(2 if j==31 else 1 if j==30 else 0),extra=(1 if j==16 else 0))
E('s_nop 1'); smf(OB,AV+8+4,SB+8,AIDX)
stamp('A',5,'A loop done'); cstamp('A',9,'loop done')
C('---- the first wave of a pair to finish leaves both partial sums in LDS and ends ; the second one finishes both heads')
E(f'v_readfirstlane_b32 s{sT+1}, v127\n v_readfirstlane_b32 s{sT+9}, v125\n s_cmp_eq_u32 s{sT+1}, 1\n s_cbranch_scc1 L_A_LATE')
E(f'v_mov_b32 v2, 1\n s_mov_b64 exec, 1\n ds_add_rtn_u32 v3, v{AEX+2}, v2\n s_mov_b64 exec, -1\n s_waitcnt lgkmcnt(0)\n v_readfirstlane_b32 s{sT+1}, v3\n s_cmp_eq_u32 s{sT+1}, 0\n s_cbranch_scc0 L_A_TIE\n s_nop 3')
for q,O in enumerate((OA,OB)): E(f'ds_write_b128 v{AEX}, {vr(O,4)} offset:{2304*q}\n ds_write_b128 v{AEX}, {vr(O+4,4)} offset:{2304*q+1024}\n ds_write_b32 v{AEX+1}, v{O+8} offset:{2304*q+2048}')
E(f's_mov_b64 exec, 1\n ds_write_b32 v{AEX+2}, v2 offset:16\n s_mov_b64 exec, -1\n s_waitcnt lgkmcnt(0)')
if OPT.get('dry','0')=='1': E('s_mov_b64 exec, 0\n s_branch L_A_LATE')
else: E('s_branch L_A_STD')
LBL('L_A_TIE')
E(f's_mov_b32 s{sCnt}, {SPIN_LIMIT}')
LBL('L_A_TI2')
E(f'ds_read_b32 v127, v{AEX+2} offset:16')
for q in range(2): E(f'ds_read_b128 {vr(128+12*q,4)}, v{AEX} offset:{2304*q}\n ds_read_b128 {vr(132+12*q,4)}, v{AEX} offset:{2304*q+1024}\n ds_read_b32 v{136+12*q}, v{AEX+1} offset:{2304*q+2048}')
E(f's_waitcnt lgkmcnt(0)\n v_readfirstlane_b32 s{sT+1}, v127\n s_cmp_eq_u32 s{sT+1}, 1\n s_cbranch_scc1 L_A_LATE\n s_sub_u32 s{sCnt}, s{sCnt}, 1\n s_cbranch_scc0 L_A_TI2')
LBL('L_A_LATE')
for r in range(9): E(f'v_add_f32 v{OA+r}, v{OA+r}, v{140+r}')
E('s_waitcnt vmcnt(0)')
def setupA(): E(f's_mov_b32 s{sT+2}, {hex(WS_KVA)}\n s_mov_b32 s{sT+3}, 64')
for q,(O,Q_) in enumerate(((OA,AQ0),(OB,AQ1))):
    if q==1:
        for r in range(9): E(f'v_add_f32 v{OB+r}, v{OB+r}, v{128+r}')
    dst=152+4*q
    finalize(O,dst,2,f'L_FB_A{q}',f'L_FB_A{q}_BACK',126)
    if q==1: E(f's_xor_b32 s{sOA}, s{sOA}, 0x400')
    E(f's_cbranch_execz L_A_ST{q}\n s_cmp_eq_u32 s{sT+9}, 0\n s_cbranch_scc1 L_A_FAR{q}\n buffer_store_dwordx4 {vr(dst,4)}, v6, {sr(sWS)}, s{sOA} offen\n s_branch L_A_ST{q}')
    LBL(f'L_A_FAR{q}')
    E(f'buffer_store_dwordx4 {vr(dst,4)}, v6, {sr(sWS)}, s{sOA} offen sc1')
    LBL(f'L_A_ST{q}')
    fallback(f'L_FB_A{q}',f'L_FB_A{q}_BACK',Q_,O,SA,AK,AV,AIDX,3,6,7,None,setupA)
LBL('L_A_STD')
if DIAG: E('s_mov_b64 exec, -1')
stamp('A',6,'oA published')
stamp_flush(12,'A')
LBL('L_END')
E('s_endpgm')
L.append('L_CODE_END:')
L.extend(TAIL)
L.append('    s_endpgm\n.fill 1200, 4, 0xbf810000')

hdr=open('cdna_kernels/%s.s.ref'%NAME).read().split('; Override launch')[0]
txt=hdr
txt+=f'; @launch grid=(256,1,1) block=(768,1,1) lds={LDS_TOTAL}\n'
DOC="""
One workgroup per CU: WG = (64 positions pb, 4 heads hg); 8 "A" waves + 4 "B" waves, LDS 160 KB.
 head : waves 0-3 project q(A), q/k/v(B) (weights streamed by LDS-DMA through private rings, transposing LDS reads),
        waves 4-7 make this WG's 16-position piece of the shared K/V (and the gate), publish it, wait for all pieces.
 main : A waves - MQA over all 2048 keys (S^T = K Q^T, exp2 in place, P^T fed raw to a 2:4 sparse MFMA that picks the
        high halves = bf16 P; a row of ones in V^T gives the row sums).  B waves - window attention, then B out-projection.
 tail : o (already divided by the row sum and scaled by g or 1-g) is handed to the WGs of the same positions,
        B waves finish out = [g oA | (1-g) oB] [woA ; woB].
 softmax guard: exp2 runs on unshifted scores; every row's sum must lie in [2^-24, 2^60] and its numerators must be finite,
        otherwise that query tile is redone with the true row maximum (L_FB_*: max pass, then exp2(s - max)).
 hand-offs in d_ws carry a tag derived from the epoch word found at ws[0] (advanced once per launch), or overwrite a
        'not yet written' mark; all are write-through + acknowledged, except o between WGs that report the same XCC id.
"""
for l in DOC.strip('\n').split('\n'): txt+='; '+l+'\n'
for n in () if not DIAG and not OPT.get('consts') else ('WS_KVA','WS_KVB','WS_OA','WS_OB','WS_STAMP','NSTAMP'): txt+=f'; CONST {n} = {hex(globals()[n])}\n'
for r,i,n in STN: txt+=f'; STAMPNAME {r} {i} {n}\n'
txt+=f'''.amdgcn_target "amdgcn-amd-amdhsa--gfx950"
.text
.globl {NAME}_kernel
.p2align 8
.type {NAME}_kernel,@function
{NAME}_kernel:
'''+'\n'.join(L)+f'''
.section .rodata,"a"
.p2align 6
.amdhsa_kernel {NAME}_kernel
  .amdhsa_next_free_vgpr 168
  .amdhsa_next_free_sgpr 102
  .amdhsa_accum_offset 168
  .amdhsa_group_segment_fixed_size 0
  .amdhsa_kernarg_size 96
  .amdhsa_user_sgpr_count 2
  .amdhsa_user_sgpr_kernarg_segment_ptr 1
  .amdhsa_system_sgpr_workgroup_id_x 1
.end_amdhsa_kernel
'''
open(OUT,'w').write(txt)
print('wrote',OUT,len(L),'lines')
```

```python
import sys, math, struct
NAME='gated_mix__grouped_kv_mqa__sliding_block__prompt'
DIAG = '--diag' in sys.argv
OUT = [a for a in sys.argv[1:] if not a.startswith('--')]
OUT = OUT[0] if OUT else 'cdna_kernels/%s.s'%NAME
OPT=dict(a.lstrip('-').split('=') for a in sys.argv[1:] if a.startswith('--') and '=' in a)
MAP=OPT.get('map','b'); ROT=OPT.get('rot','full'); PRIO=OPT.get('prio','step'); FLAG_IT=int(OPT.get('flagit','1')); PK=int(OPT.get('pk','7')); FORCE_K=int(OPT.get('forcek','7')); SENTK=int(OPT.get('sentk','14')); DENSE=OPT.get('dense','0')=='1'; ROLL=OPT.get('roll','0')=='1'; WT=OPT.get('wtouch','0')=='1'; KVK=int(OPT.get('kvk','13'))
def f2u(f): return struct.unpack('<I',struct.pack('<f',f))[0]

WS_EPOCH=0x0
WS_FKVA=0x1000
WS_FKVB=0x4000
WS_FOB =0xC000
WS_FOA =0x14000
WS_G   =0x1C000
WS_KVA =0x20000
WS_QB  =0x40000
WS_KVB =0x240000
WS_OA  =0x640000
WS_OB  =0x840000
WS_STAMP=0xA40000
NSTAMP=16
L_WQ=0; L_X=65536; L_ST=131072; L_CTL=L_ST+30720
L_GW=L_CTL; L_G=L_CTL+1024; L_C=L_CTL+1024+256
C_X=L_C+0
C_Q=L_C+4
C_K0=L_C+8; C_K1=L_C+12; C_K2=L_C+16; C_BP=L_C+20; C_MID=L_C+24; C_WO=L_C+28; C_WD=L_C+32; C_QR=L_C+36; C_SN=L_C+40; C_LOC=L_C+44; T_PT=L_C+256; T_X=L_C+272; T_PL=L_C+304; T_FL=L_C+308; T_G=L_C+320; T_X0=L_C+336; T_K0=L_C+352; T_Q1=L_C+356; T_H=L_C+368; T_TAG=L_C+372; C_PR=L_C+384; T_PR=L_C+400
L_EX=L_ST
LDS_TOTAL=163840
SPIN_LIMIT=400000
CSCALE=f2u(0.25*math.log2(math.e))
NEGBIG=f2u(-1e9)
L_LO=f2u(2.0**-24); L_HI=f2u(2.0**60)

sX=28; sWQ=32; sWKV=36; sWB=40; sWOA=44; sWOB=48; sG=52; sOUT=56; sWS=60; sDBG=64
sWave=68; sPb=69; sHg=70; sTag=71
sT=72
sCnt=84; sB=85
sXcc=65
sVM=86
sST=88
vZ=1
L=[]
def E(s):
    for ln in s.split('\n'):
        if ln.strip(): L.append('    '+ln.strip())
def LBL(s): L.append(s+':')
def C(s): L.append('    ; '+s)
_uid=[0]
def uid(p):
    _uid[0]+=1; return f'{p}_{_uid[0]}'
def vr(a,n): return f'v[{a}:{a+n-1}]'
def sr(a,n=4): return f's[{a}:{a+n-1}]'
def srd(dst,ptr,nbytes):
    E(f's_mov_b32 s{dst}, s{ptr}\n s_mov_b32 s{dst+1}, s{ptr+1}\n s_mov_b32 s{dst+2}, {hex(nbytes)}\n s_mov_b32 s{dst+3}, 0x20000')
STN=[]
def stamp(role,i,name):
    if OPT.get('acc') and role=='B' and i==10: return
    if OPT.get('jst') and role=='A' and i in (1,2,3,7): return
    if OPT.get('bst') and role=='B' and i in (6,7,8,9) and not name.startswith('arrive'): return
    if not DIAG: return
    STN.append((role,i,name))
    E(f's_memrealtime s[100:101]\n s_waitcnt lgkmcnt(0)\n s_mov_b32 s{sST+i}, s100')
ECHO=OPT.get('echo')
def echo_mark(name):
    if ECHO==name or name=='start' and ECHO:
        r=98 if name=='start' else 99
        E(f's_memrealtime s[100:101]\n s_waitcnt lgkmcnt(0)\n s_mov_b32 s{r}, s100')
def echo_end():
    if not ECHO: return
    E('s_waitcnt vmcnt(0)'); echo_mark('end')
    E('s_memrealtime s[100:101]\n s_waitcnt lgkmcnt(0)\n s_sub_u32 s99, s99, s98\n s_mul_i32 s99, s99, '+OPT.get('amp','1')+'\n s_add_u32 s99, s99, s100')
    LBL('L_ECHO')
    E('s_memrealtime s[100:101]\n s_waitcnt lgkmcnt(0)\n s_sub_u32 s100, s100, s99\n s_cmp_lt_i32 s100, 0\n s_cbranch_scc1 L_ECHO')
def cstamp(role,i,name):
    if OPT.get('jst') and i in (10,11) and not name.startswith('J'): return
    if not DIAG: return
    STN.append((role,i,'CYC '+name))
    E(f's_memtime s[100:101]\n s_waitcnt lgkmcnt(0)\n s_mov_b32 s{sST+i}, s100')
def tacc(role,i,name,code):
    if not (DIAG and OPT.get('acc')): E(code); return
    if (role,i,'ACC '+name) not in STN: STN.append((role,i,'ACC '+name))
    E(f's_memtime s[100:101]\n s_waitcnt lgkmcnt(0)\n s_sub_u32 s{sST+i}, s{sST+i}, s100')
    E(code)
    E(f's_memtime s[100:101]\n s_waitcnt lgkmcnt(0)\n s_add_u32 s{sST+i}, s{sST+i}, s100')
def stamp_flush(nmax,role='B'):
    if not DIAG: return
    if OPT.get('dbg'):
        m={'A':[(0,1),(2,2),(7,3),(3,4),(1,5),(4,6),(5,7),(6,8)],'B':[(4,9),(6,10),(7,11),(9,12),(10,13),(11,14)]}[role]
        sk=uid('nd')
        srd(sDBG,24,256)
        E(f's_bfe_u32 s{sT}, s2, 0x30003\n s_cmp_eq_u32 s{sT}, 0\n s_cbranch_scc0 {sk}\n v_mov_b32 v2, 0\n s_not_b32 s{sT}, s{sST}\n v_writelane_b32 v2, s{sT}, 0')
        for i,sl in m: E(f'v_writelane_b32 v2, s{sST+i}, {sl}')
        E(f'v_lshlrev_b32 v3, 2, v0\n s_mov_b64 exec, 0xffff\n buffer_atomic_umax v2, v3, {sr(sDBG)}, 0 offen sc1\n s_mov_b64 exec, -1')
        LBL(sk)
        return
    if OPT.get('hwid'): E(f's_getreg_b32 s{sST+11}, hwreg(HW_REG_HW_ID)\n s_getreg_b32 s{sST+10}, hwreg(HW_REG_XCC_ID)')
    E('v_mov_b32 v2, 0')
    for i in range(nmax): E(f'v_writelane_b32 v2, s{sST+i}, {i}')
    E(f's_mul_i32 s{sT}, s2, 12\n s_add_u32 s{sT}, s{sT}, s{sWave}\n s_lshl_b32 s{sT}, s{sT}, 6\n s_add_u32 s{sT}, s{sT}, {hex(WS_STAMP)}')
    E(f'v_lshlrev_b32 v3, 2, v0\n s_mov_b64 exec, 0xffff\n buffer_store_dword v2, v3, {sr(sWS)}, s{sT} offen\n s_mov_b64 exec, -1')

def lds_add(off,val,vz,vt):
    E(f'v_mov_b32 v{vt}, {val}\n s_mov_b64 exec, 1\n ds_add_u32 v{vz}, v{vt} offset:{off-L_ST}\n s_mov_b64 exec, -1')
def lds_spin(off,mask,val,vz,vt,sleep=1):
    a=uid('spin'); d=uid('spind')
    E(f's_mov_b32 s{sCnt}, {SPIN_LIMIT}')
    LBL(a)
    E(f'ds_read_b32 v{vt}, v{vz} offset:{off-L_ST}\n s_waitcnt lgkmcnt(0)\n v_readfirstlane_b32 s{sT}, v{vt}')
    if mask is not None: E(f's_and_b32 s{sT}, s{sT}, {hex(mask)}')
    E(f's_cmp_eq_u32 s{sT}, {hex(val)}\n s_cbranch_scc1 {d}\n s_sub_u32 s{sCnt}, s{sCnt}, 1\n s_cbranch_scc1 {d}')
    if sleep: E(f's_sleep {sleep}')
    E(f's_branch {a}')
    LBL(d)
def tag_set(off,sidx,vt):
    if sidx is None: E(f'v_mov_b32 v{vt}, {off}')
    else: E(f's_lshl_b32 s{sT}, s{sidx}, 2\n s_add_u32 s{sT}, s{sT}, {off}\n v_mov_b32 v{vt}, s{sT}')
    E(f'v_mov_b32 v{vt+1}, 1\n s_mov_b64 exec, 1\n ds_write_b32 v{vt}, v{vt+1}\n s_mov_b64 exec, -1')
def tag_wait(off,n,vt,sleep=0,once=None):
    a=uid('tw'); d=uid('twd')
    E(f'v_and_b32 v{vt}, {n-1}, v0\n v_lshlrev_b32 v{vt}, 2, v{vt}\n v_add_u32 v{vt}, {off}, v{vt}')
    if once:
        E(f'ds_read_b32 v{vt+1}, v{vt}\n s_waitcnt lgkmcnt(0)\n v_cmp_ne_u32 vcc, 1, v{vt+1}\n s_cbranch_vccz {once}')
        return
    E(f's_mov_b32 s{sCnt}, {SPIN_LIMIT}')
    LBL(a)
    E(f'ds_read_b32 v{vt+1}, v{vt}\n s_waitcnt lgkmcnt(0)\n v_cmp_ne_u32 vcc, 1, v{vt+1}\n s_cbranch_vccz {d}\n s_sub_u32 s{sCnt}, s{sCnt}, 1\n s_cbranch_scc1 {d}')
    if sleep: E(f's_sleep {sleep}')
    E(f's_branch {a}')
    LBL(d)
def tag_get(vt):
    E(f'ds_read_b32 v{vt}, v{vZ} offset:{T_TAG-L_ST}\n s_waitcnt lgkmcnt(0)\n v_readfirstlane_b32 s{sTag}, v{vt}')
def poll(vaddr,n,vt,sleep=1):
    a=uid('poll'); d=uid('polld')
    E(f's_mov_b32 s{sCnt}, {SPIN_LIMIT}')
    LBL(a)
    op={1:'buffer_load_dword',2:'buffer_load_dwordx2',3:'buffer_load_dwordx3',4:'buffer_load_dwordx4'}[n]
    E(f'{op} {vr(vt,n) if n>1 else "v%d"%vt}, v{vaddr}, {sr(sWS)}, 0 offen sc1\n s_waitcnt vmcnt(0)')
    for i in range(n): E(f'v_xor_b32 v{vt+i}, s{sTag}, v{vt+i}')
    if n==2: E(f'v_or_b32 v{vt}, v{vt}, v{vt+1}')
    if n>=3: E(f'v_or3_b32 v{vt}, v{vt}, v{vt+1}, v{vt+2}')
    if n==4: E(f'v_or_b32 v{vt}, v{vt}, v{vt+3}')
    E(f'v_cmp_ne_u32 vcc, 0, v{vt}\n s_cbranch_vccz {d}\n s_sub_u32 s{sCnt}, s{sCnt}, 1\n s_cbranch_scc1 {d}')
    if sleep: E(f's_sleep {sleep}')
    E(f's_branch {a}')
    LBL(d)
def flag_store(soff_reg,vt):
    E(f'v_mov_b32 v{vt}, s{sTag}\n s_mov_b64 exec, 1\n buffer_store_dword v{vt}, off, {sr(sWS)}, s{soff_reg} sc1\n s_mov_b64 exec, -1')
def mfma(d,a,b,c=None):
    cc = vr(d,16) if c is None else (c if isinstance(c,str) else vr(c,16))
    E(f'v_mfma_f32_32x32x16_bf16 {vr(d,16)}, {vr(a,4)}, {vr(b,4)}, {cc}')
def smf(o,v,s,idx): E(f'v_smfmac_f32_32x32x32_bf16 {vr(o,16)}, {vr(v,4)}, {vr(s,8)}, v{idx}')
def vexp(r): E(f'v_exp_f32 v{r}, v{r}')
def cvt(d,a,b): E(f'v_cvt_pk_bf16_f32 v{d}, v{a}, v{b}')
def set_vpad(regs,vt):
    E(f'v_and_b32 v{vt}, 27, v0\n v_cmp_eq_u32 vcc, 16, v{vt}\n v_mov_b32 v{vt}, 0x3f803f80\n s_nop 0\n v_cndmask_b32 v{regs[0]}, 0, v{vt}, vcc')
    for r in regs[1:]: E(f'v_mov_b32 v{r}, v{regs[0]}')
def xaddr(base,t_imm,vt):
    E(f'v_and_b32 v{vt}, 15, v0\n v_lshrrev_b32 v{base}, 5, v0\n v_xor_b32 v{base}, v{base}, v{vt}\n v_lshlrev_b32 v{base}, 4, v{base}')
    E(f'v_and_b32 v{vt}, 31, v0\n v_lshl_add_u32 v{base}, v{vt}, 10, v{base}\n v_add_u32 v{base}, {t_imm}, v{base}')
    for b in range(1,8): E(f'v_xor_b32 v{base+b}, {b<<5}, v{base}')
def traddr128(dst,vt,vt2,rowsel,colbase):
    E(f'v_lshrrev_b32 v{vt}, 5, v0\n v_lshlrev_b32 v{vt}, {rowsel}, v{vt}\n v_bfe_u32 v{vt2}, v0, 2, 2\n v_add_u32 v{vt}, v{vt}, v{vt2}\n v_lshlrev_b32 v{dst}, 7, v{vt}')
    E(f'v_bfe_u32 v{vt}, v0, 4, 1\n v_lshlrev_b32 v{vt}, 1, v{vt}\n v_bfe_u32 v{vt2}, v0, 1, 1\n v_add3_u32 v{vt}, v{vt}, v{vt2}, {colbase}')
    E(f'v_bfe_u32 v{vt2}, v0, 3, 1\n v_lshlrev_b32 v{vt2}, 2, v{vt2}\n v_xor_b32 v{vt}, v{vt}, v{vt2}\n v_lshl_add_u32 v{dst}, v{vt}, 4, v{dst}')
    E(f'v_and_b32 v{vt}, 1, v0\n v_lshl_add_u32 v{dst}, v{vt}, 3, v{dst}')
def dma128_voff(dst,vt,vt2,rowstride_sreg_or_shift,colbytes):
    E(f'v_lshrrev_b32 v{vt}, 3, v0')
    if isinstance(rowstride_sreg_or_shift,int): E(f'v_lshlrev_b32 v{dst}, {rowstride_sreg_or_shift}, v{vt}')
    else: E(f'v_mul_u32_u24 v{dst}, {rowstride_sreg_or_shift}, v{vt}')
    E(f'v_bfe_u32 v{vt}, v0, 4, 1\n v_lshlrev_b32 v{vt}, 2, v{vt}\n v_and_b32 v{vt2}, 7, v0\n v_xor_b32 v{vt}, v{vt}, v{vt2}\n v_lshl_add_u32 v{dst}, v{vt}, 4, v{dst}\n v_add_u32 v{dst}, {colbytes}, v{dst}')
def finalize(O,dst,vt,lbl_fb,lbl_back,vg):
    C('guard: row sum inside [2^-24, 2^60] and finite numerators in every lane, else redo with the true maximum')
    E(f'v_add_f32 v{vt}, |v{O}|, |v{O+1}|')
    for r in range(2,8): E(f'v_add_f32 v{vt}, v{vt}, |v{O+r}|')
    E(f'v_mov_b32 v{vt+1}, 0x7f800000\n v_cmp_nlt_f32 {sr(sT,2)}, v{vt}, v{vt+1}')
    E(f'v_cmp_nle_f32 vcc, {hex(L_LO)}, v{O+8}\n s_or_b64 {sr(sT,2)}, {sr(sT,2)}, vcc')
    E(f'v_cmp_nge_f32 vcc, {hex(L_HI)}, v{O+8}\n s_or_b64 {sr(sT,2)}, {sr(sT,2)}, vcc\n s_cbranch_scc1 {lbl_fb}')
    LBL(lbl_back)
    E(f'v_rcp_f32 v{vt}, v{O+8}\n s_nop 0\n v_mul_f32 v{vt}, v{vt}, v{vg}')
    for r in range(0,8,2): E(f'v_pk_mul_f32 {vr(O+r,2)}, {vr(O+r,2)}, {vr(vt,2)} op_sel_hi:[1,0]')
    for r in range(4): cvt(dst+r,O+2*r,O+2*r+1)
    E(f'v_min_u32 v{dst}, -2, v{dst}')

TAIL=[]
RETRY=[]
def fallback(lbl,back,Q,O,S,K,V,IDX,vM,vK,vV,ntile,soff_setup,first_mask=None,last_mask=None,first_cond=None):
    global L
    save=L; L=[]
    LBL(lbl)
    C('exact softmax for one query tile: pass 1 row maxima, pass 2 exp2(s - max) ; K/V fragments from d_ws')
    soff_setup()
    E(f'v_mov_b32 v{vM}, 0xff800000')
    for p in (0,1):
        lp=uid('fbl')
        if p==1:
            E(f'v_mov_b32 v{S}, v{vM}\n s_nop 1\n v_permlane32_swap_b32 v{S}, v{vM}\n s_nop 1\n v_max_f32 v{vM}, v{vM}, v{S}')
            for r in range(16): E(f'v_mov_b32 v{O+r}, 0')
        E(f's_mov_b32 s{sT+5}, s{sT+2}\n s_mov_b32 s{sT+6}, 0')
        LBL(lp)
        E(f'buffer_load_dwordx4 {vr(K,4)}, v{vK}, {sr(sWS)}, s{sT+5} offen sc1')
        if p==1:
            E(f's_mov_b64 exec, {sr(sVM,2)}\n buffer_load_dwordx4 {vr(V,4)}, v{vV}, {sr(sWS)}, s{sT+5} offen offset:1024 sc1\n buffer_load_dwordx4 {vr(V+4,4)}, v{vV}, {sr(sWS)}, s{sT+5} offen offset:1536 sc1\n s_mov_b64 exec, -1')
        E('s_waitcnt vmcnt(0)')
        if first_mask is None:
            mfma(S,K,Q,'0')
        else:
            a=uid('fbm'); b=uid('fbm'); j=uid('fbm')
            E(f's_add_u32 s{sT+7}, s{sT+6}, 1\n s_cmp_eq_u32 s{sT+7}, s{sT+3}\n s_cbranch_scc1 {a}')
            E(f's_cmp_lt_u32 s{sT+6}, s{sT+4}\n s_cbranch_scc1 {b}')
            mfma(S,K,Q,'0'); E(f's_branch {j}')
            LBL(a); mfma(S,K,Q,last_mask); E(f's_branch {j}')
            LBL(b); mfma(S,K,Q,first_mask)
            LBL(j)
        E('s_nop 15')
        if p==0:
            for r in range(0,16,2): E(f'v_max3_f32 v{vM}, v{S+r}, v{S+r+1}, v{vM}')
        else:
            for r in range(16): E(f'v_sub_f32 v{S+r}, v{S+r}, v{vM}')
            for r in range(16): vexp(S+r)
            E('s_nop 1'); smf(O,V,S,IDX); smf(O,V+4,S+8,IDX)
        E(f's_add_u32 s{sT+5}, s{sT+5}, 2048\n s_add_u32 s{sT+6}, s{sT+6}, 1\n s_cmp_lt_u32 s{sT+6}, s{sT+3}\n s_cbranch_scc1 {lp}')
    E(f's_nop 15\n s_branch {back}')
    TAIL.extend(L); L=save

E('s_cmp_ge_u32 s2, 256\n s_cbranch_scc1 L_END')
if ECHO=='karg': E('s_memrealtime s[100:101]\n s_waitcnt lgkmcnt(0)\n s_mov_b32 s97, s100')
E('s_load_dwordx16 s[4:19], s[0:1], 0\n s_load_dwordx8 s[20:27], s[0:1], 64')
E(f'v_lshrrev_b32 v1, 6, v0\n v_and_b32 v0, 63, v0\n v_readfirstlane_b32 s{sWave}, v1')
if MAP=='b' and OPT.get('alt'):
    E(f's_and_b32 s{sT}, s2, 7\n s_lshr_b32 s{sT+2}, s2, 6\n s_lshl_b32 s{sPb}, s{sT}, 2\n s_or_b32 s{sPb}, s{sPb}, s{sT+2}\n s_bfe_u32 s{sHg}, s2, 0x30003')
elif MAP=='b':
    E(f's_and_b32 s{sT}, s2, 7\n s_lshr_b32 s{sT+1}, s2, 3\n s_and_b32 s{sT+2}, s{sT+1}, 3\n s_lshl_b32 s{sPb}, s{sT}, 2\n s_or_b32 s{sPb}, s{sPb}, s{sT+2}\n s_lshr_b32 s{sHg}, s{sT+1}, 2')
else:
    E(f's_bfe_u32 s{sPb}, s2, 0x20001\n s_lshl_b32 s{sPb}, s{sPb}, 3\n s_bfe_u32 s{sT}, s2, 0x30003\n s_or_b32 s{sPb}, s{sPb}, s{sT}\n s_and_b32 s{sHg}, s2, 1\n s_lshl_b32 s{sHg}, s{sHg}, 2\n s_lshr_b32 s{sT}, s2, 6\n s_or_b32 s{sHg}, s{sHg}, s{sT}')
E(f's_mov_b32 s{sVM}, 0xffff\n s_mov_b32 s{sVM+1}, 0xffff')
if DIAG:
    for i in range(12): E(f's_mov_b32 s{sST+i}, 0')
def codepf():
  if OPT.get('cpf','1')=='1':
      C('---- pull this WG\'s share of the kernel\'s own instructions into L2 (later instruction fetches then miss only the I-cache)')
      E(f's_cmp_eq_u32 s{sWave}, 11\n s_cbranch_scc0 L_B_NCP\n s_getpc_b64 s[{sT}:{sT+1}]')
      LBL('L_B_PC')
      E(f's_lshr_b32 s{sT+2}, s2, 3\n s_mul_i32 s{sT+2}, s{sT+2}, (L_CODE_END-L_B_PC+4095)/4096*128\n s_add_u32 s{sT}, s{sT}, s{sT+2}\n s_addc_u32 s{sT+1}, s{sT+1}, 0')
      E(f'v_lshlrev_b32 v2, 7, v0\n v_mov_b32 v3, s{sT+1}\n v_add_co_u32 v2, vcc, s{sT}, v2\n s_nop 1\n v_addc_co_u32 v3, vcc, 0, v3, vcc\n s_lshl_b64 exec, 1, (L_CODE_END-L_B_PC+4095)/4096\n s_sub_u32 exec_lo, exec_lo, 1\n global_load_dword v63, v[2:3], off\n s_mov_b64 exec, -1')
      LBL('L_B_NCP')
if OPT.get('cpe','0')=='1': codepf()
C('clear the LDS counters and flags while the kernel arguments arrive')
E(f'v_lshlrev_b32 v2, 3, v0\n v_add_u32 v2, {L_C}, v2\n v_mov_b32 v4, 0\n v_mov_b32 v5, 0\n ds_write_b64 v2, v[4:5]')
E('s_waitcnt lgkmcnt(0)\n s_barrier')
stamp('A',0,'start'); stamp('B',0,'start'); echo_mark('start')
if ECHO=='karg': E('s_sub_u32 s99, s98, s97\n s_mul_i32 s99, s99, 10\n s_add_u32 s99, s99, s98')
srd(sX,4,2048*1024); srd(sWS,26,0x10000000)
E(f's_cmp_lt_u32 s{sWave}, 8\n s_cbranch_scc1 L_A')


KVPOS=[L_ST,32768,49152,16384,65536,81920,98304,114688]
L_PART=L_ST+24576
L_QA=0; L_QB=8192; L_WO=0; L_FX=65536
sOut=66; sOb=67; sPass=64
sRot=sT+11
def mktag(): E(f's_mul_i32 s{sTag}, s{sTag}, 0x9E3779B1\n s_add_u32 s{sTag}, s{sTag}, 0x7F4A7C15')
FT=OPT.get('ft','0')
def mkrot():
    if FT!='0' and not OPT.get('ftrot'): E(f's_mov_b32 s{sRot}, 0'); return
    if MAP=='b': E(f's_and_b32 s{sRot}, s{sPb}, 3\n s_lshl_b32 s{sRot}, s{sRot}, 1\n s_add_u32 s{sRot}, s{sRot}, s{sHg}')
    else: E(f's_lshl_b32 s{sRot}, s{sHg}, 1\n s_add_u32 s{sRot}, s{sRot}, s{sPb}')
def touch(srd_,soff,n,vaddr,vd,sc1=False):
    for i in range(n):
        if i: E(f's_add_u32 s{soff}, s{soff}, 8192')
        E(f'buffer_load_dword v{vd}, v{vaddr}, {sr(srd_)}, s{soff} offen'+(' sc1' if sc1 else ''))
E(f's_setprio {2 if OPT.get("bp2") else 3}\n s_sub_u32 s{sB}, s{sWave}, 8')
if OPT.get('cpe','0')=='0': codepf()
C('---- x tile -> LDS as 8 blocks of [64 rows][64 k], block order rotated per WG ; wave b brings blocks b and b+4')
E('v_lshrrev_b32 v17, 3, v0\n v_lshlrev_b32 v17, 10, v17\n v_lshrrev_b32 v2, 4, v0\n v_and_b32 v3, 7, v0\n v_xor_b32 v2, v2, v3\n v_lshl_add_u32 v17, v2, 4, v17\n v_xor_b32 v18, 64, v17')
mkrot()
E(f's_lshl_b32 s{sT+7}, s{sPb}, 16\n s_lshl_b32 s{sT+6}, s{sB}, 13')
VQ=[]
def vwait(tag,extra=''):
    if tag not in VQ:
        if extra: E('s_waitcnt'+extra)
        return
    i=max(n for n,t in enumerate(VQ) if t==tag)
    n=len(VQ)-1-i; del VQ[:i+1]
    E(f's_waitcnt vmcnt({n})'+extra)
XD=OPT.get('xd','1')=='1'
def xblock(expr_add,ldsoff,rows):
    E(f's_add_u32 s{sT+1}, s{sRot}, {expr_add}\n s_and_b32 s{sT+1}, s{sT+1}, 7\n s_lshl_b32 s{sT+1}, s{sT+1}, 7\n s_add_u32 s{sT+1}, s{sT+1}, s{sT+7}')
if XD:
    E(f's_and_b32 s{sT+1}, s{sRot}, 7\n s_lshl_b32 s{sT+1}, s{sT+1}, 7\n s_add_u32 s{sT+1}, s{sT+1}, s{sT+7}\n s_lshl_b32 s{sT+2}, s{sB}, 14\n s_add_u32 s{sT+1}, s{sT+1}, s{sT+2}\n s_lshl_b32 s{sT+2}, s{sB}, 11\n s_add_u32 m0, s{sT+2}, 65536\n s_nop 0')
    E(f'buffer_load_dwordx4 v17, {sr(sX)}, s{sT+1} offen lds\n s_add_u32 m0, s{sT+2}, {65536+1024}\n s_add_u32 s{sT+1}, s{sT+1}, 8192\n buffer_load_dwordx4 v18, {sr(sX)}, s{sT+1} offen lds')
def wtouch(chunk_expr):
    E(f'{chunk_expr}\n s_lshl_b32 s{sT+1}, s{sT+1}, 5\n s_lshr_b32 s{sT+2}, s2, 3\n s_add_u32 s{sT+1}, s{sT+1}, s{sT+2}\n s_lshl_b32 s{sT+2}, s{sT+1}, 11\n s_mul_i32 s{sT+1}, s{sT+1}, 6144')
    E(f's_mov_b64 exec, 0xffff\n buffer_load_dword v19, v21, {sr(sWQ)}, s{sT+2} offen\n s_mov_b32 exec_lo, -1\n s_mov_b32 exec_hi, 0xffff\n buffer_load_dword v20, v21, {sr(sWB)}, s{sT+1} offen\n s_mov_b64 exec, -1')
NT=0
if FT!='0':
    srd(sWQ,6,512*1024); srd(sWB,16,512*3072)
    E('v_lshlrev_b32 v21, 7, v0')
    wtouch(f's_mov_b32 s{sT+1}, s{sB}'); NT=2
    if FT=='2': wtouch(f's_add_u32 s{sT+1}, s{sB}, 4'); NT=4
def c3touch():
    C('lines with address bits 9:7 = 3 miss more slowly: every WG asks early for a share of that weight column block')
    E(f's_cmp_eq_u32 s{sB}, 0\n s_cselect_b32 s{sWB}, s6, s16\n s_cselect_b32 s{sWB+1}, s7, s17\n s_mov_b32 s{sWB+2}, {512*3072}\n s_cselect_b32 s{sWB+2}, {512*1024}, s{sWB+2}\n s_mov_b32 s{sWB+3}, 0x20000')
    E(f's_movk_i32 s{sT+3}, 3072\n s_cselect_b32 s{sT+3}, 0x400, s{sT+3}\n s_max_u32 s{sT+1}, s{sB}, 1\n s_sub_u32 s{sT+1}, s{sT+1}, 1\n s_lshl_b32 s{sT+1}, s{sT+1}, 10\n s_lshr_b32 s{sT+2}, s2, 3\n s_lshl_b32 s{sT+2}, s{sT+2}, 4\n s_mul_i32 s{sT+2}, s{sT+2}, s{sT+3}\n s_add_u32 s{sT+1}, s{sT+1}, s{sT+2}')
    E(f'v_mul_u32_u24 v2, s{sT+3}, v0\n s_mov_b64 exec, 0xffff\n buffer_load_dword v19, v2, {sr(sWB)}, s{sT+1} offen offset:384\n s_mov_b64 exec, -1')
C3=OPT.get('c3','2') if MAP=='b' and FT=='0' else '0'
if C3=='1': c3touch()
def xrest():
  for hb in range(2):
    sk=uid('xs')
    if XD and hb==0: E(f's_cmp_eq_u32 s{sB}, 0\n s_cbranch_scc1 {sk}')
    E(f's_add_u32 s{sT+1}, s{sRot}, s{sB}\n s_add_u32 s{sT+1}, s{sT+1}, {4*hb}\n s_and_b32 s{sT+1}, s{sT+1}, 7\n s_lshl_b32 s{sT+1}, s{sT+1}, 7\n s_add_u32 s{sT+1}, s{sT+1}, s{sT+7}')
    for n in range(8):
        E(f's_add_u32 m0, s{sT+6}, {65536+32768*hb+1024*n}')
        E(f's_add_u32 s{sT+1}, s{sT+1}, 8192' if n else 's_nop 0')
        E(f'buffer_load_dwordx4 v{17+(n&1)}, {sr(sX)}, s{sT+1} offen lds')
    if XD and hb==0: LBL(sk)
if not XD: xrest()
MU=128; MD=144; BQ=16; BK=24; BV=36; BS=64; BO=96; BIDX=60
C('---- constants for the later phases (idle time)')
E(f'v_mov_b32 v{vZ}, {L_ST}\n v_lshlrev_b32 v160, 4, v0\n v_lshlrev_b32 v163, 7, v0')
E('v_lshrrev_b32 v161, 5, v0\n v_lshlrev_b32 v161, 8, v161\n v_and_b32 v2, 15, v0\n v_lshl_add_u32 v161, v2, 4, v161')
srd(sWOA,12,512*1024); srd(sWOB,18,512*1024)
E(f'v_and_b32 v4, 31, v0\n v_lshrrev_b32 v5, 5, v0\n v_lshlrev_b32 v5, 2, v5\n v_sub_u32 v4, v4, v5\n s_mov_b32 s{sT}, {hex(NEGBIG)}')
for r in range(16):
    E(f'v_subrev_u32 v5, {8*(r//4)+r%4}, v4\n v_ashrrev_i32 v5, 31, v5\n v_and_b32 v{MD+r}, s{sT}, v5\n v_xor_b32 v{MU+r}, s{sT}, v{MD+r}')
set_vpad(list(range(BV,BV+24)),2); E(f'v_mov_b32 v{BIDX}, 0xdddddddd')
for r in range(32): E(f'v_mov_b32 v{BO+r}, 0')
E(f'v_min_u32 v2, 4, v0\n s_sub_i32 s{sT}, s{sPb}, 4\n v_add_u32 v2, s{sT}, v2\n v_max_i32 v2, 0, v2\n s_lshl_b32 s{sT}, s{sHg}, 5\n v_add_u32 v2, s{sT}, v2\n v_lshlrev_b32 v2, 7, v2\n v_add_u32 v162, {hex(WS_FKVB+8)}, v2')
E(f'v_and_b32 v2, 7, v0\n v_lshlrev_b32 v2, 5, v2\n v_add_u32 v2, s{sPb}, v2\n v_lshlrev_b32 v2, 7, v2\n v_add_u32 v166, {hex(WS_FKVB+16)}, v2')
sKh=sT+9; sTt=sT+10
E(f's_lshr_b32 s{sKh}, s{sB}, 1\n s_and_b32 s{sTt}, s{sB}, 1\n s_lshl_b32 s{sT+2}, s{sHg}, 7')
dma128_voff(10,2,3,10,f's{sT+2}')
E(f's_lshl_b32 s{sT+1}, s{sKh}, 2'); traddr128(11,2,3,2,f's{sT+1}')
E(f's_lshl_b32 s{sT+1}, s{sKh}, 15\n s_add_u32 s{sT+1}, s{sT+1}, {L_WO}\n v_add_u32 v11, s{sT+1}, v11\n v_xor_b32 v9, 64, v11')
E(f's_lshl_b32 s{sOut}, s{sPb}, 1\n s_add_u32 s{sOut}, s{sOut}, s{sTt}\n s_lshl_b32 s{sOut}, s{sOut}, 15\n s_lshl_b32 s{sT}, s{sKh}, 14\n s_add_u32 s{sOb}, s{sOut}, s{sT}\n s_add_u32 s{sOb}, s{sOb}, {hex(WS_OB)}')
E(f's_lshl_b32 s{sT}, s{sHg}, 7\n s_add_u32 s{sOut}, s{sOut}, s{sT}\n s_lshl_b32 s{sT}, s{sKh}, 6\n s_add_u32 s{sOut}, s{sOut}, s{sT}')
E('v_and_b32 v8, 31, v0\n v_lshlrev_b32 v167, 10, v8\n v_lshrrev_b32 v3, 5, v0\n v_lshl_add_u32 v167, v3, 4, v167\n v_lshlrev_b32 v8, 2, v8')
srd(sOUT,22,2048*1024)
E(f's_lshl_b32 s{sT}, s{sB}, 12\n s_add_u32 s{sT}, s{sT}, {L_FX}\n v_add_u32 v164, s{sT}, v160\n v_xor_b32 v165, 0x2000, v164\n s_mov_b32 s{sPass}, 0')
if XD:
    E(f's_waitcnt vmcnt({NT})' if NT else ('s_waitcnt vmcnt(1)' if C3=='1' else 's_waitcnt vmcnt(0)')); tag_set(T_X0,sB,2)
    if C3=='2': c3touch()
    if FT=='1': wtouch(f's_add_u32 s{sT+1}, s{sB}, 4')
    xrest()
E('s_waitcnt vmcnt(8)')
tag_set(T_X,sB,2)
stamp('B',1,'x landed'); echo_mark('xl')
E('s_waitcnt vmcnt(0)')
tag_set(T_X+16,sB,2)
if ECHO in ('k0','q1','fl','pt'):
    tag_wait({'k0':T_K0,'q1':T_Q1,'fl':T_FL,'pt':T_PT}[ECHO],4 if ECHO=='pt' else 1,2,sleep=2); echo_mark(ECHO)
tag_wait(T_G,4,2,sleep=4)
tag_get(2)
stamp('B',5,'BQ'); echo_mark('bq')
E(f's_setprio {OPT.get("bpr","3")}')
def kvdma(c):
    E(f's_lshr_b32 s{sT+1}, s2, 3\n s_add_u32 s{sT+1}, s{sT+1}, {c}\n s_and_b32 s{sT+1}, s{sT+1}, 3\n s_lshl_b32 s{sT+1}, s{sT+1}, 2\n s_add_u32 s{sT+1}, s{sT+1}, s{sB}\n s_lshl_b32 s{sT+1}, s{sT+1}, 12')
    E(f's_lshl_b32 s{sT+2}, s{sB}, 12\n s_add_u32 m0, s{sT+2}, {KVPOS[c]}\n s_add_u32 s{sT+1}, s{sT+1}, {hex(WS_KVA+(65536 if c>=4 else 0))}')
    for i in range(4): E(f'buffer_load_dwordx4 v160, {sr(sWS)}, s{sT+1} offen offset:{1024*i} sc1 lds')
    VQ.extend([f'kv{c}']*4)
E(f's_lshl_b32 s{sT}, s{sB}, 11\n s_add_u32 s{sT}, s{sT}, {L_QB}\n v_add_u32 v3, s{sT}, v160')
for t in range(2): E(f'ds_read_b128 {vr(BQ+4*t,4)}, v3 offset:{1024*t}')
E(f's_lshl_b32 s{sT}, s{sPb}, 8\n s_add_u32 s{sT}, s{sT}, {hex(WS_G)}\n buffer_load_dword v61, v8, {sr(sWS)}, s{sT} offen sc1\n buffer_load_dword v62, v8, {sr(sWS)}, s{sT} offen offset:128 sc1\n s_waitcnt lgkmcnt(0)')
C('---- second half of the shared K/V ; o slots marked as not yet written')
for c in (4,5,6,7): kvdma(c)
E(f's_lshl_b32 s{sT+10}, s{sPb}, 6\n s_lshl_b32 s{sT+1}, s{sHg}, 2\n s_add_u32 s{sT+10}, s{sT+10}, s{sT+1}\n s_add_u32 s{sT+10}, s{sT+10}, s{sB}\n s_lshl_b32 s{sT+10}, s{sT+10}, 10')
E('v_mov_b32 v12, -1\n v_mov_b32 v13, -1\n v_mov_b32 v14, -1\n v_mov_b32 v15, -1')
for base in (WS_OA,WS_OA+32768,WS_OB,WS_OB+32768):
    E(f's_add_u32 s{sT+1}, s{sT+10}, {hex(base)}\n buffer_store_dwordx4 v[12:15], v160, {sr(sWS)}, s{sT+1} offen sc1')
E(f's_lshl_b32 s{sT+3}, s{sHg}, 5\n s_add_u32 s{sT+3}, s{sT+3}, s{sPb}\n s_lshl_b32 s{sT+3}, s{sT+3}, 7\n s_lshl_b32 s{sT+1}, s{sB}, 2\n s_add_u32 s{sT+3}, s{sT+3}, s{sT+1}\n s_add_u32 s{sT+3}, s{sT+3}, {hex(WS_FKVB+16)}')
E(f's_getreg_b32 s{sXcc}, hwreg(HW_REG_XCC_ID, 0, 4)\n s_add_u32 s{sT}, s{sTag}, s{sXcc}\n v_mov_b32 v3, s{sT}\n s_waitcnt vmcnt(0)')
E(f's_mov_b64 exec, 1\n buffer_store_dword v3, off, {sr(sWS)}, s{sT+3} sc1\n s_mov_b64 exec, -1')
lds_add(C_K2,0x101,vZ,2)
stamp('B',2,'K/V all in')
if OPT.get('nob'): stamp_flush(12); E('s_endpgm')
E('v_sub_f32 v61, 1.0, v61\n v_sub_f32 v62, 1.0, v62')
poll(162,2,4,sleep=3)
stamp('B',6,'kvB flags seen'); echo_mark('kvb')
def wotouch():
    if MAP=='b':
        E(f's_cmp_ge_u32 s{sB}, 2\n s_cbranch_scc0 L_B_NOT\n s_lshr_b32 s{sT+1}, s2, 3\n s_lshl_b32 s{sT+1}, s{sT+1}, 14\n s_and_b32 s{sT+2}, s{sB}, 1\n s_lshl_b32 s{sT+2}, s{sT+2}, 13\n s_add_u32 s{sT+1}, s{sT+1}, s{sT+2}')
        touch(sWOB,sT+1,1,163,3); touch(sWOA,sT+1,1,163,3)
    else:
        E(f's_cmp_eq_u32 s{sB}, 3\n s_cbranch_scc0 L_B_NOT\n s_lshr_b32 s{sT+1}, s2, 3\n s_lshl_b32 s{sT+1}, s{sT+1}, 14\n s_and_b32 s{sT+2}, s2, 1\n s_lshl_b32 s{sT+2}, s{sT+2}, 9\n s_add_u32 s{sT+1}, s{sT+1}, s{sT+2}')
        E('v_lshrrev_b32 v2, 2, v0\n v_lshlrev_b32 v2, 10, v2\n v_and_b32 v3, 3, v0\n v_lshl_add_u32 v2, v3, 7, v2')
        touch(sWOB,sT+1,1,2,3); touch(sWOA,sT+1,1,2,4)
    LBL('L_B_NOT')
C('---- window attention, head 4hg+b, two query tiles')
E(f's_lshl_b32 s{sT+8}, s{sHg}, 2\n s_add_u32 s{sT+8}, s{sT+8}, s{sB}\n s_lshl_b32 s{sT+8}, s{sT+8}, 6\n s_lshl_b32 s{sT+9}, s{sPb}, 1\n s_sub_i32 s{sT+9}, s{sT+9}, 8')
def btile(j): E(f's_add_i32 s{sT}, s{sT+9}, {j}\n s_max_i32 s{sT}, s{sT}, 0\n s_add_u32 s{sT}, s{sT}, s{sT+8}\n s_lshl_b32 s{sT}, s{sT}, 11\n s_add_u32 s{sT}, s{sT}, {hex(WS_KVB)}')
def bload(j):
    k=BK+4*(j%3); v=BV+8*(j%3)
    btile(j)
    E(f'buffer_load_dwordx4 {vr(k,4)}, v160, {sr(sWS)}, s{sT} offen sc1\n s_mov_b64 exec, {sr(sVM,2)}')
    E(f'buffer_load_dwordx4 {vr(v,4)}, v161, {sr(sWS)}, s{sT} offen offset:1024 sc1\n buffer_load_dwordx4 {vr(v+4,4)}, v161, {sr(sWS)}, s{sT} offen offset:1536 sc1\n s_mov_b64 exec, -1')
bload(0); bload(1)
E(f's_setprio {OPT.get("bat","3")}')
for j in (2,6):
    E(f's_add_i32 s{sT}, s{sT+9}, {j}\n s_max_i32 s{sT}, s{sT}, 0\n s_add_i32 s{sT+1}, s{sT+9}, 6\n s_min_i32 s{sT}, s{sT}, s{sT+1}\n s_cmp_lt_i32 s{sT}, 0')
    sk=uid('tk'); E(f's_cbranch_scc1 {sk}\n s_add_u32 s{sT}, s{sT}, s{sT+8}\n s_lshl_b32 s{sT}, s{sT}, 11\n s_add_u32 s{sT}, s{sT}, {hex(WS_KVB)}')
    E(f'buffer_load_dword v3, v163, {sr(sWS)}, s{sT} offen sc1'); LBL(sk)
E('s_waitcnt lgkmcnt(0)')
for j in range(10):
    k=BK+4*(j%3); v=BV+8*(j%3)
    if j==3: wotouch()
    if j==int(OPT.get('bup','4')): E('s_setprio 3')
    if j==7: E(f'buffer_load_dwordx4 v[12:15], v166, {sr(sWS)}, 0 offen sc1')
    if j+2<10: bload(j+2)
    E(f's_waitcnt vmcnt({3*min(2,9-j)})')
    sk=uid('bskip')
    if j<8: E(f's_cmp_lt_i32 s{sT+9}, {-j}\n s_cbranch_scc1 {sk}')
    qs=[q for q in (0,1) if 0<=j-q<=8]
    for q in qs: mfma(BS+16*q,k,BQ+4*q,{0:MU,8:MD}.get(j-q,'0'))
    E('s_nop 10' if len(qs)==2 else 's_nop 11')
    for q in qs:
        S=BS+16*q; O=BO+16*q
        for r in range(10): vexp(S+r)
        smf(O,v,S,BIDX)
        for r in range(10,16): vexp(S+r)
        E('s_nop 1'); smf(O,v+4,S+8,BIDX)
    if j<8: LBL(sk)
sLoc=sT+11
E(f's_add_u32 s{sT+10}, s{sT+10}, {hex(WS_OB)}\n s_mov_b32 s{sLoc}, 0')
C('the eight WGs of this position block: marks in place ?  all on this die ?')
E(f's_mov_b32 s{sCnt}, {SPIN_LIMIT}\n s_branch L_B_PP1')
LBL('L_B_PP')
E(f'buffer_load_dwordx4 v[12:15], v166, {sr(sWS)}, 0 offen sc1\n s_waitcnt vmcnt(0)')
LBL('L_B_PP1')
for i in range(4): E(f'v_subrev_u32 v{12+i}, s{sTag}, v{12+i}')
E(f'v_or3_b32 v2, v12, v13, v14\n v_or_b32 v2, v2, v15\n v_cmp_lt_u32 vcc, 15, v2\n s_cbranch_vccz L_B_PPD\n s_sub_u32 s{sCnt}, s{sCnt}, 1\n s_cbranch_scc1 L_B_PPD\n s_sleep 3\n s_branch L_B_PP')
LBL('L_B_PPD')
if OPT.get('loc','1')=='1':
    E(f'v_cmp_ne_u32 vcc, s{sXcc}, v12\n s_cbranch_vccnz L_B_NLOC\n s_mov_b32 s{sLoc}, 1')
    lds_add(C_LOC,1,vZ,2)
    if OPT.get('probe'):
        E('s_branch L_B_PRB')
        LBL('L_B_NLOC')
        for i in range(8): E('s_sleep 127')
        LBL('L_B_PRB')
    else: LBL('L_B_NLOC')

for q in range(2):
    fb=f'L_FB_B{q}'; bk=f'L_FB_B{q}_BACK'
    finalize(BO+16*q,4,2,fb,bk,61+q)
    E(f's_cmp_eq_u32 s{sLoc}, 0\n s_cbranch_scc1 L_B_FAR{q}\n buffer_store_dwordx4 v[4:7], v160, {sr(sWS)}, s{sT+10} offen\n s_branch L_B_ST{q}')
    LBL(f'L_B_FAR{q}')
    E(f'buffer_store_dwordx4 v[4:7], v160, {sr(sWS)}, s{sT+10} offen sc1')
    LBL(f'L_B_ST{q}')
    if q==0: E(f's_add_u32 s{sT+10}, s{sT+10}, 32768\n s_nop 0')
    def setup(q=q):
        E(f's_add_i32 s{sT+2}, s{sT+9}, {q}\n s_cmp_ge_i32 s{sT+2}, 0\n s_cselect_b32 s{sT+4}, 1, 0\n s_max_i32 s{sT+2}, s{sT+2}, 0')
        E(f's_add_i32 s{sT+3}, s{sT+9}, {q+9}\n s_sub_u32 s{sT+3}, s{sT+3}, s{sT+2}\n s_add_u32 s{sT+2}, s{sT+2}, s{sT+8}\n s_lshl_b32 s{sT+2}, s{sT+2}, 11\n s_add_u32 s{sT+2}, s{sT+2}, {hex(WS_KVB)}')
    fallback(fb,bk,BQ+4*q,BO+16*q,BS,BK,BV,BIDX,3,160,161,None,setup,MU,MD)
C('---- output projection: wave (t=b&1, kh=b>>1): both 32-column tiles over heads 16kh..16kh+15 ; slot 0 = tile kh')
PA_=48; PW=80; PO=96; PB_=16
stamp('B',7,'oB published'); echo_mark('ob')
E(f's_setprio {OPT.get("bpr2","3")}')
lds_spin(C_MID,None,8,vZ,2,sleep=6)
def wodma(sr_):
    E(f's_lshl_b32 s{sT}, s{sB}, 14\n s_lshl_b32 s{sT+1}, s{sB}, 17')
    for n in range(16): E(f's_add_u32 m0, s{sT}, {L_WO+1024*n}\n s_add_u32 s{sT+2}, s{sT+1}, {8192*n}\n buffer_load_dwordx4 v10, {sr(sr_)}, s{sT+2} offen lds')
def oloads(g0):
    for s in range(4*g0,16):
        if s%4==0: E(f's_add_u32 s{sT}, s{sOb}, {1024*s}')
        E(f'buffer_load_dwordx4 {vr(PO+4*s,4)}, v160, {sr(sWS)}, s{sT} offen offset:{1024*(s%4)} sc1')
wodma(sWOB)
oloads(0)
E('s_waitcnt vmcnt(16)')
lds_add(C_WO,1,vZ,2)
lds_spin(C_WO,None,4,vZ,2,sleep=2)
stamp('B',8,'woB landed')
E('s_branch L_B_GEMM1')
LBL('L_B_GEMM')
oloads(0)
LBL('L_B_GEMM1')
def wread(s):
    f=PW+8*(s&1)
    for u,va in ((0,11),(1,9)): E(f'ds_read_b64_tr_b16 {vr(f+4*u,2)}, v{va} offset:{s*2048}\n ds_read_b64_tr_b16 {vr(f+4*u+2,2)}, v{va} offset:{s*2048+1024}')
wread(0)
E(f's_mov_b32 s{sCnt}, {SPIN_LIMIT}')
for g in range(4):
    LBL(f'L_B_G{g}')
    E(f's_waitcnt vmcnt({12-4*g})')
    p=PO+16*g
    E(f'v_max_u32 v2, v{p}, v{p+4}\n v_max3_u32 v2, v{p+8}, v{p+12}, v2\n v_cmp_eq_u32 vcc, -1, v2\n s_cbranch_vccnz L_B_R{g}')
    LBL(f'L_B_K{g}')
    if DIAG and g==3:
        E(f's_cmp_eq_u32 s{sPass}, 0\n s_cbranch_scc1 L_B_NST'); stamp('B',10,'oA all seen'); LBL('L_B_NST')
    for s in range(4*g,4*g+4):
        if s<15: wread(s+1)
        E(f's_waitcnt lgkmcnt({4 if s<15 else 0})')
        f=PW+8*(s&1)
        if s==0:
            E(f's_cmp_eq_u32 s{sPass}, 0\n s_cbranch_scc0 L_B_M1')
            for u in range(2): mfma(PA_+16*u,f+4*u,PO+4*s,'0')
            E('s_branch L_B_M2'); LBL('L_B_M1')
            for u in range(2): mfma(PA_+16*u,f+4*u,PO+4*s)
            LBL('L_B_M2')
        else:
            for u in range(2): mfma(PA_+16*u,f+4*u,PO+4*s)
    save=L; L=[]
    LBL(f'L_B_R{g}')
    E(f's_sub_u32 s{sCnt}, s{sCnt}, 1\n s_cbranch_scc1 L_B_K{g}\n s_cmp_eq_u32 s{sPass}, 0\n s_cbranch_scc0 L_B_RR{g}\n s_sleep 8')
    LBL(f'L_B_RR{g}')
    E('s_waitcnt vmcnt(0)')
    oloads(g)
    E(f's_branch L_B_G{g}')
    RETRY.extend(L); L=save
E(f's_cmp_eq_u32 s{sPass}, 0\n s_cbranch_scc0 L_B_FIN')
lds_add(C_WD,1,vZ,2)
E(f's_add_u32 s{sOb}, s{sOb}, {hex((WS_OA-WS_OB)&0xffffffff)}\n s_mov_b32 s{sPass}, 1')
lds_spin(C_WD,None,4,vZ,2,sleep=2)
wodma(sWOA)
if OPT.get('dry','0')=='1':
    C('walk once through the closing code with no lane active: its instructions are then cached when they matter')
    E('s_mov_b64 exec, 0\n s_branch L_B_FIN')
    LBL('L_B_DRYD')
    E('s_mov_b64 exec, -1')
E('s_waitcnt vmcnt(0)')
stamp('B',9,'out-proj B done, woA in'); echo_mark('b9')
E('s_barrier'); echo_mark('aend'); E('s_branch L_B_GEMM')
LBL('L_B_FIN')
E('s_nop 9')
for q in range(4): E(f'ds_write_b128 v164, {vr(PA_+16+4*q,4)} offset:{1024*q}')
E('s_waitcnt lgkmcnt(0)\n s_cbranch_execz L_B_NBAR\n s_barrier')
LBL('L_B_NBAR')
for q in range(4): E(f'ds_read_b128 {vr(PB_+4*q,4)}, v165 offset:{1024*q}')
for q in range(4):
    E(f's_waitcnt lgkmcnt({3-q})')
    for r in range(4): E(f'v_add_f32 v{PA_+4*q+r}, v{PA_+4*q+r}, v{PB_+4*q+r}')
for r in range(8): cvt(PA_+r,PA_+2*r,PA_+2*r+1)
E('s_nop 1')
for gq in range(2): E(f'v_permlane32_swap_b32 v{PA_+4*gq}, v{PA_+4*gq+2}\n v_permlane32_swap_b32 v{PA_+4*gq+1}, v{PA_+4*gq+3}')
if OPT.get('dry','0')=='1': E('s_cbranch_execz L_B_DRYD')
for gq in range(2): E(f'buffer_store_dwordx4 {vr(PA_+4*gq,4)}, v167, {sr(sOUT)}, s{sOut} offen offset:{32*gq} '+OPT.get('ost','').replace('+',' '))
if DIAG: E('s_waitcnt vmcnt(0)')
stamp('B',11,'out stored'); echo_end()
stamp_flush(12)
E('s_endpgm')
L.extend(RETRY)

LBL('L_A')
AIDX=8; AKA=9; AVA=10; AQ0=12; AQ1=16; AK=20; AV=28; SA=44; SB=60; OA=76; OB=92; XA=108; WA=160; AF=112
L_PG=L_PART+4096
sStr=sT+10; sRing=sT+7
E(f'v_and_b32 v5, 15, v0\n v_lshlrev_b32 v6, 4, v0\n s_and_b32 s{sT+9}, s{sHg}, 3\n s_cmp_lt_u32 s{sWave}, 4\n s_cbranch_scc0 L_A_KV')
C('---- waves 0..3 : wave m streams 64 columns of matrix m (wq | B q | B k | B v) through its own 8 x 2KB ring')
E(f's_cmp_eq_u32 s{sWave}, 0\n s_cselect_b32 s{sWB}, s6, s16\n s_cselect_b32 s{sWB+1}, s7, s17\n s_mov_b32 s{sWB+2}, {512*3072}\n s_cselect_b32 s{sWB+2}, {512*1024}, s{sWB+2}\n s_mov_b32 s{sWB+3}, 0x20000')
E(f's_movk_i32 s{sStr}, 3072\n s_cselect_b32 s{sStr}, 0x400, s{sStr}\n s_max_u32 s{sT+1}, s{sWave}, 1\n s_sub_u32 s{sT+1}, s{sT+1}, 1\n s_lshl_b32 s{sT+1}, s{sT+1}, 10\n s_lshl_b32 s{sT+2}, s{sHg}, 7\n s_add_u32 s{sT+1}, s{sT+1}, s{sT+2}')
dma128_voff(162,2,3,f's{sStr}',f's{sT+1}')
mkrot()
E(f's_lshl_b32 s{sStr}, s{sStr}, 3\n s_lshl_b32 s{sRing}, s{sWave}, 14')
E(f's_sub_u32 s{sT+1}, s{sStr}, 1024\n v_add_u32 v163, s{sT+1}, v162\n s_lshl_b32 s{sStr}, s{sStr}, 1')
def wdma_parts(st):
    p0=f's_add_u32 m0, s{sRing}, {(st%8)*2048}\n'
    if st%4==0: p0+=f's_add_u32 s{sT+3}, s{sRot}, {st//4}\n s_and_b32 s{sT+3}, s{sT+3}, 7\n s_lshl_b32 s{sT+3}, s{sT+3}, 2\n s_mul_i32 s{sT+3}, s{sT+3}, s{sStr}'
    else: p0+=f's_add_u32 s{sT+3}, s{sT+3}, s{sStr}'
    VQ.extend([f'w{st}']*2)
    return [p0, f'buffer_load_dwordx4 v162, {sr(sWB)}, s{sT+3} offen lds', f'buffer_load_dwordx4 v163, {sr(sWB)}, s{sT+3} offen offset:1024 lds']
def wdma(st):
    for p in wdma_parts(st): E(p)
if OPT.get('p0','2')!='0': E(f's_cmp_eq_u32 s{sWave}, 0\n s_cbranch_scc0 L_A_NP0\n s_setprio {OPT.get("p0","3")}\nL_A_NP0:')
NW0=int(OPT.get('nw0','8'))
VQ.clear()
for st in range(NW0): wdma(st)
E('s_branch L_A_NOKV')
LBL('L_A_KV')
E(f's_setprio 3\n s_load_dword s{sTag}, s[26:27], {WS_EPOCH}')
C('---- kvA: this WG makes 16 positions (hg&3) of K (hg<4) or V, and their gate ; wave 4+u sums k in [128u,128u+128)')
E(f's_cmp_lt_u32 s{sHg}, 4\n s_cselect_b32 s{sWKV}, s8, s10\n s_cselect_b32 s{sWKV+1}, s9, s11\n s_mov_b32 s{sWKV+2}, 16384\n s_mov_b32 s{sWKV+3}, 0x20000\n s_and_b32 s{sT+3}, s{sWave}, 3')
E(f's_lshl_b32 s{sT+1}, s{sPb}, 16\n s_lshl_b32 s{sT+2}, s{sT+9}, 14\n s_add_u32 s{sT+1}, s{sT+1}, s{sT+2}\n s_lshl_b32 s{sT+2}, s{sT+3}, 8\n s_add_u32 s{sT+1}, s{sT+1}, s{sT+2}')
E('v_lshlrev_b32 v3, 10, v5\n v_and_b32 v4, 48, v0\n v_add_u32 v3, v3, v4')
for s_ in range(4): E(f'buffer_load_dwordx4 {vr(116+4*s_,4)}, v3, {sr(sX)}, s{sT+1} offen offset:{64*s_}')
WKD=OPT.get('wkd','0')=='1'
if MAP=='b' and WKD:
    E(f's_cmp_lt_u32 s{sWave}, 6\n s_cbranch_scc0 L_A_NT2\n s_cmp_eq_u32 s{sWave}, 4\n s_cselect_b32 s{sG}, s8, s10\n s_cselect_b32 s{sG+1}, s9, s11\n s_mov_b32 s{sG+2}, 16384\n s_mov_b32 s{sG+3}, 0x20000')
    E(f's_lshr_b32 s{sT+4}, s2, 3\n s_lshl_b32 s{sT+4}, s{sT+4}, 9\n v_lshlrev_b32 v2, 7, v0\n s_mov_b64 exec, 15\n buffer_load_dword v167, v2, {sr(sG)}, s{sT+4} offen\n s_mov_b64 exec, -1')
    LBL('L_A_NT2')
if MAP=='c' and OPT.get('wkt','1')=='1':
    E(f's_cmp_eq_u32 s{sWave}, 4\n s_cbranch_scc0 L_A_NT2\n s_lshr_b32 s{sT+4}, s2, 3\n s_lshl_b32 s{sT+4}, s{sT+4}, 9\n v_lshlrev_b32 v2, 7, v0\n s_mov_b64 exec, 15\n buffer_load_dword v167, v2, {sr(sWKV)}, s{sT+4} offen\n s_mov_b64 exec, -1')
    LBL('L_A_NT2')
srd(sG,20,1024)
for s_ in range(4): E(f'buffer_load_dwordx4 {vr(132+4*s_,4)}, v4, {sr(sG)}, s{sT+2} offen offset:{64*s_}')
def wkdma():
    E(f's_lshl_b32 s{sT}, s{sT+3}, 12\n s_add_u32 m0, s{sT}, {L_ST}\n s_nop 0')
    for i in range(4): E(f'buffer_load_dwordx4 v6, {sr(sWKV)}, s{sT} offen offset:{1024*i} lds')
if not WKD: wkdma()
LBL('L_A_NOKV')
C('---- address of this wave\'s o slot, constants')
sOA=sT+8
E(f's_and_b32 s{sOA}, s{sWave}, 1\n s_lshl_b32 s{sT+1}, s{sPb}, 1\n s_add_u32 s{sOA}, s{sOA}, s{sT+1}\n s_lshl_b32 s{sOA}, s{sOA}, 5')
E(f's_lshl_b32 s{sT+1}, s{sHg}, 2\n s_add_u32 s{sOA}, s{sOA}, s{sT+1}\n s_and_b32 s{sT+1}, s{sWave}, 2\n s_add_u32 s{sOA}, s{sOA}, s{sT+1}\n s_lshr_b32 s{sT+1}, s{sWave}, 2\n s_add_u32 s{sOA}, s{sOA}, s{sT+1}\n s_lshl_b32 s{sOA}, s{sOA}, 10\n s_add_u32 s{sOA}, s{sOA}, {hex(WS_OA)}')
E(f'v_mov_b32 v{vZ}, {L_ST}\n v_lshlrev_b32 v11, 2, v0')
traddr128(WA,2,3,3,'0'); E(f's_lshl_b32 s{sT+1}, s{sWave}, 14\n v_add_u32 v{WA}, s{sT+1}, v{WA}\n v_xor_b32 v{WA+1}, 64, v{WA}')
E(f'v_and_b32 v2, 31, v0\n v_bfe_u32 v3, v0, 1, 3\n v_lshrrev_b32 v7, 5, v0\n v_xor_b32 v3, v3, v7\n v_lshlrev_b32 v{XA}, 7, v2\n v_lshl_add_u32 v{XA}, v3, 4, v{XA}\n v_add_u32 v{XA}, 0x10000, v{XA}')
for s_ in range(1,4): E(f'v_xor_b32 v{XA+s_}, {s_<<5}, v{XA}')
for r in range(32): E(f'v_mov_b32 v{OA+r}, 0')
set_vpad(list(range(AV,AV+16)),2)
E(f'v_mov_b32 v{AIDX}, 0xdddddddd')
E(f's_lshr_b32 s{sT+1}, s{sWave}, 2\n s_lshl_b32 s{sT+1}, s{sT+1}, 11\n v_add_u32 v{AKA}, s{sT+1}, v6')
E(f'v_lshlrev_b32 v7, 8, v7\n v_lshl_add_u32 v7, v5, 4, v7\n v_add_u32 v{AVA}, s{sT+1}, v7')
E(f's_lshl_b32 s{sT+6}, s{sHg}, 5\n s_add_u32 s{sT+6}, s{sT+6}, s{sPb}\n s_lshl_b32 s{sT+6}, s{sT+6}, 7\n s_lshl_b32 s{sT+1}, s{sWave}, 2\n s_add_u32 s{sT+6}, s{sT+6}, s{sT+1}\n s_add_u32 s{sT+6}, s{sT+6}, {hex(WS_FKVB)}')
E(f's_cmp_lt_u32 s{sWave}, 4\n s_cbranch_scc1 L_A_GQ\n s_waitcnt lgkmcnt(0)')
mktag()
if WKD: E(f's_waitcnt vmcnt({OPT.get("wkw","7")})'); wkdma()
E(f'v_lshrrev_b32 v4, 4, v0\n v_lshlrev_b32 v4, 8, v4\n v_lshl_add_u32 v4, v5, 3, v4\n s_add_u32 s{sT}, s{sT}, {L_ST}\n v_add_u32 v4, s{sT}, v4')
E(f's_lshl_b32 s{sT+1}, s{sT+3}, 10\n s_add_u32 s{sT+1}, s{sT+1}, {L_PART}\n v_add_u32 v2, s{sT+1}, v6\n s_lshl_b32 s{sT+1}, s{sT+3}, 8\n s_add_u32 s{sT+1}, s{sT+1}, {L_PG}\n v_add_u32 v3, s{sT+1}, v11')
E('s_waitcnt vmcnt(0)')
for s_ in range(4): E(f'ds_read_b64_tr_b16 {vr(44+4*s_,2)}, v4 offset:{1024*s_}\n ds_read_b64_tr_b16 {vr(46+4*s_,2)}, v4 offset:{1024*s_+128}')
for s_ in range(4): E(f'v_mfma_f32_16x16x32_bf16 v[64:67], {vr(132+4*s_,4)}, {vr(116+4*s_,4)}, {"0" if s_==0 else "v[64:67]"}')
E(f's_cmp_lt_u32 s{sHg}, 4\n s_waitcnt lgkmcnt(0)\n s_cbranch_scc0 L_A_VJOB')
for s_ in range(4): E(f'v_mfma_f32_16x16x32_bf16 v[60:63], {vr(44+4*s_,4)}, {vr(116+4*s_,4)}, {"0" if s_==0 else "v[60:63]"}')
E('s_branch L_A_KVJ')
LBL('L_A_VJOB')
for s_ in range(4): E(f'v_mfma_f32_16x16x32_bf16 v[60:63], {vr(116+4*s_,4)}, {vr(44+4*s_,4)}, {"0" if s_==0 else "v[60:63]"}')
LBL('L_A_KVJ')
E('s_nop 0\n ds_write_b32 v3, v64\n s_nop 5\n ds_write_b128 v2, v[60:63]')
stamp('A',2,'kvA partial')
E('s_waitcnt lgkmcnt(0)')
tag_set(T_PT,sT+3,2)
E(f's_cmp_eq_u32 s{sWave}, 7\n s_cbranch_scc0 L_A_BS')
C('---- wave 7: reduce the four partial tiles, store, flag')
tag_wait(T_PT,4,2)
E(f'v_add_u32 v3, {L_PART}, v6\n v_add_u32 v4, {L_PG}, v11')
for i in range(4): E(f'ds_read_b128 {vr(116+4*i,4)}, v3 offset:{1024*i}')
for i in range(2): E(f'ds_read2st64_b32 {vr(148+2*i,2)}, v4 offset0:{2*i} offset1:{2*i+1}')
E(f's_lshl_b32 s{sT+3}, s{sPb}, 1\n s_lshr_b32 s{sT+4}, s{sT+9}, 1\n s_add_u32 s{sT+3}, s{sT+3}, s{sT+4}\n s_lshl_b32 s{sT+3}, s{sT+3}, 11\n s_add_u32 s{sT+3}, s{sT+3}, {hex(WS_KVA)}\n s_and_b32 s{sT+4}, s{sT+9}, 1')
E(f's_cmp_lt_u32 s{sHg}, 4\n s_cselect_b32 s{sT+5}, 9, 3\n s_cselect_b32 s{sT+7}, 3, 8\n s_cselect_b32 s{sT+1}, 8, 9\n s_cselect_b32 s{sT}, 0, 0x400')
E(f's_lshl_b32 s{sT+4}, s{sT+4}, s{sT+1}\n s_add_u32 s{sT+3}, s{sT+3}, s{sT+4}\n s_add_u32 s{sT+3}, s{sT+3}, s{sT}')
E(f'v_bfe_u32 v3, v0, 4, 1\n v_lshrrev_b32 v4, 5, v0\n v_lshlrev_b32 v5, 4, v5\n v_lshl_add_u32 v5, v3, s{sT+5}, v5\n v_lshl_add_u32 v5, v4, s{sT+7}, v5')
FPLS=int(OPT.get('fpl','2'))
E(f's_lshl_b32 s{sT+7}, s{sPb}, 3\n s_add_u32 s{sT+7}, s{sT+7}, s{sHg}\n s_and_b32 s{sT+1}, s{sT+7}, {(1<<FPLS)-1}\n s_lshr_b32 s{sT+7}, s{sT+7}, {FPLS}\n s_lshl_b32 s{sT+7}, s{sT+7}, 7\n s_lshl_b32 s{sT+1}, s{sT+1}, 2\n s_add_u32 s{sT+7}, s{sT+7}, s{sT+1}\n s_add_u32 s{sT+7}, s{sT+7}, {hex(WS_FKVA)}')
E('s_waitcnt lgkmcnt(2)')
for st_ in (8,4):
    for r in range(st_): E(f'v_add_f32 v{116+r}, v{116+r}, v{116+st_+r}')
cvt(116,116,117); cvt(117,118,119)
E(f'buffer_store_dwordx2 v[116:117], v5, {sr(sWS)}, s{sT+3} offen sc1')
E(f's_cmp_lt_u32 s{sHg}, 4\n s_waitcnt lgkmcnt(0)\n s_cbranch_scc0 L_A_SF')
for st_ in (2,1):
    for r in range(st_): E(f'v_add_f32 v{148+r}, v{148+r}, v{148+st_+r}')
E(f's_mov_b32 s{sT}, {hex(f2u(-math.log2(math.e)))}\n v_mul_f32 v148, s{sT}, v148\n v_exp_f32 v148, v148')
E(f's_lshl_b32 s{sT}, s{sPb}, 2\n s_add_u32 s{sT}, s{sT}, s{sT+9}\n v_add_f32 v148, 1.0, v148\n v_rcp_f32 v148, v148\n s_lshl_b32 s{sT}, s{sT}, 6\n s_add_u32 s{sT}, s{sT}, {hex(WS_G)}')
E(f's_mov_b64 exec, 0xffff\n buffer_store_dword v148, v11, {sr(sWS)}, s{sT} offen sc1\n s_mov_b64 exec, -1')
LBL('L_A_SF')
E('s_waitcnt vmcnt(0)')
flag_store(sT+7,2)
stamp('A',3,'kvA flag sent')
LBL('L_A_BS')
E(f's_cmp_eq_u32 s{sWave}, 6\n s_cbranch_scc0 L_A_B8')
C('---- wave 6: wait for every K/V piece, fetch this WG\'s share into L2, tell the projection waves')
E(f'v_lshlrev_b32 v16, 7, v0\n v_lshrrev_b32 v17, {FPLS-2}, v0\n v_lshlrev_b32 v17, 7, v17\n v_and_b32 v18, {(1<<(FPLS-2))-1}, v0\n v_lshl_add_u32 v17, v18, 4, v17\n v_add_u32 v17, {hex(WS_FKVA)}, v17')
E(f'v_mov_b32 v2, s{sTag}\n ds_write_b32 v{vZ}, v2 offset:{T_TAG-L_ST}')
tag_wait(T_PT,4,2)
tag_wait(T_PL,1,2,sleep=2)
C('lanes whose four flags are in drop out of the next look')
E(f's_mov_b32 s{sCnt}, {SPIN_LIMIT}')
LBL('L_A_PL')
E(f'buffer_load_dwordx4 v[12:15], v17, {sr(sWS)}, 0 offen sc1\n s_waitcnt vmcnt(0)')
for i in range(4): E(f'v_xor_b32 v{12+i}, s{sTag}, v{12+i}')
E(f'v_or3_b32 v12, v12, v13, v14\n v_or_b32 v12, v12, v15\n v_cmp_ne_u32 vcc, 0, v12\n s_cbranch_vccz L_A_PLD\n s_sub_u32 s{sCnt}, s{sCnt}, 1\n s_cbranch_scc1 L_A_PLD\n s_mov_b64 exec, vcc\n s_sleep {OPT.get("psl","16")}\n s_branch L_A_PL')
LBL('L_A_PLD')
E('s_mov_b64 exec, -1')
E(f's_lshr_b32 s{sT+5}, s2, 3\n s_lshl_b32 s{sT+5}, s{sT+5}, 12\n s_add_u32 s{sT+5}, s{sT+5}, {hex(WS_KVA)}')
E(f's_mov_b32 exec_hi, 0\n buffer_load_dword v117, v16, {sr(sWS)}, s{sT+5} offen sc1\n s_mov_b64 exec, -1')
tag_set(T_FL,None,2)
stamp('A',3,'kvA flag sent')
E(f's_lshr_b32 s{sT+5}, s2, 3\n s_and_b32 s{sT+5}, s{sT+5}, 3\n s_lshl_b32 s{sT+5}, s{sT+5}, 14\n s_add_u32 s{sT+5}, s{sT+5}, {hex(WS_KVA)}')
for q in range(4):
    E(f's_mov_b32 m0, {L_ST+4096*q}\n s_add_u32 s{sT+4}, s{sT+5}, {4096*q}')
    for i in range(4): E(f'buffer_load_dwordx4 v6, {sr(sWS)}, s{sT+4} offen offset:{1024*i} sc1 lds')
E('s_waitcnt vmcnt(0)')
tag_set(T_K0,None,2)
stamp('A',7,'G1')
E(f's_cmp_eq_u32 s2, 0\n s_cbranch_scc0 L_A_B8\n s_mov_b32 s{sT}, 0')
flag_store(sT,2)
E('s_branch L_A_B8')
LBL('L_A_GQ')
PAC=[44,60,128,144]; PFR=[12,112,92]
def areads_l(st):
    f=PFR[st%3]; so=(st%8)*2048; o=[]
    for i in range(2): o+= [f'ds_read_b64_tr_b16 {vr(f+4*i,2)}, v{WA+i} offset:{so}', f'ds_read_b64_tr_b16 {vr(f+4*i+2,2)}, v{WA+i} offset:{so+512}']
    for t in range(2): o.append(f'ds_read_b128 {vr(f+8+4*t,4)}, v{XA+st%4} offset:{(st//4)*8192+4096*t}')
    return o
def areads(st):
    for p in areads_l(st): E(p)
def kv_parts(p):
    VQ.extend(['kv']*2)
    return [f's_add_u32 m0, s{sRing}, {p*2048}\n s_add_u32 s{sT+4}, s{sT+5}, {p*2048}']+[f'buffer_load_dwordx4 v6, {sr(sWS)}, s{sT+4} offen offset:{1024*n} sc1 lds' for n in range(2)]
def kvpiece(p):
    for q in kv_parts(p): E(q)
for st in range(NW0,8): wdma(st)
E(f's_sub_u32 s{sT+4}, s{sWave}, 1\n s_cmp_eq_u32 s{sWave}, 1\n s_cselect_b32 s{sT+4}, 3, s{sT+4}\n s_lshr_b32 s{sT+5}, s2, 3\n s_add_u32 s{sT+5}, s{sT+5}, s{sT+4}\n s_and_b32 s{sT+5}, s{sT+5}, 3\n s_lshl_b32 s{sT+5}, s{sT+5}, 14\n s_add_u32 s{sT+5}, s{sT+5}, {hex(WS_KVA)}')
tag_wait(T_X0,4,2) if XD else tag_wait(T_X,1,2)
stamp('A',7,'G1')
vwait('w0'); areads(0); vwait('w1'); areads(1)
VQ0=list(VQ)
PLK=int(OPT.get('plk','15'))
E(f's_cmp_eq_u32 s{sWave}, 3\n s_cbranch_scc1 L_A_GV')
def gstep(var,st,kv):
    f=PFR[st%3]
    def mm(i,t):
        d=PAC[2*i+t]; c='0' if st==0 else None
        if var==0: mfma(d,f+4*i,f+8+4*t,c)
        else: mfma(d,f+8+4*t,f+4*i,c)
    vwait(f'w{st+2}',f' lgkmcnt({6 if st<31 else 0})')
    rd=areads_l(st+2) if st+2<32 else []
    dm=wdma_parts(st+8) if st+8<32 else (kv_parts(st%8) if kv else [])
    gaps=[rd[0:2]+dm[0:1], rd[2:4]+dm[1:2], rd[4:6], dm[2:3]]
    if st>=30: gaps=[[f'v_mov_b32 v{OB+8*(st-30)+2*q+r}, 0' for r in range(2)]+gaps[q] for q in range(4)]
    for q,(i,t) in enumerate(((0,0),(0,1),(1,0),(1,1)) if st<31 else ((1,0),(1,1),(0,0),(0,1))):
        if not (OPT.get('halfm') and q&1 and 0<st<31): mm(i,t)
        for p in gaps[q]: E(p)
for var in (0,1):
    if var: LBL('L_A_GV')
    VQ[:]=VQ0
    for st in range(24):
        if OPT.get('hold') and st==0:
            E(f's_cmp_eq_u32 s{sWave}, 0\n s_cbranch_scc1 L_A_NH{var}'); tag_wait(T_H,1,2,sleep=2); LBL(f'L_A_NH{var}')
        if OPT.get('hold') and var==0 and st==int(OPT.get('hold')):
            E(f's_cmp_eq_u32 s{sWave}, 0\n s_cbranch_scc0 L_A_NH2'); tag_set(T_H,None,2); E('s_waitcnt lgkmcnt(0)'); LBL('L_A_NH2')
        if st==2: E('s_waitcnt lgkmcnt(0)'); tag_wait(T_X,4,2)
        if st==14: E('s_waitcnt lgkmcnt(0)'); tag_wait(T_X+16,4,2)
        if st==PLK and var==1: tag_set(T_PL,None,2); E('s_waitcnt lgkmcnt(0)')
        gstep(var,st,False)
    stamp('A',2,'step 24'); cstamp('A',10,'s24')
    if var==0: E(f's_cmp_eq_u32 s{sWave}, 0\n s_cbranch_scc1 L_A_G0')
    tag_wait(T_FL,1,2,once=f'L_A_GK{var}')
    if var==0: LBL('L_A_G0')
    V1=list(VQ)
    for st in range(24,32): gstep(var,st,False)
    if var==0: E(f's_cmp_eq_u32 s{sWave}, 0\n s_cbranch_scc1 L_A_GE0')
    tag_wait(T_FL,1,2)
    for p in range(8): kvpiece(p)
    E(f's_branch L_A_GE{var}')
    LBL(f'L_A_GK{var}')
    VQ[:]=V1
    for st in range(24,32): gstep(var,st,True)
    LBL(f'L_A_GE{var}')
    stamp('A',1,'proj loop done'); cstamp('A',11,'pl')
    if OPT.get('ep','1')=='1': E('s_setprio 3')
    E(f's_lshl_b32 s{sT+4}, s{sHg}, 8\n s_lshl_b32 s{sT+5}, s{sPb}, 1\n s_add_u32 s{sT+4}, s{sT+4}, s{sT+5}\n s_lshl_b32 s{sT+4}, s{sT+4}, 11\n s_add_u32 s{sT+4}, s{sT+4}, {hex(WS_KVB)}')
    if var==0:
        E(f's_cmp_eq_u32 s{sWave}, 2\n s_cbranch_scc1 L_A_EK')
        C('q (A / B): scale, pack, hand over through LDS')
        E(f's_cmp_eq_u32 s{sWave}, 0\n s_cbranch_scc1 L_A_Q0')
        tag_wait(T_G,1,2)
        LBL('L_A_Q0')
        E(f's_lshl_b32 s{sT+1}, s{sWave}, 13\n s_add_u32 s{sT+1}, s{sT+1}, {L_QA}\n v_add_u32 v3, s{sT+1}, v6\n s_mov_b32 s{sT+2}, {hex(CSCALE)}\n s_mov_b32 s{sT+3}, {hex(CSCALE)}\n s_lshl_b32 s{sT+1}, s{sWave}, 2\n s_add_u32 s{sT+1}, s{sT+1}, {T_Q1}\n v_mov_b32 v4, s{sT+1}\n v_mov_b32 v5, 1')
        for i in (1,0):
            for t in range(2):
                d=PAC[2*i+t]
                for r in range(0,16,2): E(f'v_pk_mul_f32 {vr(d+r,2)}, {vr(d+r,2)}, {sr(sT+2,2)}')
                for r in range(8): cvt(d+r,d+2*r,d+2*r+1)
                for hh in range(2): E(f'ds_write_b128 v3, {vr(d+4*hh,4)} offset:{(2*i+hh)*2048+1024*t}')
            if i==1: E(f's_mov_b64 exec, 1\n ds_write_b32 v4, v5\n s_mov_b64 exec, -1')
        E('s_waitcnt vmcnt(0) lgkmcnt(0)')
        tag_set(T_G,sWave,2)
        E('s_branch L_A_B8')
        LBL('L_A_EK')
        E('s_waitcnt vmcnt(0)')
        tag_set(T_G,sWave,2)
        for i in range(2):
            for t in range(2):
                d=PAC[2*i+t]
                for r in range(8): cvt(d+r,d+2*r,d+2*r+1)
                for hh in range(2): E(f's_add_u32 s{sT+5}, s{sT+4}, {(2*i+hh)*131072}\n buffer_store_dwordx4 {vr(d+4*hh,4)}, v6, {sr(sWS)}, s{sT+5} offen offset:{2048*t} sc1')
        E('s_branch L_A_B8')
    else:
        E('s_waitcnt vmcnt(0)')
        tag_set(T_G,sWave,2)
        E('v_bfe_u32 v3, v0, 4, 1\n v_lshl_add_u32 v3, v3, 17, v7')
        for i in range(2):
            for t in range(2):
                d=PAC[2*i+t]
                for r in range(8): cvt(d+r,d+2*r,d+2*r+1)
                E('s_nop 1')
                for gq in range(2): E(f'v_permlane32_swap_b32 v{d+4*gq}, v{d+4*gq+2}\n v_permlane32_swap_b32 v{d+4*gq+1}, v{d+4*gq+3}')
                E(f's_add_u32 s{sT+5}, s{sT+4}, {i*2*131072}')
                for gq in range(2): E(f'buffer_store_dwordx4 {vr(d+4*gq,4)}, v3, {sr(sWS)}, s{sT+5} offen offset:{2048*t+1024+512*gq} sc1')
LBL('L_A_B8')
E(f's_cmp_lt_u32 s{sWave}, 4\n s_cbranch_scc1 L_A_KP\n s_setprio 0')
LBL('L_A_KP')
E(f's_and_b32 s{sT+1}, s{sWave}, 2\n s_lshr_b32 s{sT+2}, s{sWave}, 2\n s_add_u32 s{sT+1}, s{sT+1}, s{sT+2}\n s_lshl_b32 s{sT+1}, s{sT+1}, 11\n s_and_b32 s{sT+2}, s{sWave}, 1\n s_lshl_b32 s{sT+2}, s{sT+2}, 10\n s_add_u32 s{sT+1}, s{sT+1}, s{sT+2}\n s_add_u32 s{sT+1}, s{sT+1}, {L_QA}\n v_add_u32 v2, s{sT+1}, v6\n v_xor_b32 v3, 0x800, v2')
AK0=120; AV0=121; AEX=122; AG=126
E(f'v_add_u32 v{AK0}, {L_ST}, v{AKA}\n v_add_u32 v{AV0}, {L_ST}, v{AVA}')
E(f's_and_b32 s{sT+2}, s{sWave}, 3\n s_mul_i32 s{sT+1}, s{sT+2}, 4608\n s_add_u32 s{sT+1}, s{sT+1}, {L_EX}\n v_add_u32 v{AEX}, s{sT+1}, v6\n v_add_u32 v{AEX+1}, s{sT+1}, v11')
E(f's_lshl_b32 s{sT+2}, s{sT+2}, 2\n s_add_u32 s{sT+2}, s{sT+2}, {C_PR}\n v_mov_b32 v{AEX+2}, s{sT+2}')
E(f's_and_b32 s{sT+1}, s{sWave}, 1\n s_lshl_b32 s{sT+2}, s{sPb}, 1\n s_add_u32 s{sT+1}, s{sT+1}, s{sT+2}\n s_lshl_b32 s{sT+1}, s{sT+1}, 7\n s_add_u32 s{sT+1}, s{sT+1}, {hex(WS_G)}\n v_and_b32 v127, 0x7c, v11')
tag_wait(T_K0,1,4,sleep=int(OPT.get('asl','2')))
E(f'buffer_load_dword v{AG}, v127, {sr(sWS)}, s{sT+1} offen sc1')
tag_get(4)
def kvoff(j):
    return (j%4)*4096+(0 if j<4 else KVPOS[j//4]-(65536 if j>=16 else 0))
def ldk(j): E(f'ds_read_b128 {vr(AK+4*(j&1),4)}, v{AK0 if j<4 else AKA} offset:{kvoff(j)}')
def ldv(j): E(f's_mov_b64 exec, {sr(sVM,2)}\n ds_read_b128 {vr(AV+8*(j&1),4)}, v{AV0 if j<4 else AVA} offset:{kvoff(j)+1024}\n ds_read_b128 {vr(AV+8*(j&1)+4,4)}, v{AV0 if j<4 else AVA} offset:{kvoff(j)+1536}\n s_mov_b64 exec, -1')
ldk(0); ldv(0); ldk(1)
E(f's_bitcmp1_b32 s{sWave}, 1\n s_cbranch_scc0 L_A_WL')
tag_wait(T_Q1,1,4,sleep=int(OPT.get('asl2','1')))
E('s_branch L_A_WD')
LBL('L_A_WL')
tag_wait(T_G,1,4,sleep=int(OPT.get('asl2','1')))
LBL('L_A_WD')
stamp('A',4,'BQ'); cstamp('A',8,'BQ')
E(f'ds_read_b128 {vr(AQ0,4)}, v2\n ds_read_b128 {vr(AQ1,4)}, v3')
if PRIO in ('step','step4'): E('s_setprio 2')
E('s_waitcnt lgkmcnt(0)'); mfma(SA,AK,AQ0,'0')
E('s_nop 11')
def pair_iter(j,ldk_,ldv_,first=False,last=0,extra=0):
    kc=AK+4*(j&1); kn=AK+4*((j+1)&1); vc=AV+8*(j&1); vp=AV+8*((j+1)&1)
    vexp(SA); vexp(SA+1)
    if not first: smf(OB,vp+4,SB+8,AIDX)
    for r in range(2,5): vexp(SA+r)
    mfma(SB,kc,AQ1,'0')
    for r in range(5,10): vexp(SA+r)
    E(f's_waitcnt lgkmcnt({(1 if last<2 else 0)+extra})')
    vexp(SA+10); smf(OA,vc,SA,AIDX)
    for r in range(11,16): vexp(SA+r)
    vexp(SB); vexp(SB+1); smf(OA,vc+4,SA+8,AIDX)
    if last<2: ldv_()
    for r in range(2,5): vexp(SB+r)
    if last<2:
        E('s_waitcnt lgkmcnt(2)'); mfma(SA,kn,AQ0,'0')
    if last<1: ldk_()
    for r in range(5,11): vexp(SB+r)
    smf(OB,vc,SB,AIDX)
    for r in range(11,16): vexp(SB+r)
def aflag(force,init=False):
    sk=uid('fl')
    E(f's_cmp_eq_u32 s{sT+5}, 0\n s_cbranch_scc0 {sk}')
    if not force: E(f's_getreg_b32 s{sT}, hwreg(HW_REG_IB_STS, 0, 4)\n s_cmp_eq_u32 s{sT}, 0\n s_cbranch_scc0 {sk}')
    E(f's_waitcnt vmcnt(0)\n s_mov_b32 s{sT+5}, 1'); flag_store(sT+6,2); LBL(sk)
if ROLL:
    AKN=120; AVN=121; sC=sT+4
    def rk(j):
        a_=AKA if j<4 else AKN
        return lambda: E(f'ds_read_b128 {vr(AK+4*(j&1),4)}, v{a_} offset:{(j%4)*4096}')
    def rv(j):
        a_=AVA if j<4 else AVN
        return lambda: E(f's_mov_b64 exec, {sr(sVM,2)}\n ds_read_b128 {vr(AV+8*(j&1),4)}, v{a_} offset:{(j%4)*4096+1024}\n ds_read_b128 {vr(AV+8*(j&1)+4,4)}, v{a_} offset:{(j%4)*4096+1536}\n s_mov_b64 exec, -1')
    for r in range(8,16): E(f'v_mov_b32 v{SB+r}, 0')
    E(f'v_add_u32 v{AKN}, 0x8000, v{AKA}\n v_add_u32 v{AVN}, 0x8000, v{AVA}\n v_add_u32 v{AKA}, 0x4000, v{AKA}\n v_add_u32 v{AVA}, 0x4000, v{AVA}\n s_mov_b32 s{sC}, 0\n s_mov_b32 s{sT+5}, 0')
    L.append('.p2align 6')
    LBL('L_A_LOOP')
    pair_iter(0,rk(2),rv(1)); pair_iter(1,rk(3),rv(2))
    E(f's_cmp_gt_u32 s{sC}, 6\n s_cbranch_scc1 L_A_LAST\n s_bitcmp1_b32 0x5f, s{sC}\n s_cbranch_scc1 L_A_RARE')
    LBL('L_A_RBACK')
    pair_iter(2,rk(4),rv(3)); pair_iter(3,rk(5),rv(4))
    E(f's_add_u32 s{sC}, s{sC}, 1\n s_mov_b32 s{sT+1}, 0x4000\n s_cmp_eq_u32 s{sC}, 2\n s_cselect_b32 s{sT+1}, {hex((-49152)&0xffffffff)}, s{sT+1}\n s_cmp_eq_u32 s{sC}, 3\n s_cselect_b32 s{sT+1}, {hex((-65536)&0xffffffff)}, s{sT+1}')
    E(f'v_mov_b32 v{AKA}, v{AKN}\n v_mov_b32 v{AVA}, v{AVN}\n v_add_u32 v{AKN}, s{sT+1}, v{AKN}\n v_add_u32 v{AVN}, s{sT+1}, v{AVN}\n s_branch L_A_LOOP')
    LBL('L_A_RARE')
    E(f's_waitcnt lgkmcnt(0)\n s_cmp_gt_u32 s{sC}, 3\n s_cbranch_scc1 L_A_R4')
    E(f's_cmp_eq_u32 s{sC}, 0\n s_cbranch_scc0 L_A_R1'); lds_spin(C_K1,None,4,vZ,2,sleep=0)
    LBL('L_A_R1')
    E(f's_cmp_eq_u32 s{sC}, 2\n s_cbranch_scc0 L_A_R2'); lds_spin(C_K2,None,4,vZ,2,sleep=1)
    LBL('L_A_R2')
    E(f's_cmp_eq_u32 s{sC}, 3\n s_cbranch_scc1 L_A_R3'); aflag(False); E('s_branch L_A_RBACK')
    LBL('L_A_R3'); aflag(True); E('s_branch L_A_RBACK')
    LBL('L_A_R4')
    E(f's_cmp_eq_u32 s{sC}, 4\n s_cbranch_scc0 L_A_R6'); lds_add(C_MID,1,vZ,2); E('s_waitcnt lgkmcnt(0)\n s_branch L_A_RBACK')
    LBL('L_A_R6'); lds_spin(C_MID,None,8,vZ,2,sleep=1); E('s_branch L_A_RBACK')
    LBL('L_A_LAST')
    pair_iter(2,None,rv(3),last=1); pair_iter(3,None,None,last=2)
else:
    E(f's_and_b32 s{sT+5}, s{sWave}, 6\n s_cmp_eq_u32 s{sT+5}, 2\n s_cselect_b32 s{sT+5}, 0, 1')
    for j in range(32):
        if j in (2,6,10): E('s_waitcnt lgkmcnt(0)'); tag_wait(T_G+4*{2:2,6:3,10:1}[j],1,2)
        if j in (1,2,3,5): aflag(j==5)
        PJ=[int(x) for x in OPT.get('pj','16,29').split(',')]
        if PRIO=='step' and j in PJ: E(f's_setprio {1 if j==PJ[0] else 0}')
        if PRIO=='step4' and j in (6,16): E(f's_setprio {1 if j==6 else 0}')
        if OPT.get('jst') and j in (2,4,8,16,24): E('s_waitcnt lgkmcnt(0)'); cstamp('A',{2:1,4:2,8:3,16:7,24:10}[j],f'J{j}')
        if j==14: E('s_waitcnt lgkmcnt(0)'); lds_spin(C_K2,None,0x404,vZ,2,sleep=1)
        if j==16: lds_add(C_MID,1,vZ,2)
        if j==28: E('s_waitcnt lgkmcnt(0)'); lds_spin(C_MID,None,8,vZ,2,sleep=1)
        def lv(j=j):
            if j==15: E(f'v_add_u32 v{AVA}, 0x10000, v{AVA}')
            ldv(j+1)
        def lk(j=j):
            if j==14: E(f'v_add_u32 v{AKA}, 0x10000, v{AKA}')
            ldk(j+2)
        if j==31:
            C('has the partner of this wave (same queries, other keys) already left its sums ?  if so they arrive during the last tile')
            E(f'ds_read_b32 v127, v{AEX+2} offset:16\n ds_read_b32 v125, v{vZ} offset:{C_LOC-L_ST}')
            for q in range(2): E(f'ds_read_b128 {vr(128+12*q,4)}, v{AEX} offset:{2304*q}\n ds_read_b128 {vr(132+12*q,4)}, v{AEX} offset:{2304*q+1024}\n ds_read_b32 v{136+12*q}, v{AEX+1} offset:{2304*q+2048}')
        pair_iter(j,lk,lv,first=(j==0),last=(2 if j==31 else 1 if j==30 else 0),extra=(1 if j==16 else 0))
E('s_nop 1'); smf(OB,AV+8+4,SB+8,AIDX)
stamp('A',5,'A loop done'); cstamp('A',9,'loop done')
C('---- the first wave of a pair to finish leaves both partial sums in LDS and ends ; the second one finishes both heads')
E(f'v_readfirstlane_b32 s{sT+1}, v127\n v_readfirstlane_b32 s{sT+9}, v125\n s_cmp_eq_u32 s{sT+1}, 1\n s_cbranch_scc1 L_A_LATE')
E(f'v_mov_b32 v2, 1\n s_mov_b64 exec, 1\n ds_add_rtn_u32 v3, v{AEX+2}, v2\n s_mov_b64 exec, -1\n s_waitcnt lgkmcnt(0)\n v_readfirstlane_b32 s{sT+1}, v3\n s_cmp_eq_u32 s{sT+1}, 0\n s_cbranch_scc0 L_A_TIE\n s_nop 3')
for q,O in enumerate((OA,OB)): E(f'ds_write_b128 v{AEX}, {vr(O,4)} offset:{2304*q}\n ds_write_b128 v{AEX}, {vr(O+4,4)} offset:{2304*q+1024}\n ds_write_b32 v{AEX+1}, v{O+8} offset:{2304*q+2048}')
E(f's_mov_b64 exec, 1\n ds_write_b32 v{AEX+2}, v2 offset:16\n s_mov_b64 exec, -1\n s_waitcnt lgkmcnt(0)')
if OPT.get('dry','0')=='1': E('s_mov_b64 exec, 0\n s_branch L_A_LATE')
else: E('s_branch L_A_STD')
LBL('L_A_TIE')
E(f's_mov_b32 s{sCnt}, {SPIN_LIMIT}')
LBL('L_A_TI2')
E(f'ds_read_b32 v127, v{AEX+2} offset:16')
for q in range(2): E(f'ds_read_b128 {vr(128+12*q,4)}, v{AEX} offset:{2304*q}\n ds_read_b128 {vr(132+12*q,4)}, v{AEX} offset:{2304*q+1024}\n ds_read_b32 v{136+12*q}, v{AEX+1} offset:{2304*q+2048}')
E(f's_waitcnt lgkmcnt(0)\n v_readfirstlane_b32 s{sT+1}, v127\n s_cmp_eq_u32 s{sT+1}, 1\n s_cbranch_scc1 L_A_LATE\n s_sub_u32 s{sCnt}, s{sCnt}, 1\n s_cbranch_scc0 L_A_TI2')
LBL('L_A_LATE')
for r in range(9): E(f'v_add_f32 v{OA+r}, v{OA+r}, v{140+r}')
E('s_waitcnt vmcnt(0)')
def setupA(): E(f's_mov_b32 s{sT+2}, {hex(WS_KVA)}\n s_mov_b32 s{sT+3}, 64')
for q,(O,Q_) in enumerate(((OA,AQ0),(OB,AQ1))):
    if q==1:
        for r in range(9): E(f'v_add_f32 v{OB+r}, v{OB+r}, v{128+r}')
    dst=152+4*q
    finalize(O,dst,2,f'L_FB_A{q}',f'L_FB_A{q}_BACK',126)
    if q==1: E(f's_xor_b32 s{sOA}, s{sOA}, 0x400')
    E(f's_cbranch_execz L_A_ST{q}\n s_cmp_eq_u32 s{sT+9}, 0\n s_cbranch_scc1 L_A_FAR{q}\n buffer_store_dwordx4 {vr(dst,4)}, v6, {sr(sWS)}, s{sOA} offen\n s_branch L_A_ST{q}')
    LBL(f'L_A_FAR{q}')
    E(f'buffer_store_dwordx4 {vr(dst,4)}, v6, {sr(sWS)}, s{sOA} offen sc1')
    LBL(f'L_A_ST{q}')
    fallback(f'L_FB_A{q}',f'L_FB_A{q}_BACK',Q_,O,SA,AK,AV,AIDX,3,6,7,None,setupA)
LBL('L_A_STD')
if DIAG: E('s_mov_b64 exec, -1')
stamp('A',6,'oA published')
stamp_flush(12,'A')
LBL('L_END')
E('s_endpgm')
L.append('L_CODE_END:')
L.extend(TAIL)
L.append('    s_endpgm\n.fill 1200, 4, 0xbf810000')

hdr=open('cdna_kernels/%s.s.ref'%NAME).read().split('; Override launch')[0]
txt=hdr
txt+=f'; @launch grid=(256,1,1) block=(768,1,1) lds={LDS_TOTAL}\n'
DOC="""
One workgroup per CU: WG = (64 positions pb, 4 heads hg); 8 "A" waves + 4 "B" waves, LDS 160 KB.
 head : waves 0-3 project q(A), q/k/v(B) (weights streamed by LDS-DMA through private rings, transposing LDS reads),
        waves 4-7 make this WG's 16-position piece of the shared K/V (and the gate), publish it, wait for all pieces.
 main : A waves - MQA over all 2048 keys (S^T = K Q^T, exp2 in place, P^T fed raw to a 2:4 sparse MFMA that picks the
        high halves = bf16 P; a row of ones in V^T gives the row sums).  B waves - window attention, then B out-projection.
 tail : o (already divided by the row sum and scaled by g or 1-g) is handed to the WGs of the same positions,
        B waves finish out = [g oA | (1-g) oB] [woA ; woB].
 softmax guard: exp2 runs on unshifted scores; every row's sum must lie in [2^-24, 2^60] and its numerators must be finite,
        otherwise that query tile is redone with the true row maximum (L_FB_*: max pass, then exp2(s - max)).
 hand-offs in d_ws carry a tag derived from the epoch word found at ws[0] (advanced once per launch), or overwrite a
        'not yet written' mark; all are write-through + acknowledged, except o between WGs that report the same XCC id.
"""
for l in DOC.strip('\n').split('\n'): txt+='; '+l+'\n'
for n in () if not DIAG and not OPT.get('consts') else ('WS_KVA','WS_KVB','WS_OA','WS_OB','WS_STAMP','NSTAMP'): txt+=f'; CONST {n} = {hex(globals()[n])}\n'
for r,i,n in STN: txt+=f'; STAMPNAME {r} {i} {n}\n'
txt+=f'''.amdgcn_target "amdgcn-amd-amdhsa--gfx950"
.text
.globl {NAME}_kernel
.p2align 8
.type {NAME}_kernel,@function
{NAME}_kernel:
'''+'\n'.join(L)+f'''
.section .rodata,"a"
.p2align 6
.amdhsa_kernel {NAME}_kernel
  .amdhsa_next_free_vgpr 168
  .amdhsa_next_free_sgpr 102
  .amdhsa_accum_offset 168
  .amdhsa_group_segment_fixed_size 0
  .amdhsa_kernarg_size 96
  .amdhsa_user_sgpr_count 2
  .amdhsa_user_sgpr_kernarg_segment_ptr 1
  .amdhsa_system_sgpr_workgroup_id_x 1
.end_amdhsa_kernel
'''
open(OUT,'w').write(txt)
print('wrote',OUT,len(L),'lines')
```

```python
import sys, math, struct
NAME='gated_mix__grouped_kv_mqa__sliding_block__prompt'
DIAG = '--diag' in sys.argv
OUT = [a for a in sys.argv[1:] if not a.startswith('--')]
OUT = OUT[0] if OUT else 'cdna_kernels/%s.s'%NAME
OPT=dict(a.lstrip('-').split('=') for a in sys.argv[1:] if a.startswith('--') and '=' in a)
MAP=OPT.get('map','b'); ROT=OPT.get('rot','full'); PRIO=OPT.get('prio','step'); FLAG_IT=int(OPT.get('flagit','1')); PK=int(OPT.get('pk','7')); FORCE_K=int(OPT.get('forcek','7')); SENTK=int(OPT.get('sentk','14')); DENSE=OPT.get('dense','0')=='1'; ROLL=OPT.get('roll','0')=='1'; WT=OPT.get('wtouch','0')=='1'; KVK=int(OPT.get('kvk','13'))
def f2u(f): return struct.unpack('<I',struct.pack('<f',f))[0]

WS_EPOCH=0x0
WS_FKVA=0x1000
WS_FKVB=0x4000
WS_FOB =0xC000
WS_FOA =0x14000
WS_G   =0x1C000
WS_KVA =0x20000
WS_QB  =0x40000
WS_KVB =0x240000
WS_OA  =0x640000
WS_OB  =0x840000
WS_STAMP=0xA40000
NSTAMP=16
L_WQ=0; L_X=65536; L_ST=131072; L_CTL=L_ST+30720
L_GW=L_CTL; L_G=L_CTL+1024; L_C=L_CTL+1024+256
C_X=L_C+0
C_Q=L_C+4
C_K0=L_C+8; C_K1=L_C+12; C_K2=L_C+16; C_BP=L_C+20; C_MID=L_C+24; C_WO=L_C+28; C_WD=L_C+32; C_QR=L_C+36; C_SN=L_C+40; C_LOC=L_C+44; T_PT=L_C+256; T_X=L_C+272; T_PL=L_C+304; T_FL=L_C+308; T_G=L_C+320; T_X0=L_C+336; T_K0=L_C+352; T_Q1=L_C+356; T_H=L_C+368; T_TAG=L_C+372; C_PR=L_C+384; T_PR=L_C+400
L_EX=L_ST
LDS_TOTAL=163840
SPIN_LIMIT=400000
CSCALE=f2u(0.25*math.log2(math.e))
NEGBIG=f2u(-1e9)
L_LO=f2u(2.0**-24); L_HI=f2u(2.0**60)

sX=28; sWQ=32; sWKV=36; sWB=40; sWOA=44; sWOB=48; sG=52; sOUT=56; sWS=60; sDBG=64
sWave=68; sPb=69; sHg=70; sTag=71
sT=72
sCnt=84; sB=85
sXcc=65
sVM=86
sST=88
vZ=1
L=[]
def E(s):
    for ln in s.split('\n'):
        if ln.strip(): L.append('    '+ln.strip())
def LBL(s): L.append(s+':')
def C(s): L.append('    ; '+s)
_uid=[0]
def uid(p):
    _uid[0]+=1; return f'{p}_{_uid[0]}'
def vr(a,n): return f'v[{a}:{a+n-1}]'
def sr(a,n=4): return f's[{a}:{a+n-1}]'
def srd(dst,ptr,nbytes):
    E(f's_mov_b32 s{dst}, s{ptr}\n s_mov_b32 s{dst+1}, s{ptr+1}\n s_mov_b32 s{dst+2}, {hex(nbytes)}\n s_mov_b32 s{dst+3}, 0x20000')
STN=[]
def stamp(role,i,name):
    if OPT.get('acc') and role=='B' and i==10: return
    if OPT.get('jst') and role=='A' and i in (1,2,3,7): return
    if OPT.get('bst') and role=='B' and i in (6,7,8,9) and not name.startswith('arrive'): return
    if not DIAG: return
    STN.append((role,i,name))
    E(f's_memrealtime s[100:101]\n s_waitcnt lgkmcnt(0)\n s_mov_b32 s{sST+i}, s100')
ECHO=OPT.get('echo')
def echo_mark(name):
    if ECHO==name or name=='start' and ECHO:
        r=98 if name=='start' else 99
        E(f's_memrealtime s[100:101]\n s_waitcnt lgkmcnt(0)\n s_mov_b32 s{r}, s100')
def echo_end():
    if not ECHO: return
    E('s_waitcnt vmcnt(0)'); echo_mark('end')
    E('s_memrealtime s[100:101]\n s_waitcnt lgkmcnt(0)\n s_sub_u32 s99, s99, s98\n s_mul_i32 s99, s99, '+OPT.get('amp','1')+'\n s_add_u32 s99, s99, s100')
    LBL('L_ECHO')
    E('s_memrealtime s[100:101]\n s_waitcnt lgkmcnt(0)\n s_sub_u32 s100, s100, s99\n s_cmp_lt_i32 s100, 0\n s_cbranch_scc1 L_ECHO')
def cstamp(role,i,name):
    if OPT.get('jst') and i in (10,11) and not name.startswith('J'): return
    if not DIAG: return
    STN.append((role,i,'CYC '+name))
    E(f's_memtime s[100:101]\n s_waitcnt lgkmcnt(0)\n s_mov_b32 s{sST+i}, s100')
def tacc(role,i,name,code):
    if not (DIAG and OPT.get('acc')): E(code); return
    if (role,i,'ACC '+name) not in STN: STN.append((role,i,'ACC '+name))
    E(f's_memtime s[100:101]\n s_waitcnt lgkmcnt(0)\n s_sub_u32 s{sST+i}, s{sST+i}, s100')
    E(code)
    E(f's_memtime s[100:101]\n s_waitcnt lgkmcnt(0)\n s_add_u32 s{sST+i}, s{sST+i}, s100')
def stamp_flush(nmax,role='B'):
    if not DIAG: return
    if OPT.get('dbg'):
        m={'A':[(0,1),(2,2),(7,3),(3,4),(1,5),(4,6),(5,7),(6,8)],'B':[(4,9),(6,10),(7,11),(9,12),(10,13),(11,14)]}[role]
        sk=uid('nd')
        srd(sDBG,24,256)
        E(f's_bfe_u32 s{sT}, s2, 0x30003\n s_cmp_eq_u32 s{sT}, 0\n s_cbranch_scc0 {sk}\n v_mov_b32 v2, 0\n s_not_b32 s{sT}, s{sST}\n v_writelane_b32 v2, s{sT}, 0')
        for i,sl in m: E(f'v_writelane_b32 v2, s{sST+i}, {sl}')
        E(f'v_lshlrev_b32 v3, 2, v0\n s_mov_b64 exec, 0xffff\n buffer_atomic_umax v2, v3, {sr(sDBG)}, 0 offen sc1\n s_mov_b64 exec, -1')
        LBL(sk)
        return
    if OPT.get('hwid'): E(f's_getreg_b32 s{sST+11}, hwreg(HW_REG_HW_ID)\n s_getreg_b32 s{sST+10}, hwreg(HW_REG_XCC_ID)')
    E('v_mov_b32 v2, 0')
    for i in range(nmax): E(f'v_writelane_b32 v2, s{sST+i}, {i}')
    E(f's_mul_i32 s{sT}, s2, 12\n s_add_u32 s{sT}, s{sT}, s{sWave}\n s_lshl_b32 s{sT}, s{sT}, 6\n s_add_u32 s{sT}, s{sT}, {hex(WS_STAMP)}')
    E(f'v_lshlrev_b32 v3, 2, v0\n s_mov_b64 exec, 0xffff\n buffer_store_dword v2, v3, {sr(sWS)}, s{sT} offen\n s_mov_b64 exec, -1')

def lds_add(off,val,vz,vt):
    E(f'v_mov_b32 v{vt}, {val}\n s_mov_b64 exec, 1\n ds_add_u32 v{vz}, v{vt} offset:{off-L_ST}\n s_mov_b64 exec, -1')
def lds_spin(off,mask,val,vz,vt,sleep=1):
    a=uid('spin'); d=uid('spind')
    E(f's_mov_b32 s{sCnt}, {SPIN_LIMIT}')
    LBL(a)
    E(f'ds_read_b32 v{vt}, v{vz} offset:{off-L_ST}\n s_waitcnt lgkmcnt(0)\n v_readfirstlane_b32 s{sT}, v{vt}')
    if mask is not None: E(f's_and_b32 s{sT}, s{sT}, {hex(mask)}')
    E(f's_cmp_eq_u32 s{sT}, {hex(val)}\n s_cbranch_scc1 {d}\n s_sub_u32 s{sCnt}, s{sCnt}, 1\n s_cbranch_scc1 {d}')
    if sleep: E(f's_sleep {sleep}')
    E(f's_branch {a}')
    LBL(d)
def tag_set(off,sidx,vt):
    if sidx is None: E(f'v_mov_b32 v{vt}, {off}')
    else: E(f's_lshl_b32 s{sT}, s{sidx}, 2\n s_add_u32 s{sT}, s{sT}, {off}\n v_mov_b32 v{vt}, s{sT}')
    E(f'v_mov_b32 v{vt+1}, 1\n s_mov_b64 exec, 1\n ds_write_b32 v{vt}, v{vt+1}\n s_mov_b64 exec, -1')
def tag_wait(off,n,vt,sleep=0,once=None):
    a=uid('tw'); d=uid('twd')
    E(f'v_and_b32 v{vt}, {n-1}, v0\n v_lshlrev_b32 v{vt}, 2, v{vt}\n v_add_u32 v{vt}, {off}, v{vt}')
    if once:
        E(f'ds_read_b32 v{vt+1}, v{vt}\n s_waitcnt lgkmcnt(0)\n v_cmp_ne_u32 vcc, 1, v{vt+1}\n s_cbranch_vccz {once}')
        return
    E(f's_mov_b32 s{sCnt}, {SPIN_LIMIT}')
    LBL(a)
    E(f'ds_read_b32 v{vt+1}, v{vt}\n s_waitcnt lgkmcnt(0)\n v_cmp_ne_u32 vcc, 1, v{vt+1}\n s_cbranch_vccz {d}\n s_sub_u32 s{sCnt}, s{sCnt}, 1\n s_cbranch_scc1 {d}')
    if sleep: E(f's_sleep {sleep}')
    E(f's_branch {a}')
    LBL(d)
def tag_get(vt):
    E(f'ds_read_b32 v{vt}, v{vZ} offset:{T_TAG-L_ST}\n s_waitcnt lgkmcnt(0)\n v_readfirstlane_b32 s{sTag}, v{vt}')
def poll(vaddr,n,vt,sleep=1):
    a=uid('poll'); d=uid('polld')
    E(f's_mov_b32 s{sCnt}, {SPIN_LIMIT}')
    LBL(a)
    op={1:'buffer_load_dword',2:'buffer_load_dwordx2',3:'buffer_load_dwordx3',4:'buffer_load_dwordx4'}[n]
    E(f'{op} {vr(vt,n) if n>1 else "v%d"%vt}, v{vaddr}, {sr(sWS)}, 0 offen sc1\n s_waitcnt vmcnt(0)')
    for i in range(n): E(f'v_xor_b32 v{vt+i}, s{sTag}, v{vt+i}')
    if n==2: E(f'v_or_b32 v{vt}, v{vt}, v{vt+1}')
    if n>=3: E(f'v_or3_b32 v{vt}, v{vt}, v{vt+1}, v{vt+2}')
    if n==4: E(f'v_or_b32 v{vt}, v{vt}, v{vt+3}')
    E(f'v_cmp_ne_u32 vcc, 0, v{vt}\n s_cbranch_vccz {d}\n s_sub_u32 s{sCnt}, s{sCnt}, 1\n s_cbranch_scc1 {d}')
    if sleep: E(f's_sleep {sleep}')
    E(f's_branch {a}')
    LBL(d)
def flag_store(soff_reg,vt):
    E(f'v_mov_b32 v{vt}, s{sTag}\n s_mov_b64 exec, 1\n buffer_store_dword v{vt}, off, {sr(sWS)}, s{soff_reg} sc1\n s_mov_b64 exec, -1')
def mfma(d,a,b,c=None):
    cc = vr(d,16) if c is None else (c if isinstance(c,str) else vr(c,16))
    E(f'v_mfma_f32_32x32x16_bf16 {vr(d,16)}, {vr(a,4)}, {vr(b,4)}, {cc}')
def smf(o,v,s,idx): E(f'v_smfmac_f32_32x32x32_bf16 {vr(o,16)}, {vr(v,4)}, {vr(s,8)}, v{idx}')
def vexp(r): E(f'v_exp_f32 v{r}, v{r}')
def cvt(d,a,b): E(f'v_cvt_pk_bf16_f32 v{d}, v{a}, v{b}')
def set_vpad(regs,vt):
    E(f'v_and_b32 v{vt}, 27, v0\n v_cmp_eq_u32 vcc, 16, v{vt}\n v_mov_b32 v{vt}, 0x3f803f80\n s_nop 0\n v_cndmask_b32 v{regs[0]}, 0, v{vt}, vcc')
    for r in regs[1:]: E(f'v_mov_b32 v{r}, v{regs[0]}')
def xaddr(base,t_imm,vt):
    E(f'v_and_b32 v{vt}, 15, v0\n v_lshrrev_b32 v{base}, 5, v0\n v_xor_b32 v{base}, v{base}, v{vt}\n v_lshlrev_b32 v{base}, 4, v{base}')
    E(f'v_and_b32 v{vt}, 31, v0\n v_lshl_add_u32 v{base}, v{vt}, 10, v{base}\n v_add_u32 v{base}, {t_imm}, v{base}')
    for b in range(1,8): E(f'v_xor_b32 v{base+b}, {b<<5}, v{base}')
def traddr128(dst,vt,vt2,rowsel,colbase):
    E(f'v_lshrrev_b32 v{vt}, 5, v0\n v_lshlrev_b32 v{vt}, {rowsel}, v{vt}\n v_bfe_u32 v{vt2}, v0, 2, 2\n v_add_u32 v{vt}, v{vt}, v{vt2}\n v_lshlrev_b32 v{dst}, 7, v{vt}')
    E(f'v_bfe_u32 v{vt}, v0, 4, 1\n v_lshlrev_b32 v{vt}, 1, v{vt}\n v_bfe_u32 v{vt2}, v0, 1, 1\n v_add3_u32 v{vt}, v{vt}, v{vt2}, {colbase}')
    E(f'v_bfe_u32 v{vt2}, v0, 3, 1\n v_lshlrev_b32 v{vt2}, 2, v{vt2}\n v_xor_b32 v{vt}, v{vt}, v{vt2}\n v_lshl_add_u32 v{dst}, v{vt}, 4, v{dst}')
    E(f'v_and_b32 v{vt}, 1, v0\n v_lshl_add_u32 v{dst}, v{vt}, 3, v{dst}')
def dma128_voff(dst,vt,vt2,rowstride_sreg_or_shift,colbytes):
    E(f'v_lshrrev_b32 v{vt}, 3, v0')
    if isinstance(rowstride_sreg_or_shift,int): E(f'v_lshlrev_b32 v{dst}, {rowstride_sreg_or_shift}, v{vt}')
    else: E(f'v_mul_u32_u24 v{dst}, {rowstride_sreg_or_shift}, v{vt}')
    E(f'v_bfe_u32 v{vt}, v0, 4, 1\n v_lshlrev_b32 v{vt}, 2, v{vt}\n v_and_b32 v{vt2}, 7, v0\n v_xor_b32 v{vt}, v{vt}, v{vt2}\n v_lshl_add_u32 v{dst}, v{vt}, 4, v{dst}\n v_add_u32 v{dst}, {colbytes}, v{dst}')
def finalize(O,dst,vt,lbl_fb,lbl_back,vg):
    C('guard: row sum inside [2^-24, 2^60] and finite numerators in every lane, else redo with the true maximum')
    E(f'v_add_f32 v{vt}, |v{O}|, |v{O+1}|')
    for r in range(2,8): E(f'v_add_f32 v{vt}, v{vt}, |v{O+r}|')
    E(f'v_mov_b32 v{vt+1}, 0x7f800000\n v_cmp_nlt_f32 {sr(sT,2)}, v{vt}, v{vt+1}')
    E(f'v_cmp_nle_f32 vcc, {hex(L_LO)}, v{O+8}\n s_or_b64 {sr(sT,2)}, {sr(sT,2)}, vcc')
    E(f'v_cmp_nge_f32 vcc, {hex(L_HI)}, v{O+8}\n s_or_b64 {sr(sT,2)}, {sr(sT,2)}, vcc\n s_cbranch_scc1 {lbl_fb}')
    LBL(lbl_back)
    E(f'v_rcp_f32 v{vt}, v{O+8}\n s_nop 0\n v_mul_f32 v{vt}, v{vt}, v{vg}')
    for r in range(0,8,2): E(f'v_pk_mul_f32 {vr(O+r,2)}, {vr(O+r,2)}, {vr(vt,2)} op_sel_hi:[1,0]')
    for r in range(4): cvt(dst+r,O+2*r,O+2*r+1)
    E(f'v_min_u32 v{dst}, -2, v{dst}')

TAIL=[]
RETRY=[]
def fallback(lbl,back,Q,O,S,K,V,IDX,vM,vK,vV,ntile,soff_setup,first_mask=None,last_mask=None,first_cond=None):
    global L
    save=L; L=[]
    LBL(lbl)
    C('exact softmax for one query tile: pass 1 row maxima, pass 2 exp2(s - max) ; K/V fragments from d_ws')
    soff_setup()
    E(f'v_mov_b32 v{vM}, 0xff800000')
    for p in (0,1):
        lp=uid('fbl')
        if p==1:
            E(f'v_mov_b32 v{S}, v{vM}\n s_nop 1\n v_permlane32_swap_b32 v{S}, v{vM}\n s_nop 1\n v_max_f32 v{vM}, v{vM}, v{S}')
            for r in range(16): E(f'v_mov_b32 v{O+r}, 0')
        E(f's_mov_b32 s{sT+5}, s{sT+2}\n s_mov_b32 s{sT+6}, 0')
        LBL(lp)
        E(f'buffer_load_dwordx4 {vr(K,4)}, v{vK}, {sr(sWS)}, s{sT+5} offen sc1')
        if p==1:
            E(f's_mov_b64 exec, {sr(sVM,2)}\n buffer_load_dwordx4 {vr(V,4)}, v{vV}, {sr(sWS)}, s{sT+5} offen offset:1024 sc1\n buffer_load_dwordx4 {vr(V+4,4)}, v{vV}, {sr(sWS)}, s{sT+5} offen offset:1536 sc1\n s_mov_b64 exec, -1')
        E('s_waitcnt vmcnt(0)')
        if first_mask is None:
            mfma(S,K,Q,'0')
        else:
            a=uid('fbm'); b=uid('fbm'); j=uid('fbm')
            E(f's_add_u32 s{sT+7}, s{sT+6}, 1\n s_cmp_eq_u32 s{sT+7}, s{sT+3}\n s_cbranch_scc1 {a}')
            E(f's_cmp_lt_u32 s{sT+6}, s{sT+4}\n s_cbranch_scc1 {b}')
            mfma(S,K,Q,'0'); E(f's_branch {j}')
            LBL(a); mfma(S,K,Q,last_mask); E(f's_branch {j}')
            LBL(b); mfma(S,K,Q,first_mask)
            LBL(j)
        E('s_nop 15')
        if p==0:
            for r in range(0,16,2): E(f'v_max3_f32 v{vM}, v{S+r}, v{S+r+1}, v{vM}')
        else:
            for r in range(16): E(f'v_sub_f32 v{S+r}, v{S+r}, v{vM}')
            for r in range(16): vexp(S+r)
            E('s_nop 1'); smf(O,V,S,IDX); smf(O,V+4,S+8,IDX)
        E(f's_add_u32 s{sT+5}, s{sT+5}, 2048\n s_add_u32 s{sT+6}, s{sT+6}, 1\n s_cmp_lt_u32 s{sT+6}, s{sT+3}\n s_cbranch_scc1 {lp}')
    E(f's_nop 15\n s_branch {back}')
    TAIL.extend(L); L=save

E('s_cmp_ge_u32 s2, 256\n s_cbranch_scc1 L_END')
if ECHO=='karg': E('s_memrealtime s[100:101]\n s_waitcnt lgkmcnt(0)\n s_mov_b32 s97, s100')
E('s_load_dwordx16 s[4:19], s[0:1], 0\n s_load_dwordx8 s[20:27], s[0:1], 64')
E(f'v_lshrrev_b32 v1, 6, v0\n v_and_b32 v0, 63, v0\n v_readfirstlane_b32 s{sWave}, v1')
if MAP=='b' and OPT.get('alt'):
    E(f's_and_b32 s{sT}, s2, 7\n s_lshr_b32 s{sT+2}, s2, 6\n s_lshl_b32 s{sPb}, s{sT}, 2\n s_or_b32 s{sPb}, s{sPb}, s{sT+2}\n s_bfe_u32 s{sHg}, s2, 0x30003')
elif MAP=='b':
    E(f's_and_b32 s{sT}, s2, 7\n s_lshr_b32 s{sT+1}, s2, 3\n s_and_b32 s{sT+2}, s{sT+1}, 3\n s_lshl_b32 s{sPb}, s{sT}, 2\n s_or_b32 s{sPb}, s{sPb}, s{sT+2}\n s_lshr_b32 s{sHg}, s{sT+1}, 2')
else:
    E(f's_bfe_u32 s{sPb}, s2, 0x20001\n s_lshl_b32 s{sPb}, s{sPb}, 3\n s_bfe_u32 s{sT}, s2, 0x30003\n s_or_b32 s{sPb}, s{sPb}, s{sT}\n s_and_b32 s{sHg}, s2, 1\n s_lshl_b32 s{sHg}, s{sHg}, 2\n s_lshr_b32 s{sT}, s2, 6\n s_or_b32 s{sHg}, s{sHg}, s{sT}')
E(f's_mov_b32 s{sVM}, 0xffff\n s_mov_b32 s{sVM+1}, 0xffff')
if DIAG:
    for i in range(12): E(f's_mov_b32 s{sST+i}, 0')
def codepf():
  if OPT.get('cpf','1')=='1':
      C('---- pull this WG\'s share of the kernel\'s own instructions into L2 (later instruction fetches then miss only the I-cache)')
      E(f's_cmp_eq_u32 s{sWave}, 11\n s_cbranch_scc0 L_B_NCP\n s_getpc_b64 s[{sT}:{sT+1}]')
      LBL('L_B_PC')
      E(f's_lshr_b32 s{sT+2}, s2, 3\n s_mul_i32 s{sT+2}, s{sT+2}, (L_CODE_END-L_B_PC+4095)/4096*128\n s_add_u32 s{sT}, s{sT}, s{sT+2}\n s_addc_u32 s{sT+1}, s{sT+1}, 0')
      E(f'v_lshlrev_b32 v2, 7, v0\n v_mov_b32 v3, s{sT+1}\n v_add_co_u32 v2, vcc, s{sT}, v2\n s_nop 1\n v_addc_co_u32 v3, vcc, 0, v3, vcc\n s_lshl_b64 exec, 1, (L_CODE_END-L_B_PC+4095)/4096\n s_sub_u32 exec_lo, exec_lo, 1\n global_load_dword v63, v[2:3], off\n s_mov_b64 exec, -1')
      LBL('L_B_NCP')
if OPT.get('cpe','0')=='1': codepf()
C('clear the LDS counters and flags while the kernel arguments arrive')
E(f'v_lshlrev_b32 v2, 3, v0\n v_add_u32 v2, {L_C}, v2\n v_mov_b32 v4, 0\n v_mov_b32 v5, 0\n ds_write_b64 v2, v[4:5]')
E('s_waitcnt lgkmcnt(0)\n s_barrier')
stamp('A',0,'start'); stamp('B',0,'start'); echo_mark('start')
if ECHO=='karg': E('s_sub_u32 s99, s98, s97\n s_mul_i32 s99, s99, 10\n s_add_u32 s99, s99, s98')
srd(sX,4,2048*1024); srd(sWS,26,0x10000000)
E(f's_cmp_lt_u32 s{sWave}, 8\n s_cbranch_scc1 L_A')


KVPOS=[L_ST,32768,49152,16384,65536,81920,98304,114688]
L_PART=L_ST+24576
L_QA=0; L_QB=8192; L_WO=0; L_FX=65536
sOut=66; sOb=67; sPass=64
sRot=sT+11
def mktag(): E(f's_mul_i32 s{sTag}, s{sTag}, 0x9E3779B1\n s_add_u32 s{sTag}, s{sTag}, 0x7F4A7C15')
FT=OPT.get('ft','0')
def mkrot():
    if FT!='0' and not OPT.get('ftrot'): E(f's_mov_b32 s{sRot}, 0'); return
    if MAP=='b': E(f's_and_b32 s{sRot}, s{sPb}, 3\n s_lshl_b32 s{sRot}, s{sRot}, 1\n s_add_u32 s{sRot}, s{sRot}, s{sHg}')
    else: E(f's_lshl_b32 s{sRot}, s{sHg}, 1\n s_add_u32 s{sRot}, s{sRot}, s{sPb}')
def touch(srd_,soff,n,vaddr,vd,sc1=False):
    for i in range(n):
        if i: E(f's_add_u32 s{soff}, s{soff}, 8192')
        E(f'buffer_load_dword v{vd}, v{vaddr}, {sr(srd_)}, s{soff} offen'+(' sc1' if sc1 else ''))
E(f's_setprio {2 if OPT.get("bp2") else 3}\n s_sub_u32 s{sB}, s{sWave}, 8')
if OPT.get('cpe','0')=='0': codepf()
C('---- x tile -> LDS as 8 blocks of [64 rows][64 k], block order rotated per WG ; wave b brings blocks b and b+4')
E('v_lshrrev_b32 v17, 3, v0\n v_lshlrev_b32 v17, 10, v17\n v_lshrrev_b32 v2, 4, v0\n v_and_b32 v3, 7, v0\n v_xor_b32 v2, v2, v3\n v_lshl_add_u32 v17, v2, 4, v17\n v_xor_b32 v18, 64, v17')
mkrot()
E(f's_lshl_b32 s{sT+7}, s{sPb}, 16\n s_lshl_b32 s{sT+6}, s{sB}, 13')
VQ=[]
def vwait(tag,extra=''):
    if tag not in VQ:
        if extra: E('s_waitcnt'+extra)
        return
    i=max(n for n,t in enumerate(VQ) if t==tag)
    n=len(VQ)-1-i; del VQ[:i+1]
    E(f's_waitcnt vmcnt({n})'+extra)
XD=OPT.get('xd','1')=='1'
def xblock(expr_add,ldsoff,rows):
    E(f's_add_u32 s{sT+1}, s{sRot}, {expr_add}\n s_and_b32 s{sT+1}, s{sT+1}, 7\n s_lshl_b32 s{sT+1}, s{sT+1}, 7\n s_add_u32 s{sT+1}, s{sT+1}, s{sT+7}')
if XD:
    E(f's_and_b32 s{sT+1}, s{sRot}, 7\n s_lshl_b32 s{sT+1}, s{sT+1}, 7\n s_add_u32 s{sT+1}, s{sT+1}, s{sT+7}\n s_lshl_b32 s{sT+2}, s{sB}, 14\n s_add_u32 s{sT+1}, s{sT+1}, s{sT+2}\n s_lshl_b32 s{sT+2}, s{sB}, 11\n s_add_u32 m0, s{sT+2}, 65536\n s_nop 0')
    E(f'buffer_load_dwordx4 v17, {sr(sX)}, s{sT+1} offen lds\n s_add_u32 m0, s{sT+2}, {65536+1024}\n s_add_u32 s{sT+1}, s{sT+1}, 8192\n buffer_load_dwordx4 v18, {sr(sX)}, s{sT+1} offen lds')
def wtouch(chunk_expr):
    E(f'{chunk_expr}\n s_lshl_b32 s{sT+1}, s{sT+1}, 5\n s_lshr_b32 s{sT+2}, s2, 3\n s_add_u32 s{sT+1}, s{sT+1}, s{sT+2}\n s_lshl_b32 s{sT+2}, s{sT+1}, 11\n s_mul_i32 s{sT+1}, s{sT+1}, 6144')
    E(f's_mov_b64 exec, 0xffff\n buffer_load_dword v19, v21, {sr(sWQ)}, s{sT+2} offen\n s_mov_b32 exec_lo, -1\n s_mov_b32 exec_hi, 0xffff\n buffer_load_dword v20, v21, {sr(sWB)}, s{sT+1} offen\n s_mov_b64 exec, -1')
NT=0
if FT!='0':
    srd(sWQ,6,512*1024); srd(sWB,16,512*3072)
    E('v_lshlrev_b32 v21, 7, v0')
    wtouch(f's_mov_b32 s{sT+1}, s{sB}'); NT=2
    if FT=='2': wtouch(f's_add_u32 s{sT+1}, s{sB}, 4'); NT=4
def c3touch():
    C('lines with address bits 9:7 = 3 miss more slowly: every WG asks early for a share of that weight column block')
    E(f's_cmp_eq_u32 s{sB}, 0\n s_cselect_b32 s{sWB}, s6, s16\n s_cselect_b32 s{sWB+1}, s7, s17\n s_mov_b32 s{sWB+2}, {512*3072}\n s_cselect_b32 s{sWB+2}, {512*1024}, s{sWB+2}\n s_mov_b32 s{sWB+3}, 0x20000')
    E(f's_movk_i32 s{sT+3}, 3072\n s_cselect_b32 s{sT+3}, 0x400, s{sT+3}\n s_max_u32 s{sT+1}, s{sB}, 1\n s_sub_u32 s{sT+1}, s{sT+1}, 1\n s_lshl_b32 s{sT+1}, s{sT+1}, 10\n s_lshr_b32 s{sT+2}, s2, 3\n s_lshl_b32 s{sT+2}, s{sT+2}, 4\n s_mul_i32 s{sT+2}, s{sT+2}, s{sT+3}\n s_add_u32 s{sT+1}, s{sT+1}, s{sT+2}')
    E(f'v_mul_u32_u24 v2, s{sT+3}, v0\n s_mov_b64 exec, 0xffff\n buffer_load_dword v19, v2, {sr(sWB)}, s{sT+1} offen offset:384\n s_mov_b64 exec, -1')
C3=OPT.get('c3','2') if MAP=='b' and FT=='0' else '0'
if C3=='1': c3touch()
def xrest():
  for hb in range(2):
    sk=uid('xs')
    if XD and hb==0: E(f's_cmp_eq_u32 s{sB}, 0\n s_cbranch_scc1 {sk}')
    E(f's_add_u32 s{sT+1}, s{sRot}, s{sB}\n s_add_u32 s{sT+1}, s{sT+1}, {4*hb}\n s_and_b32 s{sT+1}, s{sT+1}, 7\n s_lshl_b32 s{sT+1}, s{sT+1}, 7\n s_add_u32 s{sT+1}, s{sT+1}, s{sT+7}')
    for n in range(8):
        E(f's_add_u32 m0, s{sT+6}, {65536+32768*hb+1024*n}')
        E(f's_add_u32 s{sT+1}, s{sT+1}, 8192' if n else 's_nop 0')
        E(f'buffer_load_dwordx4 v{17+(n&1)}, {sr(sX)}, s{sT+1} offen lds')
    if XD and hb==0: LBL(sk)
if not XD: xrest()
MU=128; MD=144; BQ=16; BK=24; BV=36; BS=64; BO=96; BIDX=60
C('---- constants for the later phases (idle time)')
E(f'v_mov_b32 v{vZ}, {L_ST}\n v_lshlrev_b32 v160, 4, v0\n v_lshlrev_b32 v163, 7, v0')
E('v_lshrrev_b32 v161, 5, v0\n v_lshlrev_b32 v161, 8, v161\n v_and_b32 v2, 15, v0\n v_lshl_add_u32 v161, v2, 4, v161')
srd(sWOA,12,512*1024); srd(sWOB,18,512*1024)
E(f'v_and_b32 v4, 31, v0\n v_lshrrev_b32 v5, 5, v0\n v_lshlrev_b32 v5, 2, v5\n v_sub_u32 v4, v4, v5\n s_mov_b32 s{sT}, {hex(NEGBIG)}')
for r in range(16):
    E(f'v_subrev_u32 v5, {8*(r//4)+r%4}, v4\n v_ashrrev_i32 v5, 31, v5\n v_and_b32 v{MD+r}, s{sT}, v5\n v_xor_b32 v{MU+r}, s{sT}, v{MD+r}')
set_vpad(list(range(BV,BV+24)),2); E(f'v_mov_b32 v{BIDX}, 0xdddddddd')
for r in range(32): E(f'v_mov_b32 v{BO+r}, 0')
E(f'v_min_u32 v2, 4, v0\n s_sub_i32 s{sT}, s{sPb}, 4\n v_add_u32 v2, s{sT}, v2\n v_max_i32 v2, 0, v2\n s_lshl_b32 s{sT}, s{sHg}, 5\n v_add_u32 v2, s{sT}, v2\n v_lshlrev_b32 v2, 7, v2\n v_add_u32 v162, {hex(WS_FKVB+8)}, v2')
E(f'v_and_b32 v2, 7, v0\n v_lshlrev_b32 v2, 5, v2\n v_add_u32 v2, s{sPb}, v2\n v_lshlrev_b32 v2, 7, v2\n v_add_u32 v166, {hex(WS_FKVB+16)}, v2')
sKh=sT+9; sTt=sT+10
E(f's_lshr_b32 s{sKh}, s{sB}, 1\n s_and_b32 s{sTt}, s{sB}, 1\n s_lshl_b32 s{sT+2}, s{sHg}, 7')
dma128_voff(10,2,3,10,f's{sT+2}')
E(f's_lshl_b32 s{sT+1}, s{sKh}, 2'); traddr128(11,2,3,2,f's{sT+1}')
E(f's_lshl_b32 s{sT+1}, s{sKh}, 15\n s_add_u32 s{sT+1}, s{sT+1}, {L_WO}\n v_add_u32 v11, s{sT+1}, v11\n v_xor_b32 v9, 64, v11')
E(f's_lshl_b32 s{sOut}, s{sPb}, 1\n s_add_u32 s{sOut}, s{sOut}, s{sTt}\n s_lshl_b32 s{sOut}, s{sOut}, 15\n s_lshl_b32 s{sT}, s{sKh}, 14\n s_add_u32 s{sOb}, s{sOut}, s{sT}\n s_add_u32 s{sOb}, s{sOb}, {hex(WS_OB)}')
E(f's_lshl_b32 s{sT}, s{sHg}, 7\n s_add_u32 s{sOut}, s{sOut}, s{sT}\n s_lshl_b32 s{sT}, s{sKh}, 6\n s_add_u32 s{sOut}, s{sOut}, s{sT}')
E('v_and_b32 v8, 31, v0\n v_lshlrev_b32 v167, 10, v8\n v_lshrrev_b32 v3, 5, v0\n v_lshl_add_u32 v167, v3, 4, v167\n v_lshlrev_b32 v8, 2, v8')
srd(sOUT,22,2048*1024)
E(f's_lshl_b32 s{sT}, s{sB}, 12\n s_add_u32 s{sT}, s{sT}, {L_FX}\n v_add_u32 v164, s{sT}, v160\n v_xor_b32 v165, 0x2000, v164\n s_mov_b32 s{sPass}, 0')
if XD:
    E(f's_waitcnt vmcnt({NT})' if NT else ('s_waitcnt vmcnt(1)' if C3=='1' else 's_waitcnt vmcnt(0)')); tag_set(T_X0,sB,2)
    if C3=='2': c3touch()
    if FT=='1': wtouch(f's_add_u32 s{sT+1}, s{sB}, 4')
    xrest()
E('s_waitcnt vmcnt(8)')
tag_set(T_X,sB,2)
stamp('B',1,'x landed'); echo_mark('xl')
E('s_waitcnt vmcnt(0)')
tag_set(T_X+16,sB,2)
if ECHO in ('k0','q1','fl','pt'):
    tag_wait({'k0':T_K0,'q1':T_Q1,'fl':T_FL,'pt':T_PT}[ECHO],4 if ECHO=='pt' else 1,2,sleep=2); echo_mark(ECHO)
tag_wait(T_G,4,2,sleep=4)
tag_get(2)
stamp('B',5,'BQ'); echo_mark('bq')
E(f's_setprio {OPT.get("bpr","3")}')
def kvdma(c):
    E(f's_lshr_b32 s{sT+1}, s2, 3\n s_add_u32 s{sT+1}, s{sT+1}, {c}\n s_and_b32 s{sT+1}, s{sT+1}, 3\n s_lshl_b32 s{sT+1}, s{sT+1}, 2\n s_add_u32 s{sT+1}, s{sT+1}, s{sB}\n s_lshl_b32 s{sT+1}, s{sT+1}, 12')
    E(f's_lshl_b32 s{sT+2}, s{sB}, 12\n s_add_u32 m0, s{sT+2}, {KVPOS[c]}\n s_add_u32 s{sT+1}, s{sT+1}, {hex(WS_KVA+(65536 if c>=4 else 0))}')
    for i in range(4): E(f'buffer_load_dwordx4 v160, {sr(sWS)}, s{sT+1} offen offset:{1024*i} sc1 lds')
    VQ.extend([f'kv{c}']*4)
E(f's_lshl_b32 s{sT}, s{sB}, 11\n s_add_u32 s{sT}, s{sT}, {L_QB}\n v_add_u32 v3, s{sT}, v160')
for t in range(2): E(f'ds_read_b128 {vr(BQ+4*t,4)}, v3 offset:{1024*t}')
E(f's_lshl_b32 s{sT}, s{sPb}, 8\n s_add_u32 s{sT}, s{sT}, {hex(WS_G)}\n buffer_load_dword v61, v8, {sr(sWS)}, s{sT} offen sc1\n buffer_load_dword v62, v8, {sr(sWS)}, s{sT} offen offset:128 sc1\n s_waitcnt lgkmcnt(0)')
C('---- second half of the shared K/V ; o slots marked as not yet written')
for c in (4,5,6,7): kvdma(c)
E(f's_lshl_b32 s{sT+10}, s{sPb}, 6\n s_lshl_b32 s{sT+1}, s{sHg}, 2\n s_add_u32 s{sT+10}, s{sT+10}, s{sT+1}\n s_add_u32 s{sT+10}, s{sT+10}, s{sB}\n s_lshl_b32 s{sT+10}, s{sT+10}, 10')
E('v_mov_b32 v12, -1\n v_mov_b32 v13, -1\n v_mov_b32 v14, -1\n v_mov_b32 v15, -1')
for base in (WS_OA,WS_OA+32768,WS_OB,WS_OB+32768):
    E(f's_add_u32 s{sT+1}, s{sT+10}, {hex(base)}\n buffer_store_dwordx4 v[12:15], v160, {sr(sWS)}, s{sT+1} offen sc1')
E(f's_lshl_b32 s{sT+3}, s{sHg}, 5\n s_add_u32 s{sT+3}, s{sT+3}, s{sPb}\n s_lshl_b32 s{sT+3}, s{sT+3}, 7\n s_lshl_b32 s{sT+1}, s{sB}, 2\n s_add_u32 s{sT+3}, s{sT+3}, s{sT+1}\n s_add_u32 s{sT+3}, s{sT+3}, {hex(WS_FKVB+16)}')
E(f's_getreg_b32 s{sXcc}, hwreg(HW_REG_XCC_ID, 0, 4)\n s_add_u32 s{sT}, s{sTag}, s{sXcc}\n v_mov_b32 v3, s{sT}\n s_waitcnt vmcnt(4)')
lds_add(C_K2,1,vZ,2)
stamp('B',2,'K/V all in')
E(f's_waitcnt vmcnt(0)\n s_mov_b64 exec, 1\n buffer_store_dword v3, off, {sr(sWS)}, s{sT+3} sc1\n s_mov_b64 exec, -1')
lds_add(C_MID,0x100,vZ,2)
if OPT.get('nob'): stamp_flush(12); E('s_endpgm')
E('v_sub_f32 v61, 1.0, v61\n v_sub_f32 v62, 1.0, v62')
poll(162,2,4,sleep=3)
stamp('B',6,'kvB flags seen'); echo_mark('kvb')
def wotouch():
    if MAP=='b':
        E(f's_cmp_ge_u32 s{sB}, 2\n s_cbranch_scc0 L_B_NOT\n s_lshr_b32 s{sT+1}, s2, 3\n s_lshl_b32 s{sT+1}, s{sT+1}, 14\n s_and_b32 s{sT+2}, s{sB}, 1\n s_lshl_b32 s{sT+2}, s{sT+2}, 13\n s_add_u32 s{sT+1}, s{sT+1}, s{sT+2}')
        touch(sWOB,sT+1,1,163,3); touch(sWOA,sT+1,1,163,3)
    else:
        E(f's_cmp_eq_u32 s{sB}, 3\n s_cbranch_scc0 L_B_NOT\n s_lshr_b32 s{sT+1}, s2, 3\n s_lshl_b32 s{sT+1}, s{sT+1}, 14\n s_and_b32 s{sT+2}, s2, 1\n s_lshl_b32 s{sT+2}, s{sT+2}, 9\n s_add_u32 s{sT+1}, s{sT+1}, s{sT+2}')
        E('v_lshrrev_b32 v2, 2, v0\n v_lshlrev_b32 v2, 10, v2\n v_and_b32 v3, 3, v0\n v_lshl_add_u32 v2, v3, 7, v2')
        touch(sWOB,sT+1,1,2,3); touch(sWOA,sT+1,1,2,4)
    LBL('L_B_NOT')
C('---- window attention, head 4hg+b, two query tiles')
E(f's_lshl_b32 s{sT+8}, s{sHg}, 2\n s_add_u32 s{sT+8}, s{sT+8}, s{sB}\n s_lshl_b32 s{sT+8}, s{sT+8}, 6\n s_lshl_b32 s{sT+9}, s{sPb}, 1\n s_sub_i32 s{sT+9}, s{sT+9}, 8')
def btile(j): E(f's_add_i32 s{sT}, s{sT+9}, {j}\n s_max_i32 s{sT}, s{sT}, 0\n s_add_u32 s{sT}, s{sT}, s{sT+8}\n s_lshl_b32 s{sT}, s{sT}, 11\n s_add_u32 s{sT}, s{sT}, {hex(WS_KVB)}')
def bload(j):
    k=BK+4*(j%3); v=BV+8*(j%3)
    btile(j)
    E(f'buffer_load_dwordx4 {vr(k,4)}, v160, {sr(sWS)}, s{sT} offen sc1\n s_mov_b64 exec, {sr(sVM,2)}')
    E(f'buffer_load_dwordx4 {vr(v,4)}, v161, {sr(sWS)}, s{sT} offen offset:1024 sc1\n buffer_load_dwordx4 {vr(v+4,4)}, v161, {sr(sWS)}, s{sT} offen offset:1536 sc1\n s_mov_b64 exec, -1')
bload(0); bload(1)
E(f's_setprio {OPT.get("bat","3")}')
for j in (2,6):
    E(f's_add_i32 s{sT}, s{sT+9}, {j}\n s_max_i32 s{sT}, s{sT}, 0\n s_add_i32 s{sT+1}, s{sT+9}, 6\n s_min_i32 s{sT}, s{sT}, s{sT+1}\n s_cmp_lt_i32 s{sT}, 0')
    sk=uid('tk'); E(f's_cbranch_scc1 {sk}\n s_add_u32 s{sT}, s{sT}, s{sT+8}\n s_lshl_b32 s{sT}, s{sT}, 11\n s_add_u32 s{sT}, s{sT}, {hex(WS_KVB)}')
    E(f'buffer_load_dword v3, v163, {sr(sWS)}, s{sT} offen sc1'); LBL(sk)
E('s_waitcnt lgkmcnt(0)')
for j in range(10):
    k=BK+4*(j%3); v=BV+8*(j%3)
    if j==3: wotouch()
    if j==int(OPT.get('bup','4')): E('s_setprio 3')
    if j==7: E(f'buffer_load_dwordx4 v[12:15], v166, {sr(sWS)}, 0 offen sc1')
    if j+2<10: bload(j+2)
    E(f's_waitcnt vmcnt({3*min(2,9-j)})')
    sk=uid('bskip')
    if j<8: E(f's_cmp_lt_i32 s{sT+9}, {-j}\n s_cbranch_scc1 {sk}')
    qs=[q for q in (0,1) if 0<=j-q<=8]
    for q in qs: mfma(BS+16*q,k,BQ+4*q,{0:MU,8:MD}.get(j-q,'0'))
    E('s_nop 10' if len(qs)==2 else 's_nop 11')
    for q in qs:
        S=BS+16*q; O=BO+16*q
        for r in range(10): vexp(S+r)
        smf(O,v,S,BIDX)
        for r in range(10,16): vexp(S+r)
        E('s_nop 1'); smf(O,v+4,S+8,BIDX)
    if j<8: LBL(sk)
sLoc=sT+11
E(f's_add_u32 s{sT+10}, s{sT+10}, {hex(WS_OB)}\n s_mov_b32 s{sLoc}, 0')
C('the eight WGs of this position block: marks in place ?  all on this die ?')
E(f's_mov_b32 s{sCnt}, {SPIN_LIMIT}\n s_branch L_B_PP1')
LBL('L_B_PP')
E(f'buffer_load_dwordx4 v[12:15], v166, {sr(sWS)}, 0 offen sc1\n s_waitcnt vmcnt(0)')
LBL('L_B_PP1')
for i in range(4): E(f'v_subrev_u32 v{12+i}, s{sTag}, v{12+i}')
E(f'v_or3_b32 v2, v12, v13, v14\n v_or_b32 v2, v2, v15\n v_cmp_lt_u32 vcc, 15, v2\n s_cbranch_vccz L_B_PPD\n s_sub_u32 s{sCnt}, s{sCnt}, 1\n s_cbranch_scc1 L_B_PPD\n s_sleep 3\n s_branch L_B_PP')
LBL('L_B_PPD')
if OPT.get('loc','1')=='1':
    E(f'v_cmp_ne_u32 vcc, s{sXcc}, v12\n s_cbranch_vccnz L_B_NLOC\n s_mov_b32 s{sLoc}, 1')
    lds_add(C_LOC,1,vZ,2)
    if OPT.get('probe'):
        E('s_branch L_B_PRB')
        LBL('L_B_NLOC')
        for i in range(8): E('s_sleep 127')
        LBL('L_B_PRB')
    else: LBL('L_B_NLOC')

for q in range(2):
    fb=f'L_FB_B{q}'; bk=f'L_FB_B{q}_BACK'
    finalize(BO+16*q,4,2,fb,bk,61+q)
    E(f's_cmp_eq_u32 s{sLoc}, 0\n s_cbranch_scc1 L_B_FAR{q}\n buffer_store_dwordx4 v[4:7], v160, {sr(sWS)}, s{sT+10} offen\n s_branch L_B_ST{q}')
    LBL(f'L_B_FAR{q}')
    E(f'buffer_store_dwordx4 v[4:7], v160, {sr(sWS)}, s{sT+10} offen sc1')
    LBL(f'L_B_ST{q}')
    if q==0: E(f's_add_u32 s{sT+10}, s{sT+10}, 32768\n s_nop 0')
    def setup(q=q):
        E(f's_add_i32 s{sT+2}, s{sT+9}, {q}\n s_cmp_ge_i32 s{sT+2}, 0\n s_cselect_b32 s{sT+4}, 1, 0\n s_max_i32 s{sT+2}, s{sT+2}, 0')
        E(f's_add_i32 s{sT+3}, s{sT+9}, {q+9}\n s_sub_u32 s{sT+3}, s{sT+3}, s{sT+2}\n s_add_u32 s{sT+2}, s{sT+2}, s{sT+8}\n s_lshl_b32 s{sT+2}, s{sT+2}, 11\n s_add_u32 s{sT+2}, s{sT+2}, {hex(WS_KVB)}')
    fallback(fb,bk,BQ+4*q,BO+16*q,BS,BK,BV,BIDX,3,160,161,None,setup,MU,MD)
C('---- output projection: wave (t=b&1, kh=b>>1): both 32-column tiles over heads 16kh..16kh+15 ; slot 0 = tile kh')
PA_=48; PW=80; PO=96; PB_=16
stamp('B',7,'oB published'); echo_mark('ob')
E(f's_setprio {OPT.get("bpr2","3")}')
lds_spin(C_MID,0xff,8,vZ,2,sleep=6)
def wodma(sr_):
    E(f's_lshl_b32 s{sT}, s{sB}, 14\n s_lshl_b32 s{sT+1}, s{sB}, 17')
    for n in range(16): E(f's_add_u32 m0, s{sT}, {L_WO+1024*n}\n s_add_u32 s{sT+2}, s{sT+1}, {8192*n}\n buffer_load_dwordx4 v10, {sr(sr_)}, s{sT+2} offen lds')
def oloads(g0):
    for s in range(4*g0,16):
        if s%4==0: E(f's_add_u32 s{sT}, s{sOb}, {1024*s}')
        E(f'buffer_load_dwordx4 {vr(PO+4*s,4)}, v160, {sr(sWS)}, s{sT} offen offset:{1024*(s%4)} sc1')
wodma(sWOB)
oloads(0)
E('s_waitcnt vmcnt(16)')
lds_add(C_WO,1,vZ,2)
lds_spin(C_WO,None,4,vZ,2,sleep=2)
stamp('B',8,'woB landed')
E('s_branch L_B_GEMM1')
LBL('L_B_GEMM')
oloads(0)
LBL('L_B_GEMM1')
def wread(s):
    f=PW+8*(s&1)
    for u,va in ((0,11),(1,9)): E(f'ds_read_b64_tr_b16 {vr(f+4*u,2)}, v{va} offset:{s*2048}\n ds_read_b64_tr_b16 {vr(f+4*u+2,2)}, v{va} offset:{s*2048+1024}')
wread(0)
E(f's_mov_b32 s{sCnt}, {SPIN_LIMIT}')
for g in range(4):
    LBL(f'L_B_G{g}')
    E(f's_waitcnt vmcnt({12-4*g})')
    p=PO+16*g
    E(f'v_max_u32 v2, v{p}, v{p+4}\n v_max3_u32 v2, v{p+8}, v{p+12}, v2\n v_cmp_eq_u32 vcc, -1, v2\n s_cbranch_vccnz L_B_R{g}')
    LBL(f'L_B_K{g}')
    if DIAG and g==3:
        E(f's_cmp_eq_u32 s{sPass}, 0\n s_cbranch_scc1 L_B_NST'); stamp('B',10,'oA all seen'); LBL('L_B_NST')
    for s in range(4*g,4*g+4):
        if s<15: wread(s+1)
        E(f's_waitcnt lgkmcnt({4 if s<15 else 0})')
        f=PW+8*(s&1)
        if s==0:
            E(f's_cmp_eq_u32 s{sPass}, 0\n s_cbranch_scc0 L_B_M1')
            for u in range(2): mfma(PA_+16*u,f+4*u,PO+4*s,'0')
            E('s_branch L_B_M2'); LBL('L_B_M1')
            for u in range(2): mfma(PA_+16*u,f+4*u,PO+4*s)
            LBL('L_B_M2')
        else:
            for u in range(2): mfma(PA_+16*u,f+4*u,PO+4*s)
    save=L; L=[]
    LBL(f'L_B_R{g}')
    E(f's_sub_u32 s{sCnt}, s{sCnt}, 1\n s_cbranch_scc1 L_B_K{g}\n s_cmp_eq_u32 s{sPass}, 0\n s_cbranch_scc0 L_B_RR{g}\n s_sleep 8')
    LBL(f'L_B_RR{g}')
    E('s_waitcnt vmcnt(0)')
    oloads(g)
    E(f's_branch L_B_G{g}')
    RETRY.extend(L); L=save
E(f's_cmp_eq_u32 s{sPass}, 0\n s_cbranch_scc0 L_B_FIN')
lds_add(C_WD,1,vZ,2)
E(f's_add_u32 s{sOb}, s{sOb}, {hex((WS_OA-WS_OB)&0xffffffff)}\n s_mov_b32 s{sPass}, 1')
lds_spin(C_WD,None,4,vZ,2,sleep=2)
wodma(sWOA)
if OPT.get('dry','0')=='1':
    C('walk once through the closing code with no lane active: its instructions are then cached when they matter')
    E('s_mov_b64 exec, 0\n s_branch L_B_FIN')
    LBL('L_B_DRYD')
    E('s_mov_b64 exec, -1')
E('s_waitcnt vmcnt(0)')
stamp('B',9,'out-proj B done, woA in'); echo_mark('b9')
E('s_barrier'); echo_mark('aend'); E('s_branch L_B_GEMM')
LBL('L_B_FIN')
E('s_nop 9')
for q in range(4): E(f'ds_write_b128 v164, {vr(PA_+16+4*q,4)} offset:{1024*q}')
E('s_waitcnt lgkmcnt(0)\n s_cbranch_execz L_B_NBAR\n s_barrier')
LBL('L_B_NBAR')
for q in range(4): E(f'ds_read_b128 {vr(PB_+4*q,4)}, v165 offset:{1024*q}')
for q in range(4):
    E(f's_waitcnt lgkmcnt({3-q})')
    for r in range(4): E(f'v_add_f32 v{PA_+4*q+r}, v{PA_+4*q+r}, v{PB_+4*q+r}')
for r in range(8): cvt(PA_+r,PA_+2*r,PA_+2*r+1)
E('s_nop 1')
for gq in range(2): E(f'v_permlane32_swap_b32 v{PA_+4*gq}, v{PA_+4*gq+2}\n v_permlane32_swap_b32 v{PA_+4*gq+1}, v{PA_+4*gq+3}')
if OPT.get('dry','0')=='1': E('s_cbranch_execz L_B_DRYD')
for gq in range(2): E(f'buffer_store_dwordx4 {vr(PA_+4*gq,4)}, v167, {sr(sOUT)}, s{sOut} offen offset:{32*gq} '+OPT.get('ost','').replace('+',' '))
if DIAG: E('s_waitcnt vmcnt(0)')
stamp('B',11,'out stored'); echo_end()
stamp_flush(12)
E('s_endpgm')
L.extend(RETRY)

LBL('L_A')
AIDX=8; AKA=9; AVA=10; AQ0=12; AQ1=16; AK=20; AV=28; SA=44; SB=60; OA=76; OB=92; XA=108; WA=160; AF=112
L_PG=L_PART+4096
sStr=sT+10; sRing=sT+7
E(f'v_and_b32 v5, 15, v0\n v_lshlrev_b32 v6, 4, v0\n s_and_b32 s{sT+9}, s{sHg}, 3\n s_cmp_lt_u32 s{sWave}, 4\n s_cbranch_scc0 L_A_KV')
C('---- waves 0..3 : wave m streams 64 columns of matrix m (wq | B q | B k | B v) through its own 8 x 2KB ring')
E(f's_cmp_eq_u32 s{sWave}, 0\n s_cselect_b32 s{sWB}, s6, s16\n s_cselect_b32 s{sWB+1}, s7, s17\n s_mov_b32 s{sWB+2}, {512*3072}\n s_cselect_b32 s{sWB+2}, {512*1024}, s{sWB+2}\n s_mov_b32 s{sWB+3}, 0x20000')
E(f's_movk_i32 s{sStr}, 3072\n s_cselect_b32 s{sStr}, 0x400, s{sStr}\n s_max_u32 s{sT+1}, s{sWave}, 1\n s_sub_u32 s{sT+1}, s{sT+1}, 1\n s_lshl_b32 s{sT+1}, s{sT+1}, 10\n s_lshl_b32 s{sT+2}, s{sHg}, 7\n s_add_u32 s{sT+1}, s{sT+1}, s{sT+2}')
dma128_voff(162,2,3,f's{sStr}',f's{sT+1}')
mkrot()
E(f's_lshl_b32 s{sStr}, s{sStr}, 3\n s_lshl_b32 s{sRing}, s{sWave}, 14')
E(f's_sub_u32 s{sT+1}, s{sStr}, 1024\n v_add_u32 v163, s{sT+1}, v162\n s_lshl_b32 s{sStr}, s{sStr}, 1')
def wdma_parts(st):
    p0=f's_add_u32 m0, s{sRing}, {(st%8)*2048}\n'
    if st%4==0: p0+=f's_add_u32 s{sT+3}, s{sRot}, {st//4}\n s_and_b32 s{sT+3}, s{sT+3}, 7\n s_lshl_b32 s{sT+3}, s{sT+3}, 2\n s_mul_i32 s{sT+3}, s{sT+3}, s{sStr}'
    else: p0+=f's_add_u32 s{sT+3}, s{sT+3}, s{sStr}'
    VQ.extend([f'w{st}']*2)
    return [p0, f'buffer_load_dwordx4 v162, {sr(sWB)}, s{sT+3} offen lds', f'buffer_load_dwordx4 v163, {sr(sWB)}, s{sT+3} offen offset:1024 lds']
def wdma(st):
    for p in wdma_parts(st): E(p)
if OPT.get('p0','2')!='0': E(f's_cmp_eq_u32 s{sWave}, 0\n s_cbranch_scc0 L_A_NP0\n s_setprio {OPT.get("p0","3")}\nL_A_NP0:')
NW0=int(OPT.get('nw0','8'))
VQ.clear()
for st in range(NW0): wdma(st)
E('s_branch L_A_NOKV')
LBL('L_A_KV')
E(f's_setprio 3\n s_load_dword s{sTag}, s[26:27], {WS_EPOCH}')
C('---- kvA: this WG makes 16 positions (hg&3) of K (hg<4) or V, and their gate ; wave 4+u sums k in [128u,128u+128)')
E(f's_cmp_lt_u32 s{sHg}, 4\n s_cselect_b32 s{sWKV}, s8, s10\n s_cselect_b32 s{sWKV+1}, s9, s11\n s_mov_b32 s{sWKV+2}, 16384\n s_mov_b32 s{sWKV+3}, 0x20000\n s_and_b32 s{sT+3}, s{sWave}, 3')
E(f's_lshl_b32 s{sT+1}, s{sPb}, 16\n s_lshl_b32 s{sT+2}, s{sT+9}, 14\n s_add_u32 s{sT+1}, s{sT+1}, s{sT+2}\n s_lshl_b32 s{sT+2}, s{sT+3}, 8\n s_add_u32 s{sT+1}, s{sT+1}, s{sT+2}')
E('v_lshlrev_b32 v3, 10, v5\n v_and_b32 v4, 48, v0\n v_add_u32 v3, v3, v4')
for s_ in range(4): E(f'buffer_load_dwordx4 {vr(116+4*s_,4)}, v3, {sr(sX)}, s{sT+1} offen offset:{64*s_}')
WKD=OPT.get('wkd','0')=='1'
if MAP=='b' and WKD:
    E(f's_cmp_lt_u32 s{sWave}, 6\n s_cbranch_scc0 L_A_NT2\n s_cmp_eq_u32 s{sWave}, 4\n s_cselect_b32 s{sG}, s8, s10\n s_cselect_b32 s{sG+1}, s9, s11\n s_mov_b32 s{sG+2}, 16384\n s_mov_b32 s{sG+3}, 0x20000')
    E(f's_lshr_b32 s{sT+4}, s2, 3\n s_lshl_b32 s{sT+4}, s{sT+4}, 9\n v_lshlrev_b32 v2, 7, v0\n s_mov_b64 exec, 15\n buffer_load_dword v167, v2, {sr(sG)}, s{sT+4} offen\n s_mov_b64 exec, -1')
    LBL('L_A_NT2')
if MAP=='c' and OPT.get('wkt','1')=='1':
    E(f's_cmp_eq_u32 s{sWave}, 4\n s_cbranch_scc0 L_A_NT2\n s_lshr_b32 s{sT+4}, s2, 3\n s_lshl_b32 s{sT+4}, s{sT+4}, 9\n v_lshlrev_b32 v2, 7, v0\n s_mov_b64 exec, 15\n buffer_load_dword v167, v2, {sr(sWKV)}, s{sT+4} offen\n s_mov_b64 exec, -1')
    LBL('L_A_NT2')
srd(sG,20,1024)
for s_ in range(4): E(f'buffer_load_dwordx4 {vr(132+4*s_,4)}, v4, {sr(sG)}, s{sT+2} offen offset:{64*s_}')
def wkdma():
    E(f's_lshl_b32 s{sT}, s{sT+3}, 12\n s_add_u32 m0, s{sT}, {L_ST}\n s_nop 0')
    for i in range(4): E(f'buffer_load_dwordx4 v6, {sr(sWKV)}, s{sT} offen offset:{1024*i} lds')
if not WKD: wkdma()
LBL('L_A_NOKV')
C('---- address of this wave\'s o slot, constants')
sOA=sT+8
E(f's_and_b32 s{sOA}, s{sWave}, 1\n s_lshl_b32 s{sT+1}, s{sPb}, 1\n s_add_u32 s{sOA}, s{sOA}, s{sT+1}\n s_lshl_b32 s{sOA}, s{sOA}, 5')
E(f's_lshl_b32 s{sT+1}, s{sHg}, 2\n s_add_u32 s{sOA}, s{sOA}, s{sT+1}\n s_and_b32 s{sT+1}, s{sWave}, 2\n s_add_u32 s{sOA}, s{sOA}, s{sT+1}\n s_lshr_b32 s{sT+1}, s{sWave}, 2\n s_add_u32 s{sOA}, s{sOA}, s{sT+1}\n s_lshl_b32 s{sOA}, s{sOA}, 10\n s_add_u32 s{sOA}, s{sOA}, {hex(WS_OA)}')
E(f'v_mov_b32 v{vZ}, {L_ST}\n v_lshlrev_b32 v11, 2, v0')
traddr128(WA,2,3,3,'0'); E(f's_lshl_b32 s{sT+1}, s{sWave}, 14\n v_add_u32 v{WA}, s{sT+1}, v{WA}\n v_xor_b32 v{WA+1}, 64, v{WA}')
E(f'v_and_b32 v2, 31, v0\n v_bfe_u32 v3, v0, 1, 3\n v_lshrrev_b32 v7, 5, v0\n v_xor_b32 v3, v3, v7\n v_lshlrev_b32 v{XA}, 7, v2\n v_lshl_add_u32 v{XA}, v3, 4, v{XA}\n v_add_u32 v{XA}, 0x10000, v{XA}')
for s_ in range(1,4): E(f'v_xor_b32 v{XA+s_}, {s_<<5}, v{XA}')
for r in range(32): E(f'v_mov_b32 v{OA+r}, 0')
set_vpad(list(range(AV,AV+16)),2)
E(f'v_mov_b32 v{AIDX}, 0xdddddddd')
E(f's_lshr_b32 s{sT+1}, s{sWave}, 2\n s_lshl_b32 s{sT+1}, s{sT+1}, 11\n v_add_u32 v{AKA}, s{sT+1}, v6')
E(f'v_lshlrev_b32 v7, 8, v7\n v_lshl_add_u32 v7, v5, 4, v7\n v_add_u32 v{AVA}, s{sT+1}, v7')
E(f's_lshl_b32 s{sT+6}, s{sHg}, 5\n s_add_u32 s{sT+6}, s{sT+6}, s{sPb}\n s_lshl_b32 s{sT+6}, s{sT+6}, 7\n s_lshl_b32 s{sT+1}, s{sWave}, 2\n s_add_u32 s{sT+6}, s{sT+6}, s{sT+1}\n s_add_u32 s{sT+6}, s{sT+6}, {hex(WS_FKVB)}')
E(f's_cmp_lt_u32 s{sWave}, 4\n s_cbranch_scc1 L_A_GQ\n s_waitcnt lgkmcnt(0)')
mktag()
if WKD: E(f's_waitcnt vmcnt({OPT.get("wkw","7")})'); wkdma()
E(f'v_lshrrev_b32 v4, 4, v0\n v_lshlrev_b32 v4, 8, v4\n v_lshl_add_u32 v4, v5, 3, v4\n s_add_u32 s{sT}, s{sT}, {L_ST}\n v_add_u32 v4, s{sT}, v4')
E(f's_lshl_b32 s{sT+1}, s{sT+3}, 10\n s_add_u32 s{sT+1}, s{sT+1}, {L_PART}\n v_add_u32 v2, s{sT+1}, v6\n s_lshl_b32 s{sT+1}, s{sT+3}, 8\n s_add_u32 s{sT+1}, s{sT+1}, {L_PG}\n v_add_u32 v3, s{sT+1}, v11')
E('s_waitcnt vmcnt(0)')
for s_ in range(4): E(f'ds_read_b64_tr_b16 {vr(44+4*s_,2)}, v4 offset:{1024*s_}\n ds_read_b64_tr_b16 {vr(46+4*s_,2)}, v4 offset:{1024*s_+128}')
for s_ in range(4): E(f'v_mfma_f32_16x16x32_bf16 v[64:67], {vr(132+4*s_,4)}, {vr(116+4*s_,4)}, {"0" if s_==0 else "v[64:67]"}')
E(f's_cmp_lt_u32 s{sHg}, 4\n s_waitcnt lgkmcnt(0)\n s_cbranch_scc0 L_A_VJOB')
for s_ in range(4): E(f'v_mfma_f32_16x16x32_bf16 v[60:63], {vr(44+4*s_,4)}, {vr(116+4*s_,4)}, {"0" if s_==0 else "v[60:63]"}')
E('s_branch L_A_KVJ')
LBL('L_A_VJOB')
for s_ in range(4): E(f'v_mfma_f32_16x16x32_bf16 v[60:63], {vr(116+4*s_,4)}, {vr(44+4*s_,4)}, {"0" if s_==0 else "v[60:63]"}')
LBL('L_A_KVJ')
E('s_nop 0\n ds_write_b32 v3, v64\n s_nop 5\n ds_write_b128 v2, v[60:63]')
stamp('A',2,'kvA partial')
E('s_waitcnt lgkmcnt(0)')
tag_set(T_PT,sT+3,2)
E(f's_cmp_eq_u32 s{sWave}, 7\n s_cbranch_scc0 L_A_BS')
C('---- wave 7: reduce the four partial tiles, store, flag')
tag_wait(T_PT,4,2)
E(f'v_add_u32 v3, {L_PART}, v6\n v_add_u32 v4, {L_PG}, v11')
for i in range(4): E(f'ds_read_b128 {vr(116+4*i,4)}, v3 offset:{1024*i}')
for i in range(2): E(f'ds_read2st64_b32 {vr(148+2*i,2)}, v4 offset0:{2*i} offset1:{2*i+1}')
E(f's_lshl_b32 s{sT+3}, s{sPb}, 1\n s_lshr_b32 s{sT+4}, s{sT+9}, 1\n s_add_u32 s{sT+3}, s{sT+3}, s{sT+4}\n s_lshl_b32 s{sT+3}, s{sT+3}, 11\n s_add_u32 s{sT+3}, s{sT+3}, {hex(WS_KVA)}\n s_and_b32 s{sT+4}, s{sT+9}, 1')
E(f's_cmp_lt_u32 s{sHg}, 4\n s_cselect_b32 s{sT+5}, 9, 3\n s_cselect_b32 s{sT+7}, 3, 8\n s_cselect_b32 s{sT+1}, 8, 9\n s_cselect_b32 s{sT}, 0, 0x400')
E(f's_lshl_b32 s{sT+4}, s{sT+4}, s{sT+1}\n s_add_u32 s{sT+3}, s{sT+3}, s{sT+4}\n s_add_u32 s{sT+3}, s{sT+3}, s{sT}')
E(f'v_bfe_u32 v3, v0, 4, 1\n v_lshrrev_b32 v4, 5, v0\n v_lshlrev_b32 v5, 4, v5\n v_lshl_add_u32 v5, v3, s{sT+5}, v5\n v_lshl_add_u32 v5, v4, s{sT+7}, v5')
FPLS=int(OPT.get('fpl','2'))
E(f's_lshl_b32 s{sT+7}, s{sPb}, 3\n s_add_u32 s{sT+7}, s{sT+7}, s{sHg}\n s_and_b32 s{sT+1}, s{sT+7}, {(1<<FPLS)-1}\n s_lshr_b32 s{sT+7}, s{sT+7}, {FPLS}\n s_lshl_b32 s{sT+7}, s{sT+7}, 7\n s_lshl_b32 s{sT+1}, s{sT+1}, 2\n s_add_u32 s{sT+7}, s{sT+7}, s{sT+1}\n s_add_u32 s{sT+7}, s{sT+7}, {hex(WS_FKVA)}')
E('s_waitcnt lgkmcnt(2)')
for st_ in (8,4):
    for r in range(st_): E(f'v_add_f32 v{116+r}, v{116+r}, v{116+st_+r}')
cvt(116,116,117); cvt(117,118,119)
E(f'buffer_store_dwordx2 v[116:117], v5, {sr(sWS)}, s{sT+3} offen sc1')
E(f's_cmp_lt_u32 s{sHg}, 4\n s_waitcnt lgkmcnt(0)\n s_cbranch_scc0 L_A_SF')
for st_ in (2,1):
    for r in range(st_): E(f'v_add_f32 v{148+r}, v{148+r}, v{148+st_+r}')
E(f's_mov_b32 s{sT}, {hex(f2u(-math.log2(math.e)))}\n v_mul_f32 v148, s{sT}, v148\n v_exp_f32 v148, v148')
E(f's_lshl_b32 s{sT}, s{sPb}, 2\n s_add_u32 s{sT}, s{sT}, s{sT+9}\n v_add_f32 v148, 1.0, v148\n v_rcp_f32 v148, v148\n s_lshl_b32 s{sT}, s{sT}, 6\n s_add_u32 s{sT}, s{sT}, {hex(WS_G)}')
E(f's_mov_b64 exec, 0xffff\n buffer_store_dword v148, v11, {sr(sWS)}, s{sT} offen sc1\n s_mov_b64 exec, -1')
LBL('L_A_SF')
E('s_waitcnt vmcnt(0)')
flag_store(sT+7,2)
stamp('A',3,'kvA flag sent')
LBL('L_A_BS')
E(f's_cmp_eq_u32 s{sWave}, 6\n s_cbranch_scc0 L_A_B8')
C('---- wave 6: wait for every K/V piece, fetch this WG\'s share into L2, tell the projection waves')
E(f'v_lshlrev_b32 v16, 7, v0\n v_lshrrev_b32 v17, {FPLS-2}, v0\n v_lshlrev_b32 v17, 7, v17\n v_and_b32 v18, {(1<<(FPLS-2))-1}, v0\n v_lshl_add_u32 v17, v18, 4, v17\n v_add_u32 v17, {hex(WS_FKVA)}, v17')
E(f'v_mov_b32 v2, s{sTag}\n ds_write_b32 v{vZ}, v2 offset:{T_TAG-L_ST}')
tag_wait(T_PT,4,2)
tag_wait(T_PL,1,2,sleep=2)
C('lanes whose four flags are in drop out of the next look')
E(f's_mov_b32 s{sCnt}, {SPIN_LIMIT}')
LBL('L_A_PL')
E(f'buffer_load_dwordx4 v[12:15], v17, {sr(sWS)}, 0 offen sc1\n s_waitcnt vmcnt(0)')
for i in range(4): E(f'v_xor_b32 v{12+i}, s{sTag}, v{12+i}')
E(f'v_or3_b32 v12, v12, v13, v14\n v_or_b32 v12, v12, v15\n v_cmp_ne_u32 vcc, 0, v12\n s_cbranch_vccz L_A_PLD\n s_sub_u32 s{sCnt}, s{sCnt}, 1\n s_cbranch_scc1 L_A_PLD\n s_mov_b64 exec, vcc\n s_sleep {OPT.get("psl","16")}\n s_branch L_A_PL')
LBL('L_A_PLD')
E('s_mov_b64 exec, -1')
E(f's_lshr_b32 s{sT+5}, s2, 3\n s_lshl_b32 s{sT+5}, s{sT+5}, 12\n s_add_u32 s{sT+5}, s{sT+5}, {hex(WS_KVA)}')
E(f's_mov_b32 exec_hi, 0\n buffer_load_dword v117, v16, {sr(sWS)}, s{sT+5} offen sc1\n s_mov_b64 exec, -1')
tag_set(T_FL,None,2)
stamp('A',3,'kvA flag sent')
E(f's_lshr_b32 s{sT+5}, s2, 3\n s_and_b32 s{sT+5}, s{sT+5}, 3\n s_lshl_b32 s{sT+5}, s{sT+5}, 14\n s_add_u32 s{sT+5}, s{sT+5}, {hex(WS_KVA)}')
for q in range(4):
    E(f's_mov_b32 m0, {L_ST+4096*q}\n s_add_u32 s{sT+4}, s{sT+5}, {4096*q}')
    for i in range(4): E(f'buffer_load_dwordx4 v6, {sr(sWS)}, s{sT+4} offen offset:{1024*i} sc1 lds')
E('s_waitcnt vmcnt(0)')
tag_set(T_K0,None,2)
stamp('A',7,'G1')
E(f's_cmp_eq_u32 s2, 0\n s_cbranch_scc0 L_A_B8\n s_mov_b32 s{sT}, 0')
flag_store(sT,2)
E('s_branch L_A_B8')
LBL('L_A_GQ')
PAC=[44,60,128,144]; PFR=[12,112,92]
def areads_l(st):
    f=PFR[st%3]; so=(st%8)*2048; o=[]
    for i in range(2): o+= [f'ds_read_b64_tr_b16 {vr(f+4*i,2)}, v{WA+i} offset:{so}', f'ds_read_b64_tr_b16 {vr(f+4*i+2,2)}, v{WA+i} offset:{so+512}']
    for t in range(2): o.append(f'ds_read_b128 {vr(f+8+4*t,4)}, v{XA+st%4} offset:{(st//4)*8192+4096*t}')
    return o
def areads(st):
    for p in areads_l(st): E(p)
def kv_parts(p):
    VQ.extend(['kv']*2)
    return [f's_add_u32 m0, s{sRing}, {p*2048}\n s_add_u32 s{sT+4}, s{sT+5}, {p*2048}']+[f'buffer_load_dwordx4 v6, {sr(sWS)}, s{sT+4} offen offset:{1024*n} sc1 lds' for n in range(2)]
def kvpiece(p):
    for q in kv_parts(p): E(q)
for st in range(NW0,8): wdma(st)
E(f's_sub_u32 s{sT+4}, s{sWave}, 1\n s_cmp_eq_u32 s{sWave}, 1\n s_cselect_b32 s{sT+4}, 3, s{sT+4}\n s_lshr_b32 s{sT+5}, s2, 3\n s_add_u32 s{sT+5}, s{sT+5}, s{sT+4}\n s_and_b32 s{sT+5}, s{sT+5}, 3\n s_lshl_b32 s{sT+5}, s{sT+5}, 14\n s_add_u32 s{sT+5}, s{sT+5}, {hex(WS_KVA)}')
tag_wait(T_X0,4,2) if XD else tag_wait(T_X,1,2)
stamp('A',7,'G1')
vwait('w0'); areads(0); vwait('w1'); areads(1)
VQ0=list(VQ)
PLK=int(OPT.get('plk','15'))
E(f's_cmp_eq_u32 s{sWave}, 3\n s_cbranch_scc1 L_A_GV')
def gstep(var,st,kv):
    f=PFR[st%3]
    def mm(i,t):
        d=PAC[2*i+t]; c='0' if st==0 else None
        if var==0: mfma(d,f+4*i,f+8+4*t,c)
        else: mfma(d,f+8+4*t,f+4*i,c)
    vwait(f'w{st+2}',f' lgkmcnt({6 if st<31 else 0})')
    rd=areads_l(st+2) if st+2<32 else []
    dm=wdma_parts(st+8) if st+8<32 else (kv_parts(st%8) if kv else [])
    gaps=[rd[0:2]+dm[0:1], rd[2:4]+dm[1:2], rd[4:6], dm[2:3]]
    if st>=30: gaps=[[f'v_mov_b32 v{OB+8*(st-30)+2*q+r}, 0' for r in range(2)]+gaps[q] for q in range(4)]
    for q,(i,t) in enumerate(((0,0),(0,1),(1,0),(1,1)) if st<31 else ((1,0),(1,1),(0,0),(0,1))):
        if not (OPT.get('halfm') and q&1 and 0<st<31): mm(i,t)
        for p in gaps[q]: E(p)
for var in (0,1):
    if var: LBL('L_A_GV')
    VQ[:]=VQ0
    for st in range(24):
        if OPT.get('hold') and st==0:
            E(f's_cmp_eq_u32 s{sWave}, 0\n s_cbranch_scc1 L_A_NH{var}'); tag_wait(T_H,1,2,sleep=2); LBL(f'L_A_NH{var}')
        if OPT.get('hold') and var==0 and st==int(OPT.get('hold')):
            E(f's_cmp_eq_u32 s{sWave}, 0\n s_cbranch_scc0 L_A_NH2'); tag_set(T_H,None,2); E('s_waitcnt lgkmcnt(0)'); LBL('L_A_NH2')
        if st==2: E('s_waitcnt lgkmcnt(0)'); tag_wait(T_X,4,2)
        if st==14: E('s_waitcnt lgkmcnt(0)'); tag_wait(T_X+16,4,2)
        if st==PLK and var==1: tag_set(T_PL,None,2); E('s_waitcnt lgkmcnt(0)')
        gstep(var,st,False)
    stamp('A',2,'step 24'); cstamp('A',10,'s24')
    if var==0: E(f's_cmp_eq_u32 s{sWave}, 0\n s_cbranch_scc1 L_A_G0')
    tag_wait(T_FL,1,2,once=f'L_A_GK{var}')
    if var==0: LBL('L_A_G0')
    V1=list(VQ)
    for st in range(24,32): gstep(var,st,False)
    if var==0: E(f's_cmp_eq_u32 s{sWave}, 0\n s_cbranch_scc1 L_A_GE0')
    tag_wait(T_FL,1,2)
    for p in range(8): kvpiece(p)
    E(f's_branch L_A_GE{var}')
    LBL(f'L_A_GK{var}')
    VQ[:]=V1
    for st in range(24,32): gstep(var,st,True)
    LBL(f'L_A_GE{var}')
    stamp('A',1,'proj loop done'); cstamp('A',11,'pl')
    if OPT.get('ep','1')=='1': E('s_setprio 3')
    E(f's_lshl_b32 s{sT+4}, s{sHg}, 8\n s_lshl_b32 s{sT+5}, s{sPb}, 1\n s_add_u32 s{sT+4}, s{sT+4}, s{sT+5}\n s_lshl_b32 s{sT+4}, s{sT+4}, 11\n s_add_u32 s{sT+4}, s{sT+4}, {hex(WS_KVB)}')
    if var==0:
        E(f's_cmp_eq_u32 s{sWave}, 2\n s_cbranch_scc1 L_A_EK')
        C('q (A / B): scale, pack, hand over through LDS')
        E(f's_cmp_eq_u32 s{sWave}, 0\n s_cbranch_scc1 L_A_Q0')
        tag_wait(T_G,1,2)
        LBL('L_A_Q0')
        E(f's_lshl_b32 s{sT+1}, s{sWave}, 13\n s_add_u32 s{sT+1}, s{sT+1}, {L_QA}\n v_add_u32 v3, s{sT+1}, v6\n s_mov_b32 s{sT+2}, {hex(CSCALE)}\n s_mov_b32 s{sT+3}, {hex(CSCALE)}\n s_lshl_b32 s{sT+1}, s{sWave}, 2\n s_add_u32 s{sT+1}, s{sT+1}, {T_Q1}\n v_mov_b32 v4, s{sT+1}\n v_mov_b32 v5, 1')
        for i in (1,0):
            for t in range(2):
                d=PAC[2*i+t]
                for r in range(0,16,2): E(f'v_pk_mul_f32 {vr(d+r,2)}, {vr(d+r,2)}, {sr(sT+2,2)}')
                for r in range(8): cvt(d+r,d+2*r,d+2*r+1)
                for hh in range(2): E(f'ds_write_b128 v3, {vr(d+4*hh,4)} offset:{(2*i+hh)*2048+1024*t}')
            if i==1: E(f's_mov_b64 exec, 1\n ds_write_b32 v4, v5\n s_mov_b64 exec, -1')
        E('s_waitcnt vmcnt(0) lgkmcnt(0)')
        tag_set(T_G,sWave,2)
        E('s_branch L_A_B8')
        LBL('L_A_EK')
        E('s_waitcnt vmcnt(0)')
        tag_set(T_G,sWave,2)
        for i in range(2):
            for t in range(2):
                d=PAC[2*i+t]
                for r in range(8): cvt(d+r,d+2*r,d+2*r+1)
                for hh in range(2): E(f's_add_u32 s{sT+5}, s{sT+4}, {(2*i+hh)*131072}\n buffer_store_dwordx4 {vr(d+4*hh,4)}, v6, {sr(sWS)}, s{sT+5} offen offset:{2048*t} sc1')
        E('s_branch L_A_B8')
    else:
        E('s_waitcnt vmcnt(0)')
        tag_set(T_G,sWave,2)
        E('v_bfe_u32 v3, v0, 4, 1\n v_lshl_add_u32 v3, v3, 17, v7')
        for i in range(2):
            for t in range(2):
                d=PAC[2*i+t]
                for r in range(8): cvt(d+r,d+2*r,d+2*r+1)
                E('s_nop 1')
                for gq in range(2): E(f'v_permlane32_swap_b32 v{d+4*gq}, v{d+4*gq+2}\n v_permlane32_swap_b32 v{d+4*gq+1}, v{d+4*gq+3}')
                E(f's_add_u32 s{sT+5}, s{sT+4}, {i*2*131072}')
                for gq in range(2): E(f'buffer_store_dwordx4 {vr(d+4*gq,4)}, v3, {sr(sWS)}, s{sT+5} offen offset:{2048*t+1024+512*gq} sc1')
LBL('L_A_B8')
E(f's_cmp_lt_u32 s{sWave}, 4\n s_cbranch_scc1 L_A_KP\n s_setprio 0')
LBL('L_A_KP')
E(f's_and_b32 s{sT+1}, s{sWave}, 2\n s_lshr_b32 s{sT+2}, s{sWave}, 2\n s_add_u32 s{sT+1}, s{sT+1}, s{sT+2}\n s_lshl_b32 s{sT+1}, s{sT+1}, 11\n s_and_b32 s{sT+2}, s{sWave}, 1\n s_lshl_b32 s{sT+2}, s{sT+2}, 10\n s_add_u32 s{sT+1}, s{sT+1}, s{sT+2}\n s_add_u32 s{sT+1}, s{sT+1}, {L_QA}\n v_add_u32 v2, s{sT+1}, v6\n v_xor_b32 v3, 0x800, v2')
AK0=120; AV0=121; AEX=122; AG=126
E(f'v_add_u32 v{AK0}, {L_ST}, v{AKA}\n v_add_u32 v{AV0}, {L_ST}, v{AVA}')
E(f's_and_b32 s{sT+2}, s{sWave}, 3\n s_mul_i32 s{sT+1}, s{sT+2}, 4608\n s_add_u32 s{sT+1}, s{sT+1}, {L_EX}\n v_add_u32 v{AEX}, s{sT+1}, v6\n v_add_u32 v{AEX+1}, s{sT+1}, v11')
E(f's_lshl_b32 s{sT+2}, s{sT+2}, 2\n s_add_u32 s{sT+2}, s{sT+2}, {C_PR}\n v_mov_b32 v{AEX+2}, s{sT+2}')
E(f's_and_b32 s{sT+1}, s{sWave}, 1\n s_lshl_b32 s{sT+2}, s{sPb}, 1\n s_add_u32 s{sT+1}, s{sT+1}, s{sT+2}\n s_lshl_b32 s{sT+1}, s{sT+1}, 7\n s_add_u32 s{sT+1}, s{sT+1}, {hex(WS_G)}\n v_and_b32 v127, 0x7c, v11')
tag_wait(T_K0,1,4,sleep=int(OPT.get('asl','2')))
if OPT.get('up2','1')=='1': E('s_setprio 2')
E(f'buffer_load_dword v{AG}, v127, {sr(sWS)}, s{sT+1} offen sc1')
tag_get(4)
def kvoff(j):
    return (j%4)*4096+(0 if j<4 else KVPOS[j//4]-(65536 if j>=16 else 0))
def ldk(j): E(f'ds_read_b128 {vr(AK+4*(j&1),4)}, v{AK0 if j<4 else AKA} offset:{kvoff(j)}')
def ldv(j): E(f's_mov_b64 exec, {sr(sVM,2)}\n ds_read_b128 {vr(AV+8*(j&1),4)}, v{AV0 if j<4 else AVA} offset:{kvoff(j)+1024}\n ds_read_b128 {vr(AV+8*(j&1)+4,4)}, v{AV0 if j<4 else AVA} offset:{kvoff(j)+1536}\n s_mov_b64 exec, -1')
ldk(0); ldv(0); ldk(1)
E(f's_bitcmp1_b32 s{sWave}, 1\n s_cbranch_scc0 L_A_WL')
tag_wait(T_Q1,1,4,sleep=int(OPT.get('asl2','1')))
E('s_branch L_A_WD')
LBL('L_A_WL')
tag_wait(T_G,1,4,sleep=int(OPT.get('asl2','1')))
LBL('L_A_WD')
stamp('A',4,'BQ'); cstamp('A',8,'BQ')
E(f'ds_read_b128 {vr(AQ0,4)}, v2\n ds_read_b128 {vr(AQ1,4)}, v3')
if PRIO in ('step','step4'): E('s_setprio 2')
E('s_waitcnt lgkmcnt(0)'); mfma(SA,AK,AQ0,'0')
E('s_nop 11')
def pair_iter(j,ldk_,ldv_,first=False,last=0,extra=0):
    kc=AK+4*(j&1); kn=AK+4*((j+1)&1); vc=AV+8*(j&1); vp=AV+8*((j+1)&1)
    vexp(SA); vexp(SA+1)
    if not first: smf(OB,vp+4,SB+8,AIDX)
    for r in range(2,5): vexp(SA+r)
    mfma(SB,kc,AQ1,'0')
    for r in range(5,10): vexp(SA+r)
    E(f's_waitcnt lgkmcnt({(1 if last<2 else 0)+extra})')
    vexp(SA+10); smf(OA,vc,SA,AIDX)
    for r in range(11,16): vexp(SA+r)
    vexp(SB); vexp(SB+1); smf(OA,vc+4,SA+8,AIDX)
    if last<2: ldv_()
    for r in range(2,5): vexp(SB+r)
    if last<2:
        E('s_waitcnt lgkmcnt(2)'); mfma(SA,kn,AQ0,'0')
    if last<1: ldk_()
    for r in range(5,11): vexp(SB+r)
    smf(OB,vc,SB,AIDX)
    for r in range(11,16): vexp(SB+r)
def aflag(force,init=False):
    sk=uid('fl')
    E(f's_cmp_eq_u32 s{sT+5}, 0\n s_cbranch_scc0 {sk}')
    if not force: E(f's_getreg_b32 s{sT}, hwreg(HW_REG_IB_STS, 0, 4)\n s_cmp_eq_u32 s{sT}, 0\n s_cbranch_scc0 {sk}')
    E(f's_waitcnt vmcnt(0)\n s_mov_b32 s{sT+5}, 1'); flag_store(sT+6,2); LBL(sk)
if ROLL:
    AKN=120; AVN=121; sC=sT+4
    def rk(j):
        a_=AKA if j<4 else AKN
        return lambda: E(f'ds_read_b128 {vr(AK+4*(j&1),4)}, v{a_} offset:{(j%4)*4096}')
    def rv(j):
        a_=AVA if j<4 else AVN
        return lambda: E(f's_mov_b64 exec, {sr(sVM,2)}\n ds_read_b128 {vr(AV+8*(j&1),4)}, v{a_} offset:{(j%4)*4096+1024}\n ds_read_b128 {vr(AV+8*(j&1)+4,4)}, v{a_} offset:{(j%4)*4096+1536}\n s_mov_b64 exec, -1')
    for r in range(8,16): E(f'v_mov_b32 v{SB+r}, 0')
    E(f'v_add_u32 v{AKN}, 0x8000, v{AKA}\n v_add_u32 v{AVN}, 0x8000, v{AVA}\n v_add_u32 v{AKA}, 0x4000, v{AKA}\n v_add_u32 v{AVA}, 0x4000, v{AVA}\n s_mov_b32 s{sC}, 0\n s_mov_b32 s{sT+5}, 0')
    L.append('.p2align 6')
    LBL('L_A_LOOP')
    pair_iter(0,rk(2),rv(1)); pair_iter(1,rk(3),rv(2))
    E(f's_cmp_gt_u32 s{sC}, 6\n s_cbranch_scc1 L_A_LAST\n s_bitcmp1_b32 0x5f, s{sC}\n s_cbranch_scc1 L_A_RARE')
    LBL('L_A_RBACK')
    pair_iter(2,rk(4),rv(3)); pair_iter(3,rk(5),rv(4))
    E(f's_add_u32 s{sC}, s{sC}, 1\n s_mov_b32 s{sT+1}, 0x4000\n s_cmp_eq_u32 s{sC}, 2\n s_cselect_b32 s{sT+1}, {hex((-49152)&0xffffffff)}, s{sT+1}\n s_cmp_eq_u32 s{sC}, 3\n s_cselect_b32 s{sT+1}, {hex((-65536)&0xffffffff)}, s{sT+1}')
    E(f'v_mov_b32 v{AKA}, v{AKN}\n v_mov_b32 v{AVA}, v{AVN}\n v_add_u32 v{AKN}, s{sT+1}, v{AKN}\n v_add_u32 v{AVN}, s{sT+1}, v{AVN}\n s_branch L_A_LOOP')
    LBL('L_A_RARE')
    E(f's_waitcnt lgkmcnt(0)\n s_cmp_gt_u32 s{sC}, 3\n s_cbranch_scc1 L_A_R4')
    E(f's_cmp_eq_u32 s{sC}, 0\n s_cbranch_scc0 L_A_R1'); lds_spin(C_K1,None,4,vZ,2,sleep=0)
    LBL('L_A_R1')
    E(f's_cmp_eq_u32 s{sC}, 2\n s_cbranch_scc0 L_A_R2'); lds_spin(C_K2,None,4,vZ,2,sleep=1)
    LBL('L_A_R2')
    E(f's_cmp_eq_u32 s{sC}, 3\n s_cbranch_scc1 L_A_R3'); aflag(False); E('s_branch L_A_RBACK')
    LBL('L_A_R3'); aflag(True); E('s_branch L_A_RBACK')
    LBL('L_A_R4')
    E(f's_cmp_eq_u32 s{sC}, 4\n s_cbranch_scc0 L_A_R6'); lds_add(C_MID,1,vZ,2); E('s_waitcnt lgkmcnt(0)\n s_branch L_A_RBACK')
    LBL('L_A_R6'); lds_spin(C_MID,None,8,vZ,2,sleep=1); E('s_branch L_A_RBACK')
    LBL('L_A_LAST')
    pair_iter(2,None,rv(3),last=1); pair_iter(3,None,None,last=2)
else:
    E(f's_and_b32 s{sT+5}, s{sWave}, 6\n s_cmp_eq_u32 s{sT+5}, 2\n s_cselect_b32 s{sT+5}, 0, 1')
    for j in range(32):
        if j in (2,6,10): E('s_waitcnt lgkmcnt(0)'); tag_wait(T_G+4*{2:2,6:3,10:1}[j],1,2)
        if j in (1,2,3,5): aflag(j==5)
        PJ=[int(x) for x in OPT.get('pj','16,29').split(',')]
        if PRIO=='step' and j in PJ: E(f's_setprio {1 if j==PJ[0] else 0}')
        if PRIO=='step4' and j in (6,16): E(f's_setprio {1 if j==6 else 0}')
        if OPT.get('jst') and j in (2,4,8,16,24): E('s_waitcnt lgkmcnt(0)'); cstamp('A',{2:1,4:2,8:3,16:7,24:10}[j],f'J{j}')
        if j==14: E('s_waitcnt lgkmcnt(0)'); lds_spin(C_K2,None,4,vZ,2,sleep=1)
        if j==16: lds_add(C_MID,1,vZ,2)
        if j==28: E('s_waitcnt lgkmcnt(0)'); lds_spin(C_MID,None,0x408,vZ,2,sleep=1)
        def lv(j=j):
            if j==15: E(f'v_add_u32 v{AVA}, 0x10000, v{AVA}')
            ldv(j+1)
        def lk(j=j):
            if j==14: E(f'v_add_u32 v{AKA}, 0x10000, v{AKA}')
            ldk(j+2)
        if j==31:
            C('has the partner of this wave (same queries, other keys) already left its sums ?  if so they arrive during the last tile')
            E(f'ds_read_b32 v127, v{AEX+2} offset:16\n ds_read_b32 v125, v{vZ} offset:{C_LOC-L_ST}')
            for q in range(2): E(f'ds_read_b128 {vr(128+12*q,4)}, v{AEX} offset:{2304*q}\n ds_read_b128 {vr(132+12*q,4)}, v{AEX} offset:{2304*q+1024}\n ds_read_b32 v{136+12*q}, v{AEX+1} offset:{2304*q+2048}')
        pair_iter(j,lk,lv,first=(j==0),last=(2 if j==31 else 1 if j==30 else 0),extra=(1 if j==16 else 0))
E('s_nop 1'); smf(OB,AV+8+4,SB+8,AIDX)
stamp('A',5,'A loop done'); cstamp('A',9,'loop done')
C('---- the first wave of a pair to finish leaves both partial sums in LDS and ends ; the second one finishes both heads')
E(f'v_readfirstlane_b32 s{sT+1}, v127\n v_readfirstlane_b32 s{sT+9}, v125\n s_cmp_eq_u32 s{sT+1}, 1\n s_cbranch_scc1 L_A_LATE')
E(f'v_mov_b32 v2, 1\n s_mov_b64 exec, 1\n ds_add_rtn_u32 v3, v{AEX+2}, v2\n s_mov_b64 exec, -1\n s_waitcnt lgkmcnt(0)\n v_readfirstlane_b32 s{sT+1}, v3\n s_cmp_eq_u32 s{sT+1}, 0\n s_cbranch_scc0 L_A_TIE\n s_nop 3')
for q,O in enumerate((OA,OB)): E(f'ds_write_b128 v{AEX}, {vr(O,4)} offset:{2304*q}\n ds_write_b128 v{AEX}, {vr(O+4,4)} offset:{2304*q+1024}\n ds_write_b32 v{AEX+1}, v{O+8} offset:{2304*q+2048}')
E(f's_mov_b64 exec, 1\n ds_write_b32 v{AEX+2}, v2 offset:16\n s_mov_b64 exec, -1\n s_waitcnt lgkmcnt(0)')
if OPT.get('dry','0')=='1': E('s_mov_b64 exec, 0\n s_branch L_A_LATE')
else: E('s_branch L_A_STD')
LBL('L_A_TIE')
E(f's_mov_b32 s{sCnt}, {SPIN_LIMIT}')
LBL('L_A_TI2')
E(f'ds_read_b32 v127, v{AEX+2} offset:16')
for q in range(2): E(f'ds_read_b128 {vr(128+12*q,4)}, v{AEX} offset:{2304*q}\n ds_read_b128 {vr(132+12*q,4)}, v{AEX} offset:{2304*q+1024}\n ds_read_b32 v{136+12*q}, v{AEX+1} offset:{2304*q+2048}')
E(f's_waitcnt lgkmcnt(0)\n v_readfirstlane_b32 s{sT+1}, v127\n s_cmp_eq_u32 s{sT+1}, 1\n s_cbranch_scc1 L_A_LATE\n s_sub_u32 s{sCnt}, s{sCnt}, 1\n s_cbranch_scc0 L_A_TI2')
LBL('L_A_LATE')
for r in range(9): E(f'v_add_f32 v{OA+r}, v{OA+r}, v{140+r}')
E('s_waitcnt vmcnt(0)')
def setupA(): E(f's_mov_b32 s{sT+2}, {hex(WS_KVA)}\n s_mov_b32 s{sT+3}, 64')
for q,(O,Q_) in enumerate(((OA,AQ0),(OB,AQ1))):
    if q==1:
        for r in range(9): E(f'v_add_f32 v{OB+r}, v{OB+r}, v{128+r}')
    dst=152+4*q
    finalize(O,dst,2,f'L_FB_A{q}',f'L_FB_A{q}_BACK',126)
    if q==1: E(f's_xor_b32 s{sOA}, s{sOA}, 0x400')
    E(f's_cbranch_execz L_A_ST{q}\n s_cmp_eq_u32 s{sT+9}, 0\n s_cbranch_scc1 L_A_FAR{q}\n buffer_store_dwordx4 {vr(dst,4)}, v6, {sr(sWS)}, s{sOA} offen\n s_branch L_A_ST{q}')
    LBL(f'L_A_FAR{q}')
    E(f'buffer_store_dwordx4 {vr(dst,4)}, v6, {sr(sWS)}, s{sOA} offen sc1')
    LBL(f'L_A_ST{q}')
    fallback(f'L_FB_A{q}',f'L_FB_A{q}_BACK',Q_,O,SA,AK,AV,AIDX,3,6,7,None,setupA)
LBL('L_A_STD')
if DIAG: E('s_mov_b64 exec, -1')
stamp('A',6,'oA published')
stamp_flush(12,'A')
LBL('L_END')
E('s_endpgm')
L.append('L_CODE_END:')
L.extend(TAIL)
L.append('    s_endpgm\n.fill 1200, 4, 0xbf810000')

hdr=open('cdna_kernels/%s.s.ref'%NAME).read().split('; Override launch')[0]
txt=hdr
txt+=f'; @launch grid=(256,1,1) block=(768,1,1) lds={LDS_TOTAL}\n'
DOC="""
One workgroup per CU: WG = (64 positions pb, 4 heads hg); 8 "A" waves + 4 "B" waves, LDS 160 KB.
 head : waves 0-3 project q(A), q/k/v(B) (weights streamed by LDS-DMA through private rings, transposing LDS reads),
        waves 4-7 make this WG's 16-position piece of the shared K/V (and the gate), publish it, wait for all pieces.
 main : A waves - MQA over all 2048 keys (S^T = K Q^T, exp2 in place, P^T fed raw to a 2:4 sparse MFMA that picks the
        high halves = bf16 P; a row of ones in V^T gives the row sums).  B waves - window attention, then B out-projection.
 tail : o (already divided by the row sum and scaled by g or 1-g) is handed to the WGs of the same positions,
        B waves finish out = [g oA | (1-g) oB] [woA ; woB].
 softmax guard: exp2 runs on unshifted scores; every row's sum must lie in [2^-24, 2^60] and its numerators must be finite,
        otherwise that query tile is redone with the true row maximum (L_FB_*: max pass, then exp2(s - max)).
 hand-offs in d_ws carry a tag derived from the epoch word found at ws[0] (advanced once per launch), or overwrite a
        'not yet written' mark; all are write-through + acknowledged, except o between WGs that report the same XCC id.
"""
for l in DOC.strip('\n').split('\n'): txt+='; '+l+'\n'
for n in () if not DIAG and not OPT.get('consts') else ('WS_KVA','WS_KVB','WS_OA','WS_OB','WS_STAMP','NSTAMP'): txt+=f'; CONST {n} = {hex(globals()[n])}\n'
for r,i,n in STN: txt+=f'; STAMPNAME {r} {i} {n}\n'
txt+=f'''.amdgcn_target "amdgcn-amd-amdhsa--gfx950"
.text
.globl {NAME}_kernel
.p2align 8
.type {NAME}_kernel,@function
{NAME}_kernel:
'''+'\n'.join(L)+f'''
.section .rodata,"a"
.p2align 6
.amdhsa_kernel {NAME}_kernel
  .amdhsa_next_free_vgpr 168
  .amdhsa_next_free_sgpr 102
  .amdhsa_accum_offset 168
  .amdhsa_group_segment_fixed_size 0
  .amdhsa_kernarg_size 96
  .amdhsa_user_sgpr_count 2
  .amdhsa_user_sgpr_kernarg_segment_ptr 1
  .amdhsa_system_sgpr_workgroup_id_x 1
.end_amdhsa_kernel
'''
open(OUT,'w').write(txt)
print('wrote',OUT,len(L),'lines')
```

```python
import sys, math, struct
NAME='gated_mix__grouped_kv_mqa__sliding_block__prompt'
DIAG = '--diag' in sys.argv
OUT = [a for a in sys.argv[1:] if not a.startswith('--')]
OUT = OUT[0] if OUT else 'cdna_kernels/%s.s'%NAME
OPT=dict(a.lstrip('-').split('=') for a in sys.argv[1:] if a.startswith('--') and '=' in a)
MAP=OPT.get('map','b'); ROT=OPT.get('rot','full'); PRIO=OPT.get('prio','step'); FLAG_IT=int(OPT.get('flagit','1')); PK=int(OPT.get('pk','7')); FORCE_K=int(OPT.get('forcek','7')); SENTK=int(OPT.get('sentk','14')); DENSE=OPT.get('dense','0')=='1'; ROLL=OPT.get('roll','0')=='1'; WT=OPT.get('wtouch','0')=='1'; KVK=int(OPT.get('kvk','13'))
def f2u(f): return struct.unpack('<I',struct.pack('<f',f))[0]

WS_EPOCH=0x0
WS_FKVA=0x1000
WS_FKVB=0x4000
WS_FOB =0xC000
WS_FOA =0x14000
WS_G   =0x1C000
WS_KVA =0x20000
WS_QB  =0x40000
WS_KVB =0x240000
WS_OA  =0x640000
WS_OB  =0x840000
WS_STAMP=0xA40000
NSTAMP=16
L_WQ=0; L_X=65536; L_ST=131072; L_CTL=L_ST+30720
L_GW=L_CTL; L_G=L_CTL+1024; L_C=L_CTL+1024+256
C_X=L_C+0
C_Q=L_C+4
C_K0=L_C+8; C_K1=L_C+12; C_K2=L_C+16; C_BP=L_C+20; C_MID=L_C+24; C_WO=L_C+28; C_WD=L_C+32; C_QR=L_C+36; C_SN=L_C+40; C_LOC=L_C+44; T_PT=L_C+256; T_X=L_C+272; T_PL=L_C+304; T_FL=L_C+308; T_G=L_C+320; T_X0=L_C+336; T_K0=L_C+352; T_Q1=L_C+356; T_H=L_C+368; T_TAG=L_C+372; C_PR=L_C+384; T_PR=L_C+400
L_EX=L_ST
LDS_TOTAL=163840
SPIN_LIMIT=400000
CSCALE=f2u(0.25*math.log2(math.e))
NEGBIG=f2u(-1e9)
L_LO=f2u(2.0**-24); L_HI=f2u(2.0**60)

sX=28; sWQ=32; sWKV=36; sWB=40; sWOA=44; sWOB=48; sG=52; sOUT=56; sWS=60; sDBG=64
sWave=68; sPb=69; sHg=70; sTag=71
sT=72
sCnt=84; sB=85
sXcc=65
sVM=86
sST=88
vZ=1
L=[]
def E(s):
    for ln in s.split('\n'):
        if ln.strip(): L.append('    '+ln.strip())
def LBL(s): L.append(s+':')
def C(s): L.append('    ; '+s)
_uid=[0]
def uid(p):
    _uid[0]+=1; return f'{p}_{_uid[0]}'
def vr(a,n): return f'v[{a}:{a+n-1}]'
def sr(a,n=4): return f's[{a}:{a+n-1}]'
def srd(dst,ptr,nbytes):
    E(f's_mov_b32 s{dst}, s{ptr}\n s_mov_b32 s{dst+1}, s{ptr+1}\n s_mov_b32 s{dst+2}, {hex(nbytes)}\n s_mov_b32 s{dst+3}, 0x20000')
STN=[]
def stamp(role,i,name):
    if OPT.get('acc') and role=='B' and i==10: return
    if OPT.get('jst') and role=='A' and i in (1,2,3,7): return
    if OPT.get('bst') and role=='B' and i in (6,7,8,9) and not name.startswith('arrive'): return
    if not DIAG: return
    STN.append((role,i,name))
    E(f's_memrealtime s[100:101]\n s_waitcnt lgkmcnt(0)\n s_mov_b32 s{sST+i}, s100')
ECHO=OPT.get('echo')
def echo_mark(name):
    if ECHO==name or name=='start' and ECHO:
        r=98 if name=='start' else 99
        E(f's_memrealtime s[100:101]\n s_waitcnt lgkmcnt(0)\n s_mov_b32 s{r}, s100')
def echo_end():
    if not ECHO: return
    E('s_waitcnt vmcnt(0)'); echo_mark('end')
    E('s_memrealtime s[100:101]\n s_waitcnt lgkmcnt(0)\n s_sub_u32 s99, s99, s98\n s_mul_i32 s99, s99, '+OPT.get('amp','1')+'\n s_add_u32 s99, s99, s100')
    LBL('L_ECHO')
    E('s_memrealtime s[100:101]\n s_waitcnt lgkmcnt(0)\n s_sub_u32 s100, s100, s99\n s_cmp_lt_i32 s100, 0\n s_cbranch_scc1 L_ECHO')
def cstamp(role,i,name):
    if OPT.get('jst') and i in (10,11) and not name.startswith('J'): return
    if not DIAG: return
    STN.append((role,i,'CYC '+name))
    E(f's_memtime s[100:101]\n s_waitcnt lgkmcnt(0)\n s_mov_b32 s{sST+i}, s100')
def tacc(role,i,name,code):
    if not (DIAG and OPT.get('acc')): E(code); return
    if (role,i,'ACC '+name) not in STN: STN.append((role,i,'ACC '+name))
    E(f's_memtime s[100:101]\n s_waitcnt lgkmcnt(0)\n s_sub_u32 s{sST+i}, s{sST+i}, s100')
    E(code)
    E(f's_memtime s[100:101]\n s_waitcnt lgkmcnt(0)\n s_add_u32 s{sST+i}, s{sST+i}, s100')
def stamp_flush(nmax,role='B'):
    if not DIAG: return
    if OPT.get('dbg'):
        m={'A':[(0,1),(2,2),(7,3),(3,4),(1,5),(4,6),(5,7),(6,8)],'B':[(4,9),(6,10),(7,11),(9,12),(10,13),(11,14)]}[role]
        sk=uid('nd')
        srd(sDBG,24,256)
        E(f's_bfe_u32 s{sT}, s2, 0x30003\n s_cmp_eq_u32 s{sT}, 0\n s_cbranch_scc0 {sk}\n v_mov_b32 v2, 0\n s_not_b32 s{sT}, s{sST}\n v_writelane_b32 v2, s{sT}, 0')
        for i,sl in m: E(f'v_writelane_b32 v2, s{sST+i}, {sl}')
        E(f'v_lshlrev_b32 v3, 2, v0\n s_mov_b64 exec, 0xffff\n buffer_atomic_umax v2, v3, {sr(sDBG)}, 0 offen sc1\n s_mov_b64 exec, -1')
        LBL(sk)
        return
    if OPT.get('hwid'): E(f's_getreg_b32 s{sST+11}, hwreg(HW_REG_HW_ID)\n s_getreg_b32 s{sST+10}, hwreg(HW_REG_XCC_ID)')
    E('v_mov_b32 v2, 0')
    for i in range(nmax): E(f'v_writelane_b32 v2, s{sST+i}, {i}')
    E(f's_mul_i32 s{sT}, s2, 12\n s_add_u32 s{sT}, s{sT}, s{sWave}\n s_lshl_b32 s{sT}, s{sT}, 6\n s_add_u32 s{sT}, s{sT}, {hex(WS_STAMP)}')
    E(f'v_lshlrev_b32 v3, 2, v0\n s_mov_b64 exec, 0xffff\n buffer_store_dword v2, v3, {sr(sWS)}, s{sT} offen\n s_mov_b64 exec, -1')

def lds_add(off,val,vz,vt):
    E(f'v_mov_b32 v{vt}, {val}\n s_mov_b64 exec, 1\n ds_add_u32 v{vz}, v{vt} offset:{off-L_ST}\n s_mov_b64 exec, -1')
def lds_spin(off,mask,val,vz,vt,sleep=1):
    a=uid('spin'); d=uid('spind')
    E(f's_mov_b32 s{sCnt}, {SPIN_LIMIT}')
    LBL(a)
    E(f'ds_read_b32 v{vt}, v{vz} offset:{off-L_ST}\n s_waitcnt lgkmcnt(0)\n v_readfirstlane_b32 s{sT}, v{vt}')
    if mask is not None: E(f's_and_b32 s{sT}, s{sT}, {hex(mask)}')
    E(f's_cmp_eq_u32 s{sT}, {hex(val)}\n s_cbranch_scc1 {d}\n s_sub_u32 s{sCnt}, s{sCnt}, 1\n s_cbranch_scc1 {d}')
    if sleep: E(f's_sleep {sleep}')
    E(f's_branch {a}')
    LBL(d)
def tag_set(off,sidx,vt):
    if sidx is None: E(f'v_mov_b32 v{vt}, {off}')
    else: E(f's_lshl_b32 s{sT}, s{sidx}, 2\n s_add_u32 s{sT}, s{sT}, {off}\n v_mov_b32 v{vt}, s{sT}')
    E(f'v_mov_b32 v{vt+1}, 1\n s_mov_b64 exec, 1\n ds_write_b32 v{vt}, v{vt+1}\n s_mov_b64 exec, -1')
def tag_wait(off,n,vt,sleep=0,once=None):
    a=uid('tw'); d=uid('twd')
    E(f'v_and_b32 v{vt}, {n-1}, v0\n v_lshlrev_b32 v{vt}, 2, v{vt}\n v_add_u32 v{vt}, {off}, v{vt}')
    if once:
        E(f'ds_read_b32 v{vt+1}, v{vt}\n s_waitcnt lgkmcnt(0)\n v_cmp_ne_u32 vcc, 1, v{vt+1}\n s_cbranch_vccz {once}')
        return
    E(f's_mov_b32 s{sCnt}, {SPIN_LIMIT}')
    LBL(a)
    E(f'ds_read_b32 v{vt+1}, v{vt}\n s_waitcnt lgkmcnt(0)\n v_cmp_ne_u32 vcc, 1, v{vt+1}\n s_cbranch_vccz {d}\n s_sub_u32 s{sCnt}, s{sCnt}, 1\n s_cbranch_scc1 {d}')
    if sleep: E(f's_sleep {sleep}')
    E(f's_branch {a}')
    LBL(d)
def tag_get(vt):
    E(f'ds_read_b32 v{vt}, v{vZ} offset:{T_TAG-L_ST}\n s_waitcnt lgkmcnt(0)\n v_readfirstlane_b32 s{sTag}, v{vt}')
def poll(vaddr,n,vt,sleep=1):
    a=uid('poll'); d=uid('polld')
    E(f's_mov_b32 s{sCnt}, {SPIN_LIMIT}')
    LBL(a)
    op={1:'buffer_load_dword',2:'buffer_load_dwordx2',3:'buffer_load_dwordx3',4:'buffer_load_dwordx4'}[n]
    E(f'{op} {vr(vt,n) if n>1 else "v%d"%vt}, v{vaddr}, {sr(sWS)}, 0 offen sc1\n s_waitcnt vmcnt(0)')
    for i in range(n): E(f'v_xor_b32 v{vt+i}, s{sTag}, v{vt+i}')
    if n==2: E(f'v_or_b32 v{vt}, v{vt}, v{vt+1}')
    if n>=3: E(f'v_or3_b32 v{vt}, v{vt}, v{vt+1}, v{vt+2}')
    if n==4: E(f'v_or_b32 v{vt}, v{vt}, v{vt+3}')
    E(f'v_cmp_ne_u32 vcc, 0, v{vt}\n s_cbranch_vccz {d}\n s_sub_u32 s{sCnt}, s{sCnt}, 1\n s_cbranch_scc1 {d}')
    if sleep: E(f's_sleep {sleep}')
    E(f's_branch {a}')
    LBL(d)
def flag_store(soff_reg,vt):
    E(f'v_mov_b32 v{vt}, s{sTag}\n s_mov_b64 exec, 1\n buffer_store_dword v{vt}, off, {sr(sWS)}, s{soff_reg} sc1\n s_mov_b64 exec, -1')
def mfma(d,a,b,c=None):
    cc = vr(d,16) if c is None else (c if isinstance(c,str) else vr(c,16))
    E(f'v_mfma_f32_32x32x16_bf16 {vr(d,16)}, {vr(a,4)}, {vr(b,4)}, {cc}')
def smf(o,v,s,idx): E(f'v_smfmac_f32_32x32x32_bf16 {vr(o,16)}, {vr(v,4)}, {vr(s,8)}, v{idx}')
def vexp(r): E(f'v_exp_f32 v{r}, v{r}')
def cvt(d,a,b): E(f'v_cvt_pk_bf16_f32 v{d}, v{a}, v{b}')
def set_vpad(regs,vt):
    E(f'v_and_b32 v{vt}, 27, v0\n v_cmp_eq_u32 vcc, 16, v{vt}\n v_mov_b32 v{vt}, 0x3f803f80\n s_nop 0\n v_cndmask_b32 v{regs[0]}, 0, v{vt}, vcc')
    for r in regs[1:]: E(f'v_mov_b32 v{r}, v{regs[0]}')
def xaddr(base,t_imm,vt):
    E(f'v_and_b32 v{vt}, 15, v0\n v_lshrrev_b32 v{base}, 5, v0\n v_xor_b32 v{base}, v{base}, v{vt}\n v_lshlrev_b32 v{base}, 4, v{base}')
    E(f'v_and_b32 v{vt}, 31, v0\n v_lshl_add_u32 v{base}, v{vt}, 10, v{base}\n v_add_u32 v{base}, {t_imm}, v{base}')
    for b in range(1,8): E(f'v_xor_b32 v{base+b}, {b<<5}, v{base}')
def traddr128(dst,vt,vt2,rowsel,colbase):
    E(f'v_lshrrev_b32 v{vt}, 5, v0\n v_lshlrev_b32 v{vt}, {rowsel}, v{vt}\n v_bfe_u32 v{vt2}, v0, 2, 2\n v_add_u32 v{vt}, v{vt}, v{vt2}\n v_lshlrev_b32 v{dst}, 7, v{vt}')
    E(f'v_bfe_u32 v{vt}, v0, 4, 1\n v_lshlrev_b32 v{vt}, 1, v{vt}\n v_bfe_u32 v{vt2}, v0, 1, 1\n v_add3_u32 v{vt}, v{vt}, v{vt2}, {colbase}')
    E(f'v_bfe_u32 v{vt2}, v0, 3, 1\n v_lshlrev_b32 v{vt2}, 2, v{vt2}\n v_xor_b32 v{vt}, v{vt}, v{vt2}\n v_lshl_add_u32 v{dst}, v{vt}, 4, v{dst}')
    E(f'v_and_b32 v{vt}, 1, v0\n v_lshl_add_u32 v{dst}, v{vt}, 3, v{dst}')
def dma128_voff(dst,vt,vt2,rowstride_sreg_or_shift,colbytes):
    E(f'v_lshrrev_b32 v{vt}, 3, v0')
    if isinstance(rowstride_sreg_or_shift,int): E(f'v_lshlrev_b32 v{dst}, {rowstride_sreg_or_shift}, v{vt}')
    else: E(f'v_mul_u32_u24 v{dst}, {rowstride_sreg_or_shift}, v{vt}')
    E(f'v_bfe_u32 v{vt}, v0, 4, 1\n v_lshlrev_b32 v{vt}, 2, v{vt}\n v_and_b32 v{vt2}, 7, v0\n v_xor_b32 v{vt}, v{vt}, v{vt2}\n v_lshl_add_u32 v{dst}, v{vt}, 4, v{dst}\n v_add_u32 v{dst}, {colbytes}, v{dst}')
def finalize(O,dst,vt,lbl_fb,lbl_back,vg):
    C('guard: row sum inside [2^-24, 2^60] and finite numerators in every lane, else redo with the true maximum')
    E(f'v_add_f32 v{vt}, |v{O}|, |v{O+1}|')
    for r in range(2,8): E(f'v_add_f32 v{vt}, v{vt}, |v{O+r}|')
    E(f'v_mov_b32 v{vt+1}, 0x7f800000\n v_cmp_nlt_f32 {sr(sT,2)}, v{vt}, v{vt+1}')
    E(f'v_cmp_nle_f32 vcc, {hex(L_LO)}, v{O+8}\n s_or_b64 {sr(sT,2)}, {sr(sT,2)}, vcc')
    E(f'v_cmp_nge_f32 vcc, {hex(L_HI)}, v{O+8}\n s_or_b64 {sr(sT,2)}, {sr(sT,2)}, vcc\n s_cbranch_scc1 {lbl_fb}')
    LBL(lbl_back)
    E(f'v_rcp_f32 v{vt}, v{O+8}\n s_nop 0\n v_mul_f32 v{vt}, v{vt}, v{vg}')
    for r in range(0,8,2): E(f'v_pk_mul_f32 {vr(O+r,2)}, {vr(O+r,2)}, {vr(vt,2)} op_sel_hi:[1,0]')
    for r in range(4): cvt(dst+r,O+2*r,O+2*r+1)
    E(f'v_min_u32 v{dst}, -2, v{dst}')

TAIL=[]
RETRY=[]
def fallback(lbl,back,Q,O,S,K,V,IDX,vM,vK,vV,ntile,soff_setup,first_mask=None,last_mask=None,first_cond=None):
    global L
    save=L; L=[]
    LBL(lbl)
    C('exact softmax for one query tile: pass 1 row maxima, pass 2 exp2(s - max) ; K/V fragments from d_ws')
    soff_setup()
    E(f'v_mov_b32 v{vM}, 0xff800000')
    for p in (0,1):
        lp=uid('fbl')
        if p==1:
            E(f'v_mov_b32 v{S}, v{vM}\n s_nop 1\n v_permlane32_swap_b32 v{S}, v{vM}\n s_nop 1\n v_max_f32 v{vM}, v{vM}, v{S}')
            for r in range(16): E(f'v_mov_b32 v{O+r}, 0')
        E(f's_mov_b32 s{sT+5}, s{sT+2}\n s_mov_b32 s{sT+6}, 0')
        LBL(lp)
        E(f'buffer_load_dwordx4 {vr(K,4)}, v{vK}, {sr(sWS)}, s{sT+5} offen sc1')
        if p==1:
            E(f's_mov_b64 exec, {sr(sVM,2)}\n buffer_load_dwordx4 {vr(V,4)}, v{vV}, {sr(sWS)}, s{sT+5} offen offset:1024 sc1\n buffer_load_dwordx4 {vr(V+4,4)}, v{vV}, {sr(sWS)}, s{sT+5} offen offset:1536 sc1\n s_mov_b64 exec, -1')
        E('s_waitcnt vmcnt(0)')
        if first_mask is None:
            mfma(S,K,Q,'0')
        else:
            a=uid('fbm'); b=uid('fbm'); j=uid('fbm')
            E(f's_add_u32 s{sT+7}, s{sT+6}, 1\n s_cmp_eq_u32 s{sT+7}, s{sT+3}\n s_cbranch_scc1 {a}')
            E(f's_cmp_lt_u32 s{sT+6}, s{sT+4}\n s_cbranch_scc1 {b}')
            mfma(S,K,Q,'0'); E(f's_branch {j}')
            LBL(a); mfma(S,K,Q,last_mask); E(f's_branch {j}')
            LBL(b); mfma(S,K,Q,first_mask)
            LBL(j)
        E('s_nop 15')
        if p==0:
            for r in range(0,16,2): E(f'v_max3_f32 v{vM}, v{S+r}, v{S+r+1}, v{vM}')
        else:
            for r in range(16): E(f'v_sub_f32 v{S+r}, v{S+r}, v{vM}')
            for r in range(16): vexp(S+r)
            E('s_nop 1'); smf(O,V,S,IDX); smf(O,V+4,S+8,IDX)
        E(f's_add_u32 s{sT+5}, s{sT+5}, 2048\n s_add_u32 s{sT+6}, s{sT+6}, 1\n s_cmp_lt_u32 s{sT+6}, s{sT+3}\n s_cbranch_scc1 {lp}')
    E(f's_nop 15\n s_branch {back}')
    TAIL.extend(L); L=save

E('s_cmp_ge_u32 s2, 256\n s_cbranch_scc1 L_END')
if ECHO=='karg': E('s_memrealtime s[100:101]\n s_waitcnt lgkmcnt(0)\n s_mov_b32 s97, s100')
E('s_load_dwordx16 s[4:19], s[0:1], 0\n s_load_dwordx8 s[20:27], s[0:1], 64')
E(f'v_lshrrev_b32 v1, 6, v0\n v_and_b32 v0, 63, v0\n v_readfirstlane_b32 s{sWave}, v1')
if MAP=='b' and OPT.get('alt'):
    E(f's_and_b32 s{sT}, s2, 7\n s_lshr_b32 s{sT+2}, s2, 6\n s_lshl_b32 s{sPb}, s{sT}, 2\n s_or_b32 s{sPb}, s{sPb}, s{sT+2}\n s_bfe_u32 s{sHg}, s2, 0x30003')
elif MAP=='b':
    E(f's_and_b32 s{sT}, s2, 7\n s_lshr_b32 s{sT+1}, s2, 3\n s_and_b32 s{sT+2}, s{sT+1}, 3\n s_lshl_b32 s{sPb}, s{sT}, 2\n s_or_b32 s{sPb}, s{sPb}, s{sT+2}\n s_lshr_b32 s{sHg}, s{sT+1}, 2')
else:
    E(f's_bfe_u32 s{sPb}, s2, 0x20001\n s_lshl_b32 s{sPb}, s{sPb}, 3\n s_bfe_u32 s{sT}, s2, 0x30003\n s_or_b32 s{sPb}, s{sPb}, s{sT}\n s_and_b32 s{sHg}, s2, 1\n s_lshl_b32 s{sHg}, s{sHg}, 2\n s_lshr_b32 s{sT}, s2, 6\n s_or_b32 s{sHg}, s{sHg}, s{sT}')
E(f's_mov_b32 s{sVM}, 0xffff\n s_mov_b32 s{sVM+1}, 0xffff')
if DIAG:
    for i in range(12): E(f's_mov_b32 s{sST+i}, 0')
def codepf():
  if OPT.get('cpf','1')=='1':
      C('---- pull this WG\'s share of the kernel\'s own instructions into L2 (later instruction fetches then miss only the I-cache)')
      E(f's_cmp_eq_u32 s{sWave}, 11\n s_cbranch_scc0 L_B_NCP\n s_getpc_b64 s[{sT}:{sT+1}]')
      LBL('L_B_PC')
      E(f's_lshr_b32 s{sT+2}, s2, 3\n s_mul_i32 s{sT+2}, s{sT+2}, (L_CODE_END-L_B_PC+4095)/4096*128\n s_add_u32 s{sT}, s{sT}, s{sT+2}\n s_addc_u32 s{sT+1}, s{sT+1}, 0')
      E(f'v_lshlrev_b32 v2, 7, v0\n v_mov_b32 v3, s{sT+1}\n v_add_co_u32 v2, vcc, s{sT}, v2\n s_nop 1\n v_addc_co_u32 v3, vcc, 0, v3, vcc\n s_lshl_b64 exec, 1, (L_CODE_END-L_B_PC+4095)/4096\n s_sub_u32 exec_lo, exec_lo, 1\n global_load_dword v63, v[2:3], off\n s_mov_b64 exec, -1')
      LBL('L_B_NCP')
if OPT.get('cpe','0')=='1': codepf()
C('clear the LDS counters and flags while the kernel arguments arrive')
E(f'v_lshlrev_b32 v2, 3, v0\n v_add_u32 v2, {L_C}, v2\n v_mov_b32 v4, 0\n v_mov_b32 v5, 0\n ds_write_b64 v2, v[4:5]')
E('s_waitcnt lgkmcnt(0)\n s_barrier')
stamp('A',0,'start'); stamp('B',0,'start'); echo_mark('start')
if ECHO=='karg': E('s_sub_u32 s99, s98, s97\n s_mul_i32 s99, s99, 10\n s_add_u32 s99, s99, s98')
srd(sX,4,2048*1024); srd(sWS,26,0x10000000)
E(f's_cmp_lt_u32 s{sWave}, 8\n s_cbranch_scc1 L_A')


KVPOS=[L_ST,32768,49152,16384,65536,81920,98304,114688]
L_PART=L_ST+24576
L_QA=0; L_QB=8192; L_WO=0; L_FX=65536
sOut=66; sOb=67; sPass=64
sRot=sT+11
def mktag(): E(f's_mul_i32 s{sTag}, s{sTag}, 0x9E3779B1\n s_add_u32 s{sTag}, s{sTag}, 0x7F4A7C15')
FT=OPT.get('ft','0')
def mkrot():
    if FT!='0' and not OPT.get('ftrot'): E(f's_mov_b32 s{sRot}, 0'); return
    if MAP=='b': E(f's_and_b32 s{sRot}, s{sPb}, 3\n s_lshl_b32 s{sRot}, s{sRot}, 1\n s_add_u32 s{sRot}, s{sRot}, s{sHg}')
    else: E(f's_lshl_b32 s{sRot}, s{sHg}, 1\n s_add_u32 s{sRot}, s{sRot}, s{sPb}')
def touch(srd_,soff,n,vaddr,vd,sc1=False):
    for i in range(n):
        if i: E(f's_add_u32 s{soff}, s{soff}, 8192')
        E(f'buffer_load_dword v{vd}, v{vaddr}, {sr(srd_)}, s{soff} offen'+(' sc1' if sc1 else ''))
E(f's_setprio {2 if OPT.get("bp2") else 3}\n s_sub_u32 s{sB}, s{sWave}, 8')
if OPT.get('cpe','0')=='0': codepf()
C('---- x tile -> LDS as 8 blocks of [64 rows][64 k], block order rotated per WG ; wave b brings blocks b and b+4')
E('v_lshrrev_b32 v17, 3, v0\n v_lshlrev_b32 v17, 10, v17\n v_lshrrev_b32 v2, 4, v0\n v_and_b32 v3, 7, v0\n v_xor_b32 v2, v2, v3\n v_lshl_add_u32 v17, v2, 4, v17\n v_xor_b32 v18, 64, v17')
mkrot()
E(f's_lshl_b32 s{sT+7}, s{sPb}, 16\n s_lshl_b32 s{sT+6}, s{sB}, 13')
VQ=[]
def vwait(tag,extra=''):
    if tag not in VQ:
        if extra: E('s_waitcnt'+extra)
        return
    i=max(n for n,t in enumerate(VQ) if t==tag)
    n=len(VQ)-1-i; del VQ[:i+1]
    E(f's_waitcnt vmcnt({n})'+extra)
XD=OPT.get('xd','1')=='1'
def xblock(expr_add,ldsoff,rows):
    E(f's_add_u32 s{sT+1}, s{sRot}, {expr_add}\n s_and_b32 s{sT+1}, s{sT+1}, 7\n s_lshl_b32 s{sT+1}, s{sT+1}, 7\n s_add_u32 s{sT+1}, s{sT+1}, s{sT+7}')
if XD:
    E(f's_and_b32 s{sT+1}, s{sRot}, 7\n s_lshl_b32 s{sT+1}, s{sT+1}, 7\n s_add_u32 s{sT+1}, s{sT+1}, s{sT+7}\n s_lshl_b32 s{sT+2}, s{sB}, 14\n s_add_u32 s{sT+1}, s{sT+1}, s{sT+2}\n s_lshl_b32 s{sT+2}, s{sB}, 11\n s_add_u32 m0, s{sT+2}, 65536\n s_nop 0')
    E(f'buffer_load_dwordx4 v17, {sr(sX)}, s{sT+1} offen lds\n s_add_u32 m0, s{sT+2}, {65536+1024}\n s_add_u32 s{sT+1}, s{sT+1}, 8192\n buffer_load_dwordx4 v18, {sr(sX)}, s{sT+1} offen lds')
def wtouch(chunk_expr):
    E(f'{chunk_expr}\n s_lshl_b32 s{sT+1}, s{sT+1}, 5\n s_lshr_b32 s{sT+2}, s2, 3\n s_add_u32 s{sT+1}, s{sT+1}, s{sT+2}\n s_lshl_b32 s{sT+2}, s{sT+1}, 11\n s_mul_i32 s{sT+1}, s{sT+1}, 6144')
    E(f's_mov_b64 exec, 0xffff\n buffer_load_dword v19, v21, {sr(sWQ)}, s{sT+2} offen\n s_mov_b32 exec_lo, -1\n s_mov_b32 exec_hi, 0xffff\n buffer_load_dword v20, v21, {sr(sWB)}, s{sT+1} offen\n s_mov_b64 exec, -1')
NT=0
if FT!='0':
    srd(sWQ,6,512*1024); srd(sWB,16,512*3072)
    E('v_lshlrev_b32 v21, 7, v0')
    wtouch(f's_mov_b32 s{sT+1}, s{sB}'); NT=2
    if FT=='2': wtouch(f's_add_u32 s{sT+1}, s{sB}, 4'); NT=4
def c3touch():
    C('lines with address bits 9:7 = 3 miss more slowly: every WG asks early for a share of that weight column block')
    E(f's_cmp_eq_u32 s{sB}, 0\n s_cselect_b32 s{sWB}, s6, s16\n s_cselect_b32 s{sWB+1}, s7, s17\n s_mov_b32 s{sWB+2}, {512*3072}\n s_cselect_b32 s{sWB+2}, {512*1024}, s{sWB+2}\n s_mov_b32 s{sWB+3}, 0x20000')
    E(f's_movk_i32 s{sT+3}, 3072\n s_cselect_b32 s{sT+3}, 0x400, s{sT+3}\n s_max_u32 s{sT+1}, s{sB}, 1\n s_sub_u32 s{sT+1}, s{sT+1}, 1\n s_lshl_b32 s{sT+1}, s{sT+1}, 10\n s_lshr_b32 s{sT+2}, s2, 3\n s_lshl_b32 s{sT+2}, s{sT+2}, 4\n s_mul_i32 s{sT+2}, s{sT+2}, s{sT+3}\n s_add_u32 s{sT+1}, s{sT+1}, s{sT+2}')
    E(f'v_mul_u32_u24 v2, s{sT+3}, v0\n s_mov_b64 exec, 0xffff\n buffer_load_dword v19, v2, {sr(sWB)}, s{sT+1} offen offset:384\n s_mov_b64 exec, -1')
C3=OPT.get('c3','2') if MAP=='b' and FT=='0' else '0'
if C3=='1': c3touch()
def xrest():
  for hb in range(2):
    sk=uid('xs')
    if XD and hb==0: E(f's_cmp_eq_u32 s{sB}, 0\n s_cbranch_scc1 {sk}')
    E(f's_add_u32 s{sT+1}, s{sRot}, s{sB}\n s_add_u32 s{sT+1}, s{sT+1}, {4*hb}\n s_and_b32 s{sT+1}, s{sT+1}, 7\n s_lshl_b32 s{sT+1}, s{sT+1}, 7\n s_add_u32 s{sT+1}, s{sT+1}, s{sT+7}')
    for n in range(8):
        E(f's_add_u32 m0, s{sT+6}, {65536+32768*hb+1024*n}')
        E(f's_add_u32 s{sT+1}, s{sT+1}, 8192' if n else 's_nop 0')
        E(f'buffer_load_dwordx4 v{17+(n&1)}, {sr(sX)}, s{sT+1} offen lds')
    if XD and hb==0: LBL(sk)
if not XD: xrest()
MU=128; MD=144; BQ=16; BK=24; BV=36; BS=64; BO=96; BIDX=60
C('---- constants for the later phases (idle time)')
E(f'v_mov_b32 v{vZ}, {L_ST}\n v_lshlrev_b32 v160, 4, v0\n v_lshlrev_b32 v163, 7, v0')
E('v_lshrrev_b32 v161, 5, v0\n v_lshlrev_b32 v161, 8, v161\n v_and_b32 v2, 15, v0\n v_lshl_add_u32 v161, v2, 4, v161')
srd(sWOA,12,512*1024); srd(sWOB,18,512*1024)
E(f'v_and_b32 v4, 31, v0\n v_lshrrev_b32 v5, 5, v0\n v_lshlrev_b32 v5, 2, v5\n v_sub_u32 v4, v4, v5\n s_mov_b32 s{sT}, {hex(NEGBIG)}')
for r in range(16):
    E(f'v_subrev_u32 v5, {8*(r//4)+r%4}, v4\n v_ashrrev_i32 v5, 31, v5\n v_and_b32 v{MD+r}, s{sT}, v5\n v_xor_b32 v{MU+r}, s{sT}, v{MD+r}')
set_vpad(list(range(BV,BV+24)),2); E(f'v_mov_b32 v{BIDX}, 0xdddddddd')
for r in range(32): E(f'v_mov_b32 v{BO+r}, 0')
E(f'v_min_u32 v2, 4, v0\n s_sub_i32 s{sT}, s{sPb}, 4\n v_add_u32 v2, s{sT}, v2\n v_max_i32 v2, 0, v2\n s_lshl_b32 s{sT}, s{sHg}, 5\n v_add_u32 v2, s{sT}, v2\n v_lshlrev_b32 v2, 7, v2\n v_add_u32 v162, {hex(WS_FKVB+8)}, v2')
E(f'v_and_b32 v2, 7, v0\n v_lshlrev_b32 v2, 5, v2\n v_add_u32 v2, s{sPb}, v2\n v_lshlrev_b32 v2, 7, v2\n v_add_u32 v166, {hex(WS_FKVB+16)}, v2')
sKh=sT+9; sTt=sT+10
E(f's_lshr_b32 s{sKh}, s{sB}, 1\n s_and_b32 s{sTt}, s{sB}, 1\n s_lshl_b32 s{sT+2}, s{sHg}, 7')
dma128_voff(10,2,3,10,f's{sT+2}')
E(f's_lshl_b32 s{sT+1}, s{sKh}, 2'); traddr128(11,2,3,2,f's{sT+1}')
E(f's_lshl_b32 s{sT+1}, s{sKh}, 15\n s_add_u32 s{sT+1}, s{sT+1}, {L_WO}\n v_add_u32 v11, s{sT+1}, v11\n v_xor_b32 v9, 64, v11')
E(f's_lshl_b32 s{sOut}, s{sPb}, 1\n s_add_u32 s{sOut}, s{sOut}, s{sTt}\n s_lshl_b32 s{sOut}, s{sOut}, 15\n s_lshl_b32 s{sT}, s{sKh}, 14\n s_add_u32 s{sOb}, s{sOut}, s{sT}\n s_add_u32 s{sOb}, s{sOb}, {hex(WS_OB)}')
E(f's_lshl_b32 s{sT}, s{sHg}, 7\n s_add_u32 s{sOut}, s{sOut}, s{sT}\n s_lshl_b32 s{sT}, s{sKh}, 6\n s_add_u32 s{sOut}, s{sOut}, s{sT}')
E('v_and_b32 v8, 31, v0\n v_lshlrev_b32 v167, 10, v8\n v_lshrrev_b32 v3, 5, v0\n v_lshl_add_u32 v167, v3, 4, v167\n v_lshlrev_b32 v8, 2, v8')
srd(sOUT,22,2048*1024)
E(f's_lshl_b32 s{sT}, s{sB}, 12\n s_add_u32 s{sT}, s{sT}, {L_FX}\n v_add_u32 v164, s{sT}, v160\n v_xor_b32 v165, 0x2000, v164\n s_mov_b32 s{sPass}, 0')
if XD:
    E(f's_waitcnt vmcnt({NT})' if NT else ('s_waitcnt vmcnt(1)' if C3=='1' else 's_waitcnt vmcnt(0)')); tag_set(T_X0,sB,2)
    if C3=='2': c3touch()
    if FT=='1': wtouch(f's_add_u32 s{sT+1}, s{sB}, 4')
    xrest()
E('s_waitcnt vmcnt(8)')
tag_set(T_X,sB,2)
stamp('B',1,'x landed'); echo_mark('xl')
E('s_waitcnt vmcnt(0)')
tag_set(T_X+16,sB,2)
if ECHO in ('k0','q1','fl','pt'):
    tag_wait({'k0':T_K0,'q1':T_Q1,'fl':T_FL,'pt':T_PT}[ECHO],4 if ECHO=='pt' else 1,2,sleep=2); echo_mark(ECHO)
tag_wait(T_G,4,2,sleep=4)
tag_get(2)
stamp('B',5,'BQ'); echo_mark('bq')
E(f's_setprio {OPT.get("bpr","3")}')
def kvdma(c):
    E(f's_lshr_b32 s{sT+1}, s2, 3\n s_add_u32 s{sT+1}, s{sT+1}, {c}\n s_and_b32 s{sT+1}, s{sT+1}, 3\n s_lshl_b32 s{sT+1}, s{sT+1}, 2\n s_add_u32 s{sT+1}, s{sT+1}, s{sB}\n s_lshl_b32 s{sT+1}, s{sT+1}, 12')
    E(f's_lshl_b32 s{sT+2}, s{sB}, 12\n s_add_u32 m0, s{sT+2}, {KVPOS[c]}\n s_add_u32 s{sT+1}, s{sT+1}, {hex(WS_KVA+(65536 if c>=4 else 0))}')
    for i in range(4): E(f'buffer_load_dwordx4 v160, {sr(sWS)}, s{sT+1} offen offset:{1024*i} sc1 lds')
    VQ.extend([f'kv{c}']*4)
E(f's_lshl_b32 s{sT}, s{sB}, 11\n s_add_u32 s{sT}, s{sT}, {L_QB}\n v_add_u32 v3, s{sT}, v160')
for t in range(2): E(f'ds_read_b128 {vr(BQ+4*t,4)}, v3 offset:{1024*t}')
E(f's_lshl_b32 s{sT}, s{sPb}, 8\n s_add_u32 s{sT}, s{sT}, {hex(WS_G)}\n buffer_load_dword v61, v8, {sr(sWS)}, s{sT} offen sc1\n buffer_load_dword v62, v8, {sr(sWS)}, s{sT} offen offset:128 sc1\n s_waitcnt lgkmcnt(0)')
C('---- second half of the shared K/V ; o slots marked as not yet written')
for c in (4,5,6,7): kvdma(c)
E(f's_lshl_b32 s{sT+10}, s{sPb}, 6\n s_lshl_b32 s{sT+1}, s{sHg}, 2\n s_add_u32 s{sT+10}, s{sT+10}, s{sT+1}\n s_add_u32 s{sT+10}, s{sT+10}, s{sB}\n s_lshl_b32 s{sT+10}, s{sT+10}, 10')
E('v_mov_b32 v12, -1\n v_mov_b32 v13, -1\n v_mov_b32 v14, -1\n v_mov_b32 v15, -1')
for base in (WS_OA,WS_OA+32768,WS_OB,WS_OB+32768):
    E(f's_add_u32 s{sT+1}, s{sT+10}, {hex(base)}\n buffer_store_dwordx4 v[12:15], v160, {sr(sWS)}, s{sT+1} offen sc1')
E(f's_lshl_b32 s{sT+3}, s{sHg}, 5\n s_add_u32 s{sT+3}, s{sT+3}, s{sPb}\n s_lshl_b32 s{sT+3}, s{sT+3}, 7\n s_lshl_b32 s{sT+1}, s{sB}, 2\n s_add_u32 s{sT+3}, s{sT+3}, s{sT+1}\n s_add_u32 s{sT+3}, s{sT+3}, {hex(WS_FKVB+16)}')
E(f's_getreg_b32 s{sXcc}, hwreg(HW_REG_XCC_ID, 0, 4)\n s_add_u32 s{sT}, s{sTag}, s{sXcc}\n v_mov_b32 v3, s{sT}\n s_waitcnt vmcnt(0)')
E(f's_mov_b64 exec, 1\n buffer_store_dword v3, off, {sr(sWS)}, s{sT+3} sc1\n s_mov_b64 exec, -1')
lds_add(C_K2,0x101,vZ,2)
stamp('B',2,'K/V all in')
if OPT.get('nob'): stamp_flush(12); E('s_endpgm')
E('v_sub_f32 v61, 1.0, v61\n v_sub_f32 v62, 1.0, v62')
poll(162,2,4,sleep=3)
stamp('B',6,'kvB flags seen'); echo_mark('kvb')
def wotouch():
    if MAP=='b':
        E(f's_cmp_ge_u32 s{sB}, 2\n s_cbranch_scc0 L_B_NOT\n s_lshr_b32 s{sT+1}, s2, 3\n s_lshl_b32 s{sT+1}, s{sT+1}, 14\n s_and_b32 s{sT+2}, s{sB}, 1\n s_lshl_b32 s{sT+2}, s{sT+2}, 13\n s_add_u32 s{sT+1}, s{sT+1}, s{sT+2}')
        touch(sWOB,sT+1,1,163,3); touch(sWOA,sT+1,1,163,3)
    else:
        E(f's_cmp_eq_u32 s{sB}, 3\n s_cbranch_scc0 L_B_NOT\n s_lshr_b32 s{sT+1}, s2, 3\n s_lshl_b32 s{sT+1}, s{sT+1}, 14\n s_and_b32 s{sT+2}, s2, 1\n s_lshl_b32 s{sT+2}, s{sT+2}, 9\n s_add_u32 s{sT+1}, s{sT+1}, s{sT+2}')
        E('v_lshrrev_b32 v2, 2, v0\n v_lshlrev_b32 v2, 10, v2\n v_and_b32 v3, 3, v0\n v_lshl_add_u32 v2, v3, 7, v2')
        touch(sWOB,sT+1,1,2,3); touch(sWOA,sT+1,1,2,4)
    LBL('L_B_NOT')
C('---- window attention, head 4hg+b, two query tiles')
E(f's_lshl_b32 s{sT+8}, s{sHg}, 2\n s_add_u32 s{sT+8}, s{sT+8}, s{sB}\n s_lshl_b32 s{sT+8}, s{sT+8}, 6\n s_lshl_b32 s{sT+9}, s{sPb}, 1\n s_sub_i32 s{sT+9}, s{sT+9}, 8')
def btile(j): E(f's_add_i32 s{sT}, s{sT+9}, {j}\n s_max_i32 s{sT}, s{sT}, 0\n s_add_u32 s{sT}, s{sT}, s{sT+8}\n s_lshl_b32 s{sT}, s{sT}, 11\n s_add_u32 s{sT}, s{sT}, {hex(WS_KVB)}')
def bload(j):
    k=BK+4*(j%3); v=BV+8*(j%3)
    btile(j)
    E(f'buffer_load_dwordx4 {vr(k,4)}, v160, {sr(sWS)}, s{sT} offen sc1\n s_mov_b64 exec, {sr(sVM,2)}')
    E(f'buffer_load_dwordx4 {vr(v,4)}, v161, {sr(sWS)}, s{sT} offen offset:1024 sc1\n buffer_load_dwordx4 {vr(v+4,4)}, v161, {sr(sWS)}, s{sT} offen offset:1536 sc1\n s_mov_b64 exec, -1')
bload(0); bload(1)
E(f's_setprio {OPT.get("bat","3")}')
for j in (2,6):
    E(f's_add_i32 s{sT}, s{sT+9}, {j}\n s_max_i32 s{sT}, s{sT}, 0\n s_add_i32 s{sT+1}, s{sT+9}, 6\n s_min_i32 s{sT}, s{sT}, s{sT+1}\n s_cmp_lt_i32 s{sT}, 0')
    sk=uid('tk'); E(f's_cbranch_scc1 {sk}\n s_add_u32 s{sT}, s{sT}, s{sT+8}\n s_lshl_b32 s{sT}, s{sT}, 11\n s_add_u32 s{sT}, s{sT}, {hex(WS_KVB)}')
    E(f'buffer_load_dword v3, v163, {sr(sWS)}, s{sT} offen sc1'); LBL(sk)
E('s_waitcnt lgkmcnt(0)')
for j in range(10):
    k=BK+4*(j%3); v=BV+8*(j%3)
    if j==3: wotouch()
    if j==int(OPT.get('bup','4')): E('s_setprio 3')
    if j==7: E(f'buffer_load_dwordx4 v[12:15], v166, {sr(sWS)}, 0 offen sc1')
    if j+2<10: bload(j+2)
    E(f's_waitcnt vmcnt({3*min(2,9-j)})')
    sk=uid('bskip')
    if j<8: E(f's_cmp_lt_i32 s{sT+9}, {-j}\n s_cbranch_scc1 {sk}')
    qs=[q for q in (0,1) if 0<=j-q<=8]
    for q in qs: mfma(BS+16*q,k,BQ+4*q,{0:MU,8:MD}.get(j-q,'0'))
    E('s_nop 10' if len(qs)==2 else 's_nop 11')
    for q in qs:
        S=BS+16*q; O=BO+16*q
        for r in range(10): vexp(S+r)
        smf(O,v,S,BIDX)
        for r in range(10,16): vexp(S+r)
        E('s_nop 1'); smf(O,v+4,S+8,BIDX)
    if j<8: LBL(sk)
sLoc=sT+11
E(f's_add_u32 s{sT+10}, s{sT+10}, {hex(WS_OB)}\n s_mov_b32 s{sLoc}, 0')
C('the eight WGs of this position block: marks in place ?  all on this die ?')
E(f's_mov_b32 s{sCnt}, {SPIN_LIMIT}\n s_branch L_B_PP1')
LBL('L_B_PP')
E(f'buffer_load_dwordx4 v[12:15], v166, {sr(sWS)}, 0 offen sc1\n s_waitcnt vmcnt(0)')
LBL('L_B_PP1')
for i in range(4): E(f'v_subrev_u32 v{12+i}, s{sTag}, v{12+i}')
E(f'v_or3_b32 v2, v12, v13, v14\n v_or_b32 v2, v2, v15\n v_cmp_lt_u32 vcc, 15, v2\n s_cbranch_vccz L_B_PPD\n s_sub_u32 s{sCnt}, s{sCnt}, 1\n s_cbranch_scc1 L_B_PPD\n s_sleep 3\n s_branch L_B_PP')
LBL('L_B_PPD')
if OPT.get('loc','1')=='1':
    E(f'v_cmp_ne_u32 vcc, s{sXcc}, v12\n s_cbranch_vccnz L_B_NLOC\n s_mov_b32 s{sLoc}, 1')
    lds_add(C_LOC,1,vZ,2)
    if OPT.get('probe'):
        E('s_branch L_B_PRB')
        LBL('L_B_NLOC')
        for i in range(8): E('s_sleep 127')
        LBL('L_B_PRB')
    else: LBL('L_B_NLOC')

for q in range(2):
    fb=f'L_FB_B{q}'; bk=f'L_FB_B{q}_BACK'
    finalize(BO+16*q,4,2,fb,bk,61+q)
    E(f's_cmp_eq_u32 s{sLoc}, 0\n s_cbranch_scc1 L_B_FAR{q}\n buffer_store_dwordx4 v[4:7], v160, {sr(sWS)}, s{sT+10} offen {OPT.get("obs","")}\n s_branch L_B_ST{q}')
    LBL(f'L_B_FAR{q}')
    E(f'buffer_store_dwordx4 v[4:7], v160, {sr(sWS)}, s{sT+10} offen sc1')
    LBL(f'L_B_ST{q}')
    if q==0: E(f's_add_u32 s{sT+10}, s{sT+10}, 32768\n s_nop 0')
    def setup(q=q):
        E(f's_add_i32 s{sT+2}, s{sT+9}, {q}\n s_cmp_ge_i32 s{sT+2}, 0\n s_cselect_b32 s{sT+4}, 1, 0\n s_max_i32 s{sT+2}, s{sT+2}, 0')
        E(f's_add_i32 s{sT+3}, s{sT+9}, {q+9}\n s_sub_u32 s{sT+3}, s{sT+3}, s{sT+2}\n s_add_u32 s{sT+2}, s{sT+2}, s{sT+8}\n s_lshl_b32 s{sT+2}, s{sT+2}, 11\n s_add_u32 s{sT+2}, s{sT+2}, {hex(WS_KVB)}')
    fallback(fb,bk,BQ+4*q,BO+16*q,BS,BK,BV,BIDX,3,160,161,None,setup,MU,MD)
C('---- output projection: wave (t=b&1, kh=b>>1): both 32-column tiles over heads 16kh..16kh+15 ; slot 0 = tile kh')
PA_=48; PW=80; PO=96; PB_=16
stamp('B',7,'oB published'); echo_mark('ob')
E(f's_setprio {OPT.get("bpr2","3")}')
lds_spin(C_MID,None,8,vZ,2,sleep=6)
def wodma(sr_):
    E(f's_lshl_b32 s{sT}, s{sB}, 14\n s_lshl_b32 s{sT+1}, s{sB}, 17')
    for n in range(16): E(f's_add_u32 m0, s{sT}, {L_WO+1024*n}\n s_add_u32 s{sT+2}, s{sT+1}, {8192*n}\n buffer_load_dwordx4 v10, {sr(sr_)}, s{sT+2} offen lds')
def oloads(g0):
    for s in range(4*g0,16):
        if s%4==0: E(f's_add_u32 s{sT}, s{sOb}, {1024*s}')
        E(f'buffer_load_dwordx4 {vr(PO+4*s,4)}, v160, {sr(sWS)}, s{sT} offen offset:{1024*(s%4)} sc1')
wodma(sWOB)
oloads(0)
E('s_waitcnt vmcnt(16)')
lds_add(C_WO,1,vZ,2)
lds_spin(C_WO,None,4,vZ,2,sleep=2)
stamp('B',8,'woB landed')
E('s_branch L_B_GEMM1')
LBL('L_B_GEMM')
oloads(0)
LBL('L_B_GEMM1')
def wread(s):
    f=PW+8*(s&1)
    for u,va in ((0,11),(1,9)): E(f'ds_read_b64_tr_b16 {vr(f+4*u,2)}, v{va} offset:{s*2048}\n ds_read_b64_tr_b16 {vr(f+4*u+2,2)}, v{va} offset:{s*2048+1024}')
wread(0)
E(f's_mov_b32 s{sCnt}, {SPIN_LIMIT}')
for g in range(4):
    LBL(f'L_B_G{g}')
    E(f's_waitcnt vmcnt({12-4*g})')
    p=PO+16*g
    E(f'v_max_u32 v2, v{p}, v{p+4}\n v_max3_u32 v2, v{p+8}, v{p+12}, v2\n v_cmp_eq_u32 vcc, -1, v2\n s_cbranch_vccnz L_B_R{g}')
    LBL(f'L_B_K{g}')
    if DIAG and g==3:
        E(f's_cmp_eq_u32 s{sPass}, 0\n s_cbranch_scc1 L_B_NST'); stamp('B',10,'oA all seen'); LBL('L_B_NST')
    for s in range(4*g,4*g+4):
        if s<15: wread(s+1)
        E(f's_waitcnt lgkmcnt({4 if s<15 else 0})')
        f=PW+8*(s&1)
        if s==0:
            E(f's_cmp_eq_u32 s{sPass}, 0\n s_cbranch_scc0 L_B_M1')
            for u in range(2): mfma(PA_+16*u,f+4*u,PO+4*s,'0')
            E('s_branch L_B_M2'); LBL('L_B_M1')
            for u in range(2): mfma(PA_+16*u,f+4*u,PO+4*s)
            LBL('L_B_M2')
        else:
            for u in range(2): mfma(PA_+16*u,f+4*u,PO+4*s)
    save=L; L=[]
    LBL(f'L_B_R{g}')
    E(f's_sub_u32 s{sCnt}, s{sCnt}, 1\n s_cbranch_scc1 L_B_K{g}\n s_cmp_eq_u32 s{sPass}, 0\n s_cbranch_scc0 L_B_RR{g}\n s_sleep 8')
    LBL(f'L_B_RR{g}')
    E('s_waitcnt vmcnt(0)')
    oloads(g)
    E(f's_branch L_B_G{g}')
    RETRY.extend(L); L=save
E(f's_cmp_eq_u32 s{sPass}, 0\n s_cbranch_scc0 L_B_FIN')
lds_add(C_WD,1,vZ,2)
E(f's_add_u32 s{sOb}, s{sOb}, {hex((WS_OA-WS_OB)&0xffffffff)}\n s_mov_b32 s{sPass}, 1')
lds_spin(C_WD,None,4,vZ,2,sleep=2)
wodma(sWOA)
if OPT.get('dry','0')=='1':
    C('walk once through the closing code with no lane active: its instructions are then cached when they matter')
    E('s_mov_b64 exec, 0\n s_branch L_B_FIN')
    LBL('L_B_DRYD')
    E('s_mov_b64 exec, -1')
E('s_waitcnt vmcnt(0)')
stamp('B',9,'out-proj B done, woA in'); echo_mark('b9')
E('s_barrier'); echo_mark('aend'); E('s_branch L_B_GEMM')
LBL('L_B_FIN')
E('s_nop 9')
for q in range(4): E(f'ds_write_b128 v164, {vr(PA_+16+4*q,4)} offset:{1024*q}')
E('s_waitcnt lgkmcnt(0)\n s_cbranch_execz L_B_NBAR\n s_barrier')
LBL('L_B_NBAR')
for q in range(4): E(f'ds_read_b128 {vr(PB_+4*q,4)}, v165 offset:{1024*q}')
for q in range(4):
    E(f's_waitcnt lgkmcnt({3-q})')
    for r in range(4): E(f'v_add_f32 v{PA_+4*q+r}, v{PA_+4*q+r}, v{PB_+4*q+r}')
for r in range(8): cvt(PA_+r,PA_+2*r,PA_+2*r+1)
E('s_nop 1')
for gq in range(2): E(f'v_permlane32_swap_b32 v{PA_+4*gq}, v{PA_+4*gq+2}\n v_permlane32_swap_b32 v{PA_+4*gq+1}, v{PA_+4*gq+3}')
if OPT.get('dry','0')=='1': E('s_cbranch_execz L_B_DRYD')
for gq in range(2): E(f'buffer_store_dwordx4 {vr(PA_+4*gq,4)}, v167, {sr(sOUT)}, s{sOut} offen offset:{32*gq} '+OPT.get('ost','').replace('+',' '))
if DIAG: E('s_waitcnt vmcnt(0)')
stamp('B',11,'out stored'); echo_end()
stamp_flush(12)
E('s_endpgm')
L.extend(RETRY)

LBL('L_A')
AIDX=8; AKA=9; AVA=10; AQ0=12; AQ1=16; AK=20; AV=28; SA=44; SB=60; OA=76; OB=92; XA=108; WA=160; AF=112
L_PG=L_PART+4096
sStr=sT+10; sRing=sT+7
E(f'v_and_b32 v5, 15, v0\n v_lshlrev_b32 v6, 4, v0\n s_and_b32 s{sT+9}, s{sHg}, 3\n s_cmp_lt_u32 s{sWave}, 4\n s_cbranch_scc0 L_A_KV')
C('---- waves 0..3 : wave m streams 64 columns of matrix m (wq | B q | B k | B v) through its own 8 x 2KB ring')
E(f's_cmp_eq_u32 s{sWave}, 0\n s_cselect_b32 s{sWB}, s6, s16\n s_cselect_b32 s{sWB+1}, s7, s17\n s_mov_b32 s{sWB+2}, {512*3072}\n s_cselect_b32 s{sWB+2}, {512*1024}, s{sWB+2}\n s_mov_b32 s{sWB+3}, 0x20000')
E(f's_movk_i32 s{sStr}, 3072\n s_cselect_b32 s{sStr}, 0x400, s{sStr}\n s_max_u32 s{sT+1}, s{sWave}, 1\n s_sub_u32 s{sT+1}, s{sT+1}, 1\n s_lshl_b32 s{sT+1}, s{sT+1}, 10\n s_lshl_b32 s{sT+2}, s{sHg}, 7\n s_add_u32 s{sT+1}, s{sT+1}, s{sT+2}')
dma128_voff(162,2,3,f's{sStr}',f's{sT+1}')
mkrot()
E(f's_lshl_b32 s{sStr}, s{sStr}, 3\n s_lshl_b32 s{sRing}, s{sWave}, 14')
E(f's_sub_u32 s{sT+1}, s{sStr}, 1024\n v_add_u32 v163, s{sT+1}, v162\n s_lshl_b32 s{sStr}, s{sStr}, 1')
def wdma_parts(st):
    p0=f's_add_u32 m0, s{sRing}, {(st%8)*2048}\n'
    if st%4==0: p0+=f's_add_u32 s{sT+3}, s{sRot}, {st//4}\n s_and_b32 s{sT+3}, s{sT+3}, 7\n s_lshl_b32 s{sT+3}, s{sT+3}, 2\n s_mul_i32 s{sT+3}, s{sT+3}, s{sStr}'
    else: p0+=f's_add_u32 s{sT+3}, s{sT+3}, s{sStr}'
    VQ.extend([f'w{st}']*2)
    return [p0, f'buffer_load_dwordx4 v162, {sr(sWB)}, s{sT+3} offen lds', f'buffer_load_dwordx4 v163, {sr(sWB)}, s{sT+3} offen offset:1024 lds']
def wdma(st):
    for p in wdma_parts(st): E(p)
if OPT.get('p0','2')!='0': E(f's_cmp_eq_u32 s{sWave}, 0\n s_cbranch_scc0 L_A_NP0\n s_setprio {OPT.get("p0","3")}\nL_A_NP0:')
NW0=int(OPT.get('nw0','8'))
VQ.clear()
for st in range(NW0): wdma(st)
E('s_branch L_A_NOKV')
LBL('L_A_KV')
E(f's_setprio 3\n s_load_dword s{sTag}, s[26:27], {WS_EPOCH}')
C('---- kvA: this WG makes 16 positions (hg&3) of K (hg<4) or V, and their gate ; wave 4+u sums k in [128u,128u+128)')
E(f's_cmp_lt_u32 s{sHg}, 4\n s_cselect_b32 s{sWKV}, s8, s10\n s_cselect_b32 s{sWKV+1}, s9, s11\n s_mov_b32 s{sWKV+2}, 16384\n s_mov_b32 s{sWKV+3}, 0x20000\n s_and_b32 s{sT+3}, s{sWave}, 3')
E(f's_lshl_b32 s{sT+1}, s{sPb}, 16\n s_lshl_b32 s{sT+2}, s{sT+9}, 14\n s_add_u32 s{sT+1}, s{sT+1}, s{sT+2}\n s_lshl_b32 s{sT+2}, s{sT+3}, 8\n s_add_u32 s{sT+1}, s{sT+1}, s{sT+2}')
E('v_lshlrev_b32 v3, 10, v5\n v_and_b32 v4, 48, v0\n v_add_u32 v3, v3, v4')
for s_ in range(4): E(f'buffer_load_dwordx4 {vr(116+4*s_,4)}, v3, {sr(sX)}, s{sT+1} offen offset:{64*s_}')
WKD=OPT.get('wkd','0')=='1'
if MAP=='b' and WKD:
    E(f's_cmp_lt_u32 s{sWave}, 6\n s_cbranch_scc0 L_A_NT2\n s_cmp_eq_u32 s{sWave}, 4\n s_cselect_b32 s{sG}, s8, s10\n s_cselect_b32 s{sG+1}, s9, s11\n s_mov_b32 s{sG+2}, 16384\n s_mov_b32 s{sG+3}, 0x20000')
    E(f's_lshr_b32 s{sT+4}, s2, 3\n s_lshl_b32 s{sT+4}, s{sT+4}, 9\n v_lshlrev_b32 v2, 7, v0\n s_mov_b64 exec, 15\n buffer_load_dword v167, v2, {sr(sG)}, s{sT+4} offen\n s_mov_b64 exec, -1')
    LBL('L_A_NT2')
if MAP=='c' and OPT.get('wkt','1')=='1':
    E(f's_cmp_eq_u32 s{sWave}, 4\n s_cbranch_scc0 L_A_NT2\n s_lshr_b32 s{sT+4}, s2, 3\n s_lshl_b32 s{sT+4}, s{sT+4}, 9\n v_lshlrev_b32 v2, 7, v0\n s_mov_b64 exec, 15\n buffer_load_dword v167, v2, {sr(sWKV)}, s{sT+4} offen\n s_mov_b64 exec, -1')
    LBL('L_A_NT2')
srd(sG,20,1024)
for s_ in range(4): E(f'buffer_load_dwordx4 {vr(132+4*s_,4)}, v4, {sr(sG)}, s{sT+2} offen offset:{64*s_}')
def wkdma():
    E(f's_lshl_b32 s{sT}, s{sT+3}, 12\n s_add_u32 m0, s{sT}, {L_ST}\n s_nop 0')
    for i in range(4): E(f'buffer_load_dwordx4 v6, {sr(sWKV)}, s{sT} offen offset:{1024*i} lds')
if not WKD: wkdma()
LBL('L_A_NOKV')
C('---- address of this wave\'s o slot, constants')
sOA=sT+8
E(f's_and_b32 s{sOA}, s{sWave}, 1\n s_lshl_b32 s{sT+1}, s{sPb}, 1\n s_add_u32 s{sOA}, s{sOA}, s{sT+1}\n s_lshl_b32 s{sOA}, s{sOA}, 5')
E(f's_lshl_b32 s{sT+1}, s{sHg}, 2\n s_add_u32 s{sOA}, s{sOA}, s{sT+1}\n s_and_b32 s{sT+1}, s{sWave}, 2\n s_add_u32 s{sOA}, s{sOA}, s{sT+1}\n s_lshr_b32 s{sT+1}, s{sWave}, 2\n s_add_u32 s{sOA}, s{sOA}, s{sT+1}\n s_lshl_b32 s{sOA}, s{sOA}, 10\n s_add_u32 s{sOA}, s{sOA}, {hex(WS_OA)}')
E(f'v_mov_b32 v{vZ}, {L_ST}\n v_lshlrev_b32 v11, 2, v0')
traddr128(WA,2,3,3,'0'); E(f's_lshl_b32 s{sT+1}, s{sWave}, 14\n v_add_u32 v{WA}, s{sT+1}, v{WA}\n v_xor_b32 v{WA+1}, 64, v{WA}')
E(f'v_and_b32 v2, 31, v0\n v_bfe_u32 v3, v0, 1, 3\n v_lshrrev_b32 v7, 5, v0\n v_xor_b32 v3, v3, v7\n v_lshlrev_b32 v{XA}, 7, v2\n v_lshl_add_u32 v{XA}, v3, 4, v{XA}\n v_add_u32 v{XA}, 0x10000, v{XA}')
for s_ in range(1,4): E(f'v_xor_b32 v{XA+s_}, {s_<<5}, v{XA}')
for r in range(32): E(f'v_mov_b32 v{OA+r}, 0')
set_vpad(list(range(AV,AV+16)),2)
E(f'v_mov_b32 v{AIDX}, 0xdddddddd')
E(f's_lshr_b32 s{sT+1}, s{sWave}, 2\n s_lshl_b32 s{sT+1}, s{sT+1}, 11\n v_add_u32 v{AKA}, s{sT+1}, v6')
E(f'v_lshlrev_b32 v7, 8, v7\n v_lshl_add_u32 v7, v5, 4, v7\n v_add_u32 v{AVA}, s{sT+1}, v7')
E(f's_lshl_b32 s{sT+6}, s{sHg}, 5\n s_add_u32 s{sT+6}, s{sT+6}, s{sPb}\n s_lshl_b32 s{sT+6}, s{sT+6}, 7\n s_lshl_b32 s{sT+1}, s{sWave}, 2\n s_add_u32 s{sT+6}, s{sT+6}, s{sT+1}\n s_add_u32 s{sT+6}, s{sT+6}, {hex(WS_FKVB)}')
E(f's_cmp_lt_u32 s{sWave}, 4\n s_cbranch_scc1 L_A_GQ\n s_waitcnt lgkmcnt(0)')
mktag()
if WKD: E(f's_waitcnt vmcnt({OPT.get("wkw","7")})'); wkdma()
E(f'v_lshrrev_b32 v4, 4, v0\n v_lshlrev_b32 v4, 8, v4\n v_lshl_add_u32 v4, v5, 3, v4\n s_add_u32 s{sT}, s{sT}, {L_ST}\n v_add_u32 v4, s{sT}, v4')
E(f's_lshl_b32 s{sT+1}, s{sT+3}, 10\n s_add_u32 s{sT+1}, s{sT+1}, {L_PART}\n v_add_u32 v2, s{sT+1}, v6\n s_lshl_b32 s{sT+1}, s{sT+3}, 8\n s_add_u32 s{sT+1}, s{sT+1}, {L_PG}\n v_add_u32 v3, s{sT+1}, v11')
E('s_waitcnt vmcnt(0)')
for s_ in range(4): E(f'ds_read_b64_tr_b16 {vr(44+4*s_,2)}, v4 offset:{1024*s_}\n ds_read_b64_tr_b16 {vr(46+4*s_,2)}, v4 offset:{1024*s_+128}')
for s_ in range(4): E(f'v_mfma_f32_16x16x32_bf16 v[64:67], {vr(132+4*s_,4)}, {vr(116+4*s_,4)}, {"0" if s_==0 else "v[64:67]"}')
E(f's_cmp_lt_u32 s{sHg}, 4\n s_waitcnt lgkmcnt(0)\n s_cbranch_scc0 L_A_VJOB')
for s_ in range(4): E(f'v_mfma_f32_16x16x32_bf16 v[60:63], {vr(44+4*s_,4)}, {vr(116+4*s_,4)}, {"0" if s_==0 else "v[60:63]"}')
E('s_branch L_A_KVJ')
LBL('L_A_VJOB')
for s_ in range(4): E(f'v_mfma_f32_16x16x32_bf16 v[60:63], {vr(116+4*s_,4)}, {vr(44+4*s_,4)}, {"0" if s_==0 else "v[60:63]"}')
LBL('L_A_KVJ')
E('s_nop 0\n ds_write_b32 v3, v64\n s_nop 5\n ds_write_b128 v2, v[60:63]')
stamp('A',2,'kvA partial')
E('s_waitcnt lgkmcnt(0)')
tag_set(T_PT,sT+3,2)
E(f's_cmp_eq_u32 s{sWave}, 7\n s_cbranch_scc0 L_A_BS')
C('---- wave 7: reduce the four partial tiles, store, flag')
tag_wait(T_PT,4,2)
E(f'v_add_u32 v3, {L_PART}, v6\n v_add_u32 v4, {L_PG}, v11')
for i in range(4): E(f'ds_read_b128 {vr(116+4*i,4)}, v3 offset:{1024*i}')
for i in range(2): E(f'ds_read2st64_b32 {vr(148+2*i,2)}, v4 offset0:{2*i} offset1:{2*i+1}')
E(f's_lshl_b32 s{sT+3}, s{sPb}, 1\n s_lshr_b32 s{sT+4}, s{sT+9}, 1\n s_add_u32 s{sT+3}, s{sT+3}, s{sT+4}\n s_lshl_b32 s{sT+3}, s{sT+3}, 11\n s_add_u32 s{sT+3}, s{sT+3}, {hex(WS_KVA)}\n s_and_b32 s{sT+4}, s{sT+9}, 1')
E(f's_cmp_lt_u32 s{sHg}, 4\n s_cselect_b32 s{sT+5}, 9, 3\n s_cselect_b32 s{sT+7}, 3, 8\n s_cselect_b32 s{sT+1}, 8, 9\n s_cselect_b32 s{sT}, 0, 0x400')
E(f's_lshl_b32 s{sT+4}, s{sT+4}, s{sT+1}\n s_add_u32 s{sT+3}, s{sT+3}, s{sT+4}\n s_add_u32 s{sT+3}, s{sT+3}, s{sT}')
E(f'v_bfe_u32 v3, v0, 4, 1\n v_lshrrev_b32 v4, 5, v0\n v_lshlrev_b32 v5, 4, v5\n v_lshl_add_u32 v5, v3, s{sT+5}, v5\n v_lshl_add_u32 v5, v4, s{sT+7}, v5')
FPLS=int(OPT.get('fpl','2'))
E(f's_lshl_b32 s{sT+7}, s{sPb}, 3\n s_add_u32 s{sT+7}, s{sT+7}, s{sHg}\n s_and_b32 s{sT+1}, s{sT+7}, {(1<<FPLS)-1}\n s_lshr_b32 s{sT+7}, s{sT+7}, {FPLS}\n s_lshl_b32 s{sT+7}, s{sT+7}, 7\n s_lshl_b32 s{sT+1}, s{sT+1}, 2\n s_add_u32 s{sT+7}, s{sT+7}, s{sT+1}\n s_add_u32 s{sT+7}, s{sT+7}, {hex(WS_FKVA)}')
E('s_waitcnt lgkmcnt(2)')
for st_ in (8,4):
    for r in range(st_): E(f'v_add_f32 v{116+r}, v{116+r}, v{116+st_+r}')
cvt(116,116,117); cvt(117,118,119)
E(f'buffer_store_dwordx2 v[116:117], v5, {sr(sWS)}, s{sT+3} offen sc1')
E(f's_cmp_lt_u32 s{sHg}, 4\n s_waitcnt lgkmcnt(0)\n s_cbranch_scc0 L_A_SF')
for st_ in (2,1):
    for r in range(st_): E(f'v_add_f32 v{148+r}, v{148+r}, v{148+st_+r}')
E(f's_mov_b32 s{sT}, {hex(f2u(-math.log2(math.e)))}\n v_mul_f32 v148, s{sT}, v148\n v_exp_f32 v148, v148')
E(f's_lshl_b32 s{sT}, s{sPb}, 2\n s_add_u32 s{sT}, s{sT}, s{sT+9}\n v_add_f32 v148, 1.0, v148\n v_rcp_f32 v148, v148\n s_lshl_b32 s{sT}, s{sT}, 6\n s_add_u32 s{sT}, s{sT}, {hex(WS_G)}')
E(f's_mov_b64 exec, 0xffff\n buffer_store_dword v148, v11, {sr(sWS)}, s{sT} offen sc1\n s_mov_b64 exec, -1')
LBL('L_A_SF')
E('s_waitcnt vmcnt(0)')
flag_store(sT+7,2)
stamp('A',3,'kvA flag sent')
LBL('L_A_BS')
E(f's_cmp_eq_u32 s{sWave}, 6\n s_cbranch_scc0 L_A_B8')
C('---- wave 6: wait for every K/V piece, fetch this WG\'s share into L2, tell the projection waves')
E(f'v_lshlrev_b32 v16, 7, v0\n v_lshrrev_b32 v17, {FPLS-2}, v0\n v_lshlrev_b32 v17, 7, v17\n v_and_b32 v18, {(1<<(FPLS-2))-1}, v0\n v_lshl_add_u32 v17, v18, 4, v17\n v_add_u32 v17, {hex(WS_FKVA)}, v17')
E(f'v_mov_b32 v2, s{sTag}\n ds_write_b32 v{vZ}, v2 offset:{T_TAG-L_ST}')
tag_wait(T_PT,4,2)
tag_wait(T_PL,1,2,sleep=2)
C('lanes whose four flags are in drop out of the next look')
E(f's_mov_b32 s{sCnt}, {SPIN_LIMIT}')
LBL('L_A_PL')
E(f'buffer_load_dwordx4 v[12:15], v17, {sr(sWS)}, 0 offen sc1\n s_waitcnt vmcnt(0)')
for i in range(4): E(f'v_xor_b32 v{12+i}, s{sTag}, v{12+i}')
E(f'v_or3_b32 v12, v12, v13, v14\n v_or_b32 v12, v12, v15\n v_cmp_ne_u32 vcc, 0, v12\n s_cbranch_vccz L_A_PLD\n s_sub_u32 s{sCnt}, s{sCnt}, 1\n s_cbranch_scc1 L_A_PLD\n s_mov_b64 exec, vcc\n s_sleep {OPT.get("psl","16")}\n s_branch L_A_PL')
LBL('L_A_PLD')
E('s_mov_b64 exec, -1')
E(f's_lshr_b32 s{sT+5}, s2, 3\n s_lshl_b32 s{sT+5}, s{sT+5}, 12\n s_add_u32 s{sT+5}, s{sT+5}, {hex(WS_KVA)}')
E(f's_mov_b32 exec_hi, 0\n buffer_load_dword v117, v16, {sr(sWS)}, s{sT+5} offen sc1\n s_mov_b64 exec, -1')
tag_set(T_FL,None,2)
stamp('A',3,'kvA flag sent')
E(f's_lshr_b32 s{sT+5}, s2, 3\n s_and_b32 s{sT+5}, s{sT+5}, 3\n s_lshl_b32 s{sT+5}, s{sT+5}, 14\n s_add_u32 s{sT+5}, s{sT+5}, {hex(WS_KVA)}')
for q in range(4):
    E(f's_mov_b32 m0, {L_ST+4096*q}\n s_add_u32 s{sT+4}, s{sT+5}, {4096*q}')
    for i in range(4): E(f'buffer_load_dwordx4 v6, {sr(sWS)}, s{sT+4} offen offset:{1024*i} sc1 lds')
E('s_waitcnt vmcnt(0)')
tag_set(T_K0,None,2)
stamp('A',7,'G1')
E(f's_cmp_eq_u32 s2, 0\n s_cbranch_scc0 L_A_B8\n s_mov_b32 s{sT}, 0')
flag_store(sT,2)
E('s_branch L_A_B8')
LBL('L_A_GQ')
PAC=[44,60,128,144]; PFR=[12,112,92]
def areads_l(st):
    f=PFR[st%3]; so=(st%8)*2048; o=[]
    for i in range(2): o+= [f'ds_read_b64_tr_b16 {vr(f+4*i,2)}, v{WA+i} offset:{so}', f'ds_read_b64_tr_b16 {vr(f+4*i+2,2)}, v{WA+i} offset:{so+512}']
    for t in range(2): o.append(f'ds_read_b128 {vr(f+8+4*t,4)}, v{XA+st%4} offset:{(st//4)*8192+4096*t}')
    return o
def areads(st):
    for p in areads_l(st): E(p)
def kv_parts(p):
    VQ.extend(['kv']*2)
    return [f's_add_u32 m0, s{sRing}, {p*2048}\n s_add_u32 s{sT+4}, s{sT+5}, {p*2048}']+[f'buffer_load_dwordx4 v6, {sr(sWS)}, s{sT+4} offen offset:{1024*n} sc1 lds' for n in range(2)]
def kvpiece(p):
    for q in kv_parts(p): E(q)
for st in range(NW0,8): wdma(st)
E(f's_sub_u32 s{sT+4}, s{sWave}, 1\n s_cmp_eq_u32 s{sWave}, 1\n s_cselect_b32 s{sT+4}, 3, s{sT+4}\n s_lshr_b32 s{sT+5}, s2, 3\n s_add_u32 s{sT+5}, s{sT+5}, s{sT+4}\n s_and_b32 s{sT+5}, s{sT+5}, 3\n s_lshl_b32 s{sT+5}, s{sT+5}, 14\n s_add_u32 s{sT+5}, s{sT+5}, {hex(WS_KVA)}')
tag_wait(T_X0,4,2) if XD else tag_wait(T_X,1,2)
stamp('A',7,'G1')
vwait('w0'); areads(0); vwait('w1'); areads(1)
VQ0=list(VQ)
PLK=int(OPT.get('plk','15'))
E(f's_cmp_eq_u32 s{sWave}, 3\n s_cbranch_scc1 L_A_GV')
def gstep(var,st,kv):
    f=PFR[st%3]
    def mm(i,t):
        d=PAC[2*i+t]; c='0' if st==0 else None
        if var==0: mfma(d,f+4*i,f+8+4*t,c)
        else: mfma(d,f+8+4*t,f+4*i,c)
    vwait(f'w{st+2}',f' lgkmcnt({6 if st<31 else 0})')
    rd=areads_l(st+2) if st+2<32 else []
    dm=wdma_parts(st+8) if st+8<32 else (kv_parts(st%8) if kv else [])
    gaps=[rd[0:2]+dm[0:1], rd[2:4]+dm[1:2], rd[4:6], dm[2:3]]
    if st>=30: gaps=[[f'v_mov_b32 v{OB+8*(st-30)+2*q+r}, 0' for r in range(2)]+gaps[q] for q in range(4)]
    for q,(i,t) in enumerate(((0,0),(0,1),(1,0),(1,1)) if st<31 else ((1,0),(1,1),(0,0),(0,1))):
        if not (OPT.get('halfm') and q&1 and 0<st<31): mm(i,t)
        for p in gaps[q]: E(p)
for var in (0,1):
    if var: LBL('L_A_GV')
    VQ[:]=VQ0
    for st in range(24):
        if OPT.get('hold') and st==0:
            E(f's_cmp_eq_u32 s{sWave}, 0\n s_cbranch_scc1 L_A_NH{var}'); tag_wait(T_H,1,2,sleep=2); LBL(f'L_A_NH{var}')
        if OPT.get('hold') and var==0 and st==int(OPT.get('hold')):
            E(f's_cmp_eq_u32 s{sWave}, 0\n s_cbranch_scc0 L_A_NH2'); tag_set(T_H,None,2); E('s_waitcnt lgkmcnt(0)'); LBL('L_A_NH2')
        if st==2: E('s_waitcnt lgkmcnt(0)'); tag_wait(T_X,4,2)
        if st==14: E('s_waitcnt lgkmcnt(0)'); tag_wait(T_X+16,4,2)
        if st==PLK and var==1: tag_set(T_PL,None,2); E('s_waitcnt lgkmcnt(0)')
        gstep(var,st,False)
    stamp('A',2,'step 24'); cstamp('A',10,'s24')
    if var==0: E(f's_cmp_eq_u32 s{sWave}, 0\n s_cbranch_scc1 L_A_G0')
    tag_wait(T_FL,1,2,once=f'L_A_GK{var}')
    if var==0: LBL('L_A_G0')
    V1=list(VQ)
    for st in range(24,32): gstep(var,st,False)
    if var==0: E(f's_cmp_eq_u32 s{sWave}, 0\n s_cbranch_scc1 L_A_GE0')
    tag_wait(T_FL,1,2)
    for p in range(8): kvpiece(p)
    E(f's_branch L_A_GE{var}')
    LBL(f'L_A_GK{var}')
    VQ[:]=V1
    for st in range(24,32): gstep(var,st,True)
    LBL(f'L_A_GE{var}')
    stamp('A',1,'proj loop done'); cstamp('A',11,'pl')
    if OPT.get('ep','1')=='1': E('s_setprio 3')
    E(f's_lshl_b32 s{sT+4}, s{sHg}, 8\n s_lshl_b32 s{sT+5}, s{sPb}, 1\n s_add_u32 s{sT+4}, s{sT+4}, s{sT+5}\n s_lshl_b32 s{sT+4}, s{sT+4}, 11\n s_add_u32 s{sT+4}, s{sT+4}, {hex(WS_KVB)}')
    if var==0:
        E(f's_cmp_eq_u32 s{sWave}, 2\n s_cbranch_scc1 L_A_EK')
        C('q (A / B): scale, pack, hand over through LDS')
        E(f's_cmp_eq_u32 s{sWave}, 0\n s_cbranch_scc1 L_A_Q0')
        tag_wait(T_G,1,2)
        LBL('L_A_Q0')
        E(f's_lshl_b32 s{sT+1}, s{sWave}, 13\n s_add_u32 s{sT+1}, s{sT+1}, {L_QA}\n v_add_u32 v3, s{sT+1}, v6\n s_mov_b32 s{sT+2}, {hex(CSCALE)}\n s_mov_b32 s{sT+3}, {hex(CSCALE)}\n s_lshl_b32 s{sT+1}, s{sWave}, 2\n s_add_u32 s{sT+1}, s{sT+1}, {T_Q1}\n v_mov_b32 v4, s{sT+1}\n v_mov_b32 v5, 1')
        for i in (1,0):
            for t in range(2):
                d=PAC[2*i+t]
                for r in range(0,16,2): E(f'v_pk_mul_f32 {vr(d+r,2)}, {vr(d+r,2)}, {sr(sT+2,2)}')
                for r in range(8): cvt(d+r,d+2*r,d+2*r+1)
                for hh in range(2): E(f'ds_write_b128 v3, {vr(d+4*hh,4)} offset:{(2*i+hh)*2048+1024*t}')
            if i==1: E(f's_mov_b64 exec, 1\n ds_write_b32 v4, v5\n s_mov_b64 exec, -1')
        E('s_waitcnt vmcnt(0) lgkmcnt(0)')
        tag_set(T_G,sWave,2)
        E('s_branch L_A_B8')
        LBL('L_A_EK')
        E('s_waitcnt vmcnt(0)')
        tag_set(T_G,sWave,2)
        for i in range(2):
            for t in range(2):
                d=PAC[2*i+t]
                for r in range(8): cvt(d+r,d+2*r,d+2*r+1)
                for hh in range(2): E(f's_add_u32 s{sT+5}, s{sT+4}, {(2*i+hh)*131072}\n buffer_store_dwordx4 {vr(d+4*hh,4)}, v6, {sr(sWS)}, s{sT+5} offen offset:{2048*t} sc1')
        E('s_branch L_A_B8')
    else:
        E('s_waitcnt vmcnt(0)')
        tag_set(T_G,sWave,2)
        E('v_bfe_u32 v3, v0, 4, 1\n v_lshl_add_u32 v3, v3, 17, v7')
        for i in range(2):
            for t in range(2):
                d=PAC[2*i+t]
                for r in range(8): cvt(d+r,d+2*r,d+2*r+1)
                E('s_nop 1')
                for gq in range(2): E(f'v_permlane32_swap_b32 v{d+4*gq}, v{d+4*gq+2}\n v_permlane32_swap_b32 v{d+4*gq+1}, v{d+4*gq+3}')
                E(f's_add_u32 s{sT+5}, s{sT+4}, {i*2*131072}')
                for gq in range(2): E(f'buffer_store_dwordx4 {vr(d+4*gq,4)}, v3, {sr(sWS)}, s{sT+5} offen offset:{2048*t+1024+512*gq} sc1')
LBL('L_A_B8')
E(f's_cmp_lt_u32 s{sWave}, 4\n s_cbranch_scc1 L_A_KP\n s_setprio 0')
LBL('L_A_KP')
E(f's_and_b32 s{sT+1}, s{sWave}, 2\n s_lshr_b32 s{sT+2}, s{sWave}, 2\n s_add_u32 s{sT+1}, s{sT+1}, s{sT+2}\n s_lshl_b32 s{sT+1}, s{sT+1}, 11\n s_and_b32 s{sT+2}, s{sWave}, 1\n s_lshl_b32 s{sT+2}, s{sT+2}, 10\n s_add_u32 s{sT+1}, s{sT+1}, s{sT+2}\n s_add_u32 s{sT+1}, s{sT+1}, {L_QA}\n v_add_u32 v2, s{sT+1}, v6\n v_xor_b32 v3, 0x800, v2')
AK0=120; AV0=121; AEX=122; AG=126
E(f'v_add_u32 v{AK0}, {L_ST}, v{AKA}\n v_add_u32 v{AV0}, {L_ST}, v{AVA}')
E(f's_and_b32 s{sT+2}, s{sWave}, 3\n s_mul_i32 s{sT+1}, s{sT+2}, 4608\n s_add_u32 s{sT+1}, s{sT+1}, {L_EX}\n v_add_u32 v{AEX}, s{sT+1}, v6\n v_add_u32 v{AEX+1}, s{sT+1}, v11')
E(f's_lshl_b32 s{sT+2}, s{sT+2}, 2\n s_add_u32 s{sT+2}, s{sT+2}, {C_PR}\n v_mov_b32 v{AEX+2}, s{sT+2}')
E(f's_and_b32 s{sT+1}, s{sWave}, 1\n s_lshl_b32 s{sT+2}, s{sPb}, 1\n s_add_u32 s{sT+1}, s{sT+1}, s{sT+2}\n s_lshl_b32 s{sT+1}, s{sT+1}, 7\n s_add_u32 s{sT+1}, s{sT+1}, {hex(WS_G)}\n v_and_b32 v127, 0x7c, v11')
tag_wait(T_K0,1,4,sleep=int(OPT.get('asl','2')))
E(f'buffer_load_dword v{AG}, v127, {sr(sWS)}, s{sT+1} offen sc1')
tag_get(4)
def kvoff(j):
    return (j%4)*4096+(0 if j<4 else KVPOS[j//4]-(65536 if j>=16 else 0))
def ldk(j): E(f'ds_read_b128 {vr(AK+4*(j&1),4)}, v{AK0 if j<4 else AKA} offset:{kvoff(j)}')
def ldv(j): E(f's_mov_b64 exec, {sr(sVM,2)}\n ds_read_b128 {vr(AV+8*(j&1),4)}, v{AV0 if j<4 else AVA} offset:{kvoff(j)+1024}\n ds_read_b128 {vr(AV+8*(j&1)+4,4)}, v{AV0 if j<4 else AVA} offset:{kvoff(j)+1536}\n s_mov_b64 exec, -1')
ldk(0); ldv(0); ldk(1)
E(f's_bitcmp1_b32 s{sWave}, 1\n s_cbranch_scc0 L_A_WL')
tag_wait(T_Q1,1,4,sleep=int(OPT.get('asl2','1')))
E('s_branch L_A_WD')
LBL('L_A_WL')
tag_wait(T_G,1,4,sleep=int(OPT.get('asl2','1')))
LBL('L_A_WD')
stamp('A',4,'BQ'); cstamp('A',8,'BQ')
E(f'ds_read_b128 {vr(AQ0,4)}, v2\n ds_read_b128 {vr(AQ1,4)}, v3')
if PRIO in ('step','step4'): E('s_setprio 2')
E('s_waitcnt lgkmcnt(0)'); mfma(SA,AK,AQ0,'0')
E('s_nop 11')
def pair_iter(j,ldk_,ldv_,first=False,last=0,extra=0):
    kc=AK+4*(j&1); kn=AK+4*((j+1)&1); vc=AV+8*(j&1); vp=AV+8*((j+1)&1)
    vexp(SA); vexp(SA+1)
    if not first: smf(OB,vp+4,SB+8,AIDX)
    for r in range(2,5): vexp(SA+r)
    mfma(SB,kc,AQ1,'0')
    for r in range(5,10): vexp(SA+r)
    E(f's_waitcnt lgkmcnt({(1 if last<2 else 0)+extra})')
    vexp(SA+10); smf(OA,vc,SA,AIDX)
    for r in range(11,16): vexp(SA+r)
    vexp(SB); vexp(SB+1); smf(OA,vc+4,SA+8,AIDX)
    if last<2: ldv_()
    for r in range(2,5): vexp(SB+r)
    if last<2:
        E('s_waitcnt lgkmcnt(2)'); mfma(SA,kn,AQ0,'0')
    if last<1: ldk_()
    for r in range(5,11): vexp(SB+r)
    smf(OB,vc,SB,AIDX)
    for r in range(11,16): vexp(SB+r)
def aflag(force,init=False):
    sk=uid('fl')
    E(f's_cmp_eq_u32 s{sT+5}, 0\n s_cbranch_scc0 {sk}')
    if not force: E(f's_getreg_b32 s{sT}, hwreg(HW_REG_IB_STS, 0, 4)\n s_cmp_eq_u32 s{sT}, 0\n s_cbranch_scc0 {sk}')
    E(f's_waitcnt vmcnt(0)\n s_mov_b32 s{sT+5}, 1'); flag_store(sT+6,2); LBL(sk)
if ROLL:
    AKN=120; AVN=121; sC=sT+4
    def rk(j):
        a_=AKA if j<4 else AKN
        return lambda: E(f'ds_read_b128 {vr(AK+4*(j&1),4)}, v{a_} offset:{(j%4)*4096}')
    def rv(j):
        a_=AVA if j<4 else AVN
        return lambda: E(f's_mov_b64 exec, {sr(sVM,2)}\n ds_read_b128 {vr(AV+8*(j&1),4)}, v{a_} offset:{(j%4)*4096+1024}\n ds_read_b128 {vr(AV+8*(j&1)+4,4)}, v{a_} offset:{(j%4)*4096+1536}\n s_mov_b64 exec, -1')
    for r in range(8,16): E(f'v_mov_b32 v{SB+r}, 0')
    E(f'v_add_u32 v{AKN}, 0x8000, v{AKA}\n v_add_u32 v{AVN}, 0x8000, v{AVA}\n v_add_u32 v{AKA}, 0x4000, v{AKA}\n v_add_u32 v{AVA}, 0x4000, v{AVA}\n s_mov_b32 s{sC}, 0\n s_mov_b32 s{sT+5}, 0')
    L.append('.p2align 6')
    LBL('L_A_LOOP')
    pair_iter(0,rk(2),rv(1)); pair_iter(1,rk(3),rv(2))
    E(f's_cmp_gt_u32 s{sC}, 6\n s_cbranch_scc1 L_A_LAST\n s_bitcmp1_b32 0x5f, s{sC}\n s_cbranch_scc1 L_A_RARE')
    LBL('L_A_RBACK')
    pair_iter(2,rk(4),rv(3)); pair_iter(3,rk(5),rv(4))
    E(f's_add_u32 s{sC}, s{sC}, 1\n s_mov_b32 s{sT+1}, 0x4000\n s_cmp_eq_u32 s{sC}, 2\n s_cselect_b32 s{sT+1}, {hex((-49152)&0xffffffff)}, s{sT+1}\n s_cmp_eq_u32 s{sC}, 3\n s_cselect_b32 s{sT+1}, {hex((-65536)&0xffffffff)}, s{sT+1}')
    E(f'v_mov_b32 v{AKA}, v{AKN}\n v_mov_b32 v{AVA}, v{AVN}\n v_add_u32 v{AKN}, s{sT+1}, v{AKN}\n v_add_u32 v{AVN}, s{sT+1}, v{AVN}\n s_branch L_A_LOOP')
    LBL('L_A_RARE')
    E(f's_waitcnt lgkmcnt(0)\n s_cmp_gt_u32 s{sC}, 3\n s_cbranch_scc1 L_A_R4')
    E(f's_cmp_eq_u32 s{sC}, 0\n s_cbranch_scc0 L_A_R1'); lds_spin(C_K1,None,4,vZ,2,sleep=0)
    LBL('L_A_R1')
    E(f's_cmp_eq_u32 s{sC}, 2\n s_cbranch_scc0 L_A_R2'); lds_spin(C_K2,None,4,vZ,2,sleep=1)
    LBL('L_A_R2')
    E(f's_cmp_eq_u32 s{sC}, 3\n s_cbranch_scc1 L_A_R3'); aflag(False); E('s_branch L_A_RBACK')
    LBL('L_A_R3'); aflag(True); E('s_branch L_A_RBACK')
    LBL('L_A_R4')
    E(f's_cmp_eq_u32 s{sC}, 4\n s_cbranch_scc0 L_A_R6'); lds_add(C_MID,1,vZ,2); E('s_waitcnt lgkmcnt(0)\n s_branch L_A_RBACK')
    LBL('L_A_R6'); lds_spin(C_MID,None,8,vZ,2,sleep=1); E('s_branch L_A_RBACK')
    LBL('L_A_LAST')
    pair_iter(2,None,rv(3),last=1); pair_iter(3,None,None,last=2)
else:
    E(f's_and_b32 s{sT+5}, s{sWave}, 6\n s_cmp_eq_u32 s{sT+5}, 2\n s_cselect_b32 s{sT+5}, 0, 1')
    for j in range(32):
        if j in (2,6,10): E('s_waitcnt lgkmcnt(0)'); tag_wait(T_G+4*{2:2,6:3,10:1}[j],1,2)
        if j in (1,2,3,5): aflag(j==5)
        PJ=[int(x) for x in OPT.get('pj','16,29').split(',')]
        if PRIO=='step' and j in PJ: E(f's_setprio {1 if j==PJ[0] else 0}')
        if PRIO=='step4' and j in (6,16): E(f's_setprio {1 if j==6 else 0}')
        if OPT.get('jst') and j in (2,4,8,16,24): E('s_waitcnt lgkmcnt(0)'); cstamp('A',{2:1,4:2,8:3,16:7,24:10}[j],f'J{j}')
        if j==14: E('s_waitcnt lgkmcnt(0)'); lds_spin(C_K2,None,0x404,vZ,2,sleep=1)
        if j==16: lds_add(C_MID,1,vZ,2)
        if j==28: E('s_waitcnt lgkmcnt(0)'); lds_spin(C_MID,None,8,vZ,2,sleep=1)
        def lv(j=j):
            if j==15: E(f'v_add_u32 v{AVA}, 0x10000, v{AVA}')
            ldv(j+1)
        def lk(j=j):
            if j==14: E(f'v_add_u32 v{AKA}, 0x10000, v{AKA}')
            ldk(j+2)
        if j==31:
            C('has the partner of this wave (same queries, other keys) already left its sums ?  if so they arrive during the last tile')
            E(f'ds_read_b32 v127, v{AEX+2} offset:16\n ds_read_b32 v125, v{vZ} offset:{C_LOC-L_ST}')
            for q in range(2): E(f'ds_read_b128 {vr(128+12*q,4)}, v{AEX} offset:{2304*q}\n ds_read_b128 {vr(132+12*q,4)}, v{AEX} offset:{2304*q+1024}\n ds_read_b32 v{136+12*q}, v{AEX+1} offset:{2304*q+2048}')
        pair_iter(j,lk,lv,first=(j==0),last=(2 if j==31 else 1 if j==30 else 0),extra=(1 if j==16 else 0))
E('s_nop 1'); smf(OB,AV+8+4,SB+8,AIDX)
stamp('A',5,'A loop done'); cstamp('A',9,'loop done')
C('---- the first wave of a pair to finish leaves both partial sums in LDS and ends ; the second one finishes both heads')
E(f'v_readfirstlane_b32 s{sT+1}, v127\n v_readfirstlane_b32 s{sT+9}, v125\n s_cmp_eq_u32 s{sT+1}, 1\n s_cbranch_scc1 L_A_LATE')
E(f'v_mov_b32 v2, 1\n s_mov_b64 exec, 1\n ds_add_rtn_u32 v3, v{AEX+2}, v2\n s_mov_b64 exec, -1\n s_waitcnt lgkmcnt(0)\n v_readfirstlane_b32 s{sT+1}, v3\n s_cmp_eq_u32 s{sT+1}, 0\n s_cbranch_scc0 L_A_TIE\n s_nop 3')
for q,O in enumerate((OA,OB)): E(f'ds_write_b128 v{AEX}, {vr(O,4)} offset:{2304*q}\n ds_write_b128 v{AEX}, {vr(O+4,4)} offset:{2304*q+1024}\n ds_write_b32 v{AEX+1}, v{O+8} offset:{2304*q+2048}')
E(f's_mov_b64 exec, 1\n ds_write_b32 v{AEX+2}, v2 offset:16\n s_mov_b64 exec, -1\n s_waitcnt lgkmcnt(0)')
if OPT.get('dry','0')=='1': E('s_mov_b64 exec, 0\n s_branch L_A_LATE')
else: E('s_branch L_A_STD')
LBL('L_A_TIE')
E(f's_mov_b32 s{sCnt}, {SPIN_LIMIT}')
LBL('L_A_TI2')
E(f'ds_read_b32 v127, v{AEX+2} offset:16')
for q in range(2): E(f'ds_read_b128 {vr(128+12*q,4)}, v{AEX} offset:{2304*q}\n ds_read_b128 {vr(132+12*q,4)}, v{AEX} offset:{2304*q+1024}\n ds_read_b32 v{136+12*q}, v{AEX+1} offset:{2304*q+2048}')
E(f's_waitcnt lgkmcnt(0)\n v_readfirstlane_b32 s{sT+1}, v127\n s_cmp_eq_u32 s{sT+1}, 1\n s_cbranch_scc1 L_A_LATE\n s_sub_u32 s{sCnt}, s{sCnt}, 1\n s_cbranch_scc0 L_A_TI2')
LBL('L_A_LATE')
for r in range(9): E(f'v_add_f32 v{OA+r}, v{OA+r}, v{140+r}')
E('s_waitcnt vmcnt(0)')
def setupA(): E(f's_mov_b32 s{sT+2}, {hex(WS_KVA)}\n s_mov_b32 s{sT+3}, 64')
for q,(O,Q_) in enumerate(((OA,AQ0),(OB,AQ1))):
    if q==1:
        for r in range(9): E(f'v_add_f32 v{OB+r}, v{OB+r}, v{128+r}')
    dst=152+4*q
    finalize(O,dst,2,f'L_FB_A{q}',f'L_FB_A{q}_BACK',126)
    if q==1: E(f's_xor_b32 s{sOA}, s{sOA}, 0x400')
    E(f's_cbranch_execz L_A_ST{q}\n s_cmp_eq_u32 s{sT+9}, 0\n s_cbranch_scc1 L_A_FAR{q}\n buffer_store_dwordx4 {vr(dst,4)}, v6, {sr(sWS)}, s{sOA} offen {OPT.get("oas","")}\n s_branch L_A_ST{q}')
    LBL(f'L_A_FAR{q}')
    E(f'buffer_store_dwordx4 {vr(dst,4)}, v6, {sr(sWS)}, s{sOA} offen sc1')
    LBL(f'L_A_ST{q}')
    fallback(f'L_FB_A{q}',f'L_FB_A{q}_BACK',Q_,O,SA,AK,AV,AIDX,3,6,7,None,setupA)
LBL('L_A_STD')
if DIAG: E('s_mov_b64 exec, -1')
stamp('A',6,'oA published')
stamp_flush(12,'A')
LBL('L_END')
E('s_endpgm')
L.append('L_CODE_END:')
L.extend(TAIL)
L.append('    s_endpgm\n.fill 1200, 4, 0xbf810000')

hdr=open('cdna_kernels/%s.s.ref'%NAME).read().split('; Override launch')[0]
txt=hdr
txt+=f'; @launch grid=(256,1,1) block=(768,1,1) lds={LDS_TOTAL}\n'
DOC="""
One workgroup per CU: WG = (64 positions pb, 4 heads hg); 8 "A" waves + 4 "B" waves, LDS 160 KB.
 head : waves 0-3 project q(A), q/k/v(B) (weights streamed by LDS-DMA through private rings, transposing LDS reads),
        waves 4-7 make this WG's 16-position piece of the shared K/V (and the gate), publish it, wait for all pieces.
 main : A waves - MQA over all 2048 keys (S^T = K Q^T, exp2 in place, P^T fed raw to a 2:4 sparse MFMA that picks the
        high halves = bf16 P; a row of ones in V^T gives the row sums).  B waves - window attention, then B out-projection.
 tail : o (already divided by the row sum and scaled by g or 1-g) is handed to the WGs of the same positions,
        B waves finish out = [g oA | (1-g) oB] [woA ; woB].
 softmax guard: exp2 runs on unshifted scores; every row's sum must lie in [2^-24, 2^60] and its numerators must be finite,
        otherwise that query tile is redone with the true row maximum (L_FB_*: max pass, then exp2(s - max)).
 hand-offs in d_ws carry a tag derived from the epoch word found at ws[0] (advanced once per launch), or overwrite a
        'not yet written' mark; all are write-through + acknowledged, except o between WGs that report the same XCC id.
"""
for l in DOC.strip('\n').split('\n'): txt+='; '+l+'\n'
for n in () if not DIAG and not OPT.get('consts') else ('WS_KVA','WS_KVB','WS_OA','WS_OB','WS_STAMP','NSTAMP'): txt+=f'; CONST {n} = {hex(globals()[n])}\n'
for r,i,n in STN: txt+=f'; STAMPNAME {r} {i} {n}\n'
txt+=f'''.amdgcn_target "amdgcn-amd-amdhsa--gfx950"
.text
.globl {NAME}_kernel
.p2align 8
.type {NAME}_kernel,@function
{NAME}_kernel:
'''+'\n'.join(L)+f'''
.section .rodata,"a"
.p2align 6
.amdhsa_kernel {NAME}_kernel
  .amdhsa_next_free_vgpr 168
  .amdhsa_next_free_sgpr 102
  .amdhsa_accum_offset 168
  .amdhsa_group_segment_fixed_size 0
  .amdhsa_kernarg_size 96
  .amdhsa_user_sgpr_count 2
  .amdhsa_user_sgpr_kernarg_segment_ptr 1
  .amdhsa_system_sgpr_workgroup_id_x 1
.end_amdhsa_kernel
'''
open(OUT,'w').write(txt)
print('wrote',OUT,len(L),'lines')
```

```python
import sys, math, struct
NAME='gated_mix__grouped_kv_mqa__sliding_block__prompt'
DIAG = '--diag' in sys.argv
OUT = [a for a in sys.argv[1:] if not a.startswith('--')]
OUT = OUT[0] if OUT else 'cdna_kernels/%s.s'%NAME
OPT=dict(a.lstrip('-').split('=') for a in sys.argv[1:] if a.startswith('--') and '=' in a)
MAP=OPT.get('map','b'); ROT=OPT.get('rot','full'); PRIO=OPT.get('prio','step'); FLAG_IT=int(OPT.get('flagit','1')); PK=int(OPT.get('pk','7')); FORCE_K=int(OPT.get('forcek','7')); SENTK=int(OPT.get('sentk','14')); DENSE=OPT.get('dense','0')=='1'; ROLL=OPT.get('roll','0')=='1'; WT=OPT.get('wtouch','0')=='1'; KVK=int(OPT.get('kvk','13'))
def f2u(f): return struct.unpack('<I',struct.pack('<f',f))[0]

WS_EPOCH=0x0
WS_FKVA=0x1000
WS_FKVB=0x4000
WS_FOB =0xC000
WS_FOA =0x14000
WS_G   =0x1C000
WS_KVA =0x20000
WS_QB  =0x40000
WS_KVB =0x240000
WS_OA  =0x640000
WS_OB  =0x840000
WS_STAMP=0xA40000
NSTAMP=16
L_WQ=0; L_X=65536; L_ST=131072; L_CTL=L_ST+30720
L_GW=L_CTL; L_G=L_CTL+1024; L_C=L_CTL+1024+256
C_X=L_C+0
C_Q=L_C+4
C_K0=L_C+8; C_K1=L_C+12; C_K2=L_C+16; C_BP=L_C+20; C_MID=L_C+24; C_WO=L_C+28; C_WD=L_C+32; C_QR=L_C+36; C_SN=L_C+40; C_LOC=L_C+44; T_PT=L_C+256; T_X=L_C+272; T_PL=L_C+304; T_FL=L_C+308; T_G=L_C+320; T_X0=L_C+336; T_K0=L_C+352; T_Q1=L_C+356; T_H=L_C+368; T_TAG=L_C+372; C_PR=L_C+384; T_PR=L_C+400
L_EX=L_ST
LDS_TOTAL=163840
SPIN_LIMIT=400000
CSCALE=f2u(0.25*math.log2(math.e))
NEGBIG=f2u(-1e9)
L_LO=f2u(2.0**-24); L_HI=f2u(2.0**60)

sX=28; sWQ=32; sWKV=36; sWB=40; sWOA=44; sWOB=48; sG=52; sOUT=56; sWS=60; sDBG=64
sWave=68; sPb=69; sHg=70; sTag=71
sT=72
sCnt=84; sB=85
sXcc=65
sVM=86
sST=88
vZ=1
L=[]
def E(s):
    for ln in s.split('\n'):
        if ln.strip(): L.append('    '+ln.strip())
def LBL(s): L.append(s+':')
def C(s): L.append('    ; '+s)
_uid=[0]
def uid(p):
    _uid[0]+=1; return f'{p}_{_uid[0]}'
def vr(a,n): return f'v[{a}:{a+n-1}]'
def sr(a,n=4): return f's[{a}:{a+n-1}]'
def srd(dst,ptr,nbytes):
    E(f's_mov_b32 s{dst}, s{ptr}\n s_mov_b32 s{dst+1}, s{ptr+1}\n s_mov_b32 s{dst+2}, {hex(nbytes)}\n s_mov_b32 s{dst+3}, 0x20000')
STN=[]
def stamp(role,i,name):
    if OPT.get('acc') and role=='B' and i==10: return
    if OPT.get('jst') and role=='A' and i in (1,2,3,7): return
    if OPT.get('bst') and role=='B' and i in (6,7,8,9) and not name.startswith('arrive'): return
    if not DIAG: return
    STN.append((role,i,name))
    E(f's_memrealtime s[100:101]\n s_waitcnt lgkmcnt(0)\n s_mov_b32 s{sST+i}, s100')
ECHO=OPT.get('echo')
def echo_mark(name):
    if ECHO==name or name=='start' and ECHO:
        r=98 if name=='start' else 99
        E(f's_memrealtime s[100:101]\n s_waitcnt lgkmcnt(0)\n s_mov_b32 s{r}, s100')
def echo_end():
    if not ECHO: return
    E('s_waitcnt vmcnt(0)'); echo_mark('end')
    E('s_memrealtime s[100:101]\n s_waitcnt lgkmcnt(0)\n s_sub_u32 s99, s99, s98\n s_mul_i32 s99, s99, '+OPT.get('amp','1')+'\n s_add_u32 s99, s99, s100')
    LBL('L_ECHO')
    E('s_memrealtime s[100:101]\n s_waitcnt lgkmcnt(0)\n s_sub_u32 s100, s100, s99\n s_cmp_lt_i32 s100, 0\n s_cbranch_scc1 L_ECHO')
def cstamp(role,i,name):
    if OPT.get('jst') and i in (10,11) and not name.startswith('J'): return
    if not DIAG: return
    STN.append((role,i,'CYC '+name))
    E(f's_memtime s[100:101]\n s_waitcnt lgkmcnt(0)\n s_mov_b32 s{sST+i}, s100')
def tacc(role,i,name,code):
    if not (DIAG and OPT.get('acc')): E(code); return
    if (role,i,'ACC '+name) not in STN: STN.append((role,i,'ACC '+name))
    E(f's_memtime s[100:101]\n s_waitcnt lgkmcnt(0)\n s_sub_u32 s{sST+i}, s{sST+i}, s100')
    E(code)
    E(f's_memtime s[100:101]\n s_waitcnt lgkmcnt(0)\n s_add_u32 s{sST+i}, s{sST+i}, s100')
def stamp_flush(nmax,role='B'):
    if not DIAG: return
    if OPT.get('dbg'):
        m={'A':[(0,1),(2,2),(7,3),(3,4),(1,5),(4,6),(5,7),(6,8)],'B':[(4,9),(6,10),(7,11),(9,12),(10,13),(11,14)]}[role]
        sk=uid('nd')
        srd(sDBG,24,256)
        E(f's_bfe_u32 s{sT}, s2, 0x30003\n s_cmp_eq_u32 s{sT}, 0\n s_cbranch_scc0 {sk}\n v_mov_b32 v2, 0\n s_not_b32 s{sT}, s{sST}\n v_writelane_b32 v2, s{sT}, 0')
        for i,sl in m: E(f'v_writelane_b32 v2, s{sST+i}, {sl}')
        E(f'v_lshlrev_b32 v3, 2, v0\n s_mov_b64 exec, 0xffff\n buffer_atomic_umax v2, v3, {sr(sDBG)}, 0 offen sc1\n s_mov_b64 exec, -1')
        LBL(sk)
        return
    if OPT.get('hwid'): E(f's_getreg_b32 s{sST+11}, hwreg(HW_REG_HW_ID)\n s_getreg_b32 s{sST+10}, hwreg(HW_REG_XCC_ID)')
    E('v_mov_b32 v2, 0')
    for i in range(nmax): E(f'v_writelane_b32 v2, s{sST+i}, {i}')
    E(f's_mul_i32 s{sT}, s2, 12\n s_add_u32 s{sT}, s{sT}, s{sWave}\n s_lshl_b32 s{sT}, s{sT}, 6\n s_add_u32 s{sT}, s{sT}, {hex(WS_STAMP)}')
    E(f'v_lshlrev_b32 v3, 2, v0\n s_mov_b64 exec, 0xffff\n buffer_store_dword v2, v3, {sr(sWS)}, s{sT} offen\n s_mov_b64 exec, -1')

def lds_add(off,val,vz,vt):
    E(f'v_mov_b32 v{vt}, {val}\n s_mov_b64 exec, 1\n ds_add_u32 v{vz}, v{vt} offset:{off-L_ST}\n s_mov_b64 exec, -1')
def lds_spin(off,mask,val,vz,vt,sleep=1):
    a=uid('spin'); d=uid('spind')
    E(f's_mov_b32 s{sCnt}, {SPIN_LIMIT}')
    LBL(a)
    E(f'ds_read_b32 v{vt}, v{vz} offset:{off-L_ST}\n s_waitcnt lgkmcnt(0)\n v_readfirstlane_b32 s{sT}, v{vt}')
    if mask is not None: E(f's_and_b32 s{sT}, s{sT}, {hex(mask)}')
    E(f's_cmp_eq_u32 s{sT}, {hex(val)}\n s_cbranch_scc1 {d}\n s_sub_u32 s{sCnt}, s{sCnt}, 1\n s_cbranch_scc1 {d}')
    if sleep: E(f's_sleep {sleep}')
    E(f's_branch {a}')
    LBL(d)
def tag_set(off,sidx,vt):
    if sidx is None: E(f'v_mov_b32 v{vt}, {off}')
    else: E(f's_lshl_b32 s{sT}, s{sidx}, 2\n s_add_u32 s{sT}, s{sT}, {off}\n v_mov_b32 v{vt}, s{sT}')
    E(f'v_mov_b32 v{vt+1}, 1\n s_mov_b64 exec, 1\n ds_write_b32 v{vt}, v{vt+1}\n s_mov_b64 exec, -1')
def tag_wait(off,n,vt,sleep=0,once=None):
    a=uid('tw'); d=uid('twd')
    E(f'v_and_b32 v{vt}, {n-1}, v0\n v_lshlrev_b32 v{vt}, 2, v{vt}\n v_add_u32 v{vt}, {off}, v{vt}')
    if once:
        E(f'ds_read_b32 v{vt+1}, v{vt}\n s_waitcnt lgkmcnt(0)\n v_cmp_ne_u32 vcc, 1, v{vt+1}\n s_cbranch_vccz {once}')
        return
    E(f's_mov_b32 s{sCnt}, {SPIN_LIMIT}')
    LBL(a)
    E(f'ds_read_b32 v{vt+1}, v{vt}\n s_waitcnt lgkmcnt(0)\n v_cmp_ne_u32 vcc, 1, v{vt+1}\n s_cbranch_vccz {d}\n s_sub_u32 s{sCnt}, s{sCnt}, 1\n s_cbranch_scc1 {d}')
    if sleep: E(f's_sleep {sleep}')
    E(f's_branch {a}')
    LBL(d)
def tag_get(vt):
    E(f'ds_read_b32 v{vt}, v{vZ} offset:{T_TAG-L_ST}\n s_waitcnt lgkmcnt(0)\n v_readfirstlane_b32 s{sTag}, v{vt}')
def poll(vaddr,n,vt,sleep=1):
    a=uid('poll'); d=uid('polld')
    E(f's_mov_b32 s{sCnt}, {SPIN_LIMIT}')
    LBL(a)
    op={1:'buffer_load_dword',2:'buffer_load_dwordx2',3:'buffer_load_dwordx3',4:'buffer_load_dwordx4'}[n]
    E(f'{op} {vr(vt,n) if n>1 else "v%d"%vt}, v{vaddr}, {sr(sWS)}, 0 offen sc1\n s_waitcnt vmcnt(0)')
    for i in range(n): E(f'v_xor_b32 v{vt+i}, s{sTag}, v{vt+i}')
    if n==2: E(f'v_or_b32 v{vt}, v{vt}, v{vt+1}')
    if n>=3: E(f'v_or3_b32 v{vt}, v{vt}, v{vt+1}, v{vt+2}')
    if n==4: E(f'v_or_b32 v{vt}, v{vt}, v{vt+3}')
    E(f'v_cmp_ne_u32 vcc, 0, v{vt}\n s_cbranch_vccz {d}\n s_sub_u32 s{sCnt}, s{sCnt}, 1\n s_cbranch_scc1 {d}')
    if sleep: E(f's_sleep {sleep}')
    E(f's_branch {a}')
    LBL(d)
def flag_store(soff_reg,vt):
    E(f'v_mov_b32 v{vt}, s{sTag}\n s_mov_b64 exec, 1\n buffer_store_dword v{vt}, off, {sr(sWS)}, s{soff_reg} sc1\n s_mov_b64 exec, -1')
def mfma(d,a,b,c=None):
    cc = vr(d,16) if c is None else (c if isinstance(c,str) else vr(c,16))
    E(f'v_mfma_f32_32x32x16_bf16 {vr(d,16)}, {vr(a,4)}, {vr(b,4)}, {cc}')
def smf(o,v,s,idx): E(f'v_smfmac_f32_32x32x32_bf16 {vr(o,16)}, {vr(v,4)}, {vr(s,8)}, v{idx}')
def vexp(r): E(f'v_exp_f32 v{r}, v{r}')
def cvt(d,a,b): E(f'v_cvt_pk_bf16_f32 v{d}, v{a}, v{b}')
def set_vpad(regs,vt):
    E(f'v_and_b32 v{vt}, 27, v0\n v_cmp_eq_u32 vcc, 16, v{vt}\n v_mov_b32 v{vt}, 0x3f803f80\n s_nop 0\n v_cndmask_b32 v{regs[0]}, 0, v{vt}, vcc')
    for r in regs[1:]: E(f'v_mov_b32 v{r}, v{regs[0]}')
def xaddr(base,t_imm,vt):
    E(f'v_and_b32 v{vt}, 15, v0\n v_lshrrev_b32 v{base}, 5, v0\n v_xor_b32 v{base}, v{base}, v{vt}\n v_lshlrev_b32 v{base}, 4, v{base}')
    E(f'v_and_b32 v{vt}, 31, v0\n v_lshl_add_u32 v{base}, v{vt}, 10, v{base}\n v_add_u32 v{base}, {t_imm}, v{base}')
    for b in range(1,8): E(f'v_xor_b32 v{base+b}, {b<<5}, v{base}')
def traddr128(dst,vt,vt2,rowsel,colbase):
    E(f'v_lshrrev_b32 v{vt}, 5, v0\n v_lshlrev_b32 v{vt}, {rowsel}, v{vt}\n v_bfe_u32 v{vt2}, v0, 2, 2\n v_add_u32 v{vt}, v{vt}, v{vt2}\n v_lshlrev_b32 v{dst}, 7, v{vt}')
    E(f'v_bfe_u32 v{vt}, v0, 4, 1\n v_lshlrev_b32 v{vt}, 1, v{vt}\n v_bfe_u32 v{vt2}, v0, 1, 1\n v_add3_u32 v{vt}, v{vt}, v{vt2}, {colbase}')
    E(f'v_bfe_u32 v{vt2}, v0, 3, 1\n v_lshlrev_b32 v{vt2}, 2, v{vt2}\n v_xor_b32 v{vt}, v{vt}, v{vt2}\n v_lshl_add_u32 v{dst}, v{vt}, 4, v{dst}')
    E(f'v_and_b32 v{vt}, 1, v0\n v_lshl_add_u32 v{dst}, v{vt}, 3, v{dst}')
def dma128_voff(dst,vt,vt2,rowstride_sreg_or_shift,colbytes):
    E(f'v_lshrrev_b32 v{vt}, 3, v0')
    if isinstance(rowstride_sreg_or_shift,int): E(f'v_lshlrev_b32 v{dst}, {rowstride_sreg_or_shift}, v{vt}')
    else: E(f'v_mul_u32_u24 v{dst}, {rowstride_sreg_or_shift}, v{vt}')
    E(f'v_bfe_u32 v{vt}, v0, 4, 1\n v_lshlrev_b32 v{vt}, 2, v{vt}\n v_and_b32 v{vt2}, 7, v0\n v_xor_b32 v{vt}, v{vt}, v{vt2}\n v_lshl_add_u32 v{dst}, v{vt}, 4, v{dst}\n v_add_u32 v{dst}, {colbytes}, v{dst}')
def finalize(O,dst,vt,lbl_fb,lbl_back,vg):
    C('guard: row sum inside [2^-24, 2^60] and finite numerators in every lane, else redo with the true maximum')
    E(f'v_add_f32 v{vt}, |v{O}|, |v{O+1}|')
    for r in range(2,8): E(f'v_add_f32 v{vt}, v{vt}, |v{O+r}|')
    E(f'v_mov_b32 v{vt+1}, 0x7f800000\n v_cmp_nlt_f32 {sr(sT,2)}, v{vt}, v{vt+1}')
    E(f'v_cmp_nle_f32 vcc, {hex(L_LO)}, v{O+8}\n s_or_b64 {sr(sT,2)}, {sr(sT,2)}, vcc')
    E(f'v_cmp_nge_f32 vcc, {hex(L_HI)}, v{O+8}\n s_or_b64 {sr(sT,2)}, {sr(sT,2)}, vcc\n s_cbranch_scc1 {lbl_fb}')
    LBL(lbl_back)
    E(f'v_rcp_f32 v{vt}, v{O+8}\n s_nop 0\n v_mul_f32 v{vt}, v{vt}, v{vg}')
    for r in range(0,8,2): E(f'v_pk_mul_f32 {vr(O+r,2)}, {vr(O+r,2)}, {vr(vt,2)} op_sel_hi:[1,0]')
    for r in range(4): cvt(dst+r,O+2*r,O+2*r+1)
    E(f'v_min_u32 v{dst}, -2, v{dst}')

TAIL=[]
RETRY=[]
def fallback(lbl,back,Q,O,S,K,V,IDX,vM,vK,vV,ntile,soff_setup,first_mask=None,last_mask=None,first_cond=None):
    global L
    save=L; L=[]
    LBL(lbl)
    C('exact softmax for one query tile: pass 1 row maxima, pass 2 exp2(s - max) ; K/V fragments from d_ws')
    soff_setup()
    E(f'v_mov_b32 v{vM}, 0xff800000')
    for p in (0,1):
        lp=uid('fbl')
        if p==1:
            E(f'v_mov_b32 v{S}, v{vM}\n s_nop 1\n v_permlane32_swap_b32 v{S}, v{vM}\n s_nop 1\n v_max_f32 v{vM}, v{vM}, v{S}')
            for r in range(16): E(f'v_mov_b32 v{O+r}, 0')
        E(f's_mov_b32 s{sT+5}, s{sT+2}\n s_mov_b32 s{sT+6}, 0')
        LBL(lp)
        E(f'buffer_load_dwordx4 {vr(K,4)}, v{vK}, {sr(sWS)}, s{sT+5} offen sc1')
        if p==1:
            E(f's_mov_b64 exec, {sr(sVM,2)}\n buffer_load_dwordx4 {vr(V,4)}, v{vV}, {sr(sWS)}, s{sT+5} offen offset:1024 sc1\n buffer_load_dwordx4 {vr(V+4,4)}, v{vV}, {sr(sWS)}, s{sT+5} offen offset:1536 sc1\n s_mov_b64 exec, -1')
        E('s_waitcnt vmcnt(0)')
        if first_mask is None:
            mfma(S,K,Q,'0')
        else:
            a=uid('fbm'); b=uid('fbm'); j=uid('fbm')
            E(f's_add_u32 s{sT+7}, s{sT+6}, 1\n s_cmp_eq_u32 s{sT+7}, s{sT+3}\n s_cbranch_scc1 {a}')
            E(f's_cmp_lt_u32 s{sT+6}, s{sT+4}\n s_cbranch_scc1 {b}')
            mfma(S,K,Q,'0'); E(f's_branch {j}')
            LBL(a); mfma(S,K,Q,last_mask); E(f's_branch {j}')
            LBL(b); mfma(S,K,Q,first_mask)
            LBL(j)
        E('s_nop 15')
        if p==0:
            for r in range(0,16,2): E(f'v_max3_f32 v{vM}, v{S+r}, v{S+r+1}, v{vM}')
        else:
            for r in range(16): E(f'v_sub_f32 v{S+r}, v{S+r}, v{vM}')
            for r in range(16): vexp(S+r)
            E('s_nop 1'); smf(O,V,S,IDX); smf(O,V+4,S+8,IDX)
        E(f's_add_u32 s{sT+5}, s{sT+5}, 2048\n s_add_u32 s{sT+6}, s{sT+6}, 1\n s_cmp_lt_u32 s{sT+6}, s{sT+3}\n s_cbranch_scc1 {lp}')
    E(f's_nop 15\n s_branch {back}')
    TAIL.extend(L); L=save

E('s_cmp_ge_u32 s2, 256\n s_cbranch_scc1 L_END')
if ECHO=='karg': E('s_memrealtime s[100:101]\n s_waitcnt lgkmcnt(0)\n s_mov_b32 s97, s100')
E('s_load_dwordx16 s[4:19], s[0:1], 0\n s_load_dwordx8 s[20:27], s[0:1], 64')
E(f'v_lshrrev_b32 v1, 6, v0\n v_and_b32 v0, 63, v0\n v_readfirstlane_b32 s{sWave}, v1')
if MAP=='b' and OPT.get('alt'):
    E(f's_and_b32 s{sT}, s2, 7\n s_lshr_b32 s{sT+2}, s2, 6\n s_lshl_b32 s{sPb}, s{sT}, 2\n s_or_b32 s{sPb}, s{sPb}, s{sT+2}\n s_bfe_u32 s{sHg}, s2, 0x30003')
elif MAP=='b':
    E(f's_add_u32 s{sT}, s2, {OPT.get("sh","0")}\n s_and_b32 s{sT}, s{sT}, 7\n s_lshr_b32 s{sT+1}, s2, 3\n s_and_b32 s{sT+2}, s{sT+1}, 3\n s_lshl_b32 s{sPb}, s{sT}, 2\n s_or_b32 s{sPb}, s{sPb}, s{sT+2}\n s_lshr_b32 s{sHg}, s{sT+1}, 2')
else:
    E(f's_bfe_u32 s{sPb}, s2, 0x20001\n s_lshl_b32 s{sPb}, s{sPb}, 3\n s_bfe_u32 s{sT}, s2, 0x30003\n s_or_b32 s{sPb}, s{sPb}, s{sT}\n s_and_b32 s{sHg}, s2, 1\n s_lshl_b32 s{sHg}, s{sHg}, 2\n s_lshr_b32 s{sT}, s2, 6\n s_or_b32 s{sHg}, s{sHg}, s{sT}')
E(f's_mov_b32 s{sVM}, 0xffff\n s_mov_b32 s{sVM+1}, 0xffff')
if DIAG:
    for i in range(12): E(f's_mov_b32 s{sST+i}, 0')
def codepf():
  if OPT.get('cpf','1')=='1':
      C('---- pull this WG\'s share of the kernel\'s own instructions into L2 (later instruction fetches then miss only the I-cache)')
      E(f's_cmp_eq_u32 s{sWave}, 11\n s_cbranch_scc0 L_B_NCP\n s_getpc_b64 s[{sT}:{sT+1}]')
      LBL('L_B_PC')
      E(f's_lshr_b32 s{sT+2}, s2, 3\n s_mul_i32 s{sT+2}, s{sT+2}, (L_CODE_END-L_B_PC+4095)/4096*128\n s_add_u32 s{sT}, s{sT}, s{sT+2}\n s_addc_u32 s{sT+1}, s{sT+1}, 0')
      E(f'v_lshlrev_b32 v2, 7, v0\n v_mov_b32 v3, s{sT+1}\n v_add_co_u32 v2, vcc, s{sT}, v2\n s_nop 1\n v_addc_co_u32 v3, vcc, 0, v3, vcc\n s_lshl_b64 exec, 1, (L_CODE_END-L_B_PC+4095)/4096\n s_sub_u32 exec_lo, exec_lo, 1\n global_load_dword v63, v[2:3], off\n s_mov_b64 exec, -1')
      LBL('L_B_NCP')
if OPT.get('cpe','0')=='1': codepf()
C('clear the LDS counters and flags while the kernel arguments arrive')
E(f'v_lshlrev_b32 v2, 3, v0\n v_add_u32 v2, {L_C}, v2\n v_mov_b32 v4, 0\n v_mov_b32 v5, 0\n ds_write_b64 v2, v[4:5]')
E('s_waitcnt lgkmcnt(0)\n s_barrier')
stamp('A',0,'start'); stamp('B',0,'start'); echo_mark('start')
if ECHO=='karg': E('s_sub_u32 s99, s98, s97\n s_mul_i32 s99, s99, 10\n s_add_u32 s99, s99, s98')
srd(sX,4,2048*1024); srd(sWS,26,0x10000000)
E(f's_cmp_lt_u32 s{sWave}, 8\n s_cbranch_scc1 L_A')


KVPOS=[L_ST,32768,49152,16384,65536,81920,98304,114688]
L_PART=L_ST+24576
L_QA=0; L_QB=8192; L_WO=0; L_FX=65536
sOut=66; sOb=67; sPass=64
sRot=sT+11
def mktag(): E(f's_mul_i32 s{sTag}, s{sTag}, 0x9E3779B1\n s_add_u32 s{sTag}, s{sTag}, 0x7F4A7C15')
FT=OPT.get('ft','0')
def mkrot():
    if FT!='0' and not OPT.get('ftrot'): E(f's_mov_b32 s{sRot}, 0'); return
    if MAP=='b': E(f's_and_b32 s{sRot}, s{sPb}, 3\n s_lshl_b32 s{sRot}, s{sRot}, 1\n s_add_u32 s{sRot}, s{sRot}, s{sHg}')
    else: E(f's_lshl_b32 s{sRot}, s{sHg}, 1\n s_add_u32 s{sRot}, s{sRot}, s{sPb}')
def touch(srd_,soff,n,vaddr,vd,sc1=False):
    for i in range(n):
        if i: E(f's_add_u32 s{soff}, s{soff}, 8192')
        E(f'buffer_load_dword v{vd}, v{vaddr}, {sr(srd_)}, s{soff} offen'+(' sc1' if sc1 else ''))
E(f's_setprio {2 if OPT.get("bp2") else 3}\n s_sub_u32 s{sB}, s{sWave}, 8')
if OPT.get('cpe','0')=='0': codepf()
C('---- x tile -> LDS as 8 blocks of [64 rows][64 k], block order rotated per WG ; wave b brings blocks b and b+4')
E('v_lshrrev_b32 v17, 3, v0\n v_lshlrev_b32 v17, 10, v17\n v_lshrrev_b32 v2, 4, v0\n v_and_b32 v3, 7, v0\n v_xor_b32 v2, v2, v3\n v_lshl_add_u32 v17, v2, 4, v17\n v_xor_b32 v18, 64, v17')
mkrot()
E(f's_lshl_b32 s{sT+7}, s{sPb}, 16\n s_lshl_b32 s{sT+6}, s{sB}, 13')
VQ=[]
def vwait(tag,extra=''):
    if tag not in VQ:
        if extra: E('s_waitcnt'+extra)
        return
    i=max(n for n,t in enumerate(VQ) if t==tag)
    n=len(VQ)-1-i; del VQ[:i+1]
    E(f's_waitcnt vmcnt({n})'+extra)
XD=OPT.get('xd','1')=='1'
def xblock(expr_add,ldsoff,rows):
    E(f's_add_u32 s{sT+1}, s{sRot}, {expr_add}\n s_and_b32 s{sT+1}, s{sT+1}, 7\n s_lshl_b32 s{sT+1}, s{sT+1}, 7\n s_add_u32 s{sT+1}, s{sT+1}, s{sT+7}')
if XD:
    E(f's_and_b32 s{sT+1}, s{sRot}, 7\n s_lshl_b32 s{sT+1}, s{sT+1}, 7\n s_add_u32 s{sT+1}, s{sT+1}, s{sT+7}\n s_lshl_b32 s{sT+2}, s{sB}, 14\n s_add_u32 s{sT+1}, s{sT+1}, s{sT+2}\n s_lshl_b32 s{sT+2}, s{sB}, 11\n s_add_u32 m0, s{sT+2}, 65536\n s_nop 0')
    E(f'buffer_load_dwordx4 v17, {sr(sX)}, s{sT+1} offen lds\n s_add_u32 m0, s{sT+2}, {65536+1024}\n s_add_u32 s{sT+1}, s{sT+1}, 8192\n buffer_load_dwordx4 v18, {sr(sX)}, s{sT+1} offen lds')
def wtouch(chunk_expr):
    E(f'{chunk_expr}\n s_lshl_b32 s{sT+1}, s{sT+1}, 5\n s_lshr_b32 s{sT+2}, s2, 3\n s_add_u32 s{sT+1}, s{sT+1}, s{sT+2}\n s_lshl_b32 s{sT+2}, s{sT+1}, 11\n s_mul_i32 s{sT+1}, s{sT+1}, 6144')
    E(f's_mov_b64 exec, 0xffff\n buffer_load_dword v19, v21, {sr(sWQ)}, s{sT+2} offen\n s_mov_b32 exec_lo, -1\n s_mov_b32 exec_hi, 0xffff\n buffer_load_dword v20, v21, {sr(sWB)}, s{sT+1} offen\n s_mov_b64 exec, -1')
NT=0
if FT!='0':
    srd(sWQ,6,512*1024); srd(sWB,16,512*3072)
    E('v_lshlrev_b32 v21, 7, v0')
    wtouch(f's_mov_b32 s{sT+1}, s{sB}'); NT=2
    if FT=='2': wtouch(f's_add_u32 s{sT+1}, s{sB}, 4'); NT=4
def c3touch():
    C('lines with address bits 9:7 = 3 miss more slowly: every WG asks early for a share of that weight column block')
    E(f's_cmp_eq_u32 s{sB}, 0\n s_cselect_b32 s{sWB}, s6, s16\n s_cselect_b32 s{sWB+1}, s7, s17\n s_mov_b32 s{sWB+2}, {512*3072}\n s_cselect_b32 s{sWB+2}, {512*1024}, s{sWB+2}\n s_mov_b32 s{sWB+3}, 0x20000')
    E(f's_movk_i32 s{sT+3}, 3072\n s_cselect_b32 s{sT+3}, 0x400, s{sT+3}\n s_max_u32 s{sT+1}, s{sB}, 1\n s_sub_u32 s{sT+1}, s{sT+1}, 1\n s_lshl_b32 s{sT+1}, s{sT+1}, 10\n s_lshr_b32 s{sT+2}, s2, 3\n s_lshl_b32 s{sT+2}, s{sT+2}, 4\n s_mul_i32 s{sT+2}, s{sT+2}, s{sT+3}\n s_add_u32 s{sT+1}, s{sT+1}, s{sT+2}')
    E(f'v_mul_u32_u24 v2, s{sT+3}, v0\n s_mov_b64 exec, 0xffff\n buffer_load_dword v19, v2, {sr(sWB)}, s{sT+1} offen offset:384\n s_mov_b64 exec, -1')
C3=OPT.get('c3','2') if MAP=='b' and FT=='0' else '0'
if C3=='1': c3touch()
def xrest():
  for hb in range(2):
    sk=uid('xs')
    if XD and hb==0: E(f's_cmp_eq_u32 s{sB}, 0\n s_cbranch_scc1 {sk}')
    E(f's_add_u32 s{sT+1}, s{sRot}, s{sB}\n s_add_u32 s{sT+1}, s{sT+1}, {4*hb}\n s_and_b32 s{sT+1}, s{sT+1}, 7\n s_lshl_b32 s{sT+1}, s{sT+1}, 7\n s_add_u32 s{sT+1}, s{sT+1}, s{sT+7}')
    for n in range(8):
        E(f's_add_u32 m0, s{sT+6}, {65536+32768*hb+1024*n}')
        E(f's_add_u32 s{sT+1}, s{sT+1}, 8192' if n else 's_nop 0')
        E(f'buffer_load_dwordx4 v{17+(n&1)}, {sr(sX)}, s{sT+1} offen lds')
    if XD and hb==0: LBL(sk)
if not XD: xrest()
MU=128; MD=144; BQ=16; BK=24; BV=36; BS=64; BO=96; BIDX=60
C('---- constants for the later phases (idle time)')
E(f'v_mov_b32 v{vZ}, {L_ST}\n v_lshlrev_b32 v160, 4, v0\n v_lshlrev_b32 v163, 7, v0')
E('v_lshrrev_b32 v161, 5, v0\n v_lshlrev_b32 v161, 8, v161\n v_and_b32 v2, 15, v0\n v_lshl_add_u32 v161, v2, 4, v161')
srd(sWOA,12,512*1024); srd(sWOB,18,512*1024)
E(f'v_and_b32 v4, 31, v0\n v_lshrrev_b32 v5, 5, v0\n v_lshlrev_b32 v5, 2, v5\n v_sub_u32 v4, v4, v5\n s_mov_b32 s{sT}, {hex(NEGBIG)}')
for r in range(16):
    E(f'v_subrev_u32 v5, {8*(r//4)+r%4}, v4\n v_ashrrev_i32 v5, 31, v5\n v_and_b32 v{MD+r}, s{sT}, v5\n v_xor_b32 v{MU+r}, s{sT}, v{MD+r}')
set_vpad(list(range(BV,BV+24)),2); E(f'v_mov_b32 v{BIDX}, 0xdddddddd')
for r in range(32): E(f'v_mov_b32 v{BO+r}, 0')
E(f'v_min_u32 v2, 4, v0\n s_sub_i32 s{sT}, s{sPb}, 4\n v_add_u32 v2, s{sT}, v2\n v_max_i32 v2, 0, v2\n s_lshl_b32 s{sT}, s{sHg}, 5\n v_add_u32 v2, s{sT}, v2\n v_lshlrev_b32 v2, 7, v2\n v_add_u32 v162, {hex(WS_FKVB+8)}, v2')
E(f'v_and_b32 v2, 7, v0\n v_lshlrev_b32 v2, 5, v2\n v_add_u32 v2, s{sPb}, v2\n v_lshlrev_b32 v2, 7, v2\n v_add_u32 v166, {hex(WS_FKVB+16)}, v2')
sKh=sT+9; sTt=sT+10
E(f's_lshr_b32 s{sKh}, s{sB}, 1\n s_and_b32 s{sTt}, s{sB}, 1\n s_lshl_b32 s{sT+2}, s{sHg}, 7')
dma128_voff(10,2,3,10,f's{sT+2}')
E(f's_lshl_b32 s{sT+1}, s{sKh}, 2'); traddr128(11,2,3,2,f's{sT+1}')
E(f's_lshl_b32 s{sT+1}, s{sKh}, 15\n s_add_u32 s{sT+1}, s{sT+1}, {L_WO}\n v_add_u32 v11, s{sT+1}, v11\n v_xor_b32 v9, 64, v11')
E(f's_lshl_b32 s{sOut}, s{sPb}, 1\n s_add_u32 s{sOut}, s{sOut}, s{sTt}\n s_lshl_b32 s{sOut}, s{sOut}, 15\n s_lshl_b32 s{sT}, s{sKh}, 14\n s_add_u32 s{sOb}, s{sOut}, s{sT}\n s_add_u32 s{sOb}, s{sOb}, {hex(WS_OB)}')
E(f's_lshl_b32 s{sT}, s{sHg}, 7\n s_add_u32 s{sOut}, s{sOut}, s{sT}\n s_lshl_b32 s{sT}, s{sKh}, 6\n s_add_u32 s{sOut}, s{sOut}, s{sT}')
E('v_and_b32 v8, 31, v0\n v_lshlrev_b32 v167, 10, v8\n v_lshrrev_b32 v3, 5, v0\n v_lshl_add_u32 v167, v3, 4, v167\n v_lshlrev_b32 v8, 2, v8')
srd(sOUT,22,2048*1024)
E(f's_lshl_b32 s{sT}, s{sB}, 12\n s_add_u32 s{sT}, s{sT}, {L_FX}\n v_add_u32 v164, s{sT}, v160\n v_xor_b32 v165, 0x2000, v164\n s_mov_b32 s{sPass}, 0')
if XD:
    E(f's_waitcnt vmcnt({NT})' if NT else ('s_waitcnt vmcnt(1)' if C3=='1' else 's_waitcnt vmcnt(0)')); tag_set(T_X0,sB,2)
    if C3=='2': c3touch()
    if FT=='1': wtouch(f's_add_u32 s{sT+1}, s{sB}, 4')
    xrest()
E('s_waitcnt vmcnt(8)')
tag_set(T_X,sB,2)
stamp('B',1,'x landed'); echo_mark('xl')
E('s_waitcnt vmcnt(0)')
tag_set(T_X+16,sB,2)
if ECHO in ('k0','q1','fl','pt'):
    tag_wait({'k0':T_K0,'q1':T_Q1,'fl':T_FL,'pt':T_PT}[ECHO],4 if ECHO=='pt' else 1,2,sleep=2); echo_mark(ECHO)
tag_wait(T_G,4,2,sleep=4)
tag_get(2)
stamp('B',5,'BQ'); echo_mark('bq')
E(f's_setprio {OPT.get("bpr","3")}')
def kvdma(c):
    E(f's_lshr_b32 s{sT+1}, s2, 3\n s_add_u32 s{sT+1}, s{sT+1}, {c}\n s_and_b32 s{sT+1}, s{sT+1}, 3\n s_lshl_b32 s{sT+1}, s{sT+1}, 2\n s_add_u32 s{sT+1}, s{sT+1}, s{sB}\n s_lshl_b32 s{sT+1}, s{sT+1}, 12')
    E(f's_lshl_b32 s{sT+2}, s{sB}, 12\n s_add_u32 m0, s{sT+2}, {KVPOS[c]}\n s_add_u32 s{sT+1}, s{sT+1}, {hex(WS_KVA+(65536 if c>=4 else 0))}')
    for i in range(4): E(f'buffer_load_dwordx4 v160, {sr(sWS)}, s{sT+1} offen offset:{1024*i} sc1 lds')
    VQ.extend([f'kv{c}']*4)
E(f's_lshl_b32 s{sT}, s{sB}, 11\n s_add_u32 s{sT}, s{sT}, {L_QB}\n v_add_u32 v3, s{sT}, v160')
for t in range(2): E(f'ds_read_b128 {vr(BQ+4*t,4)}, v3 offset:{1024*t}')
E(f's_lshl_b32 s{sT}, s{sPb}, 8\n s_add_u32 s{sT}, s{sT}, {hex(WS_G)}\n buffer_load_dword v61, v8, {sr(sWS)}, s{sT} offen sc1\n buffer_load_dword v62, v8, {sr(sWS)}, s{sT} offen offset:128 sc1\n s_waitcnt lgkmcnt(0)')
C('---- second half of the shared K/V ; o slots marked as not yet written')
for c in (4,5,6,7): kvdma(c)
E(f's_lshl_b32 s{sT+10}, s{sPb}, 6\n s_lshl_b32 s{sT+1}, s{sHg}, 2\n s_add_u32 s{sT+10}, s{sT+10}, s{sT+1}\n s_add_u32 s{sT+10}, s{sT+10}, s{sB}\n s_lshl_b32 s{sT+10}, s{sT+10}, 10')
E('v_mov_b32 v12, -1\n v_mov_b32 v13, -1\n v_mov_b32 v14, -1\n v_mov_b32 v15, -1')
for base in (WS_OA,WS_OA+32768,WS_OB,WS_OB+32768):
    E(f's_add_u32 s{sT+1}, s{sT+10}, {hex(base)}\n buffer_store_dwordx4 v[12:15], v160, {sr(sWS)}, s{sT+1} offen sc1')
E(f's_lshl_b32 s{sT+3}, s{sHg}, 5\n s_add_u32 s{sT+3}, s{sT+3}, s{sPb}\n s_lshl_b32 s{sT+3}, s{sT+3}, 7\n s_lshl_b32 s{sT+1}, s{sB}, 2\n s_add_u32 s{sT+3}, s{sT+3}, s{sT+1}\n s_add_u32 s{sT+3}, s{sT+3}, {hex(WS_FKVB+16)}')
E(f's_getreg_b32 s{sXcc}, hwreg(HW_REG_XCC_ID, 0, 4)\n s_add_u32 s{sT}, s{sTag}, s{sXcc}\n v_mov_b32 v3, s{sT}\n s_waitcnt vmcnt(0)')
E(f's_mov_b64 exec, 1\n buffer_store_dword v3, off, {sr(sWS)}, s{sT+3} sc1\n s_mov_b64 exec, -1')
lds_add(C_K2,0x101,vZ,2)
stamp('B',2,'K/V all in')
if OPT.get('nob'): stamp_flush(12); E('s_endpgm')
E('v_sub_f32 v61, 1.0, v61\n v_sub_f32 v62, 1.0, v62')
poll(162,2,4,sleep=3)
stamp('B',6,'kvB flags seen'); echo_mark('kvb')
def wotouch():
    if MAP=='b':
        E(f's_cmp_ge_u32 s{sB}, 2\n s_cbranch_scc0 L_B_NOT\n s_lshr_b32 s{sT+1}, s2, 3\n s_lshl_b32 s{sT+1}, s{sT+1}, 14\n s_and_b32 s{sT+2}, s{sB}, 1\n s_lshl_b32 s{sT+2}, s{sT+2}, 13\n s_add_u32 s{sT+1}, s{sT+1}, s{sT+2}')
        touch(sWOB,sT+1,1,163,3); touch(sWOA,sT+1,1,163,3)
    else:
        E(f's_cmp_eq_u32 s{sB}, 3\n s_cbranch_scc0 L_B_NOT\n s_lshr_b32 s{sT+1}, s2, 3\n s_lshl_b32 s{sT+1}, s{sT+1}, 14\n s_and_b32 s{sT+2}, s2, 1\n s_lshl_b32 s{sT+2}, s{sT+2}, 9\n s_add_u32 s{sT+1}, s{sT+1}, s{sT+2}')
        E('v_lshrrev_b32 v2, 2, v0\n v_lshlrev_b32 v2, 10, v2\n v_and_b32 v3, 3, v0\n v_lshl_add_u32 v2, v3, 7, v2')
        touch(sWOB,sT+1,1,2,3); touch(sWOA,sT+1,1,2,4)
    LBL('L_B_NOT')
C('---- window attention, head 4hg+b, two query tiles')
E(f's_lshl_b32 s{sT+8}, s{sHg}, 2\n s_add_u32 s{sT+8}, s{sT+8}, s{sB}\n s_lshl_b32 s{sT+8}, s{sT+8}, 6\n s_lshl_b32 s{sT+9}, s{sPb}, 1\n s_sub_i32 s{sT+9}, s{sT+9}, 8')
def btile(j): E(f's_add_i32 s{sT}, s{sT+9}, {j}\n s_max_i32 s{sT}, s{sT}, 0\n s_add_u32 s{sT}, s{sT}, s{sT+8}\n s_lshl_b32 s{sT}, s{sT}, 11\n s_add_u32 s{sT}, s{sT}, {hex(WS_KVB)}')
def bload(j):
    k=BK+4*(j%3); v=BV+8*(j%3)
    btile(j)
    E(f'buffer_load_dwordx4 {vr(k,4)}, v160, {sr(sWS)}, s{sT} offen sc1\n s_mov_b64 exec, {sr(sVM,2)}')
    E(f'buffer_load_dwordx4 {vr(v,4)}, v161, {sr(sWS)}, s{sT} offen offset:1024 sc1\n buffer_load_dwordx4 {vr(v+4,4)}, v161, {sr(sWS)}, s{sT} offen offset:1536 sc1\n s_mov_b64 exec, -1')
bload(0); bload(1)
E(f's_setprio {OPT.get("bat","3")}')
for j in (2,6):
    E(f's_add_i32 s{sT}, s{sT+9}, {j}\n s_max_i32 s{sT}, s{sT}, 0\n s_add_i32 s{sT+1}, s{sT+9}, 6\n s_min_i32 s{sT}, s{sT}, s{sT+1}\n s_cmp_lt_i32 s{sT}, 0')
    sk=uid('tk'); E(f's_cbranch_scc1 {sk}\n s_add_u32 s{sT}, s{sT}, s{sT+8}\n s_lshl_b32 s{sT}, s{sT}, 11\n s_add_u32 s{sT}, s{sT}, {hex(WS_KVB)}')
    E(f'buffer_load_dword v3, v163, {sr(sWS)}, s{sT} offen sc1'); LBL(sk)
E('s_waitcnt lgkmcnt(0)')
for j in range(10):
    k=BK+4*(j%3); v=BV+8*(j%3)
    if j==3: wotouch()
    if j==int(OPT.get('bup','4')): E('s_setprio 3')
    if j==7: E(f'buffer_load_dwordx4 v[12:15], v166, {sr(sWS)}, 0 offen sc1')
    if j+2<10: bload(j+2)
    E(f's_waitcnt vmcnt({3*min(2,9-j)})')
    sk=uid('bskip')
    if j<8: E(f's_cmp_lt_i32 s{sT+9}, {-j}\n s_cbranch_scc1 {sk}')
    qs=[q for q in (0,1) if 0<=j-q<=8]
    for q in qs: mfma(BS+16*q,k,BQ+4*q,{0:MU,8:MD}.get(j-q,'0'))
    E('s_nop 10' if len(qs)==2 else 's_nop 11')
    for q in qs:
        S=BS+16*q; O=BO+16*q
        for r in range(10): vexp(S+r)
        smf(O,v,S,BIDX)
        for r in range(10,16): vexp(S+r)
        E('s_nop 1'); smf(O,v+4,S+8,BIDX)
    if j<8: LBL(sk)
sLoc=sT+11
E(f's_add_u32 s{sT+10}, s{sT+10}, {hex(WS_OB)}')
C('the eight WGs of this position block: marks in place ?  all on this die ?')
E(f's_mov_b32 s{sCnt}, {SPIN_LIMIT}\n s_branch L_B_PP1')
LBL('L_B_PP')
E(f'buffer_load_dwordx4 v[12:15], v166, {sr(sWS)}, 0 offen sc1\n s_waitcnt vmcnt(0)')
LBL('L_B_PP1')
for i in range(4): E(f'v_subrev_u32 v{12+i}, s{sTag}, v{12+i}')
E(f'v_or3_b32 v2, v12, v13, v14\n v_or_b32 v2, v2, v15\n v_cmp_lt_u32 vcc, 15, v2\n s_cbranch_vccz L_B_PPD\n s_sub_u32 s{sCnt}, s{sCnt}, 1\n s_cbranch_scc1 L_B_PPD\n s_sleep 3\n s_branch L_B_PP')
LBL('L_B_PPD')
if OPT.get('loc','1')=='1':
    E(f'v_cmp_ne_u32 vcc, s{sXcc}, v12\n s_cbranch_vccnz L_B_NLOC')
    lds_add(C_LOC,1,vZ,2)
    if OPT.get('probe'):
        E('s_branch L_B_PRB')
        LBL('L_B_NLOC')
        for i in range(8): E('s_sleep 127')
        LBL('L_B_PRB')
    else: LBL('L_B_NLOC')

for q in range(2):
    fb=f'L_FB_B{q}'; bk=f'L_FB_B{q}_BACK'
    finalize(BO+16*q,4,2,fb,bk,61+q)
    E(f'buffer_store_dwordx4 v[4:7], v160, {sr(sWS)}, s{sT+10} offen sc1')
    if q==0: E(f's_add_u32 s{sT+10}, s{sT+10}, 32768\n s_nop 0')
    def setup(q=q):
        E(f's_add_i32 s{sT+2}, s{sT+9}, {q}\n s_cmp_ge_i32 s{sT+2}, 0\n s_cselect_b32 s{sT+4}, 1, 0\n s_max_i32 s{sT+2}, s{sT+2}, 0')
        E(f's_add_i32 s{sT+3}, s{sT+9}, {q+9}\n s_sub_u32 s{sT+3}, s{sT+3}, s{sT+2}\n s_add_u32 s{sT+2}, s{sT+2}, s{sT+8}\n s_lshl_b32 s{sT+2}, s{sT+2}, 11\n s_add_u32 s{sT+2}, s{sT+2}, {hex(WS_KVB)}')
    fallback(fb,bk,BQ+4*q,BO+16*q,BS,BK,BV,BIDX,3,160,161,None,setup,MU,MD)
C('---- output projection: wave (t=b&1, kh=b>>1): both 32-column tiles over heads 16kh..16kh+15 ; slot 0 = tile kh')
PA_=48; PW=80; PO=96; PB_=16
stamp('B',7,'oB published'); echo_mark('ob')
E(f's_setprio {OPT.get("bpr2","3")}')
lds_spin(C_MID,None,8,vZ,2,sleep=6)
def wodma(sr_):
    E(f's_lshl_b32 s{sT}, s{sB}, 14\n s_lshl_b32 s{sT+1}, s{sB}, 17')
    for n in range(16): E(f's_add_u32 m0, s{sT}, {L_WO+1024*n}\n s_add_u32 s{sT+2}, s{sT+1}, {8192*n}\n buffer_load_dwordx4 v10, {sr(sr_)}, s{sT+2} offen lds')
def oloads(g0):
    for s in range(4*g0,16):
        if s%4==0: E(f's_add_u32 s{sT}, s{sOb}, {1024*s}')
        E(f'buffer_load_dwordx4 {vr(PO+4*s,4)}, v160, {sr(sWS)}, s{sT} offen offset:{1024*(s%4)} sc1')
wodma(sWOB)
oloads(0)
E('s_waitcnt vmcnt(16)')
lds_add(C_WO,1,vZ,2)
lds_spin(C_WO,None,4,vZ,2,sleep=2)
stamp('B',8,'woB landed')
E('s_branch L_B_GEMM1')
LBL('L_B_GEMM')
oloads(0)
LBL('L_B_GEMM1')
def wread(s):
    f=PW+8*(s&1)
    for u,va in ((0,11),(1,9)): E(f'ds_read_b64_tr_b16 {vr(f+4*u,2)}, v{va} offset:{s*2048}\n ds_read_b64_tr_b16 {vr(f+4*u+2,2)}, v{va} offset:{s*2048+1024}')
wread(0)
E(f's_mov_b32 s{sCnt}, {SPIN_LIMIT}')
for g in range(4):
    LBL(f'L_B_G{g}')
    E(f's_waitcnt vmcnt({12-4*g})')
    p=PO+16*g
    E(f'v_max_u32 v2, v{p}, v{p+4}\n v_max3_u32 v2, v{p+8}, v{p+12}, v2\n v_cmp_eq_u32 vcc, -1, v2\n s_cbranch_vccnz L_B_R{g}')
    LBL(f'L_B_K{g}')
    if DIAG and g==3:
        E(f's_cmp_eq_u32 s{sPass}, 0\n s_cbranch_scc1 L_B_NST'); stamp('B',10,'oA all seen'); LBL('L_B_NST')
    for s in range(4*g,4*g+4):
        if s<15: wread(s+1)
        E(f's_waitcnt lgkmcnt({4 if s<15 else 0})')
        f=PW+8*(s&1)
        if s==0:
            E(f's_cmp_eq_u32 s{sPass}, 0\n s_cbranch_scc0 L_B_M1')
            for u in range(2): mfma(PA_+16*u,f+4*u,PO+4*s,'0')
            E('s_branch L_B_M2'); LBL('L_B_M1')
            for u in range(2): mfma(PA_+16*u,f+4*u,PO+4*s)
            LBL('L_B_M2')
        else:
            for u in range(2): mfma(PA_+16*u,f+4*u,PO+4*s)
    save=L; L=[]
    LBL(f'L_B_R{g}')
    E(f's_sub_u32 s{sCnt}, s{sCnt}, 1\n s_cbranch_scc1 L_B_K{g}\n s_cmp_eq_u32 s{sPass}, 0\n s_cbranch_scc0 L_B_RR{g}\n s_sleep 8')
    LBL(f'L_B_RR{g}')
    E('s_waitcnt vmcnt(0)')
    oloads(g)
    E(f's_branch L_B_G{g}')
    RETRY.extend(L); L=save
E(f's_cmp_eq_u32 s{sPass}, 0\n s_cbranch_scc0 L_B_FIN')
lds_add(C_WD,1,vZ,2)
E(f's_add_u32 s{sOb}, s{sOb}, {hex((WS_OA-WS_OB)&0xffffffff)}\n s_mov_b32 s{sPass}, 1')
lds_spin(C_WD,None,4,vZ,2,sleep=2)
wodma(sWOA)
if OPT.get('dry','0')=='1':
    C('walk once through the closing code with no lane active: its instructions are then cached when they matter')
    E('s_mov_b64 exec, 0\n s_branch L_B_FIN')
    LBL('L_B_DRYD')
    E('s_mov_b64 exec, -1')
E('s_waitcnt vmcnt(0)')
stamp('B',9,'out-proj B done, woA in'); echo_mark('b9')
E('s_barrier'); echo_mark('aend'); E('s_branch L_B_GEMM')
LBL('L_B_FIN')
E('s_nop 9')
for q in range(4): E(f'ds_write_b128 v164, {vr(PA_+16+4*q,4)} offset:{1024*q}')
E('s_waitcnt lgkmcnt(0)\n s_cbranch_execz L_B_NBAR\n s_barrier')
LBL('L_B_NBAR')
for q in range(4): E(f'ds_read_b128 {vr(PB_+4*q,4)}, v165 offset:{1024*q}')
for q in range(4):
    E(f's_waitcnt lgkmcnt({3-q})')
    for r in range(4): E(f'v_add_f32 v{PA_+4*q+r}, v{PA_+4*q+r}, v{PB_+4*q+r}')
for r in range(8): cvt(PA_+r,PA_+2*r,PA_+2*r+1)
E('s_nop 1')
for gq in range(2): E(f'v_permlane32_swap_b32 v{PA_+4*gq}, v{PA_+4*gq+2}\n v_permlane32_swap_b32 v{PA_+4*gq+1}, v{PA_+4*gq+3}')
if OPT.get('dry','0')=='1': E('s_cbranch_execz L_B_DRYD')
for gq in range(2): E(f'buffer_store_dwordx4 {vr(PA_+4*gq,4)}, v167, {sr(sOUT)}, s{sOut} offen offset:{32*gq} '+OPT.get('ost','').replace('+',' '))
if DIAG: E('s_waitcnt vmcnt(0)')
stamp('B',11,'out stored'); echo_end()
stamp_flush(12)
E('s_endpgm')
L.extend(RETRY)

LBL('L_A')
AIDX=8; AKA=9; AVA=10; AQ0=12; AQ1=16; AK=20; AV=28; SA=44; SB=60; OA=76; OB=92; XA=108; WA=160; AF=112
L_PG=L_PART+4096
sStr=sT+10; sRing=sT+7
E(f'v_and_b32 v5, 15, v0\n v_lshlrev_b32 v6, 4, v0\n s_and_b32 s{sT+9}, s{sHg}, 3\n s_cmp_lt_u32 s{sWave}, 4\n s_cbranch_scc0 L_A_KV')
C('---- waves 0..3 : wave m streams 64 columns of matrix m (wq | B q | B k | B v) through its own 8 x 2KB ring')
E(f's_cmp_eq_u32 s{sWave}, 0\n s_cselect_b32 s{sWB}, s6, s16\n s_cselect_b32 s{sWB+1}, s7, s17\n s_mov_b32 s{sWB+2}, {512*3072}\n s_cselect_b32 s{sWB+2}, {512*1024}, s{sWB+2}\n s_mov_b32 s{sWB+3}, 0x20000')
E(f's_movk_i32 s{sStr}, 3072\n s_cselect_b32 s{sStr}, 0x400, s{sStr}\n s_max_u32 s{sT+1}, s{sWave}, 1\n s_sub_u32 s{sT+1}, s{sT+1}, 1\n s_lshl_b32 s{sT+1}, s{sT+1}, 10\n s_lshl_b32 s{sT+2}, s{sHg}, 7\n s_add_u32 s{sT+1}, s{sT+1}, s{sT+2}')
dma128_voff(162,2,3,f's{sStr}',f's{sT+1}')
mkrot()
E(f's_lshl_b32 s{sStr}, s{sStr}, 3\n s_lshl_b32 s{sRing}, s{sWave}, 14')
E(f's_sub_u32 s{sT+1}, s{sStr}, 1024\n v_add_u32 v163, s{sT+1}, v162\n s_lshl_b32 s{sStr}, s{sStr}, 1')
def wdma_parts(st):
    p0=f's_add_u32 m0, s{sRing}, {(st%8)*2048}\n'
    if st%4==0: p0+=f's_add_u32 s{sT+3}, s{sRot}, {st//4}\n s_and_b32 s{sT+3}, s{sT+3}, 7\n s_lshl_b32 s{sT+3}, s{sT+3}, 2\n s_mul_i32 s{sT+3}, s{sT+3}, s{sStr}'
    else: p0+=f's_add_u32 s{sT+3}, s{sT+3}, s{sStr}'
    VQ.extend([f'w{st}']*2)
    return [p0, f'buffer_load_dwordx4 v162, {sr(sWB)}, s{sT+3} offen lds', f'buffer_load_dwordx4 v163, {sr(sWB)}, s{sT+3} offen offset:1024 lds']
def wdma(st):
    for p in wdma_parts(st): E(p)
if OPT.get('p0','2')!='0': E(f's_cmp_eq_u32 s{sWave}, 0\n s_cbranch_scc0 L_A_NP0\n s_setprio {OPT.get("p0","3")}\nL_A_NP0:')
NW0=int(OPT.get('nw0','8'))
VQ.clear()
for st in range(NW0): wdma(st)
E('s_branch L_A_NOKV')
LBL('L_A_KV')
E(f's_setprio 3\n s_load_dword s{sTag}, s[26:27], {WS_EPOCH}')
C('---- kvA: this WG makes 16 positions (hg&3) of K (hg<4) or V, and their gate ; wave 4+u sums k in [128u,128u+128)')
E(f's_cmp_lt_u32 s{sHg}, 4\n s_cselect_b32 s{sWKV}, s8, s10\n s_cselect_b32 s{sWKV+1}, s9, s11\n s_mov_b32 s{sWKV+2}, 16384\n s_mov_b32 s{sWKV+3}, 0x20000\n s_and_b32 s{sT+3}, s{sWave}, 3')
E(f's_lshl_b32 s{sT+1}, s{sPb}, 16\n s_lshl_b32 s{sT+2}, s{sT+9}, 14\n s_add_u32 s{sT+1}, s{sT+1}, s{sT+2}\n s_lshl_b32 s{sT+2}, s{sT+3}, 8\n s_add_u32 s{sT+1}, s{sT+1}, s{sT+2}')
E('v_lshlrev_b32 v3, 10, v5\n v_and_b32 v4, 48, v0\n v_add_u32 v3, v3, v4')
for s_ in range(4): E(f'buffer_load_dwordx4 {vr(116+4*s_,4)}, v3, {sr(sX)}, s{sT+1} offen offset:{64*s_}')
WKD=OPT.get('wkd','0')=='1'
if MAP=='b' and WKD:
    E(f's_cmp_lt_u32 s{sWave}, 6\n s_cbranch_scc0 L_A_NT2\n s_cmp_eq_u32 s{sWave}, 4\n s_cselect_b32 s{sG}, s8, s10\n s_cselect_b32 s{sG+1}, s9, s11\n s_mov_b32 s{sG+2}, 16384\n s_mov_b32 s{sG+3}, 0x20000')
    E(f's_lshr_b32 s{sT+4}, s2, 3\n s_lshl_b32 s{sT+4}, s{sT+4}, 9\n v_lshlrev_b32 v2, 7, v0\n s_mov_b64 exec, 15\n buffer_load_dword v167, v2, {sr(sG)}, s{sT+4} offen\n s_mov_b64 exec, -1')
    LBL('L_A_NT2')
if MAP=='c' and OPT.get('wkt','1')=='1':
    E(f's_cmp_eq_u32 s{sWave}, 4\n s_cbranch_scc0 L_A_NT2\n s_lshr_b32 s{sT+4}, s2, 3\n s_lshl_b32 s{sT+4}, s{sT+4}, 9\n v_lshlrev_b32 v2, 7, v0\n s_mov_b64 exec, 15\n buffer_load_dword v167, v2, {sr(sWKV)}, s{sT+4} offen\n s_mov_b64 exec, -1')
    LBL('L_A_NT2')
srd(sG,20,1024)
for s_ in range(4): E(f'buffer_load_dwordx4 {vr(132+4*s_,4)}, v4, {sr(sG)}, s{sT+2} offen offset:{64*s_}')
def wkdma():
    E(f's_lshl_b32 s{sT}, s{sT+3}, 12\n s_add_u32 m0, s{sT}, {L_ST}\n s_nop 0')
    for i in range(4): E(f'buffer_load_dwordx4 v6, {sr(sWKV)}, s{sT} offen offset:{1024*i} lds')
if not WKD: wkdma()
LBL('L_A_NOKV')
C('---- address of this wave\'s o slot, constants')
sOA=sT+8
E(f's_and_b32 s{sOA}, s{sWave}, 1\n s_lshl_b32 s{sT+1}, s{sPb}, 1\n s_add_u32 s{sOA}, s{sOA}, s{sT+1}\n s_lshl_b32 s{sOA}, s{sOA}, 5')
E(f's_lshl_b32 s{sT+1}, s{sHg}, 2\n s_add_u32 s{sOA}, s{sOA}, s{sT+1}\n s_and_b32 s{sT+1}, s{sWave}, 2\n s_add_u32 s{sOA}, s{sOA}, s{sT+1}\n s_lshr_b32 s{sT+1}, s{sWave}, 2\n s_add_u32 s{sOA}, s{sOA}, s{sT+1}\n s_lshl_b32 s{sOA}, s{sOA}, 10\n s_add_u32 s{sOA}, s{sOA}, {hex(WS_OA)}')
E(f'v_mov_b32 v{vZ}, {L_ST}\n v_lshlrev_b32 v11, 2, v0')
traddr128(WA,2,3,3,'0'); E(f's_lshl_b32 s{sT+1}, s{sWave}, 14\n v_add_u32 v{WA}, s{sT+1}, v{WA}\n v_xor_b32 v{WA+1}, 64, v{WA}')
E(f'v_and_b32 v2, 31, v0\n v_bfe_u32 v3, v0, 1, 3\n v_lshrrev_b32 v7, 5, v0\n v_xor_b32 v3, v3, v7\n v_lshlrev_b32 v{XA}, 7, v2\n v_lshl_add_u32 v{XA}, v3, 4, v{XA}\n v_add_u32 v{XA}, 0x10000, v{XA}')
for s_ in range(1,4): E(f'v_xor_b32 v{XA+s_}, {s_<<5}, v{XA}')
for r in range(32): E(f'v_mov_b32 v{OA+r}, 0')
set_vpad(list(range(AV,AV+16)),2)
E(f'v_mov_b32 v{AIDX}, 0xdddddddd')
E(f's_lshr_b32 s{sT+1}, s{sWave}, 2\n s_lshl_b32 s{sT+1}, s{sT+1}, 11\n v_add_u32 v{AKA}, s{sT+1}, v6')
E(f'v_lshlrev_b32 v7, 8, v7\n v_lshl_add_u32 v7, v5, 4, v7\n v_add_u32 v{AVA}, s{sT+1}, v7')
E(f's_lshl_b32 s{sT+6}, s{sHg}, 5\n s_add_u32 s{sT+6}, s{sT+6}, s{sPb}\n s_lshl_b32 s{sT+6}, s{sT+6}, 7\n s_lshl_b32 s{sT+1}, s{sWave}, 2\n s_add_u32 s{sT+6}, s{sT+6}, s{sT+1}\n s_add_u32 s{sT+6}, s{sT+6}, {hex(WS_FKVB)}')
E(f's_cmp_lt_u32 s{sWave}, 4\n s_cbranch_scc1 L_A_GQ\n s_waitcnt lgkmcnt(0)')
mktag()
if WKD: E(f's_waitcnt vmcnt({OPT.get("wkw","7")})'); wkdma()
E(f'v_lshrrev_b32 v4, 4, v0\n v_lshlrev_b32 v4, 8, v4\n v_lshl_add_u32 v4, v5, 3, v4\n s_add_u32 s{sT}, s{sT}, {L_ST}\n v_add_u32 v4, s{sT}, v4')
E(f's_lshl_b32 s{sT+1}, s{sT+3}, 10\n s_add_u32 s{sT+1}, s{sT+1}, {L_PART}\n v_add_u32 v2, s{sT+1}, v6\n s_lshl_b32 s{sT+1}, s{sT+3}, 8\n s_add_u32 s{sT+1}, s{sT+1}, {L_PG}\n v_add_u32 v3, s{sT+1}, v11')
E('s_waitcnt vmcnt(0)')
for s_ in range(4): E(f'ds_read_b64_tr_b16 {vr(44+4*s_,2)}, v4 offset:{1024*s_}\n ds_read_b64_tr_b16 {vr(46+4*s_,2)}, v4 offset:{1024*s_+128}')
for s_ in range(4): E(f'v_mfma_f32_16x16x32_bf16 v[64:67], {vr(132+4*s_,4)}, {vr(116+4*s_,4)}, {"0" if s_==0 else "v[64:67]"}')
E(f's_cmp_lt_u32 s{sHg}, 4\n s_waitcnt lgkmcnt(0)\n s_cbranch_scc0 L_A_VJOB')
for s_ in range(4): E(f'v_mfma_f32_16x16x32_bf16 v[60:63], {vr(44+4*s_,4)}, {vr(116+4*s_,4)}, {"0" if s_==0 else "v[60:63]"}')
E('s_branch L_A_KVJ')
LBL('L_A_VJOB')
for s_ in range(4): E(f'v_mfma_f32_16x16x32_bf16 v[60:63], {vr(116+4*s_,4)}, {vr(44+4*s_,4)}, {"0" if s_==0 else "v[60:63]"}')
LBL('L_A_KVJ')
E('s_nop 0\n ds_write_b32 v3, v64\n s_nop 5\n ds_write_b128 v2, v[60:63]')
stamp('A',2,'kvA partial')
E('s_waitcnt lgkmcnt(0)')
tag_set(T_PT,sT+3,2)
E(f's_cmp_eq_u32 s{sWave}, 7\n s_cbranch_scc0 L_A_BS')
C('---- wave 7: reduce the four partial tiles, store, flag')
tag_wait(T_PT,4,2)
E(f'v_add_u32 v3, {L_PART}, v6\n v_add_u32 v4, {L_PG}, v11')
for i in range(4): E(f'ds_read_b128 {vr(116+4*i,4)}, v3 offset:{1024*i}')
for i in range(2): E(f'ds_read2st64_b32 {vr(148+2*i,2)}, v4 offset0:{2*i} offset1:{2*i+1}')
E(f's_lshl_b32 s{sT+3}, s{sPb}, 1\n s_lshr_b32 s{sT+4}, s{sT+9}, 1\n s_add_u32 s{sT+3}, s{sT+3}, s{sT+4}\n s_lshl_b32 s{sT+3}, s{sT+3}, 11\n s_add_u32 s{sT+3}, s{sT+3}, {hex(WS_KVA)}\n s_and_b32 s{sT+4}, s{sT+9}, 1')
E(f's_cmp_lt_u32 s{sHg}, 4\n s_cselect_b32 s{sT+5}, 9, 3\n s_cselect_b32 s{sT+7}, 3, 8\n s_cselect_b32 s{sT+1}, 8, 9\n s_cselect_b32 s{sT}, 0, 0x400')
E(f's_lshl_b32 s{sT+4}, s{sT+4}, s{sT+1}\n s_add_u32 s{sT+3}, s{sT+3}, s{sT+4}\n s_add_u32 s{sT+3}, s{sT+3}, s{sT}')
E(f'v_bfe_u32 v3, v0, 4, 1\n v_lshrrev_b32 v4, 5, v0\n v_lshlrev_b32 v5, 4, v5\n v_lshl_add_u32 v5, v3, s{sT+5}, v5\n v_lshl_add_u32 v5, v4, s{sT+7}, v5')
FPLS=int(OPT.get('fpl','2'))
E(f's_lshl_b32 s{sT+7}, s{sPb}, 3\n s_add_u32 s{sT+7}, s{sT+7}, s{sHg}\n s_and_b32 s{sT+1}, s{sT+7}, {(1<<FPLS)-1}\n s_lshr_b32 s{sT+7}, s{sT+7}, {FPLS}\n s_lshl_b32 s{sT+7}, s{sT+7}, 7\n s_lshl_b32 s{sT+1}, s{sT+1}, 2\n s_add_u32 s{sT+7}, s{sT+7}, s{sT+1}\n s_add_u32 s{sT+7}, s{sT+7}, {hex(WS_FKVA)}')
E('s_waitcnt lgkmcnt(2)')
for st_ in (8,4):
    for r in range(st_): E(f'v_add_f32 v{116+r}, v{116+r}, v{116+st_+r}')
cvt(116,116,117); cvt(117,118,119)
E(f'buffer_store_dwordx2 v[116:117], v5, {sr(sWS)}, s{sT+3} offen sc1')
E(f's_cmp_lt_u32 s{sHg}, 4\n s_waitcnt lgkmcnt(0)\n s_cbranch_scc0 L_A_SF')
for st_ in (2,1):
    for r in range(st_): E(f'v_add_f32 v{148+r}, v{148+r}, v{148+st_+r}')
E(f's_mov_b32 s{sT}, {hex(f2u(-math.log2(math.e)))}\n v_mul_f32 v148, s{sT}, v148\n v_exp_f32 v148, v148')
E(f's_lshl_b32 s{sT}, s{sPb}, 2\n s_add_u32 s{sT}, s{sT}, s{sT+9}\n v_add_f32 v148, 1.0, v148\n v_rcp_f32 v148, v148\n s_lshl_b32 s{sT}, s{sT}, 6\n s_add_u32 s{sT}, s{sT}, {hex(WS_G)}')
E(f's_mov_b64 exec, 0xffff\n buffer_store_dword v148, v11, {sr(sWS)}, s{sT} offen sc1\n s_mov_b64 exec, -1')
LBL('L_A_SF')
E('s_waitcnt vmcnt(0)')
flag_store(sT+7,2)
stamp('A',3,'kvA flag sent')
LBL('L_A_BS')
E(f's_cmp_eq_u32 s{sWave}, 6\n s_cbranch_scc0 L_A_B8')
C('---- wave 6: wait for every K/V piece, fetch this WG\'s share into L2, tell the projection waves')
E(f'v_lshlrev_b32 v16, 7, v0\n v_lshrrev_b32 v17, {FPLS-2}, v0\n v_lshlrev_b32 v17, 7, v17\n v_and_b32 v18, {(1<<(FPLS-2))-1}, v0\n v_lshl_add_u32 v17, v18, 4, v17\n v_add_u32 v17, {hex(WS_FKVA)}, v17')
E(f'v_mov_b32 v2, s{sTag}\n ds_write_b32 v{vZ}, v2 offset:{T_TAG-L_ST}')
tag_wait(T_PT,4,2)
tag_wait(T_PL,1,2,sleep=2)
C('lanes whose four flags are in drop out of the next look')
E(f's_mov_b32 s{sCnt}, {SPIN_LIMIT}')
LBL('L_A_PL')
E(f'buffer_load_dwordx4 v[12:15], v17, {sr(sWS)}, 0 offen sc1\n s_waitcnt vmcnt(0)')
for i in range(4): E(f'v_xor_b32 v{12+i}, s{sTag}, v{12+i}')
E(f'v_or3_b32 v12, v12, v13, v14\n v_or_b32 v12, v12, v15\n v_cmp_ne_u32 vcc, 0, v12\n s_cbranch_vccz L_A_PLD\n s_sub_u32 s{sCnt}, s{sCnt}, 1\n s_cbranch_scc1 L_A_PLD\n s_mov_b64 exec, vcc\n s_sleep {OPT.get("psl","16")}\n s_branch L_A_PL')
LBL('L_A_PLD')
E('s_mov_b64 exec, -1')
E(f's_lshr_b32 s{sT+5}, s2, 3\n s_lshl_b32 s{sT+5}, s{sT+5}, 12\n s_add_u32 s{sT+5}, s{sT+5}, {hex(WS_KVA)}')
E(f's_mov_b32 exec_hi, 0\n buffer_load_dword v117, v16, {sr(sWS)}, s{sT+5} offen sc1\n s_mov_b64 exec, -1')
tag_set(T_FL,None,2)
stamp('A',3,'kvA flag sent')
E(f's_lshr_b32 s{sT+5}, s2, 3\n s_and_b32 s{sT+5}, s{sT+5}, 3\n s_lshl_b32 s{sT+5}, s{sT+5}, 14\n s_add_u32 s{sT+5}, s{sT+5}, {hex(WS_KVA)}')
for q in range(4):
    E(f's_mov_b32 m0, {L_ST+4096*q}\n s_add_u32 s{sT+4}, s{sT+5}, {4096*q}')
    for i in range(4): E(f'buffer_load_dwordx4 v6, {sr(sWS)}, s{sT+4} offen offset:{1024*i} sc1 lds')
E('s_waitcnt vmcnt(0)')
tag_set(T_K0,None,2)
stamp('A',7,'G1')
E(f's_cmp_eq_u32 s2, 0\n s_cbranch_scc0 L_A_B8\n s_mov_b32 s{sT}, 0')
flag_store(sT,2)
E('s_branch L_A_B8')
LBL('L_A_GQ')
PAC=[44,60,128,144]; PFR=[12,112,92]
def areads_l(st):
    f=PFR[st%3]; so=(st%8)*2048; o=[]
    for i in range(2): o+= [f'ds_read_b64_tr_b16 {vr(f+4*i,2)}, v{WA+i} offset:{so}', f'ds_read_b64_tr_b16 {vr(f+4*i+2,2)}, v{WA+i} offset:{so+512}']
    for t in range(2): o.append(f'ds_read_b128 {vr(f+8+4*t,4)}, v{XA+st%4} offset:{(st//4)*8192+4096*t}')
    return o
def areads(st):
    for p in areads_l(st): E(p)
def kv_parts(p):
    VQ.extend(['kv']*2)
    return [f's_add_u32 m0, s{sRing}, {p*2048}\n s_add_u32 s{sT+4}, s{sT+5}, {p*2048}']+[f'buffer_load_dwordx4 v6, {sr(sWS)}, s{sT+4} offen offset:{1024*n} sc1 lds' for n in range(2)]
def kvpiece(p):
    for q in kv_parts(p): E(q)
for st in range(NW0,8): wdma(st)
E(f's_sub_u32 s{sT+4}, s{sWave}, 1\n s_cmp_eq_u32 s{sWave}, 1\n s_cselect_b32 s{sT+4}, 3, s{sT+4}\n s_lshr_b32 s{sT+5}, s2, 3\n s_add_u32 s{sT+5}, s{sT+5}, s{sT+4}\n s_and_b32 s{sT+5}, s{sT+5}, 3\n s_lshl_b32 s{sT+5}, s{sT+5}, 14\n s_add_u32 s{sT+5}, s{sT+5}, {hex(WS_KVA)}')
tag_wait(T_X0,4,2) if XD else tag_wait(T_X,1,2)
stamp('A',7,'G1')
vwait('w0'); areads(0); vwait('w1'); areads(1)
VQ0=list(VQ)
PLK=int(OPT.get('plk','15'))
E(f's_cmp_eq_u32 s{sWave}, 3\n s_cbranch_scc1 L_A_GV')
def gstep(var,st,kv):
    f=PFR[st%3]
    def mm(i,t):
        d=PAC[2*i+t]; c='0' if st==0 else None
        if var==0: mfma(d,f+4*i,f+8+4*t,c)
        else: mfma(d,f+8+4*t,f+4*i,c)
    vwait(f'w{st+2}',f' lgkmcnt({6 if st<31 else 0})')
    rd=areads_l(st+2) if st+2<32 else []
    dm=wdma_parts(st+8) if st+8<32 else (kv_parts(st%8) if kv else [])
    gaps=[rd[0:2]+dm[0:1], rd[2:4]+dm[1:2], rd[4:6], dm[2:3]]
    if st>=30: gaps=[[f'v_mov_b32 v{OB+8*(st-30)+2*q+r}, 0' for r in range(2)]+gaps[q] for q in range(4)]
    for q,(i,t) in enumerate(((0,0),(0,1),(1,0),(1,1)) if st<31 else ((1,0),(1,1),(0,0),(0,1))):
        if not (OPT.get('halfm') and q&1 and 0<st<31): mm(i,t)
        for p in gaps[q]: E(p)
for var in (0,1):
    if var: LBL('L_A_GV')
    VQ[:]=VQ0
    for st in range(24):
        if OPT.get('hold') and st==0:
            E(f's_cmp_eq_u32 s{sWave}, 0\n s_cbranch_scc1 L_A_NH{var}'); tag_wait(T_H,1,2,sleep=2); LBL(f'L_A_NH{var}')
        if OPT.get('hold') and var==0 and st==int(OPT.get('hold')):
            E(f's_cmp_eq_u32 s{sWave}, 0\n s_cbranch_scc0 L_A_NH2'); tag_set(T_H,None,2); E('s_waitcnt lgkmcnt(0)'); LBL('L_A_NH2')
        if st==2: E('s_waitcnt lgkmcnt(0)'); tag_wait(T_X,4,2)
        if st==14: E('s_waitcnt lgkmcnt(0)'); tag_wait(T_X+16,4,2)
        if st==PLK and var==1: tag_set(T_PL,None,2); E('s_waitcnt lgkmcnt(0)')
        gstep(var,st,False)
    stamp('A',2,'step 24'); cstamp('A',10,'s24')
    if var==0: E(f's_cmp_eq_u32 s{sWave}, 0\n s_cbranch_scc1 L_A_G0')
    tag_wait(T_FL,1,2,once=f'L_A_GK{var}')
    if var==0: LBL('L_A_G0')
    V1=list(VQ)
    for st in range(24,32): gstep(var,st,False)
    if var==0: E(f's_cmp_eq_u32 s{sWave}, 0\n s_cbranch_scc1 L_A_GE0')
    tag_wait(T_FL,1,2)
    for p in range(8): kvpiece(p)
    E(f's_branch L_A_GE{var}')
    LBL(f'L_A_GK{var}')
    VQ[:]=V1
    for st in range(24,32): gstep(var,st,True)
    LBL(f'L_A_GE{var}')
    stamp('A',1,'proj loop done'); cstamp('A',11,'pl')
    if OPT.get('ep','1')=='1': E('s_setprio 3')
    E(f's_lshl_b32 s{sT+4}, s{sHg}, 8\n s_lshl_b32 s{sT+5}, s{sPb}, 1\n s_add_u32 s{sT+4}, s{sT+4}, s{sT+5}\n s_lshl_b32 s{sT+4}, s{sT+4}, 11\n s_add_u32 s{sT+4}, s{sT+4}, {hex(WS_KVB)}')
    if var==0:
        E(f's_cmp_eq_u32 s{sWave}, 2\n s_cbranch_scc1 L_A_EK')
        C('q (A / B): scale, pack, hand over through LDS')
        E(f's_cmp_eq_u32 s{sWave}, 0\n s_cbranch_scc1 L_A_Q0')
        tag_wait(T_G,1,2)
        LBL('L_A_Q0')
        E(f's_lshl_b32 s{sT+1}, s{sWave}, 13\n s_add_u32 s{sT+1}, s{sT+1}, {L_QA}\n v_add_u32 v3, s{sT+1}, v6\n s_mov_b32 s{sT+2}, {hex(CSCALE)}\n s_mov_b32 s{sT+3}, {hex(CSCALE)}\n s_lshl_b32 s{sT+1}, s{sWave}, 2\n s_add_u32 s{sT+1}, s{sT+1}, {T_Q1}\n v_mov_b32 v4, s{sT+1}\n v_mov_b32 v5, 1')
        for i in (1,0):
            for t in range(2):
                d=PAC[2*i+t]
                for r in range(0,16,2): E(f'v_pk_mul_f32 {vr(d+r,2)}, {vr(d+r,2)}, {sr(sT+2,2)}')
                for r in range(8): cvt(d+r,d+2*r,d+2*r+1)
                for hh in range(2): E(f'ds_write_b128 v3, {vr(d+4*hh,4)} offset:{(2*i+hh)*2048+1024*t}')
            if i==1: E(f's_mov_b64 exec, 1\n ds_write_b32 v4, v5\n s_mov_b64 exec, -1')
        E('s_waitcnt vmcnt(0) lgkmcnt(0)')
        tag_set(T_G,sWave,2)
        E('s_branch L_A_B8')
        LBL('L_A_EK')
        E('s_waitcnt vmcnt(0)')
        tag_set(T_G,sWave,2)
        for i in range(2):
            for t in range(2):
                d=PAC[2*i+t]
                for r in range(8): cvt(d+r,d+2*r,d+2*r+1)
                for hh in range(2): E(f's_add_u32 s{sT+5}, s{sT+4}, {(2*i+hh)*131072}\n buffer_store_dwordx4 {vr(d+4*hh,4)}, v6, {sr(sWS)}, s{sT+5} offen offset:{2048*t} sc1')
        E('s_branch L_A_B8')
    else:
        E('s_waitcnt vmcnt(0)')
        tag_set(T_G,sWave,2)
        E('v_bfe_u32 v3, v0, 4, 1\n v_lshl_add_u32 v3, v3, 17, v7')
        for i in range(2):
            for t in range(2):
                d=PAC[2*i+t]
                for r in range(8): cvt(d+r,d+2*r,d+2*r+1)
                E('s_nop 1')
                for gq in range(2): E(f'v_permlane32_swap_b32 v{d+4*gq}, v{d+4*gq+2}\n v_permlane32_swap_b32 v{d+4*gq+1}, v{d+4*gq+3}')
                E(f's_add_u32 s{sT+5}, s{sT+4}, {i*2*131072}')
                for gq in range(2): E(f'buffer_store_dwordx4 {vr(d+4*gq,4)}, v3, {sr(sWS)}, s{sT+5} offen offset:{2048*t+1024+512*gq} sc1')
LBL('L_A_B8')
E(f's_cmp_lt_u32 s{sWave}, 4\n s_cbranch_scc1 L_A_KP\n s_setprio 0')
LBL('L_A_KP')
E(f's_and_b32 s{sT+1}, s{sWave}, 2\n s_lshr_b32 s{sT+2}, s{sWave}, 2\n s_add_u32 s{sT+1}, s{sT+1}, s{sT+2}\n s_lshl_b32 s{sT+1}, s{sT+1}, 11\n s_and_b32 s{sT+2}, s{sWave}, 1\n s_lshl_b32 s{sT+2}, s{sT+2}, 10\n s_add_u32 s{sT+1}, s{sT+1}, s{sT+2}\n s_add_u32 s{sT+1}, s{sT+1}, {L_QA}\n v_add_u32 v2, s{sT+1}, v6\n v_xor_b32 v3, 0x800, v2')
AK0=120; AV0=121; AEX=122; AG=126
E(f'v_add_u32 v{AK0}, {L_ST}, v{AKA}\n v_add_u32 v{AV0}, {L_ST}, v{AVA}')
E(f's_and_b32 s{sT+2}, s{sWave}, 3\n s_mul_i32 s{sT+1}, s{sT+2}, 4608\n s_add_u32 s{sT+1}, s{sT+1}, {L_EX}\n v_add_u32 v{AEX}, s{sT+1}, v6\n v_add_u32 v{AEX+1}, s{sT+1}, v11')
E(f's_lshl_b32 s{sT+2}, s{sT+2}, 2\n s_add_u32 s{sT+2}, s{sT+2}, {C_PR}\n v_mov_b32 v{AEX+2}, s{sT+2}')
E(f's_and_b32 s{sT+1}, s{sWave}, 1\n s_lshl_b32 s{sT+2}, s{sPb}, 1\n s_add_u32 s{sT+1}, s{sT+1}, s{sT+2}\n s_lshl_b32 s{sT+1}, s{sT+1}, 7\n s_add_u32 s{sT+1}, s{sT+1}, {hex(WS_G)}\n v_and_b32 v127, 0x7c, v11')
tag_wait(T_K0,1,4,sleep=int(OPT.get('asl','2')))
E(f'buffer_load_dword v{AG}, v127, {sr(sWS)}, s{sT+1} offen sc1')
tag_get(4)
def kvoff(j):
    return (j%4)*4096+(0 if j<4 else KVPOS[j//4]-(65536 if j>=16 else 0))
def ldk(j): E(f'ds_read_b128 {vr(AK+4*(j&1),4)}, v{AK0 if j<4 else AKA} offset:{kvoff(j)}')
def ldv(j): E(f's_mov_b64 exec, {sr(sVM,2)}\n ds_read_b128 {vr(AV+8*(j&1),4)}, v{AV0 if j<4 else AVA} offset:{kvoff(j)+1024}\n ds_read_b128 {vr(AV+8*(j&1)+4,4)}, v{AV0 if j<4 else AVA} offset:{kvoff(j)+1536}\n s_mov_b64 exec, -1')
ldk(0); ldv(0); ldk(1)
E(f's_bitcmp1_b32 s{sWave}, 1\n s_cbranch_scc0 L_A_WL')
tag_wait(T_Q1,1,4,sleep=int(OPT.get('asl2','1')))
E('s_branch L_A_WD')
LBL('L_A_WL')
tag_wait(T_G,1,4,sleep=int(OPT.get('asl2','1')))
LBL('L_A_WD')
stamp('A',4,'BQ'); cstamp('A',8,'BQ')
E(f'ds_read_b128 {vr(AQ0,4)}, v2\n ds_read_b128 {vr(AQ1,4)}, v3')
if PRIO in ('step','step4'): E('s_setprio 2')
E('s_waitcnt lgkmcnt(0)'); mfma(SA,AK,AQ0,'0')
E('s_nop 11')
def pair_iter(j,ldk_,ldv_,first=False,last=0,extra=0):
    kc=AK+4*(j&1); kn=AK+4*((j+1)&1); vc=AV+8*(j&1); vp=AV+8*((j+1)&1)
    vexp(SA); vexp(SA+1)
    if not first: smf(OB,vp+4,SB+8,AIDX)
    for r in range(2,5): vexp(SA+r)
    mfma(SB,kc,AQ1,'0')
    for r in range(5,10): vexp(SA+r)
    E(f's_waitcnt lgkmcnt({(1 if last<2 else 0)+extra})')
    vexp(SA+10); smf(OA,vc,SA,AIDX)
    for r in range(11,16): vexp(SA+r)
    vexp(SB); vexp(SB+1); smf(OA,vc+4,SA+8,AIDX)
    if last<2: ldv_()
    for r in range(2,5): vexp(SB+r)
    if last<2:
        E('s_waitcnt lgkmcnt(2)'); mfma(SA,kn,AQ0,'0')
    if last<1: ldk_()
    for r in range(5,11): vexp(SB+r)
    smf(OB,vc,SB,AIDX)
    for r in range(11,16): vexp(SB+r)
def aflag(force,init=False):
    sk=uid('fl')
    E(f's_cmp_eq_u32 s{sT+5}, 0\n s_cbranch_scc0 {sk}')
    if not force: E(f's_getreg_b32 s{sT}, hwreg(HW_REG_IB_STS, 0, 4)\n s_cmp_eq_u32 s{sT}, 0\n s_cbranch_scc0 {sk}')
    E(f's_waitcnt vmcnt(0)\n s_mov_b32 s{sT+5}, 1'); flag_store(sT+6,2); LBL(sk)
if ROLL:
    AKN=120; AVN=121; sC=sT+4
    def rk(j):
        a_=AKA if j<4 else AKN
        return lambda: E(f'ds_read_b128 {vr(AK+4*(j&1),4)}, v{a_} offset:{(j%4)*4096}')
    def rv(j):
        a_=AVA if j<4 else AVN
        return lambda: E(f's_mov_b64 exec, {sr(sVM,2)}\n ds_read_b128 {vr(AV+8*(j&1),4)}, v{a_} offset:{(j%4)*4096+1024}\n ds_read_b128 {vr(AV+8*(j&1)+4,4)}, v{a_} offset:{(j%4)*4096+1536}\n s_mov_b64 exec, -1')
    for r in range(8,16): E(f'v_mov_b32 v{SB+r}, 0')
    E(f'v_add_u32 v{AKN}, 0x8000, v{AKA}\n v_add_u32 v{AVN}, 0x8000, v{AVA}\n v_add_u32 v{AKA}, 0x4000, v{AKA}\n v_add_u32 v{AVA}, 0x4000, v{AVA}\n s_mov_b32 s{sC}, 0\n s_mov_b32 s{sT+5}, 0')
    L.append('.p2align 6')
    LBL('L_A_LOOP')
    pair_iter(0,rk(2),rv(1)); pair_iter(1,rk(3),rv(2))
    E(f's_cmp_gt_u32 s{sC}, 6\n s_cbranch_scc1 L_A_LAST\n s_bitcmp1_b32 0x5f, s{sC}\n s_cbranch_scc1 L_A_RARE')
    LBL('L_A_RBACK')
    pair_iter(2,rk(4),rv(3)); pair_iter(3,rk(5),rv(4))
    E(f's_add_u32 s{sC}, s{sC}, 1\n s_mov_b32 s{sT+1}, 0x4000\n s_cmp_eq_u32 s{sC}, 2\n s_cselect_b32 s{sT+1}, {hex((-49152)&0xffffffff)}, s{sT+1}\n s_cmp_eq_u32 s{sC}, 3\n s_cselect_b32 s{sT+1}, {hex((-65536)&0xffffffff)}, s{sT+1}')
    E(f'v_mov_b32 v{AKA}, v{AKN}\n v_mov_b32 v{AVA}, v{AVN}\n v_add_u32 v{AKN}, s{sT+1}, v{AKN}\n v_add_u32 v{AVN}, s{sT+1}, v{AVN}\n s_branch L_A_LOOP')
    LBL('L_A_RARE')
    E(f's_waitcnt lgkmcnt(0)\n s_cmp_gt_u32 s{sC}, 3\n s_cbranch_scc1 L_A_R4')
    E(f's_cmp_eq_u32 s{sC}, 0\n s_cbranch_scc0 L_A_R1'); lds_spin(C_K1,None,4,vZ,2,sleep=0)
    LBL('L_A_R1')
    E(f's_cmp_eq_u32 s{sC}, 2\n s_cbranch_scc0 L_A_R2'); lds_spin(C_K2,None,4,vZ,2,sleep=1)
    LBL('L_A_R2')
    E(f's_cmp_eq_u32 s{sC}, 3\n s_cbranch_scc1 L_A_R3'); aflag(False); E('s_branch L_A_RBACK')
    LBL('L_A_R3'); aflag(True); E('s_branch L_A_RBACK')
    LBL('L_A_R4')
    E(f's_cmp_eq_u32 s{sC}, 4\n s_cbranch_scc0 L_A_R6'); lds_add(C_MID,1,vZ,2); E('s_waitcnt lgkmcnt(0)\n s_branch L_A_RBACK')
    LBL('L_A_R6'); lds_spin(C_MID,None,8,vZ,2,sleep=1); E('s_branch L_A_RBACK')
    LBL('L_A_LAST')
    pair_iter(2,None,rv(3),last=1); pair_iter(3,None,None,last=2)
else:
    E(f's_and_b32 s{sT+5}, s{sWave}, 6\n s_cmp_eq_u32 s{sT+5}, 2\n s_cselect_b32 s{sT+5}, 0, 1')
    for j in range(32):
        if j in (2,6,10): E('s_waitcnt lgkmcnt(0)'); tag_wait(T_G+4*{2:2,6:3,10:1}[j],1,2)
        if j in (1,2,3,5): aflag(j==5)
        PJ=[int(x) for x in OPT.get('pj','16,29').split(',')]
        if PRIO=='step' and j in PJ: E(f's_setprio {1 if j==PJ[0] else 0}')
        if PRIO=='step4' and j in (6,16): E(f's_setprio {1 if j==6 else 0}')
        if OPT.get('jst') and j in (2,4,8,16,24): E('s_waitcnt lgkmcnt(0)'); cstamp('A',{2:1,4:2,8:3,16:7,24:10}[j],f'J{j}')
        if j==14: E('s_waitcnt lgkmcnt(0)'); lds_spin(C_K2,None,0x404,vZ,2,sleep=1)
        if j==16: lds_add(C_MID,1,vZ,2)
        if j==28: E('s_waitcnt lgkmcnt(0)'); lds_spin(C_MID,None,8,vZ,2,sleep=1)
        def lv(j=j):
            if j==15: E(f'v_add_u32 v{AVA}, 0x10000, v{AVA}')
            ldv(j+1)
        def lk(j=j):
            if j==14: E(f'v_add_u32 v{AKA}, 0x10000, v{AKA}')
            ldk(j+2)
        if j==31:
            C('has the partner of this wave (same queries, other keys) already left its sums ?  if so they arrive during the last tile')
            E(f'ds_read_b32 v127, v{AEX+2} offset:16\n ds_read_b32 v125, v{vZ} offset:{C_LOC-L_ST}')
            for q in range(2): E(f'ds_read_b128 {vr(128+12*q,4)}, v{AEX} offset:{2304*q}\n ds_read_b128 {vr(132+12*q,4)}, v{AEX} offset:{2304*q+1024}\n ds_read_b32 v{136+12*q}, v{AEX+1} offset:{2304*q+2048}')
        pair_iter(j,lk,lv,first=(j==0),last=(2 if j==31 else 1 if j==30 else 0),extra=(1 if j==16 else 0))
E('s_nop 1'); smf(OB,AV+8+4,SB+8,AIDX)
stamp('A',5,'A loop done'); cstamp('A',9,'loop done')
C('---- the first wave of a pair to finish leaves both partial sums in LDS and ends ; the second one finishes both heads')
E(f'v_readfirstlane_b32 s{sT+1}, v127\n v_readfirstlane_b32 s{sT+9}, v125\n s_cmp_eq_u32 s{sT+1}, 1\n s_cbranch_scc1 L_A_LATE')
E(f'v_mov_b32 v2, 1\n s_mov_b64 exec, 1\n ds_add_rtn_u32 v3, v{AEX+2}, v2\n s_mov_b64 exec, -1\n s_waitcnt lgkmcnt(0)\n v_readfirstlane_b32 s{sT+1}, v3\n s_cmp_eq_u32 s{sT+1}, 0\n s_cbranch_scc0 L_A_TIE\n s_nop 3')
for q,O in enumerate((OA,OB)): E(f'ds_write_b128 v{AEX}, {vr(O,4)} offset:{2304*q}\n ds_write_b128 v{AEX}, {vr(O+4,4)} offset:{2304*q+1024}\n ds_write_b32 v{AEX+1}, v{O+8} offset:{2304*q+2048}')
E(f's_mov_b64 exec, 1\n ds_write_b32 v{AEX+2}, v2 offset:16\n s_mov_b64 exec, -1\n s_waitcnt lgkmcnt(0)')
if OPT.get('dry','0')=='1': E('s_mov_b64 exec, 0\n s_branch L_A_LATE')
else: E('s_branch L_A_STD')
LBL('L_A_TIE')
E(f's_mov_b32 s{sCnt}, {SPIN_LIMIT}')
LBL('L_A_TI2')
E(f'ds_read_b32 v127, v{AEX+2} offset:16')
for q in range(2): E(f'ds_read_b128 {vr(128+12*q,4)}, v{AEX} offset:{2304*q}\n ds_read_b128 {vr(132+12*q,4)}, v{AEX} offset:{2304*q+1024}\n ds_read_b32 v{136+12*q}, v{AEX+1} offset:{2304*q+2048}')
E(f's_waitcnt lgkmcnt(0)\n v_readfirstlane_b32 s{sT+1}, v127\n s_cmp_eq_u32 s{sT+1}, 1\n s_cbranch_scc1 L_A_LATE\n s_sub_u32 s{sCnt}, s{sCnt}, 1\n s_cbranch_scc0 L_A_TI2')
LBL('L_A_LATE')
for r in range(9): E(f'v_add_f32 v{OA+r}, v{OA+r}, v{140+r}')
E('s_waitcnt vmcnt(0)')
def setupA(): E(f's_mov_b32 s{sT+2}, {hex(WS_KVA)}\n s_mov_b32 s{sT+3}, 64')
for q,(O,Q_) in enumerate(((OA,AQ0),(OB,AQ1))):
    if q==1:
        for r in range(9): E(f'v_add_f32 v{OB+r}, v{OB+r}, v{128+r}')
    dst=152+4*q
    finalize(O,dst,2,f'L_FB_A{q}',f'L_FB_A{q}_BACK',126)
    if q==1: E(f's_xor_b32 s{sOA}, s{sOA}, 0x400')
    E(f's_cbranch_execz L_A_ST{q}\n s_cmp_eq_u32 s{sT+9}, 0\n s_cbranch_scc1 L_A_FAR{q}\n buffer_store_dwordx4 {vr(dst,4)}, v6, {sr(sWS)}, s{sOA} offen {OPT.get("oas","nt")}\n s_branch L_A_ST{q}')
    LBL(f'L_A_FAR{q}')
    E(f'buffer_store_dwordx4 {vr(dst,4)}, v6, {sr(sWS)}, s{sOA} offen sc1')
    LBL(f'L_A_ST{q}')
    fallback(f'L_FB_A{q}',f'L_FB_A{q}_BACK',Q_,O,SA,AK,AV,AIDX,3,6,7,None,setupA)
LBL('L_A_STD')
if DIAG: E('s_mov_b64 exec, -1')
stamp('A',6,'oA published')
stamp_flush(12,'A')
LBL('L_END')
E('s_endpgm')
L.append('L_CODE_END:')
L.extend(TAIL)
L.append('    s_endpgm\n.fill 1200, 4, 0xbf810000')

hdr=open('cdna_kernels/%s.s.ref'%NAME).read().split('; Override launch')[0]
txt=hdr
txt+=f'; @launch grid=(256,1,1) block=(768,1,1) lds={LDS_TOTAL}\n'
DOC="""
One workgroup per CU: WG = (64 positions pb, 4 heads hg); 8 "A" waves + 4 "B" waves, LDS 160 KB.
 head : waves 0-3 project q(A), q/k/v(B) (weights streamed by LDS-DMA through private rings, transposing LDS reads),
        waves 4-7 make this WG's 16-position piece of the shared K/V (and the gate), publish it, wait for all pieces.
 main : A waves - MQA over all 2048 keys (S^T = K Q^T, exp2 in place, P^T fed raw to a 2:4 sparse MFMA that picks the
        high halves = bf16 P; a row of ones in V^T gives the row sums).  B waves - window attention, then B out-projection.
 tail : o (already divided by the row sum and scaled by g or 1-g) is handed to the WGs of the same positions,
        B waves finish out = [g oA | (1-g) oB] [woA ; woB].
 softmax guard: exp2 runs on unshifted scores; every row's sum must lie in [2^-24, 2^60] and its numerators must be finite,
        otherwise that query tile is redone with the true row maximum (L_FB_*: max pass, then exp2(s - max)).
 hand-offs in d_ws carry a tag derived from the epoch word found at ws[0] (advanced once per launch), or overwrite a
        'not yet written' mark; all are write-through + acknowledged, except oA between WGs that report the same XCC id.
"""
for l in DOC.strip('\n').split('\n'): txt+='; '+l+'\n'
for n in () if not DIAG and not OPT.get('consts') else ('WS_KVA','WS_KVB','WS_OA','WS_OB','WS_STAMP','NSTAMP'): txt+=f'; CONST {n} = {hex(globals()[n])}\n'
for r,i,n in STN: txt+=f'; STAMPNAME {r} {i} {n}\n'
txt+=f'''.amdgcn_target "amdgcn-amd-amdhsa--gfx950"
.text
.globl {NAME}_kernel
.p2align 8
.type {NAME}_kernel,@function
{NAME}_kernel:
'''+'\n'.join(L)+f'''
.section .rodata,"a"
.p2align 6
.amdhsa_kernel {NAME}_kernel
  .amdhsa_next_free_vgpr 168
  .amdhsa_next_free_sgpr 102
  .amdhsa_accum_offset 168
  .amdhsa_group_segment_fixed_size 0
  .amdhsa_kernarg_size 96
  .amdhsa_user_sgpr_count 2
  .amdhsa_user_sgpr_kernarg_segment_ptr 1
  .amdhsa_system_sgpr_workgroup_id_x 1
.end_amdhsa_kernel
'''
open(OUT,'w').write(txt)
print('wrote',OUT,len(L),'lines')
```

```python
import sys, math, struct
NAME='gated_mix__grouped_kv_mqa__sliding_block__prompt'
DIAG = '--diag' in sys.argv
OUT = [a for a in sys.argv[1:] if not a.startswith('--')]
OUT = OUT[0] if OUT else 'cdna_kernels/%s.s'%NAME
OPT=dict(a.lstrip('-').split('=') for a in sys.argv[1:] if a.startswith('--') and '=' in a)
MAP=OPT.get('map','b'); ROT=OPT.get('rot','full'); PRIO=OPT.get('prio','step'); FLAG_IT=int(OPT.get('flagit','1')); PK=int(OPT.get('pk','7')); FORCE_K=int(OPT.get('forcek','7')); SENTK=int(OPT.get('sentk','14')); DENSE=OPT.get('dense','0')=='1'; ROLL=OPT.get('roll','0')=='1'; WT=OPT.get('wtouch','0')=='1'; KVK=int(OPT.get('kvk','13'))
def f2u(f): return struct.unpack('<I',struct.pack('<f',f))[0]

WS_EPOCH=0x0
WS_FKVA=0x1000
WS_FKVB=0x4000
WS_FOB =0xC000
WS_FOA =0x14000
WS_G   =0x1C000
WS_KVA =0x20000
WS_QB  =0x40000
WS_KVB =0x240000
WS_OA  =0x640000
WS_OB  =0x840000
WS_STAMP=0xA40000
NSTAMP=16
L_WQ=0; L_X=65536; L_ST=131072; L_CTL=L_ST+30720
L_GW=L_CTL; L_G=L_CTL+1024; L_C=L_CTL+1024+256
C_X=L_C+0
C_Q=L_C+4
C_K0=L_C+8; C_K1=L_C+12; C_K2=L_C+16; C_BP=L_C+20; C_MID=L_C+24; C_WO=L_C+28; C_WD=L_C+32; C_QR=L_C+36; C_SN=L_C+40; C_LOC=L_C+44; T_PT=L_C+256; T_X=L_C+272; T_PL=L_C+304; T_FL=L_C+308; T_G=L_C+320; T_X0=L_C+336; T_K0=L_C+352; T_Q1=L_C+356; T_H=L_C+368; T_TAG=L_C+372; C_PR=L_C+384; T_PR=L_C+400
L_EX=L_ST
LDS_TOTAL=163840
SPIN_LIMIT=400000
CSCALE=f2u(0.25*math.log2(math.e))
NEGBIG=f2u(-1e9)
L_LO=f2u(2.0**-24); L_HI=f2u(2.0**60)

sX=28; sWQ=32; sWKV=36; sWB=40; sWOA=44; sWOB=48; sG=52; sOUT=56; sWS=60; sDBG=64
sWave=68; sPb=69; sHg=70; sTag=71
sT=72
sCnt=84; sB=85
sXcc=65
sVM=86
sST=88
vZ=1
L=[]
def E(s):
    for ln in s.split('\n'):
        if ln.strip(): L.append('    '+ln.strip())
def LBL(s): L.append(s+':')
def C(s): L.append('    ; '+s)
_uid=[0]
def uid(p):
    _uid[0]+=1; return f'{p}_{_uid[0]}'
def vr(a,n): return f'v[{a}:{a+n-1}]'
def sr(a,n=4): return f's[{a}:{a+n-1}]'
def srd(dst,ptr,nbytes):
    E(f's_mov_b32 s{dst}, s{ptr}\n s_mov_b32 s{dst+1}, s{ptr+1}\n s_mov_b32 s{dst+2}, {hex(nbytes)}\n s_mov_b32 s{dst+3}, 0x20000')
STN=[]
def stamp(role,i,name):
    if OPT.get('acc') and role=='B' and i==10: return
    if OPT.get('jst') and role=='A' and i in (1,2,3,7): return
    if OPT.get('bst') and role=='B' and i in (6,7,8,9) and not name.startswith('arrive'): return
    if not DIAG: return
    STN.append((role,i,name))
    E(f's_memrealtime s[100:101]\n s_waitcnt lgkmcnt(0)\n s_mov_b32 s{sST+i}, s100')
ECHO=OPT.get('echo')
def echo_mark(name):
    if ECHO==name or name=='start' and ECHO:
        r=98 if name=='start' else 99
        E(f's_memrealtime s[100:101]\n s_waitcnt lgkmcnt(0)\n s_mov_b32 s{r}, s100')
def echo_end():
    if not ECHO: return
    E('s_waitcnt vmcnt(0)'); echo_mark('end')
    E('s_memrealtime s[100:101]\n s_waitcnt lgkmcnt(0)\n s_sub_u32 s99, s99, s98\n s_mul_i32 s99, s99, '+OPT.get('amp','1')+'\n s_add_u32 s99, s99, s100')
    LBL('L_ECHO')
    E('s_memrealtime s[100:101]\n s_waitcnt lgkmcnt(0)\n s_sub_u32 s100, s100, s99\n s_cmp_lt_i32 s100, 0\n s_cbranch_scc1 L_ECHO')
def cstamp(role,i,name):
    if OPT.get('jst') and i in (10,11) and not name.startswith('J'): return
    if not DIAG: return
    STN.append((role,i,'CYC '+name))
    E(f's_memtime s[100:101]\n s_waitcnt lgkmcnt(0)\n s_mov_b32 s{sST+i}, s100')
def tacc(role,i,name,code):
    if not (DIAG and OPT.get('acc')): E(code); return
    if (role,i,'ACC '+name) not in STN: STN.append((role,i,'ACC '+name))
    E(f's_memtime s[100:101]\n s_waitcnt lgkmcnt(0)\n s_sub_u32 s{sST+i}, s{sST+i}, s100')
    E(code)
    E(f's_memtime s[100:101]\n s_waitcnt lgkmcnt(0)\n s_add_u32 s{sST+i}, s{sST+i}, s100')
def stamp_flush(nmax,role='B'):
    if not DIAG: return
    if OPT.get('dbg'):
        m={'A':[(0,1),(2,2),(7,3),(3,4),(1,5),(4,6),(5,7),(6,8)],'B':[(4,9),(6,10),(7,11),(9,12),(10,13),(11,14)]}[role]
        sk=uid('nd')
        srd(sDBG,24,256)
        E(f's_bfe_u32 s{sT}, s2, 0x30003\n s_cmp_eq_u32 s{sT}, 0\n s_cbranch_scc0 {sk}\n v_mov_b32 v2, 0\n s_not_b32 s{sT}, s{sST}\n v_writelane_b32 v2, s{sT}, 0')
        for i,sl in m: E(f'v_writelane_b32 v2, s{sST+i}, {sl}')
        E(f'v_lshlrev_b32 v3, 2, v0\n s_mov_b64 exec, 0xffff\n buffer_atomic_umax v2, v3, {sr(sDBG)}, 0 offen sc1\n s_mov_b64 exec, -1')
        LBL(sk)
        return
    if OPT.get('hwid'): E(f's_getreg_b32 s{sST+11}, hwreg(HW_REG_HW_ID)\n s_getreg_b32 s{sST+10}, hwreg(HW_REG_XCC_ID)')
    E('v_mov_b32 v2, 0')
    for i in range(nmax): E(f'v_writelane_b32 v2, s{sST+i}, {i}')
    E(f's_mul_i32 s{sT}, s2, 12\n s_add_u32 s{sT}, s{sT}, s{sWave}\n s_lshl_b32 s{sT}, s{sT}, 6\n s_add_u32 s{sT}, s{sT}, {hex(WS_STAMP)}')
    E(f'v_lshlrev_b32 v3, 2, v0\n s_mov_b64 exec, 0xffff\n buffer_store_dword v2, v3, {sr(sWS)}, s{sT} offen\n s_mov_b64 exec, -1')

def lds_add(off,val,vz,vt):
    E(f'v_mov_b32 v{vt}, {val}\n s_mov_b64 exec, 1\n ds_add_u32 v{vz}, v{vt} offset:{off-L_ST}\n s_mov_b64 exec, -1')
def lds_spin(off,mask,val,vz,vt,sleep=1):
    a=uid('spin'); d=uid('spind')
    E(f's_mov_b32 s{sCnt}, {SPIN_LIMIT}')
    LBL(a)
    E(f'ds_read_b32 v{vt}, v{vz} offset:{off-L_ST}\n s_waitcnt lgkmcnt(0)\n v_readfirstlane_b32 s{sT}, v{vt}')
    if mask is not None: E(f's_and_b32 s{sT}, s{sT}, {hex(mask)}')
    E(f's_cmp_eq_u32 s{sT}, {hex(val)}\n s_cbranch_scc1 {d}\n s_sub_u32 s{sCnt}, s{sCnt}, 1\n s_cbranch_scc1 {d}')
    if sleep: E(f's_sleep {sleep}')
    E(f's_branch {a}')
    LBL(d)
def tag_set(off,sidx,vt):
    if sidx is None: E(f'v_mov_b32 v{vt}, {off}')
    else: E(f's_lshl_b32 s{sT}, s{sidx}, 2\n s_add_u32 s{sT}, s{sT}, {off}\n v_mov_b32 v{vt}, s{sT}')
    E(f'v_mov_b32 v{vt+1}, 1\n s_mov_b64 exec, 1\n ds_write_b32 v{vt}, v{vt+1}\n s_mov_b64 exec, -1')
def tag_wait(off,n,vt,sleep=0,once=None):
    a=uid('tw'); d=uid('twd')
    E(f'v_and_b32 v{vt}, {n-1}, v0\n v_lshlrev_b32 v{vt}, 2, v{vt}\n v_add_u32 v{vt}, {off}, v{vt}')
    if once:
        E(f'ds_read_b32 v{vt+1}, v{vt}\n s_waitcnt lgkmcnt(0)\n v_cmp_ne_u32 vcc, 1, v{vt+1}\n s_cbranch_vccz {once}')
        return
    E(f's_mov_b32 s{sCnt}, {SPIN_LIMIT}')
    LBL(a)
    E(f'ds_read_b32 v{vt+1}, v{vt}\n s_waitcnt lgkmcnt(0)\n v_cmp_ne_u32 vcc, 1, v{vt+1}\n s_cbranch_vccz {d}\n s_sub_u32 s{sCnt}, s{sCnt}, 1\n s_cbranch_scc1 {d}')
    if sleep: E(f's_sleep {sleep}')
    E(f's_branch {a}')
    LBL(d)
def tag_get(vt):
    E(f'ds_read_b32 v{vt}, v{vZ} offset:{T_TAG-L_ST}\n s_waitcnt lgkmcnt(0)\n v_readfirstlane_b32 s{sTag}, v{vt}')
def poll(vaddr,n,vt,sleep=1):
    a=uid('poll'); d=uid('polld')
    E(f's_mov_b32 s{sCnt}, {SPIN_LIMIT}')
    LBL(a)
    op={1:'buffer_load_dword',2:'buffer_load_dwordx2',3:'buffer_load_dwordx3',4:'buffer_load_dwordx4'}[n]
    E(f'{op} {vr(vt,n) if n>1 else "v%d"%vt}, v{vaddr}, {sr(sWS)}, 0 offen sc1\n s_waitcnt vmcnt(0)')
    for i in range(n): E(f'v_xor_b32 v{vt+i}, s{sTag}, v{vt+i}')
    if n==2: E(f'v_or_b32 v{vt}, v{vt}, v{vt+1}')
    if n>=3: E(f'v_or3_b32 v{vt}, v{vt}, v{vt+1}, v{vt+2}')
    if n==4: E(f'v_or_b32 v{vt}, v{vt}, v{vt+3}')
    E(f'v_cmp_ne_u32 vcc, 0, v{vt}\n s_cbranch_vccz {d}\n s_sub_u32 s{sCnt}, s{sCnt}, 1\n s_cbranch_scc1 {d}')
    if sleep: E(f's_sleep {sleep}')
    E(f's_branch {a}')
    LBL(d)
def flag_store(soff_reg,vt):
    E(f'v_mov_b32 v{vt}, s{sTag}\n s_mov_b64 exec, 1\n buffer_store_dword v{vt}, off, {sr(sWS)}, s{soff_reg} sc1\n s_mov_b64 exec, -1')
def mfma(d,a,b,c=None):
    cc = vr(d,16) if c is None else (c if isinstance(c,str) else vr(c,16))
    E(f'v_mfma_f32_32x32x16_bf16 {vr(d,16)}, {vr(a,4)}, {vr(b,4)}, {cc}')
def smf(o,v,s,idx): E(f'v_smfmac_f32_32x32x32_bf16 {vr(o,16)}, {vr(v,4)}, {vr(s,8)}, v{idx}')
def vexp(r): E(f'v_exp_f32 v{r}, v{r}')
def cvt(d,a,b): E(f'v_cvt_pk_bf16_f32 v{d}, v{a}, v{b}')
def set_vpad(regs,vt):
    E(f'v_and_b32 v{vt}, 27, v0\n v_cmp_eq_u32 vcc, 16, v{vt}\n v_mov_b32 v{vt}, 0x3f803f80\n s_nop 0\n v_cndmask_b32 v{regs[0]}, 0, v{vt}, vcc')
    for r in regs[1:]: E(f'v_mov_b32 v{r}, v{regs[0]}')
def xaddr(base,t_imm,vt):
    E(f'v_and_b32 v{vt}, 15, v0\n v_lshrrev_b32 v{base}, 5, v0\n v_xor_b32 v{base}, v{base}, v{vt}\n v_lshlrev_b32 v{base}, 4, v{base}')
    E(f'v_and_b32 v{vt}, 31, v0\n v_lshl_add_u32 v{base}, v{vt}, 10, v{base}\n v_add_u32 v{base}, {t_imm}, v{base}')
    for b in range(1,8): E(f'v_xor_b32 v{base+b}, {b<<5}, v{base}')
def traddr128(dst,vt,vt2,rowsel,colbase):
    E(f'v_lshrrev_b32 v{vt}, 5, v0\n v_lshlrev_b32 v{vt}, {rowsel}, v{vt}\n v_bfe_u32 v{vt2}, v0, 2, 2\n v_add_u32 v{vt}, v{vt}, v{vt2}\n v_lshlrev_b32 v{dst}, 7, v{vt}')
    E(f'v_bfe_u32 v{vt}, v0, 4, 1\n v_lshlrev_b32 v{vt}, 1, v{vt}\n v_bfe_u32 v{vt2}, v0, 1, 1\n v_add3_u32 v{vt}, v{vt}, v{vt2}, {colbase}')
    E(f'v_bfe_u32 v{vt2}, v0, 3, 1\n v_lshlrev_b32 v{vt2}, 2, v{vt2}\n v_xor_b32 v{vt}, v{vt}, v{vt2}\n v_lshl_add_u32 v{dst}, v{vt}, 4, v{dst}')
    E(f'v_and_b32 v{vt}, 1, v0\n v_lshl_add_u32 v{dst}, v{vt}, 3, v{dst}')
def dma128_voff(dst,vt,vt2,rowstride_sreg_or_shift,colbytes):
    E(f'v_lshrrev_b32 v{vt}, 3, v0')
    if isinstance(rowstride_sreg_or_shift,int): E(f'v_lshlrev_b32 v{dst}, {rowstride_sreg_or_shift}, v{vt}')
    else: E(f'v_mul_u32_u24 v{dst}, {rowstride_sreg_or_shift}, v{vt}')
    E(f'v_bfe_u32 v{vt}, v0, 4, 1\n v_lshlrev_b32 v{vt}, 2, v{vt}\n v_and_b32 v{vt2}, 7, v0\n v_xor_b32 v{vt}, v{vt}, v{vt2}\n v_lshl_add_u32 v{dst}, v{vt}, 4, v{dst}\n v_add_u32 v{dst}, {colbytes}, v{dst}')
def finalize(O,dst,vt,lbl_fb,lbl_back,vg):
    C('guard: row sum inside [2^-24, 2^60] and finite numerators in every lane, else redo with the true maximum')
    E(f'v_add_f32 v{vt}, |v{O}|, |v{O+1}|')
    for r in range(2,8): E(f'v_add_f32 v{vt}, v{vt}, |v{O+r}|')
    E(f'v_mov_b32 v{vt+1}, 0x7f800000\n v_cmp_nlt_f32 {sr(sT,2)}, v{vt}, v{vt+1}')
    E(f'v_cmp_nle_f32 vcc, {hex(L_LO)}, v{O+8}\n s_or_b64 {sr(sT,2)}, {sr(sT,2)}, vcc')
    E(f'v_cmp_nge_f32 vcc, {hex(L_HI)}, v{O+8}\n s_or_b64 {sr(sT,2)}, {sr(sT,2)}, vcc\n s_cbranch_scc1 {lbl_fb}')
    LBL(lbl_back)
    E(f'v_rcp_f32 v{vt}, v{O+8}\n s_nop 0\n v_mul_f32 v{vt}, v{vt}, v{vg}')
    for r in range(0,8,2): E(f'v_pk_mul_f32 {vr(O+r,2)}, {vr(O+r,2)}, {vr(vt,2)} op_sel_hi:[1,0]')
    for r in range(4): cvt(dst+r,O+2*r,O+2*r+1)
    E(f'v_min_u32 v{dst}, -2, v{dst}')

TAIL=[]
RETRY=[]
def fallback(lbl,back,Q,O,S,K,V,IDX,vM,vK,vV,ntile,soff_setup,first_mask=None,last_mask=None,first_cond=None):
    global L
    save=L; L=[]
    LBL(lbl)
    C('exact softmax for one query tile: pass 1 row maxima, pass 2 exp2(s - max) ; K/V fragments from d_ws')
    soff_setup()
    E(f'v_mov_b32 v{vM}, 0xff800000')
    for p in (0,1):
        lp=uid('fbl')
        if p==1:
            E(f'v_mov_b32 v{S}, v{vM}\n s_nop 1\n v_permlane32_swap_b32 v{S}, v{vM}\n s_nop 1\n v_max_f32 v{vM}, v{vM}, v{S}')
            for r in range(16): E(f'v_mov_b32 v{O+r}, 0')
        E(f's_mov_b32 s{sT+5}, s{sT+2}\n s_mov_b32 s{sT+6}, 0')
        LBL(lp)
        E(f'buffer_load_dwordx4 {vr(K,4)}, v{vK}, {sr(sWS)}, s{sT+5} offen sc1')
        if p==1:
            E(f's_mov_b64 exec, {sr(sVM,2)}\n buffer_load_dwordx4 {vr(V,4)}, v{vV}, {sr(sWS)}, s{sT+5} offen offset:1024 sc1\n buffer_load_dwordx4 {vr(V+4,4)}, v{vV}, {sr(sWS)}, s{sT+5} offen offset:1536 sc1\n s_mov_b64 exec, -1')
        E('s_waitcnt vmcnt(0)')
        if first_mask is None:
            mfma(S,K,Q,'0')
        else:
            a=uid('fbm'); b=uid('fbm'); j=uid('fbm')
            E(f's_add_u32 s{sT+7}, s{sT+6}, 1\n s_cmp_eq_u32 s{sT+7}, s{sT+3}\n s_cbranch_scc1 {a}')
            E(f's_cmp_lt_u32 s{sT+6}, s{sT+4}\n s_cbranch_scc1 {b}')
            mfma(S,K,Q,'0'); E(f's_branch {j}')
            LBL(a); mfma(S,K,Q,last_mask); E(f's_branch {j}')
            LBL(b); mfma(S,K,Q,first_mask)
            LBL(j)
        E('s_nop 15')
        if p==0:
            for r in range(0,16,2): E(f'v_max3_f32 v{vM}, v{S+r}, v{S+r+1}, v{vM}')
        else:
            for r in range(16): E(f'v_sub_f32 v{S+r}, v{S+r}, v{vM}')
            for r in range(16): vexp(S+r)
            E('s_nop 1'); smf(O,V,S,IDX); smf(O,V+4,S+8,IDX)
        E(f's_add_u32 s{sT+5}, s{sT+5}, 2048\n s_add_u32 s{sT+6}, s{sT+6}, 1\n s_cmp_lt_u32 s{sT+6}, s{sT+3}\n s_cbranch_scc1 {lp}')
    E(f's_nop 15\n s_branch {back}')
    TAIL.extend(L); L=save

E('s_cmp_ge_u32 s2, 256\n s_cbranch_scc1 L_END')
if ECHO=='karg': E('s_memrealtime s[100:101]\n s_waitcnt lgkmcnt(0)\n s_mov_b32 s97, s100')
E('s_load_dwordx16 s[4:19], s[0:1], 0\n s_load_dwordx8 s[20:27], s[0:1], 64')
E(f'v_lshrrev_b32 v1, 6, v0\n v_and_b32 v0, 63, v0\n v_readfirstlane_b32 s{sWave}, v1')
if MAP=='b' and OPT.get('alt'):
    E(f's_and_b32 s{sT}, s2, 7\n s_lshr_b32 s{sT+2}, s2, 6\n s_lshl_b32 s{sPb}, s{sT}, 2\n s_or_b32 s{sPb}, s{sPb}, s{sT+2}\n s_bfe_u32 s{sHg}, s2, 0x30003')
elif MAP=='b':
    E(f's_add_u32 s{sT}, s2, {OPT.get("sh","1")}\n s_and_b32 s{sT}, s{sT}, 7\n s_lshr_b32 s{sT+1}, s2, 3\n s_and_b32 s{sT+2}, s{sT+1}, 3\n s_lshl_b32 s{sPb}, s{sT}, 2\n s_or_b32 s{sPb}, s{sPb}, s{sT+2}\n s_lshr_b32 s{sHg}, s{sT+1}, 2')
else:
    E(f's_bfe_u32 s{sPb}, s2, 0x20001\n s_lshl_b32 s{sPb}, s{sPb}, 3\n s_bfe_u32 s{sT}, s2, 0x30003\n s_or_b32 s{sPb}, s{sPb}, s{sT}\n s_and_b32 s{sHg}, s2, 1\n s_lshl_b32 s{sHg}, s{sHg}, 2\n s_lshr_b32 s{sT}, s2, 6\n s_or_b32 s{sHg}, s{sHg}, s{sT}')
E(f's_mov_b32 s{sVM}, 0xffff\n s_mov_b32 s{sVM+1}, 0xffff')
if DIAG:
    for i in range(12): E(f's_mov_b32 s{sST+i}, 0')
def codepf():
  if OPT.get('cpf','1')=='1':
      C('---- pull this WG\'s share of the kernel\'s own instructions into L2 (later instruction fetches then miss only the I-cache)')
      E(f's_cmp_eq_u32 s{sWave}, 11\n s_cbranch_scc0 L_B_NCP\n s_getpc_b64 s[{sT}:{sT+1}]')
      LBL('L_B_PC')
      E(f's_lshr_b32 s{sT+2}, s2, 3\n s_mul_i32 s{sT+2}, s{sT+2}, (L_CODE_END-L_B_PC+4095)/4096*128\n s_add_u32 s{sT}, s{sT}, s{sT+2}\n s_addc_u32 s{sT+1}, s{sT+1}, 0')
      E(f'v_lshlrev_b32 v2, 7, v0\n v_mov_b32 v3, s{sT+1}\n v_add_co_u32 v2, vcc, s{sT}, v2\n s_nop 1\n v_addc_co_u32 v3, vcc, 0, v3, vcc\n s_lshl_b64 exec, 1, (L_CODE_END-L_B_PC+4095)/4096\n s_sub_u32 exec_lo, exec_lo, 1\n global_load_dword v63, v[2:3], off\n s_mov_b64 exec, -1')
      LBL('L_B_NCP')
if OPT.get('cpe','0')=='1': codepf()
C('clear the LDS counters and flags while the kernel arguments arrive')
E(f'v_lshlrev_b32 v2, 3, v0\n v_add_u32 v2, {L_C}, v2\n v_mov_b32 v4, 0\n v_mov_b32 v5, 0\n ds_write_b64 v2, v[4:5]')
E('s_waitcnt lgkmcnt(0)\n s_barrier')
stamp('A',0,'start'); stamp('B',0,'start'); echo_mark('start')
if ECHO=='karg': E('s_sub_u32 s99, s98, s97\n s_mul_i32 s99, s99, 10\n s_add_u32 s99, s99, s98')
srd(sX,4,2048*1024); srd(sWS,26,0x10000000)
E(f's_cmp_lt_u32 s{sWave}, 8\n s_cbranch_scc1 L_A')


KVPOS=[L_ST,32768,49152,16384,65536,81920,98304,114688]
L_PART=L_ST+24576
L_QA=0; L_QB=8192; L_WO=0; L_FX=65536
sOut=66; sOb=67; sPass=64
sRot=sT+11
def mktag(): E(f's_mul_i32 s{sTag}, s{sTag}, 0x9E3779B1\n s_add_u32 s{sTag}, s{sTag}, 0x7F4A7C15')
FT=OPT.get('ft','0')
def mkrot():
    if FT!='0' and not OPT.get('ftrot'): E(f's_mov_b32 s{sRot}, 0'); return
    if MAP=='b': E(f's_and_b32 s{sRot}, s{sPb}, 3\n s_lshl_b32 s{sRot}, s{sRot}, 1\n s_add_u32 s{sRot}, s{sRot}, s{sHg}')
    else: E(f's_lshl_b32 s{sRot}, s{sHg}, 1\n s_add_u32 s{sRot}, s{sRot}, s{sPb}')
def touch(srd_,soff,n,vaddr,vd,sc1=False):
    for i in range(n):
        if i: E(f's_add_u32 s{soff}, s{soff}, 8192')
        E(f'buffer_load_dword v{vd}, v{vaddr}, {sr(srd_)}, s{soff} offen'+(' sc1' if sc1 else ''))
E(f's_setprio {2 if OPT.get("bp2") else 3}\n s_sub_u32 s{sB}, s{sWave}, 8')
if OPT.get('cpe','0')=='0': codepf()
C('---- x tile -> LDS as 8 blocks of [64 rows][64 k], block order rotated per WG ; wave b brings blocks b and b+4')
E('v_lshrrev_b32 v17, 3, v0\n v_lshlrev_b32 v17, 10, v17\n v_lshrrev_b32 v2, 4, v0\n v_and_b32 v3, 7, v0\n v_xor_b32 v2, v2, v3\n v_lshl_add_u32 v17, v2, 4, v17\n v_xor_b32 v18, 64, v17')
mkrot()
E(f's_lshl_b32 s{sT+7}, s{sPb}, 16\n s_lshl_b32 s{sT+6}, s{sB}, 13')
VQ=[]
def vwait(tag,extra=''):
    if tag not in VQ:
        if extra: E('s_waitcnt'+extra)
        return
    i=max(n for n,t in enumerate(VQ) if t==tag)
    n=len(VQ)-1-i; del VQ[:i+1]
    E(f's_waitcnt vmcnt({n})'+extra)
XD=OPT.get('xd','1')=='1'
def xblock(expr_add,ldsoff,rows):
    E(f's_add_u32 s{sT+1}, s{sRot}, {expr_add}\n s_and_b32 s{sT+1}, s{sT+1}, 7\n s_lshl_b32 s{sT+1}, s{sT+1}, 7\n s_add_u32 s{sT+1}, s{sT+1}, s{sT+7}')
if XD:
    E(f's_and_b32 s{sT+1}, s{sRot}, 7\n s_lshl_b32 s{sT+1}, s{sT+1}, 7\n s_add_u32 s{sT+1}, s{sT+1}, s{sT+7}\n s_lshl_b32 s{sT+2}, s{sB}, 14\n s_add_u32 s{sT+1}, s{sT+1}, s{sT+2}\n s_lshl_b32 s{sT+2}, s{sB}, 11\n s_add_u32 m0, s{sT+2}, 65536\n s_nop 0')
    E(f'buffer_load_dwordx4 v17, {sr(sX)}, s{sT+1} offen lds\n s_add_u32 m0, s{sT+2}, {65536+1024}\n s_add_u32 s{sT+1}, s{sT+1}, 8192\n buffer_load_dwordx4 v18, {sr(sX)}, s{sT+1} offen lds')
def wtouch(chunk_expr):
    E(f'{chunk_expr}\n s_lshl_b32 s{sT+1}, s{sT+1}, 5\n s_lshr_b32 s{sT+2}, s2, 3\n s_add_u32 s{sT+1}, s{sT+1}, s{sT+2}\n s_lshl_b32 s{sT+2}, s{sT+1}, 11\n s_mul_i32 s{sT+1}, s{sT+1}, 6144')
    E(f's_mov_b64 exec, 0xffff\n buffer_load_dword v19, v21, {sr(sWQ)}, s{sT+2} offen\n s_mov_b32 exec_lo, -1\n s_mov_b32 exec_hi, 0xffff\n buffer_load_dword v20, v21, {sr(sWB)}, s{sT+1} offen\n s_mov_b64 exec, -1')
NT=0
if FT!='0':
    srd(sWQ,6,512*1024); srd(sWB,16,512*3072)
    E('v_lshlrev_b32 v21, 7, v0')
    wtouch(f's_mov_b32 s{sT+1}, s{sB}'); NT=2
    if FT=='2': wtouch(f's_add_u32 s{sT+1}, s{sB}, 4'); NT=4
def c3touch():
    C('lines with address bits 9:7 = 3 miss more slowly: every WG asks early for a share of that weight column block')
    E(f's_cmp_eq_u32 s{sB}, 0\n s_cselect_b32 s{sWB}, s6, s16\n s_cselect_b32 s{sWB+1}, s7, s17\n s_mov_b32 s{sWB+2}, {512*3072}\n s_cselect_b32 s{sWB+2}, {512*1024}, s{sWB+2}\n s_mov_b32 s{sWB+3}, 0x20000')
    E(f's_movk_i32 s{sT+3}, 3072\n s_cselect_b32 s{sT+3}, 0x400, s{sT+3}\n s_max_u32 s{sT+1}, s{sB}, 1\n s_sub_u32 s{sT+1}, s{sT+1}, 1\n s_lshl_b32 s{sT+1}, s{sT+1}, 10\n s_lshr_b32 s{sT+2}, s2, 3\n s_lshl_b32 s{sT+2}, s{sT+2}, 4\n s_mul_i32 s{sT+2}, s{sT+2}, s{sT+3}\n s_add_u32 s{sT+1}, s{sT+1}, s{sT+2}')
    E(f'v_mul_u32_u24 v2, s{sT+3}, v0\n s_mov_b64 exec, 0xffff\n buffer_load_dword v19, v2, {sr(sWB)}, s{sT+1} offen offset:384\n s_mov_b64 exec, -1')
C3=OPT.get('c3','2') if MAP=='b' and FT=='0' else '0'
if C3=='1': c3touch()
def xrest():
  for hb in range(2):
    sk=uid('xs')
    if XD and hb==0: E(f's_cmp_eq_u32 s{sB}, 0\n s_cbranch_scc1 {sk}')
    E(f's_add_u32 s{sT+1}, s{sRot}, s{sB}\n s_add_u32 s{sT+1}, s{sT+1}, {4*hb}\n s_and_b32 s{sT+1}, s{sT+1}, 7\n s_lshl_b32 s{sT+1}, s{sT+1}, 7\n s_add_u32 s{sT+1}, s{sT+1}, s{sT+7}')
    for n in range(8):
        E(f's_add_u32 m0, s{sT+6}, {65536+32768*hb+1024*n}')
        E(f's_add_u32 s{sT+1}, s{sT+1}, 8192' if n else 's_nop 0')
        E(f'buffer_load_dwordx4 v{17+(n&1)}, {sr(sX)}, s{sT+1} offen lds')
    if XD and hb==0: LBL(sk)
if not XD: xrest()
MU=128; MD=144; BQ=16; BK=24; BV=36; BS=64; BO=96; BIDX=60
C('---- constants for the later phases (idle time)')
E(f'v_mov_b32 v{vZ}, {L_ST}\n v_lshlrev_b32 v160, 4, v0\n v_lshlrev_b32 v163, 7, v0')
E('v_lshrrev_b32 v161, 5, v0\n v_lshlrev_b32 v161, 8, v161\n v_and_b32 v2, 15, v0\n v_lshl_add_u32 v161, v2, 4, v161')
srd(sWOA,12,512*1024); srd(sWOB,18,512*1024)
E(f'v_and_b32 v4, 31, v0\n v_lshrrev_b32 v5, 5, v0\n v_lshlrev_b32 v5, 2, v5\n v_sub_u32 v4, v4, v5\n s_mov_b32 s{sT}, {hex(NEGBIG)}')
for r in range(16):
    E(f'v_subrev_u32 v5, {8*(r//4)+r%4}, v4\n v_ashrrev_i32 v5, 31, v5\n v_and_b32 v{MD+r}, s{sT}, v5\n v_xor_b32 v{MU+r}, s{sT}, v{MD+r}')
set_vpad(list(range(BV,BV+24)),2); E(f'v_mov_b32 v{BIDX}, 0xdddddddd')
for r in range(32): E(f'v_mov_b32 v{BO+r}, 0')
E(f'v_min_u32 v2, 4, v0\n s_sub_i32 s{sT}, s{sPb}, 4\n v_add_u32 v2, s{sT}, v2\n v_max_i32 v2, 0, v2\n s_lshl_b32 s{sT}, s{sHg}, 5\n v_add_u32 v2, s{sT}, v2\n v_lshlrev_b32 v2, 7, v2\n v_add_u32 v162, {hex(WS_FKVB+8)}, v2')
E(f'v_and_b32 v2, 7, v0\n v_lshlrev_b32 v2, 5, v2\n v_add_u32 v2, s{sPb}, v2\n v_lshlrev_b32 v2, 7, v2\n v_add_u32 v166, {hex(WS_FKVB+16)}, v2')
sKh=sT+9; sTt=sT+10
E(f's_lshr_b32 s{sKh}, s{sB}, 1\n s_and_b32 s{sTt}, s{sB}, 1\n s_lshl_b32 s{sT+2}, s{sHg}, 7')
dma128_voff(10,2,3,10,f's{sT+2}')
E(f's_lshl_b32 s{sT+1}, s{sKh}, 2'); traddr128(11,2,3,2,f's{sT+1}')
E(f's_lshl_b32 s{sT+1}, s{sKh}, 15\n s_add_u32 s{sT+1}, s{sT+1}, {L_WO}\n v_add_u32 v11, s{sT+1}, v11\n v_xor_b32 v9, 64, v11')
E(f's_lshl_b32 s{sOut}, s{sPb}, 1\n s_add_u32 s{sOut}, s{sOut}, s{sTt}\n s_lshl_b32 s{sOut}, s{sOut}, 15\n s_lshl_b32 s{sT}, s{sKh}, 14\n s_add_u32 s{sOb}, s{sOut}, s{sT}\n s_add_u32 s{sOb}, s{sOb}, {hex(WS_OB)}')
E(f's_lshl_b32 s{sT}, s{sHg}, 7\n s_add_u32 s{sOut}, s{sOut}, s{sT}\n s_lshl_b32 s{sT}, s{sKh}, 6\n s_add_u32 s{sOut}, s{sOut}, s{sT}')
E('v_and_b32 v8, 31, v0\n v_lshlrev_b32 v167, 10, v8\n v_lshrrev_b32 v3, 5, v0\n v_lshl_add_u32 v167, v3, 4, v167\n v_lshlrev_b32 v8, 2, v8')
srd(sOUT,22,2048*1024)
E(f's_lshl_b32 s{sT}, s{sB}, 12\n s_add_u32 s{sT}, s{sT}, {L_FX}\n v_add_u32 v164, s{sT}, v160\n v_xor_b32 v165, 0x2000, v164\n s_mov_b32 s{sPass}, 0')
if XD:
    E(f's_waitcnt vmcnt({NT})' if NT else ('s_waitcnt vmcnt(1)' if C3=='1' else 's_waitcnt vmcnt(0)')); tag_set(T_X0,sB,2)
    if C3=='2': c3touch()
    if FT=='1': wtouch(f's_add_u32 s{sT+1}, s{sB}, 4')
    xrest()
E('s_waitcnt vmcnt(8)')
tag_set(T_X,sB,2)
stamp('B',1,'x landed'); echo_mark('xl')
E('s_waitcnt vmcnt(0)')
tag_set(T_X+16,sB,2)
if ECHO in ('k0','q1','fl','pt'):
    tag_wait({'k0':T_K0,'q1':T_Q1,'fl':T_FL,'pt':T_PT}[ECHO],4 if ECHO=='pt' else 1,2,sleep=2); echo_mark(ECHO)
tag_wait(T_G,4,2,sleep=4)
tag_get(2)
stamp('B',5,'BQ'); echo_mark('bq')
E(f's_setprio {OPT.get("bpr","3")}')
def kvdma(c):
    E(f's_lshr_b32 s{sT+1}, s2, 3\n s_add_u32 s{sT+1}, s{sT+1}, {c}\n s_and_b32 s{sT+1}, s{sT+1}, 3\n s_lshl_b32 s{sT+1}, s{sT+1}, 2\n s_add_u32 s{sT+1}, s{sT+1}, s{sB}\n s_lshl_b32 s{sT+1}, s{sT+1}, 12')
    E(f's_lshl_b32 s{sT+2}, s{sB}, 12\n s_add_u32 m0, s{sT+2}, {KVPOS[c]}\n s_add_u32 s{sT+1}, s{sT+1}, {hex(WS_KVA+(65536 if c>=4 else 0))}')
    for i in range(4): E(f'buffer_load_dwordx4 v160, {sr(sWS)}, s{sT+1} offen offset:{1024*i} sc1 lds')
    VQ.extend([f'kv{c}']*4)
E(f's_lshl_b32 s{sT}, s{sB}, 11\n s_add_u32 s{sT}, s{sT}, {L_QB}\n v_add_u32 v3, s{sT}, v160')
for t in range(2): E(f'ds_read_b128 {vr(BQ+4*t,4)}, v3 offset:{1024*t}')
E(f's_lshl_b32 s{sT}, s{sPb}, 8\n s_add_u32 s{sT}, s{sT}, {hex(WS_G)}\n buffer_load_dword v61, v8, {sr(sWS)}, s{sT} offen sc1\n buffer_load_dword v62, v8, {sr(sWS)}, s{sT} offen offset:128 sc1\n s_waitcnt lgkmcnt(0)')
C('---- second half of the shared K/V ; o slots marked as not yet written')
for c in (4,5,6,7): kvdma(c)
E(f's_lshl_b32 s{sT+10}, s{sPb}, 6\n s_lshl_b32 s{sT+1}, s{sHg}, 2\n s_add_u32 s{sT+10}, s{sT+10}, s{sT+1}\n s_add_u32 s{sT+10}, s{sT+10}, s{sB}\n s_lshl_b32 s{sT+10}, s{sT+10}, 10')
E('v_mov_b32 v12, -1\n v_mov_b32 v13, -1\n v_mov_b32 v14, -1\n v_mov_b32 v15, -1')
for base in (WS_OA,WS_OA+32768,WS_OB,WS_OB+32768):
    E(f's_add_u32 s{sT+1}, s{sT+10}, {hex(base)}\n buffer_store_dwordx4 v[12:15], v160, {sr(sWS)}, s{sT+1} offen sc1')
E(f's_lshl_b32 s{sT+3}, s{sHg}, 5\n s_add_u32 s{sT+3}, s{sT+3}, s{sPb}\n s_lshl_b32 s{sT+3}, s{sT+3}, 7\n s_lshl_b32 s{sT+1}, s{sB}, 2\n s_add_u32 s{sT+3}, s{sT+3}, s{sT+1}\n s_add_u32 s{sT+3}, s{sT+3}, {hex(WS_FKVB+16)}')
E(f's_getreg_b32 s{sXcc}, hwreg(HW_REG_XCC_ID, 0, 4)\n s_add_u32 s{sT}, s{sTag}, s{sXcc}\n v_mov_b32 v3, s{sT}\n s_waitcnt vmcnt(0)')
E(f's_mov_b64 exec, 1\n buffer_store_dword v3, off, {sr(sWS)}, s{sT+3} sc1\n s_mov_b64 exec, -1')
lds_add(C_K2,0x101,vZ,2)
stamp('B',2,'K/V all in')
if OPT.get('nob'): stamp_flush(12); E('s_endpgm')
E('v_sub_f32 v61, 1.0, v61\n v_sub_f32 v62, 1.0, v62')
poll(162,2,4,sleep=3)
stamp('B',6,'kvB flags seen'); echo_mark('kvb')
def wotouch():
    if MAP=='b':
        E(f's_cmp_ge_u32 s{sB}, 2\n s_cbranch_scc0 L_B_NOT\n s_lshr_b32 s{sT+1}, s2, 3\n s_lshl_b32 s{sT+1}, s{sT+1}, 14\n s_and_b32 s{sT+2}, s{sB}, 1\n s_lshl_b32 s{sT+2}, s{sT+2}, 13\n s_add_u32 s{sT+1}, s{sT+1}, s{sT+2}')
        touch(sWOB,sT+1,1,163,3); touch(sWOA,sT+1,1,163,3)
    else:
        E(f's_cmp_eq_u32 s{sB}, 3\n s_cbranch_scc0 L_B_NOT\n s_lshr_b32 s{sT+1}, s2, 3\n s_lshl_b32 s{sT+1}, s{sT+1}, 14\n s_and_b32 s{sT+2}, s2, 1\n s_lshl_b32 s{sT+2}, s{sT+2}, 9\n s_add_u32 s{sT+1}, s{sT+1}, s{sT+2}')
        E('v_lshrrev_b32 v2, 2, v0\n v_lshlrev_b32 v2, 10, v2\n v_and_b32 v3, 3, v0\n v_lshl_add_u32 v2, v3, 7, v2')
        touch(sWOB,sT+1,1,2,3); touch(sWOA,sT+1,1,2,4)
    LBL('L_B_NOT')
C('---- window attention, head 4hg+b, two query tiles')
E(f's_lshl_b32 s{sT+8}, s{sHg}, 2\n s_add_u32 s{sT+8}, s{sT+8}, s{sB}\n s_lshl_b32 s{sT+8}, s{sT+8}, 6\n s_lshl_b32 s{sT+9}, s{sPb}, 1\n s_sub_i32 s{sT+9}, s{sT+9}, 8')
def btile(j): E(f's_add_i32 s{sT}, s{sT+9}, {j}\n s_max_i32 s{sT}, s{sT}, 0\n s_add_u32 s{sT}, s{sT}, s{sT+8}\n s_lshl_b32 s{sT}, s{sT}, 11\n s_add_u32 s{sT}, s{sT}, {hex(WS_KVB)}')
def bload(j):
    k=BK+4*(j%3); v=BV+8*(j%3)
    btile(j)
    E(f'buffer_load_dwordx4 {vr(k,4)}, v160, {sr(sWS)}, s{sT} offen sc1\n s_mov_b64 exec, {sr(sVM,2)}')
    E(f'buffer_load_dwordx4 {vr(v,4)}, v161, {sr(sWS)}, s{sT} offen offset:1024 sc1\n buffer_load_dwordx4 {vr(v+4,4)}, v161, {sr(sWS)}, s{sT} offen offset:1536 sc1\n s_mov_b64 exec, -1')
bload(0); bload(1)
E(f's_setprio {OPT.get("bat","3")}')
for j in (2,6):
    E(f's_add_i32 s{sT}, s{sT+9}, {j}\n s_max_i32 s{sT}, s{sT}, 0\n s_add_i32 s{sT+1}, s{sT+9}, 6\n s_min_i32 s{sT}, s{sT}, s{sT+1}\n s_cmp_lt_i32 s{sT}, 0')
    sk=uid('tk'); E(f's_cbranch_scc1 {sk}\n s_add_u32 s{sT}, s{sT}, s{sT+8}\n s_lshl_b32 s{sT}, s{sT}, 11\n s_add_u32 s{sT}, s{sT}, {hex(WS_KVB)}')
    E(f'buffer_load_dword v3, v163, {sr(sWS)}, s{sT} offen sc1'); LBL(sk)
E('s_waitcnt lgkmcnt(0)')
for j in range(10):
    k=BK+4*(j%3); v=BV+8*(j%3)
    if j==3: wotouch()
    if j==int(OPT.get('bup','4')): E('s_setprio 3')
    if j==7: E(f'buffer_load_dwordx4 v[12:15], v166, {sr(sWS)}, 0 offen sc1')
    if j+2<10: bload(j+2)
    E(f's_waitcnt vmcnt({3*min(2,9-j)})')
    sk=uid('bskip')
    if j<8: E(f's_cmp_lt_i32 s{sT+9}, {-j}\n s_cbranch_scc1 {sk}')
    qs=[q for q in (0,1) if 0<=j-q<=8]
    for q in qs: mfma(BS+16*q,k,BQ+4*q,{0:MU,8:MD}.get(j-q,'0'))
    E('s_nop 10' if len(qs)==2 else 's_nop 11')
    for q in qs:
        S=BS+16*q; O=BO+16*q
        for r in range(10): vexp(S+r)
        smf(O,v,S,BIDX)
        for r in range(10,16): vexp(S+r)
        E('s_nop 1'); smf(O,v+4,S+8,BIDX)
    if j<8: LBL(sk)
sLoc=sT+11
E(f's_add_u32 s{sT+10}, s{sT+10}, {hex(WS_OB)}')
C('the eight WGs of this position block: marks in place ?  all on this die ?')
E(f's_mov_b32 s{sCnt}, {SPIN_LIMIT}\n s_branch L_B_PP1')
LBL('L_B_PP')
E(f'buffer_load_dwordx4 v[12:15], v166, {sr(sWS)}, 0 offen sc1\n s_waitcnt vmcnt(0)')
LBL('L_B_PP1')
for i in range(4): E(f'v_subrev_u32 v{12+i}, s{sTag}, v{12+i}')
E(f'v_or3_b32 v2, v12, v13, v14\n v_or_b32 v2, v2, v15\n v_cmp_lt_u32 vcc, 15, v2\n s_cbranch_vccz L_B_PPD\n s_sub_u32 s{sCnt}, s{sCnt}, 1\n s_cbranch_scc1 L_B_PPD\n s_sleep 3\n s_branch L_B_PP')
LBL('L_B_PPD')
if OPT.get('loc','1')=='1':
    E(f'v_cmp_ne_u32 vcc, s{sXcc}, v12\n s_cbranch_vccnz L_B_NLOC')
    lds_add(C_LOC,1,vZ,2)
    if OPT.get('probe'):
        E('s_branch L_B_PRB')
        LBL('L_B_NLOC')
        for i in range(8): E('s_sleep 127')
        LBL('L_B_PRB')
    else: LBL('L_B_NLOC')

for q in range(2):
    fb=f'L_FB_B{q}'; bk=f'L_FB_B{q}_BACK'
    finalize(BO+16*q,4,2,fb,bk,61+q)
    E(f'buffer_store_dwordx4 v[4:7], v160, {sr(sWS)}, s{sT+10} offen sc1')
    if q==0: E(f's_add_u32 s{sT+10}, s{sT+10}, 32768\n s_nop 0')
    def setup(q=q):
        E(f's_add_i32 s{sT+2}, s{sT+9}, {q}\n s_cmp_ge_i32 s{sT+2}, 0\n s_cselect_b32 s{sT+4}, 1, 0\n s_max_i32 s{sT+2}, s{sT+2}, 0')
        E(f's_add_i32 s{sT+3}, s{sT+9}, {q+9}\n s_sub_u32 s{sT+3}, s{sT+3}, s{sT+2}\n s_add_u32 s{sT+2}, s{sT+2}, s{sT+8}\n s_lshl_b32 s{sT+2}, s{sT+2}, 11\n s_add_u32 s{sT+2}, s{sT+2}, {hex(WS_KVB)}')
    fallback(fb,bk,BQ+4*q,BO+16*q,BS,BK,BV,BIDX,3,160,161,None,setup,MU,MD)
C('---- output projection: wave (t=b&1, kh=b>>1): both 32-column tiles over heads 16kh..16kh+15 ; slot 0 = tile kh')
PA_=48; PW=80; PO=96; PB_=16
stamp('B',7,'oB published'); echo_mark('ob')
E(f's_setprio {OPT.get("bpr2","3")}')
lds_spin(C_MID,None,8,vZ,2,sleep=6)
def wodma(sr_):
    E(f's_lshl_b32 s{sT}, s{sB}, 14\n s_lshl_b32 s{sT+1}, s{sB}, 17')
    for n in range(16): E(f's_add_u32 m0, s{sT}, {L_WO+1024*n}\n s_add_u32 s{sT+2}, s{sT+1}, {8192*n}\n buffer_load_dwordx4 v10, {sr(sr_)}, s{sT+2} offen lds')
def oloads(g0):
    for s in range(4*g0,16):
        if s%4==0: E(f's_add_u32 s{sT}, s{sOb}, {1024*s}')
        E(f'buffer_load_dwordx4 {vr(PO+4*s,4)}, v160, {sr(sWS)}, s{sT} offen offset:{1024*(s%4)} sc1')
wodma(sWOB)
oloads(0)
E('s_waitcnt vmcnt(16)')
lds_add(C_WO,1,vZ,2)
lds_spin(C_WO,None,4,vZ,2,sleep=2)
stamp('B',8,'woB landed')
E('s_branch L_B_GEMM1')
LBL('L_B_GEMM')
oloads(0)
LBL('L_B_GEMM1')
def wread(s):
    f=PW+8*(s&1)
    for u,va in ((0,11),(1,9)): E(f'ds_read_b64_tr_b16 {vr(f+4*u,2)}, v{va} offset:{s*2048}\n ds_read_b64_tr_b16 {vr(f+4*u+2,2)}, v{va} offset:{s*2048+1024}')
wread(0)
E(f's_mov_b32 s{sCnt}, {SPIN_LIMIT}')
for g in range(4):
    LBL(f'L_B_G{g}')
    E(f's_waitcnt vmcnt({12-4*g})')
    p=PO+16*g
    E(f'v_max_u32 v2, v{p}, v{p+4}\n v_max3_u32 v2, v{p+8}, v{p+12}, v2\n v_cmp_eq_u32 vcc, -1, v2\n s_cbranch_vccnz L_B_R{g}')
    LBL(f'L_B_K{g}')
    if DIAG and g==3:
        E(f's_cmp_eq_u32 s{sPass}, 0\n s_cbranch_scc1 L_B_NST'); stamp('B',10,'oA all seen'); LBL('L_B_NST')
    for s in range(4*g,4*g+4):
        if s<15: wread(s+1)
        E(f's_waitcnt lgkmcnt({4 if s<15 else 0})')
        f=PW+8*(s&1)
        if s==0:
            E(f's_cmp_eq_u32 s{sPass}, 0\n s_cbranch_scc0 L_B_M1')
            for u in range(2): mfma(PA_+16*u,f+4*u,PO+4*s,'0')
            E('s_branch L_B_M2'); LBL('L_B_M1')
            for u in range(2): mfma(PA_+16*u,f+4*u,PO+4*s)
            LBL('L_B_M2')
        else:
            for u in range(2): mfma(PA_+16*u,f+4*u,PO+4*s)
    save=L; L=[]
    LBL(f'L_B_R{g}')
    E(f's_sub_u32 s{sCnt}, s{sCnt}, 1\n s_cbranch_scc1 L_B_K{g}\n s_cmp_eq_u32 s{sPass}, 0\n s_cbranch_scc0 L_B_RR{g}\n s_sleep 8')
    LBL(f'L_B_RR{g}')
    E('s_waitcnt vmcnt(0)')
    oloads(g)
    E(f's_branch L_B_G{g}')
    RETRY.extend(L); L=save
E(f's_cmp_eq_u32 s{sPass}, 0\n s_cbranch_scc0 L_B_FIN')
lds_add(C_WD,1,vZ,2)
E(f's_add_u32 s{sOb}, s{sOb}, {hex((WS_OA-WS_OB)&0xffffffff)}\n s_mov_b32 s{sPass}, 1')
lds_spin(C_WD,None,4,vZ,2,sleep=2)
wodma(sWOA)
if OPT.get('dry','0')=='1':
    C('walk once through the closing code with no lane active: its instructions are then cached when they matter')
    E('s_mov_b64 exec, 0\n s_branch L_B_FIN')
    LBL('L_B_DRYD')
    E('s_mov_b64 exec, -1')
E('s_waitcnt vmcnt(0)')
stamp('B',9,'out-proj B done, woA in'); echo_mark('b9')
E('s_barrier'); echo_mark('aend'); E('s_branch L_B_GEMM')
LBL('L_B_FIN')
E('s_nop 9')
for q in range(4): E(f'ds_write_b128 v164, {vr(PA_+16+4*q,4)} offset:{1024*q}')
E('s_waitcnt lgkmcnt(0)\n s_cbranch_execz L_B_NBAR\n s_barrier')
LBL('L_B_NBAR')
for q in range(4): E(f'ds_read_b128 {vr(PB_+4*q,4)}, v165 offset:{1024*q}')
for q in range(4):
    E(f's_waitcnt lgkmcnt({3-q})')
    for r in range(4): E(f'v_add_f32 v{PA_+4*q+r}, v{PA_+4*q+r}, v{PB_+4*q+r}')
for r in range(8): cvt(PA_+r,PA_+2*r,PA_+2*r+1)
E('s_nop 1')
for gq in range(2): E(f'v_permlane32_swap_b32 v{PA_+4*gq}, v{PA_+4*gq+2}\n v_permlane32_swap_b32 v{PA_+4*gq+1}, v{PA_+4*gq+3}')
if OPT.get('dry','0')=='1': E('s_cbranch_execz L_B_DRYD')
for gq in range(2): E(f'buffer_store_dwordx4 {vr(PA_+4*gq,4)}, v167, {sr(sOUT)}, s{sOut} offen offset:{32*gq} '+OPT.get('ost','').replace('+',' '))
if DIAG: E('s_waitcnt vmcnt(0)')
stamp('B',11,'out stored'); echo_end()
stamp_flush(12)
E('s_endpgm')
L.extend(RETRY)

LBL('L_A')
AIDX=8; AKA=9; AVA=10; AQ0=12; AQ1=16; AK=20; AV=28; SA=44; SB=60; OA=76; OB=92; XA=108; WA=160; AF=112
L_PG=L_PART+4096
sStr=sT+10; sRing=sT+7
E(f'v_and_b32 v5, 15, v0\n v_lshlrev_b32 v6, 4, v0\n s_and_b32 s{sT+9}, s{sHg}, 3\n s_cmp_lt_u32 s{sWave}, 4\n s_cbranch_scc0 L_A_KV')
C('---- waves 0..3 : wave m streams 64 columns of matrix m (wq | B q | B k | B v) through its own 8 x 2KB ring')
E(f's_cmp_eq_u32 s{sWave}, 0\n s_cselect_b32 s{sWB}, s6, s16\n s_cselect_b32 s{sWB+1}, s7, s17\n s_mov_b32 s{sWB+2}, {512*3072}\n s_cselect_b32 s{sWB+2}, {512*1024}, s{sWB+2}\n s_mov_b32 s{sWB+3}, 0x20000')
E(f's_movk_i32 s{sStr}, 3072\n s_cselect_b32 s{sStr}, 0x400, s{sStr}\n s_max_u32 s{sT+1}, s{sWave}, 1\n s_sub_u32 s{sT+1}, s{sT+1}, 1\n s_lshl_b32 s{sT+1}, s{sT+1}, 10\n s_lshl_b32 s{sT+2}, s{sHg}, 7\n s_add_u32 s{sT+1}, s{sT+1}, s{sT+2}')
dma128_voff(162,2,3,f's{sStr}',f's{sT+1}')
mkrot()
E(f's_lshl_b32 s{sStr}, s{sStr}, 3\n s_lshl_b32 s{sRing}, s{sWave}, 14')
E(f's_sub_u32 s{sT+1}, s{sStr}, 1024\n v_add_u32 v163, s{sT+1}, v162\n s_lshl_b32 s{sStr}, s{sStr}, 1')
def wdma_parts(st):
    p0=f's_add_u32 m0, s{sRing}, {(st%8)*2048}\n'
    if st%4==0: p0+=f's_add_u32 s{sT+3}, s{sRot}, {st//4}\n s_and_b32 s{sT+3}, s{sT+3}, 7\n s_lshl_b32 s{sT+3}, s{sT+3}, 2\n s_mul_i32 s{sT+3}, s{sT+3}, s{sStr}'
    else: p0+=f's_add_u32 s{sT+3}, s{sT+3}, s{sStr}'
    VQ.extend([f'w{st}']*2)
    return [p0, f'buffer_load_dwordx4 v162, {sr(sWB)}, s{sT+3} offen lds', f'buffer_load_dwordx4 v163, {sr(sWB)}, s{sT+3} offen offset:1024 lds']
def wdma(st):
    for p in wdma_parts(st): E(p)
if OPT.get('p0','2')!='0': E(f's_cmp_eq_u32 s{sWave}, 0\n s_cbranch_scc0 L_A_NP0\n s_setprio {OPT.get("p0","3")}\nL_A_NP0:')
NW0=int(OPT.get('nw0','8'))
VQ.clear()
for st in range(NW0): wdma(st)
E('s_branch L_A_NOKV')
LBL('L_A_KV')
E(f's_setprio 3\n s_load_dword s{sTag}, s[26:27], {WS_EPOCH}')
C('---- kvA: this WG makes 16 positions (hg&3) of K (hg<4) or V, and their gate ; wave 4+u sums k in [128u,128u+128)')
E(f's_cmp_lt_u32 s{sHg}, 4\n s_cselect_b32 s{sWKV}, s8, s10\n s_cselect_b32 s{sWKV+1}, s9, s11\n s_mov_b32 s{sWKV+2}, 16384\n s_mov_b32 s{sWKV+3}, 0x20000\n s_and_b32 s{sT+3}, s{sWave}, 3')
E(f's_lshl_b32 s{sT+1}, s{sPb}, 16\n s_lshl_b32 s{sT+2}, s{sT+9}, 14\n s_add_u32 s{sT+1}, s{sT+1}, s{sT+2}\n s_lshl_b32 s{sT+2}, s{sT+3}, 8\n s_add_u32 s{sT+1}, s{sT+1}, s{sT+2}')
E('v_lshlrev_b32 v3, 10, v5\n v_and_b32 v4, 48, v0\n v_add_u32 v3, v3, v4')
for s_ in range(4): E(f'buffer_load_dwordx4 {vr(116+4*s_,4)}, v3, {sr(sX)}, s{sT+1} offen offset:{64*s_}')
WKD=OPT.get('wkd','0')=='1'
if MAP=='b' and WKD:
    E(f's_cmp_lt_u32 s{sWave}, 6\n s_cbranch_scc0 L_A_NT2\n s_cmp_eq_u32 s{sWave}, 4\n s_cselect_b32 s{sG}, s8, s10\n s_cselect_b32 s{sG+1}, s9, s11\n s_mov_b32 s{sG+2}, 16384\n s_mov_b32 s{sG+3}, 0x20000')
    E(f's_lshr_b32 s{sT+4}, s2, 3\n s_lshl_b32 s{sT+4}, s{sT+4}, 9\n v_lshlrev_b32 v2, 7, v0\n s_mov_b64 exec, 15\n buffer_load_dword v167, v2, {sr(sG)}, s{sT+4} offen\n s_mov_b64 exec, -1')
    LBL('L_A_NT2')
if MAP=='c' and OPT.get('wkt','1')=='1':
    E(f's_cmp_eq_u32 s{sWave}, 4\n s_cbranch_scc0 L_A_NT2\n s_lshr_b32 s{sT+4}, s2, 3\n s_lshl_b32 s{sT+4}, s{sT+4}, 9\n v_lshlrev_b32 v2, 7, v0\n s_mov_b64 exec, 15\n buffer_load_dword v167, v2, {sr(sWKV)}, s{sT+4} offen\n s_mov_b64 exec, -1')
    LBL('L_A_NT2')
srd(sG,20,1024)
for s_ in range(4): E(f'buffer_load_dwordx4 {vr(132+4*s_,4)}, v4, {sr(sG)}, s{sT+2} offen offset:{64*s_}')
def wkdma():
    E(f's_lshl_b32 s{sT}, s{sT+3}, 12\n s_add_u32 m0, s{sT}, {L_ST}\n s_nop 0')
    for i in range(4): E(f'buffer_load_dwordx4 v6, {sr(sWKV)}, s{sT} offen offset:{1024*i} lds')
if not WKD: wkdma()
LBL('L_A_NOKV')
C('---- address of this wave\'s o slot, constants')
sOA=sT+8
E(f's_and_b32 s{sOA}, s{sWave}, 1\n s_lshl_b32 s{sT+1}, s{sPb}, 1\n s_add_u32 s{sOA}, s{sOA}, s{sT+1}\n s_lshl_b32 s{sOA}, s{sOA}, 5')
E(f's_lshl_b32 s{sT+1}, s{sHg}, 2\n s_add_u32 s{sOA}, s{sOA}, s{sT+1}\n s_and_b32 s{sT+1}, s{sWave}, 2\n s_add_u32 s{sOA}, s{sOA}, s{sT+1}\n s_lshr_b32 s{sT+1}, s{sWave}, 2\n s_add_u32 s{sOA}, s{sOA}, s{sT+1}\n s_lshl_b32 s{sOA}, s{sOA}, 10\n s_add_u32 s{sOA}, s{sOA}, {hex(WS_OA)}')
E(f'v_mov_b32 v{vZ}, {L_ST}\n v_lshlrev_b32 v11, 2, v0')
traddr128(WA,2,3,3,'0'); E(f's_lshl_b32 s{sT+1}, s{sWave}, 14\n v_add_u32 v{WA}, s{sT+1}, v{WA}\n v_xor_b32 v{WA+1}, 64, v{WA}')
E(f'v_and_b32 v2, 31, v0\n v_bfe_u32 v3, v0, 1, 3\n v_lshrrev_b32 v7, 5, v0\n v_xor_b32 v3, v3, v7\n v_lshlrev_b32 v{XA}, 7, v2\n v_lshl_add_u32 v{XA}, v3, 4, v{XA}\n v_add_u32 v{XA}, 0x10000, v{XA}')
for s_ in range(1,4): E(f'v_xor_b32 v{XA+s_}, {s_<<5}, v{XA}')
for r in range(32): E(f'v_mov_b32 v{OA+r}, 0')
set_vpad(list(range(AV,AV+16)),2)
E(f'v_mov_b32 v{AIDX}, 0xdddddddd')
E(f's_lshr_b32 s{sT+1}, s{sWave}, 2\n s_lshl_b32 s{sT+1}, s{sT+1}, 11\n v_add_u32 v{AKA}, s{sT+1}, v6')
E(f'v_lshlrev_b32 v7, 8, v7\n v_lshl_add_u32 v7, v5, 4, v7\n v_add_u32 v{AVA}, s{sT+1}, v7')
E(f's_lshl_b32 s{sT+6}, s{sHg}, 5\n s_add_u32 s{sT+6}, s{sT+6}, s{sPb}\n s_lshl_b32 s{sT+6}, s{sT+6}, 7\n s_lshl_b32 s{sT+1}, s{sWave}, 2\n s_add_u32 s{sT+6}, s{sT+6}, s{sT+1}\n s_add_u32 s{sT+6}, s{sT+6}, {hex(WS_FKVB)}')
E(f's_cmp_lt_u32 s{sWave}, 4\n s_cbranch_scc1 L_A_GQ\n s_waitcnt lgkmcnt(0)')
mktag()
if WKD: E(f's_waitcnt vmcnt({OPT.get("wkw","7")})'); wkdma()
E(f'v_lshrrev_b32 v4, 4, v0\n v_lshlrev_b32 v4, 8, v4\n v_lshl_add_u32 v4, v5, 3, v4\n s_add_u32 s{sT}, s{sT}, {L_ST}\n v_add_u32 v4, s{sT}, v4')
E(f's_lshl_b32 s{sT+1}, s{sT+3}, 10\n s_add_u32 s{sT+1}, s{sT+1}, {L_PART}\n v_add_u32 v2, s{sT+1}, v6\n s_lshl_b32 s{sT+1}, s{sT+3}, 8\n s_add_u32 s{sT+1}, s{sT+1}, {L_PG}\n v_add_u32 v3, s{sT+1}, v11')
E('s_waitcnt vmcnt(0)')
for s_ in range(4): E(f'ds_read_b64_tr_b16 {vr(44+4*s_,2)}, v4 offset:{1024*s_}\n ds_read_b64_tr_b16 {vr(46+4*s_,2)}, v4 offset:{1024*s_+128}')
for s_ in range(4): E(f'v_mfma_f32_16x16x32_bf16 v[64:67], {vr(132+4*s_,4)}, {vr(116+4*s_,4)}, {"0" if s_==0 else "v[64:67]"}')
E(f's_cmp_lt_u32 s{sHg}, 4\n s_waitcnt lgkmcnt(0)\n s_cbranch_scc0 L_A_VJOB')
for s_ in range(4): E(f'v_mfma_f32_16x16x32_bf16 v[60:63], {vr(44+4*s_,4)}, {vr(116+4*s_,4)}, {"0" if s_==0 else "v[60:63]"}')
E('s_branch L_A_KVJ')
LBL('L_A_VJOB')
for s_ in range(4): E(f'v_mfma_f32_16x16x32_bf16 v[60:63], {vr(116+4*s_,4)}, {vr(44+4*s_,4)}, {"0" if s_==0 else "v[60:63]"}')
LBL('L_A_KVJ')
E('s_nop 0\n ds_write_b32 v3, v64\n s_nop 5\n ds_write_b128 v2, v[60:63]')
stamp('A',2,'kvA partial')
E('s_waitcnt lgkmcnt(0)')
tag_set(T_PT,sT+3,2)
E(f's_cmp_eq_u32 s{sWave}, 7\n s_cbranch_scc0 L_A_BS')
C('---- wave 7: reduce the four partial tiles, store, flag')
tag_wait(T_PT,4,2)
E(f'v_add_u32 v3, {L_PART}, v6\n v_add_u32 v4, {L_PG}, v11')
for i in range(4): E(f'ds_read_b128 {vr(116+4*i,4)}, v3 offset:{1024*i}')
for i in range(2): E(f'ds_read2st64_b32 {vr(148+2*i,2)}, v4 offset0:{2*i} offset1:{2*i+1}')
E(f's_lshl_b32 s{sT+3}, s{sPb}, 1\n s_lshr_b32 s{sT+4}, s{sT+9}, 1\n s_add_u32 s{sT+3}, s{sT+3}, s{sT+4}\n s_lshl_b32 s{sT+3}, s{sT+3}, 11\n s_add_u32 s{sT+3}, s{sT+3}, {hex(WS_KVA)}\n s_and_b32 s{sT+4}, s{sT+9}, 1')
E(f's_cmp_lt_u32 s{sHg}, 4\n s_cselect_b32 s{sT+5}, 9, 3\n s_cselect_b32 s{sT+7}, 3, 8\n s_cselect_b32 s{sT+1}, 8, 9\n s_cselect_b32 s{sT}, 0, 0x400')
E(f's_lshl_b32 s{sT+4}, s{sT+4}, s{sT+1}\n s_add_u32 s{sT+3}, s{sT+3}, s{sT+4}\n s_add_u32 s{sT+3}, s{sT+3}, s{sT}')
E(f'v_bfe_u32 v3, v0, 4, 1\n v_lshrrev_b32 v4, 5, v0\n v_lshlrev_b32 v5, 4, v5\n v_lshl_add_u32 v5, v3, s{sT+5}, v5\n v_lshl_add_u32 v5, v4, s{sT+7}, v5')
FPLS=int(OPT.get('fpl','2'))
E(f's_lshl_b32 s{sT+7}, s{sPb}, 3\n s_add_u32 s{sT+7}, s{sT+7}, s{sHg}\n s_and_b32 s{sT+1}, s{sT+7}, {(1<<FPLS)-1}\n s_lshr_b32 s{sT+7}, s{sT+7}, {FPLS}\n s_lshl_b32 s{sT+7}, s{sT+7}, 7\n s_lshl_b32 s{sT+1}, s{sT+1}, 2\n s_add_u32 s{sT+7}, s{sT+7}, s{sT+1}\n s_add_u32 s{sT+7}, s{sT+7}, {hex(WS_FKVA)}')
E('s_waitcnt lgkmcnt(2)')
for st_ in (8,4):
    for r in range(st_): E(f'v_add_f32 v{116+r}, v{116+r}, v{116+st_+r}')
cvt(116,116,117); cvt(117,118,119)
E(f'buffer_store_dwordx2 v[116:117], v5, {sr(sWS)}, s{sT+3} offen sc1')
E(f's_cmp_lt_u32 s{sHg}, 4\n s_waitcnt lgkmcnt(0)\n s_cbranch_scc0 L_A_SF')
for st_ in (2,1):
    for r in range(st_): E(f'v_add_f32 v{148+r}, v{148+r}, v{148+st_+r}')
E(f's_mov_b32 s{sT}, {hex(f2u(-math.log2(math.e)))}\n v_mul_f32 v148, s{sT}, v148\n v_exp_f32 v148, v148')
E(f's_lshl_b32 s{sT}, s{sPb}, 2\n s_add_u32 s{sT}, s{sT}, s{sT+9}\n v_add_f32 v148, 1.0, v148\n v_rcp_f32 v148, v148\n s_lshl_b32 s{sT}, s{sT}, 6\n s_add_u32 s{sT}, s{sT}, {hex(WS_G)}')
E(f's_mov_b64 exec, 0xffff\n buffer_store_dword v148, v11, {sr(sWS)}, s{sT} offen sc1\n s_mov_b64 exec, -1')
LBL('L_A_SF')
E('s_waitcnt vmcnt(0)')
flag_store(sT+7,2)
stamp('A',3,'kvA flag sent')
LBL('L_A_BS')
E(f's_cmp_eq_u32 s{sWave}, 6\n s_cbranch_scc0 L_A_B8')
C('---- wave 6: wait for every K/V piece, fetch this WG\'s share into L2, tell the projection waves')
E(f'v_lshlrev_b32 v16, 7, v0\n v_lshrrev_b32 v17, {FPLS-2}, v0\n v_lshlrev_b32 v17, 7, v17\n v_and_b32 v18, {(1<<(FPLS-2))-1}, v0\n v_lshl_add_u32 v17, v18, 4, v17\n v_add_u32 v17, {hex(WS_FKVA)}, v17')
E(f'v_mov_b32 v2, s{sTag}\n ds_write_b32 v{vZ}, v2 offset:{T_TAG-L_ST}')
tag_wait(T_PT,4,2)
tag_wait(T_PL,1,2,sleep=2)
C('lanes whose four flags are in drop out of the next look')
E(f's_mov_b32 s{sCnt}, {SPIN_LIMIT}')
LBL('L_A_PL')
E(f'buffer_load_dwordx4 v[12:15], v17, {sr(sWS)}, 0 offen sc1\n s_waitcnt vmcnt(0)')
for i in range(4): E(f'v_xor_b32 v{12+i}, s{sTag}, v{12+i}')
E(f'v_or3_b32 v12, v12, v13, v14\n v_or_b32 v12, v12, v15\n v_cmp_ne_u32 vcc, 0, v12\n s_cbranch_vccz L_A_PLD\n s_sub_u32 s{sCnt}, s{sCnt}, 1\n s_cbranch_scc1 L_A_PLD\n s_mov_b64 exec, vcc\n s_sleep {OPT.get("psl","16")}\n s_branch L_A_PL')
LBL('L_A_PLD')
E('s_mov_b64 exec, -1')
E(f's_lshr_b32 s{sT+5}, s2, 3\n s_lshl_b32 s{sT+5}, s{sT+5}, 12\n s_add_u32 s{sT+5}, s{sT+5}, {hex(WS_KVA)}')
E(f's_mov_b32 exec_hi, 0\n buffer_load_dword v117, v16, {sr(sWS)}, s{sT+5} offen sc1\n s_mov_b64 exec, -1')
tag_set(T_FL,None,2)
stamp('A',3,'kvA flag sent')
E(f's_lshr_b32 s{sT+5}, s2, 3\n s_and_b32 s{sT+5}, s{sT+5}, 3\n s_lshl_b32 s{sT+5}, s{sT+5}, 14\n s_add_u32 s{sT+5}, s{sT+5}, {hex(WS_KVA)}')
for q in range(4):
    E(f's_mov_b32 m0, {L_ST+4096*q}\n s_add_u32 s{sT+4}, s{sT+5}, {4096*q}')
    for i in range(4): E(f'buffer_load_dwordx4 v6, {sr(sWS)}, s{sT+4} offen offset:{1024*i} sc1 lds')
E('s_waitcnt vmcnt(0)')
tag_set(T_K0,None,2)
stamp('A',7,'G1')
E(f's_cmp_eq_u32 s2, 0\n s_cbranch_scc0 L_A_B8\n s_mov_b32 s{sT}, 0')
flag_store(sT,2)
E('s_branch L_A_B8')
LBL('L_A_GQ')
PAC=[44,60,128,144]; PFR=[12,112,92]
def areads_l(st):
    f=PFR[st%3]; so=(st%8)*2048; o=[]
    for i in range(2): o+= [f'ds_read_b64_tr_b16 {vr(f+4*i,2)}, v{WA+i} offset:{so}', f'ds_read_b64_tr_b16 {vr(f+4*i+2,2)}, v{WA+i} offset:{so+512}']
    for t in range(2): o.append(f'ds_read_b128 {vr(f+8+4*t,4)}, v{XA+st%4} offset:{(st//4)*8192+4096*t}')
    return o
def areads(st):
    for p in areads_l(st): E(p)
def kv_parts(p):
    VQ.extend(['kv']*2)
    return [f's_add_u32 m0, s{sRing}, {p*2048}\n s_add_u32 s{sT+4}, s{sT+5}, {p*2048}']+[f'buffer_load_dwordx4 v6, {sr(sWS)}, s{sT+4} offen offset:{1024*n} sc1 lds' for n in range(2)]
def kvpiece(p):
    for q in kv_parts(p): E(q)
for st in range(NW0,8): wdma(st)
E(f's_sub_u32 s{sT+4}, s{sWave}, 1\n s_cmp_eq_u32 s{sWave}, 1\n s_cselect_b32 s{sT+4}, 3, s{sT+4}\n s_lshr_b32 s{sT+5}, s2, 3\n s_add_u32 s{sT+5}, s{sT+5}, s{sT+4}\n s_and_b32 s{sT+5}, s{sT+5}, 3\n s_lshl_b32 s{sT+5}, s{sT+5}, 14\n s_add_u32 s{sT+5}, s{sT+5}, {hex(WS_KVA)}')
tag_wait(T_X0,4,2) if XD else tag_wait(T_X,1,2)
stamp('A',7,'G1')
vwait('w0'); areads(0); vwait('w1'); areads(1)
VQ0=list(VQ)
PLK=int(OPT.get('plk','15'))
E(f's_cmp_eq_u32 s{sWave}, 3\n s_cbranch_scc1 L_A_GV')
def gstep(var,st,kv):
    f=PFR[st%3]
    def mm(i,t):
        d=PAC[2*i+t]; c='0' if st==0 else None
        if var==0: mfma(d,f+4*i,f+8+4*t,c)
        else: mfma(d,f+8+4*t,f+4*i,c)
    vwait(f'w{st+2}',f' lgkmcnt({6 if st<31 else 0})')
    rd=areads_l(st+2) if st+2<32 else []
    dm=wdma_parts(st+8) if st+8<32 else (kv_parts(st%8) if kv else [])
    gaps=[rd[0:2]+dm[0:1], rd[2:4]+dm[1:2], rd[4:6], dm[2:3]]
    if st>=30: gaps=[[f'v_mov_b32 v{OB+8*(st-30)+2*q+r}, 0' for r in range(2)]+gaps[q] for q in range(4)]
    for q,(i,t) in enumerate(((0,0),(0,1),(1,0),(1,1)) if st<31 else ((1,0),(1,1),(0,0),(0,1))):
        if not (OPT.get('halfm') and q&1 and 0<st<31): mm(i,t)
        for p in gaps[q]: E(p)
for var in (0,1):
    if var: LBL('L_A_GV')
    VQ[:]=VQ0
    for st in range(24):
        if OPT.get('hold') and st==0:
            E(f's_cmp_eq_u32 s{sWave}, 0\n s_cbranch_scc1 L_A_NH{var}'); tag_wait(T_H,1,2,sleep=2); LBL(f'L_A_NH{var}')
        if OPT.get('hold') and var==0 and st==int(OPT.get('hold')):
            E(f's_cmp_eq_u32 s{sWave}, 0\n s_cbranch_scc0 L_A_NH2'); tag_set(T_H,None,2); E('s_waitcnt lgkmcnt(0)'); LBL('L_A_NH2')
        if st==2: E('s_waitcnt lgkmcnt(0)'); tag_wait(T_X,4,2)
        if st==14: E('s_waitcnt lgkmcnt(0)'); tag_wait(T_X+16,4,2)
        if st==PLK and var==1: tag_set(T_PL,None,2); E('s_waitcnt lgkmcnt(0)')
        gstep(var,st,False)
    stamp('A',2,'step 24'); cstamp('A',10,'s24')
    if var==0: E(f's_cmp_eq_u32 s{sWave}, 0\n s_cbranch_scc1 L_A_G0')
    tag_wait(T_FL,1,2,once=f'L_A_GK{var}')
    if var==0: LBL('L_A_G0')
    V1=list(VQ)
    for st in range(24,32): gstep(var,st,False)
    if var==0: E(f's_cmp_eq_u32 s{sWave}, 0\n s_cbranch_scc1 L_A_GE0')
    tag_wait(T_FL,1,2)
    for p in range(8): kvpiece(p)
    E(f's_branch L_A_GE{var}')
    LBL(f'L_A_GK{var}')
    VQ[:]=V1
    for st in range(24,32): gstep(var,st,True)
    LBL(f'L_A_GE{var}')
    stamp('A',1,'proj loop done'); cstamp('A',11,'pl')
    if OPT.get('ep','1')=='1': E('s_setprio 3')
    E(f's_lshl_b32 s{sT+4}, s{sHg}, 8\n s_lshl_b32 s{sT+5}, s{sPb}, 1\n s_add_u32 s{sT+4}, s{sT+4}, s{sT+5}\n s_lshl_b32 s{sT+4}, s{sT+4}, 11\n s_add_u32 s{sT+4}, s{sT+4}, {hex(WS_KVB)}')
    if var==0:
        E(f's_cmp_eq_u32 s{sWave}, 2\n s_cbranch_scc1 L_A_EK')
        C('q (A / B): scale, pack, hand over through LDS')
        E(f's_cmp_eq_u32 s{sWave}, 0\n s_cbranch_scc1 L_A_Q0')
        tag_wait(T_G,1,2)
        LBL('L_A_Q0')
        E(f's_lshl_b32 s{sT+1}, s{sWave}, 13\n s_add_u32 s{sT+1}, s{sT+1}, {L_QA}\n v_add_u32 v3, s{sT+1}, v6\n s_mov_b32 s{sT+2}, {hex(CSCALE)}\n s_mov_b32 s{sT+3}, {hex(CSCALE)}\n s_lshl_b32 s{sT+1}, s{sWave}, 2\n s_add_u32 s{sT+1}, s{sT+1}, {T_Q1}\n v_mov_b32 v4, s{sT+1}\n v_mov_b32 v5, 1')
        for i in (1,0):
            for t in range(2):
                d=PAC[2*i+t]
                for r in range(0,16,2): E(f'v_pk_mul_f32 {vr(d+r,2)}, {vr(d+r,2)}, {sr(sT+2,2)}')
                for r in range(8): cvt(d+r,d+2*r,d+2*r+1)
                for hh in range(2): E(f'ds_write_b128 v3, {vr(d+4*hh,4)} offset:{(2*i+hh)*2048+1024*t}')
            if i==1: E(f's_mov_b64 exec, 1\n ds_write_b32 v4, v5\n s_mov_b64 exec, -1')
        E('s_waitcnt vmcnt(0) lgkmcnt(0)')
        tag_set(T_G,sWave,2)
        E('s_branch L_A_B8')
        LBL('L_A_EK')
        E('s_waitcnt vmcnt(0)')
        tag_set(T_G,sWave,2)
        for i in range(2):
            for t in range(2):
                d=PAC[2*i+t]
                for r in range(8): cvt(d+r,d+2*r,d+2*r+1)
                for hh in range(2): E(f's_add_u32 s{sT+5}, s{sT+4}, {(2*i+hh)*131072}\n buffer_store_dwordx4 {vr(d+4*hh,4)}, v6, {sr(sWS)}, s{sT+5} offen offset:{2048*t} sc1')
        E('s_branch L_A_B8')
    else:
        E('s_waitcnt vmcnt(0)')
        tag_set(T_G,sWave,2)
        E('v_bfe_u32 v3, v0, 4, 1\n v_lshl_add_u32 v3, v3, 17, v7')
        for i in range(2):
            for t in range(2):
                d=PAC[2*i+t]
                for r in range(8): cvt(d+r,d+2*r,d+2*r+1)
                E('s_nop 1')
                for gq in range(2): E(f'v_permlane32_swap_b32 v{d+4*gq}, v{d+4*gq+2}\n v_permlane32_swap_b32 v{d+4*gq+1}, v{d+4*gq+3}')
                E(f's_add_u32 s{sT+5}, s{sT+4}, {i*2*131072}')
                for gq in range(2): E(f'buffer_store_dwordx4 {vr(d+4*gq,4)}, v3, {sr(sWS)}, s{sT+5} offen offset:{2048*t+1024+512*gq} sc1')
LBL('L_A_B8')
E(f's_cmp_lt_u32 s{sWave}, 4\n s_cbranch_scc1 L_A_KP\n s_setprio 0')
LBL('L_A_KP')
E(f's_and_b32 s{sT+1}, s{sWave}, 2\n s_lshr_b32 s{sT+2}, s{sWave}, 2\n s_add_u32 s{sT+1}, s{sT+1}, s{sT+2}\n s_lshl_b32 s{sT+1}, s{sT+1}, 11\n s_and_b32 s{sT+2}, s{sWave}, 1\n s_lshl_b32 s{sT+2}, s{sT+2}, 10\n s_add_u32 s{sT+1}, s{sT+1}, s{sT+2}\n s_add_u32 s{sT+1}, s{sT+1}, {L_QA}\n v_add_u32 v2, s{sT+1}, v6\n v_xor_b32 v3, 0x800, v2')
AK0=120; AV0=121; AEX=122; AG=126
E(f'v_add_u32 v{AK0}, {L_ST}, v{AKA}\n v_add_u32 v{AV0}, {L_ST}, v{AVA}')
E(f's_and_b32 s{sT+2}, s{sWave}, 3\n s_mul_i32 s{sT+1}, s{sT+2}, 4608\n s_add_u32 s{sT+1}, s{sT+1}, {L_EX}\n v_add_u32 v{AEX}, s{sT+1}, v6\n v_add_u32 v{AEX+1}, s{sT+1}, v11')
E(f's_lshl_b32 s{sT+2}, s{sT+2}, 2\n s_add_u32 s{sT+2}, s{sT+2}, {C_PR}\n v_mov_b32 v{AEX+2}, s{sT+2}')
E(f's_and_b32 s{sT+1}, s{sWave}, 1\n s_lshl_b32 s{sT+2}, s{sPb}, 1\n s_add_u32 s{sT+1}, s{sT+1}, s{sT+2}\n s_lshl_b32 s{sT+1}, s{sT+1}, 7\n s_add_u32 s{sT+1}, s{sT+1}, {hex(WS_G)}\n v_and_b32 v127, 0x7c, v11')
tag_wait(T_K0,1,4,sleep=int(OPT.get('asl','2')))
E(f'buffer_load_dword v{AG}, v127, {sr(sWS)}, s{sT+1} offen sc1')
tag_get(4)
def kvoff(j):
    return (j%4)*4096+(0 if j<4 else KVPOS[j//4]-(65536 if j>=16 else 0))
def ldk(j): E(f'ds_read_b128 {vr(AK+4*(j&1),4)}, v{AK0 if j<4 else AKA} offset:{kvoff(j)}')
def ldv(j): E(f's_mov_b64 exec, {sr(sVM,2)}\n ds_read_b128 {vr(AV+8*(j&1),4)}, v{AV0 if j<4 else AVA} offset:{kvoff(j)+1024}\n ds_read_b128 {vr(AV+8*(j&1)+4,4)}, v{AV0 if j<4 else AVA} offset:{kvoff(j)+1536}\n s_mov_b64 exec, -1')
ldk(0); ldv(0); ldk(1)
E(f's_bitcmp1_b32 s{sWave}, 1\n s_cbranch_scc0 L_A_WL')
tag_wait(T_Q1,1,4,sleep=int(OPT.get('asl2','1')))
E('s_branch L_A_WD')
LBL('L_A_WL')
tag_wait(T_G,1,4,sleep=int(OPT.get('asl2','1')))
LBL('L_A_WD')
stamp('A',4,'BQ'); cstamp('A',8,'BQ')
E(f'ds_read_b128 {vr(AQ0,4)}, v2\n ds_read_b128 {vr(AQ1,4)}, v3')
if PRIO in ('step','step4'): E('s_setprio 2')
E('s_waitcnt lgkmcnt(0)'); mfma(SA,AK,AQ0,'0')
E('s_nop 11')
def pair_iter(j,ldk_,ldv_,first=False,last=0,extra=0):
    kc=AK+4*(j&1); kn=AK+4*((j+1)&1); vc=AV+8*(j&1); vp=AV+8*((j+1)&1)
    vexp(SA); vexp(SA+1)
    if not first: smf(OB,vp+4,SB+8,AIDX)
    for r in range(2,5): vexp(SA+r)
    mfma(SB,kc,AQ1,'0')
    for r in range(5,10): vexp(SA+r)
    E(f's_waitcnt lgkmcnt({(1 if last<2 else 0)+extra})')
    vexp(SA+10); smf(OA,vc,SA,AIDX)
    for r in range(11,16): vexp(SA+r)
    vexp(SB); vexp(SB+1); smf(OA,vc+4,SA+8,AIDX)
    if last<2: ldv_()
    for r in range(2,5): vexp(SB+r)
    if last<2:
        E('s_waitcnt lgkmcnt(2)'); mfma(SA,kn,AQ0,'0')
    if last<1: ldk_()
    for r in range(5,11): vexp(SB+r)
    smf(OB,vc,SB,AIDX)
    for r in range(11,16): vexp(SB+r)
def aflag(force,init=False):
    sk=uid('fl')
    E(f's_cmp_eq_u32 s{sT+5}, 0\n s_cbranch_scc0 {sk}')
    if not force: E(f's_getreg_b32 s{sT}, hwreg(HW_REG_IB_STS, 0, 4)\n s_cmp_eq_u32 s{sT}, 0\n s_cbranch_scc0 {sk}')
    E(f's_waitcnt vmcnt(0)\n s_mov_b32 s{sT+5}, 1'); flag_store(sT+6,2); LBL(sk)
if ROLL:
    AKN=120; AVN=121; sC=sT+4
    def rk(j):
        a_=AKA if j<4 else AKN
        return lambda: E(f'ds_read_b128 {vr(AK+4*(j&1),4)}, v{a_} offset:{(j%4)*4096}')
    def rv(j):
        a_=AVA if j<4 else AVN
        return lambda: E(f's_mov_b64 exec, {sr(sVM,2)}\n ds_read_b128 {vr(AV+8*(j&1),4)}, v{a_} offset:{(j%4)*4096+1024}\n ds_read_b128 {vr(AV+8*(j&1)+4,4)}, v{a_} offset:{(j%4)*4096+1536}\n s_mov_b64 exec, -1')
    for r in range(8,16): E(f'v_mov_b32 v{SB+r}, 0')
    E(f'v_add_u32 v{AKN}, 0x8000, v{AKA}\n v_add_u32 v{AVN}, 0x8000, v{AVA}\n v_add_u32 v{AKA}, 0x4000, v{AKA}\n v_add_u32 v{AVA}, 0x4000, v{AVA}\n s_mov_b32 s{sC}, 0\n s_mov_b32 s{sT+5}, 0')
    L.append('.p2align 6')
    LBL('L_A_LOOP')
    pair_iter(0,rk(2),rv(1)); pair_iter(1,rk(3),rv(2))
    E(f's_cmp_gt_u32 s{sC}, 6\n s_cbranch_scc1 L_A_LAST\n s_bitcmp1_b32 0x5f, s{sC}\n s_cbranch_scc1 L_A_RARE')
    LBL('L_A_RBACK')
    pair_iter(2,rk(4),rv(3)); pair_iter(3,rk(5),rv(4))
    E(f's_add_u32 s{sC}, s{sC}, 1\n s_mov_b32 s{sT+1}, 0x4000\n s_cmp_eq_u32 s{sC}, 2\n s_cselect_b32 s{sT+1}, {hex((-49152)&0xffffffff)}, s{sT+1}\n s_cmp_eq_u32 s{sC}, 3\n s_cselect_b32 s{sT+1}, {hex((-65536)&0xffffffff)}, s{sT+1}')
    E(f'v_mov_b32 v{AKA}, v{AKN}\n v_mov_b32 v{AVA}, v{AVN}\n v_add_u32 v{AKN}, s{sT+1}, v{AKN}\n v_add_u32 v{AVN}, s{sT+1}, v{AVN}\n s_branch L_A_LOOP')
    LBL('L_A_RARE')
    E(f's_waitcnt lgkmcnt(0)\n s_cmp_gt_u32 s{sC}, 3\n s_cbranch_scc1 L_A_R4')
    E(f's_cmp_eq_u32 s{sC}, 0\n s_cbranch_scc0 L_A_R1'); lds_spin(C_K1,None,4,vZ,2,sleep=0)
    LBL('L_A_R1')
    E(f's_cmp_eq_u32 s{sC}, 2\n s_cbranch_scc0 L_A_R2'); lds_spin(C_K2,None,4,vZ,2,sleep=1)
    LBL('L_A_R2')
    E(f's_cmp_eq_u32 s{sC}, 3\n s_cbranch_scc1 L_A_R3'); aflag(False); E('s_branch L_A_RBACK')
    LBL('L_A_R3'); aflag(True); E('s_branch L_A_RBACK')
    LBL('L_A_R4')
    E(f's_cmp_eq_u32 s{sC}, 4\n s_cbranch_scc0 L_A_R6'); lds_add(C_MID,1,vZ,2); E('s_waitcnt lgkmcnt(0)\n s_branch L_A_RBACK')
    LBL('L_A_R6'); lds_spin(C_MID,None,8,vZ,2,sleep=1); E('s_branch L_A_RBACK')
    LBL('L_A_LAST')
    pair_iter(2,None,rv(3),last=1); pair_iter(3,None,None,last=2)
else:
    E(f's_and_b32 s{sT+5}, s{sWave}, 6\n s_cmp_eq_u32 s{sT+5}, 2\n s_cselect_b32 s{sT+5}, 0, 1')
    for j in range(32):
        if j in (2,6,10): E('s_waitcnt lgkmcnt(0)'); tag_wait(T_G+4*{2:2,6:3,10:1}[j],1,2)
        if j in (1,2,3,5): aflag(j==5)
        PJ=[int(x) for x in OPT.get('pj','16,29').split(',')]
        if PRIO=='step' and j in PJ: E(f's_setprio {1 if j==PJ[0] else 0}')
        if PRIO=='step4' and j in (6,16): E(f's_setprio {1 if j==6 else 0}')
        if OPT.get('jst') and j in (2,4,8,16,24): E('s_waitcnt lgkmcnt(0)'); cstamp('A',{2:1,4:2,8:3,16:7,24:10}[j],f'J{j}')
        if j==14: E('s_waitcnt lgkmcnt(0)'); lds_spin(C_K2,None,0x404,vZ,2,sleep=1)
        if j==16: lds_add(C_MID,1,vZ,2)
        if j==28: E('s_waitcnt lgkmcnt(0)'); lds_spin(C_MID,None,8,vZ,2,sleep=1)
        def lv(j=j):
            if j==15: E(f'v_add_u32 v{AVA}, 0x10000, v{AVA}')
            ldv(j+1)
        def lk(j=j):
            if j==14: E(f'v_add_u32 v{AKA}, 0x10000, v{AKA}')
            ldk(j+2)
        if j==31:
            C('has the partner of this wave (same queries, other keys) already left its sums ?  if so they arrive during the last tile')
            E(f'ds_read_b32 v127, v{AEX+2} offset:16\n ds_read_b32 v125, v{vZ} offset:{C_LOC-L_ST}')
            for q in range(2): E(f'ds_read_b128 {vr(128+12*q,4)}, v{AEX} offset:{2304*q}\n ds_read_b128 {vr(132+12*q,4)}, v{AEX} offset:{2304*q+1024}\n ds_read_b32 v{136+12*q}, v{AEX+1} offset:{2304*q+2048}')
        pair_iter(j,lk,lv,first=(j==0),last=(2 if j==31 else 1 if j==30 else 0),extra=(1 if j==16 else 0))
E('s_nop 1'); smf(OB,AV+8+4,SB+8,AIDX)
stamp('A',5,'A loop done'); cstamp('A',9,'loop done')
C('---- the first wave of a pair to finish leaves both partial sums in LDS and ends ; the second one finishes both heads')
E(f'v_readfirstlane_b32 s{sT+1}, v127\n v_readfirstlane_b32 s{sT+9}, v125\n s_cmp_eq_u32 s{sT+1}, 1\n s_cbranch_scc1 L_A_LATE')
E(f'v_mov_b32 v2, 1\n s_mov_b64 exec, 1\n ds_add_rtn_u32 v3, v{AEX+2}, v2\n s_mov_b64 exec, -1\n s_waitcnt lgkmcnt(0)\n v_readfirstlane_b32 s{sT+1}, v3\n s_cmp_eq_u32 s{sT+1}, 0\n s_cbranch_scc0 L_A_TIE\n s_nop 3')
for q,O in enumerate((OA,OB)): E(f'ds_write_b128 v{AEX}, {vr(O,4)} offset:{2304*q}\n ds_write_b128 v{AEX}, {vr(O+4,4)} offset:{2304*q+1024}\n ds_write_b32 v{AEX+1}, v{O+8} offset:{2304*q+2048}')
E(f's_mov_b64 exec, 1\n ds_write_b32 v{AEX+2}, v2 offset:16\n s_mov_b64 exec, -1\n s_waitcnt lgkmcnt(0)')
if OPT.get('dry','0')=='1': E('s_mov_b64 exec, 0\n s_branch L_A_LATE')
else: E('s_branch L_A_STD')
LBL('L_A_TIE')
E(f's_mov_b32 s{sCnt}, {SPIN_LIMIT}')
LBL('L_A_TI2')
E(f'ds_read_b32 v127, v{AEX+2} offset:16')
for q in range(2): E(f'ds_read_b128 {vr(128+12*q,4)}, v{AEX} offset:{2304*q}\n ds_read_b128 {vr(132+12*q,4)}, v{AEX} offset:{2304*q+1024}\n ds_read_b32 v{136+12*q}, v{AEX+1} offset:{2304*q+2048}')
E(f's_waitcnt lgkmcnt(0)\n v_readfirstlane_b32 s{sT+1}, v127\n s_cmp_eq_u32 s{sT+1}, 1\n s_cbranch_scc1 L_A_LATE\n s_sub_u32 s{sCnt}, s{sCnt}, 1\n s_cbranch_scc0 L_A_TI2')
LBL('L_A_LATE')
for r in range(9): E(f'v_add_f32 v{OA+r}, v{OA+r}, v{140+r}')
for r in range(9): E(f'v_add_f32 v{OB+r}, v{OB+r}, v{128+r}')
C('guard (both heads): row sum inside [2^-24, 2^60] and finite numerators in every lane, else redo with the true maximum')
E(f'v_add_f32 v2, |v{OA}|, |v{OA+1}|\n v_add_f32 v4, |v{OB}|, |v{OB+1}|')
for r in range(2,8): E(f'v_add_f32 v2, v2, |v{OA+r}|\n v_add_f32 v4, v4, |v{OB+r}|')
E(f's_mov_b32 s{sT+2}, 0x7f800000\n s_mov_b32 s{sT+3}, {hex(L_LO)}\n s_mov_b32 s{sT+4}, {hex(L_HI)}')
E(f'v_cmp_ngt_f32 {sr(sT,2)}, s{sT+2}, v2\n v_cmp_ngt_f32 s[82:83], s{sT+2}, v4')
E(f'v_cmp_nle_f32 vcc, s{sT+3}, v{OA+8}\n v_cmp_nle_f32 {sr(sT+6,2)}, s{sT+3}, v{OB+8}\n s_or_b64 {sr(sT,2)}, {sr(sT,2)}, vcc\n s_or_b64 s[82:83], s[82:83], {sr(sT+6,2)}')
E(f'v_cmp_nge_f32 vcc, s{sT+4}, v{OA+8}\n v_cmp_nge_f32 {sr(sT+6,2)}, s{sT+4}, v{OB+8}\n s_or_b64 {sr(sT,2)}, {sr(sT,2)}, vcc\n s_or_b64 s[82:83], s[82:83], {sr(sT+6,2)}')
E(f's_or_b64 vcc, {sr(sT,2)}, s[82:83]\n s_cbranch_scc1 L_FB_AX')
LBL('L_FB_AX_BACK')
E(f'v_rcp_f32 v2, v{OA+8}\n v_rcp_f32 v4, v{OB+8}\n s_xor_b32 s{sT+1}, s{sOA}, 0x400\n s_waitcnt vmcnt(0)\n v_mul_f32 v2, v2, v126\n v_mul_f32 v4, v4, v126')
for r in range(0,8,2): E(f'v_pk_mul_f32 {vr(OA+r,2)}, {vr(OA+r,2)}, v[2:3] op_sel_hi:[1,0]\n v_pk_mul_f32 {vr(OB+r,2)}, {vr(OB+r,2)}, v[4:5] op_sel_hi:[1,0]')
for r in range(4): cvt(152+r,OA+2*r,OA+2*r+1); cvt(156+r,OB+2*r,OB+2*r+1)
E(f'v_min_u32 v152, -2, v152\n v_min_u32 v156, -2, v156\n s_cmp_eq_u32 s{sT+9}, 0\n s_cbranch_scc1 L_A_FAR')
E(f'buffer_store_dwordx4 v[152:155], v6, {sr(sWS)}, s{sOA} offen nt\n buffer_store_dwordx4 v[156:159], v6, {sr(sWS)}, s{sT+1} offen nt\n s_branch L_A_STD')
LBL('L_A_FAR')
E(f'buffer_store_dwordx4 v[152:155], v6, {sr(sWS)}, s{sOA} offen sc1\n buffer_store_dwordx4 v[156:159], v6, {sr(sWS)}, s{sT+1} offen sc1')
def setupA(): E(f's_mov_b32 s{sT+2}, {hex(WS_KVA)}\n s_mov_b32 s{sT+3}, 64')
save=L; L=[]
LBL('L_FB_AX')
E(f's_cmp_lg_u64 {sr(sT,2)}, 0\n s_cbranch_scc1 L_FB_A0')
LBL('L_FB_AX2')
E('s_cmp_lg_u64 s[82:83], 0\n s_cbranch_scc1 L_FB_A1\n s_branch L_FB_AX_BACK')
TAIL.extend(L); L=save
fallback('L_FB_A0','L_FB_AX2',AQ0,OA,SA,AK,AV,AIDX,3,6,7,None,setupA)
fallback('L_FB_A1','L_FB_AX_BACK',AQ1,OB,SA,AK,AV,AIDX,3,6,7,None,setupA)
LBL('L_A_STD')
if DIAG: E('s_mov_b64 exec, -1')
stamp('A',6,'oA published')
stamp_flush(12,'A')
LBL('L_END')
E('s_endpgm')
L.append('L_CODE_END:')
L.extend(TAIL)
L.append('    s_endpgm\n.fill 1200, 4, 0xbf810000')

hdr=open('cdna_kernels/%s.s.ref'%NAME).read().split('; Override launch')[0]
txt=hdr
txt+=f'; @launch grid=(256,1,1) block=(768,1,1) lds={LDS_TOTAL}\n'
DOC="""
One workgroup per CU: WG = (64 positions pb, 4 heads hg); 8 "A" waves + 4 "B" waves, LDS 160 KB.
 head : waves 0-3 project q(A), q/k/v(B) (weights streamed by LDS-DMA through private rings, transposing LDS reads),
        waves 4-7 make this WG's 16-position piece of the shared K/V (and the gate), publish it, wait for all pieces.
 main : A waves - MQA over all 2048 keys (S^T = K Q^T, exp2 in place, P^T fed raw to a 2:4 sparse MFMA that picks the
        high halves = bf16 P; a row of ones in V^T gives the row sums).  B waves - window attention, then B out-projection.
 tail : o (already divided by the row sum and scaled by g or 1-g) is handed to the WGs of the same positions,
        B waves finish out = [g oA | (1-g) oB] [woA ; woB].
 softmax guard: exp2 runs on unshifted scores; every row's sum must lie in [2^-24, 2^60] and its numerators must be finite,
        otherwise that query tile is redone with the true row maximum (L_FB_*: max pass, then exp2(s - max)).
 hand-offs in d_ws carry a tag derived from the epoch word found at ws[0] (advanced once per launch), or overwrite a
        'not yet written' mark; all are write-through + acknowledged, except oA between WGs that report the same XCC id.
"""
for l in DOC.strip('\n').split('\n'): txt+='; '+l+'\n'
for n in () if not DIAG and not OPT.get('consts') else ('WS_KVA','WS_KVB','WS_OA','WS_OB','WS_STAMP','NSTAMP'): txt+=f'; CONST {n} = {hex(globals()[n])}\n'
for r,i,n in STN: txt+=f'; STAMPNAME {r} {i} {n}\n'
txt+=f'''.amdgcn_target "amdgcn-amd-amdhsa--gfx950"
.text
.globl {NAME}_kernel
.p2align 8
.type {NAME}_kernel,@function
{NAME}_kernel:
'''+'\n'.join(L)+f'''
.section .rodata,"a"
.p2align 6
.amdhsa_kernel {NAME}_kernel
  .amdhsa_next_free_vgpr 168
  .amdhsa_next_free_sgpr 102
  .amdhsa_accum_offset 168
  .amdhsa_group_segment_fixed_size 0
  .amdhsa_kernarg_size 96
  .amdhsa_user_sgpr_count 2
  .amdhsa_user_sgpr_kernarg_segment_ptr 1
  .amdhsa_system_sgpr_workgroup_id_x 1
.end_amdhsa_kernel
'''
open(OUT,'w').write(txt)
print('wrote',OUT,len(L),'lines')
```

```python
import sys, math, struct
NAME='gated_mix__grouped_kv_mqa__sliding_block__prompt'
DIAG = '--diag' in sys.argv
OUT = [a for a in sys.argv[1:] if not a.startswith('--')]
OUT = OUT[0] if OUT else 'cdna_kernels/%s.s'%NAME
OPT=dict(a.lstrip('-').split('=') for a in sys.argv[1:] if a.startswith('--') and '=' in a)
MAP=OPT.get('map','b'); ROT=OPT.get('rot','full'); PRIO=OPT.get('prio','step'); FLAG_IT=int(OPT.get('flagit','1')); PK=int(OPT.get('pk','7')); FORCE_K=int(OPT.get('forcek','7')); SENTK=int(OPT.get('sentk','14')); DENSE=OPT.get('dense','0')=='1'; ROLL=OPT.get('roll','0')=='1'; WT=OPT.get('wtouch','0')=='1'; KVK=int(OPT.get('kvk','13'))
def f2u(f): return struct.unpack('<I',struct.pack('<f',f))[0]

WS_EPOCH=0x0
WS_FKVA=0x1000
WS_FKVB=0x4000
WS_FOB =0xC000
WS_FOA =0x14000
WS_G   =0x1C000
WS_KVA =0x20000
WS_QB  =0x40000
WS_KVB =0x240000
WS_OA  =0x640000
WS_OB  =0x840000
WS_STAMP=0xA40000
NSTAMP=16
L_WQ=0; L_X=65536; L_ST=131072; L_CTL=L_ST+30720
L_GW=L_CTL; L_G=L_CTL+1024; L_C=L_CTL+1024+256
C_X=L_C+0
C_Q=L_C+4
C_K0=L_C+8; C_K1=L_C+12; C_K2=L_C+16; C_BP=L_C+20; C_MID=L_C+24; C_WO=L_C+28; C_WD=L_C+32; C_QR=L_C+36; C_SN=L_C+40; C_LOC=L_C+44; T_PT=L_C+256; T_X=L_C+272; T_PL=L_C+304; T_FL=L_C+308; T_G=L_C+320; T_X0=L_C+336; T_K0=L_C+352; T_Q1=L_C+356; T_H=L_C+368; T_TAG=L_C+372; C_PR=L_C+384; T_PR=L_C+400; T_Q=L_C+416
L_EX=L_ST
LDS_TOTAL=163840
SPIN_LIMIT=400000
CSCALE=f2u(0.25*math.log2(math.e))
NEGBIG=f2u(-1e9)
L_LO=f2u(2.0**-24); L_HI=f2u(2.0**60)

sX=28; sWQ=32; sWKV=36; sWB=40; sWOA=44; sWOB=48; sG=52; sOUT=56; sWS=60; sDBG=64
sWave=68; sPb=69; sHg=70; sTag=71
sT=72
sCnt=84; sB=85
sXcc=65
sVM=86
sST=88
vZ=1
L=[]
def E(s):
    for ln in s.split('\n'):
        if ln.strip(): L.append('    '+ln.strip())
def LBL(s): L.append(s+':')
def C(s): L.append('    ; '+s)
_uid=[0]
def uid(p):
    _uid[0]+=1; return f'{p}_{_uid[0]}'
def vr(a,n): return f'v[{a}:{a+n-1}]'
def sr(a,n=4): return f's[{a}:{a+n-1}]'
def srd(dst,ptr,nbytes):
    E(f's_mov_b32 s{dst}, s{ptr}\n s_mov_b32 s{dst+1}, s{ptr+1}\n s_mov_b32 s{dst+2}, {hex(nbytes)}\n s_mov_b32 s{dst+3}, 0x20000')
STN=[]
def stamp(role,i,name):
    if OPT.get('acc') and role=='B' and i==10: return
    if OPT.get('jst') and role=='A' and i in (1,2,3,7): return
    if OPT.get('bst') and role=='B' and i in (6,7,8,9) and not name.startswith('arrive'): return
    if not DIAG: return
    STN.append((role,i,name))
    E(f's_memrealtime s[100:101]\n s_waitcnt lgkmcnt(0)\n s_mov_b32 s{sST+i}, s100')
ECHO=OPT.get('echo')
def echo_mark(name):
    if ECHO==name or name=='start' and ECHO:
        r=98 if name=='start' else 99
        E(f's_memrealtime s[100:101]\n s_waitcnt lgkmcnt(0)\n s_mov_b32 s{r}, s100')
def echo_end():
    if not ECHO: return
    E('s_waitcnt vmcnt(0)'); echo_mark('end')
    E('s_memrealtime s[100:101]\n s_waitcnt lgkmcnt(0)\n s_sub_u32 s99, s99, s98\n s_mul_i32 s99, s99, '+OPT.get('amp','1')+'\n s_add_u32 s99, s99, s100')
    LBL('L_ECHO')
    E('s_memrealtime s[100:101]\n s_waitcnt lgkmcnt(0)\n s_sub_u32 s100, s100, s99\n s_cmp_lt_i32 s100, 0\n s_cbranch_scc1 L_ECHO')
def cstamp(role,i,name):
    if OPT.get('jst') and i in (10,11) and not name.startswith('J'): return
    if not DIAG: return
    STN.append((role,i,'CYC '+name))
    E(f's_memtime s[100:101]\n s_waitcnt lgkmcnt(0)\n s_mov_b32 s{sST+i}, s100')
def tacc(role,i,name,code):
    if not (DIAG and OPT.get('acc')): E(code); return
    if (role,i,'ACC '+name) not in STN: STN.append((role,i,'ACC '+name))
    E(f's_memtime s[100:101]\n s_waitcnt lgkmcnt(0)\n s_sub_u32 s{sST+i}, s{sST+i}, s100')
    E(code)
    E(f's_memtime s[100:101]\n s_waitcnt lgkmcnt(0)\n s_add_u32 s{sST+i}, s{sST+i}, s100')
def stamp_flush(nmax,role='B'):
    if not DIAG: return
    if OPT.get('dbg'):
        m={'A':[(0,1),(2,2),(7,3),(3,4),(1,5),(4,6),(5,7),(6,8)],'B':[(4,9),(6,10),(7,11),(9,12),(10,13),(11,14)]}[role]
        sk=uid('nd')
        srd(sDBG,24,256)
        E(f's_bfe_u32 s{sT}, s2, 0x30003\n s_cmp_eq_u32 s{sT}, 0\n s_cbranch_scc0 {sk}\n v_mov_b32 v2, 0\n s_not_b32 s{sT}, s{sST}\n v_writelane_b32 v2, s{sT}, 0')
        for i,sl in m: E(f'v_writelane_b32 v2, s{sST+i}, {sl}')
        E(f'v_lshlrev_b32 v3, 2, v0\n s_mov_b64 exec, 0xffff\n buffer_atomic_umax v2, v3, {sr(sDBG)}, 0 offen sc1\n s_mov_b64 exec, -1')
        LBL(sk)
        return
    if OPT.get('hwid'): E(f's_getreg_b32 s{sST+11}, hwreg(HW_REG_HW_ID)\n s_getreg_b32 s{sST+10}, hwreg(HW_REG_XCC_ID)')
    E('v_mov_b32 v2, 0')
    for i in range(nmax): E(f'v_writelane_b32 v2, s{sST+i}, {i}')
    E(f's_mul_i32 s{sT}, s2, 12\n s_add_u32 s{sT}, s{sT}, s{sWave}\n s_lshl_b32 s{sT}, s{sT}, 6\n s_add_u32 s{sT}, s{sT}, {hex(WS_STAMP)}')
    E(f'v_lshlrev_b32 v3, 2, v0\n s_mov_b64 exec, 0xffff\n buffer_store_dword v2, v3, {sr(sWS)}, s{sT} offen\n s_mov_b64 exec, -1')

def lds_add(off,val,vz,vt):
    E(f'v_mov_b32 v{vt}, {val}\n s_mov_b64 exec, 1\n ds_add_u32 v{vz}, v{vt} offset:{off-L_ST}\n s_mov_b64 exec, -1')
def lds_spin(off,mask,val,vz,vt,sleep=1):
    a=uid('spin'); d=uid('spind')
    E(f's_mov_b32 s{sCnt}, {SPIN_LIMIT}')
    LBL(a)
    E(f'ds_read_b32 v{vt}, v{vz} offset:{off-L_ST}\n s_waitcnt lgkmcnt(0)\n v_readfirstlane_b32 s{sT}, v{vt}')
    if mask is not None: E(f's_and_b32 s{sT}, s{sT}, {hex(mask)}')
    E(f's_cmp_eq_u32 s{sT}, {hex(val)}\n s_cbranch_scc1 {d}\n s_sub_u32 s{sCnt}, s{sCnt}, 1\n s_cbranch_scc1 {d}')
    if sleep: E(f's_sleep {sleep}')
    E(f's_branch {a}')
    LBL(d)
def tag_set(off,sidx,vt):
    if sidx is None: E(f'v_mov_b32 v{vt}, {off}')
    else: E(f's_lshl_b32 s{sT}, s{sidx}, 2\n s_add_u32 s{sT}, s{sT}, {off}\n v_mov_b32 v{vt}, s{sT}')
    E(f'v_mov_b32 v{vt+1}, 1\n s_mov_b64 exec, 1\n ds_write_b32 v{vt}, v{vt+1}\n s_mov_b64 exec, -1')
def tag_wait(off,n,vt,sleep=0,once=None):
    a=uid('tw'); d=uid('twd')
    E(f'v_and_b32 v{vt}, {n-1}, v0\n v_lshlrev_b32 v{vt}, 2, v{vt}\n v_add_u32 v{vt}, {off}, v{vt}')
    if once:
        E(f'ds_read_b32 v{vt+1}, v{vt}\n s_waitcnt lgkmcnt(0)\n v_cmp_ne_u32 vcc, 1, v{vt+1}\n s_cbranch_vccz {once}')
        return
    E(f's_mov_b32 s{sCnt}, {SPIN_LIMIT}')
    LBL(a)
    E(f'ds_read_b32 v{vt+1}, v{vt}\n s_waitcnt lgkmcnt(0)\n v_cmp_ne_u32 vcc, 1, v{vt+1}\n s_cbranch_vccz {d}\n s_sub_u32 s{sCnt}, s{sCnt}, 1\n s_cbranch_scc1 {d}')
    if sleep: E(f's_sleep {sleep}')
    E(f's_branch {a}')
    LBL(d)
def tag_get(vt):
    E(f'ds_read_b32 v{vt}, v{vZ} offset:{T_TAG-L_ST}\n s_waitcnt lgkmcnt(0)\n v_readfirstlane_b32 s{sTag}, v{vt}')
def poll(vaddr,n,vt,sleep=1):
    a=uid('poll'); d=uid('polld')
    E(f's_mov_b32 s{sCnt}, {SPIN_LIMIT}')
    LBL(a)
    op={1:'buffer_load_dword',2:'buffer_load_dwordx2',3:'buffer_load_dwordx3',4:'buffer_load_dwordx4'}[n]
    E(f'{op} {vr(vt,n) if n>1 else "v%d"%vt}, v{vaddr}, {sr(sWS)}, 0 offen sc1\n s_waitcnt vmcnt(0)')
    for i in range(n): E(f'v_xor_b32 v{vt+i}, s{sTag}, v{vt+i}')
    if n==2: E(f'v_or_b32 v{vt}, v{vt}, v{vt+1}')
    if n>=3: E(f'v_or3_b32 v{vt}, v{vt}, v{vt+1}, v{vt+2}')
    if n==4: E(f'v_or_b32 v{vt}, v{vt}, v{vt+3}')
    E(f'v_cmp_ne_u32 vcc, 0, v{vt}\n s_cbranch_vccz {d}\n s_sub_u32 s{sCnt}, s{sCnt}, 1\n s_cbranch_scc1 {d}')
    if sleep: E(f's_sleep {sleep}')
    E(f's_branch {a}')
    LBL(d)
def flag_store(soff_reg,vt):
    E(f'v_mov_b32 v{vt}, s{sTag}\n s_mov_b64 exec, 1\n buffer_store_dword v{vt}, off, {sr(sWS)}, s{soff_reg} sc1\n s_mov_b64 exec, -1')
def mfma(d,a,b,c=None):
    cc = vr(d,16) if c is None else (c if isinstance(c,str) else vr(c,16))
    E(f'v_mfma_f32_32x32x16_bf16 {vr(d,16)}, {vr(a,4)}, {vr(b,4)}, {cc}')
def smf(o,v,s,idx): E(f'v_smfmac_f32_32x32x32_bf16 {vr(o,16)}, {vr(v,4)}, {vr(s,8)}, v{idx}')
def vexp(r): E(f'v_exp_f32 v{r}, v{r}')
def cvt(d,a,b): E(f'v_cvt_pk_bf16_f32 v{d}, v{a}, v{b}')
def set_vpad(regs,vt):
    E(f'v_and_b32 v{vt}, 27, v0\n v_cmp_eq_u32 vcc, 16, v{vt}\n v_mov_b32 v{vt}, 0x3f803f80\n s_nop 0\n v_cndmask_b32 v{regs[0]}, 0, v{vt}, vcc')
    for r in regs[1:]: E(f'v_mov_b32 v{r}, v{regs[0]}')
def xaddr(base,t_imm,vt):
    E(f'v_and_b32 v{vt}, 15, v0\n v_lshrrev_b32 v{base}, 5, v0\n v_xor_b32 v{base}, v{base}, v{vt}\n v_lshlrev_b32 v{base}, 4, v{base}')
    E(f'v_and_b32 v{vt}, 31, v0\n v_lshl_add_u32 v{base}, v{vt}, 10, v{base}\n v_add_u32 v{base}, {t_imm}, v{base}')
    for b in range(1,8): E(f'v_xor_b32 v{base+b}, {b<<5}, v{base}')
def traddr128(dst,vt,vt2,rowsel,colbase):
    E(f'v_lshrrev_b32 v{vt}, 5, v0\n v_lshlrev_b32 v{vt}, {rowsel}, v{vt}\n v_bfe_u32 v{vt2}, v0, 2, 2\n v_add_u32 v{vt}, v{vt}, v{vt2}\n v_lshlrev_b32 v{dst}, 7, v{vt}')
    E(f'v_bfe_u32 v{vt}, v0, 4, 1\n v_lshlrev_b32 v{vt}, 1, v{vt}\n v_bfe_u32 v{vt2}, v0, 1, 1\n v_add3_u32 v{vt}, v{vt}, v{vt2}, {colbase}')
    E(f'v_bfe_u32 v{vt2}, v0, 3, 1\n v_lshlrev_b32 v{vt2}, 2, v{vt2}\n v_xor_b32 v{vt}, v{vt}, v{vt2}\n v_lshl_add_u32 v{dst}, v{vt}, 4, v{dst}')
    E(f'v_and_b32 v{vt}, 1, v0\n v_lshl_add_u32 v{dst}, v{vt}, 3, v{dst}')
def dma128_voff(dst,vt,vt2,rowstride_sreg_or_shift,colbytes):
    E(f'v_lshrrev_b32 v{vt}, 3, v0')
    if isinstance(rowstride_sreg_or_shift,int): E(f'v_lshlrev_b32 v{dst}, {rowstride_sreg_or_shift}, v{vt}')
    else: E(f'v_mul_u32_u24 v{dst}, {rowstride_sreg_or_shift}, v{vt}')
    E(f'v_bfe_u32 v{vt}, v0, 4, 1\n v_lshlrev_b32 v{vt}, 2, v{vt}\n v_and_b32 v{vt2}, 7, v0\n v_xor_b32 v{vt}, v{vt}, v{vt2}\n v_lshl_add_u32 v{dst}, v{vt}, 4, v{dst}\n v_add_u32 v{dst}, {colbytes}, v{dst}')
def finalize(O,dst,vt,lbl_fb,lbl_back,vg):
    C('guard: row sum inside [2^-24, 2^60] and finite numerators in every lane, else redo with the true maximum')
    E(f'v_add_f32 v{vt}, |v{O}|, |v{O+1}|')
    for r in range(2,8): E(f'v_add_f32 v{vt}, v{vt}, |v{O+r}|')
    E(f'v_mov_b32 v{vt+1}, 0x7f800000\n v_cmp_nlt_f32 {sr(sT,2)}, v{vt}, v{vt+1}')
    E(f'v_cmp_nle_f32 vcc, {hex(L_LO)}, v{O+8}\n s_or_b64 {sr(sT,2)}, {sr(sT,2)}, vcc')
    E(f'v_cmp_nge_f32 vcc, {hex(L_HI)}, v{O+8}\n s_or_b64 {sr(sT,2)}, {sr(sT,2)}, vcc\n s_cbranch_scc1 {lbl_fb}')
    LBL(lbl_back)
    E(f'v_rcp_f32 v{vt}, v{O+8}\n s_nop 0\n v_mul_f32 v{vt}, v{vt}, v{vg}')
    for r in range(0,8,2): E(f'v_pk_mul_f32 {vr(O+r,2)}, {vr(O+r,2)}, {vr(vt,2)} op_sel_hi:[1,0]')
    for r in range(4): cvt(dst+r,O+2*r,O+2*r+1)
    E(f'v_min_u32 v{dst}, -2, v{dst}')

TAIL=[]
RETRY=[]
def fallback(lbl,back,Q,O,S,K,V,IDX,vM,vK,vV,ntile,soff_setup,first_mask=None,last_mask=None,first_cond=None):
    global L
    save=L; L=[]
    LBL(lbl)
    C('exact softmax for one query tile: pass 1 row maxima, pass 2 exp2(s - max) ; K/V fragments from d_ws')
    soff_setup()
    E(f'v_mov_b32 v{vM}, 0xff800000')
    for p in (0,1):
        lp=uid('fbl')
        if p==1:
            E(f'v_mov_b32 v{S}, v{vM}\n s_nop 1\n v_permlane32_swap_b32 v{S}, v{vM}\n s_nop 1\n v_max_f32 v{vM}, v{vM}, v{S}')
            for r in range(16): E(f'v_mov_b32 v{O+r}, 0')
        E(f's_mov_b32 s{sT+5}, s{sT+2}\n s_mov_b32 s{sT+6}, 0')
        LBL(lp)
        E(f'buffer_load_dwordx4 {vr(K,4)}, v{vK}, {sr(sWS)}, s{sT+5} offen sc1')
        if p==1:
            E(f's_mov_b64 exec, {sr(sVM,2)}\n buffer_load_dwordx4 {vr(V,4)}, v{vV}, {sr(sWS)}, s{sT+5} offen offset:1024 sc1\n buffer_load_dwordx4 {vr(V+4,4)}, v{vV}, {sr(sWS)}, s{sT+5} offen offset:1536 sc1\n s_mov_b64 exec, -1')
        E('s_waitcnt vmcnt(0)')
        if first_mask is None:
            mfma(S,K,Q,'0')
        else:
            a=uid('fbm'); b=uid('fbm'); j=uid('fbm')
            E(f's_add_u32 s{sT+7}, s{sT+6}, 1\n s_cmp_eq_u32 s{sT+7}, s{sT+3}\n s_cbranch_scc1 {a}')
            E(f's_cmp_lt_u32 s{sT+6}, s{sT+4}\n s_cbranch_scc1 {b}')
            mfma(S,K,Q,'0'); E(f's_branch {j}')
            LBL(a); mfma(S,K,Q,last_mask); E(f's_branch {j}')
            LBL(b); mfma(S,K,Q,first_mask)
            LBL(j)
        E('s_nop 15')
        if p==0:
            for r in range(0,16,2): E(f'v_max3_f32 v{vM}, v{S+r}, v{S+r+1}, v{vM}')
        else:
            for r in range(16): E(f'v_sub_f32 v{S+r}, v{S+r}, v{vM}')
            for r in range(16): vexp(S+r)
            E('s_nop 1'); smf(O,V,S,IDX); smf(O,V+4,S+8,IDX)
        E(f's_add_u32 s{sT+5}, s{sT+5}, 2048\n s_add_u32 s{sT+6}, s{sT+6}, 1\n s_cmp_lt_u32 s{sT+6}, s{sT+3}\n s_cbranch_scc1 {lp}')
    E(f's_nop 15\n s_branch {back}')
    TAIL.extend(L); L=save

E('s_cmp_ge_u32 s2, 256\n s_cbranch_scc1 L_END')
if ECHO=='karg': E('s_memrealtime s[100:101]\n s_waitcnt lgkmcnt(0)\n s_mov_b32 s97, s100')
E('s_load_dwordx16 s[4:19], s[0:1], 0\n s_load_dwordx8 s[20:27], s[0:1], 64')
E(f'v_lshrrev_b32 v1, 6, v0\n v_and_b32 v0, 63, v0\n v_readfirstlane_b32 s{sWave}, v1')
if MAP=='b' and OPT.get('alt'):
    E(f's_and_b32 s{sT}, s2, 7\n s_lshr_b32 s{sT+2}, s2, 6\n s_lshl_b32 s{sPb}, s{sT}, 2\n s_or_b32 s{sPb}, s{sPb}, s{sT+2}\n s_bfe_u32 s{sHg}, s2, 0x30003')
elif MAP=='b':
    E(f's_add_u32 s{sT}, s2, {OPT.get("sh","1")}\n s_and_b32 s{sT}, s{sT}, 7\n s_lshr_b32 s{sT+1}, s2, 3\n s_and_b32 s{sT+2}, s{sT+1}, 3\n s_lshl_b32 s{sPb}, s{sT}, 2\n s_or_b32 s{sPb}, s{sPb}, s{sT+2}\n s_lshr_b32 s{sHg}, s{sT+1}, 2')
else:
    E(f's_bfe_u32 s{sPb}, s2, 0x20001\n s_lshl_b32 s{sPb}, s{sPb}, 3\n s_bfe_u32 s{sT}, s2, 0x30003\n s_or_b32 s{sPb}, s{sPb}, s{sT}\n s_and_b32 s{sHg}, s2, 1\n s_lshl_b32 s{sHg}, s{sHg}, 2\n s_lshr_b32 s{sT}, s2, 6\n s_or_b32 s{sHg}, s{sHg}, s{sT}')
E(f's_mov_b32 s{sVM}, 0xffff\n s_mov_b32 s{sVM+1}, 0xffff')
if DIAG:
    for i in range(12): E(f's_mov_b32 s{sST+i}, 0')
def codepf():
  if OPT.get('cpf','1')=='1':
      C('---- pull this WG\'s share of the kernel\'s own instructions into L2 (later instruction fetches then miss only the I-cache)')
      E(f's_cmp_eq_u32 s{sWave}, 11\n s_cbranch_scc0 L_B_NCP\n s_getpc_b64 s[{sT}:{sT+1}]')
      LBL('L_B_PC')
      E(f's_lshr_b32 s{sT+2}, s2, 3\n s_mul_i32 s{sT+2}, s{sT+2}, (L_CODE_END-L_B_PC+4095)/4096*128\n s_add_u32 s{sT}, s{sT}, s{sT+2}\n s_addc_u32 s{sT+1}, s{sT+1}, 0')
      E(f'v_lshlrev_b32 v2, 7, v0\n v_mov_b32 v3, s{sT+1}\n v_add_co_u32 v2, vcc, s{sT}, v2\n s_nop 1\n v_addc_co_u32 v3, vcc, 0, v3, vcc\n s_lshl_b64 exec, 1, (L_CODE_END-L_B_PC+4095)/4096\n s_sub_u32 exec_lo, exec_lo, 1\n global_load_dword v63, v[2:3], off\n s_mov_b64 exec, -1')
      LBL('L_B_NCP')
if OPT.get('cpe','0')=='1': codepf()
C('clear the LDS counters and flags while the kernel arguments arrive')
E(f'v_lshlrev_b32 v2, 3, v0\n v_add_u32 v2, {L_C}, v2\n v_mov_b32 v4, 0\n v_mov_b32 v5, 0\n ds_write_b64 v2, v[4:5]')
E('s_waitcnt lgkmcnt(0)\n s_barrier')
stamp('A',0,'start'); stamp('B',0,'start'); echo_mark('start')
if ECHO=='karg': E('s_sub_u32 s99, s98, s97\n s_mul_i32 s99, s99, 10\n s_add_u32 s99, s99, s98')
srd(sX,4,2048*1024); srd(sWS,26,0x10000000)
E(f's_cmp_lt_u32 s{sWave}, 8\n s_cbranch_scc1 L_A')


KVPOS=[L_ST,32768,49152,16384,65536,81920,98304,114688]
L_PART=L_ST+24576
L_QA=0; L_QB=8192; L_WO=0; L_FX=65536
sOut=66; sOb=67; sPass=64
sRot=sT+11
def mktag(): E(f's_mul_i32 s{sTag}, s{sTag}, 0x9E3779B1\n s_add_u32 s{sTag}, s{sTag}, 0x7F4A7C15')
FT=OPT.get('ft','0')
def mkrot():
    if FT!='0' and not OPT.get('ftrot'): E(f's_mov_b32 s{sRot}, 0'); return
    if MAP=='b': E(f's_and_b32 s{sRot}, s{sPb}, 3\n s_lshl_b32 s{sRot}, s{sRot}, 1\n s_add_u32 s{sRot}, s{sRot}, s{sHg}')
    else: E(f's_lshl_b32 s{sRot}, s{sHg}, 1\n s_add_u32 s{sRot}, s{sRot}, s{sPb}')
def touch(srd_,soff,n,vaddr,vd,sc1=False):
    for i in range(n):
        if i: E(f's_add_u32 s{soff}, s{soff}, 8192')
        E(f'buffer_load_dword v{vd}, v{vaddr}, {sr(srd_)}, s{soff} offen'+(' sc1' if sc1 else ''))
E(f's_setprio {2 if OPT.get("bp2") else 3}\n s_sub_u32 s{sB}, s{sWave}, 8')
if OPT.get('cpe','0')=='0': codepf()
C('---- x tile -> LDS as 8 blocks of [64 rows][64 k], block order rotated per WG ; wave b brings blocks b and b+4')
E('v_lshrrev_b32 v17, 3, v0\n v_lshlrev_b32 v17, 10, v17\n v_lshrrev_b32 v2, 4, v0\n v_and_b32 v3, 7, v0\n v_xor_b32 v2, v2, v3\n v_lshl_add_u32 v17, v2, 4, v17\n v_xor_b32 v18, 64, v17')
mkrot()
E(f's_lshl_b32 s{sT+7}, s{sPb}, 16\n s_lshl_b32 s{sT+6}, s{sB}, 13')
VQ=[]
def vwait(tag,extra=''):
    if tag not in VQ:
        if extra: E('s_waitcnt'+extra)
        return
    i=max(n for n,t in enumerate(VQ) if t==tag)
    n=len(VQ)-1-i; del VQ[:i+1]
    E(f's_waitcnt vmcnt({n})'+extra)
XD=OPT.get('xd','1')=='1'
def xblock(expr_add,ldsoff,rows):
    E(f's_add_u32 s{sT+1}, s{sRot}, {expr_add}\n s_and_b32 s{sT+1}, s{sT+1}, 7\n s_lshl_b32 s{sT+1}, s{sT+1}, 7\n s_add_u32 s{sT+1}, s{sT+1}, s{sT+7}')
if XD:
    E(f's_and_b32 s{sT+1}, s{sRot}, 7\n s_lshl_b32 s{sT+1}, s{sT+1}, 7\n s_add_u32 s{sT+1}, s{sT+1}, s{sT+7}\n s_lshl_b32 s{sT+2}, s{sB}, 14\n s_add_u32 s{sT+1}, s{sT+1}, s{sT+2}\n s_lshl_b32 s{sT+2}, s{sB}, 11\n s_add_u32 m0, s{sT+2}, 65536\n s_nop 0')
    E(f'buffer_load_dwordx4 v17, {sr(sX)}, s{sT+1} offen lds\n s_add_u32 m0, s{sT+2}, {65536+1024}\n s_add_u32 s{sT+1}, s{sT+1}, 8192\n buffer_load_dwordx4 v18, {sr(sX)}, s{sT+1} offen lds')
def wtouch(chunk_expr):
    E(f'{chunk_expr}\n s_lshl_b32 s{sT+1}, s{sT+1}, 5\n s_lshr_b32 s{sT+2}, s2, 3\n s_add_u32 s{sT+1}, s{sT+1}, s{sT+2}\n s_lshl_b32 s{sT+2}, s{sT+1}, 11\n s_mul_i32 s{sT+1}, s{sT+1}, 6144')
    E(f's_mov_b64 exec, 0xffff\n buffer_load_dword v19, v21, {sr(sWQ)}, s{sT+2} offen\n s_mov_b32 exec_lo, -1\n s_mov_b32 exec_hi, 0xffff\n buffer_load_dword v20, v21, {sr(sWB)}, s{sT+1} offen\n s_mov_b64 exec, -1')
NT=0
if FT!='0':
    srd(sWQ,6,512*1024); srd(sWB,16,512*3072)
    E('v_lshlrev_b32 v21, 7, v0')
    wtouch(f's_mov_b32 s{sT+1}, s{sB}'); NT=2
    if FT=='2': wtouch(f's_add_u32 s{sT+1}, s{sB}, 4'); NT=4
def c3touch():
    C('lines with address bits 9:7 = 3 miss more slowly: every WG asks early for a share of that weight column block')
    E(f's_cmp_eq_u32 s{sB}, 0\n s_cselect_b32 s{sWB}, s6, s16\n s_cselect_b32 s{sWB+1}, s7, s17\n s_mov_b32 s{sWB+2}, {512*3072}\n s_cselect_b32 s{sWB+2}, {512*1024}, s{sWB+2}\n s_mov_b32 s{sWB+3}, 0x20000')
    E(f's_movk_i32 s{sT+3}, 3072\n s_cselect_b32 s{sT+3}, 0x400, s{sT+3}\n s_max_u32 s{sT+1}, s{sB}, 1\n s_sub_u32 s{sT+1}, s{sT+1}, 1\n s_lshl_b32 s{sT+1}, s{sT+1}, 10\n s_lshr_b32 s{sT+2}, s2, 3\n s_lshl_b32 s{sT+2}, s{sT+2}, 4\n s_mul_i32 s{sT+2}, s{sT+2}, s{sT+3}\n s_add_u32 s{sT+1}, s{sT+1}, s{sT+2}')
    E(f'v_mul_u32_u24 v2, s{sT+3}, v0\n s_mov_b64 exec, 0xffff\n buffer_load_dword v19, v2, {sr(sWB)}, s{sT+1} offen offset:384\n s_mov_b64 exec, -1')
C3=OPT.get('c3','2') if MAP=='b' and FT=='0' else '0'
if C3=='1': c3touch()
def xrest():
  for hb in range(2):
    sk=uid('xs')
    if XD and hb==0: E(f's_cmp_eq_u32 s{sB}, 0\n s_cbranch_scc1 {sk}')
    E(f's_add_u32 s{sT+1}, s{sRot}, s{sB}\n s_add_u32 s{sT+1}, s{sT+1}, {4*hb}\n s_and_b32 s{sT+1}, s{sT+1}, 7\n s_lshl_b32 s{sT+1}, s{sT+1}, 7\n s_add_u32 s{sT+1}, s{sT+1}, s{sT+7}')
    for n in range(8):
        E(f's_add_u32 m0, s{sT+6}, {65536+32768*hb+1024*n}')
        E(f's_add_u32 s{sT+1}, s{sT+1}, 8192' if n else 's_nop 0')
        E(f'buffer_load_dwordx4 v{17+(n&1)}, {sr(sX)}, s{sT+1} offen lds')
    if XD and hb==0: LBL(sk)
if not XD: xrest()
MU=128; MD=144; BQ=16; BK=24; BV=36; BS=64; BO=96; BIDX=60
C('---- constants for the later phases (idle time)')
E(f'v_mov_b32 v{vZ}, {L_ST}\n v_lshlrev_b32 v160, 4, v0\n v_lshlrev_b32 v163, 7, v0')
E('v_lshrrev_b32 v161, 5, v0\n v_lshlrev_b32 v161, 8, v161\n v_and_b32 v2, 15, v0\n v_lshl_add_u32 v161, v2, 4, v161')
srd(sWOA,12,512*1024); srd(sWOB,18,512*1024)
E(f'v_and_b32 v4, 31, v0\n v_lshrrev_b32 v5, 5, v0\n v_lshlrev_b32 v5, 2, v5\n v_sub_u32 v4, v4, v5\n s_mov_b32 s{sT}, {hex(NEGBIG)}')
for r in range(16):
    E(f'v_subrev_u32 v5, {8*(r//4)+r%4}, v4\n v_ashrrev_i32 v5, 31, v5\n v_and_b32 v{MD+r}, s{sT}, v5\n v_xor_b32 v{MU+r}, s{sT}, v{MD+r}')
set_vpad(list(range(BV,BV+24)),2); E(f'v_mov_b32 v{BIDX}, 0xdddddddd')
for r in range(32): E(f'v_mov_b32 v{BO+r}, 0')
E(f'v_min_u32 v2, 4, v0\n s_sub_i32 s{sT}, s{sPb}, 4\n v_add_u32 v2, s{sT}, v2\n v_max_i32 v2, 0, v2\n s_lshl_b32 s{sT}, s{sHg}, 5\n v_add_u32 v2, s{sT}, v2\n v_lshlrev_b32 v2, 7, v2\n v_add_u32 v162, {hex(WS_FKVB+8)}, v2')
E(f'v_and_b32 v2, 7, v0\n v_lshlrev_b32 v2, 5, v2\n v_add_u32 v2, s{sPb}, v2\n v_lshlrev_b32 v2, 7, v2\n v_add_u32 v166, {hex(WS_FKVB+16)}, v2')
sKh=sT+9; sTt=sT+10
E(f's_lshr_b32 s{sKh}, s{sB}, 1\n s_and_b32 s{sTt}, s{sB}, 1\n s_lshl_b32 s{sT+2}, s{sHg}, 7')
dma128_voff(10,2,3,10,f's{sT+2}')
E(f's_lshl_b32 s{sT+1}, s{sKh}, 2'); traddr128(11,2,3,2,f's{sT+1}')
E(f's_lshl_b32 s{sT+1}, s{sKh}, 15\n s_add_u32 s{sT+1}, s{sT+1}, {L_WO}\n v_add_u32 v11, s{sT+1}, v11\n v_xor_b32 v9, 64, v11')
E(f's_lshl_b32 s{sOut}, s{sPb}, 1\n s_add_u32 s{sOut}, s{sOut}, s{sTt}\n s_lshl_b32 s{sOut}, s{sOut}, 15\n s_lshl_b32 s{sT}, s{sKh}, 14\n s_add_u32 s{sOb}, s{sOut}, s{sT}\n s_add_u32 s{sOb}, s{sOb}, {hex(WS_OB)}')
E(f's_lshl_b32 s{sT}, s{sHg}, 7\n s_add_u32 s{sOut}, s{sOut}, s{sT}\n s_lshl_b32 s{sT}, s{sKh}, 6\n s_add_u32 s{sOut}, s{sOut}, s{sT}')
E('v_and_b32 v8, 31, v0\n v_lshlrev_b32 v167, 10, v8\n v_lshrrev_b32 v3, 5, v0\n v_lshl_add_u32 v167, v3, 4, v167\n v_lshlrev_b32 v8, 2, v8')
srd(sOUT,22,2048*1024)
E(f's_lshl_b32 s{sT}, s{sB}, 12\n s_add_u32 s{sT}, s{sT}, {L_FX}\n v_add_u32 v164, s{sT}, v160\n v_xor_b32 v165, 0x2000, v164\n s_mov_b32 s{sPass}, 0')
if XD:
    E(f's_waitcnt vmcnt({NT})' if NT else ('s_waitcnt vmcnt(1)' if C3=='1' else 's_waitcnt vmcnt(0)')); tag_set(T_X0,sB,2)
    if C3=='2': c3touch()
    if FT=='1': wtouch(f's_add_u32 s{sT+1}, s{sB}, 4')
    xrest()
E('s_waitcnt vmcnt(8)')
tag_set(T_X,sB,2)
stamp('B',1,'x landed'); echo_mark('xl')
E('s_waitcnt vmcnt(0)')
tag_set(T_X+16,sB,2)
if ECHO in ('k0','q1','fl','pt'):
    tag_wait({'k0':T_K0,'q1':T_Q1,'fl':T_FL,'pt':T_PT}[ECHO],4 if ECHO=='pt' else 1,2,sleep=2); echo_mark(ECHO)
tag_wait(T_G,4,2,sleep=4)
tag_get(2)
stamp('B',5,'BQ'); echo_mark('bq')
E(f's_setprio {OPT.get("bpr","3")}')
def kvdma(c):
    E(f's_lshr_b32 s{sT+1}, s2, 3\n s_add_u32 s{sT+1}, s{sT+1}, {c}\n s_and_b32 s{sT+1}, s{sT+1}, 3\n s_lshl_b32 s{sT+1}, s{sT+1}, 2\n s_add_u32 s{sT+1}, s{sT+1}, s{sB}\n s_lshl_b32 s{sT+1}, s{sT+1}, 12')
    E(f's_lshl_b32 s{sT+2}, s{sB}, 12\n s_add_u32 m0, s{sT+2}, {KVPOS[c]}\n s_add_u32 s{sT+1}, s{sT+1}, {hex(WS_KVA+(65536 if c>=4 else 0))}')
    for i in range(4): E(f'buffer_load_dwordx4 v160, {sr(sWS)}, s{sT+1} offen offset:{1024*i} sc1 lds')
    VQ.extend([f'kv{c}']*4)
E(f's_lshl_b32 s{sT}, s{sB}, 11\n s_add_u32 s{sT}, s{sT}, {L_QB}\n v_add_u32 v3, s{sT}, v160')
for t in range(2): E(f'ds_read_b128 {vr(BQ+4*t,4)}, v3 offset:{1024*t}')
E(f's_lshl_b32 s{sT}, s{sPb}, 8\n s_add_u32 s{sT}, s{sT}, {hex(WS_G)}\n buffer_load_dword v61, v8, {sr(sWS)}, s{sT} offen sc1\n buffer_load_dword v62, v8, {sr(sWS)}, s{sT} offen offset:128 sc1\n s_waitcnt lgkmcnt(0)')
C('---- second half of the shared K/V ; o slots marked as not yet written')
for c in (4,5,6,7): kvdma(c)
E(f's_lshl_b32 s{sT+10}, s{sPb}, 6\n s_lshl_b32 s{sT+1}, s{sHg}, 2\n s_add_u32 s{sT+10}, s{sT+10}, s{sT+1}\n s_add_u32 s{sT+10}, s{sT+10}, s{sB}\n s_lshl_b32 s{sT+10}, s{sT+10}, 10')
E('v_mov_b32 v12, -1\n v_mov_b32 v13, -1\n v_mov_b32 v14, -1\n v_mov_b32 v15, -1')
for base in (WS_OA,WS_OA+32768,WS_OB,WS_OB+32768):
    E(f's_add_u32 s{sT+1}, s{sT+10}, {hex(base)}\n buffer_store_dwordx4 v[12:15], v160, {sr(sWS)}, s{sT+1} offen sc1')
E(f's_lshl_b32 s{sT+3}, s{sHg}, 5\n s_add_u32 s{sT+3}, s{sT+3}, s{sPb}\n s_lshl_b32 s{sT+3}, s{sT+3}, 7\n s_lshl_b32 s{sT+1}, s{sB}, 2\n s_add_u32 s{sT+3}, s{sT+3}, s{sT+1}\n s_add_u32 s{sT+3}, s{sT+3}, {hex(WS_FKVB+16)}')
E(f's_getreg_b32 s{sXcc}, hwreg(HW_REG_XCC_ID, 0, 4)\n s_add_u32 s{sT}, s{sTag}, s{sXcc}\n v_mov_b32 v3, s{sT}\n s_waitcnt vmcnt(0)')
E(f's_mov_b64 exec, 1\n buffer_store_dword v3, off, {sr(sWS)}, s{sT+3} sc1\n s_mov_b64 exec, -1')
lds_add(C_K2,0x101,vZ,2)
stamp('B',2,'K/V all in')
if OPT.get('nob'): stamp_flush(12); E('s_endpgm')
E('v_sub_f32 v61, 1.0, v61\n v_sub_f32 v62, 1.0, v62')
poll(162,2,4,sleep=3)
stamp('B',6,'kvB flags seen'); echo_mark('kvb')
def wotouch():
    if MAP=='b':
        E(f's_cmp_ge_u32 s{sB}, 2\n s_cbranch_scc0 L_B_NOT\n s_lshr_b32 s{sT+1}, s2, 3\n s_lshl_b32 s{sT+1}, s{sT+1}, 14\n s_and_b32 s{sT+2}, s{sB}, 1\n s_lshl_b32 s{sT+2}, s{sT+2}, 13\n s_add_u32 s{sT+1}, s{sT+1}, s{sT+2}')
        touch(sWOB,sT+1,1,163,3); touch(sWOA,sT+1,1,163,3)
    else:
        E(f's_cmp_eq_u32 s{sB}, 3\n s_cbranch_scc0 L_B_NOT\n s_lshr_b32 s{sT+1}, s2, 3\n s_lshl_b32 s{sT+1}, s{sT+1}, 14\n s_and_b32 s{sT+2}, s2, 1\n s_lshl_b32 s{sT+2}, s{sT+2}, 9\n s_add_u32 s{sT+1}, s{sT+1}, s{sT+2}')
        E('v_lshrrev_b32 v2, 2, v0\n v_lshlrev_b32 v2, 10, v2\n v_and_b32 v3, 3, v0\n v_lshl_add_u32 v2, v3, 7, v2')
        touch(sWOB,sT+1,1,2,3); touch(sWOA,sT+1,1,2,4)
    LBL('L_B_NOT')
C('---- window attention, head 4hg+b, two query tiles')
E(f's_lshl_b32 s{sT+8}, s{sHg}, 2\n s_add_u32 s{sT+8}, s{sT+8}, s{sB}\n s_lshl_b32 s{sT+8}, s{sT+8}, 6\n s_lshl_b32 s{sT+9}, s{sPb}, 1\n s_sub_i32 s{sT+9}, s{sT+9}, 8')
def btile(j): E(f's_add_i32 s{sT}, s{sT+9}, {j}\n s_max_i32 s{sT}, s{sT}, 0\n s_add_u32 s{sT}, s{sT}, s{sT+8}\n s_lshl_b32 s{sT}, s{sT}, 11\n s_add_u32 s{sT}, s{sT}, {hex(WS_KVB)}')
def bload(j):
    k=BK+4*(j%3); v=BV+8*(j%3)
    btile(j)
    E(f'buffer_load_dwordx4 {vr(k,4)}, v160, {sr(sWS)}, s{sT} offen sc1\n s_mov_b64 exec, {sr(sVM,2)}')
    E(f'buffer_load_dwordx4 {vr(v,4)}, v161, {sr(sWS)}, s{sT} offen offset:1024 sc1\n buffer_load_dwordx4 {vr(v+4,4)}, v161, {sr(sWS)}, s{sT} offen offset:1536 sc1\n s_mov_b64 exec, -1')
bload(0); bload(1)
E(f's_setprio {OPT.get("bat","3")}')
for j in (2,6):
    E(f's_add_i32 s{sT}, s{sT+9}, {j}\n s_max_i32 s{sT}, s{sT}, 0\n s_add_i32 s{sT+1}, s{sT+9}, 6\n s_min_i32 s{sT}, s{sT}, s{sT+1}\n s_cmp_lt_i32 s{sT}, 0')
    sk=uid('tk'); E(f's_cbranch_scc1 {sk}\n s_add_u32 s{sT}, s{sT}, s{sT+8}\n s_lshl_b32 s{sT}, s{sT}, 11\n s_add_u32 s{sT}, s{sT}, {hex(WS_KVB)}')
    E(f'buffer_load_dword v3, v163, {sr(sWS)}, s{sT} offen sc1'); LBL(sk)
E('s_waitcnt lgkmcnt(0)')
for j in range(10):
    k=BK+4*(j%3); v=BV+8*(j%3)
    if j==3: wotouch()
    if j==int(OPT.get('bup','4')): E('s_setprio 3')
    if j==7: E(f'buffer_load_dwordx4 v[12:15], v166, {sr(sWS)}, 0 offen sc1')
    if j+2<10: bload(j+2)
    E(f's_waitcnt vmcnt({3*min(2,9-j)})')
    sk=uid('bskip')
    if j<8: E(f's_cmp_lt_i32 s{sT+9}, {-j}\n s_cbranch_scc1 {sk}')
    qs=[q for q in (0,1) if 0<=j-q<=8]
    for q in qs: mfma(BS+16*q,k,BQ+4*q,{0:MU,8:MD}.get(j-q,'0'))
    E('s_nop 10' if len(qs)==2 else 's_nop 11')
    for q in qs:
        S=BS+16*q; O=BO+16*q
        for r in range(10): vexp(S+r)
        smf(O,v,S,BIDX)
        for r in range(10,16): vexp(S+r)
        E('s_nop 1'); smf(O,v+4,S+8,BIDX)
    if j<8: LBL(sk)
sLoc=sT+11
E(f's_add_u32 s{sT+10}, s{sT+10}, {hex(WS_OB)}')
C('the eight WGs of this position block: marks in place ?  all on this die ?')
E(f's_mov_b32 s{sCnt}, {SPIN_LIMIT}\n s_branch L_B_PP1')
LBL('L_B_PP')
E(f'buffer_load_dwordx4 v[12:15], v166, {sr(sWS)}, 0 offen sc1\n s_waitcnt vmcnt(0)')
LBL('L_B_PP1')
for i in range(4): E(f'v_subrev_u32 v{12+i}, s{sTag}, v{12+i}')
E(f'v_or3_b32 v2, v12, v13, v14\n v_or_b32 v2, v2, v15\n v_cmp_lt_u32 vcc, 15, v2\n s_cbranch_vccz L_B_PPD\n s_sub_u32 s{sCnt}, s{sCnt}, 1\n s_cbranch_scc1 L_B_PPD\n s_sleep 3\n s_branch L_B_PP')
LBL('L_B_PPD')
if OPT.get('loc','1')=='1':
    E(f'v_cmp_ne_u32 vcc, s{sXcc}, v12\n s_cbranch_vccnz L_B_NLOC')
    lds_add(C_LOC,1,vZ,2)
    if OPT.get('probe'):
        E('s_branch L_B_PRB')
        LBL('L_B_NLOC')
        for i in range(8): E('s_sleep 127')
        LBL('L_B_PRB')
    else: LBL('L_B_NLOC')

for q in range(2):
    fb=f'L_FB_B{q}'; bk=f'L_FB_B{q}_BACK'
    finalize(BO+16*q,4,2,fb,bk,61+q)
    E(f'buffer_store_dwordx4 v[4:7], v160, {sr(sWS)}, s{sT+10} offen sc1')
    if q==0: E(f's_add_u32 s{sT+10}, s{sT+10}, 32768\n s_nop 0')
    def setup(q=q):
        E(f's_add_i32 s{sT+2}, s{sT+9}, {q}\n s_cmp_ge_i32 s{sT+2}, 0\n s_cselect_b32 s{sT+4}, 1, 0\n s_max_i32 s{sT+2}, s{sT+2}, 0')
        E(f's_add_i32 s{sT+3}, s{sT+9}, {q+9}\n s_sub_u32 s{sT+3}, s{sT+3}, s{sT+2}\n s_add_u32 s{sT+2}, s{sT+2}, s{sT+8}\n s_lshl_b32 s{sT+2}, s{sT+2}, 11\n s_add_u32 s{sT+2}, s{sT+2}, {hex(WS_KVB)}')
    fallback(fb,bk,BQ+4*q,BO+16*q,BS,BK,BV,BIDX,3,160,161,None,setup,MU,MD)
C('---- output projection: wave (t=b&1, kh=b>>1): both 32-column tiles over heads 16kh..16kh+15 ; slot 0 = tile kh')
PA_=48; PW=80; PO=96; PB_=16
stamp('B',7,'oB published'); echo_mark('ob')
E(f's_setprio {OPT.get("bpr2","3")}')
lds_spin(C_MID,None,8,vZ,2,sleep=6)
def wodma(sr_):
    E(f's_lshl_b32 s{sT}, s{sB}, 14\n s_lshl_b32 s{sT+1}, s{sB}, 17')
    for n in range(16): E(f's_add_u32 m0, s{sT}, {L_WO+1024*n}\n s_add_u32 s{sT+2}, s{sT+1}, {8192*n}\n buffer_load_dwordx4 v10, {sr(sr_)}, s{sT+2} offen lds')
def oloads(g0):
    for s in range(4*g0,16):
        if s%4==0: E(f's_add_u32 s{sT}, s{sOb}, {1024*s}')
        E(f'buffer_load_dwordx4 {vr(PO+4*s,4)}, v160, {sr(sWS)}, s{sT} offen offset:{1024*(s%4)} sc1')
wodma(sWOB)
oloads(0)
E('s_waitcnt vmcnt(16)')
lds_add(C_WO,1,vZ,2)
lds_spin(C_WO,None,4,vZ,2,sleep=2)
stamp('B',8,'woB landed')
E('s_branch L_B_GEMM1')
LBL('L_B_GEMM')
oloads(0)
LBL('L_B_GEMM1')
def wread(s):
    f=PW+8*(s&1)
    for u,va in ((0,11),(1,9)): E(f'ds_read_b64_tr_b16 {vr(f+4*u,2)}, v{va} offset:{s*2048}\n ds_read_b64_tr_b16 {vr(f+4*u+2,2)}, v{va} offset:{s*2048+1024}')
wread(0)
E(f's_mov_b32 s{sCnt}, {SPIN_LIMIT}')
for g in range(4):
    LBL(f'L_B_G{g}')
    E(f's_waitcnt vmcnt({12-4*g})')
    p=PO+16*g
    E(f'v_max_u32 v2, v{p}, v{p+4}\n v_max3_u32 v2, v{p+8}, v{p+12}, v2\n v_cmp_eq_u32 vcc, -1, v2\n s_cbranch_vccnz L_B_R{g}')
    LBL(f'L_B_K{g}')
    if DIAG and g==3:
        E(f's_cmp_eq_u32 s{sPass}, 0\n s_cbranch_scc1 L_B_NST'); stamp('B',10,'oA all seen'); LBL('L_B_NST')
    for s in range(4*g,4*g+4):
        if s<15: wread(s+1)
        E(f's_waitcnt lgkmcnt({4 if s<15 else 0})')
        f=PW+8*(s&1)
        if s==0:
            E(f's_cmp_eq_u32 s{sPass}, 0\n s_cbranch_scc0 L_B_M1')
            for u in range(2): mfma(PA_+16*u,f+4*u,PO+4*s,'0')
            E('s_branch L_B_M2'); LBL('L_B_M1')
            for u in range(2): mfma(PA_+16*u,f+4*u,PO+4*s)
            LBL('L_B_M2')
        else:
            for u in range(2): mfma(PA_+16*u,f+4*u,PO+4*s)
    save=L; L=[]
    LBL(f'L_B_R{g}')
    E(f's_sub_u32 s{sCnt}, s{sCnt}, 1\n s_cbranch_scc1 L_B_K{g}\n s_cmp_eq_u32 s{sPass}, 0\n s_cbranch_scc0 L_B_RR{g}\n s_sleep 8')
    LBL(f'L_B_RR{g}')
    E('s_waitcnt vmcnt(0)')
    oloads(g)
    E(f's_branch L_B_G{g}')
    RETRY.extend(L); L=save
E(f's_cmp_eq_u32 s{sPass}, 0\n s_cbranch_scc0 L_B_FIN')
lds_add(C_WD,1,vZ,2)
E(f's_add_u32 s{sOb}, s{sOb}, {hex((WS_OA-WS_OB)&0xffffffff)}\n s_mov_b32 s{sPass}, 1')
lds_spin(C_WD,None,4,vZ,2,sleep=2)
wodma(sWOA)
if OPT.get('dry','0')=='1':
    C('walk once through the closing code with no lane active: its instructions are then cached when they matter')
    E('s_mov_b64 exec, 0\n s_branch L_B_FIN')
    LBL('L_B_DRYD')
    E('s_mov_b64 exec, -1')
E('s_waitcnt vmcnt(0)')
stamp('B',9,'out-proj B done, woA in'); echo_mark('b9')
E('s_barrier'); echo_mark('aend'); E('s_branch L_B_GEMM')
LBL('L_B_FIN')
E('s_nop 9')
for q in range(4): E(f'ds_write_b128 v164, {vr(PA_+16+4*q,4)} offset:{1024*q}')
E('s_waitcnt lgkmcnt(0)\n s_cbranch_execz L_B_NBAR\n s_barrier')
LBL('L_B_NBAR')
for q in range(4): E(f'ds_read_b128 {vr(PB_+4*q,4)}, v165 offset:{1024*q}')
for q in range(4):
    E(f's_waitcnt lgkmcnt({3-q})')
    for r in range(4): E(f'v_add_f32 v{PA_+4*q+r}, v{PA_+4*q+r}, v{PB_+4*q+r}')
for r in range(8): cvt(PA_+r,PA_+2*r,PA_+2*r+1)
E('s_nop 1')
for gq in range(2): E(f'v_permlane32_swap_b32 v{PA_+4*gq}, v{PA_+4*gq+2}\n v_permlane32_swap_b32 v{PA_+4*gq+1}, v{PA_+4*gq+3}')
if OPT.get('dry','0')=='1': E('s_cbranch_execz L_B_DRYD')
for gq in range(2): E(f'buffer_store_dwordx4 {vr(PA_+4*gq,4)}, v167, {sr(sOUT)}, s{sOut} offen offset:{32*gq} '+OPT.get('ost','').replace('+',' '))
if DIAG: E('s_waitcnt vmcnt(0)')
stamp('B',11,'out stored'); echo_end()
stamp_flush(12)
E('s_endpgm')
L.extend(RETRY)

LBL('L_A')
AIDX=8; AKA=9; AVA=10; AQ0=12; AQ1=16; AK=20; AV=28; SA=44; SB=60; OA=76; OB=92; XA=108; WA=160; AF=112
L_PG=L_PART+4096
sStr=sT+10; sRing=sT+7
E(f'v_and_b32 v5, 15, v0\n v_lshlrev_b32 v6, 4, v0\n s_and_b32 s{sT+9}, s{sHg}, 3\n s_cmp_lt_u32 s{sWave}, 4\n s_cbranch_scc0 L_A_KV')
C('---- waves 0..3 : wave m streams 64 columns of matrix m (wq | B q | B k | B v) through its own 8 x 2KB ring')
E(f's_cmp_eq_u32 s{sWave}, 0\n s_cselect_b32 s{sWB}, s6, s16\n s_cselect_b32 s{sWB+1}, s7, s17\n s_mov_b32 s{sWB+2}, {512*3072}\n s_cselect_b32 s{sWB+2}, {512*1024}, s{sWB+2}\n s_mov_b32 s{sWB+3}, 0x20000')
E(f's_movk_i32 s{sStr}, 3072\n s_cselect_b32 s{sStr}, 0x400, s{sStr}\n s_max_u32 s{sT+1}, s{sWave}, 1\n s_sub_u32 s{sT+1}, s{sT+1}, 1\n s_lshl_b32 s{sT+1}, s{sT+1}, 10\n s_lshl_b32 s{sT+2}, s{sHg}, 7\n s_add_u32 s{sT+1}, s{sT+1}, s{sT+2}')
dma128_voff(162,2,3,f's{sStr}',f's{sT+1}')
mkrot()
E(f's_lshl_b32 s{sStr}, s{sStr}, 3\n s_lshl_b32 s{sRing}, s{sWave}, 14')
E(f's_sub_u32 s{sT+1}, s{sStr}, 1024\n v_add_u32 v163, s{sT+1}, v162\n s_lshl_b32 s{sStr}, s{sStr}, 1')
def wdma_parts(st):
    p0=f's_add_u32 m0, s{sRing}, {(st%8)*2048}\n'
    if st%4==0: p0+=f's_add_u32 s{sT+3}, s{sRot}, {st//4}\n s_and_b32 s{sT+3}, s{sT+3}, 7\n s_lshl_b32 s{sT+3}, s{sT+3}, 2\n s_mul_i32 s{sT+3}, s{sT+3}, s{sStr}'
    else: p0+=f's_add_u32 s{sT+3}, s{sT+3}, s{sStr}'
    VQ.extend([f'w{st}']*2)
    return [p0, f'buffer_load_dwordx4 v162, {sr(sWB)}, s{sT+3} offen lds', f'buffer_load_dwordx4 v163, {sr(sWB)}, s{sT+3} offen offset:1024 lds']
def wdma(st):
    for p in wdma_parts(st): E(p)
if OPT.get('p0','2')!='0': E(f's_cmp_eq_u32 s{sWave}, 0\n s_cbranch_scc0 L_A_NP0\n s_setprio {OPT.get("p0","3")}\nL_A_NP0:')
NW0=int(OPT.get('nw0','8'))
VQ.clear()
for st in range(NW0): wdma(st)
E('s_branch L_A_NOKV')
LBL('L_A_KV')
E(f's_setprio 3\n s_load_dword s{sTag}, s[26:27], {WS_EPOCH}')
C('---- kvA: this WG makes 16 positions (hg&3) of K (hg<4) or V, and their gate ; wave 4+u sums k in [128u,128u+128)')
E(f's_cmp_lt_u32 s{sHg}, 4\n s_cselect_b32 s{sWKV}, s8, s10\n s_cselect_b32 s{sWKV+1}, s9, s11\n s_mov_b32 s{sWKV+2}, 16384\n s_mov_b32 s{sWKV+3}, 0x20000\n s_and_b32 s{sT+3}, s{sWave}, 3')
E(f's_lshl_b32 s{sT+1}, s{sPb}, 16\n s_lshl_b32 s{sT+2}, s{sT+9}, 14\n s_add_u32 s{sT+1}, s{sT+1}, s{sT+2}\n s_lshl_b32 s{sT+2}, s{sT+3}, 8\n s_add_u32 s{sT+1}, s{sT+1}, s{sT+2}')
E('v_lshlrev_b32 v3, 10, v5\n v_and_b32 v4, 48, v0\n v_add_u32 v3, v3, v4')
for s_ in range(4): E(f'buffer_load_dwordx4 {vr(116+4*s_,4)}, v3, {sr(sX)}, s{sT+1} offen offset:{64*s_}')
WKD=OPT.get('wkd','0')=='1'
if MAP=='b' and WKD:
    E(f's_cmp_lt_u32 s{sWave}, 6\n s_cbranch_scc0 L_A_NT2\n s_cmp_eq_u32 s{sWave}, 4\n s_cselect_b32 s{sG}, s8, s10\n s_cselect_b32 s{sG+1}, s9, s11\n s_mov_b32 s{sG+2}, 16384\n s_mov_b32 s{sG+3}, 0x20000')
    E(f's_lshr_b32 s{sT+4}, s2, 3\n s_lshl_b32 s{sT+4}, s{sT+4}, 9\n v_lshlrev_b32 v2, 7, v0\n s_mov_b64 exec, 15\n buffer_load_dword v167, v2, {sr(sG)}, s{sT+4} offen\n s_mov_b64 exec, -1')
    LBL('L_A_NT2')
if MAP=='c' and OPT.get('wkt','1')=='1':
    E(f's_cmp_eq_u32 s{sWave}, 4\n s_cbranch_scc0 L_A_NT2\n s_lshr_b32 s{sT+4}, s2, 3\n s_lshl_b32 s{sT+4}, s{sT+4}, 9\n v_lshlrev_b32 v2, 7, v0\n s_mov_b64 exec, 15\n buffer_load_dword v167, v2, {sr(sWKV)}, s{sT+4} offen\n s_mov_b64 exec, -1')
    LBL('L_A_NT2')
srd(sG,20,1024)
for s_ in range(4): E(f'buffer_load_dwordx4 {vr(132+4*s_,4)}, v4, {sr(sG)}, s{sT+2} offen offset:{64*s_}')
def wkdma():
    E(f's_lshl_b32 s{sT}, s{sT+3}, 12\n s_add_u32 m0, s{sT}, {L_ST}\n s_nop 0')
    for i in range(4): E(f'buffer_load_dwordx4 v6, {sr(sWKV)}, s{sT} offen offset:{1024*i} lds')
if not WKD: wkdma()
LBL('L_A_NOKV')
C('---- address of this wave\'s o slot, constants')
sOA=sT+8
E(f's_and_b32 s{sOA}, s{sWave}, 1\n s_lshl_b32 s{sT+1}, s{sPb}, 1\n s_add_u32 s{sOA}, s{sOA}, s{sT+1}\n s_lshl_b32 s{sOA}, s{sOA}, 5')
E(f's_lshl_b32 s{sT+1}, s{sHg}, 2\n s_add_u32 s{sOA}, s{sOA}, s{sT+1}\n s_and_b32 s{sT+1}, s{sWave}, 2\n s_add_u32 s{sOA}, s{sOA}, s{sT+1}\n s_lshr_b32 s{sT+1}, s{sWave}, 2\n s_add_u32 s{sOA}, s{sOA}, s{sT+1}\n s_lshl_b32 s{sOA}, s{sOA}, 10\n s_add_u32 s{sOA}, s{sOA}, {hex(WS_OA)}')
E(f'v_mov_b32 v{vZ}, {L_ST}\n v_lshlrev_b32 v11, 2, v0')
traddr128(WA,2,3,3,'0'); E(f's_lshl_b32 s{sT+1}, s{sWave}, 14\n v_add_u32 v{WA}, s{sT+1}, v{WA}\n v_xor_b32 v{WA+1}, 64, v{WA}')
E(f'v_and_b32 v2, 31, v0\n v_bfe_u32 v3, v0, 1, 3\n v_lshrrev_b32 v7, 5, v0\n v_xor_b32 v3, v3, v7\n v_lshlrev_b32 v{XA}, 7, v2\n v_lshl_add_u32 v{XA}, v3, 4, v{XA}\n v_add_u32 v{XA}, 0x10000, v{XA}')
for s_ in range(1,4): E(f'v_xor_b32 v{XA+s_}, {s_<<5}, v{XA}')
for r in range(32): E(f'v_mov_b32 v{OA+r}, 0')
set_vpad(list(range(AV,AV+16)),2)
E(f'v_mov_b32 v{AIDX}, 0xdddddddd')
E(f's_lshr_b32 s{sT+1}, s{sWave}, 2\n s_lshl_b32 s{sT+1}, s{sT+1}, 11\n v_add_u32 v{AKA}, s{sT+1}, v6')
E(f'v_lshlrev_b32 v7, 8, v7\n v_lshl_add_u32 v7, v5, 4, v7\n v_add_u32 v{AVA}, s{sT+1}, v7')
E(f's_lshl_b32 s{sT+6}, s{sHg}, 5\n s_add_u32 s{sT+6}, s{sT+6}, s{sPb}\n s_lshl_b32 s{sT+6}, s{sT+6}, 7\n s_lshl_b32 s{sT+1}, s{sWave}, 2\n s_add_u32 s{sT+6}, s{sT+6}, s{sT+1}\n s_add_u32 s{sT+6}, s{sT+6}, {hex(WS_FKVB)}')
E(f's_cmp_lt_u32 s{sWave}, 4\n s_cbranch_scc1 L_A_GQ\n s_waitcnt lgkmcnt(0)')
mktag()
if WKD: E(f's_waitcnt vmcnt({OPT.get("wkw","7")})'); wkdma()
E(f'v_lshrrev_b32 v4, 4, v0\n v_lshlrev_b32 v4, 8, v4\n v_lshl_add_u32 v4, v5, 3, v4\n s_add_u32 s{sT}, s{sT}, {L_ST}\n v_add_u32 v4, s{sT}, v4')
E(f's_lshl_b32 s{sT+1}, s{sT+3}, 10\n s_add_u32 s{sT+1}, s{sT+1}, {L_PART}\n v_add_u32 v2, s{sT+1}, v6\n s_lshl_b32 s{sT+1}, s{sT+3}, 8\n s_add_u32 s{sT+1}, s{sT+1}, {L_PG}\n v_add_u32 v3, s{sT+1}, v11')
E('s_waitcnt vmcnt(0)')
for s_ in range(4): E(f'ds_read_b64_tr_b16 {vr(44+4*s_,2)}, v4 offset:{1024*s_}\n ds_read_b64_tr_b16 {vr(46+4*s_,2)}, v4 offset:{1024*s_+128}')
for s_ in range(4): E(f'v_mfma_f32_16x16x32_bf16 v[64:67], {vr(132+4*s_,4)}, {vr(116+4*s_,4)}, {"0" if s_==0 else "v[64:67]"}')
E(f's_cmp_lt_u32 s{sHg}, 4\n s_waitcnt lgkmcnt(0)\n s_cbranch_scc0 L_A_VJOB')
for s_ in range(4): E(f'v_mfma_f32_16x16x32_bf16 v[60:63], {vr(44+4*s_,4)}, {vr(116+4*s_,4)}, {"0" if s_==0 else "v[60:63]"}')
E('s_branch L_A_KVJ')
LBL('L_A_VJOB')
for s_ in range(4): E(f'v_mfma_f32_16x16x32_bf16 v[60:63], {vr(116+4*s_,4)}, {vr(44+4*s_,4)}, {"0" if s_==0 else "v[60:63]"}')
LBL('L_A_KVJ')
E('s_nop 0\n ds_write_b32 v3, v64\n s_nop 5\n ds_write_b128 v2, v[60:63]')
stamp('A',2,'kvA partial')
E('s_waitcnt lgkmcnt(0)')
tag_set(T_PT,sT+3,2)
E(f's_cmp_eq_u32 s{sWave}, 7\n s_cbranch_scc0 L_A_BS')
C('---- wave 7: reduce the four partial tiles, store, flag')
tag_wait(T_PT,4,2)
E(f'v_add_u32 v3, {L_PART}, v6\n v_add_u32 v4, {L_PG}, v11')
for i in range(4): E(f'ds_read_b128 {vr(116+4*i,4)}, v3 offset:{1024*i}')
for i in range(2): E(f'ds_read2st64_b32 {vr(148+2*i,2)}, v4 offset0:{2*i} offset1:{2*i+1}')
E(f's_lshl_b32 s{sT+3}, s{sPb}, 1\n s_lshr_b32 s{sT+4}, s{sT+9}, 1\n s_add_u32 s{sT+3}, s{sT+3}, s{sT+4}\n s_lshl_b32 s{sT+3}, s{sT+3}, 11\n s_add_u32 s{sT+3}, s{sT+3}, {hex(WS_KVA)}\n s_and_b32 s{sT+4}, s{sT+9}, 1')
E(f's_cmp_lt_u32 s{sHg}, 4\n s_cselect_b32 s{sT+5}, 9, 3\n s_cselect_b32 s{sT+7}, 3, 8\n s_cselect_b32 s{sT+1}, 8, 9\n s_cselect_b32 s{sT}, 0, 0x400')
E(f's_lshl_b32 s{sT+4}, s{sT+4}, s{sT+1}\n s_add_u32 s{sT+3}, s{sT+3}, s{sT+4}\n s_add_u32 s{sT+3}, s{sT+3}, s{sT}')
E(f'v_bfe_u32 v3, v0, 4, 1\n v_lshrrev_b32 v4, 5, v0\n v_lshlrev_b32 v5, 4, v5\n v_lshl_add_u32 v5, v3, s{sT+5}, v5\n v_lshl_add_u32 v5, v4, s{sT+7}, v5')
FPLS=int(OPT.get('fpl','2'))
E(f's_lshl_b32 s{sT+7}, s{sPb}, 3\n s_add_u32 s{sT+7}, s{sT+7}, s{sHg}\n s_and_b32 s{sT+1}, s{sT+7}, {(1<<FPLS)-1}\n s_lshr_b32 s{sT+7}, s{sT+7}, {FPLS}\n s_lshl_b32 s{sT+7}, s{sT+7}, 7\n s_lshl_b32 s{sT+1}, s{sT+1}, 2\n s_add_u32 s{sT+7}, s{sT+7}, s{sT+1}\n s_add_u32 s{sT+7}, s{sT+7}, {hex(WS_FKVA)}')
E('s_waitcnt lgkmcnt(2)')
for st_ in (8,4):
    for r in range(st_): E(f'v_add_f32 v{116+r}, v{116+r}, v{116+st_+r}')
cvt(116,116,117); cvt(117,118,119)
E(f'buffer_store_dwordx2 v[116:117], v5, {sr(sWS)}, s{sT+3} offen sc1')
E(f's_cmp_lt_u32 s{sHg}, 4\n s_waitcnt lgkmcnt(0)\n s_cbranch_scc0 L_A_SF')
for st_ in (2,1):
    for r in range(st_): E(f'v_add_f32 v{148+r}, v{148+r}, v{148+st_+r}')
E(f's_mov_b32 s{sT}, {hex(f2u(-math.log2(math.e)))}\n v_mul_f32 v148, s{sT}, v148\n v_exp_f32 v148, v148')
E(f's_lshl_b32 s{sT}, s{sPb}, 2\n s_add_u32 s{sT}, s{sT}, s{sT+9}\n v_add_f32 v148, 1.0, v148\n v_rcp_f32 v148, v148\n s_lshl_b32 s{sT}, s{sT}, 6\n s_add_u32 s{sT}, s{sT}, {hex(WS_G)}')
E(f's_mov_b64 exec, 0xffff\n buffer_store_dword v148, v11, {sr(sWS)}, s{sT} offen sc1\n s_mov_b64 exec, -1')
LBL('L_A_SF')
E('s_waitcnt vmcnt(0)')
flag_store(sT+7,2)
stamp('A',3,'kvA flag sent')
LBL('L_A_BS')
E(f's_cmp_eq_u32 s{sWave}, 6\n s_cbranch_scc0 L_A_B8')
C('---- wave 6: wait for every K/V piece, fetch this WG\'s share into L2, tell the projection waves')
E(f'v_lshlrev_b32 v16, 7, v0\n v_lshrrev_b32 v17, {FPLS-2}, v0\n v_lshlrev_b32 v17, 7, v17\n v_and_b32 v18, {(1<<(FPLS-2))-1}, v0\n v_lshl_add_u32 v17, v18, 4, v17\n v_add_u32 v17, {hex(WS_FKVA)}, v17')
E(f'v_mov_b32 v2, s{sTag}\n ds_write_b32 v{vZ}, v2 offset:{T_TAG-L_ST}')
tag_wait(T_PT,4,2)
tag_wait(T_PL,1,2,sleep=2)
C('lanes whose four flags are in drop out of the next look')
E(f's_mov_b32 s{sCnt}, {SPIN_LIMIT}')
LBL('L_A_PL')
E(f'buffer_load_dwordx4 v[12:15], v17, {sr(sWS)}, 0 offen sc1\n s_waitcnt vmcnt(0)')
for i in range(4): E(f'v_xor_b32 v{12+i}, s{sTag}, v{12+i}')
E(f'v_or3_b32 v12, v12, v13, v14\n v_or_b32 v12, v12, v15\n v_cmp_ne_u32 vcc, 0, v12\n s_cbranch_vccz L_A_PLD\n s_sub_u32 s{sCnt}, s{sCnt}, 1\n s_cbranch_scc1 L_A_PLD\n s_mov_b64 exec, vcc\n s_sleep {OPT.get("psl","16")}\n s_branch L_A_PL')
LBL('L_A_PLD')
E('s_mov_b64 exec, -1')
E(f's_lshr_b32 s{sT+5}, s2, 3\n s_lshl_b32 s{sT+5}, s{sT+5}, 12\n s_add_u32 s{sT+5}, s{sT+5}, {hex(WS_KVA)}')
E(f's_mov_b32 exec_hi, 0\n buffer_load_dword v117, v16, {sr(sWS)}, s{sT+5} offen sc1\n s_mov_b64 exec, -1')
tag_set(T_FL,None,2)
stamp('A',3,'kvA flag sent')
E(f's_lshr_b32 s{sT+5}, s2, 3\n s_and_b32 s{sT+5}, s{sT+5}, 3\n s_lshl_b32 s{sT+5}, s{sT+5}, 14\n s_add_u32 s{sT+5}, s{sT+5}, {hex(WS_KVA)}')
for q in range(4):
    E(f's_mov_b32 m0, {L_ST+4096*q}\n s_add_u32 s{sT+4}, s{sT+5}, {4096*q}')
    for i in range(4): E(f'buffer_load_dwordx4 v6, {sr(sWS)}, s{sT+4} offen offset:{1024*i} sc1 lds')
E('s_waitcnt vmcnt(0)')
tag_set(T_K0,None,2)
stamp('A',7,'G1')
E(f's_cmp_eq_u32 s2, 0\n s_cbranch_scc0 L_A_B8\n s_mov_b32 s{sT}, 0')
flag_store(sT,2)
E('s_branch L_A_B8')
LBL('L_A_GQ')
PAC=[44,60,128,144]; PFR=[12,112,92]
def areads_l(st):
    f=PFR[st%3]; so=(st%8)*2048; o=[]
    for i in range(2): o+= [f'ds_read_b64_tr_b16 {vr(f+4*i,2)}, v{WA+i} offset:{so}', f'ds_read_b64_tr_b16 {vr(f+4*i+2,2)}, v{WA+i} offset:{so+512}']
    for t in range(2): o.append(f'ds_read_b128 {vr(f+8+4*t,4)}, v{XA+st%4} offset:{(st//4)*8192+4096*t}')
    return o
def areads(st):
    for p in areads_l(st): E(p)
def kv_parts(p):
    VQ.extend(['kv']*2)
    return [f's_add_u32 m0, s{sRing}, {p*2048}\n s_add_u32 s{sT+4}, s{sT+5}, {p*2048}']+[f'buffer_load_dwordx4 v6, {sr(sWS)}, s{sT+4} offen offset:{1024*n} sc1 lds' for n in range(2)]
def kvpiece(p):
    for q in kv_parts(p): E(q)
for st in range(NW0,8): wdma(st)
E(f's_sub_u32 s{sT+4}, s{sWave}, 1\n s_cmp_eq_u32 s{sWave}, 1\n s_cselect_b32 s{sT+4}, 3, s{sT+4}\n s_lshr_b32 s{sT+5}, s2, 3\n s_add_u32 s{sT+5}, s{sT+5}, s{sT+4}\n s_and_b32 s{sT+5}, s{sT+5}, 3\n s_lshl_b32 s{sT+5}, s{sT+5}, 14\n s_add_u32 s{sT+5}, s{sT+5}, {hex(WS_KVA)}')
tag_wait(T_X0,4,2) if XD else tag_wait(T_X,1,2)
stamp('A',7,'G1')
vwait('w0'); areads(0); vwait('w1'); areads(1)
VQ0=list(VQ)
SKEW=OPT.get('skew','1')=='1'
PLK=int(OPT.get('plk','15'))
E(f's_cmp_eq_u32 s{sWave}, 3\n s_cbranch_scc1 L_A_GV')
def gstep(var,st,kv):
    f=PFR[st%3]
    def mm(i,t):
        d=PAC[2*i+t]; c='0' if st==0 else None
        if var==0: mfma(d,f+4*i,f+8+4*t,c)
        else: mfma(d,f+8+4*t,f+4*i,c)
    vwait(f'w{st+2}',f' lgkmcnt({6 if st<31 else 0})')
    rd=areads_l(st+2) if st+2<32 else []
    dm=wdma_parts(st+8) if st+8<32 else (kv_parts(st%8) if kv else [])
    gaps=[rd[0:2]+dm[0:1], rd[2:4]+dm[1:2], rd[4:6], dm[2:3]]
    if st>=30: gaps=[[f'v_mov_b32 v{OB+8*(st-30)+2*q+r}, 0' for r in range(2)]+gaps[q] for q in range(4)]
    for q,(i,t) in enumerate(((0,0),(0,1),(1,0),(1,1)) if st<31 else ((1,0),(1,1),(0,0),(0,1))):
        if not (OPT.get('halfm') and q&1 and 0<st<31): mm(i,t)
        for p in gaps[q]: E(p)
for var in (0,1):
    if var: LBL('L_A_GV')
    VQ[:]=VQ0
    for st in range(24):
        if OPT.get('hold') and st==0:
            E(f's_cmp_eq_u32 s{sWave}, 0\n s_cbranch_scc1 L_A_NH{var}'); tag_wait(T_H,1,2,sleep=2); LBL(f'L_A_NH{var}')
        if OPT.get('hold') and var==0 and st==int(OPT.get('hold')):
            E(f's_cmp_eq_u32 s{sWave}, 0\n s_cbranch_scc0 L_A_NH2'); tag_set(T_H,None,2); E('s_waitcnt lgkmcnt(0)'); LBL('L_A_NH2')
        if st==2: E('s_waitcnt lgkmcnt(0)'); tag_wait(T_X,4,2)
        if st==14: E('s_waitcnt lgkmcnt(0)'); tag_wait(T_X+16,4,2)
        if st==PLK and var==1: tag_set(T_PL,None,2); E('s_waitcnt lgkmcnt(0)')
        gstep(var,st,False)
    stamp('A',2,'step 24'); cstamp('A',10,'s24')
    if var==0: E(f's_cmp_eq_u32 s{sWave}, 0\n s_cbranch_scc1 L_A_G0')
    tag_wait(T_FL,1,2,once=f'L_A_GK{var}')
    if var==0 and not SKEW: LBL('L_A_G0')
    V1=list(VQ)
    for st in range(24,32): gstep(var,st,False)
    if var==0 and not SKEW: E(f's_cmp_eq_u32 s{sWave}, 0\n s_cbranch_scc1 L_A_GE0')
    tag_wait(T_FL,1,2)
    for p in range(8): kvpiece(p)
    E(f's_branch L_A_GE{var}')
    if var==0 and SKEW:
        LBL('L_A_G0')
        C('wave 0: the last three k-steps run tile by tile, each q tile is packed and handed over under the next tiles\' MFMAs')
        VQ[:]=V1
        for st in range(24,29): gstep(0,st,False)
        vwait('w31',' lgkmcnt(6)')
        for p in areads_l(31): E(p)
        E(f'v_add_u32 v3, {L_QA}, v6\n s_mov_b32 s{sT+2}, {hex(CSCALE)}\n s_mov_b32 s{sT+3}, {hex(CSCALE)}\n v_mov_b32 v4, {T_Q}\n v_mov_b32 v5, 1\n s_setprio 3\n s_waitcnt lgkmcnt(0)')
        order=((1,0),(0,0),(1,1),(0,1))
        def conv(i,t):
            d=PAC[2*i+t]; o=[]
            o+=[f'v_pk_mul_f32 {vr(d+r,2)}, {vr(d+r,2)}, {sr(sT+2,2)}' for r in range(0,16,2)]
            o+=[f'v_cvt_pk_bf16_f32 v{d+r}, v{d+2*r}, v{d+2*r+1}' for r in range(8)]
            o+=[f'ds_write_b128 v3, {vr(d+4*hh,4)} offset:{(2*i+hh)*2048+1024*t}' for hh in range(2)]
            o+=[f's_mov_b64 exec, 1\n ds_write_b32 v4, v5 offset:{4*(2*i+t)}\n s_mov_b64 exec, -1']
            return o
        pend=[]
        for n,(i,t) in enumerate(order):
            for q,st in enumerate((29,30,31)):
                f=PFR[st%3]; mfma(PAC[2*i+t],f+4*i,f+8+4*t)
                if n==1: E('s_nop 3')
                for _ in range(7):
                    if pend: E(pend.pop(0))
            if n>=1:
                while pend: E(pend.pop(0))
                pend=conv(*order[n-1])
        while pend: E(pend.pop(0))
        for p in conv(*order[3]): E(p)
        stamp('A',1,'proj loop done'); cstamp('A',11,'pl')
        for r in range(16): E(f'v_mov_b32 v{OB+r}, 0')
        E('s_waitcnt lgkmcnt(0)')
        tag_set(T_G,None,2)
        E('s_branch L_A_B8')
    LBL(f'L_A_GK{var}')
    VQ[:]=V1
    for st in range(24,32): gstep(var,st,True)
    LBL(f'L_A_GE{var}')
    stamp('A',1,'proj loop done'); cstamp('A',11,'pl')
    if OPT.get('ep','1')=='1': E('s_setprio 3')
    E(f's_lshl_b32 s{sT+4}, s{sHg}, 8\n s_lshl_b32 s{sT+5}, s{sPb}, 1\n s_add_u32 s{sT+4}, s{sT+4}, s{sT+5}\n s_lshl_b32 s{sT+4}, s{sT+4}, 11\n s_add_u32 s{sT+4}, s{sT+4}, {hex(WS_KVB)}')
    if var==0:
        E(f's_cmp_eq_u32 s{sWave}, 2\n s_cbranch_scc1 L_A_EK')
        C('q (A / B): scale, pack, hand over through LDS')
        E(f's_cmp_eq_u32 s{sWave}, 0\n s_cbranch_scc1 L_A_Q0')
        tag_wait(T_G,1,2)
        LBL('L_A_Q0')
        E(f's_lshl_b32 s{sT+1}, s{sWave}, 13\n s_add_u32 s{sT+1}, s{sT+1}, {L_QA}\n v_add_u32 v3, s{sT+1}, v6\n s_mov_b32 s{sT+2}, {hex(CSCALE)}\n s_mov_b32 s{sT+3}, {hex(CSCALE)}\n s_lshl_b32 s{sT+1}, s{sWave}, 2\n s_add_u32 s{sT+1}, s{sT+1}, {T_Q1}\n v_mov_b32 v4, s{sT+1}\n v_mov_b32 v5, 1')
        for i in (1,0):
            for t in range(2):
                d=PAC[2*i+t]
                for r in range(0,16,2): E(f'v_pk_mul_f32 {vr(d+r,2)}, {vr(d+r,2)}, {sr(sT+2,2)}')
                for r in range(8): cvt(d+r,d+2*r,d+2*r+1)
                for hh in range(2): E(f'ds_write_b128 v3, {vr(d+4*hh,4)} offset:{(2*i+hh)*2048+1024*t}')
            if i==1: E(f's_mov_b64 exec, 1\n ds_write_b32 v4, v5\n s_mov_b64 exec, -1')
        E('s_waitcnt vmcnt(0) lgkmcnt(0)')
        tag_set(T_G,sWave,2)
        E('s_branch L_A_B8')
        LBL('L_A_EK')
        E('s_waitcnt vmcnt(0)')
        tag_set(T_G,sWave,2)
        for i in range(2):
            for t in range(2):
                d=PAC[2*i+t]
                for r in range(8): cvt(d+r,d+2*r,d+2*r+1)
                for hh in range(2): E(f's_add_u32 s{sT+5}, s{sT+4}, {(2*i+hh)*131072}\n buffer_store_dwordx4 {vr(d+4*hh,4)}, v6, {sr(sWS)}, s{sT+5} offen offset:{2048*t} sc1')
        E('s_branch L_A_B8')
    else:
        E('s_waitcnt vmcnt(0)')
        tag_set(T_G,sWave,2)
        E('v_bfe_u32 v3, v0, 4, 1\n v_lshl_add_u32 v3, v3, 17, v7')
        for i in range(2):
            for t in range(2):
                d=PAC[2*i+t]
                for r in range(8): cvt(d+r,d+2*r,d+2*r+1)
                E('s_nop 1')
                for gq in range(2): E(f'v_permlane32_swap_b32 v{d+4*gq}, v{d+4*gq+2}\n v_permlane32_swap_b32 v{d+4*gq+1}, v{d+4*gq+3}')
                E(f's_add_u32 s{sT+5}, s{sT+4}, {i*2*131072}')
                for gq in range(2): E(f'buffer_store_dwordx4 {vr(d+4*gq,4)}, v3, {sr(sWS)}, s{sT+5} offen offset:{2048*t+1024+512*gq} sc1')
LBL('L_A_B8')
E(f's_cmp_lt_u32 s{sWave}, 4\n s_cbranch_scc1 L_A_KP\n s_setprio 0')
LBL('L_A_KP')
E(f's_and_b32 s{sT+1}, s{sWave}, 2\n s_lshr_b32 s{sT+2}, s{sWave}, 2\n s_add_u32 s{sT+1}, s{sT+1}, s{sT+2}\n s_lshl_b32 s{sT+1}, s{sT+1}, 11\n s_and_b32 s{sT+2}, s{sWave}, 1\n s_lshl_b32 s{sT+2}, s{sT+2}, 10\n s_add_u32 s{sT+1}, s{sT+1}, s{sT+2}\n s_add_u32 s{sT+1}, s{sT+1}, {L_QA}\n v_add_u32 v2, s{sT+1}, v6\n v_xor_b32 v3, 0x800, v2')
AK0=120; AV0=121; AEX=122; AG=126
E(f'v_add_u32 v{AK0}, {L_ST}, v{AKA}\n v_add_u32 v{AV0}, {L_ST}, v{AVA}')
E(f's_and_b32 s{sT+2}, s{sWave}, 3\n s_mul_i32 s{sT+1}, s{sT+2}, 4608\n s_add_u32 s{sT+1}, s{sT+1}, {L_EX}\n v_add_u32 v{AEX}, s{sT+1}, v6\n v_add_u32 v{AEX+1}, s{sT+1}, v11')
E(f's_lshl_b32 s{sT+2}, s{sT+2}, 2\n s_add_u32 s{sT+2}, s{sT+2}, {C_PR}\n v_mov_b32 v{AEX+2}, s{sT+2}')
E(f's_and_b32 s{sT+1}, s{sWave}, 1\n s_lshl_b32 s{sT+2}, s{sPb}, 1\n s_add_u32 s{sT+1}, s{sT+1}, s{sT+2}\n s_lshl_b32 s{sT+1}, s{sT+1}, 7\n s_add_u32 s{sT+1}, s{sT+1}, {hex(WS_G)}\n v_and_b32 v127, 0x7c, v11')
tag_wait(T_K0,1,4,sleep=int(OPT.get('asl','2')))
E(f'buffer_load_dword v{AG}, v127, {sr(sWS)}, s{sT+1} offen sc1')
tag_get(4)
def kvoff(j):
    return (j%4)*4096+(0 if j<4 else KVPOS[j//4]-(65536 if j>=16 else 0))
def ldk(j): E(f'ds_read_b128 {vr(AK+4*(j&1),4)}, v{AK0 if j<4 else AKA} offset:{kvoff(j)}')
def ldv(j): E(f's_mov_b64 exec, {sr(sVM,2)}\n ds_read_b128 {vr(AV+8*(j&1),4)}, v{AV0 if j<4 else AVA} offset:{kvoff(j)+1024}\n ds_read_b128 {vr(AV+8*(j&1)+4,4)}, v{AV0 if j<4 else AVA} offset:{kvoff(j)+1536}\n s_mov_b64 exec, -1')
ldk(0); ldv(0); ldk(1)
if SKEW:
    E(f's_and_b32 s{sT+2}, s{sWave}, 3\n s_lshl_b32 s{sT+2}, s{sT+2}, 2\n s_add_u32 s{sT+2}, s{sT+2}, {T_Q}\n v_mov_b32 v4, s{sT+2}\n s_mov_b32 s{sCnt}, {SPIN_LIMIT}')
    LBL('L_A_WQ')
    E(f'ds_read_b32 v5, v4\n s_waitcnt lgkmcnt(0)\n v_cmp_ne_u32 vcc, 1, v5\n s_cbranch_vccz L_A_WD\n s_sub_u32 s{sCnt}, s{sCnt}, 1\n s_cbranch_scc1 L_A_WD\n s_sleep 1\n s_branch L_A_WQ')
    LBL('L_A_WD')
else:
    E(f's_bitcmp1_b32 s{sWave}, 1\n s_cbranch_scc0 L_A_WL')
    tag_wait(T_Q1,1,4,sleep=int(OPT.get('asl2','1')))
    E('s_branch L_A_WD')
    LBL('L_A_WL')
    tag_wait(T_G,1,4,sleep=int(OPT.get('asl2','1')))
    LBL('L_A_WD')
stamp('A',4,'BQ'); cstamp('A',8,'BQ')
E(f'ds_read_b128 {vr(AQ0,4)}, v2\n ds_read_b128 {vr(AQ1,4)}, v3')
if PRIO in ('step','step4'): E('s_setprio 2')
E('s_waitcnt lgkmcnt(0)'); mfma(SA,AK,AQ0,'0')
E('s_nop 11')
def pair_iter(j,ldk_,ldv_,first=False,last=0,extra=0):
    kc=AK+4*(j&1); kn=AK+4*((j+1)&1); vc=AV+8*(j&1); vp=AV+8*((j+1)&1)
    vexp(SA); vexp(SA+1)
    if not first: smf(OB,vp+4,SB+8,AIDX)
    for r in range(2,5): vexp(SA+r)
    mfma(SB,kc,AQ1,'0')
    for r in range(5,10): vexp(SA+r)
    E(f's_waitcnt lgkmcnt({(1 if last<2 else 0)+extra})')
    vexp(SA+10); smf(OA,vc,SA,AIDX)
    for r in range(11,16): vexp(SA+r)
    vexp(SB); vexp(SB+1); smf(OA,vc+4,SA+8,AIDX)
    if last<2: ldv_()
    for r in range(2,5): vexp(SB+r)
    if last<2:
        E('s_waitcnt lgkmcnt(2)'); mfma(SA,kn,AQ0,'0')
    if last<1: ldk_()
    for r in range(5,11): vexp(SB+r)
    smf(OB,vc,SB,AIDX)
    for r in range(11,16): vexp(SB+r)
def aflag(force,init=False):
    sk=uid('fl')
    E(f's_cmp_eq_u32 s{sT+5}, 0\n s_cbranch_scc0 {sk}')
    if not force: E(f's_getreg_b32 s{sT}, hwreg(HW_REG_IB_STS, 0, 4)\n s_cmp_eq_u32 s{sT}, 0\n s_cbranch_scc0 {sk}')
    E(f's_waitcnt vmcnt(0)\n s_mov_b32 s{sT+5}, 1'); flag_store(sT+6,2); LBL(sk)
if ROLL:
    AKN=120; AVN=121; sC=sT+4
    def rk(j):
        a_=AKA if j<4 else AKN
        return lambda: E(f'ds_read_b128 {vr(AK+4*(j&1),4)}, v{a_} offset:{(j%4)*4096}')
    def rv(j):
        a_=AVA if j<4 else AVN
        return lambda: E(f's_mov_b64 exec, {sr(sVM,2)}\n ds_read_b128 {vr(AV+8*(j&1),4)}, v{a_} offset:{(j%4)*4096+1024}\n ds_read_b128 {vr(AV+8*(j&1)+4,4)}, v{a_} offset:{(j%4)*4096+1536}\n s_mov_b64 exec, -1')
    for r in range(8,16): E(f'v_mov_b32 v{SB+r}, 0')
    E(f'v_add_u32 v{AKN}, 0x8000, v{AKA}\n v_add_u32 v{AVN}, 0x8000, v{AVA}\n v_add_u32 v{AKA}, 0x4000, v{AKA}\n v_add_u32 v{AVA}, 0x4000, v{AVA}\n s_mov_b32 s{sC}, 0\n s_mov_b32 s{sT+5}, 0')
    L.append('.p2align 6')
    LBL('L_A_LOOP')
    pair_iter(0,rk(2),rv(1)); pair_iter(1,rk(3),rv(2))
    E(f's_cmp_gt_u32 s{sC}, 6\n s_cbranch_scc1 L_A_LAST\n s_bitcmp1_b32 0x5f, s{sC}\n s_cbranch_scc1 L_A_RARE')
    LBL('L_A_RBACK')
    pair_iter(2,rk(4),rv(3)); pair_iter(3,rk(5),rv(4))
    E(f's_add_u32 s{sC}, s{sC}, 1\n s_mov_b32 s{sT+1}, 0x4000\n s_cmp_eq_u32 s{sC}, 2\n s_cselect_b32 s{sT+1}, {hex((-49152)&0xffffffff)}, s{sT+1}\n s_cmp_eq_u32 s{sC}, 3\n s_cselect_b32 s{sT+1}, {hex((-65536)&0xffffffff)}, s{sT+1}')
    E(f'v_mov_b32 v{AKA}, v{AKN}\n v_mov_b32 v{AVA}, v{AVN}\n v_add_u32 v{AKN}, s{sT+1}, v{AKN}\n v_add_u32 v{AVN}, s{sT+1}, v{AVN}\n s_branch L_A_LOOP')
    LBL('L_A_RARE')
    E(f's_waitcnt lgkmcnt(0)\n s_cmp_gt_u32 s{sC}, 3\n s_cbranch_scc1 L_A_R4')
    E(f's_cmp_eq_u32 s{sC}, 0\n s_cbranch_scc0 L_A_R1'); lds_spin(C_K1,None,4,vZ,2,sleep=0)
    LBL('L_A_R1')
    E(f's_cmp_eq_u32 s{sC}, 2\n s_cbranch_scc0 L_A_R2'); lds_spin(C_K2,None,4,vZ,2,sleep=1)
    LBL('L_A_R2')
    E(f's_cmp_eq_u32 s{sC}, 3\n s_cbranch_scc1 L_A_R3'); aflag(False); E('s_branch L_A_RBACK')
    LBL('L_A_R3'); aflag(True); E('s_branch L_A_RBACK')
    LBL('L_A_R4')
    E(f's_cmp_eq_u32 s{sC}, 4\n s_cbranch_scc0 L_A_R6'); lds_add(C_MID,1,vZ,2); E('s_waitcnt lgkmcnt(0)\n s_branch L_A_RBACK')
    LBL('L_A_R6'); lds_spin(C_MID,None,8,vZ,2,sleep=1); E('s_branch L_A_RBACK')
    LBL('L_A_LAST')
    pair_iter(2,None,rv(3),last=1); pair_iter(3,None,None,last=2)
else:
    E(f's_and_b32 s{sT+5}, s{sWave}, 6\n s_cmp_eq_u32 s{sT+5}, 2\n s_cselect_b32 s{sT+5}, 0, 1')
    for j in range(32):
        if j in (2,6,10): E('s_waitcnt lgkmcnt(0)'); tag_wait(T_G+4*{2:2,6:3,10:1}[j],1,2)
        if j in (1,2,3,5): aflag(j==5)
        PJ=[int(x) for x in OPT.get('pj','16,29').split(',')]
        if PRIO=='step' and j in PJ: E(f's_setprio {1 if j==PJ[0] else 0}')
        if PRIO=='step4' and j in (6,16): E(f's_setprio {1 if j==6 else 0}')
        if OPT.get('jst') and j in (2,4,8,16,24): E('s_waitcnt lgkmcnt(0)'); cstamp('A',{2:1,4:2,8:3,16:7,24:10}[j],f'J{j}')
        if j==14: E('s_waitcnt lgkmcnt(0)'); lds_spin(C_K2,None,0x404,vZ,2,sleep=1)
        if j==16: lds_add(C_MID,1,vZ,2)
        if j==28: E('s_waitcnt lgkmcnt(0)'); lds_spin(C_MID,None,8,vZ,2,sleep=1)
        def lv(j=j):
            if j==15: E(f'v_add_u32 v{AVA}, 0x10000, v{AVA}')
            ldv(j+1)
        def lk(j=j):
            if j==14: E(f'v_add_u32 v{AKA}, 0x10000, v{AKA}')
            ldk(j+2)
        if j==31:
            C('has the partner of this wave (same queries, other keys) already left its sums ?  if so they arrive during the last tile')
            E(f'ds_read_b32 v127, v{AEX+2} offset:16\n ds_read_b32 v125, v{vZ} offset:{C_LOC-L_ST}')
            for q in range(2): E(f'ds_read_b128 {vr(128+12*q,4)}, v{AEX} offset:{2304*q}\n ds_read_b128 {vr(132+12*q,4)}, v{AEX} offset:{2304*q+1024}\n ds_read_b32 v{136+12*q}, v{AEX+1} offset:{2304*q+2048}')
        pair_iter(j,lk,lv,first=(j==0),last=(2 if j==31 else 1 if j==30 else 0),extra=(1 if j==16 else 0))
E('s_nop 1'); smf(OB,AV+8+4,SB+8,AIDX)
stamp('A',5,'A loop done'); cstamp('A',9,'loop done')
C('---- the first wave of a pair to finish leaves both partial sums in LDS and ends ; the second one finishes both heads')
E(f'v_readfirstlane_b32 s{sT+1}, v127\n v_readfirstlane_b32 s{sT+9}, v125\n s_cmp_eq_u32 s{sT+1}, 1\n s_cbranch_scc1 L_A_LATE')
E(f'v_mov_b32 v2, 1\n s_mov_b64 exec, 1\n ds_add_rtn_u32 v3, v{AEX+2}, v2\n s_mov_b64 exec, -1\n s_waitcnt lgkmcnt(0)\n v_readfirstlane_b32 s{sT+1}, v3\n s_cmp_eq_u32 s{sT+1}, 0\n s_cbranch_scc0 L_A_TIE\n s_nop 3')
for q,O in enumerate((OA,OB)): E(f'ds_write_b128 v{AEX}, {vr(O,4)} offset:{2304*q}\n ds_write_b128 v{AEX}, {vr(O+4,4)} offset:{2304*q+1024}\n ds_write_b32 v{AEX+1}, v{O+8} offset:{2304*q+2048}')
E(f's_mov_b64 exec, 1\n ds_write_b32 v{AEX+2}, v2 offset:16\n s_mov_b64 exec, -1\n s_waitcnt lgkmcnt(0)')
if OPT.get('dry','0')=='1': E('s_mov_b64 exec, 0\n s_branch L_A_LATE')
else: E('s_branch L_A_STD')
LBL('L_A_TIE')
E(f's_mov_b32 s{sCnt}, {SPIN_LIMIT}')
LBL('L_A_TI2')
E(f'ds_read_b32 v127, v{AEX+2} offset:16')
for q in range(2): E(f'ds_read_b128 {vr(128+12*q,4)}, v{AEX} offset:{2304*q}\n ds_read_b128 {vr(132+12*q,4)}, v{AEX} offset:{2304*q+1024}\n ds_read_b32 v{136+12*q}, v{AEX+1} offset:{2304*q+2048}')
E(f's_waitcnt lgkmcnt(0)\n v_readfirstlane_b32 s{sT+1}, v127\n s_cmp_eq_u32 s{sT+1}, 1\n s_cbranch_scc1 L_A_LATE\n s_sub_u32 s{sCnt}, s{sCnt}, 1\n s_cbranch_scc0 L_A_TI2')
LBL('L_A_LATE')
for r in range(9): E(f'v_add_f32 v{OA+r}, v{OA+r}, v{140+r}')
for r in range(9): E(f'v_add_f32 v{OB+r}, v{OB+r}, v{128+r}')
C('guard (both heads): row sum inside [2^-24, 2^60] and finite numerators in every lane, else redo with the true maximum')
E(f'v_add_f32 v2, |v{OA}|, |v{OA+1}|\n v_add_f32 v4, |v{OB}|, |v{OB+1}|')
for r in range(2,8): E(f'v_add_f32 v2, v2, |v{OA+r}|\n v_add_f32 v4, v4, |v{OB+r}|')
E(f's_mov_b32 s{sT+2}, 0x7f800000\n s_mov_b32 s{sT+3}, {hex(L_LO)}\n s_mov_b32 s{sT+4}, {hex(L_HI)}')
E(f'v_cmp_ngt_f32 {sr(sT,2)}, s{sT+2}, v2\n v_cmp_ngt_f32 s[82:83], s{sT+2}, v4')
E(f'v_cmp_nle_f32 vcc, s{sT+3}, v{OA+8}\n v_cmp_nle_f32 {sr(sT+6,2)}, s{sT+3}, v{OB+8}\n s_or_b64 {sr(sT,2)}, {sr(sT,2)}, vcc\n s_or_b64 s[82:83], s[82:83], {sr(sT+6,2)}')
E(f'v_cmp_nge_f32 vcc, s{sT+4}, v{OA+8}\n v_cmp_nge_f32 {sr(sT+6,2)}, s{sT+4}, v{OB+8}\n s_or_b64 {sr(sT,2)}, {sr(sT,2)}, vcc\n s_or_b64 s[82:83], s[82:83], {sr(sT+6,2)}')
E(f's_or_b64 vcc, {sr(sT,2)}, s[82:83]\n s_cbranch_scc1 L_FB_AX')
LBL('L_FB_AX_BACK')
E(f'v_rcp_f32 v2, v{OA+8}\n v_rcp_f32 v4, v{OB+8}\n s_xor_b32 s{sT+1}, s{sOA}, 0x400\n s_waitcnt vmcnt(0)\n v_mul_f32 v2, v2, v126\n v_mul_f32 v4, v4, v126')
for r in range(0,8,2): E(f'v_pk_mul_f32 {vr(OA+r,2)}, {vr(OA+r,2)}, v[2:3] op_sel_hi:[1,0]\n v_pk_mul_f32 {vr(OB+r,2)}, {vr(OB+r,2)}, v[4:5] op_sel_hi:[1,0]')
for r in range(4): cvt(152+r,OA+2*r,OA+2*r+1); cvt(156+r,OB+2*r,OB+2*r+1)
E(f'v_min_u32 v152, -2, v152\n v_min_u32 v156, -2, v156\n s_cmp_eq_u32 s{sT+9}, 0\n s_cbranch_scc1 L_A_FAR')
E(f'buffer_store_dwordx4 v[152:155], v6, {sr(sWS)}, s{sOA} offen nt\n buffer_store_dwordx4 v[156:159], v6, {sr(sWS)}, s{sT+1} offen nt\n s_branch L_A_STD')
LBL('L_A_FAR')
E(f'buffer_store_dwordx4 v[152:155], v6, {sr(sWS)}, s{sOA} offen sc1\n buffer_store_dwordx4 v[156:159], v6, {sr(sWS)}, s{sT+1} offen sc1')
def setupA(): E(f's_mov_b32 s{sT+2}, {hex(WS_KVA)}\n s_mov_b32 s{sT+3}, 64')
save=L; L=[]
LBL('L_FB_AX')
E(f's_cmp_lg_u64 {sr(sT,2)}, 0\n s_cbranch_scc1 L_FB_A0')
LBL('L_FB_AX2')
E('s_cmp_lg_u64 s[82:83], 0\n s_cbranch_scc1 L_FB_A1\n s_branch L_FB_AX_BACK')
TAIL.extend(L); L=save
fallback('L_FB_A0','L_FB_AX2',AQ0,OA,SA,AK,AV,AIDX,3,6,7,None,setupA)
fallback('L_FB_A1','L_FB_AX_BACK',AQ1,OB,SA,AK,AV,AIDX,3,6,7,None,setupA)
LBL('L_A_STD')
if DIAG: E('s_mov_b64 exec, -1')
stamp('A',6,'oA published')
stamp_flush(12,'A')
LBL('L_END')
E('s_endpgm')
L.append('L_CODE_END:')
L.extend(TAIL)
L.append('    s_endpgm\n.fill 1200, 4, 0xbf810000')

hdr=open('cdna_kernels/%s.s.ref'%NAME).read().split('; Override launch')[0]
txt=hdr
txt+=f'; @launch grid=(256,1,1) block=(768,1,1) lds={LDS_TOTAL}\n'
DOC="""
One workgroup per CU: WG = (64 positions pb, 4 heads hg); 8 "A" waves + 4 "B" waves, LDS 160 KB.
 head : waves 0-3 project q(A), q/k/v(B) (weights streamed by LDS-DMA through private rings, transposing LDS reads),
        waves 4-7 make this WG's 16-position piece of the shared K/V (and the gate), publish it, wait for all pieces.
 main : A waves - MQA over all 2048 keys (S^T = K Q^T, exp2 in place, P^T fed raw to a 2:4 sparse MFMA that picks the
        high halves = bf16 P; a row of ones in V^T gives the row sums).  B waves - window attention, then B out-projection.
 tail : o (already divided by the row sum and scaled by g or 1-g) is handed to the WGs of the same positions,
        B waves finish out = [g oA | (1-g) oB] [woA ; woB].
 softmax guard: exp2 runs on unshifted scores; every row's sum must lie in [2^-24, 2^60] and its numerators must be finite,
        otherwise that query tile is redone with the true row maximum (L_FB_*: max pass, then exp2(s - max)).
 hand-offs in d_ws carry a tag derived from the epoch word found at ws[0] (advanced once per launch), or overwrite a
        'not yet written' mark; all are write-through + acknowledged, except oA between WGs that report the same XCC id.
"""
for l in DOC.strip('\n').split('\n'): txt+='; '+l+'\n'
for n in () if not DIAG and not OPT.get('consts') else ('WS_KVA','WS_KVB','WS_OA','WS_OB','WS_STAMP','NSTAMP'): txt+=f'; CONST {n} = {hex(globals()[n])}\n'
for r,i,n in STN: txt+=f'; STAMPNAME {r} {i} {n}\n'
txt+=f'''.amdgcn_target "amdgcn-amd-amdhsa--gfx950"
.text
.globl {NAME}_kernel
.p2align 8
.type {NAME}_kernel,@function
{NAME}_kernel:
'''+'\n'.join(L)+f'''
.section .rodata,"a"
.p2align 6
.amdhsa_kernel {NAME}_kernel
  .amdhsa_next_free_vgpr 168
  .amdhsa_next_free_sgpr 102
  .amdhsa_accum_offset 168
  .amdhsa_group_segment_fixed_size 0
  .amdhsa_kernarg_size 96
  .amdhsa_user_sgpr_count 2
  .amdhsa_user_sgpr_kernarg_segment_ptr 1
  .amdhsa_system_sgpr_workgroup_id_x 1
.end_amdhsa_kernel
'''
open(OUT,'w').write(txt)
print('wrote',OUT,len(L),'lines')
```

```python
import sys, math, struct
NAME='gated_mix__grouped_kv_mqa__sliding_block__prompt'
DIAG = '--diag' in sys.argv
OUT = [a for a in sys.argv[1:] if not a.startswith('--')]
OUT = OUT[0] if OUT else 'cdna_kernels/%s.s'%NAME
OPT=dict(a.lstrip('-').split('=') for a in sys.argv[1:] if a.startswith('--') and '=' in a)
MAP=OPT.get('map','b'); ROT=OPT.get('rot','full'); PRIO=OPT.get('prio','step'); FLAG_IT=int(OPT.get('flagit','1')); PK=int(OPT.get('pk','7')); FORCE_K=int(OPT.get('forcek','7')); SENTK=int(OPT.get('sentk','14')); DENSE=OPT.get('dense','0')=='1'; ROLL=OPT.get('roll','0')=='1'; WT=OPT.get('wtouch','0')=='1'; KVK=int(OPT.get('kvk','13'))
def f2u(f): return struct.unpack('<I',struct.pack('<f',f))[0]

WS_EPOCH=0x0
WS_FKVA=0x1000
WS_FKVB=0x4000
WS_FOB =0xC000
WS_FOA =0x14000
WS_G   =0x1C000
WS_KVA =0x20000
WS_QB  =0x40000
WS_KVB =0x240000
WS_OA  =0x640000
WS_OB  =0x840000
WS_STAMP=0xA40000
NSTAMP=16
L_WQ=0; L_X=65536; L_ST=131072; L_CTL=L_ST+30720
L_GW=L_CTL; L_G=L_CTL+1024; L_C=L_CTL+1024+256
C_X=L_C+0
C_Q=L_C+4
C_K0=L_C+8; C_K1=L_C+12; C_K2=L_C+16; C_BP=L_C+20; C_MID=L_C+24; C_WO=L_C+28; C_WD=L_C+32; C_QR=L_C+36; C_SN=L_C+40; C_LOC=L_C+44; T_PT=L_C+256; T_X=L_C+272; T_PL=L_C+304; T_FL=L_C+308; T_G=L_C+320; T_X0=L_C+336; T_K0=L_C+352; T_Q1=L_C+356; T_H=L_C+368; T_TAG=L_C+372; C_PR=L_C+384; T_PR=L_C+400; T_Q=L_C+416
L_EX=L_ST
LDS_TOTAL=163840
SPIN_LIMIT=400000
CSCALE=f2u(0.25*math.log2(math.e))
NEGBIG=f2u(-1e9)
L_LO=f2u(2.0**-24); L_HI=f2u(2.0**60)

sX=28; sWQ=32; sWKV=36; sWB=40; sWOA=44; sWOB=48; sG=52; sOUT=56; sWS=60; sDBG=64
sWave=68; sPb=69; sHg=70; sTag=71
sT=72
sCnt=84; sB=85
sXcc=65
sVM=86
sST=88
vZ=1
L=[]
def E(s):
    for ln in s.split('\n'):
        if ln.strip(): L.append('    '+ln.strip())
def LBL(s): L.append(s+':')
def C(s): L.append('    ; '+s)
_uid=[0]
def uid(p):
    _uid[0]+=1; return f'{p}_{_uid[0]}'
def vr(a,n): return f'v[{a}:{a+n-1}]'
def sr(a,n=4): return f's[{a}:{a+n-1}]'
def srd(dst,ptr,nbytes):
    E(f's_mov_b32 s{dst}, s{ptr}\n s_mov_b32 s{dst+1}, s{ptr+1}\n s_mov_b32 s{dst+2}, {hex(nbytes)}\n s_mov_b32 s{dst+3}, 0x20000')
STN=[]
def stamp(role,i,name):
    if OPT.get('acc') and role=='B' and i==10: return
    if OPT.get('jst') and role=='A' and i in (1,2,3,7): return
    if OPT.get('bst') and role=='B' and i in (6,7,8,9) and not name.startswith('arrive'): return
    if not DIAG: return
    STN.append((role,i,name))
    E(f's_memrealtime s[100:101]\n s_waitcnt lgkmcnt(0)\n s_mov_b32 s{sST+i}, s100')
ECHO=OPT.get('echo')
def echo_mark(name):
    if ECHO==name or name=='start' and ECHO:
        r=98 if name=='start' else 99
        E(f's_memrealtime s[100:101]\n s_waitcnt lgkmcnt(0)\n s_mov_b32 s{r}, s100')
def echo_end():
    if not ECHO: return
    E('s_waitcnt vmcnt(0)'); echo_mark('end')
    E('s_memrealtime s[100:101]\n s_waitcnt lgkmcnt(0)\n s_sub_u32 s99, s99, s98\n s_mul_i32 s99, s99, '+OPT.get('amp','1')+'\n s_add_u32 s99, s99, s100')
    LBL('L_ECHO')
    E('s_memrealtime s[100:101]\n s_waitcnt lgkmcnt(0)\n s_sub_u32 s100, s100, s99\n s_cmp_lt_i32 s100, 0\n s_cbranch_scc1 L_ECHO')
def cstamp(role,i,name):
    if OPT.get('jst') and i in (10,11) and not name.startswith('J'): return
    if not DIAG: return
    STN.append((role,i,'CYC '+name))
    E(f's_memtime s[100:101]\n s_waitcnt lgkmcnt(0)\n s_mov_b32 s{sST+i}, s100')
def tacc(role,i,name,code):
    if not (DIAG and OPT.get('acc')): E(code); return
    if (role,i,'ACC '+name) not in STN: STN.append((role,i,'ACC '+name))
    E(f's_memtime s[100:101]\n s_waitcnt lgkmcnt(0)\n s_sub_u32 s{sST+i}, s{sST+i}, s100')
    E(code)
    E(f's_memtime s[100:101]\n s_waitcnt lgkmcnt(0)\n s_add_u32 s{sST+i}, s{sST+i}, s100')
def stamp_flush(nmax,role='B'):
    if not DIAG: return
    if OPT.get('dbg'):
        m={'A':[(0,1),(2,2),(7,3),(3,4),(1,5),(4,6),(5,7),(6,8)],'B':[(4,9),(6,10),(7,11),(9,12),(10,13),(11,14)]}[role]
        sk=uid('nd')
        srd(sDBG,24,256)
        E(f's_bfe_u32 s{sT}, s2, 0x30003\n s_cmp_eq_u32 s{sT}, 0\n s_cbranch_scc0 {sk}\n v_mov_b32 v2, 0\n s_not_b32 s{sT}, s{sST}\n v_writelane_b32 v2, s{sT}, 0')
        for i,sl in m: E(f'v_writelane_b32 v2, s{sST+i}, {sl}')
        E(f'v_lshlrev_b32 v3, 2, v0\n s_mov_b64 exec, 0xffff\n buffer_atomic_umax v2, v3, {sr(sDBG)}, 0 offen sc1\n s_mov_b64 exec, -1')
        LBL(sk)
        return
    if OPT.get('hwid'): E(f's_getreg_b32 s{sST+11}, hwreg(HW_REG_HW_ID)\n s_getreg_b32 s{sST+10}, hwreg(HW_REG_XCC_ID)')
    E('v_mov_b32 v2, 0')
    for i in range(nmax): E(f'v_writelane_b32 v2, s{sST+i}, {i}')
    E(f's_mul_i32 s{sT}, s2, 12\n s_add_u32 s{sT}, s{sT}, s{sWave}\n s_lshl_b32 s{sT}, s{sT}, 6\n s_add_u32 s{sT}, s{sT}, {hex(WS_STAMP)}')
    E(f'v_lshlrev_b32 v3, 2, v0\n s_mov_b64 exec, 0xffff\n buffer_store_dword v2, v3, {sr(sWS)}, s{sT} offen\n s_mov_b64 exec, -1')

def lds_add(off,val,vz,vt):
    E(f'v_mov_b32 v{vt}, {val}\n s_mov_b64 exec, 1\n ds_add_u32 v{vz}, v{vt} offset:{off-L_ST}\n s_mov_b64 exec, -1')
def lds_spin(off,mask,val,vz,vt,sleep=1):
    a=uid('spin'); d=uid('spind')
    E(f's_mov_b32 s{sCnt}, {SPIN_LIMIT}')
    LBL(a)
    E(f'ds_read_b32 v{vt}, v{vz} offset:{off-L_ST}\n s_waitcnt lgkmcnt(0)\n v_readfirstlane_b32 s{sT}, v{vt}')
    if mask is not None: E(f's_and_b32 s{sT}, s{sT}, {hex(mask)}')
    E(f's_cmp_eq_u32 s{sT}, {hex(val)}\n s_cbranch_scc1 {d}\n s_sub_u32 s{sCnt}, s{sCnt}, 1\n s_cbranch_scc1 {d}')
    if sleep: E(f's_sleep {sleep}')
    E(f's_branch {a}')
    LBL(d)
def tag_set(off,sidx,vt):
    if sidx is None: E(f'v_mov_b32 v{vt}, {off}')
    else: E(f's_lshl_b32 s{sT}, s{sidx}, 2\n s_add_u32 s{sT}, s{sT}, {off}\n v_mov_b32 v{vt}, s{sT}')
    E(f'v_mov_b32 v{vt+1}, 1\n s_mov_b64 exec, 1\n ds_write_b32 v{vt}, v{vt+1}\n s_mov_b64 exec, -1')
def tag_wait(off,n,vt,sleep=0,once=None):
    a=uid('tw'); d=uid('twd')
    E(f'v_and_b32 v{vt}, {n-1}, v0\n v_lshlrev_b32 v{vt}, 2, v{vt}\n v_add_u32 v{vt}, {off}, v{vt}')
    if once:
        E(f'ds_read_b32 v{vt+1}, v{vt}\n s_waitcnt lgkmcnt(0)\n v_cmp_ne_u32 vcc, 1, v{vt+1}\n s_cbranch_vccz {once}')
        return
    E(f's_mov_b32 s{sCnt}, {SPIN_LIMIT}')
    LBL(a)
    E(f'ds_read_b32 v{vt+1}, v{vt}\n s_waitcnt lgkmcnt(0)\n v_cmp_ne_u32 vcc, 1, v{vt+1}\n s_cbranch_vccz {d}\n s_sub_u32 s{sCnt}, s{sCnt}, 1\n s_cbranch_scc1 {d}')
    if sleep: E(f's_sleep {sleep}')
    E(f's_branch {a}')
    LBL(d)
def tag_get(vt):
    E(f'ds_read_b32 v{vt}, v{vZ} offset:{T_TAG-L_ST}\n s_waitcnt lgkmcnt(0)\n v_readfirstlane_b32 s{sTag}, v{vt}')
def poll(vaddr,n,vt,sleep=1):
    a=uid('poll'); d=uid('polld')
    E(f's_mov_b32 s{sCnt}, {SPIN_LIMIT}')
    LBL(a)
    op={1:'buffer_load_dword',2:'buffer_load_dwordx2',3:'buffer_load_dwordx3',4:'buffer_load_dwordx4'}[n]
    E(f'{op} {vr(vt,n) if n>1 else "v%d"%vt}, v{vaddr}, {sr(sWS)}, 0 offen sc1\n s_waitcnt vmcnt(0)')
    for i in range(n): E(f'v_xor_b32 v{vt+i}, s{sTag}, v{vt+i}')
    if n==2: E(f'v_or_b32 v{vt}, v{vt}, v{vt+1}')
    if n>=3: E(f'v_or3_b32 v{vt}, v{vt}, v{vt+1}, v{vt+2}')
    if n==4: E(f'v_or_b32 v{vt}, v{vt}, v{vt+3}')
    E(f'v_cmp_ne_u32 vcc, 0, v{vt}\n s_cbranch_vccz {d}\n s_sub_u32 s{sCnt}, s{sCnt}, 1\n s_cbranch_scc1 {d}')
    if sleep: E(f's_sleep {sleep}')
    E(f's_branch {a}')
    LBL(d)
def flag_store(soff_reg,vt):
    E(f'v_mov_b32 v{vt}, s{sTag}\n s_mov_b64 exec, 1\n buffer_store_dword v{vt}, off, {sr(sWS)}, s{soff_reg} sc1\n s_mov_b64 exec, -1')
def mfma(d,a,b,c=None):
    cc = vr(d,16) if c is None else (c if isinstance(c,str) else vr(c,16))
    E(f'v_mfma_f32_32x32x16_bf16 {vr(d,16)}, {vr(a,4)}, {vr(b,4)}, {cc}')
def smf(o,v,s,idx): E(f'v_smfmac_f32_32x32x32_bf16 {vr(o,16)}, {vr(v,4)}, {vr(s,8)}, v{idx}')
def vexp(r): E(f'v_exp_f32 v{r}, v{r}')
def cvt(d,a,b): E(f'v_cvt_pk_bf16_f32 v{d}, v{a}, v{b}')
def set_vpad(regs,vt):
    E(f'v_and_b32 v{vt}, 27, v0\n v_cmp_eq_u32 vcc, 16, v{vt}\n v_mov_b32 v{vt}, 0x3f803f80\n s_nop 0\n v_cndmask_b32 v{regs[0]}, 0, v{vt}, vcc')
    for r in regs[1:]: E(f'v_mov_b32 v{r}, v{regs[0]}')
def xaddr(base,t_imm,vt):
    E(f'v_and_b32 v{vt}, 15, v0\n v_lshrrev_b32 v{base}, 5, v0\n v_xor_b32 v{base}, v{base}, v{vt}\n v_lshlrev_b32 v{base}, 4, v{base}')
    E(f'v_and_b32 v{vt}, 31, v0\n v_lshl_add_u32 v{base}, v{vt}, 10, v{base}\n v_add_u32 v{base}, {t_imm}, v{base}')
    for b in range(1,8): E(f'v_xor_b32 v{base+b}, {b<<5}, v{base}')
def traddr128(dst,vt,vt2,rowsel,colbase):
    E(f'v_lshrrev_b32 v{vt}, 5, v0\n v_lshlrev_b32 v{vt}, {rowsel}, v{vt}\n v_bfe_u32 v{vt2}, v0, 2, 2\n v_add_u32 v{vt}, v{vt}, v{vt2}\n v_lshlrev_b32 v{dst}, 7, v{vt}')
    E(f'v_bfe_u32 v{vt}, v0, 4, 1\n v_lshlrev_b32 v{vt}, 1, v{vt}\n v_bfe_u32 v{vt2}, v0, 1, 1\n v_add3_u32 v{vt}, v{vt}, v{vt2}, {colbase}')
    E(f'v_bfe_u32 v{vt2}, v0, 3, 1\n v_lshlrev_b32 v{vt2}, 2, v{vt2}\n v_xor_b32 v{vt}, v{vt}, v{vt2}\n v_lshl_add_u32 v{dst}, v{vt}, 4, v{dst}')
    E(f'v_and_b32 v{vt}, 1, v0\n v_lshl_add_u32 v{dst}, v{vt}, 3, v{dst}')
def dma128_voff(dst,vt,vt2,rowstride_sreg_or_shift,colbytes):
    E(f'v_lshrrev_b32 v{vt}, 3, v0')
    if isinstance(rowstride_sreg_or_shift,int): E(f'v_lshlrev_b32 v{dst}, {rowstride_sreg_or_shift}, v{vt}')
    else: E(f'v_mul_u32_u24 v{dst}, {rowstride_sreg_or_shift}, v{vt}')
    E(f'v_bfe_u32 v{vt}, v0, 4, 1\n v_lshlrev_b32 v{vt}, 2, v{vt}\n v_and_b32 v{vt2}, 7, v0\n v_xor_b32 v{vt}, v{vt}, v{vt2}\n v_lshl_add_u32 v{dst}, v{vt}, 4, v{dst}\n v_add_u32 v{dst}, {colbytes}, v{dst}')
def finalize(O,dst,vt,lbl_fb,lbl_back,vg):
    C('guard: row sum inside [2^-24, 2^60] and finite numerators in every lane, else redo with the true maximum')
    E(f'v_add_f32 v{vt}, |v{O}|, |v{O+1}|')
    for r in range(2,8): E(f'v_add_f32 v{vt}, v{vt}, |v{O+r}|')
    E(f'v_mov_b32 v{vt+1}, 0x7f800000\n v_cmp_nlt_f32 {sr(sT,2)}, v{vt}, v{vt+1}')
    E(f'v_cmp_nle_f32 vcc, {hex(L_LO)}, v{O+8}\n s_or_b64 {sr(sT,2)}, {sr(sT,2)}, vcc')
    E(f'v_cmp_nge_f32 vcc, {hex(L_HI)}, v{O+8}\n s_or_b64 {sr(sT,2)}, {sr(sT,2)}, vcc\n s_cbranch_scc1 {lbl_fb}')
    LBL(lbl_back)
    E(f'v_rcp_f32 v{vt}, v{O+8}\n s_nop 0\n v_mul_f32 v{vt}, v{vt}, v{vg}')
    for r in range(0,8,2): E(f'v_pk_mul_f32 {vr(O+r,2)}, {vr(O+r,2)}, {vr(vt,2)} op_sel_hi:[1,0]')
    for r in range(4): cvt(dst+r,O+2*r,O+2*r+1)
    E(f'v_min_u32 v{dst}, -2, v{dst}')

TAIL=[]
RETRY=[]
def fallback(lbl,back,Q,O,S,K,V,IDX,vM,vK,vV,ntile,soff_setup,first_mask=None,last_mask=None,first_cond=None):
    global L
    save=L; L=[]
    LBL(lbl)
    C('exact softmax for one query tile: pass 1 row maxima, pass 2 exp2(s - max) ; K/V fragments from d_ws')
    soff_setup()
    E(f'v_mov_b32 v{vM}, 0xff800000')
    for p in (0,1):
        lp=uid('fbl')
        if p==1:
            E(f'v_mov_b32 v{S}, v{vM}\n s_nop 1\n v_permlane32_swap_b32 v{S}, v{vM}\n s_nop 1\n v_max_f32 v{vM}, v{vM}, v{S}')
            for r in range(16): E(f'v_mov_b32 v{O+r}, 0')
        E(f's_mov_b32 s{sT+5}, s{sT+2}\n s_mov_b32 s{sT+6}, 0')
        LBL(lp)
        E(f'buffer_load_dwordx4 {vr(K,4)}, v{vK}, {sr(sWS)}, s{sT+5} offen sc1')
        if p==1:
            E(f's_mov_b64 exec, {sr(sVM,2)}\n buffer_load_dwordx4 {vr(V,4)}, v{vV}, {sr(sWS)}, s{sT+5} offen offset:1024 sc1\n buffer_load_dwordx4 {vr(V+4,4)}, v{vV}, {sr(sWS)}, s{sT+5} offen offset:1536 sc1\n s_mov_b64 exec, -1')
        E('s_waitcnt vmcnt(0)')
        if first_mask is None:
            mfma(S,K,Q,'0')
        else:
            a=uid('fbm'); b=uid('fbm'); j=uid('fbm')
            E(f's_add_u32 s{sT+7}, s{sT+6}, 1\n s_cmp_eq_u32 s{sT+7}, s{sT+3}\n s_cbranch_scc1 {a}')
            E(f's_cmp_lt_u32 s{sT+6}, s{sT+4}\n s_cbranch_scc1 {b}')
            mfma(S,K,Q,'0'); E(f's_branch {j}')
            LBL(a); mfma(S,K,Q,last_mask); E(f's_branch {j}')
            LBL(b); mfma(S,K,Q,first_mask)
            LBL(j)
        E('s_nop 15')
        if p==0:
            for r in range(0,16,2): E(f'v_max3_f32 v{vM}, v{S+r}, v{S+r+1}, v{vM}')
        else:
            for r in range(16): E(f'v_sub_f32 v{S+r}, v{S+r}, v{vM}')
            for r in range(16): vexp(S+r)
            E('s_nop 1'); smf(O,V,S,IDX); smf(O,V+4,S+8,IDX)
        E(f's_add_u32 s{sT+5}, s{sT+5}, 2048\n s_add_u32 s{sT+6}, s{sT+6}, 1\n s_cmp_lt_u32 s{sT+6}, s{sT+3}\n s_cbranch_scc1 {lp}')
    E(f's_nop 15\n s_branch {back}')
    TAIL.extend(L); L=save

E('s_cmp_ge_u32 s2, 256\n s_cbranch_scc1 L_END')
if ECHO=='karg': E('s_memrealtime s[100:101]\n s_waitcnt lgkmcnt(0)\n s_mov_b32 s97, s100')
E('s_load_dwordx16 s[4:19], s[0:1], 0\n s_load_dwordx8 s[20:27], s[0:1], 64')
E(f'v_lshrrev_b32 v1, 6, v0\n v_and_b32 v0, 63, v0\n v_readfirstlane_b32 s{sWave}, v1')
if MAP=='b' and OPT.get('alt'):
    E(f's_and_b32 s{sT}, s2, 7\n s_lshr_b32 s{sT+2}, s2, 6\n s_lshl_b32 s{sPb}, s{sT}, 2\n s_or_b32 s{sPb}, s{sPb}, s{sT+2}\n s_bfe_u32 s{sHg}, s2, 0x30003')
elif MAP=='b':
    E(f's_add_u32 s{sT}, s2, {OPT.get("sh","1")}\n s_and_b32 s{sT}, s{sT}, 7\n s_lshr_b32 s{sT+1}, s2, 3\n s_and_b32 s{sT+2}, s{sT+1}, 3\n s_lshl_b32 s{sPb}, s{sT}, 2\n s_or_b32 s{sPb}, s{sPb}, s{sT+2}\n s_lshr_b32 s{sHg}, s{sT+1}, 2')
else:
    E(f's_bfe_u32 s{sPb}, s2, 0x20001\n s_lshl_b32 s{sPb}, s{sPb}, 3\n s_bfe_u32 s{sT}, s2, 0x30003\n s_or_b32 s{sPb}, s{sPb}, s{sT}\n s_and_b32 s{sHg}, s2, 1\n s_lshl_b32 s{sHg}, s{sHg}, 2\n s_lshr_b32 s{sT}, s2, 6\n s_or_b32 s{sHg}, s{sHg}, s{sT}')
E(f's_mov_b32 s{sVM}, 0xffff\n s_mov_b32 s{sVM+1}, 0xffff')
if DIAG:
    for i in range(12): E(f's_mov_b32 s{sST+i}, 0')
def codepf():
  if OPT.get('cpf','1')=='1':
      C('---- pull this WG\'s share of the kernel\'s own instructions into L2 (later instruction fetches then miss only the I-cache)')
      E(f's_cmp_eq_u32 s{sWave}, 11\n s_cbranch_scc0 L_B_NCP\n s_getpc_b64 s[{sT}:{sT+1}]')
      LBL('L_B_PC')
      E(f's_lshr_b32 s{sT+2}, s2, 3\n s_mul_i32 s{sT+2}, s{sT+2}, (L_CODE_END-L_B_PC+4095)/4096*128\n s_add_u32 s{sT}, s{sT}, s{sT+2}\n s_addc_u32 s{sT+1}, s{sT+1}, 0')
      E(f'v_lshlrev_b32 v2, 7, v0\n v_mov_b32 v3, s{sT+1}\n v_add_co_u32 v2, vcc, s{sT}, v2\n s_nop 1\n v_addc_co_u32 v3, vcc, 0, v3, vcc\n s_lshl_b64 exec, 1, (L_CODE_END-L_B_PC+4095)/4096\n s_sub_u32 exec_lo, exec_lo, 1\n global_load_dword v63, v[2:3], off\n s_mov_b64 exec, -1')
      LBL('L_B_NCP')
if OPT.get('cpe','0')=='1': codepf()
C('clear the LDS counters and flags while the kernel arguments arrive')
E(f'v_lshlrev_b32 v2, 3, v0\n v_add_u32 v2, {L_C}, v2\n v_mov_b32 v4, 0\n v_mov_b32 v5, 0\n ds_write_b64 v2, v[4:5]')
E('s_waitcnt lgkmcnt(0)\n s_barrier')
stamp('A',0,'start'); stamp('B',0,'start'); echo_mark('start')
if ECHO=='karg': E('s_sub_u32 s99, s98, s97\n s_mul_i32 s99, s99, 10\n s_add_u32 s99, s99, s98')
srd(sX,4,2048*1024); srd(sWS,26,0x10000000)
E(f's_cmp_lt_u32 s{sWave}, 8\n s_cbranch_scc1 L_A')


KVPOS=[L_ST,32768,49152,16384,65536,81920,98304,114688]
L_PART=L_ST+24576
L_QA=0; L_QB=8192; L_WO=0; L_FX=65536
sOut=66; sOb=67; sPass=64
sRot=sT+11
def mktag(): E(f's_mul_i32 s{sTag}, s{sTag}, 0x9E3779B1\n s_add_u32 s{sTag}, s{sTag}, 0x7F4A7C15')
FT=OPT.get('ft','0')
def mkrot():
    if FT!='0' and not OPT.get('ftrot'): E(f's_mov_b32 s{sRot}, 0'); return
    if MAP=='b': E(f's_and_b32 s{sRot}, s{sPb}, 3\n s_lshl_b32 s{sRot}, s{sRot}, 1\n s_add_u32 s{sRot}, s{sRot}, s{sHg}')
    else: E(f's_lshl_b32 s{sRot}, s{sHg}, 1\n s_add_u32 s{sRot}, s{sRot}, s{sPb}')
def touch(srd_,soff,n,vaddr,vd,sc1=False):
    for i in range(n):
        if i: E(f's_add_u32 s{soff}, s{soff}, 8192')
        E(f'buffer_load_dword v{vd}, v{vaddr}, {sr(srd_)}, s{soff} offen'+(' sc1' if sc1 else ''))
E(f's_setprio {2 if OPT.get("bp2") else 3}\n s_sub_u32 s{sB}, s{sWave}, 8')
if OPT.get('cpe','0')=='0': codepf()
C('---- x tile -> LDS as 8 blocks of [64 rows][64 k], block order rotated per WG ; wave b brings blocks b and b+4')
E('v_lshrrev_b32 v17, 3, v0\n v_lshlrev_b32 v17, 10, v17\n v_lshrrev_b32 v2, 4, v0\n v_and_b32 v3, 7, v0\n v_xor_b32 v2, v2, v3\n v_lshl_add_u32 v17, v2, 4, v17\n v_xor_b32 v18, 64, v17')
mkrot()
E(f's_lshl_b32 s{sT+7}, s{sPb}, 16\n s_lshl_b32 s{sT+6}, s{sB}, 13')
VQ=[]
def vwait(tag,extra=''):
    if tag not in VQ:
        if extra: E('s_waitcnt'+extra)
        return
    i=max(n for n,t in enumerate(VQ) if t==tag)
    n=len(VQ)-1-i; del VQ[:i+1]
    E(f's_waitcnt vmcnt({n})'+extra)
XD=OPT.get('xd','1')=='1'
def xblock(expr_add,ldsoff,rows):
    E(f's_add_u32 s{sT+1}, s{sRot}, {expr_add}\n s_and_b32 s{sT+1}, s{sT+1}, 7\n s_lshl_b32 s{sT+1}, s{sT+1}, 7\n s_add_u32 s{sT+1}, s{sT+1}, s{sT+7}')
if XD:
    E(f's_and_b32 s{sT+1}, s{sRot}, 7\n s_lshl_b32 s{sT+1}, s{sT+1}, 7\n s_add_u32 s{sT+1}, s{sT+1}, s{sT+7}\n s_lshl_b32 s{sT+2}, s{sB}, 14\n s_add_u32 s{sT+1}, s{sT+1}, s{sT+2}\n s_lshl_b32 s{sT+2}, s{sB}, 11\n s_add_u32 m0, s{sT+2}, 65536\n s_nop 0')
    E(f'buffer_load_dwordx4 v17, {sr(sX)}, s{sT+1} offen lds\n s_add_u32 m0, s{sT+2}, {65536+1024}\n s_add_u32 s{sT+1}, s{sT+1}, 8192\n buffer_load_dwordx4 v18, {sr(sX)}, s{sT+1} offen lds')
def wtouch(chunk_expr):
    E(f'{chunk_expr}\n s_lshl_b32 s{sT+1}, s{sT+1}, 5\n s_lshr_b32 s{sT+2}, s2, 3\n s_add_u32 s{sT+1}, s{sT+1}, s{sT+2}\n s_lshl_b32 s{sT+2}, s{sT+1}, 11\n s_mul_i32 s{sT+1}, s{sT+1}, 6144')
    E(f's_mov_b64 exec, 0xffff\n buffer_load_dword v19, v21, {sr(sWQ)}, s{sT+2} offen\n s_mov_b32 exec_lo, -1\n s_mov_b32 exec_hi, 0xffff\n buffer_load_dword v20, v21, {sr(sWB)}, s{sT+1} offen\n s_mov_b64 exec, -1')
NT=0
if FT!='0':
    srd(sWQ,6,512*1024); srd(sWB,16,512*3072)
    E('v_lshlrev_b32 v21, 7, v0')
    wtouch(f's_mov_b32 s{sT+1}, s{sB}'); NT=2
    if FT=='2': wtouch(f's_add_u32 s{sT+1}, s{sB}, 4'); NT=4
def c3touch():
    C('lines with address bits 9:7 = 3 miss more slowly: every WG asks early for a share of that weight column block')
    E(f's_cmp_eq_u32 s{sB}, 0\n s_cselect_b32 s{sWB}, s6, s16\n s_cselect_b32 s{sWB+1}, s7, s17\n s_mov_b32 s{sWB+2}, {512*3072}\n s_cselect_b32 s{sWB+2}, {512*1024}, s{sWB+2}\n s_mov_b32 s{sWB+3}, 0x20000')
    E(f's_movk_i32 s{sT+3}, 3072\n s_cselect_b32 s{sT+3}, 0x400, s{sT+3}\n s_max_u32 s{sT+1}, s{sB}, 1\n s_sub_u32 s{sT+1}, s{sT+1}, 1\n s_lshl_b32 s{sT+1}, s{sT+1}, 10\n s_lshr_b32 s{sT+2}, s2, 3\n s_lshl_b32 s{sT+2}, s{sT+2}, 4\n s_mul_i32 s{sT+2}, s{sT+2}, s{sT+3}\n s_add_u32 s{sT+1}, s{sT+1}, s{sT+2}')
    E(f'v_mul_u32_u24 v2, s{sT+3}, v0\n s_mov_b64 exec, 0xffff\n buffer_load_dword v19, v2, {sr(sWB)}, s{sT+1} offen offset:384\n s_mov_b64 exec, -1')
C3=OPT.get('c3','2') if MAP=='b' and FT=='0' else '0'
if C3=='1': c3touch()
def xrest():
  for hb in range(2):
    sk=uid('xs')
    if XD and hb==0: E(f's_cmp_eq_u32 s{sB}, 0\n s_cbranch_scc1 {sk}')
    E(f's_add_u32 s{sT+1}, s{sRot}, s{sB}\n s_add_u32 s{sT+1}, s{sT+1}, {4*hb}\n s_and_b32 s{sT+1}, s{sT+1}, 7\n s_lshl_b32 s{sT+1}, s{sT+1}, 7\n s_add_u32 s{sT+1}, s{sT+1}, s{sT+7}')
    for n in range(8):
        E(f's_add_u32 m0, s{sT+6}, {65536+32768*hb+1024*n}')
        E(f's_add_u32 s{sT+1}, s{sT+1}, 8192' if n else 's_nop 0')
        E(f'buffer_load_dwordx4 v{17+(n&1)}, {sr(sX)}, s{sT+1} offen lds')
    if XD and hb==0: LBL(sk)
if not XD: xrest()
MU=128; MD=144; BQ=16; BK=24; BV=36; BS=64; BO=96; BIDX=60
C('---- constants for the later phases (idle time)')
E(f'v_mov_b32 v{vZ}, {L_ST}\n v_lshlrev_b32 v160, 4, v0\n v_lshlrev_b32 v163, 7, v0')
E('v_lshrrev_b32 v161, 5, v0\n v_lshlrev_b32 v161, 8, v161\n v_and_b32 v2, 15, v0\n v_lshl_add_u32 v161, v2, 4, v161')
srd(sWOA,12,512*1024); srd(sWOB,18,512*1024)
E(f'v_and_b32 v4, 31, v0\n v_lshrrev_b32 v5, 5, v0\n v_lshlrev_b32 v5, 2, v5\n v_sub_u32 v4, v4, v5\n s_mov_b32 s{sT}, {hex(NEGBIG)}')
for r in range(16):
    E(f'v_subrev_u32 v5, {8*(r//4)+r%4}, v4\n v_ashrrev_i32 v5, 31, v5\n v_and_b32 v{MD+r}, s{sT}, v5\n v_xor_b32 v{MU+r}, s{sT}, v{MD+r}')
set_vpad(list(range(BV,BV+24)),2); E(f'v_mov_b32 v{BIDX}, 0xdddddddd')
for r in range(32): E(f'v_mov_b32 v{BO+r}, 0')
E(f'v_min_u32 v2, 4, v0\n s_sub_i32 s{sT}, s{sPb}, 4\n v_add_u32 v2, s{sT}, v2\n v_max_i32 v2, 0, v2\n s_lshl_b32 s{sT}, s{sHg}, 5\n v_add_u32 v2, s{sT}, v2\n v_lshlrev_b32 v2, 7, v2\n v_add_u32 v162, {hex(WS_FKVB+8)}, v2')
E(f'v_and_b32 v2, 7, v0\n v_lshlrev_b32 v2, 5, v2\n v_add_u32 v2, s{sPb}, v2\n v_lshlrev_b32 v2, 7, v2\n v_add_u32 v166, {hex(WS_FKVB+16)}, v2')
sKh=sT+9; sTt=sT+10
E(f's_lshr_b32 s{sKh}, s{sB}, 1\n s_and_b32 s{sTt}, s{sB}, 1\n s_lshl_b32 s{sT+2}, s{sHg}, 7')
dma128_voff(10,2,3,10,f's{sT+2}')
E(f's_lshl_b32 s{sT+1}, s{sKh}, 2'); traddr128(11,2,3,2,f's{sT+1}')
E(f's_lshl_b32 s{sT+1}, s{sKh}, 15\n s_add_u32 s{sT+1}, s{sT+1}, {L_WO}\n v_add_u32 v11, s{sT+1}, v11\n v_xor_b32 v9, 64, v11')
E(f's_lshl_b32 s{sOut}, s{sPb}, 1\n s_add_u32 s{sOut}, s{sOut}, s{sTt}\n s_lshl_b32 s{sOut}, s{sOut}, 15\n s_lshl_b32 s{sT}, s{sKh}, 14\n s_add_u32 s{sOb}, s{sOut}, s{sT}\n s_add_u32 s{sOb}, s{sOb}, {hex(WS_OB)}')
E(f's_lshl_b32 s{sT}, s{sHg}, 7\n s_add_u32 s{sOut}, s{sOut}, s{sT}\n s_lshl_b32 s{sT}, s{sKh}, 6\n s_add_u32 s{sOut}, s{sOut}, s{sT}')
E('v_and_b32 v8, 31, v0\n v_lshlrev_b32 v167, 10, v8\n v_lshrrev_b32 v3, 5, v0\n v_lshl_add_u32 v167, v3, 4, v167\n v_lshlrev_b32 v8, 2, v8')
srd(sOUT,22,2048*1024)
E(f's_lshl_b32 s{sT}, s{sB}, 12\n s_add_u32 s{sT}, s{sT}, {L_FX}\n v_add_u32 v164, s{sT}, v160\n v_xor_b32 v165, 0x2000, v164\n s_mov_b32 s{sPass}, 0')
if XD:
    E(f's_waitcnt vmcnt({NT})' if NT else ('s_waitcnt vmcnt(1)' if C3=='1' else 's_waitcnt vmcnt(0)')); tag_set(T_X0,sB,2)
    if C3=='2': c3touch()
    if FT=='1': wtouch(f's_add_u32 s{sT+1}, s{sB}, 4')
    xrest()
E('s_waitcnt vmcnt(8)')
tag_set(T_X,sB,2)
stamp('B',1,'x landed'); echo_mark('xl')
E('s_waitcnt vmcnt(0)')
tag_set(T_X+16,sB,2)
if ECHO in ('k0','q1','fl','pt'):
    tag_wait({'k0':T_K0,'q1':T_Q1,'fl':T_FL,'pt':T_PT}[ECHO],4 if ECHO=='pt' else 1,2,sleep=2); echo_mark(ECHO)
tag_wait(T_G,4,2,sleep=4)
tag_get(2)
stamp('B',5,'BQ'); echo_mark('bq')
E(f's_setprio {OPT.get("bpr","3")}')
def kvdma(c):
    E(f's_lshr_b32 s{sT+1}, s2, 3\n s_add_u32 s{sT+1}, s{sT+1}, {c}\n s_and_b32 s{sT+1}, s{sT+1}, 3\n s_lshl_b32 s{sT+1}, s{sT+1}, 2\n s_add_u32 s{sT+1}, s{sT+1}, s{sB}\n s_lshl_b32 s{sT+1}, s{sT+1}, 12')
    E(f's_lshl_b32 s{sT+2}, s{sB}, 12\n s_add_u32 m0, s{sT+2}, {KVPOS[c]}\n s_add_u32 s{sT+1}, s{sT+1}, {hex(WS_KVA+(65536 if c>=4 else 0))}')
    for i in range(4): E(f'buffer_load_dwordx4 v160, {sr(sWS)}, s{sT+1} offen offset:{1024*i} sc1 lds')
    VQ.extend([f'kv{c}']*4)
E(f's_lshl_b32 s{sT}, s{sB}, 11\n s_add_u32 s{sT}, s{sT}, {L_QB}\n v_add_u32 v3, s{sT}, v160')
for t in range(2): E(f'ds_read_b128 {vr(BQ+4*t,4)}, v3 offset:{1024*t}')
E(f's_lshl_b32 s{sT}, s{sPb}, 8\n s_add_u32 s{sT}, s{sT}, {hex(WS_G)}\n buffer_load_dword v61, v8, {sr(sWS)}, s{sT} offen sc1\n buffer_load_dword v62, v8, {sr(sWS)}, s{sT} offen offset:128 sc1\n s_waitcnt lgkmcnt(0)')
C('---- second half of the shared K/V ; o slots marked as not yet written')
for c in (4,5,6,7): kvdma(c)
E(f's_lshl_b32 s{sT+10}, s{sPb}, 6\n s_lshl_b32 s{sT+1}, s{sHg}, 2\n s_add_u32 s{sT+10}, s{sT+10}, s{sT+1}\n s_add_u32 s{sT+10}, s{sT+10}, s{sB}\n s_lshl_b32 s{sT+10}, s{sT+10}, 10')
E('v_mov_b32 v12, -1\n v_mov_b32 v13, -1\n v_mov_b32 v14, -1\n v_mov_b32 v15, -1')
for base in (WS_OA,WS_OA+32768,WS_OB,WS_OB+32768):
    E(f's_add_u32 s{sT+1}, s{sT+10}, {hex(base)}\n buffer_store_dwordx4 v[12:15], v160, {sr(sWS)}, s{sT+1} offen sc1')
E(f's_lshl_b32 s{sT+3}, s{sHg}, 5\n s_add_u32 s{sT+3}, s{sT+3}, s{sPb}\n s_lshl_b32 s{sT+3}, s{sT+3}, 7\n s_lshl_b32 s{sT+1}, s{sB}, 2\n s_add_u32 s{sT+3}, s{sT+3}, s{sT+1}\n s_add_u32 s{sT+3}, s{sT+3}, {hex(WS_FKVB+16)}')
E(f's_getreg_b32 s{sXcc}, hwreg(HW_REG_XCC_ID, 0, 4)\n s_add_u32 s{sT}, s{sTag}, s{sXcc}\n v_mov_b32 v3, s{sT}\n s_waitcnt vmcnt(0)')
E(f's_mov_b64 exec, 1\n buffer_store_dword v3, off, {sr(sWS)}, s{sT+3} sc1\n s_mov_b64 exec, -1')
lds_add(C_K2,0x101,vZ,2)
stamp('B',2,'K/V all in')
if OPT.get('nob'): stamp_flush(12); E('s_endpgm')
E('v_sub_f32 v61, 1.0, v61\n v_sub_f32 v62, 1.0, v62')
poll(162,2,4,sleep=3)
stamp('B',6,'kvB flags seen'); echo_mark('kvb')
def wotouch():
    if MAP=='b':
        E(f's_cmp_ge_u32 s{sB}, 2\n s_cbranch_scc0 L_B_NOT\n s_lshr_b32 s{sT+1}, s2, 3\n s_lshl_b32 s{sT+1}, s{sT+1}, 14\n s_and_b32 s{sT+2}, s{sB}, 1\n s_lshl_b32 s{sT+2}, s{sT+2}, 13\n s_add_u32 s{sT+1}, s{sT+1}, s{sT+2}')
        touch(sWOB,sT+1,1,163,3); touch(sWOA,sT+1,1,163,3)
    else:
        E(f's_cmp_eq_u32 s{sB}, 3\n s_cbranch_scc0 L_B_NOT\n s_lshr_b32 s{sT+1}, s2, 3\n s_lshl_b32 s{sT+1}, s{sT+1}, 14\n s_and_b32 s{sT+2}, s2, 1\n s_lshl_b32 s{sT+2}, s{sT+2}, 9\n s_add_u32 s{sT+1}, s{sT+1}, s{sT+2}')
        E('v_lshrrev_b32 v2, 2, v0\n v_lshlrev_b32 v2, 10, v2\n v_and_b32 v3, 3, v0\n v_lshl_add_u32 v2, v3, 7, v2')
        touch(sWOB,sT+1,1,2,3); touch(sWOA,sT+1,1,2,4)
    LBL('L_B_NOT')
C('---- window attention, head 4hg+b, two query tiles')
E(f's_lshl_b32 s{sT+8}, s{sHg}, 2\n s_add_u32 s{sT+8}, s{sT+8}, s{sB}\n s_lshl_b32 s{sT+8}, s{sT+8}, 6\n s_lshl_b32 s{sT+9}, s{sPb}, 1\n s_sub_i32 s{sT+9}, s{sT+9}, 8')
def btile(j): E(f's_add_i32 s{sT}, s{sT+9}, {j}\n s_max_i32 s{sT}, s{sT}, 0\n s_add_u32 s{sT}, s{sT}, s{sT+8}\n s_lshl_b32 s{sT}, s{sT}, 11\n s_add_u32 s{sT}, s{sT}, {hex(WS_KVB)}')
def bload(j):
    k=BK+4*(j%3); v=BV+8*(j%3)
    btile(j)
    E(f'buffer_load_dwordx4 {vr(k,4)}, v160, {sr(sWS)}, s{sT} offen sc1\n s_mov_b64 exec, {sr(sVM,2)}')
    E(f'buffer_load_dwordx4 {vr(v,4)}, v161, {sr(sWS)}, s{sT} offen offset:1024 sc1\n buffer_load_dwordx4 {vr(v+4,4)}, v161, {sr(sWS)}, s{sT} offen offset:1536 sc1\n s_mov_b64 exec, -1')
bload(0); bload(1)
E(f's_setprio {OPT.get("bat","3")}')
for j in (2,6):
    E(f's_add_i32 s{sT}, s{sT+9}, {j}\n s_max_i32 s{sT}, s{sT}, 0\n s_add_i32 s{sT+1}, s{sT+9}, 6\n s_min_i32 s{sT}, s{sT}, s{sT+1}\n s_cmp_lt_i32 s{sT}, 0')
    sk=uid('tk'); E(f's_cbranch_scc1 {sk}\n s_add_u32 s{sT}, s{sT}, s{sT+8}\n s_lshl_b32 s{sT}, s{sT}, 11\n s_add_u32 s{sT}, s{sT}, {hex(WS_KVB)}')
    E(f'buffer_load_dword v3, v163, {sr(sWS)}, s{sT} offen sc1'); LBL(sk)
E('s_waitcnt lgkmcnt(0)')
for j in range(10):
    k=BK+4*(j%3); v=BV+8*(j%3)
    if j==3: wotouch()
    if j==int(OPT.get('bup','4')): E('s_setprio 3')
    if j==7: E(f'buffer_load_dwordx4 v[12:15], v166, {sr(sWS)}, 0 offen sc1')
    if j+2<10: bload(j+2)
    E(f's_waitcnt vmcnt({3*min(2,9-j)})')
    sk=uid('bskip')
    if j<8: E(f's_cmp_lt_i32 s{sT+9}, {-j}\n s_cbranch_scc1 {sk}')
    qs=[q for q in (0,1) if 0<=j-q<=8]
    for q in qs: mfma(BS+16*q,k,BQ+4*q,{0:MU,8:MD}.get(j-q,'0'))
    E('s_nop 10' if len(qs)==2 else 's_nop 11')
    for q in qs:
        S=BS+16*q; O=BO+16*q
        for r in range(10): vexp(S+r)
        smf(O,v,S,BIDX)
        for r in range(10,16): vexp(S+r)
        E('s_nop 1'); smf(O,v+4,S+8,BIDX)
    if j<8: LBL(sk)
sLoc=sT+11
E(f's_add_u32 s{sT+10}, s{sT+10}, {hex(WS_OB)}')
C('the eight WGs of this position block: marks in place ?  all on this die ?')
E(f's_mov_b32 s{sCnt}, {SPIN_LIMIT}\n s_branch L_B_PP1')
LBL('L_B_PP')
E(f'buffer_load_dwordx4 v[12:15], v166, {sr(sWS)}, 0 offen sc1\n s_waitcnt vmcnt(0)')
LBL('L_B_PP1')
for i in range(4): E(f'v_subrev_u32 v{12+i}, s{sTag}, v{12+i}')
E(f'v_or3_b32 v2, v12, v13, v14\n v_or_b32 v2, v2, v15\n v_cmp_lt_u32 vcc, 15, v2\n s_cbranch_vccz L_B_PPD\n s_sub_u32 s{sCnt}, s{sCnt}, 1\n s_cbranch_scc1 L_B_PPD\n s_sleep 3\n s_branch L_B_PP')
LBL('L_B_PPD')
if OPT.get('loc','1')=='1':
    E(f'v_cmp_ne_u32 vcc, s{sXcc}, v12\n s_cbranch_vccnz L_B_NLOC')
    lds_add(C_LOC,1,vZ,2)
    if OPT.get('probe'):
        E('s_branch L_B_PRB')
        LBL('L_B_NLOC')
        for i in range(8): E('s_sleep 127')
        LBL('L_B_PRB')
    else: LBL('L_B_NLOC')

for q in range(2):
    fb=f'L_FB_B{q}'; bk=f'L_FB_B{q}_BACK'
    finalize(BO+16*q,4,2,fb,bk,61+q)
    E(f'buffer_store_dwordx4 v[4:7], v160, {sr(sWS)}, s{sT+10} offen sc1')
    if q==0: E(f's_add_u32 s{sT+10}, s{sT+10}, 32768\n s_nop 0')
    def setup(q=q):
        E(f's_add_i32 s{sT+2}, s{sT+9}, {q}\n s_cmp_ge_i32 s{sT+2}, 0\n s_cselect_b32 s{sT+4}, 1, 0\n s_max_i32 s{sT+2}, s{sT+2}, 0')
        E(f's_add_i32 s{sT+3}, s{sT+9}, {q+9}\n s_sub_u32 s{sT+3}, s{sT+3}, s{sT+2}\n s_add_u32 s{sT+2}, s{sT+2}, s{sT+8}\n s_lshl_b32 s{sT+2}, s{sT+2}, 11\n s_add_u32 s{sT+2}, s{sT+2}, {hex(WS_KVB)}')
    fallback(fb,bk,BQ+4*q,BO+16*q,BS,BK,BV,BIDX,3,160,161,None,setup,MU,MD)
C('---- output projection: wave (t=b&1, kh=b>>1): both 32-column tiles over heads 16kh..16kh+15 ; slot 0 = tile kh')
PA_=48; PW=80; PO=96; PB_=16
stamp('B',7,'oB published'); echo_mark('ob')
E(f's_setprio {OPT.get("bpr2","3")}')
lds_spin(C_MID,None,8,vZ,2,sleep=6)
def wodma(sr_):
    E(f's_lshl_b32 s{sT}, s{sB}, 14\n s_lshl_b32 s{sT+1}, s{sB}, 17')
    for n in range(16): E(f's_add_u32 m0, s{sT}, {L_WO+1024*n}\n s_add_u32 s{sT+2}, s{sT+1}, {8192*n}\n buffer_load_dwordx4 v10, {sr(sr_)}, s{sT+2} offen lds')
def oloads(g0):
    for s in range(4*g0,16):
        if s%4==0: E(f's_add_u32 s{sT}, s{sOb}, {1024*s}')
        E(f'buffer_load_dwordx4 {vr(PO+4*s,4)}, v160, {sr(sWS)}, s{sT} offen offset:{1024*(s%4)} sc1')
wodma(sWOB)
oloads(0)
E('s_waitcnt vmcnt(16)')
lds_add(C_WO,1,vZ,2)
lds_spin(C_WO,None,4,vZ,2,sleep=2)
stamp('B',8,'woB landed')
E('s_branch L_B_GEMM1')
LBL('L_B_GEMM')
oloads(0)
LBL('L_B_GEMM1')
def wread(s):
    f=PW+8*(s&1)
    for u,va in ((0,11),(1,9)): E(f'ds_read_b64_tr_b16 {vr(f+4*u,2)}, v{va} offset:{s*2048}\n ds_read_b64_tr_b16 {vr(f+4*u+2,2)}, v{va} offset:{s*2048+1024}')
wread(0)
E(f's_mov_b32 s{sCnt}, {SPIN_LIMIT}')
for g in range(4):
    LBL(f'L_B_G{g}')
    E(f's_waitcnt vmcnt({12-4*g})')
    p=PO+16*g
    E(f'v_max_u32 v2, v{p}, v{p+4}\n v_max3_u32 v2, v{p+8}, v{p+12}, v2\n v_cmp_eq_u32 vcc, -1, v2\n s_cbranch_vccnz L_B_R{g}')
    LBL(f'L_B_K{g}')
    if DIAG and g==3:
        E(f's_cmp_eq_u32 s{sPass}, 0\n s_cbranch_scc1 L_B_NST'); stamp('B',10,'oA all seen'); LBL('L_B_NST')
    for s in range(4*g,4*g+4):
        if s<15: wread(s+1)
        E(f's_waitcnt lgkmcnt({4 if s<15 else 0})')
        f=PW+8*(s&1)
        if s==0:
            E(f's_cmp_eq_u32 s{sPass}, 0\n s_cbranch_scc0 L_B_M1')
            for u in range(2): mfma(PA_+16*u,f+4*u,PO+4*s,'0')
            E('s_branch L_B_M2'); LBL('L_B_M1')
            for u in range(2): mfma(PA_+16*u,f+4*u,PO+4*s)
            LBL('L_B_M2')
        else:
            for u in range(2): mfma(PA_+16*u,f+4*u,PO+4*s)
    save=L; L=[]
    LBL(f'L_B_R{g}')
    E(f's_sub_u32 s{sCnt}, s{sCnt}, 1\n s_cbranch_scc1 L_B_K{g}\n s_cmp_eq_u32 s{sPass}, 0\n s_cbranch_scc0 L_B_RR{g}\n s_sleep 8')
    LBL(f'L_B_RR{g}')
    E('s_waitcnt vmcnt(0)')
    oloads(g)
    E(f's_branch L_B_G{g}')
    RETRY.extend(L); L=save
E(f's_cmp_eq_u32 s{sPass}, 0\n s_cbranch_scc0 L_B_FIN')
lds_add(C_WD,1,vZ,2)
E(f's_add_u32 s{sOb}, s{sOb}, {hex((WS_OA-WS_OB)&0xffffffff)}\n s_mov_b32 s{sPass}, 1')
lds_spin(C_WD,None,4,vZ,2,sleep=2)
wodma(sWOA)
if OPT.get('dry','0')=='1':
    C('walk once through the closing code with no lane active: its instructions are then cached when they matter')
    E('s_mov_b64 exec, 0\n s_branch L_B_FIN')
    LBL('L_B_DRYD')
    E('s_mov_b64 exec, -1')
E('s_waitcnt vmcnt(0)')
stamp('B',9,'out-proj B done, woA in'); echo_mark('b9')
E('s_barrier'); echo_mark('aend'); E('s_branch L_B_GEMM')
LBL('L_B_FIN')
E('s_nop 9')
for q in range(4): E(f'ds_write_b128 v164, {vr(PA_+16+4*q,4)} offset:{1024*q}')
E('s_waitcnt lgkmcnt(0)\n s_cbranch_execz L_B_NBAR\n s_barrier')
LBL('L_B_NBAR')
for q in range(4): E(f'ds_read_b128 {vr(PB_+4*q,4)}, v165 offset:{1024*q}')
for q in range(4):
    E(f's_waitcnt lgkmcnt({3-q})')
    for r in range(4): E(f'v_add_f32 v{PA_+4*q+r}, v{PA_+4*q+r}, v{PB_+4*q+r}')
for r in range(8): cvt(PA_+r,PA_+2*r,PA_+2*r+1)
E('s_nop 1')
for gq in range(2): E(f'v_permlane32_swap_b32 v{PA_+4*gq}, v{PA_+4*gq+2}\n v_permlane32_swap_b32 v{PA_+4*gq+1}, v{PA_+4*gq+3}')
if OPT.get('dry','0')=='1': E('s_cbranch_execz L_B_DRYD')
for gq in range(2): E(f'buffer_store_dwordx4 {vr(PA_+4*gq,4)}, v167, {sr(sOUT)}, s{sOut} offen offset:{32*gq} '+OPT.get('ost','').replace('+',' '))
if DIAG: E('s_waitcnt vmcnt(0)')
stamp('B',11,'out stored'); echo_end()
stamp_flush(12)
E('s_endpgm')
L.extend(RETRY)

LBL('L_A')
AIDX=8; AKA=9; AVA=10; AQ0=12; AQ1=16; AK=20; AV=28; SA=44; SB=60; OA=76; OB=92; XA=108; WA=160; AF=112
L_PG=L_PART+4096
sStr=sT+10; sRing=sT+7
E(f'v_and_b32 v5, 15, v0\n v_lshlrev_b32 v6, 4, v0\n s_and_b32 s{sT+9}, s{sHg}, 3\n s_cmp_lt_u32 s{sWave}, 4\n s_cbranch_scc0 L_A_KV')
C('---- waves 0..3 : wave m streams 64 columns of matrix m (wq | B q | B k | B v) through its own 8 x 2KB ring')
E(f's_cmp_eq_u32 s{sWave}, 0\n s_cselect_b32 s{sWB}, s6, s16\n s_cselect_b32 s{sWB+1}, s7, s17\n s_mov_b32 s{sWB+2}, {512*3072}\n s_cselect_b32 s{sWB+2}, {512*1024}, s{sWB+2}\n s_mov_b32 s{sWB+3}, 0x20000')
E(f's_movk_i32 s{sStr}, 3072\n s_cselect_b32 s{sStr}, 0x400, s{sStr}\n s_max_u32 s{sT+1}, s{sWave}, 1\n s_sub_u32 s{sT+1}, s{sT+1}, 1\n s_lshl_b32 s{sT+1}, s{sT+1}, 10\n s_lshl_b32 s{sT+2}, s{sHg}, 7\n s_add_u32 s{sT+1}, s{sT+1}, s{sT+2}')
dma128_voff(162,2,3,f's{sStr}',f's{sT+1}')
mkrot()
E(f's_lshl_b32 s{sStr}, s{sStr}, 3\n s_lshl_b32 s{sRing}, s{sWave}, 14')
E(f's_sub_u32 s{sT+1}, s{sStr}, 1024\n v_add_u32 v163, s{sT+1}, v162\n s_lshl_b32 s{sStr}, s{sStr}, 1')
def wdma_parts(st):
    p0=f's_add_u32 m0, s{sRing}, {(st%8)*2048}\n'
    if st%4==0: p0+=f's_add_u32 s{sT+3}, s{sRot}, {st//4}\n s_and_b32 s{sT+3}, s{sT+3}, 7\n s_lshl_b32 s{sT+3}, s{sT+3}, 2\n s_mul_i32 s{sT+3}, s{sT+3}, s{sStr}'
    else: p0+=f's_add_u32 s{sT+3}, s{sT+3}, s{sStr}'
    VQ.extend([f'w{st}']*2)
    return [p0, f'buffer_load_dwordx4 v162, {sr(sWB)}, s{sT+3} offen lds', f'buffer_load_dwordx4 v163, {sr(sWB)}, s{sT+3} offen offset:1024 lds']
def wdma(st):
    for p in wdma_parts(st): E(p)
if OPT.get('p0','2')!='0': E(f's_cmp_eq_u32 s{sWave}, 0\n s_cbranch_scc0 L_A_NP0\n s_setprio {OPT.get("p0","3")}\nL_A_NP0:')
NW0=int(OPT.get('nw0','8'))
VQ.clear()
for st in range(NW0): wdma(st)
E('s_branch L_A_NOKV')
LBL('L_A_KV')
E(f's_setprio 3\n s_load_dword s{sTag}, s[26:27], {WS_EPOCH}')
C('---- kvA: this WG makes 16 positions (hg&3) of K (hg<4) or V, and their gate ; wave 4+u sums k in [128u,128u+128)')
E(f's_cmp_lt_u32 s{sHg}, 4\n s_cselect_b32 s{sWKV}, s8, s10\n s_cselect_b32 s{sWKV+1}, s9, s11\n s_mov_b32 s{sWKV+2}, 16384\n s_mov_b32 s{sWKV+3}, 0x20000\n s_and_b32 s{sT+3}, s{sWave}, 3')
E(f's_lshl_b32 s{sT+1}, s{sPb}, 16\n s_lshl_b32 s{sT+2}, s{sT+9}, 14\n s_add_u32 s{sT+1}, s{sT+1}, s{sT+2}\n s_lshl_b32 s{sT+2}, s{sT+3}, 8\n s_add_u32 s{sT+1}, s{sT+1}, s{sT+2}')
E('v_lshlrev_b32 v3, 10, v5\n v_and_b32 v4, 48, v0\n v_add_u32 v3, v3, v4')
for s_ in range(4): E(f'buffer_load_dwordx4 {vr(116+4*s_,4)}, v3, {sr(sX)}, s{sT+1} offen offset:{64*s_}')
WKD=OPT.get('wkd','0')=='1'
if MAP=='b' and WKD:
    E(f's_cmp_lt_u32 s{sWave}, 6\n s_cbranch_scc0 L_A_NT2\n s_cmp_eq_u32 s{sWave}, 4\n s_cselect_b32 s{sG}, s8, s10\n s_cselect_b32 s{sG+1}, s9, s11\n s_mov_b32 s{sG+2}, 16384\n s_mov_b32 s{sG+3}, 0x20000')
    E(f's_lshr_b32 s{sT+4}, s2, 3\n s_lshl_b32 s{sT+4}, s{sT+4}, 9\n v_lshlrev_b32 v2, 7, v0\n s_mov_b64 exec, 15\n buffer_load_dword v167, v2, {sr(sG)}, s{sT+4} offen\n s_mov_b64 exec, -1')
    LBL('L_A_NT2')
if MAP=='c' and OPT.get('wkt','1')=='1':
    E(f's_cmp_eq_u32 s{sWave}, 4\n s_cbranch_scc0 L_A_NT2\n s_lshr_b32 s{sT+4}, s2, 3\n s_lshl_b32 s{sT+4}, s{sT+4}, 9\n v_lshlrev_b32 v2, 7, v0\n s_mov_b64 exec, 15\n buffer_load_dword v167, v2, {sr(sWKV)}, s{sT+4} offen\n s_mov_b64 exec, -1')
    LBL('L_A_NT2')
srd(sG,20,1024)
for s_ in range(4): E(f'buffer_load_dwordx4 {vr(132+4*s_,4)}, v4, {sr(sG)}, s{sT+2} offen offset:{64*s_}')
def wkdma():
    E(f's_lshl_b32 s{sT}, s{sT+3}, 12\n s_add_u32 m0, s{sT}, {L_ST}\n s_nop 0')
    for i in range(4): E(f'buffer_load_dwordx4 v6, {sr(sWKV)}, s{sT} offen offset:{1024*i} lds')
if not WKD: wkdma()
LBL('L_A_NOKV')
C('---- address of this wave\'s o slot, constants')
sOA=sT+8
E(f's_and_b32 s{sOA}, s{sWave}, 1\n s_lshl_b32 s{sT+1}, s{sPb}, 1\n s_add_u32 s{sOA}, s{sOA}, s{sT+1}\n s_lshl_b32 s{sOA}, s{sOA}, 5')
E(f's_lshl_b32 s{sT+1}, s{sHg}, 2\n s_add_u32 s{sOA}, s{sOA}, s{sT+1}\n s_and_b32 s{sT+1}, s{sWave}, 2\n s_add_u32 s{sOA}, s{sOA}, s{sT+1}\n s_lshr_b32 s{sT+1}, s{sWave}, 2\n s_add_u32 s{sOA}, s{sOA}, s{sT+1}\n s_lshl_b32 s{sOA}, s{sOA}, 10\n s_add_u32 s{sOA}, s{sOA}, {hex(WS_OA)}')
E(f'v_mov_b32 v{vZ}, {L_ST}\n v_lshlrev_b32 v11, 2, v0')
traddr128(WA,2,3,3,'0'); E(f's_lshl_b32 s{sT+1}, s{sWave}, 14\n v_add_u32 v{WA}, s{sT+1}, v{WA}\n v_xor_b32 v{WA+1}, 64, v{WA}')
E(f'v_and_b32 v2, 31, v0\n v_bfe_u32 v3, v0, 1, 3\n v_lshrrev_b32 v7, 5, v0\n v_xor_b32 v3, v3, v7\n v_lshlrev_b32 v{XA}, 7, v2\n v_lshl_add_u32 v{XA}, v3, 4, v{XA}\n v_add_u32 v{XA}, 0x10000, v{XA}')
for s_ in range(1,4): E(f'v_xor_b32 v{XA+s_}, {s_<<5}, v{XA}')
for r in range(32): E(f'v_mov_b32 v{OA+r}, 0')
set_vpad(list(range(AV,AV+16)),2)
E(f'v_mov_b32 v{AIDX}, 0xdddddddd')
E(f's_lshr_b32 s{sT+1}, s{sWave}, 2\n s_lshl_b32 s{sT+1}, s{sT+1}, 11\n v_add_u32 v{AKA}, s{sT+1}, v6')
E(f'v_lshlrev_b32 v7, 8, v7\n v_lshl_add_u32 v7, v5, 4, v7\n v_add_u32 v{AVA}, s{sT+1}, v7')
E(f's_lshl_b32 s{sT+6}, s{sHg}, 5\n s_add_u32 s{sT+6}, s{sT+6}, s{sPb}\n s_lshl_b32 s{sT+6}, s{sT+6}, 7\n s_lshl_b32 s{sT+1}, s{sWave}, 2\n s_add_u32 s{sT+6}, s{sT+6}, s{sT+1}\n s_add_u32 s{sT+6}, s{sT+6}, {hex(WS_FKVB)}')
E(f's_cmp_lt_u32 s{sWave}, 4\n s_cbranch_scc1 L_A_GQ\n s_waitcnt lgkmcnt(0)')
mktag()
if WKD: E(f's_waitcnt vmcnt({OPT.get("wkw","7")})'); wkdma()
E(f'v_lshrrev_b32 v4, 4, v0\n v_lshlrev_b32 v4, 8, v4\n v_lshl_add_u32 v4, v5, 3, v4\n s_add_u32 s{sT}, s{sT}, {L_ST}\n v_add_u32 v4, s{sT}, v4')
E(f's_lshl_b32 s{sT+1}, s{sT+3}, 10\n s_add_u32 s{sT+1}, s{sT+1}, {L_PART}\n v_add_u32 v2, s{sT+1}, v6\n s_lshl_b32 s{sT+1}, s{sT+3}, 8\n s_add_u32 s{sT+1}, s{sT+1}, {L_PG}\n v_add_u32 v3, s{sT+1}, v11')
E('s_waitcnt vmcnt(0)')
for s_ in range(4): E(f'ds_read_b64_tr_b16 {vr(44+4*s_,2)}, v4 offset:{1024*s_}\n ds_read_b64_tr_b16 {vr(46+4*s_,2)}, v4 offset:{1024*s_+128}')
for s_ in range(4): E(f'v_mfma_f32_16x16x32_bf16 v[64:67], {vr(132+4*s_,4)}, {vr(116+4*s_,4)}, {"0" if s_==0 else "v[64:67]"}')
E(f's_cmp_lt_u32 s{sHg}, 4\n s_waitcnt lgkmcnt(0)\n s_cbranch_scc0 L_A_VJOB')
for s_ in range(4): E(f'v_mfma_f32_16x16x32_bf16 v[60:63], {vr(44+4*s_,4)}, {vr(116+4*s_,4)}, {"0" if s_==0 else "v[60:63]"}')
E('s_branch L_A_KVJ')
LBL('L_A_VJOB')
for s_ in range(4): E(f'v_mfma_f32_16x16x32_bf16 v[60:63], {vr(116+4*s_,4)}, {vr(44+4*s_,4)}, {"0" if s_==0 else "v[60:63]"}')
LBL('L_A_KVJ')
E('s_nop 0\n ds_write_b32 v3, v64\n s_nop 5\n ds_write_b128 v2, v[60:63]')
stamp('A',2,'kvA partial')
E('s_waitcnt lgkmcnt(0)')
tag_set(T_PT,sT+3,2)
E(f's_cmp_eq_u32 s{sWave}, 7\n s_cbranch_scc0 L_A_BS')
C('---- wave 7: reduce the four partial tiles, store, flag')
tag_wait(T_PT,4,2)
E(f'v_add_u32 v3, {L_PART}, v6\n v_add_u32 v4, {L_PG}, v11')
for i in range(4): E(f'ds_read_b128 {vr(116+4*i,4)}, v3 offset:{1024*i}')
for i in range(2): E(f'ds_read2st64_b32 {vr(148+2*i,2)}, v4 offset0:{2*i} offset1:{2*i+1}')
E(f's_lshl_b32 s{sT+3}, s{sPb}, 1\n s_lshr_b32 s{sT+4}, s{sT+9}, 1\n s_add_u32 s{sT+3}, s{sT+3}, s{sT+4}\n s_lshl_b32 s{sT+3}, s{sT+3}, 11\n s_add_u32 s{sT+3}, s{sT+3}, {hex(WS_KVA)}\n s_and_b32 s{sT+4}, s{sT+9}, 1')
E(f's_cmp_lt_u32 s{sHg}, 4\n s_cselect_b32 s{sT+5}, 9, 3\n s_cselect_b32 s{sT+7}, 3, 8\n s_cselect_b32 s{sT+1}, 8, 9\n s_cselect_b32 s{sT}, 0, 0x400')
E(f's_lshl_b32 s{sT+4}, s{sT+4}, s{sT+1}\n s_add_u32 s{sT+3}, s{sT+3}, s{sT+4}\n s_add_u32 s{sT+3}, s{sT+3}, s{sT}')
E(f'v_bfe_u32 v3, v0, 4, 1\n v_lshrrev_b32 v4, 5, v0\n v_lshlrev_b32 v5, 4, v5\n v_lshl_add_u32 v5, v3, s{sT+5}, v5\n v_lshl_add_u32 v5, v4, s{sT+7}, v5')
FPLS=int(OPT.get('fpl','2'))
E(f's_lshl_b32 s{sT+7}, s{sPb}, 3\n s_add_u32 s{sT+7}, s{sT+7}, s{sHg}\n s_and_b32 s{sT+1}, s{sT+7}, {(1<<FPLS)-1}\n s_lshr_b32 s{sT+7}, s{sT+7}, {FPLS}\n s_lshl_b32 s{sT+7}, s{sT+7}, 7\n s_lshl_b32 s{sT+1}, s{sT+1}, 2\n s_add_u32 s{sT+7}, s{sT+7}, s{sT+1}\n s_add_u32 s{sT+7}, s{sT+7}, {hex(WS_FKVA)}')
E('s_waitcnt lgkmcnt(2)')
for st_ in (8,4):
    for r in range(st_): E(f'v_add_f32 v{116+r}, v{116+r}, v{116+st_+r}')
cvt(116,116,117); cvt(117,118,119)
E(f'buffer_store_dwordx2 v[116:117], v5, {sr(sWS)}, s{sT+3} offen sc1')
E(f's_cmp_lt_u32 s{sHg}, 4\n s_waitcnt lgkmcnt(0)\n s_cbranch_scc0 L_A_SF')
for st_ in (2,1):
    for r in range(st_): E(f'v_add_f32 v{148+r}, v{148+r}, v{148+st_+r}')
E(f's_mov_b32 s{sT}, {hex(f2u(-math.log2(math.e)))}\n v_mul_f32 v148, s{sT}, v148\n v_exp_f32 v148, v148')
E(f's_lshl_b32 s{sT}, s{sPb}, 2\n s_add_u32 s{sT}, s{sT}, s{sT+9}\n v_add_f32 v148, 1.0, v148\n v_rcp_f32 v148, v148\n s_lshl_b32 s{sT}, s{sT}, 6\n s_add_u32 s{sT}, s{sT}, {hex(WS_G)}')
E(f's_mov_b64 exec, 0xffff\n buffer_store_dword v148, v11, {sr(sWS)}, s{sT} offen sc1\n s_mov_b64 exec, -1')
LBL('L_A_SF')
E('s_waitcnt vmcnt(0)')
flag_store(sT+7,2)
stamp('A',3,'kvA flag sent')
LBL('L_A_BS')
E(f's_cmp_eq_u32 s{sWave}, 6\n s_cbranch_scc0 L_A_B8')
C('---- wave 6: wait for every K/V piece, fetch this WG\'s share into L2, tell the projection waves')
E(f'v_lshlrev_b32 v16, 7, v0\n v_lshrrev_b32 v17, {FPLS-2}, v0\n v_lshlrev_b32 v17, 7, v17\n v_and_b32 v18, {(1<<(FPLS-2))-1}, v0\n v_lshl_add_u32 v17, v18, 4, v17\n v_add_u32 v17, {hex(WS_FKVA)}, v17')
E(f'v_mov_b32 v2, s{sTag}\n ds_write_b32 v{vZ}, v2 offset:{T_TAG-L_ST}')
tag_wait(T_PT,4,2)
tag_wait(T_PL,1,2,sleep=2)
C('lanes whose four flags are in drop out of the next look')
E(f's_mov_b32 s{sCnt}, {SPIN_LIMIT}')
LBL('L_A_PL')
E(f'buffer_load_dwordx4 v[12:15], v17, {sr(sWS)}, 0 offen sc1\n s_waitcnt vmcnt(0)')
for i in range(4): E(f'v_xor_b32 v{12+i}, s{sTag}, v{12+i}')
E(f'v_or3_b32 v12, v12, v13, v14\n v_or_b32 v12, v12, v15\n v_cmp_ne_u32 vcc, 0, v12\n s_cbranch_vccz L_A_PLD\n s_sub_u32 s{sCnt}, s{sCnt}, 1\n s_cbranch_scc1 L_A_PLD\n s_mov_b64 exec, vcc\n s_sleep {OPT.get("psl","16")}\n s_branch L_A_PL')
LBL('L_A_PLD')
E('s_mov_b64 exec, -1')
E(f's_lshr_b32 s{sT+5}, s2, 3\n s_lshl_b32 s{sT+5}, s{sT+5}, 12\n s_add_u32 s{sT+5}, s{sT+5}, {hex(WS_KVA)}')
E(f's_mov_b32 exec_hi, 0\n buffer_load_dword v117, v16, {sr(sWS)}, s{sT+5} offen sc1\n s_mov_b64 exec, -1')
tag_set(T_FL,None,2)
stamp('A',3,'kvA flag sent')
E(f's_lshr_b32 s{sT+5}, s2, 3\n s_and_b32 s{sT+5}, s{sT+5}, 3\n s_lshl_b32 s{sT+5}, s{sT+5}, 14\n s_add_u32 s{sT+5}, s{sT+5}, {hex(WS_KVA)}')
for q in range(4):
    E(f's_mov_b32 m0, {L_ST+4096*q}\n s_add_u32 s{sT+4}, s{sT+5}, {4096*q}')
    for i in range(4): E(f'buffer_load_dwordx4 v6, {sr(sWS)}, s{sT+4} offen offset:{1024*i} sc1 lds')
E('s_waitcnt vmcnt(0)')
tag_set(T_K0,None,2)
stamp('A',7,'G1')
E(f's_cmp_eq_u32 s2, 0\n s_cbranch_scc0 L_A_B8\n s_mov_b32 s{sT}, 0')
flag_store(sT,2)
E('s_branch L_A_B8')
LBL('L_A_GQ')
PAC=[44,60,128,144]; PFR=[12,112,92]
def areads_l(st):
    f=PFR[st%3]; so=(st%8)*2048; o=[]
    for i in range(2): o+= [f'ds_read_b64_tr_b16 {vr(f+4*i,2)}, v{WA+i} offset:{so}', f'ds_read_b64_tr_b16 {vr(f+4*i+2,2)}, v{WA+i} offset:{so+512}']
    for t in range(2): o.append(f'ds_read_b128 {vr(f+8+4*t,4)}, v{XA+st%4} offset:{(st//4)*8192+4096*t}')
    return o
def areads(st):
    for p in areads_l(st): E(p)
def kv_parts(p):
    VQ.extend(['kv']*2)
    return [f's_add_u32 m0, s{sRing}, {p*2048}\n s_add_u32 s{sT+4}, s{sT+5}, {p*2048}']+[f'buffer_load_dwordx4 v6, {sr(sWS)}, s{sT+4} offen offset:{1024*n} sc1 lds' for n in range(2)]
def kvpiece(p):
    for q in kv_parts(p): E(q)
for st in range(NW0,8): wdma(st)
E(f's_sub_u32 s{sT+4}, s{sWave}, 1\n s_cmp_eq_u32 s{sWave}, 1\n s_cselect_b32 s{sT+4}, 3, s{sT+4}\n s_lshr_b32 s{sT+5}, s2, 3\n s_add_u32 s{sT+5}, s{sT+5}, s{sT+4}\n s_and_b32 s{sT+5}, s{sT+5}, 3\n s_lshl_b32 s{sT+5}, s{sT+5}, 14\n s_add_u32 s{sT+5}, s{sT+5}, {hex(WS_KVA)}')
tag_wait(T_X0,4,2) if XD else tag_wait(T_X,1,2)
stamp('A',7,'G1')
vwait('w0'); areads(0); vwait('w1'); areads(1)
VQ0=list(VQ)
SKEW=OPT.get('skew','1')=='1'
PLK=int(OPT.get('plk','15'))
E(f's_cmp_eq_u32 s{sWave}, 3\n s_cbranch_scc1 L_A_GV')
def gstep(var,st,kv):
    f=PFR[st%3]
    def mm(i,t):
        d=PAC[2*i+t]; c='0' if st==0 else None
        if var==0: mfma(d,f+4*i,f+8+4*t,c)
        else: mfma(d,f+8+4*t,f+4*i,c)
    vwait(f'w{st+2}',f' lgkmcnt({6 if st<31 else 0})')
    rd=areads_l(st+2) if st+2<32 else []
    dm=wdma_parts(st+8) if st+8<32 else (kv_parts(st%8) if kv else [])
    gaps=[rd[0:2]+dm[0:1], rd[2:4]+dm[1:2], rd[4:6], dm[2:3]]
    if st>=30: gaps=[[f'v_mov_b32 v{OB+8*(st-30)+2*q+r}, 0' for r in range(2)]+gaps[q] for q in range(4)]
    for q,(i,t) in enumerate(((0,0),(0,1),(1,0),(1,1)) if st<31 else ((1,0),(1,1),(0,0),(0,1))):
        if not (OPT.get('halfm') and q&1 and 0<st<31): mm(i,t)
        for p in gaps[q]: E(p)
for var in (0,1):
    if var: LBL('L_A_GV')
    VQ[:]=VQ0
    for st in range(24):
        if OPT.get('hold') and st==0:
            E(f's_cmp_eq_u32 s{sWave}, 0\n s_cbranch_scc1 L_A_NH{var}'); tag_wait(T_H,1,2,sleep=2); LBL(f'L_A_NH{var}')
        if OPT.get('hold') and var==0 and st==int(OPT.get('hold')):
            E(f's_cmp_eq_u32 s{sWave}, 0\n s_cbranch_scc0 L_A_NH2'); tag_set(T_H,None,2); E('s_waitcnt lgkmcnt(0)'); LBL('L_A_NH2')
        if st==2: E('s_waitcnt lgkmcnt(0)'); tag_wait(T_X,4,2)
        if st==14: E('s_waitcnt lgkmcnt(0)'); tag_wait(T_X+16,4,2)
        if st==PLK and var==1: tag_set(T_PL,None,2); E('s_waitcnt lgkmcnt(0)')
        gstep(var,st,False)
    stamp('A',2,'step 24'); cstamp('A',10,'s24')
    if var==0: E(f's_cmp_eq_u32 s{sWave}, 0\n s_cbranch_scc1 L_A_G0')
    tag_wait(T_FL,1,2,once=f'L_A_GK{var}')
    if var==0 and not SKEW: LBL('L_A_G0')
    V1=list(VQ)
    for st in range(24,32): gstep(var,st,False)
    if var==0 and not SKEW: E(f's_cmp_eq_u32 s{sWave}, 0\n s_cbranch_scc1 L_A_GE0')
    tag_wait(T_FL,1,2)
    for p in range(8): kvpiece(p)
    E(f's_branch L_A_GE{var}')
    if var==0 and SKEW:
        LBL('L_A_G0')
        C('wave 0: the last three k-steps run tile by tile, each q tile is packed and handed over under the next tiles\' MFMAs')
        VQ[:]=V1
        for st in range(24,29): gstep(0,st,False)
        vwait('w31',' lgkmcnt(6)')
        for p in areads_l(31): E(p)
        E(f'v_add_u32 v3, {L_QA}, v6\n s_mov_b32 s{sT+2}, {hex(CSCALE)}\n s_mov_b32 s{sT+3}, {hex(CSCALE)}\n v_mov_b32 v4, {T_Q}\n v_mov_b32 v5, 1\n s_setprio 3\n s_waitcnt lgkmcnt(0)')
        order=((1,0),(0,0),(1,1),(0,1))
        def conv(i,t):
            d=PAC[2*i+t]; o=[]
            o+=[f'v_pk_mul_f32 {vr(d+r,2)}, {vr(d+r,2)}, {sr(sT+2,2)}' for r in range(0,16,2)]
            o+=[f'v_cvt_pk_bf16_f32 v{d+r}, v{d+2*r}, v{d+2*r+1}' for r in range(8)]
            o+=[f'ds_write_b128 v3, {vr(d+4*hh,4)} offset:{(2*i+hh)*2048+1024*t}' for hh in range(2)]
            o+=[f's_mov_b64 exec, 1\n ds_write_b32 v4, v5 offset:{4*(2*i+t)}\n s_mov_b64 exec, -1']
            return o
        pend=[]
        for n,(i,t) in enumerate(order):
            for q,st in enumerate((29,30,31)):
                f=PFR[st%3]; mfma(PAC[2*i+t],f+4*i,f+8+4*t)
                if n==1: E('s_nop 3')
                for _ in range(7):
                    if pend: E(pend.pop(0))
            if n>=1:
                while pend: E(pend.pop(0))
                pend=conv(*order[n-1])
        while pend: E(pend.pop(0))
        for p in conv(*order[3]): E(p)
        stamp('A',1,'proj loop done'); cstamp('A',11,'pl')
        for r in range(16): E(f'v_mov_b32 v{OB+r}, 0')
        E('s_waitcnt lgkmcnt(0)')
        tag_set(T_G,None,2)
        E('s_branch L_A_B8')
    LBL(f'L_A_GK{var}')
    VQ[:]=V1
    for st in range(24,32): gstep(var,st,True)
    LBL(f'L_A_GE{var}')
    stamp('A',1,'proj loop done'); cstamp('A',11,'pl')
    if OPT.get('ep','1')=='1': E('s_setprio 3')
    E(f's_lshl_b32 s{sT+4}, s{sHg}, 8\n s_lshl_b32 s{sT+5}, s{sPb}, 1\n s_add_u32 s{sT+4}, s{sT+4}, s{sT+5}\n s_lshl_b32 s{sT+4}, s{sT+4}, 11\n s_add_u32 s{sT+4}, s{sT+4}, {hex(WS_KVB)}')
    if var==0:
        E(f's_cmp_eq_u32 s{sWave}, 2\n s_cbranch_scc1 L_A_EK')
        C('q (A / B): scale, pack, hand over through LDS')
        E(f's_cmp_eq_u32 s{sWave}, 0\n s_cbranch_scc1 L_A_Q0')
        tag_wait(T_G,1,2)
        LBL('L_A_Q0')
        E(f's_lshl_b32 s{sT+1}, s{sWave}, 13\n s_add_u32 s{sT+1}, s{sT+1}, {L_QA}\n v_add_u32 v3, s{sT+1}, v6\n s_mov_b32 s{sT+2}, {hex(CSCALE)}\n s_mov_b32 s{sT+3}, {hex(CSCALE)}\n s_lshl_b32 s{sT+1}, s{sWave}, 2\n s_add_u32 s{sT+1}, s{sT+1}, {T_Q1}\n v_mov_b32 v4, s{sT+1}\n v_mov_b32 v5, 1')
        for i in (1,0):
            for t in range(2):
                d=PAC[2*i+t]
                for r in range(0,16,2): E(f'v_pk_mul_f32 {vr(d+r,2)}, {vr(d+r,2)}, {sr(sT+2,2)}')
                for r in range(8): cvt(d+r,d+2*r,d+2*r+1)
                for hh in range(2): E(f'ds_write_b128 v3, {vr(d+4*hh,4)} offset:{(2*i+hh)*2048+1024*t}')
            if i==1: E(f's_mov_b64 exec, 1\n ds_write_b32 v4, v5\n s_mov_b64 exec, -1')
        E('s_waitcnt vmcnt(0) lgkmcnt(0)')
        tag_set(T_G,sWave,2)
        E('s_branch L_A_B8')
        LBL('L_A_EK')
        E('s_waitcnt vmcnt(0)')
        tag_set(T_G,sWave,2)
        for i in range(2):
            for t in range(2):
                d=PAC[2*i+t]
                for r in range(8): cvt(d+r,d+2*r,d+2*r+1)
                for hh in range(2): E(f's_add_u32 s{sT+5}, s{sT+4}, {(2*i+hh)*131072}\n buffer_store_dwordx4 {vr(d+4*hh,4)}, v6, {sr(sWS)}, s{sT+5} offen offset:{2048*t} sc1')
        E('s_branch L_A_B8')
    else:
        E('s_waitcnt vmcnt(0)')
        tag_set(T_G,sWave,2)
        E('v_bfe_u32 v3, v0, 4, 1\n v_lshl_add_u32 v3, v3, 17, v7')
        for i in range(2):
            for t in range(2):
                d=PAC[2*i+t]
                for r in range(8): cvt(d+r,d+2*r,d+2*r+1)
                E('s_nop 1')
                for gq in range(2): E(f'v_permlane32_swap_b32 v{d+4*gq}, v{d+4*gq+2}\n v_permlane32_swap_b32 v{d+4*gq+1}, v{d+4*gq+3}')
                E(f's_add_u32 s{sT+5}, s{sT+4}, {i*2*131072}')
                for gq in range(2): E(f'buffer_store_dwordx4 {vr(d+4*gq,4)}, v3, {sr(sWS)}, s{sT+5} offen offset:{2048*t+1024+512*gq} sc1')
LBL('L_A_B8')
E(f's_cmp_lt_u32 s{sWave}, 4\n s_cbranch_scc1 L_A_KP\n s_setprio 0')
LBL('L_A_KP')
E(f's_and_b32 s{sT+1}, s{sWave}, 2\n s_lshr_b32 s{sT+2}, s{sWave}, 2\n s_add_u32 s{sT+1}, s{sT+1}, s{sT+2}\n s_lshl_b32 s{sT+1}, s{sT+1}, 11\n s_and_b32 s{sT+2}, s{sWave}, 1\n s_lshl_b32 s{sT+2}, s{sT+2}, 10\n s_add_u32 s{sT+1}, s{sT+1}, s{sT+2}\n s_add_u32 s{sT+1}, s{sT+1}, {L_QA}\n v_add_u32 v2, s{sT+1}, v6\n v_xor_b32 v3, 0x800, v2')
AK0=120; AV0=121; AEX=122; AG=126
E(f'v_add_u32 v{AK0}, {L_ST}, v{AKA}\n v_add_u32 v{AV0}, {L_ST}, v{AVA}')
E(f's_and_b32 s{sT+2}, s{sWave}, 3\n s_mul_i32 s{sT+1}, s{sT+2}, 4608\n s_add_u32 s{sT+1}, s{sT+1}, {L_EX}\n v_add_u32 v{AEX}, s{sT+1}, v6\n v_add_u32 v{AEX+1}, s{sT+1}, v11')
E(f's_lshl_b32 s{sT+2}, s{sT+2}, 2\n s_add_u32 s{sT+2}, s{sT+2}, {C_PR}\n v_mov_b32 v{AEX+2}, s{sT+2}')
E(f's_and_b32 s{sT+1}, s{sWave}, 1\n s_lshl_b32 s{sT+2}, s{sPb}, 1\n s_add_u32 s{sT+1}, s{sT+1}, s{sT+2}\n s_lshl_b32 s{sT+1}, s{sT+1}, 7\n s_add_u32 s{sT+1}, s{sT+1}, {hex(WS_G)}\n v_and_b32 v127, 0x7c, v11')
C('one look for both conditions: first K/V chunk in (even lanes), own q tile written (odd lanes)')
E(f's_and_b32 s{sT+2}, s{sWave}, 3\n s_lshl_b32 s{sT+2}, s{sT+2}, 2\n s_add_u32 s{sT+2}, s{sT+2}, {T_Q-T_K0}\n v_and_b32 v4, 1, v0\n v_mul_u32_u24 v4, s{sT+2}, v4\n v_add_u32 v4, {T_K0}, v4\n s_mov_b32 s{sCnt}, {SPIN_LIMIT}')
LBL('L_A_WQ')
E(f'ds_read_b32 v5, v4\n s_waitcnt lgkmcnt(0)\n v_cmp_ne_u32 vcc, 1, v5\n s_cbranch_vccz L_A_WD\n s_sub_u32 s{sCnt}, s{sCnt}, 1\n s_cbranch_scc1 L_A_WD\n s_sleep 1\n s_branch L_A_WQ')
LBL('L_A_WD')
stamp('A',4,'BQ'); cstamp('A',8,'BQ')
def kvoff(j):
    return (j%4)*4096+(0 if j<4 else KVPOS[j//4]-(65536 if j>=16 else 0))
def ldk(j): E(f'ds_read_b128 {vr(AK+4*(j&1),4)}, v{AK0 if j<4 else AKA} offset:{kvoff(j)}')
def ldv(j): E(f's_mov_b64 exec, {sr(sVM,2)}\n ds_read_b128 {vr(AV+8*(j&1),4)}, v{AV0 if j<4 else AVA} offset:{kvoff(j)+1024}\n ds_read_b128 {vr(AV+8*(j&1)+4,4)}, v{AV0 if j<4 else AVA} offset:{kvoff(j)+1536}\n s_mov_b64 exec, -1')
E(f's_setprio 2\n ds_read_b128 {vr(AQ0,4)}, v2')
ldk(0)
E(f'ds_read_b128 {vr(AQ1,4)}, v3')
ldv(0); ldk(1)
E('s_waitcnt lgkmcnt(3)'); mfma(SA,AK,AQ0,'0')
E(f'buffer_load_dword v{AG}, v127, {sr(sWS)}, s{sT+1} offen sc1\n s_nop 10')
def pair_iter(j,ldk_,ldv_,first=False,last=0,extra=0):
    kc=AK+4*(j&1); kn=AK+4*((j+1)&1); vc=AV+8*(j&1); vp=AV+8*((j+1)&1)
    vexp(SA); vexp(SA+1)
    if not first: smf(OB,vp+4,SB+8,AIDX)
    for r in range(2,5): vexp(SA+r)
    mfma(SB,kc,AQ1,'0')
    for r in range(5,10): vexp(SA+r)
    E(f's_waitcnt lgkmcnt({(1 if last<2 else 0)+extra})')
    vexp(SA+10); smf(OA,vc,SA,AIDX)
    for r in range(11,16): vexp(SA+r)
    vexp(SB); vexp(SB+1); smf(OA,vc+4,SA+8,AIDX)
    if last<2: ldv_()
    for r in range(2,5): vexp(SB+r)
    if last<2:
        E('s_waitcnt lgkmcnt(2)'); mfma(SA,kn,AQ0,'0')
    if last<1: ldk_()
    for r in range(5,11): vexp(SB+r)
    smf(OB,vc,SB,AIDX)
    for r in range(11,16): vexp(SB+r)
def aflag(force,init=False):
    sk=uid('fl')
    E(f's_cmp_eq_u32 s{sT+5}, 0\n s_cbranch_scc0 {sk}')
    if not force: E(f's_getreg_b32 s{sT}, hwreg(HW_REG_IB_STS, 0, 4)\n s_cmp_eq_u32 s{sT}, 0\n s_cbranch_scc0 {sk}')
    E(f's_waitcnt vmcnt(0)\n s_mov_b32 s{sT+5}, 1'); tag_get(2); flag_store(sT+6,2); LBL(sk)
if ROLL:
    AKN=120; AVN=121; sC=sT+4
    def rk(j):
        a_=AKA if j<4 else AKN
        return lambda: E(f'ds_read_b128 {vr(AK+4*(j&1),4)}, v{a_} offset:{(j%4)*4096}')
    def rv(j):
        a_=AVA if j<4 else AVN
        return lambda: E(f's_mov_b64 exec, {sr(sVM,2)}\n ds_read_b128 {vr(AV+8*(j&1),4)}, v{a_} offset:{(j%4)*4096+1024}\n ds_read_b128 {vr(AV+8*(j&1)+4,4)}, v{a_} offset:{(j%4)*4096+1536}\n s_mov_b64 exec, -1')
    for r in range(8,16): E(f'v_mov_b32 v{SB+r}, 0')
    E(f'v_add_u32 v{AKN}, 0x8000, v{AKA}\n v_add_u32 v{AVN}, 0x8000, v{AVA}\n v_add_u32 v{AKA}, 0x4000, v{AKA}\n v_add_u32 v{AVA}, 0x4000, v{AVA}\n s_mov_b32 s{sC}, 0\n s_mov_b32 s{sT+5}, 0')
    L.append('.p2align 6')
    LBL('L_A_LOOP')
    pair_iter(0,rk(2),rv(1)); pair_iter(1,rk(3),rv(2))
    E(f's_cmp_gt_u32 s{sC}, 6\n s_cbranch_scc1 L_A_LAST\n s_bitcmp1_b32 0x5f, s{sC}\n s_cbranch_scc1 L_A_RARE')
    LBL('L_A_RBACK')
    pair_iter(2,rk(4),rv(3)); pair_iter(3,rk(5),rv(4))
    E(f's_add_u32 s{sC}, s{sC}, 1\n s_mov_b32 s{sT+1}, 0x4000\n s_cmp_eq_u32 s{sC}, 2\n s_cselect_b32 s{sT+1}, {hex((-49152)&0xffffffff)}, s{sT+1}\n s_cmp_eq_u32 s{sC}, 3\n s_cselect_b32 s{sT+1}, {hex((-65536)&0xffffffff)}, s{sT+1}')
    E(f'v_mov_b32 v{AKA}, v{AKN}\n v_mov_b32 v{AVA}, v{AVN}\n v_add_u32 v{AKN}, s{sT+1}, v{AKN}\n v_add_u32 v{AVN}, s{sT+1}, v{AVN}\n s_branch L_A_LOOP')
    LBL('L_A_RARE')
    E(f's_waitcnt lgkmcnt(0)\n s_cmp_gt_u32 s{sC}, 3\n s_cbranch_scc1 L_A_R4')
    E(f's_cmp_eq_u32 s{sC}, 0\n s_cbranch_scc0 L_A_R1'); lds_spin(C_K1,None,4,vZ,2,sleep=0)
    LBL('L_A_R1')
    E(f's_cmp_eq_u32 s{sC}, 2\n s_cbranch_scc0 L_A_R2'); lds_spin(C_K2,None,4,vZ,2,sleep=1)
    LBL('L_A_R2')
    E(f's_cmp_eq_u32 s{sC}, 3\n s_cbranch_scc1 L_A_R3'); aflag(False); E('s_branch L_A_RBACK')
    LBL('L_A_R3'); aflag(True); E('s_branch L_A_RBACK')
    LBL('L_A_R4')
    E(f's_cmp_eq_u32 s{sC}, 4\n s_cbranch_scc0 L_A_R6'); lds_add(C_MID,1,vZ,2); E('s_waitcnt lgkmcnt(0)\n s_branch L_A_RBACK')
    LBL('L_A_R6'); lds_spin(C_MID,None,8,vZ,2,sleep=1); E('s_branch L_A_RBACK')
    LBL('L_A_LAST')
    pair_iter(2,None,rv(3),last=1); pair_iter(3,None,None,last=2)
else:
    E(f's_and_b32 s{sT+5}, s{sWave}, 6\n s_cmp_eq_u32 s{sT+5}, 2\n s_cselect_b32 s{sT+5}, 0, 1')
    for j in range(32):
        if j in (2,6,10): E('s_waitcnt lgkmcnt(0)'); tag_wait(T_G+4*{2:2,6:3,10:1}[j],1,2)
        if j in (1,2,3,5): aflag(j==5)
        PJ=[int(x) for x in OPT.get('pj','16,29').split(',')]
        if PRIO=='step' and j in PJ: E(f's_setprio {1 if j==PJ[0] else 0}')
        if PRIO=='step4' and j in (6,16): E(f's_setprio {1 if j==6 else 0}')
        if OPT.get('jst') and j in (2,4,8,16,24): E('s_waitcnt lgkmcnt(0)'); cstamp('A',{2:1,4:2,8:3,16:7,24:10}[j],f'J{j}')
        if j==14: E('s_waitcnt lgkmcnt(0)'); lds_spin(C_K2,None,0x404,vZ,2,sleep=1)
        if j==16: lds_add(C_MID,1,vZ,2)
        if j==28: E('s_waitcnt lgkmcnt(0)'); lds_spin(C_MID,None,8,vZ,2,sleep=1)
        def lv(j=j):
            if j==15: E(f'v_add_u32 v{AVA}, 0x10000, v{AVA}')
            ldv(j+1)
        def lk(j=j):
            if j==14: E(f'v_add_u32 v{AKA}, 0x10000, v{AKA}')
            ldk(j+2)
        if j==31:
            C('has the partner of this wave (same queries, other keys) already left its sums ?  if so they arrive during the last tile')
            E(f'ds_read_b32 v127, v{AEX+2} offset:16\n ds_read_b32 v125, v{vZ} offset:{C_LOC-L_ST}')
            for q in range(2): E(f'ds_read_b128 {vr(128+12*q,4)}, v{AEX} offset:{2304*q}\n ds_read_b128 {vr(132+12*q,4)}, v{AEX} offset:{2304*q+1024}\n ds_read_b32 v{136+12*q}, v{AEX+1} offset:{2304*q+2048}')
        pair_iter(j,lk,lv,first=(j==0),last=(2 if j==31 else 1 if j==30 else 0),extra=(1 if j==16 else 0))
E('s_nop 1'); smf(OB,AV+8+4,SB+8,AIDX)
stamp('A',5,'A loop done'); cstamp('A',9,'loop done')
C('---- the first wave of a pair to finish leaves both partial sums in LDS and ends ; the second one finishes both heads')
E(f'v_readfirstlane_b32 s{sT+1}, v127\n v_readfirstlane_b32 s{sT+9}, v125\n s_cmp_eq_u32 s{sT+1}, 1\n s_cbranch_scc1 L_A_LATE')
E(f'v_mov_b32 v2, 1\n s_mov_b64 exec, 1\n ds_add_rtn_u32 v3, v{AEX+2}, v2\n s_mov_b64 exec, -1\n s_waitcnt lgkmcnt(0)\n v_readfirstlane_b32 s{sT+1}, v3\n s_cmp_eq_u32 s{sT+1}, 0\n s_cbranch_scc0 L_A_TIE\n s_nop 3')
for q,O in enumerate((OA,OB)): E(f'ds_write_b128 v{AEX}, {vr(O,4)} offset:{2304*q}\n ds_write_b128 v{AEX}, {vr(O+4,4)} offset:{2304*q+1024}\n ds_write_b32 v{AEX+1}, v{O+8} offset:{2304*q+2048}')
E(f's_mov_b64 exec, 1\n ds_write_b32 v{AEX+2}, v2 offset:16\n s_mov_b64 exec, -1\n s_waitcnt lgkmcnt(0)')
if OPT.get('dry','0')=='1': E('s_mov_b64 exec, 0\n s_branch L_A_LATE')
else: E('s_branch L_A_STD')
LBL('L_A_TIE')
E(f's_mov_b32 s{sCnt}, {SPIN_LIMIT}')
LBL('L_A_TI2')
E(f'ds_read_b32 v127, v{AEX+2} offset:16')
for q in range(2): E(f'ds_read_b128 {vr(128+12*q,4)}, v{AEX} offset:{2304*q}\n ds_read_b128 {vr(132+12*q,4)}, v{AEX} offset:{2304*q+1024}\n ds_read_b32 v{136+12*q}, v{AEX+1} offset:{2304*q+2048}')
E(f's_waitcnt lgkmcnt(0)\n v_readfirstlane_b32 s{sT+1}, v127\n s_cmp_eq_u32 s{sT+1}, 1\n s_cbranch_scc1 L_A_LATE\n s_sub_u32 s{sCnt}, s{sCnt}, 1\n s_cbranch_scc0 L_A_TI2')
LBL('L_A_LATE')
for r in range(9): E(f'v_add_f32 v{OA+r}, v{OA+r}, v{140+r}')
for r in range(9): E(f'v_add_f32 v{OB+r}, v{OB+r}, v{128+r}')
C('guard (both heads): row sum inside [2^-24, 2^60] and finite numerators in every lane, else redo with the true maximum')
E(f'v_add_f32 v2, |v{OA}|, |v{OA+1}|\n v_add_f32 v4, |v{OB}|, |v{OB+1}|')
for r in range(2,8): E(f'v_add_f32 v2, v2, |v{OA+r}|\n v_add_f32 v4, v4, |v{OB+r}|')
E(f's_mov_b32 s{sT+2}, 0x7f800000\n s_mov_b32 s{sT+3}, {hex(L_LO)}\n s_mov_b32 s{sT+4}, {hex(L_HI)}')
E(f'v_cmp_ngt_f32 {sr(sT,2)}, s{sT+2}, v2\n v_cmp_ngt_f32 s[82:83], s{sT+2}, v4')
E(f'v_cmp_nle_f32 vcc, s{sT+3}, v{OA+8}\n v_cmp_nle_f32 {sr(sT+6,2)}, s{sT+3}, v{OB+8}\n s_or_b64 {sr(sT,2)}, {sr(sT,2)}, vcc\n s_or_b64 s[82:83], s[82:83], {sr(sT+6,2)}')
E(f'v_cmp_nge_f32 vcc, s{sT+4}, v{OA+8}\n v_cmp_nge_f32 {sr(sT+6,2)}, s{sT+4}, v{OB+8}\n s_or_b64 {sr(sT,2)}, {sr(sT,2)}, vcc\n s_or_b64 s[82:83], s[82:83], {sr(sT+6,2)}')
E(f's_or_b64 vcc, {sr(sT,2)}, s[82:83]\n s_cbranch_scc1 L_FB_AX')
LBL('L_FB_AX_BACK')
E(f'v_rcp_f32 v2, v{OA+8}\n v_rcp_f32 v4, v{OB+8}\n s_xor_b32 s{sT+1}, s{sOA}, 0x400\n s_waitcnt vmcnt(0)\n v_mul_f32 v2, v2, v126\n v_mul_f32 v4, v4, v126')
for r in range(0,8,2): E(f'v_pk_mul_f32 {vr(OA+r,2)}, {vr(OA+r,2)}, v[2:3] op_sel_hi:[1,0]\n v_pk_mul_f32 {vr(OB+r,2)}, {vr(OB+r,2)}, v[4:5] op_sel_hi:[1,0]')
for r in range(4): cvt(152+r,OA+2*r,OA+2*r+1); cvt(156+r,OB+2*r,OB+2*r+1)
E(f'v_min_u32 v152, -2, v152\n v_min_u32 v156, -2, v156\n s_cmp_eq_u32 s{sT+9}, 0\n s_cbranch_scc1 L_A_FAR')
E(f'buffer_store_dwordx4 v[152:155], v6, {sr(sWS)}, s{sOA} offen nt\n buffer_store_dwordx4 v[156:159], v6, {sr(sWS)}, s{sT+1} offen nt\n s_branch L_A_STD')
LBL('L_A_FAR')
E(f'buffer_store_dwordx4 v[152:155], v6, {sr(sWS)}, s{sOA} offen sc1\n buffer_store_dwordx4 v[156:159], v6, {sr(sWS)}, s{sT+1} offen sc1')
def setupA(): E(f's_mov_b32 s{sT+2}, {hex(WS_KVA)}\n s_mov_b32 s{sT+3}, 64')
save=L; L=[]
LBL('L_FB_AX')
E(f's_cmp_lg_u64 {sr(sT,2)}, 0\n s_cbranch_scc1 L_FB_A0')
LBL('L_FB_AX2')
E('s_cmp_lg_u64 s[82:83], 0\n s_cbranch_scc1 L_FB_A1\n s_branch L_FB_AX_BACK')
TAIL.extend(L); L=save
fallback('L_FB_A0','L_FB_AX2',AQ0,OA,SA,AK,AV,AIDX,3,6,7,None,setupA)
fallback('L_FB_A1','L_FB_AX_BACK',AQ1,OB,SA,AK,AV,AIDX,3,6,7,None,setupA)
LBL('L_A_STD')
if DIAG: E('s_mov_b64 exec, -1')
stamp('A',6,'oA published')
stamp_flush(12,'A')
LBL('L_END')
E('s_endpgm')
L.append('L_CODE_END:')
L.extend(TAIL)
L.append('    s_endpgm\n.fill 1200, 4, 0xbf810000')

hdr=open('cdna_kernels/%s.s.ref'%NAME).read().split('; Override launch')[0]
txt=hdr
txt+=f'; @launch grid=(256,1,1) block=(768,1,1) lds={LDS_TOTAL}\n'
DOC="""
One workgroup per CU: WG = (64 positions pb, 4 heads hg); 8 "A" waves + 4 "B" waves, LDS 160 KB.
 head : waves 0-3 project q(A), q/k/v(B) (weights streamed by LDS-DMA through private rings, transposing LDS reads),
        waves 4-7 make this WG's 16-position piece of the shared K/V (and the gate), publish it, wait for all pieces.
 main : A waves - MQA over all 2048 keys (S^T = K Q^T, exp2 in place, P^T fed raw to a 2:4 sparse MFMA that picks the
        high halves = bf16 P; a row of ones in V^T gives the row sums).  B waves - window attention, then B out-projection.
 tail : o (already divided by the row sum and scaled by g or 1-g) is handed to the WGs of the same positions,
        B waves finish out = [g oA | (1-g) oB] [woA ; woB].
 softmax guard: exp2 runs on unshifted scores; every row's sum must lie in [2^-24, 2^60] and its numerators must be finite,
        otherwise that query tile is redone with the true row maximum (L_FB_*: max pass, then exp2(s - max)).
 hand-offs in d_ws carry a tag derived from the epoch word found at ws[0] (advanced once per launch), or overwrite a
        'not yet written' mark; all are write-through + acknowledged, except oA between WGs that report the same XCC id.
"""
for l in DOC.strip('\n').split('\n'): txt+='; '+l+'\n'
for n in () if not DIAG and not OPT.get('consts') else ('WS_KVA','WS_KVB','WS_OA','WS_OB','WS_STAMP','NSTAMP'): txt+=f'; CONST {n} = {hex(globals()[n])}\n'
for r,i,n in STN: txt+=f'; STAMPNAME {r} {i} {n}\n'
txt+=f'''.amdgcn_target "amdgcn-amd-amdhsa--gfx950"
.text
.globl {NAME}_kernel
.p2align 8
.type {NAME}_kernel,@function
{NAME}_kernel:
'''+'\n'.join(L)+f'''
.section .rodata,"a"
.p2align 6
.amdhsa_kernel {NAME}_kernel
  .amdhsa_next_free_vgpr 168
  .amdhsa_next_free_sgpr 102
  .amdhsa_accum_offset 168
  .amdhsa_group_segment_fixed_size 0
  .amdhsa_kernarg_size 96
  .amdhsa_user_sgpr_count 2
  .amdhsa_user_sgpr_kernarg_segment_ptr 1
  .amdhsa_system_sgpr_workgroup_id_x 1
.end_amdhsa_kernel
'''
open(OUT,'w').write(txt)
print('wrote',OUT,len(L),'lines')
```
